```python
import torch

def _softmax(x, axis=-1):
    return torch.softmax(x, dim=axis)

def _gelu(x):
    return torch.nn.functional.gelu(x, approximate='tanh')

def _silu(x):
    return torch.nn.functional.silu(x)

def _sigmoid(x):
    return torch.sigmoid(x)

def _layernorm(x, axis=-1, eps=1e-05):
    m = x.mean(dim=axis, keepdim=True)
    v = x.var(dim=axis, keepdim=True, unbiased=False)
    return (x - m) / torch.sqrt(v + eps)

def _scatter_add(tgt, idx, src, axis=0):
    return tgt.clone().index_add_(axis, idx, src)

def _segment_sum(src, seg, n):
    out = torch.zeros((n,) + src.shape[1:], dtype=src.dtype)
    return out.index_add_(0, seg, src)

def _pad(x, pw):
    flat = tuple((v for pair in reversed(pw) for v in pair))
    return torch.nn.functional.pad(x, flat)
kernel_name = 'standalone__conformer_family_branchformer__speech'

def setup_inputs():

    _w = lambda a: (lambda t: t.to(torch.bfloat16) if t.is_floating_point() else t)(torch.as_tensor(a))
    B, T, D, K = (2, 4000, 256, 5)
    s = float(D) ** (-0.5)
    return {'x': _w((lambda *s: torch.randn(*s, dtype=torch.bfloat16) * 0.05)(B, T, D)), 'w_q': _w((lambda *s: torch.randn(*s, dtype=torch.bfloat16) * 1.6)(D, D) * s), 'w_k': _w((lambda *s: torch.randn(*s, dtype=torch.bfloat16) * 1.6)(D, D) * s), 'w_v': _w((lambda *s: torch.randn(*s, dtype=torch.bfloat16) * 0.4)(D, D) * s), 'w_ao': _w((lambda *s: torch.randn(*s, dtype=torch.bfloat16) * 0.4)(D, D) * s), 'w_up': _w((lambda *s: torch.randn(*s, dtype=torch.bfloat16) * 0.8)(D, 2 * D) * s), 'dw': _w((lambda *s: torch.randn(*s, dtype=torch.bfloat16) * 0.8)(K, D) * (1.0 / K)), 'w_dn': _w((lambda *s: torch.randn(*s, dtype=torch.bfloat16) * 0.4)(D, D) * s), 'w_merge': _w((lambda *s: torch.randn(*s, dtype=torch.bfloat16) * 0.4)(2 * D, D) * s)}

def reference(x, w_q, w_k, w_v, w_ao, w_up, dw, w_dn, w_merge):
    B, T, D = x.shape
    K = dw.shape[0]
    xa = _layernorm(x, axis=-1)
    q = torch.einsum('btd,de->bte', xa, w_q)
    k = torch.einsum('btd,de->bte', xa, w_k)
    v = torch.einsum('btd,de->bte', xa, w_v)
    logits = torch.einsum('btd,bsd->bts', q, k) * float(D) ** (-0.5)
    attn = _softmax(logits, axis=-1)
    ya = torch.einsum('bts,bsd->btd', attn, v)
    ya = torch.einsum('btd,de->bte', ya, w_ao)
    xc = _layernorm(x, axis=-1)
    h = _gelu(torch.einsum('btd,de->bte', xc, w_up))
    u = h[..., :D].clone()
    g = _layernorm(h[..., D:], axis=-1)
    pad = K // 2
    gp = _pad(g, ((0, 0), (pad, pad), (0, 0)))
    conv = torch.zeros_like(g)
    for i in range(K):
        conv = conv + gp[:, i:i + T, :] * dw[i][None, None, :]
    yc = torch.einsum('btd,de->bte', u * conv, w_dn)
    merged = torch.concatenate([ya, yc], axis=-1)
    out = torch.einsum('btf,fd->btd', merged, w_merge)
    return x + out
```

```python
XA_OFF = 0x0000000
QF_OFF = 0x0400000
U_OFF  = 0x0800000
G_OFF  = 0x0C00000
WF_OFF = 0x1000000
ML_OFF = 0x1100000
FL_OFF = 0x1200000
FLQ = 0x2000; FLU = 0xA000; FLW = 0x12000; FL_SIZE = 0x13000
OP_OFF = 0x1400000

def vr(b, n=1): return f"v{b}" if n == 1 else f"v[{b}:{b+n-1}]"
def ar(b, n=1): return f"a{b}" if n == 1 else f"a[{b}:{b+n-1}]"
def sr(b, n=1): return f"s{b}" if n == 1 else f"s[{b}:{b+n-1}]"

class Waiter:
    def __init__(self):
        self.q = {'lgkm': [], 'vm': []}
        self.maxc = {'lgkm': 15, 'vm': 63}
    def issue(self, cnt, tag):
        self.q[cnt].append(tag)
    def need(self, cnt, tags):
        q = self.q[cnt]
        idx = -1
        for t in tags:
            if t in q:
                idx = max(idx, len(q) - 1 - q[::-1].index(t))
        if idx < 0: return None
        n = len(q) - 1 - idx
        n = min(n, self.maxc[cnt])
        self.q[cnt] = q[len(q)-n:] if n > 0 else []
        return n
    def drain(self, cnt):
        self.q[cnt] = []

def kernel_header(name):
    return [f".globl {name}", ".p2align 8", f".type {name},@function", f"{name}:"]

def kernel_desc(name, vgpr, accum, sgpr=102):
    return [".p2align 6", f".amdhsa_kernel {name}",
            f"  .amdhsa_next_free_vgpr {vgpr}", f"  .amdhsa_next_free_sgpr {sgpr}",
            f"  .amdhsa_accum_offset {accum}", "  .amdhsa_group_segment_fixed_size 0",
            "  .amdhsa_kernarg_size 96", "  .amdhsa_user_sgpr_count 2",
            "  .amdhsa_user_sgpr_kernarg_segment_ptr 1", "  .amdhsa_system_sgpr_workgroup_id_x 1",
            "  .amdhsa_float_denorm_mode_32 3",
            ".end_amdhsa_kernel"]

def srd(e, s, base_lo, base_hi, off, nbytes):
    if isinstance(off, int):
        e(f"s_add_u32 s{s}, {base_lo}, {off:#x}")
        e(f"s_addc_u32 s{s+1}, {base_hi}, 0")
    else:
        e(f"s_add_u32 s{s}, {base_lo}, {off}")
        e(f"s_addc_u32 s{s+1}, {base_hi}, 0")
    e(f"s_mov_b32 s{s+2}, {nbytes if isinstance(nbytes,str) else hex(nbytes)}")
    e(f"s_mov_b32 s{s+3}, 0x20000")
```

```python
from gen_common import *
from tl import TL
import hazard
SLOT = 16384
EX = 131072

def lane_setup(e):
    e("v_and_b32 v240, 63, v0")
    e("v_lshrrev_b32 v241, 5, v240")
    e("v_and_b32 v242, 31, v240")

def gen_k1(opt=None):
    o = dict(D=6, stamp=False)
    if opt: o.update(opt)
    D = o['D']
    name = 'prep_kernel'
    L = []; e = L.append
    B = 0; ACC = [64, 128]; KA = 192; KA2 = 200; VN = 208; VN2 = 216; DV = 224
    aR = 0; R = 8
    L += kernel_header(name)
    e("s_cmp_ge_u32 s2, 256")
    e("s_cbranch_scc1 K1_END")
    e("s_load_dwordx16 s[36:51], s[0:1], 0")
    e("s_load_dwordx2 s[52:53], s[0:1], 64")
    e("s_load_dwordx2 s[54:55], s[0:1], 88")
    if o['stamp']:
        e("s_memtime s[60:61]"); e("s_memrealtime s[62:63]")
    e("v_lshrrev_b32 v232, 6, v0")
    lane_setup(e)
    e("v_readfirstlane_b32 s28, v232")
    e("s_and_b32 s29, s28, 1")
    e("s_lshr_b32 s30, s28, 1")
    e("s_lshl_b32 s31, s28, 12")
    e("v_and_b32 v234, 3, v242")
    e("v_lshlrev_b32 v234, 2, v234")
    e("v_bfe_u32 v235, v242, 2, 2")
    e("v_or_b32 v234, v234, v235")
    e("v_lshlrev_b32 v236, 9, v242")
    e("s_lshl_b32 s33, s30, 14")
    e("v_add_u32 v236, s33, v236")
    for jj in range(8):
        e(f"v_add_u32 v235, {2*jj}, v241")
        e("v_xor_b32 v235, v235, v234")
        e(f"v_lshl_add_u32 v{KA+jj}, v235, 4, v236")
        e(f"v_add_u32 v{KA2+jj}, 0x10000, v{KA+jj}")
    e("v_bfe_u32 v234, v240, 4, 1")
    e("v_bfe_u32 v235, v240, 2, 2")
    e("v_bfe_u32 v236, v240, 1, 1")
    e("v_lshl_add_u32 v236, v234, 1, v236")
    e("v_and_b32 v237, 1, v240")
    e("v_lshlrev_b32 v237, 3, v237")
    e("v_lshl_add_u32 v238, v241, 3, v235")
    e("v_lshl_add_u32 v237, v238, 9, v237")
    e("s_lshl_b32 s33, s30, 8")
    e("v_add_u32 v237, s33, v237")
    for a in range(4):
        for u in range(2):
            e(f"v_lshl_add_u32 v238, v241, 1, {u}")
            e("v_lshl_or_b32 v238, v235, 2, v238")
            e(f"v_add_u32 v239, {4*a}, v236")
            e("v_xor_b32 v238, v238, v239")
            e(f"v_lshl_add_u32 v{VN+a*2+u}, v238, 4, v237")
            if u: e(f"v_add_u32 v{VN+a*2+u}, {4*512}, v{VN+a*2+u}")
            e(f"v_add_u32 v{VN2+a*2+u}, 0x10000, v{VN+a*2+u}")
    def dma_voff(stride1024):
        e("s_lshl_b32 s33, s28, 1")
        for k in range(4):
            e(f"v_add_u32 v234, {2*k}, v241")
            e("v_and_b32 v234, 3, v234")
            e("v_lshlrev_b32 v234, 2, v234")
            e(f"s_add_u32 s34, s33, {k>>1}")
            e("s_and_b32 s34, s34, 3")
            e("v_or_b32 v234, s34, v234")
            e("v_xor_b32 v234, v242, v234")
            e("v_lshlrev_b32 v234, 4, v234")
            if not stride1024:
                e("v_lshl_add_u32 v234, v241, 9, v234")
                e("s_lshl_b32 s34, s28, 12")
            else:
                e("v_lshl_add_u32 v234, v241, 10, v234")
                e("s_lshl_b32 s34, s28, 13")
                e(f"s_add_u32 s34, s34, {k*1024}")
            e(f"v_add_u32 v{DV+k}, s34, v234")
    e("s_waitcnt lgkmcnt(0)")
    e("s_cmp_lt_u32 s2, 125"); e("s_cbranch_scc1 K1_Q")
    e("s_cmp_lt_u32 s2, 250"); e("s_cbranch_scc1 K1_UG")
    e("s_cmp_lt_u32 s2, 254"); e("s_cbranch_scc1 K1_W1")
    e("s_branch K1_W2")

    def tile_dma(tl, t0, n, srdn, soff, W=None, lst=None):
        r = [(f"s_add_u32 m0, s31, {(n%8)*SLOT:#x}", False), (f"s_mov_b32 s32, {soff:#x}", False)]
        for k in range(4):
            r.append((f"buffer_load_dwordx4 v{DV+k}, s[{srdn}:{srdn+3}], s32 offen offset:{k*1024} lds", True))
        return r
    def emit_tile(out, W, n, srdn, soff):
        for txt, vm in tile_dma(None, 0, n, srdn, soff):
            out.append(txt)
            if vm: W.issue('vm', ('T', n))
    def x_loads(out, W):
        out.append("s_lshl_b32 s33, s35, 6")
        out.append("s_lshl_b32 s34, s29, 5")
        out.append("s_add_u32 s33, s33, s34")
        out.append("v_add_u32 v243, s33, v242")
        out.append("v_lshlrev_b32 v243, 9, v243")
        out.append("v_lshl_add_u32 v243, v241, 4, v243")
        for s in range(16):
            out.append(f"buffer_load_dwordx4 {vr(B+4*s,4)}, v243, s[16:19], 0 offen offset:{32*s}")
            W.issue('vm', ('X', s))
    def ln(out, W):
        n = W.need('vm', [('X', 15)])
        out.append(f"s_waitcnt vmcnt({n})")
        out.append("s_mov_b32 s34, 0x3f803f80")
        for k in range(4): out.append(f"v_mov_b32 v{232+k}, 0")
        for r in range(64):
            out.append(f"v_dot2_f32_bf16 v{232+(r&1)}, v{B+r}, s34, v{232+(r&1)}")
            out.append(f"v_dot2_f32_bf16 v{234+(r&1)}, v{B+r}, v{B+r}, v{234+(r&1)}")
        out.append("s_nop 2")
        out.append("v_add_f32 v232, v232, v233")
        out.append("v_add_f32 v234, v234, v235")
        out.append("v_mov_b32 v233, v232")
        out.append("v_mov_b32 v235, v234")
        out.append("s_nop 1")
        out.append("v_permlane32_swap_b32 v232, v233")
        out.append("v_permlane32_swap_b32 v234, v235")
        out.append("s_nop 1")
        out.append("v_add_f32 v232, v232, v233")
        out.append("v_add_f32 v234, v234, v235")
        out.append("v_mul_f32 v232, 0x3b800000, v232")
        out.append("v_mul_f32 v234, 0x3b800000, v234")
        out.append("v_fma_f32 v234, -v232, v232, v234")
        out.append("v_max_f32 v234, 0, v234")
        out.append("v_add_f32 v234, 0x3727c5ac, v234")
        out.append("v_rsq_f32 v234, v234")
        out.append("s_nop 0")
        out.append("v_mul_f32 v236, v232, v234")
        out.append("v_sub_f32 v236, 0, v236")
        for r in range(64):
            t = 244 + 2*(r % 4)
            out.append(f"v_lshlrev_b32 v{t}, 16, v{B+r}")
            out.append(f"v_and_b32 v{t+1}, 0xffff0000, v{B+r}")
            out.append(f"v_pk_fma_f32 v[{t}:{t+1}], v[{t}:{t+1}], v[234:235], v[236:237] op_sel_hi:[1,0,0]")
            out.append(f"v_cvt_pk_bf16_f32 v{B+r}, v{t}, v{t+1}")
    def phase(W, p, kind, srdn, later, Bregs=B):
        tl = TL(W)
        acc = ACC[p]
        cnt = [0]
        for a in range(4):
            sig = 4*p + a
            tb = 16*a - D - 1
            tl.add(tb, 'bar', needvm=[('T', 2*sig), ('T', 2*sig+1)], prio=1)
            k = 0
            for (n, sn, so) in later.get(sig, []):
                for txt, vm in tile_dma(None, 0, n, sn, so):
                    if vm:
                        tl.add(tb + 1 + k, 'vm', txt, tag=('T', n), prio=7); k += 1
                    else:
                        tl.add(tb + 1 + k, 'txt', txt, prio=6)
            for m in range(16):
                tm = 16*a + m
                ri = cnt[0] % R; cnt[0] += 1
                ring = aR + 4*ri
                if kind == 'X':
                    j = m
                    slot = 2*a
                    base = (KA if slot < 4 else KA2) + (j & 7)
                    off = (slot % 4)*SLOT + (j >> 3)*256
                    tag = (p, a, m)
                    tl.add(tm - D, 'lds', f"ds_read_b128 {ar(ring,4)}, v{base} offset:{off}", tag=tag, prio=2)
                    c = vr(acc+16*a,16) if j else '0'
                    tl.add(tm, 'mfma', f"v_mfma_f32_32x32x16_bf16 {vr(acc+16*a,16)}, {ar(ring,4)}, {vr(Bregs+4*j,4)}, {c}", need=[tag], prio=0)
                else:
                    tt, s, aa = m >> 3, (m >> 2) & 1, m & 3
                    tau = 2*a + tt
                    slot = tau
                    tags = []
                    for u in range(2):
                        base = (VN if slot < 4 else VN2) + aa*2 + u
                        off = (slot % 4)*SLOT + 16*s*512
                        tag = (p, a, m, u); tags.append(tag)
                        tl.add(tm - D, 'lds', f"ds_read_b64_tr_b16 {ar(ring+2*u,2)}, v{base} offset:{off}", tag=tag, prio=2)
                    c = vr(acc+16*aa,16) if (tau or s) else '0'
                    tl.add(tm, 'mfma', f"v_mfma_f32_32x32x16_bf16 {vr(acc+16*aa,16)}, {ar(ring,4)}, {vr(Bregs+4*(2*tau+s),4)}, {c}", need=tags, prio=0)
        return tl
    def pack_swap(out, src, dst, swap=True, scale=None):
        if scale:
            for k in range(8):
                out.append(f"v_pk_mul_f32 v[{src+2*k}:{src+2*k+1}], v[{src+2*k}:{src+2*k+1}], {scale} op_sel_hi:[1,0]")
        for k in range(8):
            out.append(f"v_cvt_pk_bf16_f32 v{dst+k}, v{src+2*k}, v{src+2*k+1}")
        if swap:
            out.append("s_nop 1")
            for b in (0, 4):
                out.append(f"v_permlane32_swap_b32 v{dst+b}, v{dst+b+2}")
                out.append(f"v_permlane32_swap_b32 v{dst+b+1}, v{dst+b+3}")
    def exchange(out, W, acc, kind):
        out.append("s_nop 15")
        out.append("v_lshlrev_b32 v232, 4, v240")
        out.append(f"s_lshl_b32 s33, s29, 14")
        out.append(f"s_add_u32 s33, s33, {EX}")
        out.append("v_add_u32 v233, s33, v232")
        out.append(f"s_lshl_b32 s34, s30, {13 if kind=='Y' else 11}")
        out.append("v_add_u32 v232, s34, v233")
        for a in range(4):
            d = 244 if a % 2 == 0 else 236
            d = 244
            pack_swap(out, acc+16*a, d)
            for s in range(2):
                f = (2*a + s) if kind == 'Y' else (4*a + s)
                out.append(f"ds_write_b128 v232, {vr(d+4*s,4)} offset:{f*1024}")
            out.append("s_nop 0")
        out.append("s_waitcnt lgkmcnt(0)")
        out.append("s_barrier")
        for f in range(16):
            out.append(f"ds_read_b128 {vr(B+4*f,4)}, v233 offset:{f*1024}")
        out.append("s_waitcnt lgkmcnt(0)")
        W.drain('lgkm')
    def narrow(out, W, rowbase_bytes, slice_sreg):
        out.append("v_lshrrev_b32 v232, 3, v240")
        out.append("v_lshlrev_b32 v232, 9, v232")
        out.append("v_and_b32 v233, 7, v240")
        out.append("v_lshl_add_u32 v232, v233, 4, v232")
        out.append(f"s_lshl_b32 s33, {slice_sreg}, 7")
        out.append(f"s_lshl_b32 s34, s28, 15")
        out.append("s_add_u32 s33, s33, s34")
        out.append(f"s_add_u32 s33, s33, {rowbase_bytes}")
        out.append("v_add_u32 v232, s33, v232")
        out.append("s_lshl_b32 s34, s28, 13")
        out.append(f"s_add_u32 s34, s34, {EX}")
        for i in range(8):
            out.append(f"s_add_u32 m0, s34, {i*1024}")
            out.append(f"s_mov_b32 s32, {i*4096}")
            out.append(f"buffer_load_dwordx4 v232, s[16:19], s32 offen lds")
            W.issue('vm', ('N', i))
    def narrow_read(out, W):
        n = W.need('vm', [('N', 7)])
        out.append(f"s_waitcnt vmcnt({n})")
        out.append("s_barrier")
        out.append("v_bfe_u32 v232, v240, 2, 2")
        out.append("v_lshl_add_u32 v232, v241, 3, v232")
        out.append("v_lshlrev_b32 v232, 7, v232")
        out.append("v_bfe_u32 v233, v240, 4, 1")
        out.append("v_lshl_add_u32 v232, v233, 5, v232")
        out.append("v_and_b32 v233, 3, v240")
        out.append("v_lshl_add_u32 v232, v233, 3, v232")
        out.append("s_lshl_b32 s33, s29, 6")
        out.append(f"s_add_u32 s33, s33, {EX}")
        out.append("v_add_u32 v232, s33, v232")
        for s in range(16):
            for u in range(2):
                out.append(f"ds_read_b64_tr_b16 {vr(B+4*s+2*u,2)}, v232 offset:{s*2048+u*512}")
            if s % 4 == 3: out.append("s_waitcnt lgkmcnt(0)")
        W.drain('lgkm')
    lin_all = []
    def finish(task_lines, label):
        fixed = hazard.autofix(task_lines)
        e(f"{label}:")
        L.extend(fixed)
        e("s_branch K1_FIN")

    W = Waiter(); T = []; L0 = L;
    saveL = None
    def capture(fn):
        nonlocal e
        buf = []
        old = e
        e = buf.append
        fn()
        e = old
        return buf
    T += capture(lambda: dma_voff(False))
    T.append("s_mov_b32 s35, s2")
    T += capture(lambda: (srd(e, 16, 's36', 's37', 0, 8000*512), srd(e, 8, 's38', 's39', 0, 131072), srd(e, 12, 's40', 's41', 0, 131072),
                          srd(e, 20, 's54', 's55', XA_OFF, 8000*512), srd(e, 24, 's54', 's55', QF_OFF, 250*16384)))
    x_loads(T, W)
    for n in range(8): emit_tile(T, W, n, 8, n*SLOT)
    ln(T, W)
    T.append("s_lshl_b32 s33, s30, 8")
    T.append("v_add_u32 v232, s33, v243")
    T.append("s_cmp_eq_u32 s30, 0")
    T.append("s_cbranch_scc0 K1_Q_XH")
    for s in range(8):
        T.append(f"buffer_store_dwordx4 {vr(B+4*s,4)}, v232, s[20:23], 0 offen offset:{32*s}")
    T.append("s_branch K1_Q_XD")
    T.append("K1_Q_XH:")
    for s in range(8):
        T.append(f"buffer_store_dwordx4 {vr(B+32+4*s,4)}, v232, s[20:23], 0 offen offset:{32*s}")
    T.append("K1_Q_XD:")
    for s in range(8): W.issue('vm', ('XS', s))
    later = {2: [(8, 12, 0), (9, 12, SLOT)], 3: [(10, 12, 2*SLOT), (11, 12, 3*SLOT)], 4: [(12, 12, 4*SLOT), (13, 12, 5*SLOT)], 5: [(14, 12, 6*SLOT), (15, 12, 7*SLOT)]}
    T += phase(W, 0, 'Y', 8, later).linearize()
    exchange(T, W, ACC[0], 'Y')
    T += phase(W, 1, 'X', 12, later).linearize()
    T.append("s_nop 15")
    T.append("v_mov_b32 v236, 0x3db8aa3b")
    T.append("s_lshl_b32 s33, s35, 1"); T.append("s_add_u32 s33, s33, s29"); T.append("s_lshl_b32 s33, s33, 14")
    T.append("s_lshl_b32 s34, s30, 11"); T.append("s_add_u32 s33, s33, s34")
    T.append("v_lshlrev_b32 v232, 4, v240"); T.append("v_add_u32 v232, s33, v232")
    for a in range(4):
        d = 244 if a % 2 == 0 else 0
        pack_swap(T, ACC[1]+16*a, d, scale="v[236:237]")
        T.append(f"s_mov_b32 s33, {a*4096}")
        for s in range(2):
            T.append(f"buffer_store_dwordx4 {vr(d+4*s,4)}, v232, s[24:27], s33 offen offset:{s*1024}")
    finish(T, "K1_Q")

    W = Waiter(); T = []
    T += capture(lambda: dma_voff(True))
    T.append("s_sub_u32 s35, s2, 125")
    T += capture(lambda: (srd(e, 16, 's36', 's37', 0, 8000*512), srd(e, 8, 's46', 's47', 0, 262144),
                          srd(e, 20, 's54', 's55', U_OFF, 8000*512), srd(e, 24, 's54', 's55', G_OFF, 8000*512)))
    x_loads(T, W)
    for n in range(8): emit_tile(T, W, n, 8, n*32768)
    ln(T, W)
    gl = lambda n: (n, 8, (n-8)*32768 + 512)
    later = {2: [gl(8), gl(9)], 3: [gl(10), gl(11)], 4: [gl(12), gl(13)], 5: [gl(14), gl(15)]}
    T += phase(W, 0, 'Y', 8, later).linearize()
    T += phase(W, 1, 'Y', 8, later).linearize()
    T.append("s_nop 15")
    k0 = -2.0*1.4426950408889634*0.7978845608028654
    import struct
    fb = lambda x: hex(struct.unpack('<I', struct.pack('<f', x))[0])
    T.append(f"v_mov_b32 v232, {fb(k0)}"); T.append(f"v_mov_b32 v234, {fb(k0*0.044715)}"); T.append("v_mov_b32 v236, 1.0")
    def gelu(r):
        t = 244 + 2*((r//2) % 4)
        X = f"v[{r}:{r+1}]"; Tt = f"v[{t}:{t+1}]"
        return [f"v_pk_mul_f32 {Tt}, {X}, {X}",
                f"v_pk_fma_f32 {Tt}, {Tt}, v[234:235], v[232:233] op_sel_hi:[1,0,0]",
                f"v_pk_mul_f32 {Tt}, {Tt}, {X}",
                f"v_exp_f32 v{t}, v{t}", f"v_exp_f32 v{t+1}, v{t+1}",
                f"v_pk_add_f32 {Tt}, {Tt}, v[236:237] op_sel_hi:[1,0]",
                f"v_rcp_f32 v{t}, v{t}", f"v_rcp_f32 v{t+1}, v{t+1}",
                f"v_pk_mul_f32 {X}, {X}, {Tt}"]
    def gelu_range(r0, n):
        for b in range(r0, r0+n, 8):
            cols = [gelu(b+2*k) for k in range(4)]
            for i in range(9):
                for k in range(4): T.append(cols[k][i])
    gelu_range(ACC[0], 128)
    T.append("s_lshl_b32 s33, s30, 8"); T.append("v_add_u32 v238, s33, v243")
    for a in range(4):
        d = 244 if a % 2 == 0 else 0
        pack_swap(T, ACC[0]+16*a, d)
        for s in range(2):
            T.append(f"buffer_store_dwordx4 {vr(d+4*s,4)}, v238, s[20:23], 0 offen offset:{64*a+32*s}")
    g0 = ACC[1]
    T.append("v_mov_b32 v8, 0"); T.append("v_mov_b32 v9, 0"); T.append("v_mov_b32 v10, 0"); T.append("v_mov_b32 v11, 0")
    for k in range(32):
        T.append(f"v_pk_add_f32 v[8:9], v[8:9], v[{g0+2*k}:{g0+2*k+1}]")
        T.append(f"v_pk_fma_f32 v[10:11], v[{g0+2*k}:{g0+2*k+1}], v[{g0+2*k}:{g0+2*k+1}], v[10:11]")
    T.append("v_add_f32 v8, v8, v9"); T.append("v_add_f32 v10, v10, v11")
    T.append("v_mov_b32 v9, v8"); T.append("v_mov_b32 v11, v10"); T.append("s_nop 1")
    T.append("v_permlane32_swap_b32 v8, v9"); T.append("v_permlane32_swap_b32 v10, v11"); T.append("s_nop 1")
    T.append("v_add_f32 v8, v8, v9"); T.append("v_add_f32 v9, v10, v11")
    T.append("s_lshl_b32 s33, s29, 1"); T.append("s_add_u32 s33, s33, s30"); T.append("s_lshl_b32 s33, s33, 9"); T.append(f"s_add_u32 s33, s33, {EX}")
    T.append("v_lshlrev_b32 v12, 3, v240"); T.append("v_add_u32 v13, s33, v12")
    T.append("s_xor_b32 s33, s33, 512"); T.append("v_add_u32 v14, s33, v12")
    T.append("ds_write_b64 v13, v[8:9]")
    T.append("s_waitcnt lgkmcnt(0)"); T.append("s_barrier")
    T.append("ds_read_b64 v[10:11], v14"); T.append("s_waitcnt lgkmcnt(0)")
    T.append("v_add_f32 v8, v8, v10"); T.append("v_add_f32 v9, v9, v11")
    T.append("v_mul_f32 v8, 0x3b800000, v8"); T.append("v_mul_f32 v9, 0x3b800000, v9")
    T.append("v_fma_f32 v9, -v8, v8, v9"); T.append("v_max_f32 v9, 0, v9"); T.append("v_add_f32 v9, 0x3727c5ac, v9")
    T.append("v_rsq_f32 v10, v9"); T.append("s_nop 0")
    T.append("v_mul_f32 v12, v8, v10"); T.append("v_sub_f32 v12, 0, v12")
    for k in range(32):
        T.append(f"v_pk_fma_f32 v[{g0+2*k}:{g0+2*k+1}], v[{g0+2*k}:{g0+2*k+1}], v[10:11], v[12:13] op_sel_hi:[1,0,0]")
    for a in range(4):
        d = 244 if a % 2 == 0 else 16
        pack_swap(T, g0+16*a, d)
        for s in range(2):
            T.append(f"buffer_store_dwordx4 {vr(d+4*s,4)}, v238, s[24:27], 0 offen offset:{64*a+32*s}")
    finish(T, "K1_UG")

    def wf_store(T, acc, kbase, swap, slice_sreg):
        T.append(f"s_lshl_b32 s33, {slice_sreg}, 1"); T.append("s_add_u32 s33, s33, s29"); T.append("s_lshl_b32 s33, s33, 15")
        T.append("s_lshl_b32 s34, s30, 11"); T.append("s_add_u32 s33, s33, s34")
        T.append(f"s_add_u32 s33, s33, {kbase*1024}")
        T.append("v_lshlrev_b32 v232, 4, v240"); T.append("v_add_u32 v232, s33, v232")
        for a in range(4):
            d = 244 if a % 2 == 0 else 236
            d = 244 if a % 2 == 0 else 0
            if d == 0: d = 232+2
            d = 244
            pack_swap(T, acc+16*a, d, swap=swap)
            T.append(f"s_mov_b32 s33, {a*4096}")
            for s in range(2):
                T.append(f"buffer_store_dwordx4 {vr(d+4*s,4)}, v232, s[24:27], s33 offen offset:{s*1024}")
            T.append("s_nop 1")
    W = Waiter(); T = []
    T += capture(lambda: dma_voff(False))
    T.append("s_sub_u32 s35, s2, 250")
    T += capture(lambda: (srd(e, 16, 's52', 's53', 0, 262144), srd(e, 8, 's44', 's45', 0, 131072), srd(e, 12, 's42', 's43', 0, 131072),
                          srd(e, 24, 's54', 's55', WF_OFF, 262144)))
    narrow(T, W, 0, 's35')
    for n in range(8): emit_tile(T, W, n, 8, n*SLOT)
    narrow_read(T, W)
    later = {2: [(8, 12, 0), (9, 12, SLOT)], 3: [(10, 12, 2*SLOT), (11, 12, 3*SLOT)], 4: [(12, 12, 4*SLOT), (13, 12, 5*SLOT)], 5: [(14, 12, 6*SLOT), (15, 12, 7*SLOT)]}
    T += phase(W, 0, 'X', 8, later).linearize()
    T.append("s_barrier")
    exchange(T, W, ACC[0], 'X')
    T += phase(W, 1, 'X', 12, later).linearize()
    T.append("s_nop 15")
    wf_store(T, ACC[1], 0, False, 's35')
    finish(T, "K1_W1")

    W = Waiter(); T = []
    T += capture(lambda: dma_voff(False))
    T.append("s_sub_u32 s35, s2, 254"); T.append("s_lshl_b32 s35, s35, 1")
    T += capture(lambda: (srd(e, 16, 's52', 's53', 0, 262144), srd(e, 8, 's50', 's51', 0, 131072),
                          srd(e, 24, 's54', 's55', WF_OFF, 262144)))
    narrow(T, W, 131072, 's35')
    for n in range(8): emit_tile(T, W, n, 8, n*SLOT)
    narrow_read(T, W)
    T.append("s_barrier")
    T.append("s_add_u32 s56, s35, 1")
    narrow(T, W, 131072, 's56')
    later = {2: [(8, 8, 0), (9, 8, SLOT)], 3: [(10, 8, 2*SLOT), (11, 8, 3*SLOT)], 4: [(12, 8, 4*SLOT), (13, 8, 5*SLOT)], 5: [(14, 8, 6*SLOT), (15, 8, 7*SLOT)]}
    T += phase(W, 0, 'X', 8, later).linearize()
    T.append("s_nop 15")
    wf_store(T, ACC[0], 16, True, 's35')
    for i in range(8): W.issue('vm', ('WS', i))
    narrow_read(T, W)
    T += phase(W, 1, 'X', 8, later).linearize()
    T.append("s_nop 15")
    wf_store(T, ACC[1], 16, True, 's56')
    finish(T, "K1_W2")

    e("K1_FIN:")
    if o['stamp']:
        e("s_waitcnt vmcnt(0)")
        e("s_memtime s[64:65]"); e("s_memrealtime s[66:67]")
        e("s_waitcnt lgkmcnt(0)")
        e("s_cmp_eq_u32 s28, 0"); e("s_cbranch_scc0 K1_END")
        e("s_add_u32 s68, s54, 0x8100000"); e("s_addc_u32 s69, s55, 0"); e("s_mov_b32 s70, 0x100000"); e("s_mov_b32 s71, 0x20000")
        for k, r in enumerate([60, 64, 62, 66]): e(f"v_mov_b32 v{232+k}, s{r}")
        e("s_lshl_b32 s33, s2, 4"); e("v_mov_b32 v236, s33")
        e("buffer_store_dwordx4 v[232:235], v236, s[68:71], 0 offen")
    e("K1_END:")
    e("s_endpgm")
    return L, kernel_desc(name, 288, 256), []
```

```python
from gen_common import *
import hazard

NSLOT = 6
SLOT = 16384

def gen_k2(opt=None):
    o = dict(D=6, valu=True, lds=True, dma=True, barrier=True, stamp=False, pairwait=True, bslot=2,
             dma_slots=(4, 7, 10, 13), exp0=18, expstep=2, mfma=True)
    if opt: o.update(opt)
    name = 'attn_kernel'
    L = []
    e = L.append
    O = 0; S = [128, 144]; NEGM = 160; P = [176, 184]; KA = 192; VA = 200; KA2 = 208; VA2 = 216
    DV = 224; LACC = 228; MREF = 229; T0 = 230
    aQ = 0; aK = 64; KR = 8; aV = 96; VR = 8
    sWS = 4; sXA = 8; sQF = 12; sOP = 16; sML = 20
    sW = 24; sQI = 25; sB = 26; sJ = 27; sG = 28; sM0 = 29; sSOFF = 30; sTRIP = 31; sMASKT = 32; sT = 33; sVALID = 36
    L += kernel_header(name)
    e("s_cmp_ge_u32 s2, 256")
    e("s_cbranch_scc1 K2_END")
    e("s_load_dwordx2 s[4:5], s[0:1], 88")
    if o['stamp']:
        e("s_memtime s[52:53]")
        e("s_memrealtime s[54:55]")
    e("v_lshrrev_b32 v230, 6, v0")
    e("v_and_b32 v231, 63, v0")
    e("v_readfirstlane_b32 s24, v230")
    e("s_and_b32 s33, s2, 7")
    e("s_lshr_b32 s25, s2, 3")
    e("s_lshr_b32 s26, s33, 2")
    e("s_and_b32 s27, s33, 3")
    e("s_mul_i32 s34, s27, 31")
    e("s_add_u32 s34, s34, 1")
    e("s_cmp_eq_u32 s27, 0")
    e("s_cselect_b32 s34, 0, s34")
    e("s_cselect_b32 s35, 32, 31")
    e("s_cselect_b32 s32, 0xffff, 5")
    e("s_lshl_b32 s35, s35, 14")
    e("s_lshl_b32 s34, s34, 14")
    e("s_mul_i32 s37, s26, 2048000")
    e("s_add_u32 s34, s34, s37")
    e("s_lshl_b32 s28, s25, 2")
    e("s_add_u32 s28, s28, s24")
    e("s_cmp_lt_u32 s28, 125")
    e("s_cselect_b32 s36, 1, 0")
    e("s_min_u32 s28, s28, 124")
    e("s_mul_i32 s37, s26, 125")
    e("s_add_u32 s28, s28, s37")
    e("s_waitcnt lgkmcnt(0)")
    srd(e, sXA, 's4', 's5', 's34', 's35')
    srd(e, sQF, 's4', 's5', QF_OFF, 250*16384)
    e("s_mul_i32 s37, s27, 250")
    e("s_add_u32 s37, s37, s28")
    e("s_lshl_b32 s38, s37, 14")
    e(f"s_add_u32 s38, s38, {OP_OFF:#x}")
    srd(e, sOP, 's4', 's5', 's38', 16384)
    e("s_lshl_b32 s38, s37, 8")
    e(f"s_add_u32 s38, s38, {ML_OFF:#x}")
    srd(e, sML, 's4', 's5', 's38', 256)
    e("v_lshrrev_b32 v232, 5, v231")
    e("v_and_b32 v233, 31, v231")
    e("s_lshl_b32 s37, s24, 1")
    for k in range(4):
        e(f"v_add_u32 v234, {2*k}, v232")
        e("v_and_b32 v234, 3, v234")
        e("v_lshlrev_b32 v234, 2, v234")
        e(f"s_add_u32 s38, s37, {k>>1}")
        e("s_and_b32 s38, s38, 3")
        e("v_or_b32 v234, s38, v234")
        e("v_xor_b32 v234, v233, v234")
        e("v_lshlrev_b32 v234, 4, v234")
        e("v_lshl_add_u32 v234, v232, 9, v234")
        e("s_lshl_b32 s38, s24, 12")
        e(f"v_add_u32 v{DV+k}, s38, v234")
    e("v_and_b32 v234, 3, v233")
    e("v_lshlrev_b32 v234, 2, v234")
    e("v_bfe_u32 v235, v233, 2, 2")
    e("v_or_b32 v234, v234, v235")
    e("v_lshlrev_b32 v236, 9, v233")
    for jj in range(8):
        e(f"v_add_u32 v235, {2*jj}, v232")
        e("v_xor_b32 v235, v235, v234")
        e(f"v_lshl_add_u32 v{KA+jj}, v235, 4, v236")
        e(f"v_add_u32 v{KA2+jj}, 0x10000, v{KA+jj}")
    e("v_bfe_u32 v234, v231, 4, 1")
    e("v_bfe_u32 v235, v231, 2, 2")
    e("v_bfe_u32 v236, v231, 1, 1")
    e("v_lshl_add_u32 v236, v234, 1, v236")
    e("v_and_b32 v237, 1, v231")
    e("v_lshlrev_b32 v237, 3, v237")
    e("v_lshl_add_u32 v238, v232, 2, v235")
    e("v_lshl_add_u32 v237, v238, 9, v237")
    for tt in range(4):
        for u in range(2):
            e(f"v_add_u32 v238, {2*u}, v232")
            e("v_and_b32 v238, 3, v238")
            e("v_lshl_or_b32 v238, v235, 2, v238")
            e(f"v_add_u32 v239, {4*tt}, v236")
            e("v_xor_b32 v238, v238, v239")
            e(f"v_lshl_add_u32 v{VA+tt*2+u}, v238, 4, v237")
            e(f"v_add_u32 v{VA2+tt*2+u}, 0x10000, v{VA+tt*2+u}")
    e("v_lshlrev_b32 v240, 4, v231")
    e("s_lshl_b32 s29, s24, 12")
    e("s_mov_b32 s30, 0")
    W = Waiter()
    def dma(tile_slot, lst, tag):
        lst.append(f"s_add_u32 m0, s29, {tile_slot*SLOT:#x}")
    def dma_instr(k):
        return f"buffer_load_dwordx4 v{DV+k}, s[8:11], s30 offen offset:{k*1024} lds"
    def full_dma(slot):
        e(f"s_add_u32 m0, s29, {slot*SLOT:#x}")
        e("s_nop 0")
        for k in range(4): e(dma_instr(k))
        e(f"s_add_u32 s30, s30, {SLOT}")
    full_dma(0)
    e("s_lshl_b32 s37, s28, 14")
    for j in range(16):
        if j % 4 == 0 and j > 0: e("s_add_u32 s37, s37, 4096")
        e(f"buffer_load_dwordx4 {ar(aQ+4*j,4)}, v240, s[12:15], s37 offen offset:{(j%4)*1024}")
    for n in range(1, 5): full_dma(n)
    for r in range(128): e(f"v_mov_b32 v{O+r}, 0")
    e(f"v_mov_b32 v{LACC}, 0")
    e("s_mov_b32 s31, 0")
    e("s_waitcnt vmcnt(16)")
    e("s_barrier")
    if not o['lds']:
        for j in range(8):
            e(f"ds_read_b128 {ar(aK+4*j,4)}, v{KA+j} offset:0")
            e(f"ds_read_b64_tr_b16 {ar(aV+4*j,2)}, v{VA+j} offset:0")
            e(f"ds_read_b64_tr_b16 {ar(aV+4*j+2,2)}, v{VA+j} offset:4096")
        e("s_waitcnt lgkmcnt(0)")
    if not o['valu']:
        for r in range(8):
            e(f"v_accvgpr_read_b32 v{P[0]+r}, a{aQ+r}")
            e(f"v_accvgpr_read_b32 v{P[1]+r}, a{aQ+8+r}")
            e(f"v_and_b32 v{P[0]+r}, 0x7fff7fff, v{P[0]+r}")
            e(f"v_and_b32 v{P[1]+r}, 0x7fff7fff, v{P[1]+r}")
    if o['stamp']:
        e("s_memtime s[40:41]")
        e("s_memrealtime s[56:57]")
    D = o['D']
    ev = []
    seq = [0]
    def add(t, kind, **kw):
        seq[0] += 1
        ev.append((t, kw.pop('prio', 5), seq[0], kind, kw))
    def T(i, n): return 32*i + n
    NT = 32
    def kaddr(n, j):
        slot = n % NSLOT
        base = (KA if slot < 4 else KA2) + (j & 7)
        off = (slot % 4)*SLOT + (j >> 3)*256
        return base, off
    def vaddr(n, s, t, u):
        slot = n % NSLOT
        base = (VA if slot < 4 else VA2) + (t & 3)*2 + u
        off = (slot % 4)*SLOT + (16*s + 8*u)*512 + (t >> 2)*256
        return base, off
    for n in range(NT + 1):
        for j in range(16):
            tm = T(n-1, j)
            tr = tm - D
            if n == NT and tr >= T(NT-1, 0): continue
            if o['lds']:
                b, off = kaddr(n, j)
                add(tr, 'lds', text=f"ds_read_b128 {ar(aK+4*(j%KR),4)}, v{b} offset:{off}", tag=('K', n, j), prio=2)
            if n < NT:
                c = vr(S[n%2],16) if j > 0 else ('0' if n == 0 else vr(NEGM,16))
                add(tm, 'mfma', text=f"v_mfma_f32_32x32x16_bf16 {vr(S[n%2],16)}, {ar(aK+4*(j%KR),4)}, {ar(aQ+4*j,4)}, {c}",
                    need=[('K', n, j)], prio=0)
    for n in range(NT):
        for q in range(16):
            s, t = q >> 3, q & 7
            tm = T(n, 16 + q); tr = tm - D
            if o['lds']:
                for u in range(2):
                    b, off = vaddr(n, s, t, u)
                    add(tr, 'lds', text=f"ds_read_b64_tr_b16 {ar(aV+4*(q%VR)+2*u,2)}, v{b} offset:{off}", tag=('V', n, q, u), prio=2)
            add(tm, 'mfma', text=f"v_mfma_f32_32x32x16_bf16 {vr(O+16*t,16)}, {ar(aV+4*(q%VR),4)}, {vr(P[n%2]+4*s,4)}, {vr(O+16*t,16)}",
                need=[('V', n, q, 0), ('V', n, q, 1)], prio=0)
        if o['valu']:
            for el in range(16):
                te = T(n-1, o['exp0']) + o['expstep']*el
                r = S[n%2] + el
                add(te, 'valu', text=f"v_exp_f32 v{r}, v{r}", prio=3)
                add(te+1, 'valu', text=f"v_add_f32 v{LACC}, v{LACC}, v{r}", prio=3)
                if el % 2 == 1:
                    add(te+1, 'valu', text=f"v_cvt_pk_bf16_f32 v{P[n%2]+el//2}, v{r-1}, v{r}", prio=4)
    for i in range(-1, NT-1):
        add(T(i, o['bslot']), 'bar', it=i, prio=6)
        if i >= 0 and o['dma']:
            slot = (i+5) % NSLOT
            add(T(i, o['dma_slots'][0]) , 'salu', text=f"s_add_u32 m0, s29, {slot*SLOT:#x}", prio=1)
            for k in range(4):
                add(T(i, o['dma_slots'][k]), 'dma', text=dma_instr(k), tile=i+5, prio=7)
            add(T(i, o['dma_slots'][3]), 'salu', text=f"s_add_u32 s30, s30, {SLOT}", prio=8)
    ev.sort(key=lambda x: (x[0], x[1], x[2]))
    W = Waiter()
    for n in (1,2,3,4):
        for k in range(4): W.issue('vm', ('T', n))
    its = {}
    mf = [x for x in ev if x[3] == 'mfma']
    for x in ev:
        t, _, _, kind, kw = x
        it = t // 32
        if it < -1: it = -1
        out = its.setdefault(it, [])
        if kind == 'mfma':
            needs = list(kw['need'])
            if o['pairwait']:
                idx = mf.index(x)
                if idx % 2 == 0 and idx + 1 < len(mf): needs += mf[idx+1][4]['need']
            n = W.need('lgkm', needs) if o['lds'] else None
            if n is not None: out.append(f"s_waitcnt lgkmcnt({n})")
            if o['mfma']: out.append(kw['text'])
            if t == T(-1, 15):
                out.append("s_nop 15")
                s0 = S[0]
                out.append(f"v_max3_f32 v234, v{s0}, v{s0+1}, v{s0+2}")
                for r in range(3, 15, 2):
                    out.append(f"v_max3_f32 v234, v234, v{s0+r}, v{s0+r+1}")
                out.append(f"v_max_f32 v234, v234, v{s0+15}")
                out.append("v_mov_b32 v235, v234")
                out.append("s_nop 1")
                out.append("v_permlane32_swap_b32 v234, v235")
                out.append("s_nop 1")
                out.append(f"v_max_f32 v{MREF}, v234, v235")
                for r in range(16):
                    out.append(f"v_sub_f32 v{s0+r}, v{s0+r}, v{MREF}")
                for r in range(16):
                    out.append(f"v_sub_f32 v{NEGM+r}, 0, v{MREF}")
        elif kind == 'lds':
            out.append(kw['text']); W.issue('lgkm', kw['tag'])
        elif kind == 'bar':
            n = W.need('vm', [('T', kw['it']+2)])
            if n is not None and o['dma']: out.append(f"s_waitcnt vmcnt({n})")
            elif kw['it'] == -1: out.append("s_waitcnt vmcnt(12)")
            if o['barrier'] or kw['it'] == -1: out.append("s_barrier")
        elif kind == 'dma':
            out.append(kw['text']); W.issue('vm', ('T', kw['tile']))
        else:
            out.append(kw['text'])
    for i in range(12, 31):
        assert its[i] == its[i-6], (i, [ (a,b) for a,b in zip(its[i], its[i-6]) if a!=b][:5])
    L += hazard.autofix(its[-1])
    e("K2_LOOP:")
    body = {}
    for u in range(6):
        body[u] = its[6+u]
    e("s_cmp_eq_u32 s31, s32")
    e("s_cbranch_scc0 K2_NOMASK")
    for r in range(16): e(f"v_mov_b32 v{NEGM+r}, 0xf149f2ca")
    e("s_nop 1")
    e("K2_NOMASK:")
    L += body[0]
    e("s_cmp_eq_u32 s31, 5")
    e("s_cbranch_scc1 K2_EPI")
    for u in range(1, 6): L += body[u]
    e("s_add_u32 s31, s31, 1")
    e("s_branch K2_LOOP")
    e("K2_EPI:")
    L += hazard.autofix(its[31])
    if o['stamp']:
        e("s_memtime s[42:43]")
        e("s_memrealtime s[58:59]")
    e("s_nop 15")
    e(f"v_mov_b32 v234, v{LACC}")
    e("s_nop 1")
    e(f"v_permlane32_swap_b32 v{LACC}, v234")
    e("s_nop 1")
    e(f"v_add_f32 v235, v{LACC}, v234")
    e(f"v_mov_b32 v234, v{MREF}")
    e("s_cmp_eq_u32 s36, 0")
    e("s_cbranch_scc1 K2_SKIPST")
    e("v_lshlrev_b32 v236, 3, v231")
    e("v_cmp_gt_u32 vcc, 32, v231")
    e("s_and_saveexec_b64 s[38:39], vcc")
    e("buffer_store_dwordx2 v[234:235], v236, s[20:23], 0 offen")
    e("s_mov_b64 exec, s[38:39]")
    for f in range(16):
        t, s = f >> 1, f & 1
        base = 128 + 4*(f % 4)
        for k in range(4):
            r = O + 16*t + 8*s + 2*k
            e(f"v_cvt_pk_bf16_f32 v{base+k}, v{r}, v{r+1}")
        if f % 4 == 0 and f > 0: e("v_add_u32 v240, 4096, v240")
        e(f"buffer_store_dwordx4 {vr(base,4)}, v240, s[16:19], 0 offen offset:{(f%4)*1024}")
    e("K2_SKIPST:")
    if o['stamp']:
        e("s_waitcnt vmcnt(0)")
        e("s_memtime s[60:61]")
        e("s_memrealtime s[62:63]")
        e("s_load_dwordx2 s[44:45], s[0:1], 88")
        e("s_waitcnt lgkmcnt(0)")
        e("s_cmp_eq_u32 s24, 0")
        e("s_cbranch_scc0 K2_END")
        e("s_add_u32 s48, s44, 0x8000000"); e("s_addc_u32 s49, s45, 0"); e("s_mov_b32 s50, 0x100000"); e("s_mov_b32 s51, 0x20000")
        for k,(r) in enumerate([52,40,42,60,54,56,58,62]):
            e(f"v_mov_b32 v{234+k}, s{r}")
        e("s_lshl_b32 s37, s2, 5")
        e("v_mov_b32 v230, s37")
        e("buffer_store_dwordx4 v[234:237], v230, s[48:51], 0 offen")
        e("buffer_store_dwordx4 v[238:241], v230, s[48:51], 0 offen offset:16")
    e("K2_END:")
    e("s_endpgm")
    lin = []
    i0 = L.index("K2_LOOP:"); i1 = L.index("K2_EPI:")
    lin = L[:i0] + L[i0:i1] + L[i0:i1] + sum([body[0]], []) + L[i1:]
    errs = hazard.check(lin, 'k2')
    return L, kernel_desc(name, 384, 256), errs
```

```python
from gen_common import *
from tl import TL
import hazard

def gen_k3(opt=None):
    o = dict(stamp=False, D=5)
    if opt: o.update(opt)
    name = 'final_kernel'
    L = []; e = L.append
    L += kernel_header(name)
    e("s_cmp_ge_u32 s2, 250")
    e("s_cbranch_scc1 K3_END")
    e("s_load_dwordx2 s[36:37], s[0:1], 0")
    e("s_load_dwordx2 s[38:39], s[0:1], 48")
    e("s_load_dwordx2 s[40:41], s[0:1], 72")
    e("s_load_dwordx2 s[42:43], s[0:1], 88")
    if o['stamp']:
        e("s_memtime s[60:61]"); e("s_memrealtime s[62:63]")
    T = []; t = T.append
    W = Waiter()
    t("v_lshrrev_b32 v232, 6, v0")
    t("v_and_b32 v240, 63, v0")
    t("v_lshrrev_b32 v241, 5, v240")
    t("v_and_b32 v242, 31, v240")
    t("v_readfirstlane_b32 s28, v232")
    t("v_and_b32 v243, 31, v0")
    t("v_lshrrev_b32 v244, 5, v0")
    t("s_cmp_ge_u32 s2, 125")
    t("s_cselect_b32 s29, 1, 0")
    t("s_mul_i32 s30, s29, 125")
    t("s_sub_u32 s30, s2, s30")
    t("s_lshl_b32 s30, s30, 5")
    t("s_mul_i32 s31, s29, 2048000")
    t("s_waitcnt lgkmcnt(0)")
    def S(fn):
        buf = []; fn(buf.append); T.extend(buf)
    t(f"s_add_u32 s33, s31, {G_OFF:#x}")
    S(lambda e: srd(e, 8, 's42', 's43', 's33', 2048000))
    t(f"s_add_u32 s33, s31, {U_OFF:#x}")
    S(lambda e: srd(e, 12, 's42', 's43', 's33', 2048000))
    S(lambda e: srd(e, 16, 's38', 's39', 0, 2560))
    S(lambda e: srd(e, 20, 's42', 's43', OP_OFF, 4*250*16384))
    S(lambda e: srd(e, 24, 's42', 's43', ML_OFF, 4*8000*8))
    S(lambda e: srd(e, 44, 's42', 's43', WF_OFF, 262144))
    S(lambda e: srd(e, 48, 's36', 's37', 0, 4096000))
    S(lambda e: srd(e, 52, 's40', 's41', 0, 4096000))
    DWR = 120; GR = 72; UR = 104; MLR = 64; OPR = 0; XR = 140
    t("v_lshlrev_b32 v245, 4, v243")
    for i in range(5):
        t(f"buffer_load_dwordx4 {vr(DWR+4*i,4)}, v245, s[16:19], 0 offen offset:{512*i}"); W.issue('vm', ('DW', i))
    t("v_lshlrev_b32 v246, 2, v244")
    t("v_add_u32 v246, s30, v246")
    t("v_lshl_add_u32 v246, v246, 9, v245")
    t("v_subrev_u32 v247, 1024, v246")
    for i in range(8):
        if i < 2: t(f"buffer_load_dwordx4 {vr(GR+4*i,4)}, v247, s[8:11], 0 offen offset:{512*i}")
        else: t(f"buffer_load_dwordx4 {vr(GR+4*i,4)}, v246, s[8:11], 0 offen offset:{512*(i-2)}")
        W.issue('vm', ('G', i))
    for i in range(4):
        t(f"buffer_load_dwordx4 {vr(UR+4*i,4)}, v246, s[12:15], 0 offen offset:{512*i}"); W.issue('vm', ('U', i))
    t("v_lshlrev_b32 v248, 3, v242")
    t("s_lshl_b32 s33, s2, 8")
    t("v_add_u32 v248, s33, v248")
    for j in range(4):
        t(f"s_mov_b32 s33, {j*64000}")
        t(f"buffer_load_dwordx2 {vr(MLR+2*j,2)}, v248, s[24:27], s33 offen"); W.issue('vm', ('ML', j))
    t("v_lshlrev_b32 v249, 4, v240")
    t("s_lshl_b32 s34, s2, 14"); t("s_lshl_b32 s33, s28, 12"); t("s_add_u32 s34, s34, s33")
    for j in range(4):
        if j: t("s_add_u32 s34, s34, 4096000")
        for ff in range(4):
            t(f"buffer_load_dwordx4 {vr(OPR+(j*4+ff)*4,4)}, v249, s[20:23], s34 offen offset:{ff*1024}"); W.issue('vm', ('OP', j, ff))
    t("s_lshl_b32 s33, s2, 5"); t("v_add_u32 v250, s33, v242"); t("v_lshlrev_b32 v250, 9, v250")
    t("s_lshl_b32 s33, s28, 7"); t("v_add_u32 v250, s33, v250")
    t("v_lshl_add_u32 v251, v241, 4, v250")
    t("v_lshl_add_u32 v250, v241, 3, v250")
    for a in range(2):
        for i in range(4):
            t(f"buffer_load_dwordx2 {vr(XR+(a*4+i)*2,2)}, v250, s[48:51], 0 offen offset:{64*a+16*i}"); W.issue('vm', ('X', a, i))
    t("s_lshl_b32 s35, s28, 16")
    wl = []
    for ks in range(32):
        for a in range(2):
            pre = []
            if ks % 4 == 0:
                pre = [f"s_add_u32 s{56+a}, s35, {a*32768 + (ks>>2)*4096}"]
            wl.append((pre, f"buffer_load_dwordx4 {ar((a*32+ks)*4,4)}, v249, s[44:47], s{56+a} offen offset:{(ks&3)*1024}", ('W', ks, a)))
    wi = [0]
    def wload(n=1):
        for _ in range(n):
            if wi[0] >= len(wl): return
            pre, txt, tag = wl[wi[0]]; wi[0] += 1
            T.extend(pre); t(txt); W.issue('vm', tag)
    wload(16)
    n = W.need('vm', [('DW', 4)]); t(f"s_waitcnt vmcnt({n})")
    DWF = 160
    for i in range(5):
        for k in range(4):
            t(f"v_lshlrev_b32 v{DWF+8*i+2*k}, 16, v{DWR+4*i+k}")
            t(f"v_and_b32 v{DWF+8*i+2*k+1}, 0xffff0000, v{DWR+4*i+k}")
    CV = 200
    GT = 120
    for rho in range(8):
        n = W.need('vm', [('G', rho)])
        if n is not None: t(f"s_waitcnt vmcnt({n})")
        g = GT + 8*(rho % 2)
        for k in range(4):
            t(f"v_lshlrev_b32 v{g+2*k}, 16, v{GR+4*rho+k}")
            t(f"v_and_b32 v{g+2*k+1}, 0xffff0000, v{GR+4*rho+k}")
        for i in range(4):
            tap = rho - i
            if 0 <= tap <= 4:
                for k in range(4):
                    d = f"v[{CV+8*i+2*k}:{CV+8*i+2*k+1}]"
                    a_ = f"v[{g+2*k}:{g+2*k+1}]"; b_ = f"v[{DWF+8*tap+2*k}:{DWF+8*tap+2*k+1}]"
                    if tap == 0: t(f"v_pk_mul_f32 {d}, {a_}, {b_}")
                    else: t(f"v_pk_fma_f32 {d}, {a_}, {b_}, {d}")
        wload(3)
    t("v_lshrrev_b32 v232, 1, v243")
    t("v_and_b32 v233, 1, v243")
    t("v_and_b32 v234, 3, v232")
    t("v_lshl_or_b32 v234, v234, 1, v233")
    t("v_lshlrev_b32 v235, 5, v233")
    t("v_lshl_add_u32 v235, v244, 2, v235")
    t("v_lshlrev_b32 v232, 10, v232")
    t("v_add_u32 v232, 16384, v232")
    n = W.need('vm', [('U', 3)])
    if n is not None: t(f"s_waitcnt vmcnt({n})")
    for i in range(4):
        g = GT + 8*(i % 2)
        for k in range(4):
            t(f"v_lshlrev_b32 v{g+2*k}, 16, v{UR+4*i+k}")
            t(f"v_and_b32 v{g+2*k+1}, 0xffff0000, v{UR+4*i+k}")
        for k in range(4):
            t(f"v_pk_mul_f32 v[{g+2*k}:{g+2*k+1}], v[{g+2*k}:{g+2*k+1}], v[{CV+8*i+2*k}:{CV+8*i+2*k+1}]")
        for k in range(4):
            t(f"v_cvt_pk_bf16_f32 v{GR+4*i+k}, v{g+2*k}, v{g+2*k+1}")
        t(f"v_add_u32 v236, {i}, v235")
        t("v_xor_b32 v236, v236, v234")
        t("v_lshl_add_u32 v236, v236, 4, v232")
        t(f"ds_write_b128 v236, {vr(GR+4*i,4)}")
        wload(2)
    n = W.need('vm', [('ML', 3)])
    if n is not None: t(f"s_waitcnt vmcnt({n})")
    for j in range(4): t(f"v_log_f32 v{232+j}, v{MLR+2*j+1}")
    t("s_nop 0")
    for j in range(4): t(f"v_add_f32 v{232+j}, v{232+j}, v{MLR+2*j}")
    t("v_max_f32 v236, v232, v233"); t("v_max3_f32 v236, v236, v234, v235")
    for j in range(4): t(f"v_sub_f32 v{232+j}, v{232+j}, v236")
    for j in range(4): t(f"v_exp_f32 v{232+j}, v{232+j}")
    for j in range(4): t(f"v_sub_f32 v{MLR+2*j}, v{MLR+2*j}, v236")
    t("v_add_f32 v232, v232, v233"); t("v_add_f32 v234, v234, v235")
    for j in range(4): t(f"v_exp_f32 v{MLR+2*j}, v{MLR+2*j}")
    t("v_add_f32 v232, v232, v234")
    t("v_rcp_f32 v232, v232")
    t("s_nop 0")
    for j in range(4): t(f"v_mul_f32 v{MLR+2*j}, v{MLR+2*j}, v232")
    MA = 160
    GT2 = 200
    for j in range(4):
        for ff in range(4):
            n = W.need('vm', [('OP', j, ff)])
            if n is not None: t(f"s_waitcnt vmcnt({n})")
            for k in range(4):
                r = OPR + (j*4+ff)*4 + k
                g = GT2 + 2*((ff*4+k) % 8)
                t(f"v_lshlrev_b32 v{g}, 16, v{r}")
                t(f"v_and_b32 v{g+1}, 0xffff0000, v{r}")
                d = f"v[{MA+(ff*4+k)*2}:{MA+(ff*4+k)*2+1}]"
                c = f"v[{MLR+2*j}:{MLR+2*j+1}]"
                if j == 0: t(f"v_pk_mul_f32 {d}, v[{g}:{g+1}], {c} op_sel_hi:[1,0]")
                else: t(f"v_pk_fma_f32 {d}, v[{g}:{g+1}], {c}, {d} op_sel_hi:[1,0,1]")
            wload(2)
    t("s_lshl_b32 s33, s28, 12")
    t("v_add_u32 v236, s33, v249")
    for ff in range(4):
        for k in range(4):
            t(f"v_cvt_pk_bf16_f32 v{OPR+ff*4+k}, v{MA+(ff*4+k)*2}, v{MA+(ff*4+k)*2+1}")
        t(f"ds_write_b128 v236, {vr(OPR+ff*4,4)} offset:{ff*1024}")
    wload(64)
    t("v_lshlrev_b32 v232, 4, v241")
    t("v_xor_b32 v232, v249, v232")
    for q in range(4): t(f"v_xor_b32 v{233+q}, {q<<5}, v232")
    t("s_waitcnt lgkmcnt(0)")
    t("s_barrier")
    W.drain('lgkm')
    D = o['D']; ACC = 160; RING = 192
    order = list(range(16, 32)) + list(range(0, 16)) if o.get('ucfirst') else list(range(32))
    evs = []
    for idx, ks in enumerate(order):
        evs.append((2*(idx - D), 1, 'rd', idx, ks))
        for a in range(2): evs.append((2*idx + a, 0, 'mf', idx, ks, a))
    evs.sort(key=lambda x: (x[0], x[1]))
    for x in evs:
        if x[2] == 'rd':
            idx, ks = x[3], x[4]
            ring = RING + 4*(idx % 8)
            if ks < 16: t(f"ds_read_b128 {vr(ring,4)}, v249 offset:{ks*1024}")
            else: t(f"ds_read_b128 {vr(ring,4)}, v{233+((ks-16)&3)} offset:{ks*1024}")
            W.issue('lgkm', ('B', ks))
        else:
            idx, ks, a = x[3], x[4], x[5]
            ring = RING + 4*(idx % 8)
            w = []
            nv = W.need('vm', [('W', ks, a)]); nl = W.need('lgkm', [('B', ks)])
            if nv is not None: w.append(f"vmcnt({nv})")
            if nl is not None: w.append(f"lgkmcnt({nl})")
            if w: t("s_waitcnt " + ' '.join(w))
            c = vr(ACC+16*a,16) if idx else '0'
            t(f"v_mfma_f32_32x32x16_bf16 {vr(ACC+16*a,16)}, {ar((a*32+ks)*4,4)}, {vr(ring,4)}, {c}")
    t("s_nop 15")
    for a in range(2):
        for i in range(4):
            for k in range(2):
                r = XR + (a*4+i)*2 + k
                g = 200 + 2*((i*2+k) % 8)
                t(f"v_lshlrev_b32 v{g}, 16, v{r}")
                t(f"v_and_b32 v{g+1}, 0xffff0000, v{r}")
                d = ACC + 16*a + 4*i + 2*k
                t(f"v_pk_add_f32 v[{d}:{d+1}], v[{d}:{d+1}], v[{g}:{g+1}]")
        dst = 8*a
        for k in range(8):
            t(f"v_cvt_pk_bf16_f32 v{dst+k}, v{ACC+16*a+2*k}, v{ACC+16*a+2*k+1}")
        t("s_nop 1")
        for b in (0, 4):
            t(f"v_permlane32_swap_b32 v{dst+b}, v{dst+b+2}")
            t(f"v_permlane32_swap_b32 v{dst+b+1}, v{dst+b+3}")
        for s in range(2):
            t(f"buffer_store_dwordx4 {vr(dst+4*s,4)}, v251, s[52:55], 0 offen offset:{64*a+32*s}")
    L += hazard.autofix(T)
    if o['stamp']:
        e("s_waitcnt vmcnt(0)")
        e("s_memtime s[64:65]"); e("s_memrealtime s[66:67]")
        e("s_waitcnt lgkmcnt(0)")
        e("s_cmp_eq_u32 s28, 0"); e("s_cbranch_scc0 K3_END")
        e("s_add_u32 s68, s42, 0x8200000"); e("s_addc_u32 s69, s43, 0"); e("s_mov_b32 s70, 0x100000"); e("s_mov_b32 s71, 0x20000")
        for k, r in enumerate([60, 64, 62, 66]): e(f"v_mov_b32 v{232+k}, s{r}")
        e("s_lshl_b32 s33, s2, 4"); e("v_mov_b32 v236, s33")
        e("buffer_store_dwordx4 v[232:235], v236, s[68:71], 0 offen")
    e("K3_END:")
    e("s_endpgm")
    return L, kernel_desc(name, 512, 256), []
```

```python
import re
REG = re.compile(r'^(-|\|)?(abs\()?([vas])(\d+|\[(\d+):(\d+)\])\)?\|?$')
def regs(op):
    op = op.strip()
    if op in ('vcc',): return [('s','vcc')]
    if op in ('exec',): return [('s','exec')]
    if op == 'm0': return [('s','m0')]
    m = REG.match(op)
    if not m: return []
    k = m.group(3)
    if m.group(5) is not None:
        return [(k, i) for i in range(int(m.group(5)), int(m.group(6))+1)]
    return [(k, int(m.group(4)))]

TRANS = ('v_exp_f32','v_log_f32','v_rcp_f32','v_rsq_f32','v_sqrt_f32','v_sin_f32','v_cos_f32')
def parse(line):
    s = line.split(';')[0].strip()
    if not s or s.endswith(':') or s.startswith('.'): return None
    parts = s.split(None, 1)
    mn = parts[0]
    ops = []
    if len(parts) > 1:
        cur=''; depth=0
        for ch in parts[1]:
            if ch=='[': depth+=1
            if ch==']': depth-=1
            if ch==',' and depth==0: ops.append(cur.strip()); cur=''
            else: cur+=ch
        ops.append(cur.strip())
    ops2=[]
    for o in ops:
        ops2.append(o.split()[0] if o else o)
    mods = ' '.join(o for o in ops)
    d = dict(mn=mn, ops=ops2, text=s, defs=[], uses=[], cls='other', mods=mods)
    base = mn.replace('_e32','').replace('_e64','').replace('_dpp','')
    d['base']=base
    if mn.startswith('v_mfma'):
        d['cls']='mfma'; d['defs']=regs(ops2[0]); d['A']=regs(ops2[1]); d['B']=regs(ops2[2]); d['C']=regs(ops2[3])
        d['uses']=d['A']+d['B']+d['C']
        d['passes']= 8 if '32x32x16' in mn else (4 if '16x16x32' in mn else None)
        assert d['passes']
    elif mn.startswith('v_'):
        d['cls']='valu'
        if base.startswith('v_cmp'):
            d['defs']=regs(ops2[0]); d['uses']=sum((regs(o) for o in ops2[1:]),[])
            if base.startswith('v_cmpx'): d['defs']+= [('s','exec')]
        elif 'permlane' in base and 'swap' in base:
            d['defs']=regs(ops2[0])+regs(ops2[1]); d['uses']=list(d['defs'])
        elif base in ('v_readfirstlane_b32','v_readlane_b32'):
            d['defs']=regs(ops2[0]); d['uses']=sum((regs(o) for o in ops2[1:]),[])
        elif base.startswith('v_add_co') or base.startswith('v_addc_co') or base.startswith('v_sub_co') or base.startswith('v_div_scale'):
            d['defs']=regs(ops2[0])+regs(ops2[1]); d['uses']=sum((regs(o) for o in ops2[2:]),[])
        else:
            d['defs']=regs(ops2[0]); d['uses']=sum((regs(o) for o in ops2[1:]),[])
            if base in ('v_fmac_f32','v_dot2c_f32_bf16','v_pk_fmac_f16','v_writelane_b32') or 'dpp' in mn: d['uses']+=d['defs']
            if base=='v_cndmask_b32' and len(ops2)==3: d['uses']+=[('s','vcc')]
        d['trans']= base in TRANS
        d['dpp']= '_dpp' in mn
    elif mn.startswith('ds_'):
        d['cls']='ds'
        if 'read' in mn or 'bpermute' in mn or 'swizzle' in mn or 'permute' in mn:
            d['defs']=regs(ops2[0]); d['uses']=sum((regs(o) for o in ops2[1:]),[])
        else:
            d['uses']=sum((regs(o) for o in ops2),[])
    elif mn.startswith('buffer_') or mn.startswith('global_'):
        d['cls']='vmem'
        islds = ' lds' in (' '+s) or 'load_lds' in mn
        d['lds']=islds
        if 'load' in mn and not islds:
            d['defs']=regs(ops2[0]); d['uses']=sum((regs(o) for o in ops2[1:]),[])
        elif 'atomic' in mn and 'sc0' in s:
            d['defs']=regs(ops2[0]); d['uses']=sum((regs(o) for o in ops2),[])
        else:
            d['uses']=sum((regs(o) for o in ops2),[])
            if 'store' in mn:
                if mn.startswith('buffer'): d['sdata']=regs(ops2[0])
                else: d['sdata']=regs(ops2[1])
                d['wide']= 'x4' in mn or 'x3' in mn
        if islds: d['uses']+=[('s','m0')]
    elif mn.startswith('s_'):
        d['cls']='salu'
        if mn in ('s_nop','s_waitcnt','s_barrier','s_branch','s_endpgm','s_sleep','s_setprio') or mn.startswith('s_cbranch'):
            d['cls']='int'
        elif mn.startswith('s_cmp') or mn.startswith('s_bitcmp'):
            d['uses']=sum((regs(o) for o in ops2),[])
        elif mn.startswith('s_load') or mn.startswith('s_mem'):
            d['cls']='smem'; d['defs']=regs(ops2[0]); d['uses']=sum((regs(o) for o in ops2[1:]),[])
        else:
            d['defs']=regs(ops2[0]); d['uses']=sum((regs(o) for o in ops2[1:]),[])
            if 'saveexec' in mn: d['defs']+=[('s','exec')]
    return d

def states(d):
    if d['mn']=='s_nop': return int(d['ops'][0],0)+1
    return 1

def check(lines, name=''):
    ins=[parse(l) for l in lines]; ins=[i for i in ins if i]
    errs=[]
    W=24
    for n,c in enumerate(ins):
        dist=0
        for p in range(n-1, max(-1,n-W-1), -1):
            q=ins[p]
            need=0; why=''
            qd=set(q['defs']); cu=set(c['uses']); cd=set(c['defs'])
            def req(k,w):
                nonlocal need,why
                if k>need: need=k; why=w
            if q['cls']=='valu':
                vd={r for r in qd if r[0] in 'va'}
                sd={r for r in qd if r[0]=='s'}
                if c['cls']=='mfma' and vd&cu: req(2,'valu->mfma')
                if c['cls']=='valu':
                    if c.get('dpp') and vd&cu: req(2,'valu->dpp')
                    if 'permlane' in c['mn'] and vd&cu: req(2,'valu->permlane')
                    if c['base'] in ('v_readfirstlane_b32','v_readlane_b32') and vd&cu: req(1,'valu->readlane')
                    if q.get('trans') and not c.get('trans') and vd&cu: req(1,'trans->valu')
                    if sd&cu: req(2,'valu sgpr->valu')
                    if ('s','exec') in sd and c.get('dpp'): req(5,'exec->dpp')
                if q['base'].startswith('v_dot') and c['cls'] in ('valu','vmem','ds') and (vd&(cu|cd)):
                    if not (c['cls']=='valu' and c['base']==q['base'] and len(c['ops'])>3 and set(regs(c['ops'][3]))&vd and not (set(regs(c['ops'][1])+regs(c['ops'][2]))&vd)): req(3,'dot')
                if c['cls']=='mfma' and ('s','exec') in sd: req(4,'exec->mfma')
                if c['cls']=='vmem' and sd&cu: req(5,'valu sgpr->vmem')
                if q.get('trans') and c['cls'] in ('vmem','ds') and vd&cu: req(1,'trans->mem')
            if q['cls']=='mfma':
                P=q['passes']
                D=qd
                if c['cls']=='mfma':
                    if D&set(c['A']+c['B']): req({4:8,8:12}[P],'mfma D->mfma A/B')
                    if D&set(c['C']):
                        if set(c['C'])==D and c['passes']==P: pass
                        else: req({4:6,8:10}[P],'mfma D->mfma C overlap')
                    elif D&cd and not (D&set(c['C'])):
                        req({4:6,8:10}[P],'mfma D->mfma D WAW')
                elif c['cls'] in ('valu',):
                    if D&(cu|cd): req({4:8,8:12}[P],'mfma D->valu')
                    if set(q['C'])&cd and not (D&cd): req({4:3,8:7}[P],'mfma C WAR valu')
                elif c['cls'] in ('vmem','ds'):
                    if D&(cu|cd): req({4:8,8:12}[P],'mfma D->mem')
            if q['cls']=='salu' and ('s','m0') in qd and c['cls']=='vmem' and c.get('lds'): req(1,'m0->ldsdma')
            if q['cls']=='vmem' and q.get('wide') and c['cls'] in('valu',) and set(q['sdata'])&cd: req(2,'store data WAR')
            if q['cls']=='vmem' and q.get('wide') and c['cls'] in('ds','vmem','mfma') and set(q['sdata'])&cd: req(1,'store data WAR')
            if need>dist:
                errs.append(f"{name}: [{why}] need {need} have {dist}: '{q['text']}' -> '{c['text']}' (idx {p}->{n})")
            dist+=states(q)
            if dist>=20: break
    return errs

def autofix(lines):
    lines=list(lines)
    for _ in range(2000):
        ins=[(i,parse(l)) for i,l in enumerate(lines)]
        idx=[i for i,d in ins if d]
        errs=check(lines)
        if not errs: return lines
        import re as _re
        m=_re.search(r'need (\d+) have (\d+):.*\(idx (\d+)->(\d+)\)', errs[0])
        need,have,p,n=map(int,m.groups())
        k=need-have
        pos=idx[n]
        ins_l=[]
        while k>0:
            c=min(k,16); ins_l.append(f"s_nop {c-1}"); k-=c
        lines[pos:pos]=ins_l
    raise RuntimeError('autofix failed')
```

```python
from gen_common import Waiter

class TL:
    def __init__(self, W=None):
        self.ev = []; self.seq = 0
        self.W = W or Waiter()
    def add(self, t, kind, text=None, prio=5, **kw):
        self.seq += 1
        kw['text'] = text
        self.ev.append((t, prio, self.seq, kind, kw))
    def linearize(self, pairwait=True):
        ev = sorted(self.ev, key=lambda x: (x[0], x[1], x[2]))
        mf = [x for x in ev if x[3] == 'mfma']
        pos = {id(x): i for i, x in enumerate(mf)}
        out = []
        W = self.W
        for x in ev:
            t, _, _, kind, kw = x
            if kind == 'mfma':
                needs = list(kw.get('need', []))
                i = pos[id(x)]
                if pairwait and i % 2 == 0 and i + 1 < len(mf) and mf[i+1][0] == t + 1:
                    needs += [g for g in mf[i+1][4].get('need', []) if g in W.q['lgkm']]
                n = W.need('lgkm', needs)
                if n is not None: out.append(f"s_waitcnt lgkmcnt({n})")
                out.append(kw['text'])
            elif kind == 'lds':
                out.append(kw['text']); W.issue('lgkm', kw['tag'])
            elif kind == 'vm':
                nl = W.need('lgkm', kw.get('need', []))
                if nl is not None: out.append(f"s_waitcnt lgkmcnt({nl})")
                out.append(kw['text']); W.issue('vm', kw['tag'])
            elif kind == 'vmblock':
                out += kw['lines']; W.issue('vm', kw['tag'])
            elif kind == 'bar':
                nv = W.need('vm', kw.get('needvm', []))
                nl = W.need('lgkm', kw.get('needlgkm', []))
                if kw.get('drainlgkm') and W.q['lgkm']:
                    W.drain('lgkm'); nl = 0
                w = []
                import os
                if nv is not None and not os.environ.get('NOVM'): w.append(f"vmcnt({nv})")
                if nl is not None: w.append(f"lgkmcnt({nl})")
                if w: out.append("s_waitcnt " + ' '.join(w))
                if not os.environ.get('NOBAR'): out.append("s_barrier")
            else:
                nv = W.need('vm', kw.get('needvm', []))
                nl = W.need('lgkm', kw.get('need', []))
                w = []
                if nv is not None: w.append(f"vmcnt({nv})")
                if nl is not None: w.append(f"lgkmcnt({nl})")
                if w: out.append("s_waitcnt " + ' '.join(w))
                if kind == 'block': out += kw['lines']
                else: out.append(kw['text'])
        self.ev = []
        return out
```

```python
import sys, json
from gen_common import *
import gen_k2, gen_k1, gen_k3

def build(opts, path):
    launches = []
    text = []
    descs = []
    hdr = ["; generated"]
    which = opts.get('which', ['k1','k2','k3'])
    if 'k1' in which:
        L, d, errs = gen_k1.gen_k1(opts.get('k1'))
        text += L; descs += d
        hdr.append("; @launch kernel=prep_kernel grid=(256,1,1) block=(256,1,1) lds=163840")
    if 'k2' in which:
        L, d, errs = gen_k2.gen_k2(opts.get('k2'))
        for x in errs[:30]: print('HAZARD', x)
        if errs: print(len(errs), 'hazards')
        text += L; descs += d
        hdr.append("; @launch kernel=attn_kernel grid=(256,1,1) block=(256,1,1) lds=98304")
    if 'k3' in which:
        L, d, errs = gen_k3.gen_k3(opts.get('k3'))
        text += L; descs += d
        hdr.append("; @launch kernel=final_kernel grid=(250,1,1) block=(256,1,1) lds=32768")
    s = hdr + ['.amdgcn_target "amdgcn-amd-amdhsa--gfx950"', '.text'] + text + ['.section .rodata,"a"'] + descs
    open(path, 'w').write('\n'.join(s) + '\n')

if __name__ == '__main__':
    opts = json.loads(sys.argv[2]) if len(sys.argv) > 2 else {}
    build(opts, sys.argv[1])
```

```python
from gen_common import *
from tl import TL
import hazard, struct
SLOT = 16384
EX = 131072
fb = lambda x: hex(struct.unpack('<I', struct.pack('<f', x))[0])

def gen_k1(opt=None):
    o = dict(D=6, stamp=False, st='', npre=2)
    if opt: o.update(opt)
    D = o['D']; ST = (' ' + o['st']) if o['st'] else ''
    name = 'prep_kernel'
    L = []; e = L.append
    B = 0; ACC = [64, 128]; KA = 192; KA2 = 200; VN = 208; VN2 = 216; DV = 224; DS = 228; XB = 200
    aR = 0; R = 8
    def stamp(T, k):
        if o['stamp']: T.append(f"s_memrealtime s[{72+2*k}:{73+2*k}]")
    L += kernel_header(name)
    e("s_cmp_ge_u32 s2, 256")
    e("s_cbranch_scc1 K1_END")
    e("s_load_dwordx16 s[36:51], s[0:1], 0")
    e("s_load_dwordx2 s[52:53], s[0:1], 64")
    e("s_load_dwordx2 s[54:55], s[0:1], 88")
    if o['stamp']:
        e("s_memtime s[60:61]"); e("s_memrealtime s[62:63]")
    e("v_lshrrev_b32 v232, 6, v0")
    e("v_and_b32 v240, 63, v0")
    e("v_lshrrev_b32 v241, 5, v240")
    e("v_and_b32 v242, 31, v240")
    e("v_readfirstlane_b32 s28, v232")
    e("s_and_b32 s29, s28, 1")
    e("s_lshr_b32 s30, s28, 1")
    e("s_lshl_b32 s31, s28, 12")
    e("s_sub_u32 s35, s2, 125"); e("s_cmp_lt_u32 s2, 125"); e("s_cselect_b32 s35, s2, s35")
    e("s_lshl_b32 s33, s28, 1")
    for k in range(4):
        e(f"v_add_u32 v234, {2*k}, v241"); e("v_and_b32 v234, 3, v234"); e("v_lshlrev_b32 v234, 2, v234")
        e(f"s_add_u32 s34, s33, {k>>1}"); e("s_and_b32 s34, s34, 3")
        e("v_or_b32 v234, s34, v234"); e("v_xor_b32 v234, v242, v234"); e("v_lshlrev_b32 v234, 4, v234")
        e("v_lshl_add_u32 v234, v241, 9, v234")
        e(f"v_add_u32 v{DS+k}, s31, v234")
    e("s_waitcnt lgkmcnt(0)")
    e("s_cmp_lt_u32 s2, 250"); e("s_cbranch_scc0 K1_NOX")
    srd(e, 16, 's36', 's37', 0, 8000*512)
    e("s_lshl_b32 s32, s35, 15")
    for half in range(2):
        e(f"s_add_u32 m0, s31, {EX + half*SLOT:#x}")
        if half: e("s_add_u32 s32, s32, 16384")
        else: e("s_nop 0")
        for k in range(4):
            e(f"buffer_load_dwordx4 v{DS+k}, s[16:19], s32 offen offset:{k*1024} lds")
    e("K1_NOX:")
    e("s_cmp_lt_u32 s2, 125"); e("s_cbranch_scc1 K1_Q")
    e("s_cmp_lt_u32 s2, 250"); e("s_cbranch_scc1 K1_UG")
    e("s_cmp_lt_u32 s2, 254"); e("s_cbranch_scc1 K1_W1")
    e("s_branch K1_W2")

    def k_addr(T, dst, dst2, base_lines):
        t = T.append
        t("v_and_b32 v234, 3, v242"); t("v_lshlrev_b32 v234, 2, v234"); t("v_bfe_u32 v235, v242, 2, 2")
        t("v_or_b32 v234, v234, v235"); t("v_lshlrev_b32 v236, 9, v242")
        for x in base_lines: t(x)
        t("v_add_u32 v236, s33, v236")
        for jj in range(8):
            t(f"v_add_u32 v235, {2*jj}, v241"); t("v_xor_b32 v235, v235, v234")
            t(f"v_lshl_add_u32 v{dst+jj}, v235, 4, v236")
            if dst2 is not None: t(f"v_add_u32 v{dst2+jj}, 0x10000, v{dst+jj}")
    def ka_setup(T): k_addr(T, KA, KA2, ["s_lshl_b32 s33, s30, 14"])
    def xb_setup(T): k_addr(T, XB, None, ["s_lshl_b32 s33, s29, 14", f"s_add_u32 s33, s33, {EX}"])
    def vn_setup(T):
        t = T.append
        t("v_bfe_u32 v234, v240, 4, 1"); t("v_bfe_u32 v235, v240, 2, 2"); t("v_bfe_u32 v236, v240, 1, 1")
        t("v_lshl_add_u32 v236, v234, 1, v236"); t("v_and_b32 v237, 1, v240"); t("v_lshlrev_b32 v237, 3, v237")
        t("v_lshl_add_u32 v238, v241, 3, v235"); t("v_lshl_add_u32 v237, v238, 9, v237")
        t("s_lshl_b32 s33, s30, 8"); t("v_add_u32 v237, s33, v237")
        for a in range(4):
            for u in range(2):
                t(f"v_lshl_add_u32 v238, v241, 1, {u}"); t("v_lshl_or_b32 v238, v235, 2, v238")
                t(f"v_add_u32 v239, {4*a}, v236"); t("v_xor_b32 v238, v238, v239")
                t(f"v_lshl_add_u32 v{VN+a*2+u}, v238, 4, v237")
                if u: t(f"v_add_u32 v{VN+a*2+u}, {4*512}, v{VN+a*2+u}")
                t(f"v_add_u32 v{VN2+a*2+u}, 0x10000, v{VN+a*2+u}")
    def dma_voff(T, stride1024):
        t = T.append
        if not stride1024:
            for k in range(4): t(f"v_mov_b32 v{DV+k}, v{DS+k}")
            return
        t("s_lshl_b32 s33, s28, 1")
        for k in range(4):
            t(f"v_add_u32 v234, {2*k}, v241"); t("v_and_b32 v234, 3, v234"); t("v_lshlrev_b32 v234, 2, v234")
            t(f"s_add_u32 s34, s33, {k>>1}"); t("s_and_b32 s34, s34, 3")
            t("v_or_b32 v234, s34, v234"); t("v_xor_b32 v234, v242, v234"); t("v_lshlrev_b32 v234, 4, v234")
            t("v_lshl_add_u32 v234, v241, 10, v234"); t("s_lshl_b32 s34, s28, 13"); t(f"s_add_u32 s34, s34, {k*1024}")
            t(f"v_add_u32 v{DV+k}, s34, v234")
    def tile_dma(n, srdn, soff):
        r = [(f"s_add_u32 m0, s31, {(n%8)*SLOT:#x}", False), (f"s_mov_b32 s32, {soff:#x}", False)]
        for k in range(4):
            r.append((f"buffer_load_dwordx4 v{DV+k}, s[{srdn}:{srdn+3}], s32 offen offset:{k*1024} lds", True))
        return r
    def emit_tile(out, W, n, srdn, soff):
        for txt, vm in tile_dma(n, srdn, soff):
            out.append(txt)
            if vm: W.issue('vm', ('T', n))
    def out_rows(T, W, srdn, tag, OB):
        t = T.append
        t("v_lshlrev_b32 v232, 4, v240"); t(f"s_add_u32 s33, s31, {EX}"); t("v_add_u32 v232, s33, v232")
        for half in range(2):
            for k in range(4):
                t(f"ds_read_b128 {vr(OB+(half*4+k)*4,4)}, v232 offset:{half*SLOT + k*1024}")
        t("s_lshl_b32 s32, s35, 15")
        for half in range(2):
            if half: t("s_add_u32 s32, s32, 16384")
            for k in range(4):
                t(f"s_waitcnt lgkmcnt({7 - (half*4+k)})")
                t(f"buffer_store_dwordx4 {vr(OB+(half*4+k)*4,4)}, v{DS+k}, s[{srdn}:{srdn+3}], s32 offen offset:{k*1024}{ST}")
                W.issue('vm', (tag, half, k))
        W.drain('lgkm')
    def ln(out, W, tiles):
        nw = W.need('vm', [('X', 7)])
        out.append(f"s_waitcnt vmcnt({nw})")
        out.append("s_barrier")
        stamp(out, 0)
        for s in range(16):
            out.append(f"ds_read_b128 {vr(B+4*s,4)}, v{XB+(s&7)} offset:{(s>>3)*256}")
        body = []; b = body.append
        b("s_mov_b32 s34, 0x3f803f80")
        for k in range(4): b(f"v_mov_b32 v{232+k}, 0")
        for r in range(64):
            if r % 4 == 0 and r < 60: b(f"s_waitcnt lgkmcnt({max(0, 15 - r//4)})")
            if r == 60: b("s_waitcnt lgkmcnt(0)")
            b(f"v_dot2_f32_bf16 v{232+(r&1)}, v{B+r}, s34, v{232+(r&1)}")
            b(f"v_dot2_f32_bf16 v{234+(r&1)}, v{B+r}, v{B+r}, v{234+(r&1)}")
        b("s_nop 2")
        b("v_add_f32 v232, v232, v233"); b("v_add_f32 v234, v234, v235")
        b("v_mov_b32 v233, v232"); b("v_mov_b32 v235, v234"); b("s_nop 1")
        b("v_permlane32_swap_b32 v232, v233"); b("v_permlane32_swap_b32 v234, v235"); b("s_nop 1")
        b("v_add_f32 v232, v232, v233"); b("v_add_f32 v234, v234, v235")
        b("v_mul_f32 v232, 0x3b800000, v232"); b("v_mul_f32 v234, 0x3b800000, v234")
        b("v_fma_f32 v234, -v232, v232, v234"); b("v_max_f32 v234, 0, v234"); b("v_add_f32 v234, 0x3727c5ac, v234")
        b("v_rsq_f32 v234, v234"); b("s_nop 0")
        b("v_mul_f32 v236, v232, v234"); b("v_sub_f32 v236, 0, v236")
        for r in range(64):
            t = 244 + 2*(r % 4)
            b(f"v_lshlrev_b32 v{t}, 16, v{B+r}")
            b(f"v_and_b32 v{t+1}, 0xffff0000, v{B+r}")
            b(f"v_pk_fma_f32 v[{t}:{t+1}], v[{t}:{t+1}], v[234:235], v[236:237] op_sel_hi:[1,0,0]")
            b(f"v_cvt_pk_bf16_f32 v{B+r}, v{t}, v{t+1}")
        flat = []
        for (n, sn, so) in tiles:
            tl_ = [(txt, vm, n) for txt, vm in tile_dma(n, sn, so)]
            flat.append(tl_[:3])
            for x in tl_[3:]: flat.append([x])
        gap = max(1, len(body) // (len(flat) + 1)) if flat else 1
        fi = 0
        for i, ins in enumerate(body):
            out.append(ins)
            if fi < len(flat) and i % gap == gap - 1:
                for txt, vm, n in flat[fi]:
                    out.append(txt)
                    if vm: W.issue('vm', ('T', n))
                fi += 1
        while fi < len(flat):
            for txt, vm, n in flat[fi]:
                out.append(txt)
                if vm: W.issue('vm', ('T', n))
            fi += 1
        W.drain('lgkm')
    def phase(W, p, kind, later, fill=None, f0=3):
        tl = TL(W)
        acc = ACC[p]
        cnt = [0]
        for a in range(4):
            sig = 4*p + a
            tb = 16*a - D - 1
            tl.add(tb, 'bar', needvm=[('T', 2*sig), ('T', 2*sig+1)], prio=1)
            k = 0
            for (n, sn, so) in later.get(sig, []):
                for txt, vm in tile_dma(n, sn, so):
                    if vm:
                        tl.add(tb + 1 + k, 'vm', txt, tag=('T', n), prio=7); k += 1
                    else:
                        tl.add(tb + 1 + k, 'txt', txt, prio=6)
            for m in range(16):
                tm = 16*a + m
                ri = cnt[0] % R; cnt[0] += 1
                ring = aR + 4*ri
                if kind == 'X':
                    j = m; slot = 2*a
                    base = (KA if slot < 4 else KA2) + (j & 7)
                    off = (slot % 4)*SLOT + (j >> 3)*256
                    tag = (p, a, m)
                    tl.add(tm - D, 'lds', f"ds_read_b128 {ar(ring,4)}, v{base} offset:{off}", tag=tag, prio=2)
                    c = vr(acc+16*a,16) if j else '0'
                    tl.add(tm, 'mfma', f"v_mfma_f32_32x32x16_bf16 {vr(acc+16*a,16)}, {ar(ring,4)}, {vr(B+4*j,4)}, {c}", need=[tag], prio=0)
                else:
                    tt, s, aa = m >> 3, (m >> 2) & 1, m & 3
                    tau = 2*a + tt; slot = tau
                    tags = []
                    for u in range(2):
                        base = (VN if slot < 4 else VN2) + aa*2 + u
                        off = (slot % 4)*SLOT + 16*s*512
                        tag = (p, a, m, u); tags.append(tag)
                        tl.add(tm - D, 'lds', f"ds_read_b64_tr_b16 {ar(ring+2*u,2)}, v{base} offset:{off}", tag=tag, prio=2)
                    c = vr(acc+16*aa,16) if (tau or s) else '0'
                    tl.add(tm, 'mfma', f"v_mfma_f32_32x32x16_bf16 {vr(acc+16*aa,16)}, {ar(ring,4)}, {vr(B+4*(2*tau+s),4)}, {c}", need=tags, prio=0)
        if fill:
            n = len(fill)
            for i, ins in enumerate(fill):
                tl.add(f0 + (i*(64-f0))/n, 'txt', ins, prio=4)
        return tl
    def pack_swap(out, src, dst, swap=True, scale=None):
        if scale:
            for k in range(8):
                out.append(f"v_pk_mul_f32 v[{src+2*k}:{src+2*k+1}], v[{src+2*k}:{src+2*k+1}], {scale} op_sel_hi:[1,0]")
        for k in range(8):
            out.append(f"v_cvt_pk_bf16_f32 v{dst+k}, v{src+2*k}, v{src+2*k+1}")
        if swap:
            out.append("s_nop 1")
            for b in (0, 4):
                out.append(f"v_permlane32_swap_b32 v{dst+b}, v{dst+b+2}")
                out.append(f"v_permlane32_swap_b32 v{dst+b+1}, v{dst+b+3}")
    def exchange(out, W, acc, kind):
        out.append("s_nop 15")
        out.append("v_lshlrev_b32 v232, 4, v240")
        out.append(f"s_lshl_b32 s33, s29, 14"); out.append(f"s_add_u32 s33, s33, {EX}")
        out.append("v_add_u32 v233, s33, v232")
        out.append(f"s_lshl_b32 s34, s30, {13 if kind=='Y' else 11}")
        out.append("v_add_u32 v232, s34, v233")
        for a in range(4):
            d = 244 if a % 2 == 0 else 0
            pack_swap(out, acc+16*a, d)
            for s in range(2):
                f = (2*a + s) if kind == 'Y' else (4*a + s)
                out.append(f"ds_write_b128 v232, {vr(d+4*s,4)} offset:{f*1024}")
        out.append("s_waitcnt lgkmcnt(0)")
        out.append("s_barrier")
        for f in range(16):
            out.append(f"ds_read_b128 {vr(B+4*f,4)}, v233 offset:{f*1024}")
        out.append("s_waitcnt lgkmcnt(0)")
        W.drain('lgkm')
    def narrow(out, W, rowbase_bytes, slice_sreg):
        for x in ["v_lshrrev_b32 v232, 3, v240", "v_lshlrev_b32 v232, 9, v232", "v_and_b32 v233, 7, v240",
                  "v_lshl_add_u32 v232, v233, 4, v232", f"s_lshl_b32 s33, {slice_sreg}, 7", "s_lshl_b32 s34, s28, 15",
                  "s_add_u32 s33, s33, s34", f"s_add_u32 s33, s33, {rowbase_bytes}", "v_add_u32 v232, s33, v232",
                  "s_lshl_b32 s34, s28, 13", f"s_add_u32 s34, s34, {EX}"]: out.append(x)
        for i in range(8):
            out.append(f"s_add_u32 m0, s34, {i*1024}")
            out.append(f"s_mov_b32 s32, {i*4096}")
            out.append(f"buffer_load_dwordx4 v232, s[16:19], s32 offen lds")
            W.issue('vm', ('N', i))
    def narrow_read(out, W):
        n = W.need('vm', [('N', 7)])
        out.append(f"s_waitcnt vmcnt({n})")
        out.append("s_barrier")
        for x in ["v_bfe_u32 v232, v240, 2, 2", "v_lshl_add_u32 v232, v241, 3, v232", "v_lshlrev_b32 v232, 7, v232",
                  "v_bfe_u32 v233, v240, 4, 1", "v_lshl_add_u32 v232, v233, 5, v232", "v_and_b32 v233, 3, v240",
                  "v_lshl_add_u32 v232, v233, 3, v232", "s_lshl_b32 s33, s29, 6", f"s_add_u32 s33, s33, {EX}",
                  "v_add_u32 v232, s33, v232"]: out.append(x)
        for s in range(16):
            for u in range(2):
                out.append(f"ds_read_b64_tr_b16 {vr(B+4*s+2*u,2)}, v232 offset:{s*2048+u*512}")
            if s % 4 == 3: out.append("s_waitcnt lgkmcnt(0)")
        W.drain('lgkm')
    def finish(task_lines, label):
        fixed = hazard.autofix(task_lines)
        e(f"{label}:")
        L.extend(fixed)
        e("s_branch K1_FIN")
    def cap(fn):
        buf = []; fn(buf.append); return buf
    std_later = lambda sn: {2: [(8, sn, 0), (9, sn, SLOT)], 3: [(10, sn, 2*SLOT), (11, sn, 3*SLOT)], 4: [(12, sn, 4*SLOT), (13, sn, 5*SLOT)], 5: [(14, sn, 6*SLOT), (15, sn, 7*SLOT)]}
    npre = o['npre']

    W = Waiter(); T = []
    for s in range(8): W.issue('vm', ('X', s))
    dma_voff(T, False)
    T += cap(lambda e: (srd(e, 8, 's38', 's39', 0, 131072), srd(e, 12, 's40', 's41', 0, 131072),
                        srd(e, 20, 's54', 's55', XA_OFF, 8000*512), srd(e, 24, 's54', 's55', QF_OFF, 500*8192)))
    emit = [(n, 8, n*SLOT) for n in range(8)]
    for (n, sn, so) in emit[:npre]: emit_tile(T, W, n, sn, so)
    xb_setup(T); vn_setup(T)
    ln(T, W, emit[npre:])
    stamp(T, 1)
    T.append("s_cmp_eq_u32 s30, 0"); T.append("s_cbranch_scc0 K1_Q_XH")
    for s in range(8): T.append(f"ds_write_b128 v{XB+s}, {vr(B+4*s,4)}")
    T.append("s_branch K1_Q_XD"); T.append("K1_Q_XH:")
    for s in range(8): T.append(f"ds_write_b128 v{XB+s}, {vr(B+32+4*s,4)} offset:256")
    T.append("K1_Q_XD:")
    T.append("s_waitcnt lgkmcnt(0)"); T.append("s_barrier")
    out_rows(T, W, 20, 'XS', ACC[1])
    ka_setup(T)
    stamp(T, 2)
    later = std_later(12)
    T += phase(W, 0, 'Y', later).linearize()
    stamp(T, 3)
    exchange(T, W, ACC[0], 'Y')
    stamp(T, 4)
    T += phase(W, 1, 'X', later).linearize()
    stamp(T, 5)
    T.append("s_nop 15")
    T.append("v_mov_b32 v236, 0x3db8aa3b")
    T.append("s_lshl_b32 s33, s35, 2"); T.append("s_lshl_b32 s34, s29, 1"); T.append("s_add_u32 s33, s33, s34"); T.append("s_lshl_b32 s33, s33, 13")
    T.append("s_lshl_b32 s34, s30, 10"); T.append("s_add_u32 s33, s33, s34")
    T.append("v_lshrrev_b32 v232, 4, v242"); T.append("v_lshlrev_b32 v232, 13, v232")
    T.append("v_and_b32 v233, 15, v242"); T.append("v_lshl_add_u32 v233, v241, 4, v233")
    T.append("v_lshl_add_u32 v232, v233, 4, v232"); T.append("v_add_u32 v232, s33, v232")
    for a in range(4):
        d = 244 if a % 2 == 0 else 0
        pack_swap(T, ACC[1]+16*a, d, scale="v[236:237]")
        T.append(f"s_mov_b32 s33, {a*2048}")
        for s in range(2):
            T.append(f"buffer_store_dwordx4 {vr(d+4*s,4)}, v232, s[24:27], s33 offen offset:{s*512}{ST}")
    finish(T, "K1_Q")

    W = Waiter(); T = []
    for s in range(8): W.issue('vm', ('X', s))
    dma_voff(T, True)
    T += cap(lambda e: (srd(e, 8, 's46', 's47', 0, 262144),
                        srd(e, 20, 's54', 's55', U_OFF, 8000*512), srd(e, 24, 's54', 's55', G_OFF, 8000*512)))
    emit = [(n, 8, n*32768 + 512) for n in range(8)]
    for (n, sn, so) in emit[:npre]: emit_tile(T, W, n, sn, so)
    xb_setup(T); vn_setup(T)
    ln(T, W, emit[npre:])
    stamp(T, 2)
    gl = lambda n: (n, 8, (n-8)*32768)
    later = {2: [gl(8), gl(9)], 3: [gl(10), gl(11)], 4: [gl(12), gl(13)], 5: [gl(14), gl(15)]}
    T += phase(W, 0, 'Y', later).linearize()
    stamp(T, 3)
    k0 = -2.0*1.4426950408889634*0.7978845608028654
    T.append(f"v_mov_b32 v232, {fb(k0)}"); T.append(f"v_mov_b32 v234, {fb(k0*0.044715)}"); T.append("v_mov_b32 v236, 1.0")
    for k in range(4): T.append(f"v_mov_b32 v{252+k}, 0")
    def gelu(r):
        t = 244 + 2*((r//2) % 4)
        X = f"v[{r}:{r+1}]"; Tt = f"v[{t}:{t+1}]"
        return [f"v_pk_mul_f32 {Tt}, {X}, {X}",
                f"v_pk_fma_f32 {Tt}, {Tt}, v[234:235], v[232:233] op_sel_hi:[1,0,0]",
                f"v_pk_mul_f32 {Tt}, {Tt}, {X}",
                f"v_exp_f32 v{t}, v{t}", f"v_exp_f32 v{t+1}, v{t+1}",
                f"v_pk_add_f32 {Tt}, {Tt}, v[236:237] op_sel_hi:[1,0]",
                f"v_rcp_f32 v{t}, v{t}", f"v_rcp_f32 v{t+1}, v{t+1}",
                f"v_pk_mul_f32 {X}, {X}, {Tt}",
                f"v_pk_add_f32 v[252:253], v[252:253], {X}",
                f"v_pk_fma_f32 v[254:255], {X}, {X}, v[254:255]"]
    fill = []
    g0 = ACC[0]
    for b in range(g0, g0+64, 8):
        cols = [gelu(b+2*k) for k in range(4)]
        for i in range(11):
            for k in range(4): fill.append(cols[k][i])
    T += phase(W, 1, 'Y', later, fill=fill, f0=4).linearize()
    stamp(T, 5)
    T.append("v_add_f32 v8, v252, v253"); T.append("v_add_f32 v10, v254, v255")
    T.append("v_mov_b32 v9, v8"); T.append("v_mov_b32 v11, v10"); T.append("s_nop 1")
    T.append("v_permlane32_swap_b32 v8, v9"); T.append("v_permlane32_swap_b32 v10, v11"); T.append("s_nop 1")
    T.append("v_add_f32 v8, v8, v9"); T.append("v_add_f32 v9, v10, v11")
    T.append("s_lshl_b32 s33, s29, 1"); T.append("s_add_u32 s33, s33, s30"); T.append("s_lshl_b32 s33, s33, 9")
    T.append("v_lshlrev_b32 v12, 3, v240"); T.append("v_add_u32 v13, s33, v12")
    T.append("s_xor_b32 s33, s33, 512"); T.append("v_add_u32 v14, s33, v12")
    T.append("ds_write_b64 v13, v[8:9]")
    T.append("s_lshl_b32 s33, s30, 8")
    for jj in range(8): T.append(f"v_add_u32 v{XB+jj}, s33, v{XB+jj}")
    for a in range(4):
        d = 244 if a % 2 == 0 else 16
        pack_swap(T, ACC[1]+16*a, d)
        for s in range(2):
            T.append(f"ds_write_b128 v{XB+2*a+s}, {vr(d+4*s,4)}")
    T.append("s_waitcnt lgkmcnt(0)"); T.append("s_barrier")
    T.append("ds_read_b64 v[10:11], v14")
    W.drain('lgkm')
    T.append("s_waitcnt lgkmcnt(0)")
    out_rows(T, W, 20, 'US', ACC[1])
    stamp(T, 6)
    T.append("v_add_f32 v8, v8, v10"); T.append("v_add_f32 v9, v9, v11")
    T.append("v_mul_f32 v8, 0x3b800000, v8"); T.append("v_mul_f32 v9, 0x3b800000, v9")
    T.append("v_fma_f32 v9, -v8, v8, v9"); T.append("v_max_f32 v9, 0, v9"); T.append("v_add_f32 v9, 0x3727c5ac, v9")
    T.append("v_rsq_f32 v10, v9"); T.append("s_nop 0")
    T.append("v_mul_f32 v12, v8, v10"); T.append("v_sub_f32 v12, 0, v12")
    for a in range(4):
        for k in range(8):
            r = g0 + 16*a + 2*k
            T.append(f"v_pk_fma_f32 v[{r}:{r+1}], v[{r}:{r+1}], v[10:11], v[12:13] op_sel_hi:[1,0,0]")
        pack_swap(T, g0+16*a, 16+8*a)
    T.append("s_barrier")
    for a in range(4):
        for s in range(2):
            T.append(f"ds_write_b128 v{XB+2*a+s}, {vr(16+8*a+4*s,4)}")
    T.append("s_waitcnt lgkmcnt(0)"); T.append("s_barrier")
    out_rows(T, W, 24, 'GS', ACC[0])
    stamp(T, 7)
    finish(T, "K1_UG")

    def wf_store(T, acc, which, slice_sreg):
        T.append(f"s_lshl_b32 s33, {slice_sreg}, 2"); T.append("s_lshl_b32 s34, s29, 1"); T.append("s_add_u32 s33, s33, s34"); T.append("s_lshl_b32 s33, s33, 14")
        T.append("s_lshl_b32 s34, s30, 10"); T.append("s_add_u32 s33, s33, s34")
        if which == 2: T.append("s_add_u32 s33, s33, 8192")
        T.append("v_lshrrev_b32 v232, 4, v242"); T.append("v_lshlrev_b32 v232, 14, v232")
        T.append("v_and_b32 v233, 15, v242"); T.append("v_lshl_add_u32 v233, v241, 4, v233")
        T.append("v_lshl_add_u32 v232, v233, 4, v232"); T.append("v_add_u32 v232, s33, v232")
        for a in range(4):
            d = 244; src = acc + 16*a
            if which == 1:
                for k, r in enumerate((0, 2, 8, 10, 4, 6, 12, 14)):
                    T.append(f"v_cvt_pk_bf16_f32 v{d+k}, v{src+r}, v{src+r+1}")
            else:
                pack_swap(T, src, d)
            T.append(f"s_mov_b32 s33, {a*2048}")
            for s in range(2):
                T.append(f"buffer_store_dwordx4 {vr(d+4*s,4)}, v232, s[24:27], s33 offen offset:{s*512}{ST}")
            T.append("s_nop 1")
    W = Waiter(); T = []
    dma_voff(T, False)
    T.append("s_sub_u32 s35, s2, 250")
    T += cap(lambda e: (srd(e, 16, 's52', 's53', 0, 262144), srd(e, 8, 's44', 's45', 0, 131072), srd(e, 12, 's42', 's43', 0, 131072),
                        srd(e, 24, 's54', 's55', WF_OFF, 262144)))
    narrow(T, W, 0, 's35')
    for n in range(8): emit_tile(T, W, n, 8, n*SLOT)
    ka_setup(T)
    narrow_read(T, W)
    later = std_later(12)
    T += phase(W, 0, 'X', later).linearize()
    T.append("s_barrier")
    exchange(T, W, ACC[0], 'X')
    T += phase(W, 1, 'X', later).linearize()
    T.append("s_nop 15")
    wf_store(T, ACC[1], 1, 's35')
    finish(T, "K1_W1")

    W = Waiter(); T = []
    dma_voff(T, False)
    T.append("s_sub_u32 s35, s2, 254"); T.append("s_lshl_b32 s35, s35, 1")
    T += cap(lambda e: (srd(e, 16, 's52', 's53', 0, 262144), srd(e, 8, 's50', 's51', 0, 131072),
                        srd(e, 24, 's54', 's55', WF_OFF, 262144)))
    narrow(T, W, 131072, 's35')
    for n in range(8): emit_tile(T, W, n, 8, n*SLOT)
    ka_setup(T)
    narrow_read(T, W)
    T.append("s_barrier")
    T.append("s_add_u32 s56, s35, 1")
    narrow(T, W, 131072, 's56')
    later = std_later(8)
    T += phase(W, 0, 'X', later).linearize()
    T.append("s_nop 15")
    wf_store(T, ACC[0], 2, 's35')
    for i in range(8): W.issue('vm', ('WS', i))
    narrow_read(T, W)
    T += phase(W, 1, 'X', later).linearize()
    T.append("s_nop 15")
    wf_store(T, ACC[1], 2, 's56')
    finish(T, "K1_W2")

    e("K1_FIN:")
    if o['stamp']:
        e("s_waitcnt vmcnt(0)")
        e("s_memtime s[64:65]"); e("s_memrealtime s[66:67]")
        e("s_waitcnt lgkmcnt(0)")
        e("s_cmp_eq_u32 s28, 0"); e("s_cbranch_scc0 K1_END")
        e("s_add_u32 s68, s54, 0x8100000"); e("s_addc_u32 s69, s55, 0"); e("s_mov_b32 s70, 0x100000"); e("s_mov_b32 s71, 0x20000")
        for k, r in enumerate([60, 64, 62, 66]): e(f"v_mov_b32 v{232+k}, s{r}")
        e("s_lshl_b32 s33, s2, 4"); e("v_mov_b32 v236, s33")
        e("buffer_store_dwordx4 v[232:235], v236, s[68:71], 0 offen")
        for k in range(8): e(f"v_mov_b32 v{244+k}, s{72+2*k}")
        e("s_lshl_b32 s33, s2, 5"); e("s_add_u32 s33, s33, 0x10000"); e("v_mov_b32 v236, s33")
        e("buffer_store_dwordx4 v[244:247], v236, s[68:71], 0 offen")
        e("buffer_store_dwordx4 v[248:251], v236, s[68:71], 0 offen offset:16")
    e("K1_END:")
    e("s_endpgm")
    return L, kernel_desc(name, 288, 256), []
```

```python
from gen_common import *
import hazard, struct
SLOT = 16384
M16 = "v_mfma_f32_16x16x32_bf16"
fb = lambda x: hex(struct.unpack('<I', struct.pack('<f', x))[0])
EXT = 131072
MX = EXT
OWN = EXT + 4096
OWNML = EXT + 20480
ACT = 0

def gen_k2f(opt=None):
    o = dict(DF=3, stamp=False, bslot=8, dma0=10, dmastep=4, e0=37, e1=93, estep=4, cvtd=1, addd=1, fused=True)
    if opt: o.update(opt)
    name = 'attn_kernel'
    L = []; e = L.append
    O = 0; S = 128; P = [160, 176]; NEGM = 192; RING = 208; KA = 232; VA = 236; DV = 244; LS = 248; MREF = 252
    aQ = 0; aO = 128
    def Oreg(dt, qt): return vr(O + (dt*2+qt)*4, 4) if qt < 2 else ar(aO + (dt*2+qt-2)*4, 4)
    def Sreg(kt, qt): return S + (kt*4+qt)*4
    L += kernel_header(name)
    e("s_cmp_ge_u32 s2, 256")
    e("s_cbranch_scc1 K2_END")
    e("s_load_dwordx2 s[4:5], s[0:1], 88")
    e("s_load_dwordx2 s[6:7], s[0:1], 80")
    e("s_load_dwordx2 s[36:37], s[0:1], 0")
    e("s_load_dwordx2 s[32:33], s[0:1], 48")
    e("s_load_dwordx2 s[40:41], s[0:1], 72")
    if o['stamp']:
        e("s_memtime s[72:73]"); e("s_memrealtime s[74:75]")
    T = []; t = T.append
    t("v_lshrrev_b32 v130, 6, v0")
    t("v_and_b32 v131, 63, v0")
    t("v_readfirstlane_b32 s48, v130")
    t("s_and_b32 s60, s2, 7")
    t("s_lshr_b32 s61, s2, 3")
    t("s_lshr_b32 s51, s60, 2")
    t("s_and_b32 s53, s61, 3")
    t("s_lshr_b32 s61, s61, 2")
    t("s_and_b32 s52, s60, 3")
    t("s_lshl_b32 s52, s52, 3")
    t("s_add_u32 s52, s52, s61")
    t("s_and_b32 s49, s48, 1")
    t("s_lshr_b32 s50, s48, 1")
    t("s_lshl_b32 s54, s53, 5")
    t("s_lshl_b32 s60, s50, 4")
    t("s_add_u32 s54, s54, s60")
    t("s_max_u32 s60, s53, 1")
    t("s_sub_u32 s60, s60, 1")
    t("s_sub_u32 s54, s54, s60")
    t("s_min_u32 s60, s53, 1")
    t("s_and_b32 s60, s60, s50")
    t("s_sub_u32 s55, 16, s60")
    t("s_lshl_b32 s55, s55, 14")
    t("s_cmp_eq_u32 s60, 1")
    t("s_cselect_b32 s59, 3, 0xffff")
    t("s_lshl_b32 s54, s54, 14")
    t("s_mul_i32 s60, s51, 2048000")
    t("s_add_u32 s54, s54, s60")
    t("v_and_b32 v132, 15, v131")
    t("v_lshrrev_b32 v133, 4, v131")
    t("v_lshrrev_b32 v134, 5, v131")
    t("v_and_b32 v135, 31, v131")
    t("s_lshl_b32 s60, s49, 13")
    for k in range(4):
        t(f"v_add_u32 v136, {2*k}, v134")
        t("v_lshlrev_b32 v136, 1, v136")
        t("v_xor_b32 v136, v135, v136")
        t("v_lshlrev_b32 v136, 4, v136")
        t("v_lshl_add_u32 v136, v134, 9, v136")
        t(f"v_add_u32 v{DV+k}, s60, v136")
    t("s_waitcnt lgkmcnt(0)")
    def S_(fn):
        buf = []; fn(buf.append); T.extend(buf)
    S_(lambda e: srd(e, 8, 's4', 's5', 's54', 's55'))
    S_(lambda e: srd(e, 12, 's4', 's5', QF_OFF, 500*8192))
    t("s_getreg_b32 s63, hwreg(HW_REG_XCC_ID, 0, 3)")
    t("s_or_b32 s63, s63, 8")
    t("s_mov_b32 s44, s6"); t("s_mov_b32 s45, s7"); t("s_mov_b32 s46, 256"); t("s_mov_b32 s47, 0x20000")
    t("s_lshl_b32 s65, s51, 5"); t("s_add_u32 s65, s65, s52")
    t("s_cmp_eq_u32 s48, 0"); t("s_cbranch_scc0 K2_NOXCC")
    t("s_lshl_b32 s60, s53, 2"); t("s_add_u32 s60, s60, 8"); t("s_lshl_b32 s61, s63, s60")
    t("s_lshl_b32 s60, s65, 2")
    t("v_mov_b32 v136, s60"); t("v_mov_b32 v137, s61")
    t("v_cmp_eq_u32 vcc, 0, v131"); t("s_and_saveexec_b64 s[70:71], vcc")
    t("buffer_atomic_add v137, v136, s[44:47], 0 offen")
    t("s_mov_b64 exec, s[70:71]")
    t("s_waitcnt vmcnt(0)")
    t("K2_NOXCC:")
    t("s_lshl_b32 s56, s50, 16"); t("s_lshl_b32 s60, s49, 13"); t("s_add_u32 s56, s56, s60")
    t("s_mov_b32 s57, 0")
    def dma_lines(slot):
        r = []
        for k in range(8):
            if k % 4 == 0:
                r.append((f"s_add_u32 m0, s56, {slot*SLOT + (k//4)*4096:#x}", False))
                if k: r.append(("s_add_u32 s57, s57, 4096", False))
                else: r.append(("s_nop 0", False))
            r.append((f"buffer_load_dwordx4 v{DV+k%4}, s[8:11], s57 offen offset:{(k%4)*1024} lds", True))
        r.append((f"s_add_u32 s57, s57, {SLOT-4096}", False))
        return r
    for txt, _ in dma_lines(0): t(txt)
    t("v_lshlrev_b32 v137, 4, v131")
    for qt in range(4):
        t(f"s_lshl_b32 s60, s50, 1"); t(f"s_add_u32 s60, s60, {qt}"); t("s_and_b32 s60, s60, 3")
        t("s_lshl_b32 s61, s52, 3"); t("s_add_u32 s60, s60, s61")
        t("s_lshl_b32 s61, s49, 2"); t("s_add_u32 s60, s60, s61")
        t("s_min_u32 s60, s60, 249")
        t("s_mul_i32 s61, s51, 250"); t("s_add_u32 s60, s60, s61")
        t("s_lshl_b32 s60, s60, 13")
        for j in range(8):
            if j == 4: t("s_add_u32 s60, s60, 4096")
            t(f"buffer_load_dwordx4 {ar(aQ+(qt*8+j)*4,4)}, v137, s[12:15], s60 offen offset:{(j%4)*1024}")
    for n in (1, 2):
        for txt, _ in dma_lines(n): t(txt)
    t("v_and_b32 v136, 7, v132"); t("v_lshlrev_b32 v136, 1, v136")
    t("v_lshlrev_b32 v138, 9, v132")
    t("s_lshl_b32 s60, s50, 16"); t("v_add_u32 v138, s60, v138")
    for jj in range(4):
        t(f"v_add_u32 v139, {4*jj}, v133")
        t("v_xor_b32 v139, v139, v136")
        t(f"v_lshl_add_u32 v{KA+jj}, v139, 4, v138")
    t("v_lshrrev_b32 v136, 2, v132")
    t("v_lshl_add_u32 v136, v133, 2, v136")
    t("v_lshlrev_b32 v138, 9, v136")
    t("v_add_u32 v138, s60, v138")
    t("v_and_b32 v139, 1, v132"); t("v_lshl_add_u32 v138, v139, 3, v138")
    t("v_and_b32 v136, 7, v136"); t("v_lshlrev_b32 v136, 1, v136")
    t("v_bfe_u32 v139, v132, 1, 1")
    for dd in range(8):
        t(f"v_add_u32 v140, {2*dd}, v139")
        t("v_xor_b32 v140, v140, v136")
        t(f"v_lshl_add_u32 v{VA+dd}, v140, 4, v138")
    for r in range(128): t(f"v_mov_b32 v{O+r}, 0")
    for r in range(128): t(f"v_accvgpr_write_b32 a{aO+r}, 0")
    for k in range(4): t(f"v_mov_b32 v{LS+k}, 0")
    t("s_mov_b32 s58, 0")
    t("s_waitcnt vmcnt(16)")
    t("s_barrier")
    if o['stamp']: t("s_memtime s[76:77]"); t("s_memrealtime s[78:79]")
    L += hazard.autofix(T)
    DF = o['DF']
    ev = []; seq = [0]
    def add(tm, kind, prio=5, **kw):
        seq[0] += 1; ev.append((tm, prio, seq[0], kind, kw))
    def TT(i, n): return 128*i + n
    NT = 16
    for n in range(NT):
        slot = n % 4
        for kt in range(2):
            for j in range(8):
                f = 8*kt + j
                tm = TT(n-1, 4*f); tr = tm - 4*DF
                ring = RING + 4*(f % 4)
                off = slot*SLOT + kt*8192 + (j >> 2)*256
                add(tr, 'lds', prio=2, text=f"ds_read_b128 {vr(ring,4)}, v{KA+(j&3)} offset:{off}", tag=('K', n, f))
                if n < NT:
                    for qt in range(4):
                        acc = vr(Sreg(kt, qt), 4)
                        c = acc if j else ('0' if n == 0 else vr(NEGM+4*qt, 4))
                        add(tm+qt, 'mfma', prio=0, text=f"{M16} {acc}, {vr(ring,4)}, {ar(aQ+(qt*8+j)*4,4)}, {c}",
                            need=[('K', n, f)] if qt == 0 else [])
    for n in range(NT):
        slot = n % 4
        for dt in range(16):
            f = 16 + dt
            tm = TT(n, 4*f); tr = tm - 4*DF
            ring = RING + 4*(f % 4)
            for u in range(2):
                off = slot*SLOT + u*8192 + (dt >> 3)*256
                add(tr, 'lds', prio=2, text=f"ds_read_b64_tr_b16 {vr(ring+2*u,2)}, v{VA+(dt&7)} offset:{off}", tag=('V', n, dt, u))
            for qt in range(4):
                add(tm+qt, 'mfma', prio=0, text=f"{M16} {Oreg(dt,qt)}, {vr(ring,4)}, {vr(P[n%2]+4*qt,4)}, {Oreg(dt,qt)}",
                    need=[('V', n, dt, 0), ('V', n, dt, 1)] if qt == 0 else [])
        for kt in range(2):
            for el in range(16 if o.get('valu', True) else 0):
                qt, r = el >> 2, el & 3
                te = TT(n-1, (o['e0'] if kt == 0 else o['e1']) + o['estep']*el)
                reg = Sreg(kt, qt) + r
                add(te, 'valu', prio=3, text=f"v_exp_f32 v{reg}, v{reg}")
                add(te+o['addd'], 'valu', prio=3, text=f"v_add_f32 v{LS+qt}, v{LS+qt}, v{reg}")
                if r % 2 == 1:
                    add(te+o['cvtd'], 'valu', prio=4, text=f"v_cvt_pk_bf16_f32 v{P[n%2]+4*qt+2*kt+r//2}, v{reg-1}, v{reg}")
    for i in range(-1, NT-2):
        add(TT(i, o['bslot']), 'bar', prio=6, it=i)
        if i >= 0 and i + 3 < NT and o.get('dma', True):
            k = 0
            for txt, vm in dma_lines((i+3) % 4):
                tm = TT(i, o['dma0'] + o['dmastep']*k)
                if vm:
                    add(tm, 'dma', prio=7, text=txt, tile=i+3); k += 1
                else:
                    add(tm if k < 8 else TT(i, o['dma0'] + o['dmastep']*7), 'salu', prio=6 if k < 8 else 8, text=txt)
    tail_ev = []
    ev.sort(key=lambda x: (x[0], x[1], x[2]))
    W = Waiter()
    for n in (1, 2):
        for k in range(8): W.issue('vm', ('T', n))
    its = {}
    for x in ev:
        tm, _, _, kind, kw = x
        it = max(tm // 128, -1)
        out = its.setdefault(it, [])
        if kind == 'mfma':
            n = W.need('lgkm', kw['need'])
            if n is not None: out.append(f"s_waitcnt lgkmcnt({n})")
            out.append(kw['text'])
            if tm == TT(-1, 63):
                out.append("@FIXUP")
        elif kind == 'lds':
            out.append(kw['text']); W.issue('lgkm', kw['tag'])
        elif kind == 'bar':
            n = W.need('vm', [('T', kw['it']+2)])
            if n is not None: out.append(f"s_waitcnt vmcnt({n})")
            if o.get('barrier', True) or kw['it'] < 0: out.append("s_barrier")
        elif kind == 'dma':
            out.append(kw['text']); W.issue('vm', ('T', kw['tile']))
        else:
            out.append(kw['text'])
    for i in range(8, 13):
        assert its[i] == its[i-4], (i, [(a, b) for a, b in zip(its[i], its[i-4]) if a != b][:5])
    pro = its[-1]
    fi = pro.index("@FIXUP")
    if not o.get('valu', True):
        its[15] = its[15] + ["v_add_f32 v248, v248, v248"]
    pre_valu = [x for x in pro[:fi] if x.startswith('v_exp') or x.startswith('v_add_f32') or x.startswith('v_cvt')]
    pro_a = [x for x in pro[:fi] if x not in pre_valu or not (x.startswith('v_exp') or x.startswith('v_add_f32') or x.startswith('v_cvt'))]
    fix = []
    fx = fix.append
    fx("s_nop 7")
    for qt in range(4):
        a, b = Sreg(0, qt), Sreg(1, qt)
        fx(f"v_max3_f32 v{NEGM+qt}, v{a}, v{a+1}, v{a+2}")
        fx(f"v_max3_f32 v{NEGM+qt}, v{NEGM+qt}, v{a+3}, v{b}")
        fx(f"v_max3_f32 v{NEGM+qt}, v{NEGM+qt}, v{b+1}, v{b+2}")
        fx(f"v_max_f32 v{NEGM+qt}, v{NEGM+qt}, v{b+3}")
    for sw in ("v_permlane16_swap_b32", "v_permlane32_swap_b32"):
        for qt in range(4): fx(f"v_mov_b32 v{NEGM+4+qt}, v{NEGM+qt}")
        fx("s_nop 1")
        for qt in range(4): fx(f"{sw} v{NEGM+qt}, v{NEGM+4+qt}")
        fx("s_nop 1")
        for qt in range(4): fx(f"v_max_f32 v{NEGM+qt}, v{NEGM+qt}, v{NEGM+4+qt}")
    fx("v_mbcnt_lo_u32_b32 v254, -1, 0"); fx("v_mbcnt_hi_u32_b32 v254, -1, v254")
    fx("v_lshlrev_b32 v254, 4, v254")
    fx(f"s_lshl_b32 s60, s48, 10"); fx(f"s_add_u32 s60, s60, {MX}")
    fx("v_add_u32 v255, s60, v254")
    fx(f"ds_write_b128 v255, {vr(NEGM,4)}")
    fx("s_xor_b32 s60, s60, 2048")
    fx("v_add_u32 v255, s60, v254")
    fx("s_waitcnt lgkmcnt(0)")
    fx("s_barrier")
    fx(f"ds_read_b128 {vr(NEGM+4,4)}, v255")
    fx("s_waitcnt lgkmcnt(0)")
    for qt in range(4): fx(f"v_max_f32 v{NEGM+8+qt}, v{NEGM+qt}, v{NEGM+4+((qt+2)&3)}")
    fx(f"v_mov_b32 v{MREF}, v{NEGM+8}"); fx(f"v_mov_b32 v{MREF+1}, v{NEGM+9}")
    for kt in range(2):
        for qt in range(4):
            for r in range(4): fx(f"v_sub_f32 v{Sreg(kt,qt)+r}, v{Sreg(kt,qt)+r}, v{NEGM+8+qt}")
    for qt in range(4): fx(f"v_mov_b32 v{254}, v{NEGM+8+qt}") if False else None
    for qt in (3, 1, 0):
        for r in range(4): fx(f"v_sub_f32 v{NEGM+4*qt+r}, 0, v{NEGM+8+qt}") if qt != 2 else None
    fx(f"v_sub_f32 v254, 0, v{NEGM+10}")
    for r in range(4): fx(f"v_mov_b32 v{NEGM+8+r}, v254")
    L += hazard.autofix(pro_a + fix + pre_valu + pro[fi+1:])
    if o['stamp']:
        e("s_memtime s[24:25]")
    e("K2_LOOP:")
    body = {u: its[4+u] for u in range(4)}
    L += body[0]
    e("s_cmp_eq_u32 s58, 3")
    e("s_cbranch_scc1 K2_EPI")
    L += body[1]; L += body[2]; L += body[3]
    e("s_add_u32 s58, s58, 1")
    e("s_branch K2_LOOP")
    e("K2_EPI:")
    if o['stamp']:
        e("s_memtime s[26:27]"); e("s_waitcnt lgkmcnt(0)"); e("s_sub_u32 s101, s26, s24"); e("s_sub_u32 s100, s24, s76")
    L += its[13]
    e("s_cmp_eq_u32 s59, 3")
    e("s_cbranch_scc0 K2_NOMASK")
    for r in range(16): e(f"v_mov_b32 v{NEGM+r}, 0xf149f2ca")
    e("s_nop 1")
    e("K2_NOMASK:")
    import gen_tail
    tail = gen_tail.gen_tail(o, its[14], its[15], W)
    L += tail
    e("K2_END:")
    e("s_endpgm")
    i0 = L.index("K2_LOOP:"); i1 = L.index("K2_EPI:")
    lin = L[i0-60:i1] + L[i0:i1] + L[i1:i1+700]
    errs = hazard.check(lin, 'k2f')
    return L, kernel_desc(name, 512, 256), errs
```

```python
from gen_common import *
import hazard, struct
M16 = "v_mfma_f32_16x16x32_bf16"
fb = lambda x: hex(struct.unpack('<I', struct.pack('<f', x))[0])
OWN = 49152
MXE = 114688
OWNML = MXE + 4096
ACT = 0

def gen_tail(o, it14, it15, W):
    O = 0; S = 128; P = [160, 176]; NEGM = 192; RING = 208; KA = 232; VA = 236; DV = 244; LS = 248; MREF = 252
    aO = 128
    T = []; t = T.append
    def stamp(k):
        if o['stamp']: t(f"s_memrealtime s[{80+2*k}:{81+2*k}]")
    def S_(fn):
        buf = []; fn(buf.append); T.extend(buf)
    S_(lambda e: srd(e, 12, 's4', 's5', WF_OFF, 262144))
    t("s_mul_i32 s60, s51, 2048000")
    t(f"s_add_u32 s61, s60, {G_OFF:#x}"); S_(lambda e: srd(e, 24, 's4', 's5', 's61', 2048000))
    t(f"s_add_u32 s61, s60, {U_OFF:#x}"); S_(lambda e: srd(e, 28, 's4', 's5', 's61', 2048000))
    t("s_mov_b32 s34, 2560"); t("s_mov_b32 s35, 0x20000")
    t("s_mov_b32 s38, 4096000"); t("s_mov_b32 s39, 0x20000")
    t("s_mov_b32 s42, 4096000"); t("s_mov_b32 s43, 0x20000")
    S_(lambda e: srd(e, 16, 's4', 's5', OP_OFF, 64*16*16384))
    S_(lambda e: srd(e, 20, 's4', 's5', ML_OFF, 64*16*256))
    t("s_lshl_b32 s62, s52, 7"); t("s_lshl_b32 s60, s53, 5"); t("s_add_u32 s62, s62, s60")
    t("s_lshl_b32 s64, s49, 1"); t("s_add_u32 s64, s64, s50")
    t("v_mbcnt_lo_u32_b32 v254, -1, 0"); t("v_mbcnt_hi_u32_b32 v254, -1, v254")
    t("v_lshlrev_b32 v247, 4, v254")
    t("v_and_b32 v246, 31, v254"); t("v_lshlrev_b32 v246, 4, v246")
    t("v_lshrrev_b32 v255, 5, v254")
    t("s_lshl_b32 s60, s48, 1"); t("v_add_u32 v255, s60, v255")
    t("v_lshlrev_b32 v255, 2, v255"); t("v_add_u32 v255, s62, v255")
    t("v_lshl_add_u32 v244, v255, 9, v246")
    t("v_subrev_u32 v245, 1024, v244")
    t("s_lshl_b32 s60, s48, 15"); t("v_add_u32 v254, s60, v247")
    t("s_add_u32 s61, s60, 16384"); t("s_lshl_b32 s66, s50, 14"); t("s_add_u32 s66, s66, 131072")
    t("s_cmp_eq_u32 s49, 1"); t("s_cselect_b32 s61, s66, s61")
    t("v_add_u32 v255, s61, v247")
    head = list(T); T.clear()
    DWR = [192, 196, 200, 204, 232]
    cl = []
    for i in range(8):
        if i < 2: cl.append((f"buffer_load_dwordx4 {vr(S+4*i,4)}, v245, s[24:27], 0 offen offset:{512*i}", ('G', i)))
        else: cl.append((f"buffer_load_dwordx4 {vr(S+4*i,4)}, v244, s[24:27], 0 offen offset:{512*(i-2)}", ('G', i)))
    for i in range(4): cl.append((f"buffer_load_dwordx4 {vr(P[0]+4*i,4)}, v244, s[28:31], 0 offen offset:{512*i}", ('U', i)))
    for i in range(5): cl.append((f"buffer_load_dwordx4 {vr(DWR[i],4)}, v246, s[32:35], 0 offen offset:{512*i}", ('DW', i)))
    def owr(idx):
        return f"ds_write_b128 v{254 if idx < 16 else 255}, {ar(aO+4*idx,4)} offset:{(idx%16)*1024}"
    w2 = []
    for m in range(8):
        for a in range(4):
            pre = []
            if m % 4 == 0:
                pre = [f"s_lshl_b32 s{66+a}, s48, 16", f"s_add_u32 s{66+a}, s{66+a}, {a*16384 + 8192 + (m>>2)*4096}"]
            w2.append((pre, f"buffer_load_dwordx4 {ar((a*8+m)*4,4)}, v247, s[12:15], s{66+a} offen offset:{(m&3)*1024}", ('W2', m, a)))
    out = list(head)
    nm = 0
    step14 = o.get('w2s14', 4)
    for x in it14:
        out.append(x)
        if x.startswith('v_mfma'):
            nm += 1
            if nm > 66 and nm % step14 == 2 and w2:
                pre, txt, tag = w2.pop(0); out += pre; out.append(txt); W.issue('vm', tag)
    lastS = max(i for i, x in enumerate(it15) if x.startswith('v_cvt_pk') or x.startswith('v_exp') or x.startswith('v_add_f32'))
    ci = 0; nm = 0; wr = 0
    bar_done = False
    for i, x in enumerate(it15):
        out.append(x)
        if not bar_done and i >= 6 and not x.startswith('v_mfma'):
            out.append("s_barrier"); bar_done = True
        if i <= lastS and i % o.get('w2s15', 4) == 1 and w2:
            pre, txt, tag = w2.pop(0); out += pre; out.append(txt); W.issue('vm', tag)
        if x.startswith('v_mfma'):
            nm += 1
            if i > lastS and nm % 4 == 2:
                if w2:
                    pre, txt, tag = w2.pop(0); out += pre; out.append(txt); W.issue('vm', tag)
                elif ci < len(cl):
                    txt, tag = cl[ci]; ci += 1
                    out.append(txt); W.issue('vm', tag)
            if nm % 2 == 0:
                dt_ok = (nm - 9) // 4
                if wr < 2*dt_ok and wr < 32 and dt_ok >= 1:
                    out.append(owr(wr)); wr += 1
    while w2:
        pre, txt, tag = w2.pop(0); out += pre; out.append(txt); W.issue('vm', tag)
    while ci < len(cl):
        txt, tag = cl[ci]; ci += 1; out.append(txt); W.issue('vm', tag)
    T.extend(out)
    if o['stamp']: t("s_memtime s[98:99]")
    stamp(0)
    for sw in ("v_permlane16_swap_b32", "v_permlane32_swap_b32"):
        for qt in range(4): t(f"v_mov_b32 v{P[1]+qt}, v{LS+qt}") if False else t(f"v_mov_b32 v{236+qt}, v{LS+qt}")
        t("s_nop 1")
        for qt in range(4): t(f"{sw} v{LS+qt}, v{236+qt}")
        t("s_nop 1")
        for qt in range(4): t(f"v_add_f32 v{LS+qt}, v{LS+qt}, v{236+qt}")
    t("s_nop 7")
    while wr < 32:
        t(owr(wr)); wr += 1
    t("s_waitcnt lgkmcnt(0)")
    t("s_barrier")
    t("s_lshl_b32 s60, s65, 2")
    t("buffer_load_dword v241, off, s[44:47], s60 sc1"); W.issue('vm', 'WORD')
    w1 = []
    for m in range(8):
        for a in range(4):
            pre = []
            if m % 4 == 0:
                pre = [f"s_lshl_b32 s{66+a}, s48, 16", f"s_add_u32 s{66+a}, s{66+a}, {a*16384 + (m>>2)*4096}"]
            w1.append((pre, f"buffer_load_dwordx4 {ar(128+(a*8+m)*4,4)}, v247, s[12:15], s{66+a} offen offset:{(m&3)*1024}", ('W1', m, a)))
    def pload(n=1, lst=None):
        lst = pend if lst is None else lst
        for _ in range(n):
            if not lst: return
            pre, txt, tag = lst.pop(0)
            T.extend(pre); t(txt); W.issue('vm', tag)
    t("v_lshrrev_b32 v240, 1, v247")
    t("s_lshl_b32 s60, s48, 10"); t(f"s_add_u32 s60, s60, {MXE}"); t("v_add_u32 v240, s60, v240")
    t(f"ds_write_b64 v240, {vr(LS+2,2)}")
    t("v_xor_b32 v254, 0x10000, v254")
    t("s_mov_b32 s57, 0x4000"); t("s_cmp_eq_u32 s49, 1"); t("s_cselect_b32 s60, s57, 0x10000")
    t("v_xor_b32 v255, s60, v255")
    bufs = [P[1], RING]
    def rd(b):
        for k in range(4):
            idx = 4*b + k
            t(f"ds_read_b128 {vr(bufs[b%2]+4*k,4)}, v{254 if idx < 16 else 255} offset:{(idx%16)*1024}")
    rd(0); rd(1)
    for b in range(8):
        t(f"s_waitcnt lgkmcnt({4 if b < 7 else 0})")
        for k in range(4):
            d = O + 4*(4*b+k); s = bufs[b%2] + 4*k
            t(f"v_pk_add_f32 v[{d}:{d+1}], v[{d}:{d+1}], v[{s}:{s+1}]")
            t(f"v_pk_add_f32 v[{d+2}:{d+3}], v[{d+2}:{d+3}], v[{s+2}:{s+3}]")
        if b + 2 < 8: rd(b+2)
        pload(o.get('w1x', 1), w1)
    t("s_barrier")
    t("v_xor_b32 v240, 0x800, v240")
    t(f"ds_read_b64 v[236:237], v240")
    stamp(1)
    for m in range(8):
        for tt in range(2):
            a = 16*m + 4*tt; b = a + 8
            t(f"v_cvt_pk_bf16_f32 v{a}, v{a}, v{a+1}")
            t(f"v_cvt_pk_bf16_f32 v{a+1}, v{a+2}, v{a+3}")
            t(f"v_cvt_pk_bf16_f32 v{a+2}, v{b}, v{b+1}")
            t(f"v_cvt_pk_bf16_f32 v{a+3}, v{b+2}, v{b+3}")
    t("v_mbcnt_lo_u32_b32 v208, -1, 0"); t("v_mbcnt_hi_u32_b32 v208, -1, v208")
    t("v_and_b32 v209, 15, v208")
    t("v_lshrrev_b32 v210, 4, v208")
    t("s_mul_i32 s60, s51, 4000"); t("s_add_u32 s60, s60, s62")
    t("v_add_u32 v211, s60, v209"); t("v_lshlrev_b32 v211, 9, v211")
    t("v_lshl_add_u32 v211, v210, 3, v211")
    t("s_lshl_b32 s60, s48, 7"); t("v_add_u32 v242, s60, v211")
    t("v_add_u32 v243, 8192, v242")
    n = W.need('vm', ['WORD'])
    t(f"s_waitcnt vmcnt({n}) lgkmcnt(0)")
    W.drain('lgkm')
    t(f"v_add_f32 v{LS}, v{LS}, v236"); t(f"v_add_f32 v{LS+1}, v{LS+1}, v237")
    t("s_cmp_eq_u32 s64, s53")
    t("s_cbranch_scc0 K2_PUBG")
    t(f"v_add_u32 v254, {OWN}, v247")
    for m in range(8):
        for tt in range(2):
            t(f"ds_write_b128 v254, {vr(16*m+4*tt,4)} offset:{(m*2+tt)*1024}")
    t("v_lshlrev_b32 v255, 3, v209"); t(f"v_add_u32 v255, {OWNML}, v255")
    for tt in range(2):
        t(f"v_mov_b32 v{212+2*tt}, v{MREF+tt}"); t(f"v_mov_b32 v{213+2*tt}, v{LS+tt}")
        t(f"ds_write_b64 v255, v[{212+2*tt}:{213+2*tt}] offset:{128*tt}")
    t("s_branch K2_PUBD")
    t("K2_PUBG:")
    t("s_lshl_b32 s60, s52, 7"); t("s_lshl_b32 s61, s64, 5"); t("s_add_u32 s60, s60, s61")
    t("s_cmp_lt_u32 s60, 4000")
    t("s_cbranch_scc0 K2_PUBD")
    t("s_lshl_b32 s60, s65, 2"); t("s_add_u32 s60, s60, s64"); t("s_lshl_b32 s60, s60, 2"); t("s_add_u32 s60, s60, s53")
    t("s_lshl_b32 s61, s60, 14")
    t("v_lshlrev_b32 v255, 3, v209")
    for tt in range(2):
        t(f"v_mov_b32 v{212+2*tt}, v{MREF+tt}"); t(f"v_mov_b32 v{213+2*tt}, v{LS+tt}")
    t("v_readfirstlane_b32 s57, v241")
    t("s_lshl_b32 s58, s64, 2"); t("s_add_u32 s58, s58, 8")
    t("s_lshr_b32 s57, s57, s58"); t("s_and_b32 s57, s57, 15")
    t("s_cmp_eq_u32 s57, s63")
    t("s_cbranch_scc1 K2_PUBL" if o.get('l2pub', True) else "s_nop 0")
    for lbl, fl in (("", " sc1"), ("K2_PUBL", "")):
        if lbl: t(f"{lbl}:")
        t("s_lshl_b32 s61, s60, 14")
        for m in range(8):
            for tt in range(2):
                f = m*2 + tt
                if f % 4 == 0 and f: t("s_add_u32 s61, s61, 4096")
                t(f"buffer_store_dwordx4 {vr(16*m+4*tt,4)}, v247, s[16:19], s61 offen offset:{(f%4)*1024}{fl}")
        t("s_lshl_b32 s61, s60, 8")
        t("v_cmp_gt_u32 vcc, 16, v208")
        t("s_and_saveexec_b64 s[70:71], vcc")
        for tt in range(2):
            t(f"buffer_store_dwordx2 v[{212+2*tt}:{213+2*tt}], v255, s[20:23], s61 offen offset:{128*tt}{fl}")
        t("s_mov_b64 exec, s[70:71]")
        if not lbl: t("s_branch K2_PUBD")
    t("K2_PUBD:")
    def atomic(lbl):
        t("s_cmp_eq_u32 s48, 0")
        t(f"s_cbranch_scc0 {lbl}")
        t("s_lshl_b32 s60, s65, 2")
        t("v_mov_b32 v214, s60"); t("v_mov_b32 v215, 1")
        t("v_cmp_eq_u32 vcc, 0, v208")
        t("s_and_saveexec_b64 s[70:71], vcc")
        t("buffer_atomic_add v215, v214, s[44:47], 0 offen")
        t("s_mov_b64 exec, s[70:71]")
        t(f"{lbl}:")
    t("s_cmp_lt_u32 s62, 4000")
    t("s_cbranch_scc1 K2_VALID")
    t("s_waitcnt vmcnt(0) lgkmcnt(0)")
    t("s_barrier")
    atomic("K2_NOATOM0")
    t("s_branch K2_FIN")
    t("K2_VALID:")
    stamp(2)
    pend = []
    for a in range(4):
        for tt in range(2):
            pend.append(([], f"buffer_load_dwordx2 {vr(176+(a*2+tt)*2,2)}, v{242+tt}, s[36:39], 0 offen offset:{32*a}", ('X', a, tt)))
    pend = w1 + pend
    w1 = []
    W.issue('vm', 'PUB')
    DWF = 0; CV = 40; GT = 72; GR = S; UR = P[0]
    t("s_nop 1")
    for i in range(5):
        for k in range(4):
            t(f"v_lshlrev_b32 v{DWF+8*i+2*k}, 16, v{DWR[i]+k}")
            t(f"v_and_b32 v{DWF+8*i+2*k+1}, 0xffff0000, v{DWR[i]+k}")
        pload(1)
    for rho in range(8):
        g = GT + 8*(rho % 2)
        for k in range(4):
            t(f"v_lshlrev_b32 v{g+2*k}, 16, v{GR+4*rho+k}")
            t(f"v_and_b32 v{g+2*k+1}, 0xffff0000, v{GR+4*rho+k}")
        for i in range(4):
            tap = rho - i
            if 0 <= tap <= 4:
                for k in range(4):
                    d = f"v[{CV+8*i+2*k}:{CV+8*i+2*k+1}]"
                    a_ = f"v[{g+2*k}:{g+2*k+1}]"; b_ = f"v[{DWF+8*tap+2*k}:{DWF+8*tap+2*k+1}]"
                    if tap == 0: t(f"v_pk_mul_f32 {d}, {a_}, {b_}")
                    else: t(f"v_pk_fma_f32 {d}, {a_}, {b_}, {d}")
                pload(1)
    n = W.need('vm', ['PUB'])
    t(f"s_waitcnt vmcnt({n}) lgkmcnt(0)")
    t("s_barrier")
    atomic("K2_NOATOM")
    t("v_and_b32 v212, 31, v208")
    t("v_lshrrev_b32 v213, 2, v212")
    t("v_and_b32 v214, 3, v212")
    t("v_and_b32 v215, 1, v213"); t("v_lshl_or_b32 v215, v215, 2, v214")
    t("v_lshrrev_b32 v216, 5, v208"); t("s_lshl_b32 s60, s48, 1"); t("v_add_u32 v216, s60, v216")
    t("v_lshrrev_b32 v217, 2, v216")
    t("v_and_b32 v216, 3, v216"); t("v_lshlrev_b32 v216, 2, v216")
    t("v_lshl_add_u32 v216, v214, 4, v216")
    t("v_lshl_add_u32 v213, v213, 1, v217")
    t("v_lshlrev_b32 v213, 10, v213"); t(f"v_add_u32 v213, {ACT + 16*1024}, v213")
    k0 = -2.0*1.4426950408889634*0.7978845608028654
    t(f"v_mov_b32 v88, {fb(k0)}"); t(f"v_mov_b32 v90, {fb(k0*0.044715)}"); t("v_mov_b32 v92, 1.0")
    for i in range(4):
        g = GT + 8*(i % 2)
        for k in range(4):
            t(f"v_lshlrev_b32 v{g+2*k}, 16, v{UR+4*i+k}")
            t(f"v_and_b32 v{g+2*k+1}, 0xffff0000, v{UR+4*i+k}")
        tmp = [96+2*k for k in range(4)]
        X = lambda k: f"v[{g+2*k}:{g+2*k+1}]"; Tt = lambda k: f"v[{tmp[k]}:{tmp[k]+1}]"
        for k in range(4): t(f"v_pk_mul_f32 {Tt(k)}, {X(k)}, {X(k)}")
        for k in range(4): t(f"v_pk_fma_f32 {Tt(k)}, {Tt(k)}, v[90:91], v[88:89] op_sel_hi:[1,0,0]")
        pload(1)
        for k in range(4): t(f"v_pk_mul_f32 {Tt(k)}, {Tt(k)}, {X(k)}")
        for k in range(4): t(f"v_exp_f32 v{tmp[k]}, v{tmp[k]}"); t(f"v_exp_f32 v{tmp[k]+1}, v{tmp[k]+1}")
        pload(1)
        for k in range(4): t(f"v_pk_add_f32 {Tt(k)}, {Tt(k)}, v[92:93] op_sel_hi:[1,0]")
        for k in range(4): t(f"v_rcp_f32 v{tmp[k]}, v{tmp[k]}"); t(f"v_rcp_f32 v{tmp[k]+1}, v{tmp[k]+1}")
        pload(1)
        for k in range(4): t(f"v_pk_mul_f32 {X(k)}, {X(k)}, {Tt(k)}")
        for k in range(4):
            t(f"v_pk_mul_f32 v[{g+2*k}:{g+2*k+1}], v[{g+2*k}:{g+2*k+1}], v[{CV+8*i+2*k}:{CV+8*i+2*k+1}]")
        for k in range(4):
            t(f"v_cvt_pk_bf16_f32 v{GR+4*i+k}, v{g+2*k}, v{g+2*k+1}")
        t(f"v_add_u32 v218, {i}, v216")
        t("v_xor_b32 v218, v218, v215")
        t("v_lshl_add_u32 v218, v218, 4, v213")
        t(f"ds_write_b128 v218, {vr(GR+4*i,4)}")
        pload(1)
    pload(100)
    t("v_lshlrev_b32 v212, 4, v210"); t("v_xor_b32 v212, v247, v212"); t("v_xor_b32 v213, 64, v212")
    t("s_waitcnt lgkmcnt(0)")
    t("s_barrier")
    stamp(3)
    ACC = 96
    RB = [216, 220, 224, 228]
    def gemm(part, lst=None):
        Wl = Waiter()
        evs = []
        for m in range(8):
            for tt in range(2):
                evs.append((8*(m-1) + 4*tt, 1, 'rd', m, tt))
            for a in range(4):
                for tt in range(2): evs.append((8*m + 2*a + tt, 0, 'mf', m, a, tt))
        evs.sort(key=lambda x: (x[0], x[1]))
        for x in evs:
            if x[2] == 'rd':
                m, tt = x[3], x[4]
                ring = RB[(m*2+tt) % 4]
                if part == 1: t(f"ds_read_b128 {vr(ring,4)}, v{212+(m&1)} offset:{ACT + ((8+m)*2+tt)*1024}")
                else: t(f"ds_read_b128 {vr(ring,4)}, v247 offset:{ACT + (m*2+tt)*1024}")
                Wl.issue('lgkm', (m, tt))
            else:
                m, a, tt = x[3], x[4], x[5]
                ring = RB[(m*2+tt) % 4]
                n = Wl.need('lgkm', [(m, tt)])
                nv = W.need('vm', [('W2' if part == 1 else 'W1', m, a)])
                if nv is not None and o.get('atomslack', True): pass
                ws_ = ([f"vmcnt({nv})"] if nv is not None else []) + ([f"lgkmcnt({n})"] if n is not None else [])
                if ws_: t("s_waitcnt " + ' '.join(ws_))
                acc = vr(ACC + (a*2+tt)*4, 4)
                c = '0' if (part == 1 and m == 0) else acc
                wreg = ar((a*8+m)*4, 4) if part == 1 else ar(128+(a*8+m)*4, 4)
                t(f"{M16} {acc}, {wreg}, {vr(ring,4)}, {c}")
                if lst is not None and tt == 1 and o.get('w1in', 1): pload(1, lst)
    t("s_cmp_eq_u32 s48, 0")
    t("s_cbranch_scc0 K2_POLLD")
    t("s_lshl_b32 s60, s65, 2")
    t("K2_POLL:")
    t("buffer_load_dword v214, off, s[44:47], s60 sc1")
    t("s_waitcnt vmcnt(0)")
    t("v_readfirstlane_b32 s61, v214")
    t("s_nop 3")
    t("s_and_b32 s61, s61, 0xff")
    t("s_cmp_ge_u32 s61, 4")
    t("s_cbranch_scc1 K2_POLLD")
    t("s_sleep 2")
    t("s_branch K2_POLL")
    t("K2_POLLD:")
    t("s_barrier")
    stamp(4)
    PR = 0; MLR = 64
    t("v_lshlrev_b32 v215, 3, v209")
    for k in range(1, 4):
        t(f"s_add_u32 s60, s53, {k}"); t("s_and_b32 s60, s60, 3")
        t("s_lshl_b32 s61, s65, 2"); t("s_add_u32 s61, s61, s53"); t("s_lshl_b32 s61, s61, 2"); t("s_add_u32 s61, s61, s60")
        t(f"s_lshl_b32 s{63+0}, s61, 8") if False else None
        t(f"s_lshl_b32 s{70+0}, s61, 8") if False else None
        t(f"s_mov_b32 s{56+k}, s61")
    for k in range(1, 4):
        t(f"s_lshl_b32 s60, s{56+k}, 8")
        for tt in range(2):
            t(f"buffer_load_dwordx2 {vr(MLR+(k*2+tt)*2,2)}, v215, s[20:23], s60 offen offset:{128*tt} sc1"); W.issue('vm', ('ML', k, tt))
    for k in range(1, 4):
        t(f"s_lshl_b32 s61, s{56+k}, 14"); t("s_lshl_b32 s60, s48, 12"); t("s_add_u32 s61, s61, s60")
        for ff in range(4):
            t(f"buffer_load_dwordx4 {vr(PR+((k-1)*4+ff)*4,4)}, v247, s[16:19], s61 offen offset:{ff*1024} sc1"); W.issue('vm', ('PP', k, ff))
    gemm(1)
    stamp(5)
    t(f"v_add_u32 v216, {OWNML}, v215")
    for tt in range(2): t(f"ds_read_b64 {vr(MLR+tt*2,2)}, v216 offset:{128*tt}")
    t("s_lshl_b32 s60, s48, 12"); t(f"s_add_u32 s60, s60, {OWN}"); t("v_add_u32 v216, s60, v247")
    for ff in range(4): t(f"ds_read_b128 {vr(48+4*ff,4)}, v216 offset:{ff*1024}")
    n = W.need('vm', [('ML', 3, 1)])
    t(f"s_waitcnt vmcnt({n}) lgkmcnt(0)")
    CF = 80
    for tt in range(2):
        for k in range(4): t(f"v_log_f32 v{128+k}, v{MLR+(k*2+tt)*2+1}")
        t("s_nop 0")
        for k in range(4): t(f"v_add_f32 v{128+k}, v{128+k}, v{MLR+(k*2+tt)*2}")
        t("v_max_f32 v132, v128, v129"); t("v_max3_f32 v132, v132, v130, v131")
        for k in range(4): t(f"v_sub_f32 v{128+k}, v{128+k}, v132")
        for k in range(4): t(f"v_exp_f32 v{128+k}, v{128+k}")
        for k in range(4): t(f"v_sub_f32 v{CF+2*(k*2+tt)}, v{MLR+(k*2+tt)*2}, v132")
        t("v_add_f32 v128, v128, v129"); t("v_add_f32 v130, v130, v131")
        for k in range(4): t(f"v_exp_f32 v{CF+2*(k*2+tt)}, v{CF+2*(k*2+tt)}")
        t("v_add_f32 v128, v128, v130")
        t("v_rcp_f32 v128, v128")
        t("s_nop 0")
        for k in range(4): t(f"v_mul_f32 v{CF+2*(k*2+tt)}, v{CF+2*(k*2+tt)}, v128")
    MA = 128; GT2 = 160
    for k in range(4):
        for ff in range(4):
            tt = ff & 1
            src = 48 + 4*ff if k == 0 else PR + ((k-1)*4+ff)*4
            if k > 0:
                n = W.need('vm', [('PP', k, ff)])
                if n is not None: t(f"s_waitcnt vmcnt({n})")
            for q in range(4):
                g = GT2 + 2*((ff*4+q) % 8)
                t(f"v_lshlrev_b32 v{g}, 16, v{src+q}")
                t(f"v_and_b32 v{g+1}, 0xffff0000, v{src+q}")
                d = f"v[{MA+(ff*4+q)*2}:{MA+(ff*4+q)*2+1}]"
                c = f"v[{CF+2*(k*2+tt)}:{CF+2*(k*2+tt)+1}]"
                if k == 0: t(f"v_pk_mul_f32 {d}, v[{g}:{g+1}], {c} op_sel_hi:[1,0]")
                else: t(f"v_pk_fma_f32 {d}, v[{g}:{g+1}], {c}, {d} op_sel_hi:[1,0,1]")
    t("s_lshl_b32 s60, s48, 12"); t(f"s_add_u32 s60, s60, {ACT}"); t("v_add_u32 v216, s60, v247")
    for ff in range(4):
        for q in range(4): t(f"v_cvt_pk_bf16_f32 v{ff*4+q}, v{MA+(ff*4+q)*2}, v{MA+(ff*4+q)*2+1}")
        t(f"ds_write_b128 v216, {vr(ff*4,4)} offset:{ff*1024}")
    t("s_waitcnt lgkmcnt(0)")
    t("s_barrier")
    stamp(6)
    gemm(0)
    nv = W.need('vm', [('X', 3, 1)])
    if nv is not None: t(f"s_waitcnt vmcnt({nv})")
    t("s_nop 7")
    for a in range(4):
        for tt in range(2):
            acc = ACC + (a*2+tt)*4; xr = 176 + (a*2+tt)*2
            for q in range(2):
                g = 128 + 4*((a*2+tt) % 4) + 2*q
                t(f"v_lshlrev_b32 v{g}, 16, v{xr+q}"); t(f"v_and_b32 v{g+1}, 0xffff0000, v{xr+q}")
                t(f"v_pk_add_f32 v[{acc+2*q}:{acc+2*q+1}], v[{acc+2*q}:{acc+2*q+1}], v[{g}:{g+1}]")
            d = 2*(a*2+tt)
            t(f"v_cvt_pk_bf16_f32 v{d}, v{acc}, v{acc+1}"); t(f"v_cvt_pk_bf16_f32 v{d+1}, v{acc+2}, v{acc+3}")
            t(f"buffer_store_dwordx2 v[{d}:{d+1}], v{242+tt}, s[40:43], 0 offen offset:{32*a}")
    t("K2_FIN:")
    if o['stamp']:
        t("s_waitcnt vmcnt(0)")
        t("s_memtime s[94:95]"); t("s_memrealtime s[96:97]")
        t("s_waitcnt lgkmcnt(0)")
        t("s_cmp_eq_u32 s48, 0"); t("s_cbranch_scc0 K2_END")
        t("s_add_u32 s68, s4, 0x8000000"); t("s_addc_u32 s69, s5, 0"); t("s_mov_b32 s70, 0x100000"); t("s_mov_b32 s71, 0x20000")
        regs = [72, 76, 98, 94, 74, 78, 80, 96, 82, 84, 86, 88, 90, 92, 101, 100]
        for k, r in enumerate(regs): t(f"v_mov_b32 v{128+k}, s{r}")
        t("s_lshl_b32 s60, s2, 6"); t("v_mov_b32 v150, s60")
        for k in range(4): t(f"buffer_store_dwordx4 v[{128+4*k}:{131+4*k}], v150, s[68:71], 0 offen offset:{16*k}")
    return hazard.autofix(T)
```

```python
import sys, json
from gen_common import *
import gen_k1, gen_k2f

HDR = """; Branchformer block (LN -> single-head attention || cgMLP conv branch -> merge + residual), gfx950.
; generated by a python script (hand-written generator)"""

def build(opts, path):
    text = []; descs = []
    hdr = HDR.split('\n')
    which = opts.get('which', ['k1', 'k2'])
    if 'k1' in which:
        L, d, errs = gen_k1.gen_k1(opts.get('k1'))
        text += L; descs += d
        hdr.append("; @launch kernel=prep_kernel grid=(256,1,1) block=(256,1,1) lds=163840")
    if 'k2' in which:
        L, d, errs = gen_k2f.gen_k2f(opts.get('k2'))
        for x in errs[:30]: print('HAZARD', x)
        if errs: print(len(errs), 'hazards')
        text += L; descs += d
        hdr.append("; @launch kernel=attn_kernel grid=(256,1,1) block=(256,1,1) lds=163840")
    s = hdr + ['.amdgcn_target "amdgcn-amd-amdhsa--gfx950"', '.text'] + text + ['.section .rodata,"a"'] + descs
    open(path, 'w').write('\n'.join(s) + '\n')

if __name__ == '__main__':
    opts = json.loads(sys.argv[2]) if len(sys.argv) > 2 else {}
    build(opts, sys.argv[1])
```

```python
from gen_common import *
from tl import TL
import hazard, struct
SLOT = 16384
EX = 131072
fb = lambda x: hex(struct.unpack('<I', struct.pack('<f', x))[0])

def gen_k1(opt=None):
    o = dict(D=6, stamp=False, st='', npre=2)
    if opt: o.update(opt)
    D = o['D']; ST = (' ' + o['st']) if o['st'] else ''
    name = 'prep_kernel'
    L = []; e = L.append
    B = 0; ACC = [64, 128]; KA = 192; KA2 = 200; VN = 208; VN2 = 216; DV = 224; DS = 228; XB = 200
    aR = 0; R = 8
    def stamp(T, k):
        if o['stamp']: T.append(f"s_memrealtime s[{72+2*k}:{73+2*k}]")
    L += kernel_header(name)
    e("s_cmp_ge_u32 s2, 256")
    e("s_cbranch_scc1 K1_END")
    e("s_load_dwordx16 s[36:51], s[0:1], 0")
    e("s_load_dwordx2 s[52:53], s[0:1], 64")
    e("s_load_dwordx2 s[54:55], s[0:1], 88")
    if o['stamp']:
        e("s_memtime s[60:61]"); e("s_memrealtime s[62:63]")
    e("v_lshrrev_b32 v232, 6, v0")
    e("v_and_b32 v240, 63, v0")
    e("v_lshrrev_b32 v241, 5, v240")
    e("v_and_b32 v242, 31, v240")
    e("v_readfirstlane_b32 s28, v232")
    e("s_and_b32 s29, s28, 1")
    e("s_lshr_b32 s30, s28, 1")
    e("s_lshl_b32 s31, s28, 12")
    e("s_sub_u32 s35, s2, 125"); e("s_cmp_lt_u32 s2, 125"); e("s_cselect_b32 s35, s2, s35")
    e("s_lshl_b32 s33, s28, 1")
    for k in range(4):
        e(f"v_add_u32 v234, {2*k}, v241"); e("v_and_b32 v234, 3, v234"); e("v_lshlrev_b32 v234, 2, v234")
        e(f"s_add_u32 s34, s33, {k>>1}"); e("s_and_b32 s34, s34, 3")
        e("v_or_b32 v234, s34, v234"); e("v_xor_b32 v234, v242, v234"); e("v_lshlrev_b32 v234, 4, v234")
        e("v_lshl_add_u32 v234, v241, 9, v234")
        e(f"v_add_u32 v{DS+k}, s31, v234")
    e("s_waitcnt lgkmcnt(0)")
    e("s_cmp_lt_u32 s2, 250"); e("s_cbranch_scc0 K1_NOX")
    srd(e, 16, 's36', 's37', 0, 8000*512)
    e("s_lshl_b32 s32, s35, 15")
    for half in range(2):
        e(f"s_add_u32 m0, s31, {EX + half*SLOT:#x}")
        if half: e("s_add_u32 s32, s32, 16384")
        else: e("s_nop 0")
        for k in range(4):
            e(f"buffer_load_dwordx4 v{DS+k}, s[16:19], s32 offen offset:{k*1024} lds")
    e("K1_NOX:")
    e("s_cmp_lt_u32 s2, 125"); e("s_cbranch_scc1 K1_Q")
    e("s_cmp_lt_u32 s2, 250"); e("s_cbranch_scc1 K1_UG")
    e("s_cmp_lt_u32 s2, 254"); e("s_cbranch_scc1 K1_W1")
    e("s_branch K1_W2")

    def k_addr(T, dst, dst2, base_lines):
        t = T.append
        t("v_and_b32 v234, 3, v242"); t("v_lshlrev_b32 v234, 2, v234"); t("v_bfe_u32 v235, v242, 2, 2")
        t("v_or_b32 v234, v234, v235"); t("v_lshlrev_b32 v236, 9, v242")
        for x in base_lines: t(x)
        t("v_add_u32 v236, s33, v236")
        for jj in range(8):
            t(f"v_add_u32 v235, {2*jj}, v241"); t("v_xor_b32 v235, v235, v234")
            t(f"v_lshl_add_u32 v{dst+jj}, v235, 4, v236")
            if dst2 is not None: t(f"v_add_u32 v{dst2+jj}, 0x10000, v{dst+jj}")
    def ka_setup(T): k_addr(T, KA, KA2, ["s_lshl_b32 s33, s30, 14"])
    def xb_setup(T): k_addr(T, XB, None, ["s_lshl_b32 s33, s29, 14", f"s_add_u32 s33, s33, {EX}", "s_lshl_b32 s34, s30, 8", "s_add_u32 s33, s33, s34"])
    def vn_setup(T):
        t = T.append
        t("v_bfe_u32 v234, v240, 4, 1"); t("v_bfe_u32 v235, v240, 2, 2"); t("v_bfe_u32 v236, v240, 1, 1")
        t("v_lshl_add_u32 v236, v234, 1, v236"); t("v_and_b32 v237, 1, v240"); t("v_lshlrev_b32 v237, 3, v237")
        t("v_lshl_add_u32 v238, v241, 3, v235"); t("v_lshl_add_u32 v237, v238, 9, v237")
        t("s_lshl_b32 s33, s30, 8"); t("v_add_u32 v237, s33, v237")
        for a in range(4):
            for u in range(2):
                t(f"v_lshl_add_u32 v238, v241, 1, {u}"); t("v_lshl_or_b32 v238, v235, 2, v238")
                t(f"v_add_u32 v239, {4*a}, v236"); t("v_xor_b32 v238, v238, v239")
                t(f"v_lshl_add_u32 v{VN+a*2+u}, v238, 4, v237")
                if u: t(f"v_add_u32 v{VN+a*2+u}, {4*512}, v{VN+a*2+u}")
                t(f"v_add_u32 v{VN2+a*2+u}, 0x10000, v{VN+a*2+u}")
    def dma_voff(T, stride1024):
        t = T.append
        if not stride1024:
            for k in range(4): t(f"v_mov_b32 v{DV+k}, v{DS+k}")
            return
        t("s_lshl_b32 s33, s28, 1")
        for k in range(4):
            t(f"v_add_u32 v234, {2*k}, v241"); t("v_and_b32 v234, 3, v234"); t("v_lshlrev_b32 v234, 2, v234")
            t(f"s_add_u32 s34, s33, {k>>1}"); t("s_and_b32 s34, s34, 3")
            t("v_or_b32 v234, s34, v234"); t("v_xor_b32 v234, v242, v234"); t("v_lshlrev_b32 v234, 4, v234")
            t("v_lshl_add_u32 v234, v241, 10, v234"); t("s_lshl_b32 s34, s28, 13"); t(f"s_add_u32 s34, s34, {k*1024}")
            t(f"v_add_u32 v{DV+k}, s34, v234")
    def tile_dma(n, srdn, soff):
        r = [(f"s_add_u32 m0, s31, {(n%8)*SLOT:#x}", False), (f"s_mov_b32 s32, {soff:#x}", False)]
        for k in range(4):
            r.append((f"buffer_load_dwordx4 v{DV+k}, s[{srdn}:{srdn+3}], s32 offen offset:{k*1024} lds", True))
        return r
    def emit_tile(out, W, n, srdn, soff):
        for txt, vm in tile_dma(n, srdn, soff):
            out.append(txt)
            if vm: W.issue('vm', ('T', n))
    def out_rows(T, W, srdn, tag, OB):
        t = T.append
        t("v_lshlrev_b32 v232, 4, v240"); t(f"s_add_u32 s33, s31, {EX}"); t("v_add_u32 v232, s33, v232")
        for half in range(2):
            for k in range(4):
                t(f"ds_read_b128 {vr(OB+(half*4+k)*4,4)}, v232 offset:{half*SLOT + k*1024}")
        t("s_lshl_b32 s32, s35, 15")
        for half in range(2):
            if half: t("s_add_u32 s32, s32, 16384")
            for k in range(4):
                t(f"s_waitcnt lgkmcnt({7 - (half*4+k)})")
                t(f"buffer_store_dwordx4 {vr(OB+(half*4+k)*4,4)}, v{DS+k}, s[{srdn}:{srdn+3}], s32 offen offset:{k*1024}{ST}")
                W.issue('vm', (tag, half, k))
        W.drain('lgkm')
    def ln(out, W, tiles):
        nw = W.need('vm', [('X', 7)])
        out.append(f"s_waitcnt vmcnt({nw})")
        out.append("s_barrier")
        stamp(out, 0)
        for s in range(8):
            out.append(f"ds_read_b128 {vr(64+4*s,4)}, v{XB+s}")
        body = []; b = body.append
        b("s_mov_b32 s34, 0x3f803f80")
        for k in range(4): b(f"v_mov_b32 v{232+k}, 0")
        for r in range(32):
            if r % 4 == 0: b(f"s_waitcnt lgkmcnt({7 - r//4})")
            b(f"v_dot2_f32_bf16 v{232+(r&1)}, v{64+r}, s34, v{232+(r&1)}")
            b(f"v_dot2_f32_bf16 v{234+(r&1)}, v{64+r}, v{64+r}, v{234+(r&1)}")
        b("s_nop 2")
        b("v_add_f32 v232, v232, v233"); b("v_add_f32 v234, v234, v235")
        b("v_mov_b32 v233, v232"); b("v_mov_b32 v235, v234"); b("s_nop 1")
        b("v_permlane32_swap_b32 v232, v233"); b("v_permlane32_swap_b32 v234, v235"); b("s_nop 1")
        b("v_add_f32 v232, v232, v233"); b("v_add_f32 v233, v234, v235")
        b(f"ds_write_b64 v{XB}, v[232:233]")
        b(f"v_xor_b32 v238, 256, v{XB}")
        b("s_waitcnt lgkmcnt(0)")
        b("s_barrier")
        b("ds_read_b64 v[234:235], v238")
        b("s_waitcnt lgkmcnt(0)")
        b("v_add_f32 v232, v232, v234"); b("v_add_f32 v234, v233, v235")
        b("v_mul_f32 v232, 0x3b800000, v232"); b("v_mul_f32 v234, 0x3b800000, v234")
        b("v_fma_f32 v234, -v232, v232, v234"); b("v_max_f32 v234, 0, v234"); b("v_add_f32 v234, 0x3727c5ac, v234")
        b("v_rsq_f32 v234, v234"); b("s_nop 0")
        b("v_mul_f32 v236, v232, v234"); b("v_sub_f32 v236, 0, v236")
        b("s_barrier")
        for r in range(32):
            t = 244 + 2*(r % 4)
            b(f"v_lshlrev_b32 v{t}, 16, v{64+r}")
            b(f"v_and_b32 v{t+1}, 0xffff0000, v{64+r}")
            b(f"v_pk_fma_f32 v[{t}:{t+1}], v[{t}:{t+1}], v[234:235], v[236:237] op_sel_hi:[1,0,0]")
            b(f"v_cvt_pk_bf16_f32 v{64+r}, v{t}, v{t+1}")
            if r % 4 == 3: b(f"ds_write_b128 v{XB+r//4}, {vr(64+r-3,4)}")
        b("s_waitcnt lgkmcnt(0)")
        b("s_barrier")
        b("s_lshl_b32 s33, s30, 8")
        for jj in range(8): b(f"v_subrev_u32 v{244+jj}, s33, v{XB+jj}")
        for s in range(16):
            b(f"ds_read_b128 {vr(B+4*s,4)}, v{244+(s&7)} offset:{(s>>3)*256}")
        flat = []
        for (n, sn, so) in tiles:
            tl_ = [(txt, vm, n) for txt, vm in tile_dma(n, sn, so)]
            flat.append(tl_[:3])
            for x in tl_[3:]: flat.append([x])
        gap = max(1, len(body) // (len(flat) + 1)) if flat else 1
        fi = 0
        for i, ins in enumerate(body):
            out.append(ins)
            if fi < len(flat) and i % gap == gap - 1:
                for txt, vm, n in flat[fi]:
                    out.append(txt)
                    if vm: W.issue('vm', ('T', n))
                fi += 1
        while fi < len(flat):
            for txt, vm, n in flat[fi]:
                out.append(txt)
                if vm: W.issue('vm', ('T', n))
            fi += 1
        out.append("s_waitcnt lgkmcnt(0)")
        W.drain('lgkm')
    def phase(W, p, kind, later, fill=None, f0=3):
        tl = TL(W)
        acc = ACC[p]
        cnt = [0]
        for a in range(4):
            sig = 4*p + a
            tb = 16*a - D - 1
            tl.add(tb, 'bar', needvm=[('T', 2*sig), ('T', 2*sig+1)], prio=1)
            k = 0
            for (n, sn, so) in later.get(sig, []):
                for txt, vm in tile_dma(n, sn, so):
                    if vm:
                        tl.add(tb + 1 + k, 'vm', txt, tag=('T', n), prio=7); k += 1
                    else:
                        tl.add(tb + 1 + k, 'txt', txt, prio=6)
            for m in range(16):
                tm = 16*a + m
                ri = cnt[0] % R; cnt[0] += 1
                ring = aR + 4*ri
                if kind == 'X':
                    j = m; slot = 2*a
                    base = (KA if slot < 4 else KA2) + (j & 7)
                    off = (slot % 4)*SLOT + (j >> 3)*256
                    tag = (p, a, m)
                    tl.add(tm - D, 'lds', f"ds_read_b128 {ar(ring,4)}, v{base} offset:{off}", tag=tag, prio=2)
                    c = vr(acc+16*a,16) if j else '0'
                    tl.add(tm, 'mfma', f"v_mfma_f32_32x32x16_bf16 {vr(acc+16*a,16)}, {ar(ring,4)}, {vr(B+4*j,4)}, {c}", need=[tag], prio=0)
                else:
                    tt, s, aa = m >> 3, (m >> 2) & 1, m & 3
                    tau = 2*a + tt; slot = tau
                    tags = []
                    for u in range(2):
                        base = (VN if slot < 4 else VN2) + aa*2 + u
                        off = (slot % 4)*SLOT + 16*s*512
                        tag = (p, a, m, u); tags.append(tag)
                        tl.add(tm - D, 'lds', f"ds_read_b64_tr_b16 {ar(ring+2*u,2)}, v{base} offset:{off}", tag=tag, prio=2)
                    c = vr(acc+16*aa,16) if (tau or s) else '0'
                    tl.add(tm, 'mfma', f"v_mfma_f32_32x32x16_bf16 {vr(acc+16*aa,16)}, {ar(ring,4)}, {vr(B+4*(2*tau+s),4)}, {c}", need=tags, prio=0)
        if fill:
            n = len(fill)
            for i, ins in enumerate(fill):
                tl.add(f0 + (i*(64-f0))/n, 'txt', ins, prio=4)
        return tl
    def pack_swap(out, src, dst, swap=True, scale=None):
        if scale:
            for k in range(8):
                out.append(f"v_pk_mul_f32 v[{src+2*k}:{src+2*k+1}], v[{src+2*k}:{src+2*k+1}], {scale} op_sel_hi:[1,0]")
        for k in range(8):
            out.append(f"v_cvt_pk_bf16_f32 v{dst+k}, v{src+2*k}, v{src+2*k+1}")
        if swap:
            out.append("s_nop 1")
            for b in (0, 4):
                out.append(f"v_permlane32_swap_b32 v{dst+b}, v{dst+b+2}")
                out.append(f"v_permlane32_swap_b32 v{dst+b+1}, v{dst+b+3}")
    def exchange(out, W, acc, kind):
        out.append("s_nop 15")
        out.append("v_lshlrev_b32 v232, 4, v240")
        out.append(f"s_lshl_b32 s33, s29, 14"); out.append(f"s_add_u32 s33, s33, {EX}")
        out.append("v_add_u32 v233, s33, v232")
        out.append(f"s_lshl_b32 s34, s30, {13 if kind=='Y' else 11}")
        out.append("v_add_u32 v232, s34, v233")
        for a in range(4):
            d = 244 if a % 2 == 0 else 0
            pack_swap(out, acc+16*a, d)
            for s in range(2):
                f = (2*a + s) if kind == 'Y' else (4*a + s)
                out.append(f"ds_write_b128 v232, {vr(d+4*s,4)} offset:{f*1024}")
        out.append("s_waitcnt lgkmcnt(0)")
        out.append("s_barrier")
        for f in range(16):
            out.append(f"ds_read_b128 {vr(B+4*f,4)}, v233 offset:{f*1024}")
        out.append("s_waitcnt lgkmcnt(0)")
        W.drain('lgkm')
    def narrow(out, W, rowbase_bytes, slice_sreg):
        for x in ["v_lshrrev_b32 v232, 3, v240", "v_lshlrev_b32 v232, 9, v232", "v_and_b32 v233, 7, v240",
                  "v_lshl_add_u32 v232, v233, 4, v232", f"s_lshl_b32 s33, {slice_sreg}, 7", "s_lshl_b32 s34, s28, 15",
                  "s_add_u32 s33, s33, s34", f"s_add_u32 s33, s33, {rowbase_bytes}", "v_add_u32 v232, s33, v232",
                  "s_lshl_b32 s34, s28, 13", f"s_add_u32 s34, s34, {EX}"]: out.append(x)
        for i in range(8):
            out.append(f"s_add_u32 m0, s34, {i*1024}")
            out.append(f"s_mov_b32 s32, {i*4096}")
            out.append(f"buffer_load_dwordx4 v232, s[16:19], s32 offen lds")
            W.issue('vm', ('N', i))
    def narrow_read(out, W):
        n = W.need('vm', [('N', 7)])
        out.append(f"s_waitcnt vmcnt({n})")
        out.append("s_barrier")
        for x in ["v_bfe_u32 v232, v240, 2, 2", "v_lshl_add_u32 v232, v241, 3, v232", "v_lshlrev_b32 v232, 7, v232",
                  "v_bfe_u32 v233, v240, 4, 1", "v_lshl_add_u32 v232, v233, 5, v232", "v_and_b32 v233, 3, v240",
                  "v_lshl_add_u32 v232, v233, 3, v232", "s_lshl_b32 s33, s29, 6", f"s_add_u32 s33, s33, {EX}",
                  "v_add_u32 v232, s33, v232"]: out.append(x)
        for s in range(16):
            for u in range(2):
                out.append(f"ds_read_b64_tr_b16 {vr(B+4*s+2*u,2)}, v232 offset:{s*2048+u*512}")
            if s % 4 == 3: out.append("s_waitcnt lgkmcnt(0)")
        W.drain('lgkm')
    def finish(task_lines, label):
        fixed = hazard.autofix(task_lines)
        e(f"{label}:")
        L.extend(fixed)
        e("s_branch K1_FIN")
    def cap(fn):
        buf = []; fn(buf.append); return buf
    std_later = lambda sn: {2: [(8, sn, 0), (9, sn, SLOT)], 3: [(10, sn, 2*SLOT), (11, sn, 3*SLOT)], 4: [(12, sn, 4*SLOT), (13, sn, 5*SLOT)], 5: [(14, sn, 6*SLOT), (15, sn, 7*SLOT)]}
    npre = o['npre']

    W = Waiter(); T = []
    for s in range(8): W.issue('vm', ('X', s))
    dma_voff(T, False)
    T += cap(lambda e: (srd(e, 8, 's38', 's39', 0, 131072), srd(e, 12, 's40', 's41', 0, 131072),
                        srd(e, 20, 's54', 's55', XA_OFF, 8000*512), srd(e, 24, 's54', 's55', QF_OFF, 500*8192)))
    emit = [(n, 8, n*SLOT) for n in range(8)]
    for (n, sn, so) in emit[:npre]: emit_tile(T, W, n, sn, so)
    xb_setup(T); vn_setup(T)
    ln(T, W, emit[npre:])
    stamp(T, 1)
    ka_setup(T)
    stamp(T, 2)
    T.append("v_lshlrev_b32 v232, 4, v240"); T.append(f"s_add_u32 s33, s31, {EX}"); T.append("v_add_u32 v232, s33, v232")
    for half in range(2):
        for k in range(4):
            T.append(f"ds_read_b128 {vr(ACC[1]+(half*4+k)*4,4)}, v232 offset:{half*SLOT + k*1024}")
    T.append("s_waitcnt lgkmcnt(0)")
    T.append("s_lshl_b32 s34, s35, 15"); T.append("s_add_u32 s56, s34, 16384")
    xfill = []
    for half in range(2):
        for k in range(4):
            xfill.append((f"buffer_store_dwordx4 {vr(ACC[1]+(half*4+k)*4,4)}, v{DS+k}, s[20:23], {'s56' if half else 's34'} offen offset:{k*1024}{ST}", ('XS', half, k)))
    later = std_later(12)
    tl0 = phase(W, 0, 'Y', later)
    for i, (txt, tag) in enumerate(xfill): tl0.add(1 + 2*i, 'vm', txt, tag=tag, prio=7)
    T += tl0.linearize()
    stamp(T, 3)
    exchange(T, W, ACC[0], 'Y')
    stamp(T, 4)
    T += phase(W, 1, 'X', later).linearize()
    stamp(T, 5)
    T.append("s_nop 15")
    T.append("v_mov_b32 v236, 0x3db8aa3b")
    T.append("s_lshl_b32 s33, s35, 2"); T.append("s_lshl_b32 s34, s29, 1"); T.append("s_add_u32 s33, s33, s34"); T.append("s_lshl_b32 s33, s33, 13")
    T.append("s_lshl_b32 s34, s30, 10"); T.append("s_add_u32 s33, s33, s34")
    T.append("v_lshrrev_b32 v232, 4, v242"); T.append("v_lshlrev_b32 v232, 13, v232")
    T.append("v_and_b32 v233, 15, v242"); T.append("v_lshl_add_u32 v233, v241, 4, v233")
    T.append("v_lshl_add_u32 v232, v233, 4, v232"); T.append("v_add_u32 v232, s33, v232")
    for a in range(4):
        d = 244 if a % 2 == 0 else 0
        pack_swap(T, ACC[1]+16*a, d, scale="v[236:237]")
        T.append(f"s_mov_b32 s33, {a*2048}")
        for s in range(2):
            T.append(f"buffer_store_dwordx4 {vr(d+4*s,4)}, v232, s[24:27], s33 offen offset:{s*512}{ST}")
    finish(T, "K1_Q")

    W = Waiter(); T = []
    for s in range(8): W.issue('vm', ('X', s))
    dma_voff(T, True)
    T += cap(lambda e: (srd(e, 8, 's46', 's47', 0, 262144),
                        srd(e, 20, 's54', 's55', U_OFF, 8000*512), srd(e, 24, 's54', 's55', G_OFF, 8000*512)))
    emit = [(n, 8, n*32768 + 512) for n in range(8)]
    for (n, sn, so) in emit[:npre]: emit_tile(T, W, n, sn, so)
    xb_setup(T); vn_setup(T)
    ln(T, W, emit[npre:])
    stamp(T, 2)
    gl = lambda n: (n, 8, (n-8)*32768)
    later = {2: [gl(8), gl(9)], 3: [gl(10), gl(11)], 4: [gl(12), gl(13)], 5: [gl(14), gl(15)]}
    T += phase(W, 0, 'Y', later).linearize()
    stamp(T, 3)
    k0 = -2.0*1.4426950408889634*0.7978845608028654
    T.append(f"v_mov_b32 v232, {fb(k0)}"); T.append(f"v_mov_b32 v234, {fb(k0*0.044715)}"); T.append("v_mov_b32 v236, 1.0")
    for k in range(4): T.append(f"v_mov_b32 v{252+k}, 0")
    def gelu(r):
        t = 244 + 2*((r//2) % 4)
        X = f"v[{r}:{r+1}]"; Tt = f"v[{t}:{t+1}]"
        return [f"v_pk_mul_f32 {Tt}, {X}, {X}",
                f"v_pk_fma_f32 {Tt}, {Tt}, v[234:235], v[232:233] op_sel_hi:[1,0,0]",
                f"v_pk_mul_f32 {Tt}, {Tt}, {X}",
                f"v_exp_f32 v{t}, v{t}", f"v_exp_f32 v{t+1}, v{t+1}",
                f"v_pk_add_f32 {Tt}, {Tt}, v[236:237] op_sel_hi:[1,0]",
                f"v_rcp_f32 v{t}, v{t}", f"v_rcp_f32 v{t+1}, v{t+1}",
                f"v_pk_mul_f32 {X}, {X}, {Tt}",
                f"v_pk_add_f32 v[252:253], v[252:253], {X}",
                f"v_pk_fma_f32 v[254:255], {X}, {X}, v[254:255]"]
    fill = []
    g0 = ACC[0]
    for b in range(g0, g0+64, 8):
        cols = [gelu(b+2*k) for k in range(4)]
        for i in range(11):
            for k in range(4): fill.append(cols[k][i])
    T += phase(W, 1, 'Y', later, fill=fill, f0=4).linearize()
    stamp(T, 5)
    T.append("v_add_f32 v8, v252, v253"); T.append("v_add_f32 v10, v254, v255")
    T.append("v_mov_b32 v9, v8"); T.append("v_mov_b32 v11, v10"); T.append("s_nop 1")
    T.append("v_permlane32_swap_b32 v8, v9"); T.append("v_permlane32_swap_b32 v10, v11"); T.append("s_nop 1")
    T.append("v_add_f32 v8, v8, v9"); T.append("v_add_f32 v9, v10, v11")
    T.append("s_lshl_b32 s33, s29, 1"); T.append("s_add_u32 s33, s33, s30"); T.append("s_lshl_b32 s33, s33, 9")
    T.append("v_lshlrev_b32 v12, 3, v240"); T.append("v_add_u32 v13, s33, v12")
    T.append("s_xor_b32 s33, s33, 512"); T.append("v_add_u32 v14, s33, v12")
    T.append("ds_write_b64 v13, v[8:9]")
    for a in range(4):
        d = 244 if a % 2 == 0 else 16
        pack_swap(T, ACC[1]+16*a, d)
        for s in range(2):
            T.append(f"ds_write_b128 v{XB+2*a+s}, {vr(d+4*s,4)}")
    T.append("s_waitcnt lgkmcnt(0)"); T.append("s_barrier")
    T.append("ds_read_b64 v[10:11], v14")
    W.drain('lgkm')
    T.append("s_waitcnt lgkmcnt(0)")
    out_rows(T, W, 20, 'US', ACC[1])
    stamp(T, 6)
    T.append("v_add_f32 v8, v8, v10"); T.append("v_add_f32 v9, v9, v11")
    T.append("v_mul_f32 v8, 0x3b800000, v8"); T.append("v_mul_f32 v9, 0x3b800000, v9")
    T.append("v_fma_f32 v9, -v8, v8, v9"); T.append("v_max_f32 v9, 0, v9"); T.append("v_add_f32 v9, 0x3727c5ac, v9")
    T.append("v_rsq_f32 v10, v9"); T.append("s_nop 0")
    T.append("v_mul_f32 v12, v8, v10"); T.append("v_sub_f32 v12, 0, v12")
    for a in range(4):
        for k in range(8):
            r = g0 + 16*a + 2*k
            T.append(f"v_pk_fma_f32 v[{r}:{r+1}], v[{r}:{r+1}], v[10:11], v[12:13] op_sel_hi:[1,0,0]")
        pack_swap(T, g0+16*a, 16+8*a)
    T.append("s_barrier")
    for a in range(4):
        for s in range(2):
            T.append(f"ds_write_b128 v{XB+2*a+s}, {vr(16+8*a+4*s,4)}")
    T.append("s_waitcnt lgkmcnt(0)"); T.append("s_barrier")
    out_rows(T, W, 24, 'GS', ACC[0])
    stamp(T, 7)
    finish(T, "K1_UG")

    def wf_store(T, acc, which, slice_sreg):
        T.append(f"s_lshl_b32 s33, {slice_sreg}, 2"); T.append("s_lshl_b32 s34, s29, 1"); T.append("s_add_u32 s33, s33, s34"); T.append("s_lshl_b32 s33, s33, 14")
        T.append("s_lshl_b32 s34, s30, 10"); T.append("s_add_u32 s33, s33, s34")
        if which == 2: T.append("s_add_u32 s33, s33, 8192")
        T.append("v_lshrrev_b32 v232, 4, v242"); T.append("v_lshlrev_b32 v232, 14, v232")
        T.append("v_and_b32 v233, 15, v242"); T.append("v_lshl_add_u32 v233, v241, 4, v233")
        T.append("v_lshl_add_u32 v232, v233, 4, v232"); T.append("v_add_u32 v232, s33, v232")
        for a in range(4):
            d = 244; src = acc + 16*a
            if which == 1:
                for k, r in enumerate((0, 2, 8, 10, 4, 6, 12, 14)):
                    T.append(f"v_cvt_pk_bf16_f32 v{d+k}, v{src+r}, v{src+r+1}")
            else:
                pack_swap(T, src, d)
            T.append(f"s_mov_b32 s33, {a*2048}")
            for s in range(2):
                T.append(f"buffer_store_dwordx4 {vr(d+4*s,4)}, v232, s[24:27], s33 offen offset:{s*512}{ST}")
            T.append("s_nop 1")
    W = Waiter(); T = []
    dma_voff(T, False)
    T.append("s_sub_u32 s35, s2, 250")
    T += cap(lambda e: (srd(e, 16, 's52', 's53', 0, 262144), srd(e, 8, 's44', 's45', 0, 131072), srd(e, 12, 's42', 's43', 0, 131072),
                        srd(e, 24, 's54', 's55', WF_OFF, 262144)))
    narrow(T, W, 0, 's35')
    for n in range(3): emit_tile(T, W, n, 8, n*SLOT)
    ka_setup(T)
    narrow_read(T, W)
    for n in range(3, 8): emit_tile(T, W, n, 8, n*SLOT)
    later = std_later(12)
    T += phase(W, 0, 'X', later).linearize()
    T.append("s_barrier")
    exchange(T, W, ACC[0], 'X')
    T += phase(W, 1, 'X', later).linearize()
    T.append("s_nop 15")
    wf_store(T, ACC[1], 1, 's35')
    finish(T, "K1_W1")

    W = Waiter(); T = []
    dma_voff(T, False)
    T.append("s_sub_u32 s35, s2, 254"); T.append("s_lshl_b32 s35, s35, 1")
    T += cap(lambda e: (srd(e, 16, 's52', 's53', 0, 262144), srd(e, 8, 's50', 's51', 0, 131072),
                        srd(e, 24, 's54', 's55', WF_OFF, 262144)))
    narrow(T, W, 131072, 's35')
    for n in range(3): emit_tile(T, W, n, 8, n*SLOT)
    ka_setup(T)
    narrow_read(T, W)
    for n in range(3, 8): emit_tile(T, W, n, 8, n*SLOT)
    T.append("s_barrier")
    T.append("s_add_u32 s56, s35, 1")
    narrow(T, W, 131072, 's56')
    later = std_later(8)
    T += phase(W, 0, 'X', later).linearize()
    T.append("s_nop 15")
    wf_store(T, ACC[0], 2, 's35')
    for i in range(8): W.issue('vm', ('WS', i))
    narrow_read(T, W)
    T += phase(W, 1, 'X', later).linearize()
    T.append("s_nop 15")
    wf_store(T, ACC[1], 2, 's56')
    finish(T, "K1_W2")

    e("K1_FIN:")
    if o['stamp']:
        e("s_waitcnt vmcnt(0)")
        e("s_memtime s[64:65]"); e("s_memrealtime s[66:67]")
        e("s_waitcnt lgkmcnt(0)")
        e("s_cmp_eq_u32 s28, 0"); e("s_cbranch_scc0 K1_END")
        e("s_add_u32 s68, s54, 0x8100000"); e("s_addc_u32 s69, s55, 0"); e("s_mov_b32 s70, 0x100000"); e("s_mov_b32 s71, 0x20000")
        for k, r in enumerate([60, 64, 62, 66]): e(f"v_mov_b32 v{232+k}, s{r}")
        e("s_lshl_b32 s33, s2, 4"); e("v_mov_b32 v236, s33")
        e("buffer_store_dwordx4 v[232:235], v236, s[68:71], 0 offen")
        for k in range(8): e(f"v_mov_b32 v{244+k}, s{72+2*k}")
        e("s_lshl_b32 s33, s2, 5"); e("s_add_u32 s33, s33, 0x10000"); e("v_mov_b32 v236, s33")
        e("buffer_store_dwordx4 v[244:247], v236, s[68:71], 0 offen")
        e("buffer_store_dwordx4 v[248:251], v236, s[68:71], 0 offen offset:16")
    e("K1_END:")
    e("s_endpgm")
    return L, kernel_desc(name, 288, 256), []
```

```python
from gen_common import *
import hazard, struct
SLOT = 16384
M16 = "v_mfma_f32_16x16x32_bf16"
fb = lambda x: hex(struct.unpack('<I', struct.pack('<f', x))[0])
EXT = 131072
MX = EXT
OWN = EXT + 4096
OWNML = EXT + 20480
ACT = 0

def gen_k2f(opt=None):
    o = dict(DF=3, stamp=False, bslot=8, dma0=10, dmastep=4, e0=37, e1=93, estep=4, cvtd=1, addd=1, fused=True)
    if opt: o.update(opt)
    name = 'attn_kernel'
    L = []; e = L.append
    O = 0; S = 128; P = [160, 176]; NEGM = 192; RING = 208; KA = 232; VA = 236; DV = 244; LS = 248; MREF = 252
    aQ = 0; aO = 128
    def Oreg(dt, qt): return vr(O + (dt*2+qt)*4, 4) if qt < 2 else ar(aO + (dt*2+qt-2)*4, 4)
    def Sreg(kt, qt): return S + (kt*4+qt)*4
    L += kernel_header(name)
    e("s_cmp_ge_u32 s2, 256")
    e("s_cbranch_scc1 K2_END")
    e("s_load_dwordx2 s[4:5], s[0:1], 88")
    e("s_load_dwordx2 s[6:7], s[0:1], 80")
    e("s_load_dwordx2 s[36:37], s[0:1], 0")
    e("s_load_dwordx2 s[32:33], s[0:1], 48")
    e("s_load_dwordx2 s[40:41], s[0:1], 72")
    if o['stamp']:
        e("s_memtime s[72:73]"); e("s_memrealtime s[74:75]")
    T = []; t = T.append
    t("v_lshrrev_b32 v130, 6, v0")
    t("v_and_b32 v131, 63, v0")
    t("v_readfirstlane_b32 s48, v130")
    t("s_and_b32 s60, s2, 7")
    t("s_lshr_b32 s61, s2, 3")
    t("s_lshr_b32 s51, s60, 2")
    t("s_and_b32 s53, s61, 3")
    t("s_lshr_b32 s61, s61, 2")
    t("s_and_b32 s52, s60, 3")
    t("s_lshl_b32 s52, s52, 3")
    t("s_add_u32 s52, s52, s61")
    t("s_and_b32 s49, s48, 1")
    t("s_lshr_b32 s50, s48, 1")
    t("s_lshl_b32 s54, s53, 5")
    t("s_lshl_b32 s60, s50, 4")
    t("s_add_u32 s54, s54, s60")
    t("s_max_u32 s60, s53, 1")
    t("s_sub_u32 s60, s60, 1")
    t("s_sub_u32 s54, s54, s60")
    t("s_min_u32 s60, s53, 1")
    t("s_and_b32 s60, s60, s50")
    t("s_sub_u32 s55, 16, s60")
    t("s_lshl_b32 s55, s55, 14")
    t("s_cmp_eq_u32 s60, 1")
    t("s_cselect_b32 s59, 3, 0xffff")
    t("s_lshl_b32 s54, s54, 14")
    t("s_mul_i32 s60, s51, 2048000")
    t("s_add_u32 s54, s54, s60")
    def dv_setup(t):
        t("v_and_b32 v132, 15, v131")
        t("v_lshrrev_b32 v133, 4, v131")
        t("v_lshrrev_b32 v134, 5, v131")
        t("v_and_b32 v135, 31, v131")
        t("s_lshl_b32 s60, s49, 13")
        for k in range(4):
            t(f"v_add_u32 v136, {2*k}, v134")
            t("v_lshlrev_b32 v136, 1, v136")
            t("v_xor_b32 v136, v135, v136")
            t("v_lshlrev_b32 v136, 4, v136")
            t("v_lshl_add_u32 v136, v134, 9, v136")
            t(f"v_add_u32 v{DV+k}, s60, v136")
    dv_setup(t)
    t("s_waitcnt lgkmcnt(0)")
    def S_(fn):
        buf = []; fn(buf.append); T.extend(buf)
    S_(lambda e: srd(e, 8, 's4', 's5', 's54', 's55'))
    S_(lambda e: srd(e, 12, 's4', 's5', QF_OFF, 500*8192))
    t("s_getreg_b32 s63, hwreg(HW_REG_XCC_ID, 0, 3)")
    t("s_or_b32 s63, s63, 8")
    t("s_mov_b32 s44, s6"); t("s_mov_b32 s45, s7"); t("s_mov_b32 s46, 256"); t("s_mov_b32 s47, 0x20000")
    t("s_lshl_b32 s65, s51, 5"); t("s_add_u32 s65, s65, s52")
    t("s_cmp_eq_u32 s48, 0"); t("s_cbranch_scc0 K2_NOXCC")
    t("s_lshl_b32 s60, s53, 2"); t("s_add_u32 s60, s60, 8"); t("s_lshl_b32 s61, s63, s60")
    t("s_lshl_b32 s60, s65, 2")
    t("v_mov_b32 v136, s60"); t("v_mov_b32 v137, s61")
    t("v_cmp_eq_u32 vcc, 0, v131"); t("s_and_saveexec_b64 s[70:71], vcc")
    t("buffer_atomic_add v137, v136, s[44:47], 0 offen")
    t("s_mov_b64 exec, s[70:71]")
    t("K2_NOXCC:")
    t("s_lshl_b32 s56, s50, 16"); t("s_lshl_b32 s60, s49, 13"); t("s_add_u32 s56, s56, s60")
    t("s_mov_b32 s57, 0"); t("s_mov_b32 s54, 0")
    def dma_lines(slot):
        r = []
        for k in range(8):
            if k % 4 == 0:
                r.append((f"s_add_u32 m0, s56, {slot*SLOT + (k//4)*4096:#x}", False))
                if k: r.append(("s_add_u32 s57, s57, 4096", False))
                else: r.append(("s_nop 0", False))
            r.append((f"buffer_load_dwordx4 v{DV+k%4}, s[8:11], s57 offen offset:{(k%4)*1024} lds", True))
        r.append((f"s_add_u32 s57, s57, {SLOT-4096}", False))
        return r
    for txt, _ in dma_lines(0): t(txt)
    QST = [49152, 114688, 131072, 147456]
    def q_dma(t):
        t("v_lshlrev_b32 v137, 4, v131")
        t("s_mul_i32 s60, s51, 250"); t("s_lshl_b32 s61, s52, 3"); t("s_add_u32 s60, s60, s61")
        t("s_lshl_b32 s61, s48, 1"); t("s_add_u32 s60, s60, s61"); t("s_lshl_b32 s60, s60, 13")
        t("s_lshl_b32 s61, s48, 14"); t("s_add_u32 s61, s61, 98304"); t("s_cmp_eq_u32 s48, 0"); t("s_cselect_b32 s61, 49152, s61")
        for g in range(4):
            t(f"s_add_u32 m0, s61, {g*4096}")
            if g: t("s_add_u32 s60, s60, 4096")
            else: t("s_nop 0")
            for k in range(4):
                t(f"buffer_load_dwordx4 v137, s[12:15], s60 offen offset:{k*1024} lds")
    def q_read(t):
        for qt in range(4):
            t(f"s_lshl_b32 s60, s50, 1"); t(f"s_add_u32 s60, s60, {qt}"); t("s_and_b32 s60, s60, 3")
            t("s_lshl_b32 s61, s49, 2"); t("s_add_u32 s60, s60, s61")
            t("s_lshr_b32 s61, s60, 1"); t("s_lshl_b32 s62, s61, 14"); t("s_add_u32 s62, s62, 98304")
            t("s_cmp_eq_u32 s61, 0"); t("s_cselect_b32 s62, 49152, s62")
            t("s_and_b32 s60, s60, 1"); t("s_lshl_b32 s60, s60, 13"); t("s_add_u32 s62, s62, s60")
            t(f"v_add_u32 v{140+qt}, s62, v137")
        for qt in range(4):
            for j in range(8):
                t(f"ds_read_b128 {ar(aQ+(qt*8+j)*4,4)}, v{140+qt} offset:{j*1024}")
    q_dma(t)
    for n in (1, 2):
        for txt, _ in dma_lines(n): t(txt)
    def kava_setup(t):
        t("v_and_b32 v136, 7, v132"); t("v_lshlrev_b32 v136, 1, v136")
        t("v_lshlrev_b32 v138, 9, v132")
        t("s_lshl_b32 s60, s50, 16"); t("v_add_u32 v138, s60, v138")
        for jj in range(4):
            t(f"v_add_u32 v139, {4*jj}, v133")
            t("v_xor_b32 v139, v139, v136")
            t(f"v_lshl_add_u32 v{KA+jj}, v139, 4, v138")
        t("v_lshrrev_b32 v136, 2, v132")
        t("v_lshl_add_u32 v136, v133, 2, v136")
        t("v_lshlrev_b32 v138, 9, v136")
        t("v_add_u32 v138, s60, v138")
        t("v_and_b32 v139, 1, v132"); t("v_lshl_add_u32 v138, v139, 3, v138")
        t("v_and_b32 v136, 7, v136"); t("v_lshlrev_b32 v136, 1, v136")
        t("v_bfe_u32 v139, v132, 1, 1")
        for dd in range(8):
            t(f"v_add_u32 v140, {2*dd}, v139")
            t("v_xor_b32 v140, v140, v136")
            t(f"v_lshl_add_u32 v{VA+dd}, v140, 4, v138")
    kava_setup(t)
    for r in range(128): t(f"v_mov_b32 v{O+r}, 0")
    for r in range(128): t(f"v_accvgpr_write_b32 a{aO+r}, 0")
    for k in range(4): t(f"v_mov_b32 v{LS+k}, 0")
    t("s_mov_b32 s58, 0")
    t("s_waitcnt vmcnt(16)")
    t("s_barrier")
    if o['stamp']: t("s_memtime s[76:77]"); t("s_memrealtime s[78:79]")
    q_read(t)
    t("s_waitcnt lgkmcnt(0)")
    L += hazard.autofix(T)
    DF = o['DF']
    ev = []; seq = [0]
    def add(tm, kind, prio=5, **kw):
        seq[0] += 1; ev.append((tm, prio, seq[0], kind, kw))
    def TT(i, n): return 128*i + n
    NT = 16
    for n in range(NT):
        slot = n % 4
        for kt in range(2):
            for j in range(8):
                f = 8*kt + j
                tm = TT(n-1, 4*f); tr = tm - 4*DF
                ring = RING + 4*(f % 4)
                off = slot*SLOT + kt*8192 + (j >> 2)*256
                add(tr, 'lds', prio=2, text=f"ds_read_b128 {vr(ring,4)}, v{KA+(j&3)} offset:{off}", tag=('K', n, f))
                if n < NT:
                    for qt in range(4):
                        acc = vr(Sreg(kt, qt), 4)
                        c = acc if j else ('0' if n == 0 else vr(NEGM+4*qt, 4))
                        add(tm+qt, 'mfma', prio=0, text=f"{M16} {acc}, {vr(ring,4)}, {ar(aQ+(qt*8+j)*4,4)}, {c}",
                            need=[('K', n, f)] if qt == 0 else [])
    for n in range(NT):
        slot = n % 4
        for dt in range(16):
            f = 16 + dt
            tm = TT(n, 4*f); tr = tm - 4*DF
            ring = RING + 4*(f % 4)
            for u in range(2):
                off = slot*SLOT + u*8192 + (dt >> 3)*256
                add(tr, 'lds', prio=2, text=f"ds_read_b64_tr_b16 {vr(ring+2*u,2)}, v{VA+(dt&7)} offset:{off}", tag=('V', n, dt, u))
            for qt in range(4):
                add(tm+qt, 'mfma', prio=0, text=f"{M16} {Oreg(dt,qt)}, {vr(ring,4)}, {vr(P[n%2]+4*qt,4)}, {Oreg(dt,qt)}",
                    need=[('V', n, dt, 0), ('V', n, dt, 1)] if qt == 0 else [])
        for kt in range(2):
            for el in range(16 if o.get('valu', True) else 0):
                qt, r = el >> 2, el & 3
                te = TT(n-1, (o['e0'] if kt == 0 else o['e1']) + o['estep']*el)
                reg = Sreg(kt, qt) + r
                add(te, 'valu', prio=3, text=f"v_exp_f32 v{reg}, v{reg}")
                add(te+o['addd'], 'valu', prio=3, text=f"v_add_f32 v{LS+qt}, v{LS+qt}, v{reg}")
                if r % 2 == 1:
                    add(te+o['cvtd'], 'valu', prio=4, text=f"v_cvt_pk_bf16_f32 v{P[n%2]+4*qt+2*kt+r//2}, v{reg-1}, v{reg}")
    for i in range(-1, NT-2):
        add(TT(i, o['bslot']), 'bar', prio=6, it=i)
        if i >= 0 and i + 3 < NT and o.get('dma', True):
            k = 0
            for txt, vm in dma_lines((i+3) % 4):
                tm = TT(i, o['dma0'] + o['dmastep']*k)
                if vm:
                    add(tm, 'dma', prio=7, text=txt, tile=i+3); k += 1
                else:
                    add(tm if k < 8 else TT(i, o['dma0'] + o['dmastep']*7), 'salu', prio=6 if k < 8 else 8, text=txt)
    tail_ev = []
    ev.sort(key=lambda x: (x[0], x[1], x[2]))
    W = Waiter()
    for n in (1, 2):
        for k in range(8): W.issue('vm', ('T', n))
    its = {}
    for x in ev:
        tm, _, _, kind, kw = x
        it = max(tm // 128, -1)
        out = its.setdefault(it, [])
        if kind == 'mfma':
            n = W.need('lgkm', kw['need'])
            if n is not None: out.append(f"s_waitcnt lgkmcnt({n})")
            out.append(kw['text'])
            if tm == TT(-1, 63):
                out.append("@FIXUP")
        elif kind == 'lds':
            out.append(kw['text']); W.issue('lgkm', kw['tag'])
        elif kind == 'bar':
            n = W.need('vm', [('T', kw['it']+2)])
            if n is not None: out.append(f"s_waitcnt vmcnt({n})")
            if o.get('barrier', True) or kw['it'] < 0: out.append("s_barrier")
        elif kind == 'dma':
            out.append(kw['text']); W.issue('vm', ('T', kw['tile']))
        else:
            out.append(kw['text'])
    for i in range(8, 13):
        assert its[i] == its[i-4], (i, [(a, b) for a, b in zip(its[i], its[i-4]) if a != b][:5])
    pro = its[-1]
    fi = pro.index("@FIXUP")
    if not o.get('valu', True):
        its[15] = its[15] + ["v_add_f32 v248, v248, v248"]
    pre_valu = [x for x in pro[:fi] if x.startswith('v_exp') or x.startswith('v_add_f32') or x.startswith('v_cvt')]
    pro_a = [x for x in pro[:fi] if x not in pre_valu or not (x.startswith('v_exp') or x.startswith('v_add_f32') or x.startswith('v_cvt'))]
    fix = []
    fx = fix.append
    fx("s_nop 7")
    for qt in range(4):
        a, b = Sreg(0, qt), Sreg(1, qt)
        fx(f"v_max3_f32 v{NEGM+qt}, v{a}, v{a+1}, v{a+2}")
        fx(f"v_max3_f32 v{NEGM+qt}, v{NEGM+qt}, v{a+3}, v{b}")
        fx(f"v_max3_f32 v{NEGM+qt}, v{NEGM+qt}, v{b+1}, v{b+2}")
        fx(f"v_max_f32 v{NEGM+qt}, v{NEGM+qt}, v{b+3}")
    for sw in ("v_permlane16_swap_b32", "v_permlane32_swap_b32"):
        for qt in range(4): fx(f"v_mov_b32 v{NEGM+4+qt}, v{NEGM+qt}")
        fx("s_nop 1")
        for qt in range(4): fx(f"{sw} v{NEGM+qt}, v{NEGM+4+qt}")
        fx("s_nop 1")
        for qt in range(4): fx(f"v_max_f32 v{NEGM+qt}, v{NEGM+qt}, v{NEGM+4+qt}")
    fx("v_mbcnt_lo_u32_b32 v254, -1, 0"); fx("v_mbcnt_hi_u32_b32 v254, -1, v254")
    fx("v_lshlrev_b32 v254, 4, v254")
    fx(f"s_lshl_b32 s60, s48, 10"); fx(f"s_add_u32 s60, s60, {MX}")
    fx("v_add_u32 v255, s60, v254")
    fx(f"ds_write_b128 v255, {vr(NEGM,4)}")
    fx("s_xor_b32 s60, s60, 2048")
    fx("v_add_u32 v255, s60, v254")
    fx("s_waitcnt lgkmcnt(0)")
    fx("s_barrier")
    fx(f"ds_read_b128 {vr(NEGM+4,4)}, v255")
    fx("s_waitcnt lgkmcnt(0)")
    for qt in range(4): fx(f"v_max_f32 v{NEGM+8+qt}, v{NEGM+qt}, v{NEGM+4+((qt+2)&3)}")
    fx(f"v_mov_b32 v{MREF}, v{NEGM+8}"); fx(f"v_mov_b32 v{MREF+1}, v{NEGM+9}")
    for kt in range(2):
        for qt in range(4):
            for r in range(4): fx(f"v_sub_f32 v{Sreg(kt,qt)+r}, v{Sreg(kt,qt)+r}, v{NEGM+8+qt}")
    for qt in range(4): fx(f"v_mov_b32 v{254}, v{NEGM+8+qt}") if False else None
    for qt in (3, 1, 0):
        for r in range(4): fx(f"v_sub_f32 v{NEGM+4*qt+r}, 0, v{NEGM+8+qt}") if qt != 2 else None
    fx(f"v_sub_f32 v254, 0, v{NEGM+10}")
    for r in range(4): fx(f"v_mov_b32 v{NEGM+8+r}, v254")
    L += hazard.autofix(pro_a + fix + pre_valu + pro[fi+1:])
    if o['stamp']:
        e("s_memtime s[24:25]")
    e("K2_LOOP:")
    body = {u: its[4+u] for u in range(4)}
    L += body[0]
    e("s_cmp_eq_u32 s58, 3")
    e("s_cbranch_scc1 K2_EPI")
    L += body[1]; L += body[2]; L += body[3]
    e("s_add_u32 s58, s58, 1")
    e("s_branch K2_LOOP")
    e("K2_EPI:")
    if o['stamp']:
        e("s_memtime s[26:27]"); e("s_waitcnt lgkmcnt(0)"); e("s_sub_u32 s101, s26, s24"); e("s_sub_u32 s100, s24, s76")
    L += its[13]
    e("s_cmp_eq_u32 s59, 3")
    e("s_cbranch_scc0 K2_NOMASK")
    for r in range(16): e(f"v_mov_b32 v{NEGM+r}, 0xf149f2ca")
    e("s_nop 1")
    e("K2_NOMASK:")
    import gen_tail
    tail, resume = gen_tail.gen_tail(o, its[14], its[15], W)
    L += tail
    e("s_branch K2_END")
    T = []; t = T.append
    M_, MN, AL = NEGM, NEGM + 4, NEGM + 8
    t("K2_SLOW:")
    t("s_mov_b32 s54, 1")
    t("s_waitcnt vmcnt(0) lgkmcnt(0)")
    t("s_barrier")
    t("v_mbcnt_lo_u32_b32 v131, -1, 0"); t("v_mbcnt_hi_u32_b32 v131, -1, v131")
    dv_setup(t)
    S_2 = lambda fn: (lambda b: (fn(b.append), T.extend(b)))([])
    S_2(lambda e: srd(e, 12, 's4', 's5', QF_OFF, 500*8192))
    q_dma(t)
    kava_setup(t)
    for r in range(128): t(f"v_mov_b32 v{O+r}, 0")
    for r in range(128): t(f"v_accvgpr_write_b32 a{aO+r}, 0")
    for k in range(4): t(f"v_mov_b32 v{LS+k}, 0"); t(f"v_mov_b32 v{M_+k}, 0xf149f2ca")
    t("s_lshl_b32 s56, s50, 16"); t("s_lshl_b32 s60, s49, 13"); t("s_add_u32 s56, s56, s60")
    t("s_mov_b32 s57, 0"); t("s_mov_b32 s58, 0")
    t("s_waitcnt vmcnt(0)")
    t("s_barrier")
    q_read(t)
    t("s_waitcnt lgkmcnt(0)")
    t("K2_SL_LOOP:")
    t("s_barrier")
    for txt, _ in dma_lines(0): t(txt)
    t("s_waitcnt vmcnt(0)")
    t("s_barrier")
    t("s_lshl_b32 s60, s58, 14"); t("s_cmp_lt_u32 s60, s55")
    t("s_cbranch_scc0 K2_SL_NEXT")
    for kt in range(2):
        for j in range(8):
            t(f"ds_read_b128 {vr(RING,4)}, v{KA+(j&3)} offset:{kt*8192 + (j>>2)*256}")
            t("s_waitcnt lgkmcnt(0)")
            for qt in range(4):
                acc = vr(Sreg(kt, qt), 4)
                t(f"{M16} {acc}, {vr(RING,4)}, {ar(aQ+(qt*8+j)*4,4)}, {acc if j else '0'}")
            t("s_nop 3")
    t("s_nop 7")
    for qt in range(4):
        a, b = Sreg(0, qt), Sreg(1, qt)
        t(f"v_max3_f32 v{MN+qt}, v{a}, v{a+1}, v{a+2}")
        t(f"v_max3_f32 v{MN+qt}, v{MN+qt}, v{a+3}, v{b}")
        t(f"v_max3_f32 v{MN+qt}, v{MN+qt}, v{b+1}, v{b+2}")
        t(f"v_max3_f32 v{MN+qt}, v{MN+qt}, v{b+3}, v{M_+qt}")
    for sw in ("v_permlane16_swap_b32", "v_permlane32_swap_b32"):
        for qt in range(4): t(f"v_mov_b32 v{AL+qt}, v{MN+qt}")
        t("s_nop 1")
        for qt in range(4): t(f"{sw} v{MN+qt}, v{AL+qt}")
        t("s_nop 1")
        for qt in range(4): t(f"v_max_f32 v{MN+qt}, v{MN+qt}, v{AL+qt}")
    for qt in range(4):
        t(f"v_sub_f32 v{AL+qt}, v{M_+qt}, v{MN+qt}"); t(f"v_exp_f32 v{AL+qt}, v{AL+qt}"); t(f"v_mov_b32 v{M_+qt}, v{MN+qt}")
    t("s_nop 0")
    for qt in range(4):
        t(f"v_mul_f32 v{LS+qt}, v{LS+qt}, v{AL+qt}")
        for kt in range(2):
            for r in range(4):
                reg = Sreg(kt, qt) + r
                t(f"v_sub_f32 v{reg}, v{reg}, v{M_+qt}"); t(f"v_exp_f32 v{reg}, v{reg}"); t("s_nop 0")
                t(f"v_add_f32 v{LS+qt}, v{LS+qt}, v{reg}")
            for h2 in range(2):
                t(f"v_cvt_pk_bf16_f32 v{P[0]+4*qt+2*kt+h2}, v{Sreg(kt,qt)+2*h2}, v{Sreg(kt,qt)+2*h2+1}")
    def rescale():
        for dt in range(16):
            for qt in range(2):
                for r in range(4): t(f"v_mul_f32 v{O+(dt*2+qt)*4+r}, v{O+(dt*2+qt)*4+r}, v{AL+qt}")
                for r in range(4):
                    a = aO + (dt*2+qt)*4 + r
                    t(f"v_accvgpr_read_b32 v{NEGM+12+r}, a{a}")
                for r in range(4): t(f"v_mul_f32 v{NEGM+12+r}, v{NEGM+12+r}, v{AL+2+qt}")
                for r in range(4):
                    a = aO + (dt*2+qt)*4 + r
                    t(f"v_accvgpr_write_b32 a{a}, v{NEGM+12+r}")
    rescale()
    t("s_nop 1")
    for dt in range(16):
        for u in range(2):
            t(f"ds_read_b64_tr_b16 {vr(RING+2*u,2)}, v{VA+(dt&7)} offset:{u*8192 + (dt>>3)*256}")
        t("s_waitcnt lgkmcnt(0)")
        for qt in range(4):
            t(f"{M16} {Oreg(dt,qt)}, {vr(RING,4)}, {vr(P[0]+4*qt,4)}, {Oreg(dt,qt)}")
        t("s_nop 3")
    t("s_nop 7")
    t("K2_SL_NEXT:")
    t("s_add_u32 s58, s58, 1"); t("s_cmp_lt_u32 s58, 16"); t("s_cbranch_scc1 K2_SL_LOOP")
    t("s_barrier")
    t("v_mbcnt_lo_u32_b32 v254, -1, 0"); t("v_mbcnt_hi_u32_b32 v254, -1, v254"); t("v_lshlrev_b32 v254, 4, v254")
    t(f"s_lshl_b32 s60, s48, 10"); t(f"s_add_u32 s60, s60, {MX}"); t("v_add_u32 v255, s60, v254")
    t(f"ds_write_b128 v255, {vr(M_,4)}")
    t("s_xor_b32 s60, s60, 2048"); t("v_add_u32 v255, s60, v254")
    t("s_waitcnt lgkmcnt(0)"); t("s_barrier")
    t(f"ds_read_b128 {vr(MN,4)}, v255"); t("s_waitcnt lgkmcnt(0)")
    for qt in range(4): t(f"v_max_f32 v{RING+qt}, v{M_+qt}, v{MN+((qt+2)&3)}")
    for qt in range(4):
        t(f"v_sub_f32 v{AL+qt}, v{M_+qt}, v{RING+qt}"); t(f"v_exp_f32 v{AL+qt}, v{AL+qt}")
    t("s_nop 0")
    for qt in range(4): t(f"v_mul_f32 v{LS+qt}, v{LS+qt}, v{AL+qt}")
    t(f"v_mov_b32 v{MREF}, v{RING}"); t(f"v_mov_b32 v{MREF+1}, v{RING+1}")
    rescale()
    t("s_barrier")
    L += hazard.autofix(T + resume)
    e("K2_END:")
    e("s_endpgm")
    i0 = L.index("K2_LOOP:"); i1 = L.index("K2_EPI:")
    lin = L[i0-60:i1] + L[i0:i1] + L[i1:i1+700]
    errs = hazard.check(lin, 'k2f')
    return L, kernel_desc(name, 512, 256), errs
```

```python
from gen_common import *
import hazard, struct
M16 = "v_mfma_f32_16x16x32_bf16"
fb = lambda x: hex(struct.unpack('<I', struct.pack('<f', x))[0])
OWN = 49152
MXE = 114688
OWNML = MXE + 4096
ACT = 0

def gen_tail(o, it14, it15, W):
    O = 0; S = 128; P = [160, 176]; NEGM = 192; RING = 208; KA = 232; VA = 236; DV = 244; LS = 248; MREF = 252
    aO = 128
    T = []; t = T.append
    def stamp(k):
        if o['stamp']: t(f"s_memrealtime s[{80+2*k}:{81+2*k}]")
    def S_(fn):
        buf = []; fn(buf.append); T.extend(buf)
    S_(lambda e: srd(e, 12, 's4', 's5', WF_OFF, 262144))
    t("s_mul_i32 s60, s51, 2048000")
    t(f"s_add_u32 s61, s60, {G_OFF:#x}"); S_(lambda e: srd(e, 24, 's4', 's5', 's61', 2048000))
    t(f"s_add_u32 s61, s60, {U_OFF:#x}"); S_(lambda e: srd(e, 28, 's4', 's5', 's61', 2048000))
    t("s_mov_b32 s34, 2560"); t("s_mov_b32 s35, 0x20000")
    t("s_mov_b32 s38, 4096000"); t("s_mov_b32 s39, 0x20000")
    t("s_mov_b32 s42, 4096000"); t("s_mov_b32 s43, 0x20000")
    S_(lambda e: srd(e, 16, 's4', 's5', OP_OFF, 64*16*16384))
    S_(lambda e: srd(e, 20, 's4', 's5', ML_OFF, 64*16*256))
    t("s_lshl_b32 s62, s52, 7"); t("s_lshl_b32 s60, s53, 5"); t("s_add_u32 s62, s62, s60")
    t("s_lshl_b32 s64, s49, 1"); t("s_add_u32 s64, s64, s50")
    t("v_mbcnt_lo_u32_b32 v254, -1, 0"); t("v_mbcnt_hi_u32_b32 v254, -1, v254")
    t("v_lshlrev_b32 v247, 4, v254")
    t("v_and_b32 v246, 31, v254"); t("v_lshlrev_b32 v246, 4, v246")
    t("v_lshrrev_b32 v255, 5, v254")
    t("s_lshl_b32 s60, s48, 1"); t("v_add_u32 v255, s60, v255")
    t("v_lshlrev_b32 v255, 2, v255"); t("v_add_u32 v255, s62, v255")
    t("v_lshl_add_u32 v244, v255, 9, v246")
    t("v_subrev_u32 v245, 1024, v244")
    t("s_lshl_b32 s60, s48, 15"); t("v_add_u32 v254, s60, v247")
    t("s_add_u32 s61, s60, 16384"); t("s_lshl_b32 s66, s50, 14"); t("s_add_u32 s66, s66, 131072")
    t("s_cmp_eq_u32 s49, 1"); t("s_cselect_b32 s61, s66, s61")
    t("v_add_u32 v255, s61, v247")
    t("K2_HEADEND_PLACEHOLDER") if False else None
    head = list(T); T.clear()
    DWR = [192, 196, 200, 204, 232]
    cl = []
    for i in range(8):
        if i < 2: cl.append((f"buffer_load_dwordx4 {vr(S+4*i,4)}, v245, s[24:27], 0 offen offset:{512*i}", ('G', i)))
        else: cl.append((f"buffer_load_dwordx4 {vr(S+4*i,4)}, v244, s[24:27], 0 offen offset:{512*(i-2)}", ('G', i)))
    for i in range(4): cl.append((f"buffer_load_dwordx4 {vr(P[0]+4*i,4)}, v244, s[28:31], 0 offen offset:{512*i}", ('U', i)))
    for i in range(5): cl.append((f"buffer_load_dwordx4 {vr(DWR[i],4)}, v246, s[32:35], 0 offen offset:{512*i}", ('DW', i)))
    def owr(idx):
        return f"ds_write_b128 v{254 if idx < 16 else 255}, {ar(aO+4*idx,4)} offset:{(idx%16)*1024}"
    w2 = []
    for m in range(8):
        for a in range(4):
            pre = []
            if m % 4 == 0:
                pre = [f"s_lshl_b32 s{66+a}, s48, 16", f"s_add_u32 s{66+a}, s{66+a}, {a*16384 + 8192 + (m>>2)*4096}"]
            w2.append((pre, f"buffer_load_dwordx4 {ar((a*8+m)*4,4)}, v247, s[12:15], s{66+a} offen offset:{(m&3)*1024}", ('W2', m, a)))
    resume = list(head) + sum([pre + [txt] for pre, txt, tag in w2], []) + [txt for txt, tag in cl]
    out = list(head)
    nm = 0
    step14 = o.get('w2s14', 4)
    for x in it14:
        out.append(x)
        if x.startswith('v_mfma'):
            nm += 1
            if nm > 66 and nm % step14 == 2 and w2:
                pre, txt, tag = w2.pop(0); out += pre; out.append(txt); W.issue('vm', tag)
    lastS = max(i for i, x in enumerate(it15) if x.startswith('v_cvt_pk') or x.startswith('v_exp') or x.startswith('v_add_f32'))
    ci = 0; nm = 0; wr = 0
    bar_done = False
    for i, x in enumerate(it15):
        out.append(x)
        if not bar_done and i >= 6 and not x.startswith('v_mfma'):
            out.append("s_barrier"); bar_done = True
        if i <= lastS and i % o.get('w2s15', 4) == 1 and w2:
            pre, txt, tag = w2.pop(0); out += pre; out.append(txt); W.issue('vm', tag)
        if x.startswith('v_mfma'):
            nm += 1
            if i > lastS and nm % 4 == 2:
                if w2:
                    pre, txt, tag = w2.pop(0); out += pre; out.append(txt); W.issue('vm', tag)
                elif ci < len(cl):
                    txt, tag = cl[ci]; ci += 1
                    out.append(txt); W.issue('vm', tag)
            if nm % 2 == 0:
                dt_ok = (nm - 9) // 4
                if wr < 2*dt_ok and wr < 32 and dt_ok >= 1:
                    out.append(owr(wr)); wr += 1
    while w2:
        pre, txt, tag = w2.pop(0); out += pre; out.append(txt); W.issue('vm', tag)
    while ci < len(cl):
        txt, tag = cl[ci]; ci += 1; out.append(txt); W.issue('vm', tag)
    T.extend(out)
    if o['stamp']: t("s_memtime s[98:99]")
    stamp(0)
    lred = []
    for sw in ("v_permlane16_swap_b32", "v_permlane32_swap_b32"):
        for qt in range(4): lred.append(f"v_mov_b32 v{236+qt}, v{LS+qt}")
        lred.append("s_nop 1")
        for qt in range(4): lred.append(f"{sw} v{LS+qt}, v{236+qt}")
        lred.append("s_nop 1")
        for qt in range(4): lred.append(f"v_add_f32 v{LS+qt}, v{LS+qt}, v{236+qt}")
    T.extend(lred)
    resume += lred + ["s_nop 7"] + [owr(i) for i in range(32)] + ["s_branch K2_POSTB"]
    t("s_nop 7")
    while wr < 32:
        t(owr(wr)); wr += 1
    t("K2_POSTB:")
    t("s_waitcnt lgkmcnt(0)")
    t("s_barrier")
    t("s_lshl_b32 s60, s65, 2")
    t("buffer_load_dword v241, off, s[44:47], s60 sc1"); W.issue('vm', 'WORD')
    w1 = []
    for m in range(8):
        for a in range(4):
            pre = []
            if m % 4 == 0:
                pre = [f"s_lshl_b32 s{66+a}, s48, 16", f"s_add_u32 s{66+a}, s{66+a}, {a*16384 + (m>>2)*4096}"]
            w1.append((pre, f"buffer_load_dwordx4 {ar(128+(a*8+m)*4,4)}, v247, s[12:15], s{66+a} offen offset:{(m&3)*1024}", ('W1', m, a)))
    def pload(n=1, lst=None):
        lst = pend if lst is None else lst
        for _ in range(n):
            if not lst: return
            pre, txt, tag = lst.pop(0)
            T.extend(pre); t(txt); W.issue('vm', tag)
    t("v_lshrrev_b32 v240, 1, v247")
    t("s_lshl_b32 s60, s48, 10"); t(f"s_add_u32 s60, s60, {MXE}"); t("v_add_u32 v240, s60, v240")
    t(f"ds_write_b64 v240, {vr(LS+2,2)}")
    t("v_max_f32 v238, v248, v249"); t("v_max3_f32 v238, v238, v250, v251")
    t("v_add_f32 v239, v248, v249"); t("v_add_f32 v239, v239, v250"); t("v_add_f32 v239, v239, v251")
    t("v_max_f32 v238, v238, v239")
    t("s_mov_b32 s57, 0x71800000")
    t("v_cmp_ngt_f32 vcc, s57, v239")
    t("s_nop 1")
    t("s_cmp_lg_u64 vcc, 0")
    t("s_cselect_b32 s57, 1, 0")
    t("v_mov_b32 v238, s57")
    t(f"s_lshl_b32 s57, s48, 2"); t(f"s_add_u32 s57, s57, {MXE + 8192}"); t("v_mov_b32 v239, s57")
    t("ds_write_b32 v239, v238")
    t("v_xor_b32 v254, 0x10000, v254")
    t("s_mov_b32 s57, 0x4000"); t("s_cmp_eq_u32 s49, 1"); t("s_cselect_b32 s60, s57, 0x10000")
    t("v_xor_b32 v255, s60, v255")
    bufs = [P[1], RING]
    def rd(b):
        for k in range(4):
            idx = 4*b + k
            t(f"ds_read_b128 {vr(bufs[b%2]+4*k,4)}, v{254 if idx < 16 else 255} offset:{(idx%16)*1024}")
    rd(0); rd(1)
    for b in range(8):
        t(f"s_waitcnt lgkmcnt({4 if b < 7 else 0})")
        for k in range(4):
            d = O + 4*(4*b+k); s = bufs[b%2] + 4*k
            t(f"v_pk_add_f32 v[{d}:{d+1}], v[{d}:{d+1}], v[{s}:{s+1}]")
            t(f"v_pk_add_f32 v[{d+2}:{d+3}], v[{d+2}:{d+3}], v[{s+2}:{s+3}]")
        if b + 2 < 8: rd(b+2)
        pload(o.get('w1x', 1), w1)
    t("s_barrier")
    t("v_xor_b32 v240, 0x800, v240")
    t(f"ds_read_b64 v[236:237], v240")
    t(f"v_mov_b32 v239, {MXE + 8192}")
    t("ds_read_b128 v[232:235], v239") if False else t("ds_read_b128 v[212:215], v239")
    stamp(1)
    for m in range(8):
        for tt in range(2):
            a = 16*m + 4*tt; b = a + 8
            t(f"v_cvt_pk_bf16_f32 v{a}, v{a}, v{a+1}")
            t(f"v_cvt_pk_bf16_f32 v{a+1}, v{a+2}, v{a+3}")
            t(f"v_cvt_pk_bf16_f32 v{a+2}, v{b}, v{b+1}")
            t(f"v_cvt_pk_bf16_f32 v{a+3}, v{b+2}, v{b+3}")
    t("v_mbcnt_lo_u32_b32 v208, -1, 0"); t("v_mbcnt_hi_u32_b32 v208, -1, v208")
    t("v_and_b32 v209, 15, v208")
    t("v_lshrrev_b32 v210, 4, v208")
    t("s_mul_i32 s60, s51, 4000"); t("s_add_u32 s60, s60, s62")
    t("v_add_u32 v211, s60, v209"); t("v_lshlrev_b32 v211, 9, v211")
    t("v_lshl_add_u32 v211, v210, 3, v211")
    t("s_lshl_b32 s60, s48, 7"); t("v_add_u32 v242, s60, v211")
    t("v_add_u32 v243, 8192, v242")
    n = W.need('vm', ['WORD'])
    t(f"s_waitcnt vmcnt({n}) lgkmcnt(0)")
    W.drain('lgkm')
    t("v_or_b32 v212, v212, v213"); t("v_or_b32 v214, v214, v215"); t("v_or_b32 v212, v212, v214")
    t("s_nop 0")
    t("v_readfirstlane_b32 s57, v212")
    t("s_nop 3")
    t("s_andn2_b32 s57, s57, s54")
    t("s_cmp_lg_u32 s57, 0")
    t("s_cbranch_scc1 K2_SLOW")
    t(f"v_add_f32 v{LS}, v{LS}, v236"); t(f"v_add_f32 v{LS+1}, v{LS+1}, v237")
    t("s_cmp_eq_u32 s64, s53")
    t("s_cbranch_scc0 K2_PUBG")
    t(f"v_add_u32 v254, {OWN}, v247")
    for m in range(8):
        for tt in range(2):
            t(f"ds_write_b128 v254, {vr(16*m+4*tt,4)} offset:{(m*2+tt)*1024}")
    t("v_lshlrev_b32 v255, 3, v209"); t(f"v_add_u32 v255, {OWNML}, v255")
    for tt in range(2):
        t(f"v_mov_b32 v{212+2*tt}, v{MREF+tt}"); t(f"v_mov_b32 v{213+2*tt}, v{LS+tt}")
        t(f"ds_write_b64 v255, v[{212+2*tt}:{213+2*tt}] offset:{128*tt}")
    t("s_branch K2_PUBD")
    t("K2_PUBG:")
    t("s_lshl_b32 s60, s52, 7"); t("s_lshl_b32 s61, s64, 5"); t("s_add_u32 s60, s60, s61")
    t("s_cmp_lt_u32 s60, 4000")
    t("s_cbranch_scc0 K2_PUBD")
    t("s_lshl_b32 s60, s65, 2"); t("s_add_u32 s60, s60, s64"); t("s_lshl_b32 s60, s60, 2"); t("s_add_u32 s60, s60, s53")
    t("s_lshl_b32 s61, s60, 14")
    t("v_lshlrev_b32 v255, 3, v209")
    for tt in range(2):
        t(f"v_mov_b32 v{212+2*tt}, v{MREF+tt}"); t(f"v_mov_b32 v{213+2*tt}, v{LS+tt}")
    t("v_readfirstlane_b32 s57, v241")
    t("s_lshl_b32 s58, s64, 2"); t("s_add_u32 s58, s58, 8")
    t("s_lshr_b32 s57, s57, s58"); t("s_and_b32 s57, s57, 15")
    t("s_cmp_eq_u32 s57, s63")
    t("s_cbranch_scc1 K2_PUBL" if o.get('l2pub', True) else "s_nop 0")
    for lbl, fl in (("", " sc1"), ("K2_PUBL", (" " + o['l2fl']) if o.get('l2fl') else "")):
        if lbl: t(f"{lbl}:")
        t("s_lshl_b32 s61, s60, 14")
        for m in range(8):
            for tt in range(2):
                f = m*2 + tt
                if f % 4 == 0 and f: t("s_add_u32 s61, s61, 4096")
                t(f"buffer_store_dwordx4 {vr(16*m+4*tt,4)}, v247, s[16:19], s61 offen offset:{(f%4)*1024}{fl}")
        t("s_lshl_b32 s61, s60, 8")
        t("v_cmp_gt_u32 vcc, 16, v208")
        t("s_and_saveexec_b64 s[70:71], vcc")
        for tt in range(2):
            t(f"buffer_store_dwordx2 v[{212+2*tt}:{213+2*tt}], v255, s[20:23], s61 offen offset:{128*tt}{fl}")
        t("s_mov_b64 exec, s[70:71]")
        if not lbl: t("s_branch K2_PUBD")
    t("K2_PUBD:")
    def atomic(lbl):
        t("s_cmp_eq_u32 s48, 0")
        t(f"s_cbranch_scc0 {lbl}")
        t("s_lshl_b32 s60, s65, 2")
        t("v_mov_b32 v214, s60"); t("v_mov_b32 v215, 1")
        t("v_cmp_eq_u32 vcc, 0, v208")
        t("s_and_saveexec_b64 s[70:71], vcc")
        t("buffer_atomic_add v215, v214, s[44:47], 0 offen")
        t("s_mov_b64 exec, s[70:71]")
        t(f"{lbl}:")
    t("s_cmp_lt_u32 s62, 4000")
    t("s_cbranch_scc1 K2_VALID")
    t("s_waitcnt vmcnt(0) lgkmcnt(0)")
    t("s_barrier")
    atomic("K2_NOATOM0")
    t("s_branch K2_FIN")
    t("K2_VALID:")
    stamp(2)
    pend = []
    for a in range(4):
        for tt in range(2):
            pend.append(([], f"buffer_load_dwordx2 {vr(176+(a*2+tt)*2,2)}, v{242+tt}, s[36:39], 0 offen offset:{32*a}", ('X', a, tt)))
    pend = w1 + pend
    w1 = []
    W.issue('vm', 'PUB')
    DWF = 0; CV = 40; GT = 72; GR = S; UR = P[0]
    t("s_nop 1")
    for i in range(5):
        for k in range(4):
            t(f"v_lshlrev_b32 v{DWF+8*i+2*k}, 16, v{DWR[i]+k}")
            t(f"v_and_b32 v{DWF+8*i+2*k+1}, 0xffff0000, v{DWR[i]+k}")
        pload(1)
    for rho in range(8):
        g = GT + 8*(rho % 2)
        for k in range(4):
            t(f"v_lshlrev_b32 v{g+2*k}, 16, v{GR+4*rho+k}")
            t(f"v_and_b32 v{g+2*k+1}, 0xffff0000, v{GR+4*rho+k}")
        for i in range(4):
            tap = rho - i
            if 0 <= tap <= 4:
                for k in range(4):
                    d = f"v[{CV+8*i+2*k}:{CV+8*i+2*k+1}]"
                    a_ = f"v[{g+2*k}:{g+2*k+1}]"; b_ = f"v[{DWF+8*tap+2*k}:{DWF+8*tap+2*k+1}]"
                    if tap == 0: t(f"v_pk_mul_f32 {d}, {a_}, {b_}")
                    else: t(f"v_pk_fma_f32 {d}, {a_}, {b_}, {d}")
                pload(1)
    n = W.need('vm', ['PUB'])
    t(f"s_waitcnt vmcnt({n}) lgkmcnt(0)")
    t("s_barrier")
    atomic("K2_NOATOM")
    t("v_and_b32 v212, 31, v208")
    t("v_lshrrev_b32 v213, 2, v212")
    t("v_and_b32 v214, 3, v212")
    t("v_and_b32 v215, 1, v213"); t("v_lshl_or_b32 v215, v215, 2, v214")
    t("v_lshrrev_b32 v216, 5, v208"); t("s_lshl_b32 s60, s48, 1"); t("v_add_u32 v216, s60, v216")
    t("v_lshrrev_b32 v217, 2, v216")
    t("v_and_b32 v216, 3, v216"); t("v_lshlrev_b32 v216, 2, v216")
    t("v_lshl_add_u32 v216, v214, 4, v216")
    t("v_lshl_add_u32 v213, v213, 1, v217")
    t("v_lshlrev_b32 v213, 10, v213"); t(f"v_add_u32 v213, {ACT + 16*1024}, v213")
    k0 = -2.0*1.4426950408889634*0.7978845608028654
    t(f"v_mov_b32 v88, {fb(k0)}"); t(f"v_mov_b32 v90, {fb(k0*0.044715)}"); t("v_mov_b32 v92, 1.0")
    for i in range(4):
        g = GT + 8*(i % 2)
        for k in range(4):
            t(f"v_lshlrev_b32 v{g+2*k}, 16, v{UR+4*i+k}")
            t(f"v_and_b32 v{g+2*k+1}, 0xffff0000, v{UR+4*i+k}")
        tmp = [96+2*k for k in range(4)]
        X = lambda k: f"v[{g+2*k}:{g+2*k+1}]"; Tt = lambda k: f"v[{tmp[k]}:{tmp[k]+1}]"
        for k in range(4): t(f"v_pk_mul_f32 {Tt(k)}, {X(k)}, {X(k)}")
        for k in range(4): t(f"v_pk_fma_f32 {Tt(k)}, {Tt(k)}, v[90:91], v[88:89] op_sel_hi:[1,0,0]")
        pload(1)
        for k in range(4): t(f"v_pk_mul_f32 {Tt(k)}, {Tt(k)}, {X(k)}")
        for k in range(4): t(f"v_exp_f32 v{tmp[k]}, v{tmp[k]}"); t(f"v_exp_f32 v{tmp[k]+1}, v{tmp[k]+1}")
        pload(1)
        for k in range(4): t(f"v_pk_add_f32 {Tt(k)}, {Tt(k)}, v[92:93] op_sel_hi:[1,0]")
        for k in range(4): t(f"v_rcp_f32 v{tmp[k]}, v{tmp[k]}"); t(f"v_rcp_f32 v{tmp[k]+1}, v{tmp[k]+1}")
        pload(1)
        for k in range(4): t(f"v_pk_mul_f32 {X(k)}, {X(k)}, {Tt(k)}")
        for k in range(4):
            t(f"v_pk_mul_f32 v[{g+2*k}:{g+2*k+1}], v[{g+2*k}:{g+2*k+1}], v[{CV+8*i+2*k}:{CV+8*i+2*k+1}]")
        for k in range(4):
            t(f"v_cvt_pk_bf16_f32 v{GR+4*i+k}, v{g+2*k}, v{g+2*k+1}")
        t(f"v_add_u32 v218, {i}, v216")
        t("v_xor_b32 v218, v218, v215")
        t("v_lshl_add_u32 v218, v218, 4, v213")
        t(f"ds_write_b128 v218, {vr(GR+4*i,4)}")
        pload(1)
    pload(100)
    t("v_lshlrev_b32 v212, 4, v210"); t("v_xor_b32 v212, v247, v212"); t("v_xor_b32 v213, 64, v212")
    t("s_waitcnt lgkmcnt(0)")
    t("s_barrier")
    stamp(3)
    ACC = 96
    RB = [216, 220, 224, 228]
    def gemm(part, lst=None):
        Wl = Waiter()
        evs = []
        for m in range(8):
            for tt in range(2):
                evs.append((8*(m-1) + 4*tt, 1, 'rd', m, tt))
            for a in range(4):
                for tt in range(2): evs.append((8*m + 2*a + tt, 0, 'mf', m, a, tt))
        evs.sort(key=lambda x: (x[0], x[1]))
        for x in evs:
            if x[2] == 'rd':
                m, tt = x[3], x[4]
                ring = RB[(m*2+tt) % 4]
                if part == 1: t(f"ds_read_b128 {vr(ring,4)}, v{212+(m&1)} offset:{ACT + ((8+m)*2+tt)*1024}")
                else: t(f"ds_read_b128 {vr(ring,4)}, v247 offset:{ACT + (m*2+tt)*1024}")
                Wl.issue('lgkm', (m, tt))
            else:
                m, a, tt = x[3], x[4], x[5]
                ring = RB[(m*2+tt) % 4]
                n = Wl.need('lgkm', [(m, tt)])
                nv = W.need('vm', [('W2' if part == 1 else 'W1', m, a)])
                if nv is not None and o.get('atomslack', True): pass
                ws_ = ([f"vmcnt({nv})"] if nv is not None else []) + ([f"lgkmcnt({n})"] if n is not None else [])
                if ws_: t("s_waitcnt " + ' '.join(ws_))
                acc = vr(ACC + (a*2+tt)*4, 4)
                c = '0' if (part == 1 and m == 0) else acc
                wreg = ar((a*8+m)*4, 4) if part == 1 else ar(128+(a*8+m)*4, 4)
                t(f"{M16} {acc}, {wreg}, {vr(ring,4)}, {c}")
                if lst is not None and tt == 1 and o.get('w1in', 1): pload(1, lst)
    t("s_cmp_eq_u32 s48, 0")
    t("s_cbranch_scc0 K2_POLLD")
    t("s_lshl_b32 s60, s65, 2")
    t("K2_POLL:")
    t("buffer_load_dword v214, off, s[44:47], s60 sc1")
    t("s_waitcnt vmcnt(0)")
    t("v_readfirstlane_b32 s61, v214")
    t("s_nop 3")
    t("s_and_b32 s61, s61, 0xff")
    t("s_cmp_ge_u32 s61, 4")
    t("s_cbranch_scc1 K2_POLLD")
    t("s_sleep 2")
    t("s_branch K2_POLL")
    t("K2_POLLD:")
    t("s_barrier")
    stamp(4)
    PR = 0; MLR = 64
    t("v_lshlrev_b32 v215, 3, v209")
    for k in range(1, 4):
        t(f"s_add_u32 s60, s53, {k}"); t("s_and_b32 s60, s60, 3")
        t("s_lshl_b32 s61, s65, 2"); t("s_add_u32 s61, s61, s53"); t("s_lshl_b32 s61, s61, 2"); t("s_add_u32 s61, s61, s60")
        t(f"s_lshl_b32 s{63+0}, s61, 8") if False else None
        t(f"s_lshl_b32 s{70+0}, s61, 8") if False else None
        t(f"s_mov_b32 s{56+k}, s61")
    for k in range(1, 4):
        t(f"s_lshl_b32 s60, s{56+k}, 8")
        for tt in range(2):
            t(f"buffer_load_dwordx2 {vr(MLR+(k*2+tt)*2,2)}, v215, s[20:23], s60 offen offset:{128*tt} sc1"); W.issue('vm', ('ML', k, tt))
    for k in range(1, 4):
        t(f"s_lshl_b32 s61, s{56+k}, 14"); t("s_lshl_b32 s60, s48, 12"); t("s_add_u32 s61, s61, s60")
        for ff in range(4):
            t(f"buffer_load_dwordx4 {vr(PR+((k-1)*4+ff)*4,4)}, v247, s[16:19], s61 offen offset:{ff*1024} sc1"); W.issue('vm', ('PP', k, ff))
    gemm(1)
    stamp(5)
    t(f"v_add_u32 v216, {OWNML}, v215")
    for tt in range(2): t(f"ds_read_b64 {vr(MLR+tt*2,2)}, v216 offset:{128*tt}")
    t("s_lshl_b32 s60, s48, 12"); t(f"s_add_u32 s60, s60, {OWN}"); t("v_add_u32 v216, s60, v247")
    for ff in range(4): t(f"ds_read_b128 {vr(48+4*ff,4)}, v216 offset:{ff*1024}")
    n = W.need('vm', [('ML', 3, 1)])
    t(f"s_waitcnt vmcnt({n}) lgkmcnt(0)")
    CF = 80
    for tt in range(2):
        for k in range(4): t(f"v_log_f32 v{128+k}, v{MLR+(k*2+tt)*2+1}")
        t("s_nop 0")
        for k in range(4): t(f"v_add_f32 v{128+k}, v{128+k}, v{MLR+(k*2+tt)*2}")
        t("v_max_f32 v132, v128, v129"); t("v_max3_f32 v132, v132, v130, v131")
        for k in range(4): t(f"v_sub_f32 v{128+k}, v{128+k}, v132")
        for k in range(4): t(f"v_exp_f32 v{128+k}, v{128+k}")
        for k in range(4): t(f"v_sub_f32 v{CF+2*(k*2+tt)}, v{MLR+(k*2+tt)*2}, v132")
        t("v_add_f32 v128, v128, v129"); t("v_add_f32 v130, v130, v131")
        for k in range(4): t(f"v_exp_f32 v{CF+2*(k*2+tt)}, v{CF+2*(k*2+tt)}")
        t("v_add_f32 v128, v128, v130")
        t("v_rcp_f32 v128, v128")
        t("s_nop 0")
        for k in range(4): t(f"v_mul_f32 v{CF+2*(k*2+tt)}, v{CF+2*(k*2+tt)}, v128")
    MA = 128; GT2 = 160
    for k in range(4):
        for ff in range(4):
            tt = ff & 1
            src = 48 + 4*ff if k == 0 else PR + ((k-1)*4+ff)*4
            if k > 0:
                n = W.need('vm', [('PP', k, ff)])
                if n is not None: t(f"s_waitcnt vmcnt({n})")
            for q in range(4):
                g = GT2 + 2*((ff*4+q) % 8)
                t(f"v_lshlrev_b32 v{g}, 16, v{src+q}")
                t(f"v_and_b32 v{g+1}, 0xffff0000, v{src+q}")
                d = f"v[{MA+(ff*4+q)*2}:{MA+(ff*4+q)*2+1}]"
                c = f"v[{CF+2*(k*2+tt)}:{CF+2*(k*2+tt)+1}]"
                if k == 0: t(f"v_pk_mul_f32 {d}, v[{g}:{g+1}], {c} op_sel_hi:[1,0]")
                else: t(f"v_pk_fma_f32 {d}, v[{g}:{g+1}], {c}, {d} op_sel_hi:[1,0,1]")
    t("s_lshl_b32 s60, s48, 12"); t(f"s_add_u32 s60, s60, {ACT}"); t("v_add_u32 v216, s60, v247")
    for ff in range(4):
        for q in range(4): t(f"v_cvt_pk_bf16_f32 v{ff*4+q}, v{MA+(ff*4+q)*2}, v{MA+(ff*4+q)*2+1}")
        t(f"ds_write_b128 v216, {vr(ff*4,4)} offset:{ff*1024}")
    t("s_waitcnt lgkmcnt(0)")
    t("s_barrier")
    stamp(6)
    gemm(0)
    nv = W.need('vm', [('X', 3, 1)])
    if nv is not None: t(f"s_waitcnt vmcnt({nv})")
    t("s_nop 7")
    for a in range(4):
        for tt in range(2):
            acc = ACC + (a*2+tt)*4; xr = 176 + (a*2+tt)*2
            for q in range(2):
                g = 128 + 4*((a*2+tt) % 4) + 2*q
                t(f"v_lshlrev_b32 v{g}, 16, v{xr+q}"); t(f"v_and_b32 v{g+1}, 0xffff0000, v{xr+q}")
                t(f"v_pk_add_f32 v[{acc+2*q}:{acc+2*q+1}], v[{acc+2*q}:{acc+2*q+1}], v[{g}:{g+1}]")
            d = 2*(a*2+tt)
            t(f"v_cvt_pk_bf16_f32 v{d}, v{acc}, v{acc+1}"); t(f"v_cvt_pk_bf16_f32 v{d+1}, v{acc+2}, v{acc+3}")
            t(f"buffer_store_dwordx2 v[{d}:{d+1}], v{242+tt}, s[40:43], 0 offen offset:{32*a}{' '+o['ost'] if o.get('ost') else ''}")
    t("K2_FIN:")
    if o['stamp']:
        t("s_waitcnt vmcnt(0)")
        t("s_memtime s[94:95]"); t("s_memrealtime s[96:97]")
        t("s_waitcnt lgkmcnt(0)")
        t("s_cmp_eq_u32 s48, 0"); t("s_cbranch_scc0 K2_END")
        t("s_add_u32 s68, s4, 0x8000000"); t("s_addc_u32 s69, s5, 0"); t("s_mov_b32 s70, 0x100000"); t("s_mov_b32 s71, 0x20000")
        regs = [72, 76, 98, 94, 74, 78, 80, 96, 82, 84, 86, 88, 90, 92, 101, 100]
        for k, r in enumerate(regs): t(f"v_mov_b32 v{128+k}, s{r}")
        t("s_lshl_b32 s60, s2, 6"); t("v_mov_b32 v150, s60")
        for k in range(4): t(f"buffer_store_dwordx4 v[{128+4*k}:{131+4*k}], v150, s[68:71], 0 offen offset:{16*k}")
    return hazard.autofix(T), resume
```

```python
import sys, json
from gen_common import *
import gen_k1, gen_k2f

HDR = """; Branchformer block (LN -> single-head attention || cgMLP conv branch -> merge + residual), gfx950.
; generated by a python script (hand-written generator)"""

def build(opts, path):
    text = []; descs = []
    hdr = HDR.split('\n')
    which = opts.get('which', ['k1', 'k2'])
    if 'k1' in which:
        L, d, errs = gen_k1.gen_k1(opts.get('k1'))
        text += L; descs += d
        hdr.append("; @launch kernel=prep_kernel grid=(256,1,1) block=(256,1,1) lds=163840")
    if 'k2' in which:
        L, d, errs = gen_k2f.gen_k2f(opts.get('k2'))
        for x in errs[:30]: print('HAZARD', x)
        if errs: print(len(errs), 'hazards')
        text += L; descs += d
        hdr.append("; @launch kernel=attn_kernel grid=(256,1,1) block=(256,1,1) lds=163840")
    if opts.get('probe'):
        L = kernel_header('probe_kernel') + ["s_load_dwordx2 s[4:5], s[0:1], 88", "s_memrealtime s[6:7]", "s_waitcnt lgkmcnt(0)",
            "s_add_u32 s8, s4, 0x8300000", "s_addc_u32 s9, s5, 0", "s_mov_b32 s10, 0x1000", "s_mov_b32 s11, 0x20000",
            "v_mov_b32 v1, s6", "v_mov_b32 v2, 0", "s_cmp_eq_u32 s2, 0", "s_cbranch_scc0 PR_END",
            "buffer_store_dword v1, v2, s[8:11], 0 offen", "PR_END:", "s_endpgm"]
        text += L; descs += kernel_desc('probe_kernel', 8, 8, 16)
        hdr.append("; @launch kernel=probe_kernel grid=(1,1,1) block=(64,1,1) lds=0")
    s = hdr + ['.amdgcn_target "amdgcn-amd-amdhsa--gfx950"', '.text'] + text + ['.section .rodata,"a"'] + descs
    open(path, 'w').write('\n'.join(s) + '\n')

if __name__ == '__main__':
    opts = json.loads(sys.argv[2]) if len(sys.argv) > 2 else {}
    build(opts, sys.argv[1])
```

```python
from gen_common import *
from tl import TL
import hazard, struct
SLOT = 16384
EX = 131072
fb = lambda x: hex(struct.unpack('<I', struct.pack('<f', x))[0])

def gen_k1(opt=None):
    o = dict(D=6, stamp=False, st='', npre=2, nln=4)
    if opt: o.update(opt)
    D = o['D']; ST = (' ' + o['st']) if o['st'] else ''
    FUSED = o.get('fused')
    name = FUSED if FUSED else 'prep_kernel'
    L = []; e = L.append
    B = 0; ACC = [64, 128]; KA = 192; KA2 = 200; VN = 208; VN2 = 216; DV = 224; DS = 228; XB = 200
    aR = 0; R = 8
    def stamp(T, k):
        if o['stamp']: T.append(f"s_memrealtime s[{72+2*k}:{73+2*k}]")
    L += kernel_header(name)
    e("s_cmp_ge_u32 s2, 256")
    e("s_cbranch_scc1 K2_END" if FUSED else "s_cbranch_scc1 K1_END")
    e("s_load_dwordx16 s[36:51], s[0:1], 0")
    e("s_load_dwordx2 s[52:53], s[0:1], 64")
    e("s_load_dwordx2 s[54:55], s[0:1], 88")
    if FUSED: e("s_load_dwordx2 s[58:59], s[0:1], 80")
    if o['stamp']:
        e("s_memtime s[60:61]"); e("s_memrealtime s[62:63]")
    e("v_lshrrev_b32 v232, 6, v0")
    e("v_and_b32 v240, 63, v0")
    e("v_lshrrev_b32 v241, 5, v240")
    e("v_and_b32 v242, 31, v240")
    e("v_readfirstlane_b32 s28, v232")
    e("s_and_b32 s29, s28, 1")
    e("s_lshr_b32 s30, s28, 1")
    e("s_lshl_b32 s31, s28, 12")
    e("s_sub_u32 s35, s2, 125"); e("s_cmp_lt_u32 s2, 125"); e("s_cselect_b32 s35, s2, s35")
    e("s_lshl_b32 s33, s28, 1")
    for k in range(4):
        e(f"v_add_u32 v234, {2*k}, v241"); e("v_and_b32 v234, 3, v234"); e("v_lshlrev_b32 v234, 2, v234")
        e(f"s_add_u32 s34, s33, {k>>1}"); e("s_and_b32 s34, s34, 3")
        e("v_or_b32 v234, s34, v234"); e("v_xor_b32 v234, v242, v234"); e("v_lshlrev_b32 v234, 4, v234")
        e("v_lshl_add_u32 v234, v241, 9, v234")
        e(f"v_add_u32 v{DS+k}, s31, v234")
    e("s_waitcnt lgkmcnt(0)")
    if FUSED:
        e("s_mov_b32 s4, s58"); e("s_mov_b32 s5, s59"); e("s_mov_b32 s6, 256"); e("s_mov_b32 s7, 0x20000")
        e("s_or_b32 s33, s2, s28"); e("s_cmp_eq_u32 s33, 0"); e("s_cbranch_scc0 K1_NOTAG")
        e("s_memrealtime s[56:57]"); e("s_waitcnt lgkmcnt(0)"); e("s_or_b32 s56, s56, 1")
        e("v_mov_b32 v234, s56")
        e("buffer_store_dword v234, off, s[4:7], 0 sc1")
        e("K1_NOTAG:")
    e("s_cmp_lt_u32 s2, 250"); e("s_cbranch_scc0 K1_NOX")
    srd(e, 16, 's36', 's37', 0, 8000*512)
    e("s_lshl_b32 s32, s35, 15")
    for half in range(2):
        e(f"s_add_u32 m0, s31, {EX + half*SLOT:#x}")
        if half: e("s_add_u32 s32, s32, 16384")
        else: e("s_nop 0")
        for k in range(4):
            e(f"buffer_load_dwordx4 v{DS+k}, s[16:19], s32 offen offset:{k*1024} lds")
    if o.get('pf', True):
        e("s_and_b32 s33, s2, 7"); e("s_cmp_lt_u32 s33, 2"); e("s_cbranch_scc1 K1_NOPF")
        e("s_lshr_b32 s34, s2, 3")
        e("s_cmp_ge_u32 s33, 6"); e("s_cbranch_scc1 K1_PF2")
        e("s_cmp_lt_u32 s34, 16"); e("s_cselect_b32 s8, s44, s42"); e("s_cselect_b32 s9, s45, s43")
        e("s_and_b32 s34, s34, 15"); e("s_lshl_b32 s34, s34, 13")
        e("s_branch K1_PF3")
        e("K1_PF2:")
        e("s_add_u32 s56, s52, 131072"); e("s_addc_u32 s57, s53, 0")
        e("s_cmp_lt_u32 s34, 16"); e("s_cselect_b32 s8, s50, s56"); e("s_cselect_b32 s9, s51, s57")
        e("s_and_b32 s34, s34, 15"); e("s_lshl_b32 s34, s34, 13")
        e("K1_PF3:")
        e("s_mov_b32 s10, 131072"); e("s_mov_b32 s11, 0x20000")
        e("v_lshlrev_b32 v232, 4, v240"); e("s_lshl_b32 s33, s28, 11"); e("s_add_u32 s34, s34, s33")
        e("buffer_load_dwordx4 v[244:247], v232, s[8:11], s34 offen")
        e("buffer_load_dwordx4 v[248:251], v232, s[8:11], s34 offen offset:1024")
        e("K1_NOPF:")
    e("K1_NOX:")
    e("s_cmp_lt_u32 s2, 125"); e("s_cbranch_scc1 K1_Q")
    e("s_cmp_lt_u32 s2, 250"); e("s_cbranch_scc1 K1_UG")
    e("s_cmp_lt_u32 s2, 254"); e("s_cbranch_scc1 K1_W1")
    e("s_branch K1_W2")

    def k_addr(T, dst, dst2, base_lines):
        t = T.append
        t("v_and_b32 v234, 3, v242"); t("v_lshlrev_b32 v234, 2, v234"); t("v_bfe_u32 v235, v242, 2, 2")
        t("v_or_b32 v234, v234, v235"); t("v_lshlrev_b32 v236, 9, v242")
        for x in base_lines: t(x)
        t("v_add_u32 v236, s33, v236")
        for jj in range(8):
            t(f"v_add_u32 v235, {2*jj}, v241"); t("v_xor_b32 v235, v235, v234")
            t(f"v_lshl_add_u32 v{dst+jj}, v235, 4, v236")
            if dst2 is not None: t(f"v_add_u32 v{dst2+jj}, 0x10000, v{dst+jj}")
    def ka_setup(T): k_addr(T, KA, KA2, ["s_lshl_b32 s33, s30, 14"])
    def xb_setup(T): k_addr(T, XB, None, ["s_lshl_b32 s33, s29, 14", f"s_add_u32 s33, s33, {EX}", "s_lshl_b32 s34, s30, 8", "s_add_u32 s33, s33, s34"])
    def vn_setup(T):
        t = T.append
        t("v_bfe_u32 v234, v240, 4, 1"); t("v_bfe_u32 v235, v240, 2, 2"); t("v_bfe_u32 v236, v240, 1, 1")
        t("v_lshl_add_u32 v236, v234, 1, v236"); t("v_and_b32 v237, 1, v240"); t("v_lshlrev_b32 v237, 3, v237")
        t("v_lshl_add_u32 v238, v241, 3, v235"); t("v_lshl_add_u32 v237, v238, 9, v237")
        t("s_lshl_b32 s33, s30, 8"); t("v_add_u32 v237, s33, v237")
        for a in range(4):
            for u in range(2):
                t(f"v_lshl_add_u32 v238, v241, 1, {u}"); t("v_lshl_or_b32 v238, v235, 2, v238")
                t(f"v_add_u32 v239, {4*a}, v236"); t("v_xor_b32 v238, v238, v239")
                t(f"v_lshl_add_u32 v{VN+a*2+u}, v238, 4, v237")
                if u: t(f"v_add_u32 v{VN+a*2+u}, {4*512}, v{VN+a*2+u}")
                t(f"v_add_u32 v{VN2+a*2+u}, 0x10000, v{VN+a*2+u}")
    def dma_voff(T, stride1024):
        t = T.append
        if not stride1024:
            for k in range(4): t(f"v_mov_b32 v{DV+k}, v{DS+k}")
            return
        t("s_lshl_b32 s33, s28, 1")
        for k in range(4):
            t(f"v_add_u32 v234, {2*k}, v241"); t("v_and_b32 v234, 3, v234"); t("v_lshlrev_b32 v234, 2, v234")
            t(f"s_add_u32 s34, s33, {k>>1}"); t("s_and_b32 s34, s34, 3")
            t("v_or_b32 v234, s34, v234"); t("v_xor_b32 v234, v242, v234"); t("v_lshlrev_b32 v234, 4, v234")
            t("v_lshl_add_u32 v234, v241, 10, v234"); t("s_lshl_b32 s34, s28, 13"); t(f"s_add_u32 s34, s34, {k*1024}")
            t(f"v_add_u32 v{DV+k}, s34, v234")
    def tile_dma(n, srdn, soff):
        r = [(f"s_add_u32 m0, s31, {(n%8)*SLOT:#x}", False), (f"s_mov_b32 s32, {soff:#x}", False)]
        for k in range(4):
            r.append((f"buffer_load_dwordx4 v{DV+k}, s[{srdn}:{srdn+3}], s32 offen offset:{k*1024} lds", True))
        return r
    def emit_tile(out, W, n, srdn, soff):
        for txt, vm in tile_dma(n, srdn, soff):
            out.append(txt)
            if vm: W.issue('vm', ('T', n))
    def out_rows(T, W, srdn, tag, OB):
        t = T.append
        t("v_lshlrev_b32 v232, 4, v240"); t(f"s_add_u32 s33, s31, {EX}"); t("v_add_u32 v232, s33, v232")
        for half in range(2):
            for k in range(4):
                t(f"ds_read_b128 {vr(OB+(half*4+k)*4,4)}, v232 offset:{half*SLOT + k*1024}")
        t("s_lshl_b32 s32, s35, 15")
        for half in range(2):
            if half: t("s_add_u32 s32, s32, 16384")
            for k in range(4):
                t(f"s_waitcnt lgkmcnt({7 - (half*4+k)})")
                t(f"buffer_store_dwordx4 {vr(OB+(half*4+k)*4,4)}, v{DS+k}, s[{srdn}:{srdn+3}], s32 offen offset:{k*1024}{ST}")
                W.issue('vm', (tag, half, k))
        W.drain('lgkm')
    def ln(out, W, tiles):
        nw = W.need('vm', [('X', 7)])
        out.append(f"s_waitcnt vmcnt({nw})")
        out.append("s_barrier")
        stamp(out, 0)
        for s in range(8):
            out.append(f"ds_read_b128 {vr(64+4*s,4)}, v{XB+s}")
        body = []; b = body.append
        b("s_mov_b32 s34, 0x3f803f80")
        for k in range(4): b(f"v_mov_b32 v{232+k}, 0")
        for r in range(32):
            if r % 4 == 0: b(f"s_waitcnt lgkmcnt({7 - r//4})")
            b(f"v_dot2_f32_bf16 v{232+(r&1)}, v{64+r}, s34, v{232+(r&1)}")
            b(f"v_dot2_f32_bf16 v{234+(r&1)}, v{64+r}, v{64+r}, v{234+(r&1)}")
        b("s_nop 2")
        b("v_add_f32 v232, v232, v233"); b("v_add_f32 v234, v234, v235")
        b("v_mov_b32 v233, v232"); b("v_mov_b32 v235, v234"); b("s_nop 1")
        b("v_permlane32_swap_b32 v232, v233"); b("v_permlane32_swap_b32 v234, v235"); b("s_nop 1")
        b("v_add_f32 v232, v232, v233"); b("v_add_f32 v233, v234, v235")
        b(f"ds_write_b64 v{XB}, v[232:233]")
        b(f"v_xor_b32 v238, 256, v{XB}")
        b("s_waitcnt lgkmcnt(0)")
        b("s_barrier")
        b("ds_read_b64 v[234:235], v238")
        b("s_waitcnt lgkmcnt(0)")
        b("v_add_f32 v232, v232, v234"); b("v_add_f32 v234, v233, v235")
        b("v_mul_f32 v232, 0x3b800000, v232"); b("v_mul_f32 v234, 0x3b800000, v234")
        b("v_fma_f32 v234, -v232, v232, v234"); b("v_max_f32 v234, 0, v234"); b("v_add_f32 v234, 0x3727c5ac, v234")
        b("v_rsq_f32 v234, v234"); b("s_nop 0")
        b("v_mul_f32 v236, v232, v234"); b("v_sub_f32 v236, 0, v236")
        b("s_barrier")
        for r in range(32):
            t = 244 + 2*(r % 4)
            b(f"v_lshlrev_b32 v{t}, 16, v{64+r}")
            b(f"v_and_b32 v{t+1}, 0xffff0000, v{64+r}")
            b(f"v_pk_fma_f32 v[{t}:{t+1}], v[{t}:{t+1}], v[234:235], v[236:237] op_sel_hi:[1,0,0]")
            b(f"v_cvt_pk_bf16_f32 v{64+r}, v{t}, v{t+1}")
            if r % 4 == 3: b(f"ds_write_b128 v{XB+r//4}, {vr(64+r-3,4)}")
        b("s_waitcnt lgkmcnt(0)")
        b("s_barrier")
        b("s_lshl_b32 s33, s30, 8")
        for jj in range(8): b(f"v_subrev_u32 v{244+jj}, s33, v{XB+jj}")
        for s in range(16):
            b(f"ds_read_b128 {vr(B+4*s,4)}, v{244+(s&7)} offset:{(s>>3)*256}")
        flat = []
        for (n, sn, so) in tiles:
            tl_ = [(txt, vm, n) for txt, vm in tile_dma(n, sn, so)]
            flat.append(tl_[:3])
            for x in tl_[3:]: flat.append([x])
        gap = max(1, len(body) // (len(flat) + 1)) if flat else 1
        fi = 0
        for i, ins in enumerate(body):
            out.append(ins)
            if fi < len(flat) and i % gap == gap - 1:
                for txt, vm, n in flat[fi]:
                    out.append(txt)
                    if vm: W.issue('vm', ('T', n))
                fi += 1
        while fi < len(flat):
            for txt, vm, n in flat[fi]:
                out.append(txt)
                if vm: W.issue('vm', ('T', n))
            fi += 1
        out.append("s_waitcnt lgkmcnt(0)")
        W.drain('lgkm')
    def phase(W, p, kind, later, fill=None, f0=3):
        tl = TL(W)
        acc = ACC[p]
        cnt = [0]
        for a in range(4):
            sig = 4*p + a
            tb = 16*a - D - 1
            tl.add(tb, 'bar', needvm=[('T', 2*sig), ('T', 2*sig+1)], prio=1)
            k = 0
            for (n, sn, so) in later.get(sig, []):
                for txt, vm in tile_dma(n, sn, so):
                    if vm:
                        tl.add(tb + 1 + k, 'vm', txt, tag=('T', n), prio=7); k += 1
                    else:
                        tl.add(tb + 1 + k, 'txt', txt, prio=6)
            for m in range(16):
                tm = 16*a + m
                ri = cnt[0] % R; cnt[0] += 1
                ring = aR + 4*ri
                if kind == 'X':
                    j = m; slot = 2*a
                    base = (KA if slot < 4 else KA2) + (j & 7)
                    off = (slot % 4)*SLOT + (j >> 3)*256
                    tag = (p, a, m)
                    tl.add(tm - D, 'lds', f"ds_read_b128 {ar(ring,4)}, v{base} offset:{off}", tag=tag, prio=2)
                    c = vr(acc+16*a,16) if j else '0'
                    tl.add(tm, 'mfma', f"v_mfma_f32_32x32x16_bf16 {vr(acc+16*a,16)}, {ar(ring,4)}, {vr(B+4*j,4)}, {c}", need=[tag], prio=0)
                else:
                    tt, s, aa = m >> 3, (m >> 2) & 1, m & 3
                    tau = 2*a + tt; slot = tau
                    tags = []
                    for u in range(2):
                        base = (VN if slot < 4 else VN2) + aa*2 + u
                        off = (slot % 4)*SLOT + 16*s*512
                        tag = (p, a, m, u); tags.append(tag)
                        tl.add(tm - D, 'lds', f"ds_read_b64_tr_b16 {ar(ring+2*u,2)}, v{base} offset:{off}", tag=tag, prio=2)
                    c = vr(acc+16*aa,16) if (tau or s) else '0'
                    tl.add(tm, 'mfma', f"v_mfma_f32_32x32x16_bf16 {vr(acc+16*aa,16)}, {ar(ring,4)}, {vr(B+4*(2*tau+s),4)}, {c}", need=tags, prio=0)
        if fill:
            n = len(fill)
            for i, ins in enumerate(fill):
                tl.add(f0 + (i*(64-f0))/n, 'txt', ins, prio=4)
        return tl
    def pack_swap(out, src, dst, swap=True, scale=None):
        if scale:
            for k in range(8):
                out.append(f"v_pk_mul_f32 v[{src+2*k}:{src+2*k+1}], v[{src+2*k}:{src+2*k+1}], {scale} op_sel_hi:[1,0]")
        for k in range(8):
            out.append(f"v_cvt_pk_bf16_f32 v{dst+k}, v{src+2*k}, v{src+2*k+1}")
        if swap:
            out.append("s_nop 1")
            for b in (0, 4):
                out.append(f"v_permlane32_swap_b32 v{dst+b}, v{dst+b+2}")
                out.append(f"v_permlane32_swap_b32 v{dst+b+1}, v{dst+b+3}")
    def exchange(out, W, acc, kind):
        out.append("s_nop 15")
        out.append("v_lshlrev_b32 v232, 4, v240")
        out.append(f"s_lshl_b32 s33, s29, 14"); out.append(f"s_add_u32 s33, s33, {EX}")
        out.append("v_add_u32 v233, s33, v232")
        out.append(f"s_lshl_b32 s34, s30, {13 if kind=='Y' else 11}")
        out.append("v_add_u32 v232, s34, v233")
        for a in range(4):
            d = 244 if a % 2 == 0 else 0
            pack_swap(out, acc+16*a, d)
            for s in range(2):
                f = (2*a + s) if kind == 'Y' else (4*a + s)
                out.append(f"ds_write_b128 v232, {vr(d+4*s,4)} offset:{f*1024}")
        out.append("s_waitcnt lgkmcnt(0)")
        out.append("s_barrier")
        for f in range(16):
            out.append(f"ds_read_b128 {vr(B+4*f,4)}, v233 offset:{f*1024}")
        out.append("s_waitcnt lgkmcnt(0)")
        W.drain('lgkm')
    def narrow(out, W, rowbase_bytes, slice_sreg):
        for x in ["v_lshrrev_b32 v232, 3, v240", "v_lshlrev_b32 v232, 9, v232", "v_and_b32 v233, 7, v240",
                  "v_lshl_add_u32 v232, v233, 4, v232", f"s_lshl_b32 s33, {slice_sreg}, 7", "s_lshl_b32 s34, s28, 15",
                  "s_add_u32 s33, s33, s34", f"s_add_u32 s33, s33, {rowbase_bytes}", "v_add_u32 v232, s33, v232",
                  "s_lshl_b32 s34, s28, 13", f"s_add_u32 s34, s34, {EX}"]: out.append(x)
        for i in range(8):
            out.append(f"s_add_u32 m0, s34, {i*1024}")
            out.append(f"s_mov_b32 s32, {i*4096}")
            out.append(f"buffer_load_dwordx4 v232, s[16:19], s32 offen lds")
            W.issue('vm', ('N', i))
    def narrow_read(out, W):
        n = W.need('vm', [('N', 7)])
        out.append(f"s_waitcnt vmcnt({n})")
        out.append("s_barrier")
        for x in ["v_bfe_u32 v232, v240, 2, 2", "v_lshl_add_u32 v232, v241, 3, v232", "v_lshlrev_b32 v232, 7, v232",
                  "v_bfe_u32 v233, v240, 4, 1", "v_lshl_add_u32 v232, v233, 5, v232", "v_and_b32 v233, 3, v240",
                  "v_lshl_add_u32 v232, v233, 3, v232", "s_lshl_b32 s33, s29, 6", f"s_add_u32 s33, s33, {EX}",
                  "v_add_u32 v232, s33, v232"]: out.append(x)
        for s in range(16):
            for u in range(2):
                out.append(f"ds_read_b64_tr_b16 {vr(B+4*s+2*u,2)}, v232 offset:{s*2048+u*512}")
            if s % 4 == 3: out.append("s_waitcnt lgkmcnt(0)")
        W.drain('lgkm')
    def finish(task_lines, label):
        fixed = hazard.autofix(task_lines)
        e(f"{label}:")
        L.extend(fixed)
        e("s_branch K1_FIN")
    def cap(fn):
        buf = []; fn(buf.append); return buf
    std_later = lambda sn: {2: [(8, sn, 0), (9, sn, SLOT)], 3: [(10, sn, 2*SLOT), (11, sn, 3*SLOT)], 4: [(12, sn, 4*SLOT), (13, sn, 5*SLOT)], 5: [(14, sn, 6*SLOT), (15, sn, 7*SLOT)]}
    npre = o['npre']

    W = Waiter(); T = []
    for s in range(8): W.issue('vm', ('X', s))
    dma_voff(T, False)
    T += cap(lambda e: (srd(e, 8, 's38', 's39', 0, 131072), srd(e, 12, 's40', 's41', 0, 131072),
                        srd(e, 20, 's54', 's55', XA_OFF, 8000*512), srd(e, 24, 's54', 's55', QF_OFF, 500*8192)))
    emit = [(n, 8, n*SLOT) for n in range(8)]
    for (n, sn, so) in emit[:npre]: emit_tile(T, W, n, sn, so)
    xb_setup(T); vn_setup(T)
    ln(T, W, emit[npre:o['nln']])
    stamp(T, 1)
    ka_setup(T)
    stamp(T, 2)
    T.append("v_lshlrev_b32 v232, 4, v240"); T.append(f"s_add_u32 s33, s31, {EX}"); T.append("v_add_u32 v232, s33, v232")
    for half in range(2):
        for k in range(4):
            T.append(f"ds_read_b128 {vr(ACC[1]+(half*4+k)*4,4)}, v232 offset:{half*SLOT + k*1024}")
    T.append("s_waitcnt lgkmcnt(0)")
    T.append("s_lshl_b32 s34, s35, 15"); T.append("s_add_u32 s56, s34, 16384")
    xfill = []
    for half in range(2):
        for k in range(4):
            xfill.append((f"buffer_store_dwordx4 {vr(ACC[1]+(half*4+k)*4,4)}, v{DS+k}, s[20:23], {'s56' if half else 's34'} offen offset:{k*1024}{ST}", ('XS', half, k)))
    later = std_later(12)
    rest = emit[o['nln']:]
    if rest:
        later[0] = rest[:2]; later[1] = rest[2:4]
        if later[1] == [] : del later[1]
    tl0 = phase(W, 0, 'Y', later)
    for i, (txt, tag) in enumerate(xfill): tl0.add(1 + 2*i, 'vm', txt, tag=tag, prio=7)
    T += tl0.linearize()
    stamp(T, 3)
    exchange(T, W, ACC[0], 'Y')
    stamp(T, 4)
    T += phase(W, 1, 'X', later).linearize()
    stamp(T, 5)
    T.append("s_nop 15")
    T.append("v_mov_b32 v236, 0x3db8aa3b")
    T.append("s_lshl_b32 s33, s35, 2"); T.append("s_lshl_b32 s34, s29, 1"); T.append("s_add_u32 s33, s33, s34"); T.append("s_lshl_b32 s33, s33, 13")
    T.append("s_lshl_b32 s34, s30, 10"); T.append("s_add_u32 s33, s33, s34")
    T.append("v_lshrrev_b32 v232, 4, v242"); T.append("v_lshlrev_b32 v232, 13, v232")
    T.append("v_and_b32 v233, 15, v242"); T.append("v_lshl_add_u32 v233, v241, 4, v233")
    T.append("v_lshl_add_u32 v232, v233, 4, v232"); T.append("v_add_u32 v232, s33, v232")
    for a in range(4):
        d = 244 if a % 2 == 0 else 0
        pack_swap(T, ACC[1]+16*a, d, scale="v[236:237]")
        T.append(f"s_mov_b32 s33, {a*2048}")
        for s in range(2):
            T.append(f"buffer_store_dwordx4 {vr(d+4*s,4)}, v232, s[24:27], s33 offen offset:{s*512}{ST}")
    finish(T, "K1_Q")

    W = Waiter(); T = []
    for s in range(8): W.issue('vm', ('X', s))
    dma_voff(T, True)
    T += cap(lambda e: (srd(e, 8, 's46', 's47', 0, 262144),
                        srd(e, 20, 's54', 's55', U_OFF, 8000*512), srd(e, 24, 's54', 's55', G_OFF, 8000*512)))
    emit = [(n, 8, n*32768 + 512) for n in range(8)]
    for (n, sn, so) in emit[:npre]: emit_tile(T, W, n, sn, so)
    xb_setup(T); vn_setup(T)
    ln(T, W, emit[npre:o['nln']])
    stamp(T, 2)
    gl = lambda n: (n, 8, (n-8)*32768)
    later = {2: [gl(8), gl(9)], 3: [gl(10), gl(11)], 4: [gl(12), gl(13)], 5: [gl(14), gl(15)]}
    rest = emit[o['nln']:]
    if rest:
        later[0] = rest[:2]; later[1] = rest[2:4]
    T += phase(W, 0, 'Y', later).linearize()
    stamp(T, 3)
    k0 = -2.0*1.4426950408889634*0.7978845608028654
    T.append(f"v_mov_b32 v232, {fb(k0)}"); T.append(f"v_mov_b32 v234, {fb(k0*0.044715)}"); T.append("v_mov_b32 v236, 1.0")
    for k in range(4): T.append(f"v_mov_b32 v{252+k}, 0")
    def gelu(r):
        t = 244 + 2*((r//2) % 4)
        X = f"v[{r}:{r+1}]"; Tt = f"v[{t}:{t+1}]"
        return [f"v_pk_mul_f32 {Tt}, {X}, {X}",
                f"v_pk_fma_f32 {Tt}, {Tt}, v[234:235], v[232:233] op_sel_hi:[1,0,0]",
                f"v_pk_mul_f32 {Tt}, {Tt}, {X}",
                f"v_exp_f32 v{t}, v{t}", f"v_exp_f32 v{t+1}, v{t+1}",
                f"v_pk_add_f32 {Tt}, {Tt}, v[236:237] op_sel_hi:[1,0]",
                f"v_rcp_f32 v{t}, v{t}", f"v_rcp_f32 v{t+1}, v{t+1}",
                f"v_pk_mul_f32 {X}, {X}, {Tt}",
                f"v_pk_add_f32 v[252:253], v[252:253], {X}",
                f"v_pk_fma_f32 v[254:255], {X}, {X}, v[254:255]"]
    fill = []
    g0 = ACC[0]
    for b in range(g0, g0+64, 8):
        cols = [gelu(b+2*k) for k in range(4)]
        for i in range(11):
            for k in range(4): fill.append(cols[k][i])
    T += phase(W, 1, 'Y', later, fill=fill, f0=4).linearize()
    stamp(T, 5)
    T.append("v_add_f32 v8, v252, v253"); T.append("v_add_f32 v10, v254, v255")
    T.append("v_mov_b32 v9, v8"); T.append("v_mov_b32 v11, v10"); T.append("s_nop 1")
    T.append("v_permlane32_swap_b32 v8, v9"); T.append("v_permlane32_swap_b32 v10, v11"); T.append("s_nop 1")
    T.append("v_add_f32 v8, v8, v9"); T.append("v_add_f32 v9, v10, v11")
    T.append("s_lshl_b32 s33, s29, 1"); T.append("s_add_u32 s33, s33, s30"); T.append("s_lshl_b32 s33, s33, 9")
    T.append("v_lshlrev_b32 v12, 3, v240"); T.append("v_add_u32 v13, s33, v12")
    T.append("s_xor_b32 s33, s33, 512"); T.append("v_add_u32 v14, s33, v12")
    T.append("ds_write_b64 v13, v[8:9]")
    for a in range(4):
        d = 244 if a % 2 == 0 else 16
        pack_swap(T, ACC[1]+16*a, d)
        for s in range(2):
            T.append(f"ds_write_b128 v{XB+2*a+s}, {vr(d+4*s,4)}")
    T.append("s_waitcnt lgkmcnt(0)"); T.append("s_barrier")
    T.append("ds_read_b64 v[10:11], v14")
    W.drain('lgkm')
    T.append("s_waitcnt lgkmcnt(0)")
    out_rows(T, W, 20, 'US', ACC[1])
    stamp(T, 6)
    T.append("v_add_f32 v8, v8, v10"); T.append("v_add_f32 v9, v9, v11")
    T.append("v_mul_f32 v8, 0x3b800000, v8"); T.append("v_mul_f32 v9, 0x3b800000, v9")
    T.append("v_fma_f32 v9, -v8, v8, v9"); T.append("v_max_f32 v9, 0, v9"); T.append("v_add_f32 v9, 0x3727c5ac, v9")
    T.append("v_rsq_f32 v10, v9"); T.append("s_nop 0")
    T.append("v_mul_f32 v12, v8, v10"); T.append("v_sub_f32 v12, 0, v12")
    for a in range(4):
        for k in range(8):
            r = g0 + 16*a + 2*k
            T.append(f"v_pk_fma_f32 v[{r}:{r+1}], v[{r}:{r+1}], v[10:11], v[12:13] op_sel_hi:[1,0,0]")
        pack_swap(T, g0+16*a, 16+8*a)
    T.append("s_barrier")
    for a in range(4):
        for s in range(2):
            T.append(f"ds_write_b128 v{XB+2*a+s}, {vr(16+8*a+4*s,4)}")
    T.append("s_waitcnt lgkmcnt(0)"); T.append("s_barrier")
    out_rows(T, W, 24, 'GS', ACC[0])
    stamp(T, 7)
    finish(T, "K1_UG")

    def wf_store(T, acc, which, slice_sreg):
        T.append(f"s_lshl_b32 s33, {slice_sreg}, 2"); T.append("s_lshl_b32 s34, s29, 1"); T.append("s_add_u32 s33, s33, s34"); T.append("s_lshl_b32 s33, s33, 14")
        T.append("s_lshl_b32 s34, s30, 10"); T.append("s_add_u32 s33, s33, s34")
        if which == 2: T.append("s_add_u32 s33, s33, 8192")
        T.append("v_lshrrev_b32 v232, 4, v242"); T.append("v_lshlrev_b32 v232, 14, v232")
        T.append("v_and_b32 v233, 15, v242"); T.append("v_lshl_add_u32 v233, v241, 4, v233")
        T.append("v_lshl_add_u32 v232, v233, 4, v232"); T.append("v_add_u32 v232, s33, v232")
        for a in range(4):
            d = 244; src = acc + 16*a
            if which == 1:
                for k, r in enumerate((0, 2, 8, 10, 4, 6, 12, 14)):
                    T.append(f"v_cvt_pk_bf16_f32 v{d+k}, v{src+r}, v{src+r+1}")
            else:
                pack_swap(T, src, d)
            T.append(f"s_mov_b32 s33, {a*2048}")
            for s in range(2):
                T.append(f"buffer_store_dwordx4 {vr(d+4*s,4)}, v232, s[24:27], s33 offen offset:{s*512}{ST}")
            T.append("s_nop 1")
    W = Waiter(); T = []
    dma_voff(T, False)
    T.append("s_sub_u32 s35, s2, 250")
    T += cap(lambda e: (srd(e, 16, 's52', 's53', 0, 262144), srd(e, 8, 's44', 's45', 0, 131072), srd(e, 12, 's42', 's43', 0, 131072),
                        srd(e, 24, 's54', 's55', WF_OFF, 262144)))
    narrow(T, W, 0, 's35')
    for n in range(3): emit_tile(T, W, n, 8, n*SLOT)
    ka_setup(T)
    narrow_read(T, W)
    for n in range(3, 8): emit_tile(T, W, n, 8, n*SLOT)
    later = std_later(12)
    T += phase(W, 0, 'X', later).linearize()
    T.append("s_barrier")
    exchange(T, W, ACC[0], 'X')
    T += phase(W, 1, 'X', later).linearize()
    T.append("s_nop 15")
    wf_store(T, ACC[1], 1, 's35')
    finish(T, "K1_W1")

    W = Waiter(); T = []
    if not FUSED: T += cap(lambda e: srd(e, 20, 's54', 's55', FL_OFF, 8192))
    if not FUSED:
        T.append("v_lshlrev_b32 v232, 5, v0")
        for k in range(4): T.append(f"v_mov_b32 v{236+k}, 0")
        T.append("buffer_store_dwordx4 v[236:239], v232, s[20:23], 0 offen sc1")
        T.append("buffer_store_dwordx4 v[236:239], v232, s[20:23], 0 offen offset:16 sc1")
        W.issue('vm', 'Z0'); W.issue('vm', 'Z1')
    dma_voff(T, False)
    T.append("s_sub_u32 s35, s2, 254"); T.append("s_lshl_b32 s35, s35, 1")
    T += cap(lambda e: (srd(e, 16, 's52', 's53', 0, 262144), srd(e, 8, 's50', 's51', 0, 131072),
                        srd(e, 24, 's54', 's55', WF_OFF, 262144)))
    narrow(T, W, 131072, 's35')
    for n in range(3): emit_tile(T, W, n, 8, n*SLOT)
    ka_setup(T)
    narrow_read(T, W)
    for n in range(3, 8): emit_tile(T, W, n, 8, n*SLOT)
    T.append("s_barrier")
    T.append("s_add_u32 s56, s35, 1")
    narrow(T, W, 131072, 's56')
    later = std_later(8)
    T += phase(W, 0, 'X', later).linearize()
    T.append("s_nop 15")
    wf_store(T, ACC[0], 2, 's35')
    for i in range(8): W.issue('vm', ('WS', i))
    narrow_read(T, W)
    T += phase(W, 1, 'X', later).linearize()
    T.append("s_nop 15")
    wf_store(T, ACC[1], 2, 's56')
    finish(T, "K1_W2")

    e("K1_FIN:")
    if FUSED:
        if o['stamp']:
            e("s_waitcnt vmcnt(0)"); e("s_memtime s[64:65]"); e("s_memrealtime s[66:67]"); e("s_waitcnt lgkmcnt(0)")
            e("s_cmp_eq_u32 s28, 0"); e("s_cbranch_scc0 K1_NOST")
            e("s_add_u32 s68, s54, 0x8100000"); e("s_addc_u32 s69, s55, 0"); e("s_mov_b32 s70, 0x100000"); e("s_mov_b32 s71, 0x20000")
            for k, r in enumerate([60, 64, 62, 66]): e(f"v_mov_b32 v{232+k}, s{r}")
            e("s_lshl_b32 s33, s2, 4"); e("v_mov_b32 v236, s33")
            e("buffer_store_dwordx4 v[232:235], v236, s[68:71], 0 offen")
            e("K1_NOST:")
        e("K1_TAGP:")
        e("buffer_load_dword v232, off, s[4:7], 0 sc1")
        e("s_waitcnt vmcnt(0) lgkmcnt(0)")
        e("v_readfirstlane_b32 s3, v232")
        e("s_nop 3")
        e("s_cmp_lg_u32 s3, 0"); e("s_cbranch_scc1 K1_TAGD"); e("s_sleep 1"); e("s_branch K1_TAGP")
        e("K1_TAGD:")
        e("s_barrier")
        e("s_cmp_eq_u32 s28, 0"); e("s_cbranch_scc0 K1_NOFL")
        e("s_lshl_b32 s33, s2, 7")
        e(f"s_add_u32 s34, s33, {FLQ}")
        e(f"s_add_u32 s56, s33, {FLU - 125*128}"); e("s_cmp_ge_u32 s2, 125"); e("s_cselect_b32 s34, s56, s34")
        e(f"s_add_u32 s56, s33, {FLW - 250*128}"); e("s_cmp_ge_u32 s2, 250"); e("s_cselect_b32 s34, s56, s34")
        srd(e, 8, 's54', 's55', FL_OFF, FL_SIZE)
        e("v_mov_b32 v232, s3")
        e("v_cmp_eq_u32 vcc, 0, v240"); e("s_and_saveexec_b64 s[56:57], vcc")
        e("buffer_store_dword v232, off, s[8:11], s34 sc1")
        e("s_mov_b64 exec, s[56:57]")
        e("K1_NOFL:")
        e("s_mov_b32 s48, s28")
        return L, [], []
    if o['stamp']:
        e("s_waitcnt vmcnt(0)")
        e("s_memtime s[64:65]"); e("s_memrealtime s[66:67]")
        e("s_waitcnt lgkmcnt(0)")
        e("s_cmp_eq_u32 s28, 0"); e("s_cbranch_scc0 K1_END")
        e("s_add_u32 s68, s54, 0x8100000"); e("s_addc_u32 s69, s55, 0"); e("s_mov_b32 s70, 0x100000"); e("s_mov_b32 s71, 0x20000")
        for k, r in enumerate([60, 64, 62, 66]): e(f"v_mov_b32 v{232+k}, s{r}")
        e("s_lshl_b32 s33, s2, 4"); e("v_mov_b32 v236, s33")
        e("buffer_store_dwordx4 v[232:235], v236, s[68:71], 0 offen")
        for k in range(8): e(f"v_mov_b32 v{244+k}, s{72+2*k}")
        e("s_lshl_b32 s33, s2, 5"); e("s_add_u32 s33, s33, 0x10000"); e("v_mov_b32 v236, s33")
        e("buffer_store_dwordx4 v[244:247], v236, s[68:71], 0 offen")
        e("buffer_store_dwordx4 v[248:251], v236, s[68:71], 0 offen offset:16")
    e("K1_END:")
    e("s_endpgm")
    return L, kernel_desc(name, 288, 256), []
```

```python
from gen_common import *
import hazard, struct
SLOT = 16384
M16 = "v_mfma_f32_16x16x32_bf16"
fb = lambda x: hex(struct.unpack('<I', struct.pack('<f', x))[0])
EXT = 131072
MX = EXT
OWN = EXT + 4096
OWNML = EXT + 20480
ACT = 0

def gen_k2f(opt=None):
    o = dict(DF=3, stamp=False, bslot=8, dma0=10, dmastep=4, e0=37, e1=93, estep=4, cvtd=1, addd=1, fused=True)
    if opt: o.update(opt)
    name = 'attn_kernel'
    L = []; e = L.append
    O = 0; S = 128; P = [160, 176]; NEGM = 192; RING = 208; KA = 232; VA = 236; DV = 244; LS = 248; MREF = 252
    aQ = 0; aO = 128
    def Oreg(dt, qt): return vr(O + (dt*2+qt)*4, 4) if qt < 2 else ar(aO + (dt*2+qt-2)*4, 4)
    def Sreg(kt, qt): return S + (kt*4+qt)*4
    FUSED = o.get('fusedk')
    CS = ' sc1' if (FUSED and o.get('csc1', True)) else ''
    if not FUSED:
        L += kernel_header(name)
        e("s_cmp_ge_u32 s2, 256")
        e("s_cbranch_scc1 K2_END")
    e("s_load_dwordx2 s[4:5], s[0:1], 88")
    e("s_load_dwordx2 s[6:7], s[0:1], 80")
    e("s_load_dwordx2 s[36:37], s[0:1], 0")
    e("s_load_dwordx2 s[32:33], s[0:1], 48")
    e("s_load_dwordx2 s[40:41], s[0:1], 72")
    if o['stamp']:
        e("s_memtime s[72:73]"); e("s_memrealtime s[74:75]")
    T = []; t = T.append
    if FUSED:
        t("v_mbcnt_lo_u32_b32 v131, -1, 0"); t("v_mbcnt_hi_u32_b32 v131, -1, v131")
    else:
        t("v_lshrrev_b32 v130, 6, v0")
        t("v_and_b32 v131, 63, v0")
        t("v_readfirstlane_b32 s48, v130")
    t("s_and_b32 s60, s2, 7")
    t("s_lshr_b32 s61, s2, 3")
    t("s_lshr_b32 s51, s60, 2")
    t("s_and_b32 s53, s61, 3")
    t("s_lshr_b32 s61, s61, 2")
    t("s_and_b32 s52, s60, 3")
    t("s_lshl_b32 s52, s52, 3")
    t("s_add_u32 s52, s52, s61")
    t("s_and_b32 s49, s48, 1")
    t("s_lshr_b32 s50, s48, 1")
    t("s_lshl_b32 s54, s53, 5")
    t("s_lshl_b32 s60, s50, 4")
    t("s_add_u32 s54, s54, s60")
    t("s_max_u32 s60, s53, 1")
    t("s_sub_u32 s60, s60, 1")
    t("s_sub_u32 s54, s54, s60")
    t("s_min_u32 s60, s53, 1")
    t("s_and_b32 s60, s60, s50")
    t("s_sub_u32 s55, 16, s60")
    t("s_lshl_b32 s55, s55, 14")
    t("s_cmp_eq_u32 s60, 1")
    t("s_cselect_b32 s59, 3, 0xffff")
    t("s_lshl_b32 s54, s54, 14")
    t("s_mul_i32 s60, s51, 2048000")
    t("s_add_u32 s54, s54, s60")
    def dv_setup(t):
        t("v_and_b32 v132, 15, v131")
        t("v_lshrrev_b32 v133, 4, v131")
        t("v_lshrrev_b32 v134, 5, v131")
        t("v_and_b32 v135, 31, v131")
        t("s_lshl_b32 s60, s49, 13")
        for k in range(4):
            t(f"v_add_u32 v136, {2*k}, v134")
            t("v_lshlrev_b32 v136, 1, v136")
            t("v_xor_b32 v136, v135, v136")
            t("v_lshlrev_b32 v136, 4, v136")
            t("v_lshl_add_u32 v136, v134, 9, v136")
            t(f"v_add_u32 v{DV+k}, s60, v136")
    dv_setup(t)
    t("s_waitcnt lgkmcnt(0)")
    def S_(fn):
        buf = []; fn(buf.append); T.extend(buf)
    S_(lambda e: srd(e, 8, 's4', 's5', 's54', 's55'))
    S_(lambda e: srd(e, 12, 's4', 's5', QF_OFF, 500*8192))
    t("s_getreg_b32 s63, hwreg(HW_REG_XCC_ID, 0, 3)")
    t("s_or_b32 s63, s63, 8")
    S_(lambda e: srd(e, 44, 's4', 's5', FL_OFF, FL_SIZE if FUSED else 8192))
    t("s_lshl_b32 s65, s51, 5"); t("s_add_u32 s65, s65, s52")
    t("s_cmp_eq_u32 s48, 0"); t("s_cbranch_scc0 K2_NOXCC")
    t("s_lshl_b32 s60, s65, 7"); t("s_lshl_b32 s61, s53, 2"); t("s_add_u32 s60, s60, s61")
    if FUSED:
        t("s_add_u32 s60, s60, 16"); t("s_xor_b32 s61, s63, s3"); t("v_mov_b32 v137, s61")
    else:
        t("v_mov_b32 v137, s63")
    t("v_cmp_eq_u32 vcc, 0, v131"); t("s_and_saveexec_b64 s[70:71], vcc")
    t("buffer_store_dword v137, off, s[44:47], s60 sc1")
    t("s_mov_b64 exec, s[70:71]")
    t("K2_NOXCC:")
    t("s_lshl_b32 s56, s50, 16"); t("s_lshl_b32 s60, s49, 13"); t("s_add_u32 s56, s56, s60")
    t("s_mov_b32 s57, 0"); t("s_mov_b32 s54, 0")
    def dma_lines(slot):
        r = []
        for k in range(8):
            if k % 4 == 0:
                r.append((f"s_add_u32 m0, s56, {slot*SLOT + (k//4)*4096:#x}", False))
                if k: r.append(("s_add_u32 s57, s57, 4096", False))
                else: r.append(("s_nop 0", False))
            r.append((f"buffer_load_dwordx4 v{DV+k%4}, s[8:11], s57 offen offset:{(k%4)*1024}{CS} lds", True))
        r.append((f"s_add_u32 s57, s57, {SLOT-4096}", False))
        return r
    pre_dma = len(T)
    for txt, _ in dma_lines(0): t(txt)
    QST = [49152, 114688, 131072, 147456]
    def q_dma(t):
        t("v_lshlrev_b32 v137, 4, v131")
        t("s_mul_i32 s60, s51, 250"); t("s_lshl_b32 s61, s52, 3"); t("s_add_u32 s60, s60, s61")
        t("s_lshl_b32 s61, s48, 1"); t("s_add_u32 s60, s60, s61"); t("s_lshl_b32 s60, s60, 13")
        t("s_lshl_b32 s61, s48, 14"); t("s_add_u32 s61, s61, 98304"); t("s_cmp_eq_u32 s48, 0"); t("s_cselect_b32 s61, 49152, s61")
        for g in range(4):
            t(f"s_add_u32 m0, s61, {g*4096}")
            if g: t("s_add_u32 s60, s60, 4096")
            else: t("s_nop 0")
            for k in range(4):
                t(f"buffer_load_dwordx4 v137, s[12:15], s60 offen offset:{k*1024}{CS} lds")
    def q_read(t):
        t("v_lshlrev_b32 v137, 4, v131")
        for qt in range(4):
            t(f"s_lshl_b32 s60, s50, 1"); t(f"s_add_u32 s60, s60, {qt}"); t("s_and_b32 s60, s60, 3")
            t("s_lshl_b32 s61, s49, 2"); t("s_add_u32 s60, s60, s61")
            t("s_lshr_b32 s61, s60, 1"); t("s_lshl_b32 s62, s61, 14"); t("s_add_u32 s62, s62, 98304")
            t("s_cmp_eq_u32 s61, 0"); t("s_cselect_b32 s62, 49152, s62")
            t("s_and_b32 s60, s60, 1"); t("s_lshl_b32 s60, s60, 13"); t("s_add_u32 s62, s62, s60")
            t(f"v_add_u32 v{140+qt}, s62, v137")
    def q_read2(t):
        for j in range(8):
            for qt in range(4):
                t(f"ds_read_b128 {ar(aQ+(qt*8+j)*4,4)}, v{140+qt} offset:{j*1024}")
    q_dma(t)
    for n in (1, 2):
        for txt, _ in dma_lines(n): t(txt)
    def kava_setup(t):
        t("v_and_b32 v136, 7, v132"); t("v_lshlrev_b32 v136, 1, v136")
        t("v_lshlrev_b32 v138, 9, v132")
        t("s_lshl_b32 s60, s50, 16"); t("v_add_u32 v138, s60, v138")
        for jj in range(4):
            t(f"v_add_u32 v139, {4*jj}, v133")
            t("v_xor_b32 v139, v139, v136")
            t(f"v_lshl_add_u32 v{KA+jj}, v139, 4, v138")
        t("v_lshrrev_b32 v136, 2, v132")
        t("v_lshl_add_u32 v136, v133, 2, v136")
        t("v_lshlrev_b32 v138, 9, v136")
        t("v_add_u32 v138, s60, v138")
        t("v_and_b32 v139, 1, v132"); t("v_lshl_add_u32 v138, v139, 3, v138")
        t("v_and_b32 v136, 7, v136"); t("v_lshlrev_b32 v136, 1, v136")
        t("v_bfe_u32 v139, v132, 1, 1")
        for dd in range(8):
            t(f"v_add_u32 v140, {2*dd}, v139")
            t("v_xor_b32 v140, v140, v136")
            t(f"v_lshl_add_u32 v{VA+dd}, v140, 4, v138")
    t("@KAVA")
    kava_setup(t)
    for r in range(128): t(f"v_mov_b32 v{O+r}, 0")
    for r in range(128): t(f"v_accvgpr_write_b32 a{aO+r}, 0")
    for k in range(4): t(f"v_mov_b32 v{LS+k}, 0")
    t("s_mov_b32 s58, 0")
    q_read(t)
    if FUSED:
        i_kava = T.index("@KAVA")
        loads = T[pre_dma:i_kava]
        rest = T[i_kava+1:]
        T[:] = T[:pre_dma] + rest
        t("s_lshl_b32 s60, s53, 5"); t("s_max_u32 s61, s53, 1"); t("s_sub_u32 s61, s61, 1"); t("s_sub_u32 s60, s60, s61")
        t("s_lshl_b32 s60, s60, 5"); t("s_mul_i32 s61, s51, 4000"); t("s_add_u32 s60, s60, s61"); t("s_lshr_b32 s60, s60, 6")
        t("s_lshl_b32 s62, s52, 7"); t("s_add_u32 s62, s62, s61"); t("s_lshr_b32 s62, s62, 6")
        t("v_add_u32 v150, s60, v131")
        t("v_add_u32 v151, s62, v131"); t("v_subrev_u32 v151, 18, v151")
        t("v_cmp_gt_u32 vcc, 18, v131"); t("s_nop 1"); t("v_cndmask_b32 v150, v151, v150, vcc")
        t("v_mov_b32 v151, s62")
        t("v_cmp_gt_u32 vcc, 21, v131"); t("s_nop 1"); t("v_cndmask_b32 v150, v151, v150, vcc")
        t("v_min_u32 v150, 124, v150")
        t("v_lshlrev_b32 v150, 7, v150"); t(f"v_add_u32 v150, {FLQ}, v150")
        t("K2_QP:")
        t("buffer_load_dword v151, v150, s[44:47], 0 offen sc1")
        t("s_waitcnt vmcnt(0)")
        t("v_cmp_ne_u32 vcc, s3, v151")
        t("s_nop 1")
        t("s_cmp_eq_u64 vcc, 0"); t("s_cbranch_scc1 K2_QD"); t("s_sleep 1"); t("s_branch K2_QP")
        t("K2_QD:")
        T.extend(loads)
    else:
        T.remove("@KAVA")
    t("s_waitcnt vmcnt(16)")
    t("s_barrier")
    if o['stamp']: t("s_memtime s[76:77]"); t("s_memrealtime s[78:79]"); t("s_waitcnt lgkmcnt(0)")
    q_read2(t)
    L += hazard.autofix(T)
    DF = o['DF']
    ev = []; seq = [0]
    def add(tm, kind, prio=5, **kw):
        seq[0] += 1; ev.append((tm, prio, seq[0], kind, kw))
    def TT(i, n): return 128*i + n
    NT = 16
    for n in range(NT):
        slot = n % 4
        for kt in range(2):
            for j in range(8):
                f = 8*kt + j
                tm = TT(n-1, 4*f); tr = tm - 4*DF
                ring = RING + 4*(f % 4)
                off = slot*SLOT + kt*8192 + (j >> 2)*256
                add(tr, 'lds', prio=2, text=f"ds_read_b128 {vr(ring,4)}, v{KA+(j&3)} offset:{off}", tag=('K', n, f))
                if n < NT:
                    for qt in range(4):
                        acc = vr(Sreg(kt, qt), 4)
                        c = acc if j else ('0' if n == 0 else vr(NEGM+4*qt, 4))
                        add(tm+qt, 'mfma', prio=0, text=f"{M16} {acc}, {vr(ring,4)}, {ar(aQ+(qt*8+j)*4,4)}, {c}",
                            need=([('K', n, f)] if qt == 0 else []) + ([('Q', qt, j)] if n == 0 else []))
    for n in range(NT):
        slot = n % 4
        for dt in range(16):
            f = 16 + dt
            tm = TT(n, 4*f); tr = tm - 4*DF
            ring = RING + 4*(f % 4)
            for u in range(2):
                off = slot*SLOT + u*8192 + (dt >> 3)*256
                add(tr, 'lds', prio=2, text=f"ds_read_b64_tr_b16 {vr(ring+2*u,2)}, v{VA+(dt&7)} offset:{off}", tag=('V', n, dt, u))
            for qt in range(4):
                add(tm+qt, 'mfma', prio=0, text=f"{M16} {Oreg(dt,qt)}, {vr(ring,4)}, {vr(P[n%2]+4*qt,4)}, {Oreg(dt,qt)}",
                    need=[('V', n, dt, 0), ('V', n, dt, 1)] if qt == 0 else [])
        for kt in range(2):
            for el in range(16 if o.get('valu', True) else 0):
                qt, r = el >> 2, el & 3
                te = TT(n-1, (o['e0'] if kt == 0 else o['e1']) + o['estep']*el)
                reg = Sreg(kt, qt) + r
                add(te, 'valu', prio=3, text=f"v_exp_f32 v{reg}, v{reg}")
                add(te+o['addd'], 'valu', prio=3, text=f"v_add_f32 v{LS+qt}, v{LS+qt}, v{reg}")
                if r % 2 == 1:
                    add(te+o['cvtd'], 'valu', prio=4, text=f"v_cvt_pk_bf16_f32 v{P[n%2]+4*qt+2*kt+r//2}, v{reg-1}, v{reg}")
    for i in range(-1, NT-2):
        add(TT(i, o['bslot']), 'bar', prio=6, it=i)
        if i >= 0 and i + 3 < NT and o.get('dma', True):
            k = 0
            for txt, vm in dma_lines((i+3) % 4):
                tm = TT(i, o['dma0'] + o['dmastep']*k)
                if vm:
                    add(tm, 'dma', prio=7, text=txt, tile=i+3); k += 1
                else:
                    add(tm if k < 8 else TT(i, o['dma0'] + o['dmastep']*7), 'salu', prio=6 if k < 8 else 8, text=txt)
    tail_ev = []
    ev.sort(key=lambda x: (x[0], x[1], x[2]))
    W = Waiter()
    for n in (1, 2):
        for k in range(8): W.issue('vm', ('T', n))
    for j in range(8):
        for qt in range(4): W.issue('lgkm', ('Q', qt, j))
    its = {}
    for x in ev:
        tm, _, _, kind, kw = x
        it = max(tm // 128, -1)
        out = its.setdefault(it, [])
        if kind == 'mfma':
            n = W.need('lgkm', kw['need'])
            if n is not None: out.append(f"s_waitcnt lgkmcnt({n})")
            out.append(kw['text'])
            if tm == TT(-1, 63):
                out.append("@FIXUP")
        elif kind == 'lds':
            out.append(kw['text']); W.issue('lgkm', kw['tag'])
        elif kind == 'bar':
            n = W.need('vm', [('T', kw['it']+2)])
            if n is not None: out.append(f"s_waitcnt vmcnt({n})")
            if o.get('barrier', True) or kw['it'] < 0: out.append("s_barrier")
        elif kind == 'dma':
            out.append(kw['text']); W.issue('vm', ('T', kw['tile']))
        else:
            out.append(kw['text'])
    for i in range(8, 13):
        assert its[i] == its[i-4], (i, [(a, b) for a, b in zip(its[i], its[i-4]) if a != b][:5])
    pro = its[-1]
    fi = pro.index("@FIXUP")
    if not o.get('valu', True):
        its[15] = its[15] + ["v_add_f32 v248, v248, v248"]
    pre_valu = [x for x in pro[:fi] if x.startswith('v_exp') or x.startswith('v_add_f32') or x.startswith('v_cvt')]
    pro_a = [x for x in pro[:fi] if x not in pre_valu or not (x.startswith('v_exp') or x.startswith('v_add_f32') or x.startswith('v_cvt'))]
    fix = []
    fx = fix.append
    fx("s_nop 7")
    for qt in range(4):
        a, b = Sreg(0, qt), Sreg(1, qt)
        fx(f"v_max3_f32 v{NEGM+qt}, v{a}, v{a+1}, v{a+2}")
        fx(f"v_max3_f32 v{NEGM+qt}, v{NEGM+qt}, v{a+3}, v{b}")
        fx(f"v_max3_f32 v{NEGM+qt}, v{NEGM+qt}, v{b+1}, v{b+2}")
        fx(f"v_max_f32 v{NEGM+qt}, v{NEGM+qt}, v{b+3}")
    for sw in ("v_permlane16_swap_b32", "v_permlane32_swap_b32"):
        for qt in range(4): fx(f"v_mov_b32 v{NEGM+4+qt}, v{NEGM+qt}")
        fx("s_nop 1")
        for qt in range(4): fx(f"{sw} v{NEGM+qt}, v{NEGM+4+qt}")
        fx("s_nop 1")
        for qt in range(4): fx(f"v_max_f32 v{NEGM+qt}, v{NEGM+qt}, v{NEGM+4+qt}")
    fx("v_mbcnt_lo_u32_b32 v254, -1, 0"); fx("v_mbcnt_hi_u32_b32 v254, -1, v254")
    fx("v_lshlrev_b32 v254, 4, v254")
    fx(f"s_lshl_b32 s60, s48, 10"); fx(f"s_add_u32 s60, s60, {MX}")
    fx("v_add_u32 v255, s60, v254")
    fx(f"ds_write_b128 v255, {vr(NEGM,4)}")
    fx("s_xor_b32 s60, s60, 2048")
    fx("v_add_u32 v255, s60, v254")
    fx("s_waitcnt lgkmcnt(0)")
    fx("s_barrier")
    fx(f"ds_read_b128 {vr(NEGM+4,4)}, v255")
    fx("s_waitcnt lgkmcnt(0)")
    for qt in range(4): fx(f"v_max_f32 v{NEGM+8+qt}, v{NEGM+qt}, v{NEGM+4+((qt+2)&3)}")
    fx(f"v_mov_b32 v{MREF}, v{NEGM+8}"); fx(f"v_mov_b32 v{MREF+1}, v{NEGM+9}")
    for kt in range(2):
        for qt in range(4):
            for r in range(4): fx(f"v_sub_f32 v{Sreg(kt,qt)+r}, v{Sreg(kt,qt)+r}, v{NEGM+8+qt}")
    for qt in range(4): fx(f"v_mov_b32 v{254}, v{NEGM+8+qt}") if False else None
    for qt in (3, 1, 0):
        for r in range(4): fx(f"v_sub_f32 v{NEGM+4*qt+r}, 0, v{NEGM+8+qt}") if qt != 2 else None
    fx(f"v_sub_f32 v254, 0, v{NEGM+10}")
    for r in range(4): fx(f"v_mov_b32 v{NEGM+8+r}, v254")
    L += hazard.autofix(pro_a + fix + pre_valu + pro[fi+1:])
    if o['stamp']:
        e("s_memtime s[24:25]")
    e("K2_LOOP:")
    body = {u: its[4+u] for u in range(4)}
    L += body[0]
    e("s_cmp_eq_u32 s58, 3")
    e("s_cbranch_scc1 K2_EPI")
    L += body[1]; L += body[2]; L += body[3]
    e("s_add_u32 s58, s58, 1")
    e("s_branch K2_LOOP")
    e("K2_EPI:")
    if o['stamp']:
        e("s_memtime s[26:27]"); e("s_waitcnt lgkmcnt(0)"); e("s_sub_u32 s101, s26, s24"); e("s_sub_u32 s100, s24, s76")
    if FUSED:
        pre13 = []
        p = pre13.append
        p("s_lshl_b32 s60, s52, 7"); p("s_lshl_b32 s61, s53, 5"); p("s_add_u32 s60, s60, s61"); p("s_min_u32 s60, s60, 3968")
        p("s_mul_i32 s61, s51, 4000"); p("s_add_u32 s60, s60, s61")
        p("s_max_u32 s61, s60, 2"); p("s_sub_u32 s61, s61, 2"); p("s_lshr_b32 s61, s61, 6")
        p("s_add_u32 s60, s60, 33"); p("s_min_u32 s60, s60, 7999"); p("s_lshr_b32 s60, s60, 6")
        p("v_mbcnt_lo_u32_b32 v224, -1, 0"); p("v_mbcnt_hi_u32_b32 v224, -1, v224")
        p("v_min_u32 v225, 7, v224"); p("v_lshlrev_b32 v225, 7, v225"); p(f"v_add_u32 v225, {FLW - 256}, v225")
        p("s_lshl_b32 s61, s61, 7"); p(f"s_add_u32 s61, s61, {FLU}"); p("v_mov_b32 v226, s61")
        p("v_cmp_eq_u32 vcc, 0, v224"); p("s_nop 1"); p("v_cndmask_b32 v225, v225, v226, vcc")
        p("s_lshl_b32 s60, s60, 7"); p(f"s_add_u32 s60, s60, {FLU}"); p("v_mov_b32 v226, s60")
        p("v_cmp_eq_u32 vcc, 1, v224"); p("s_nop 1"); p("v_cndmask_b32 v225, v225, v226, vcc")
        p("buffer_load_dword v226, v225, s[44:47], 0 offen sc1")
        L += hazard.autofix(pre13)
        i13 = list(its[13])
        bi = i13.index("s_barrier")
        assert i13[bi-1] == "s_waitcnt vmcnt(0)", i13[bi-3:bi+1]
        chk = ["K2_TP:", "v_cmp_ne_u32 vcc, s3, v226", "s_nop 1", "s_cmp_eq_u64 vcc, 0", "s_cbranch_scc1 K2_TD", "s_sleep 1",
               "buffer_load_dword v226, v225, s[44:47], 0 offen sc1", "s_waitcnt vmcnt(0)", "s_branch K2_TP", "K2_TD:"]
        L += i13[:bi] + chk + i13[bi:]
    else:
        L += its[13]
    e("s_cmp_eq_u32 s59, 3")
    e("s_cbranch_scc0 K2_NOMASK")
    for r in range(16): e(f"v_mov_b32 v{NEGM+r}, 0xf149f2ca")
    e("s_nop 1")
    e("K2_NOMASK:")
    import gen_tail
    tail, resume = gen_tail.gen_tail(o, its[14], its[15], W)
    L += tail
    e("s_branch K2_END")
    T = []; t = T.append
    M_, MN, AL = NEGM, NEGM + 4, NEGM + 8
    t("K2_SLOW:")
    t("s_mov_b32 s54, 1")
    t("s_waitcnt vmcnt(0) lgkmcnt(0)")
    t("s_barrier")
    t("v_mbcnt_lo_u32_b32 v131, -1, 0"); t("v_mbcnt_hi_u32_b32 v131, -1, v131")
    dv_setup(t)
    S_2 = lambda fn: (lambda b: (fn(b.append), T.extend(b)))([])
    S_2(lambda e: srd(e, 12, 's4', 's5', QF_OFF, 500*8192))
    q_dma(t)
    kava_setup(t)
    for r in range(128): t(f"v_mov_b32 v{O+r}, 0")
    for r in range(128): t(f"v_accvgpr_write_b32 a{aO+r}, 0")
    for k in range(4): t(f"v_mov_b32 v{LS+k}, 0"); t(f"v_mov_b32 v{M_+k}, 0xf149f2ca")
    t("s_lshl_b32 s56, s50, 16"); t("s_lshl_b32 s60, s49, 13"); t("s_add_u32 s56, s56, s60")
    t("s_mov_b32 s57, 0"); t("s_mov_b32 s58, 0")
    t("s_waitcnt vmcnt(0)")
    t("s_barrier")
    q_read(t); q_read2(t)
    t("s_waitcnt lgkmcnt(0)")
    t("K2_SL_LOOP:")
    t("s_barrier")
    for txt, _ in dma_lines(0): t(txt)
    t("s_waitcnt vmcnt(0)")
    t("s_barrier")
    t("s_lshl_b32 s60, s58, 14"); t("s_cmp_lt_u32 s60, s55")
    t("s_cbranch_scc0 K2_SL_NEXT")
    for kt in range(2):
        for j in range(8):
            t(f"ds_read_b128 {vr(RING,4)}, v{KA+(j&3)} offset:{kt*8192 + (j>>2)*256}")
            t("s_waitcnt lgkmcnt(0)")
            for qt in range(4):
                acc = vr(Sreg(kt, qt), 4)
                t(f"{M16} {acc}, {vr(RING,4)}, {ar(aQ+(qt*8+j)*4,4)}, {acc if j else '0'}")
            t("s_nop 3")
    t("s_nop 7")
    for qt in range(4):
        a, b = Sreg(0, qt), Sreg(1, qt)
        t(f"v_max3_f32 v{MN+qt}, v{a}, v{a+1}, v{a+2}")
        t(f"v_max3_f32 v{MN+qt}, v{MN+qt}, v{a+3}, v{b}")
        t(f"v_max3_f32 v{MN+qt}, v{MN+qt}, v{b+1}, v{b+2}")
        t(f"v_max3_f32 v{MN+qt}, v{MN+qt}, v{b+3}, v{M_+qt}")
    for sw in ("v_permlane16_swap_b32", "v_permlane32_swap_b32"):
        for qt in range(4): t(f"v_mov_b32 v{AL+qt}, v{MN+qt}")
        t("s_nop 1")
        for qt in range(4): t(f"{sw} v{MN+qt}, v{AL+qt}")
        t("s_nop 1")
        for qt in range(4): t(f"v_max_f32 v{MN+qt}, v{MN+qt}, v{AL+qt}")
    for qt in range(4):
        t(f"v_sub_f32 v{AL+qt}, v{M_+qt}, v{MN+qt}"); t(f"v_exp_f32 v{AL+qt}, v{AL+qt}"); t(f"v_mov_b32 v{M_+qt}, v{MN+qt}")
    t("s_nop 0")
    for qt in range(4):
        t(f"v_mul_f32 v{LS+qt}, v{LS+qt}, v{AL+qt}")
        for kt in range(2):
            for r in range(4):
                reg = Sreg(kt, qt) + r
                t(f"v_sub_f32 v{reg}, v{reg}, v{M_+qt}"); t(f"v_exp_f32 v{reg}, v{reg}"); t("s_nop 0")
                t(f"v_add_f32 v{LS+qt}, v{LS+qt}, v{reg}")
            for h2 in range(2):
                t(f"v_cvt_pk_bf16_f32 v{P[0]+4*qt+2*kt+h2}, v{Sreg(kt,qt)+2*h2}, v{Sreg(kt,qt)+2*h2+1}")
    def rescale():
        for dt in range(16):
            for qt in range(2):
                for r in range(4): t(f"v_mul_f32 v{O+(dt*2+qt)*4+r}, v{O+(dt*2+qt)*4+r}, v{AL+qt}")
                for r in range(4):
                    a = aO + (dt*2+qt)*4 + r
                    t(f"v_accvgpr_read_b32 v{NEGM+12+r}, a{a}")
                for r in range(4): t(f"v_mul_f32 v{NEGM+12+r}, v{NEGM+12+r}, v{AL+2+qt}")
                for r in range(4):
                    a = aO + (dt*2+qt)*4 + r
                    t(f"v_accvgpr_write_b32 a{a}, v{NEGM+12+r}")
    rescale()
    t("s_nop 1")
    for dt in range(16):
        for u in range(2):
            t(f"ds_read_b64_tr_b16 {vr(RING+2*u,2)}, v{VA+(dt&7)} offset:{u*8192 + (dt>>3)*256}")
        t("s_waitcnt lgkmcnt(0)")
        for qt in range(4):
            t(f"{M16} {Oreg(dt,qt)}, {vr(RING,4)}, {vr(P[0]+4*qt,4)}, {Oreg(dt,qt)}")
        t("s_nop 3")
    t("s_nop 7")
    t("K2_SL_NEXT:")
    t("s_add_u32 s58, s58, 1"); t("s_cmp_lt_u32 s58, 16"); t("s_cbranch_scc1 K2_SL_LOOP")
    t("s_barrier")
    t("v_mbcnt_lo_u32_b32 v254, -1, 0"); t("v_mbcnt_hi_u32_b32 v254, -1, v254"); t("v_lshlrev_b32 v254, 4, v254")
    t(f"s_lshl_b32 s60, s48, 10"); t(f"s_add_u32 s60, s60, {MX}"); t("v_add_u32 v255, s60, v254")
    t(f"ds_write_b128 v255, {vr(M_,4)}")
    t("s_xor_b32 s60, s60, 2048"); t("v_add_u32 v255, s60, v254")
    t("s_waitcnt lgkmcnt(0)"); t("s_barrier")
    t(f"ds_read_b128 {vr(MN,4)}, v255"); t("s_waitcnt lgkmcnt(0)")
    for qt in range(4): t(f"v_max_f32 v{RING+qt}, v{M_+qt}, v{MN+((qt+2)&3)}")
    for qt in range(4):
        t(f"v_sub_f32 v{AL+qt}, v{M_+qt}, v{RING+qt}"); t(f"v_exp_f32 v{AL+qt}, v{AL+qt}")
    t("s_nop 0")
    for qt in range(4): t(f"v_mul_f32 v{LS+qt}, v{LS+qt}, v{AL+qt}")
    t(f"v_mov_b32 v{MREF}, v{RING}"); t(f"v_mov_b32 v{MREF+1}, v{RING+1}")
    rescale()
    t("s_barrier")
    L += hazard.autofix(T + resume)
    e("K2_END:")
    e("s_endpgm")
    i0 = L.index("K2_LOOP:"); i1 = L.index("K2_EPI:")
    lin = L[i0-60:i1] + L[i0:i1] + L[i1:i1+700]
    errs = hazard.check(lin, 'k2f')
    return L, ([] if FUSED else kernel_desc(name, 512, 256)), errs
```

```python
from gen_common import *
import hazard, struct
SLOT = 16384
M16 = "v_mfma_f32_16x16x32_bf16"
fb = lambda x: hex(struct.unpack('<I', struct.pack('<f', x))[0])
EXT = 131072
MX = 49152
OWN = 49152
MXE = 114688
OWNML = MXE + 4096
FLG = MXE + 8192
ACT = 0
SPILL = 0x3000000

def gen_k2g(opt=None):
    o = dict(DF=3, stamp=False, bslot=8, dma0=11, dmastep=4, e0=37, e1=93, estep=4, cvtd=1, addd=1, l2fl='nt')
    if opt: o.update(opt)
    name = 'attn_kernel'
    L = []; e = L.append
    O = 0; S = 128; P = [160, 176]; NEGM = 192; RING = 208; KA = 232; VA = 236; DV = 244; LS = 248; MREF = 252
    LANE, L16, T16, GG = 224, 225, 226, 227
    aQ = 0; aO = 128
    def Oreg(dt, qt): return vr(O + (dt*2+qt)*4, 4) if qt < 2 else ar(aO + (dt*2+qt-2)*4, 4)
    def Sreg(kt, qt): return S + (kt*4+qt)*4
    def cap(fn):
        buf = []; fn(buf.append); return buf
    L += kernel_header(name)
    e("s_cmp_ge_u32 s2, 256")
    e("s_cbranch_scc1 K2_END")
    e("s_load_dwordx2 s[4:5], s[0:1], 88")
    e("s_load_dwordx2 s[6:7], s[0:1], 80")
    e("s_load_dwordx2 s[36:37], s[0:1], 0")
    e("s_load_dwordx2 s[32:33], s[0:1], 48")
    e("s_load_dwordx2 s[40:41], s[0:1], 72")
    if o['stamp']:
        e("s_memtime s[72:73]"); e("s_memrealtime s[74:75]")
    T = []; t = T.append
    W = Waiter()
    t("v_lshrrev_b32 v228, 6, v0")
    t(f"v_and_b32 v{LANE}, 63, v0")
    t("v_readfirstlane_b32 s48, v228")
    t(f"v_lshlrev_b32 v{L16}, 4, v{LANE}"); t(f"v_and_b32 v{T16}, 15, v{LANE}"); t(f"v_lshrrev_b32 v{GG}, 4, v{LANE}")
    for x in ["s_and_b32 s60, s2, 7", "s_lshr_b32 s61, s2, 3", "s_lshr_b32 s51, s60, 2", "s_and_b32 s53, s61, 3", "s_lshr_b32 s61, s61, 2",
              "s_and_b32 s52, s60, 3", "s_lshl_b32 s52, s52, 3", "s_add_u32 s52, s52, s61", "s_and_b32 s49, s48, 1", "s_lshr_b32 s50, s48, 1",
              "s_lshl_b32 s54, s53, 5", "s_lshl_b32 s60, s50, 4", "s_add_u32 s54, s54, s60", "s_max_u32 s60, s53, 1", "s_sub_u32 s60, s60, 1",
              "s_sub_u32 s54, s54, s60", "s_min_u32 s60, s53, 1", "s_and_b32 s60, s60, s50", "s_sub_u32 s55, 16, s60", "s_lshl_b32 s55, s55, 14",
              "s_cmp_eq_u32 s60, 1", "s_cselect_b32 s59, 3, 0xffff", "s_lshl_b32 s54, s54, 14", "s_mul_i32 s60, s51, 2048000", "s_add_u32 s54, s54, s60",
              "s_lshl_b32 s62, s52, 7", "s_lshl_b32 s60, s53, 5", "s_add_u32 s62, s62, s60",
              "s_lshl_b32 s65, s51, 5", "s_add_u32 s65, s65, s52", "s_lshl_b32 s64, s49, 1", "s_add_u32 s64, s64, s50"]: t(x)
    def dv_setup(t):
        t(f"v_lshrrev_b32 v228, 5, v{LANE}"); t(f"v_and_b32 v229, 31, v{LANE}")
        t("s_lshl_b32 s60, s49, 13")
        for k in range(4):
            t(f"v_add_u32 v230, {2*k}, v228"); t("v_lshlrev_b32 v230, 1, v230"); t("v_xor_b32 v230, v229, v230")
            t("v_lshlrev_b32 v230, 4, v230"); t("v_lshl_add_u32 v230, v228, 9, v230"); t(f"v_add_u32 v{DV+k}, s60, v230")
    def kava_setup(t):
        t(f"v_and_b32 v228, 7, v{T16}"); t("v_lshlrev_b32 v228, 1, v228")
        t(f"v_lshlrev_b32 v229, 9, v{T16}")
        t("s_lshl_b32 s60, s50, 16"); t("v_add_u32 v229, s60, v229")
        for jj in range(4):
            t(f"v_add_u32 v230, {4*jj}, v{GG}"); t("v_xor_b32 v230, v230, v228"); t(f"v_lshl_add_u32 v{KA+jj}, v230, 4, v229")
        t(f"v_lshrrev_b32 v228, 2, v{T16}"); t(f"v_lshl_add_u32 v228, v{GG}, 2, v228")
        t("v_lshlrev_b32 v229, 9, v228"); t("v_add_u32 v229, s60, v229")
        t(f"v_and_b32 v230, 1, v{T16}"); t("v_lshl_add_u32 v229, v230, 3, v229")
        t("v_and_b32 v228, 7, v228"); t("v_lshlrev_b32 v228, 1, v228")
        t(f"v_bfe_u32 v230, v{T16}, 1, 1")
        for dd in range(8):
            t(f"v_add_u32 v231, {2*dd}, v230"); t("v_xor_b32 v231, v231, v228"); t(f"v_lshl_add_u32 v{VA+dd}, v231, 4, v229")
    def dma_lines(slot):
        r = []
        for k in range(8):
            if k % 4 == 0:
                r.append((f"s_add_u32 m0, s56, {slot*SLOT + (k//4)*4096:#x}", False))
                if k: r.append(("s_add_u32 s57, s57, 4096", False))
                else: r.append(("s_nop 0", False))
            r.append((f"buffer_load_dwordx4 v{DV+k%4}, s[8:11], s57 offen offset:{(k%4)*1024} lds", True))
        r.append((f"s_add_u32 s57, s57, {SLOT-4096}", False))
        return r
    def q_dma(t):
        t("s_mul_i32 s60, s51, 250"); t("s_lshl_b32 s61, s52, 3"); t("s_add_u32 s60, s60, s61")
        t("s_lshl_b32 s61, s48, 1"); t("s_add_u32 s60, s60, s61"); t("s_lshl_b32 s60, s60, 13")
        t("s_lshl_b32 s61, s50, 16"); t("s_lshl_b32 s66, s49, 14"); t("s_add_u32 s61, s61, s66"); t("s_add_u32 s61, s61, 32768")
        for g in range(4):
            t(f"s_add_u32 m0, s61, {g*4096}")
            if g: t("s_add_u32 s60, s60, 4096")
            else: t("s_nop 0")
            for k in range(4): t(f"buffer_load_dwordx4 v{L16}, s[20:23], s60 offen offset:{k*1024} lds")
    def q_read_lines():
        r = []
        for qt in range(4):
            r += [f"s_lshl_b32 s60, s50, 1", f"s_add_u32 s60, s60, {qt}", "s_and_b32 s60, s60, 3", "s_lshl_b32 s60, s60, 13",
                  "s_lshl_b32 s61, s49, 16", "s_add_u32 s60, s60, s61", "s_add_u32 s60, s60, 32768", f"v_add_u32 v{228+qt}, s60, v{L16}"]
        for j in range(8):
            for qt in range(4):
                r.append(f"ds_read_b128 {ar(aQ+(qt*8+j)*4,4)}, v{228+qt} offset:{j*1024}")
        return r
    dv_setup(t)
    t("s_waitcnt lgkmcnt(0)")
    T += cap(lambda e: srd(e, 8, 's4', 's5', 's54', 's55'))
    T += cap(lambda e: srd(e, 20, 's4', 's5', QF_OFF, 500*8192))
    T += cap(lambda e: srd(e, 12, 's4', 's5', WF_OFF, 262144))
    t("s_mul_i32 s60, s51, 2048000")
    t(f"s_add_u32 s61, s60, {G_OFF:#x}"); T += cap(lambda e: srd(e, 24, 's4', 's5', 's61', 2048000))
    t(f"s_add_u32 s61, s60, {U_OFF:#x}"); T += cap(lambda e: srd(e, 28, 's4', 's5', 's61', 2048000))
    for x in ["s_mov_b32 s34, 2560", "s_mov_b32 s35, 0x20000", "s_mov_b32 s38, 4096000", "s_mov_b32 s39, 0x20000", "s_mov_b32 s42, 4096000", "s_mov_b32 s43, 0x20000",
              "s_mov_b32 s44, s6", "s_mov_b32 s45, s7", "s_mov_b32 s46, 256", "s_mov_b32 s47, 0x20000",
              "s_lshl_b32 s56, s50, 16", "s_lshl_b32 s60, s49, 13", "s_add_u32 s56, s56, s60", "s_mov_b32 s57, 0", "s_mov_b32 s54, 0"]: t(x)
    GR, UR, DWR, XR = 0, 32, 48, 68
    t(f"v_and_b32 v228, 31, v{LANE}"); t("v_lshlrev_b32 v229, 4, v228")
    t(f"v_lshrrev_b32 v230, 5, v{LANE}"); t("s_lshl_b32 s60, s48, 1"); t("v_add_u32 v230, s60, v230")
    t("v_lshlrev_b32 v230, 2, v230"); t("v_add_u32 v230, s62, v230")
    t("v_lshl_add_u32 v230, v230, 9, v229"); t("v_subrev_u32 v231, 1024, v230")
    for i in range(5):
        t(f"buffer_load_dwordx4 {vr(DWR+4*i,4)}, v229, s[32:35], 0 offen offset:{512*i}"); W.issue('vm', ('DW', i))
    for i in range(8):
        t(f"buffer_load_dwordx4 {vr(GR+4*i,4)}, v{231 if i < 2 else 230}, s[24:27], 0 offen offset:{512*(i if i < 2 else i-2)}"); W.issue('vm', ('G', i))
    for i in range(4):
        t(f"buffer_load_dwordx4 {vr(UR+4*i,4)}, v230, s[28:31], 0 offen offset:{512*i}"); W.issue('vm', ('U', i))
    for txt, vm in dma_lines(0):
        t(txt)
        if vm: W.issue('vm', ('T', 0))
    q_dma(t)
    for k in range(16): W.issue('vm', ('Q', k))
    def xo_setup(t, r0, r1):
        t("s_mul_i32 s60, s51, 4000"); t("s_add_u32 s60, s60, s62")
        t(f"v_add_u32 v{r0}, s60, v{T16}"); t(f"v_lshlrev_b32 v{r0}, 9, v{r0}"); t(f"v_lshl_add_u32 v{r0}, v{GG}, 3, v{r0}")
        t("s_lshl_b32 s60, s48, 7"); t(f"v_add_u32 v{r0}, s60, v{r0}"); t(f"v_add_u32 v{r1}, 8192, v{r0}")
    xo_setup(t, 228, 229)
    for a in range(4):
        for tt in range(2):
            t(f"buffer_load_dwordx2 {vr(XR+(a*2+tt)*2,2)}, v{228+tt}, s[36:39], 0 offen offset:{32*a}"); W.issue('vm', ('X', a, tt))
    def w_loads(kbase, areg0, tag):
        r = []
        for m in range(8):
            for a in range(4):
                pre = []
                if m % 4 == 0:
                    pre = [f"s_lshl_b32 s{66+a}, s48, 16", f"s_add_u32 s{66+a}, s{66+a}, {a*16384 + kbase*1024 + (m>>2)*4096}"]
                r.append((pre, f"buffer_load_dwordx4 {ar(areg0+(a*8+m)*4,4)}, v{L16}, s[12:15], s{66+a} offen offset:{(m&3)*1024}", (tag, m, a)))
        return r
    pend = w_loads(8, 128, 'W2')
    def pload(n=1):
        for _ in range(n):
            if not pend: return
            pre, txt, tag = pend.pop(0); T.extend(pre); t(txt); W.issue('vm', tag)
    pload(o.get('w2pre', 8))
    t("s_getreg_b32 s63, hwreg(HW_REG_XCC_ID, 0, 3)"); t("s_or_b32 s63, s63, 8")
    t("s_cmp_eq_u32 s48, 0"); t("s_cbranch_scc0 K2_NOXCC")
    t("s_lshl_b32 s60, s53, 2"); t("s_add_u32 s60, s60, 8"); t("s_lshl_b32 s61, s63, s60"); t("s_lshl_b32 s60, s65, 2")
    t("v_mov_b32 v228, s60"); t("v_mov_b32 v229, s61")
    t(f"v_cmp_eq_u32 vcc, 0, v{LANE}"); t("s_and_saveexec_b64 s[70:71], vcc")
    t("buffer_atomic_add v229, v228, s[44:47], 0 offen")
    t("s_mov_b64 exec, s[70:71]")
    t("K2_NOXCC:")
    kava_setup(t)
    DWF, CV, GT = 128, 168, 200
    n = W.need('vm', [('DW', 4)]); t(f"s_waitcnt vmcnt({n})")
    for i in range(5):
        for k in range(4):
            t(f"v_lshlrev_b32 v{DWF+8*i+2*k}, 16, v{DWR+4*i+k}"); t(f"v_and_b32 v{DWF+8*i+2*k+1}, 0xffff0000, v{DWR+4*i+k}")
        pload(1)
    for rho in range(8):
        n = W.need('vm', [('G', rho)])
        if n is not None: t(f"s_waitcnt vmcnt({n})")
        g = GT + 8*(rho % 2)
        for k in range(4):
            t(f"v_lshlrev_b32 v{g+2*k}, 16, v{GR+4*rho+k}"); t(f"v_and_b32 v{g+2*k+1}, 0xffff0000, v{GR+4*rho+k}")
        for i in range(4):
            tap = rho - i
            if 0 <= tap <= 4:
                for k in range(4):
                    d = f"v[{CV+8*i+2*k}:{CV+8*i+2*k+1}]"
                    a_ = f"v[{g+2*k}:{g+2*k+1}]"; b_ = f"v[{DWF+8*tap+2*k}:{DWF+8*tap+2*k+1}]"
                    t(f"v_pk_mul_f32 {d}, {a_}, {b_}" if tap == 0 else f"v_pk_fma_f32 {d}, {a_}, {b_}, {d}")
                pload(1)
    t(f"v_and_b32 v84, 31, v{LANE}"); t("v_lshrrev_b32 v85, 2, v84"); t("v_and_b32 v86, 3, v84")
    t("v_and_b32 v87, 1, v85"); t("v_lshl_or_b32 v87, v87, 2, v86")
    t(f"v_lshrrev_b32 v88, 5, v{LANE}"); t("s_lshl_b32 s60, s48, 1"); t("v_add_u32 v88, s60, v88")
    t("v_lshrrev_b32 v89, 2, v88"); t("v_and_b32 v88, 3, v88"); t("v_lshlrev_b32 v88, 2, v88")
    t("v_lshl_add_u32 v88, v86, 4, v88"); t("v_lshl_add_u32 v85, v85, 1, v89")
    t("v_lshlrev_b32 v85, 10, v85"); t(f"v_add_u32 v85, {EXT}, v85")
    k0 = -2.0*1.4426950408889634*0.7978845608028654
    t(f"v_mov_b32 v90, {fb(k0)}"); t(f"v_mov_b32 v92, {fb(k0*0.044715)}"); t("v_mov_b32 v94, 1.0")
    n = W.need('vm', [('U', 3)])
    if n is not None: t(f"s_waitcnt vmcnt({n})")
    for i in range(4):
        g = GT + 8*(i % 2)
        for k in range(4):
            t(f"v_lshlrev_b32 v{g+2*k}, 16, v{UR+4*i+k}"); t(f"v_and_b32 v{g+2*k+1}, 0xffff0000, v{UR+4*i+k}")
        tmp = [96+2*k for k in range(4)]
        X = lambda k: f"v[{g+2*k}:{g+2*k+1}]"; Tt = lambda k: f"v[{tmp[k]}:{tmp[k]+1}]"
        for k in range(4): t(f"v_pk_mul_f32 {Tt(k)}, {X(k)}, {X(k)}")
        for k in range(4): t(f"v_pk_fma_f32 {Tt(k)}, {Tt(k)}, v[92:93], v[90:91] op_sel_hi:[1,0,0]")
        pload(1)
        for k in range(4): t(f"v_pk_mul_f32 {Tt(k)}, {Tt(k)}, {X(k)}")
        for k in range(4): t(f"v_exp_f32 v{tmp[k]}, v{tmp[k]}"); t(f"v_exp_f32 v{tmp[k]+1}, v{tmp[k]+1}")
        pload(1)
        for k in range(4): t(f"v_pk_add_f32 {Tt(k)}, {Tt(k)}, v[94:95] op_sel_hi:[1,0]")
        for k in range(4): t(f"v_rcp_f32 v{tmp[k]}, v{tmp[k]}"); t(f"v_rcp_f32 v{tmp[k]+1}, v{tmp[k]+1}")
        for k in range(4): t(f"v_pk_mul_f32 {X(k)}, {X(k)}, {Tt(k)}")
        for k in range(4): t(f"v_pk_mul_f32 {X(k)}, {X(k)}, v[{CV+8*i+2*k}:{CV+8*i+2*k+1}]")
        for k in range(4): t(f"v_cvt_pk_bf16_f32 v{GR+4*i+k}, v{g+2*k}, v{g+2*k+1}")
        t(f"v_add_u32 v104, {i}, v88"); t("v_xor_b32 v104, v104, v87"); t("v_lshl_add_u32 v104, v104, 4, v85")
        t(f"ds_write_b128 v104, {vr(GR+4*i,4)}")
    pload(100)
    for txt, vm in dma_lines(1):
        t(txt)
        if vm: W.issue('vm', ('T', 1))
    t(f"v_lshlrev_b32 v84, 4, v{GG}"); t(f"v_xor_b32 v84, v{L16}, v84"); t(f"v_add_u32 v84, {EXT}, v84"); t("v_xor_b32 v85, 64, v84")
    t("s_waitcnt lgkmcnt(0)")
    t("s_barrier")
    if o['stamp']: t("s_memrealtime s[80:81]")
    def gemm(t, part, ACC, RB, cinit, addr, W):
        Wl = Waiter(); evs = []
        for m in range(8):
            for tt in range(2): evs.append((8*(m-1) + 4*tt, 1, 'rd', m, tt))
            for a in range(4):
                for tt in range(2): evs.append((8*m + 2*a + tt, 0, 'mf', m, a, tt))
        evs.sort(key=lambda x: (x[0], x[1]))
        for x in evs:
            if x[2] == 'rd':
                m, tt = x[3], x[4]
                t(f"ds_read_b128 {vr(RB[(m*2+tt)%4],4)}, {addr(m,tt)}"); Wl.issue('lgkm', (m, tt))
            else:
                m, a, tt = x[3], x[4], x[5]
                n = Wl.need('lgkm', [(m, tt)])
                nv = W.need('vm', [('W2' if part == 1 else 'W1', m, a)])
                ws_ = ([f"vmcnt({nv})"] if nv is not None else []) + ([f"lgkmcnt({n})"] if n is not None else [])
                if ws_: t("s_waitcnt " + ' '.join(ws_))
                acc = vr(ACC + (a*2+tt)*4, 4)
                c = cinit(a, tt) if m == 0 else acc
                wreg = ar((128 if part == 1 else 0) + (a*8+m)*4, 4)
                t(f"{M16} {acc}, {wreg}, {vr(RB[(m*2+tt)%4],4)}, {c}")
    ACC1 = 160
    gemm(t, 1, ACC1, [128, 132, 136, 140], lambda a, tt: '0', lambda m, tt: f"v{84+(m&1)} offset:{(m*2+tt)*1024}", W)
    n = W.need('vm', [('X', 3, 1)])
    if n is not None: t(f"s_waitcnt vmcnt({n})")
    t("s_nop 7")
    for idx in range(8):
        acc = ACC1 + idx*4; xr = XR + idx*2
        for q in range(2):
            g = 200 + 4*(idx % 4) + 2*q
            t(f"v_lshlrev_b32 v{g}, 16, v{xr+q}"); t(f"v_and_b32 v{g+1}, 0xffff0000, v{xr+q}")
            t(f"v_pk_add_f32 v[{acc+2*q}:{acc+2*q+1}], v[{acc+2*q}:{acc+2*q+1}], v[{g}:{g+1}]")
    t("s_barrier")
    t("s_lshl_b32 s60, s48, 13"); t(f"s_add_u32 s60, s60, {EXT}"); t(f"v_add_u32 v84, s60, v{L16}")
    for idx in range(8): t(f"ds_write_b128 v84, {vr(ACC1+idx*4,4)} offset:{idx*1024}")
    if o['stamp']: t("s_memrealtime s[82:83]")
    for r in range(128): t(f"v_mov_b32 v{O+r}, 0")
    for r in range(128): t(f"v_accvgpr_write_b32 a{aO+r}, 0")
    for k in range(4): t(f"v_mov_b32 v{LS+k}, 0")
    t("s_mov_b32 s58, 0")
    W.q['vm'] = [x for x in W.q['vm'] if x == ('T', 1)]
    t("s_waitcnt vmcnt(8) lgkmcnt(0)")
    t("s_barrier")
    if o['stamp']: t("s_memtime s[76:77]"); t("s_memrealtime s[78:79]")
    T += q_read_lines()
    t("s_waitcnt lgkmcnt(0)")
    L += hazard.autofix(T)
    DF = o['DF']
    ev = []; seq = [0]
    def add(tm, kind, prio=5, **kw):
        seq[0] += 1; ev.append((tm, prio, seq[0], kind, kw))
    def TT(i, n): return 128*i + n
    NT = 16
    for n in range(NT):
        slot = n % 4
        for kt in range(2):
            for j in range(8):
                f = 8*kt + j
                tm = TT(n-1, 4*f); tr = tm - 4*DF
                ring = RING + 4*(f % 4)
                off = slot*SLOT + kt*8192 + (j >> 2)*256
                add(tr, 'lds', prio=2, text=f"ds_read_b128 {vr(ring,4)}, v{KA+(j&3)} offset:{off}", tag=('K', n, f))
                for qt in range(4):
                    acc = vr(Sreg(kt, qt), 4)
                    c = acc if j else ('0' if n == 0 else vr(NEGM+4*qt, 4))
                    add(tm+qt, 'mfma', prio=0, text=f"{M16} {acc}, {vr(ring,4)}, {ar(aQ+(qt*8+j)*4,4)}, {c}", need=[('K', n, f)] if qt == 0 else [])
        for dt in range(16):
            f = 16 + dt
            tm = TT(n, 4*f); tr = tm - 4*DF
            ring = RING + 4*(f % 4)
            for u in range(2):
                off = slot*SLOT + u*8192 + (dt >> 3)*256
                add(tr, 'lds', prio=2, text=f"ds_read_b64_tr_b16 {vr(ring+2*u,2)}, v{VA+(dt&7)} offset:{off}", tag=('V', n, dt, u))
            for qt in range(4):
                add(tm+qt, 'mfma', prio=0, text=f"{M16} {Oreg(dt,qt)}, {vr(ring,4)}, {vr(P[n%2]+4*qt,4)}, {Oreg(dt,qt)}",
                    need=[('V', n, dt, 0), ('V', n, dt, 1)] if qt == 0 else [])
        for kt in range(2):
            for el in range(16):
                qt, r = el >> 2, el & 3
                te = TT(n-1, (o['e0'] if kt == 0 else o['e1']) + o['estep']*el)
                reg = Sreg(kt, qt) + r
                add(te, 'valu', prio=3, text=f"v_exp_f32 v{reg}, v{reg}")
                add(te+o['addd'], 'valu', prio=3, text=f"v_add_f32 v{LS+qt}, v{LS+qt}, v{reg}")
                if r % 2 == 1:
                    add(te+o['cvtd'], 'valu', prio=4, text=f"v_cvt_pk_bf16_f32 v{P[n%2]+4*qt+2*kt+r//2}, v{reg-1}, v{reg}")
    for i in range(-1, NT-2):
        add(TT(i, o['bslot']), 'bar', prio=6, it=i)
        if i + 3 < NT:
            k = 0
            for txt, vm in dma_lines((i+3) % 4):
                tm = TT(i, o['dma0'] + o['dmastep']*k)
                if vm:
                    add(tm, 'dma', prio=7, text=txt, tile=i+3); k += 1
                else:
                    add(tm if k < 8 else TT(i, o['dma0'] + o['dmastep']*7), 'salu', prio=6 if k < 8 else 8, text=txt)
    ev.sort(key=lambda x: (x[0], x[1], x[2]))
    W = Waiter()
    for k in range(8): W.issue('vm', ('T', 1))
    its = {}
    for x in ev:
        tm, _, _, kind, kw = x
        it = max(tm // 128, -1)
        out = its.setdefault(it, [])
        if kind == 'mfma':
            n = W.need('lgkm', kw['need'])
            if n is not None: out.append(f"s_waitcnt lgkmcnt({n})")
            out.append(kw['text'])
            if tm == TT(-1, 63): out.append("@FIXUP")
        elif kind == 'lds':
            out.append(kw['text']); W.issue('lgkm', kw['tag'])
        elif kind == 'bar':
            n = W.need('vm', [('T', kw['it']+2)])
            if n is not None: out.append(f"s_waitcnt vmcnt({n})")
            out.append("s_barrier")
        elif kind == 'dma':
            out.append(kw['text']); W.issue('vm', ('T', kw['tile']))
        else:
            out.append(kw['text'])
    for i in range(8, 13):
        assert its[i] == its[i-4], (i, [(a, b) for a, b in zip(its[i], its[i-4]) if a != b][:5])
    pro = its[-1]
    fi = pro.index("@FIXUP")
    isv = lambda x: x.startswith('v_exp') or x.startswith('v_add_f32') or x.startswith('v_cvt')
    pre_valu = [x for x in pro[:fi] if isv(x)]
    pro_a = [x for x in pro[:fi] if not isv(x)]
    fix = []; fx = fix.append
    fx("s_nop 7")
    for qt in range(4):
        a, b = Sreg(0, qt), Sreg(1, qt)
        fx(f"v_max3_f32 v{NEGM+qt}, v{a}, v{a+1}, v{a+2}"); fx(f"v_max3_f32 v{NEGM+qt}, v{NEGM+qt}, v{a+3}, v{b}")
        fx(f"v_max3_f32 v{NEGM+qt}, v{NEGM+qt}, v{b+1}, v{b+2}"); fx(f"v_max_f32 v{NEGM+qt}, v{NEGM+qt}, v{b+3}")
    for sw in ("v_permlane16_swap_b32", "v_permlane32_swap_b32"):
        for qt in range(4): fx(f"v_mov_b32 v{NEGM+4+qt}, v{NEGM+qt}")
        fx("s_nop 1")
        for qt in range(4): fx(f"{sw} v{NEGM+qt}, v{NEGM+4+qt}")
        fx("s_nop 1")
        for qt in range(4): fx(f"v_max_f32 v{NEGM+qt}, v{NEGM+qt}, v{NEGM+4+qt}")
    fx(f"s_lshl_b32 s60, s48, 10"); fx(f"s_add_u32 s60, s60, {MX}"); fx(f"v_add_u32 v255, s60, v{L16}")
    fx(f"ds_write_b128 v255, {vr(NEGM,4)}")
    fx("s_xor_b32 s60, s60, 2048"); fx(f"v_add_u32 v255, s60, v{L16}")
    fx("s_waitcnt lgkmcnt(0)"); fx("s_barrier")
    fx(f"ds_read_b128 {vr(NEGM+4,4)}, v255"); fx("s_waitcnt lgkmcnt(0)")
    for qt in range(4): fx(f"v_max_f32 v{NEGM+8+qt}, v{NEGM+qt}, v{NEGM+4+((qt+2)&3)}")
    fx(f"v_mov_b32 v{MREF}, v{NEGM+8}"); fx(f"v_mov_b32 v{MREF+1}, v{NEGM+9}")
    for kt in range(2):
        for qt in range(4):
            for r in range(4): fx(f"v_sub_f32 v{Sreg(kt,qt)+r}, v{Sreg(kt,qt)+r}, v{NEGM+8+qt}")
    for qt in (3, 1, 0):
        for r in range(4): fx(f"v_sub_f32 v{NEGM+4*qt+r}, 0, v{NEGM+8+qt}")
    fx(f"v_sub_f32 v254, 0, v{NEGM+10}")
    for r in range(4): fx(f"v_mov_b32 v{NEGM+8+r}, v254")
    L += hazard.autofix(pro_a + fix + pre_valu + pro[fi+1:])
    if o['stamp']: e("s_memtime s[24:25]")
    e("K2_LOOP:")
    body = {u: its[4+u] for u in range(4)}
    L += body[0]
    e("s_cmp_eq_u32 s58, 3"); e("s_cbranch_scc1 K2_EPI")
    L += body[1]; L += body[2]; L += body[3]
    e("s_add_u32 s58, s58, 1"); e("s_branch K2_LOOP")
    e("K2_EPI:")
    if o['stamp']:
        e("s_memtime s[26:27]"); e("s_waitcnt lgkmcnt(0)"); e("s_sub_u32 s101, s26, s24"); e("s_sub_u32 s100, s24, s76")
    L += its[13]
    e("s_cmp_eq_u32 s59, 3"); e("s_cbranch_scc0 K2_NOMASK")
    for r in range(16): e(f"v_mov_b32 v{NEGM+r}, 0xf149f2ca")
    e("s_nop 1")
    e("K2_NOMASK:")
    T = []; t = T.append
    def stamp(k):
        if o['stamp']: t(f"s_memrealtime s[{80+2*k}:{81+2*k}]")
    head = []
    h = head.append
    head += cap(lambda e: srd(e, 16, 's4', 's5', OP_OFF, 64*16*16384))
    head += cap(lambda e: srd(e, 20, 's4', 's5', ML_OFF, 64*16*256))
    h("s_lshl_b32 s60, s48, 15"); h(f"v_add_u32 v254, s60, v{L16}")
    h("s_add_u32 s61, s60, 16384"); h("s_lshl_b32 s66, s50, 14"); h("s_add_u32 s66, s66, 131072")
    h("s_cmp_eq_u32 s49, 1"); h("s_cselect_b32 s61, s66, s61"); h(f"v_add_u32 v255, s61, v{L16}")
    BASE = lambda idx: (S + 4*idx) if idx < 4 else (NEGM + 4*(idx-4))
    base_rd = [f"s_lshl_b32 s60, s48, 13", f"s_add_u32 s60, s60, {EXT}", f"v_add_u32 v228, s60, v{L16}"] + \
              [f"ds_read_b128 {vr(BASE(i),4)}, v228 offset:{i*1024}" for i in range(8)]
    def owr(idx): return f"ds_write_b128 v{254 if idx < 16 else 255}, {ar(aO+4*idx,4)} offset:{(idx%16)*1024}"
    w1 = w_loads(0, 0, 'W1')
    resume = list(head) + sum([pre + [txt] for pre, txt, tag in w1], [])
    out = list(head)
    nm = 0
    for x in its[14]:
        out.append(x)
        if x.startswith('v_mfma'):
            nm += 1
            if nm > 66 and nm % o.get('w1s14', 4) == 2 and w1:
                pre, txt, tag = w1.pop(0); out += pre; out.append(txt); W.issue('vm', tag)
    it15 = its[15]
    out += base_rd
    nm = 0; wr = 0; bar_done = False
    lastS = max(i for i, x in enumerate(it15) if isv(x))
    for i, x in enumerate(it15):
        out.append(x)
        if not bar_done and i >= 8 and not x.startswith('v_mfma'):
            out.append("s_waitcnt lgkmcnt(0)"); out.append("s_barrier"); bar_done = True
        if i <= lastS and i % o.get('w1s15', 4) == 1 and w1:
            pre, txt, tag = w1.pop(0); out += pre; out.append(txt); W.issue('vm', tag)
        if x.startswith('v_mfma'):
            nm += 1
            if nm % 4 == 2 and w1:
                pre, txt, tag = w1.pop(0); out += pre; out.append(txt); W.issue('vm', tag)
            if nm % 2 == 0:
                dt_ok = (nm - 9) // 4
                if wr < 2*dt_ok and wr < 32 and dt_ok >= 1:
                    out.append(owr(wr)); wr += 1
    while w1:
        pre, txt, tag = w1.pop(0); out += pre; out.append(txt); W.issue('vm', tag)
    T.extend(out)
    if o['stamp']: t("s_memtime s[98:99]")
    stamp(2)
    lred = []
    for sw in ("v_permlane16_swap_b32", "v_permlane32_swap_b32"):
        for qt in range(4): lred.append(f"v_mov_b32 v{236+qt}, v{LS+qt}")
        lred.append("s_nop 1")
        for qt in range(4): lred.append(f"{sw} v{LS+qt}, v{236+qt}")
        lred.append("s_nop 1")
        for qt in range(4): lred.append(f"v_add_f32 v{LS+qt}, v{LS+qt}, v{236+qt}")
    T.extend(lred)
    t("s_nop 7")
    while wr < 32:
        t(owr(wr)); wr += 1
    t("K2_POSTB:")
    t("s_waitcnt lgkmcnt(0)")
    t("s_barrier")
    t("s_lshl_b32 s60, s65, 2")
    t("buffer_load_dword v241, off, s[44:47], s60 sc1"); W.issue('vm', 'WORD')
    t(f"v_lshrrev_b32 v240, 1, v{L16}")
    t("s_lshl_b32 s60, s48, 10"); t(f"s_add_u32 s60, s60, {MXE}"); t("v_add_u32 v240, s60, v240")
    t(f"ds_write_b64 v240, {vr(LS+2,2)}")
    t("v_add_f32 v239, v248, v249"); t("v_add_f32 v239, v239, v250"); t("v_add_f32 v239, v239, v251")
    t("s_mov_b32 s57, 0x71800000")
    t("v_cmp_ngt_f32 vcc, s57, v239")
    t("s_nop 1")
    t("s_cmp_lg_u64 vcc, 0"); t("s_cselect_b32 s57, 1, 0")
    t("v_mov_b32 v238, s57")
    t(f"s_lshl_b32 s57, s48, 2"); t(f"s_add_u32 s57, s57, {FLG}"); t("v_mov_b32 v239, s57")
    t("ds_write_b32 v239, v238")
    t("v_xor_b32 v254, 0x10000, v254")
    t("s_mov_b32 s57, 0x4000"); t("s_cmp_eq_u32 s49, 1"); t("s_cselect_b32 s60, s57, 0x10000")
    t("v_xor_b32 v255, s60, v255")
    bufs = [P[1], RING]
    def rd(b):
        for k in range(4):
            idx = 4*b + k
            t(f"ds_read_b128 {vr(bufs[b%2]+4*k,4)}, v{254 if idx < 16 else 255} offset:{(idx%16)*1024}")
    rd(0); rd(1)
    for b in range(8):
        t(f"s_waitcnt lgkmcnt({4 if b < 7 else 0})")
        for k in range(4):
            d = O + 4*(4*b+k); s = bufs[b%2] + 4*k
            t(f"v_pk_add_f32 v[{d}:{d+1}], v[{d}:{d+1}], v[{s}:{s+1}]")
            t(f"v_pk_add_f32 v[{d+2}:{d+3}], v[{d+2}:{d+3}], v[{s+2}:{s+3}]")
        if b + 2 < 8: rd(b+2)
    t("s_barrier")
    t("v_xor_b32 v240, 0x800, v240")
    t("ds_read_b64 v[236:237], v240")
    t(f"v_mov_b32 v239, {FLG}")
    t("ds_read_b128 v[212:215], v239")
    stamp(3)
    for m in range(8):
        for tt in range(2):
            a = 16*m + 4*tt; b = a + 8
            t(f"v_cvt_pk_bf16_f32 v{a}, v{a}, v{a+1}"); t(f"v_cvt_pk_bf16_f32 v{a+1}, v{a+2}, v{a+3}")
            t(f"v_cvt_pk_bf16_f32 v{a+2}, v{b}, v{b+1}"); t(f"v_cvt_pk_bf16_f32 v{a+3}, v{b+2}, v{b+3}")
    n = W.need('vm', ['WORD'])
    t(f"s_waitcnt vmcnt({n}) lgkmcnt(0)")
    W.drain('lgkm')
    t("v_or_b32 v212, v212, v213"); t("v_or_b32 v214, v214, v215"); t("v_or_b32 v212, v212, v214")
    t("s_nop 0")
    t("v_readfirstlane_b32 s57, v212")
    t("s_nop 3")
    t("s_andn2_b32 s57, s57, s54"); t("s_cmp_lg_u32 s57, 0"); t("s_cbranch_scc1 K2_SLOW")
    t(f"v_add_f32 v{LS}, v{LS}, v236"); t(f"v_add_f32 v{LS+1}, v{LS+1}, v237")
    t("s_cmp_eq_u32 s64, s53"); t("s_cbranch_scc0 K2_PUBG")
    t(f"v_add_u32 v254, {OWN}, v{L16}")
    for m in range(8):
        for tt in range(2): t(f"ds_write_b128 v254, {vr(16*m+4*tt,4)} offset:{(m*2+tt)*1024}")
    t(f"v_lshlrev_b32 v255, 3, v{T16}"); t(f"v_add_u32 v255, {OWNML}, v255")
    for tt in range(2):
        t(f"v_mov_b32 v{212+2*tt}, v{MREF+tt}"); t(f"v_mov_b32 v{213+2*tt}, v{LS+tt}")
        t(f"ds_write_b64 v255, v[{212+2*tt}:{213+2*tt}] offset:{128*tt}")
    t("s_branch K2_PUBD")
    t("K2_PUBG:")
    t("s_lshl_b32 s60, s52, 7"); t("s_lshl_b32 s61, s64, 5"); t("s_add_u32 s60, s60, s61")
    t("s_cmp_lt_u32 s60, 4000"); t("s_cbranch_scc0 K2_PUBD")
    t("s_lshl_b32 s60, s65, 2"); t("s_add_u32 s60, s60, s64"); t("s_lshl_b32 s60, s60, 2"); t("s_add_u32 s60, s60, s53")
    t(f"v_lshlrev_b32 v255, 3, v{T16}")
    for tt in range(2):
        t(f"v_mov_b32 v{212+2*tt}, v{MREF+tt}"); t(f"v_mov_b32 v{213+2*tt}, v{LS+tt}")
    t("v_readfirstlane_b32 s57, v241")
    t("s_lshl_b32 s58, s64, 2"); t("s_add_u32 s58, s58, 8"); t("s_lshr_b32 s57, s57, s58"); t("s_and_b32 s57, s57, 15")
    t("s_cmp_eq_u32 s57, s63"); t("s_cbranch_scc1 K2_PUBL")
    for lbl, fl in (("", " sc1"), ("K2_PUBL", (" " + o['l2fl']) if o.get('l2fl') else "")):
        if lbl: t(f"{lbl}:")
        t("s_lshl_b32 s61, s60, 14")
        for m in range(8):
            for tt in range(2):
                f = m*2 + tt
                if f % 4 == 0 and f: t("s_add_u32 s61, s61, 4096")
                t(f"buffer_store_dwordx4 {vr(16*m+4*tt,4)}, v{L16}, s[16:19], s61 offen offset:{(f%4)*1024}{fl}")
        t("s_lshl_b32 s61, s60, 8")
        t(f"v_cmp_gt_u32 vcc, 16, v{LANE}"); t("s_and_saveexec_b64 s[70:71], vcc")
        for tt in range(2): t(f"buffer_store_dwordx2 v[{212+2*tt}:{213+2*tt}], v255, s[20:23], s61 offen offset:{128*tt}{fl}")
        t("s_mov_b64 exec, s[70:71]")
        if not lbl: t("s_branch K2_PUBD")
    t("K2_PUBD:")
    stamp(4)
    t("s_waitcnt vmcnt(0) lgkmcnt(0)")
    if o.get('tailst'): stamp(0)
    W.drain('vm')
    t("s_barrier")
    t("s_cmp_eq_u32 s48, 0"); t("s_cbranch_scc0 K2_NOATOM")
    t("s_lshl_b32 s60, s65, 2"); t("v_mov_b32 v214, s60"); t("v_mov_b32 v215, 1")
    t(f"v_cmp_eq_u32 vcc, 0, v{LANE}"); t("s_and_saveexec_b64 s[70:71], vcc")
    t("buffer_atomic_add v215, v214, s[44:47], 0 offen")
    t("s_mov_b64 exec, s[70:71]")
    t("K2_NOATOM:")
    t("s_cmp_lt_u32 s62, 4000"); t("s_cbranch_scc0 K2_FIN")
    for k in range(1, 4):
        t(f"s_add_u32 s60, s53, {k}"); t("s_and_b32 s60, s60, 3")
        t("s_lshl_b32 s61, s65, 2"); t("s_add_u32 s61, s61, s53"); t("s_lshl_b32 s61, s61, 2"); t(f"s_add_u32 s{56+k}, s61, s60")
    PR, MLR, CF, MA, GT2, ACC = 0, 64, 80, 96, 208, 160
    t(f"v_lshlrev_b32 v228, 3, v{T16}")
    t(f"v_add_u32 v229, {OWNML}, v228")
    for tt in range(2): t(f"ds_read_b64 {vr(MLR+tt*2,2)}, v229 offset:{128*tt}")
    t("s_lshl_b32 s60, s48, 12"); t(f"s_add_u32 s60, s60, {OWN}"); t(f"v_add_u32 v229, s60, v{L16}")
    for ff in range(4): t(f"ds_read_b128 {vr(48+4*ff,4)}, v229 offset:{ff*1024}")
    xo_setup(t, 242, 243)
    t("s_cmp_eq_u32 s48, 0"); t("s_cbranch_scc0 K2_POLLD")
    t("s_lshl_b32 s60, s65, 2")
    t("K2_POLL:")
    t("buffer_load_dword v214, off, s[44:47], s60 sc1")
    t("s_waitcnt vmcnt(0)")
    t("v_readfirstlane_b32 s61, v214")
    t("s_nop 3")
    t("s_and_b32 s61, s61, 0xff"); t("s_cmp_ge_u32 s61, 4"); t("s_cbranch_scc1 K2_POLLD")
    t("s_sleep 1")
    t("s_branch K2_POLL")
    t("K2_POLLD:")
    t("s_barrier")
    stamp(5)
    for k in range(1, 4):
        t(f"s_lshl_b32 s60, s{56+k}, 8")
        for tt in range(2):
            t(f"buffer_load_dwordx2 {vr(MLR+(k*2+tt)*2,2)}, v228, s[20:23], s60 offen offset:{128*tt} sc1"); W.issue('vm', ('ML', k, tt))
    for k in range(1, 4):
        t(f"s_lshl_b32 s61, s{56+k}, 14"); t("s_lshl_b32 s60, s48, 12"); t("s_add_u32 s61, s61, s60")
        for ff in range(4):
            t(f"buffer_load_dwordx4 {vr(PR+((k-1)*4+ff)*4,4)}, v{L16}, s[16:19], s61 offen offset:{ff*1024} sc1"); W.issue('vm', ('PP', k, ff))
    n = W.need('vm', [('ML', 3, 1)])
    t(f"s_waitcnt vmcnt({n}) lgkmcnt(0)")
    if o.get('tailst'): stamp(1)
    for tt in range(2):
        for k in range(4): t(f"v_log_f32 v{MA+k}, v{MLR+(k*2+tt)*2+1}")
        t("s_nop 0")
        for k in range(4): t(f"v_add_f32 v{MA+k}, v{MA+k}, v{MLR+(k*2+tt)*2}")
        t(f"v_max_f32 v{MA+4}, v{MA}, v{MA+1}"); t(f"v_max3_f32 v{MA+4}, v{MA+4}, v{MA+2}, v{MA+3}")
        for k in range(4): t(f"v_sub_f32 v{MA+k}, v{MA+k}, v{MA+4}")
        for k in range(4): t(f"v_exp_f32 v{MA+k}, v{MA+k}")
        for k in range(4): t(f"v_sub_f32 v{CF+2*(k*2+tt)}, v{MLR+(k*2+tt)*2}, v{MA+4}")
        t(f"v_add_f32 v{MA}, v{MA}, v{MA+1}"); t(f"v_add_f32 v{MA+2}, v{MA+2}, v{MA+3}")
        for k in range(4): t(f"v_exp_f32 v{CF+2*(k*2+tt)}, v{CF+2*(k*2+tt)}")
        t(f"v_add_f32 v{MA}, v{MA}, v{MA+2}"); t(f"v_rcp_f32 v{MA}, v{MA}"); t("s_nop 0")
        for k in range(4): t(f"v_mul_f32 v{CF+2*(k*2+tt)}, v{CF+2*(k*2+tt)}, v{MA}")
    for k in range(4):
        for ff in range(4):
            tt = ff & 1
            src = 48 + 4*ff if k == 0 else PR + ((k-1)*4+ff)*4
            if k > 0:
                n = W.need('vm', [('PP', k, ff)])
                if n is not None: t(f"s_waitcnt vmcnt({n})")
            for q in range(4):
                g = GT2 + 2*((ff*4+q) % 8)
                t(f"v_lshlrev_b32 v{g}, 16, v{src+q}"); t(f"v_and_b32 v{g+1}, 0xffff0000, v{src+q}")
                d = f"v[{MA+(ff*4+q)*2}:{MA+(ff*4+q)*2+1}]"; c = f"v[{CF+2*(k*2+tt)}:{CF+2*(k*2+tt)+1}]"
                t(f"v_pk_mul_f32 {d}, v[{g}:{g+1}], {c} op_sel_hi:[1,0]" if k == 0 else f"v_pk_fma_f32 {d}, v[{g}:{g+1}], {c}, {d} op_sel_hi:[1,0,1]")
    t("s_lshl_b32 s60, s48, 12"); t(f"s_add_u32 s60, s60, {ACT}"); t(f"v_add_u32 v229, s60, v{L16}")
    for ff in range(4):
        for q in range(4): t(f"v_cvt_pk_bf16_f32 v{ff*4+q}, v{MA+(ff*4+q)*2}, v{MA+(ff*4+q)*2+1}")
        t(f"ds_write_b128 v229, {vr(ff*4,4)} offset:{ff*1024}")
    t("s_waitcnt lgkmcnt(0)")
    t("s_barrier")
    stamp(6)
    gemm(t, 0, ACC, [16, 20, 24, 28], lambda a, tt: vr(BASE(a*2+tt), 4), lambda m, tt: f"v{L16} offset:{ACT + (m*2+tt)*1024}", W)
    t("s_nop 7")
    for a in range(4):
        for tt in range(2):
            acc = ACC + (a*2+tt)*4; d = 2*(a*2+tt)
            t(f"v_cvt_pk_bf16_f32 v{d}, v{acc}, v{acc+1}"); t(f"v_cvt_pk_bf16_f32 v{d+1}, v{acc+2}, v{acc+3}")
            t(f"buffer_store_dwordx2 v[{d}:{d+1}], v{242+tt}, s[40:43], 0 offen offset:{32*a}{' '+o['ost'] if o.get('ost') else ''}")
    t("K2_FIN:")
    if o['stamp']:
        t("s_waitcnt vmcnt(0)")
        t("s_memtime s[94:95]"); t("s_memrealtime s[96:97]")
        t("s_waitcnt lgkmcnt(0)")
        t("s_cmp_eq_u32 s48, 0"); t("s_cbranch_scc0 K2_END")
        t("s_add_u32 s68, s4, 0x8000000"); t("s_addc_u32 s69, s5, 0"); t("s_mov_b32 s70, 0x100000"); t("s_mov_b32 s71, 0x20000")
        regs = [72, 76, 98, 94, 74, 78, 84, 96, 86, 88, 80, 82, 90, 92, 101, 100]
        for k, r in enumerate(regs): t(f"v_mov_b32 v{128+k}, s{r}")
        t("s_lshl_b32 s60, s2, 6"); t("v_mov_b32 v150, s60")
        for k in range(4): t(f"buffer_store_dwordx4 v[{128+4*k}:{131+4*k}], v150, s[68:71], 0 offen offset:{16*k}")
    L += hazard.autofix(its[14][:0] + T)
    e("s_branch K2_END")
    T = []; t = T.append
    M_, MN, AL = NEGM, NEGM + 4, NEGM + 8
    t("K2_SLOW:")
    t("s_mov_b32 s54, 1")
    t("s_waitcnt vmcnt(0) lgkmcnt(0)")
    T += cap(lambda e: srd(e, 24, 's4', 's5', SPILL, 256*32768))
    t("s_lshl_b32 s60, s2, 15"); t("s_lshl_b32 s61, s48, 13"); t("s_add_u32 s60, s60, s61"); t("s_add_u32 s61, s60, 4096")
    for i in range(8): t(f"buffer_store_dwordx4 {vr(BASE(i),4)}, v{L16}, s[24:27], {'s60' if i < 4 else 's61'} offen offset:{(i%4)*1024}")
    t("s_waitcnt vmcnt(0)")
    t("s_barrier")
    dv_setup(t)
    T += cap(lambda e: srd(e, 20, 's4', 's5', QF_OFF, 500*8192))
    q_dma(t)
    kava_setup(t)
    for r in range(128): t(f"v_mov_b32 v{O+r}, 0")
    for r in range(128): t(f"v_accvgpr_write_b32 a{aO+r}, 0")
    for k in range(4): t(f"v_mov_b32 v{LS+k}, 0"); t(f"v_mov_b32 v{M_+k}, 0xf149f2ca")
    t("s_lshl_b32 s56, s50, 16"); t("s_lshl_b32 s60, s49, 13"); t("s_add_u32 s56, s56, s60")
    t("s_mov_b32 s57, 0"); t("s_mov_b32 s58, 0")
    t("s_waitcnt vmcnt(0)"); t("s_barrier")
    T += q_read_lines()
    t("s_waitcnt lgkmcnt(0)")
    t("K2_SL_LOOP:")
    t("s_barrier")
    for txt, _ in dma_lines(0): t(txt)
    t("s_waitcnt vmcnt(0)"); t("s_barrier")
    t("s_lshl_b32 s60, s58, 14"); t("s_cmp_lt_u32 s60, s55"); t("s_cbranch_scc0 K2_SL_NEXT")
    for kt in range(2):
        for j in range(8):
            t(f"ds_read_b128 {vr(RING,4)}, v{KA+(j&3)} offset:{kt*8192 + (j>>2)*256}"); t("s_waitcnt lgkmcnt(0)")
            for qt in range(4):
                acc = vr(Sreg(kt, qt), 4)
                t(f"{M16} {acc}, {vr(RING,4)}, {ar(aQ+(qt*8+j)*4,4)}, {acc if j else '0'}")
            t("s_nop 3")
    t("s_nop 7")
    for qt in range(4):
        a, b = Sreg(0, qt), Sreg(1, qt)
        t(f"v_max3_f32 v{MN+qt}, v{a}, v{a+1}, v{a+2}"); t(f"v_max3_f32 v{MN+qt}, v{MN+qt}, v{a+3}, v{b}")
        t(f"v_max3_f32 v{MN+qt}, v{MN+qt}, v{b+1}, v{b+2}"); t(f"v_max3_f32 v{MN+qt}, v{MN+qt}, v{b+3}, v{M_+qt}")
    for sw in ("v_permlane16_swap_b32", "v_permlane32_swap_b32"):
        for qt in range(4): t(f"v_mov_b32 v{AL+qt}, v{MN+qt}")
        t("s_nop 1")
        for qt in range(4): t(f"{sw} v{MN+qt}, v{AL+qt}")
        t("s_nop 1")
        for qt in range(4): t(f"v_max_f32 v{MN+qt}, v{MN+qt}, v{AL+qt}")
    for qt in range(4):
        t(f"v_sub_f32 v{AL+qt}, v{M_+qt}, v{MN+qt}"); t(f"v_exp_f32 v{AL+qt}, v{AL+qt}"); t(f"v_mov_b32 v{M_+qt}, v{MN+qt}")
    t("s_nop 0")
    for qt in range(4):
        t(f"v_mul_f32 v{LS+qt}, v{LS+qt}, v{AL+qt}")
        for kt in range(2):
            for r in range(4):
                reg = Sreg(kt, qt) + r
                t(f"v_sub_f32 v{reg}, v{reg}, v{M_+qt}"); t(f"v_exp_f32 v{reg}, v{reg}"); t("s_nop 0")
                t(f"v_add_f32 v{LS+qt}, v{LS+qt}, v{reg}")
            for h2 in range(2):
                t(f"v_cvt_pk_bf16_f32 v{P[0]+4*qt+2*kt+h2}, v{Sreg(kt,qt)+2*h2}, v{Sreg(kt,qt)+2*h2+1}")
    def rescale():
        for dt in range(16):
            for qt in range(2):
                for r in range(4): t(f"v_mul_f32 v{O+(dt*2+qt)*4+r}, v{O+(dt*2+qt)*4+r}, v{AL+qt}")
                for r in range(4): t(f"v_accvgpr_read_b32 v{NEGM+12+r}, a{aO + (dt*2+qt)*4 + r}")
                for r in range(4): t(f"v_mul_f32 v{NEGM+12+r}, v{NEGM+12+r}, v{AL+2+qt}")
                for r in range(4): t(f"v_accvgpr_write_b32 a{aO + (dt*2+qt)*4 + r}, v{NEGM+12+r}")
    rescale()
    t("s_nop 1")
    for dt in range(16):
        for u in range(2): t(f"ds_read_b64_tr_b16 {vr(RING+2*u,2)}, v{VA+(dt&7)} offset:{u*8192 + (dt>>3)*256}")
        t("s_waitcnt lgkmcnt(0)")
        for qt in range(4): t(f"{M16} {Oreg(dt,qt)}, {vr(RING,4)}, {vr(P[0]+4*qt,4)}, {Oreg(dt,qt)}")
        t("s_nop 3")
    t("s_nop 7")
    t("K2_SL_NEXT:")
    t("s_add_u32 s58, s58, 1"); t("s_cmp_lt_u32 s58, 16"); t("s_cbranch_scc1 K2_SL_LOOP")
    t("s_barrier")
    t(f"s_lshl_b32 s60, s48, 10"); t(f"s_add_u32 s60, s60, {MX}"); t(f"v_add_u32 v255, s60, v{L16}")
    t(f"ds_write_b128 v255, {vr(M_,4)}")
    t("s_xor_b32 s60, s60, 2048"); t(f"v_add_u32 v255, s60, v{L16}")
    t("s_waitcnt lgkmcnt(0)"); t("s_barrier")
    t(f"ds_read_b128 {vr(MN,4)}, v255"); t("s_waitcnt lgkmcnt(0)")
    for qt in range(4): t(f"v_max_f32 v{RING+qt}, v{M_+qt}, v{MN+((qt+2)&3)}")
    for qt in range(4): t(f"v_sub_f32 v{AL+qt}, v{M_+qt}, v{RING+qt}"); t(f"v_exp_f32 v{AL+qt}, v{AL+qt}")
    t("s_nop 0")
    for qt in range(4): t(f"v_mul_f32 v{LS+qt}, v{LS+qt}, v{AL+qt}")
    t(f"v_mov_b32 v{MREF}, v{RING}"); t(f"v_mov_b32 v{MREF+1}, v{RING+1}")
    rescale()
    t("s_barrier")
    T += [x for x in resume]
    T += cap(lambda e: srd(e, 24, 's4', 's5', SPILL, 256*32768))
    t("s_lshl_b32 s60, s2, 15"); t("s_lshl_b32 s61, s48, 13"); t("s_add_u32 s60, s60, s61"); t("s_add_u32 s61, s60, 4096")
    for i in range(8): t(f"buffer_load_dwordx4 {vr(BASE(i),4)}, v{L16}, s[24:27], {'s60' if i < 4 else 's61'} offen offset:{(i%4)*1024} sc1")
    T += lred + ["s_nop 7"] + [owr(i) for i in range(32)] + ["s_branch K2_POSTB"]
    L += hazard.autofix(T)
    e("K2_END:")
    e("s_endpgm")
    i0 = L.index("K2_LOOP:"); i1 = L.index("K2_EPI:")
    lin = L[i0-60:i1] + L[i0:i1] + L[i1:i1+900]
    errs = hazard.check(lin, 'k2g')
    return L, kernel_desc(name, 512, 256), errs
```

```python
from gen_common import *
import hazard, struct
M16 = "v_mfma_f32_16x16x32_bf16"
fb = lambda x: hex(struct.unpack('<I', struct.pack('<f', x))[0])
OWN = 49152
MXE = 114688
OWNML = MXE + 4096
ACT = 0

def gen_tail(o, it14, it15, W):
    O = 0; S = 128; P = [160, 176]; NEGM = 192; RING = 208; KA = 232; VA = 236; DV = 244; LS = 248; MREF = 252
    aO = 128
    FUSED = o.get('fusedk')
    CS = ' sc1' if (FUSED and o.get('csc1', True)) else ''
    T = []; t = T.append
    def stamp(k):
        if o['stamp']: t(f"s_memrealtime s[{80+2*k}:{81+2*k}]")
    def S_(fn):
        buf = []; fn(buf.append); T.extend(buf)
    S_(lambda e: srd(e, 12, 's4', 's5', WF_OFF, 262144))
    t("s_mul_i32 s60, s51, 2048000")
    t(f"s_add_u32 s61, s60, {G_OFF:#x}"); S_(lambda e: srd(e, 24, 's4', 's5', 's61', 2048000))
    t(f"s_add_u32 s61, s60, {U_OFF:#x}"); S_(lambda e: srd(e, 28, 's4', 's5', 's61', 2048000))
    t("s_mov_b32 s34, 2560"); t("s_mov_b32 s35, 0x20000")
    t("s_mov_b32 s38, 4096000"); t("s_mov_b32 s39, 0x20000")
    t("s_mov_b32 s42, 4096000"); t("s_mov_b32 s43, 0x20000")
    S_(lambda e: srd(e, 16, 's4', 's5', OP_OFF, 64*16*16384))
    S_(lambda e: srd(e, 20, 's4', 's5', ML_OFF, 64*16*256))
    t("s_lshl_b32 s62, s52, 7"); t("s_lshl_b32 s60, s53, 5"); t("s_add_u32 s62, s62, s60")
    t("s_lshl_b32 s64, s49, 1"); t("s_add_u32 s64, s64, s50")
    t("v_mbcnt_lo_u32_b32 v254, -1, 0"); t("v_mbcnt_hi_u32_b32 v254, -1, v254")
    t("v_lshlrev_b32 v247, 4, v254")
    t("v_and_b32 v246, 31, v254"); t("v_lshlrev_b32 v246, 4, v246")
    t("v_lshrrev_b32 v255, 5, v254")
    t("s_lshl_b32 s60, s48, 1"); t("v_add_u32 v255, s60, v255")
    t("v_lshlrev_b32 v255, 2, v255"); t("v_add_u32 v255, s62, v255")
    t("v_lshl_add_u32 v244, v255, 9, v246")
    t("v_subrev_u32 v245, 1024, v244")
    t("s_lshl_b32 s60, s48, 15"); t("v_add_u32 v254, s60, v247")
    t("s_add_u32 s61, s60, 16384"); t("s_lshl_b32 s66, s50, 14"); t("s_add_u32 s66, s66, 131072")
    t("s_cmp_eq_u32 s49, 1"); t("s_cselect_b32 s61, s66, s61")
    t("v_add_u32 v255, s61, v247")
    t("K2_HEADEND_PLACEHOLDER") if False else None
    head = list(T); T.clear()
    DWR = [192, 196, 200, 204, 232]
    cl = []
    for i in range(8):
        if i < 2: cl.append((f"buffer_load_dwordx4 {vr(S+4*i,4)}, v245, s[24:27], 0 offen offset:{512*i}{CS}", ('G', i)))
        else: cl.append((f"buffer_load_dwordx4 {vr(S+4*i,4)}, v244, s[24:27], 0 offen offset:{512*(i-2)}{CS}", ('G', i)))
    for i in range(4): cl.append((f"buffer_load_dwordx4 {vr(P[0]+4*i,4)}, v244, s[28:31], 0 offen offset:{512*i}{CS}", ('U', i)))
    for i in range(5): cl.append((f"buffer_load_dwordx4 {vr(DWR[i],4)}, v246, s[32:35], 0 offen offset:{512*i}", ('DW', i)))
    def owr(idx):
        return f"ds_write_b128 v{254 if idx < 16 else 255}, {ar(aO+4*idx,4)} offset:{(idx%16)*1024}"
    w2 = []
    for m in range(8):
        for a in range(4):
            pre = []
            if m % 4 == 0:
                pre = [f"s_lshl_b32 s{66+a}, s48, 16", f"s_add_u32 s{66+a}, s{66+a}, {a*16384 + 8192 + (m>>2)*4096}"]
            w2.append((pre, f"buffer_load_dwordx4 {ar((a*8+m)*4,4)}, v247, s[12:15], s{66+a} offen offset:{(m&3)*1024}{CS}", ('W2', m, a)))
    resume = list(head) + sum([pre + [txt] for pre, txt, tag in w2], []) + [txt for txt, tag in cl]
    out = list(head)
    nm = 0
    step14 = o.get('w2s14', 4)
    for x in it14:
        out.append(x)
        if x.startswith('v_mfma'):
            nm += 1
            if nm > 66 and nm % step14 == 2 and w2:
                pre, txt, tag = w2.pop(0); out += pre; out.append(txt); W.issue('vm', tag)
    lastS = max(i for i, x in enumerate(it15) if x.startswith('v_cvt_pk') or x.startswith('v_exp') or x.startswith('v_add_f32'))
    ci = 0; nm = 0; wr = 0
    bar_done = False
    for i, x in enumerate(it15):
        out.append(x)
        if not bar_done and i >= 6 and not x.startswith('v_mfma'):
            out.append("s_barrier"); bar_done = True
        if i <= lastS and i % o.get('w2s15', 4) == 1 and w2:
            pre, txt, tag = w2.pop(0); out += pre; out.append(txt); W.issue('vm', tag)
        if x.startswith('v_mfma'):
            nm += 1
            if i > lastS and nm % 4 == 2:
                if w2:
                    pre, txt, tag = w2.pop(0); out += pre; out.append(txt); W.issue('vm', tag)
                elif ci < len(cl):
                    txt, tag = cl[ci]; ci += 1
                    out.append(txt); W.issue('vm', tag)
            if nm % 2 == 0:
                dt_ok = (nm - 9) // 4
                if wr < 2*dt_ok and wr < 32 and dt_ok >= 1:
                    out.append(owr(wr)); wr += 1
    while w2:
        pre, txt, tag = w2.pop(0); out += pre; out.append(txt); W.issue('vm', tag)
    while ci < len(cl):
        txt, tag = cl[ci]; ci += 1; out.append(txt); W.issue('vm', tag)
    T.extend(out)
    if o['stamp']: t("s_memtime s[98:99]")
    stamp(0)
    lred = []
    for sw in ("v_permlane16_swap_b32", "v_permlane32_swap_b32"):
        for qt in range(4): lred.append(f"v_mov_b32 v{236+qt}, v{LS+qt}")
        lred.append("s_nop 1")
        for qt in range(4): lred.append(f"{sw} v{LS+qt}, v{236+qt}")
        lred.append("s_nop 1")
        for qt in range(4): lred.append(f"v_add_f32 v{LS+qt}, v{LS+qt}, v{236+qt}")
    T.extend(lred)
    resume += lred + ["s_nop 7"] + [owr(i) for i in range(32)] + ["s_branch K2_POSTB"]
    t("s_nop 7")
    while wr < 32:
        t(owr(wr)); wr += 1
    t("K2_POSTB:")
    t("s_waitcnt lgkmcnt(0)")
    t("s_barrier")
    t("s_lshl_b32 s60, s65, 7"); t("s_lshl_b32 s61, s64, 2"); t("s_add_u32 s60, s60, s61")
    if FUSED: t("s_add_u32 s60, s60, 16")
    t("buffer_load_dword v241, off, s[44:47], s60 sc1"); W.issue('vm', 'WORD')
    w1 = []
    for m in range(8):
        for a in range(4):
            pre = []
            if m % 4 == 0:
                pre = [f"s_lshl_b32 s{66+a}, s48, 16", f"s_add_u32 s{66+a}, s{66+a}, {a*16384 + (m>>2)*4096}"]
            w1.append((pre, f"buffer_load_dwordx4 {ar(128+(a*8+m)*4,4)}, v247, s[12:15], s{66+a} offen offset:{(m&3)*1024}{CS}", ('W1', m, a)))
    def pload(n=1, lst=None):
        lst = pend if lst is None else lst
        for _ in range(n):
            if not lst: return
            pre, txt, tag = lst.pop(0)
            T.extend(pre); t(txt); W.issue('vm', tag)
    t("v_lshrrev_b32 v240, 1, v247")
    t("s_lshl_b32 s60, s48, 10"); t(f"s_add_u32 s60, s60, {MXE}"); t("v_add_u32 v240, s60, v240")
    t(f"ds_write_b64 v240, {vr(LS+2,2)}")
    t("v_max_f32 v238, v248, v249"); t("v_max3_f32 v238, v238, v250, v251")
    t("v_add_f32 v239, v248, v249"); t("v_add_f32 v239, v239, v250"); t("v_add_f32 v239, v239, v251")
    t("v_max_f32 v238, v238, v239")
    t("s_mov_b32 s57, 0x71800000")
    t("v_cmp_ngt_f32 vcc, s57, v239")
    t("s_nop 1")
    t("s_cmp_lg_u64 vcc, 0")
    t("s_cselect_b32 s57, 1, 0")
    t("v_mov_b32 v238, s57")
    t(f"s_lshl_b32 s57, s48, 2"); t(f"s_add_u32 s57, s57, {MXE + 8192}"); t("v_mov_b32 v239, s57")
    t("ds_write_b32 v239, v238")
    t("v_xor_b32 v254, 0x10000, v254")
    t("s_mov_b32 s57, 0x4000"); t("s_cmp_eq_u32 s49, 1"); t("s_cselect_b32 s60, s57, 0x10000")
    t("v_xor_b32 v255, s60, v255")
    bufs = [P[1], RING]
    def rd(b):
        for k in range(4):
            idx = 4*b + k
            t(f"ds_read_b128 {vr(bufs[b%2]+4*k,4)}, v{254 if idx < 16 else 255} offset:{(idx%16)*1024}")
    rd(0); rd(1)
    for b in range(8):
        t(f"s_waitcnt lgkmcnt({4 if b < 7 else 0})")
        for k in range(4):
            d = O + 4*(4*b+k); s = bufs[b%2] + 4*k
            t(f"v_pk_add_f32 v[{d}:{d+1}], v[{d}:{d+1}], v[{s}:{s+1}]")
            t(f"v_pk_add_f32 v[{d+2}:{d+3}], v[{d+2}:{d+3}], v[{s+2}:{s+3}]")
        if b + 2 < 8: rd(b+2)
        pload(o.get('w1x', 1), w1)
    t("s_barrier")
    t("v_xor_b32 v240, 0x800, v240")
    t(f"ds_read_b64 v[236:237], v240")
    t(f"v_mov_b32 v239, {MXE + 8192}")
    t("ds_read_b128 v[232:235], v239") if False else t("ds_read_b128 v[212:215], v239")
    stamp(1)
    for m in range(8):
        for tt in range(2):
            a = 16*m + 4*tt; b = a + 8
            t(f"v_cvt_pk_bf16_f32 v{a}, v{a}, v{a+1}")
            t(f"v_cvt_pk_bf16_f32 v{a+1}, v{a+2}, v{a+3}")
            t(f"v_cvt_pk_bf16_f32 v{a+2}, v{b}, v{b+1}")
            t(f"v_cvt_pk_bf16_f32 v{a+3}, v{b+2}, v{b+3}")
    t("v_mbcnt_lo_u32_b32 v208, -1, 0"); t("v_mbcnt_hi_u32_b32 v208, -1, v208")
    t("v_and_b32 v209, 15, v208")
    t("v_lshrrev_b32 v210, 4, v208")
    t("s_mul_i32 s60, s51, 4000"); t("s_add_u32 s60, s60, s62")
    t("v_add_u32 v211, s60, v209"); t("v_lshlrev_b32 v211, 9, v211")
    t("v_lshl_add_u32 v211, v210, 3, v211")
    t("s_lshl_b32 s60, s48, 7"); t("v_add_u32 v242, s60, v211")
    t("v_add_u32 v243, 8192, v242")
    n = W.need('vm', ['WORD'])
    t(f"s_waitcnt vmcnt({n}) lgkmcnt(0)")
    W.drain('lgkm')
    t("v_or_b32 v212, v212, v213"); t("v_or_b32 v214, v214, v215"); t("v_or_b32 v212, v212, v214")
    t("s_nop 0")
    t("v_readfirstlane_b32 s57, v212")
    t("s_nop 3")
    t("s_andn2_b32 s57, s57, s54")
    t("s_cmp_lg_u32 s57, 0")
    t("s_cbranch_scc1 K2_SLOW")
    t(f"v_add_f32 v{LS}, v{LS}, v236"); t(f"v_add_f32 v{LS+1}, v{LS+1}, v237")
    t("s_cmp_eq_u32 s64, s53")
    t("s_cbranch_scc0 K2_PUBG")
    t(f"v_add_u32 v254, {OWN}, v247")
    for m in range(8):
        for tt in range(2):
            t(f"ds_write_b128 v254, {vr(16*m+4*tt,4)} offset:{(m*2+tt)*1024}")
    t("v_lshlrev_b32 v255, 3, v209"); t(f"v_add_u32 v255, {OWNML}, v255")
    for tt in range(2):
        t(f"v_mov_b32 v{212+2*tt}, v{MREF+tt}"); t(f"v_mov_b32 v{213+2*tt}, v{LS+tt}")
        t(f"ds_write_b64 v255, v[{212+2*tt}:{213+2*tt}] offset:{128*tt}")
    t("s_branch K2_PUBD")
    t("K2_PUBG:")
    t("s_lshl_b32 s60, s52, 7"); t("s_lshl_b32 s61, s64, 5"); t("s_add_u32 s60, s60, s61")
    t("s_cmp_lt_u32 s60, 4000")
    t("s_cbranch_scc0 K2_PUBD")
    t("s_lshl_b32 s60, s65, 2"); t("s_add_u32 s60, s60, s64"); t("s_lshl_b32 s60, s60, 2"); t("s_add_u32 s60, s60, s53")
    t("s_lshl_b32 s61, s60, 14")
    t("v_lshlrev_b32 v255, 3, v209")
    for tt in range(2):
        t(f"v_mov_b32 v{212+2*tt}, v{MREF+tt}"); t(f"v_mov_b32 v{213+2*tt}, v{LS+tt}")
    t("v_readfirstlane_b32 s57, v241")
    t("s_nop 3"); t("s_xor_b32 s57, s57, s3" if FUSED else "s_and_b32 s57, s57, 15")
    t("s_cmp_eq_u32 s57, s63")
    t("s_cbranch_scc1 K2_PUBL" if o.get('l2pub', True) else "s_nop 0")
    for lbl, fl in (("", " sc1"), ("K2_PUBL", (" " + o['l2fl']) if o.get('l2fl') else "")):
        if lbl: t(f"{lbl}:")
        t("s_lshl_b32 s61, s60, 14")
        for m in range(8):
            for tt in range(2):
                f = m*2 + tt
                if f % 4 == 0 and f: t("s_add_u32 s61, s61, 4096")
                t(f"buffer_store_dwordx4 {vr(16*m+4*tt,4)}, v247, s[16:19], s61 offen offset:{(f%4)*1024}{fl}")
        t("s_lshl_b32 s61, s60, 8")
        t("v_cmp_gt_u32 vcc, 16, v208")
        t("s_and_saveexec_b64 s[70:71], vcc")
        for tt in range(2):
            t(f"buffer_store_dwordx2 v[{212+2*tt}:{213+2*tt}], v255, s[20:23], s61 offen offset:{128*tt}{fl}")
        t("s_mov_b64 exec, s[70:71]")
        if not lbl: t("s_branch K2_PUBD")
    t("K2_PUBD:")
    def atomic(lbl):
        t("s_cmp_eq_u32 s48, 0")
        t(f"s_cbranch_scc0 {lbl}")
        t("s_lshl_b32 s60, s65, 7"); t("s_lshl_b32 s61, s53, 2"); t("s_add_u32 s60, s60, s61")
        t("s_mov_b32 s61, s3" if FUSED else "s_or_b32 s61, s63, 0x80"); t("v_mov_b32 v215, s61")
        t("v_cmp_eq_u32 vcc, 0, v208")
        t("s_and_saveexec_b64 s[70:71], vcc")
        t("buffer_store_dword v215, off, s[44:47], s60 sc1")
        t("s_mov_b64 exec, s[70:71]")
        t(f"{lbl}:")
    t("s_cmp_lt_u32 s62, 4000")
    t("s_cbranch_scc1 K2_VALID")
    t("s_waitcnt vmcnt(0) lgkmcnt(0)")
    t("s_barrier")
    atomic("K2_NOATOM0")
    t("s_branch K2_FIN")
    t("K2_VALID:")
    stamp(2)
    pend = []
    for a in range(4):
        for tt in range(2):
            pend.append(([], f"buffer_load_dwordx2 {vr(176+(a*2+tt)*2,2)}, v{242+tt}, s[36:39], 0 offen offset:{32*a}", ('X', a, tt)))
    pend = w1 + pend
    w1 = []
    W.issue('vm', 'PUB')
    DWF = 0; CV = 40; GT = 72; GR = S; UR = P[0]
    t("s_nop 1")
    for i in range(5):
        for k in range(4):
            t(f"v_lshlrev_b32 v{DWF+8*i+2*k}, 16, v{DWR[i]+k}")
            t(f"v_and_b32 v{DWF+8*i+2*k+1}, 0xffff0000, v{DWR[i]+k}")
        pload(1)
    for rho in range(8):
        g = GT + 8*(rho % 2)
        for k in range(4):
            t(f"v_lshlrev_b32 v{g+2*k}, 16, v{GR+4*rho+k}")
            t(f"v_and_b32 v{g+2*k+1}, 0xffff0000, v{GR+4*rho+k}")
        for i in range(4):
            tap = rho - i
            if 0 <= tap <= 4:
                for k in range(4):
                    d = f"v[{CV+8*i+2*k}:{CV+8*i+2*k+1}]"
                    a_ = f"v[{g+2*k}:{g+2*k+1}]"; b_ = f"v[{DWF+8*tap+2*k}:{DWF+8*tap+2*k+1}]"
                    if tap == 0: t(f"v_pk_mul_f32 {d}, {a_}, {b_}")
                    else: t(f"v_pk_fma_f32 {d}, {a_}, {b_}, {d}")
                pload(1)
    n = W.need('vm', ['PUB'])
    t(f"s_waitcnt vmcnt({n}) lgkmcnt(0)")
    t("s_barrier")
    atomic("K2_NOATOM")
    t("v_and_b32 v212, 31, v208")
    t("v_lshrrev_b32 v213, 2, v212")
    t("v_and_b32 v214, 3, v212")
    t("v_and_b32 v215, 1, v213"); t("v_lshl_or_b32 v215, v215, 2, v214")
    t("v_lshrrev_b32 v216, 5, v208"); t("s_lshl_b32 s60, s48, 1"); t("v_add_u32 v216, s60, v216")
    t("v_lshrrev_b32 v217, 2, v216")
    t("v_and_b32 v216, 3, v216"); t("v_lshlrev_b32 v216, 2, v216")
    t("v_lshl_add_u32 v216, v214, 4, v216")
    t("v_lshl_add_u32 v213, v213, 1, v217")
    t("v_lshlrev_b32 v213, 10, v213"); t(f"v_add_u32 v213, {ACT + 16*1024}, v213")
    k0 = -2.0*1.4426950408889634*0.7978845608028654
    t(f"v_mov_b32 v88, {fb(k0)}"); t(f"v_mov_b32 v90, {fb(k0*0.044715)}"); t("v_mov_b32 v92, 1.0")
    for i in range(4):
        g = GT + 8*(i % 2)
        for k in range(4):
            t(f"v_lshlrev_b32 v{g+2*k}, 16, v{UR+4*i+k}")
            t(f"v_and_b32 v{g+2*k+1}, 0xffff0000, v{UR+4*i+k}")
        tmp = [96+2*k for k in range(4)]
        X = lambda k: f"v[{g+2*k}:{g+2*k+1}]"; Tt = lambda k: f"v[{tmp[k]}:{tmp[k]+1}]"
        for k in range(4): t(f"v_pk_mul_f32 {Tt(k)}, {X(k)}, {X(k)}")
        for k in range(4): t(f"v_pk_fma_f32 {Tt(k)}, {Tt(k)}, v[90:91], v[88:89] op_sel_hi:[1,0,0]")
        pload(1)
        for k in range(4): t(f"v_pk_mul_f32 {Tt(k)}, {Tt(k)}, {X(k)}")
        for k in range(4): t(f"v_exp_f32 v{tmp[k]}, v{tmp[k]}"); t(f"v_exp_f32 v{tmp[k]+1}, v{tmp[k]+1}")
        pload(1)
        for k in range(4): t(f"v_pk_add_f32 {Tt(k)}, {Tt(k)}, v[92:93] op_sel_hi:[1,0]")
        for k in range(4): t(f"v_rcp_f32 v{tmp[k]}, v{tmp[k]}"); t(f"v_rcp_f32 v{tmp[k]+1}, v{tmp[k]+1}")
        pload(1)
        for k in range(4): t(f"v_pk_mul_f32 {X(k)}, {X(k)}, {Tt(k)}")
        for k in range(4):
            t(f"v_pk_mul_f32 v[{g+2*k}:{g+2*k+1}], v[{g+2*k}:{g+2*k+1}], v[{CV+8*i+2*k}:{CV+8*i+2*k+1}]")
        for k in range(4):
            t(f"v_cvt_pk_bf16_f32 v{GR+4*i+k}, v{g+2*k}, v{g+2*k+1}")
        t(f"v_add_u32 v218, {i}, v216")
        t("v_xor_b32 v218, v218, v215")
        t("v_lshl_add_u32 v218, v218, 4, v213")
        t(f"ds_write_b128 v218, {vr(GR+4*i,4)}")
        pload(1)
    pload(100)
    t("v_lshlrev_b32 v212, 4, v210"); t("v_xor_b32 v212, v247, v212"); t("v_xor_b32 v213, 64, v212")
    t("s_waitcnt lgkmcnt(0)")
    t("s_barrier")
    stamp(3)
    ACC = 96
    RB = [216, 220, 224, 228]
    def gemm(part, lst=None):
        Wl = Waiter()
        evs = []
        for m in range(8):
            for tt in range(2):
                evs.append((8*(m-1) + 4*tt, 1, 'rd', m, tt))
            for a in range(4):
                for tt in range(2): evs.append((8*m + 2*a + tt, 0, 'mf', m, a, tt))
        evs.sort(key=lambda x: (x[0], x[1]))
        for x in evs:
            if x[2] == 'rd':
                m, tt = x[3], x[4]
                ring = RB[(m*2+tt) % 4]
                if part == 1: t(f"ds_read_b128 {vr(ring,4)}, v{212+(m&1)} offset:{ACT + ((8+m)*2+tt)*1024}")
                else: t(f"ds_read_b128 {vr(ring,4)}, v247 offset:{ACT + (m*2+tt)*1024}")
                Wl.issue('lgkm', (m, tt))
            else:
                m, a, tt = x[3], x[4], x[5]
                ring = RB[(m*2+tt) % 4]
                n = Wl.need('lgkm', [(m, tt)])
                nv = W.need('vm', [('W2' if part == 1 else 'W1', m, a)])
                if nv is not None and o.get('atomslack', True): pass
                ws_ = ([f"vmcnt({nv})"] if nv is not None else []) + ([f"lgkmcnt({n})"] if n is not None else [])
                if ws_: t("s_waitcnt " + ' '.join(ws_))
                acc = vr(ACC + (a*2+tt)*4, 4)
                c = '0' if (part == 1 and m == 0) else acc
                wreg = ar((a*8+m)*4, 4) if part == 1 else ar(128+(a*8+m)*4, 4)
                t(f"{M16} {acc}, {wreg}, {vr(ring,4)}, {c}")
                if lst is not None and tt == 1 and o.get('w1in', 1): pload(1, lst)
    t("s_cmp_eq_u32 s48, 0")
    t("s_cbranch_scc0 K2_POLLD")
    t("s_lshl_b32 s60, s65, 7")
    t("K2_POLL:")
    t("buffer_load_dwordx4 v[220:223], off, s[44:47], s60 sc1")
    t("s_waitcnt vmcnt(0)")
    if FUSED:
        for k in range(4): t(f"v_xor_b32 v{220+k}, s3, v{220+k}")
        t("v_or_b32 v220, v220, v221"); t("v_or_b32 v222, v222, v223"); t("v_or_b32 v220, v220, v222")
        t("s_nop 0")
        t("v_readfirstlane_b32 s61, v220")
        t("s_nop 3")
        t("s_cmp_eq_u32 s61, 0")
    else:
        t("v_and_b32 v220, v220, v221"); t("v_and_b32 v222, v222, v223"); t("v_and_b32 v220, v220, v222")
        t("s_nop 0")
        t("v_readfirstlane_b32 s61, v220")
        t("s_nop 3")
        t("s_bitcmp1_b32 s61, 7")
    t("s_cbranch_scc1 K2_POLLD")
    t("s_sleep 2")
    t("s_branch K2_POLL")
    t("K2_POLLD:")
    t("s_barrier")
    stamp(4)
    PR = 0; MLR = 64
    t("v_lshlrev_b32 v215, 3, v209")
    for k in range(1, 4):
        t(f"s_add_u32 s60, s53, {k}"); t("s_and_b32 s60, s60, 3")
        t("s_lshl_b32 s61, s65, 2"); t("s_add_u32 s61, s61, s53"); t("s_lshl_b32 s61, s61, 2"); t("s_add_u32 s61, s61, s60")
        t(f"s_lshl_b32 s{63+0}, s61, 8") if False else None
        t(f"s_lshl_b32 s{70+0}, s61, 8") if False else None
        t(f"s_mov_b32 s{56+k}, s61")
    for k in range(1, 4):
        t(f"s_lshl_b32 s60, s{56+k}, 8")
        for tt in range(2):
            t(f"buffer_load_dwordx2 {vr(MLR+(k*2+tt)*2,2)}, v215, s[20:23], s60 offen offset:{128*tt} sc1"); W.issue('vm', ('ML', k, tt))
    for k in range(1, 4):
        t(f"s_lshl_b32 s61, s{56+k}, 14"); t("s_lshl_b32 s60, s48, 12"); t("s_add_u32 s61, s61, s60")
        for ff in range(4):
            t(f"buffer_load_dwordx4 {vr(PR+((k-1)*4+ff)*4,4)}, v247, s[16:19], s61 offen offset:{ff*1024} sc1"); W.issue('vm', ('PP', k, ff))
    gemm(1)
    stamp(5)
    t(f"v_add_u32 v216, {OWNML}, v215")
    for tt in range(2): t(f"ds_read_b64 {vr(MLR+tt*2,2)}, v216 offset:{128*tt}")
    t("s_lshl_b32 s60, s48, 12"); t(f"s_add_u32 s60, s60, {OWN}"); t("v_add_u32 v216, s60, v247")
    for ff in range(4): t(f"ds_read_b128 {vr(48+4*ff,4)}, v216 offset:{ff*1024}")
    n = W.need('vm', [('ML', 3, 1)])
    t(f"s_waitcnt vmcnt({n}) lgkmcnt(0)")
    CF = 80
    for tt in range(2):
        for k in range(4): t(f"v_log_f32 v{128+k}, v{MLR+(k*2+tt)*2+1}")
        t("s_nop 0")
        for k in range(4): t(f"v_add_f32 v{128+k}, v{128+k}, v{MLR+(k*2+tt)*2}")
        t("v_max_f32 v132, v128, v129"); t("v_max3_f32 v132, v132, v130, v131")
        for k in range(4): t(f"v_sub_f32 v{128+k}, v{128+k}, v132")
        for k in range(4): t(f"v_exp_f32 v{128+k}, v{128+k}")
        for k in range(4): t(f"v_sub_f32 v{CF+2*(k*2+tt)}, v{MLR+(k*2+tt)*2}, v132")
        t("v_add_f32 v128, v128, v129"); t("v_add_f32 v130, v130, v131")
        for k in range(4): t(f"v_exp_f32 v{CF+2*(k*2+tt)}, v{CF+2*(k*2+tt)}")
        t("v_add_f32 v128, v128, v130")
        t("v_rcp_f32 v128, v128")
        t("s_nop 0")
        for k in range(4): t(f"v_mul_f32 v{CF+2*(k*2+tt)}, v{CF+2*(k*2+tt)}, v128")
    MA = 128; GT2 = 160
    for k in range(4):
        for ff in range(4):
            tt = ff & 1
            src = 48 + 4*ff if k == 0 else PR + ((k-1)*4+ff)*4
            if k > 0:
                n = W.need('vm', [('PP', k, ff)])
                if n is not None: t(f"s_waitcnt vmcnt({n})")
            for q in range(4):
                g = GT2 + 2*((ff*4+q) % 8)
                t(f"v_lshlrev_b32 v{g}, 16, v{src+q}")
                t(f"v_and_b32 v{g+1}, 0xffff0000, v{src+q}")
                d = f"v[{MA+(ff*4+q)*2}:{MA+(ff*4+q)*2+1}]"
                c = f"v[{CF+2*(k*2+tt)}:{CF+2*(k*2+tt)+1}]"
                if k == 0: t(f"v_pk_mul_f32 {d}, v[{g}:{g+1}], {c} op_sel_hi:[1,0]")
                else: t(f"v_pk_fma_f32 {d}, v[{g}:{g+1}], {c}, {d} op_sel_hi:[1,0,1]")
    t("s_lshl_b32 s60, s48, 12"); t(f"s_add_u32 s60, s60, {ACT}"); t("v_add_u32 v216, s60, v247")
    for ff in range(4):
        for q in range(4): t(f"v_cvt_pk_bf16_f32 v{ff*4+q}, v{MA+(ff*4+q)*2}, v{MA+(ff*4+q)*2+1}")
        t(f"ds_write_b128 v216, {vr(ff*4,4)} offset:{ff*1024}")
    t("s_waitcnt lgkmcnt(0)")
    t("s_barrier")
    stamp(6)
    gemm(0)
    nv = W.need('vm', [('X', 3, 1)])
    if nv is not None: t(f"s_waitcnt vmcnt({nv})")
    t("s_nop 7")
    for a in range(4):
        for tt in range(2):
            acc = ACC + (a*2+tt)*4; xr = 176 + (a*2+tt)*2
            for q in range(2):
                g = 128 + 4*((a*2+tt) % 4) + 2*q
                t(f"v_lshlrev_b32 v{g}, 16, v{xr+q}"); t(f"v_and_b32 v{g+1}, 0xffff0000, v{xr+q}")
                t(f"v_pk_add_f32 v[{acc+2*q}:{acc+2*q+1}], v[{acc+2*q}:{acc+2*q+1}], v[{g}:{g+1}]")
            d = 2*(a*2+tt)
            t(f"v_cvt_pk_bf16_f32 v{d}, v{acc}, v{acc+1}"); t(f"v_cvt_pk_bf16_f32 v{d+1}, v{acc+2}, v{acc+3}")
            t(f"buffer_store_dwordx2 v[{d}:{d+1}], v{242+tt}, s[40:43], 0 offen offset:{32*a}{' '+o['ost'] if o.get('ost') else ''}")
    t("K2_FIN:")
    if o['stamp']:
        t("s_waitcnt vmcnt(0)")
        t("s_memtime s[94:95]"); t("s_memrealtime s[96:97]")
        t("s_waitcnt lgkmcnt(0)")
        t("s_cmp_eq_u32 s48, 0"); t("s_cbranch_scc0 K2_END")
        t("s_add_u32 s68, s4, 0x8000000"); t("s_addc_u32 s69, s5, 0"); t("s_mov_b32 s70, 0x100000"); t("s_mov_b32 s71, 0x20000")
        regs = [72, 76, 98, 94, 74, 78, 80, 96, 82, 84, 86, 88, 90, 92, 101, 100]
        for k, r in enumerate(regs): t(f"v_mov_b32 v{128+k}, s{r}")
        t("s_lshl_b32 s60, s2, 6"); t("v_mov_b32 v150, s60")
        for k in range(4): t(f"buffer_store_dwordx4 v[{128+4*k}:{131+4*k}], v150, s[68:71], 0 offen offset:{16*k}")
    return hazard.autofix(T), resume
```

```python
import sys, json
from gen_common import *
import gen_k1, gen_k2f, gen_k2g

HDR = """; Branchformer block  out = x + [softmax(LN(x)Wq (LN(x)Wk)^T / 16) LN(x)Wv Wao | (gelu(u) * dwconv(LN(gelu(g)))) Wdn] Wmerge   for gfx950
; generated by a hand-written python generator (schedule / wait counts / hazard padding)"""

def build(opts, path):
    text = []; descs = []
    hdr = HDR.split('\n')
    which = opts.get('which', ['k1', 'k2'])
    if opts.get('fused'):
        nm = 'standalone__conformer_family_branchformer__speech_kernel'
        o1 = dict(opts.get('k1') or {}); o1['fused'] = nm
        o2 = dict(opts.get('k2') or {}); o2['fusedk'] = True; o2['ct'] = o1.get('ct'); o2['fastfin'] = o1.get('fastfin', True) and not o1.get('ct'); o2['xaflag'] = o1.get('xaflag', True); o2['defer'] = o1.get('defer', True); o2['lean'] = o1.get('lean', True)
        L1, _, _ = gen_k1.gen_k1(o1)
        L2, _, errs = gen_k2f.gen_k2f(o2)
        for x in errs[:30]: print('HAZARD', x)
        text += L1 + L2; descs += kernel_desc(nm, 512, 256)
        if opts.get('probe') or opts.get('aslist'): hdr.append(f"; @launch kernel={nm} grid=(256,1,1) block=(256,1,1) lds=163840")
        else: hdr.append("; @launch grid=(256,1,1) block=(256,1,1) lds=163840")
        which = []
    if 'k1' in which:
        L, d, errs = gen_k1.gen_k1(opts.get('k1'))
        text += L; descs += d
        hdr.append("; @launch kernel=prep_kernel grid=(256,1,1) block=(256,1,1) lds=163840")
    if 'k2' in which:
        L, d, errs = (gen_k2f.gen_k2f if opts.get('v1') else gen_k2g.gen_k2g)(opts.get('k2'))
        for x in errs[:30]: print('HAZARD', x)
        if errs: print(len(errs), 'hazards')
        text += L; descs += d
        hdr.append("; @launch kernel=attn_kernel grid=(256,1,1) block=(256,1,1) lds=163840")
    if opts.get('probe'):
        L = kernel_header('probe_kernel') + ["s_load_dwordx2 s[4:5], s[0:1], 88", "s_memrealtime s[6:7]", "s_waitcnt lgkmcnt(0)",
            "s_add_u32 s8, s4, 0x8300000", "s_addc_u32 s9, s5, 0", "s_mov_b32 s10, 0x1000", "s_mov_b32 s11, 0x20000",
            "v_mov_b32 v1, s6", "v_mov_b32 v2, 0", "s_cmp_eq_u32 s2, 0", "s_cbranch_scc0 PR_END",
            "buffer_store_dword v1, v2, s[8:11], 0 offen", "PR_END:", "s_endpgm"]
        text += L; descs += kernel_desc('probe_kernel', 8, 8, 16)
        hdr.append("; @launch kernel=probe_kernel grid=(1,1,1) block=(64,1,1) lds=0")
    s = hdr + ['.amdgcn_target "amdgcn-amd-amdhsa--gfx950"', '.text'] + text + ['.section .rodata,"a"'] + descs
    open(path, 'w').write('\n'.join(s) + '\n')

if __name__ == '__main__':
    opts = json.loads(sys.argv[2]) if len(sys.argv) > 2 else {}
    build(opts, sys.argv[1])
```

```python
from gen_common import *
from tl import TL
import hazard, struct
SLOT = 16384
EX = 131072
fb = lambda x: hex(struct.unpack('<I', struct.pack('<f', x))[0])

def gen_k1(opt=None):
    o = dict(D=6, stamp=False, st='', npre=2, nln=4)
    if opt: o.update(opt)
    D = o['D']; ST = (' ' + o['st']) if o['st'] else ''
    FUSED = o.get('fused')
    name = FUSED if FUSED else 'prep_kernel'
    L = []; e = L.append
    B = 0; ACC = [64, 128]; KA = 192; KA2 = 200; VN = 208; VN2 = 216; DV = 224; DS = 228; XB = 200
    aR = 0; R = 8
    def stamp(T, k):
        if o['stamp']: T.append(f"s_memrealtime s[{72+2*k}:{73+2*k}]")
    L += kernel_header(name)
    e("s_cmp_ge_u32 s2, 256")
    e("s_cbranch_scc1 K2_END" if FUSED else "s_cbranch_scc1 K1_END")
    e("s_load_dwordx16 s[36:51], s[0:1], 0")
    e("s_load_dwordx2 s[52:53], s[0:1], 64")
    e("s_load_dwordx2 s[54:55], s[0:1], 88")
    if FUSED: e("s_load_dwordx2 s[58:59], s[0:1], 80")
    if o['stamp']:
        e("s_memtime s[60:61]"); e("s_memrealtime s[62:63]")
    e("v_lshrrev_b32 v232, 6, v0")
    e("v_and_b32 v240, 63, v0")
    e("v_lshrrev_b32 v241, 5, v240")
    e("v_and_b32 v242, 31, v240")
    e("v_readfirstlane_b32 s28, v232")
    e("s_and_b32 s29, s28, 1")
    e("s_lshr_b32 s30, s28, 1")
    e("s_lshl_b32 s31, s28, 12")
    CT = o.get('ct')
    if CT: e("s_mov_b32 s35, s2")
    else: e("s_sub_u32 s35, s2, 125"); e("s_cmp_lt_u32 s2, 125"); e("s_cselect_b32 s35, s2, s35")
    e("s_lshl_b32 s33, s28, 1")
    for k in range(4):
        e(f"v_add_u32 v234, {2*k}, v241"); e("v_and_b32 v234, 3, v234"); e("v_lshlrev_b32 v234, 2, v234")
        e(f"s_add_u32 s34, s33, {k>>1}"); e("s_and_b32 s34, s34, 3")
        e("v_or_b32 v234, s34, v234"); e("v_xor_b32 v234, v242, v234"); e("v_lshlrev_b32 v234, 4, v234")
        e("v_lshl_add_u32 v234, v241, 9, v234")
        e(f"v_add_u32 v{DS+k}, s31, v234")
    e("s_waitcnt lgkmcnt(0)")
    if FUSED:
        e("s_mov_b32 s4, s58"); e("s_mov_b32 s5, s59"); e("s_mov_b32 s6, 256"); e("s_mov_b32 s7, 0x20000")
        e("s_or_b32 s33, s2, s28"); e("s_cmp_eq_u32 s33, 0"); e("s_cbranch_scc0 K1_NOTAG")
        e("s_memrealtime s[56:57]"); e("s_waitcnt lgkmcnt(0)"); e("s_or_b32 s56, s56, 1")
        e("v_mov_b32 v234, s56")
        e("buffer_store_dword v234, off, s[4:7], 0 sc1")
        e("K1_NOTAG:")
    e("s_cmp_lt_u32 s2, 250"); e("s_cbranch_scc0 K1_NOX")
    srd(e, 16, 's36', 's37', 0, 8000*512)
    e("s_lshl_b32 s32, s35, 14" if CT else "s_lshl_b32 s32, s35, 15")
    for half in range(1 if CT else 2):
        e(f"s_add_u32 m0, s31, {EX + half*SLOT:#x}")
        if half: e("s_add_u32 s32, s32, 16384")
        else: e("s_nop 0")
        for k in range(4):
            e(f"buffer_load_dwordx4 v{DS+k}, s[16:19], s32 offen offset:{k*1024} lds")
    if o.get('pf', True):
        e("s_and_b32 s33, s2, 7"); e("s_cmp_lt_u32 s33, 2"); e("s_cbranch_scc1 K1_NOPF")
        e("s_lshr_b32 s34, s2, 3")
        e("s_cmp_ge_u32 s33, 6"); e("s_cbranch_scc1 K1_PF2")
        e("s_cmp_lt_u32 s34, 16"); e("s_cselect_b32 s8, s44, s42"); e("s_cselect_b32 s9, s45, s43")
        e("s_and_b32 s34, s34, 15"); e("s_lshl_b32 s34, s34, 13")
        e("s_branch K1_PF3")
        e("K1_PF2:")
        e("s_add_u32 s56, s52, 131072"); e("s_addc_u32 s57, s53, 0")
        e("s_cmp_lt_u32 s34, 16"); e("s_cselect_b32 s8, s50, s56"); e("s_cselect_b32 s9, s51, s57")
        e("s_and_b32 s34, s34, 15"); e("s_lshl_b32 s34, s34, 13")
        e("K1_PF3:")
        e("s_mov_b32 s10, 131072"); e("s_mov_b32 s11, 0x20000")
        e("v_lshlrev_b32 v232, 4, v240"); e("s_lshl_b32 s33, s28, 11"); e("s_add_u32 s34, s34, s33")
        e("buffer_load_dwordx4 v[244:247], v232, s[8:11], s34 offen")
        e("buffer_load_dwordx4 v[248:251], v232, s[8:11], s34 offen offset:1024")
        e("K1_NOPF:")
    e("K1_NOX:")
    first, second = ("K1_UG", "K1_Q") if o.get('ugfirst', True) else ("K1_Q", "K1_UG")
    if CT:
        e("s_cmp_lt_u32 s2, 250"); e("s_cbranch_scc1 K1_CT")
    else:
        e("s_cmp_lt_u32 s2, 125"); e(f"s_cbranch_scc1 {first}")
        e("s_cmp_lt_u32 s2, 250"); e(f"s_cbranch_scc1 {second}")
    e("s_cmp_lt_u32 s2, 254"); e("s_cbranch_scc1 K1_W1")
    e("s_branch K1_W2")

    def k_addr(T, dst, dst2, base_lines):
        t = T.append
        t("v_and_b32 v234, 3, v242"); t("v_lshlrev_b32 v234, 2, v234"); t("v_bfe_u32 v235, v242, 2, 2")
        t("v_or_b32 v234, v234, v235"); t("v_lshlrev_b32 v236, 9, v242")
        for x in base_lines: t(x)
        t("v_add_u32 v236, s33, v236")
        for jj in range(8):
            t(f"v_add_u32 v235, {2*jj}, v241"); t("v_xor_b32 v235, v235, v234")
            t(f"v_lshl_add_u32 v{dst+jj}, v235, 4, v236")
            if dst2 is not None: t(f"v_add_u32 v{dst2+jj}, 0x10000, v{dst+jj}")
    def ka_setup(T): k_addr(T, KA, KA2, ["s_lshl_b32 s33, s30, 14"])
    def xb_setup(T): k_addr(T, XB, None, ["s_lshl_b32 s33, s29, 14", f"s_add_u32 s33, s33, {EX}", "s_lshl_b32 s34, s30, 8", "s_add_u32 s33, s33, s34"])
    def vn_setup(T):
        t = T.append
        t("v_bfe_u32 v234, v240, 4, 1"); t("v_bfe_u32 v235, v240, 2, 2"); t("v_bfe_u32 v236, v240, 1, 1")
        t("v_lshl_add_u32 v236, v234, 1, v236"); t("v_and_b32 v237, 1, v240"); t("v_lshlrev_b32 v237, 3, v237")
        t("v_lshl_add_u32 v238, v241, 3, v235"); t("v_lshl_add_u32 v237, v238, 9, v237")
        t("s_lshl_b32 s33, s30, 8"); t("v_add_u32 v237, s33, v237")
        for a in range(4):
            for u in range(2):
                t(f"v_lshl_add_u32 v238, v241, 1, {u}"); t("v_lshl_or_b32 v238, v235, 2, v238")
                t(f"v_add_u32 v239, {4*a}, v236"); t("v_xor_b32 v238, v238, v239")
                t(f"v_lshl_add_u32 v{VN+a*2+u}, v238, 4, v237")
                if u: t(f"v_add_u32 v{VN+a*2+u}, {4*512}, v{VN+a*2+u}")
                t(f"v_add_u32 v{VN2+a*2+u}, 0x10000, v{VN+a*2+u}")
    def dma_voff(T, stride1024):
        t = T.append
        if not stride1024:
            for k in range(4): t(f"v_mov_b32 v{DV+k}, v{DS+k}")
            return
        t("s_lshl_b32 s33, s28, 1")
        for k in range(4):
            t(f"v_add_u32 v234, {2*k}, v241"); t("v_and_b32 v234, 3, v234"); t("v_lshlrev_b32 v234, 2, v234")
            t(f"s_add_u32 s34, s33, {k>>1}"); t("s_and_b32 s34, s34, 3")
            t("v_or_b32 v234, s34, v234"); t("v_xor_b32 v234, v242, v234"); t("v_lshlrev_b32 v234, 4, v234")
            t("v_lshl_add_u32 v234, v241, 10, v234"); t("s_lshl_b32 s34, s28, 13"); t(f"s_add_u32 s34, s34, {k*1024}")
            t(f"v_add_u32 v{DV+k}, s34, v234")
    def tile_dma(n, srdn, soff):
        if o.get('nodma'): return []
        r = [(f"s_add_u32 m0, s31, {(n%8)*SLOT:#x}", False), (f"s_mov_b32 s32, {soff:#x}", False)]
        for k in range(4):
            r.append((f"buffer_load_dwordx4 v{DV+k}, s[{srdn}:{srdn+3}], s32 offen offset:{k*1024} lds", True))
        return r
    def emit_tile(out, W, n, srdn, soff):
        for txt, vm in tile_dma(n, srdn, soff):
            out.append(txt)
            if vm: W.issue('vm', ('T', n))
    def out_rows(T, W, srdn, tag, OB):
        t = T.append
        t("v_lshlrev_b32 v232, 4, v240"); t(f"s_add_u32 s33, s31, {EX}"); t("v_add_u32 v232, s33, v232")
        for half in range(2):
            for k in range(4):
                t(f"ds_read_b128 {vr(OB+(half*4+k)*4,4)}, v232 offset:{half*SLOT + k*1024}")
        t("s_lshl_b32 s32, s35, 15")
        for half in range(2):
            if half: t("s_add_u32 s32, s32, 16384")
            for k in range(4):
                t(f"s_waitcnt lgkmcnt({7 - (half*4+k)})")
                t(f"buffer_store_dwordx4 {vr(OB+(half*4+k)*4,4)}, v{DS+k}, s[{srdn}:{srdn+3}], s32 offen offset:{k*1024}{ST}")
                W.issue('vm', (tag, half, k))
        W.drain('lgkm')
    def ln(out, W, tiles):
        nw = W.need('vm', [('X', 7)])
        out.append(f"s_waitcnt vmcnt({nw})")
        out.append("s_barrier")
        stamp(out, 0)
        for s in range(8):
            out.append(f"ds_read_b128 {vr(64+4*s,4)}, v{XB+s}")
        body = []; b = body.append
        b("s_mov_b32 s34, 0x3f803f80")
        for k in range(4): b(f"v_mov_b32 v{232+k}, 0")
        for r in range(32):
            if r % 4 == 0: b(f"s_waitcnt lgkmcnt({7 - r//4})")
            b(f"v_dot2_f32_bf16 v{232+(r&1)}, v{64+r}, s34, v{232+(r&1)}")
            b(f"v_dot2_f32_bf16 v{234+(r&1)}, v{64+r}, v{64+r}, v{234+(r&1)}")
        b("s_nop 2")
        b("v_add_f32 v232, v232, v233"); b("v_add_f32 v234, v234, v235")
        b("v_mov_b32 v233, v232"); b("v_mov_b32 v235, v234"); b("s_nop 1")
        b("v_permlane32_swap_b32 v232, v233"); b("v_permlane32_swap_b32 v234, v235"); b("s_nop 1")
        b("v_add_f32 v232, v232, v233"); b("v_add_f32 v233, v234, v235")
        b(f"ds_write_b64 v{XB}, v[232:233]")
        b(f"v_xor_b32 v238, 256, v{XB}")
        b("s_waitcnt lgkmcnt(0)")
        b("s_barrier")
        b("ds_read_b64 v[234:235], v238")
        b("s_waitcnt lgkmcnt(0)")
        b("v_add_f32 v232, v232, v234"); b("v_add_f32 v234, v233, v235")
        b("v_mul_f32 v232, 0x3b800000, v232"); b("v_mul_f32 v234, 0x3b800000, v234")
        b("v_fma_f32 v234, -v232, v232, v234"); b("v_max_f32 v234, 0, v234"); b("v_add_f32 v234, 0x3727c5ac, v234")
        b("v_rsq_f32 v234, v234"); b("s_nop 0")
        b("v_mul_f32 v236, v232, v234"); b("v_sub_f32 v236, 0, v236")
        b("s_barrier")
        for r in range(32):
            t = 244 + 2*(r % 4)
            b(f"v_lshlrev_b32 v{t}, 16, v{64+r}")
            b(f"v_and_b32 v{t+1}, 0xffff0000, v{64+r}")
            b(f"v_pk_fma_f32 v[{t}:{t+1}], v[{t}:{t+1}], v[234:235], v[236:237] op_sel_hi:[1,0,0]")
            b(f"v_cvt_pk_bf16_f32 v{64+r}, v{t}, v{t+1}")
            if r % 4 == 3: b(f"ds_write_b128 v{XB+r//4}, {vr(64+r-3,4)}")
        b("s_waitcnt lgkmcnt(0)")
        b("s_barrier")
        b("s_lshl_b32 s33, s30, 8")
        for jj in range(8): b(f"v_subrev_u32 v{244+jj}, s33, v{XB+jj}")
        for s in range(16):
            b(f"ds_read_b128 {vr(B+4*s,4)}, v{244+(s&7)} offset:{(s>>3)*256}")
        flat = []
        for (n, sn, so) in tiles:
            tl_ = [(txt, vm, n) for txt, vm in tile_dma(n, sn, so)]
            flat.append(tl_[:3])
            for x in tl_[3:]: flat.append([x])
        gap = max(1, len(body) // (len(flat) + 1)) if flat else 1
        fi = 0
        for i, ins in enumerate(body):
            out.append(ins)
            if fi < len(flat) and i % gap == gap - 1:
                for txt, vm, n in flat[fi]:
                    out.append(txt)
                    if vm: W.issue('vm', ('T', n))
                fi += 1
        while fi < len(flat):
            for txt, vm, n in flat[fi]:
                out.append(txt)
                if vm: W.issue('vm', ('T', n))
            fi += 1
        out.append("s_waitcnt lgkmcnt(0)")
        W.drain('lgkm')
    def phase(W, p, kind, later, fill=None, f0=3):
        tl = TL(W)
        acc = ACC[p]
        cnt = [0]
        for a in range(4):
            sig = 4*p + a
            tb = 16*a - D - 1
            tl.add(tb, 'bar', needvm=[('T', 2*sig), ('T', 2*sig+1)], prio=1)
            k = 0
            for (n, sn, so) in later.get(sig, []):
                for txt, vm in tile_dma(n, sn, so):
                    sp = o.get('dsp', 2)
                    if vm:
                        tl.add(tb + 1 + sp*k, 'vm', txt, tag=('T', n), prio=7); k += 1
                    else:
                        tl.add(tb + 1 + sp*k, 'txt', txt, prio=6)
            for m in range(16):
                tm = 16*a + m
                ri = cnt[0] % R; cnt[0] += 1
                ring = aR + 4*ri
                if kind == 'X':
                    j = m; slot = 2*a
                    base = (KA if slot < 4 else KA2) + (j & 7)
                    off = (slot % 4)*SLOT + (j >> 3)*256
                    tag = (p, a, m)
                    tl.add(tm - D, 'lds', f"ds_read_b128 {ar(ring,4)}, v{base} offset:{off}", tag=tag, prio=2)
                    c = vr(acc+16*a,16) if j else '0'
                    tl.add(tm, 'mfma', f"v_mfma_f32_32x32x16_bf16 {vr(acc+16*a,16)}, {ar(ring,4)}, {vr(B+4*j,4)}, {c}", need=[tag], prio=0)
                else:
                    tt, s, aa = m >> 3, (m >> 2) & 1, m & 3
                    tau = 2*a + tt; slot = tau
                    tags = []
                    for u in range(2):
                        base = (VN if slot < 4 else VN2) + aa*2 + u
                        off = (slot % 4)*SLOT + 16*s*512
                        tag = (p, a, m, u); tags.append(tag)
                        tl.add(tm - D, 'lds', f"ds_read_b64_tr_b16 {ar(ring+2*u,2)}, v{base} offset:{off}", tag=tag, prio=2)
                    c = vr(acc+16*aa,16) if (tau or s) else '0'
                    tl.add(tm, 'mfma', f"v_mfma_f32_32x32x16_bf16 {vr(acc+16*aa,16)}, {ar(ring,4)}, {vr(B+4*(2*tau+s),4)}, {c}", need=tags, prio=0)
        if fill:
            n = len(fill)
            for i, ins in enumerate(fill):
                tl.add(f0 + (i*(64-f0))/n, 'txt', ins, prio=4)
        return tl
    def pack_swap(out, src, dst, swap=True, scale=None):
        if scale:
            for k in range(8):
                out.append(f"v_pk_mul_f32 v[{src+2*k}:{src+2*k+1}], v[{src+2*k}:{src+2*k+1}], {scale} op_sel_hi:[1,0]")
        for k in range(8):
            out.append(f"v_cvt_pk_bf16_f32 v{dst+k}, v{src+2*k}, v{src+2*k+1}")
        if swap:
            out.append("s_nop 1")
            for b in (0, 4):
                out.append(f"v_permlane32_swap_b32 v{dst+b}, v{dst+b+2}")
                out.append(f"v_permlane32_swap_b32 v{dst+b+1}, v{dst+b+3}")
    def exchange(out, W, acc, kind):
        out.append("s_nop 15")
        out.append("v_lshlrev_b32 v232, 4, v240")
        out.append(f"s_lshl_b32 s33, s29, 14"); out.append(f"s_add_u32 s33, s33, {EX}")
        out.append("v_add_u32 v233, s33, v232")
        out.append(f"s_lshl_b32 s34, s30, {13 if kind=='Y' else 11}")
        out.append("v_add_u32 v232, s34, v233")
        for a in range(4):
            d = 244 if a % 2 == 0 else 0
            pack_swap(out, acc+16*a, d)
            for s in range(2):
                f = (2*a + s) if kind == 'Y' else (4*a + s)
                out.append(f"ds_write_b128 v232, {vr(d+4*s,4)} offset:{f*1024}")
        out.append("s_waitcnt lgkmcnt(0)")
        out.append("s_barrier")
        for f in range(16):
            out.append(f"ds_read_b128 {vr(B+4*f,4)}, v233 offset:{f*1024}")
        out.append("s_waitcnt lgkmcnt(0)")
        W.drain('lgkm')
    def narrow(out, W, rowbase_bytes, slice_sreg):
        for x in ["v_lshrrev_b32 v232, 3, v240", "v_lshlrev_b32 v232, 9, v232", "v_and_b32 v233, 7, v240",
                  "v_lshl_add_u32 v232, v233, 4, v232", f"s_lshl_b32 s33, {slice_sreg}, 7", "s_lshl_b32 s34, s28, 15",
                  "s_add_u32 s33, s33, s34", f"s_add_u32 s33, s33, {rowbase_bytes}", "v_add_u32 v232, s33, v232",
                  "s_lshl_b32 s34, s28, 13", f"s_add_u32 s34, s34, {EX}"]: out.append(x)
        for i in range(8):
            out.append(f"s_add_u32 m0, s34, {i*1024}")
            out.append(f"s_mov_b32 s32, {i*4096}")
            out.append(f"buffer_load_dwordx4 v232, s[16:19], s32 offen lds")
            W.issue('vm', ('N', i))
    def narrow_read(out, W):
        n = W.need('vm', [('N', 7)])
        out.append(f"s_waitcnt vmcnt({n})")
        out.append("s_barrier")
        for x in ["v_bfe_u32 v232, v240, 2, 2", "v_lshl_add_u32 v232, v241, 3, v232", "v_lshlrev_b32 v232, 7, v232",
                  "v_bfe_u32 v233, v240, 4, 1", "v_lshl_add_u32 v232, v233, 5, v232", "v_and_b32 v233, 3, v240",
                  "v_lshl_add_u32 v232, v233, 3, v232", "s_lshl_b32 s33, s29, 6", f"s_add_u32 s33, s33, {EX}",
                  "v_add_u32 v232, s33, v232"]: out.append(x)
        for s in range(16):
            for u in range(2):
                out.append(f"ds_read_b64_tr_b16 {vr(B+4*s+2*u,2)}, v232 offset:{s*2048+u*512}")
            if s % 4 == 3: out.append("s_waitcnt lgkmcnt(0)")
        W.drain('lgkm')
    def finish(task_lines, label):
        if CT and label in ("K1_Q", "K1_UG"): return
        fixed = hazard.autofix(task_lines)
        e(f"{label}:")
        L.extend(fixed)
        e("s_branch K1_FIN")
    def cap(fn):
        buf = []; fn(buf.append); return buf
    std_later = lambda sn: {2: [(8, sn, 0), (9, sn, SLOT)], 3: [(10, sn, 2*SLOT), (11, sn, 3*SLOT)], 4: [(12, sn, 4*SLOT), (13, sn, 5*SLOT)], 5: [(14, sn, 6*SLOT), (15, sn, 7*SLOT)]}
    npre = o['npre']


    if CT:
        EXB = EX + 16384
        Bq = 64
        ACCQ, ACCK, ACCG, ACCU = 64, 96, 128, 160
        VN4 = 208; VN42 = 212; XO = 216; XB8 = 244
        W = Waiter(); T = []; t = T.append
        for s_ in range(4): W.issue('vm', ('X', s_))
        dma_voff(T, True)
        T += cap(lambda e: (srd(e, 8, 's38', 's39', 0, 131072), srd(e, 12, 's40', 's41', 0, 131072), srd(e, 20, 's46', 's47', 0, 262144),
                            srd(e, 24, 's54', 's55', QF_OFF, 500*8192)))
        def tinfo(n):
            if n < 8: return (8, n*SLOT, DS)
            if n < 16: return (12, (n-8)*SLOT, DS)
            if n < 24: return (20, (n-16)*32768 + 512, DV)
            return (20, (n-24)*32768, DV)
        def tdma(n):
            sn, so, dv = tinfo(n)
            r = [(f"s_add_u32 m0, s31, {(n%8)*SLOT:#x}", False), (f"s_mov_b32 s32, {so:#x}", False)]
            for k in range(4): r.append((f"buffer_load_dwordx4 v{dv+k}, s[{sn}:{sn+3}], s32 offen offset:{k*1024} lds", True))
            return r
        def temit(n):
            for txt, vm in tdma(n):
                t(txt)
                if vm: W.issue('vm', ('T', n))
        temit(0); temit(1)
        t("v_and_b32 v234, 3, v242"); t("v_lshlrev_b32 v234, 2, v234"); t("v_bfe_u32 v235, v242, 2, 2"); t("v_or_b32 v234, v234, v235")
        t("v_lshlrev_b32 v236, 9, v242"); t(f"v_add_u32 v237, {EX}, v236")
        t("s_lshl_b32 s33, s30, 8"); t("v_add_u32 v238, s33, v237")
        t("s_lshl_b32 s33, s29, 3")
        for i in range(4):
            t(f"s_add_u32 s34, s33, {2*i}"); t("v_add_u32 v235, s34, v241"); t("v_xor_b32 v235, v235, v234"); t(f"v_lshl_add_u32 v{XO+i}, v235, 4, v238")
        t("s_lshl_b32 s33, s28, 14"); t("v_add_u32 v238, s33, v236")
        for jj in range(8):
            t(f"v_add_u32 v235, {2*jj}, v241"); t("v_xor_b32 v235, v235, v234")
            t(f"v_lshl_add_u32 v{KA+jj}, v235, 4, v238"); t(f"v_add_u32 v{KA2+jj}, 0x10000, v{KA+jj}")
        t("v_bfe_u32 v234, v240, 4, 1"); t("v_bfe_u32 v235, v240, 2, 2"); t("v_bfe_u32 v236, v240, 1, 1")
        t("v_lshl_add_u32 v236, v234, 1, v236"); t("v_and_b32 v237, 1, v240"); t("v_lshlrev_b32 v237, 3, v237")
        t("v_lshl_add_u32 v238, v241, 3, v235"); t("v_lshl_add_u32 v237, v238, 9, v237")
        t("s_lshl_b32 s33, s30, 8"); t("v_add_u32 v237, s33, v237")
        t("s_lshl_b32 s33, s29, 3")
        for aa in range(2):
            for u in range(2):
                t(f"v_lshl_add_u32 v238, v241, 1, {u}"); t("v_lshl_or_b32 v238, v235, 2, v238")
                t(f"s_add_u32 s34, s33, {4*aa}"); t("v_add_u32 v239, s34, v236"); t("v_xor_b32 v238, v238, v239")
                t(f"v_lshl_add_u32 v{VN4+aa*2+u}, v238, 4, v237")
                if u: t(f"v_add_u32 v{VN4+aa*2+u}, {4*512}, v{VN4+aa*2+u}")
                t(f"v_add_u32 v{VN42+aa*2+u}, 0x10000, v{VN4+aa*2+u}")
        nw = W.need('vm', [('X', 3)]); t(f"s_waitcnt vmcnt({nw})"); t("s_barrier")
        stamp(T, 0)
        for i in range(4): t(f"ds_read_b128 {vr(64+4*i,4)}, v{XO+i}")
        T += cap(lambda e: srd(e, 16, 's54', 's55', XA_OFF, 8000*512))
        body = []; b = body.append
        b("s_mov_b32 s34, 0x3f803f80")
        for k in range(4): b(f"v_mov_b32 v{232+k}, 0")
        for r in range(16):
            if r % 4 == 0: b(f"s_waitcnt lgkmcnt({3 - r//4})")
            b(f"v_dot2_f32_bf16 v{232+(r&1)}, v{64+r}, s34, v{232+(r&1)}")
            b(f"v_dot2_f32_bf16 v{234+(r&1)}, v{64+r}, v{64+r}, v{234+(r&1)}")
        b("s_nop 2")
        b("v_add_f32 v232, v232, v233"); b("v_add_f32 v234, v234, v235")
        b("v_mov_b32 v233, v232"); b("v_mov_b32 v235, v234"); b("s_nop 1")
        b("v_permlane32_swap_b32 v232, v233"); b("v_permlane32_swap_b32 v234, v235"); b("s_nop 1")
        b("v_add_f32 v232, v232, v233"); b("v_add_f32 v233, v234, v235")
        b("v_lshlrev_b32 v238, 3, v242"); b(f"v_add_u32 v238, {EXB}, v238")
        b("s_lshl_b32 s33, s28, 8"); b("v_add_u32 v239, s33, v238")
        b("ds_write_b64 v239, v[232:233]")
        b("s_waitcnt lgkmcnt(0)"); b("s_barrier")
        for k in range(4): b(f"ds_read_b64 v[{80+2*k}:{81+2*k}], v238 offset:{256*k}")
        b("s_waitcnt lgkmcnt(0)")
        b("v_add_f32 v80, v80, v82"); b("v_add_f32 v81, v81, v83"); b("v_add_f32 v84, v84, v86"); b("v_add_f32 v85, v85, v87")
        b("v_add_f32 v232, v80, v84"); b("v_add_f32 v234, v81, v85")
        b("v_mul_f32 v232, 0x3b800000, v232"); b("v_mul_f32 v234, 0x3b800000, v234")
        b("v_fma_f32 v234, -v232, v232, v234"); b("v_max_f32 v234, 0, v234"); b("v_add_f32 v234, 0x3727c5ac, v234")
        b("v_rsq_f32 v234, v234"); b("s_nop 0")
        b("v_mul_f32 v236, v232, v234"); b("v_sub_f32 v236, 0, v236")
        for r in range(16):
            tt_ = 244 + 2*(r % 4)
            b(f"v_lshlrev_b32 v{tt_}, 16, v{64+r}"); b(f"v_and_b32 v{tt_+1}, 0xffff0000, v{64+r}")
            b(f"v_pk_fma_f32 v[{tt_}:{tt_+1}], v[{tt_}:{tt_+1}], v[234:235], v[236:237] op_sel_hi:[1,0,0]")
            b(f"v_cvt_pk_bf16_f32 v{64+r}, v{tt_}, v{tt_+1}")
            if r % 4 == 3: b(f"ds_write_b128 v{XO+r//4}, {vr(64+r-3,4)}")
        b("s_lshl_b32 s33, s28, 14"); b(f"s_sub_u32 s33, {EX}, s33")
        for jj in range(8): b(f"v_add_u32 v{XB8+jj}, s33, v{KA+jj}")
        b("s_waitcnt lgkmcnt(0)"); b("s_barrier")
        for s_ in range(16): b(f"ds_read_b128 {vr(B+4*s_,4)}, v{XB8+(s_&7)} offset:{(s_>>3)*256}")
        b("v_lshlrev_b32 v232, 4, v240"); b(f"s_add_u32 s33, s31, {EX}"); b("v_add_u32 v232, s33, v232")
        for k in range(4): b(f"ds_read_b128 {vr(96+4*k,4)}, v232 offset:{k*1024}")
        flat = []
        for n in range(2, 6):
            tl_ = [(txt, vm, n) for txt, vm in tdma(n)]
            flat.append(tl_[:3])
            for x in tl_[3:]: flat.append([x])
        gap = max(1, (len(body) - 24) // (len(flat) + 1)); fi = 0
        for i, ins in enumerate(body):
            t(ins)
            if fi < len(flat) and i % gap == gap - 1:
                for txt, vm, n in flat[fi]:
                    t(txt)
                    if vm: W.issue('vm', ('T', n))
                fi += 1
        while fi < len(flat):
            for txt, vm, n in flat[fi]:
                t(txt)
                if vm: W.issue('vm', ('T', n))
            fi += 1
        t("s_waitcnt lgkmcnt(0)")
        t("s_lshl_b32 s56, s35, 14")
        for k in range(4):
            t(f"buffer_store_dwordx4 {vr(96+4*k,4)}, v{DS+k}, s[16:19], s56 offen offset:{k*1024}{ST}"); W.issue('vm', ('XS', k))
        stamp(T, 1)
        def flag_store(off_lines, lbl):
            t("s_cmp_eq_u32 s28, 0"); t(f"s_cbranch_scc0 {lbl}")
            for x in off_lines: t(x)
            t("v_mov_b32 v232, s3"); t("v_cmp_eq_u32 vcc, 0, v240"); t("s_and_saveexec_b64 s[56:57], vcc")
            t("buffer_store_dword v232, off, s[8:11], s34 sc1")
            t("s_mov_b64 exec, s[56:57]")
            t(f"{lbl}:")
        fillers = {}
        def step(sig, extra_need=None, after_bar=None):
            p, a = sig >> 2, sig & 3
            need = [('T', 2*sig), ('T', 2*sig+1)] + (extra_need or [])
            nv = W.need('vm', need)
            if nv is not None: t(f"s_waitcnt vmcnt({nv})")
            t("s_barrier")
            if after_bar: after_bar()
            dm = []
            for n in (2*(sig+3), 2*(sig+3)+1):
                if n < 32: dm += [(txt, vm, n) for txt, vm in tdma(n)]
            fl = list(fillers.get(sig, []))
            def some(k_dma, k_fill):
                c = 0
                while dm and c < k_dma:
                    txt, vm, n = dm.pop(0); t(txt)
                    if vm: W.issue('vm', ('T', n)); c += 1
                for _ in range(k_fill):
                    if fl: t(fl.pop(0))
            nf = -(-len(fl) // 8) if fl else 0
            if p != 1:
                acc = {0: ACCQ, 2: ACCG, 3: ACCU}[p]
                idx = 0; seq = []
                for tt in range(2):
                    slot = (2*sig + tt) % 8
                    for s_ in range(2):
                        for aa in range(2):
                            for u in range(2):
                                base = (VN4 if slot < 4 else VN42) + aa*2 + u
                                t(f"ds_read_b64_tr_b16 {ar(4*idx+2*u,2)}, v{base} offset:{(slot%4)*SLOT + 16*s_*512}")
                            seq.append((idx, tt, s_, aa)); idx += 1
                for (idx, tt, s_, aa) in seq:
                    if idx % 2 == 0: t(f"s_waitcnt lgkmcnt({14 - 2*idx - 2 if idx < 6 else 0})")
                    tau = 2*a + tt
                    c = vr(acc+16*aa,16) if (tau or s_) else '0'
                    t(f"v_mfma_f32_32x32x16_bf16 {vr(acc+16*aa,16)}, {ar(4*idx,4)}, {vr(B+4*(2*tau+s_),4)}, {c}")
                    some(1, nf)
            else:
                lbl = f"K1_CT_X{a}"
                t(f"s_cmp_eq_u32 s30, {a & 1}"); t(f"s_cbranch_scc0 {lbl}")
                k = a >> 1; base = KA if k == 0 else KA2
                for half in range(2):
                    for j in range(8): t(f"ds_read_b128 {ar(4*j,4)}, v{base+j} offset:{half*256}")
                    for j in range(8):
                        if j % 2 == 0: t(f"s_waitcnt lgkmcnt({6 - j})")
                        jj = 8*half + j
                        c = vr(ACCK+16*k,16) if jj else '0'
                        t(f"v_mfma_f32_32x32x16_bf16 {vr(ACCK+16*k,16)}, {ar(4*j,4)}, {ar(Bq+4*jj,4)}, {c}")
                t(f"{lbl}:")
            some(100, 1000)
        for sig in range(4): step(sig)
        stamp(T, 2)
        t("s_nop 15")
        t("v_lshlrev_b32 v232, 4, v240"); t(f"v_add_u32 v233, {EXB}, v232"); t("s_lshl_b32 s34, s28, 12"); t("v_add_u32 v232, s34, v233")
        for aa in range(2):
            d = 244 if aa == 0 else 96
            pack_swap(T, ACCQ+16*aa, d)
            for s_ in range(2): t(f"ds_write_b128 v232, {vr(d+4*s_,4)} offset:{(2*aa+s_)*1024}")
        t("s_waitcnt lgkmcnt(0)"); t("s_barrier")
        for f in range(16): t(f"ds_read_b128 {ar(Bq+4*f,4)}, v233 offset:{f*1024}")
        t("s_waitcnt lgkmcnt(0)")
        t("buffer_load_dword v243, off, s[4:7], 0 sc1"); W.issue('vm', 'TAG')
        for sig in range(4, 8): step(sig)
        stamp(T, 3)
        qf = []
        qf.append("s_nop 7"); qf.append("v_mov_b32 v236, 0x3db8aa3b")
        qf += ["s_lshl_b32 s33, s35, 14", "s_lshl_b32 s34, s28, 10", "s_add_u32 s33, s33, s34",
               "v_lshrrev_b32 v252, 4, v242", "v_lshlrev_b32 v252, 13, v252", "v_and_b32 v253, 15, v242", "v_lshl_add_u32 v253, v241, 4, v253",
               "v_lshl_add_u32 v252, v253, 4, v252", "v_add_u32 v252, s33, v252"]
        qst = []
        for k in range(2):
            d = 244 if k == 0 else 64
            pack_swap(qf, ACCK+16*k, d, scale="v[236:237]")
            for s_ in range(2):
                qf.append(f"buffer_store_dwordx4 {vr(d+4*s_,4)}, v252, s[24:27], 0 offen offset:{k*4096 + s_*512 - (4096 if k else 0)}{ST}" if k == 0 else "@K1")
        out2 = []
        cnt = 0
        for x in qf:
            if x == "@K1":
                if cnt == 0: out2.append("v_add_u32 v253, 4096, v252")
                out2.append(f"buffer_store_dwordx4 {vr(64+4*cnt,4)}, v253, s[24:27], 0 offen offset:{cnt*512}{ST}"); cnt += 1
            else: out2.append(x)
        qf = out2
        for x in qf:
            t(x)
            if x.startswith('buffer_store'): W.issue('vm', ('QS', len(W.q['vm'])))
        W.issue('vm', 'QEND'); W.q['vm'].pop()
        qtags = [x for x in W.q['vm'] if isinstance(x, tuple) and x[0] in ('QS', 'XS')]
        step(8)
        step(9)
        def get_tag():
            t("K1_CT_TAGP:")
            t("buffer_load_dword v232, off, s[4:7], 0 sc1"); t("s_waitcnt vmcnt(0)")
            t("v_readfirstlane_b32 s3, v232"); t("s_nop 3"); t("s_cmp_lg_u32 s3, 0"); t("s_cbranch_scc1 K1_CT_TAGD"); t("s_sleep 1"); t("s_branch K1_CT_TAGP")
            t("K1_CT_TAGD:")
        def qflag():
            T.extend(cap(lambda e: srd(e, 8, 's54', 's55', FL_OFF, FL_SIZE)))
            flag_store([f"s_lshl_b32 s34, s35, 7", f"s_add_u32 s34, s34, {FLQ}"], "K1_CT_NOQF")
        step(10, extra_need=qtags + ['TAG'], after_bar=None)
        t("v_readfirstlane_b32 s3, v243")
        t("s_nop 3")
        pend_qflag = True
        t("s_cmp_eq_u32 s28, 0"); t("s_cbranch_scc0 K1_CT_NOQF2")
        t("s_cmp_lg_u32 s3, 0"); t("s_cbranch_scc0 K1_CT_NOQF2")
        T.extend(cap(lambda e: srd(e, 8, 's54', 's55', FL_OFF, FL_SIZE)))
        t(f"s_lshl_b32 s34, s35, 7"); t(f"s_add_u32 s34, s34, {FLQ}")
        t("v_mov_b32 v232, s3"); t("v_cmp_eq_u32 vcc, 0, v240"); t("s_and_saveexec_b64 s[56:57], vcc")
        t("buffer_store_dword v232, off, s[8:11], s34 sc1")
        t("s_mov_b64 exec, s[56:57]")
        t("K1_CT_NOQF2:")
        step(11)
        stamp(T, 4)
        k0 = -2.0*1.4426950408889634*0.7978845608028654
        t("s_nop 7")
        t(f"v_mov_b32 v232, {fb(k0)}"); t(f"v_mov_b32 v234, {fb(k0*0.044715)}"); t("v_mov_b32 v236, 1.0")
        for k in range(4): t(f"v_mov_b32 v{252+k}, 0")
        def gelu(r):
            tt_ = 244 + 2*((r//2) % 4)
            X = f"v[{r}:{r+1}]"; Tt = f"v[{tt_}:{tt_+1}]"
            return [f"v_pk_mul_f32 {Tt}, {X}, {X}", f"v_pk_fma_f32 {Tt}, {Tt}, v[234:235], v[232:233] op_sel_hi:[1,0,0]", f"v_pk_mul_f32 {Tt}, {Tt}, {X}",
                    f"v_exp_f32 v{tt_}, v{tt_}", f"v_exp_f32 v{tt_+1}, v{tt_+1}", f"v_pk_add_f32 {Tt}, {Tt}, v[236:237] op_sel_hi:[1,0]",
                    f"v_rcp_f32 v{tt_}, v{tt_}", f"v_rcp_f32 v{tt_+1}, v{tt_+1}", f"v_pk_mul_f32 {X}, {X}, {Tt}",
                    f"v_pk_add_f32 v[252:253], v[252:253], {X}", f"v_pk_fma_f32 v[254:255], {X}, {X}, v[254:255]"]
        for q in range(4):
            cols = [gelu(ACCG + 8*q + 2*k) for k in range(4)]
            fillers[12+q] = [cols[k][i] for i in range(11) for k in range(4)]
        for sig in range(12, 16): step(sig)
        stamp(T, 5)
        t("v_add_f32 v8, v252, v253"); t("v_add_f32 v10, v254, v255"); t("v_mov_b32 v9, v8"); t("v_mov_b32 v11, v10"); t("s_nop 1")
        t("v_permlane32_swap_b32 v8, v9"); t("v_permlane32_swap_b32 v10, v11"); t("s_nop 1")
        t("v_add_f32 v8, v8, v9"); t("v_add_f32 v9, v10, v11")
        t("v_lshlrev_b32 v12, 3, v242"); t("s_lshl_b32 s33, s28, 8"); t("v_add_u32 v13, s33, v12")
        t("s_barrier")
        t("ds_write_b64 v13, v[8:9]")
        for aa in range(2):
            d = 244 if aa == 0 else 16
            pack_swap(T, ACCU+16*aa, d)
            for s_ in range(2): t(f"ds_write_b128 v{XO+2*aa+s_}, {vr(d+4*s_,4)} offset:16384")
        t("s_waitcnt lgkmcnt(0)"); t("s_barrier")
        for k in range(4): t(f"ds_read_b64 v[{24+2*k}:{25+2*k}], v12 offset:{256*k}")
        t("v_lshlrev_b32 v232, 4, v240"); t(f"s_add_u32 s33, s31, {EX}"); t("v_add_u32 v232, s33, v232")
        for k in range(4): t(f"ds_read_b128 {vr(96+4*k,4)}, v232 offset:{16384 + k*1024}")
        T.extend(cap(lambda e: (srd(e, 12, 's54', 's55', U_OFF, 8000*512), srd(e, 20, 's54', 's55', G_OFF, 8000*512))))
        t("s_lshl_b32 s56, s35, 14")
        t("s_waitcnt lgkmcnt(4)")
        t("v_add_f32 v24, v24, v26"); t("v_add_f32 v25, v25, v27"); t("v_add_f32 v28, v28, v30"); t("v_add_f32 v29, v29, v31")
        t("v_add_f32 v8, v24, v28"); t("v_add_f32 v9, v25, v29")
        t("v_mul_f32 v8, 0x3b800000, v8"); t("v_mul_f32 v9, 0x3b800000, v9")
        t("v_fma_f32 v9, -v8, v8, v9"); t("v_max_f32 v9, 0, v9"); t("v_add_f32 v9, 0x3727c5ac, v9")
        t("v_rsq_f32 v10, v9"); t("s_nop 0"); t("v_mul_f32 v12, v8, v10"); t("v_sub_f32 v12, 0, v12")
        t("s_waitcnt lgkmcnt(0)")
        for k in range(4): t(f"buffer_store_dwordx4 {vr(96+4*k,4)}, v{DS+k}, s[12:15], s56 offen offset:{k*1024}{ST}")
        for aa in range(2):
            for k in range(8):
                r = ACCG + 16*aa + 2*k
                t(f"v_pk_fma_f32 v[{r}:{r+1}], v[{r}:{r+1}], v[10:11], v[12:13] op_sel_hi:[1,0,0]")
            d = 32 + 8*aa
            pack_swap(T, ACCG+16*aa, d)
            for s_ in range(2): t(f"ds_write_b128 v{XO+2*aa+s_}, {vr(d+4*s_,4)}")
        t("s_waitcnt lgkmcnt(0)"); t("s_barrier")
        for k in range(4): t(f"ds_read_b128 {vr(112+4*k,4)}, v232 offset:{k*1024}")
        for k in range(4):
            t(f"s_waitcnt lgkmcnt({3-k})")
            t(f"buffer_store_dwordx4 {vr(112+4*k,4)}, v{DS+k}, s[20:23], s56 offen offset:{k*1024}{ST}")
        stamp(T, 6)
        finish(T, "K1_CT")
    W = Waiter(); T = []
    for s in range(8): W.issue('vm', ('X', s))
    dma_voff(T, False)
    T += cap(lambda e: (srd(e, 8, 's38', 's39', 0, 131072), srd(e, 12, 's40', 's41', 0, 131072),
                        srd(e, 20, 's54', 's55', XA_OFF, 8000*512), srd(e, 24, 's54', 's55', QF_OFF, 500*8192)))
    emit = [(n, 8, n*SLOT) for n in range(8)]
    for (n, sn, so) in emit[:npre]: emit_tile(T, W, n, sn, so)
    xb_setup(T); vn_setup(T)
    ln(T, W, emit[npre:o['nln']])
    stamp(T, 1)
    ka_setup(T)
    stamp(T, 2)
    T.append("v_lshlrev_b32 v232, 4, v240"); T.append(f"s_add_u32 s33, s31, {EX}"); T.append("v_add_u32 v232, s33, v232")
    for half in range(2):
        for k in range(4):
            T.append(f"ds_read_b128 {vr(ACC[1]+(half*4+k)*4,4)}, v232 offset:{half*SLOT + k*1024}")
    T.append("s_waitcnt lgkmcnt(0)")
    T.append("s_lshl_b32 s34, s35, 15"); T.append("s_add_u32 s56, s34, 16384")
    xfill = []
    for half in range(2):
        for k in range(4):
            xfill.append((f"buffer_store_dwordx4 {vr(ACC[1]+(half*4+k)*4,4)}, v{DS+k}, s[20:23], {'s56' if half else 's34'} offen offset:{k*1024}{ST}", ('XS', half, k)))
    later = std_later(12)
    rest = emit[o['nln']:]
    if rest:
        later[0] = rest[:2]; later[1] = rest[2:4]
        if later[1] == [] : del later[1]
    tl0 = phase(W, 0, 'Y', later)
    for i, (txt, tag) in enumerate(xfill): tl0.add(1 + 2*i, 'vm', txt, tag=tag, prio=7)
    T += tl0.linearize()
    stamp(T, 3)
    exchange(T, W, ACC[0], 'Y')
    stamp(T, 4)
    T += phase(W, 1, 'X', later).linearize()
    stamp(T, 5)
    T.append("s_nop 15")
    T.append("v_mov_b32 v236, 0x3db8aa3b")
    T.append("s_lshl_b32 s33, s35, 2"); T.append("s_lshl_b32 s34, s29, 1"); T.append("s_add_u32 s33, s33, s34"); T.append("s_lshl_b32 s33, s33, 13")
    T.append("s_lshl_b32 s34, s30, 10"); T.append("s_add_u32 s33, s33, s34")
    T.append("v_lshrrev_b32 v232, 4, v242"); T.append("v_lshlrev_b32 v232, 13, v232")
    T.append("v_and_b32 v233, 15, v242"); T.append("v_lshl_add_u32 v233, v241, 4, v233")
    T.append("v_lshl_add_u32 v232, v233, 4, v232"); T.append("v_add_u32 v232, s33, v232")
    for a in range(4):
        d = 244 if a % 2 == 0 else 0
        pack_swap(T, ACC[1]+16*a, d, scale="v[236:237]")
        T.append(f"s_mov_b32 s33, {a*2048}")
        for s in range(2):
            T.append(f"buffer_store_dwordx4 {vr(d+4*s,4)}, v232, s[24:27], s33 offen offset:{s*512}{ST}")
    finish(T, "K1_Q")

    W = Waiter(); T = []
    for s in range(8): W.issue('vm', ('X', s))
    dma_voff(T, True)
    T += cap(lambda e: (srd(e, 8, 's46', 's47', 0, 262144),
                        srd(e, 20, 's54', 's55', U_OFF, 8000*512), srd(e, 24, 's54', 's55', G_OFF, 8000*512)))
    emit = [(n, 8, n*32768 + 512) for n in range(8)]
    for (n, sn, so) in emit[:npre]: emit_tile(T, W, n, sn, so)
    xb_setup(T); vn_setup(T)
    ln(T, W, emit[npre:o['nln']])
    stamp(T, 2)
    gl = lambda n: (n, 8, (n-8)*32768)
    later = {2: [gl(8), gl(9)], 3: [gl(10), gl(11)], 4: [gl(12), gl(13)], 5: [gl(14), gl(15)]}
    rest = emit[o['nln']:]
    if rest:
        later[0] = rest[:2]; later[1] = rest[2:4]
    T += phase(W, 0, 'Y', later).linearize()
    stamp(T, 3)
    k0 = -2.0*1.4426950408889634*0.7978845608028654
    T.append(f"v_mov_b32 v232, {fb(k0)}"); T.append(f"v_mov_b32 v234, {fb(k0*0.044715)}"); T.append("v_mov_b32 v236, 1.0")
    for k in range(4): T.append(f"v_mov_b32 v{252+k}, 0")
    def gelu(r):
        t = 244 + 2*((r//2) % 4)
        X = f"v[{r}:{r+1}]"; Tt = f"v[{t}:{t+1}]"
        return [f"v_pk_mul_f32 {Tt}, {X}, {X}",
                f"v_pk_fma_f32 {Tt}, {Tt}, v[234:235], v[232:233] op_sel_hi:[1,0,0]",
                f"v_pk_mul_f32 {Tt}, {Tt}, {X}",
                f"v_exp_f32 v{t}, v{t}", f"v_exp_f32 v{t+1}, v{t+1}",
                f"v_pk_add_f32 {Tt}, {Tt}, v[236:237] op_sel_hi:[1,0]",
                f"v_rcp_f32 v{t}, v{t}", f"v_rcp_f32 v{t+1}, v{t+1}",
                f"v_pk_mul_f32 {X}, {X}, {Tt}",
                f"v_pk_add_f32 v[252:253], v[252:253], {X}",
                f"v_pk_fma_f32 v[254:255], {X}, {X}, v[254:255]"]
    fill = []
    g0 = ACC[0]
    for b in range(g0, g0+64, 8):
        cols = [gelu(b+2*k) for k in range(4)]
        for i in range(11):
            for k in range(4): fill.append(cols[k][i])
    T += phase(W, 1, 'Y', later, fill=fill, f0=4).linearize()
    stamp(T, 5)
    T.append("v_add_f32 v8, v252, v253"); T.append("v_add_f32 v10, v254, v255")
    T.append("v_mov_b32 v9, v8"); T.append("v_mov_b32 v11, v10"); T.append("s_nop 1")
    T.append("v_permlane32_swap_b32 v8, v9"); T.append("v_permlane32_swap_b32 v10, v11"); T.append("s_nop 1")
    T.append("v_add_f32 v8, v8, v9"); T.append("v_add_f32 v9, v10, v11")
    T.append("s_lshl_b32 s33, s29, 1"); T.append("s_add_u32 s33, s33, s30"); T.append("s_lshl_b32 s33, s33, 9")
    T.append("v_lshlrev_b32 v12, 3, v240"); T.append("v_add_u32 v13, s33, v12")
    T.append("s_xor_b32 s33, s33, 512"); T.append("v_add_u32 v14, s33, v12")
    T.append("ds_write_b64 v13, v[8:9]")
    for a in range(4):
        d = 244 if a % 2 == 0 else 16
        pack_swap(T, ACC[1]+16*a, d)
        for s in range(2):
            T.append(f"ds_write_b128 v{XB+2*a+s}, {vr(d+4*s,4)}")
    T.append("s_waitcnt lgkmcnt(0)"); T.append("s_barrier")
    T.append("ds_read_b64 v[10:11], v14")
    W.drain('lgkm')
    T.append("s_waitcnt lgkmcnt(0)")
    out_rows(T, W, 20, 'US', ACC[1])
    stamp(T, 6)
    T.append("v_add_f32 v8, v8, v10"); T.append("v_add_f32 v9, v9, v11")
    T.append("v_mul_f32 v8, 0x3b800000, v8"); T.append("v_mul_f32 v9, 0x3b800000, v9")
    T.append("v_fma_f32 v9, -v8, v8, v9"); T.append("v_max_f32 v9, 0, v9"); T.append("v_add_f32 v9, 0x3727c5ac, v9")
    T.append("v_rsq_f32 v10, v9"); T.append("s_nop 0")
    T.append("v_mul_f32 v12, v8, v10"); T.append("v_sub_f32 v12, 0, v12")
    for a in range(4):
        for k in range(8):
            r = g0 + 16*a + 2*k
            T.append(f"v_pk_fma_f32 v[{r}:{r+1}], v[{r}:{r+1}], v[10:11], v[12:13] op_sel_hi:[1,0,0]")
        pack_swap(T, g0+16*a, 16+8*a)
    T.append("s_barrier")
    for a in range(4):
        for s in range(2):
            T.append(f"ds_write_b128 v{XB+2*a+s}, {vr(16+8*a+4*s,4)}")
    T.append("s_waitcnt lgkmcnt(0)"); T.append("s_barrier")
    out_rows(T, W, 24, 'GS', ACC[0])
    stamp(T, 7)
    finish(T, "K1_UG")

    def wf_store(T, acc, which, slice_sreg):
        T.append(f"s_lshl_b32 s33, {slice_sreg}, 2"); T.append("s_lshl_b32 s34, s29, 1"); T.append("s_add_u32 s33, s33, s34"); T.append("s_lshl_b32 s33, s33, 14")
        T.append("s_lshl_b32 s34, s30, 10"); T.append("s_add_u32 s33, s33, s34")
        if which == 2: T.append("s_add_u32 s33, s33, 8192")
        T.append("v_lshrrev_b32 v232, 4, v242"); T.append("v_lshlrev_b32 v232, 14, v232")
        T.append("v_and_b32 v233, 15, v242"); T.append("v_lshl_add_u32 v233, v241, 4, v233")
        T.append("v_lshl_add_u32 v232, v233, 4, v232"); T.append("v_add_u32 v232, s33, v232")
        for a in range(4):
            d = 244; src = acc + 16*a
            if which == 1:
                for k, r in enumerate((0, 2, 8, 10, 4, 6, 12, 14)):
                    T.append(f"v_cvt_pk_bf16_f32 v{d+k}, v{src+r}, v{src+r+1}")
            else:
                pack_swap(T, src, d)
            T.append(f"s_mov_b32 s33, {a*2048}")
            for s in range(2):
                T.append(f"buffer_store_dwordx4 {vr(d+4*s,4)}, v232, s[24:27], s33 offen offset:{s*512}{ST}")
            T.append("s_nop 1")
    W = Waiter(); T = []
    dma_voff(T, False)
    T.append("s_sub_u32 s35, s2, 250")
    T += cap(lambda e: (srd(e, 16, 's52', 's53', 0, 262144), srd(e, 8, 's44', 's45', 0, 131072), srd(e, 12, 's42', 's43', 0, 131072),
                        srd(e, 24, 's54', 's55', WF_OFF, 262144)))
    narrow(T, W, 0, 's35')
    for n in range(3): emit_tile(T, W, n, 8, n*SLOT)
    ka_setup(T)
    narrow_read(T, W)
    for n in range(3, 8): emit_tile(T, W, n, 8, n*SLOT)
    later = std_later(12)
    T += phase(W, 0, 'X', later).linearize()
    T.append("s_barrier")
    exchange(T, W, ACC[0], 'X')
    T += phase(W, 1, 'X', later).linearize()
    T.append("s_nop 15")
    wf_store(T, ACC[1], 1, 's35')
    finish(T, "K1_W1")

    W = Waiter(); T = []
    if not FUSED: T += cap(lambda e: srd(e, 20, 's54', 's55', FL_OFF, 8192))
    if not FUSED:
        T.append("v_lshlrev_b32 v232, 5, v0")
        for k in range(4): T.append(f"v_mov_b32 v{236+k}, 0")
        T.append("buffer_store_dwordx4 v[236:239], v232, s[20:23], 0 offen sc1")
        T.append("buffer_store_dwordx4 v[236:239], v232, s[20:23], 0 offen offset:16 sc1")
        W.issue('vm', 'Z0'); W.issue('vm', 'Z1')
    dma_voff(T, False)
    T.append("s_sub_u32 s35, s2, 254"); T.append("s_lshl_b32 s35, s35, 1")
    T += cap(lambda e: (srd(e, 16, 's52', 's53', 0, 262144), srd(e, 8, 's50', 's51', 0, 131072),
                        srd(e, 24, 's54', 's55', WF_OFF, 262144)))
    narrow(T, W, 131072, 's35')
    for n in range(3): emit_tile(T, W, n, 8, n*SLOT)
    ka_setup(T)
    narrow_read(T, W)
    for n in range(3, 8): emit_tile(T, W, n, 8, n*SLOT)
    T.append("s_barrier")
    T.append("s_add_u32 s56, s35, 1")
    narrow(T, W, 131072, 's56')
    later = std_later(8)
    T += phase(W, 0, 'X', later).linearize()
    T.append("s_nop 15")
    wf_store(T, ACC[0], 2, 's35')
    for i in range(8): W.issue('vm', ('WS', i))
    narrow_read(T, W)
    T += phase(W, 1, 'X', later).linearize()
    T.append("s_nop 15")
    wf_store(T, ACC[1], 2, 's56')
    finish(T, "K1_W2")

    e("K1_FIN:")
    if FUSED:
        if o['stamp']:
            e("s_waitcnt vmcnt(0)"); e("s_memtime s[64:65]"); e("s_memrealtime s[66:67]"); e("s_waitcnt lgkmcnt(0)")
            e("s_cmp_eq_u32 s28, 0"); e("s_cbranch_scc0 K1_NOST")
            e("s_add_u32 s68, s54, 0x8100000"); e("s_addc_u32 s69, s55, 0"); e("s_mov_b32 s70, 0x100000"); e("s_mov_b32 s71, 0x20000")
            for k, r in enumerate([60, 64, 62, 66]): e(f"v_mov_b32 v{232+k}, s{r}")
            e("s_lshl_b32 s33, s2, 4"); e("v_mov_b32 v236, s33")
            e("buffer_store_dwordx4 v[232:235], v236, s[68:71], 0 offen")
            for k in range(8): e(f"v_mov_b32 v{244+k}, s{72+2*k}")
            e("s_lshl_b32 s33, s2, 5"); e("s_add_u32 s33, s33, 0x10000"); e("v_mov_b32 v236, s33")
            e("buffer_store_dwordx4 v[244:247], v236, s[68:71], 0 offen")
            e("buffer_store_dwordx4 v[248:251], v236, s[68:71], 0 offen offset:16")
            e("K1_NOST:")
        e("K1_TAGP:")
        e("buffer_load_dword v232, off, s[4:7], 0 sc1")
        e("s_waitcnt vmcnt(0) lgkmcnt(0)")
        e("v_readfirstlane_b32 s3, v232")
        e("s_nop 3")
        e("s_cmp_lg_u32 s3, 0"); e("s_cbranch_scc1 K1_TAGD"); e("s_sleep 1"); e("s_branch K1_TAGP")
        e("K1_TAGD:")
        e("s_barrier")
        e("s_cmp_eq_u32 s28, 0"); e("s_cbranch_scc0 K1_NOFL")
        e("s_lshl_b32 s33, s2, 7")
        fa, fb_ = (FLU, FLQ) if o.get('ugfirst', True) else (FLQ, FLU)
        if CT:
            e(f"s_add_u32 s34, s33, {FLU}")
        else:
            e(f"s_add_u32 s34, s33, {fa}")
            e(f"s_add_u32 s56, s33, {fb_ - 125*128}"); e("s_cmp_ge_u32 s2, 125"); e("s_cselect_b32 s34, s56, s34")
        e(f"s_add_u32 s56, s33, {FLW - 250*128}"); e("s_cmp_ge_u32 s2, 250"); e("s_cselect_b32 s34, s56, s34")
        srd(e, 8, 's54', 's55', FL_OFF, FL_SIZE)
        e("v_mov_b32 v232, s3")
        e("v_cmp_eq_u32 vcc, 0, v240"); e("s_and_saveexec_b64 s[56:57], vcc")
        e("buffer_store_dword v232, off, s[8:11], s34 sc1")
        if CT:
            e(f"s_add_u32 s34, s33, {FLQ}"); e("s_cmp_lt_u32 s2, 250"); e("s_cbranch_scc0 K1_NOFL2")
            e("buffer_store_dword v232, off, s[8:11], s34 sc1")
            e("K1_NOFL2:")
        e("s_mov_b64 exec, s[56:57]")
        e("K1_NOFL:")
        e("s_mov_b32 s48, s28")
        return L, [], []
    if o['stamp']:
        e("s_waitcnt vmcnt(0)")
        e("s_memtime s[64:65]"); e("s_memrealtime s[66:67]")
        e("s_waitcnt lgkmcnt(0)")
        e("s_cmp_eq_u32 s28, 0"); e("s_cbranch_scc0 K1_END")
        e("s_add_u32 s68, s54, 0x8100000"); e("s_addc_u32 s69, s55, 0"); e("s_mov_b32 s70, 0x100000"); e("s_mov_b32 s71, 0x20000")
        for k, r in enumerate([60, 64, 62, 66]): e(f"v_mov_b32 v{232+k}, s{r}")
        e("s_lshl_b32 s33, s2, 4"); e("v_mov_b32 v236, s33")
        e("buffer_store_dwordx4 v[232:235], v236, s[68:71], 0 offen")
        for k in range(8): e(f"v_mov_b32 v{244+k}, s{72+2*k}")
        e("s_lshl_b32 s33, s2, 5"); e("s_add_u32 s33, s33, 0x10000"); e("v_mov_b32 v236, s33")
        e("buffer_store_dwordx4 v[244:247], v236, s[68:71], 0 offen")
        e("buffer_store_dwordx4 v[248:251], v236, s[68:71], 0 offen offset:16")
    e("K1_END:")
    e("s_endpgm")
    return L, kernel_desc(name, 288, 256), []
```

```python
from gen_common import *
import hazard, struct
SLOT = 16384
M16 = "v_mfma_f32_16x16x32_bf16"
fb = lambda x: hex(struct.unpack('<I', struct.pack('<f', x))[0])
EXT = 131072
MX = EXT
OWN = EXT + 4096
OWNML = EXT + 20480
ACT = 0

def gen_k2f(opt=None):
    o = dict(DF=3, stamp=False, bslot=8, dma0=10, dmastep=4, e0=37, e1=93, estep=4, cvtd=1, addd=1, fused=True)
    if opt: o.update(opt)
    name = 'attn_kernel'
    L = []; e = L.append
    O = 0; S = 128; P = [160, 176]; NEGM = 192; RING = 208; KA = 232; VA = 236; DV = 244; LS = 248; MREF = 252
    aQ = 0; aO = 128
    def Oreg(dt, qt): return vr(O + (dt*2+qt)*4, 4) if qt < 2 else ar(aO + (dt*2+qt-2)*4, 4)
    def Sreg(kt, qt): return S + (kt*4+qt)*4
    FUSED = o.get('fusedk')
    CS = ' sc1' if (FUSED and o.get('csc1', True)) else ''
    if not FUSED:
        L += kernel_header(name)
        e("s_cmp_ge_u32 s2, 256")
        e("s_cbranch_scc1 K2_END")
    e("s_load_dwordx2 s[4:5], s[0:1], 88")
    e("s_load_dwordx2 s[6:7], s[0:1], 80")
    e("s_load_dwordx2 s[36:37], s[0:1], 0")
    e("s_load_dwordx2 s[32:33], s[0:1], 48")
    e("s_load_dwordx2 s[40:41], s[0:1], 72")
    if o['stamp']:
        e("s_memtime s[72:73]"); e("s_memrealtime s[74:75]")
    T = []; t = T.append
    if FUSED:
        t("v_mbcnt_lo_u32_b32 v131, -1, 0"); t("v_mbcnt_hi_u32_b32 v131, -1, v131")
    else:
        t("v_lshrrev_b32 v130, 6, v0")
        t("v_and_b32 v131, 63, v0")
        t("v_readfirstlane_b32 s48, v130")
    t("s_and_b32 s60, s2, 7")
    t("s_lshr_b32 s61, s2, 3")
    t("s_lshr_b32 s51, s60, 2")
    t("s_and_b32 s53, s61, 3")
    t("s_lshr_b32 s61, s61, 2")
    t("s_and_b32 s52, s60, 3")
    t("s_lshl_b32 s52, s52, 3")
    t("s_add_u32 s52, s52, s61")
    t("s_and_b32 s49, s48, 1")
    t("s_lshr_b32 s50, s48, 1")
    t("s_lshl_b32 s54, s53, 5")
    t("s_lshl_b32 s60, s50, 4")
    t("s_add_u32 s54, s54, s60")
    t("s_max_u32 s60, s53, 1")
    t("s_sub_u32 s60, s60, 1")
    t("s_sub_u32 s54, s54, s60")
    t("s_min_u32 s60, s53, 1")
    t("s_and_b32 s60, s60, s50")
    t("s_sub_u32 s55, 16, s60")
    t("s_lshl_b32 s55, s55, 14")
    t("s_cmp_eq_u32 s60, 1")
    t("s_cselect_b32 s59, 3, 0xffff")
    t("s_lshl_b32 s54, s54, 14")
    t("s_mul_i32 s60, s51, 2048000")
    t("s_add_u32 s54, s54, s60")
    def dv_setup(t):
        t("v_and_b32 v132, 15, v131")
        t("v_lshrrev_b32 v133, 4, v131")
        t("v_lshrrev_b32 v134, 5, v131")
        t("v_and_b32 v135, 31, v131")
        t("s_lshl_b32 s60, s49, 13")
        for k in range(4):
            t(f"v_add_u32 v136, {2*k}, v134")
            t("v_lshlrev_b32 v136, 1, v136")
            t("v_xor_b32 v136, v135, v136")
            t("v_lshlrev_b32 v136, 4, v136")
            t("v_lshl_add_u32 v136, v134, 9, v136")
            t(f"v_add_u32 v{DV+k}, s60, v136")
    dv_setup(t)
    t("s_waitcnt lgkmcnt(0)")
    def S_(fn):
        buf = []; fn(buf.append); T.extend(buf)
    S_(lambda e: srd(e, 8, 's4', 's5', 's54', 's55'))
    S_(lambda e: srd(e, 12, 's4', 's5', QF_OFF, 500*8192))
    t("s_getreg_b32 s63, hwreg(HW_REG_XCC_ID, 0, 3)")
    t("s_or_b32 s63, s63, 8")
    S_(lambda e: srd(e, 44, 's4', 's5', FL_OFF, FL_SIZE if FUSED else 8192))
    t("s_lshl_b32 s65, s51, 5"); t("s_add_u32 s65, s65, s52")
    xcc0 = len(T)
    t("s_cmp_eq_u32 s48, 0"); t("s_cbranch_scc0 K2_NOXCC")
    t("s_lshl_b32 s60, s65, 7"); t("s_lshl_b32 s61, s53, 2"); t("s_add_u32 s60, s60, s61")
    if FUSED:
        t("s_add_u32 s60, s60, 16"); t("s_xor_b32 s61, s63, s3"); t("v_mov_b32 v137, s61")
    else:
        t("v_mov_b32 v137, s63")
    t("v_cmp_eq_u32 vcc, 0, v131"); t("s_and_saveexec_b64 s[70:71], vcc")
    t("buffer_store_dword v137, off, s[44:47], s60 sc1")
    t("s_mov_b64 exec, s[70:71]")
    t("K2_NOXCC:")
    xcc_blk = T[xcc0:]
    if FUSED: del T[xcc0:]
    t("s_lshl_b32 s56, s50, 16"); t("s_lshl_b32 s60, s49, 13"); t("s_add_u32 s56, s56, s60")
    t("s_mov_b32 s57, 0"); t("s_mov_b32 s54, 0")
    def dma_lines(slot):
        r = []
        for k in range(8):
            if k % 4 == 0:
                r.append((f"s_add_u32 m0, s56, {slot*SLOT + (k//4)*4096:#x}", False))
                if k: r.append(("s_add_u32 s57, s57, 4096", False))
                else: r.append(("s_nop 0", False))
            r.append((f"buffer_load_dwordx4 v{DV+k%4}, s[8:11], s57 offen offset:{(k%4)*1024}{CS} lds", True))
        r.append((f"s_add_u32 s57, s57, {SLOT-4096}", False))
        return r
    pre_dma = len(T)
    for txt, _ in dma_lines(0): t(txt)
    QST = [49152, 114688, 131072, 147456]
    def q_dma(t):
        t("v_lshlrev_b32 v137, 4, v131")
        t("s_mul_i32 s60, s51, 250"); t("s_lshl_b32 s61, s52, 3"); t("s_add_u32 s60, s60, s61")
        t("s_lshl_b32 s61, s48, 1"); t("s_add_u32 s60, s60, s61"); t("s_lshl_b32 s60, s60, 13")
        t("s_lshl_b32 s61, s48, 14"); t("s_add_u32 s61, s61, 98304"); t("s_cmp_eq_u32 s48, 0"); t("s_cselect_b32 s61, 49152, s61")
        for g in range(4):
            t(f"s_add_u32 m0, s61, {g*4096}")
            if g: t("s_add_u32 s60, s60, 4096")
            else: t("s_nop 0")
            for k in range(4):
                t(f"buffer_load_dwordx4 v137, s[12:15], s60 offen offset:{k*1024}{CS} lds")
    def q_read(t):
        t("v_lshlrev_b32 v137, 4, v131")
        for qt in range(4):
            t(f"s_lshl_b32 s60, s50, 1"); t(f"s_add_u32 s60, s60, {qt}"); t("s_and_b32 s60, s60, 3")
            t("s_lshl_b32 s61, s49, 2"); t("s_add_u32 s60, s60, s61")
            t("s_lshr_b32 s61, s60, 1"); t("s_lshl_b32 s62, s61, 14"); t("s_add_u32 s62, s62, 98304")
            t("s_cmp_eq_u32 s61, 0"); t("s_cselect_b32 s62, 49152, s62")
            t("s_and_b32 s60, s60, 1"); t("s_lshl_b32 s60, s60, 13"); t("s_add_u32 s62, s62, s60")
            t(f"v_add_u32 v{140+qt}, s62, v137")
    def q_read2(t):
        for j in range(8):
            for qt in range(4):
                t(f"ds_read_b128 {ar(aQ+(qt*8+j)*4,4)}, v{140+qt} offset:{j*1024}")
    q_dma(t)
    for n in (1, 2):
        for txt, _ in dma_lines(n): t(txt)
    def kava_setup(t):
        t("v_and_b32 v136, 7, v132"); t("v_lshlrev_b32 v136, 1, v136")
        t("v_lshlrev_b32 v138, 9, v132")
        t("s_lshl_b32 s60, s50, 16"); t("v_add_u32 v138, s60, v138")
        for jj in range(4):
            t(f"v_add_u32 v139, {4*jj}, v133")
            t("v_xor_b32 v139, v139, v136")
            t(f"v_lshl_add_u32 v{KA+jj}, v139, 4, v138")
        t("v_lshrrev_b32 v136, 2, v132")
        t("v_lshl_add_u32 v136, v133, 2, v136")
        t("v_lshlrev_b32 v138, 9, v136")
        t("v_add_u32 v138, s60, v138")
        t("v_and_b32 v139, 1, v132"); t("v_lshl_add_u32 v138, v139, 3, v138")
        t("v_and_b32 v136, 7, v136"); t("v_lshlrev_b32 v136, 1, v136")
        t("v_bfe_u32 v139, v132, 1, 1")
        for dd in range(8):
            t(f"v_add_u32 v140, {2*dd}, v139")
            t("v_xor_b32 v140, v140, v136")
            t(f"v_lshl_add_u32 v{VA+dd}, v140, 4, v138")
    t("@KAVA")
    kava_setup(t)
    for r in range(128): t(f"v_mov_b32 v{O+r}, 0")
    for r in range(128): t(f"v_accvgpr_write_b32 a{aO+r}, 0")
    for k in range(4): t(f"v_mov_b32 v{LS+k}, 0")
    t("s_mov_b32 s58, 0")
    q_read(t)
    if FUSED:
        i_kava = T.index("@KAVA")
        loads = T[pre_dma:i_kava]
        rest = T[i_kava+1:]
        T[:] = T[:pre_dma]
        if o.get('ct'):
            t("s_lshl_b32 s60, s53, 5"); t("s_max_u32 s61, s53, 1"); t("s_sub_u32 s61, s61, 1"); t("s_sub_u32 s60, s60, s61")
            t("s_lshl_b32 s62, s52, 2"); t("s_sub_u32 s62, s62, 32")
            t("v_add_u32 v150, s60, v131"); t("v_add_u32 v151, s62, v131")
            t("v_cmp_gt_u32 vcc, 32, v131"); t("s_nop 1"); t("v_cndmask_b32 v150, v151, v150, vcc")
            t("s_lshl_b32 s62, s52, 2"); t("v_mov_b32 v151, s62")
            t("v_cmp_gt_u32 vcc, 36, v131"); t("s_nop 1"); t("v_cndmask_b32 v150, v151, v150, vcc")
            t("v_min_u32 v150, 124, v150")
            t("s_mul_i32 s61, s51, 125"); t("v_add_u32 v150, s61, v150")
        else:
            t("s_lshl_b32 s60, s53, 5"); t("s_max_u32 s61, s53, 1"); t("s_sub_u32 s61, s61, 1"); t("s_sub_u32 s60, s60, s61")
            t("s_lshl_b32 s60, s60, 5"); t("s_mul_i32 s61, s51, 4000"); t("s_add_u32 s60, s60, s61"); t("s_lshr_b32 s60, s60, 6")
            t("s_lshl_b32 s62, s52, 7"); t("s_add_u32 s62, s62, s61"); t("s_lshr_b32 s62, s62, 6")
            t("v_add_u32 v150, s60, v131")
            t("v_add_u32 v151, s62, v131"); t("v_subrev_u32 v151, 18, v151")
            t("v_cmp_gt_u32 vcc, 18, v131"); t("s_nop 1"); t("v_cndmask_b32 v150, v151, v150, vcc")
            t("v_mov_b32 v151, s62")
            t("v_cmp_gt_u32 vcc, 21, v131"); t("s_nop 1"); t("v_cndmask_b32 v150, v151, v150, vcc")
            t("v_min_u32 v150, 124, v150")
        t("v_lshlrev_b32 v150, 7, v150"); t(f"v_add_u32 v150, {FLQ}, v150")
        t("K2_QP:")
        t("buffer_load_dword v151, v150, s[44:47], 0 offen sc1")
        t("s_waitcnt vmcnt(0)")
        t("v_cmp_ne_u32 vcc, s3, v151")
        t("s_nop 1")
        t("s_cmp_eq_u64 vcc, 0"); t("s_cbranch_scc1 K2_QD"); t("s_sleep 1"); t("s_branch K2_QP")
        t("K2_QD:")
        T.extend(loads)
        T.extend(xcc_blk)
        T.extend(rest)
    else:
        T.remove("@KAVA")
    t("s_waitcnt vmcnt(16)")
    t("s_barrier")
    if o['stamp']: t("s_memtime s[76:77]"); t("s_memrealtime s[78:79]"); t("s_waitcnt lgkmcnt(0)")
    q_read2(t)
    L += hazard.autofix(T)
    DF = o['DF']
    ev = []; seq = [0]
    def add(tm, kind, prio=5, **kw):
        seq[0] += 1; ev.append((tm, prio, seq[0], kind, kw))
    def TT(i, n): return 128*i + n
    NT = 16
    for n in range(NT):
        slot = n % 4
        for kt in range(2):
            for j in range(8):
                f = 8*kt + j
                tm = TT(n-1, 4*f); tr = tm - 4*DF
                ring = RING + 4*(f % 4)
                off = slot*SLOT + kt*8192 + (j >> 2)*256
                add(tr, 'lds', prio=2, text=f"ds_read_b128 {vr(ring,4)}, v{KA+(j&3)} offset:{off}", tag=('K', n, f))
                if n < NT:
                    for qt in range(4):
                        acc = vr(Sreg(kt, qt), 4)
                        c = acc if j else ('0' if n == 0 else vr(NEGM+4*qt, 4))
                        add(tm+qt, 'mfma', prio=0, text=f"{M16} {acc}, {vr(ring,4)}, {ar(aQ+(qt*8+j)*4,4)}, {c}",
                            need=([('K', n, f)] if qt == 0 else []) + ([('Q', qt, j)] if n == 0 else []))
    for n in range(NT):
        slot = n % 4
        for dt in range(16):
            f = 16 + dt
            tm = TT(n, 4*f); tr = tm - 4*DF
            ring = RING + 4*(f % 4)
            for u in range(2):
                off = slot*SLOT + u*8192 + (dt >> 3)*256
                add(tr, 'lds', prio=2, text=f"ds_read_b64_tr_b16 {vr(ring+2*u,2)}, v{VA+(dt&7)} offset:{off}", tag=('V', n, dt, u))
            for qt in range(4):
                add(tm+qt, 'mfma', prio=0, text=f"{M16} {Oreg(dt,qt)}, {vr(ring,4)}, {vr(P[n%2]+4*qt,4)}, {Oreg(dt,qt)}",
                    need=[('V', n, dt, 0), ('V', n, dt, 1)] if qt == 0 else [])
        for kt in range(2):
            for el in range(16 if o.get('valu', True) else 0):
                qt, r = el >> 2, el & 3
                te = TT(n-1, (o['e0'] if kt == 0 else o['e1']) + o['estep']*el)
                reg = Sreg(kt, qt) + r
                add(te, 'valu', prio=3, text=f"v_exp_f32 v{reg}, v{reg}")
                add(te+o['addd'], 'valu', prio=3, text=f"v_add_f32 v{LS+qt}, v{LS+qt}, v{reg}")
                if r % 2 == 1:
                    add(te+o['cvtd'], 'valu', prio=4, text=f"v_cvt_pk_bf16_f32 v{P[n%2]+4*qt+2*kt+r//2}, v{reg-1}, v{reg}")
    for i in range(-1, NT-2):
        add(TT(i, o['bslot']), 'bar', prio=6, it=i)
        if i >= 0 and i + 3 < NT and o.get('dma', True):
            k = 0
            for txt, vm in dma_lines((i+3) % 4):
                tm = TT(i, o['dma0'] + o['dmastep']*k)
                if vm:
                    add(tm, 'dma', prio=7, text=txt, tile=i+3); k += 1
                else:
                    add(tm if k < 8 else TT(i, o['dma0'] + o['dmastep']*7), 'salu', prio=6 if k < 8 else 8, text=txt)
    tail_ev = []
    ev.sort(key=lambda x: (x[0], x[1], x[2]))
    W = Waiter()
    for n in (1, 2):
        for k in range(8): W.issue('vm', ('T', n))
    for j in range(8):
        for qt in range(4): W.issue('lgkm', ('Q', qt, j))
    its = {}
    for x in ev:
        tm, _, _, kind, kw = x
        it = max(tm // 128, -1)
        out = its.setdefault(it, [])
        if kind == 'mfma':
            n = W.need('lgkm', kw['need'])
            if n is not None: out.append(f"s_waitcnt lgkmcnt({n})")
            out.append(kw['text'])
            if tm == TT(-1, 63):
                out.append("@FIXUP")
        elif kind == 'lds':
            out.append(kw['text']); W.issue('lgkm', kw['tag'])
        elif kind == 'bar':
            n = W.need('vm', [('T', kw['it']+2)])
            if n is not None: out.append(f"s_waitcnt vmcnt({n})")
            if o.get('barrier', True) or kw['it'] < 0: out.append("s_barrier")
        elif kind == 'dma':
            out.append(kw['text']); W.issue('vm', ('T', kw['tile']))
        else:
            out.append(kw['text'])
    for i in range(8, 13):
        assert its[i] == its[i-4], (i, [(a, b) for a, b in zip(its[i], its[i-4]) if a != b][:5])
    pro = its[-1]
    fi = pro.index("@FIXUP")
    if not o.get('valu', True):
        its[15] = its[15] + ["v_add_f32 v248, v248, v248"]
    pre_valu = [x for x in pro[:fi] if x.startswith('v_exp') or x.startswith('v_add_f32') or x.startswith('v_cvt')]
    pro_a = [x for x in pro[:fi] if x not in pre_valu or not (x.startswith('v_exp') or x.startswith('v_add_f32') or x.startswith('v_cvt'))]
    fix = []
    fx = fix.append
    fx("s_nop 7")
    for qt in range(4):
        a, b = Sreg(0, qt), Sreg(1, qt)
        fx(f"v_max3_f32 v{NEGM+qt}, v{a}, v{a+1}, v{a+2}")
        fx(f"v_max3_f32 v{NEGM+qt}, v{NEGM+qt}, v{a+3}, v{b}")
        fx(f"v_max3_f32 v{NEGM+qt}, v{NEGM+qt}, v{b+1}, v{b+2}")
        fx(f"v_max_f32 v{NEGM+qt}, v{NEGM+qt}, v{b+3}")
    for sw in ("v_permlane16_swap_b32", "v_permlane32_swap_b32"):
        for qt in range(4): fx(f"v_mov_b32 v{NEGM+4+qt}, v{NEGM+qt}")
        fx("s_nop 1")
        for qt in range(4): fx(f"{sw} v{NEGM+qt}, v{NEGM+4+qt}")
        fx("s_nop 1")
        for qt in range(4): fx(f"v_max_f32 v{NEGM+qt}, v{NEGM+qt}, v{NEGM+4+qt}")
    fx("v_mbcnt_lo_u32_b32 v254, -1, 0"); fx("v_mbcnt_hi_u32_b32 v254, -1, v254")
    fx("v_lshlrev_b32 v254, 4, v254")
    fx(f"s_lshl_b32 s60, s48, 10"); fx(f"s_add_u32 s60, s60, {MX}")
    fx("v_add_u32 v255, s60, v254")
    fx(f"ds_write_b128 v255, {vr(NEGM,4)}")
    fx("s_xor_b32 s60, s60, 2048")
    fx("v_add_u32 v255, s60, v254")
    fx("s_waitcnt lgkmcnt(0)")
    fx("s_barrier")
    fx(f"ds_read_b128 {vr(NEGM+4,4)}, v255")
    fx("s_waitcnt lgkmcnt(0)")
    for qt in range(4): fx(f"v_max_f32 v{NEGM+8+qt}, v{NEGM+qt}, v{NEGM+4+((qt+2)&3)}")
    fx(f"v_mov_b32 v{MREF}, v{NEGM+8}"); fx(f"v_mov_b32 v{MREF+1}, v{NEGM+9}")
    for kt in range(2):
        for qt in range(4):
            for r in range(4): fx(f"v_sub_f32 v{Sreg(kt,qt)+r}, v{Sreg(kt,qt)+r}, v{NEGM+8+qt}")
    for qt in range(4): fx(f"v_mov_b32 v{254}, v{NEGM+8+qt}") if False else None
    for qt in (3, 1, 0):
        for r in range(4): fx(f"v_sub_f32 v{NEGM+4*qt+r}, 0, v{NEGM+8+qt}") if qt != 2 else None
    fx(f"v_sub_f32 v254, 0, v{NEGM+10}")
    for r in range(4): fx(f"v_mov_b32 v{NEGM+8+r}, v254")
    L += hazard.autofix(pro_a + fix + pre_valu + pro[fi+1:])
    if o['stamp']:
        e("s_memtime s[24:25]")
    e("K2_LOOP:")
    body = {u: its[4+u] for u in range(4)}
    L += body[0]
    e("s_cmp_eq_u32 s58, 3")
    e("s_cbranch_scc1 K2_EPI")
    L += body[1]; L += body[2]; L += body[3]
    e("s_add_u32 s58, s58, 1")
    e("s_branch K2_LOOP")
    e("K2_EPI:")
    if o['stamp']:
        e("s_memtime s[26:27]"); e("s_waitcnt lgkmcnt(0)"); e("s_sub_u32 s101, s26, s24"); e("s_sub_u32 s100, s24, s76")
    if FUSED:
        pre13 = []
        p = pre13.append
        p("s_lshl_b32 s60, s52, 7"); p("s_lshl_b32 s61, s53, 5"); p("s_add_u32 s60, s60, s61"); p("s_min_u32 s60, s60, 3968")
        p("s_mul_i32 s61, s51, 4000"); p("s_add_u32 s60, s60, s61")
        sh = 5 if o.get('ct') else 6
        if o.get('ct'):
            p("s_lshr_b32 s62, s60, 5")
        p("s_max_u32 s61, s60, 2"); p("s_sub_u32 s61, s61, 2"); p(f"s_lshr_b32 s61, s61, {sh}")
        p("s_add_u32 s60, s60, 33"); p("s_min_u32 s60, s60, 7999"); p(f"s_lshr_b32 s60, s60, {sh}")
        p("v_mbcnt_lo_u32_b32 v224, -1, 0"); p("v_mbcnt_hi_u32_b32 v224, -1, v224")
        p("v_min_u32 v225, 7, v224"); p("v_lshlrev_b32 v225, 7, v225"); p(f"v_add_u32 v225, {FLW - 256}, v225")
        p("s_lshl_b32 s61, s61, 7"); p(f"s_add_u32 s61, s61, {FLU}"); p("v_mov_b32 v226, s61")
        p("v_cmp_eq_u32 vcc, 0, v224"); p("s_nop 1"); p("v_cndmask_b32 v225, v225, v226, vcc")
        p("s_lshl_b32 s60, s60, 7"); p(f"s_add_u32 s60, s60, {FLU}"); p("v_mov_b32 v226, s60")
        p("v_cmp_eq_u32 vcc, 1, v224"); p("s_nop 1"); p("v_cndmask_b32 v225, v225, v226, vcc")
        if o.get('ct'):
            p("s_lshl_b32 s62, s62, 7"); p(f"s_add_u32 s62, s62, {FLU}"); p("v_mov_b32 v226, s62")
            p("v_cmp_eq_u32 vcc, 8, v224"); p("s_nop 1"); p("v_cndmask_b32 v225, v225, v226, vcc")
        p("buffer_load_dword v226, v225, s[44:47], 0 offen sc1")
        L += hazard.autofix(pre13)
        i13 = list(its[13])
        bi = i13.index("s_barrier")
        assert i13[bi-1] == "s_waitcnt vmcnt(0)", i13[bi-3:bi+1]
        i13[bi-1] = "s_waitcnt vmcnt(1)"
        chk = ["s_waitcnt vmcnt(0)", "K2_TP:", "v_cmp_ne_u32 vcc, s3, v226", "s_nop 1", "s_cmp_eq_u64 vcc, 0", "s_cbranch_scc1 K2_TD", "s_sleep 1",
               "buffer_load_dword v226, v225, s[44:47], 0 offen sc1", "s_waitcnt vmcnt(0)", "s_branch K2_TP", "K2_TD:"]
        L += i13 + chk
    else:
        L += its[13]
    e("s_cmp_eq_u32 s59, 3")
    e("s_cbranch_scc0 K2_NOMASK")
    for r in range(16): e(f"v_mov_b32 v{NEGM+r}, 0xf149f2ca")
    e("s_nop 1")
    e("K2_NOMASK:")
    import gen_tail
    tail, resume = gen_tail.gen_tail(o, its[14], its[15], W)
    L += tail
    e("s_branch K2_END")
    T = []; t = T.append
    M_, MN, AL = NEGM, NEGM + 4, NEGM + 8
    t("K2_SLOW:")
    t("s_mov_b32 s54, 1")
    t("s_waitcnt vmcnt(0) lgkmcnt(0)")
    t("s_barrier")
    t("v_mbcnt_lo_u32_b32 v131, -1, 0"); t("v_mbcnt_hi_u32_b32 v131, -1, v131")
    dv_setup(t)
    S_2 = lambda fn: (lambda b: (fn(b.append), T.extend(b)))([])
    S_2(lambda e: srd(e, 12, 's4', 's5', QF_OFF, 500*8192))
    q_dma(t)
    kava_setup(t)
    for r in range(128): t(f"v_mov_b32 v{O+r}, 0")
    for r in range(128): t(f"v_accvgpr_write_b32 a{aO+r}, 0")
    for k in range(4): t(f"v_mov_b32 v{LS+k}, 0"); t(f"v_mov_b32 v{M_+k}, 0xf149f2ca")
    t("s_lshl_b32 s56, s50, 16"); t("s_lshl_b32 s60, s49, 13"); t("s_add_u32 s56, s56, s60")
    t("s_mov_b32 s57, 0"); t("s_mov_b32 s58, 0")
    t("s_waitcnt vmcnt(0)")
    t("s_barrier")
    q_read(t); q_read2(t)
    t("s_waitcnt lgkmcnt(0)")
    t("K2_SL_LOOP:")
    t("s_barrier")
    for txt, _ in dma_lines(0): t(txt)
    t("s_waitcnt vmcnt(0)")
    t("s_barrier")
    t("s_lshl_b32 s60, s58, 14"); t("s_cmp_lt_u32 s60, s55")
    t("s_cbranch_scc0 K2_SL_NEXT")
    for kt in range(2):
        for j in range(8):
            t(f"ds_read_b128 {vr(RING,4)}, v{KA+(j&3)} offset:{kt*8192 + (j>>2)*256}")
            t("s_waitcnt lgkmcnt(0)")
            for qt in range(4):
                acc = vr(Sreg(kt, qt), 4)
                t(f"{M16} {acc}, {vr(RING,4)}, {ar(aQ+(qt*8+j)*4,4)}, {acc if j else '0'}")
            t("s_nop 3")
    t("s_nop 7")
    for qt in range(4):
        a, b = Sreg(0, qt), Sreg(1, qt)
        t(f"v_max3_f32 v{MN+qt}, v{a}, v{a+1}, v{a+2}")
        t(f"v_max3_f32 v{MN+qt}, v{MN+qt}, v{a+3}, v{b}")
        t(f"v_max3_f32 v{MN+qt}, v{MN+qt}, v{b+1}, v{b+2}")
        t(f"v_max3_f32 v{MN+qt}, v{MN+qt}, v{b+3}, v{M_+qt}")
    for sw in ("v_permlane16_swap_b32", "v_permlane32_swap_b32"):
        for qt in range(4): t(f"v_mov_b32 v{AL+qt}, v{MN+qt}")
        t("s_nop 1")
        for qt in range(4): t(f"{sw} v{MN+qt}, v{AL+qt}")
        t("s_nop 1")
        for qt in range(4): t(f"v_max_f32 v{MN+qt}, v{MN+qt}, v{AL+qt}")
    for qt in range(4):
        t(f"v_sub_f32 v{AL+qt}, v{M_+qt}, v{MN+qt}"); t(f"v_exp_f32 v{AL+qt}, v{AL+qt}"); t(f"v_mov_b32 v{M_+qt}, v{MN+qt}")
    t("s_nop 0")
    for qt in range(4):
        t(f"v_mul_f32 v{LS+qt}, v{LS+qt}, v{AL+qt}")
        for kt in range(2):
            for r in range(4):
                reg = Sreg(kt, qt) + r
                t(f"v_sub_f32 v{reg}, v{reg}, v{M_+qt}"); t(f"v_exp_f32 v{reg}, v{reg}"); t("s_nop 0")
                t(f"v_add_f32 v{LS+qt}, v{LS+qt}, v{reg}")
            for h2 in range(2):
                t(f"v_cvt_pk_bf16_f32 v{P[0]+4*qt+2*kt+h2}, v{Sreg(kt,qt)+2*h2}, v{Sreg(kt,qt)+2*h2+1}")
    def rescale():
        for dt in range(16):
            for qt in range(2):
                for r in range(4): t(f"v_mul_f32 v{O+(dt*2+qt)*4+r}, v{O+(dt*2+qt)*4+r}, v{AL+qt}")
                for r in range(4):
                    a = aO + (dt*2+qt)*4 + r
                    t(f"v_accvgpr_read_b32 v{NEGM+12+r}, a{a}")
                for r in range(4): t(f"v_mul_f32 v{NEGM+12+r}, v{NEGM+12+r}, v{AL+2+qt}")
                for r in range(4):
                    a = aO + (dt*2+qt)*4 + r
                    t(f"v_accvgpr_write_b32 a{a}, v{NEGM+12+r}")
    rescale()
    t("s_nop 1")
    for dt in range(16):
        for u in range(2):
            t(f"ds_read_b64_tr_b16 {vr(RING+2*u,2)}, v{VA+(dt&7)} offset:{u*8192 + (dt>>3)*256}")
        t("s_waitcnt lgkmcnt(0)")
        for qt in range(4):
            t(f"{M16} {Oreg(dt,qt)}, {vr(RING,4)}, {vr(P[0]+4*qt,4)}, {Oreg(dt,qt)}")
        t("s_nop 3")
    t("s_nop 7")
    t("K2_SL_NEXT:")
    t("s_add_u32 s58, s58, 1"); t("s_cmp_lt_u32 s58, 16"); t("s_cbranch_scc1 K2_SL_LOOP")
    t("s_barrier")
    t("v_mbcnt_lo_u32_b32 v254, -1, 0"); t("v_mbcnt_hi_u32_b32 v254, -1, v254"); t("v_lshlrev_b32 v254, 4, v254")
    t(f"s_lshl_b32 s60, s48, 10"); t(f"s_add_u32 s60, s60, {MX}"); t("v_add_u32 v255, s60, v254")
    t(f"ds_write_b128 v255, {vr(M_,4)}")
    t("s_xor_b32 s60, s60, 2048"); t("v_add_u32 v255, s60, v254")
    t("s_waitcnt lgkmcnt(0)"); t("s_barrier")
    t(f"ds_read_b128 {vr(MN,4)}, v255"); t("s_waitcnt lgkmcnt(0)")
    for qt in range(4): t(f"v_max_f32 v{RING+qt}, v{M_+qt}, v{MN+((qt+2)&3)}")
    for qt in range(4):
        t(f"v_sub_f32 v{AL+qt}, v{M_+qt}, v{RING+qt}"); t(f"v_exp_f32 v{AL+qt}, v{AL+qt}")
    t("s_nop 0")
    for qt in range(4): t(f"v_mul_f32 v{LS+qt}, v{LS+qt}, v{AL+qt}")
    t(f"v_mov_b32 v{MREF}, v{RING}"); t(f"v_mov_b32 v{MREF+1}, v{RING+1}")
    rescale()
    t("s_barrier")
    L += hazard.autofix(T + resume)
    e("K2_END:")
    e("s_endpgm")
    i0 = L.index("K2_LOOP:"); i1 = L.index("K2_EPI:")
    lin = L[i0-60:i1] + L[i0:i1] + L[i1:i1+700]
    errs = hazard.check(lin, 'k2f')
    return L, ([] if FUSED else kernel_desc(name, 512, 256)), errs
```

```python
from gen_common import *
import hazard, struct
M16 = "v_mfma_f32_16x16x32_bf16"
fb = lambda x: hex(struct.unpack('<I', struct.pack('<f', x))[0])
OWN = 49152
MXE = 114688
OWNML = MXE + 4096
ACT = 0

def gen_tail(o, it14, it15, W):
    O = 0; S = 128; P = [160, 176]; NEGM = 192; RING = 208; KA = 232; VA = 236; DV = 244; LS = 248; MREF = 252
    aO = 128
    FUSED = o.get('fusedk')
    CS = ' sc1' if (FUSED and o.get('csc1', True)) else ''
    T = []; t = T.append
    def stamp(k):
        if o['stamp'] and not (o.get('st15') and k in (3, 4)): t(f"s_memrealtime s[{80+2*k}:{81+2*k}]")
    def S_(fn):
        buf = []; fn(buf.append); T.extend(buf)
    S_(lambda e: srd(e, 12, 's4', 's5', WF_OFF, 262144))
    t("s_mul_i32 s60, s51, 2048000")
    t(f"s_add_u32 s61, s60, {G_OFF:#x}"); S_(lambda e: srd(e, 24, 's4', 's5', 's61', 2048000))
    t(f"s_add_u32 s61, s60, {U_OFF:#x}"); S_(lambda e: srd(e, 28, 's4', 's5', 's61', 2048000))
    t("s_mov_b32 s34, 2560"); t("s_mov_b32 s35, 0x20000")
    t("s_mov_b32 s38, 4096000"); t("s_mov_b32 s39, 0x20000")
    t("s_mov_b32 s42, 4096000"); t("s_mov_b32 s43, 0x20000")
    S_(lambda e: srd(e, 16, 's4', 's5', OP_OFF, 64*16*16384))
    S_(lambda e: srd(e, 20, 's4', 's5', ML_OFF, 64*16*256))
    t("s_lshl_b32 s62, s52, 7"); t("s_lshl_b32 s60, s53, 5"); t("s_add_u32 s62, s62, s60")
    t("s_lshl_b32 s64, s49, 1"); t("s_add_u32 s64, s64, s50")
    t("v_mbcnt_lo_u32_b32 v254, -1, 0"); t("v_mbcnt_hi_u32_b32 v254, -1, v254")
    t("v_lshlrev_b32 v247, 4, v254")
    t("v_and_b32 v246, 31, v254"); t("v_lshlrev_b32 v246, 4, v246")
    t("v_lshrrev_b32 v255, 5, v254")
    t("s_lshl_b32 s60, s48, 1"); t("v_add_u32 v255, s60, v255")
    t("v_lshlrev_b32 v255, 2, v255"); t("v_add_u32 v255, s62, v255")
    t("v_lshl_add_u32 v244, v255, 9, v246")
    t("v_subrev_u32 v245, 1024, v244")
    t("s_lshl_b32 s60, s48, 15"); t("v_add_u32 v254, s60, v247")
    t("s_add_u32 s61, s60, 16384"); t("s_lshl_b32 s66, s50, 14"); t("s_add_u32 s66, s66, 131072")
    t("s_cmp_eq_u32 s49, 1"); t("s_cselect_b32 s61, s66, s61")
    t("v_add_u32 v255, s61, v247")
    t("K2_HEADEND_PLACEHOLDER") if False else None
    head = list(T); T.clear()
    DWR = [192, 196, 200, 204, 232]
    cl = []
    for i in range(8):
        if i < 2: cl.append((f"buffer_load_dwordx4 {vr(S+4*i,4)}, v245, s[24:27], 0 offen offset:{512*i}{CS}", ('G', i)))
        else: cl.append((f"buffer_load_dwordx4 {vr(S+4*i,4)}, v244, s[24:27], 0 offen offset:{512*(i-2)}{CS}", ('G', i)))
    for i in range(4): cl.append((f"buffer_load_dwordx4 {vr(P[0]+4*i,4)}, v244, s[28:31], 0 offen offset:{512*i}{CS}", ('U', i)))
    for i in range(5): cl.append((f"buffer_load_dwordx4 {vr(DWR[i],4)}, v246, s[32:35], 0 offen offset:{512*i}", ('DW', i)))
    def owr(idx):
        return f"ds_write_b128 v{254 if idx < 16 else 255}, {ar(aO+4*idx,4)} offset:{(idx%16)*1024}"
    w2 = []
    for m in range(8):
        for a in range(4):
            pre = []
            if m % 4 == 0:
                pre = [f"s_lshl_b32 s{66+a}, s48, 16", f"s_add_u32 s{66+a}, s{66+a}, {a*16384 + 8192 + (m>>2)*4096}"]
            w2.append((pre, f"buffer_load_dwordx4 {ar((a*8+m)*4,4)}, v247, s[12:15], s{66+a} offen offset:{(m&3)*1024}{CS}", ('W2', m, a)))
    resume = list(head) + sum([pre + [txt] for pre, txt, tag in w2], []) + [txt for txt, tag in cl]
    out = list(head)
    if o.get('st15'): out = ["s_memtime s[86:87]"] + out
    nm = 0
    step14 = o.get('w2s14', 4)
    for x in it14:
        out.append(x)
        if x.startswith('v_mfma'):
            nm += 1
            if nm > 66 and nm % step14 == 2 and w2:
                pre, txt, tag = w2.pop(0); out += pre; out.append(txt); W.issue('vm', tag)
    if o.get('st15'): out.append("s_memtime s[88:89]")
    lastS = max(i for i, x in enumerate(it15) if x.startswith('v_cvt_pk') or x.startswith('v_exp') or x.startswith('v_add_f32'))
    ci = 0; nm = 0; wr = 0
    bar_done = False
    for i, x in enumerate(it15):
        out.append(x)
        if not bar_done and i >= 6 and not x.startswith('v_mfma'):
            out.append("s_barrier"); bar_done = True
        if i <= lastS and i % o.get('w2s15', 4) == 1 and w2:
            pre, txt, tag = w2.pop(0); out += pre; out.append(txt); W.issue('vm', tag)
        if x.startswith('v_mfma'):
            nm += 1
            if i > lastS and nm % 4 == 2:
                if w2:
                    pre, txt, tag = w2.pop(0); out += pre; out.append(txt); W.issue('vm', tag)
                elif ci < len(cl):
                    txt, tag = cl[ci]; ci += 1
                    out.append(txt); W.issue('vm', tag)
            if nm % 2 == 0:
                dt_ok = (nm - 9) // 4
                if wr < 2*dt_ok and wr < 32 and dt_ok >= 1:
                    out.append(owr(wr)); wr += 1
    while w2:
        pre, txt, tag = w2.pop(0); out += pre; out.append(txt); W.issue('vm', tag)
    while ci < len(cl):
        txt, tag = cl[ci]; ci += 1; out.append(txt); W.issue('vm', tag)
    T.extend(out)
    if o['stamp']: t("s_memtime s[98:99]")
    stamp(0)
    lred = []
    for sw in ("v_permlane16_swap_b32", "v_permlane32_swap_b32"):
        for qt in range(4): lred.append(f"v_mov_b32 v{236+qt}, v{LS+qt}")
        lred.append("s_nop 1")
        for qt in range(4): lred.append(f"{sw} v{LS+qt}, v{236+qt}")
        lred.append("s_nop 1")
        for qt in range(4): lred.append(f"v_add_f32 v{LS+qt}, v{LS+qt}, v{236+qt}")
    T.extend(lred)
    resume += lred + ["s_nop 7"] + [owr(i) for i in range(32)] + ["s_branch K2_POSTB"]
    t("s_nop 7")
    while wr < 32:
        t(owr(wr)); wr += 1
    t("K2_POSTB:")
    t("s_waitcnt lgkmcnt(0)")
    t("s_barrier")
    t("s_lshl_b32 s60, s65, 7"); t("s_lshl_b32 s61, s64, 2"); t("s_add_u32 s60, s60, s61")
    if FUSED: t("s_add_u32 s60, s60, 16")
    t("buffer_load_dword v241, off, s[44:47], s60 sc1"); W.issue('vm', 'WORD')
    w1 = []
    for m in range(8):
        for a in range(4):
            pre = []
            if m % 4 == 0:
                pre = [f"s_lshl_b32 s{66+a}, s48, 16", f"s_add_u32 s{66+a}, s{66+a}, {a*16384 + (m>>2)*4096}"]
            w1.append((pre, f"buffer_load_dwordx4 {ar(128+(a*8+m)*4,4)}, v247, s[12:15], s{66+a} offen offset:{(m&3)*1024}{CS}", ('W1', m, a)))
    def pload(n=1, lst=None):
        lst = pend if lst is None else lst
        for _ in range(n):
            if not lst: return
            pre, txt, tag = lst.pop(0)
            T.extend(pre); t(txt); W.issue('vm', tag)
    t("v_lshrrev_b32 v240, 1, v247")
    t("s_lshl_b32 s60, s48, 10"); t(f"s_add_u32 s60, s60, {MXE}"); t("v_add_u32 v240, s60, v240")
    t(f"ds_write_b64 v240, {vr(LS+2,2)}")
    t("v_max_f32 v238, v248, v249"); t("v_max3_f32 v238, v238, v250, v251")
    t("v_add_f32 v239, v248, v249"); t("v_add_f32 v239, v239, v250"); t("v_add_f32 v239, v239, v251")
    t("v_max_f32 v238, v238, v239")
    t("s_mov_b32 s57, 0x71800000")
    t("v_cmp_ngt_f32 vcc, s57, v239")
    t("s_nop 1")
    t("s_cmp_lg_u64 vcc, 0")
    t("s_cselect_b32 s57, 1, 0")
    t("v_mov_b32 v238, s57")
    t(f"s_lshl_b32 s57, s48, 2"); t(f"s_add_u32 s57, s57, {MXE + 8192}"); t("v_mov_b32 v239, s57")
    t("ds_write_b32 v239, v238")
    t("v_xor_b32 v254, 0x10000, v254")
    t("s_mov_b32 s57, 0x4000"); t("s_cmp_eq_u32 s49, 1"); t("s_cselect_b32 s60, s57, 0x10000")
    t("v_xor_b32 v255, s60, v255")
    bufs = [P[1], RING]
    def rd(b):
        for k in range(4):
            idx = 4*b + k
            t(f"ds_read_b128 {vr(bufs[b%2]+4*k,4)}, v{254 if idx < 16 else 255} offset:{(idx%16)*1024}")
    rd(0); rd(1)
    for b in range(8):
        t(f"s_waitcnt lgkmcnt({4 if b < 7 else 0})")
        for k in range(4):
            d = O + 4*(4*b+k); s = bufs[b%2] + 4*k
            t(f"v_pk_add_f32 v[{d}:{d+1}], v[{d}:{d+1}], v[{s}:{s+1}]")
            t(f"v_pk_add_f32 v[{d+2}:{d+3}], v[{d+2}:{d+3}], v[{s+2}:{s+3}]")
        if b + 2 < 8: rd(b+2)
        pload(o.get('w1x', 1), w1)
    t("s_barrier")
    t("v_xor_b32 v240, 0x800, v240")
    t(f"ds_read_b64 v[236:237], v240")
    t(f"v_mov_b32 v239, {MXE + 8192}")
    t("ds_read_b128 v[232:235], v239") if False else t("ds_read_b128 v[212:215], v239")
    stamp(1)
    for m in range(8):
        for tt in range(2):
            a = 16*m + 4*tt; b = a + 8
            t(f"v_cvt_pk_bf16_f32 v{a}, v{a}, v{a+1}")
            t(f"v_cvt_pk_bf16_f32 v{a+1}, v{a+2}, v{a+3}")
            t(f"v_cvt_pk_bf16_f32 v{a+2}, v{b}, v{b+1}")
            t(f"v_cvt_pk_bf16_f32 v{a+3}, v{b+2}, v{b+3}")
    t("v_mbcnt_lo_u32_b32 v208, -1, 0"); t("v_mbcnt_hi_u32_b32 v208, -1, v208")
    t("v_and_b32 v209, 15, v208")
    t("v_lshrrev_b32 v210, 4, v208")
    t("s_mul_i32 s60, s51, 4000"); t("s_add_u32 s60, s60, s62")
    t("v_add_u32 v211, s60, v209"); t("v_lshlrev_b32 v211, 9, v211")
    t("v_lshl_add_u32 v211, v210, 3, v211")
    t("s_lshl_b32 s60, s48, 7"); t("v_add_u32 v242, s60, v211")
    t("v_add_u32 v243, 8192, v242")
    n = W.need('vm', ['WORD'])
    t(f"s_waitcnt vmcnt({n}) lgkmcnt(0)")
    W.drain('lgkm')
    t("v_or_b32 v212, v212, v213"); t("v_or_b32 v214, v214, v215"); t("v_or_b32 v212, v212, v214")
    t("s_nop 0")
    t("v_readfirstlane_b32 s57, v212")
    t("s_nop 3")
    t("s_andn2_b32 s57, s57, s54")
    t("s_cmp_lg_u32 s57, 0")
    t("s_cbranch_scc1 K2_SLOW")
    t(f"v_add_f32 v{LS}, v{LS}, v236"); t(f"v_add_f32 v{LS+1}, v{LS+1}, v237")
    t("s_cmp_eq_u32 s64, s53")
    t("s_cbranch_scc0 K2_PUBG")
    t(f"v_add_u32 v254, {OWN}, v247")
    for m in range(8):
        for tt in range(2):
            t(f"ds_write_b128 v254, {vr(16*m+4*tt,4)} offset:{(m*2+tt)*1024}")
    t("v_lshlrev_b32 v255, 3, v209"); t(f"v_add_u32 v255, {OWNML}, v255")
    for tt in range(2):
        t(f"v_mov_b32 v{212+2*tt}, v{MREF+tt}"); t(f"v_mov_b32 v{213+2*tt}, v{LS+tt}")
        t(f"ds_write_b64 v255, v[{212+2*tt}:{213+2*tt}] offset:{128*tt}")
    t("s_branch K2_PUBD")
    t("K2_PUBG:")
    t("s_lshl_b32 s60, s52, 7"); t("s_lshl_b32 s61, s64, 5"); t("s_add_u32 s60, s60, s61")
    t("s_cmp_lt_u32 s60, 4000")
    t("s_cbranch_scc0 K2_PUBD")
    t("s_lshl_b32 s60, s65, 2"); t("s_add_u32 s60, s60, s64"); t("s_lshl_b32 s60, s60, 2"); t("s_add_u32 s60, s60, s53")
    t("s_lshl_b32 s61, s60, 14")
    t("v_lshlrev_b32 v255, 3, v209")
    for tt in range(2):
        t(f"v_mov_b32 v{212+2*tt}, v{MREF+tt}"); t(f"v_mov_b32 v{213+2*tt}, v{LS+tt}")
    t("v_readfirstlane_b32 s57, v241")
    t("s_nop 3"); t("s_xor_b32 s57, s57, s3" if FUSED else "s_and_b32 s57, s57, 15")
    t("s_cmp_eq_u32 s57, s63")
    t("s_cbranch_scc1 K2_PUBL" if o.get('l2pub', True) else "s_nop 0")
    for lbl, fl in (("", " sc1"), ("K2_PUBL", (" " + o['l2fl']) if o.get('l2fl') else "")):
        if lbl: t(f"{lbl}:")
        t("s_lshl_b32 s61, s60, 14")
        for m in range(8):
            for tt in range(2):
                f = m*2 + tt
                if f % 4 == 0 and f: t("s_add_u32 s61, s61, 4096")
                t(f"buffer_store_dwordx4 {vr(16*m+4*tt,4)}, v247, s[16:19], s61 offen offset:{(f%4)*1024}{fl}")
        t("s_lshl_b32 s61, s60, 8")
        t("v_cmp_gt_u32 vcc, 16, v208")
        t("s_and_saveexec_b64 s[70:71], vcc")
        for tt in range(2):
            t(f"buffer_store_dwordx2 v[{212+2*tt}:{213+2*tt}], v255, s[20:23], s61 offen offset:{128*tt}{fl}")
        t("s_mov_b64 exec, s[70:71]")
        if not lbl: t("s_branch K2_PUBD")
    t("K2_PUBD:")
    def atomic(lbl):
        t("s_cmp_eq_u32 s48, 0")
        t(f"s_cbranch_scc0 {lbl}")
        t("s_lshl_b32 s60, s65, 7"); t("s_lshl_b32 s61, s53, 2"); t("s_add_u32 s60, s60, s61")
        t("s_mov_b32 s61, s3" if FUSED else "s_or_b32 s61, s63, 0x80"); t("v_mov_b32 v215, s61")
        t("v_cmp_eq_u32 vcc, 0, v208")
        t("s_and_saveexec_b64 s[70:71], vcc")
        t("buffer_store_dword v215, off, s[44:47], s60 sc1")
        t("s_mov_b64 exec, s[70:71]")
        t(f"{lbl}:")
    t("s_cmp_lt_u32 s62, 4000")
    t("s_cbranch_scc1 K2_VALID")
    t("s_waitcnt vmcnt(0) lgkmcnt(0)")
    t("s_barrier")
    atomic("K2_NOATOM0")
    t("s_branch K2_FIN")
    t("K2_VALID:")
    stamp(2)
    pend = []
    for a in range(4):
        for tt in range(2):
            pend.append(([], f"buffer_load_dwordx2 {vr(176+(a*2+tt)*2,2)}, v{242+tt}, s[36:39], 0 offen offset:{32*a}", ('X', a, tt)))
    pend = w1 + pend
    w1 = []
    opp = [0]
    def cload():
        opp[0] += 1
        if opp[0] % o.get('convstep', 1) == 0: pload(1)
    W.issue('vm', 'PUB')
    DWF = 0; CV = 40; GT = 72; GR = S; UR = P[0]
    t("s_nop 1")
    for i in range(5):
        for k in range(4):
            t(f"v_lshlrev_b32 v{DWF+8*i+2*k}, 16, v{DWR[i]+k}")
            t(f"v_and_b32 v{DWF+8*i+2*k+1}, 0xffff0000, v{DWR[i]+k}")
        cload()
    def pubflag():
        n = W.need('vm', ['PUB'])
        t(f"s_waitcnt vmcnt({n}) lgkmcnt(0)")
        t("s_barrier")
        atomic("K2_NOATOM")
    for rho in range(8):
        if rho == o.get('pubat', 8): pubflag()
        g = GT + 8*(rho % 2)
        for k in range(4):
            t(f"v_lshlrev_b32 v{g+2*k}, 16, v{GR+4*rho+k}")
            t(f"v_and_b32 v{g+2*k+1}, 0xffff0000, v{GR+4*rho+k}")
        for i in range(4):
            tap = rho - i
            if 0 <= tap <= 4:
                for k in range(4):
                    d = f"v[{CV+8*i+2*k}:{CV+8*i+2*k+1}]"
                    a_ = f"v[{g+2*k}:{g+2*k+1}]"; b_ = f"v[{DWF+8*tap+2*k}:{DWF+8*tap+2*k+1}]"
                    if tap == 0: t(f"v_pk_mul_f32 {d}, {a_}, {b_}")
                    else: t(f"v_pk_fma_f32 {d}, {a_}, {b_}, {d}")
                cload()
    if o.get('pubat', 8) >= 8: pubflag()
    t("v_and_b32 v212, 31, v208")
    t("v_lshrrev_b32 v213, 2, v212")
    t("v_and_b32 v214, 3, v212")
    t("v_and_b32 v215, 1, v213"); t("v_lshl_or_b32 v215, v215, 2, v214")
    t("v_lshrrev_b32 v216, 5, v208"); t("s_lshl_b32 s60, s48, 1"); t("v_add_u32 v216, s60, v216")
    t("v_lshrrev_b32 v217, 2, v216")
    t("v_and_b32 v216, 3, v216"); t("v_lshlrev_b32 v216, 2, v216")
    t("v_lshl_add_u32 v216, v214, 4, v216")
    t("v_lshl_add_u32 v213, v213, 1, v217")
    t("v_lshlrev_b32 v213, 10, v213"); t(f"v_add_u32 v213, {ACT + 16*1024}, v213")
    k0 = -2.0*1.4426950408889634*0.7978845608028654
    t(f"v_mov_b32 v88, {fb(k0)}"); t(f"v_mov_b32 v90, {fb(k0*0.044715)}"); t("v_mov_b32 v92, 1.0")
    for i in range(4):
        g = GT + 8*(i % 2)
        for k in range(4):
            t(f"v_lshlrev_b32 v{g+2*k}, 16, v{UR+4*i+k}")
            t(f"v_and_b32 v{g+2*k+1}, 0xffff0000, v{UR+4*i+k}")
        tmp = [96+2*k for k in range(4)]
        X = lambda k: f"v[{g+2*k}:{g+2*k+1}]"; Tt = lambda k: f"v[{tmp[k]}:{tmp[k]+1}]"
        for k in range(4): t(f"v_pk_mul_f32 {Tt(k)}, {X(k)}, {X(k)}")
        for k in range(4): t(f"v_pk_fma_f32 {Tt(k)}, {Tt(k)}, v[90:91], v[88:89] op_sel_hi:[1,0,0]")
        cload()
        for k in range(4): t(f"v_pk_mul_f32 {Tt(k)}, {Tt(k)}, {X(k)}")
        for k in range(4): t(f"v_exp_f32 v{tmp[k]}, v{tmp[k]}"); t(f"v_exp_f32 v{tmp[k]+1}, v{tmp[k]+1}")
        cload()
        for k in range(4): t(f"v_pk_add_f32 {Tt(k)}, {Tt(k)}, v[92:93] op_sel_hi:[1,0]")
        for k in range(4): t(f"v_rcp_f32 v{tmp[k]}, v{tmp[k]}"); t(f"v_rcp_f32 v{tmp[k]+1}, v{tmp[k]+1}")
        cload()
        for k in range(4): t(f"v_pk_mul_f32 {X(k)}, {X(k)}, {Tt(k)}")
        for k in range(4):
            t(f"v_pk_mul_f32 v[{g+2*k}:{g+2*k+1}], v[{g+2*k}:{g+2*k+1}], v[{CV+8*i+2*k}:{CV+8*i+2*k+1}]")
        for k in range(4):
            t(f"v_cvt_pk_bf16_f32 v{GR+4*i+k}, v{g+2*k}, v{g+2*k+1}")
        t(f"v_add_u32 v218, {i}, v216")
        t("v_xor_b32 v218, v218, v215")
        t("v_lshl_add_u32 v218, v218, 4, v213")
        t(f"ds_write_b128 v218, {vr(GR+4*i,4)}")
        cload()
        if i == o.get('pollat', 1):
            t("s_lshl_b32 s57, s65, 7")
            t("buffer_load_dwordx4 v[232:235], off, s[44:47], s57 sc1"); W.issue('vm', 'POLL0')
    if o.get('convstep', 1) == 1: pload(100)
    t("v_lshlrev_b32 v212, 4, v210"); t("v_xor_b32 v212, v247, v212"); t("v_xor_b32 v213, 64, v212")
    t("s_waitcnt lgkmcnt(0)")
    t("s_barrier")
    stamp(3)
    ACC = 96
    RB = [216, 220, 224, 228]
    def gemm(part, lst=None):
        Wl = Waiter()
        evs = []
        for m in range(8):
            for tt in range(2):
                evs.append((8*(m-1) + 4*tt, 1, 'rd', m, tt))
            for a in range(4):
                for tt in range(2): evs.append((8*m + 2*a + tt, 0, 'mf', m, a, tt))
        evs.sort(key=lambda x: (x[0], x[1]))
        for x in evs:
            if x[2] == 'rd':
                m, tt = x[3], x[4]
                ring = RB[(m*2+tt) % 4]
                if part == 1: t(f"ds_read_b128 {vr(ring,4)}, v{212+(m&1)} offset:{ACT + ((8+m)*2+tt)*1024}")
                else: t(f"ds_read_b128 {vr(ring,4)}, v247 offset:{ACT + (m*2+tt)*1024}")
                Wl.issue('lgkm', (m, tt))
            else:
                m, a, tt = x[3], x[4], x[5]
                ring = RB[(m*2+tt) % 4]
                n = Wl.need('lgkm', [(m, tt)])
                nv = W.need('vm', [('W2' if part == 1 else 'W1', m, a)])
                if nv is not None and o.get('atomslack', True): pass
                ws_ = ([f"vmcnt({nv})"] if nv is not None else []) + ([f"lgkmcnt({n})"] if n is not None else [])
                if ws_: t("s_waitcnt " + ' '.join(ws_))
                acc = vr(ACC + (a*2+tt)*4, 4)
                c = '0' if (part == 1 and m == 0) else acc
                wreg = ar((a*8+m)*4, 4) if part == 1 else ar(128+(a*8+m)*4, 4)
                t(f"{M16} {acc}, {wreg}, {vr(ring,4)}, {c}")
                if lst is not None and tt == 1 and a % 2 == 1: pload(1, lst)
    n = W.need('vm', ['POLL0'])
    if n is not None: t(f"s_waitcnt vmcnt({n})")
    t("K2_POLL:")
    if FUSED:
        for k in range(4): t(f"v_xor_b32 v{232+k}, s3, v{232+k}")
        t("v_or_b32 v232, v232, v233"); t("v_or_b32 v234, v234, v235"); t("v_or_b32 v232, v232, v234")
        t("s_nop 0"); t("v_readfirstlane_b32 s61, v232"); t("s_nop 3"); t("s_cmp_eq_u32 s61, 0")
    else:
        t("v_and_b32 v232, v232, v233"); t("v_and_b32 v234, v234, v235"); t("v_and_b32 v232, v232, v234")
        t("s_nop 0"); t("v_readfirstlane_b32 s61, v232"); t("s_nop 3"); t("s_bitcmp1_b32 s61, 7")
    t("s_cbranch_scc1 K2_POLLD")
    t("s_sleep 1")
    t("buffer_load_dwordx4 v[232:235], off, s[44:47], s57 sc1")
    t("s_waitcnt vmcnt(0)")
    t("s_branch K2_POLL")
    t("K2_POLLD:")
    stamp(4)
    PR = 0; MLR = 64
    t("v_lshlrev_b32 v215, 3, v209")
    for k in range(1, 4):
        t(f"s_add_u32 s60, s53, {k}"); t("s_and_b32 s60, s60, 3")
        t("s_lshl_b32 s61, s65, 2"); t("s_add_u32 s61, s61, s53"); t("s_lshl_b32 s61, s61, 2"); t(f"s_add_u32 s{56+k}, s61, s60")
    pp = []
    for k in range(1, 4):
        for tt in range(2):
            pp.append(([f"s_lshl_b32 s60, s{56+k}, 8"], f"buffer_load_dwordx2 {vr(MLR+(k*2+tt)*2,2)}, v215, s[20:23], s60 offen offset:{128*tt} sc1", ('ML', k, tt)))
    for k in range(1, 4):
        for ff in range(4):
            pre = [f"s_lshl_b32 s61, s{56+k}, 14", "s_lshl_b32 s60, s48, 12", "s_add_u32 s61, s61, s60"] if ff == 0 else []
            pp.append((pre, f"buffer_load_dwordx4 {vr(PR+((k-1)*4+ff)*4,4)}, v247, s[16:19], s61 offen offset:{ff*1024} sc1", ('PP', k, ff)))
    pload(6, pp)
    pload(o.get('pp0', 2), pp)
    gemm(1, pp)
    pload(100, pp)
    stamp(5)
    t(f"v_add_u32 v216, {OWNML}, v215")
    for tt in range(2): t(f"ds_read_b64 {vr(MLR+tt*2,2)}, v216 offset:{128*tt}")
    t("s_lshl_b32 s60, s48, 12"); t(f"s_add_u32 s60, s60, {OWN}"); t("v_add_u32 v216, s60, v247")
    for ff in range(4): t(f"ds_read_b128 {vr(48+4*ff,4)}, v216 offset:{ff*1024}")
    n = W.need('vm', [('ML', 3, 1)])
    t(f"s_waitcnt vmcnt({n}) lgkmcnt(0)")
    CF = 80
    for tt in range(2):
        for k in range(4): t(f"v_log_f32 v{128+k}, v{MLR+(k*2+tt)*2+1}")
        t("s_nop 0")
        for k in range(4): t(f"v_add_f32 v{128+k}, v{128+k}, v{MLR+(k*2+tt)*2}")
        t("v_max_f32 v132, v128, v129"); t("v_max3_f32 v132, v132, v130, v131")
        for k in range(4): t(f"v_sub_f32 v{128+k}, v{128+k}, v132")
        for k in range(4): t(f"v_exp_f32 v{128+k}, v{128+k}")
        for k in range(4): t(f"v_sub_f32 v{CF+2*(k*2+tt)}, v{MLR+(k*2+tt)*2}, v132")
        t("v_add_f32 v128, v128, v129"); t("v_add_f32 v130, v130, v131")
        for k in range(4): t(f"v_exp_f32 v{CF+2*(k*2+tt)}, v{CF+2*(k*2+tt)}")
        t("v_add_f32 v128, v128, v130")
        t("v_rcp_f32 v128, v128")
        t("s_nop 0")
        for k in range(4): t(f"v_mul_f32 v{CF+2*(k*2+tt)}, v{CF+2*(k*2+tt)}, v128")
    MA = 128; GT2 = 160
    for k in range(4):
        for ff in range(4):
            tt = ff & 1
            src = 48 + 4*ff if k == 0 else PR + ((k-1)*4+ff)*4
            if k > 0:
                n = W.need('vm', [('PP', k, ff)])
                if n is not None: t(f"s_waitcnt vmcnt({n})")
            for q in range(4):
                g = GT2 + 2*((ff*4+q) % 8)
                t(f"v_lshlrev_b32 v{g}, 16, v{src+q}")
                t(f"v_and_b32 v{g+1}, 0xffff0000, v{src+q}")
                d = f"v[{MA+(ff*4+q)*2}:{MA+(ff*4+q)*2+1}]"
                c = f"v[{CF+2*(k*2+tt)}:{CF+2*(k*2+tt)+1}]"
                if k == 0: t(f"v_pk_mul_f32 {d}, v[{g}:{g+1}], {c} op_sel_hi:[1,0]")
                else: t(f"v_pk_fma_f32 {d}, v[{g}:{g+1}], {c}, {d} op_sel_hi:[1,0,1]")
            pload(1)
    pload(100)
    t("s_lshl_b32 s60, s48, 12"); t(f"s_add_u32 s60, s60, {ACT}"); t("v_add_u32 v216, s60, v247")
    for ff in range(4):
        for q in range(4): t(f"v_cvt_pk_bf16_f32 v{ff*4+q}, v{MA+(ff*4+q)*2}, v{MA+(ff*4+q)*2+1}")
        t(f"ds_write_b128 v216, {vr(ff*4,4)} offset:{ff*1024}")
    t("s_waitcnt lgkmcnt(0)")
    t("s_barrier")
    stamp(6)
    gemm(0)
    nv = W.need('vm', [('X', 3, 1)])
    if nv is not None: t(f"s_waitcnt vmcnt({nv})")
    t("s_nop 7")
    for a in range(4):
        for tt in range(2):
            acc = ACC + (a*2+tt)*4; xr = 176 + (a*2+tt)*2
            for q in range(2):
                g = 128 + 4*((a*2+tt) % 4) + 2*q
                t(f"v_lshlrev_b32 v{g}, 16, v{xr+q}"); t(f"v_and_b32 v{g+1}, 0xffff0000, v{xr+q}")
                t(f"v_pk_add_f32 v[{acc+2*q}:{acc+2*q+1}], v[{acc+2*q}:{acc+2*q+1}], v[{g}:{g+1}]")
            d = 2*(a*2+tt)
            t(f"v_cvt_pk_bf16_f32 v{d}, v{acc}, v{acc+1}"); t(f"v_cvt_pk_bf16_f32 v{d+1}, v{acc+2}, v{acc+3}")
            t(f"buffer_store_dwordx2 v[{d}:{d+1}], v{242+tt}, s[40:43], 0 offen offset:{32*a}{' '+o['ost'] if o.get('ost') else ''}")
    t("K2_FIN:")
    if o['stamp']:
        t("s_waitcnt vmcnt(0)")
        t("s_memtime s[94:95]"); t("s_memrealtime s[96:97]")
        t("s_waitcnt lgkmcnt(0)")
        t("s_cmp_eq_u32 s48, 0"); t("s_cbranch_scc0 K2_END")
        t("s_add_u32 s68, s4, 0x8000000"); t("s_addc_u32 s69, s5, 0"); t("s_mov_b32 s70, 0x100000"); t("s_mov_b32 s71, 0x20000")
        regs = [72, 76, 98, 94, 74, 78, 80, 96, 82, 84, 86, 88, 90, 92, 101, 100]
        for k, r in enumerate(regs): t(f"v_mov_b32 v{128+k}, s{r}")
        t("s_lshl_b32 s60, s2, 6"); t("v_mov_b32 v150, s60")
        for k in range(4): t(f"buffer_store_dwordx4 v[{128+4*k}:{131+4*k}], v150, s[68:71], 0 offen offset:{16*k}")
    return hazard.autofix(T), resume
```

```python
from gen_common import *
from tl import TL
import hazard, struct
SLOT = 16384
EX = 131072
fb = lambda x: hex(struct.unpack('<I', struct.pack('<f', x))[0])

def gen_k1(opt=None):
    o = dict(D=6, stamp=False, st='', npre=2, nln=4)
    if opt: o.update(opt)
    D = o['D']; ST = (' ' + o['st']) if o['st'] else ''
    FUSED = o.get('fused')
    name = FUSED if FUSED else 'prep_kernel'
    L = []; e = L.append
    B = 0; ACC = [64, 128]; KA = 192; KA2 = 200; VN = 208; VN2 = 216; DV = 224; DS = 228; XB = 200
    aR = 0; R = 8
    def stamp(T, k):
        if o['stamp']: T.append(f"s_memrealtime s[{72+2*k}:{73+2*k}]")
    L += kernel_header(name)
    e("s_cmp_ge_u32 s2, 256")
    e("s_cbranch_scc1 K2_END" if FUSED else "s_cbranch_scc1 K1_END")
    e("s_load_dwordx16 s[36:51], s[0:1], 0")
    e("s_load_dwordx2 s[52:53], s[0:1], 64")
    e("s_load_dwordx2 s[54:55], s[0:1], 88")
    if FUSED: e("s_load_dwordx2 s[58:59], s[0:1], 80")
    if o['stamp']:
        e("s_memtime s[60:61]"); e("s_memrealtime s[62:63]")
    e("v_lshrrev_b32 v232, 6, v0")
    e("v_and_b32 v240, 63, v0")
    e("v_lshrrev_b32 v241, 5, v240")
    e("v_and_b32 v242, 31, v240")
    e("v_readfirstlane_b32 s28, v232")
    e("s_and_b32 s29, s28, 1")
    e("s_lshr_b32 s30, s28, 1")
    e("s_lshl_b32 s31, s28, 12")
    CT = o.get('ct')
    if CT: e("s_mov_b32 s35, s2")
    else: e("s_sub_u32 s35, s2, 125"); e("s_cmp_lt_u32 s2, 125"); e("s_cselect_b32 s35, s2, s35")
    e("s_lshl_b32 s33, s28, 1")
    for k in range(4):
        e(f"v_add_u32 v234, {2*k}, v241"); e("v_and_b32 v234, 3, v234"); e("v_lshlrev_b32 v234, 2, v234")
        e(f"s_add_u32 s34, s33, {k>>1}"); e("s_and_b32 s34, s34, 3")
        e("v_or_b32 v234, s34, v234"); e("v_xor_b32 v234, v242, v234"); e("v_lshlrev_b32 v234, 4, v234")
        e("v_lshl_add_u32 v234, v241, 9, v234")
        e(f"v_add_u32 v{DS+k}, s31, v234")
    e("s_waitcnt lgkmcnt(0)")
    if FUSED:
        e("s_mov_b32 s4, s58"); e("s_mov_b32 s5, s59"); e("s_mov_b32 s6, 256"); e("s_mov_b32 s7, 0x20000")
        e("s_or_b32 s33, s2, s28"); e("s_cmp_eq_u32 s33, 0"); e("s_cbranch_scc0 K1_NOTAG")
        e("s_memrealtime s[56:57]"); e("s_waitcnt lgkmcnt(0)"); e("s_or_b32 s56, s56, 1")
        e("v_mov_b32 v234, s56")
        e("buffer_store_dword v234, off, s[4:7], 0 sc1")
        e("K1_NOTAG:")
    e("s_cmp_lt_u32 s2, 250"); e("s_cbranch_scc0 K1_NOX")
    srd(e, 16, 's36', 's37', 0, 8000*512)
    e("s_lshl_b32 s32, s35, 14" if CT else "s_lshl_b32 s32, s35, 15")
    for half in range(1 if CT else 2):
        e(f"s_add_u32 m0, s31, {EX + half*SLOT:#x}")
        if half: e("s_add_u32 s32, s32, 16384")
        else: e("s_nop 0")
        for k in range(4):
            e(f"buffer_load_dwordx4 v{DS+k}, s[16:19], s32 offen offset:{k*1024} lds")
    if FUSED and o.get('ipf', True):
        e("s_getpc_b64 s[56:57]")
        e("K1_PCREF:")
        e(f"s_add_u32 s56, s56, {o.get('ipfbase', 'K1_NOX')}-K1_PCREF"); e("s_addc_u32 s57, s57, 0")
        e("s_lshr_b32 s33, s2, 3"); e("s_lshl_b32 s33, s33, 2"); e("s_add_u32 s33, s33, s28"); e("s_lshl_b32 s33, s33, 10")
        e(f"s_cmp_lt_u32 s33, {o.get('ipfbytes', 61440)}"); e("s_cbranch_scc0 K1_NOIPF")
        e("v_lshlrev_b32 v232, 4, v240"); e("v_add_u32 v232, s33, v232")
        e("global_load_dwordx4 v[252:255], v232, s[56:57]")
        e("K1_NOIPF:")
    if o.get('pf', True):
        e("s_and_b32 s33, s2, 7"); e("s_cmp_lt_u32 s33, 2"); e("s_cbranch_scc1 K1_NOPF")
        e("s_lshr_b32 s34, s2, 3")
        e("s_cmp_ge_u32 s33, 6"); e("s_cbranch_scc1 K1_PF2")
        e("s_cmp_lt_u32 s34, 16"); e("s_cselect_b32 s8, s44, s42"); e("s_cselect_b32 s9, s45, s43")
        e("s_and_b32 s34, s34, 15"); e("s_lshl_b32 s34, s34, 13")
        e("s_branch K1_PF3")
        e("K1_PF2:")
        e("s_add_u32 s56, s52, 131072"); e("s_addc_u32 s57, s53, 0")
        e("s_cmp_lt_u32 s34, 16"); e("s_cselect_b32 s8, s50, s56"); e("s_cselect_b32 s9, s51, s57")
        e("s_and_b32 s34, s34, 15"); e("s_lshl_b32 s34, s34, 13")
        e("K1_PF3:")
        e("s_mov_b32 s10, 131072"); e("s_mov_b32 s11, 0x20000")
        e("v_lshlrev_b32 v232, 4, v240"); e("s_lshl_b32 s33, s28, 11"); e("s_add_u32 s34, s34, s33")
        e("buffer_load_dwordx4 v[244:247], v232, s[8:11], s34 offen")
        e("buffer_load_dwordx4 v[248:251], v232, s[8:11], s34 offen offset:1024")
        e("K1_NOPF:")
    e("K1_NOX:")
    first, second = ("K1_UG", "K1_Q") if o.get('ugfirst', True) else ("K1_Q", "K1_UG")
    if CT:
        e("s_cmp_lt_u32 s2, 250"); e("s_cbranch_scc1 K1_CT")
    else:
        e("s_cmp_lt_u32 s2, 125"); e(f"s_cbranch_scc1 {first}")
        e("s_cmp_lt_u32 s2, 250"); e(f"s_cbranch_scc1 {second}")
    e("s_cmp_lt_u32 s2, 254"); e("s_cbranch_scc1 K1_W1")
    e("s_branch K1_W2")

    def k_addr(T, dst, dst2, base_lines):
        t = T.append
        t("v_and_b32 v234, 3, v242"); t("v_lshlrev_b32 v234, 2, v234"); t("v_bfe_u32 v235, v242, 2, 2")
        t("v_or_b32 v234, v234, v235"); t("v_lshlrev_b32 v236, 9, v242")
        for x in base_lines: t(x)
        t("v_add_u32 v236, s33, v236")
        for jj in range(8):
            t(f"v_add_u32 v235, {2*jj}, v241"); t("v_xor_b32 v235, v235, v234")
            t(f"v_lshl_add_u32 v{dst+jj}, v235, 4, v236")
            if dst2 is not None: t(f"v_add_u32 v{dst2+jj}, 0x10000, v{dst+jj}")
    def ka_setup(T): k_addr(T, KA, KA2, ["s_lshl_b32 s33, s30, 14"])
    def xb_setup(T): k_addr(T, XB, None, ["s_lshl_b32 s33, s29, 14", f"s_add_u32 s33, s33, {EX}", "s_lshl_b32 s34, s30, 8", "s_add_u32 s33, s33, s34"])
    def vn_setup(T):
        t = T.append
        t("v_bfe_u32 v234, v240, 4, 1"); t("v_bfe_u32 v235, v240, 2, 2"); t("v_bfe_u32 v236, v240, 1, 1")
        t("v_lshl_add_u32 v236, v234, 1, v236"); t("v_and_b32 v237, 1, v240"); t("v_lshlrev_b32 v237, 3, v237")
        t("v_lshl_add_u32 v238, v241, 3, v235"); t("v_lshl_add_u32 v237, v238, 9, v237")
        t("s_lshl_b32 s33, s30, 8"); t("v_add_u32 v237, s33, v237")
        for a in range(4):
            for u in range(2):
                t(f"v_lshl_add_u32 v238, v241, 1, {u}"); t("v_lshl_or_b32 v238, v235, 2, v238")
                t(f"v_add_u32 v239, {4*a}, v236"); t("v_xor_b32 v238, v238, v239")
                t(f"v_lshl_add_u32 v{VN+a*2+u}, v238, 4, v237")
                if u: t(f"v_add_u32 v{VN+a*2+u}, {4*512}, v{VN+a*2+u}")
                t(f"v_add_u32 v{VN2+a*2+u}, 0x10000, v{VN+a*2+u}")
    def dma_voff(T, stride1024):
        t = T.append
        if not stride1024:
            for k in range(4): t(f"v_mov_b32 v{DV+k}, v{DS+k}")
            return
        t("s_lshl_b32 s33, s28, 1")
        for k in range(4):
            t(f"v_add_u32 v234, {2*k}, v241"); t("v_and_b32 v234, 3, v234"); t("v_lshlrev_b32 v234, 2, v234")
            t(f"s_add_u32 s34, s33, {k>>1}"); t("s_and_b32 s34, s34, 3")
            t("v_or_b32 v234, s34, v234"); t("v_xor_b32 v234, v242, v234"); t("v_lshlrev_b32 v234, 4, v234")
            t("v_lshl_add_u32 v234, v241, 10, v234"); t("s_lshl_b32 s34, s28, 13"); t(f"s_add_u32 s34, s34, {k*1024}")
            t(f"v_add_u32 v{DV+k}, s34, v234")
    def tile_dma(n, srdn, soff):
        if o.get('nodma'): return []
        r = [(f"s_add_u32 m0, s31, {(n%8)*SLOT:#x}", False), (f"s_mov_b32 s32, {soff:#x}", False)]
        for k in range(4):
            r.append((f"buffer_load_dwordx4 v{DV+k}, s[{srdn}:{srdn+3}], s32 offen offset:{k*1024} lds", True))
        return r
    def emit_tile(out, W, n, srdn, soff):
        for txt, vm in tile_dma(n, srdn, soff):
            out.append(txt)
            if vm: W.issue('vm', ('T', n))
    def out_rows(T, W, srdn, tag, OB):
        t = T.append
        t("v_lshlrev_b32 v232, 4, v240"); t(f"s_add_u32 s33, s31, {EX}"); t("v_add_u32 v232, s33, v232")
        for half in range(2):
            for k in range(4):
                t(f"ds_read_b128 {vr(OB+(half*4+k)*4,4)}, v232 offset:{half*SLOT + k*1024}")
        t("s_lshl_b32 s32, s35, 15")
        for half in range(2):
            if half: t("s_add_u32 s32, s32, 16384")
            for k in range(4):
                t(f"s_waitcnt lgkmcnt({7 - (half*4+k)})")
                t(f"buffer_store_dwordx4 {vr(OB+(half*4+k)*4,4)}, v{DS+k}, s[{srdn}:{srdn+3}], s32 offen offset:{k*1024}{ST}")
                W.issue('vm', (tag, half, k))
        W.drain('lgkm')
    def ln(out, W, tiles):
        nw = W.need('vm', [('X', 7)])
        out.append(f"s_waitcnt vmcnt({nw})")
        out.append("s_barrier")
        stamp(out, 0)
        for s in range(8):
            out.append(f"ds_read_b128 {vr(64+4*s,4)}, v{XB+s}")
        body = []; b = body.append
        b("s_mov_b32 s34, 0x3f803f80")
        for k in range(4): b(f"v_mov_b32 v{232+k}, 0")
        for r in range(32):
            if r % 4 == 0: b(f"s_waitcnt lgkmcnt({7 - r//4})")
            b(f"v_dot2_f32_bf16 v{232+(r&1)}, v{64+r}, s34, v{232+(r&1)}")
            b(f"v_dot2_f32_bf16 v{234+(r&1)}, v{64+r}, v{64+r}, v{234+(r&1)}")
        b("s_nop 2")
        b("v_add_f32 v232, v232, v233"); b("v_add_f32 v234, v234, v235")
        b("v_mov_b32 v233, v232"); b("v_mov_b32 v235, v234"); b("s_nop 1")
        b("v_permlane32_swap_b32 v232, v233"); b("v_permlane32_swap_b32 v234, v235"); b("s_nop 1")
        b("v_add_f32 v232, v232, v233"); b("v_add_f32 v233, v234, v235")
        b(f"ds_write_b64 v{XB}, v[232:233]")
        b(f"v_xor_b32 v238, 256, v{XB}")
        b("s_waitcnt lgkmcnt(0)")
        b("s_barrier")
        b("ds_read_b64 v[234:235], v238")
        b("s_waitcnt lgkmcnt(0)")
        b("v_add_f32 v232, v232, v234"); b("v_add_f32 v234, v233, v235")
        b("v_mul_f32 v232, 0x3b800000, v232"); b("v_mul_f32 v234, 0x3b800000, v234")
        b("v_fma_f32 v234, -v232, v232, v234"); b("v_max_f32 v234, 0, v234"); b("v_add_f32 v234, 0x3727c5ac, v234")
        b("v_rsq_f32 v234, v234"); b("s_nop 0")
        b("v_mul_f32 v236, v232, v234"); b("v_sub_f32 v236, 0, v236")
        b("s_barrier")
        for r in range(32):
            t = 244 + 2*(r % 4)
            b(f"v_lshlrev_b32 v{t}, 16, v{64+r}")
            b(f"v_and_b32 v{t+1}, 0xffff0000, v{64+r}")
            b(f"v_pk_fma_f32 v[{t}:{t+1}], v[{t}:{t+1}], v[234:235], v[236:237] op_sel_hi:[1,0,0]")
            b(f"v_cvt_pk_bf16_f32 v{64+r}, v{t}, v{t+1}")
            if r % 4 == 3: b(f"ds_write_b128 v{XB+r//4}, {vr(64+r-3,4)}")
        b("s_waitcnt lgkmcnt(0)")
        b("s_barrier")
        b("s_lshl_b32 s33, s30, 8")
        for jj in range(8): b(f"v_subrev_u32 v{244+jj}, s33, v{XB+jj}")
        for s in range(16):
            b(f"ds_read_b128 {vr(B+4*s,4)}, v{244+(s&7)} offset:{(s>>3)*256}")
        flat = []
        for (n, sn, so) in tiles:
            tl_ = [(txt, vm, n) for txt, vm in tile_dma(n, sn, so)]
            flat.append(tl_[:3])
            for x in tl_[3:]: flat.append([x])
        gap = max(1, len(body) // (len(flat) + 1)) if flat else 1
        fi = 0
        for i, ins in enumerate(body):
            out.append(ins)
            if fi < len(flat) and i % gap == gap - 1:
                for txt, vm, n in flat[fi]:
                    out.append(txt)
                    if vm: W.issue('vm', ('T', n))
                fi += 1
        while fi < len(flat):
            for txt, vm, n in flat[fi]:
                out.append(txt)
                if vm: W.issue('vm', ('T', n))
            fi += 1
        out.append("s_waitcnt lgkmcnt(0)")
        W.drain('lgkm')
    def phase(W, p, kind, later, fill=None, f0=3):
        tl = TL(W)
        acc = ACC[p]
        cnt = [0]
        for a in range(4):
            sig = 4*p + a
            tb = 16*a - D - 1
            tl.add(tb, 'bar', needvm=[('T', 2*sig), ('T', 2*sig+1)], prio=1)
            k = 0
            for (n, sn, so) in later.get(sig, []):
                for txt, vm in tile_dma(n, sn, so):
                    sp = o.get('dsp', 2)
                    if vm:
                        tl.add(tb + 1 + sp*k, 'vm', txt, tag=('T', n), prio=7); k += 1
                    else:
                        tl.add(tb + 1 + sp*k, 'txt', txt, prio=6)
            for m in range(16):
                tm = 16*a + m
                ri = cnt[0] % R; cnt[0] += 1
                ring = aR + 4*ri
                if kind == 'X':
                    j = m; slot = 2*a
                    base = (KA if slot < 4 else KA2) + (j & 7)
                    off = (slot % 4)*SLOT + (j >> 3)*256
                    tag = (p, a, m)
                    tl.add(tm - D, 'lds', f"ds_read_b128 {ar(ring,4)}, v{base} offset:{off}", tag=tag, prio=2)
                    c = vr(acc+16*a,16) if j else '0'
                    tl.add(tm, 'mfma', f"v_mfma_f32_32x32x16_bf16 {vr(acc+16*a,16)}, {ar(ring,4)}, {vr(B+4*j,4)}, {c}", need=[tag], prio=0)
                else:
                    tt, s, aa = m >> 3, (m >> 2) & 1, m & 3
                    tau = 2*a + tt; slot = tau
                    tags = []
                    for u in range(2):
                        base = (VN if slot < 4 else VN2) + aa*2 + u
                        off = (slot % 4)*SLOT + 16*s*512
                        tag = (p, a, m, u); tags.append(tag)
                        tl.add(tm - D, 'lds', f"ds_read_b64_tr_b16 {ar(ring+2*u,2)}, v{base} offset:{off}", tag=tag, prio=2)
                    c = vr(acc+16*aa,16) if (tau or s) else '0'
                    tl.add(tm, 'mfma', f"v_mfma_f32_32x32x16_bf16 {vr(acc+16*aa,16)}, {ar(ring,4)}, {vr(B+4*(2*tau+s),4)}, {c}", need=tags, prio=0)
        if fill:
            n = len(fill)
            for i, ins in enumerate(fill):
                tl.add(f0 + (i*(64-f0))/n, 'txt', ins, prio=4)
        return tl
    def pack_swap(out, src, dst, swap=True, scale=None):
        if scale:
            for k in range(8):
                out.append(f"v_pk_mul_f32 v[{src+2*k}:{src+2*k+1}], v[{src+2*k}:{src+2*k+1}], {scale} op_sel_hi:[1,0]")
        for k in range(8):
            out.append(f"v_cvt_pk_bf16_f32 v{dst+k}, v{src+2*k}, v{src+2*k+1}")
        if swap:
            out.append("s_nop 1")
            for b in (0, 4):
                out.append(f"v_permlane32_swap_b32 v{dst+b}, v{dst+b+2}")
                out.append(f"v_permlane32_swap_b32 v{dst+b+1}, v{dst+b+3}")
    def exchange(out, W, acc, kind):
        out.append("s_nop 15")
        out.append("v_lshlrev_b32 v232, 4, v240")
        out.append(f"s_lshl_b32 s33, s29, 14"); out.append(f"s_add_u32 s33, s33, {EX}")
        out.append("v_add_u32 v233, s33, v232")
        out.append(f"s_lshl_b32 s34, s30, {13 if kind=='Y' else 11}")
        out.append("v_add_u32 v232, s34, v233")
        for a in range(4):
            d = 244 if a % 2 == 0 else 0
            pack_swap(out, acc+16*a, d)
            for s in range(2):
                f = (2*a + s) if kind == 'Y' else (4*a + s)
                out.append(f"ds_write_b128 v232, {vr(d+4*s,4)} offset:{f*1024}")
        out.append("s_waitcnt lgkmcnt(0)")
        out.append("s_barrier")
        for f in range(16):
            out.append(f"ds_read_b128 {vr(B+4*f,4)}, v233 offset:{f*1024}")
        out.append("s_waitcnt lgkmcnt(0)")
        W.drain('lgkm')
    def narrow(out, W, rowbase_bytes, slice_sreg):
        for x in ["v_lshrrev_b32 v232, 3, v240", "v_lshlrev_b32 v232, 9, v232", "v_and_b32 v233, 7, v240",
                  "v_lshl_add_u32 v232, v233, 4, v232", f"s_lshl_b32 s33, {slice_sreg}, 7", "s_lshl_b32 s34, s28, 15",
                  "s_add_u32 s33, s33, s34", f"s_add_u32 s33, s33, {rowbase_bytes}", "v_add_u32 v232, s33, v232",
                  "s_lshl_b32 s34, s28, 13", f"s_add_u32 s34, s34, {EX}"]: out.append(x)
        for i in range(8):
            out.append(f"s_add_u32 m0, s34, {i*1024}")
            out.append(f"s_mov_b32 s32, {i*4096}")
            out.append(f"buffer_load_dwordx4 v232, s[16:19], s32 offen lds")
            W.issue('vm', ('N', i))
    def narrow_read(out, W):
        n = W.need('vm', [('N', 7)])
        out.append(f"s_waitcnt vmcnt({n})")
        out.append("s_barrier")
        for x in ["v_bfe_u32 v232, v240, 2, 2", "v_lshl_add_u32 v232, v241, 3, v232", "v_lshlrev_b32 v232, 7, v232",
                  "v_bfe_u32 v233, v240, 4, 1", "v_lshl_add_u32 v232, v233, 5, v232", "v_and_b32 v233, 3, v240",
                  "v_lshl_add_u32 v232, v233, 3, v232", "s_lshl_b32 s33, s29, 6", f"s_add_u32 s33, s33, {EX}",
                  "v_add_u32 v232, s33, v232"]: out.append(x)
        for s in range(16):
            for u in range(2):
                out.append(f"ds_read_b64_tr_b16 {vr(B+4*s+2*u,2)}, v232 offset:{s*2048+u*512}")
            if s % 4 == 3: out.append("s_waitcnt lgkmcnt(0)")
        W.drain('lgkm')
    def finish(task_lines, label):
        if CT and label in ("K1_Q", "K1_UG"): return
        fixed = hazard.autofix(task_lines)
        e(f"{label}:")
        L.extend(fixed)
        e("s_branch K1_FIN")
    def cap(fn):
        buf = []; fn(buf.append); return buf
    std_later = lambda sn: {2: [(8, sn, 0), (9, sn, SLOT)], 3: [(10, sn, 2*SLOT), (11, sn, 3*SLOT)], 4: [(12, sn, 4*SLOT), (13, sn, 5*SLOT)], 5: [(14, sn, 6*SLOT), (15, sn, 7*SLOT)]}
    npre = o['npre']


    if CT:
        EXB = EX + 16384
        Bq = 64
        ACCQ, ACCK, ACCG, ACCU = 64, 96, 128, 160
        VN4 = 208; VN42 = 212; XO = 216; XB8 = 244
        W = Waiter(); T = []; t = T.append
        for s_ in range(4): W.issue('vm', ('X', s_))
        dma_voff(T, True)
        T += cap(lambda e: (srd(e, 8, 's38', 's39', 0, 131072), srd(e, 12, 's40', 's41', 0, 131072), srd(e, 20, 's46', 's47', 0, 262144),
                            srd(e, 24, 's54', 's55', QF_OFF, 500*8192)))
        def tinfo(n):
            if n < 8: return (8, n*SLOT, DS)
            if n < 16: return (12, (n-8)*SLOT, DS)
            if n < 24: return (20, (n-16)*32768 + 512, DV)
            return (20, (n-24)*32768, DV)
        def tdma(n):
            sn, so, dv = tinfo(n)
            r = [(f"s_add_u32 m0, s31, {(n%8)*SLOT:#x}", False), (f"s_mov_b32 s32, {so:#x}", False)]
            for k in range(4): r.append((f"buffer_load_dwordx4 v{dv+k}, s[{sn}:{sn+3}], s32 offen offset:{k*1024} lds", True))
            return r
        def temit(n):
            for txt, vm in tdma(n):
                t(txt)
                if vm: W.issue('vm', ('T', n))
        temit(0); temit(1)
        t("v_and_b32 v234, 3, v242"); t("v_lshlrev_b32 v234, 2, v234"); t("v_bfe_u32 v235, v242, 2, 2"); t("v_or_b32 v234, v234, v235")
        t("v_lshlrev_b32 v236, 9, v242"); t(f"v_add_u32 v237, {EX}, v236")
        t("s_lshl_b32 s33, s30, 8"); t("v_add_u32 v238, s33, v237")
        t("s_lshl_b32 s33, s29, 3")
        for i in range(4):
            t(f"s_add_u32 s34, s33, {2*i}"); t("v_add_u32 v235, s34, v241"); t("v_xor_b32 v235, v235, v234"); t(f"v_lshl_add_u32 v{XO+i}, v235, 4, v238")
        t("s_lshl_b32 s33, s28, 14"); t("v_add_u32 v238, s33, v236")
        for jj in range(8):
            t(f"v_add_u32 v235, {2*jj}, v241"); t("v_xor_b32 v235, v235, v234")
            t(f"v_lshl_add_u32 v{KA+jj}, v235, 4, v238"); t(f"v_add_u32 v{KA2+jj}, 0x10000, v{KA+jj}")
        t("v_bfe_u32 v234, v240, 4, 1"); t("v_bfe_u32 v235, v240, 2, 2"); t("v_bfe_u32 v236, v240, 1, 1")
        t("v_lshl_add_u32 v236, v234, 1, v236"); t("v_and_b32 v237, 1, v240"); t("v_lshlrev_b32 v237, 3, v237")
        t("v_lshl_add_u32 v238, v241, 3, v235"); t("v_lshl_add_u32 v237, v238, 9, v237")
        t("s_lshl_b32 s33, s30, 8"); t("v_add_u32 v237, s33, v237")
        t("s_lshl_b32 s33, s29, 3")
        for aa in range(2):
            for u in range(2):
                t(f"v_lshl_add_u32 v238, v241, 1, {u}"); t("v_lshl_or_b32 v238, v235, 2, v238")
                t(f"s_add_u32 s34, s33, {4*aa}"); t("v_add_u32 v239, s34, v236"); t("v_xor_b32 v238, v238, v239")
                t(f"v_lshl_add_u32 v{VN4+aa*2+u}, v238, 4, v237")
                if u: t(f"v_add_u32 v{VN4+aa*2+u}, {4*512}, v{VN4+aa*2+u}")
                t(f"v_add_u32 v{VN42+aa*2+u}, 0x10000, v{VN4+aa*2+u}")
        nw = W.need('vm', [('X', 3)]); t(f"s_waitcnt vmcnt({nw})"); t("s_barrier")
        stamp(T, 0)
        for i in range(4): t(f"ds_read_b128 {vr(64+4*i,4)}, v{XO+i}")
        T += cap(lambda e: srd(e, 16, 's54', 's55', XA_OFF, 8000*512))
        body = []; b = body.append
        b("s_mov_b32 s34, 0x3f803f80")
        for k in range(4): b(f"v_mov_b32 v{232+k}, 0")
        for r in range(16):
            if r % 4 == 0: b(f"s_waitcnt lgkmcnt({3 - r//4})")
            b(f"v_dot2_f32_bf16 v{232+(r&1)}, v{64+r}, s34, v{232+(r&1)}")
            b(f"v_dot2_f32_bf16 v{234+(r&1)}, v{64+r}, v{64+r}, v{234+(r&1)}")
        b("s_nop 2")
        b("v_add_f32 v232, v232, v233"); b("v_add_f32 v234, v234, v235")
        b("v_mov_b32 v233, v232"); b("v_mov_b32 v235, v234"); b("s_nop 1")
        b("v_permlane32_swap_b32 v232, v233"); b("v_permlane32_swap_b32 v234, v235"); b("s_nop 1")
        b("v_add_f32 v232, v232, v233"); b("v_add_f32 v233, v234, v235")
        b("v_lshlrev_b32 v238, 3, v242"); b(f"v_add_u32 v238, {EXB}, v238")
        b("s_lshl_b32 s33, s28, 8"); b("v_add_u32 v239, s33, v238")
        b("ds_write_b64 v239, v[232:233]")
        b("s_waitcnt lgkmcnt(0)"); b("s_barrier")
        for k in range(4): b(f"ds_read_b64 v[{80+2*k}:{81+2*k}], v238 offset:{256*k}")
        b("s_waitcnt lgkmcnt(0)")
        b("v_add_f32 v80, v80, v82"); b("v_add_f32 v81, v81, v83"); b("v_add_f32 v84, v84, v86"); b("v_add_f32 v85, v85, v87")
        b("v_add_f32 v232, v80, v84"); b("v_add_f32 v234, v81, v85")
        b("v_mul_f32 v232, 0x3b800000, v232"); b("v_mul_f32 v234, 0x3b800000, v234")
        b("v_fma_f32 v234, -v232, v232, v234"); b("v_max_f32 v234, 0, v234"); b("v_add_f32 v234, 0x3727c5ac, v234")
        b("v_rsq_f32 v234, v234"); b("s_nop 0")
        b("v_mul_f32 v236, v232, v234"); b("v_sub_f32 v236, 0, v236")
        for r in range(16):
            tt_ = 244 + 2*(r % 4)
            b(f"v_lshlrev_b32 v{tt_}, 16, v{64+r}"); b(f"v_and_b32 v{tt_+1}, 0xffff0000, v{64+r}")
            b(f"v_pk_fma_f32 v[{tt_}:{tt_+1}], v[{tt_}:{tt_+1}], v[234:235], v[236:237] op_sel_hi:[1,0,0]")
            b(f"v_cvt_pk_bf16_f32 v{64+r}, v{tt_}, v{tt_+1}")
            if r % 4 == 3: b(f"ds_write_b128 v{XO+r//4}, {vr(64+r-3,4)}")
        b("s_lshl_b32 s33, s28, 14"); b(f"s_sub_u32 s33, {EX}, s33")
        for jj in range(8): b(f"v_add_u32 v{XB8+jj}, s33, v{KA+jj}")
        b("s_waitcnt lgkmcnt(0)"); b("s_barrier")
        for s_ in range(16): b(f"ds_read_b128 {vr(B+4*s_,4)}, v{XB8+(s_&7)} offset:{(s_>>3)*256}")
        b("v_lshlrev_b32 v232, 4, v240"); b(f"s_add_u32 s33, s31, {EX}"); b("v_add_u32 v232, s33, v232")
        for k in range(4): b(f"ds_read_b128 {vr(96+4*k,4)}, v232 offset:{k*1024}")
        flat = []
        for n in range(2, 6):
            tl_ = [(txt, vm, n) for txt, vm in tdma(n)]
            flat.append(tl_[:3])
            for x in tl_[3:]: flat.append([x])
        gap = max(1, (len(body) - 24) // (len(flat) + 1)); fi = 0
        for i, ins in enumerate(body):
            t(ins)
            if fi < len(flat) and i % gap == gap - 1:
                for txt, vm, n in flat[fi]:
                    t(txt)
                    if vm: W.issue('vm', ('T', n))
                fi += 1
        while fi < len(flat):
            for txt, vm, n in flat[fi]:
                t(txt)
                if vm: W.issue('vm', ('T', n))
            fi += 1
        t("s_waitcnt lgkmcnt(0)")
        t("s_lshl_b32 s56, s35, 14")
        for k in range(4):
            t(f"buffer_store_dwordx4 {vr(96+4*k,4)}, v{DS+k}, s[16:19], s56 offen offset:{k*1024}{ST}"); W.issue('vm', ('XS', k))
        stamp(T, 1)
        def flag_store(off_lines, lbl):
            t("s_cmp_eq_u32 s28, 0"); t(f"s_cbranch_scc0 {lbl}")
            for x in off_lines: t(x)
            t("v_mov_b32 v232, s3"); t("v_cmp_eq_u32 vcc, 0, v240"); t("s_and_saveexec_b64 s[56:57], vcc")
            t("buffer_store_dword v232, off, s[8:11], s34 sc1")
            t("s_mov_b64 exec, s[56:57]")
            t(f"{lbl}:")
        fillers = {}
        def step(sig, extra_need=None, after_bar=None):
            p, a = sig >> 2, sig & 3
            need = [('T', 2*sig), ('T', 2*sig+1)] + (extra_need or [])
            nv = W.need('vm', need)
            if nv is not None: t(f"s_waitcnt vmcnt({nv})")
            t("s_barrier")
            if after_bar: after_bar()
            dm = []
            for n in (2*(sig+3), 2*(sig+3)+1):
                if n < 32: dm += [(txt, vm, n) for txt, vm in tdma(n)]
            fl = list(fillers.get(sig, []))
            def some(k_dma, k_fill):
                c = 0
                while dm and c < k_dma:
                    txt, vm, n = dm.pop(0); t(txt)
                    if vm: W.issue('vm', ('T', n)); c += 1
                for _ in range(k_fill):
                    if fl: t(fl.pop(0))
            nf = -(-len(fl) // 8) if fl else 0
            if p != 1:
                acc = {0: ACCQ, 2: ACCG, 3: ACCU}[p]
                idx = 0; seq = []
                for tt in range(2):
                    slot = (2*sig + tt) % 8
                    for s_ in range(2):
                        for aa in range(2):
                            for u in range(2):
                                base = (VN4 if slot < 4 else VN42) + aa*2 + u
                                t(f"ds_read_b64_tr_b16 {ar(4*idx+2*u,2)}, v{base} offset:{(slot%4)*SLOT + 16*s_*512}")
                            seq.append((idx, tt, s_, aa)); idx += 1
                for (idx, tt, s_, aa) in seq:
                    if idx % 2 == 0: t(f"s_waitcnt lgkmcnt({14 - 2*idx - 2 if idx < 6 else 0})")
                    tau = 2*a + tt
                    c = vr(acc+16*aa,16) if (tau or s_) else '0'
                    t(f"v_mfma_f32_32x32x16_bf16 {vr(acc+16*aa,16)}, {ar(4*idx,4)}, {vr(B+4*(2*tau+s_),4)}, {c}")
                    some(1, nf)
            else:
                lbl = f"K1_CT_X{a}"
                t(f"s_cmp_eq_u32 s30, {a & 1}"); t(f"s_cbranch_scc0 {lbl}")
                k = a >> 1; base = KA if k == 0 else KA2
                for half in range(2):
                    for j in range(8): t(f"ds_read_b128 {ar(4*j,4)}, v{base+j} offset:{half*256}")
                    for j in range(8):
                        if j % 2 == 0: t(f"s_waitcnt lgkmcnt({6 - j})")
                        jj = 8*half + j
                        c = vr(ACCK+16*k,16) if jj else '0'
                        t(f"v_mfma_f32_32x32x16_bf16 {vr(ACCK+16*k,16)}, {ar(4*j,4)}, {ar(Bq+4*jj,4)}, {c}")
                t(f"{lbl}:")
            some(100, 1000)
        for sig in range(4): step(sig)
        stamp(T, 2)
        t("s_nop 15")
        t("v_lshlrev_b32 v232, 4, v240"); t(f"v_add_u32 v233, {EXB}, v232"); t("s_lshl_b32 s34, s28, 12"); t("v_add_u32 v232, s34, v233")
        for aa in range(2):
            d = 244 if aa == 0 else 96
            pack_swap(T, ACCQ+16*aa, d)
            for s_ in range(2): t(f"ds_write_b128 v232, {vr(d+4*s_,4)} offset:{(2*aa+s_)*1024}")
        t("s_waitcnt lgkmcnt(0)"); t("s_barrier")
        for f in range(16): t(f"ds_read_b128 {ar(Bq+4*f,4)}, v233 offset:{f*1024}")
        t("s_waitcnt lgkmcnt(0)")
        t("buffer_load_dword v243, off, s[4:7], 0 sc1"); W.issue('vm', 'TAG')
        for sig in range(4, 8): step(sig)
        stamp(T, 3)
        qf = []
        qf.append("s_nop 7"); qf.append("v_mov_b32 v236, 0x3db8aa3b")
        qf += ["s_lshl_b32 s33, s35, 14", "s_lshl_b32 s34, s28, 10", "s_add_u32 s33, s33, s34",
               "v_lshrrev_b32 v252, 4, v242", "v_lshlrev_b32 v252, 13, v252", "v_and_b32 v253, 15, v242", "v_lshl_add_u32 v253, v241, 4, v253",
               "v_lshl_add_u32 v252, v253, 4, v252", "v_add_u32 v252, s33, v252"]
        qst = []
        for k in range(2):
            d = 244 if k == 0 else 64
            pack_swap(qf, ACCK+16*k, d, scale="v[236:237]")
            for s_ in range(2):
                qf.append(f"buffer_store_dwordx4 {vr(d+4*s_,4)}, v252, s[24:27], 0 offen offset:{k*4096 + s_*512 - (4096 if k else 0)}{ST}" if k == 0 else "@K1")
        out2 = []
        cnt = 0
        for x in qf:
            if x == "@K1":
                if cnt == 0: out2.append("v_add_u32 v253, 4096, v252")
                out2.append(f"buffer_store_dwordx4 {vr(64+4*cnt,4)}, v253, s[24:27], 0 offen offset:{cnt*512}{ST}"); cnt += 1
            else: out2.append(x)
        qf = out2
        for x in qf:
            t(x)
            if x.startswith('buffer_store'): W.issue('vm', ('QS', len(W.q['vm'])))
        W.issue('vm', 'QEND'); W.q['vm'].pop()
        qtags = [x for x in W.q['vm'] if isinstance(x, tuple) and x[0] in ('QS', 'XS')]
        step(8)
        step(9)
        def get_tag():
            t("K1_CT_TAGP:")
            t("buffer_load_dword v232, off, s[4:7], 0 sc1"); t("s_waitcnt vmcnt(0)")
            t("v_readfirstlane_b32 s3, v232"); t("s_nop 3"); t("s_cmp_lg_u32 s3, 0"); t("s_cbranch_scc1 K1_CT_TAGD"); t("s_sleep 1"); t("s_branch K1_CT_TAGP")
            t("K1_CT_TAGD:")
        def qflag():
            T.extend(cap(lambda e: srd(e, 8, 's54', 's55', FL_OFF, FL_SIZE)))
            flag_store([f"s_lshl_b32 s34, s35, 7", f"s_add_u32 s34, s34, {FLQ}"], "K1_CT_NOQF")
        step(10, extra_need=qtags + ['TAG'], after_bar=None)
        t("v_readfirstlane_b32 s3, v243")
        t("s_nop 3")
        pend_qflag = True
        t("s_cmp_eq_u32 s28, 0"); t("s_cbranch_scc0 K1_CT_NOQF2")
        t("s_cmp_lg_u32 s3, 0"); t("s_cbranch_scc0 K1_CT_NOQF2")
        T.extend(cap(lambda e: srd(e, 8, 's54', 's55', FL_OFF, FL_SIZE)))
        t(f"s_lshl_b32 s34, s35, 7"); t(f"s_add_u32 s34, s34, {FLQ}")
        t("v_mov_b32 v232, s3"); t("v_cmp_eq_u32 vcc, 0, v240"); t("s_and_saveexec_b64 s[56:57], vcc")
        t("buffer_store_dword v232, off, s[8:11], s34 sc1")
        t("s_mov_b64 exec, s[56:57]")
        t("K1_CT_NOQF2:")
        step(11)
        stamp(T, 4)
        k0 = -2.0*1.4426950408889634*0.7978845608028654
        t("s_nop 7")
        t(f"v_mov_b32 v232, {fb(k0)}"); t(f"v_mov_b32 v234, {fb(k0*0.044715)}"); t("v_mov_b32 v236, 1.0")
        for k in range(4): t(f"v_mov_b32 v{252+k}, 0")
        def gelu(r):
            tt_ = 244 + 2*((r//2) % 4)
            X = f"v[{r}:{r+1}]"; Tt = f"v[{tt_}:{tt_+1}]"
            return [f"v_pk_mul_f32 {Tt}, {X}, {X}", f"v_pk_fma_f32 {Tt}, {Tt}, v[234:235], v[232:233] op_sel_hi:[1,0,0]", f"v_pk_mul_f32 {Tt}, {Tt}, {X}",
                    f"v_exp_f32 v{tt_}, v{tt_}", f"v_exp_f32 v{tt_+1}, v{tt_+1}", f"v_pk_add_f32 {Tt}, {Tt}, v[236:237] op_sel_hi:[1,0]",
                    f"v_rcp_f32 v{tt_}, v{tt_}", f"v_rcp_f32 v{tt_+1}, v{tt_+1}", f"v_pk_mul_f32 {X}, {X}, {Tt}",
                    f"v_pk_add_f32 v[252:253], v[252:253], {X}", f"v_pk_fma_f32 v[254:255], {X}, {X}, v[254:255]"]
        for q in range(4):
            cols = [gelu(ACCG + 8*q + 2*k) for k in range(4)]
            fillers[12+q] = [cols[k][i] for i in range(11) for k in range(4)]
        for sig in range(12, 16): step(sig)
        stamp(T, 5)
        t("v_add_f32 v8, v252, v253"); t("v_add_f32 v10, v254, v255"); t("v_mov_b32 v9, v8"); t("v_mov_b32 v11, v10"); t("s_nop 1")
        t("v_permlane32_swap_b32 v8, v9"); t("v_permlane32_swap_b32 v10, v11"); t("s_nop 1")
        t("v_add_f32 v8, v8, v9"); t("v_add_f32 v9, v10, v11")
        t("v_lshlrev_b32 v12, 3, v242"); t("s_lshl_b32 s33, s28, 8"); t("v_add_u32 v13, s33, v12")
        t("s_barrier")
        t("ds_write_b64 v13, v[8:9]")
        for aa in range(2):
            d = 244 if aa == 0 else 16
            pack_swap(T, ACCU+16*aa, d)
            for s_ in range(2): t(f"ds_write_b128 v{XO+2*aa+s_}, {vr(d+4*s_,4)} offset:16384")
        t("s_waitcnt lgkmcnt(0)"); t("s_barrier")
        for k in range(4): t(f"ds_read_b64 v[{24+2*k}:{25+2*k}], v12 offset:{256*k}")
        t("v_lshlrev_b32 v232, 4, v240"); t(f"s_add_u32 s33, s31, {EX}"); t("v_add_u32 v232, s33, v232")
        for k in range(4): t(f"ds_read_b128 {vr(96+4*k,4)}, v232 offset:{16384 + k*1024}")
        T.extend(cap(lambda e: (srd(e, 12, 's54', 's55', U_OFF, 8000*512), srd(e, 20, 's54', 's55', G_OFF, 8000*512))))
        t("s_lshl_b32 s56, s35, 14")
        t("s_waitcnt lgkmcnt(4)")
        t("v_add_f32 v24, v24, v26"); t("v_add_f32 v25, v25, v27"); t("v_add_f32 v28, v28, v30"); t("v_add_f32 v29, v29, v31")
        t("v_add_f32 v8, v24, v28"); t("v_add_f32 v9, v25, v29")
        t("v_mul_f32 v8, 0x3b800000, v8"); t("v_mul_f32 v9, 0x3b800000, v9")
        t("v_fma_f32 v9, -v8, v8, v9"); t("v_max_f32 v9, 0, v9"); t("v_add_f32 v9, 0x3727c5ac, v9")
        t("v_rsq_f32 v10, v9"); t("s_nop 0"); t("v_mul_f32 v12, v8, v10"); t("v_sub_f32 v12, 0, v12")
        t("s_waitcnt lgkmcnt(0)")
        for k in range(4): t(f"buffer_store_dwordx4 {vr(96+4*k,4)}, v{DS+k}, s[12:15], s56 offen offset:{k*1024}{ST}")
        for aa in range(2):
            for k in range(8):
                r = ACCG + 16*aa + 2*k
                t(f"v_pk_fma_f32 v[{r}:{r+1}], v[{r}:{r+1}], v[10:11], v[12:13] op_sel_hi:[1,0,0]")
            d = 32 + 8*aa
            pack_swap(T, ACCG+16*aa, d)
            for s_ in range(2): t(f"ds_write_b128 v{XO+2*aa+s_}, {vr(d+4*s_,4)}")
        t("s_waitcnt lgkmcnt(0)"); t("s_barrier")
        for k in range(4): t(f"ds_read_b128 {vr(112+4*k,4)}, v232 offset:{k*1024}")
        for k in range(4):
            t(f"s_waitcnt lgkmcnt({3-k})")
            t(f"buffer_store_dwordx4 {vr(112+4*k,4)}, v{DS+k}, s[20:23], s56 offen offset:{k*1024}{ST}")
        stamp(T, 6)
        finish(T, "K1_CT")
    W = Waiter(); T = []
    for s in range(8): W.issue('vm', ('X', s))
    dma_voff(T, False)
    T += cap(lambda e: (srd(e, 8, 's38', 's39', 0, 131072), srd(e, 12, 's40', 's41', 0, 131072),
                        srd(e, 20, 's54', 's55', XA_OFF, 8000*512), srd(e, 24, 's54', 's55', QF_OFF, 500*8192)))
    emit = [(n, 8, n*SLOT) for n in range(8)]
    for (n, sn, so) in emit[:npre]: emit_tile(T, W, n, sn, so)
    xb_setup(T); vn_setup(T)
    ln(T, W, emit[npre:o['nln']])
    stamp(T, 1)
    ka_setup(T)
    stamp(T, 2)
    T.append("v_lshlrev_b32 v232, 4, v240"); T.append(f"s_add_u32 s33, s31, {EX}"); T.append("v_add_u32 v232, s33, v232")
    for half in range(2):
        for k in range(4):
            T.append(f"ds_read_b128 {vr(ACC[1]+(half*4+k)*4,4)}, v232 offset:{half*SLOT + k*1024}")
    T.append("s_waitcnt lgkmcnt(0)")
    T.append("s_lshl_b32 s34, s35, 15"); T.append("s_add_u32 s56, s34, 16384")
    xfill = []
    for half in range(2):
        for k in range(4):
            xfill.append((f"buffer_store_dwordx4 {vr(ACC[1]+(half*4+k)*4,4)}, v{DS+k}, s[20:23], {'s56' if half else 's34'} offen offset:{k*1024}{ST}", ('XS', half, k)))
    later = std_later(12)
    rest = emit[o['nln']:]
    if rest:
        later[0] = rest[:2]; later[1] = rest[2:4]
        if later[1] == [] : del later[1]
    tl0 = phase(W, 0, 'Y', later)
    for i, (txt, tag) in enumerate(xfill): tl0.add(1 + 2*i, 'vm', txt, tag=tag, prio=7)
    T += tl0.linearize()
    stamp(T, 3)
    exchange(T, W, ACC[0], 'Y')
    stamp(T, 4)
    T += phase(W, 1, 'X', later).linearize()
    stamp(T, 5)
    T.append("s_nop 15")
    T.append("v_mov_b32 v236, 0x3db8aa3b")
    T.append("s_lshl_b32 s33, s35, 2"); T.append("s_lshl_b32 s34, s29, 1"); T.append("s_add_u32 s33, s33, s34"); T.append("s_lshl_b32 s33, s33, 13")
    T.append("s_lshl_b32 s34, s30, 10"); T.append("s_add_u32 s33, s33, s34")
    T.append("v_lshrrev_b32 v232, 4, v242"); T.append("v_lshlrev_b32 v232, 13, v232")
    T.append("v_and_b32 v233, 15, v242"); T.append("v_lshl_add_u32 v233, v241, 4, v233")
    T.append("v_lshl_add_u32 v232, v233, 4, v232"); T.append("v_add_u32 v232, s33, v232")
    for a in range(4):
        d = 244 if a % 2 == 0 else 0
        pack_swap(T, ACC[1]+16*a, d, scale="v[236:237]")
        T.append(f"s_mov_b32 s33, {a*2048}")
        for s in range(2):
            T.append(f"buffer_store_dwordx4 {vr(d+4*s,4)}, v232, s[24:27], s33 offen offset:{s*512}{ST}")
    finish(T, "K1_Q")

    W = Waiter(); T = []
    for s in range(8): W.issue('vm', ('X', s))
    dma_voff(T, True)
    T += cap(lambda e: (srd(e, 8, 's46', 's47', 0, 262144),
                        srd(e, 20, 's54', 's55', U_OFF, 8000*512), srd(e, 24, 's54', 's55', G_OFF, 8000*512)))
    emit = [(n, 8, n*32768 + 512) for n in range(8)]
    for (n, sn, so) in emit[:npre]: emit_tile(T, W, n, sn, so)
    xb_setup(T); vn_setup(T)
    ln(T, W, emit[npre:o['nln']])
    stamp(T, 2)
    gl = lambda n: (n, 8, (n-8)*32768)
    later = {2: [gl(8), gl(9)], 3: [gl(10), gl(11)], 4: [gl(12), gl(13)], 5: [gl(14), gl(15)]}
    rest = emit[o['nln']:]
    if rest:
        later[0] = rest[:2]; later[1] = rest[2:4]
    T += phase(W, 0, 'Y', later).linearize()
    stamp(T, 3)
    k0 = -2.0*1.4426950408889634*0.7978845608028654
    T.append(f"v_mov_b32 v232, {fb(k0)}"); T.append(f"v_mov_b32 v234, {fb(k0*0.044715)}"); T.append("v_mov_b32 v236, 1.0")
    for k in range(4): T.append(f"v_mov_b32 v{252+k}, 0")
    def gelu(r):
        t = 244 + 2*((r//2) % 4)
        X = f"v[{r}:{r+1}]"; Tt = f"v[{t}:{t+1}]"
        return [f"v_pk_mul_f32 {Tt}, {X}, {X}",
                f"v_pk_fma_f32 {Tt}, {Tt}, v[234:235], v[232:233] op_sel_hi:[1,0,0]",
                f"v_pk_mul_f32 {Tt}, {Tt}, {X}",
                f"v_exp_f32 v{t}, v{t}", f"v_exp_f32 v{t+1}, v{t+1}",
                f"v_pk_add_f32 {Tt}, {Tt}, v[236:237] op_sel_hi:[1,0]",
                f"v_rcp_f32 v{t}, v{t}", f"v_rcp_f32 v{t+1}, v{t+1}",
                f"v_pk_mul_f32 {X}, {X}, {Tt}",
                f"v_pk_add_f32 v[252:253], v[252:253], {X}",
                f"v_pk_fma_f32 v[254:255], {X}, {X}, v[254:255]"]
    fill = []
    g0 = ACC[0]
    for b in range(g0, g0+64, 8):
        cols = [gelu(b+2*k) for k in range(4)]
        for i in range(11):
            for k in range(4): fill.append(cols[k][i])
    T += phase(W, 1, 'Y', later, fill=fill, f0=4).linearize()
    stamp(T, 5)
    T.append("v_add_f32 v8, v252, v253"); T.append("v_add_f32 v10, v254, v255")
    T.append("v_mov_b32 v9, v8"); T.append("v_mov_b32 v11, v10"); T.append("s_nop 1")
    T.append("v_permlane32_swap_b32 v8, v9"); T.append("v_permlane32_swap_b32 v10, v11"); T.append("s_nop 1")
    T.append("v_add_f32 v8, v8, v9"); T.append("v_add_f32 v9, v10, v11")
    T.append("s_lshl_b32 s33, s29, 1"); T.append("s_add_u32 s33, s33, s30"); T.append("s_lshl_b32 s33, s33, 9")
    T.append("v_lshlrev_b32 v12, 3, v240"); T.append("v_add_u32 v13, s33, v12")
    T.append("s_xor_b32 s33, s33, 512"); T.append("v_add_u32 v14, s33, v12")
    T.append("ds_write_b64 v13, v[8:9]")
    for a in range(4):
        d = 244 if a % 2 == 0 else 16
        pack_swap(T, ACC[1]+16*a, d)
        for s in range(2):
            T.append(f"ds_write_b128 v{XB+2*a+s}, {vr(d+4*s,4)}")
    T.append("s_waitcnt lgkmcnt(0)"); T.append("s_barrier")
    T.append("ds_read_b64 v[10:11], v14")
    W.drain('lgkm')
    T.append("s_waitcnt lgkmcnt(0)")
    out_rows(T, W, 20, 'US', ACC[1])
    stamp(T, 6)
    T.append("v_add_f32 v8, v8, v10"); T.append("v_add_f32 v9, v9, v11")
    T.append("v_mul_f32 v8, 0x3b800000, v8"); T.append("v_mul_f32 v9, 0x3b800000, v9")
    T.append("v_fma_f32 v9, -v8, v8, v9"); T.append("v_max_f32 v9, 0, v9"); T.append("v_add_f32 v9, 0x3727c5ac, v9")
    T.append("v_rsq_f32 v10, v9"); T.append("s_nop 0")
    T.append("v_mul_f32 v12, v8, v10"); T.append("v_sub_f32 v12, 0, v12")
    for a in range(4):
        for k in range(8):
            r = g0 + 16*a + 2*k
            T.append(f"v_pk_fma_f32 v[{r}:{r+1}], v[{r}:{r+1}], v[10:11], v[12:13] op_sel_hi:[1,0,0]")
        pack_swap(T, g0+16*a, 16+8*a)
    T.append("s_barrier")
    for a in range(4):
        for s in range(2):
            T.append(f"ds_write_b128 v{XB+2*a+s}, {vr(16+8*a+4*s,4)}")
    T.append("s_waitcnt lgkmcnt(0)"); T.append("s_barrier")
    out_rows(T, W, 24, 'GS', ACC[0])
    stamp(T, 7)
    finish(T, "K1_UG")

    def wf_store(T, acc, which, slice_sreg):
        T.append(f"s_lshl_b32 s33, {slice_sreg}, 2"); T.append("s_lshl_b32 s34, s29, 1"); T.append("s_add_u32 s33, s33, s34"); T.append("s_lshl_b32 s33, s33, 14")
        T.append("s_lshl_b32 s34, s30, 10"); T.append("s_add_u32 s33, s33, s34")
        if which == 2: T.append("s_add_u32 s33, s33, 8192")
        T.append("v_lshrrev_b32 v232, 4, v242"); T.append("v_lshlrev_b32 v232, 14, v232")
        T.append("v_and_b32 v233, 15, v242"); T.append("v_lshl_add_u32 v233, v241, 4, v233")
        T.append("v_lshl_add_u32 v232, v233, 4, v232"); T.append("v_add_u32 v232, s33, v232")
        for a in range(4):
            d = 244; src = acc + 16*a
            if which == 1:
                for k, r in enumerate((0, 2, 8, 10, 4, 6, 12, 14)):
                    T.append(f"v_cvt_pk_bf16_f32 v{d+k}, v{src+r}, v{src+r+1}")
            else:
                pack_swap(T, src, d)
            T.append(f"s_mov_b32 s33, {a*2048}")
            for s in range(2):
                T.append(f"buffer_store_dwordx4 {vr(d+4*s,4)}, v232, s[24:27], s33 offen offset:{s*512}{ST}")
            T.append("s_nop 1")
    W = Waiter(); T = []
    dma_voff(T, False)
    T.append("s_sub_u32 s35, s2, 250")
    T += cap(lambda e: (srd(e, 16, 's52', 's53', 0, 262144), srd(e, 8, 's44', 's45', 0, 131072), srd(e, 12, 's42', 's43', 0, 131072),
                        srd(e, 24, 's54', 's55', WF_OFF, 262144)))
    narrow(T, W, 0, 's35')
    for n in range(3): emit_tile(T, W, n, 8, n*SLOT)
    ka_setup(T)
    narrow_read(T, W)
    for n in range(3, 8): emit_tile(T, W, n, 8, n*SLOT)
    later = std_later(12)
    T += phase(W, 0, 'X', later).linearize()
    T.append("s_barrier")
    exchange(T, W, ACC[0], 'X')
    T += phase(W, 1, 'X', later).linearize()
    T.append("s_nop 15")
    wf_store(T, ACC[1], 1, 's35')
    finish(T, "K1_W1")

    W = Waiter(); T = []
    if not FUSED: T += cap(lambda e: srd(e, 20, 's54', 's55', FL_OFF, 8192))
    if not FUSED:
        T.append("v_lshlrev_b32 v232, 5, v0")
        for k in range(4): T.append(f"v_mov_b32 v{236+k}, 0")
        T.append("buffer_store_dwordx4 v[236:239], v232, s[20:23], 0 offen sc1")
        T.append("buffer_store_dwordx4 v[236:239], v232, s[20:23], 0 offen offset:16 sc1")
        W.issue('vm', 'Z0'); W.issue('vm', 'Z1')
    dma_voff(T, False)
    T.append("s_sub_u32 s35, s2, 254"); T.append("s_lshl_b32 s35, s35, 1")
    T += cap(lambda e: (srd(e, 16, 's52', 's53', 0, 262144), srd(e, 8, 's50', 's51', 0, 131072),
                        srd(e, 24, 's54', 's55', WF_OFF, 262144)))
    narrow(T, W, 131072, 's35')
    for n in range(3): emit_tile(T, W, n, 8, n*SLOT)
    ka_setup(T)
    narrow_read(T, W)
    for n in range(3, 8): emit_tile(T, W, n, 8, n*SLOT)
    T.append("s_barrier")
    T.append("s_add_u32 s56, s35, 1")
    narrow(T, W, 131072, 's56')
    later = std_later(8)
    T += phase(W, 0, 'X', later).linearize()
    T.append("s_nop 15")
    wf_store(T, ACC[0], 2, 's35')
    for i in range(8): W.issue('vm', ('WS', i))
    narrow_read(T, W)
    T += phase(W, 1, 'X', later).linearize()
    T.append("s_nop 15")
    wf_store(T, ACC[1], 2, 's56')
    finish(T, "K1_W2")

    e("K1_FIN:")
    if FUSED:
        if o['stamp']:
            e("s_waitcnt vmcnt(0)"); e("s_memtime s[64:65]"); e("s_memrealtime s[66:67]"); e("s_waitcnt lgkmcnt(0)")
            e("s_cmp_eq_u32 s28, 0"); e("s_cbranch_scc0 K1_NOST")
            e("s_add_u32 s68, s54, 0x8100000"); e("s_addc_u32 s69, s55, 0"); e("s_mov_b32 s70, 0x100000"); e("s_mov_b32 s71, 0x20000")
            for k, r in enumerate([60, 64, 62, 66]): e(f"v_mov_b32 v{232+k}, s{r}")
            e("s_lshl_b32 s33, s2, 4"); e("v_mov_b32 v236, s33")
            e("buffer_store_dwordx4 v[232:235], v236, s[68:71], 0 offen")
            for k in range(8): e(f"v_mov_b32 v{244+k}, s{72+2*k}")
            e("s_lshl_b32 s33, s2, 5"); e("s_add_u32 s33, s33, 0x10000"); e("v_mov_b32 v236, s33")
            e("buffer_store_dwordx4 v[244:247], v236, s[68:71], 0 offen")
            e("buffer_store_dwordx4 v[248:251], v236, s[68:71], 0 offen offset:16")
            e("K1_NOST:")
        e("K1_TAGP:")
        e("buffer_load_dword v232, off, s[4:7], 0 sc1")
        e("s_waitcnt vmcnt(0) lgkmcnt(0)")
        e("v_readfirstlane_b32 s3, v232")
        e("s_nop 3")
        e("s_cmp_lg_u32 s3, 0"); e("s_cbranch_scc1 K1_TAGD"); e("s_sleep 1"); e("s_branch K1_TAGP")
        e("K1_TAGD:")
        e("s_barrier")
        e("s_cmp_eq_u32 s28, 0"); e("s_cbranch_scc0 K1_NOFL")
        e("s_lshl_b32 s33, s2, 7")
        fa, fb_ = (FLU, FLQ) if o.get('ugfirst', True) else (FLQ, FLU)
        if CT:
            e(f"s_add_u32 s34, s33, {FLU}")
        else:
            e(f"s_add_u32 s34, s33, {fa}")
            e(f"s_add_u32 s56, s33, {fb_ - 125*128}"); e("s_cmp_ge_u32 s2, 125"); e("s_cselect_b32 s34, s56, s34")
        e(f"s_add_u32 s56, s33, {FLW - 250*128}"); e("s_cmp_ge_u32 s2, 250"); e("s_cselect_b32 s34, s56, s34")
        srd(e, 8, 's54', 's55', FL_OFF, FL_SIZE)
        e("v_mov_b32 v232, s3")
        e("v_cmp_eq_u32 vcc, 0, v240"); e("s_and_saveexec_b64 s[56:57], vcc")
        e("buffer_store_dword v232, off, s[8:11], s34 sc1")
        if CT:
            e(f"s_add_u32 s34, s33, {FLQ}"); e("s_cmp_lt_u32 s2, 250"); e("s_cbranch_scc0 K1_NOFL2")
            e("buffer_store_dword v232, off, s[8:11], s34 sc1")
            e("K1_NOFL2:")
        e("s_mov_b64 exec, s[56:57]")
        e("K1_NOFL:")
        e("s_mov_b32 s48, s28")
        return L, [], []
    if o['stamp']:
        e("s_waitcnt vmcnt(0)")
        e("s_memtime s[64:65]"); e("s_memrealtime s[66:67]")
        e("s_waitcnt lgkmcnt(0)")
        e("s_cmp_eq_u32 s28, 0"); e("s_cbranch_scc0 K1_END")
        e("s_add_u32 s68, s54, 0x8100000"); e("s_addc_u32 s69, s55, 0"); e("s_mov_b32 s70, 0x100000"); e("s_mov_b32 s71, 0x20000")
        for k, r in enumerate([60, 64, 62, 66]): e(f"v_mov_b32 v{232+k}, s{r}")
        e("s_lshl_b32 s33, s2, 4"); e("v_mov_b32 v236, s33")
        e("buffer_store_dwordx4 v[232:235], v236, s[68:71], 0 offen")
        for k in range(8): e(f"v_mov_b32 v{244+k}, s{72+2*k}")
        e("s_lshl_b32 s33, s2, 5"); e("s_add_u32 s33, s33, 0x10000"); e("v_mov_b32 v236, s33")
        e("buffer_store_dwordx4 v[244:247], v236, s[68:71], 0 offen")
        e("buffer_store_dwordx4 v[248:251], v236, s[68:71], 0 offen offset:16")
    e("K1_END:")
    e("s_endpgm")
    return L, kernel_desc(name, 288, 256), []
```

```python
from gen_common import *
from tl import TL
import hazard, struct
SLOT = 16384
EX = 131072
fb = lambda x: hex(struct.unpack('<I', struct.pack('<f', x))[0])

def gen_k1(opt=None):
    o = dict(D=6, stamp=False, st='', npre=2, nln=4)
    if opt: o.update(opt)
    D = o['D']; ST = (' ' + o['st']) if o['st'] else ''
    FUSED = o.get('fused')
    name = FUSED if FUSED else 'prep_kernel'
    L = []; e = L.append
    B = 0; ACC = [64, 128]; KA = 192; KA2 = 200; VN = 208; VN2 = 216; DV = 224; DS = 228; XB = 200
    aR = 0; R = 8
    def stamp(T, k):
        if o['stamp']: T.append(f"s_memrealtime s[{72+2*k}:{73+2*k}]")
    L += kernel_header(name)
    e("s_cmp_ge_u32 s2, 256")
    e("s_cbranch_scc1 K2_END" if FUSED else "s_cbranch_scc1 K1_END")
    e("s_load_dwordx16 s[36:51], s[0:1], 0")
    e("s_load_dwordx2 s[52:53], s[0:1], 64")
    e("s_load_dwordx2 s[54:55], s[0:1], 88")
    if FUSED: e("s_load_dwordx2 s[58:59], s[0:1], 80")
    if o['stamp']:
        e("s_memtime s[60:61]"); e("s_memrealtime s[62:63]")
    e("v_lshrrev_b32 v232, 6, v0")
    e("v_and_b32 v240, 63, v0")
    e("v_lshrrev_b32 v241, 5, v240")
    e("v_and_b32 v242, 31, v240")
    e("v_readfirstlane_b32 s28, v232")
    e("s_and_b32 s29, s28, 1")
    e("s_lshr_b32 s30, s28, 1")
    e("s_lshl_b32 s31, s28, 12")
    CT = o.get('ct')
    if CT: e("s_mov_b32 s35, s2")
    else: e("s_sub_u32 s35, s2, 125"); e("s_cmp_lt_u32 s2, 125"); e("s_cselect_b32 s35, s2, s35")
    e("s_lshl_b32 s33, s28, 1")
    for k in range(4):
        e(f"v_add_u32 v234, {2*k}, v241"); e("v_and_b32 v234, 3, v234"); e("v_lshlrev_b32 v234, 2, v234")
        e(f"s_add_u32 s34, s33, {k>>1}"); e("s_and_b32 s34, s34, 3")
        e("v_or_b32 v234, s34, v234"); e("v_xor_b32 v234, v242, v234"); e("v_lshlrev_b32 v234, 4, v234")
        e("v_lshl_add_u32 v234, v241, 9, v234")
        e(f"v_add_u32 v{DS+k}, s31, v234")
    e("s_waitcnt lgkmcnt(0)")
    if FUSED:
        e("s_mov_b32 s4, s58"); e("s_mov_b32 s5, s59"); e("s_mov_b32 s6, 256"); e("s_mov_b32 s7, 0x20000")
        e("s_or_b32 s33, s2, s28"); e("s_cmp_eq_u32 s33, 0"); e("s_cbranch_scc0 K1_NOTAG")
        e("s_memrealtime s[56:57]"); e("s_waitcnt lgkmcnt(0)"); e("s_or_b32 s56, s56, 1")
        e("v_mov_b32 v234, s56")
        e("buffer_store_dword v234, off, s[4:7], 0 sc1")
        e("K1_NOTAG:")
    e("s_cmp_lt_u32 s2, 250"); e("s_cbranch_scc0 K1_NOX")
    srd(e, 16, 's36', 's37', 0, 8000*512)
    e("s_lshl_b32 s32, s35, 14" if CT else "s_lshl_b32 s32, s35, 15")
    for half in range(1 if CT else 2):
        e(f"s_add_u32 m0, s31, {EX + half*SLOT:#x}")
        if half: e("s_add_u32 s32, s32, 16384")
        else: e("s_nop 0")
        for k in range(4):
            e(f"buffer_load_dwordx4 v{DS+k}, s[16:19], s32 offen offset:{k*1024} lds")
    if FUSED and o.get('ipf', True):
        e("s_getpc_b64 s[56:57]")
        e("K1_PCREF:")
        e(f"s_add_u32 s56, s56, {o.get('ipfbase', 'K1_NOX')}-K1_PCREF"); e("s_addc_u32 s57, s57, 0")
        e("s_lshr_b32 s33, s2, 3"); e("s_lshl_b32 s33, s33, 2"); e("s_add_u32 s33, s33, s28"); e("s_lshl_b32 s33, s33, 10")
        e(f"s_cmp_lt_u32 s33, {o.get('ipfbytes', 61440)}"); e("s_cbranch_scc0 K1_NOIPF")
        e("v_lshlrev_b32 v232, 4, v240"); e("v_add_u32 v232, s33, v232")
        e("global_load_dwordx4 v[252:255], v232, s[56:57]")
        e("K1_NOIPF:")
    if o.get('wpf', False):
        e("s_lshr_b32 s33, s2, 3"); e("s_lshl_b32 s33, s33, 2"); e("s_add_u32 s33, s33, s28")
        e("v_lshlrev_b32 v232, 4, v240")
        e("s_mov_b32 s8, s40"); e("s_mov_b32 s9, s41"); e("s_mov_b32 s10, 131072"); e("s_mov_b32 s11, 0x20000")
        e("s_lshl_b32 s34, s33, 10")
        e("buffer_load_dwordx4 v[100:103], v232, s[8:11], s34 offen")
        e("s_mov_b32 s8, s46"); e("s_mov_b32 s9, s47"); e("s_mov_b32 s10, 262144")
        e("s_lshl_b32 s34, s33, 11")
        e("buffer_load_dwordx4 v[104:107], v232, s[8:11], s34 offen")
        e("buffer_load_dwordx4 v[108:111], v232, s[8:11], s34 offen offset:1024")
    if FUSED and o.get('tlb', False):
        e("s_load_dwordx2 s[56:57], s[0:1], 72"); e("s_waitcnt lgkmcnt(0)")
        e("s_cmp_eq_u32 s28, 1"); e("s_cbranch_scc0 K1_NOTLB")
        srd(e, 8, 's54', 's55', OP_OFF, 64*16*16384)
        e("v_lshlrev_b32 v232, 21, v240")
        e("buffer_load_dword v112, v232, s[8:11], 0 offen")
        e("s_mov_b32 s8, s56"); e("s_mov_b32 s9, s57"); e("s_mov_b32 s10, 4096000")
        e("buffer_load_dword v113, v232, s[8:11], 0 offen")
        e("K1_NOTLB:")
    if o.get('pf', True):
        e("s_and_b32 s33, s2, 7"); e("s_cmp_lt_u32 s33, 2"); e("s_cbranch_scc1 K1_NOPF")
        e("s_lshr_b32 s34, s2, 3")
        e("s_cmp_ge_u32 s33, 6"); e("s_cbranch_scc1 K1_PF2")
        e("s_cmp_lt_u32 s34, 16"); e("s_cselect_b32 s8, s44, s42"); e("s_cselect_b32 s9, s45, s43")
        e("s_and_b32 s34, s34, 15"); e("s_lshl_b32 s34, s34, 13")
        e("s_branch K1_PF3")
        e("K1_PF2:")
        e("s_add_u32 s56, s52, 131072"); e("s_addc_u32 s57, s53, 0")
        e("s_cmp_lt_u32 s34, 16"); e("s_cselect_b32 s8, s50, s56"); e("s_cselect_b32 s9, s51, s57")
        e("s_and_b32 s34, s34, 15"); e("s_lshl_b32 s34, s34, 13")
        e("K1_PF3:")
        e("s_mov_b32 s10, 131072"); e("s_mov_b32 s11, 0x20000")
        e("v_lshlrev_b32 v232, 4, v240"); e("s_lshl_b32 s33, s28, 11"); e("s_add_u32 s34, s34, s33")
        e("buffer_load_dwordx4 v[244:247], v232, s[8:11], s34 offen")
        e("buffer_load_dwordx4 v[248:251], v232, s[8:11], s34 offen offset:1024")
        e("K1_NOPF:")
    e("K1_NOX:")
    first, second = ("K1_UG", "K1_Q") if o.get('ugfirst', True) else ("K1_Q", "K1_UG")
    if CT:
        e("s_cmp_lt_u32 s2, 250"); e("s_cbranch_scc1 K1_CT")
    else:
        e("s_cmp_lt_u32 s2, 125"); e(f"s_cbranch_scc1 {first}")
        e("s_cmp_lt_u32 s2, 250"); e(f"s_cbranch_scc1 {second}")
    e("s_cmp_lt_u32 s2, 254"); e("s_cbranch_scc1 K1_W1")
    e("s_branch K1_W2")

    def k_addr(T, dst, dst2, base_lines):
        t = T.append
        t("v_and_b32 v234, 3, v242"); t("v_lshlrev_b32 v234, 2, v234"); t("v_bfe_u32 v235, v242, 2, 2")
        t("v_or_b32 v234, v234, v235"); t("v_lshlrev_b32 v236, 9, v242")
        for x in base_lines: t(x)
        t("v_add_u32 v236, s33, v236")
        for jj in range(8):
            t(f"v_add_u32 v235, {2*jj}, v241"); t("v_xor_b32 v235, v235, v234")
            t(f"v_lshl_add_u32 v{dst+jj}, v235, 4, v236")
            if dst2 is not None: t(f"v_add_u32 v{dst2+jj}, 0x10000, v{dst+jj}")
    def ka_setup(T): k_addr(T, KA, KA2, ["s_lshl_b32 s33, s30, 14"])
    def xb_setup(T): k_addr(T, XB, None, ["s_lshl_b32 s33, s29, 14", f"s_add_u32 s33, s33, {EX}", "s_lshl_b32 s34, s30, 8", "s_add_u32 s33, s33, s34"])
    def vn_setup(T):
        t = T.append
        t("v_bfe_u32 v234, v240, 4, 1"); t("v_bfe_u32 v235, v240, 2, 2"); t("v_bfe_u32 v236, v240, 1, 1")
        t("v_lshl_add_u32 v236, v234, 1, v236"); t("v_and_b32 v237, 1, v240"); t("v_lshlrev_b32 v237, 3, v237")
        t("v_lshl_add_u32 v238, v241, 3, v235"); t("v_lshl_add_u32 v237, v238, 9, v237")
        t("s_lshl_b32 s33, s30, 8"); t("v_add_u32 v237, s33, v237")
        for a in range(4):
            for u in range(2):
                t(f"v_lshl_add_u32 v238, v241, 1, {u}"); t("v_lshl_or_b32 v238, v235, 2, v238")
                t(f"v_add_u32 v239, {4*a}, v236"); t("v_xor_b32 v238, v238, v239")
                t(f"v_lshl_add_u32 v{VN+a*2+u}, v238, 4, v237")
                if u: t(f"v_add_u32 v{VN+a*2+u}, {4*512}, v{VN+a*2+u}")
                t(f"v_add_u32 v{VN2+a*2+u}, 0x10000, v{VN+a*2+u}")
    def dma_voff(T, stride1024):
        t = T.append
        if not stride1024:
            for k in range(4): t(f"v_mov_b32 v{DV+k}, v{DS+k}")
            return
        t("s_lshl_b32 s33, s28, 1")
        for k in range(4):
            t(f"v_add_u32 v234, {2*k}, v241"); t("v_and_b32 v234, 3, v234"); t("v_lshlrev_b32 v234, 2, v234")
            t(f"s_add_u32 s34, s33, {k>>1}"); t("s_and_b32 s34, s34, 3")
            t("v_or_b32 v234, s34, v234"); t("v_xor_b32 v234, v242, v234"); t("v_lshlrev_b32 v234, 4, v234")
            t("v_lshl_add_u32 v234, v241, 10, v234"); t("s_lshl_b32 s34, s28, 13"); t(f"s_add_u32 s34, s34, {k*1024}")
            t(f"v_add_u32 v{DV+k}, s34, v234")
    def tile_dma(n, srdn, soff):
        if o.get('nodma'): return []
        r = [(f"s_add_u32 m0, s31, {(n%8)*SLOT:#x}", False), (f"s_mov_b32 s32, {soff:#x}", False)]
        for k in range(4):
            r.append((f"buffer_load_dwordx4 v{DV+k}, s[{srdn}:{srdn+3}], s32 offen offset:{k*1024} lds", True))
        return r
    def emit_tile(out, W, n, srdn, soff):
        for txt, vm in tile_dma(n, srdn, soff):
            out.append(txt)
            if vm: W.issue('vm', ('T', n))
    def out_rows(T, W, srdn, tag, OB):
        t = T.append
        t("v_lshlrev_b32 v232, 4, v240"); t(f"s_add_u32 s33, s31, {EX}"); t("v_add_u32 v232, s33, v232")
        for half in range(2):
            for k in range(4):
                t(f"ds_read_b128 {vr(OB+(half*4+k)*4,4)}, v232 offset:{half*SLOT + k*1024}")
        t("s_lshl_b32 s32, s35, 15")
        for half in range(2):
            if half: t("s_add_u32 s32, s32, 16384")
            for k in range(4):
                t(f"s_waitcnt lgkmcnt({7 - (half*4+k)})")
                t(f"buffer_store_dwordx4 {vr(OB+(half*4+k)*4,4)}, v{DS+k}, s[{srdn}:{srdn+3}], s32 offen offset:{k*1024}{ST}")
                W.issue('vm', (tag, half, k))
        W.drain('lgkm')
    def ln(out, W, tiles):
        nw = W.need('vm', [('X', 7)])
        out.append(f"s_waitcnt vmcnt({nw})")
        out.append("s_barrier")
        stamp(out, 0)
        for s in range(8):
            out.append(f"ds_read_b128 {vr(64+4*s,4)}, v{XB+s}")
        body = []; b = body.append
        b("s_mov_b32 s34, 0x3f803f80")
        for k in range(4): b(f"v_mov_b32 v{232+k}, 0")
        for r in range(32):
            if r % 4 == 0: b(f"s_waitcnt lgkmcnt({7 - r//4})")
            b(f"v_dot2_f32_bf16 v{232+(r&1)}, v{64+r}, s34, v{232+(r&1)}")
            b(f"v_dot2_f32_bf16 v{234+(r&1)}, v{64+r}, v{64+r}, v{234+(r&1)}")
        b("s_nop 2")
        b("v_add_f32 v232, v232, v233"); b("v_add_f32 v234, v234, v235")
        b("v_mov_b32 v233, v232"); b("v_mov_b32 v235, v234"); b("s_nop 1")
        b("v_permlane32_swap_b32 v232, v233"); b("v_permlane32_swap_b32 v234, v235"); b("s_nop 1")
        b("v_add_f32 v232, v232, v233"); b("v_add_f32 v233, v234, v235")
        b(f"ds_write_b64 v{XB}, v[232:233]")
        b(f"v_xor_b32 v238, 256, v{XB}")
        b("s_waitcnt lgkmcnt(0)")
        b("s_barrier")
        b("ds_read_b64 v[234:235], v238")
        b("s_waitcnt lgkmcnt(0)")
        b("v_add_f32 v232, v232, v234"); b("v_add_f32 v234, v233, v235")
        b("v_mul_f32 v232, 0x3b800000, v232"); b("v_mul_f32 v234, 0x3b800000, v234")
        b("v_fma_f32 v234, -v232, v232, v234"); b("v_max_f32 v234, 0, v234"); b("v_add_f32 v234, 0x3727c5ac, v234")
        b("v_rsq_f32 v234, v234"); b("s_nop 0")
        b("v_mul_f32 v236, v232, v234"); b("v_sub_f32 v236, 0, v236")
        b("s_barrier")
        for r in range(32):
            t = 244 + 2*(r % 4)
            b(f"v_lshlrev_b32 v{t}, 16, v{64+r}")
            b(f"v_and_b32 v{t+1}, 0xffff0000, v{64+r}")
            b(f"v_pk_fma_f32 v[{t}:{t+1}], v[{t}:{t+1}], v[234:235], v[236:237] op_sel_hi:[1,0,0]")
            b(f"v_cvt_pk_bf16_f32 v{64+r}, v{t}, v{t+1}")
            if r % 4 == 3: b(f"ds_write_b128 v{XB+r//4}, {vr(64+r-3,4)}")
        b("s_waitcnt lgkmcnt(0)")
        b("s_barrier")
        b("s_lshl_b32 s33, s30, 8")
        for jj in range(8): b(f"v_subrev_u32 v{244+jj}, s33, v{XB+jj}")
        for s in range(16):
            b(f"ds_read_b128 {vr(B+4*s,4)}, v{244+(s&7)} offset:{(s>>3)*256}")
        flat = []
        for (n, sn, so) in tiles:
            tl_ = [(txt, vm, n) for txt, vm in tile_dma(n, sn, so)]
            flat.append(tl_[:3])
            for x in tl_[3:]: flat.append([x])
        gap = max(1, len(body) // (len(flat) + 1)) if flat else 1
        fi = 0
        for i, ins in enumerate(body):
            out.append(ins)
            if fi < len(flat) and i % gap == gap - 1:
                for txt, vm, n in flat[fi]:
                    out.append(txt)
                    if vm: W.issue('vm', ('T', n))
                fi += 1
        while fi < len(flat):
            for txt, vm, n in flat[fi]:
                out.append(txt)
                if vm: W.issue('vm', ('T', n))
            fi += 1
        out.append("s_waitcnt lgkmcnt(0)")
        W.drain('lgkm')
    def phase(W, p, kind, later, fill=None, f0=3):
        tl = TL(W)
        acc = ACC[p]
        cnt = [0]
        for a in range(4):
            sig = 4*p + a
            tb = 16*a - D - 1
            tl.add(tb, 'bar', needvm=[('T', 2*sig), ('T', 2*sig+1)], prio=1)
            k = 0
            for (n, sn, so) in later.get(sig, []):
                for txt, vm in tile_dma(n, sn, so):
                    sp = o.get('dsp', 2)
                    if vm:
                        tl.add(tb + 1 + sp*k, 'vm', txt, tag=('T', n), prio=7); k += 1
                    else:
                        tl.add(tb + 1 + sp*k, 'txt', txt, prio=6)
            for m in range(16):
                tm = 16*a + m
                ri = cnt[0] % R; cnt[0] += 1
                ring = aR + 4*ri
                if kind == 'X':
                    j = m; slot = 2*a
                    base = (KA if slot < 4 else KA2) + (j & 7)
                    off = (slot % 4)*SLOT + (j >> 3)*256
                    tag = (p, a, m)
                    tl.add(tm - D, 'lds', f"ds_read_b128 {ar(ring,4)}, v{base} offset:{off}", tag=tag, prio=2)
                    c = vr(acc+16*a,16) if j else '0'
                    tl.add(tm, 'mfma', f"v_mfma_f32_32x32x16_bf16 {vr(acc+16*a,16)}, {ar(ring,4)}, {vr(B+4*j,4)}, {c}", need=[tag], prio=0)
                else:
                    tt, s, aa = m >> 3, (m >> 2) & 1, m & 3
                    tau = 2*a + tt; slot = tau
                    tags = []
                    for u in range(2):
                        base = (VN if slot < 4 else VN2) + aa*2 + u
                        off = (slot % 4)*SLOT + 16*s*512
                        tag = (p, a, m, u); tags.append(tag)
                        tl.add(tm - D, 'lds', f"ds_read_b64_tr_b16 {ar(ring+2*u,2)}, v{base} offset:{off}", tag=tag, prio=2)
                    c = vr(acc+16*aa,16) if (tau or s) else '0'
                    tl.add(tm, 'mfma', f"v_mfma_f32_32x32x16_bf16 {vr(acc+16*aa,16)}, {ar(ring,4)}, {vr(B+4*(2*tau+s),4)}, {c}", need=tags, prio=0)
        if fill:
            n = len(fill)
            for i, ins in enumerate(fill):
                tl.add(f0 + (i*(64-f0))/n, 'txt', ins, prio=4)
        return tl
    def pack_swap(out, src, dst, swap=True, scale=None):
        if scale:
            for k in range(8):
                out.append(f"v_pk_mul_f32 v[{src+2*k}:{src+2*k+1}], v[{src+2*k}:{src+2*k+1}], {scale} op_sel_hi:[1,0]")
        for k in range(8):
            out.append(f"v_cvt_pk_bf16_f32 v{dst+k}, v{src+2*k}, v{src+2*k+1}")
        if swap:
            out.append("s_nop 1")
            for b in (0, 4):
                out.append(f"v_permlane32_swap_b32 v{dst+b}, v{dst+b+2}")
                out.append(f"v_permlane32_swap_b32 v{dst+b+1}, v{dst+b+3}")
    def exchange(out, W, acc, kind):
        out.append("s_nop 15")
        out.append("v_lshlrev_b32 v232, 4, v240")
        out.append(f"s_lshl_b32 s33, s29, 14"); out.append(f"s_add_u32 s33, s33, {EX}")
        out.append("v_add_u32 v233, s33, v232")
        out.append(f"s_lshl_b32 s34, s30, {13 if kind=='Y' else 11}")
        out.append("v_add_u32 v232, s34, v233")
        for a in range(4):
            d = 244 if a % 2 == 0 else 0
            pack_swap(out, acc+16*a, d)
            for s in range(2):
                f = (2*a + s) if kind == 'Y' else (4*a + s)
                out.append(f"ds_write_b128 v232, {vr(d+4*s,4)} offset:{f*1024}")
        out.append("s_waitcnt lgkmcnt(0)")
        out.append("s_barrier")
        for f in range(16):
            out.append(f"ds_read_b128 {vr(B+4*f,4)}, v233 offset:{f*1024}")
        out.append("s_waitcnt lgkmcnt(0)")
        W.drain('lgkm')
    def narrow(out, W, rowbase_bytes, slice_sreg):
        for x in ["v_lshrrev_b32 v232, 3, v240", "v_lshlrev_b32 v232, 9, v232", "v_and_b32 v233, 7, v240",
                  "v_lshl_add_u32 v232, v233, 4, v232", f"s_lshl_b32 s33, {slice_sreg}, 7", "s_lshl_b32 s34, s28, 15",
                  "s_add_u32 s33, s33, s34", f"s_add_u32 s33, s33, {rowbase_bytes}", "v_add_u32 v232, s33, v232",
                  "s_lshl_b32 s34, s28, 13", f"s_add_u32 s34, s34, {EX}"]: out.append(x)
        for i in range(8):
            out.append(f"s_add_u32 m0, s34, {i*1024}")
            out.append(f"s_mov_b32 s32, {i*4096}")
            out.append(f"buffer_load_dwordx4 v232, s[16:19], s32 offen lds")
            W.issue('vm', ('N', i))
    def narrow_read(out, W):
        n = W.need('vm', [('N', 7)])
        out.append(f"s_waitcnt vmcnt({n})")
        out.append("s_barrier")
        for x in ["v_bfe_u32 v232, v240, 2, 2", "v_lshl_add_u32 v232, v241, 3, v232", "v_lshlrev_b32 v232, 7, v232",
                  "v_bfe_u32 v233, v240, 4, 1", "v_lshl_add_u32 v232, v233, 5, v232", "v_and_b32 v233, 3, v240",
                  "v_lshl_add_u32 v232, v233, 3, v232", "s_lshl_b32 s33, s29, 6", f"s_add_u32 s33, s33, {EX}",
                  "v_add_u32 v232, s33, v232"]: out.append(x)
        for s in range(16):
            for u in range(2):
                out.append(f"ds_read_b64_tr_b16 {vr(B+4*s+2*u,2)}, v232 offset:{s*2048+u*512}")
            if s % 4 == 3: out.append("s_waitcnt lgkmcnt(0)")
        W.drain('lgkm')
    def finish(task_lines, label):
        if CT and label in ("K1_Q", "K1_UG"): return
        fixed = hazard.autofix(task_lines)
        e(f"{label}:")
        L.extend(fixed)
        e("s_branch K1_FIN")
    def cap(fn):
        buf = []; fn(buf.append); return buf
    std_later = lambda sn: {2: [(8, sn, 0), (9, sn, SLOT)], 3: [(10, sn, 2*SLOT), (11, sn, 3*SLOT)], 4: [(12, sn, 4*SLOT), (13, sn, 5*SLOT)], 5: [(14, sn, 6*SLOT), (15, sn, 7*SLOT)]}
    npre = o['npre']


    if CT:
        EXB = EX + 16384
        Bq = 64
        ACCQ, ACCK, ACCG, ACCU = 64, 96, 128, 160
        VN4 = 208; VN42 = 212; XO = 216; XB8 = 244
        W = Waiter(); T = []; t = T.append
        for s_ in range(4): W.issue('vm', ('X', s_))
        dma_voff(T, True)
        T += cap(lambda e: (srd(e, 8, 's38', 's39', 0, 131072), srd(e, 12, 's40', 's41', 0, 131072), srd(e, 20, 's46', 's47', 0, 262144),
                            srd(e, 24, 's54', 's55', QF_OFF, 500*8192)))
        def tinfo(n):
            if n < 8: return (8, n*SLOT, DS)
            if n < 16: return (12, (n-8)*SLOT, DS)
            if n < 24: return (20, (n-16)*32768 + 512, DV)
            return (20, (n-24)*32768, DV)
        def tdma(n):
            sn, so, dv = tinfo(n)
            r = [(f"s_add_u32 m0, s31, {(n%8)*SLOT:#x}", False), (f"s_mov_b32 s32, {so:#x}", False)]
            for k in range(4): r.append((f"buffer_load_dwordx4 v{dv+k}, s[{sn}:{sn+3}], s32 offen offset:{k*1024} lds", True))
            return r
        def temit(n):
            for txt, vm in tdma(n):
                t(txt)
                if vm: W.issue('vm', ('T', n))
        temit(0); temit(1)
        t("v_and_b32 v234, 3, v242"); t("v_lshlrev_b32 v234, 2, v234"); t("v_bfe_u32 v235, v242, 2, 2"); t("v_or_b32 v234, v234, v235")
        t("v_lshlrev_b32 v236, 9, v242"); t(f"v_add_u32 v237, {EX}, v236")
        t("s_lshl_b32 s33, s30, 8"); t("v_add_u32 v238, s33, v237")
        t("s_lshl_b32 s33, s29, 3")
        for i in range(4):
            t(f"s_add_u32 s34, s33, {2*i}"); t("v_add_u32 v235, s34, v241"); t("v_xor_b32 v235, v235, v234"); t(f"v_lshl_add_u32 v{XO+i}, v235, 4, v238")
        t("s_lshl_b32 s33, s28, 14"); t("v_add_u32 v238, s33, v236")
        for jj in range(8):
            t(f"v_add_u32 v235, {2*jj}, v241"); t("v_xor_b32 v235, v235, v234")
            t(f"v_lshl_add_u32 v{KA+jj}, v235, 4, v238"); t(f"v_add_u32 v{KA2+jj}, 0x10000, v{KA+jj}")
        t("v_bfe_u32 v234, v240, 4, 1"); t("v_bfe_u32 v235, v240, 2, 2"); t("v_bfe_u32 v236, v240, 1, 1")
        t("v_lshl_add_u32 v236, v234, 1, v236"); t("v_and_b32 v237, 1, v240"); t("v_lshlrev_b32 v237, 3, v237")
        t("v_lshl_add_u32 v238, v241, 3, v235"); t("v_lshl_add_u32 v237, v238, 9, v237")
        t("s_lshl_b32 s33, s30, 8"); t("v_add_u32 v237, s33, v237")
        t("s_lshl_b32 s33, s29, 3")
        for aa in range(2):
            for u in range(2):
                t(f"v_lshl_add_u32 v238, v241, 1, {u}"); t("v_lshl_or_b32 v238, v235, 2, v238")
                t(f"s_add_u32 s34, s33, {4*aa}"); t("v_add_u32 v239, s34, v236"); t("v_xor_b32 v238, v238, v239")
                t(f"v_lshl_add_u32 v{VN4+aa*2+u}, v238, 4, v237")
                if u: t(f"v_add_u32 v{VN4+aa*2+u}, {4*512}, v{VN4+aa*2+u}")
                t(f"v_add_u32 v{VN42+aa*2+u}, 0x10000, v{VN4+aa*2+u}")
        nw = W.need('vm', [('X', 3)]); t(f"s_waitcnt vmcnt({nw})"); t("s_barrier")
        stamp(T, 0)
        for i in range(4): t(f"ds_read_b128 {vr(64+4*i,4)}, v{XO+i}")
        T += cap(lambda e: srd(e, 16, 's54', 's55', XA_OFF, 8000*512))
        body = []; b = body.append
        b("s_mov_b32 s34, 0x3f803f80")
        for k in range(4): b(f"v_mov_b32 v{232+k}, 0")
        for r in range(16):
            if r % 4 == 0: b(f"s_waitcnt lgkmcnt({3 - r//4})")
            b(f"v_dot2_f32_bf16 v{232+(r&1)}, v{64+r}, s34, v{232+(r&1)}")
            b(f"v_dot2_f32_bf16 v{234+(r&1)}, v{64+r}, v{64+r}, v{234+(r&1)}")
        b("s_nop 2")
        b("v_add_f32 v232, v232, v233"); b("v_add_f32 v234, v234, v235")
        b("v_mov_b32 v233, v232"); b("v_mov_b32 v235, v234"); b("s_nop 1")
        b("v_permlane32_swap_b32 v232, v233"); b("v_permlane32_swap_b32 v234, v235"); b("s_nop 1")
        b("v_add_f32 v232, v232, v233"); b("v_add_f32 v233, v234, v235")
        b("v_lshlrev_b32 v238, 3, v242"); b(f"v_add_u32 v238, {EXB}, v238")
        b("s_lshl_b32 s33, s28, 8"); b("v_add_u32 v239, s33, v238")
        b("ds_write_b64 v239, v[232:233]")
        b("s_waitcnt lgkmcnt(0)"); b("s_barrier")
        for k in range(4): b(f"ds_read_b64 v[{80+2*k}:{81+2*k}], v238 offset:{256*k}")
        b("s_waitcnt lgkmcnt(0)")
        b("v_add_f32 v80, v80, v82"); b("v_add_f32 v81, v81, v83"); b("v_add_f32 v84, v84, v86"); b("v_add_f32 v85, v85, v87")
        b("v_add_f32 v232, v80, v84"); b("v_add_f32 v234, v81, v85")
        b("v_mul_f32 v232, 0x3b800000, v232"); b("v_mul_f32 v234, 0x3b800000, v234")
        b("v_fma_f32 v234, -v232, v232, v234"); b("v_max_f32 v234, 0, v234"); b("v_add_f32 v234, 0x3727c5ac, v234")
        b("v_rsq_f32 v234, v234"); b("s_nop 0")
        b("v_mul_f32 v236, v232, v234"); b("v_sub_f32 v236, 0, v236")
        for r in range(16):
            tt_ = 244 + 2*(r % 4)
            b(f"v_lshlrev_b32 v{tt_}, 16, v{64+r}"); b(f"v_and_b32 v{tt_+1}, 0xffff0000, v{64+r}")
            b(f"v_pk_fma_f32 v[{tt_}:{tt_+1}], v[{tt_}:{tt_+1}], v[234:235], v[236:237] op_sel_hi:[1,0,0]")
            b(f"v_cvt_pk_bf16_f32 v{64+r}, v{tt_}, v{tt_+1}")
            if r % 4 == 3: b(f"ds_write_b128 v{XO+r//4}, {vr(64+r-3,4)}")
        b("s_lshl_b32 s33, s28, 14"); b(f"s_sub_u32 s33, {EX}, s33")
        for jj in range(8): b(f"v_add_u32 v{XB8+jj}, s33, v{KA+jj}")
        b("s_waitcnt lgkmcnt(0)"); b("s_barrier")
        for s_ in range(16): b(f"ds_read_b128 {vr(B+4*s_,4)}, v{XB8+(s_&7)} offset:{(s_>>3)*256}")
        b("v_lshlrev_b32 v232, 4, v240"); b(f"s_add_u32 s33, s31, {EX}"); b("v_add_u32 v232, s33, v232")
        for k in range(4): b(f"ds_read_b128 {vr(96+4*k,4)}, v232 offset:{k*1024}")
        flat = []
        for n in range(2, 6):
            tl_ = [(txt, vm, n) for txt, vm in tdma(n)]
            flat.append(tl_[:3])
            for x in tl_[3:]: flat.append([x])
        gap = max(1, (len(body) - 24) // (len(flat) + 1)); fi = 0
        for i, ins in enumerate(body):
            t(ins)
            if fi < len(flat) and i % gap == gap - 1:
                for txt, vm, n in flat[fi]:
                    t(txt)
                    if vm: W.issue('vm', ('T', n))
                fi += 1
        while fi < len(flat):
            for txt, vm, n in flat[fi]:
                t(txt)
                if vm: W.issue('vm', ('T', n))
            fi += 1
        t("s_waitcnt lgkmcnt(0)")
        t("s_lshl_b32 s56, s35, 14")
        for k in range(4):
            t(f"buffer_store_dwordx4 {vr(96+4*k,4)}, v{DS+k}, s[16:19], s56 offen offset:{k*1024}{ST}"); W.issue('vm', ('XS', k))
        stamp(T, 1)
        def flag_store(off_lines, lbl):
            t("s_cmp_eq_u32 s28, 0"); t(f"s_cbranch_scc0 {lbl}")
            for x in off_lines: t(x)
            t("v_mov_b32 v232, s3"); t("v_cmp_eq_u32 vcc, 0, v240"); t("s_and_saveexec_b64 s[56:57], vcc")
            t("buffer_store_dword v232, off, s[8:11], s34 sc1")
            t("s_mov_b64 exec, s[56:57]")
            t(f"{lbl}:")
        fillers = {}
        def step(sig, extra_need=None, after_bar=None):
            p, a = sig >> 2, sig & 3
            need = [('T', 2*sig), ('T', 2*sig+1)] + (extra_need or [])
            nv = W.need('vm', need)
            if nv is not None: t(f"s_waitcnt vmcnt({nv})")
            t("s_barrier")
            if after_bar: after_bar()
            dm = []
            for n in (2*(sig+3), 2*(sig+3)+1):
                if n < 32: dm += [(txt, vm, n) for txt, vm in tdma(n)]
            fl = list(fillers.get(sig, []))
            def some(k_dma, k_fill):
                c = 0
                while dm and c < k_dma:
                    txt, vm, n = dm.pop(0); t(txt)
                    if vm: W.issue('vm', ('T', n)); c += 1
                for _ in range(k_fill):
                    if fl: t(fl.pop(0))
            nf = -(-len(fl) // 8) if fl else 0
            if p != 1:
                acc = {0: ACCQ, 2: ACCG, 3: ACCU}[p]
                idx = 0; seq = []
                for tt in range(2):
                    slot = (2*sig + tt) % 8
                    for s_ in range(2):
                        for aa in range(2):
                            for u in range(2):
                                base = (VN4 if slot < 4 else VN42) + aa*2 + u
                                t(f"ds_read_b64_tr_b16 {ar(4*idx+2*u,2)}, v{base} offset:{(slot%4)*SLOT + 16*s_*512}")
                            seq.append((idx, tt, s_, aa)); idx += 1
                for (idx, tt, s_, aa) in seq:
                    if idx % 2 == 0: t(f"s_waitcnt lgkmcnt({14 - 2*idx - 2 if idx < 6 else 0})")
                    tau = 2*a + tt
                    c = vr(acc+16*aa,16) if (tau or s_) else '0'
                    t(f"v_mfma_f32_32x32x16_bf16 {vr(acc+16*aa,16)}, {ar(4*idx,4)}, {vr(B+4*(2*tau+s_),4)}, {c}")
                    some(1, nf)
            else:
                lbl = f"K1_CT_X{a}"
                t(f"s_cmp_eq_u32 s30, {a & 1}"); t(f"s_cbranch_scc0 {lbl}")
                k = a >> 1; base = KA if k == 0 else KA2
                for half in range(2):
                    for j in range(8): t(f"ds_read_b128 {ar(4*j,4)}, v{base+j} offset:{half*256}")
                    for j in range(8):
                        if j % 2 == 0: t(f"s_waitcnt lgkmcnt({6 - j})")
                        jj = 8*half + j
                        c = vr(ACCK+16*k,16) if jj else '0'
                        t(f"v_mfma_f32_32x32x16_bf16 {vr(ACCK+16*k,16)}, {ar(4*j,4)}, {ar(Bq+4*jj,4)}, {c}")
                t(f"{lbl}:")
            some(100, 1000)
        for sig in range(4): step(sig)
        stamp(T, 2)
        t("s_nop 15")
        t("v_lshlrev_b32 v232, 4, v240"); t(f"v_add_u32 v233, {EXB}, v232"); t("s_lshl_b32 s34, s28, 12"); t("v_add_u32 v232, s34, v233")
        for aa in range(2):
            d = 244 if aa == 0 else 96
            pack_swap(T, ACCQ+16*aa, d)
            for s_ in range(2): t(f"ds_write_b128 v232, {vr(d+4*s_,4)} offset:{(2*aa+s_)*1024}")
        t("s_waitcnt lgkmcnt(0)"); t("s_barrier")
        for f in range(16): t(f"ds_read_b128 {ar(Bq+4*f,4)}, v233 offset:{f*1024}")
        t("s_waitcnt lgkmcnt(0)")
        t("buffer_load_dword v243, off, s[4:7], 0 sc1"); W.issue('vm', 'TAG')
        for sig in range(4, 8): step(sig)
        stamp(T, 3)
        qf = []
        qf.append("s_nop 7"); qf.append("v_mov_b32 v236, 0x3db8aa3b")
        qf += ["s_lshl_b32 s33, s35, 14", "s_lshl_b32 s34, s28, 10", "s_add_u32 s33, s33, s34",
               "v_lshrrev_b32 v252, 4, v242", "v_lshlrev_b32 v252, 13, v252", "v_and_b32 v253, 15, v242", "v_lshl_add_u32 v253, v241, 4, v253",
               "v_lshl_add_u32 v252, v253, 4, v252", "v_add_u32 v252, s33, v252"]
        qst = []
        for k in range(2):
            d = 244 if k == 0 else 64
            pack_swap(qf, ACCK+16*k, d, scale="v[236:237]")
            for s_ in range(2):
                qf.append(f"buffer_store_dwordx4 {vr(d+4*s_,4)}, v252, s[24:27], 0 offen offset:{k*4096 + s_*512 - (4096 if k else 0)}{ST}" if k == 0 else "@K1")
        out2 = []
        cnt = 0
        for x in qf:
            if x == "@K1":
                if cnt == 0: out2.append("v_add_u32 v253, 4096, v252")
                out2.append(f"buffer_store_dwordx4 {vr(64+4*cnt,4)}, v253, s[24:27], 0 offen offset:{cnt*512}{ST}"); cnt += 1
            else: out2.append(x)
        qf = out2
        for x in qf:
            t(x)
            if x.startswith('buffer_store'): W.issue('vm', ('QS', len(W.q['vm'])))
        W.issue('vm', 'QEND'); W.q['vm'].pop()
        qtags = [x for x in W.q['vm'] if isinstance(x, tuple) and x[0] in ('QS', 'XS')]
        step(8)
        step(9)
        def get_tag():
            t("K1_CT_TAGP:")
            t("buffer_load_dword v232, off, s[4:7], 0 sc1"); t("s_waitcnt vmcnt(0)")
            t("v_readfirstlane_b32 s3, v232"); t("s_nop 3"); t("s_cmp_lg_u32 s3, 0"); t("s_cbranch_scc1 K1_CT_TAGD"); t("s_sleep 1"); t("s_branch K1_CT_TAGP")
            t("K1_CT_TAGD:")
        def qflag():
            T.extend(cap(lambda e: srd(e, 8, 's54', 's55', FL_OFF, FL_SIZE)))
            flag_store([f"s_lshl_b32 s34, s35, 7", f"s_add_u32 s34, s34, {FLQ}"], "K1_CT_NOQF")
        step(10, extra_need=qtags + ['TAG'], after_bar=None)
        t("v_readfirstlane_b32 s3, v243")
        t("s_nop 3")
        pend_qflag = True
        t("s_cmp_eq_u32 s28, 0"); t("s_cbranch_scc0 K1_CT_NOQF2")
        t("s_cmp_lg_u32 s3, 0"); t("s_cbranch_scc0 K1_CT_NOQF2")
        T.extend(cap(lambda e: srd(e, 8, 's54', 's55', FL_OFF, FL_SIZE)))
        t(f"s_lshl_b32 s34, s35, 7"); t(f"s_add_u32 s34, s34, {FLQ}")
        t("v_mov_b32 v232, s3"); t("v_cmp_eq_u32 vcc, 0, v240"); t("s_and_saveexec_b64 s[56:57], vcc")
        t("buffer_store_dword v232, off, s[8:11], s34 sc1")
        t("s_mov_b64 exec, s[56:57]")
        t("K1_CT_NOQF2:")
        step(11)
        stamp(T, 4)
        k0 = -2.0*1.4426950408889634*0.7978845608028654
        t("s_nop 7")
        t(f"v_mov_b32 v232, {fb(k0)}"); t(f"v_mov_b32 v234, {fb(k0*0.044715)}"); t("v_mov_b32 v236, 1.0")
        for k in range(4): t(f"v_mov_b32 v{252+k}, 0")
        def gelu(r):
            tt_ = 244 + 2*((r//2) % 4)
            X = f"v[{r}:{r+1}]"; Tt = f"v[{tt_}:{tt_+1}]"
            return [f"v_pk_mul_f32 {Tt}, {X}, {X}", f"v_pk_fma_f32 {Tt}, {Tt}, v[234:235], v[232:233] op_sel_hi:[1,0,0]", f"v_pk_mul_f32 {Tt}, {Tt}, {X}",
                    f"v_exp_f32 v{tt_}, v{tt_}", f"v_exp_f32 v{tt_+1}, v{tt_+1}", f"v_pk_add_f32 {Tt}, {Tt}, v[236:237] op_sel_hi:[1,0]",
                    f"v_rcp_f32 v{tt_}, v{tt_}", f"v_rcp_f32 v{tt_+1}, v{tt_+1}", f"v_pk_mul_f32 {X}, {X}, {Tt}",
                    f"v_pk_add_f32 v[252:253], v[252:253], {X}", f"v_pk_fma_f32 v[254:255], {X}, {X}, v[254:255]"]
        for q in range(4):
            cols = [gelu(ACCG + 8*q + 2*k) for k in range(4)]
            fillers[12+q] = [cols[k][i] for i in range(11) for k in range(4)]
        for sig in range(12, 16): step(sig)
        stamp(T, 5)
        t("v_add_f32 v8, v252, v253"); t("v_add_f32 v10, v254, v255"); t("v_mov_b32 v9, v8"); t("v_mov_b32 v11, v10"); t("s_nop 1")
        t("v_permlane32_swap_b32 v8, v9"); t("v_permlane32_swap_b32 v10, v11"); t("s_nop 1")
        t("v_add_f32 v8, v8, v9"); t("v_add_f32 v9, v10, v11")
        t("v_lshlrev_b32 v12, 3, v242"); t("s_lshl_b32 s33, s28, 8"); t("v_add_u32 v13, s33, v12")
        t("s_barrier")
        t("ds_write_b64 v13, v[8:9]")
        for aa in range(2):
            d = 244 if aa == 0 else 16
            pack_swap(T, ACCU+16*aa, d)
            for s_ in range(2): t(f"ds_write_b128 v{XO+2*aa+s_}, {vr(d+4*s_,4)} offset:16384")
        t("s_waitcnt lgkmcnt(0)"); t("s_barrier")
        for k in range(4): t(f"ds_read_b64 v[{24+2*k}:{25+2*k}], v12 offset:{256*k}")
        t("v_lshlrev_b32 v232, 4, v240"); t(f"s_add_u32 s33, s31, {EX}"); t("v_add_u32 v232, s33, v232")
        for k in range(4): t(f"ds_read_b128 {vr(96+4*k,4)}, v232 offset:{16384 + k*1024}")
        T.extend(cap(lambda e: (srd(e, 12, 's54', 's55', U_OFF, 8000*512), srd(e, 20, 's54', 's55', G_OFF, 8000*512))))
        t("s_lshl_b32 s56, s35, 14")
        t("s_waitcnt lgkmcnt(4)")
        t("v_add_f32 v24, v24, v26"); t("v_add_f32 v25, v25, v27"); t("v_add_f32 v28, v28, v30"); t("v_add_f32 v29, v29, v31")
        t("v_add_f32 v8, v24, v28"); t("v_add_f32 v9, v25, v29")
        t("v_mul_f32 v8, 0x3b800000, v8"); t("v_mul_f32 v9, 0x3b800000, v9")
        t("v_fma_f32 v9, -v8, v8, v9"); t("v_max_f32 v9, 0, v9"); t("v_add_f32 v9, 0x3727c5ac, v9")
        t("v_rsq_f32 v10, v9"); t("s_nop 0"); t("v_mul_f32 v12, v8, v10"); t("v_sub_f32 v12, 0, v12")
        t("s_waitcnt lgkmcnt(0)")
        for k in range(4): t(f"buffer_store_dwordx4 {vr(96+4*k,4)}, v{DS+k}, s[12:15], s56 offen offset:{k*1024}{ST}")
        for aa in range(2):
            for k in range(8):
                r = ACCG + 16*aa + 2*k
                t(f"v_pk_fma_f32 v[{r}:{r+1}], v[{r}:{r+1}], v[10:11], v[12:13] op_sel_hi:[1,0,0]")
            d = 32 + 8*aa
            pack_swap(T, ACCG+16*aa, d)
            for s_ in range(2): t(f"ds_write_b128 v{XO+2*aa+s_}, {vr(d+4*s_,4)}")
        t("s_waitcnt lgkmcnt(0)"); t("s_barrier")
        for k in range(4): t(f"ds_read_b128 {vr(112+4*k,4)}, v232 offset:{k*1024}")
        for k in range(4):
            t(f"s_waitcnt lgkmcnt({3-k})")
            t(f"buffer_store_dwordx4 {vr(112+4*k,4)}, v{DS+k}, s[20:23], s56 offen offset:{k*1024}{ST}")
        stamp(T, 6)
        finish(T, "K1_CT")
    W = Waiter(); T = []
    for s in range(8): W.issue('vm', ('X', s))
    dma_voff(T, False)
    T += cap(lambda e: (srd(e, 8, 's38', 's39', 0, 131072), srd(e, 12, 's40', 's41', 0, 131072),
                        srd(e, 20, 's54', 's55', XA_OFF, 8000*512), srd(e, 24, 's54', 's55', QF_OFF, 500*8192)))
    emit = [(n, 8, n*SLOT) for n in range(8)]
    for (n, sn, so) in emit[:npre]: emit_tile(T, W, n, sn, so)
    xb_setup(T); vn_setup(T)
    ln(T, W, emit[npre:o['nln']])
    stamp(T, 1)
    ka_setup(T)
    stamp(T, 2)
    T.append("v_lshlrev_b32 v232, 4, v240"); T.append(f"s_add_u32 s33, s31, {EX}"); T.append("v_add_u32 v232, s33, v232")
    for half in range(2):
        for k in range(4):
            T.append(f"ds_read_b128 {vr(ACC[1]+(half*4+k)*4,4)}, v232 offset:{half*SLOT + k*1024}")
    T.append("s_waitcnt lgkmcnt(0)")
    T.append("s_lshl_b32 s34, s35, 15"); T.append("s_add_u32 s56, s34, 16384")
    xfill = []
    for half in range(2):
        for k in range(4):
            xfill.append((f"buffer_store_dwordx4 {vr(ACC[1]+(half*4+k)*4,4)}, v{DS+k}, s[20:23], {'s56' if half else 's34'} offen offset:{k*1024}{ST}", ('XS', half, k)))
    later = std_later(12)
    rest = emit[o['nln']:]
    if rest:
        later[0] = rest[:2]; later[1] = rest[2:4]
        if later[1] == [] : del later[1]
    tl0 = phase(W, 0, 'Y', later)
    for i, (txt, tag) in enumerate(xfill): tl0.add(1 + 2*i, 'vm', txt, tag=tag, prio=7)
    T += tl0.linearize()
    stamp(T, 3)
    exchange(T, W, ACC[0], 'Y')
    stamp(T, 4)
    T += phase(W, 1, 'X', later).linearize()
    stamp(T, 5)
    T.append("s_nop 15")
    T.append("v_mov_b32 v236, 0x3db8aa3b")
    T.append("s_lshl_b32 s33, s35, 2"); T.append("s_lshl_b32 s34, s29, 1"); T.append("s_add_u32 s33, s33, s34"); T.append("s_lshl_b32 s33, s33, 13")
    T.append("s_lshl_b32 s34, s30, 10"); T.append("s_add_u32 s33, s33, s34")
    T.append("v_lshrrev_b32 v232, 4, v242"); T.append("v_lshlrev_b32 v232, 13, v232")
    T.append("v_and_b32 v233, 15, v242"); T.append("v_lshl_add_u32 v233, v241, 4, v233")
    T.append("v_lshl_add_u32 v232, v233, 4, v232"); T.append("v_add_u32 v232, s33, v232")
    for a in range(4):
        d = 244 if a % 2 == 0 else 0
        pack_swap(T, ACC[1]+16*a, d, scale="v[236:237]")
        T.append(f"s_mov_b32 s33, {a*2048}")
        for s in range(2):
            T.append(f"buffer_store_dwordx4 {vr(d+4*s,4)}, v232, s[24:27], s33 offen offset:{s*512}{ST}")
    finish(T, "K1_Q")

    W = Waiter(); T = []
    for s in range(8): W.issue('vm', ('X', s))
    dma_voff(T, True)
    T += cap(lambda e: (srd(e, 8, 's46', 's47', 0, 262144),
                        srd(e, 20, 's54', 's55', U_OFF, 8000*512), srd(e, 24, 's54', 's55', G_OFF, 8000*512)))
    emit = [(n, 8, n*32768 + 512) for n in range(8)]
    for (n, sn, so) in emit[:npre]: emit_tile(T, W, n, sn, so)
    xb_setup(T); vn_setup(T)
    ln(T, W, emit[npre:o['nln']])
    stamp(T, 2)
    gl = lambda n: (n, 8, (n-8)*32768)
    later = {2: [gl(8), gl(9)], 3: [gl(10), gl(11)], 4: [gl(12), gl(13)], 5: [gl(14), gl(15)]}
    rest = emit[o['nln']:]
    if rest:
        later[0] = rest[:2]; later[1] = rest[2:4]
    T += phase(W, 0, 'Y', later).linearize()
    stamp(T, 3)
    k0 = -2.0*1.4426950408889634*0.7978845608028654
    T.append(f"v_mov_b32 v232, {fb(k0)}"); T.append(f"v_mov_b32 v234, {fb(k0*0.044715)}"); T.append("v_mov_b32 v236, 1.0")
    for k in range(4): T.append(f"v_mov_b32 v{252+k}, 0")
    def gelu(r):
        t = 244 + 2*((r//2) % 4)
        X = f"v[{r}:{r+1}]"; Tt = f"v[{t}:{t+1}]"
        return [f"v_pk_mul_f32 {Tt}, {X}, {X}",
                f"v_pk_fma_f32 {Tt}, {Tt}, v[234:235], v[232:233] op_sel_hi:[1,0,0]",
                f"v_pk_mul_f32 {Tt}, {Tt}, {X}",
                f"v_exp_f32 v{t}, v{t}", f"v_exp_f32 v{t+1}, v{t+1}",
                f"v_pk_add_f32 {Tt}, {Tt}, v[236:237] op_sel_hi:[1,0]",
                f"v_rcp_f32 v{t}, v{t}", f"v_rcp_f32 v{t+1}, v{t+1}",
                f"v_pk_mul_f32 {X}, {X}, {Tt}",
                f"v_pk_add_f32 v[252:253], v[252:253], {X}",
                f"v_pk_fma_f32 v[254:255], {X}, {X}, v[254:255]"]
    fill = []
    g0 = ACC[0]
    for b in range(g0, g0+64, 8):
        cols = [gelu(b+2*k) for k in range(4)]
        for i in range(11):
            for k in range(4): fill.append(cols[k][i])
    T += phase(W, 1, 'Y', later, fill=fill, f0=4).linearize()
    stamp(T, 5)
    T.append("v_add_f32 v8, v252, v253"); T.append("v_add_f32 v10, v254, v255")
    T.append("v_mov_b32 v9, v8"); T.append("v_mov_b32 v11, v10"); T.append("s_nop 1")
    T.append("v_permlane32_swap_b32 v8, v9"); T.append("v_permlane32_swap_b32 v10, v11"); T.append("s_nop 1")
    T.append("v_add_f32 v8, v8, v9"); T.append("v_add_f32 v9, v10, v11")
    T.append("s_lshl_b32 s33, s29, 1"); T.append("s_add_u32 s33, s33, s30"); T.append("s_lshl_b32 s33, s33, 9")
    T.append("v_lshlrev_b32 v12, 3, v240"); T.append("v_add_u32 v13, s33, v12")
    T.append("s_xor_b32 s33, s33, 512"); T.append("v_add_u32 v14, s33, v12")
    T.append("ds_write_b64 v13, v[8:9]")
    for a in range(4):
        d = 244 if a % 2 == 0 else 16
        pack_swap(T, ACC[1]+16*a, d)
        for s in range(2):
            T.append(f"ds_write_b128 v{XB+2*a+s}, {vr(d+4*s,4)}")
    T.append("s_waitcnt lgkmcnt(0)"); T.append("s_barrier")
    T.append("ds_read_b64 v[10:11], v14")
    W.drain('lgkm')
    T.append("s_waitcnt lgkmcnt(0)")
    out_rows(T, W, 20, 'US', ACC[1])
    stamp(T, 6)
    T.append("v_add_f32 v8, v8, v10"); T.append("v_add_f32 v9, v9, v11")
    T.append("v_mul_f32 v8, 0x3b800000, v8"); T.append("v_mul_f32 v9, 0x3b800000, v9")
    T.append("v_fma_f32 v9, -v8, v8, v9"); T.append("v_max_f32 v9, 0, v9"); T.append("v_add_f32 v9, 0x3727c5ac, v9")
    T.append("v_rsq_f32 v10, v9"); T.append("s_nop 0")
    T.append("v_mul_f32 v12, v8, v10"); T.append("v_sub_f32 v12, 0, v12")
    for a in range(4):
        for k in range(8):
            r = g0 + 16*a + 2*k
            T.append(f"v_pk_fma_f32 v[{r}:{r+1}], v[{r}:{r+1}], v[10:11], v[12:13] op_sel_hi:[1,0,0]")
        pack_swap(T, g0+16*a, 16+8*a)
    T.append("s_barrier")
    for a in range(4):
        for s in range(2):
            T.append(f"ds_write_b128 v{XB+2*a+s}, {vr(16+8*a+4*s,4)}")
    T.append("s_waitcnt lgkmcnt(0)"); T.append("s_barrier")
    out_rows(T, W, 24, 'GS', ACC[0])
    stamp(T, 7)
    finish(T, "K1_UG")

    def wf_store(T, acc, which, slice_sreg):
        T.append(f"s_lshl_b32 s33, {slice_sreg}, 2"); T.append("s_lshl_b32 s34, s29, 1"); T.append("s_add_u32 s33, s33, s34"); T.append("s_lshl_b32 s33, s33, 14")
        T.append("s_lshl_b32 s34, s30, 10"); T.append("s_add_u32 s33, s33, s34")
        if which == 2: T.append("s_add_u32 s33, s33, 8192")
        T.append("v_lshrrev_b32 v232, 4, v242"); T.append("v_lshlrev_b32 v232, 14, v232")
        T.append("v_and_b32 v233, 15, v242"); T.append("v_lshl_add_u32 v233, v241, 4, v233")
        T.append("v_lshl_add_u32 v232, v233, 4, v232"); T.append("v_add_u32 v232, s33, v232")
        for a in range(4):
            d = 244; src = acc + 16*a
            if which == 1:
                for k, r in enumerate((0, 2, 8, 10, 4, 6, 12, 14)):
                    T.append(f"v_cvt_pk_bf16_f32 v{d+k}, v{src+r}, v{src+r+1}")
            else:
                pack_swap(T, src, d)
            T.append(f"s_mov_b32 s33, {a*2048}")
            for s in range(2):
                T.append(f"buffer_store_dwordx4 {vr(d+4*s,4)}, v232, s[24:27], s33 offen offset:{s*512}{ST}")
            T.append("s_nop 1")
    W = Waiter(); T = []
    dma_voff(T, False)
    T.append("s_sub_u32 s35, s2, 250")
    T += cap(lambda e: (srd(e, 16, 's52', 's53', 0, 262144), srd(e, 8, 's44', 's45', 0, 131072), srd(e, 12, 's42', 's43', 0, 131072),
                        srd(e, 24, 's54', 's55', WF_OFF, 262144)))
    narrow(T, W, 0, 's35')
    for n in range(3): emit_tile(T, W, n, 8, n*SLOT)
    ka_setup(T)
    narrow_read(T, W)
    for n in range(3, 8): emit_tile(T, W, n, 8, n*SLOT)
    later = std_later(12)
    T += phase(W, 0, 'X', later).linearize()
    T.append("s_barrier")
    exchange(T, W, ACC[0], 'X')
    T += phase(W, 1, 'X', later).linearize()
    T.append("s_nop 15")
    wf_store(T, ACC[1], 1, 's35')
    finish(T, "K1_W1")

    W = Waiter(); T = []
    if not FUSED: T += cap(lambda e: srd(e, 20, 's54', 's55', FL_OFF, 8192))
    if not FUSED:
        T.append("v_lshlrev_b32 v232, 5, v0")
        for k in range(4): T.append(f"v_mov_b32 v{236+k}, 0")
        T.append("buffer_store_dwordx4 v[236:239], v232, s[20:23], 0 offen sc1")
        T.append("buffer_store_dwordx4 v[236:239], v232, s[20:23], 0 offen offset:16 sc1")
        W.issue('vm', 'Z0'); W.issue('vm', 'Z1')
    dma_voff(T, False)
    T.append("s_sub_u32 s35, s2, 254"); T.append("s_lshl_b32 s35, s35, 1")
    T += cap(lambda e: (srd(e, 16, 's52', 's53', 0, 262144), srd(e, 8, 's50', 's51', 0, 131072),
                        srd(e, 24, 's54', 's55', WF_OFF, 262144)))
    narrow(T, W, 131072, 's35')
    for n in range(3): emit_tile(T, W, n, 8, n*SLOT)
    ka_setup(T)
    narrow_read(T, W)
    for n in range(3, 8): emit_tile(T, W, n, 8, n*SLOT)
    T.append("s_barrier")
    T.append("s_add_u32 s56, s35, 1")
    narrow(T, W, 131072, 's56')
    later = std_later(8)
    T += phase(W, 0, 'X', later).linearize()
    T.append("s_nop 15")
    wf_store(T, ACC[0], 2, 's35')
    for i in range(8): W.issue('vm', ('WS', i))
    narrow_read(T, W)
    T += phase(W, 1, 'X', later).linearize()
    T.append("s_nop 15")
    wf_store(T, ACC[1], 2, 's56')
    finish(T, "K1_W2")

    e("K1_FIN:")
    if FUSED:
        if o['stamp']:
            e("s_waitcnt vmcnt(0)"); e("s_memtime s[64:65]"); e("s_memrealtime s[66:67]"); e("s_waitcnt lgkmcnt(0)")
            e("s_cmp_eq_u32 s28, 0"); e("s_cbranch_scc0 K1_NOST")
            e("s_add_u32 s68, s54, 0x8100000"); e("s_addc_u32 s69, s55, 0"); e("s_mov_b32 s70, 0x100000"); e("s_mov_b32 s71, 0x20000")
            for k, r in enumerate([60, 64, 62, 66]): e(f"v_mov_b32 v{232+k}, s{r}")
            e("s_lshl_b32 s33, s2, 4"); e("v_mov_b32 v236, s33")
            e("buffer_store_dwordx4 v[232:235], v236, s[68:71], 0 offen")
            for k in range(8): e(f"v_mov_b32 v{244+k}, s{72+2*k}")
            e("s_lshl_b32 s33, s2, 5"); e("s_add_u32 s33, s33, 0x10000"); e("v_mov_b32 v236, s33")
            e("buffer_store_dwordx4 v[244:247], v236, s[68:71], 0 offen")
            e("buffer_store_dwordx4 v[248:251], v236, s[68:71], 0 offen offset:16")
            e("K1_NOST:")
        e("K1_TAGP:")
        e("buffer_load_dword v232, off, s[4:7], 0 sc1")
        e("s_waitcnt vmcnt(0) lgkmcnt(0)")
        e("v_readfirstlane_b32 s3, v232")
        e("s_nop 3")
        e("s_cmp_lg_u32 s3, 0"); e("s_cbranch_scc1 K1_TAGD"); e("s_sleep 1"); e("s_branch K1_TAGP")
        e("K1_TAGD:")
        e("s_barrier")
        e("s_cmp_eq_u32 s28, 0"); e("s_cbranch_scc0 K1_NOFL")
        e("s_lshl_b32 s33, s2, 7")
        fa, fb_ = (FLU, FLQ) if o.get('ugfirst', True) else (FLQ, FLU)
        if CT:
            e(f"s_add_u32 s34, s33, {FLU}")
        else:
            e(f"s_add_u32 s34, s33, {fa}")
            e(f"s_add_u32 s56, s33, {fb_ - 125*128}"); e("s_cmp_ge_u32 s2, 125"); e("s_cselect_b32 s34, s56, s34")
        e(f"s_add_u32 s56, s33, {FLW - 250*128}"); e("s_cmp_ge_u32 s2, 250"); e("s_cselect_b32 s34, s56, s34")
        srd(e, 8, 's54', 's55', FL_OFF, FL_SIZE)
        e("v_mov_b32 v232, s3")
        e("v_cmp_eq_u32 vcc, 0, v240"); e("s_and_saveexec_b64 s[56:57], vcc")
        e("buffer_store_dword v232, off, s[8:11], s34 sc1")
        if CT:
            e(f"s_add_u32 s34, s33, {FLQ}"); e("s_cmp_lt_u32 s2, 250"); e("s_cbranch_scc0 K1_NOFL2")
            e("buffer_store_dword v232, off, s[8:11], s34 sc1")
            e("K1_NOFL2:")
        e("s_mov_b64 exec, s[56:57]")
        e("K1_NOFL:")
        e("s_mov_b32 s48, s28")
        return L, [], []
    if o['stamp']:
        e("s_waitcnt vmcnt(0)")
        e("s_memtime s[64:65]"); e("s_memrealtime s[66:67]")
        e("s_waitcnt lgkmcnt(0)")
        e("s_cmp_eq_u32 s28, 0"); e("s_cbranch_scc0 K1_END")
        e("s_add_u32 s68, s54, 0x8100000"); e("s_addc_u32 s69, s55, 0"); e("s_mov_b32 s70, 0x100000"); e("s_mov_b32 s71, 0x20000")
        for k, r in enumerate([60, 64, 62, 66]): e(f"v_mov_b32 v{232+k}, s{r}")
        e("s_lshl_b32 s33, s2, 4"); e("v_mov_b32 v236, s33")
        e("buffer_store_dwordx4 v[232:235], v236, s[68:71], 0 offen")
        for k in range(8): e(f"v_mov_b32 v{244+k}, s{72+2*k}")
        e("s_lshl_b32 s33, s2, 5"); e("s_add_u32 s33, s33, 0x10000"); e("v_mov_b32 v236, s33")
        e("buffer_store_dwordx4 v[244:247], v236, s[68:71], 0 offen")
        e("buffer_store_dwordx4 v[248:251], v236, s[68:71], 0 offen offset:16")
    e("K1_END:")
    e("s_endpgm")
    return L, kernel_desc(name, 288, 256), []
```

```python
from gen_common import *
import hazard, struct
SLOT = 16384
M16 = "v_mfma_f32_16x16x32_bf16"
fb = lambda x: hex(struct.unpack('<I', struct.pack('<f', x))[0])
EXT = 131072
MX = EXT
OWN = EXT + 4096
OWNML = EXT + 20480
ACT = 0

def gen_k2f(opt=None):
    o = dict(DF=3, stamp=False, bslot=8, dma0=10, dmastep=4, e0=37, e1=93, estep=4, cvtd=1, addd=1, fused=True)
    if opt: o.update(opt)
    name = 'attn_kernel'
    L = []; e = L.append
    O = 0; S = 128; P = [160, 176]; NEGM = 192; RING = 208; KA = 232; VA = 236; DV = 244; LS = 248; MREF = 252
    aQ = 0; aO = 128
    def Oreg(dt, qt): return vr(O + (dt*2+qt)*4, 4) if qt < 2 else ar(aO + (dt*2+qt-2)*4, 4)
    def Sreg(kt, qt): return S + (kt*4+qt)*4
    FUSED = o.get('fusedk')
    CS = ' sc1' if (FUSED and o.get('csc1', True)) else ''
    if not FUSED:
        L += kernel_header(name)
        e("s_cmp_ge_u32 s2, 256")
        e("s_cbranch_scc1 K2_END")
    e("s_load_dwordx2 s[4:5], s[0:1], 88")
    e("s_load_dwordx2 s[6:7], s[0:1], 80")
    e("s_load_dwordx2 s[36:37], s[0:1], 0")
    e("s_load_dwordx2 s[32:33], s[0:1], 48")
    e("s_load_dwordx2 s[40:41], s[0:1], 72")
    if o['stamp']:
        e("s_memtime s[72:73]"); e("s_memrealtime s[74:75]")
    T = []; t = T.append
    if FUSED:
        t("v_mbcnt_lo_u32_b32 v131, -1, 0"); t("v_mbcnt_hi_u32_b32 v131, -1, v131")
    else:
        t("v_lshrrev_b32 v130, 6, v0")
        t("v_and_b32 v131, 63, v0")
        t("v_readfirstlane_b32 s48, v130")
    t("s_and_b32 s60, s2, 7")
    t("s_lshr_b32 s61, s2, 3")
    t("s_lshr_b32 s51, s60, 2")
    t("s_and_b32 s53, s61, 3")
    t("s_lshr_b32 s61, s61, 2")
    t("s_and_b32 s52, s60, 3")
    t("s_lshl_b32 s52, s52, 3")
    t("s_add_u32 s52, s52, s61")
    t("s_and_b32 s49, s48, 1")
    t("s_lshr_b32 s50, s48, 1")
    t("s_lshl_b32 s54, s53, 5")
    t("s_lshl_b32 s60, s50, 4")
    t("s_add_u32 s54, s54, s60")
    t("s_max_u32 s60, s53, 1")
    t("s_sub_u32 s60, s60, 1")
    t("s_sub_u32 s54, s54, s60")
    t("s_min_u32 s60, s53, 1")
    t("s_and_b32 s60, s60, s50")
    t("s_sub_u32 s55, 16, s60")
    t("s_lshl_b32 s55, s55, 14")
    t("s_cmp_eq_u32 s60, 1")
    t("s_cselect_b32 s59, 3, 0xffff")
    t("s_lshl_b32 s54, s54, 14")
    t("s_mul_i32 s60, s51, 2048000")
    t("s_add_u32 s54, s54, s60")
    def dv_setup(t):
        t("v_and_b32 v132, 15, v131")
        t("v_lshrrev_b32 v133, 4, v131")
        t("v_lshrrev_b32 v134, 5, v131")
        t("v_and_b32 v135, 31, v131")
        t("s_lshl_b32 s60, s49, 13")
        for k in range(4):
            t(f"v_add_u32 v136, {2*k}, v134")
            t("v_lshlrev_b32 v136, 1, v136")
            t("v_xor_b32 v136, v135, v136")
            t("v_lshlrev_b32 v136, 4, v136")
            t("v_lshl_add_u32 v136, v134, 9, v136")
            t(f"v_add_u32 v{DV+k}, s60, v136")
    dv_setup(t)
    t("s_waitcnt lgkmcnt(0)")
    def S_(fn):
        buf = []; fn(buf.append); T.extend(buf)
    S_(lambda e: srd(e, 8, 's4', 's5', 's54', 's55'))
    S_(lambda e: srd(e, 12, 's4', 's5', QF_OFF, 500*8192))
    t("s_getreg_b32 s63, hwreg(HW_REG_XCC_ID, 0, 3)")
    t("s_or_b32 s63, s63, 8")
    S_(lambda e: srd(e, 44, 's4', 's5', FL_OFF, FL_SIZE if FUSED else 8192))
    t("s_lshl_b32 s65, s51, 5"); t("s_add_u32 s65, s65, s52")
    xcc0 = len(T)
    t("s_cmp_eq_u32 s48, 0"); t("s_cbranch_scc0 K2_NOXCC")
    t("s_lshl_b32 s60, s65, 7"); t("s_lshl_b32 s61, s53, 2"); t("s_add_u32 s60, s60, s61")
    if FUSED:
        t("s_add_u32 s60, s60, 16"); t("s_xor_b32 s61, s63, s3"); t("v_mov_b32 v137, s61")
    else:
        t("v_mov_b32 v137, s63")
    t("v_cmp_eq_u32 vcc, 0, v131"); t("s_and_saveexec_b64 s[70:71], vcc")
    t("buffer_store_dword v137, off, s[44:47], s60 sc1")
    t("s_mov_b64 exec, s[70:71]")
    t("K2_NOXCC:")
    xcc_blk = T[xcc0:]
    if FUSED: del T[xcc0:]
    t("s_lshl_b32 s56, s50, 16"); t("s_lshl_b32 s60, s49, 13"); t("s_add_u32 s56, s56, s60")
    t("s_mov_b32 s57, 0"); t("s_mov_b32 s54, 0")
    def cap_(fn):
        buf = []; fn(buf.append); return buf
    def dma_lines(slot):
        r = []
        for k in range(8):
            if k % 4 == 0:
                r.append((f"s_add_u32 m0, s56, {slot*SLOT + (k//4)*4096:#x}", False))
                if k: r.append(("s_add_u32 s57, s57, 4096", False))
                else: r.append(("s_nop 0", False))
            r.append((f"buffer_load_dwordx4 v{DV+k%4}, s[8:11], s57 offen offset:{(k%4)*1024}{CS} lds", True))
        r.append((f"s_add_u32 s57, s57, {SLOT-4096}", False))
        return r
    pre_dma = len(T)
    for txt, _ in dma_lines(0): t(txt)
    QST = [49152, 114688, 131072, 147456]
    def q_dma(t):
        t("v_lshlrev_b32 v137, 4, v131")
        t("s_mul_i32 s60, s51, 250"); t("s_lshl_b32 s61, s52, 3"); t("s_add_u32 s60, s60, s61")
        t("s_lshl_b32 s61, s48, 1"); t("s_add_u32 s60, s60, s61"); t("s_lshl_b32 s60, s60, 13")
        t("s_lshl_b32 s61, s48, 14"); t("s_add_u32 s61, s61, 98304"); t("s_cmp_eq_u32 s48, 0"); t("s_cselect_b32 s61, 49152, s61")
        for g in range(4):
            t(f"s_add_u32 m0, s61, {g*4096}")
            if g: t("s_add_u32 s60, s60, 4096")
            else: t("s_nop 0")
            for k in range(4):
                t(f"buffer_load_dwordx4 v137, s[12:15], s60 offen offset:{k*1024}{CS} lds")
    def q_read(t):
        t("v_lshlrev_b32 v137, 4, v131")
        for qt in range(4):
            t(f"s_lshl_b32 s60, s50, 1"); t(f"s_add_u32 s60, s60, {qt}"); t("s_and_b32 s60, s60, 3")
            t("s_lshl_b32 s61, s49, 2"); t("s_add_u32 s60, s60, s61")
            t("s_lshr_b32 s61, s60, 1"); t("s_lshl_b32 s62, s61, 14"); t("s_add_u32 s62, s62, 98304")
            t("s_cmp_eq_u32 s61, 0"); t("s_cselect_b32 s62, 49152, s62")
            t("s_and_b32 s60, s60, 1"); t("s_lshl_b32 s60, s60, 13"); t("s_add_u32 s62, s62, s60")
            t(f"v_add_u32 v{140+qt}, s62, v137")
    def q_read2(t):
        for j in range(8):
            for qt in range(4):
                t(f"ds_read_b128 {ar(aQ+(qt*8+j)*4,4)}, v{140+qt} offset:{j*1024}")
    q_dma(t)
    for n in (1, 2):
        for txt, _ in dma_lines(n): t(txt)
    def kava_setup(t):
        t("v_and_b32 v136, 7, v132"); t("v_lshlrev_b32 v136, 1, v136")
        t("v_lshlrev_b32 v138, 9, v132")
        t("s_lshl_b32 s60, s50, 16"); t("v_add_u32 v138, s60, v138")
        for jj in range(4):
            t(f"v_add_u32 v139, {4*jj}, v133")
            t("v_xor_b32 v139, v139, v136")
            t(f"v_lshl_add_u32 v{KA+jj}, v139, 4, v138")
        t("v_lshrrev_b32 v136, 2, v132")
        t("v_lshl_add_u32 v136, v133, 2, v136")
        t("v_lshlrev_b32 v138, 9, v136")
        t("v_add_u32 v138, s60, v138")
        t("v_and_b32 v139, 1, v132"); t("v_lshl_add_u32 v138, v139, 3, v138")
        t("v_and_b32 v136, 7, v136"); t("v_lshlrev_b32 v136, 1, v136")
        t("v_bfe_u32 v139, v132, 1, 1")
        for dd in range(8):
            t(f"v_add_u32 v140, {2*dd}, v139")
            t("v_xor_b32 v140, v140, v136")
            t(f"v_lshl_add_u32 v{VA+dd}, v140, 4, v138")
    t("@KAVA")
    kava_setup(t)
    for r in range(128): t(f"v_mov_b32 v{O+r}, 0")
    for r in range(128): t(f"v_accvgpr_write_b32 a{aO+r}, 0")
    for k in range(4): t(f"v_mov_b32 v{LS+k}, 0")
    t("s_mov_b32 s58, 0")
    q_read(t)
    if FUSED:
        i_kava = T.index("@KAVA")
        loads = T[pre_dma:i_kava]
        rest = T[i_kava+1:]
        T[:] = T[:pre_dma]
        if o.get('ct'):
            t("s_lshl_b32 s60, s53, 5"); t("s_max_u32 s61, s53, 1"); t("s_sub_u32 s61, s61, 1"); t("s_sub_u32 s60, s60, s61")
            t("s_lshl_b32 s62, s52, 2"); t("s_sub_u32 s62, s62, 32")
            t("v_add_u32 v150, s60, v131"); t("v_add_u32 v151, s62, v131")
            t("v_cmp_gt_u32 vcc, 32, v131"); t("s_nop 1"); t("v_cndmask_b32 v150, v151, v150, vcc")
            t("s_lshl_b32 s62, s52, 2"); t("v_mov_b32 v151, s62")
            t("v_cmp_gt_u32 vcc, 36, v131"); t("s_nop 1"); t("v_cndmask_b32 v150, v151, v150, vcc")
            t("v_min_u32 v150, 124, v150")
            t("s_mul_i32 s61, s51, 125"); t("v_add_u32 v150, s61, v150")
        else:
            t("s_lshl_b32 s60, s53, 5"); t("s_max_u32 s61, s53, 1"); t("s_sub_u32 s61, s61, 1"); t("s_sub_u32 s60, s60, s61")
            t("s_lshl_b32 s60, s60, 5"); t("s_mul_i32 s61, s51, 4000"); t("s_add_u32 s60, s60, s61"); t("s_lshr_b32 s60, s60, 6")
            t("s_lshl_b32 s62, s52, 7"); t("s_add_u32 s62, s62, s61"); t("s_lshr_b32 s62, s62, 6")
            t("v_add_u32 v150, s60, v131")
            t("v_add_u32 v151, s62, v131"); t("v_subrev_u32 v151, 18, v151")
            t("v_cmp_gt_u32 vcc, 18, v131"); t("s_nop 1"); t("v_cndmask_b32 v150, v151, v150, vcc")
            t("v_mov_b32 v151, s62")
            t("v_cmp_gt_u32 vcc, 21, v131"); t("s_nop 1"); t("v_cndmask_b32 v150, v151, v150, vcc")
            t("v_min_u32 v150, 124, v150")
        t("v_lshlrev_b32 v150, 7, v150"); t(f"v_add_u32 v150, {FLQ}, v150")
        if o.get('wfpf', False):
            t("v_subrev_u32 v151, 40, v131"); t("v_lshlrev_b32 v152, 7, v151"); t(f"v_add_u32 v152, {FLW}, v152")
            t("v_cmp_gt_u32 vcc, 6, v151"); t("s_nop 1"); t("v_cndmask_b32 v150, v150, v152, vcc")
        t("K2_QP:")
        t("buffer_load_dword v151, v150, s[44:47], 0 offen sc1")
        t("s_waitcnt vmcnt(0)")
        t("v_cmp_ne_u32 vcc, s3, v151")
        t("s_nop 1")
        t("s_cmp_eq_u64 vcc, 0"); t("s_cbranch_scc1 K2_QD"); t("s_sleep 1"); t("s_branch K2_QP")
        t("K2_QD:")
        T.extend(loads)
        if o.get('wfpf', False):
            T.extend(cap_(lambda e: srd(e, 16, 's4', 's5', WF_OFF, 262144)))
            t("s_lshr_b32 s60, s2, 3"); t("s_lshl_b32 s60, s60, 13"); t("s_lshl_b32 s61, s48, 11"); t("s_add_u32 s60, s60, s61")
            t("v_lshlrev_b32 v150, 4, v131")
            t("buffer_load_dwordx4 v[224:227], v150, s[16:19], s60 offen sc1")
            t("buffer_load_dwordx4 v[228:231], v150, s[16:19], s60 offen offset:1024 sc1")
        T.extend(xcc_blk)
        T.extend(rest)
    else:
        T.remove("@KAVA")
    t("s_waitcnt vmcnt(18)" if (FUSED and o.get('wfpf', False)) else "s_waitcnt vmcnt(16)")
    t("s_barrier")
    if o['stamp']: t("s_memtime s[76:77]"); t("s_memrealtime s[78:79]"); t("s_waitcnt lgkmcnt(0)")
    q_read2(t)
    L += hazard.autofix(T)
    DF = o['DF']
    ev = []; seq = [0]
    def add(tm, kind, prio=5, **kw):
        seq[0] += 1; ev.append((tm, prio, seq[0], kind, kw))
    def TT(i, n): return 128*i + n
    NT = 16
    for n in range(NT):
        slot = n % 4
        for kt in range(2):
            for j in range(8):
                f = 8*kt + j
                tm = TT(n-1, 4*f); tr = tm - 4*DF
                ring = RING + 4*(f % 4)
                off = slot*SLOT + kt*8192 + (j >> 2)*256
                add(tr, 'lds', prio=2, text=f"ds_read_b128 {vr(ring,4)}, v{KA+(j&3)} offset:{off}", tag=('K', n, f))
                if n < NT:
                    for qt in range(4):
                        acc = vr(Sreg(kt, qt), 4)
                        c = acc if j else ('0' if n == 0 else vr(NEGM+4*qt, 4))
                        add(tm+qt, 'mfma', prio=0, text=f"{M16} {acc}, {vr(ring,4)}, {ar(aQ+(qt*8+j)*4,4)}, {c}",
                            need=([('K', n, f)] if qt == 0 else []) + ([('Q', qt, j)] if n == 0 else []))
    for n in range(NT):
        slot = n % 4
        for dt in range(16):
            f = 16 + dt
            tm = TT(n, 4*f); tr = tm - 4*DF
            ring = RING + 4*(f % 4)
            for u in range(2):
                off = slot*SLOT + u*8192 + (dt >> 3)*256
                add(tr, 'lds', prio=2, text=f"ds_read_b64_tr_b16 {vr(ring+2*u,2)}, v{VA+(dt&7)} offset:{off}", tag=('V', n, dt, u))
            for qt in range(4):
                add(tm+qt, 'mfma', prio=0, text=f"{M16} {Oreg(dt,qt)}, {vr(ring,4)}, {vr(P[n%2]+4*qt,4)}, {Oreg(dt,qt)}",
                    need=[('V', n, dt, 0), ('V', n, dt, 1)] if qt == 0 else [])
        for kt in range(2):
            for el in range(16 if o.get('valu', True) else 0):
                qt, r = el >> 2, el & 3
                te = TT(n-1, (o['e0'] if kt == 0 else o['e1']) + o['estep']*el)
                reg = Sreg(kt, qt) + r
                add(te, 'valu', prio=3, text=f"v_exp_f32 v{reg}, v{reg}")
                add(te+o['addd'], 'valu', prio=3, text=f"v_add_f32 v{LS+qt}, v{LS+qt}, v{reg}")
                if r % 2 == 1:
                    add(te+o['cvtd'], 'valu', prio=4, text=f"v_cvt_pk_bf16_f32 v{P[n%2]+4*qt+2*kt+r//2}, v{reg-1}, v{reg}")
    for i in range(-1, NT-2):
        add(TT(i, o['bslot']), 'bar', prio=6, it=i)
        if i >= 0 and i + 3 < NT and o.get('dma', True):
            k = 0
            for txt, vm in dma_lines((i+3) % 4):
                tm = TT(i, o['dma0'] + o['dmastep']*k)
                if vm:
                    add(tm, 'dma', prio=7, text=txt, tile=i+3); k += 1
                else:
                    add(tm if k < 8 else TT(i, o['dma0'] + o['dmastep']*7), 'salu', prio=6 if k < 8 else 8, text=txt)
    tail_ev = []
    ev.sort(key=lambda x: (x[0], x[1], x[2]))
    W = Waiter()
    for n in (1, 2):
        for k in range(8): W.issue('vm', ('T', n))
    if FUSED and o.get('wfpf', False):
        W.issue('vm', 'PF0'); W.issue('vm', 'PF1')
    for j in range(8):
        for qt in range(4): W.issue('lgkm', ('Q', qt, j))
    its = {}
    for x in ev:
        tm, _, _, kind, kw = x
        it = max(tm // 128, -1)
        out = its.setdefault(it, [])
        if kind == 'mfma':
            n = W.need('lgkm', kw['need'])
            if n is not None: out.append(f"s_waitcnt lgkmcnt({n})")
            out.append(kw['text'])
            if tm == TT(-1, 63):
                out.append("@FIXUP")
        elif kind == 'lds':
            out.append(kw['text']); W.issue('lgkm', kw['tag'])
        elif kind == 'bar':
            n = W.need('vm', [('T', kw['it']+2)])
            if n is not None: out.append(f"s_waitcnt vmcnt({n})")
            if o.get('barrier', True) or kw['it'] < 0: out.append("s_barrier")
        elif kind == 'dma':
            out.append(kw['text']); W.issue('vm', ('T', kw['tile']))
        else:
            out.append(kw['text'])
    for i in range(8, 13):
        assert its[i] == its[i-4], (i, [(a, b) for a, b in zip(its[i], its[i-4]) if a != b][:5])
    pro = its[-1]
    fi = pro.index("@FIXUP")
    if not o.get('valu', True):
        its[15] = its[15] + ["v_add_f32 v248, v248, v248"]
    pre_valu = [x for x in pro[:fi] if x.startswith('v_exp') or x.startswith('v_add_f32') or x.startswith('v_cvt')]
    pro_a = [x for x in pro[:fi] if x not in pre_valu or not (x.startswith('v_exp') or x.startswith('v_add_f32') or x.startswith('v_cvt'))]
    fix = []
    fx = fix.append
    fx("s_nop 7")
    for qt in range(4):
        a, b = Sreg(0, qt), Sreg(1, qt)
        fx(f"v_max3_f32 v{NEGM+qt}, v{a}, v{a+1}, v{a+2}")
        fx(f"v_max3_f32 v{NEGM+qt}, v{NEGM+qt}, v{a+3}, v{b}")
        fx(f"v_max3_f32 v{NEGM+qt}, v{NEGM+qt}, v{b+1}, v{b+2}")
        fx(f"v_max_f32 v{NEGM+qt}, v{NEGM+qt}, v{b+3}")
    for sw in ("v_permlane16_swap_b32", "v_permlane32_swap_b32"):
        for qt in range(4): fx(f"v_mov_b32 v{NEGM+4+qt}, v{NEGM+qt}")
        fx("s_nop 1")
        for qt in range(4): fx(f"{sw} v{NEGM+qt}, v{NEGM+4+qt}")
        fx("s_nop 1")
        for qt in range(4): fx(f"v_max_f32 v{NEGM+qt}, v{NEGM+qt}, v{NEGM+4+qt}")
    fx("v_mbcnt_lo_u32_b32 v254, -1, 0"); fx("v_mbcnt_hi_u32_b32 v254, -1, v254")
    fx("v_lshlrev_b32 v254, 4, v254")
    fx(f"s_lshl_b32 s60, s48, 10"); fx(f"s_add_u32 s60, s60, {MX}")
    fx("v_add_u32 v255, s60, v254")
    fx(f"ds_write_b128 v255, {vr(NEGM,4)}")
    fx("s_xor_b32 s60, s60, 2048")
    fx("v_add_u32 v255, s60, v254")
    fx("s_waitcnt lgkmcnt(0)")
    fx("s_barrier")
    fx(f"ds_read_b128 {vr(NEGM+4,4)}, v255")
    fx("s_waitcnt lgkmcnt(0)")
    for qt in range(4): fx(f"v_max_f32 v{NEGM+8+qt}, v{NEGM+qt}, v{NEGM+4+((qt+2)&3)}")
    fx(f"v_mov_b32 v{MREF}, v{NEGM+8}"); fx(f"v_mov_b32 v{MREF+1}, v{NEGM+9}")
    for kt in range(2):
        for qt in range(4):
            for r in range(4): fx(f"v_sub_f32 v{Sreg(kt,qt)+r}, v{Sreg(kt,qt)+r}, v{NEGM+8+qt}")
    for qt in range(4): fx(f"v_mov_b32 v{254}, v{NEGM+8+qt}") if False else None
    for qt in (3, 1, 0):
        for r in range(4): fx(f"v_sub_f32 v{NEGM+4*qt+r}, 0, v{NEGM+8+qt}") if qt != 2 else None
    fx(f"v_sub_f32 v254, 0, v{NEGM+10}")
    for r in range(4): fx(f"v_mov_b32 v{NEGM+8+r}, v254")
    L += hazard.autofix(pro_a + fix + pre_valu + pro[fi+1:])
    if o['stamp']:
        e("s_memtime s[24:25]")
    e("K2_LOOP:")
    body = {u: its[4+u] for u in range(4)}
    L += body[0]
    e("s_cmp_eq_u32 s58, 3")
    e("s_cbranch_scc1 K2_EPI")
    L += body[1]; L += body[2]; L += body[3]
    e("s_add_u32 s58, s58, 1")
    e("s_branch K2_LOOP")
    e("K2_EPI:")
    if o['stamp']:
        e("s_memtime s[26:27]"); e("s_waitcnt lgkmcnt(0)"); e("s_sub_u32 s101, s26, s24"); e("s_sub_u32 s100, s24, s76")
    if FUSED:
        pre13 = []
        p = pre13.append
        p("s_lshl_b32 s60, s52, 7"); p("s_lshl_b32 s61, s53, 5"); p("s_add_u32 s60, s60, s61"); p("s_min_u32 s60, s60, 3968")
        p("s_mul_i32 s61, s51, 4000"); p("s_add_u32 s60, s60, s61")
        sh = 5 if o.get('ct') else 6
        if o.get('ct'):
            p("s_lshr_b32 s62, s60, 5")
        p("s_max_u32 s61, s60, 2"); p("s_sub_u32 s61, s61, 2"); p(f"s_lshr_b32 s61, s61, {sh}")
        p("s_add_u32 s60, s60, 33"); p("s_min_u32 s60, s60, 7999"); p(f"s_lshr_b32 s60, s60, {sh}")
        p("v_mbcnt_lo_u32_b32 v224, -1, 0"); p("v_mbcnt_hi_u32_b32 v224, -1, v224")
        p("v_min_u32 v225, 7, v224"); p("v_lshlrev_b32 v225, 7, v225"); p(f"v_add_u32 v225, {FLW - 256}, v225")
        p("s_lshl_b32 s61, s61, 7"); p(f"s_add_u32 s61, s61, {FLU}"); p("v_mov_b32 v226, s61")
        p("v_cmp_eq_u32 vcc, 0, v224"); p("s_nop 1"); p("v_cndmask_b32 v225, v225, v226, vcc")
        p("s_lshl_b32 s60, s60, 7"); p(f"s_add_u32 s60, s60, {FLU}"); p("v_mov_b32 v226, s60")
        p("v_cmp_eq_u32 vcc, 1, v224"); p("s_nop 1"); p("v_cndmask_b32 v225, v225, v226, vcc")
        if o.get('ct'):
            p("s_lshl_b32 s62, s62, 7"); p(f"s_add_u32 s62, s62, {FLU}"); p("v_mov_b32 v226, s62")
            p("v_cmp_eq_u32 vcc, 8, v224"); p("s_nop 1"); p("v_cndmask_b32 v225, v225, v226, vcc")
        p("buffer_load_dword v226, v225, s[44:47], 0 offen sc1")
        L += hazard.autofix(pre13)
        i13 = list(its[13])
        bi = i13.index("s_barrier")
        assert i13[bi-1] == "s_waitcnt vmcnt(0)", i13[bi-3:bi+1]
        i13[bi-1] = "s_waitcnt vmcnt(1)"
        chk = ["s_waitcnt vmcnt(0)", "K2_TP:", "v_cmp_ne_u32 vcc, s3, v226", "s_nop 1", "s_cmp_eq_u64 vcc, 0", "s_cbranch_scc1 K2_TD", "s_sleep 1",
               "buffer_load_dword v226, v225, s[44:47], 0 offen sc1", "s_waitcnt vmcnt(0)", "s_branch K2_TP", "K2_TD:"]
        L += i13 + chk
    else:
        L += its[13]
    e("s_cmp_eq_u32 s59, 3")
    e("s_cbranch_scc0 K2_NOMASK")
    for r in range(16): e(f"v_mov_b32 v{NEGM+r}, 0xf149f2ca")
    e("s_nop 1")
    e("K2_NOMASK:")
    import gen_tail
    tail, resume = gen_tail.gen_tail(o, its[14], its[15], W)
    L += tail
    e("s_branch K2_END")
    T = []; t = T.append
    M_, MN, AL = NEGM, NEGM + 4, NEGM + 8
    t("K2_SLOW:")
    t("s_mov_b32 s54, 1")
    t("s_waitcnt vmcnt(0) lgkmcnt(0)")
    t("s_barrier")
    t("v_mbcnt_lo_u32_b32 v131, -1, 0"); t("v_mbcnt_hi_u32_b32 v131, -1, v131")
    dv_setup(t)
    S_2 = lambda fn: (lambda b: (fn(b.append), T.extend(b)))([])
    S_2(lambda e: srd(e, 12, 's4', 's5', QF_OFF, 500*8192))
    q_dma(t)
    kava_setup(t)
    for r in range(128): t(f"v_mov_b32 v{O+r}, 0")
    for r in range(128): t(f"v_accvgpr_write_b32 a{aO+r}, 0")
    for k in range(4): t(f"v_mov_b32 v{LS+k}, 0"); t(f"v_mov_b32 v{M_+k}, 0xf149f2ca")
    t("s_lshl_b32 s56, s50, 16"); t("s_lshl_b32 s60, s49, 13"); t("s_add_u32 s56, s56, s60")
    t("s_mov_b32 s57, 0"); t("s_mov_b32 s58, 0")
    t("s_waitcnt vmcnt(0)")
    t("s_barrier")
    q_read(t); q_read2(t)
    t("s_waitcnt lgkmcnt(0)")
    t("K2_SL_LOOP:")
    t("s_barrier")
    for txt, _ in dma_lines(0): t(txt)
    t("s_waitcnt vmcnt(0)")
    t("s_barrier")
    t("s_lshl_b32 s60, s58, 14"); t("s_cmp_lt_u32 s60, s55")
    t("s_cbranch_scc0 K2_SL_NEXT")
    for kt in range(2):
        for j in range(8):
            t(f"ds_read_b128 {vr(RING,4)}, v{KA+(j&3)} offset:{kt*8192 + (j>>2)*256}")
            t("s_waitcnt lgkmcnt(0)")
            for qt in range(4):
                acc = vr(Sreg(kt, qt), 4)
                t(f"{M16} {acc}, {vr(RING,4)}, {ar(aQ+(qt*8+j)*4,4)}, {acc if j else '0'}")
            t("s_nop 3")
    t("s_nop 7")
    for qt in range(4):
        a, b = Sreg(0, qt), Sreg(1, qt)
        t(f"v_max3_f32 v{MN+qt}, v{a}, v{a+1}, v{a+2}")
        t(f"v_max3_f32 v{MN+qt}, v{MN+qt}, v{a+3}, v{b}")
        t(f"v_max3_f32 v{MN+qt}, v{MN+qt}, v{b+1}, v{b+2}")
        t(f"v_max3_f32 v{MN+qt}, v{MN+qt}, v{b+3}, v{M_+qt}")
    for sw in ("v_permlane16_swap_b32", "v_permlane32_swap_b32"):
        for qt in range(4): t(f"v_mov_b32 v{AL+qt}, v{MN+qt}")
        t("s_nop 1")
        for qt in range(4): t(f"{sw} v{MN+qt}, v{AL+qt}")
        t("s_nop 1")
        for qt in range(4): t(f"v_max_f32 v{MN+qt}, v{MN+qt}, v{AL+qt}")
    for qt in range(4):
        t(f"v_sub_f32 v{AL+qt}, v{M_+qt}, v{MN+qt}"); t(f"v_exp_f32 v{AL+qt}, v{AL+qt}"); t(f"v_mov_b32 v{M_+qt}, v{MN+qt}")
    t("s_nop 0")
    for qt in range(4):
        t(f"v_mul_f32 v{LS+qt}, v{LS+qt}, v{AL+qt}")
        for kt in range(2):
            for r in range(4):
                reg = Sreg(kt, qt) + r
                t(f"v_sub_f32 v{reg}, v{reg}, v{M_+qt}"); t(f"v_exp_f32 v{reg}, v{reg}"); t("s_nop 0")
                t(f"v_add_f32 v{LS+qt}, v{LS+qt}, v{reg}")
            for h2 in range(2):
                t(f"v_cvt_pk_bf16_f32 v{P[0]+4*qt+2*kt+h2}, v{Sreg(kt,qt)+2*h2}, v{Sreg(kt,qt)+2*h2+1}")
    def rescale():
        for dt in range(16):
            for qt in range(2):
                for r in range(4): t(f"v_mul_f32 v{O+(dt*2+qt)*4+r}, v{O+(dt*2+qt)*4+r}, v{AL+qt}")
                for r in range(4):
                    a = aO + (dt*2+qt)*4 + r
                    t(f"v_accvgpr_read_b32 v{NEGM+12+r}, a{a}")
                for r in range(4): t(f"v_mul_f32 v{NEGM+12+r}, v{NEGM+12+r}, v{AL+2+qt}")
                for r in range(4):
                    a = aO + (dt*2+qt)*4 + r
                    t(f"v_accvgpr_write_b32 a{a}, v{NEGM+12+r}")
    rescale()
    t("s_nop 1")
    for dt in range(16):
        for u in range(2):
            t(f"ds_read_b64_tr_b16 {vr(RING+2*u,2)}, v{VA+(dt&7)} offset:{u*8192 + (dt>>3)*256}")
        t("s_waitcnt lgkmcnt(0)")
        for qt in range(4):
            t(f"{M16} {Oreg(dt,qt)}, {vr(RING,4)}, {vr(P[0]+4*qt,4)}, {Oreg(dt,qt)}")
        t("s_nop 3")
    t("s_nop 7")
    t("K2_SL_NEXT:")
    t("s_add_u32 s58, s58, 1"); t("s_cmp_lt_u32 s58, 16"); t("s_cbranch_scc1 K2_SL_LOOP")
    t("s_barrier")
    t("v_mbcnt_lo_u32_b32 v254, -1, 0"); t("v_mbcnt_hi_u32_b32 v254, -1, v254"); t("v_lshlrev_b32 v254, 4, v254")
    t(f"s_lshl_b32 s60, s48, 10"); t(f"s_add_u32 s60, s60, {MX}"); t("v_add_u32 v255, s60, v254")
    t(f"ds_write_b128 v255, {vr(M_,4)}")
    t("s_xor_b32 s60, s60, 2048"); t("v_add_u32 v255, s60, v254")
    t("s_waitcnt lgkmcnt(0)"); t("s_barrier")
    t(f"ds_read_b128 {vr(MN,4)}, v255"); t("s_waitcnt lgkmcnt(0)")
    for qt in range(4): t(f"v_max_f32 v{RING+qt}, v{M_+qt}, v{MN+((qt+2)&3)}")
    for qt in range(4):
        t(f"v_sub_f32 v{AL+qt}, v{M_+qt}, v{RING+qt}"); t(f"v_exp_f32 v{AL+qt}, v{AL+qt}")
    t("s_nop 0")
    for qt in range(4): t(f"v_mul_f32 v{LS+qt}, v{LS+qt}, v{AL+qt}")
    t(f"v_mov_b32 v{MREF}, v{RING}"); t(f"v_mov_b32 v{MREF+1}, v{RING+1}")
    rescale()
    t("s_barrier")
    L += hazard.autofix(T + resume)
    e("K2_END:")
    e("s_endpgm")
    i0 = L.index("K2_LOOP:"); i1 = L.index("K2_EPI:")
    lin = L[i0-60:i1] + L[i0:i1] + L[i1:i1+700]
    errs = hazard.check(lin, 'k2f')
    return L, ([] if FUSED else kernel_desc(name, 512, 256)), errs
```

```python
from gen_common import *
from tl import TL
import hazard, struct
SLOT = 16384
EX = 131072
fb = lambda x: hex(struct.unpack('<I', struct.pack('<f', x))[0])

def gen_k1(opt=None):
    o = dict(D=6, stamp=False, st='', npre=2, nln=4)
    if opt: o.update(opt)
    D = o['D']; ST = (' ' + o['st']) if o['st'] else ''
    FUSED = o.get('fused')
    name = FUSED if FUSED else 'prep_kernel'
    L = []; e = L.append
    B = 0; ACC = [64, 128]; KA = 192; KA2 = 200; VN = 208; VN2 = 216; DV = 224; DS = 228; XB = 200
    aR = 0; R = 8
    def stamp(T, k):
        if o['stamp']: T.append(f"s_memrealtime s[{72+2*k}:{73+2*k}]")
    L += kernel_header(name)
    e("s_cmp_ge_u32 s2, 256")
    e("s_cbranch_scc1 K2_END" if FUSED else "s_cbranch_scc1 K1_END")
    e("s_load_dwordx16 s[36:51], s[0:1], 0")
    e("s_load_dwordx2 s[52:53], s[0:1], 64")
    e("s_load_dwordx2 s[54:55], s[0:1], 88")
    FF = FUSED and o.get('fastfin', False) and not o.get('ct')
    if FUSED: e("s_load_dwordx2 s[58:59], s[0:1], 80")
    if FF: e("s_load_dwordx2 s[100:101], s[0:1], 72")
    if FUSED and not FF: e("s_mov_b32 s101, 0")
    if o['stamp']:
        e("s_memtime s[60:61]"); e("s_memrealtime s[62:63]")
    e("v_lshrrev_b32 v232, 6, v0")
    e("v_and_b32 v240, 63, v0")
    e("v_lshrrev_b32 v241, 5, v240")
    e("v_and_b32 v242, 31, v240")
    e("v_readfirstlane_b32 s28, v232")
    e("s_and_b32 s29, s28, 1")
    e("s_lshr_b32 s30, s28, 1")
    e("s_lshl_b32 s31, s28, 12")
    CT = o.get('ct')
    if CT: e("s_mov_b32 s35, s2")
    else: e("s_sub_u32 s35, s2, 125"); e("s_cmp_lt_u32 s2, 125"); e("s_cselect_b32 s35, s2, s35")
    e("s_lshl_b32 s33, s28, 1")
    for k in range(4):
        e(f"v_add_u32 v234, {2*k}, v241"); e("v_and_b32 v234, 3, v234"); e("v_lshlrev_b32 v234, 2, v234")
        e(f"s_add_u32 s34, s33, {k>>1}"); e("s_and_b32 s34, s34, 3")
        e("v_or_b32 v234, s34, v234"); e("v_xor_b32 v234, v242, v234"); e("v_lshlrev_b32 v234, 4, v234")
        e("v_lshl_add_u32 v234, v241, 9, v234")
        e(f"v_add_u32 v{DS+k}, s31, v234")
    e("s_waitcnt lgkmcnt(0)")
    if FUSED:
        e("s_mov_b32 s4, s58"); e("s_mov_b32 s5, s59"); e("s_mov_b32 s6, 256"); e("s_mov_b32 s7, 0x20000")
        e("s_or_b32 s33, s2, s28"); e("s_cmp_eq_u32 s33, 0"); e("s_cbranch_scc0 K1_NOTAG")
        e("s_memrealtime s[56:57]"); e("s_waitcnt lgkmcnt(0)"); e("s_or_b32 s56, s56, 1")
        e("v_mov_b32 v234, s56")
        e("buffer_store_dword v234, off, s[4:7], 0 sc1")
        e("K1_NOTAG:")
    e("s_cmp_lt_u32 s2, 250"); e("s_cbranch_scc0 K1_NOX")
    srd(e, 16, 's36', 's37', 0, 8000*512)
    e("s_lshl_b32 s32, s35, 14" if CT else "s_lshl_b32 s32, s35, 15")
    for half in range(1 if CT else 2):
        e(f"s_add_u32 m0, s31, {EX + half*SLOT:#x}")
        if half: e("s_add_u32 s32, s32, 16384")
        else: e("s_nop 0")
        for k in range(4):
            e(f"buffer_load_dwordx4 v{DS+k}, s[16:19], s32 offen offset:{k*1024} lds")
    if FUSED and o.get('ipf', True):
        e("s_getpc_b64 s[56:57]")
        e("K1_PCREF:")
        e(f"s_add_u32 s56, s56, {o.get('ipfbase', 'K1_NOX')}-K1_PCREF"); e("s_addc_u32 s57, s57, 0")
        e("s_lshr_b32 s33, s2, 3"); e("s_lshl_b32 s33, s33, 2"); e("s_add_u32 s33, s33, s28"); e("s_lshl_b32 s33, s33, 10")
        e(f"s_cmp_lt_u32 s33, {o.get('ipfbytes', 61440)}"); e("s_cbranch_scc0 K1_NOIPF")
        e("v_lshlrev_b32 v232, 4, v240"); e("v_add_u32 v232, s33, v232")
        e("global_load_dwordx4 v[252:255], v232, s[56:57]")
        e("K1_NOIPF:")
    if o.get('wpf', False):
        e("s_lshr_b32 s33, s2, 3"); e("s_lshl_b32 s33, s33, 2"); e("s_add_u32 s33, s33, s28")
        e("v_lshlrev_b32 v232, 4, v240")
        e("s_mov_b32 s8, s40"); e("s_mov_b32 s9, s41"); e("s_mov_b32 s10, 131072"); e("s_mov_b32 s11, 0x20000")
        e("s_lshl_b32 s34, s33, 10")
        e("buffer_load_dwordx4 v[100:103], v232, s[8:11], s34 offen")
        e("s_mov_b32 s8, s46"); e("s_mov_b32 s9, s47"); e("s_mov_b32 s10, 262144")
        e("s_lshl_b32 s34, s33, 11")
        e("buffer_load_dwordx4 v[104:107], v232, s[8:11], s34 offen")
        e("buffer_load_dwordx4 v[108:111], v232, s[8:11], s34 offen offset:1024")
    if FUSED and o.get('tlb', False):
        e("s_load_dwordx2 s[56:57], s[0:1], 72"); e("s_waitcnt lgkmcnt(0)")
        e("s_cmp_eq_u32 s28, 1"); e("s_cbranch_scc0 K1_NOTLB")
        srd(e, 8, 's54', 's55', OP_OFF, 64*16*16384)
        e("v_lshlrev_b32 v232, 21, v240")
        e("buffer_load_dword v112, v232, s[8:11], 0 offen")
        e("s_mov_b32 s8, s56"); e("s_mov_b32 s9, s57"); e("s_mov_b32 s10, 4096000")
        e("buffer_load_dword v113, v232, s[8:11], 0 offen")
        e("K1_NOTLB:")
    if o.get('pf', True):
        e("s_and_b32 s33, s2, 7"); e("s_cmp_lt_u32 s33, 2"); e("s_cbranch_scc1 K1_NOPF")
        e("s_lshr_b32 s34, s2, 3")
        e("s_cmp_ge_u32 s33, 6"); e("s_cbranch_scc1 K1_PF2")
        e("s_cmp_lt_u32 s34, 16"); e("s_cselect_b32 s8, s44, s42"); e("s_cselect_b32 s9, s45, s43")
        e("s_and_b32 s34, s34, 15"); e("s_lshl_b32 s34, s34, 13")
        e("s_branch K1_PF3")
        e("K1_PF2:")
        e("s_add_u32 s56, s52, 131072"); e("s_addc_u32 s57, s53, 0")
        e("s_cmp_lt_u32 s34, 16"); e("s_cselect_b32 s8, s50, s56"); e("s_cselect_b32 s9, s51, s57")
        e("s_and_b32 s34, s34, 15"); e("s_lshl_b32 s34, s34, 13")
        e("K1_PF3:")
        e("s_mov_b32 s10, 131072"); e("s_mov_b32 s11, 0x20000")
        e("v_lshlrev_b32 v232, 4, v240"); e("s_lshl_b32 s33, s28, 11"); e("s_add_u32 s34, s34, s33")
        e("buffer_load_dwordx4 v[244:247], v232, s[8:11], s34 offen")
        e("buffer_load_dwordx4 v[248:251], v232, s[8:11], s34 offen offset:1024")
        e("K1_NOPF:")
    e("K1_NOX:")
    first, second = ("K1_UG", "K1_Q") if o.get('ugfirst', True) else ("K1_Q", "K1_UG")
    if CT:
        e("s_cmp_lt_u32 s2, 250"); e("s_cbranch_scc1 K1_CT")
    else:
        e("s_cmp_lt_u32 s2, 125"); e(f"s_cbranch_scc1 {first}")
        e("s_cmp_lt_u32 s2, 250"); e(f"s_cbranch_scc1 {second}")
    e("s_cmp_lt_u32 s2, 254"); e("s_cbranch_scc1 K1_W1")
    e("s_branch K1_W2")

    def k_addr(T, dst, dst2, base_lines):
        t = T.append
        t("v_and_b32 v234, 3, v242"); t("v_lshlrev_b32 v234, 2, v234"); t("v_bfe_u32 v235, v242, 2, 2")
        t("v_or_b32 v234, v234, v235"); t("v_lshlrev_b32 v236, 9, v242")
        for x in base_lines: t(x)
        t("v_add_u32 v236, s33, v236")
        for jj in range(8):
            t(f"v_add_u32 v235, {2*jj}, v241"); t("v_xor_b32 v235, v235, v234")
            t(f"v_lshl_add_u32 v{dst+jj}, v235, 4, v236")
            if dst2 is not None: t(f"v_add_u32 v{dst2+jj}, 0x10000, v{dst+jj}")
    def ka_setup(T): k_addr(T, KA, KA2, ["s_lshl_b32 s33, s30, 14"])
    def xb_setup(T): k_addr(T, XB, None, ["s_lshl_b32 s33, s29, 14", f"s_add_u32 s33, s33, {EX}", "s_lshl_b32 s34, s30, 8", "s_add_u32 s33, s33, s34"])
    def vn_setup(T):
        t = T.append
        t("v_bfe_u32 v234, v240, 4, 1"); t("v_bfe_u32 v235, v240, 2, 2"); t("v_bfe_u32 v236, v240, 1, 1")
        t("v_lshl_add_u32 v236, v234, 1, v236"); t("v_and_b32 v237, 1, v240"); t("v_lshlrev_b32 v237, 3, v237")
        t("v_lshl_add_u32 v238, v241, 3, v235"); t("v_lshl_add_u32 v237, v238, 9, v237")
        t("s_lshl_b32 s33, s30, 8"); t("v_add_u32 v237, s33, v237")
        for a in range(4):
            for u in range(2):
                t(f"v_lshl_add_u32 v238, v241, 1, {u}"); t("v_lshl_or_b32 v238, v235, 2, v238")
                t(f"v_add_u32 v239, {4*a}, v236"); t("v_xor_b32 v238, v238, v239")
                t(f"v_lshl_add_u32 v{VN+a*2+u}, v238, 4, v237")
                if u: t(f"v_add_u32 v{VN+a*2+u}, {4*512}, v{VN+a*2+u}")
                t(f"v_add_u32 v{VN2+a*2+u}, 0x10000, v{VN+a*2+u}")
    def dma_voff(T, stride1024):
        t = T.append
        if not stride1024:
            for k in range(4): t(f"v_mov_b32 v{DV+k}, v{DS+k}")
            return
        t("s_lshl_b32 s33, s28, 1")
        for k in range(4):
            t(f"v_add_u32 v234, {2*k}, v241"); t("v_and_b32 v234, 3, v234"); t("v_lshlrev_b32 v234, 2, v234")
            t(f"s_add_u32 s34, s33, {k>>1}"); t("s_and_b32 s34, s34, 3")
            t("v_or_b32 v234, s34, v234"); t("v_xor_b32 v234, v242, v234"); t("v_lshlrev_b32 v234, 4, v234")
            t("v_lshl_add_u32 v234, v241, 10, v234"); t("s_lshl_b32 s34, s28, 13"); t(f"s_add_u32 s34, s34, {k*1024}")
            t(f"v_add_u32 v{DV+k}, s34, v234")
    def tile_dma(n, srdn, soff):
        if o.get('nodma'): return []
        r = [(f"s_add_u32 m0, s31, {(n%8)*SLOT:#x}", False), (f"s_mov_b32 s32, {soff:#x}", False)]
        for k in range(4):
            r.append((f"buffer_load_dwordx4 v{DV+k}, s[{srdn}:{srdn+3}], s32 offen offset:{k*1024} lds", True))
        return r
    def emit_tile(out, W, n, srdn, soff):
        for txt, vm in tile_dma(n, srdn, soff):
            out.append(txt)
            if vm: W.issue('vm', ('T', n))
    def out_rows(T, W, srdn, tag, OB):
        t = T.append
        t("v_lshlrev_b32 v232, 4, v240"); t(f"s_add_u32 s33, s31, {EX}"); t("v_add_u32 v232, s33, v232")
        for half in range(2):
            for k in range(4):
                t(f"ds_read_b128 {vr(OB+(half*4+k)*4,4)}, v232 offset:{half*SLOT + k*1024}")
        t("s_lshl_b32 s32, s35, 15")
        for half in range(2):
            if half: t("s_add_u32 s32, s32, 16384")
            for k in range(4):
                t(f"s_waitcnt lgkmcnt({7 - (half*4+k)})")
                t(f"buffer_store_dwordx4 {vr(OB+(half*4+k)*4,4)}, v{DS+k}, s[{srdn}:{srdn+3}], s32 offen offset:{k*1024}{ST}")
                W.issue('vm', (tag, half, k))
        W.drain('lgkm')
    def ln(out, W, tiles):
        nw = W.need('vm', [('X', 7)])
        out.append(f"s_waitcnt vmcnt({nw})")
        out.append("s_barrier")
        stamp(out, 0)
        for s in range(8):
            out.append(f"ds_read_b128 {vr(64+4*s,4)}, v{XB+s}")
        body = []; b = body.append
        b("s_mov_b32 s34, 0x3f803f80")
        for k in range(4): b(f"v_mov_b32 v{232+k}, 0")
        for r in range(32):
            if r % 4 == 0: b(f"s_waitcnt lgkmcnt({7 - r//4})")
            b(f"v_dot2_f32_bf16 v{232+(r&1)}, v{64+r}, s34, v{232+(r&1)}")
            b(f"v_dot2_f32_bf16 v{234+(r&1)}, v{64+r}, v{64+r}, v{234+(r&1)}")
        b("s_nop 2")
        b("v_add_f32 v232, v232, v233"); b("v_add_f32 v234, v234, v235")
        b("v_mov_b32 v233, v232"); b("v_mov_b32 v235, v234"); b("s_nop 1")
        b("v_permlane32_swap_b32 v232, v233"); b("v_permlane32_swap_b32 v234, v235"); b("s_nop 1")
        b("v_add_f32 v232, v232, v233"); b("v_add_f32 v233, v234, v235")
        b(f"ds_write_b64 v{XB}, v[232:233]")
        b(f"v_xor_b32 v238, 256, v{XB}")
        b("s_waitcnt lgkmcnt(0)")
        b("s_barrier")
        b("ds_read_b64 v[234:235], v238")
        b("s_waitcnt lgkmcnt(0)")
        b("v_add_f32 v232, v232, v234"); b("v_add_f32 v234, v233, v235")
        b("v_mul_f32 v232, 0x3b800000, v232"); b("v_mul_f32 v234, 0x3b800000, v234")
        b("v_fma_f32 v234, -v232, v232, v234"); b("v_max_f32 v234, 0, v234"); b("v_add_f32 v234, 0x3727c5ac, v234")
        b("v_rsq_f32 v234, v234"); b("s_nop 0")
        b("v_mul_f32 v236, v232, v234"); b("v_sub_f32 v236, 0, v236")
        b("s_barrier")
        for r in range(32):
            t = 244 + 2*(r % 4)
            b(f"v_lshlrev_b32 v{t}, 16, v{64+r}")
            b(f"v_and_b32 v{t+1}, 0xffff0000, v{64+r}")
            b(f"v_pk_fma_f32 v[{t}:{t+1}], v[{t}:{t+1}], v[234:235], v[236:237] op_sel_hi:[1,0,0]")
            b(f"v_cvt_pk_bf16_f32 v{64+r}, v{t}, v{t+1}")
            if r % 4 == 3: b(f"ds_write_b128 v{XB+r//4}, {vr(64+r-3,4)}")
        b("s_waitcnt lgkmcnt(0)")
        b("s_barrier")
        b("s_lshl_b32 s33, s30, 8")
        for jj in range(8): b(f"v_subrev_u32 v{244+jj}, s33, v{XB+jj}")
        for s in range(16):
            b(f"ds_read_b128 {vr(B+4*s,4)}, v{244+(s&7)} offset:{(s>>3)*256}")
        flat = []
        for (n, sn, so) in tiles:
            tl_ = [(txt, vm, n) for txt, vm in tile_dma(n, sn, so)]
            flat.append(tl_[:3])
            for x in tl_[3:]: flat.append([x])
        gap = max(1, len(body) // (len(flat) + 1)) if flat else 1
        fi = 0
        for i, ins in enumerate(body):
            out.append(ins)
            if fi < len(flat) and i % gap == gap - 1:
                for txt, vm, n in flat[fi]:
                    out.append(txt)
                    if vm: W.issue('vm', ('T', n))
                fi += 1
        while fi < len(flat):
            for txt, vm, n in flat[fi]:
                out.append(txt)
                if vm: W.issue('vm', ('T', n))
            fi += 1
        out.append("s_waitcnt lgkmcnt(0)")
        W.drain('lgkm')
    def phase(W, p, kind, later, fill=None, f0=3):
        tl = TL(W)
        acc = ACC[p]
        cnt = [0]
        for a in range(4):
            sig = 4*p + a
            tb = 16*a - D - 1
            tl.add(tb, 'bar', needvm=[('T', 2*sig), ('T', 2*sig+1)], prio=1)
            k = 0
            for (n, sn, so) in later.get(sig, []):
                for txt, vm in tile_dma(n, sn, so):
                    sp = o.get('dsp', 2)
                    if vm:
                        tl.add(tb + 1 + sp*k, 'vm', txt, tag=('T', n), prio=7); k += 1
                    else:
                        tl.add(tb + 1 + sp*k, 'txt', txt, prio=6)
            for m in range(16):
                tm = 16*a + m
                ri = cnt[0] % R; cnt[0] += 1
                ring = aR + 4*ri
                if kind == 'X':
                    j = m; slot = 2*a
                    base = (KA if slot < 4 else KA2) + (j & 7)
                    off = (slot % 4)*SLOT + (j >> 3)*256
                    tag = (p, a, m)
                    tl.add(tm - D, 'lds', f"ds_read_b128 {ar(ring,4)}, v{base} offset:{off}", tag=tag, prio=2)
                    c = vr(acc+16*a,16) if j else '0'
                    tl.add(tm, 'mfma', f"v_mfma_f32_32x32x16_bf16 {vr(acc+16*a,16)}, {ar(ring,4)}, {vr(B+4*j,4)}, {c}", need=[tag], prio=0)
                else:
                    tt, s, aa = m >> 3, (m >> 2) & 1, m & 3
                    tau = 2*a + tt; slot = tau
                    tags = []
                    for u in range(2):
                        base = (VN if slot < 4 else VN2) + aa*2 + u
                        off = (slot % 4)*SLOT + 16*s*512
                        tag = (p, a, m, u); tags.append(tag)
                        tl.add(tm - D, 'lds', f"ds_read_b64_tr_b16 {ar(ring+2*u,2)}, v{base} offset:{off}", tag=tag, prio=2)
                    c = vr(acc+16*aa,16) if (tau or s) else '0'
                    tl.add(tm, 'mfma', f"v_mfma_f32_32x32x16_bf16 {vr(acc+16*aa,16)}, {ar(ring,4)}, {vr(B+4*(2*tau+s),4)}, {c}", need=tags, prio=0)
        if fill:
            n = len(fill)
            for i, ins in enumerate(fill):
                tl.add(f0 + (i*(64-f0))/n, 'txt', ins, prio=4)
        return tl
    def pack_swap(out, src, dst, swap=True, scale=None):
        if scale:
            for k in range(8):
                out.append(f"v_pk_mul_f32 v[{src+2*k}:{src+2*k+1}], v[{src+2*k}:{src+2*k+1}], {scale} op_sel_hi:[1,0]")
        for k in range(8):
            out.append(f"v_cvt_pk_bf16_f32 v{dst+k}, v{src+2*k}, v{src+2*k+1}")
        if swap:
            out.append("s_nop 1")
            for b in (0, 4):
                out.append(f"v_permlane32_swap_b32 v{dst+b}, v{dst+b+2}")
                out.append(f"v_permlane32_swap_b32 v{dst+b+1}, v{dst+b+3}")
    def exchange(out, W, acc, kind):
        out.append("s_nop 15")
        out.append("v_lshlrev_b32 v232, 4, v240")
        out.append(f"s_lshl_b32 s33, s29, 14"); out.append(f"s_add_u32 s33, s33, {EX}")
        out.append("v_add_u32 v233, s33, v232")
        out.append(f"s_lshl_b32 s34, s30, {13 if kind=='Y' else 11}")
        out.append("v_add_u32 v232, s34, v233")
        for a in range(4):
            d = 244 if a % 2 == 0 else 0
            pack_swap(out, acc+16*a, d)
            for s in range(2):
                f = (2*a + s) if kind == 'Y' else (4*a + s)
                out.append(f"ds_write_b128 v232, {vr(d+4*s,4)} offset:{f*1024}")
        out.append("s_waitcnt lgkmcnt(0)")
        out.append("s_barrier")
        for f in range(16):
            out.append(f"ds_read_b128 {vr(B+4*f,4)}, v233 offset:{f*1024}")
        out.append("s_waitcnt lgkmcnt(0)")
        W.drain('lgkm')
    def narrow(out, W, rowbase_bytes, slice_sreg):
        for x in ["v_lshrrev_b32 v232, 3, v240", "v_lshlrev_b32 v232, 9, v232", "v_and_b32 v233, 7, v240",
                  "v_lshl_add_u32 v232, v233, 4, v232", f"s_lshl_b32 s33, {slice_sreg}, 7", "s_lshl_b32 s34, s28, 15",
                  "s_add_u32 s33, s33, s34", f"s_add_u32 s33, s33, {rowbase_bytes}", "v_add_u32 v232, s33, v232",
                  "s_lshl_b32 s34, s28, 13", f"s_add_u32 s34, s34, {EX}"]: out.append(x)
        for i in range(8):
            out.append(f"s_add_u32 m0, s34, {i*1024}")
            out.append(f"s_mov_b32 s32, {i*4096}")
            out.append(f"buffer_load_dwordx4 v232, s[16:19], s32 offen lds")
            W.issue('vm', ('N', i))
    def narrow_read(out, W):
        n = W.need('vm', [('N', 7)])
        out.append(f"s_waitcnt vmcnt({n})")
        out.append("s_barrier")
        for x in ["v_bfe_u32 v232, v240, 2, 2", "v_lshl_add_u32 v232, v241, 3, v232", "v_lshlrev_b32 v232, 7, v232",
                  "v_bfe_u32 v233, v240, 4, 1", "v_lshl_add_u32 v232, v233, 5, v232", "v_and_b32 v233, 3, v240",
                  "v_lshl_add_u32 v232, v233, 3, v232", "s_lshl_b32 s33, s29, 6", f"s_add_u32 s33, s33, {EX}",
                  "v_add_u32 v232, s33, v232"]: out.append(x)
        for s in range(16):
            for u in range(2):
                out.append(f"ds_read_b64_tr_b16 {vr(B+4*s+2*u,2)}, v232 offset:{s*2048+u*512}")
            if s % 4 == 3: out.append("s_waitcnt lgkmcnt(0)")
        W.drain('lgkm')
    def finish(task_lines, label):
        if CT and label in ("K1_Q", "K1_UG"): return
        fixed = hazard.autofix(task_lines)
        e(f"{label}:")
        L.extend(fixed)
        e("s_branch K1_FIN")
    def cap(fn):
        buf = []; fn(buf.append); return buf
    std_later = lambda sn: {2: [(8, sn, 0), (9, sn, SLOT)], 3: [(10, sn, 2*SLOT), (11, sn, 3*SLOT)], 4: [(12, sn, 4*SLOT), (13, sn, 5*SLOT)], 5: [(14, sn, 6*SLOT), (15, sn, 7*SLOT)]}
    npre = o['npre']


    if CT:
        EXB = EX + 16384
        Bq = 64
        ACCQ, ACCK, ACCG, ACCU = 64, 96, 128, 160
        VN4 = 208; VN42 = 212; XO = 216; XB8 = 244
        W = Waiter(); T = []; t = T.append
        for s_ in range(4): W.issue('vm', ('X', s_))
        dma_voff(T, True)
        T += cap(lambda e: (srd(e, 8, 's38', 's39', 0, 131072), srd(e, 12, 's40', 's41', 0, 131072), srd(e, 20, 's46', 's47', 0, 262144),
                            srd(e, 24, 's54', 's55', QF_OFF, 500*8192)))
        def tinfo(n):
            if n < 8: return (8, n*SLOT, DS)
            if n < 16: return (12, (n-8)*SLOT, DS)
            if n < 24: return (20, (n-16)*32768 + 512, DV)
            return (20, (n-24)*32768, DV)
        def tdma(n):
            sn, so, dv = tinfo(n)
            r = [(f"s_add_u32 m0, s31, {(n%8)*SLOT:#x}", False), (f"s_mov_b32 s32, {so:#x}", False)]
            for k in range(4): r.append((f"buffer_load_dwordx4 v{dv+k}, s[{sn}:{sn+3}], s32 offen offset:{k*1024} lds", True))
            return r
        def temit(n):
            for txt, vm in tdma(n):
                t(txt)
                if vm: W.issue('vm', ('T', n))
        temit(0); temit(1)
        t("v_and_b32 v234, 3, v242"); t("v_lshlrev_b32 v234, 2, v234"); t("v_bfe_u32 v235, v242, 2, 2"); t("v_or_b32 v234, v234, v235")
        t("v_lshlrev_b32 v236, 9, v242"); t(f"v_add_u32 v237, {EX}, v236")
        t("s_lshl_b32 s33, s30, 8"); t("v_add_u32 v238, s33, v237")
        t("s_lshl_b32 s33, s29, 3")
        for i in range(4):
            t(f"s_add_u32 s34, s33, {2*i}"); t("v_add_u32 v235, s34, v241"); t("v_xor_b32 v235, v235, v234"); t(f"v_lshl_add_u32 v{XO+i}, v235, 4, v238")
        t("s_lshl_b32 s33, s28, 14"); t("v_add_u32 v238, s33, v236")
        for jj in range(8):
            t(f"v_add_u32 v235, {2*jj}, v241"); t("v_xor_b32 v235, v235, v234")
            t(f"v_lshl_add_u32 v{KA+jj}, v235, 4, v238"); t(f"v_add_u32 v{KA2+jj}, 0x10000, v{KA+jj}")
        t("v_bfe_u32 v234, v240, 4, 1"); t("v_bfe_u32 v235, v240, 2, 2"); t("v_bfe_u32 v236, v240, 1, 1")
        t("v_lshl_add_u32 v236, v234, 1, v236"); t("v_and_b32 v237, 1, v240"); t("v_lshlrev_b32 v237, 3, v237")
        t("v_lshl_add_u32 v238, v241, 3, v235"); t("v_lshl_add_u32 v237, v238, 9, v237")
        t("s_lshl_b32 s33, s30, 8"); t("v_add_u32 v237, s33, v237")
        t("s_lshl_b32 s33, s29, 3")
        for aa in range(2):
            for u in range(2):
                t(f"v_lshl_add_u32 v238, v241, 1, {u}"); t("v_lshl_or_b32 v238, v235, 2, v238")
                t(f"s_add_u32 s34, s33, {4*aa}"); t("v_add_u32 v239, s34, v236"); t("v_xor_b32 v238, v238, v239")
                t(f"v_lshl_add_u32 v{VN4+aa*2+u}, v238, 4, v237")
                if u: t(f"v_add_u32 v{VN4+aa*2+u}, {4*512}, v{VN4+aa*2+u}")
                t(f"v_add_u32 v{VN42+aa*2+u}, 0x10000, v{VN4+aa*2+u}")
        nw = W.need('vm', [('X', 3)]); t(f"s_waitcnt vmcnt({nw})"); t("s_barrier")
        stamp(T, 0)
        for i in range(4): t(f"ds_read_b128 {vr(64+4*i,4)}, v{XO+i}")
        T += cap(lambda e: srd(e, 16, 's54', 's55', XA_OFF, 8000*512))
        body = []; b = body.append
        b("s_mov_b32 s34, 0x3f803f80")
        for k in range(4): b(f"v_mov_b32 v{232+k}, 0")
        for r in range(16):
            if r % 4 == 0: b(f"s_waitcnt lgkmcnt({3 - r//4})")
            b(f"v_dot2_f32_bf16 v{232+(r&1)}, v{64+r}, s34, v{232+(r&1)}")
            b(f"v_dot2_f32_bf16 v{234+(r&1)}, v{64+r}, v{64+r}, v{234+(r&1)}")
        b("s_nop 2")
        b("v_add_f32 v232, v232, v233"); b("v_add_f32 v234, v234, v235")
        b("v_mov_b32 v233, v232"); b("v_mov_b32 v235, v234"); b("s_nop 1")
        b("v_permlane32_swap_b32 v232, v233"); b("v_permlane32_swap_b32 v234, v235"); b("s_nop 1")
        b("v_add_f32 v232, v232, v233"); b("v_add_f32 v233, v234, v235")
        b("v_lshlrev_b32 v238, 3, v242"); b(f"v_add_u32 v238, {EXB}, v238")
        b("s_lshl_b32 s33, s28, 8"); b("v_add_u32 v239, s33, v238")
        b("ds_write_b64 v239, v[232:233]")
        b("s_waitcnt lgkmcnt(0)"); b("s_barrier")
        for k in range(4): b(f"ds_read_b64 v[{80+2*k}:{81+2*k}], v238 offset:{256*k}")
        b("s_waitcnt lgkmcnt(0)")
        b("v_add_f32 v80, v80, v82"); b("v_add_f32 v81, v81, v83"); b("v_add_f32 v84, v84, v86"); b("v_add_f32 v85, v85, v87")
        b("v_add_f32 v232, v80, v84"); b("v_add_f32 v234, v81, v85")
        b("v_mul_f32 v232, 0x3b800000, v232"); b("v_mul_f32 v234, 0x3b800000, v234")
        b("v_fma_f32 v234, -v232, v232, v234"); b("v_max_f32 v234, 0, v234"); b("v_add_f32 v234, 0x3727c5ac, v234")
        b("v_rsq_f32 v234, v234"); b("s_nop 0")
        b("v_mul_f32 v236, v232, v234"); b("v_sub_f32 v236, 0, v236")
        for r in range(16):
            tt_ = 244 + 2*(r % 4)
            b(f"v_lshlrev_b32 v{tt_}, 16, v{64+r}"); b(f"v_and_b32 v{tt_+1}, 0xffff0000, v{64+r}")
            b(f"v_pk_fma_f32 v[{tt_}:{tt_+1}], v[{tt_}:{tt_+1}], v[234:235], v[236:237] op_sel_hi:[1,0,0]")
            b(f"v_cvt_pk_bf16_f32 v{64+r}, v{tt_}, v{tt_+1}")
            if r % 4 == 3: b(f"ds_write_b128 v{XO+r//4}, {vr(64+r-3,4)}")
        b("s_lshl_b32 s33, s28, 14"); b(f"s_sub_u32 s33, {EX}, s33")
        for jj in range(8): b(f"v_add_u32 v{XB8+jj}, s33, v{KA+jj}")
        b("s_waitcnt lgkmcnt(0)"); b("s_barrier")
        for s_ in range(16): b(f"ds_read_b128 {vr(B+4*s_,4)}, v{XB8+(s_&7)} offset:{(s_>>3)*256}")
        b("v_lshlrev_b32 v232, 4, v240"); b(f"s_add_u32 s33, s31, {EX}"); b("v_add_u32 v232, s33, v232")
        for k in range(4): b(f"ds_read_b128 {vr(96+4*k,4)}, v232 offset:{k*1024}")
        flat = []
        for n in range(2, 6):
            tl_ = [(txt, vm, n) for txt, vm in tdma(n)]
            flat.append(tl_[:3])
            for x in tl_[3:]: flat.append([x])
        gap = max(1, (len(body) - 24) // (len(flat) + 1)); fi = 0
        for i, ins in enumerate(body):
            t(ins)
            if fi < len(flat) and i % gap == gap - 1:
                for txt, vm, n in flat[fi]:
                    t(txt)
                    if vm: W.issue('vm', ('T', n))
                fi += 1
        while fi < len(flat):
            for txt, vm, n in flat[fi]:
                t(txt)
                if vm: W.issue('vm', ('T', n))
            fi += 1
        t("s_waitcnt lgkmcnt(0)")
        t("s_lshl_b32 s56, s35, 14")
        for k in range(4):
            t(f"buffer_store_dwordx4 {vr(96+4*k,4)}, v{DS+k}, s[16:19], s56 offen offset:{k*1024}{ST}"); W.issue('vm', ('XS', k))
        stamp(T, 1)
        def flag_store(off_lines, lbl):
            t("s_cmp_eq_u32 s28, 0"); t(f"s_cbranch_scc0 {lbl}")
            for x in off_lines: t(x)
            t("v_mov_b32 v232, s3"); t("v_cmp_eq_u32 vcc, 0, v240"); t("s_and_saveexec_b64 s[56:57], vcc")
            t("buffer_store_dword v232, off, s[8:11], s34 sc1")
            t("s_mov_b64 exec, s[56:57]")
            t(f"{lbl}:")
        fillers = {}
        def step(sig, extra_need=None, after_bar=None):
            p, a = sig >> 2, sig & 3
            need = [('T', 2*sig), ('T', 2*sig+1)] + (extra_need or [])
            nv = W.need('vm', need)
            if nv is not None: t(f"s_waitcnt vmcnt({nv})")
            t("s_barrier")
            if after_bar: after_bar()
            dm = []
            for n in (2*(sig+3), 2*(sig+3)+1):
                if n < 32: dm += [(txt, vm, n) for txt, vm in tdma(n)]
            fl = list(fillers.get(sig, []))
            def some(k_dma, k_fill):
                c = 0
                while dm and c < k_dma:
                    txt, vm, n = dm.pop(0); t(txt)
                    if vm: W.issue('vm', ('T', n)); c += 1
                for _ in range(k_fill):
                    if fl: t(fl.pop(0))
            nf = -(-len(fl) // 8) if fl else 0
            if p != 1:
                acc = {0: ACCQ, 2: ACCG, 3: ACCU}[p]
                idx = 0; seq = []
                for tt in range(2):
                    slot = (2*sig + tt) % 8
                    for s_ in range(2):
                        for aa in range(2):
                            for u in range(2):
                                base = (VN4 if slot < 4 else VN42) + aa*2 + u
                                t(f"ds_read_b64_tr_b16 {ar(4*idx+2*u,2)}, v{base} offset:{(slot%4)*SLOT + 16*s_*512}")
                            seq.append((idx, tt, s_, aa)); idx += 1
                for (idx, tt, s_, aa) in seq:
                    if idx % 2 == 0: t(f"s_waitcnt lgkmcnt({14 - 2*idx - 2 if idx < 6 else 0})")
                    tau = 2*a + tt
                    c = vr(acc+16*aa,16) if (tau or s_) else '0'
                    t(f"v_mfma_f32_32x32x16_bf16 {vr(acc+16*aa,16)}, {ar(4*idx,4)}, {vr(B+4*(2*tau+s_),4)}, {c}")
                    some(1, nf)
            else:
                lbl = f"K1_CT_X{a}"
                t(f"s_cmp_eq_u32 s30, {a & 1}"); t(f"s_cbranch_scc0 {lbl}")
                k = a >> 1; base = KA if k == 0 else KA2
                for half in range(2):
                    for j in range(8): t(f"ds_read_b128 {ar(4*j,4)}, v{base+j} offset:{half*256}")
                    for j in range(8):
                        if j % 2 == 0: t(f"s_waitcnt lgkmcnt({6 - j})")
                        jj = 8*half + j
                        c = vr(ACCK+16*k,16) if jj else '0'
                        t(f"v_mfma_f32_32x32x16_bf16 {vr(ACCK+16*k,16)}, {ar(4*j,4)}, {ar(Bq+4*jj,4)}, {c}")
                t(f"{lbl}:")
            some(100, 1000)
        for sig in range(4): step(sig)
        stamp(T, 2)
        t("s_nop 15")
        t("v_lshlrev_b32 v232, 4, v240"); t(f"v_add_u32 v233, {EXB}, v232"); t("s_lshl_b32 s34, s28, 12"); t("v_add_u32 v232, s34, v233")
        for aa in range(2):
            d = 244 if aa == 0 else 96
            pack_swap(T, ACCQ+16*aa, d)
            for s_ in range(2): t(f"ds_write_b128 v232, {vr(d+4*s_,4)} offset:{(2*aa+s_)*1024}")
        t("s_waitcnt lgkmcnt(0)"); t("s_barrier")
        for f in range(16): t(f"ds_read_b128 {ar(Bq+4*f,4)}, v233 offset:{f*1024}")
        t("s_waitcnt lgkmcnt(0)")
        t("buffer_load_dword v243, off, s[4:7], 0 sc1"); W.issue('vm', 'TAG')
        for sig in range(4, 8): step(sig)
        stamp(T, 3)
        qf = []
        qf.append("s_nop 7"); qf.append("v_mov_b32 v236, 0x3db8aa3b")
        qf += ["s_lshl_b32 s33, s35, 14", "s_lshl_b32 s34, s28, 10", "s_add_u32 s33, s33, s34",
               "v_lshrrev_b32 v252, 4, v242", "v_lshlrev_b32 v252, 13, v252", "v_and_b32 v253, 15, v242", "v_lshl_add_u32 v253, v241, 4, v253",
               "v_lshl_add_u32 v252, v253, 4, v252", "v_add_u32 v252, s33, v252"]
        qst = []
        for k in range(2):
            d = 244 if k == 0 else 64
            pack_swap(qf, ACCK+16*k, d, scale="v[236:237]")
            for s_ in range(2):
                qf.append(f"buffer_store_dwordx4 {vr(d+4*s_,4)}, v252, s[24:27], 0 offen offset:{k*4096 + s_*512 - (4096 if k else 0)}{ST}" if k == 0 else "@K1")
        out2 = []
        cnt = 0
        for x in qf:
            if x == "@K1":
                if cnt == 0: out2.append("v_add_u32 v253, 4096, v252")
                out2.append(f"buffer_store_dwordx4 {vr(64+4*cnt,4)}, v253, s[24:27], 0 offen offset:{cnt*512}{ST}"); cnt += 1
            else: out2.append(x)
        qf = out2
        for x in qf:
            t(x)
            if x.startswith('buffer_store'): W.issue('vm', ('QS', len(W.q['vm'])))
        W.issue('vm', 'QEND'); W.q['vm'].pop()
        qtags = [x for x in W.q['vm'] if isinstance(x, tuple) and x[0] in ('QS', 'XS')]
        step(8)
        step(9)
        def get_tag():
            t("K1_CT_TAGP:")
            t("buffer_load_dword v232, off, s[4:7], 0 sc1"); t("s_waitcnt vmcnt(0)")
            t("v_readfirstlane_b32 s3, v232"); t("s_nop 3"); t("s_cmp_lg_u32 s3, 0"); t("s_cbranch_scc1 K1_CT_TAGD"); t("s_sleep 1"); t("s_branch K1_CT_TAGP")
            t("K1_CT_TAGD:")
        def qflag():
            T.extend(cap(lambda e: srd(e, 8, 's54', 's55', FL_OFF, FL_SIZE)))
            flag_store([f"s_lshl_b32 s34, s35, 7", f"s_add_u32 s34, s34, {FLQ}"], "K1_CT_NOQF")
        step(10, extra_need=qtags + ['TAG'], after_bar=None)
        t("v_readfirstlane_b32 s3, v243")
        t("s_nop 3")
        pend_qflag = True
        t("s_cmp_eq_u32 s28, 0"); t("s_cbranch_scc0 K1_CT_NOQF2")
        t("s_cmp_lg_u32 s3, 0"); t("s_cbranch_scc0 K1_CT_NOQF2")
        T.extend(cap(lambda e: srd(e, 8, 's54', 's55', FL_OFF, FL_SIZE)))
        t(f"s_lshl_b32 s34, s35, 7"); t(f"s_add_u32 s34, s34, {FLQ}")
        t("v_mov_b32 v232, s3"); t("v_cmp_eq_u32 vcc, 0, v240"); t("s_and_saveexec_b64 s[56:57], vcc")
        t("buffer_store_dword v232, off, s[8:11], s34 sc1")
        t("s_mov_b64 exec, s[56:57]")
        t("K1_CT_NOQF2:")
        step(11)
        stamp(T, 4)
        k0 = -2.0*1.4426950408889634*0.7978845608028654
        t("s_nop 7")
        t(f"v_mov_b32 v232, {fb(k0)}"); t(f"v_mov_b32 v234, {fb(k0*0.044715)}"); t("v_mov_b32 v236, 1.0")
        for k in range(4): t(f"v_mov_b32 v{252+k}, 0")
        def gelu(r):
            tt_ = 244 + 2*((r//2) % 4)
            X = f"v[{r}:{r+1}]"; Tt = f"v[{tt_}:{tt_+1}]"
            return [f"v_pk_mul_f32 {Tt}, {X}, {X}", f"v_pk_fma_f32 {Tt}, {Tt}, v[234:235], v[232:233] op_sel_hi:[1,0,0]", f"v_pk_mul_f32 {Tt}, {Tt}, {X}",
                    f"v_exp_f32 v{tt_}, v{tt_}", f"v_exp_f32 v{tt_+1}, v{tt_+1}", f"v_pk_add_f32 {Tt}, {Tt}, v[236:237] op_sel_hi:[1,0]",
                    f"v_rcp_f32 v{tt_}, v{tt_}", f"v_rcp_f32 v{tt_+1}, v{tt_+1}", f"v_pk_mul_f32 {X}, {X}, {Tt}",
                    f"v_pk_add_f32 v[252:253], v[252:253], {X}", f"v_pk_fma_f32 v[254:255], {X}, {X}, v[254:255]"]
        for q in range(4):
            cols = [gelu(ACCG + 8*q + 2*k) for k in range(4)]
            fillers[12+q] = [cols[k][i] for i in range(11) for k in range(4)]
        for sig in range(12, 16): step(sig)
        stamp(T, 5)
        t("v_add_f32 v8, v252, v253"); t("v_add_f32 v10, v254, v255"); t("v_mov_b32 v9, v8"); t("v_mov_b32 v11, v10"); t("s_nop 1")
        t("v_permlane32_swap_b32 v8, v9"); t("v_permlane32_swap_b32 v10, v11"); t("s_nop 1")
        t("v_add_f32 v8, v8, v9"); t("v_add_f32 v9, v10, v11")
        t("v_lshlrev_b32 v12, 3, v242"); t("s_lshl_b32 s33, s28, 8"); t("v_add_u32 v13, s33, v12")
        t("s_barrier")
        t("ds_write_b64 v13, v[8:9]")
        for aa in range(2):
            d = 244 if aa == 0 else 16
            pack_swap(T, ACCU+16*aa, d)
            for s_ in range(2): t(f"ds_write_b128 v{XO+2*aa+s_}, {vr(d+4*s_,4)} offset:16384")
        t("s_waitcnt lgkmcnt(0)"); t("s_barrier")
        for k in range(4): t(f"ds_read_b64 v[{24+2*k}:{25+2*k}], v12 offset:{256*k}")
        t("v_lshlrev_b32 v232, 4, v240"); t(f"s_add_u32 s33, s31, {EX}"); t("v_add_u32 v232, s33, v232")
        for k in range(4): t(f"ds_read_b128 {vr(96+4*k,4)}, v232 offset:{16384 + k*1024}")
        T.extend(cap(lambda e: (srd(e, 12, 's54', 's55', U_OFF, 8000*512), srd(e, 20, 's54', 's55', G_OFF, 8000*512))))
        t("s_lshl_b32 s56, s35, 14")
        t("s_waitcnt lgkmcnt(4)")
        t("v_add_f32 v24, v24, v26"); t("v_add_f32 v25, v25, v27"); t("v_add_f32 v28, v28, v30"); t("v_add_f32 v29, v29, v31")
        t("v_add_f32 v8, v24, v28"); t("v_add_f32 v9, v25, v29")
        t("v_mul_f32 v8, 0x3b800000, v8"); t("v_mul_f32 v9, 0x3b800000, v9")
        t("v_fma_f32 v9, -v8, v8, v9"); t("v_max_f32 v9, 0, v9"); t("v_add_f32 v9, 0x3727c5ac, v9")
        t("v_rsq_f32 v10, v9"); t("s_nop 0"); t("v_mul_f32 v12, v8, v10"); t("v_sub_f32 v12, 0, v12")
        t("s_waitcnt lgkmcnt(0)")
        for k in range(4): t(f"buffer_store_dwordx4 {vr(96+4*k,4)}, v{DS+k}, s[12:15], s56 offen offset:{k*1024}{ST}")
        for aa in range(2):
            for k in range(8):
                r = ACCG + 16*aa + 2*k
                t(f"v_pk_fma_f32 v[{r}:{r+1}], v[{r}:{r+1}], v[10:11], v[12:13] op_sel_hi:[1,0,0]")
            d = 32 + 8*aa
            pack_swap(T, ACCG+16*aa, d)
            for s_ in range(2): t(f"ds_write_b128 v{XO+2*aa+s_}, {vr(d+4*s_,4)}")
        t("s_waitcnt lgkmcnt(0)"); t("s_barrier")
        for k in range(4): t(f"ds_read_b128 {vr(112+4*k,4)}, v232 offset:{k*1024}")
        for k in range(4):
            t(f"s_waitcnt lgkmcnt({3-k})")
            t(f"buffer_store_dwordx4 {vr(112+4*k,4)}, v{DS+k}, s[20:23], s56 offen offset:{k*1024}{ST}")
        stamp(T, 6)
        finish(T, "K1_CT")
    W = Waiter(); T = []
    for s in range(8): W.issue('vm', ('X', s))
    dma_voff(T, False)
    T += cap(lambda e: (srd(e, 8, 's38', 's39', 0, 131072), srd(e, 12, 's40', 's41', 0, 131072),
                        srd(e, 20, 's54', 's55', XA_OFF, 8000*512), srd(e, 24, 's54', 's55', QF_OFF, 500*8192)))
    emit = [(n, 8, n*SLOT) for n in range(8)]
    for (n, sn, so) in emit[:npre]: emit_tile(T, W, n, sn, so)
    xb_setup(T); vn_setup(T)
    ln(T, W, emit[npre:o['nln']])
    if FF: T.append("buffer_load_dword v243, off, s[4:7], 0 sc1"); W.issue('vm', 'TAG')
    stamp(T, 1)
    ka_setup(T)
    stamp(T, 2)
    T.append("v_lshlrev_b32 v232, 4, v240"); T.append(f"s_add_u32 s33, s31, {EX}"); T.append("v_add_u32 v232, s33, v232")
    for half in range(2):
        for k in range(4):
            T.append(f"ds_read_b128 {vr(ACC[1]+(half*4+k)*4,4)}, v232 offset:{half*SLOT + k*1024}")
    T.append("s_waitcnt lgkmcnt(0)")
    T.append("s_lshl_b32 s34, s35, 15"); T.append("s_add_u32 s56, s34, 16384")
    xfill = []
    for half in range(2):
        for k in range(4):
            xfill.append((f"buffer_store_dwordx4 {vr(ACC[1]+(half*4+k)*4,4)}, v{DS+k}, s[20:23], {'s56' if half else 's34'} offen offset:{k*1024}{ST}", ('XS', half, k)))
    later = std_later(12)
    rest = emit[o['nln']:]
    if rest:
        later[0] = rest[:2]; later[1] = rest[2:4]
        if later[1] == [] : del later[1]
    tl0 = phase(W, 0, 'Y', later)
    for i, (txt, tag) in enumerate(xfill): tl0.add(1 + 2*i, 'vm', txt, tag=tag, prio=7)
    T += tl0.linearize()
    stamp(T, 3)
    exchange(T, W, ACC[0], 'Y')
    stamp(T, 4)
    T += phase(W, 1, 'X', later).linearize()
    stamp(T, 5)
    T.append("s_nop 15")
    T.append("v_mov_b32 v236, 0x3db8aa3b")
    T.append("s_lshl_b32 s33, s35, 2"); T.append("s_lshl_b32 s34, s29, 1"); T.append("s_add_u32 s33, s33, s34"); T.append("s_lshl_b32 s33, s33, 13")
    T.append("s_lshl_b32 s34, s30, 10"); T.append("s_add_u32 s33, s33, s34")
    T.append("v_lshrrev_b32 v232, 4, v242"); T.append("v_lshlrev_b32 v232, 13, v232")
    T.append("v_and_b32 v233, 15, v242"); T.append("v_lshl_add_u32 v233, v241, 4, v233")
    T.append("v_lshl_add_u32 v232, v233, 4, v232"); T.append("v_add_u32 v232, s33, v232")
    for a in range(4):
        d = 244 if a % 2 == 0 else 0
        pack_swap(T, ACC[1]+16*a, d, scale="v[236:237]")
        T.append(f"s_mov_b32 s33, {a*2048}")
        for s in range(2):
            T.append(f"buffer_store_dwordx4 {vr(d+4*s,4)}, v232, s[24:27], s33 offen offset:{s*512}{ST}")
    finish(T, "K1_Q")

    W = Waiter(); T = []
    for s in range(8): W.issue('vm', ('X', s))
    dma_voff(T, True)
    T += cap(lambda e: (srd(e, 8, 's46', 's47', 0, 262144),
                        srd(e, 20, 's54', 's55', U_OFF, 8000*512), srd(e, 24, 's54', 's55', G_OFF, 8000*512)))
    emit = [(n, 8, n*32768 + 512) for n in range(8)]
    for (n, sn, so) in emit[:npre]: emit_tile(T, W, n, sn, so)
    xb_setup(T); vn_setup(T)
    ln(T, W, emit[npre:o['nln']])
    if FF: T.append("buffer_load_dword v243, off, s[4:7], 0 sc1"); W.issue('vm', 'TAG')
    stamp(T, 2)
    gl = lambda n: (n, 8, (n-8)*32768)
    later = {2: [gl(8), gl(9)], 3: [gl(10), gl(11)], 4: [gl(12), gl(13)], 5: [gl(14), gl(15)]}
    rest = emit[o['nln']:]
    if rest:
        later[0] = rest[:2]; later[1] = rest[2:4]
    T += phase(W, 0, 'Y', later).linearize()
    stamp(T, 3)
    k0 = -2.0*1.4426950408889634*0.7978845608028654
    T.append(f"v_mov_b32 v232, {fb(k0)}"); T.append(f"v_mov_b32 v234, {fb(k0*0.044715)}"); T.append("v_mov_b32 v236, 1.0")
    for k in range(4): T.append(f"v_mov_b32 v{252+k}, 0")
    def gelu(r):
        t = 244 + 2*((r//2) % 4)
        X = f"v[{r}:{r+1}]"; Tt = f"v[{t}:{t+1}]"
        return [f"v_pk_mul_f32 {Tt}, {X}, {X}",
                f"v_pk_fma_f32 {Tt}, {Tt}, v[234:235], v[232:233] op_sel_hi:[1,0,0]",
                f"v_pk_mul_f32 {Tt}, {Tt}, {X}",
                f"v_exp_f32 v{t}, v{t}", f"v_exp_f32 v{t+1}, v{t+1}",
                f"v_pk_add_f32 {Tt}, {Tt}, v[236:237] op_sel_hi:[1,0]",
                f"v_rcp_f32 v{t}, v{t}", f"v_rcp_f32 v{t+1}, v{t+1}",
                f"v_pk_mul_f32 {X}, {X}, {Tt}",
                f"v_pk_add_f32 v[252:253], v[252:253], {X}",
                f"v_pk_fma_f32 v[254:255], {X}, {X}, v[254:255]"]
    fill = []
    g0 = ACC[0]
    for b in range(g0, g0+64, 8):
        cols = [gelu(b+2*k) for k in range(4)]
        for i in range(11):
            for k in range(4): fill.append(cols[k][i])
    T += phase(W, 1, 'Y', later, fill=fill, f0=4).linearize()
    stamp(T, 5)
    T.append("v_add_f32 v8, v252, v253"); T.append("v_add_f32 v10, v254, v255")
    T.append("v_mov_b32 v9, v8"); T.append("v_mov_b32 v11, v10"); T.append("s_nop 1")
    T.append("v_permlane32_swap_b32 v8, v9"); T.append("v_permlane32_swap_b32 v10, v11"); T.append("s_nop 1")
    T.append("v_add_f32 v8, v8, v9"); T.append("v_add_f32 v9, v10, v11")
    T.append("s_lshl_b32 s33, s29, 1"); T.append("s_add_u32 s33, s33, s30"); T.append("s_lshl_b32 s33, s33, 9"); T.append("s_add_u32 s33, s33, 32768")
    T.append("v_lshlrev_b32 v12, 3, v240"); T.append("v_add_u32 v13, s33, v12")
    T.append("s_xor_b32 s33, s33, 512"); T.append("v_add_u32 v14, s33, v12")
    T.append("ds_write_b64 v13, v[8:9]")
    for a in range(4):
        d = 244 if a % 2 == 0 else 16
        pack_swap(T, ACC[1]+16*a, d)
        for s in range(2):
            T.append(f"ds_write_b128 v{XB+2*a+s}, {vr(d+4*s,4)}")
    T.append("s_waitcnt lgkmcnt(0)"); T.append("s_barrier")
    T.append("ds_read_b64 v[10:11], v14")
    T.append("v_lshlrev_b32 v15, 4, v240"); T.append("v_add_u32 v15, s31, v15"); T.append(f"v_add_u32 v232, {EX}, v15")
    for half in range(2):
        for k in range(4):
            T.append(f"ds_read_b128 {vr(ACC[1]+(half*4+k)*4,4)}, v232 offset:{half*SLOT + k*1024}")
    for jj in range(8): T.append(f"v_subrev_u32 v{XB+jj}, {EX}, v{XB+jj}")
    T.append("s_waitcnt lgkmcnt(8)")
    T.append("v_add_f32 v8, v8, v10"); T.append("v_add_f32 v9, v9, v11")
    T.append("v_mul_f32 v8, 0x3b800000, v8"); T.append("v_mul_f32 v9, 0x3b800000, v9")
    T.append("v_fma_f32 v9, -v8, v8, v9"); T.append("v_max_f32 v9, 0, v9"); T.append("v_add_f32 v9, 0x3727c5ac, v9")
    T.append("v_rsq_f32 v10, v9"); T.append("s_nop 0")
    T.append("v_mul_f32 v12, v8, v10"); T.append("v_sub_f32 v12, 0, v12")
    T.append("s_lshl_b32 s32, s35, 15"); T.append("s_add_u32 s56, s32, 16384")
    T.append("s_waitcnt lgkmcnt(0)")
    ust = [f"buffer_store_dwordx4 {vr(ACC[1]+(half*4+k)*4,4)}, v{DS+k}, s[20:23], {'s56' if half else 's32'} offen offset:{k*1024}{ST}" for half in range(2) for k in range(4)]
    for a in range(4):
        for k in range(8):
            r = g0 + 16*a + 2*k
            T.append(f"v_pk_fma_f32 v[{r}:{r+1}], v[{r}:{r+1}], v[10:11], v[12:13] op_sel_hi:[1,0,0]")
        T.append(ust.pop(0))
        pack_swap(T, g0+16*a, 16+8*a)
        for s in range(2):
            T.append(f"ds_write_b128 v{XB+2*a+s}, {vr(16+8*a+4*s,4)}")
        T.append(ust.pop(0))
    stamp(T, 6)
    T.append("s_waitcnt lgkmcnt(0)"); T.append("s_barrier")
    for half in range(2):
        for k in range(4):
            T.append(f"ds_read_b128 {vr(ACC[0]+(half*4+k)*4,4)}, v15 offset:{half*SLOT + k*1024}")
    for half in range(2):
        for k in range(4):
            T.append(f"s_waitcnt lgkmcnt({7 - (half*4+k)})")
            T.append(f"buffer_store_dwordx4 {vr(ACC[0]+(half*4+k)*4,4)}, v{DS+k}, s[24:27], {'s56' if half else 's32'} offen offset:{k*1024}{ST}")
    stamp(T, 7)
    finish(T, "K1_UG")

    def wf_store(T, acc, which, slice_sreg):
        T.append(f"s_lshl_b32 s33, {slice_sreg}, 2"); T.append("s_lshl_b32 s34, s29, 1"); T.append("s_add_u32 s33, s33, s34"); T.append("s_lshl_b32 s33, s33, 14")
        T.append("s_lshl_b32 s34, s30, 10"); T.append("s_add_u32 s33, s33, s34")
        if which == 2: T.append("s_add_u32 s33, s33, 8192")
        T.append("v_lshrrev_b32 v232, 4, v242"); T.append("v_lshlrev_b32 v232, 14, v232")
        T.append("v_and_b32 v233, 15, v242"); T.append("v_lshl_add_u32 v233, v241, 4, v233")
        T.append("v_lshl_add_u32 v232, v233, 4, v232"); T.append("v_add_u32 v232, s33, v232")
        for a in range(4):
            d = 244; src = acc + 16*a
            if which == 1:
                for k, r in enumerate((0, 2, 8, 10, 4, 6, 12, 14)):
                    T.append(f"v_cvt_pk_bf16_f32 v{d+k}, v{src+r}, v{src+r+1}")
            else:
                pack_swap(T, src, d)
            T.append(f"s_mov_b32 s33, {a*2048}")
            for s in range(2):
                T.append(f"buffer_store_dwordx4 {vr(d+4*s,4)}, v232, s[24:27], s33 offen offset:{s*512}{ST}")
            T.append("s_nop 1")
    W = Waiter(); T = []
    dma_voff(T, False)
    T.append("s_sub_u32 s35, s2, 250")
    T += cap(lambda e: (srd(e, 16, 's52', 's53', 0, 262144), srd(e, 8, 's44', 's45', 0, 131072), srd(e, 12, 's42', 's43', 0, 131072),
                        srd(e, 24, 's54', 's55', WF_OFF, 262144)))
    narrow(T, W, 0, 's35')
    for n in range(3): emit_tile(T, W, n, 8, n*SLOT)
    ka_setup(T)
    narrow_read(T, W)
    for n in range(3, 8): emit_tile(T, W, n, 8, n*SLOT)
    if FF: T.append("buffer_load_dword v243, off, s[4:7], 0 sc1"); W.issue('vm', 'TAG')
    later = std_later(12)
    T += phase(W, 0, 'X', later).linearize()
    T.append("s_barrier")
    exchange(T, W, ACC[0], 'X')
    T += phase(W, 1, 'X', later).linearize()
    T.append("s_nop 15")
    wf_store(T, ACC[1], 1, 's35')
    finish(T, "K1_W1")

    W = Waiter(); T = []
    if not FUSED: T += cap(lambda e: srd(e, 20, 's54', 's55', FL_OFF, 8192))
    if not FUSED:
        T.append("v_lshlrev_b32 v232, 5, v0")
        for k in range(4): T.append(f"v_mov_b32 v{236+k}, 0")
        T.append("buffer_store_dwordx4 v[236:239], v232, s[20:23], 0 offen sc1")
        T.append("buffer_store_dwordx4 v[236:239], v232, s[20:23], 0 offen offset:16 sc1")
        W.issue('vm', 'Z0'); W.issue('vm', 'Z1')
    dma_voff(T, False)
    T.append("s_sub_u32 s35, s2, 254"); T.append("s_lshl_b32 s35, s35, 1")
    T += cap(lambda e: (srd(e, 16, 's52', 's53', 0, 262144), srd(e, 8, 's50', 's51', 0, 131072),
                        srd(e, 24, 's54', 's55', WF_OFF, 262144)))
    narrow(T, W, 131072, 's35')
    for n in range(3): emit_tile(T, W, n, 8, n*SLOT)
    ka_setup(T)
    narrow_read(T, W)
    for n in range(3, 8): emit_tile(T, W, n, 8, n*SLOT)
    if FF: T.append("buffer_load_dword v243, off, s[4:7], 0 sc1"); W.issue('vm', 'TAG')
    T.append("s_barrier")
    T.append("s_add_u32 s56, s35, 1")
    narrow(T, W, 131072, 's56')
    later = std_later(8)
    T += phase(W, 0, 'X', later).linearize()
    T.append("s_nop 15")
    wf_store(T, ACC[0], 2, 's35')
    for i in range(8): W.issue('vm', ('WS', i))
    narrow_read(T, W)
    T += phase(W, 1, 'X', later).linearize()
    T.append("s_nop 15")
    wf_store(T, ACC[1], 2, 's56')
    finish(T, "K1_W2")

    e("K1_FIN:")
    if FUSED:
        if o['stamp']:
            e("s_waitcnt vmcnt(0)"); e("s_memtime s[64:65]"); e("s_memrealtime s[66:67]"); e("s_waitcnt lgkmcnt(0)")
            e("s_cmp_eq_u32 s28, 0"); e("s_cbranch_scc0 K1_NOST")
            e("s_add_u32 s68, s54, 0x8100000"); e("s_addc_u32 s69, s55, 0"); e("s_mov_b32 s70, 0x100000"); e("s_mov_b32 s71, 0x20000")
            for k, r in enumerate([60, 64, 62, 66]): e(f"v_mov_b32 v{232+k}, s{r}")
            e("s_lshl_b32 s33, s2, 4"); e("v_mov_b32 v236, s33")
            e("buffer_store_dwordx4 v[232:235], v236, s[68:71], 0 offen")
            for k in range(8): e(f"v_mov_b32 v{244+k}, s{72+2*k}")
            e("s_lshl_b32 s33, s2, 5"); e("s_add_u32 s33, s33, 0x10000"); e("v_mov_b32 v236, s33")
            e("buffer_store_dwordx4 v[244:247], v236, s[68:71], 0 offen")
            e("buffer_store_dwordx4 v[248:251], v236, s[68:71], 0 offen offset:16")
            e("K1_NOST:")
        if FF:
            e("s_lshl_b32 s33, s2, 7")
            fa, fb_ = (FLU, FLQ) if o.get('ugfirst', True) else (FLQ, FLU)
            e(f"s_add_u32 s67, s33, {fa}")
            e(f"s_add_u32 s56, s33, {fb_ - 125*128}"); e("s_cmp_ge_u32 s2, 125"); e("s_cselect_b32 s67, s56, s67")
            e(f"s_add_u32 s56, s33, {FLW - 250*128}"); e("s_cmp_ge_u32 s2, 250"); e("s_cselect_b32 s67, s56, s67")
            for k in range(4): e(f"s_mov_b32 s{92+k}, s{4+k}")
            for x in ["s_mov_b32 s4, s54", "s_mov_b32 s5, s55", "s_mov_b32 s32, s48", "s_mov_b32 s33, s49", "s_mov_b32 s40, s100", "s_mov_b32 s41, s101", "s_mov_b32 s48, s28"]: e(x)
            return L, [], []
        e("K1_TAGP:")
        e("buffer_load_dword v232, off, s[4:7], 0 sc1")
        e("s_waitcnt vmcnt(0) lgkmcnt(0)")
        e("v_readfirstlane_b32 s3, v232")
        e("s_nop 3")
        e("s_cmp_lg_u32 s3, 0"); e("s_cbranch_scc1 K1_TAGD"); e("s_sleep 1")
        e("s_add_u32 s101, s101, 1"); e("s_cmp_lt_u32 s101, 0x400000"); e("s_cbranch_scc1 K1_TAGP")
        e("K1_TAGD:")
        e("s_barrier")
        e("s_cmp_eq_u32 s28, 0"); e("s_cbranch_scc0 K1_NOFL")
        e("s_lshl_b32 s33, s2, 7")
        fa, fb_ = (FLU, FLQ) if o.get('ugfirst', True) else (FLQ, FLU)
        if CT:
            e(f"s_add_u32 s34, s33, {FLU}")
        else:
            e(f"s_add_u32 s34, s33, {fa}")
            e(f"s_add_u32 s56, s33, {fb_ - 125*128}"); e("s_cmp_ge_u32 s2, 125"); e("s_cselect_b32 s34, s56, s34")
        e(f"s_add_u32 s56, s33, {FLW - 250*128}"); e("s_cmp_ge_u32 s2, 250"); e("s_cselect_b32 s34, s56, s34")
        srd(e, 8, 's54', 's55', FL_OFF, FL_SIZE)
        e("v_mov_b32 v232, s3")
        e("v_cmp_eq_u32 vcc, 0, v240"); e("s_and_saveexec_b64 s[56:57], vcc")
        e("buffer_store_dword v232, off, s[8:11], s34 sc1")
        if CT:
            e(f"s_add_u32 s34, s33, {FLQ}"); e("s_cmp_lt_u32 s2, 250"); e("s_cbranch_scc0 K1_NOFL2")
            e("buffer_store_dword v232, off, s[8:11], s34 sc1")
            e("K1_NOFL2:")
        e("s_mov_b64 exec, s[56:57]")
        e("K1_NOFL:")
        e("s_mov_b32 s48, s28")
        return L, [], []
    if o['stamp']:
        e("s_waitcnt vmcnt(0)")
        e("s_memtime s[64:65]"); e("s_memrealtime s[66:67]")
        e("s_waitcnt lgkmcnt(0)")
        e("s_cmp_eq_u32 s28, 0"); e("s_cbranch_scc0 K1_END")
        e("s_add_u32 s68, s54, 0x8100000"); e("s_addc_u32 s69, s55, 0"); e("s_mov_b32 s70, 0x100000"); e("s_mov_b32 s71, 0x20000")
        for k, r in enumerate([60, 64, 62, 66]): e(f"v_mov_b32 v{232+k}, s{r}")
        e("s_lshl_b32 s33, s2, 4"); e("v_mov_b32 v236, s33")
        e("buffer_store_dwordx4 v[232:235], v236, s[68:71], 0 offen")
        for k in range(8): e(f"v_mov_b32 v{244+k}, s{72+2*k}")
        e("s_lshl_b32 s33, s2, 5"); e("s_add_u32 s33, s33, 0x10000"); e("v_mov_b32 v236, s33")
        e("buffer_store_dwordx4 v[244:247], v236, s[68:71], 0 offen")
        e("buffer_store_dwordx4 v[248:251], v236, s[68:71], 0 offen offset:16")
    e("K1_END:")
    e("s_endpgm")
    return L, kernel_desc(name, 288, 256), []
```

```python
from gen_common import *
import hazard, struct
SLOT = 16384
M16 = "v_mfma_f32_16x16x32_bf16"
fb = lambda x: hex(struct.unpack('<I', struct.pack('<f', x))[0])
EXT = 131072
MX = EXT
OWN = EXT + 4096
OWNML = EXT + 20480
ACT = 0

def gen_k2f(opt=None):
    o = dict(DF=3, stamp=False, bslot=8, dma0=10, dmastep=4, e0=37, e1=93, estep=4, cvtd=1, addd=1, fused=True)
    if opt: o.update(opt)
    name = 'attn_kernel'
    L = []; e = L.append
    O = 0; S = 128; P = [160, 176]; NEGM = 192; RING = 208; KA = 232; VA = 236; DV = 244; LS = 248; MREF = 252
    aQ = 0; aO = 128
    def Oreg(dt, qt): return vr(O + (dt*2+qt)*4, 4) if qt < 2 else ar(aO + (dt*2+qt-2)*4, 4)
    def Sreg(kt, qt): return S + (kt*4+qt)*4
    FUSED = o.get('fusedk')
    CS = ' sc1' if (FUSED and o.get('csc1', True)) else ''
    if not FUSED:
        L += kernel_header(name)
        e("s_cmp_ge_u32 s2, 256")
        e("s_cbranch_scc1 K2_END")
    FF = FUSED and o.get('fastfin')
    if not FF:
        e("s_load_dwordx2 s[4:5], s[0:1], 88")
        e("s_load_dwordx2 s[6:7], s[0:1], 80")
        e("s_load_dwordx2 s[36:37], s[0:1], 0")
        e("s_load_dwordx2 s[32:33], s[0:1], 48")
        e("s_load_dwordx2 s[40:41], s[0:1], 72")
    if o['stamp']:
        e("s_memtime s[72:73]"); e("s_memrealtime s[74:75]")
    T = []; t = T.append
    if FUSED:
        t("v_mbcnt_lo_u32_b32 v131, -1, 0"); t("v_mbcnt_hi_u32_b32 v131, -1, v131")
    else:
        t("v_lshrrev_b32 v130, 6, v0")
        t("v_and_b32 v131, 63, v0")
        t("v_readfirstlane_b32 s48, v130")
    t("s_and_b32 s60, s2, 7")
    t("s_lshr_b32 s61, s2, 3")
    t("s_lshr_b32 s51, s60, 2")
    t("s_and_b32 s53, s61, 3")
    t("s_lshr_b32 s61, s61, 2")
    t("s_and_b32 s52, s60, 3")
    t("s_lshl_b32 s52, s52, 3")
    t("s_add_u32 s52, s52, s61")
    t("s_and_b32 s49, s48, 1")
    t("s_lshr_b32 s50, s48, 1")
    t("s_lshl_b32 s54, s53, 5")
    t("s_lshl_b32 s60, s50, 4")
    t("s_add_u32 s54, s54, s60")
    t("s_max_u32 s60, s53, 1")
    t("s_sub_u32 s60, s60, 1")
    t("s_sub_u32 s54, s54, s60")
    t("s_min_u32 s60, s53, 1")
    t("s_and_b32 s60, s60, s50")
    t("s_sub_u32 s55, 16, s60")
    t("s_lshl_b32 s55, s55, 14")
    t("s_cmp_eq_u32 s60, 1")
    t("s_cselect_b32 s59, 3, 0xffff")
    t("s_lshl_b32 s54, s54, 14")
    t("s_mul_i32 s60, s51, 2048000")
    t("s_add_u32 s54, s54, s60")
    def dv_setup(t):
        t("v_and_b32 v132, 15, v131")
        t("v_lshrrev_b32 v133, 4, v131")
        t("v_lshrrev_b32 v134, 5, v131")
        t("v_and_b32 v135, 31, v131")
        t("s_lshl_b32 s60, s49, 13")
        for k in range(4):
            t(f"v_add_u32 v136, {2*k}, v134")
            t("v_lshlrev_b32 v136, 1, v136")
            t("v_xor_b32 v136, v135, v136")
            t("v_lshlrev_b32 v136, 4, v136")
            t("v_lshl_add_u32 v136, v134, 9, v136")
            t(f"v_add_u32 v{DV+k}, s60, v136")
    dv_setup(t)
    t("s_waitcnt lgkmcnt(0)")
    def S_(fn):
        buf = []; fn(buf.append); T.extend(buf)
    S_(lambda e: srd(e, 8, 's4', 's5', 's54', 's55'))
    S_(lambda e: srd(e, 12, 's4', 's5', QF_OFF, 500*8192))
    t("s_getreg_b32 s63, hwreg(HW_REG_XCC_ID, 0, 3)")
    t("s_or_b32 s63, s63, 8")
    S_(lambda e: srd(e, 44, 's4', 's5', FL_OFF, FL_SIZE if FUSED else 8192))
    t("s_lshl_b32 s65, s51, 5"); t("s_add_u32 s65, s65, s52")
    xcc0 = len(T)
    t("s_cmp_eq_u32 s48, 0"); t("s_cbranch_scc0 K2_NOXCC")
    t("s_lshl_b32 s60, s65, 7"); t("s_lshl_b32 s61, s53, 2"); t("s_add_u32 s60, s60, s61")
    if FUSED:
        t("s_add_u32 s60, s60, 16"); t("s_xor_b32 s61, s63, s3"); t("v_mov_b32 v137, s61")
    else:
        t("v_mov_b32 v137, s63")
    t("v_cmp_eq_u32 vcc, 0, v131"); t("s_and_saveexec_b64 s[70:71], vcc")
    t("buffer_store_dword v137, off, s[44:47], s60 sc1")
    t("s_mov_b64 exec, s[70:71]")
    t("K2_NOXCC:")
    xcc_blk = T[xcc0:]
    if FUSED: del T[xcc0:]
    t("s_lshl_b32 s56, s50, 16"); t("s_lshl_b32 s60, s49, 13"); t("s_add_u32 s56, s56, s60")
    t("s_mov_b32 s57, 0"); t("s_mov_b32 s54, 0")
    def cap_(fn):
        buf = []; fn(buf.append); return buf
    def dma_lines(slot):
        r = []
        for k in range(8):
            if k % 4 == 0:
                r.append((f"s_add_u32 m0, s56, {slot*SLOT + (k//4)*4096:#x}", False))
                if k: r.append(("s_add_u32 s57, s57, 4096", False))
                else: r.append(("s_nop 0", False))
            r.append((f"buffer_load_dwordx4 v{DV+k%4}, s[8:11], s57 offen offset:{(k%4)*1024}{CS} lds", True))
        r.append((f"s_add_u32 s57, s57, {SLOT-4096}", False))
        return r
    pre_dma = len(T)
    for txt, _ in dma_lines(0): t(txt)
    QST = [49152, 114688, 131072, 147456]
    def q_dma(t):
        t("v_lshlrev_b32 v137, 4, v131")
        t("s_mul_i32 s60, s51, 250"); t("s_lshl_b32 s61, s52, 3"); t("s_add_u32 s60, s60, s61")
        t("s_lshl_b32 s61, s48, 1"); t("s_add_u32 s60, s60, s61"); t("s_lshl_b32 s60, s60, 13")
        t("s_lshl_b32 s61, s48, 14"); t("s_add_u32 s61, s61, 98304"); t("s_cmp_eq_u32 s48, 0"); t("s_cselect_b32 s61, 49152, s61")
        for g in range(4):
            t(f"s_add_u32 m0, s61, {g*4096}")
            if g: t("s_add_u32 s60, s60, 4096")
            else: t("s_nop 0")
            for k in range(4):
                t(f"buffer_load_dwordx4 v137, s[12:15], s60 offen offset:{k*1024}{CS} lds")
    def q_read(t):
        t("v_lshlrev_b32 v137, 4, v131")
        for qt in range(4):
            t(f"s_lshl_b32 s60, s50, 1"); t(f"s_add_u32 s60, s60, {qt}"); t("s_and_b32 s60, s60, 3")
            t("s_lshl_b32 s61, s49, 2"); t("s_add_u32 s60, s60, s61")
            t("s_lshr_b32 s61, s60, 1"); t("s_lshl_b32 s62, s61, 14"); t("s_add_u32 s62, s62, 98304")
            t("s_cmp_eq_u32 s61, 0"); t("s_cselect_b32 s62, 49152, s62")
            t("s_and_b32 s60, s60, 1"); t("s_lshl_b32 s60, s60, 13"); t("s_add_u32 s62, s62, s60")
            t(f"v_add_u32 v{140+qt}, s62, v137")
    def q_read2(t):
        for j in range(8):
            for qt in range(4):
                t(f"ds_read_b128 {ar(aQ+(qt*8+j)*4,4)}, v{140+qt} offset:{j*1024}")
    q_dma(t)
    for n in (1, 2):
        for txt, _ in dma_lines(n): t(txt)
    def kava_setup(t):
        t("v_and_b32 v136, 7, v132"); t("v_lshlrev_b32 v136, 1, v136")
        t("v_lshlrev_b32 v138, 9, v132")
        t("s_lshl_b32 s60, s50, 16"); t("v_add_u32 v138, s60, v138")
        for jj in range(4):
            t(f"v_add_u32 v139, {4*jj}, v133")
            t("v_xor_b32 v139, v139, v136")
            t(f"v_lshl_add_u32 v{KA+jj}, v139, 4, v138")
        t("v_lshrrev_b32 v136, 2, v132")
        t("v_lshl_add_u32 v136, v133, 2, v136")
        t("v_lshlrev_b32 v138, 9, v136")
        t("v_add_u32 v138, s60, v138")
        t("v_and_b32 v139, 1, v132"); t("v_lshl_add_u32 v138, v139, 3, v138")
        t("v_and_b32 v136, 7, v136"); t("v_lshlrev_b32 v136, 1, v136")
        t("v_bfe_u32 v139, v132, 1, 1")
        for dd in range(8):
            t(f"v_add_u32 v140, {2*dd}, v139")
            t("v_xor_b32 v140, v140, v136")
            t(f"v_lshl_add_u32 v{VA+dd}, v140, 4, v138")
    t("@KAVA")
    kava_setup(t)
    for r in range(128): t(f"v_mov_b32 v{O+r}, 0")
    for r in range(128): t(f"v_accvgpr_write_b32 a{aO+r}, 0")
    for k in range(4): t(f"v_mov_b32 v{LS+k}, 0")
    if o.get('pkadd'):
        for k in range(8): t(f"v_mov_b32 v{224+k}, 0")
    t("s_mov_b32 s58, 0")
    q_read(t)
    if FUSED:
        i_kava = T.index("@KAVA")
        loads = T[pre_dma:i_kava]
        rest = T[i_kava+1:]
        T[:] = T[:pre_dma]
        if o.get('ct'):
            t("s_lshl_b32 s60, s53, 5"); t("s_max_u32 s61, s53, 1"); t("s_sub_u32 s61, s61, 1"); t("s_sub_u32 s60, s60, s61")
            t("s_lshl_b32 s62, s52, 2"); t("s_sub_u32 s62, s62, 32")
            t("v_add_u32 v150, s60, v131"); t("v_add_u32 v151, s62, v131")
            t("v_cmp_gt_u32 vcc, 32, v131"); t("s_nop 1"); t("v_cndmask_b32 v150, v151, v150, vcc")
            t("s_lshl_b32 s62, s52, 2"); t("v_mov_b32 v151, s62")
            t("v_cmp_gt_u32 vcc, 36, v131"); t("s_nop 1"); t("v_cndmask_b32 v150, v151, v150, vcc")
            t("v_min_u32 v150, 124, v150")
            t("s_mul_i32 s61, s51, 125"); t("v_add_u32 v150, s61, v150")
        else:
            t("s_lshl_b32 s60, s53, 5"); t("s_max_u32 s61, s53, 1"); t("s_sub_u32 s61, s61, 1"); t("s_sub_u32 s60, s60, s61")
            t("s_lshl_b32 s60, s60, 5"); t("s_mul_i32 s61, s51, 4000"); t("s_add_u32 s60, s60, s61"); t("s_lshr_b32 s60, s60, 6")
            t("s_lshl_b32 s62, s52, 7"); t("s_add_u32 s62, s62, s61"); t("s_lshr_b32 s62, s62, 6")
            t("v_add_u32 v150, s60, v131")
            t("v_add_u32 v151, s62, v131"); t("v_subrev_u32 v151, 18, v151")
            t("v_cmp_gt_u32 vcc, 18, v131"); t("s_nop 1"); t("v_cndmask_b32 v150, v151, v150, vcc")
            t("v_mov_b32 v151, s62")
            t("v_cmp_gt_u32 vcc, 21, v131"); t("s_nop 1"); t("v_cndmask_b32 v150, v151, v150, vcc")
            t("v_min_u32 v150, 124, v150")
        t("v_lshlrev_b32 v150, 7, v150"); t(f"v_add_u32 v150, {FLQ}, v150")
        if o.get('wfpf', False):
            t("v_subrev_u32 v151, 40, v131"); t("v_lshlrev_b32 v152, 7, v151"); t(f"v_add_u32 v152, {FLW}, v152")
            t("v_cmp_gt_u32 vcc, 6, v151"); t("s_nop 1"); t("v_cndmask_b32 v150, v150, v152, vcc")
        if FF:
            t("buffer_load_dword v151, v150, s[44:47], 0 offen sc1")
            t("s_waitcnt vmcnt(0) lgkmcnt(0)")
            t("v_readfirstlane_b32 s3, v243")
            t("s_nop 3")
            t("s_cmp_lg_u32 s3, 0"); t("s_cbranch_scc1 K1_TAGD")
            t("K1_TAGP:")
            t("buffer_load_dword v243, off, s[92:95], 0 sc1"); t("s_waitcnt vmcnt(0)")
            t("v_readfirstlane_b32 s3, v243"); t("s_nop 3")
            t("s_cmp_lg_u32 s3, 0"); t("s_cbranch_scc1 K1_TAGD"); t("s_sleep 1")
            t("s_add_u32 s101, s101, 1"); t("s_cmp_lt_u32 s101, 0x400000"); t("s_cbranch_scc1 K1_TAGP")
            t("K1_TAGD:")
            t("s_barrier")
            t("s_cmp_eq_u32 s48, 0"); t("s_cbranch_scc0 K1_NOFL")
            t("v_mov_b32 v152, s3")
            t("v_cmp_eq_u32 vcc, 0, v131"); t("s_and_saveexec_b64 s[70:71], vcc")
            t("buffer_store_dword v152, off, s[44:47], s67 sc1")
            t("s_mov_b64 exec, s[70:71]")
            t("K1_NOFL:")
            t("v_cmp_ne_u32 vcc, s3, v151"); t("s_nop 1"); t("s_cmp_eq_u64 vcc, 0"); t("s_cbranch_scc1 K2_QD")
        t("K2_QP:")
        t("buffer_load_dword v151, v150, s[44:47], 0 offen sc1")
        t("s_waitcnt vmcnt(0)")
        t("v_cmp_ne_u32 vcc, s3, v151")
        t("s_nop 1")
        t("s_cmp_eq_u64 vcc, 0"); t("s_cbranch_scc1 K2_QD"); t("s_sleep 1")
        t("s_add_u32 s101, s101, 1"); t("s_cmp_lt_u32 s101, 0x400000"); t("s_cbranch_scc1 K2_QP")
        t("K2_QD:")
        T.extend(loads)
        if o.get('wfpf', False):
            T.extend(cap_(lambda e: srd(e, 16, 's4', 's5', WF_OFF, 262144)))
            t("s_lshr_b32 s60, s2, 3"); t("s_lshl_b32 s60, s60, 13"); t("s_lshl_b32 s61, s48, 11"); t("s_add_u32 s60, s60, s61")
            t("v_lshlrev_b32 v150, 4, v131")
            t("buffer_load_dwordx4 v[224:227], v150, s[16:19], s60 offen sc1")
            t("buffer_load_dwordx4 v[228:231], v150, s[16:19], s60 offen offset:1024 sc1")
        T.extend(xcc_blk)
        T.extend(rest)
    else:
        T.remove("@KAVA")
    t("s_waitcnt vmcnt(18)" if (FUSED and o.get('wfpf', False)) else "s_waitcnt vmcnt(16)")
    t("s_barrier")
    if o['stamp']: t("s_memtime s[76:77]"); t("s_memrealtime s[78:79]"); t("s_waitcnt lgkmcnt(0)")
    q_read2(t)
    L += hazard.autofix(T)
    DF = o['DF']
    ev = []; seq = [0]
    def add(tm, kind, prio=5, **kw):
        seq[0] += 1; ev.append((tm, prio, seq[0], kind, kw))
    def TT(i, n): return 128*i + n
    NT = 16
    for n in range(NT):
        slot = n % 4
        for kt in range(2):
            for j in range(8):
                f = 8*kt + j
                tm = TT(n-1, 4*f); tr = tm - 4*DF
                ring = RING + 4*(f % 4)
                off = slot*SLOT + kt*8192 + (j >> 2)*256
                add(tr, 'lds', prio=2, text=f"ds_read_b128 {vr(ring,4)}, v{KA+(j&3)} offset:{off}", tag=('K', n, f))
                if n < NT:
                    for qt in range(4):
                        acc = vr(Sreg(kt, qt), 4)
                        c = acc if j else ('0' if n == 0 else vr(NEGM+4*qt, 4))
                        add(tm+qt, 'mfma', prio=0, text=f"{M16} {acc}, {vr(ring,4)}, {ar(aQ+(qt*8+j)*4,4)}, {c}",
                            need=([('K', n, f)] if qt == 0 else []) + ([('Q', qt, j)] if n == 0 else []))
    for n in range(NT):
        slot = n % 4
        for dt in range(16):
            f = 16 + dt
            tm = TT(n, 4*f); tr = tm - 4*DF
            ring = RING + 4*(f % 4)
            for u in range(2):
                off = slot*SLOT + u*8192 + (dt >> 3)*256
                add(tr, 'lds', prio=2, text=f"ds_read_b64_tr_b16 {vr(ring+2*u,2)}, v{VA+(dt&7)} offset:{off}", tag=('V', n, dt, u))
            for qt in range(4):
                add(tm+qt, 'mfma', prio=0, text=f"{M16} {Oreg(dt,qt)}, {vr(ring,4)}, {vr(P[n%2]+4*qt,4)}, {Oreg(dt,qt)}",
                    need=[('V', n, dt, 0), ('V', n, dt, 1)] if qt == 0 else [])
        for kt in range(2):
            for el in range(16 if o.get('valu', True) else 0):
                qt, r = el >> 2, el & 3
                te = TT(n-1, (o['e0'] if kt == 0 else o['e1']) + o['estep']*el)
                reg = Sreg(kt, qt) + r
                add(te, 'valu', prio=3, text=f"v_exp_f32 v{reg}, v{reg}")
                if not o.get('pkadd'):
                    add(te+o['addd'], 'valu', prio=3, text=f"v_add_f32 v{LS+qt}, v{LS+qt}, v{reg}")
                elif r % 2 == 1:
                    add(te+o['addd'], 'valu', prio=3, text=f"v_pk_add_f32 v[{224+2*qt}:{225+2*qt}], v[{224+2*qt}:{225+2*qt}], v[{reg-1}:{reg}]")
                if r % 2 == 1:
                    add(te+o['cvtd'], 'valu', prio=4, text=f"v_cvt_pk_bf16_f32 v{P[n%2]+4*qt+2*kt+r//2}, v{reg-1}, v{reg}")
    for i in range(-1, NT-2):
        add(TT(i, o['bslot']), 'bar', prio=6, it=i)
        if i >= 0 and i + 3 < NT and o.get('dma', True):
            k = 0
            for txt, vm in dma_lines((i+3) % 4):
                tm = TT(i, o['dma0'] + o['dmastep']*k)
                if vm:
                    add(tm, 'dma', prio=7, text=txt, tile=i+3); k += 1
                else:
                    add(tm if k < 8 else TT(i, o['dma0'] + o['dmastep']*7), 'salu', prio=6 if k < 8 else 8, text=txt)
    tail_ev = []
    ev.sort(key=lambda x: (x[0], x[1], x[2]))
    W = Waiter()
    for n in (1, 2):
        for k in range(8): W.issue('vm', ('T', n))
    if FUSED and o.get('wfpf', False):
        W.issue('vm', 'PF0'); W.issue('vm', 'PF1')
    for j in range(8):
        for qt in range(4): W.issue('lgkm', ('Q', qt, j))
    its = {}
    for x in ev:
        tm, _, _, kind, kw = x
        it = max(tm // 128, -1)
        out = its.setdefault(it, [])
        if kind == 'mfma':
            n = W.need('lgkm', kw['need'])
            if n is not None: out.append(f"s_waitcnt lgkmcnt({n})")
            out.append(kw['text'])
            if tm == TT(-1, 63):
                out.append("@FIXUP")
        elif kind == 'lds':
            out.append(kw['text']); W.issue('lgkm', kw['tag'])
        elif kind == 'bar':
            n = W.need('vm', [('T', kw['it']+2)])
            if n is not None: out.append(f"s_waitcnt vmcnt({n})")
            if o.get('barrier', True) or kw['it'] < 0: out.append("s_barrier")
        elif kind == 'dma':
            out.append(kw['text']); W.issue('vm', ('T', kw['tile']))
        else:
            out.append(kw['text'])
    for i in range(8, 13):
        assert its[i] == its[i-4], (i, [(a, b) for a, b in zip(its[i], its[i-4]) if a != b][:5])
    pro = its[-1]
    fi = pro.index("@FIXUP")
    if not o.get('valu', True):
        its[15] = its[15] + ["v_add_f32 v248, v248, v248"]
    pre_valu = [x for x in pro[:fi] if x.startswith('v_exp') or x.startswith('v_add_f32') or x.startswith('v_cvt') or x.startswith('v_pk_add')]
    pro_a = [x for x in pro[:fi] if x not in pre_valu]
    fix = []
    fx = fix.append
    fx("s_nop 7")
    for qt in range(4):
        a, b = Sreg(0, qt), Sreg(1, qt)
        fx(f"v_max3_f32 v{NEGM+qt}, v{a}, v{a+1}, v{a+2}")
        fx(f"v_max3_f32 v{NEGM+qt}, v{NEGM+qt}, v{a+3}, v{b}")
        fx(f"v_max3_f32 v{NEGM+qt}, v{NEGM+qt}, v{b+1}, v{b+2}")
        fx(f"v_max_f32 v{NEGM+qt}, v{NEGM+qt}, v{b+3}")
    for sw in ("v_permlane16_swap_b32", "v_permlane32_swap_b32"):
        for qt in range(4): fx(f"v_mov_b32 v{NEGM+4+qt}, v{NEGM+qt}")
        fx("s_nop 1")
        for qt in range(4): fx(f"{sw} v{NEGM+qt}, v{NEGM+4+qt}")
        fx("s_nop 1")
        for qt in range(4): fx(f"v_max_f32 v{NEGM+qt}, v{NEGM+qt}, v{NEGM+4+qt}")
    fx("v_mbcnt_lo_u32_b32 v254, -1, 0"); fx("v_mbcnt_hi_u32_b32 v254, -1, v254")
    fx("v_lshlrev_b32 v254, 4, v254")
    fx(f"s_lshl_b32 s60, s48, 10"); fx(f"s_add_u32 s60, s60, {MX}")
    fx("v_add_u32 v255, s60, v254")
    fx(f"ds_write_b128 v255, {vr(NEGM,4)}")
    fx("s_xor_b32 s60, s60, 2048")
    fx("v_add_u32 v255, s60, v254")
    fx("s_waitcnt lgkmcnt(0)")
    fx("s_barrier")
    fx(f"ds_read_b128 {vr(NEGM+4,4)}, v255")
    fx("s_waitcnt lgkmcnt(0)")
    for qt in range(4): fx(f"v_max_f32 v{NEGM+8+qt}, v{NEGM+qt}, v{NEGM+4+((qt+2)&3)}")
    fx(f"v_mov_b32 v{MREF}, v{NEGM+8}"); fx(f"v_mov_b32 v{MREF+1}, v{NEGM+9}")
    for kt in range(2):
        for qt in range(4):
            for r in range(4): fx(f"v_sub_f32 v{Sreg(kt,qt)+r}, v{Sreg(kt,qt)+r}, v{NEGM+8+qt}")
    for qt in range(4): fx(f"v_mov_b32 v{254}, v{NEGM+8+qt}") if False else None
    for qt in (3, 1, 0):
        for r in range(4): fx(f"v_sub_f32 v{NEGM+4*qt+r}, 0, v{NEGM+8+qt}") if qt != 2 else None
    fx(f"v_sub_f32 v254, 0, v{NEGM+10}")
    for r in range(4): fx(f"v_mov_b32 v{NEGM+8+r}, v254")
    L += hazard.autofix(pro_a + fix + pre_valu + pro[fi+1:])
    if o['stamp']:
        e("s_memtime s[24:25]")
    e("K2_LOOP:")
    body = {u: its[4+u] for u in range(4)}
    L += body[0]
    e("s_cmp_eq_u32 s58, 3")
    e("s_cbranch_scc1 K2_EPI")
    L += body[1]; L += body[2]; L += body[3]
    e("s_add_u32 s58, s58, 1")
    e("s_branch K2_LOOP")
    e("K2_EPI:")
    if o['stamp']:
        e("s_memtime s[26:27]"); e("s_waitcnt lgkmcnt(0)"); e("s_sub_u32 s101, s26, s24"); e("s_sub_u32 s100, s24, s76")
    if FUSED:
        TA, TB, TC = (248, 249, 250) if o.get('pkadd') else (224, 225, 226)
        pre13 = []
        p = pre13.append
        p("s_lshl_b32 s60, s52, 7"); p("s_lshl_b32 s61, s53, 5"); p("s_add_u32 s60, s60, s61"); p("s_min_u32 s60, s60, 3968")
        p("s_mul_i32 s61, s51, 4000"); p("s_add_u32 s60, s60, s61")
        sh = 5 if o.get('ct') else 6
        if o.get('ct'):
            p("s_lshr_b32 s62, s60, 5")
        p("s_max_u32 s61, s60, 2"); p("s_sub_u32 s61, s61, 2"); p(f"s_lshr_b32 s61, s61, {sh}")
        p("s_add_u32 s60, s60, 33"); p("s_min_u32 s60, s60, 7999"); p(f"s_lshr_b32 s60, s60, {sh}")
        p(f"v_mbcnt_lo_u32_b32 v{TA}, -1, 0"); p(f"v_mbcnt_hi_u32_b32 v{TA}, -1, v{TA}")
        p(f"v_min_u32 v{TB}, 7, v{TA}"); p(f"v_lshlrev_b32 v{TB}, 7, v{TB}"); p(f"v_add_u32 v{TB}, {FLW - 256}, v{TB}")
        p("s_lshl_b32 s61, s61, 7"); p(f"s_add_u32 s61, s61, {FLU}"); p(f"v_mov_b32 v{TC}, s61")
        p(f"v_cmp_eq_u32 vcc, 0, v{TA}"); p("s_nop 1"); p(f"v_cndmask_b32 v{TB}, v{TB}, v{TC}, vcc")
        p("s_lshl_b32 s60, s60, 7"); p(f"s_add_u32 s60, s60, {FLU}"); p(f"v_mov_b32 v{TC}, s60")
        p(f"v_cmp_eq_u32 vcc, 1, v{TA}"); p("s_nop 1"); p(f"v_cndmask_b32 v{TB}, v{TB}, v{TC}, vcc")
        if o.get('ct'):
            p("s_lshl_b32 s62, s62, 7"); p(f"s_add_u32 s62, s62, {FLU}"); p(f"v_mov_b32 v{TC}, s62")
            p(f"v_cmp_eq_u32 vcc, 8, v{TA}"); p("s_nop 1"); p(f"v_cndmask_b32 v{TB}, v{TB}, v{TC}, vcc")
        p(f"buffer_load_dword v{TC}, v{TB}, s[44:47], 0 offen sc1")
        L += hazard.autofix(pre13)
        i13 = list(its[13])
        bi = i13.index("s_barrier")
        assert i13[bi-1] == "s_waitcnt vmcnt(0)", i13[bi-3:bi+1]
        i13[bi-1] = "s_waitcnt vmcnt(1)"
        chk = ["s_waitcnt vmcnt(0)", "K2_TP:", f"v_cmp_ne_u32 vcc, s3, v{TC}", "s_nop 1", "s_cmp_eq_u64 vcc, 0", "s_cbranch_scc1 K2_TD", "s_sleep 1",
               f"buffer_load_dword v{TC}, v{TB}, s[44:47], 0 offen sc1", "s_waitcnt vmcnt(0)", "s_add_u32 s101, s101, 1", "s_cmp_lt_u32 s101, 0x400000", "s_cbranch_scc1 K2_TP", "K2_TD:"]
        L += i13 + chk
    else:
        L += its[13]
    e("s_cmp_eq_u32 s59, 3")
    e("s_cbranch_scc0 K2_NOMASK")
    for r in range(16): e(f"v_mov_b32 v{NEGM+r}, 0xf149f2ca")
    e("s_nop 1")
    e("K2_NOMASK:")
    import gen_tail
    tail, resume = gen_tail.gen_tail(o, its[14], its[15], W)
    L += tail
    e("s_branch K2_END")
    T = []; t = T.append
    M_, MN, AL = NEGM, NEGM + 4, NEGM + 8
    t("K2_SLOW:")
    t("s_mov_b32 s54, 1")
    t("s_waitcnt vmcnt(0) lgkmcnt(0)")
    t("s_barrier")
    t("v_mbcnt_lo_u32_b32 v131, -1, 0"); t("v_mbcnt_hi_u32_b32 v131, -1, v131")
    dv_setup(t)
    S_2 = lambda fn: (lambda b: (fn(b.append), T.extend(b)))([])
    S_2(lambda e: srd(e, 12, 's4', 's5', QF_OFF, 500*8192))
    q_dma(t)
    kava_setup(t)
    for r in range(128): t(f"v_mov_b32 v{O+r}, 0")
    for r in range(128): t(f"v_accvgpr_write_b32 a{aO+r}, 0")
    for k in range(4): t(f"v_mov_b32 v{LS+k}, 0"); t(f"v_mov_b32 v{M_+k}, 0xf149f2ca")
    t("s_lshl_b32 s56, s50, 16"); t("s_lshl_b32 s60, s49, 13"); t("s_add_u32 s56, s56, s60")
    t("s_mov_b32 s57, 0"); t("s_mov_b32 s58, 0")
    t("s_waitcnt vmcnt(0)")
    t("s_barrier")
    q_read(t); q_read2(t)
    t("s_waitcnt lgkmcnt(0)")
    t("K2_SL_LOOP:")
    t("s_barrier")
    for txt, _ in dma_lines(0): t(txt)
    t("s_waitcnt vmcnt(0)")
    t("s_barrier")
    t("s_lshl_b32 s60, s58, 14"); t("s_cmp_lt_u32 s60, s55")
    t("s_cbranch_scc0 K2_SL_NEXT")
    for kt in range(2):
        for j in range(8):
            t(f"ds_read_b128 {vr(RING,4)}, v{KA+(j&3)} offset:{kt*8192 + (j>>2)*256}")
            t("s_waitcnt lgkmcnt(0)")
            for qt in range(4):
                acc = vr(Sreg(kt, qt), 4)
                t(f"{M16} {acc}, {vr(RING,4)}, {ar(aQ+(qt*8+j)*4,4)}, {acc if j else '0'}")
            t("s_nop 3")
    t("s_nop 7")
    for qt in range(4):
        a, b = Sreg(0, qt), Sreg(1, qt)
        t(f"v_max3_f32 v{MN+qt}, v{a}, v{a+1}, v{a+2}")
        t(f"v_max3_f32 v{MN+qt}, v{MN+qt}, v{a+3}, v{b}")
        t(f"v_max3_f32 v{MN+qt}, v{MN+qt}, v{b+1}, v{b+2}")
        t(f"v_max3_f32 v{MN+qt}, v{MN+qt}, v{b+3}, v{M_+qt}")
    for sw in ("v_permlane16_swap_b32", "v_permlane32_swap_b32"):
        for qt in range(4): t(f"v_mov_b32 v{AL+qt}, v{MN+qt}")
        t("s_nop 1")
        for qt in range(4): t(f"{sw} v{MN+qt}, v{AL+qt}")
        t("s_nop 1")
        for qt in range(4): t(f"v_max_f32 v{MN+qt}, v{MN+qt}, v{AL+qt}")
    for qt in range(4):
        t(f"v_sub_f32 v{AL+qt}, v{M_+qt}, v{MN+qt}"); t(f"v_exp_f32 v{AL+qt}, v{AL+qt}"); t(f"v_mov_b32 v{M_+qt}, v{MN+qt}")
    t("s_nop 0")
    for qt in range(4):
        t(f"v_mul_f32 v{LS+qt}, v{LS+qt}, v{AL+qt}")
        for kt in range(2):
            for r in range(4):
                reg = Sreg(kt, qt) + r
                t(f"v_sub_f32 v{reg}, v{reg}, v{M_+qt}"); t(f"v_exp_f32 v{reg}, v{reg}"); t("s_nop 0")
                t(f"v_add_f32 v{LS+qt}, v{LS+qt}, v{reg}")
            for h2 in range(2):
                t(f"v_cvt_pk_bf16_f32 v{P[0]+4*qt+2*kt+h2}, v{Sreg(kt,qt)+2*h2}, v{Sreg(kt,qt)+2*h2+1}")
    def rescale():
        for dt in range(16):
            for qt in range(2):
                for r in range(4): t(f"v_mul_f32 v{O+(dt*2+qt)*4+r}, v{O+(dt*2+qt)*4+r}, v{AL+qt}")
                for r in range(4):
                    a = aO + (dt*2+qt)*4 + r
                    t(f"v_accvgpr_read_b32 v{NEGM+12+r}, a{a}")
                for r in range(4): t(f"v_mul_f32 v{NEGM+12+r}, v{NEGM+12+r}, v{AL+2+qt}")
                for r in range(4):
                    a = aO + (dt*2+qt)*4 + r
                    t(f"v_accvgpr_write_b32 a{a}, v{NEGM+12+r}")
    rescale()
    t("s_nop 1")
    for dt in range(16):
        for u in range(2):
            t(f"ds_read_b64_tr_b16 {vr(RING+2*u,2)}, v{VA+(dt&7)} offset:{u*8192 + (dt>>3)*256}")
        t("s_waitcnt lgkmcnt(0)")
        for qt in range(4):
            t(f"{M16} {Oreg(dt,qt)}, {vr(RING,4)}, {vr(P[0]+4*qt,4)}, {Oreg(dt,qt)}")
        t("s_nop 3")
    t("s_nop 7")
    t("K2_SL_NEXT:")
    t("s_add_u32 s58, s58, 1"); t("s_cmp_lt_u32 s58, 16"); t("s_cbranch_scc1 K2_SL_LOOP")
    t("s_barrier")
    t("v_mbcnt_lo_u32_b32 v254, -1, 0"); t("v_mbcnt_hi_u32_b32 v254, -1, v254"); t("v_lshlrev_b32 v254, 4, v254")
    t(f"s_lshl_b32 s60, s48, 10"); t(f"s_add_u32 s60, s60, {MX}"); t("v_add_u32 v255, s60, v254")
    t(f"ds_write_b128 v255, {vr(M_,4)}")
    t("s_xor_b32 s60, s60, 2048"); t("v_add_u32 v255, s60, v254")
    t("s_waitcnt lgkmcnt(0)"); t("s_barrier")
    t(f"ds_read_b128 {vr(MN,4)}, v255"); t("s_waitcnt lgkmcnt(0)")
    for qt in range(4): t(f"v_max_f32 v{RING+qt}, v{M_+qt}, v{MN+((qt+2)&3)}")
    for qt in range(4):
        t(f"v_sub_f32 v{AL+qt}, v{M_+qt}, v{RING+qt}"); t(f"v_exp_f32 v{AL+qt}, v{AL+qt}")
    t("s_nop 0")
    for qt in range(4): t(f"v_mul_f32 v{LS+qt}, v{LS+qt}, v{AL+qt}")
    t(f"v_mov_b32 v{MREF}, v{RING}"); t(f"v_mov_b32 v{MREF+1}, v{RING+1}")
    rescale()
    t("s_barrier")
    L += hazard.autofix(T + resume)
    e("K2_END:")
    e("s_endpgm")
    i0 = L.index("K2_LOOP:"); i1 = L.index("K2_EPI:")
    lin = L[i0-60:i1] + L[i0:i1] + L[i1:i1+700]
    errs = hazard.check(lin, 'k2f')
    return L, ([] if FUSED else kernel_desc(name, 512, 256)), errs
```

```python
from gen_common import *
import hazard, struct
M16 = "v_mfma_f32_16x16x32_bf16"
fb = lambda x: hex(struct.unpack('<I', struct.pack('<f', x))[0])
OWN = 49152
MXE = 114688
OWNML = MXE + 4096
ACT = 0

def gen_tail(o, it14, it15, W):
    O = 0; S = 128; P = [160, 176]; NEGM = 192; RING = 208; KA = 232; VA = 236; DV = 244; LS = 248; MREF = 252
    aO = 128
    FUSED = o.get('fusedk')
    CS = ' sc1' if (FUSED and o.get('csc1', True)) else ''
    T = []; t = T.append
    def stamp(k):
        if o['stamp'] and not (o.get('st15') and k in (3, 4)): t(f"s_memrealtime s[{80+2*k}:{81+2*k}]")
    def S_(fn):
        buf = []; fn(buf.append); T.extend(buf)
    S_(lambda e: srd(e, 12, 's4', 's5', WF_OFF, 262144))
    t("s_mul_i32 s60, s51, 2048000")
    t(f"s_add_u32 s61, s60, {G_OFF:#x}"); S_(lambda e: srd(e, 24, 's4', 's5', 's61', 2048000))
    t(f"s_add_u32 s61, s60, {U_OFF:#x}"); S_(lambda e: srd(e, 28, 's4', 's5', 's61', 2048000))
    t("s_mov_b32 s34, 2560"); t("s_mov_b32 s35, 0x20000")
    t("s_mov_b32 s38, 4096000"); t("s_mov_b32 s39, 0x20000")
    t("s_mov_b32 s42, 4096000"); t("s_mov_b32 s43, 0x20000")
    S_(lambda e: srd(e, 16, 's4', 's5', OP_OFF, 64*16*16384))
    S_(lambda e: srd(e, 20, 's4', 's5', ML_OFF, 64*16*256))
    t("s_lshl_b32 s62, s52, 7"); t("s_lshl_b32 s60, s53, 5"); t("s_add_u32 s62, s62, s60")
    t("s_lshl_b32 s64, s49, 1"); t("s_add_u32 s64, s64, s50")
    t("v_mbcnt_lo_u32_b32 v254, -1, 0"); t("v_mbcnt_hi_u32_b32 v254, -1, v254")
    t("v_lshlrev_b32 v247, 4, v254")
    t("v_and_b32 v246, 31, v254"); t("v_lshlrev_b32 v246, 4, v246")
    t("v_lshrrev_b32 v255, 5, v254")
    t("s_lshl_b32 s60, s48, 1"); t("v_add_u32 v255, s60, v255")
    t("v_lshlrev_b32 v255, 2, v255"); t("v_add_u32 v255, s62, v255")
    t("v_lshl_add_u32 v244, v255, 9, v246")
    t("v_subrev_u32 v245, 1024, v244")
    t("s_lshl_b32 s60, s48, 15"); t("v_add_u32 v254, s60, v247")
    t("s_add_u32 s61, s60, 16384"); t("s_lshl_b32 s66, s50, 14"); t("s_add_u32 s66, s66, 131072")
    t("s_cmp_eq_u32 s49, 1"); t("s_cselect_b32 s61, s66, s61")
    t("v_add_u32 v255, s61, v247")
    t("K2_HEADEND_PLACEHOLDER") if False else None
    head = list(T); T.clear()
    DWR = [192, 196, 200, 204, 232]
    cl = []
    for i in range(8):
        if i < 2: cl.append((f"buffer_load_dwordx4 {vr(S+4*i,4)}, v245, s[24:27], 0 offen offset:{512*i}{CS}", ('G', i)))
        else: cl.append((f"buffer_load_dwordx4 {vr(S+4*i,4)}, v244, s[24:27], 0 offen offset:{512*(i-2)}{CS}", ('G', i)))
    for i in range(4): cl.append((f"buffer_load_dwordx4 {vr(P[0]+4*i,4)}, v244, s[28:31], 0 offen offset:{512*i}{CS}", ('U', i)))
    for i in range(5): cl.append((f"buffer_load_dwordx4 {vr(DWR[i],4)}, v246, s[32:35], 0 offen offset:{512*i}", ('DW', i)))
    def owr(idx):
        return f"ds_write_b128 v{254 if idx < 16 else 255}, {ar(aO+4*idx,4)} offset:{(idx%16)*1024}"
    w2 = []
    for m in range(8):
        for a in range(4):
            pre = []
            if m % 4 == 0:
                pre = [f"s_lshl_b32 s{66+a}, s48, 16", f"s_add_u32 s{66+a}, s{66+a}, {a*16384 + 8192 + (m>>2)*4096}"]
            w2.append((pre, f"buffer_load_dwordx4 {ar((a*8+m)*4,4)}, v247, s[12:15], s{66+a} offen offset:{(m&3)*1024}{CS}", ('W2', m, a)))
    resume = list(head) + sum([pre + [txt] for pre, txt, tag in w2], []) + [txt for txt, tag in cl]
    out = list(head)
    if o.get('st15'): out = ["s_memtime s[86:87]"] + out
    nm = 0
    step14 = o.get('w2s14', 4)
    for x in it14:
        out.append(x)
        if x.startswith('v_mfma'):
            nm += 1
            if nm > 66 and nm % step14 == 2 and w2:
                pre, txt, tag = w2.pop(0); out += pre; out.append(txt); W.issue('vm', tag)
    if o.get('st15'): out.append("s_memtime s[88:89]")
    lastS = max(i for i, x in enumerate(it15) if x.startswith('v_cvt_pk') or x.startswith('v_exp') or x.startswith('v_add_f32') or x.startswith('v_pk_add'))
    ci = 0; nm = 0; wr = 0
    bar_done = False
    for i, x in enumerate(it15):
        out.append(x)
        if not bar_done and i >= 6 and not x.startswith('v_mfma'):
            out.append("s_barrier"); bar_done = True
        if i <= lastS and i % o.get('w2s15', 4) == 1 and w2:
            pre, txt, tag = w2.pop(0); out += pre; out.append(txt); W.issue('vm', tag)
        if x.startswith('v_mfma'):
            nm += 1
            if i > lastS and nm % 4 == 2:
                if w2:
                    pre, txt, tag = w2.pop(0); out += pre; out.append(txt); W.issue('vm', tag)
                elif ci < len(cl):
                    txt, tag = cl[ci]; ci += 1
                    out.append(txt); W.issue('vm', tag)
            if nm % 2 == 0:
                dt_ok = (nm - 9) // 4
                if wr < 2*dt_ok and wr < 32 and dt_ok >= 1:
                    out.append(owr(wr)); wr += 1
    while w2:
        pre, txt, tag = w2.pop(0); out += pre; out.append(txt); W.issue('vm', tag)
    while ci < len(cl):
        txt, tag = cl[ci]; ci += 1; out.append(txt); W.issue('vm', tag)
    T.extend(out)
    if o['stamp']: t("s_memtime s[98:99]")
    stamp(0)
    lred = []
    for sw in ("v_permlane16_swap_b32", "v_permlane32_swap_b32"):
        for qt in range(4): lred.append(f"v_mov_b32 v{236+qt}, v{LS+qt}")
        lred.append("s_nop 1")
        for qt in range(4): lred.append(f"{sw} v{LS+qt}, v{236+qt}")
        lred.append("s_nop 1")
        for qt in range(4): lred.append(f"v_add_f32 v{LS+qt}, v{LS+qt}, v{236+qt}")
    if o.get('pkadd'):
        for qt in range(4): t(f"v_add_f32 v{LS+qt}, v{224+2*qt}, v{225+2*qt}")
    T.extend(lred)
    resume += lred + ["s_nop 7"] + [owr(i) for i in range(32)] + ["s_branch K2_POSTB"]
    t("s_nop 7")
    while wr < 32:
        t(owr(wr)); wr += 1
    t("K2_POSTB:")
    t("s_waitcnt lgkmcnt(0)")
    t("s_barrier")
    t("s_lshl_b32 s60, s65, 7"); t("s_lshl_b32 s61, s64, 2"); t("s_add_u32 s60, s60, s61")
    if FUSED: t("s_add_u32 s60, s60, 16")
    t("buffer_load_dword v241, off, s[44:47], s60 sc1"); W.issue('vm', 'WORD')
    w1 = []
    for m in range(8):
        for a in range(4):
            pre = []
            if m % 4 == 0:
                pre = [f"s_lshl_b32 s{66+a}, s48, 16", f"s_add_u32 s{66+a}, s{66+a}, {a*16384 + (m>>2)*4096}"]
            w1.append((pre, f"buffer_load_dwordx4 {ar(128+(a*8+m)*4,4)}, v247, s[12:15], s{66+a} offen offset:{(m&3)*1024}{CS}", ('W1', m, a)))
    def pload(n=1, lst=None):
        lst = pend if lst is None else lst
        for _ in range(n):
            if not lst: return
            pre, txt, tag = lst.pop(0)
            T.extend(pre); t(txt); W.issue('vm', tag)
    t("v_lshrrev_b32 v240, 1, v247")
    t("s_lshl_b32 s60, s48, 10"); t(f"s_add_u32 s60, s60, {MXE}"); t("v_add_u32 v240, s60, v240")
    t(f"ds_write_b64 v240, {vr(LS+2,2)}")
    t("v_max_f32 v238, v248, v249"); t("v_max3_f32 v238, v238, v250, v251")
    t("v_add_f32 v239, v248, v249"); t("v_add_f32 v239, v239, v250"); t("v_add_f32 v239, v239, v251")
    t("v_max_f32 v238, v238, v239")
    t("s_mov_b32 s57, 0x71800000")
    t("v_cmp_ngt_f32 vcc, s57, v239")
    t("s_nop 1")
    t("s_cmp_lg_u64 vcc, 0")
    t("s_cselect_b32 s57, 1, 0")
    t("v_mov_b32 v238, s57")
    t(f"s_lshl_b32 s57, s48, 2"); t(f"s_add_u32 s57, s57, {MXE + 8192}"); t("v_mov_b32 v239, s57")
    t("ds_write_b32 v239, v238")
    t("v_xor_b32 v254, 0x10000, v254")
    t("s_mov_b32 s57, 0x4000"); t("s_cmp_eq_u32 s49, 1"); t("s_cselect_b32 s60, s57, 0x10000")
    t("v_xor_b32 v255, s60, v255")
    bufs = [P[1], RING]
    def rd(b):
        for k in range(4):
            idx = 4*b + k
            t(f"ds_read_b128 {vr(bufs[b%2]+4*k,4)}, v{254 if idx < 16 else 255} offset:{(idx%16)*1024}")
    rd(0); rd(1)
    for b in range(8):
        t(f"s_waitcnt lgkmcnt({4 if b < 7 else 0})")
        for k in range(4):
            d = O + 4*(4*b+k); s = bufs[b%2] + 4*k
            t(f"v_pk_add_f32 v[{d}:{d+1}], v[{d}:{d+1}], v[{s}:{s+1}]")
            t(f"v_pk_add_f32 v[{d+2}:{d+3}], v[{d+2}:{d+3}], v[{s+2}:{s+3}]")
        if b + 2 < 8: rd(b+2)
        pload(o.get('w1x', 1), w1)
    t("s_barrier")
    t("v_xor_b32 v240, 0x800, v240")
    t(f"ds_read_b64 v[236:237], v240")
    t(f"v_mov_b32 v239, {MXE + 8192}")
    t("ds_read_b128 v[232:235], v239") if False else t("ds_read_b128 v[212:215], v239")
    stamp(1)
    for m in range(8):
        for tt in range(2):
            a = 16*m + 4*tt; b = a + 8
            t(f"v_cvt_pk_bf16_f32 v{a}, v{a}, v{a+1}")
            t(f"v_cvt_pk_bf16_f32 v{a+1}, v{a+2}, v{a+3}")
            t(f"v_cvt_pk_bf16_f32 v{a+2}, v{b}, v{b+1}")
            t(f"v_cvt_pk_bf16_f32 v{a+3}, v{b+2}, v{b+3}")
    t("v_mbcnt_lo_u32_b32 v208, -1, 0"); t("v_mbcnt_hi_u32_b32 v208, -1, v208")
    t("v_and_b32 v209, 15, v208")
    t("v_lshrrev_b32 v210, 4, v208")
    t("s_mul_i32 s60, s51, 4000"); t("s_add_u32 s60, s60, s62")
    t("v_add_u32 v211, s60, v209"); t("v_lshlrev_b32 v211, 9, v211")
    t("v_lshl_add_u32 v211, v210, 3, v211")
    t("s_lshl_b32 s60, s48, 7"); t("v_add_u32 v242, s60, v211")
    t("v_add_u32 v243, 8192, v242")
    n = W.need('vm', ['WORD'])
    t(f"s_waitcnt vmcnt({n}) lgkmcnt(0)")
    W.drain('lgkm')
    t("v_or_b32 v212, v212, v213"); t("v_or_b32 v214, v214, v215"); t("v_or_b32 v212, v212, v214")
    t("s_nop 0")
    t("v_readfirstlane_b32 s57, v212")
    t("s_nop 3")
    t("s_andn2_b32 s57, s57, s54")
    t("s_cmp_lg_u32 s57, 0")
    t("s_cbranch_scc1 K2_SLOW")
    t(f"v_add_f32 v{LS}, v{LS}, v236"); t(f"v_add_f32 v{LS+1}, v{LS+1}, v237")
    t("s_cmp_eq_u32 s64, s53")
    t("s_cbranch_scc0 K2_PUBG")
    t(f"v_add_u32 v254, {OWN}, v247")
    for m in range(8):
        for tt in range(2):
            t(f"ds_write_b128 v254, {vr(16*m+4*tt,4)} offset:{(m*2+tt)*1024}")
    t("v_lshlrev_b32 v255, 3, v209"); t(f"v_add_u32 v255, {OWNML}, v255")
    for tt in range(2):
        t(f"v_mov_b32 v{212+2*tt}, v{MREF+tt}"); t(f"v_mov_b32 v{213+2*tt}, v{LS+tt}")
        t(f"ds_write_b64 v255, v[{212+2*tt}:{213+2*tt}] offset:{128*tt}")
    t("s_branch K2_PUBD")
    t("K2_PUBG:")
    t("s_lshl_b32 s60, s52, 7"); t("s_lshl_b32 s61, s64, 5"); t("s_add_u32 s60, s60, s61")
    t("s_cmp_lt_u32 s60, 4000")
    t("s_cbranch_scc0 K2_PUBD")
    t("s_lshl_b32 s60, s65, 2"); t("s_add_u32 s60, s60, s64"); t("s_lshl_b32 s60, s60, 2"); t("s_add_u32 s60, s60, s53")
    t("s_lshl_b32 s61, s60, 14")
    t("v_lshlrev_b32 v255, 3, v209")
    for tt in range(2):
        t(f"v_mov_b32 v{212+2*tt}, v{MREF+tt}"); t(f"v_mov_b32 v{213+2*tt}, v{LS+tt}")
    t("v_readfirstlane_b32 s57, v241")
    t("s_nop 3"); t("s_xor_b32 s57, s57, s3" if FUSED else "s_and_b32 s57, s57, 15")
    t("s_cmp_eq_u32 s57, s63")
    t("s_cbranch_scc1 K2_PUBL" if o.get('l2pub', True) else "s_nop 0")
    for lbl, fl in (("", " sc1"), ("K2_PUBL", (" " + o['l2fl']) if o.get('l2fl') else "")):
        if lbl: t(f"{lbl}:")
        t("s_lshl_b32 s61, s60, 14")
        for m in range(8):
            for tt in range(2):
                f = m*2 + tt
                if f % 4 == 0 and f: t("s_add_u32 s61, s61, 4096")
                t(f"buffer_store_dwordx4 {vr(16*m+4*tt,4)}, v247, s[16:19], s61 offen offset:{(f%4)*1024}{fl}")
        t("s_lshl_b32 s61, s60, 8")
        t("v_cmp_gt_u32 vcc, 16, v208")
        t("s_and_saveexec_b64 s[70:71], vcc")
        for tt in range(2):
            t(f"buffer_store_dwordx2 v[{212+2*tt}:{213+2*tt}], v255, s[20:23], s61 offen offset:{128*tt}{fl}")
        t("s_mov_b64 exec, s[70:71]")
        if not lbl: t("s_branch K2_PUBD")
    t("K2_PUBD:")
    def atomic(lbl):
        t("s_cmp_eq_u32 s48, 0")
        t(f"s_cbranch_scc0 {lbl}")
        t("s_lshl_b32 s60, s65, 7"); t("s_lshl_b32 s61, s53, 2"); t("s_add_u32 s60, s60, s61")
        t("s_mov_b32 s61, s3" if FUSED else "s_or_b32 s61, s63, 0x80"); t("v_mov_b32 v215, s61")
        t("v_cmp_eq_u32 vcc, 0, v208")
        t("s_and_saveexec_b64 s[70:71], vcc")
        t("buffer_store_dword v215, off, s[44:47], s60 sc1")
        t("s_mov_b64 exec, s[70:71]")
        t(f"{lbl}:")
    t("s_cmp_lt_u32 s62, 4000")
    t("s_cbranch_scc1 K2_VALID")
    t("s_waitcnt vmcnt(0) lgkmcnt(0)")
    t("s_barrier")
    atomic("K2_NOATOM0")
    t("s_branch K2_FIN")
    t("K2_VALID:")
    stamp(2)
    pend = []
    for a in range(4):
        for tt in range(2):
            pend.append(([], f"buffer_load_dwordx2 {vr(176+(a*2+tt)*2,2)}, v{242+tt}, s[36:39], 0 offen offset:{32*a}", ('X', a, tt)))
    pend = w1 + pend
    w1 = []
    opp = [0]
    def cload():
        opp[0] += 1
        if opp[0] % o.get('convstep', 1) == 0: pload(1)
    W.issue('vm', 'PUB')
    DWF = 0; CV = 40; GT = 72; GR = S; UR = P[0]
    t("s_nop 1")
    for i in range(5):
        for k in range(4):
            t(f"v_lshlrev_b32 v{DWF+8*i+2*k}, 16, v{DWR[i]+k}")
            t(f"v_and_b32 v{DWF+8*i+2*k+1}, 0xffff0000, v{DWR[i]+k}")
        cload()
    def pubflag():
        n = W.need('vm', ['PUB'])
        t(f"s_waitcnt vmcnt({n}) lgkmcnt(0)")
        t("s_barrier")
        atomic("K2_NOATOM")
    for rho in range(8):
        if rho == o.get('pubat', 8): pubflag()
        g = GT + 8*(rho % 2)
        for k in range(4):
            t(f"v_lshlrev_b32 v{g+2*k}, 16, v{GR+4*rho+k}")
            t(f"v_and_b32 v{g+2*k+1}, 0xffff0000, v{GR+4*rho+k}")
        for i in range(4):
            tap = rho - i
            if 0 <= tap <= 4:
                for k in range(4):
                    d = f"v[{CV+8*i+2*k}:{CV+8*i+2*k+1}]"
                    a_ = f"v[{g+2*k}:{g+2*k+1}]"; b_ = f"v[{DWF+8*tap+2*k}:{DWF+8*tap+2*k+1}]"
                    if tap == 0: t(f"v_pk_mul_f32 {d}, {a_}, {b_}")
                    else: t(f"v_pk_fma_f32 {d}, {a_}, {b_}, {d}")
                cload()
    if o.get('pubat', 8) >= 8: pubflag()
    t("v_and_b32 v212, 31, v208")
    t("v_lshrrev_b32 v213, 2, v212")
    t("v_and_b32 v214, 3, v212")
    t("v_and_b32 v215, 1, v213"); t("v_lshl_or_b32 v215, v215, 2, v214")
    t("v_lshrrev_b32 v216, 5, v208"); t("s_lshl_b32 s60, s48, 1"); t("v_add_u32 v216, s60, v216")
    t("v_lshrrev_b32 v217, 2, v216")
    t("v_and_b32 v216, 3, v216"); t("v_lshlrev_b32 v216, 2, v216")
    t("v_lshl_add_u32 v216, v214, 4, v216")
    t("v_lshl_add_u32 v213, v213, 1, v217")
    t("v_lshlrev_b32 v213, 10, v213"); t(f"v_add_u32 v213, {ACT + 16*1024}, v213")
    k0 = -2.0*1.4426950408889634*0.7978845608028654
    t(f"v_mov_b32 v88, {fb(k0)}"); t(f"v_mov_b32 v90, {fb(k0*0.044715)}"); t("v_mov_b32 v92, 1.0")
    for i in range(4):
        g = GT + 8*(i % 2)
        for k in range(4):
            t(f"v_lshlrev_b32 v{g+2*k}, 16, v{UR+4*i+k}")
            t(f"v_and_b32 v{g+2*k+1}, 0xffff0000, v{UR+4*i+k}")
        tmp = [96+2*k for k in range(4)]
        X = lambda k: f"v[{g+2*k}:{g+2*k+1}]"; Tt = lambda k: f"v[{tmp[k]}:{tmp[k]+1}]"
        for k in range(4): t(f"v_pk_mul_f32 {Tt(k)}, {X(k)}, {X(k)}")
        for k in range(4): t(f"v_pk_fma_f32 {Tt(k)}, {Tt(k)}, v[90:91], v[88:89] op_sel_hi:[1,0,0]")
        cload()
        for k in range(4): t(f"v_pk_mul_f32 {Tt(k)}, {Tt(k)}, {X(k)}")
        for k in range(4): t(f"v_exp_f32 v{tmp[k]}, v{tmp[k]}"); t(f"v_exp_f32 v{tmp[k]+1}, v{tmp[k]+1}")
        cload()
        for k in range(4): t(f"v_pk_add_f32 {Tt(k)}, {Tt(k)}, v[92:93] op_sel_hi:[1,0]")
        for k in range(4): t(f"v_rcp_f32 v{tmp[k]}, v{tmp[k]}"); t(f"v_rcp_f32 v{tmp[k]+1}, v{tmp[k]+1}")
        cload()
        for k in range(4): t(f"v_pk_mul_f32 {X(k)}, {X(k)}, {Tt(k)}")
        for k in range(4):
            t(f"v_pk_mul_f32 v[{g+2*k}:{g+2*k+1}], v[{g+2*k}:{g+2*k+1}], v[{CV+8*i+2*k}:{CV+8*i+2*k+1}]")
        for k in range(4):
            t(f"v_cvt_pk_bf16_f32 v{GR+4*i+k}, v{g+2*k}, v{g+2*k+1}")
        t(f"v_add_u32 v218, {i}, v216")
        t("v_xor_b32 v218, v218, v215")
        t("v_lshl_add_u32 v218, v218, 4, v213")
        t(f"ds_write_b128 v218, {vr(GR+4*i,4)}")
        cload()
        if i == o.get('pollat', 1):
            t("s_lshl_b32 s57, s65, 7")
            t("buffer_load_dwordx4 v[232:235], off, s[44:47], s57 sc1"); W.issue('vm', 'POLL0')
    if o.get('convstep', 1) == 1: pload(100)
    t("v_lshlrev_b32 v212, 4, v210"); t("v_xor_b32 v212, v247, v212"); t("v_xor_b32 v213, 64, v212")
    t("s_waitcnt lgkmcnt(0)")
    t("s_barrier")
    stamp(3)
    ACC = 96
    RB = [216, 220, 224, 228]
    def gemm(part, lst=None):
        Wl = Waiter()
        evs = []
        for m in range(8):
            for tt in range(2):
                evs.append((8*(m-1) + 4*tt, 1, 'rd', m, tt))
            for a in range(4):
                for tt in range(2): evs.append((8*m + 2*a + tt, 0, 'mf', m, a, tt))
        evs.sort(key=lambda x: (x[0], x[1]))
        for x in evs:
            if x[2] == 'rd':
                m, tt = x[3], x[4]
                ring = RB[(m*2+tt) % 4]
                if part == 1: t(f"ds_read_b128 {vr(ring,4)}, v{212+(m&1)} offset:{ACT + ((8+m)*2+tt)*1024}")
                else: t(f"ds_read_b128 {vr(ring,4)}, v247 offset:{ACT + (m*2+tt)*1024}")
                Wl.issue('lgkm', (m, tt))
            else:
                m, a, tt = x[3], x[4], x[5]
                ring = RB[(m*2+tt) % 4]
                n = Wl.need('lgkm', [(m, tt)])
                nv = W.need('vm', [('W2' if part == 1 else 'W1', m, a)])
                if nv is not None and o.get('atomslack', True): pass
                ws_ = ([f"vmcnt({nv})"] if nv is not None else []) + ([f"lgkmcnt({n})"] if n is not None else [])
                if ws_: t("s_waitcnt " + ' '.join(ws_))
                acc = vr(ACC + (a*2+tt)*4, 4)
                c = '0' if (part == 1 and m == 0) else acc
                wreg = ar((a*8+m)*4, 4) if part == 1 else ar(128+(a*8+m)*4, 4)
                t(f"{M16} {acc}, {wreg}, {vr(ring,4)}, {c}")
                if lst is not None and tt == 1 and a % 2 == 1: pload(1, lst)
    n = W.need('vm', ['POLL0'])
    if n is not None: t(f"s_waitcnt vmcnt({n})")
    t("K2_POLL:")
    if FUSED:
        for k in range(4): t(f"v_xor_b32 v{232+k}, s3, v{232+k}")
        t("v_or_b32 v232, v232, v233"); t("v_or_b32 v234, v234, v235"); t("v_or_b32 v232, v232, v234")
        t("s_nop 0"); t("v_readfirstlane_b32 s61, v232"); t("s_nop 3"); t("s_cmp_eq_u32 s61, 0")
    else:
        t("v_and_b32 v232, v232, v233"); t("v_and_b32 v234, v234, v235"); t("v_and_b32 v232, v232, v234")
        t("s_nop 0"); t("v_readfirstlane_b32 s61, v232"); t("s_nop 3"); t("s_bitcmp1_b32 s61, 7")
    t("s_cbranch_scc1 K2_POLLD")
    t("s_sleep 1")
    t("buffer_load_dwordx4 v[232:235], off, s[44:47], s57 sc1")
    t("s_waitcnt vmcnt(0)")
    t("s_add_u32 s101, s101, 1"); t("s_cmp_lt_u32 s101, 0x400000"); t("s_cbranch_scc1 K2_POLL")
    t("K2_POLLD:")
    stamp(4)
    PR = 0; MLR = 64
    t("v_lshlrev_b32 v215, 3, v209")
    for k in range(1, 4):
        t(f"s_add_u32 s60, s53, {k}"); t("s_and_b32 s60, s60, 3")
        t("s_lshl_b32 s61, s65, 2"); t("s_add_u32 s61, s61, s53"); t("s_lshl_b32 s61, s61, 2"); t(f"s_add_u32 s{56+k}, s61, s60")
    pp = []
    for k in range(1, 4):
        for tt in range(2):
            pp.append(([f"s_lshl_b32 s60, s{56+k}, 8"], f"buffer_load_dwordx2 {vr(MLR+(k*2+tt)*2,2)}, v215, s[20:23], s60 offen offset:{128*tt} sc1", ('ML', k, tt)))
    for k in range(1, 4):
        for ff in range(4):
            pre = [f"s_lshl_b32 s61, s{56+k}, 14", "s_lshl_b32 s60, s48, 12", "s_add_u32 s61, s61, s60"] if ff == 0 else []
            pp.append((pre, f"buffer_load_dwordx4 {vr(PR+((k-1)*4+ff)*4,4)}, v247, s[16:19], s61 offen offset:{ff*1024} sc1", ('PP', k, ff)))
    pload(6, pp)
    pload(o.get('pp0', 2), pp)
    gemm(1, pp)
    pload(100, pp)
    stamp(5)
    t(f"v_add_u32 v216, {OWNML}, v215")
    for tt in range(2): t(f"ds_read_b64 {vr(MLR+tt*2,2)}, v216 offset:{128*tt}")
    t("s_lshl_b32 s60, s48, 12"); t(f"s_add_u32 s60, s60, {OWN}"); t("v_add_u32 v216, s60, v247")
    for ff in range(4): t(f"ds_read_b128 {vr(48+4*ff,4)}, v216 offset:{ff*1024}")
    n = W.need('vm', [('ML', 3, 1)])
    t(f"s_waitcnt vmcnt({n}) lgkmcnt(0)")
    CF = 80
    for tt in range(2):
        for k in range(4): t(f"v_log_f32 v{128+k}, v{MLR+(k*2+tt)*2+1}")
        t("s_nop 0")
        for k in range(4): t(f"v_add_f32 v{128+k}, v{128+k}, v{MLR+(k*2+tt)*2}")
        t("v_max_f32 v132, v128, v129"); t("v_max3_f32 v132, v132, v130, v131")
        for k in range(4): t(f"v_sub_f32 v{128+k}, v{128+k}, v132")
        for k in range(4): t(f"v_exp_f32 v{128+k}, v{128+k}")
        for k in range(4): t(f"v_sub_f32 v{CF+2*(k*2+tt)}, v{MLR+(k*2+tt)*2}, v132")
        t("v_add_f32 v128, v128, v129"); t("v_add_f32 v130, v130, v131")
        for k in range(4): t(f"v_exp_f32 v{CF+2*(k*2+tt)}, v{CF+2*(k*2+tt)}")
        t("v_add_f32 v128, v128, v130")
        t("v_rcp_f32 v128, v128")
        t("s_nop 0")
        for k in range(4): t(f"v_mul_f32 v{CF+2*(k*2+tt)}, v{CF+2*(k*2+tt)}, v128")
    MA = 128; GT2 = 160
    for k in range(4):
        for ff in range(4):
            tt = ff & 1
            src = 48 + 4*ff if k == 0 else PR + ((k-1)*4+ff)*4
            if k > 0:
                n = W.need('vm', [('PP', k, ff)])
                if n is not None: t(f"s_waitcnt vmcnt({n})")
            for q in range(4):
                g = GT2 + 2*((ff*4+q) % 8)
                t(f"v_lshlrev_b32 v{g}, 16, v{src+q}")
                t(f"v_and_b32 v{g+1}, 0xffff0000, v{src+q}")
                d = f"v[{MA+(ff*4+q)*2}:{MA+(ff*4+q)*2+1}]"
                c = f"v[{CF+2*(k*2+tt)}:{CF+2*(k*2+tt)+1}]"
                if k == 0: t(f"v_pk_mul_f32 {d}, v[{g}:{g+1}], {c} op_sel_hi:[1,0]")
                else: t(f"v_pk_fma_f32 {d}, v[{g}:{g+1}], {c}, {d} op_sel_hi:[1,0,1]")
            pload(1)
    pload(100)
    t("s_lshl_b32 s60, s48, 12"); t(f"s_add_u32 s60, s60, {ACT}"); t("v_add_u32 v216, s60, v247")
    for ff in range(4):
        for q in range(4): t(f"v_cvt_pk_bf16_f32 v{ff*4+q}, v{MA+(ff*4+q)*2}, v{MA+(ff*4+q)*2+1}")
        t(f"ds_write_b128 v216, {vr(ff*4,4)} offset:{ff*1024}")
    t("s_waitcnt lgkmcnt(0)")
    t("s_barrier")
    stamp(6)
    gemm(0)
    nv = W.need('vm', [('X', 3, 1)])
    if nv is not None: t(f"s_waitcnt vmcnt({nv})")
    t("s_nop 7")
    for a in range(4):
        for tt in range(2):
            acc = ACC + (a*2+tt)*4; xr = 176 + (a*2+tt)*2
            for q in range(2):
                g = 128 + 4*((a*2+tt) % 4) + 2*q
                t(f"v_lshlrev_b32 v{g}, 16, v{xr+q}"); t(f"v_and_b32 v{g+1}, 0xffff0000, v{xr+q}")
                t(f"v_pk_add_f32 v[{acc+2*q}:{acc+2*q+1}], v[{acc+2*q}:{acc+2*q+1}], v[{g}:{g+1}]")
            d = 2*(a*2+tt)
            t(f"v_cvt_pk_bf16_f32 v{d}, v{acc}, v{acc+1}"); t(f"v_cvt_pk_bf16_f32 v{d+1}, v{acc+2}, v{acc+3}")
            t(f"buffer_store_dwordx2 v[{d}:{d+1}], v{242+tt}, s[40:43], 0 offen offset:{32*a}{' '+o['ost'] if o.get('ost') else ''}")
    t("K2_FIN:")
    if o['stamp']:
        t("s_waitcnt vmcnt(0)")
        t("s_memtime s[94:95]"); t("s_memrealtime s[96:97]")
        t("s_waitcnt lgkmcnt(0)")
        t("s_cmp_eq_u32 s48, 0"); t("s_cbranch_scc0 K2_END")
        t("s_add_u32 s68, s4, 0x8000000"); t("s_addc_u32 s69, s5, 0"); t("s_mov_b32 s70, 0x100000"); t("s_mov_b32 s71, 0x20000")
        regs = [72, 76, 98, 94, 74, 78, 80, 96, 82, 84, 86, 88, 90, 92, 101, 100]
        for k, r in enumerate(regs): t(f"v_mov_b32 v{128+k}, s{r}")
        t("s_lshl_b32 s60, s2, 6"); t("v_mov_b32 v150, s60")
        for k in range(4): t(f"buffer_store_dwordx4 v[{128+4*k}:{131+4*k}], v150, s[68:71], 0 offen offset:{16*k}")
    return hazard.autofix(T), resume
```

```python
from gen_common import *
from tl import TL
import hazard, struct
SLOT = 16384
EX = 131072
fb = lambda x: hex(struct.unpack('<I', struct.pack('<f', x))[0])

def gen_k1(opt=None):
    o = dict(D=6, stamp=False, st='', npre=2, nln=4)
    if opt: o.update(opt)
    D = o['D']; ST = (' ' + o['st']) if o['st'] else ''
    FUSED = o.get('fused')
    name = FUSED if FUSED else 'prep_kernel'
    L = []; e = L.append
    B = 0; ACC = [64, 128]; KA = 192; KA2 = 200; VN = 208; VN2 = 216; DV = 224; DS = 228; XB = 200
    aR = 0; R = 8
    def stamp(T, k):
        if o['stamp']: T.append(f"s_memrealtime s[{72+2*k}:{73+2*k}]")
    L += kernel_header(name)
    e("s_cmp_ge_u32 s2, 256")
    e("s_cbranch_scc1 K2_END" if FUSED else "s_cbranch_scc1 K1_END")
    e("s_load_dwordx16 s[36:51], s[0:1], 0")
    e("s_load_dwordx2 s[52:53], s[0:1], 64")
    e("s_load_dwordx2 s[54:55], s[0:1], 88")
    FF = FUSED and o.get('fastfin', True) and not o.get('ct')
    if FUSED: e("s_load_dwordx2 s[58:59], s[0:1], 80")
    if FF: e("s_load_dwordx2 s[100:101], s[0:1], 72")
    if FUSED and not FF: e("s_mov_b32 s101, 0")
    if o['stamp']:
        e("s_memtime s[60:61]"); e("s_memrealtime s[62:63]")
    e("v_lshrrev_b32 v232, 6, v0")
    e("v_and_b32 v240, 63, v0")
    e("v_lshrrev_b32 v241, 5, v240")
    e("v_and_b32 v242, 31, v240")
    e("v_readfirstlane_b32 s28, v232")
    e("s_and_b32 s29, s28, 1")
    e("s_lshr_b32 s30, s28, 1")
    e("s_lshl_b32 s31, s28, 12")
    CT = o.get('ct')
    if CT: e("s_mov_b32 s35, s2")
    else: e("s_sub_u32 s35, s2, 125"); e("s_cmp_lt_u32 s2, 125"); e("s_cselect_b32 s35, s2, s35")
    e("s_lshl_b32 s33, s28, 1")
    for k in range(4):
        e(f"v_add_u32 v234, {2*k}, v241"); e("v_and_b32 v234, 3, v234"); e("v_lshlrev_b32 v234, 2, v234")
        e(f"s_add_u32 s34, s33, {k>>1}"); e("s_and_b32 s34, s34, 3")
        e("v_or_b32 v234, s34, v234"); e("v_xor_b32 v234, v242, v234"); e("v_lshlrev_b32 v234, 4, v234")
        e("v_lshl_add_u32 v234, v241, 9, v234")
        e(f"v_add_u32 v{DS+k}, s31, v234")
    e("s_waitcnt lgkmcnt(0)")
    if FUSED:
        e("s_mov_b32 s4, s58"); e("s_mov_b32 s5, s59"); e("s_mov_b32 s6, 256"); e("s_mov_b32 s7, 0x20000")
        e("s_or_b32 s33, s2, s28"); e("s_cmp_eq_u32 s33, 0"); e("s_cbranch_scc0 K1_NOTAG")
        e("s_memrealtime s[56:57]"); e("s_waitcnt lgkmcnt(0)"); e("s_or_b32 s56, s56, 1")
        e("v_mov_b32 v234, s56")
        e("buffer_store_dword v234, off, s[4:7], 0 sc1")
        e("K1_NOTAG:")
    e("s_cmp_lt_u32 s2, 250"); e("s_cbranch_scc0 K1_NOX")
    srd(e, 16, 's36', 's37', 0, 8000*512)
    e("s_lshl_b32 s32, s35, 14" if CT else "s_lshl_b32 s32, s35, 15")
    for half in range(1 if CT else 2):
        e(f"s_add_u32 m0, s31, {EX + half*SLOT:#x}")
        if half: e("s_add_u32 s32, s32, 16384")
        else: e("s_nop 0")
        for k in range(4):
            e(f"buffer_load_dwordx4 v{DS+k}, s[16:19], s32 offen offset:{k*1024} lds")
    if FUSED and o.get('ipf', True):
        e("s_getpc_b64 s[56:57]")
        e("K1_PCREF:")
        e(f"s_add_u32 s56, s56, {o.get('ipfbase', 'K1_NOX')}-K1_PCREF"); e("s_addc_u32 s57, s57, 0")
        e("s_lshr_b32 s33, s2, 3"); e("s_lshl_b32 s33, s33, 2"); e("s_add_u32 s33, s33, s28"); e("s_lshl_b32 s33, s33, 10")
        e(f"s_cmp_lt_u32 s33, {o.get('ipfbytes', 61440)}"); e("s_cbranch_scc0 K1_NOIPF")
        e("v_lshlrev_b32 v232, 4, v240"); e("v_add_u32 v232, s33, v232")
        e("global_load_dwordx4 v[252:255], v232, s[56:57]")
        e("K1_NOIPF:")
    if o.get('wpf', False):
        e("s_lshr_b32 s33, s2, 3"); e("s_lshl_b32 s33, s33, 2"); e("s_add_u32 s33, s33, s28")
        e("v_lshlrev_b32 v232, 4, v240")
        e("s_mov_b32 s8, s40"); e("s_mov_b32 s9, s41"); e("s_mov_b32 s10, 131072"); e("s_mov_b32 s11, 0x20000")
        e("s_lshl_b32 s34, s33, 10")
        e("buffer_load_dwordx4 v[100:103], v232, s[8:11], s34 offen")
        e("s_mov_b32 s8, s46"); e("s_mov_b32 s9, s47"); e("s_mov_b32 s10, 262144")
        e("s_lshl_b32 s34, s33, 11")
        e("buffer_load_dwordx4 v[104:107], v232, s[8:11], s34 offen")
        e("buffer_load_dwordx4 v[108:111], v232, s[8:11], s34 offen offset:1024")
    if FUSED and o.get('tlb', False):
        e("s_load_dwordx2 s[56:57], s[0:1], 72"); e("s_waitcnt lgkmcnt(0)")
        e("s_cmp_eq_u32 s28, 1"); e("s_cbranch_scc0 K1_NOTLB")
        srd(e, 8, 's54', 's55', OP_OFF, 64*16*16384)
        e("v_lshlrev_b32 v232, 21, v240")
        e("buffer_load_dword v112, v232, s[8:11], 0 offen")
        e("s_mov_b32 s8, s56"); e("s_mov_b32 s9, s57"); e("s_mov_b32 s10, 4096000")
        e("buffer_load_dword v113, v232, s[8:11], 0 offen")
        e("K1_NOTLB:")
    if o.get('pf', True):
        e("s_and_b32 s33, s2, 7"); e("s_cmp_lt_u32 s33, 2"); e("s_cbranch_scc1 K1_NOPF")
        e("s_lshr_b32 s34, s2, 3")
        e("s_cmp_ge_u32 s33, 6"); e("s_cbranch_scc1 K1_PF2")
        e("s_cmp_lt_u32 s34, 16"); e("s_cselect_b32 s8, s44, s42"); e("s_cselect_b32 s9, s45, s43")
        e("s_and_b32 s34, s34, 15"); e("s_lshl_b32 s34, s34, 13")
        e("s_branch K1_PF3")
        e("K1_PF2:")
        e("s_add_u32 s56, s52, 131072"); e("s_addc_u32 s57, s53, 0")
        e("s_cmp_lt_u32 s34, 16"); e("s_cselect_b32 s8, s50, s56"); e("s_cselect_b32 s9, s51, s57")
        e("s_and_b32 s34, s34, 15"); e("s_lshl_b32 s34, s34, 13")
        e("K1_PF3:")
        e("s_mov_b32 s10, 131072"); e("s_mov_b32 s11, 0x20000")
        e("v_lshlrev_b32 v232, 4, v240"); e("s_lshl_b32 s33, s28, 11"); e("s_add_u32 s34, s34, s33")
        e("buffer_load_dwordx4 v[244:247], v232, s[8:11], s34 offen")
        e("buffer_load_dwordx4 v[248:251], v232, s[8:11], s34 offen offset:1024")
        e("K1_NOPF:")
    e("K1_NOX:")
    first, second = ("K1_UG", "K1_Q") if o.get('ugfirst', True) else ("K1_Q", "K1_UG")
    if CT:
        e("s_cmp_lt_u32 s2, 250"); e("s_cbranch_scc1 K1_CT")
    else:
        e("s_cmp_lt_u32 s2, 125"); e(f"s_cbranch_scc1 {first}")
        e("s_cmp_lt_u32 s2, 250"); e(f"s_cbranch_scc1 {second}")
    e("s_cmp_lt_u32 s2, 254"); e("s_cbranch_scc1 K1_W1")
    e("s_branch K1_W2")

    def k_addr(T, dst, dst2, base_lines):
        t = T.append
        t("v_and_b32 v234, 3, v242"); t("v_lshlrev_b32 v234, 2, v234"); t("v_bfe_u32 v235, v242, 2, 2")
        t("v_or_b32 v234, v234, v235"); t("v_lshlrev_b32 v236, 9, v242")
        for x in base_lines: t(x)
        t("v_add_u32 v236, s33, v236")
        for jj in range(8):
            t(f"v_add_u32 v235, {2*jj}, v241"); t("v_xor_b32 v235, v235, v234")
            t(f"v_lshl_add_u32 v{dst+jj}, v235, 4, v236")
            if dst2 is not None: t(f"v_add_u32 v{dst2+jj}, 0x10000, v{dst+jj}")
    def ka_setup(T): k_addr(T, KA, KA2, ["s_lshl_b32 s33, s30, 14"])
    def xb_setup(T): k_addr(T, XB, None, ["s_lshl_b32 s33, s29, 14", f"s_add_u32 s33, s33, {EX}", "s_lshl_b32 s34, s30, 8", "s_add_u32 s33, s33, s34"])
    def vn_setup(T):
        t = T.append
        t("v_bfe_u32 v234, v240, 4, 1"); t("v_bfe_u32 v235, v240, 2, 2"); t("v_bfe_u32 v236, v240, 1, 1")
        t("v_lshl_add_u32 v236, v234, 1, v236"); t("v_and_b32 v237, 1, v240"); t("v_lshlrev_b32 v237, 3, v237")
        t("v_lshl_add_u32 v238, v241, 3, v235"); t("v_lshl_add_u32 v237, v238, 9, v237")
        t("s_lshl_b32 s33, s30, 8"); t("v_add_u32 v237, s33, v237")
        for a in range(4):
            for u in range(2):
                t(f"v_lshl_add_u32 v238, v241, 1, {u}"); t("v_lshl_or_b32 v238, v235, 2, v238")
                t(f"v_add_u32 v239, {4*a}, v236"); t("v_xor_b32 v238, v238, v239")
                t(f"v_lshl_add_u32 v{VN+a*2+u}, v238, 4, v237")
                if u: t(f"v_add_u32 v{VN+a*2+u}, {4*512}, v{VN+a*2+u}")
                t(f"v_add_u32 v{VN2+a*2+u}, 0x10000, v{VN+a*2+u}")
    def dma_voff(T, stride1024):
        t = T.append
        if not stride1024:
            for k in range(4): t(f"v_mov_b32 v{DV+k}, v{DS+k}")
            return
        t("s_lshl_b32 s33, s28, 1")
        for k in range(4):
            t(f"v_add_u32 v234, {2*k}, v241"); t("v_and_b32 v234, 3, v234"); t("v_lshlrev_b32 v234, 2, v234")
            t(f"s_add_u32 s34, s33, {k>>1}"); t("s_and_b32 s34, s34, 3")
            t("v_or_b32 v234, s34, v234"); t("v_xor_b32 v234, v242, v234"); t("v_lshlrev_b32 v234, 4, v234")
            t("v_lshl_add_u32 v234, v241, 10, v234"); t("s_lshl_b32 s34, s28, 13"); t(f"s_add_u32 s34, s34, {k*1024}")
            t(f"v_add_u32 v{DV+k}, s34, v234")
    def tile_dma(n, srdn, soff):
        if o.get('nodma'): return []
        r = [(f"s_add_u32 m0, s31, {(n%8)*SLOT:#x}", False), (f"s_mov_b32 s32, {soff:#x}", False)]
        for k in range(4):
            r.append((f"buffer_load_dwordx4 v{DV+k}, s[{srdn}:{srdn+3}], s32 offen offset:{k*1024} lds", True))
        return r
    def emit_tile(out, W, n, srdn, soff):
        for txt, vm in tile_dma(n, srdn, soff):
            out.append(txt)
            if vm: W.issue('vm', ('T', n))
    def out_rows(T, W, srdn, tag, OB):
        t = T.append
        t("v_lshlrev_b32 v232, 4, v240"); t(f"s_add_u32 s33, s31, {EX}"); t("v_add_u32 v232, s33, v232")
        for half in range(2):
            for k in range(4):
                t(f"ds_read_b128 {vr(OB+(half*4+k)*4,4)}, v232 offset:{half*SLOT + k*1024}")
        t("s_lshl_b32 s32, s35, 15")
        for half in range(2):
            if half: t("s_add_u32 s32, s32, 16384")
            for k in range(4):
                t(f"s_waitcnt lgkmcnt({7 - (half*4+k)})")
                t(f"buffer_store_dwordx4 {vr(OB+(half*4+k)*4,4)}, v{DS+k}, s[{srdn}:{srdn+3}], s32 offen offset:{k*1024}{ST}")
                W.issue('vm', (tag, half, k))
        W.drain('lgkm')
    def ln(out, W, tiles):
        nw = W.need('vm', [('X', 7)])
        out.append(f"s_waitcnt vmcnt({nw})")
        out.append("s_barrier")
        stamp(out, 0)
        for s in range(8):
            out.append(f"ds_read_b128 {vr(64+4*s,4)}, v{XB+s}")
        body = []; b = body.append
        b("s_mov_b32 s34, 0x3f803f80")
        for k in range(4): b(f"v_mov_b32 v{232+k}, 0")
        for r in range(32):
            if r % 4 == 0: b(f"s_waitcnt lgkmcnt({7 - r//4})")
            b(f"v_dot2_f32_bf16 v{232+(r&1)}, v{64+r}, s34, v{232+(r&1)}")
            b(f"v_dot2_f32_bf16 v{234+(r&1)}, v{64+r}, v{64+r}, v{234+(r&1)}")
        b("s_nop 2")
        b("v_add_f32 v232, v232, v233"); b("v_add_f32 v234, v234, v235")
        b("v_mov_b32 v233, v232"); b("v_mov_b32 v235, v234"); b("s_nop 1")
        b("v_permlane32_swap_b32 v232, v233"); b("v_permlane32_swap_b32 v234, v235"); b("s_nop 1")
        b("v_add_f32 v232, v232, v233"); b("v_add_f32 v233, v234, v235")
        b(f"ds_write_b64 v{XB}, v[232:233]")
        b(f"v_xor_b32 v238, 256, v{XB}")
        b("s_waitcnt lgkmcnt(0)")
        b("s_barrier")
        b("ds_read_b64 v[234:235], v238")
        b("s_waitcnt lgkmcnt(0)")
        b("v_add_f32 v232, v232, v234"); b("v_add_f32 v234, v233, v235")
        b("v_mul_f32 v232, 0x3b800000, v232"); b("v_mul_f32 v234, 0x3b800000, v234")
        b("v_fma_f32 v234, -v232, v232, v234"); b("v_max_f32 v234, 0, v234"); b("v_add_f32 v234, 0x3727c5ac, v234")
        b("v_rsq_f32 v234, v234"); b("s_nop 0")
        b("v_mul_f32 v236, v232, v234"); b("v_sub_f32 v236, 0, v236")
        b("s_barrier")
        for r in range(32):
            t = 244 + 2*(r % 4)
            b(f"v_lshlrev_b32 v{t}, 16, v{64+r}")
            b(f"v_and_b32 v{t+1}, 0xffff0000, v{64+r}")
            b(f"v_pk_fma_f32 v[{t}:{t+1}], v[{t}:{t+1}], v[234:235], v[236:237] op_sel_hi:[1,0,0]")
            b(f"v_cvt_pk_bf16_f32 v{64+r}, v{t}, v{t+1}")
            if r % 4 == 3: b(f"ds_write_b128 v{XB+r//4}, {vr(64+r-3,4)}")
        b("s_waitcnt lgkmcnt(0)")
        b("s_barrier")
        b("s_lshl_b32 s33, s30, 8")
        for jj in range(8): b(f"v_subrev_u32 v{244+jj}, s33, v{XB+jj}")
        for s in range(16):
            b(f"ds_read_b128 {vr(B+4*s,4)}, v{244+(s&7)} offset:{(s>>3)*256}")
        flat = []
        for (n, sn, so) in tiles:
            tl_ = [(txt, vm, n) for txt, vm in tile_dma(n, sn, so)]
            flat.append(tl_[:3])
            for x in tl_[3:]: flat.append([x])
        gap = max(1, len(body) // (len(flat) + 1)) if flat else 1
        fi = 0
        for i, ins in enumerate(body):
            out.append(ins)
            if fi < len(flat) and i % gap == gap - 1:
                for txt, vm, n in flat[fi]:
                    out.append(txt)
                    if vm: W.issue('vm', ('T', n))
                fi += 1
        while fi < len(flat):
            for txt, vm, n in flat[fi]:
                out.append(txt)
                if vm: W.issue('vm', ('T', n))
            fi += 1
        out.append("s_waitcnt lgkmcnt(0)")
        W.drain('lgkm')
    def phase(W, p, kind, later, fill=None, f0=3):
        tl = TL(W)
        acc = ACC[p]
        cnt = [0]
        for a in range(4):
            sig = 4*p + a
            tb = 16*a - D - 1
            tl.add(tb, 'bar', needvm=[('T', 2*sig), ('T', 2*sig+1)], prio=1)
            k = 0
            for (n, sn, so) in later.get(sig, []):
                for txt, vm in tile_dma(n, sn, so):
                    sp = o.get('dsp', 2)
                    if vm:
                        tl.add(tb + 1 + sp*k, 'vm', txt, tag=('T', n), prio=7); k += 1
                    else:
                        tl.add(tb + 1 + sp*k, 'txt', txt, prio=6)
            for m in range(16):
                tm = 16*a + m
                ri = cnt[0] % R; cnt[0] += 1
                ring = aR + 4*ri
                if kind == 'X':
                    j = m; slot = 2*a
                    base = (KA if slot < 4 else KA2) + (j & 7)
                    off = (slot % 4)*SLOT + (j >> 3)*256
                    tag = (p, a, m)
                    tl.add(tm - D, 'lds', f"ds_read_b128 {ar(ring,4)}, v{base} offset:{off}", tag=tag, prio=2)
                    c = vr(acc+16*a,16) if j else '0'
                    tl.add(tm, 'mfma', f"v_mfma_f32_32x32x16_bf16 {vr(acc+16*a,16)}, {ar(ring,4)}, {vr(B+4*j,4)}, {c}", need=[tag], prio=0)
                else:
                    tt, s, aa = m >> 3, (m >> 2) & 1, m & 3
                    tau = 2*a + tt; slot = tau
                    tags = []
                    for u in range(2):
                        base = (VN if slot < 4 else VN2) + aa*2 + u
                        off = (slot % 4)*SLOT + 16*s*512
                        tag = (p, a, m, u); tags.append(tag)
                        tl.add(tm - D, 'lds', f"ds_read_b64_tr_b16 {ar(ring+2*u,2)}, v{base} offset:{off}", tag=tag, prio=2)
                    c = vr(acc+16*aa,16) if (tau or s) else '0'
                    tl.add(tm, 'mfma', f"v_mfma_f32_32x32x16_bf16 {vr(acc+16*aa,16)}, {ar(ring,4)}, {vr(B+4*(2*tau+s),4)}, {c}", need=tags, prio=0)
        if fill:
            n = len(fill)
            for i, ins in enumerate(fill):
                tl.add(f0 + (i*(64-f0))/n, 'txt', ins, prio=4)
        return tl
    def pack_swap(out, src, dst, swap=True, scale=None):
        if scale:
            for k in range(8):
                out.append(f"v_pk_mul_f32 v[{src+2*k}:{src+2*k+1}], v[{src+2*k}:{src+2*k+1}], {scale} op_sel_hi:[1,0]")
        for k in range(8):
            out.append(f"v_cvt_pk_bf16_f32 v{dst+k}, v{src+2*k}, v{src+2*k+1}")
        if swap:
            out.append("s_nop 1")
            for b in (0, 4):
                out.append(f"v_permlane32_swap_b32 v{dst+b}, v{dst+b+2}")
                out.append(f"v_permlane32_swap_b32 v{dst+b+1}, v{dst+b+3}")
    def exchange(out, W, acc, kind):
        out.append("s_nop 15")
        out.append("v_lshlrev_b32 v232, 4, v240")
        out.append(f"s_lshl_b32 s33, s29, 14"); out.append(f"s_add_u32 s33, s33, {EX}")
        out.append("v_add_u32 v233, s33, v232")
        out.append(f"s_lshl_b32 s34, s30, {13 if kind=='Y' else 11}")
        out.append("v_add_u32 v232, s34, v233")
        for a in range(4):
            d = 244 if a % 2 == 0 else 0
            pack_swap(out, acc+16*a, d)
            for s in range(2):
                f = (2*a + s) if kind == 'Y' else (4*a + s)
                out.append(f"ds_write_b128 v232, {vr(d+4*s,4)} offset:{f*1024}")
        out.append("s_waitcnt lgkmcnt(0)")
        out.append("s_barrier")
        for f in range(16):
            out.append(f"ds_read_b128 {vr(B+4*f,4)}, v233 offset:{f*1024}")
        out.append("s_waitcnt lgkmcnt(0)")
        W.drain('lgkm')
    def narrow(out, W, rowbase_bytes, slice_sreg):
        for x in ["v_lshrrev_b32 v232, 3, v240", "v_lshlrev_b32 v232, 9, v232", "v_and_b32 v233, 7, v240",
                  "v_lshl_add_u32 v232, v233, 4, v232", f"s_lshl_b32 s33, {slice_sreg}, 7", "s_lshl_b32 s34, s28, 15",
                  "s_add_u32 s33, s33, s34", f"s_add_u32 s33, s33, {rowbase_bytes}", "v_add_u32 v232, s33, v232",
                  "s_lshl_b32 s34, s28, 13", f"s_add_u32 s34, s34, {EX}"]: out.append(x)
        for i in range(8):
            out.append(f"s_add_u32 m0, s34, {i*1024}")
            out.append(f"s_mov_b32 s32, {i*4096}")
            out.append(f"buffer_load_dwordx4 v232, s[16:19], s32 offen lds")
            W.issue('vm', ('N', i))
    def narrow_read(out, W):
        n = W.need('vm', [('N', 7)])
        out.append(f"s_waitcnt vmcnt({n})")
        out.append("s_barrier")
        for x in ["v_bfe_u32 v232, v240, 2, 2", "v_lshl_add_u32 v232, v241, 3, v232", "v_lshlrev_b32 v232, 7, v232",
                  "v_bfe_u32 v233, v240, 4, 1", "v_lshl_add_u32 v232, v233, 5, v232", "v_and_b32 v233, 3, v240",
                  "v_lshl_add_u32 v232, v233, 3, v232", "s_lshl_b32 s33, s29, 6", f"s_add_u32 s33, s33, {EX}",
                  "v_add_u32 v232, s33, v232"]: out.append(x)
        for s in range(16):
            for u in range(2):
                out.append(f"ds_read_b64_tr_b16 {vr(B+4*s+2*u,2)}, v232 offset:{s*2048+u*512}")
            if s % 4 == 3: out.append("s_waitcnt lgkmcnt(0)")
        W.drain('lgkm')
    def finish(task_lines, label):
        if CT and label in ("K1_Q", "K1_UG"): return
        fixed = hazard.autofix(task_lines)
        e(f"{label}:")
        L.extend(fixed)
        e("s_branch K1_FIN")
    def cap(fn):
        buf = []; fn(buf.append); return buf
    std_later = lambda sn: {2: [(8, sn, 0), (9, sn, SLOT)], 3: [(10, sn, 2*SLOT), (11, sn, 3*SLOT)], 4: [(12, sn, 4*SLOT), (13, sn, 5*SLOT)], 5: [(14, sn, 6*SLOT), (15, sn, 7*SLOT)]}
    npre = o['npre']


    if CT:
        EXB = EX + 16384
        Bq = 64
        ACCQ, ACCK, ACCG, ACCU = 64, 96, 128, 160
        VN4 = 208; VN42 = 212; XO = 216; XB8 = 244
        W = Waiter(); T = []; t = T.append
        for s_ in range(4): W.issue('vm', ('X', s_))
        dma_voff(T, True)
        T += cap(lambda e: (srd(e, 8, 's38', 's39', 0, 131072), srd(e, 12, 's40', 's41', 0, 131072), srd(e, 20, 's46', 's47', 0, 262144),
                            srd(e, 24, 's54', 's55', QF_OFF, 500*8192)))
        def tinfo(n):
            if n < 8: return (8, n*SLOT, DS)
            if n < 16: return (12, (n-8)*SLOT, DS)
            if n < 24: return (20, (n-16)*32768 + 512, DV)
            return (20, (n-24)*32768, DV)
        def tdma(n):
            sn, so, dv = tinfo(n)
            r = [(f"s_add_u32 m0, s31, {(n%8)*SLOT:#x}", False), (f"s_mov_b32 s32, {so:#x}", False)]
            for k in range(4): r.append((f"buffer_load_dwordx4 v{dv+k}, s[{sn}:{sn+3}], s32 offen offset:{k*1024} lds", True))
            return r
        def temit(n):
            for txt, vm in tdma(n):
                t(txt)
                if vm: W.issue('vm', ('T', n))
        temit(0); temit(1)
        t("v_and_b32 v234, 3, v242"); t("v_lshlrev_b32 v234, 2, v234"); t("v_bfe_u32 v235, v242, 2, 2"); t("v_or_b32 v234, v234, v235")
        t("v_lshlrev_b32 v236, 9, v242"); t(f"v_add_u32 v237, {EX}, v236")
        t("s_lshl_b32 s33, s30, 8"); t("v_add_u32 v238, s33, v237")
        t("s_lshl_b32 s33, s29, 3")
        for i in range(4):
            t(f"s_add_u32 s34, s33, {2*i}"); t("v_add_u32 v235, s34, v241"); t("v_xor_b32 v235, v235, v234"); t(f"v_lshl_add_u32 v{XO+i}, v235, 4, v238")
        t("s_lshl_b32 s33, s28, 14"); t("v_add_u32 v238, s33, v236")
        for jj in range(8):
            t(f"v_add_u32 v235, {2*jj}, v241"); t("v_xor_b32 v235, v235, v234")
            t(f"v_lshl_add_u32 v{KA+jj}, v235, 4, v238"); t(f"v_add_u32 v{KA2+jj}, 0x10000, v{KA+jj}")
        t("v_bfe_u32 v234, v240, 4, 1"); t("v_bfe_u32 v235, v240, 2, 2"); t("v_bfe_u32 v236, v240, 1, 1")
        t("v_lshl_add_u32 v236, v234, 1, v236"); t("v_and_b32 v237, 1, v240"); t("v_lshlrev_b32 v237, 3, v237")
        t("v_lshl_add_u32 v238, v241, 3, v235"); t("v_lshl_add_u32 v237, v238, 9, v237")
        t("s_lshl_b32 s33, s30, 8"); t("v_add_u32 v237, s33, v237")
        t("s_lshl_b32 s33, s29, 3")
        for aa in range(2):
            for u in range(2):
                t(f"v_lshl_add_u32 v238, v241, 1, {u}"); t("v_lshl_or_b32 v238, v235, 2, v238")
                t(f"s_add_u32 s34, s33, {4*aa}"); t("v_add_u32 v239, s34, v236"); t("v_xor_b32 v238, v238, v239")
                t(f"v_lshl_add_u32 v{VN4+aa*2+u}, v238, 4, v237")
                if u: t(f"v_add_u32 v{VN4+aa*2+u}, {4*512}, v{VN4+aa*2+u}")
                t(f"v_add_u32 v{VN42+aa*2+u}, 0x10000, v{VN4+aa*2+u}")
        nw = W.need('vm', [('X', 3)]); t(f"s_waitcnt vmcnt({nw})"); t("s_barrier")
        stamp(T, 0)
        for i in range(4): t(f"ds_read_b128 {vr(64+4*i,4)}, v{XO+i}")
        T += cap(lambda e: srd(e, 16, 's54', 's55', XA_OFF, 8000*512))
        body = []; b = body.append
        b("s_mov_b32 s34, 0x3f803f80")
        for k in range(4): b(f"v_mov_b32 v{232+k}, 0")
        for r in range(16):
            if r % 4 == 0: b(f"s_waitcnt lgkmcnt({3 - r//4})")
            b(f"v_dot2_f32_bf16 v{232+(r&1)}, v{64+r}, s34, v{232+(r&1)}")
            b(f"v_dot2_f32_bf16 v{234+(r&1)}, v{64+r}, v{64+r}, v{234+(r&1)}")
        b("s_nop 2")
        b("v_add_f32 v232, v232, v233"); b("v_add_f32 v234, v234, v235")
        b("v_mov_b32 v233, v232"); b("v_mov_b32 v235, v234"); b("s_nop 1")
        b("v_permlane32_swap_b32 v232, v233"); b("v_permlane32_swap_b32 v234, v235"); b("s_nop 1")
        b("v_add_f32 v232, v232, v233"); b("v_add_f32 v233, v234, v235")
        b("v_lshlrev_b32 v238, 3, v242"); b(f"v_add_u32 v238, {EXB}, v238")
        b("s_lshl_b32 s33, s28, 8"); b("v_add_u32 v239, s33, v238")
        b("ds_write_b64 v239, v[232:233]")
        b("s_waitcnt lgkmcnt(0)"); b("s_barrier")
        for k in range(4): b(f"ds_read_b64 v[{80+2*k}:{81+2*k}], v238 offset:{256*k}")
        b("s_waitcnt lgkmcnt(0)")
        b("v_add_f32 v80, v80, v82"); b("v_add_f32 v81, v81, v83"); b("v_add_f32 v84, v84, v86"); b("v_add_f32 v85, v85, v87")
        b("v_add_f32 v232, v80, v84"); b("v_add_f32 v234, v81, v85")
        b("v_mul_f32 v232, 0x3b800000, v232"); b("v_mul_f32 v234, 0x3b800000, v234")
        b("v_fma_f32 v234, -v232, v232, v234"); b("v_max_f32 v234, 0, v234"); b("v_add_f32 v234, 0x3727c5ac, v234")
        b("v_rsq_f32 v234, v234"); b("s_nop 0")
        b("v_mul_f32 v236, v232, v234"); b("v_sub_f32 v236, 0, v236")
        for r in range(16):
            tt_ = 244 + 2*(r % 4)
            b(f"v_lshlrev_b32 v{tt_}, 16, v{64+r}"); b(f"v_and_b32 v{tt_+1}, 0xffff0000, v{64+r}")
            b(f"v_pk_fma_f32 v[{tt_}:{tt_+1}], v[{tt_}:{tt_+1}], v[234:235], v[236:237] op_sel_hi:[1,0,0]")
            b(f"v_cvt_pk_bf16_f32 v{64+r}, v{tt_}, v{tt_+1}")
            if r % 4 == 3: b(f"ds_write_b128 v{XO+r//4}, {vr(64+r-3,4)}")
        b("s_lshl_b32 s33, s28, 14"); b(f"s_sub_u32 s33, {EX}, s33")
        for jj in range(8): b(f"v_add_u32 v{XB8+jj}, s33, v{KA+jj}")
        b("s_waitcnt lgkmcnt(0)"); b("s_barrier")
        for s_ in range(16): b(f"ds_read_b128 {vr(B+4*s_,4)}, v{XB8+(s_&7)} offset:{(s_>>3)*256}")
        b("v_lshlrev_b32 v232, 4, v240"); b(f"s_add_u32 s33, s31, {EX}"); b("v_add_u32 v232, s33, v232")
        for k in range(4): b(f"ds_read_b128 {vr(96+4*k,4)}, v232 offset:{k*1024}")
        flat = []
        for n in range(2, 6):
            tl_ = [(txt, vm, n) for txt, vm in tdma(n)]
            flat.append(tl_[:3])
            for x in tl_[3:]: flat.append([x])
        gap = max(1, (len(body) - 24) // (len(flat) + 1)); fi = 0
        for i, ins in enumerate(body):
            t(ins)
            if fi < len(flat) and i % gap == gap - 1:
                for txt, vm, n in flat[fi]:
                    t(txt)
                    if vm: W.issue('vm', ('T', n))
                fi += 1
        while fi < len(flat):
            for txt, vm, n in flat[fi]:
                t(txt)
                if vm: W.issue('vm', ('T', n))
            fi += 1
        t("s_waitcnt lgkmcnt(0)")
        t("s_lshl_b32 s56, s35, 14")
        for k in range(4):
            t(f"buffer_store_dwordx4 {vr(96+4*k,4)}, v{DS+k}, s[16:19], s56 offen offset:{k*1024}{ST}"); W.issue('vm', ('XS', k))
        stamp(T, 1)
        def flag_store(off_lines, lbl):
            t("s_cmp_eq_u32 s28, 0"); t(f"s_cbranch_scc0 {lbl}")
            for x in off_lines: t(x)
            t("v_mov_b32 v232, s3"); t("v_cmp_eq_u32 vcc, 0, v240"); t("s_and_saveexec_b64 s[56:57], vcc")
            t("buffer_store_dword v232, off, s[8:11], s34 sc1")
            t("s_mov_b64 exec, s[56:57]")
            t(f"{lbl}:")
        fillers = {}
        def step(sig, extra_need=None, after_bar=None):
            p, a = sig >> 2, sig & 3
            need = [('T', 2*sig), ('T', 2*sig+1)] + (extra_need or [])
            nv = W.need('vm', need)
            if nv is not None: t(f"s_waitcnt vmcnt({nv})")
            t("s_barrier")
            if after_bar: after_bar()
            dm = []
            for n in (2*(sig+3), 2*(sig+3)+1):
                if n < 32: dm += [(txt, vm, n) for txt, vm in tdma(n)]
            fl = list(fillers.get(sig, []))
            def some(k_dma, k_fill):
                c = 0
                while dm and c < k_dma:
                    txt, vm, n = dm.pop(0); t(txt)
                    if vm: W.issue('vm', ('T', n)); c += 1
                for _ in range(k_fill):
                    if fl: t(fl.pop(0))
            nf = -(-len(fl) // 8) if fl else 0
            if p != 1:
                acc = {0: ACCQ, 2: ACCG, 3: ACCU}[p]
                idx = 0; seq = []
                for tt in range(2):
                    slot = (2*sig + tt) % 8
                    for s_ in range(2):
                        for aa in range(2):
                            for u in range(2):
                                base = (VN4 if slot < 4 else VN42) + aa*2 + u
                                t(f"ds_read_b64_tr_b16 {ar(4*idx+2*u,2)}, v{base} offset:{(slot%4)*SLOT + 16*s_*512}")
                            seq.append((idx, tt, s_, aa)); idx += 1
                for (idx, tt, s_, aa) in seq:
                    if idx % 2 == 0: t(f"s_waitcnt lgkmcnt({14 - 2*idx - 2 if idx < 6 else 0})")
                    tau = 2*a + tt
                    c = vr(acc+16*aa,16) if (tau or s_) else '0'
                    t(f"v_mfma_f32_32x32x16_bf16 {vr(acc+16*aa,16)}, {ar(4*idx,4)}, {vr(B+4*(2*tau+s_),4)}, {c}")
                    some(1, nf)
            else:
                lbl = f"K1_CT_X{a}"
                t(f"s_cmp_eq_u32 s30, {a & 1}"); t(f"s_cbranch_scc0 {lbl}")
                k = a >> 1; base = KA if k == 0 else KA2
                for half in range(2):
                    for j in range(8): t(f"ds_read_b128 {ar(4*j,4)}, v{base+j} offset:{half*256}")
                    for j in range(8):
                        if j % 2 == 0: t(f"s_waitcnt lgkmcnt({6 - j})")
                        jj = 8*half + j
                        c = vr(ACCK+16*k,16) if jj else '0'
                        t(f"v_mfma_f32_32x32x16_bf16 {vr(ACCK+16*k,16)}, {ar(4*j,4)}, {ar(Bq+4*jj,4)}, {c}")
                t(f"{lbl}:")
            some(100, 1000)
        for sig in range(4): step(sig)
        stamp(T, 2)
        t("s_nop 15")
        t("v_lshlrev_b32 v232, 4, v240"); t(f"v_add_u32 v233, {EXB}, v232"); t("s_lshl_b32 s34, s28, 12"); t("v_add_u32 v232, s34, v233")
        for aa in range(2):
            d = 244 if aa == 0 else 96
            pack_swap(T, ACCQ+16*aa, d)
            for s_ in range(2): t(f"ds_write_b128 v232, {vr(d+4*s_,4)} offset:{(2*aa+s_)*1024}")
        t("s_waitcnt lgkmcnt(0)"); t("s_barrier")
        for f in range(16): t(f"ds_read_b128 {ar(Bq+4*f,4)}, v233 offset:{f*1024}")
        t("s_waitcnt lgkmcnt(0)")
        t("buffer_load_dword v243, off, s[4:7], 0 sc1"); W.issue('vm', 'TAG')
        for sig in range(4, 8): step(sig)
        stamp(T, 3)
        qf = []
        qf.append("s_nop 7"); qf.append("v_mov_b32 v236, 0x3db8aa3b")
        qf += ["s_lshl_b32 s33, s35, 14", "s_lshl_b32 s34, s28, 10", "s_add_u32 s33, s33, s34",
               "v_lshrrev_b32 v252, 4, v242", "v_lshlrev_b32 v252, 13, v252", "v_and_b32 v253, 15, v242", "v_lshl_add_u32 v253, v241, 4, v253",
               "v_lshl_add_u32 v252, v253, 4, v252", "v_add_u32 v252, s33, v252"]
        qst = []
        for k in range(2):
            d = 244 if k == 0 else 64
            pack_swap(qf, ACCK+16*k, d, scale="v[236:237]")
            for s_ in range(2):
                qf.append(f"buffer_store_dwordx4 {vr(d+4*s_,4)}, v252, s[24:27], 0 offen offset:{k*4096 + s_*512 - (4096 if k else 0)}{ST}" if k == 0 else "@K1")
        out2 = []
        cnt = 0
        for x in qf:
            if x == "@K1":
                if cnt == 0: out2.append("v_add_u32 v253, 4096, v252")
                out2.append(f"buffer_store_dwordx4 {vr(64+4*cnt,4)}, v253, s[24:27], 0 offen offset:{cnt*512}{ST}"); cnt += 1
            else: out2.append(x)
        qf = out2
        for x in qf:
            t(x)
            if x.startswith('buffer_store'): W.issue('vm', ('QS', len(W.q['vm'])))
        W.issue('vm', 'QEND'); W.q['vm'].pop()
        qtags = [x for x in W.q['vm'] if isinstance(x, tuple) and x[0] in ('QS', 'XS')]
        step(8)
        step(9)
        def get_tag():
            t("K1_CT_TAGP:")
            t("buffer_load_dword v232, off, s[4:7], 0 sc1"); t("s_waitcnt vmcnt(0)")
            t("v_readfirstlane_b32 s3, v232"); t("s_nop 3"); t("s_cmp_lg_u32 s3, 0"); t("s_cbranch_scc1 K1_CT_TAGD"); t("s_sleep 1"); t("s_branch K1_CT_TAGP")
            t("K1_CT_TAGD:")
        def qflag():
            T.extend(cap(lambda e: srd(e, 8, 's54', 's55', FL_OFF, FL_SIZE)))
            flag_store([f"s_lshl_b32 s34, s35, 7", f"s_add_u32 s34, s34, {FLQ}"], "K1_CT_NOQF")
        step(10, extra_need=qtags + ['TAG'], after_bar=None)
        t("v_readfirstlane_b32 s3, v243")
        t("s_nop 3")
        pend_qflag = True
        t("s_cmp_eq_u32 s28, 0"); t("s_cbranch_scc0 K1_CT_NOQF2")
        t("s_cmp_lg_u32 s3, 0"); t("s_cbranch_scc0 K1_CT_NOQF2")
        T.extend(cap(lambda e: srd(e, 8, 's54', 's55', FL_OFF, FL_SIZE)))
        t(f"s_lshl_b32 s34, s35, 7"); t(f"s_add_u32 s34, s34, {FLQ}")
        t("v_mov_b32 v232, s3"); t("v_cmp_eq_u32 vcc, 0, v240"); t("s_and_saveexec_b64 s[56:57], vcc")
        t("buffer_store_dword v232, off, s[8:11], s34 sc1")
        t("s_mov_b64 exec, s[56:57]")
        t("K1_CT_NOQF2:")
        step(11)
        stamp(T, 4)
        k0 = -2.0*1.4426950408889634*0.7978845608028654
        t("s_nop 7")
        t(f"v_mov_b32 v232, {fb(k0)}"); t(f"v_mov_b32 v234, {fb(k0*0.044715)}"); t("v_mov_b32 v236, 1.0")
        for k in range(4): t(f"v_mov_b32 v{252+k}, 0")
        def gelu(r):
            tt_ = 244 + 2*((r//2) % 4)
            X = f"v[{r}:{r+1}]"; Tt = f"v[{tt_}:{tt_+1}]"
            return [f"v_pk_mul_f32 {Tt}, {X}, {X}", f"v_pk_fma_f32 {Tt}, {Tt}, v[234:235], v[232:233] op_sel_hi:[1,0,0]", f"v_pk_mul_f32 {Tt}, {Tt}, {X}",
                    f"v_exp_f32 v{tt_}, v{tt_}", f"v_exp_f32 v{tt_+1}, v{tt_+1}", f"v_pk_add_f32 {Tt}, {Tt}, v[236:237] op_sel_hi:[1,0]",
                    f"v_rcp_f32 v{tt_}, v{tt_}", f"v_rcp_f32 v{tt_+1}, v{tt_+1}", f"v_pk_mul_f32 {X}, {X}, {Tt}",
                    f"v_pk_add_f32 v[252:253], v[252:253], {X}", f"v_pk_fma_f32 v[254:255], {X}, {X}, v[254:255]"]
        for q in range(4):
            cols = [gelu(ACCG + 8*q + 2*k) for k in range(4)]
            fillers[12+q] = [cols[k][i] for i in range(11) for k in range(4)]
        for sig in range(12, 16): step(sig)
        stamp(T, 5)
        t("v_add_f32 v8, v252, v253"); t("v_add_f32 v10, v254, v255"); t("v_mov_b32 v9, v8"); t("v_mov_b32 v11, v10"); t("s_nop 1")
        t("v_permlane32_swap_b32 v8, v9"); t("v_permlane32_swap_b32 v10, v11"); t("s_nop 1")
        t("v_add_f32 v8, v8, v9"); t("v_add_f32 v9, v10, v11")
        t("v_lshlrev_b32 v12, 3, v242"); t("s_lshl_b32 s33, s28, 8"); t("v_add_u32 v13, s33, v12")
        t("s_barrier")
        t("ds_write_b64 v13, v[8:9]")
        for aa in range(2):
            d = 244 if aa == 0 else 16
            pack_swap(T, ACCU+16*aa, d)
            for s_ in range(2): t(f"ds_write_b128 v{XO+2*aa+s_}, {vr(d+4*s_,4)} offset:16384")
        t("s_waitcnt lgkmcnt(0)"); t("s_barrier")
        for k in range(4): t(f"ds_read_b64 v[{24+2*k}:{25+2*k}], v12 offset:{256*k}")
        t("v_lshlrev_b32 v232, 4, v240"); t(f"s_add_u32 s33, s31, {EX}"); t("v_add_u32 v232, s33, v232")
        for k in range(4): t(f"ds_read_b128 {vr(96+4*k,4)}, v232 offset:{16384 + k*1024}")
        T.extend(cap(lambda e: (srd(e, 12, 's54', 's55', U_OFF, 8000*512), srd(e, 20, 's54', 's55', G_OFF, 8000*512))))
        t("s_lshl_b32 s56, s35, 14")
        t("s_waitcnt lgkmcnt(4)")
        t("v_add_f32 v24, v24, v26"); t("v_add_f32 v25, v25, v27"); t("v_add_f32 v28, v28, v30"); t("v_add_f32 v29, v29, v31")
        t("v_add_f32 v8, v24, v28"); t("v_add_f32 v9, v25, v29")
        t("v_mul_f32 v8, 0x3b800000, v8"); t("v_mul_f32 v9, 0x3b800000, v9")
        t("v_fma_f32 v9, -v8, v8, v9"); t("v_max_f32 v9, 0, v9"); t("v_add_f32 v9, 0x3727c5ac, v9")
        t("v_rsq_f32 v10, v9"); t("s_nop 0"); t("v_mul_f32 v12, v8, v10"); t("v_sub_f32 v12, 0, v12")
        t("s_waitcnt lgkmcnt(0)")
        for k in range(4): t(f"buffer_store_dwordx4 {vr(96+4*k,4)}, v{DS+k}, s[12:15], s56 offen offset:{k*1024}{ST}")
        for aa in range(2):
            for k in range(8):
                r = ACCG + 16*aa + 2*k
                t(f"v_pk_fma_f32 v[{r}:{r+1}], v[{r}:{r+1}], v[10:11], v[12:13] op_sel_hi:[1,0,0]")
            d = 32 + 8*aa
            pack_swap(T, ACCG+16*aa, d)
            for s_ in range(2): t(f"ds_write_b128 v{XO+2*aa+s_}, {vr(d+4*s_,4)}")
        t("s_waitcnt lgkmcnt(0)"); t("s_barrier")
        for k in range(4): t(f"ds_read_b128 {vr(112+4*k,4)}, v232 offset:{k*1024}")
        for k in range(4):
            t(f"s_waitcnt lgkmcnt({3-k})")
            t(f"buffer_store_dwordx4 {vr(112+4*k,4)}, v{DS+k}, s[20:23], s56 offen offset:{k*1024}{ST}")
        stamp(T, 6)
        finish(T, "K1_CT")
    W = Waiter(); T = []
    for s in range(8): W.issue('vm', ('X', s))
    dma_voff(T, False)
    T += cap(lambda e: (srd(e, 8, 's38', 's39', 0, 131072), srd(e, 12, 's40', 's41', 0, 131072),
                        srd(e, 20, 's54', 's55', XA_OFF, 8000*512), srd(e, 24, 's54', 's55', QF_OFF, 500*8192)))
    emit = [(n, 8, n*SLOT) for n in range(8)]
    for (n, sn, so) in emit[:npre]: emit_tile(T, W, n, sn, so)
    xb_setup(T); vn_setup(T)
    ln(T, W, emit[npre:o['nln']])
    if FF: T.append("buffer_load_dword v243, off, s[4:7], 0 sc1"); W.issue('vm', 'TAG')
    stamp(T, 1)
    ka_setup(T)
    stamp(T, 2)
    T.append("v_lshlrev_b32 v232, 4, v240"); T.append(f"s_add_u32 s33, s31, {EX}"); T.append("v_add_u32 v232, s33, v232")
    for half in range(2):
        for k in range(4):
            T.append(f"ds_read_b128 {vr(ACC[1]+(half*4+k)*4,4)}, v232 offset:{half*SLOT + k*1024}")
    T.append("s_waitcnt lgkmcnt(0)")
    T.append("s_lshl_b32 s34, s35, 15"); T.append("s_add_u32 s56, s34, 16384")
    xfill = []
    for half in range(2):
        for k in range(4):
            xfill.append((f"buffer_store_dwordx4 {vr(ACC[1]+(half*4+k)*4,4)}, v{DS+k}, s[20:23], {'s56' if half else 's34'} offen offset:{k*1024}{ST}", ('XS', half, k)))
    later = std_later(12)
    rest = emit[o['nln']:]
    if rest:
        later[0] = rest[:2]; later[1] = rest[2:4]
        if later[1] == [] : del later[1]
    tl0 = phase(W, 0, 'Y', later)
    for i, (txt, tag) in enumerate(xfill): tl0.add(1 + 2*i, 'vm', txt, tag=tag, prio=7)
    T += tl0.linearize()
    stamp(T, 3)
    exchange(T, W, ACC[0], 'Y')
    stamp(T, 4)
    T.append("v_mov_b32 v236, 0x3db8aa3b")
    T.append("s_lshl_b32 s33, s35, 2"); T.append("s_lshl_b32 s34, s29, 1"); T.append("s_add_u32 s33, s33, s34"); T.append("s_lshl_b32 s33, s33, 13")
    T.append("s_lshl_b32 s34, s30, 10"); T.append("s_add_u32 s33, s33, s34")
    T.append("v_lshrrev_b32 v232, 4, v242"); T.append("v_lshlrev_b32 v232, 13, v232")
    T.append("v_and_b32 v233, 15, v242"); T.append("v_lshl_add_u32 v233, v241, 4, v233")
    T.append("v_lshl_add_u32 v232, v233, 4, v232"); T.append("v_add_u32 v232, s33, v232")
    for a in range(1, 4): T.append(f"v_add_u32 v{232+a}, {a*2048}, v232")
    def qepi(a):
        ls = []
        d = ACC[0] + 8*a
        pack_swap(ls, ACC[1]+16*a, d, scale="v[236:237]")
        st = [f"buffer_store_dwordx4 {vr(d+4*s,4)}, v{232+a}, s[24:27], 0 offen offset:{s*512}{ST}" for s in range(2)]
        return ls, st
    tl1 = phase(W, 1, 'X', later)
    if o.get('qprog', True):
        for a in range(3):
            ls, st = qepi(a)
            t0 = 16*(a+1) + 4
            for i, ins in enumerate(ls): tl1.add(t0 + i*0.4, 'txt', ins, prio=4)
            for i, ins in enumerate(st): tl1.add(t0 + len(ls)*0.4 + 0.5 + i, 'vm', ins, tag=('QS', a, i), prio=7)
    T += tl1.linearize()
    stamp(T, 5)
    T.append("s_nop 15")
    for a in (range(3, 4) if o.get('qprog', True) else range(4)):
        ls, st = qepi(a)
        T += ls + st
    finish(T, "K1_Q")

    W = Waiter(); T = []
    for s in range(8): W.issue('vm', ('X', s))
    dma_voff(T, True)
    T += cap(lambda e: (srd(e, 8, 's46', 's47', 0, 262144),
                        srd(e, 20, 's54', 's55', U_OFF, 8000*512), srd(e, 24, 's54', 's55', G_OFF, 8000*512)))
    emit = [(n, 8, n*32768 + 512) for n in range(8)]
    for (n, sn, so) in emit[:npre]: emit_tile(T, W, n, sn, so)
    xb_setup(T); vn_setup(T)
    ln(T, W, emit[npre:o['nln']])
    if FF: T.append("buffer_load_dword v243, off, s[4:7], 0 sc1"); W.issue('vm', 'TAG')
    stamp(T, 2)
    gl = lambda n: (n, 8, (n-8)*32768)
    later = {2: [gl(8), gl(9)], 3: [gl(10), gl(11)], 4: [gl(12), gl(13)], 5: [gl(14), gl(15)]}
    rest = emit[o['nln']:]
    if rest:
        later[0] = rest[:2]; later[1] = rest[2:4]
    T += phase(W, 0, 'Y', later).linearize()
    stamp(T, 3)
    k0 = -2.0*1.4426950408889634*0.7978845608028654
    T.append(f"v_mov_b32 v232, {fb(k0)}"); T.append(f"v_mov_b32 v234, {fb(k0*0.044715)}"); T.append("v_mov_b32 v236, 1.0")
    for k in range(4): T.append(f"v_mov_b32 v{252+k}, 0")
    def gelu(r):
        t = 244 + 2*((r//2) % 4)
        X = f"v[{r}:{r+1}]"; Tt = f"v[{t}:{t+1}]"
        return [f"v_pk_mul_f32 {Tt}, {X}, {X}",
                f"v_pk_fma_f32 {Tt}, {Tt}, v[234:235], v[232:233] op_sel_hi:[1,0,0]",
                f"v_pk_mul_f32 {Tt}, {Tt}, {X}",
                f"v_exp_f32 v{t}, v{t}", f"v_exp_f32 v{t+1}, v{t+1}",
                f"v_pk_add_f32 {Tt}, {Tt}, v[236:237] op_sel_hi:[1,0]",
                f"v_rcp_f32 v{t}, v{t}", f"v_rcp_f32 v{t+1}, v{t+1}",
                f"v_pk_mul_f32 {X}, {X}, {Tt}",
                f"v_pk_add_f32 v[252:253], v[252:253], {X}",
                f"v_pk_fma_f32 v[254:255], {X}, {X}, v[254:255]"]
    fill = []
    g0 = ACC[0]
    for b in range(g0, g0+64, 8):
        cols = [gelu(b+2*k) for k in range(4)]
        for i in range(11):
            for k in range(4): fill.append(cols[k][i])
    T += phase(W, 1, 'Y', later, fill=fill, f0=4).linearize()
    stamp(T, 5)
    T.append("v_add_f32 v8, v252, v253"); T.append("v_add_f32 v10, v254, v255")
    T.append("v_mov_b32 v9, v8"); T.append("v_mov_b32 v11, v10"); T.append("s_nop 1")
    T.append("v_permlane32_swap_b32 v8, v9"); T.append("v_permlane32_swap_b32 v10, v11"); T.append("s_nop 1")
    T.append("v_add_f32 v8, v8, v9"); T.append("v_add_f32 v9, v10, v11")
    T.append("s_lshl_b32 s33, s29, 1"); T.append("s_add_u32 s33, s33, s30"); T.append("s_lshl_b32 s33, s33, 9"); T.append("s_add_u32 s33, s33, 32768")
    T.append("v_lshlrev_b32 v12, 3, v240"); T.append("v_add_u32 v13, s33, v12")
    T.append("s_xor_b32 s33, s33, 512"); T.append("v_add_u32 v14, s33, v12")
    T.append("ds_write_b64 v13, v[8:9]")
    for a in range(4):
        d = 244 if a % 2 == 0 else 16
        pack_swap(T, ACC[1]+16*a, d)
        for s in range(2):
            T.append(f"ds_write_b128 v{XB+2*a+s}, {vr(d+4*s,4)}")
    T.append("s_waitcnt lgkmcnt(0)"); T.append("s_barrier")
    T.append("ds_read_b64 v[10:11], v14")
    T.append("v_lshlrev_b32 v15, 4, v240"); T.append("v_add_u32 v15, s31, v15"); T.append(f"v_add_u32 v232, {EX}, v15")
    for half in range(2):
        for k in range(4):
            T.append(f"ds_read_b128 {vr(ACC[1]+(half*4+k)*4,4)}, v232 offset:{half*SLOT + k*1024}")
    for jj in range(8): T.append(f"v_subrev_u32 v{XB+jj}, {EX}, v{XB+jj}")
    T.append("s_waitcnt lgkmcnt(8)")
    T.append("v_add_f32 v8, v8, v10"); T.append("v_add_f32 v9, v9, v11")
    T.append("v_mul_f32 v8, 0x3b800000, v8"); T.append("v_mul_f32 v9, 0x3b800000, v9")
    T.append("v_fma_f32 v9, -v8, v8, v9"); T.append("v_max_f32 v9, 0, v9"); T.append("v_add_f32 v9, 0x3727c5ac, v9")
    T.append("v_rsq_f32 v10, v9"); T.append("s_nop 0")
    T.append("v_mul_f32 v12, v8, v10"); T.append("v_sub_f32 v12, 0, v12")
    T.append("s_lshl_b32 s32, s35, 15"); T.append("s_add_u32 s56, s32, 16384")
    T.append("s_waitcnt lgkmcnt(0)")
    ust = [f"buffer_store_dwordx4 {vr(ACC[1]+(half*4+k)*4,4)}, v{DS+k}, s[20:23], {'s56' if half else 's32'} offen offset:{k*1024}{ST}" for half in range(2) for k in range(4)]
    for a in range(4):
        for k in range(8):
            r = g0 + 16*a + 2*k
            T.append(f"v_pk_fma_f32 v[{r}:{r+1}], v[{r}:{r+1}], v[10:11], v[12:13] op_sel_hi:[1,0,0]")
        T.append(ust.pop(0))
        pack_swap(T, g0+16*a, 16+8*a)
        for s in range(2):
            T.append(f"ds_write_b128 v{XB+2*a+s}, {vr(16+8*a+4*s,4)}")
        T.append(ust.pop(0))
    stamp(T, 6)
    T.append("s_waitcnt lgkmcnt(0)"); T.append("s_barrier")
    for half in range(2):
        for k in range(4):
            T.append(f"ds_read_b128 {vr(ACC[0]+(half*4+k)*4,4)}, v15 offset:{half*SLOT + k*1024}")
    for half in range(2):
        for k in range(4):
            T.append(f"s_waitcnt lgkmcnt({7 - (half*4+k)})")
            T.append(f"buffer_store_dwordx4 {vr(ACC[0]+(half*4+k)*4,4)}, v{DS+k}, s[24:27], {'s56' if half else 's32'} offen offset:{k*1024}{ST}")
    stamp(T, 7)
    finish(T, "K1_UG")

    def wf_store(T, acc, which, slice_sreg):
        T.append(f"s_lshl_b32 s33, {slice_sreg}, 2"); T.append("s_lshl_b32 s34, s29, 1"); T.append("s_add_u32 s33, s33, s34"); T.append("s_lshl_b32 s33, s33, 14")
        T.append("s_lshl_b32 s34, s30, 10"); T.append("s_add_u32 s33, s33, s34")
        if which == 2: T.append("s_add_u32 s33, s33, 8192")
        T.append("v_lshrrev_b32 v232, 4, v242"); T.append("v_lshlrev_b32 v232, 14, v232")
        T.append("v_and_b32 v233, 15, v242"); T.append("v_lshl_add_u32 v233, v241, 4, v233")
        T.append("v_lshl_add_u32 v232, v233, 4, v232"); T.append("v_add_u32 v232, s33, v232")
        for a in range(4):
            d = 244; src = acc + 16*a
            if which == 1:
                for k, r in enumerate((0, 2, 8, 10, 4, 6, 12, 14)):
                    T.append(f"v_cvt_pk_bf16_f32 v{d+k}, v{src+r}, v{src+r+1}")
            else:
                pack_swap(T, src, d)
            T.append(f"s_mov_b32 s33, {a*2048}")
            for s in range(2):
                T.append(f"buffer_store_dwordx4 {vr(d+4*s,4)}, v232, s[24:27], s33 offen offset:{s*512}{ST}")
            T.append("s_nop 1")
    W = Waiter(); T = []
    dma_voff(T, False)
    T.append("s_sub_u32 s35, s2, 250")
    T += cap(lambda e: (srd(e, 16, 's52', 's53', 0, 262144), srd(e, 8, 's44', 's45', 0, 131072), srd(e, 12, 's42', 's43', 0, 131072),
                        srd(e, 24, 's54', 's55', WF_OFF, 262144)))
    narrow(T, W, 0, 's35')
    for n in range(3): emit_tile(T, W, n, 8, n*SLOT)
    ka_setup(T)
    narrow_read(T, W)
    for n in range(3, 8): emit_tile(T, W, n, 8, n*SLOT)
    if FF: T.append("buffer_load_dword v243, off, s[4:7], 0 sc1"); W.issue('vm', 'TAG')
    later = std_later(12)
    T += phase(W, 0, 'X', later).linearize()
    T.append("s_barrier")
    exchange(T, W, ACC[0], 'X')
    T += phase(W, 1, 'X', later).linearize()
    T.append("s_nop 15")
    wf_store(T, ACC[1], 1, 's35')
    finish(T, "K1_W1")

    W = Waiter(); T = []
    if not FUSED: T += cap(lambda e: srd(e, 20, 's54', 's55', FL_OFF, 8192))
    if not FUSED:
        T.append("v_lshlrev_b32 v232, 5, v0")
        for k in range(4): T.append(f"v_mov_b32 v{236+k}, 0")
        T.append("buffer_store_dwordx4 v[236:239], v232, s[20:23], 0 offen sc1")
        T.append("buffer_store_dwordx4 v[236:239], v232, s[20:23], 0 offen offset:16 sc1")
        W.issue('vm', 'Z0'); W.issue('vm', 'Z1')
    dma_voff(T, False)
    T.append("s_sub_u32 s35, s2, 254"); T.append("s_lshl_b32 s35, s35, 1")
    T += cap(lambda e: (srd(e, 16, 's52', 's53', 0, 262144), srd(e, 8, 's50', 's51', 0, 131072),
                        srd(e, 24, 's54', 's55', WF_OFF, 262144)))
    narrow(T, W, 131072, 's35')
    for n in range(3): emit_tile(T, W, n, 8, n*SLOT)
    ka_setup(T)
    narrow_read(T, W)
    for n in range(3, 8): emit_tile(T, W, n, 8, n*SLOT)
    if FF: T.append("buffer_load_dword v243, off, s[4:7], 0 sc1"); W.issue('vm', 'TAG')
    T.append("s_barrier")
    T.append("s_add_u32 s56, s35, 1")
    narrow(T, W, 131072, 's56')
    later = std_later(8)
    T += phase(W, 0, 'X', later).linearize()
    T.append("s_nop 15")
    wf_store(T, ACC[0], 2, 's35')
    for i in range(8): W.issue('vm', ('WS', i))
    narrow_read(T, W)
    T += phase(W, 1, 'X', later).linearize()
    T.append("s_nop 15")
    wf_store(T, ACC[1], 2, 's56')
    finish(T, "K1_W2")

    e("K1_FIN:")
    if FUSED:
        if o['stamp']:
            e("s_waitcnt vmcnt(0)"); e("s_memtime s[64:65]"); e("s_memrealtime s[66:67]"); e("s_waitcnt lgkmcnt(0)")
            e("s_cmp_eq_u32 s28, 0"); e("s_cbranch_scc0 K1_NOST")
            e("s_add_u32 s68, s54, 0x8100000"); e("s_addc_u32 s69, s55, 0"); e("s_mov_b32 s70, 0x100000"); e("s_mov_b32 s71, 0x20000")
            for k, r in enumerate([60, 64, 62, 66]): e(f"v_mov_b32 v{232+k}, s{r}")
            e("s_lshl_b32 s33, s2, 4"); e("v_mov_b32 v236, s33")
            e("buffer_store_dwordx4 v[232:235], v236, s[68:71], 0 offen")
            for k in range(8): e(f"v_mov_b32 v{244+k}, s{72+2*k}")
            e("s_lshl_b32 s33, s2, 5"); e("s_add_u32 s33, s33, 0x10000"); e("v_mov_b32 v236, s33")
            e("buffer_store_dwordx4 v[244:247], v236, s[68:71], 0 offen")
            e("buffer_store_dwordx4 v[248:251], v236, s[68:71], 0 offen offset:16")
            e("K1_NOST:")
        if FF:
            e("s_lshl_b32 s33, s2, 7")
            fa, fb_ = (FLU, FLQ) if o.get('ugfirst', True) else (FLQ, FLU)
            e(f"s_add_u32 s67, s33, {fa}")
            e(f"s_add_u32 s56, s33, {fb_ - 125*128}"); e("s_cmp_ge_u32 s2, 125"); e("s_cselect_b32 s67, s56, s67")
            e(f"s_add_u32 s56, s33, {FLW - 250*128}"); e("s_cmp_ge_u32 s2, 250"); e("s_cselect_b32 s67, s56, s67")
            for k in range(4): e(f"s_mov_b32 s{92+k}, s{4+k}")
            for x in ["s_mov_b32 s4, s54", "s_mov_b32 s5, s55", "s_mov_b32 s32, s48", "s_mov_b32 s33, s49", "s_mov_b32 s40, s100", "s_mov_b32 s41, s101", "s_mov_b32 s48, s28", "s_mov_b32 s101, 0"]: e(x)
            return L, [], []
        e("K1_TAGP:")
        e("buffer_load_dword v232, off, s[4:7], 0 sc1")
        e("s_waitcnt vmcnt(0) lgkmcnt(0)")
        e("v_readfirstlane_b32 s3, v232")
        e("s_nop 3")
        e("s_cmp_lg_u32 s3, 0"); e("s_cbranch_scc1 K1_TAGD"); e("s_sleep 1")
        e("s_add_u32 s101, s101, 1"); e("s_cmp_lt_u32 s101, 0x400000"); e("s_cbranch_scc1 K1_TAGP")
        e("K1_TAGD:")
        e("s_barrier")
        e("s_cmp_eq_u32 s28, 0"); e("s_cbranch_scc0 K1_NOFL")
        e("s_lshl_b32 s33, s2, 7")
        fa, fb_ = (FLU, FLQ) if o.get('ugfirst', True) else (FLQ, FLU)
        if CT:
            e(f"s_add_u32 s34, s33, {FLU}")
        else:
            e(f"s_add_u32 s34, s33, {fa}")
            e(f"s_add_u32 s56, s33, {fb_ - 125*128}"); e("s_cmp_ge_u32 s2, 125"); e("s_cselect_b32 s34, s56, s34")
        e(f"s_add_u32 s56, s33, {FLW - 250*128}"); e("s_cmp_ge_u32 s2, 250"); e("s_cselect_b32 s34, s56, s34")
        srd(e, 8, 's54', 's55', FL_OFF, FL_SIZE)
        e("v_mov_b32 v232, s3")
        e("v_cmp_eq_u32 vcc, 0, v240"); e("s_and_saveexec_b64 s[56:57], vcc")
        e("buffer_store_dword v232, off, s[8:11], s34 sc1")
        if CT:
            e(f"s_add_u32 s34, s33, {FLQ}"); e("s_cmp_lt_u32 s2, 250"); e("s_cbranch_scc0 K1_NOFL2")
            e("buffer_store_dword v232, off, s[8:11], s34 sc1")
            e("K1_NOFL2:")
        e("s_mov_b64 exec, s[56:57]")
        e("K1_NOFL:")
        e("s_mov_b32 s48, s28")
        return L, [], []
    if o['stamp']:
        e("s_waitcnt vmcnt(0)")
        e("s_memtime s[64:65]"); e("s_memrealtime s[66:67]")
        e("s_waitcnt lgkmcnt(0)")
        e("s_cmp_eq_u32 s28, 0"); e("s_cbranch_scc0 K1_END")
        e("s_add_u32 s68, s54, 0x8100000"); e("s_addc_u32 s69, s55, 0"); e("s_mov_b32 s70, 0x100000"); e("s_mov_b32 s71, 0x20000")
        for k, r in enumerate([60, 64, 62, 66]): e(f"v_mov_b32 v{232+k}, s{r}")
        e("s_lshl_b32 s33, s2, 4"); e("v_mov_b32 v236, s33")
        e("buffer_store_dwordx4 v[232:235], v236, s[68:71], 0 offen")
        for k in range(8): e(f"v_mov_b32 v{244+k}, s{72+2*k}")
        e("s_lshl_b32 s33, s2, 5"); e("s_add_u32 s33, s33, 0x10000"); e("v_mov_b32 v236, s33")
        e("buffer_store_dwordx4 v[244:247], v236, s[68:71], 0 offen")
        e("buffer_store_dwordx4 v[248:251], v236, s[68:71], 0 offen offset:16")
    e("K1_END:")
    e("s_endpgm")
    return L, kernel_desc(name, 288, 256), []
```

```python
from gen_common import *
from tl import TL
import hazard, struct
SLOT = 16384
EX = 131072
fb = lambda x: hex(struct.unpack('<I', struct.pack('<f', x))[0])

def gen_k1(opt=None):
    o = dict(D=6, stamp=False, st='', npre=2, nln=4)
    if opt: o.update(opt)
    D = o['D']; ST = (' ' + o['st']) if o['st'] else ''
    FUSED = o.get('fused')
    name = FUSED if FUSED else 'prep_kernel'
    L = []; e = L.append
    B = 0; ACC = [64, 128]; KA = 192; KA2 = 200; VN = 208; VN2 = 216; DV = 224; DS = 228; XB = 200
    aR = 0; R = 8
    def stamp(T, k):
        if o['stamp']: T.append(f"s_memrealtime s[{72+2*k}:{73+2*k}]")
    L += kernel_header(name)
    e("s_cmp_ge_u32 s2, 256")
    e("s_cbranch_scc1 K2_END" if FUSED else "s_cbranch_scc1 K1_END")
    e("s_load_dwordx16 s[36:51], s[0:1], 0")
    e("s_load_dwordx2 s[52:53], s[0:1], 64")
    e("s_load_dwordx2 s[54:55], s[0:1], 88")
    FF = FUSED and o.get('fastfin', True) and not o.get('ct')
    if FUSED: e("s_load_dwordx2 s[58:59], s[0:1], 80")
    if FF: e("s_load_dwordx2 s[100:101], s[0:1], 72")
    if FUSED and not FF: e("s_mov_b32 s101, 0")
    if o['stamp']:
        e("s_memtime s[60:61]"); e("s_memrealtime s[62:63]")
    e("v_lshrrev_b32 v232, 6, v0")
    e("v_and_b32 v240, 63, v0")
    e("v_lshrrev_b32 v241, 5, v240")
    e("v_and_b32 v242, 31, v240")
    e("v_readfirstlane_b32 s28, v232")
    e("s_and_b32 s29, s28, 1")
    e("s_lshr_b32 s30, s28, 1")
    e("s_lshl_b32 s31, s28, 12")
    CT = o.get('ct')
    if CT: e("s_mov_b32 s35, s2")
    else: e("s_sub_u32 s35, s2, 125"); e("s_cmp_lt_u32 s2, 125"); e("s_cselect_b32 s35, s2, s35")
    e("s_lshl_b32 s33, s28, 1")
    for k in range(4):
        e(f"v_add_u32 v234, {2*k}, v241"); e("v_and_b32 v234, 3, v234"); e("v_lshlrev_b32 v234, 2, v234")
        e(f"s_add_u32 s34, s33, {k>>1}"); e("s_and_b32 s34, s34, 3")
        e("v_or_b32 v234, s34, v234"); e("v_xor_b32 v234, v242, v234"); e("v_lshlrev_b32 v234, 4, v234")
        e("v_lshl_add_u32 v234, v241, 9, v234")
        e(f"v_add_u32 v{DS+k}, s31, v234")
    e("s_waitcnt lgkmcnt(0)")
    if FUSED:
        e("s_mov_b32 s4, s58"); e("s_mov_b32 s5, s59"); e("s_mov_b32 s6, 256"); e("s_mov_b32 s7, 0x20000")
        e("s_or_b32 s33, s2, s28"); e("s_cmp_eq_u32 s33, 0"); e("s_cbranch_scc0 K1_NOTAG")
        e("s_memrealtime s[56:57]"); e("s_waitcnt lgkmcnt(0)"); e("s_or_b32 s56, s56, 1")
        e("v_mov_b32 v234, s56")
        e("buffer_store_dword v234, off, s[4:7], 0 sc1")
        e("K1_NOTAG:")
    e("s_cmp_lt_u32 s2, 250"); e("s_cbranch_scc0 K1_NOX")
    srd(e, 16, 's36', 's37', 0, 8000*512)
    e("s_lshl_b32 s32, s35, 14" if CT else "s_lshl_b32 s32, s35, 15")
    for half in range(1 if CT else 2):
        e(f"s_add_u32 m0, s31, {EX + half*SLOT:#x}")
        if half: e("s_add_u32 s32, s32, 16384")
        else: e("s_nop 0")
        for k in range(4):
            e(f"buffer_load_dwordx4 v{DS+k}, s[16:19], s32 offen offset:{k*1024} lds")
    if FUSED and o.get('ipf', True):
        e("s_getpc_b64 s[56:57]")
        e("K1_PCREF:")
        e(f"s_add_u32 s56, s56, {o.get('ipfbase', 'K1_NOX')}-K1_PCREF"); e("s_addc_u32 s57, s57, 0")
        e("s_lshr_b32 s33, s2, 3"); e("s_lshl_b32 s33, s33, 2"); e("s_add_u32 s33, s33, s28"); e("s_lshl_b32 s33, s33, 10")
        e(f"s_cmp_lt_u32 s33, {o.get('ipfbytes', 61440)}"); e("s_cbranch_scc0 K1_NOIPF")
        e("v_lshlrev_b32 v232, 4, v240"); e("v_add_u32 v232, s33, v232")
        e("global_load_dwordx4 v[252:255], v232, s[56:57]")
        e("K1_NOIPF:")
    if o.get('wpf', False):
        e("s_lshr_b32 s33, s2, 3"); e("s_lshl_b32 s33, s33, 2"); e("s_add_u32 s33, s33, s28")
        e("v_lshlrev_b32 v232, 4, v240")
        e("s_mov_b32 s8, s40"); e("s_mov_b32 s9, s41"); e("s_mov_b32 s10, 131072"); e("s_mov_b32 s11, 0x20000")
        e("s_lshl_b32 s34, s33, 10")
        e("buffer_load_dwordx4 v[100:103], v232, s[8:11], s34 offen")
        e("s_mov_b32 s8, s46"); e("s_mov_b32 s9, s47"); e("s_mov_b32 s10, 262144")
        e("s_lshl_b32 s34, s33, 11")
        e("buffer_load_dwordx4 v[104:107], v232, s[8:11], s34 offen")
        e("buffer_load_dwordx4 v[108:111], v232, s[8:11], s34 offen offset:1024")
    if FUSED and o.get('tlb', False):
        e("s_load_dwordx2 s[56:57], s[0:1], 72"); e("s_waitcnt lgkmcnt(0)")
        e("s_cmp_eq_u32 s28, 1"); e("s_cbranch_scc0 K1_NOTLB")
        srd(e, 8, 's54', 's55', OP_OFF, 64*16*16384)
        e("v_lshlrev_b32 v232, 21, v240")
        e("buffer_load_dword v112, v232, s[8:11], 0 offen")
        e("s_mov_b32 s8, s56"); e("s_mov_b32 s9, s57"); e("s_mov_b32 s10, 4096000")
        e("buffer_load_dword v113, v232, s[8:11], 0 offen")
        e("K1_NOTLB:")
    if o.get('pf', True):
        e("s_and_b32 s33, s2, 7"); e("s_cmp_lt_u32 s33, 2"); e("s_cbranch_scc1 K1_NOPF")
        e("s_lshr_b32 s34, s2, 3")
        e("s_cmp_ge_u32 s33, 6"); e("s_cbranch_scc1 K1_PF2")
        e("s_cmp_lt_u32 s34, 16"); e("s_cselect_b32 s8, s44, s42"); e("s_cselect_b32 s9, s45, s43")
        e("s_and_b32 s34, s34, 15"); e("s_lshl_b32 s34, s34, 13")
        e("s_branch K1_PF3")
        e("K1_PF2:")
        e("s_add_u32 s56, s52, 131072"); e("s_addc_u32 s57, s53, 0")
        e("s_cmp_lt_u32 s34, 16"); e("s_cselect_b32 s8, s50, s56"); e("s_cselect_b32 s9, s51, s57")
        e("s_and_b32 s34, s34, 15"); e("s_lshl_b32 s34, s34, 13")
        e("K1_PF3:")
        e("s_mov_b32 s10, 131072"); e("s_mov_b32 s11, 0x20000")
        e("v_lshlrev_b32 v232, 4, v240"); e("s_lshl_b32 s33, s28, 11"); e("s_add_u32 s34, s34, s33")
        e("buffer_load_dwordx4 v[244:247], v232, s[8:11], s34 offen")
        e("buffer_load_dwordx4 v[248:251], v232, s[8:11], s34 offen offset:1024")
        e("K1_NOPF:")
    e("K1_NOX:")
    first, second = ("K1_UG", "K1_Q") if o.get('ugfirst', True) else ("K1_Q", "K1_UG")
    if CT:
        e("s_cmp_lt_u32 s2, 250"); e("s_cbranch_scc1 K1_CT")
    else:
        e("s_cmp_lt_u32 s2, 125"); e(f"s_cbranch_scc1 {first}")
        e("s_cmp_lt_u32 s2, 250"); e(f"s_cbranch_scc1 {second}")
    e("s_cmp_lt_u32 s2, 254"); e("s_cbranch_scc1 K1_W1")
    e("s_branch K1_W2")

    def k_addr(T, dst, dst2, base_lines):
        t = T.append
        t("v_and_b32 v234, 3, v242"); t("v_lshlrev_b32 v234, 2, v234"); t("v_bfe_u32 v235, v242, 2, 2")
        t("v_or_b32 v234, v234, v235"); t("v_lshlrev_b32 v236, 9, v242")
        for x in base_lines: t(x)
        t("v_add_u32 v236, s33, v236")
        for jj in range(8):
            t(f"v_add_u32 v235, {2*jj}, v241"); t("v_xor_b32 v235, v235, v234")
            t(f"v_lshl_add_u32 v{dst+jj}, v235, 4, v236")
            if dst2 is not None: t(f"v_add_u32 v{dst2+jj}, 0x10000, v{dst+jj}")
    def ka_setup(T): k_addr(T, KA, KA2, ["s_lshl_b32 s33, s30, 14"])
    def xb_setup(T): k_addr(T, XB, None, ["s_lshl_b32 s33, s29, 14", f"s_add_u32 s33, s33, {EX}", "s_lshl_b32 s34, s30, 8", "s_add_u32 s33, s33, s34"])
    def vn_setup(T):
        t = T.append
        t("v_bfe_u32 v234, v240, 4, 1"); t("v_bfe_u32 v235, v240, 2, 2"); t("v_bfe_u32 v236, v240, 1, 1")
        t("v_lshl_add_u32 v236, v234, 1, v236"); t("v_and_b32 v237, 1, v240"); t("v_lshlrev_b32 v237, 3, v237")
        t("v_lshl_add_u32 v238, v241, 3, v235"); t("v_lshl_add_u32 v237, v238, 9, v237")
        t("s_lshl_b32 s33, s30, 8"); t("v_add_u32 v237, s33, v237")
        for a in range(4):
            for u in range(2):
                t(f"v_lshl_add_u32 v238, v241, 1, {u}"); t("v_lshl_or_b32 v238, v235, 2, v238")
                t(f"v_add_u32 v239, {4*a}, v236"); t("v_xor_b32 v238, v238, v239")
                t(f"v_lshl_add_u32 v{VN+a*2+u}, v238, 4, v237")
                if u: t(f"v_add_u32 v{VN+a*2+u}, {4*512}, v{VN+a*2+u}")
                t(f"v_add_u32 v{VN2+a*2+u}, 0x10000, v{VN+a*2+u}")
    def dma_voff(T, stride1024):
        t = T.append
        if not stride1024:
            for k in range(4): t(f"v_mov_b32 v{DV+k}, v{DS+k}")
            return
        t("s_lshl_b32 s33, s28, 1")
        for k in range(4):
            t(f"v_add_u32 v234, {2*k}, v241"); t("v_and_b32 v234, 3, v234"); t("v_lshlrev_b32 v234, 2, v234")
            t(f"s_add_u32 s34, s33, {k>>1}"); t("s_and_b32 s34, s34, 3")
            t("v_or_b32 v234, s34, v234"); t("v_xor_b32 v234, v242, v234"); t("v_lshlrev_b32 v234, 4, v234")
            t("v_lshl_add_u32 v234, v241, 10, v234"); t("s_lshl_b32 s34, s28, 13"); t(f"s_add_u32 s34, s34, {k*1024}")
            t(f"v_add_u32 v{DV+k}, s34, v234")
    def tile_dma(n, srdn, soff):
        if o.get('nodma'): return []
        r = [(f"s_add_u32 m0, s31, {(n%8)*SLOT:#x}", False), (f"s_mov_b32 s32, {soff:#x}", False)]
        for k in range(4):
            r.append((f"buffer_load_dwordx4 v{DV+k}, s[{srdn}:{srdn+3}], s32 offen offset:{k*1024} lds", True))
        return r
    def emit_tile(out, W, n, srdn, soff):
        for txt, vm in tile_dma(n, srdn, soff):
            out.append(txt)
            if vm: W.issue('vm', ('T', n))
    def out_rows(T, W, srdn, tag, OB):
        t = T.append
        t("v_lshlrev_b32 v232, 4, v240"); t(f"s_add_u32 s33, s31, {EX}"); t("v_add_u32 v232, s33, v232")
        for half in range(2):
            for k in range(4):
                t(f"ds_read_b128 {vr(OB+(half*4+k)*4,4)}, v232 offset:{half*SLOT + k*1024}")
        t("s_lshl_b32 s32, s35, 15")
        for half in range(2):
            if half: t("s_add_u32 s32, s32, 16384")
            for k in range(4):
                t(f"s_waitcnt lgkmcnt({7 - (half*4+k)})")
                t(f"buffer_store_dwordx4 {vr(OB+(half*4+k)*4,4)}, v{DS+k}, s[{srdn}:{srdn+3}], s32 offen offset:{k*1024}{ST}")
                W.issue('vm', (tag, half, k))
        W.drain('lgkm')
    def ln(out, W, tiles):
        nw = W.need('vm', [('X', 7)])
        out.append(f"s_waitcnt vmcnt({nw})")
        out.append("s_barrier")
        stamp(out, 0)
        for s in range(8):
            out.append(f"ds_read_b128 {vr(64+4*s,4)}, v{XB+s}")
        body = []; b = body.append
        b("s_mov_b32 s34, 0x3f803f80")
        for k in range(4): b(f"v_mov_b32 v{232+k}, 0")
        for r in range(32):
            if r % 4 == 0: b(f"s_waitcnt lgkmcnt({7 - r//4})")
            b(f"v_dot2_f32_bf16 v{232+(r&1)}, v{64+r}, s34, v{232+(r&1)}")
            b(f"v_dot2_f32_bf16 v{234+(r&1)}, v{64+r}, v{64+r}, v{234+(r&1)}")
        b("s_nop 2")
        b("v_add_f32 v232, v232, v233"); b("v_add_f32 v234, v234, v235")
        b("v_mov_b32 v233, v232"); b("v_mov_b32 v235, v234"); b("s_nop 1")
        b("v_permlane32_swap_b32 v232, v233"); b("v_permlane32_swap_b32 v234, v235"); b("s_nop 1")
        b("v_add_f32 v232, v232, v233"); b("v_add_f32 v233, v234, v235")
        b(f"ds_write_b64 v{XB}, v[232:233]")
        b(f"v_xor_b32 v238, 256, v{XB}")
        b("s_waitcnt lgkmcnt(0)")
        b("s_barrier")
        b("ds_read_b64 v[234:235], v238")
        b("s_waitcnt lgkmcnt(0)")
        b("v_add_f32 v232, v232, v234"); b("v_add_f32 v234, v233, v235")
        b("v_mul_f32 v232, 0x3b800000, v232"); b("v_mul_f32 v234, 0x3b800000, v234")
        b("v_fma_f32 v234, -v232, v232, v234"); b("v_max_f32 v234, 0, v234"); b("v_add_f32 v234, 0x3727c5ac, v234")
        b("v_rsq_f32 v234, v234"); b("s_nop 0")
        b("v_mul_f32 v236, v232, v234"); b("v_sub_f32 v236, 0, v236")
        b("s_barrier")
        for r in range(32):
            t = 244 + 2*(r % 4)
            b(f"v_lshlrev_b32 v{t}, 16, v{64+r}")
            b(f"v_and_b32 v{t+1}, 0xffff0000, v{64+r}")
            b(f"v_pk_fma_f32 v[{t}:{t+1}], v[{t}:{t+1}], v[234:235], v[236:237] op_sel_hi:[1,0,0]")
            b(f"v_cvt_pk_bf16_f32 v{64+r}, v{t}, v{t+1}")
            if r % 4 == 3: b(f"ds_write_b128 v{XB+r//4}, {vr(64+r-3,4)}")
        b("s_waitcnt lgkmcnt(0)")
        b("s_barrier")
        b("s_lshl_b32 s33, s30, 8")
        for jj in range(8): b(f"v_subrev_u32 v{244+jj}, s33, v{XB+jj}")
        for s in range(16):
            b(f"ds_read_b128 {vr(B+4*s,4)}, v{244+(s&7)} offset:{(s>>3)*256}")
        flat = []
        for (n, sn, so) in tiles:
            tl_ = [(txt, vm, n) for txt, vm in tile_dma(n, sn, so)]
            flat.append(tl_[:3])
            for x in tl_[3:]: flat.append([x])
        gap = max(1, len(body) // (len(flat) + 1)) if flat else 1
        fi = 0
        for i, ins in enumerate(body):
            out.append(ins)
            if fi < len(flat) and i % gap == gap - 1:
                for txt, vm, n in flat[fi]:
                    out.append(txt)
                    if vm: W.issue('vm', ('T', n))
                fi += 1
        while fi < len(flat):
            for txt, vm, n in flat[fi]:
                out.append(txt)
                if vm: W.issue('vm', ('T', n))
            fi += 1
        out.append("s_waitcnt lgkmcnt(0)")
        W.drain('lgkm')
    def phase(W, p, kind, later, fill=None, f0=3):
        tl = TL(W)
        acc = ACC[p]
        cnt = [0]
        for a in range(4):
            sig = 4*p + a
            tb = 16*a - D - 1
            tl.add(tb, 'bar', needvm=[('T', 2*sig), ('T', 2*sig+1)], prio=1)
            k = 0
            for (n, sn, so) in later.get(sig, []):
                for txt, vm in tile_dma(n, sn, so):
                    sp = o.get('dsp', 2)
                    if vm:
                        tl.add(tb + 1 + sp*k, 'vm', txt, tag=('T', n), prio=7); k += 1
                    else:
                        tl.add(tb + 1 + sp*k, 'txt', txt, prio=6)
            for m in range(16):
                tm = 16*a + m
                ri = cnt[0] % R; cnt[0] += 1
                ring = aR + 4*ri
                if kind == 'X':
                    j = m; slot = 2*a
                    base = (KA if slot < 4 else KA2) + (j & 7)
                    off = (slot % 4)*SLOT + (j >> 3)*256
                    tag = (p, a, m)
                    tl.add(tm - D, 'lds', f"ds_read_b128 {ar(ring,4)}, v{base} offset:{off}", tag=tag, prio=2)
                    c = vr(acc+16*a,16) if j else '0'
                    tl.add(tm, 'mfma', f"v_mfma_f32_32x32x16_bf16 {vr(acc+16*a,16)}, {ar(ring,4)}, {vr(B+4*j,4)}, {c}", need=[tag], prio=0)
                else:
                    tt, s, aa = m >> 3, (m >> 2) & 1, m & 3
                    tau = 2*a + tt; slot = tau
                    tags = []
                    for u in range(2):
                        base = (VN if slot < 4 else VN2) + aa*2 + u
                        off = (slot % 4)*SLOT + 16*s*512
                        tag = (p, a, m, u); tags.append(tag)
                        tl.add(tm - D, 'lds', f"ds_read_b64_tr_b16 {ar(ring+2*u,2)}, v{base} offset:{off}", tag=tag, prio=2)
                    c = vr(acc+16*aa,16) if (tau or s) else '0'
                    tl.add(tm, 'mfma', f"v_mfma_f32_32x32x16_bf16 {vr(acc+16*aa,16)}, {ar(ring,4)}, {vr(B+4*(2*tau+s),4)}, {c}", need=tags, prio=0)
        if fill:
            n = len(fill)
            for i, ins in enumerate(fill):
                tl.add(f0 + (i*(64-f0))/n, 'txt', ins, prio=4)
        return tl
    def pack_swap(out, src, dst, swap=True, scale=None):
        if scale:
            for k in range(8):
                out.append(f"v_pk_mul_f32 v[{src+2*k}:{src+2*k+1}], v[{src+2*k}:{src+2*k+1}], {scale} op_sel_hi:[1,0]")
        for k in range(8):
            out.append(f"v_cvt_pk_bf16_f32 v{dst+k}, v{src+2*k}, v{src+2*k+1}")
        if swap:
            out.append("s_nop 1")
            for b in (0, 4):
                out.append(f"v_permlane32_swap_b32 v{dst+b}, v{dst+b+2}")
                out.append(f"v_permlane32_swap_b32 v{dst+b+1}, v{dst+b+3}")
    def exchange(out, W, acc, kind, xaflag=False):
        out.append("s_nop 15")
        out.append("v_lshlrev_b32 v232, 4, v240")
        out.append(f"s_lshl_b32 s33, s29, 14"); out.append(f"s_add_u32 s33, s33, {EX}")
        out.append("v_add_u32 v233, s33, v232")
        out.append(f"s_lshl_b32 s34, s30, {13 if kind=='Y' else 11}")
        out.append("v_add_u32 v232, s34, v233")
        for a in range(4):
            d = 244 if a % 2 == 0 else 0
            pack_swap(out, acc+16*a, d)
            for s in range(2):
                f = (2*a + s) if kind == 'Y' else (4*a + s)
                out.append(f"ds_write_b128 v232, {vr(d+4*s,4)} offset:{f*1024}")
        if xaflag:
            n = W.need('vm', [x for x in W.q['vm'] if isinstance(x, tuple) and x[0] == 'XS'] + ['TAG'])
            if n is not None: out.append(f"s_waitcnt vmcnt({n})")
        out.append("s_waitcnt lgkmcnt(0)")
        out.append("s_barrier")
        if xaflag:
            out.append("v_readfirstlane_b32 s3, v243"); out.append("s_or_b32 s33, s28, 0");
            out.append("s_cmp_eq_u32 s28, 0"); out.append("s_cbranch_scc0 K1_Q_NOXF")
            out.append("s_cmp_lg_u32 s3, 0"); out.append("s_cbranch_scc0 K1_Q_NOXF")
            out += cap(lambda e: srd(e, 16, 's54', 's55', FL_OFF, FL_SIZE))
            out.append("s_lshl_b32 s33, s35, 7"); out.append(f"s_add_u32 s33, s33, {FLQ + 4}")
            out.append("v_mov_b32 v238, s3"); out.append("v_cmp_eq_u32 vcc, 0, v240"); out.append("s_and_saveexec_b64 s[56:57], vcc")
            out.append("buffer_store_dword v238, off, s[16:19], s33 sc1")
            out.append("s_mov_b64 exec, s[56:57]")
            out.append("K1_Q_NOXF:")
        for f in range(16):
            out.append(f"ds_read_b128 {vr(B+4*f,4)}, v233 offset:{f*1024}")
        out.append("s_waitcnt lgkmcnt(0)")
        W.drain('lgkm')
    def narrow(out, W, rowbase_bytes, slice_sreg):
        for x in ["v_lshrrev_b32 v232, 3, v240", "v_lshlrev_b32 v232, 9, v232", "v_and_b32 v233, 7, v240",
                  "v_lshl_add_u32 v232, v233, 4, v232", f"s_lshl_b32 s33, {slice_sreg}, 7", "s_lshl_b32 s34, s28, 15",
                  "s_add_u32 s33, s33, s34", f"s_add_u32 s33, s33, {rowbase_bytes}", "v_add_u32 v232, s33, v232",
                  "s_lshl_b32 s34, s28, 13", f"s_add_u32 s34, s34, {EX}"]: out.append(x)
        for i in range(8):
            out.append(f"s_add_u32 m0, s34, {i*1024}")
            out.append(f"s_mov_b32 s32, {i*4096}")
            out.append(f"buffer_load_dwordx4 v232, s[16:19], s32 offen lds")
            W.issue('vm', ('N', i))
    def narrow_read(out, W):
        n = W.need('vm', [('N', 7)])
        out.append(f"s_waitcnt vmcnt({n})")
        out.append("s_barrier")
        for x in ["v_bfe_u32 v232, v240, 2, 2", "v_lshl_add_u32 v232, v241, 3, v232", "v_lshlrev_b32 v232, 7, v232",
                  "v_bfe_u32 v233, v240, 4, 1", "v_lshl_add_u32 v232, v233, 5, v232", "v_and_b32 v233, 3, v240",
                  "v_lshl_add_u32 v232, v233, 3, v232", "s_lshl_b32 s33, s29, 6", f"s_add_u32 s33, s33, {EX}",
                  "v_add_u32 v232, s33, v232"]: out.append(x)
        for s in range(16):
            for u in range(2):
                out.append(f"ds_read_b64_tr_b16 {vr(B+4*s+2*u,2)}, v232 offset:{s*2048+u*512}")
            if s % 4 == 3: out.append("s_waitcnt lgkmcnt(0)")
        W.drain('lgkm')
    def finish(task_lines, label):
        if CT and label in ("K1_Q", "K1_UG"): return
        fixed = hazard.autofix(task_lines)
        e(f"{label}:")
        L.extend(fixed)
        e("s_branch K1_FIN")
    def cap(fn):
        buf = []; fn(buf.append); return buf
    std_later = lambda sn: {2: [(8, sn, 0), (9, sn, SLOT)], 3: [(10, sn, 2*SLOT), (11, sn, 3*SLOT)], 4: [(12, sn, 4*SLOT), (13, sn, 5*SLOT)], 5: [(14, sn, 6*SLOT), (15, sn, 7*SLOT)]}
    npre = o['npre']


    if CT:
        EXB = EX + 16384
        Bq = 64
        ACCQ, ACCK, ACCG, ACCU = 64, 96, 128, 160
        VN4 = 208; VN42 = 212; XO = 216; XB8 = 244
        W = Waiter(); T = []; t = T.append
        for s_ in range(4): W.issue('vm', ('X', s_))
        dma_voff(T, True)
        T += cap(lambda e: (srd(e, 8, 's38', 's39', 0, 131072), srd(e, 12, 's40', 's41', 0, 131072), srd(e, 20, 's46', 's47', 0, 262144),
                            srd(e, 24, 's54', 's55', QF_OFF, 500*8192)))
        def tinfo(n):
            if n < 8: return (8, n*SLOT, DS)
            if n < 16: return (12, (n-8)*SLOT, DS)
            if n < 24: return (20, (n-16)*32768 + 512, DV)
            return (20, (n-24)*32768, DV)
        def tdma(n):
            sn, so, dv = tinfo(n)
            r = [(f"s_add_u32 m0, s31, {(n%8)*SLOT:#x}", False), (f"s_mov_b32 s32, {so:#x}", False)]
            for k in range(4): r.append((f"buffer_load_dwordx4 v{dv+k}, s[{sn}:{sn+3}], s32 offen offset:{k*1024} lds", True))
            return r
        def temit(n):
            for txt, vm in tdma(n):
                t(txt)
                if vm: W.issue('vm', ('T', n))
        temit(0); temit(1)
        t("v_and_b32 v234, 3, v242"); t("v_lshlrev_b32 v234, 2, v234"); t("v_bfe_u32 v235, v242, 2, 2"); t("v_or_b32 v234, v234, v235")
        t("v_lshlrev_b32 v236, 9, v242"); t(f"v_add_u32 v237, {EX}, v236")
        t("s_lshl_b32 s33, s30, 8"); t("v_add_u32 v238, s33, v237")
        t("s_lshl_b32 s33, s29, 3")
        for i in range(4):
            t(f"s_add_u32 s34, s33, {2*i}"); t("v_add_u32 v235, s34, v241"); t("v_xor_b32 v235, v235, v234"); t(f"v_lshl_add_u32 v{XO+i}, v235, 4, v238")
        t("s_lshl_b32 s33, s28, 14"); t("v_add_u32 v238, s33, v236")
        for jj in range(8):
            t(f"v_add_u32 v235, {2*jj}, v241"); t("v_xor_b32 v235, v235, v234")
            t(f"v_lshl_add_u32 v{KA+jj}, v235, 4, v238"); t(f"v_add_u32 v{KA2+jj}, 0x10000, v{KA+jj}")
        t("v_bfe_u32 v234, v240, 4, 1"); t("v_bfe_u32 v235, v240, 2, 2"); t("v_bfe_u32 v236, v240, 1, 1")
        t("v_lshl_add_u32 v236, v234, 1, v236"); t("v_and_b32 v237, 1, v240"); t("v_lshlrev_b32 v237, 3, v237")
        t("v_lshl_add_u32 v238, v241, 3, v235"); t("v_lshl_add_u32 v237, v238, 9, v237")
        t("s_lshl_b32 s33, s30, 8"); t("v_add_u32 v237, s33, v237")
        t("s_lshl_b32 s33, s29, 3")
        for aa in range(2):
            for u in range(2):
                t(f"v_lshl_add_u32 v238, v241, 1, {u}"); t("v_lshl_or_b32 v238, v235, 2, v238")
                t(f"s_add_u32 s34, s33, {4*aa}"); t("v_add_u32 v239, s34, v236"); t("v_xor_b32 v238, v238, v239")
                t(f"v_lshl_add_u32 v{VN4+aa*2+u}, v238, 4, v237")
                if u: t(f"v_add_u32 v{VN4+aa*2+u}, {4*512}, v{VN4+aa*2+u}")
                t(f"v_add_u32 v{VN42+aa*2+u}, 0x10000, v{VN4+aa*2+u}")
        nw = W.need('vm', [('X', 3)]); t(f"s_waitcnt vmcnt({nw})"); t("s_barrier")
        stamp(T, 0)
        for i in range(4): t(f"ds_read_b128 {vr(64+4*i,4)}, v{XO+i}")
        T += cap(lambda e: srd(e, 16, 's54', 's55', XA_OFF, 8000*512))
        body = []; b = body.append
        b("s_mov_b32 s34, 0x3f803f80")
        for k in range(4): b(f"v_mov_b32 v{232+k}, 0")
        for r in range(16):
            if r % 4 == 0: b(f"s_waitcnt lgkmcnt({3 - r//4})")
            b(f"v_dot2_f32_bf16 v{232+(r&1)}, v{64+r}, s34, v{232+(r&1)}")
            b(f"v_dot2_f32_bf16 v{234+(r&1)}, v{64+r}, v{64+r}, v{234+(r&1)}")
        b("s_nop 2")
        b("v_add_f32 v232, v232, v233"); b("v_add_f32 v234, v234, v235")
        b("v_mov_b32 v233, v232"); b("v_mov_b32 v235, v234"); b("s_nop 1")
        b("v_permlane32_swap_b32 v232, v233"); b("v_permlane32_swap_b32 v234, v235"); b("s_nop 1")
        b("v_add_f32 v232, v232, v233"); b("v_add_f32 v233, v234, v235")
        b("v_lshlrev_b32 v238, 3, v242"); b(f"v_add_u32 v238, {EXB}, v238")
        b("s_lshl_b32 s33, s28, 8"); b("v_add_u32 v239, s33, v238")
        b("ds_write_b64 v239, v[232:233]")
        b("s_waitcnt lgkmcnt(0)"); b("s_barrier")
        for k in range(4): b(f"ds_read_b64 v[{80+2*k}:{81+2*k}], v238 offset:{256*k}")
        b("s_waitcnt lgkmcnt(0)")
        b("v_add_f32 v80, v80, v82"); b("v_add_f32 v81, v81, v83"); b("v_add_f32 v84, v84, v86"); b("v_add_f32 v85, v85, v87")
        b("v_add_f32 v232, v80, v84"); b("v_add_f32 v234, v81, v85")
        b("v_mul_f32 v232, 0x3b800000, v232"); b("v_mul_f32 v234, 0x3b800000, v234")
        b("v_fma_f32 v234, -v232, v232, v234"); b("v_max_f32 v234, 0, v234"); b("v_add_f32 v234, 0x3727c5ac, v234")
        b("v_rsq_f32 v234, v234"); b("s_nop 0")
        b("v_mul_f32 v236, v232, v234"); b("v_sub_f32 v236, 0, v236")
        for r in range(16):
            tt_ = 244 + 2*(r % 4)
            b(f"v_lshlrev_b32 v{tt_}, 16, v{64+r}"); b(f"v_and_b32 v{tt_+1}, 0xffff0000, v{64+r}")
            b(f"v_pk_fma_f32 v[{tt_}:{tt_+1}], v[{tt_}:{tt_+1}], v[234:235], v[236:237] op_sel_hi:[1,0,0]")
            b(f"v_cvt_pk_bf16_f32 v{64+r}, v{tt_}, v{tt_+1}")
            if r % 4 == 3: b(f"ds_write_b128 v{XO+r//4}, {vr(64+r-3,4)}")
        b("s_lshl_b32 s33, s28, 14"); b(f"s_sub_u32 s33, {EX}, s33")
        for jj in range(8): b(f"v_add_u32 v{XB8+jj}, s33, v{KA+jj}")
        b("s_waitcnt lgkmcnt(0)"); b("s_barrier")
        for s_ in range(16): b(f"ds_read_b128 {vr(B+4*s_,4)}, v{XB8+(s_&7)} offset:{(s_>>3)*256}")
        b("v_lshlrev_b32 v232, 4, v240"); b(f"s_add_u32 s33, s31, {EX}"); b("v_add_u32 v232, s33, v232")
        for k in range(4): b(f"ds_read_b128 {vr(96+4*k,4)}, v232 offset:{k*1024}")
        flat = []
        for n in range(2, 6):
            tl_ = [(txt, vm, n) for txt, vm in tdma(n)]
            flat.append(tl_[:3])
            for x in tl_[3:]: flat.append([x])
        gap = max(1, (len(body) - 24) // (len(flat) + 1)); fi = 0
        for i, ins in enumerate(body):
            t(ins)
            if fi < len(flat) and i % gap == gap - 1:
                for txt, vm, n in flat[fi]:
                    t(txt)
                    if vm: W.issue('vm', ('T', n))
                fi += 1
        while fi < len(flat):
            for txt, vm, n in flat[fi]:
                t(txt)
                if vm: W.issue('vm', ('T', n))
            fi += 1
        t("s_waitcnt lgkmcnt(0)")
        t("s_lshl_b32 s56, s35, 14")
        for k in range(4):
            t(f"buffer_store_dwordx4 {vr(96+4*k,4)}, v{DS+k}, s[16:19], s56 offen offset:{k*1024}{ST}"); W.issue('vm', ('XS', k))
        stamp(T, 1)
        def flag_store(off_lines, lbl):
            t("s_cmp_eq_u32 s28, 0"); t(f"s_cbranch_scc0 {lbl}")
            for x in off_lines: t(x)
            t("v_mov_b32 v232, s3"); t("v_cmp_eq_u32 vcc, 0, v240"); t("s_and_saveexec_b64 s[56:57], vcc")
            t("buffer_store_dword v232, off, s[8:11], s34 sc1")
            t("s_mov_b64 exec, s[56:57]")
            t(f"{lbl}:")
        fillers = {}
        def step(sig, extra_need=None, after_bar=None):
            p, a = sig >> 2, sig & 3
            need = [('T', 2*sig), ('T', 2*sig+1)] + (extra_need or [])
            nv = W.need('vm', need)
            if nv is not None: t(f"s_waitcnt vmcnt({nv})")
            t("s_barrier")
            if after_bar: after_bar()
            dm = []
            for n in (2*(sig+3), 2*(sig+3)+1):
                if n < 32: dm += [(txt, vm, n) for txt, vm in tdma(n)]
            fl = list(fillers.get(sig, []))
            def some(k_dma, k_fill):
                c = 0
                while dm and c < k_dma:
                    txt, vm, n = dm.pop(0); t(txt)
                    if vm: W.issue('vm', ('T', n)); c += 1
                for _ in range(k_fill):
                    if fl: t(fl.pop(0))
            nf = -(-len(fl) // 8) if fl else 0
            if p != 1:
                acc = {0: ACCQ, 2: ACCG, 3: ACCU}[p]
                idx = 0; seq = []
                for tt in range(2):
                    slot = (2*sig + tt) % 8
                    for s_ in range(2):
                        for aa in range(2):
                            for u in range(2):
                                base = (VN4 if slot < 4 else VN42) + aa*2 + u
                                t(f"ds_read_b64_tr_b16 {ar(4*idx+2*u,2)}, v{base} offset:{(slot%4)*SLOT + 16*s_*512}")
                            seq.append((idx, tt, s_, aa)); idx += 1
                for (idx, tt, s_, aa) in seq:
                    if idx % 2 == 0: t(f"s_waitcnt lgkmcnt({14 - 2*idx - 2 if idx < 6 else 0})")
                    tau = 2*a + tt
                    c = vr(acc+16*aa,16) if (tau or s_) else '0'
                    t(f"v_mfma_f32_32x32x16_bf16 {vr(acc+16*aa,16)}, {ar(4*idx,4)}, {vr(B+4*(2*tau+s_),4)}, {c}")
                    some(1, nf)
            else:
                lbl = f"K1_CT_X{a}"
                t(f"s_cmp_eq_u32 s30, {a & 1}"); t(f"s_cbranch_scc0 {lbl}")
                k = a >> 1; base = KA if k == 0 else KA2
                for half in range(2):
                    for j in range(8): t(f"ds_read_b128 {ar(4*j,4)}, v{base+j} offset:{half*256}")
                    for j in range(8):
                        if j % 2 == 0: t(f"s_waitcnt lgkmcnt({6 - j})")
                        jj = 8*half + j
                        c = vr(ACCK+16*k,16) if jj else '0'
                        t(f"v_mfma_f32_32x32x16_bf16 {vr(ACCK+16*k,16)}, {ar(4*j,4)}, {ar(Bq+4*jj,4)}, {c}")
                t(f"{lbl}:")
            some(100, 1000)
        for sig in range(4): step(sig)
        stamp(T, 2)
        t("s_nop 15")
        t("v_lshlrev_b32 v232, 4, v240"); t(f"v_add_u32 v233, {EXB}, v232"); t("s_lshl_b32 s34, s28, 12"); t("v_add_u32 v232, s34, v233")
        for aa in range(2):
            d = 244 if aa == 0 else 96
            pack_swap(T, ACCQ+16*aa, d)
            for s_ in range(2): t(f"ds_write_b128 v232, {vr(d+4*s_,4)} offset:{(2*aa+s_)*1024}")
        t("s_waitcnt lgkmcnt(0)"); t("s_barrier")
        for f in range(16): t(f"ds_read_b128 {ar(Bq+4*f,4)}, v233 offset:{f*1024}")
        t("s_waitcnt lgkmcnt(0)")
        t("buffer_load_dword v243, off, s[4:7], 0 sc1"); W.issue('vm', 'TAG')
        for sig in range(4, 8): step(sig)
        stamp(T, 3)
        qf = []
        qf.append("s_nop 7"); qf.append("v_mov_b32 v236, 0x3db8aa3b")
        qf += ["s_lshl_b32 s33, s35, 14", "s_lshl_b32 s34, s28, 10", "s_add_u32 s33, s33, s34",
               "v_lshrrev_b32 v252, 4, v242", "v_lshlrev_b32 v252, 13, v252", "v_and_b32 v253, 15, v242", "v_lshl_add_u32 v253, v241, 4, v253",
               "v_lshl_add_u32 v252, v253, 4, v252", "v_add_u32 v252, s33, v252"]
        qst = []
        for k in range(2):
            d = 244 if k == 0 else 64
            pack_swap(qf, ACCK+16*k, d, scale="v[236:237]")
            for s_ in range(2):
                qf.append(f"buffer_store_dwordx4 {vr(d+4*s_,4)}, v252, s[24:27], 0 offen offset:{k*4096 + s_*512 - (4096 if k else 0)}{ST}" if k == 0 else "@K1")
        out2 = []
        cnt = 0
        for x in qf:
            if x == "@K1":
                if cnt == 0: out2.append("v_add_u32 v253, 4096, v252")
                out2.append(f"buffer_store_dwordx4 {vr(64+4*cnt,4)}, v253, s[24:27], 0 offen offset:{cnt*512}{ST}"); cnt += 1
            else: out2.append(x)
        qf = out2
        for x in qf:
            t(x)
            if x.startswith('buffer_store'): W.issue('vm', ('QS', len(W.q['vm'])))
        W.issue('vm', 'QEND'); W.q['vm'].pop()
        qtags = [x for x in W.q['vm'] if isinstance(x, tuple) and x[0] in ('QS', 'XS')]
        step(8)
        step(9)
        def get_tag():
            t("K1_CT_TAGP:")
            t("buffer_load_dword v232, off, s[4:7], 0 sc1"); t("s_waitcnt vmcnt(0)")
            t("v_readfirstlane_b32 s3, v232"); t("s_nop 3"); t("s_cmp_lg_u32 s3, 0"); t("s_cbranch_scc1 K1_CT_TAGD"); t("s_sleep 1"); t("s_branch K1_CT_TAGP")
            t("K1_CT_TAGD:")
        def qflag():
            T.extend(cap(lambda e: srd(e, 8, 's54', 's55', FL_OFF, FL_SIZE)))
            flag_store([f"s_lshl_b32 s34, s35, 7", f"s_add_u32 s34, s34, {FLQ}"], "K1_CT_NOQF")
        step(10, extra_need=qtags + ['TAG'], after_bar=None)
        t("v_readfirstlane_b32 s3, v243")
        t("s_nop 3")
        pend_qflag = True
        t("s_cmp_eq_u32 s28, 0"); t("s_cbranch_scc0 K1_CT_NOQF2")
        t("s_cmp_lg_u32 s3, 0"); t("s_cbranch_scc0 K1_CT_NOQF2")
        T.extend(cap(lambda e: srd(e, 8, 's54', 's55', FL_OFF, FL_SIZE)))
        t(f"s_lshl_b32 s34, s35, 7"); t(f"s_add_u32 s34, s34, {FLQ}")
        t("v_mov_b32 v232, s3"); t("v_cmp_eq_u32 vcc, 0, v240"); t("s_and_saveexec_b64 s[56:57], vcc")
        t("buffer_store_dword v232, off, s[8:11], s34 sc1")
        t("s_mov_b64 exec, s[56:57]")
        t("K1_CT_NOQF2:")
        step(11)
        stamp(T, 4)
        k0 = -2.0*1.4426950408889634*0.7978845608028654
        t("s_nop 7")
        t(f"v_mov_b32 v232, {fb(k0)}"); t(f"v_mov_b32 v234, {fb(k0*0.044715)}"); t("v_mov_b32 v236, 1.0")
        for k in range(4): t(f"v_mov_b32 v{252+k}, 0")
        def gelu(r):
            tt_ = 244 + 2*((r//2) % 4)
            X = f"v[{r}:{r+1}]"; Tt = f"v[{tt_}:{tt_+1}]"
            return [f"v_pk_mul_f32 {Tt}, {X}, {X}", f"v_pk_fma_f32 {Tt}, {Tt}, v[234:235], v[232:233] op_sel_hi:[1,0,0]", f"v_pk_mul_f32 {Tt}, {Tt}, {X}",
                    f"v_exp_f32 v{tt_}, v{tt_}", f"v_exp_f32 v{tt_+1}, v{tt_+1}", f"v_pk_add_f32 {Tt}, {Tt}, v[236:237] op_sel_hi:[1,0]",
                    f"v_rcp_f32 v{tt_}, v{tt_}", f"v_rcp_f32 v{tt_+1}, v{tt_+1}", f"v_pk_mul_f32 {X}, {X}, {Tt}",
                    f"v_pk_add_f32 v[252:253], v[252:253], {X}", f"v_pk_fma_f32 v[254:255], {X}, {X}, v[254:255]"]
        for q in range(4):
            cols = [gelu(ACCG + 8*q + 2*k) for k in range(4)]
            fillers[12+q] = [cols[k][i] for i in range(11) for k in range(4)]
        for sig in range(12, 16): step(sig)
        stamp(T, 5)
        t("v_add_f32 v8, v252, v253"); t("v_add_f32 v10, v254, v255"); t("v_mov_b32 v9, v8"); t("v_mov_b32 v11, v10"); t("s_nop 1")
        t("v_permlane32_swap_b32 v8, v9"); t("v_permlane32_swap_b32 v10, v11"); t("s_nop 1")
        t("v_add_f32 v8, v8, v9"); t("v_add_f32 v9, v10, v11")
        t("v_lshlrev_b32 v12, 3, v242"); t("s_lshl_b32 s33, s28, 8"); t("v_add_u32 v13, s33, v12")
        t("s_barrier")
        t("ds_write_b64 v13, v[8:9]")
        for aa in range(2):
            d = 244 if aa == 0 else 16
            pack_swap(T, ACCU+16*aa, d)
            for s_ in range(2): t(f"ds_write_b128 v{XO+2*aa+s_}, {vr(d+4*s_,4)} offset:16384")
        t("s_waitcnt lgkmcnt(0)"); t("s_barrier")
        for k in range(4): t(f"ds_read_b64 v[{24+2*k}:{25+2*k}], v12 offset:{256*k}")
        t("v_lshlrev_b32 v232, 4, v240"); t(f"s_add_u32 s33, s31, {EX}"); t("v_add_u32 v232, s33, v232")
        for k in range(4): t(f"ds_read_b128 {vr(96+4*k,4)}, v232 offset:{16384 + k*1024}")
        T.extend(cap(lambda e: (srd(e, 12, 's54', 's55', U_OFF, 8000*512), srd(e, 20, 's54', 's55', G_OFF, 8000*512))))
        t("s_lshl_b32 s56, s35, 14")
        t("s_waitcnt lgkmcnt(4)")
        t("v_add_f32 v24, v24, v26"); t("v_add_f32 v25, v25, v27"); t("v_add_f32 v28, v28, v30"); t("v_add_f32 v29, v29, v31")
        t("v_add_f32 v8, v24, v28"); t("v_add_f32 v9, v25, v29")
        t("v_mul_f32 v8, 0x3b800000, v8"); t("v_mul_f32 v9, 0x3b800000, v9")
        t("v_fma_f32 v9, -v8, v8, v9"); t("v_max_f32 v9, 0, v9"); t("v_add_f32 v9, 0x3727c5ac, v9")
        t("v_rsq_f32 v10, v9"); t("s_nop 0"); t("v_mul_f32 v12, v8, v10"); t("v_sub_f32 v12, 0, v12")
        t("s_waitcnt lgkmcnt(0)")
        for k in range(4): t(f"buffer_store_dwordx4 {vr(96+4*k,4)}, v{DS+k}, s[12:15], s56 offen offset:{k*1024}{ST}")
        for aa in range(2):
            for k in range(8):
                r = ACCG + 16*aa + 2*k
                t(f"v_pk_fma_f32 v[{r}:{r+1}], v[{r}:{r+1}], v[10:11], v[12:13] op_sel_hi:[1,0,0]")
            d = 32 + 8*aa
            pack_swap(T, ACCG+16*aa, d)
            for s_ in range(2): t(f"ds_write_b128 v{XO+2*aa+s_}, {vr(d+4*s_,4)}")
        t("s_waitcnt lgkmcnt(0)"); t("s_barrier")
        for k in range(4): t(f"ds_read_b128 {vr(112+4*k,4)}, v232 offset:{k*1024}")
        for k in range(4):
            t(f"s_waitcnt lgkmcnt({3-k})")
            t(f"buffer_store_dwordx4 {vr(112+4*k,4)}, v{DS+k}, s[20:23], s56 offen offset:{k*1024}{ST}")
        stamp(T, 6)
        finish(T, "K1_CT")
    W = Waiter(); T = []
    for s in range(8): W.issue('vm', ('X', s))
    dma_voff(T, False)
    T += cap(lambda e: (srd(e, 8, 's38', 's39', 0, 131072), srd(e, 12, 's40', 's41', 0, 131072),
                        srd(e, 20, 's54', 's55', XA_OFF, 8000*512), srd(e, 24, 's54', 's55', QF_OFF, 500*8192)))
    emit = [(n, 8, n*SLOT) for n in range(8)]
    for (n, sn, so) in emit[:npre]: emit_tile(T, W, n, sn, so)
    xb_setup(T); vn_setup(T)
    ln(T, W, emit[npre:o['nln']])
    if FF: T.append("buffer_load_dword v243, off, s[4:7], 0 sc1"); W.issue('vm', 'TAG')
    stamp(T, 1)
    ka_setup(T)
    stamp(T, 2)
    T.append("v_lshlrev_b32 v232, 4, v240"); T.append(f"s_add_u32 s33, s31, {EX}"); T.append("v_add_u32 v232, s33, v232")
    for half in range(2):
        for k in range(4):
            T.append(f"ds_read_b128 {vr(ACC[1]+(half*4+k)*4,4)}, v232 offset:{half*SLOT + k*1024}")
    T.append("s_waitcnt lgkmcnt(0)")
    T.append("s_lshl_b32 s34, s35, 15"); T.append("s_add_u32 s56, s34, 16384")
    xfill = []
    for half in range(2):
        for k in range(4):
            xfill.append((f"buffer_store_dwordx4 {vr(ACC[1]+(half*4+k)*4,4)}, v{DS+k}, s[20:23], {'s56' if half else 's34'} offen offset:{k*1024}{ST}", ('XS', half, k)))
    later = std_later(12)
    rest = emit[o['nln']:]
    if rest:
        later[0] = rest[:2]; later[1] = rest[2:4]
        if later[1] == [] : del later[1]
    tl0 = phase(W, 0, 'Y', later)
    for i, (txt, tag) in enumerate(xfill): tl0.add(1 + 2*i, 'vm', txt, tag=tag, prio=7)
    T += tl0.linearize()
    stamp(T, 3)
    exchange(T, W, ACC[0], 'Y', xaflag=FF and o.get('xaflag', True))
    stamp(T, 4)
    T.append("v_mov_b32 v236, 0x3db8aa3b")
    T.append("s_lshl_b32 s33, s35, 2"); T.append("s_lshl_b32 s34, s29, 1"); T.append("s_add_u32 s33, s33, s34"); T.append("s_lshl_b32 s33, s33, 13")
    T.append("s_lshl_b32 s34, s30, 10"); T.append("s_add_u32 s33, s33, s34")
    T.append("v_lshrrev_b32 v232, 4, v242"); T.append("v_lshlrev_b32 v232, 13, v232")
    T.append("v_and_b32 v233, 15, v242"); T.append("v_lshl_add_u32 v233, v241, 4, v233")
    T.append("v_lshl_add_u32 v232, v233, 4, v232"); T.append("v_add_u32 v232, s33, v232")
    for a in range(1, 4): T.append(f"v_add_u32 v{232+a}, {a*2048}, v232")
    def qepi(a):
        ls = []
        d = ACC[0] + 8*a
        pack_swap(ls, ACC[1]+16*a, d, scale="v[236:237]")
        st = [f"buffer_store_dwordx4 {vr(d+4*s,4)}, v{232+a}, s[24:27], 0 offen offset:{s*512}{ST}" for s in range(2)]
        return ls, st
    tl1 = phase(W, 1, 'X', later)
    if o.get('qprog', True):
        for a in range(3):
            ls, st = qepi(a)
            t0 = 16*(a+1) + 4
            for i, ins in enumerate(ls): tl1.add(t0 + i*0.4, 'txt', ins, prio=4)
            for i, ins in enumerate(st): tl1.add(t0 + len(ls)*0.4 + 0.5 + i, 'vm', ins, tag=('QS', a, i), prio=7)
    T += tl1.linearize()
    stamp(T, 5)
    T.append("s_nop 15")
    for a in (range(3, 4) if o.get('qprog', True) else range(4)):
        ls, st = qepi(a)
        T += ls + st
    finish(T, "K1_Q")

    W = Waiter(); T = []
    for s in range(8): W.issue('vm', ('X', s))
    dma_voff(T, True)
    T += cap(lambda e: (srd(e, 8, 's46', 's47', 0, 262144),
                        srd(e, 20, 's54', 's55', U_OFF, 8000*512), srd(e, 24, 's54', 's55', G_OFF, 8000*512)))
    emit = [(n, 8, n*32768 + 512) for n in range(8)]
    for (n, sn, so) in emit[:npre]: emit_tile(T, W, n, sn, so)
    xb_setup(T); vn_setup(T)
    ln(T, W, emit[npre:o['nln']])
    if FF: T.append("buffer_load_dword v243, off, s[4:7], 0 sc1"); W.issue('vm', 'TAG')
    stamp(T, 2)
    gl = lambda n: (n, 8, (n-8)*32768)
    later = {2: [gl(8), gl(9)], 3: [gl(10), gl(11)], 4: [gl(12), gl(13)], 5: [gl(14), gl(15)]}
    rest = emit[o['nln']:]
    if rest:
        later[0] = rest[:2]; later[1] = rest[2:4]
    T += phase(W, 0, 'Y', later).linearize()
    stamp(T, 3)
    k0 = -2.0*1.4426950408889634*0.7978845608028654
    T.append(f"v_mov_b32 v232, {fb(k0)}"); T.append(f"v_mov_b32 v234, {fb(k0*0.044715)}"); T.append("v_mov_b32 v236, 1.0")
    for k in range(4): T.append(f"v_mov_b32 v{252+k}, 0")
    def gelu(r):
        t = 244 + 2*((r//2) % 4)
        X = f"v[{r}:{r+1}]"; Tt = f"v[{t}:{t+1}]"
        return [f"v_pk_mul_f32 {Tt}, {X}, {X}",
                f"v_pk_fma_f32 {Tt}, {Tt}, v[234:235], v[232:233] op_sel_hi:[1,0,0]",
                f"v_pk_mul_f32 {Tt}, {Tt}, {X}",
                f"v_exp_f32 v{t}, v{t}", f"v_exp_f32 v{t+1}, v{t+1}",
                f"v_pk_add_f32 {Tt}, {Tt}, v[236:237] op_sel_hi:[1,0]",
                f"v_rcp_f32 v{t}, v{t}", f"v_rcp_f32 v{t+1}, v{t+1}",
                f"v_pk_mul_f32 {X}, {X}, {Tt}",
                f"v_pk_add_f32 v[252:253], v[252:253], {X}",
                f"v_pk_fma_f32 v[254:255], {X}, {X}, v[254:255]"]
    fill = []
    g0 = ACC[0]
    for b in range(g0, g0+64, 8):
        cols = [gelu(b+2*k) for k in range(4)]
        for i in range(11):
            for k in range(4): fill.append(cols[k][i])
    T += phase(W, 1, 'Y', later, fill=fill, f0=4).linearize()
    stamp(T, 5)
    T.append("v_add_f32 v8, v252, v253"); T.append("v_add_f32 v10, v254, v255")
    T.append("v_mov_b32 v9, v8"); T.append("v_mov_b32 v11, v10"); T.append("s_nop 1")
    T.append("v_permlane32_swap_b32 v8, v9"); T.append("v_permlane32_swap_b32 v10, v11"); T.append("s_nop 1")
    T.append("v_add_f32 v8, v8, v9"); T.append("v_add_f32 v9, v10, v11")
    T.append("s_lshl_b32 s33, s29, 1"); T.append("s_add_u32 s33, s33, s30"); T.append("s_lshl_b32 s33, s33, 9"); T.append("s_add_u32 s33, s33, 32768")
    T.append("v_lshlrev_b32 v12, 3, v240"); T.append("v_add_u32 v13, s33, v12")
    T.append("s_xor_b32 s33, s33, 512"); T.append("v_add_u32 v14, s33, v12")
    T.append("ds_write_b64 v13, v[8:9]")
    for a in range(4):
        d = 244 if a % 2 == 0 else 16
        pack_swap(T, ACC[1]+16*a, d)
        for s in range(2):
            T.append(f"ds_write_b128 v{XB+2*a+s}, {vr(d+4*s,4)}")
    T.append("s_waitcnt lgkmcnt(0)"); T.append("s_barrier")
    T.append("ds_read_b64 v[10:11], v14")
    T.append("v_lshlrev_b32 v15, 4, v240"); T.append("v_add_u32 v15, s31, v15"); T.append(f"v_add_u32 v232, {EX}, v15")
    for half in range(2):
        for k in range(4):
            T.append(f"ds_read_b128 {vr(ACC[1]+(half*4+k)*4,4)}, v232 offset:{half*SLOT + k*1024}")
    for jj in range(8): T.append(f"v_subrev_u32 v{XB+jj}, {EX}, v{XB+jj}")
    T.append("s_waitcnt lgkmcnt(8)")
    T.append("v_add_f32 v8, v8, v10"); T.append("v_add_f32 v9, v9, v11")
    T.append("v_mul_f32 v8, 0x3b800000, v8"); T.append("v_mul_f32 v9, 0x3b800000, v9")
    T.append("v_fma_f32 v9, -v8, v8, v9"); T.append("v_max_f32 v9, 0, v9"); T.append("v_add_f32 v9, 0x3727c5ac, v9")
    T.append("v_rsq_f32 v10, v9"); T.append("s_nop 0")
    T.append("v_mul_f32 v12, v8, v10"); T.append("v_sub_f32 v12, 0, v12")
    T.append("s_lshl_b32 s32, s35, 15"); T.append("s_add_u32 s56, s32, 16384")
    T.append("s_waitcnt lgkmcnt(0)")
    ust = [f"buffer_store_dwordx4 {vr(ACC[1]+(half*4+k)*4,4)}, v{DS+k}, s[20:23], {'s56' if half else 's32'} offen offset:{k*1024}{ST}" for half in range(2) for k in range(4)]
    for a in range(4):
        for k in range(8):
            r = g0 + 16*a + 2*k
            T.append(f"v_pk_fma_f32 v[{r}:{r+1}], v[{r}:{r+1}], v[10:11], v[12:13] op_sel_hi:[1,0,0]")
        T.append(ust.pop(0))
        pack_swap(T, g0+16*a, 16+8*a)
        for s in range(2):
            T.append(f"ds_write_b128 v{XB+2*a+s}, {vr(16+8*a+4*s,4)}")
        T.append(ust.pop(0))
    stamp(T, 6)
    T.append("s_waitcnt lgkmcnt(0)"); T.append("s_barrier")
    for half in range(2):
        for k in range(4):
            T.append(f"ds_read_b128 {vr(ACC[0]+(half*4+k)*4,4)}, v15 offset:{half*SLOT + k*1024}")
    for half in range(2):
        for k in range(4):
            T.append(f"s_waitcnt lgkmcnt({7 - (half*4+k)})")
            T.append(f"buffer_store_dwordx4 {vr(ACC[0]+(half*4+k)*4,4)}, v{DS+k}, s[24:27], {'s56' if half else 's32'} offen offset:{k*1024}{ST}")
    stamp(T, 7)
    finish(T, "K1_UG")

    def wf_store(T, acc, which, slice_sreg):
        T.append(f"s_lshl_b32 s33, {slice_sreg}, 2"); T.append("s_lshl_b32 s34, s29, 1"); T.append("s_add_u32 s33, s33, s34"); T.append("s_lshl_b32 s33, s33, 14")
        T.append("s_lshl_b32 s34, s30, 10"); T.append("s_add_u32 s33, s33, s34")
        if which == 2: T.append("s_add_u32 s33, s33, 8192")
        T.append("v_lshrrev_b32 v232, 4, v242"); T.append("v_lshlrev_b32 v232, 14, v232")
        T.append("v_and_b32 v233, 15, v242"); T.append("v_lshl_add_u32 v233, v241, 4, v233")
        T.append("v_lshl_add_u32 v232, v233, 4, v232"); T.append("v_add_u32 v232, s33, v232")
        for a in range(4):
            d = 244; src = acc + 16*a
            if which == 1:
                for k, r in enumerate((0, 2, 8, 10, 4, 6, 12, 14)):
                    T.append(f"v_cvt_pk_bf16_f32 v{d+k}, v{src+r}, v{src+r+1}")
            else:
                pack_swap(T, src, d)
            T.append(f"s_mov_b32 s33, {a*2048}")
            for s in range(2):
                T.append(f"buffer_store_dwordx4 {vr(d+4*s,4)}, v232, s[24:27], s33 offen offset:{s*512}{ST}")
            T.append("s_nop 1")
    W = Waiter(); T = []
    dma_voff(T, False)
    T.append("s_sub_u32 s35, s2, 250")
    T += cap(lambda e: (srd(e, 16, 's52', 's53', 0, 262144), srd(e, 8, 's44', 's45', 0, 131072), srd(e, 12, 's42', 's43', 0, 131072),
                        srd(e, 24, 's54', 's55', WF_OFF, 262144)))
    narrow(T, W, 0, 's35')
    for n in range(3): emit_tile(T, W, n, 8, n*SLOT)
    ka_setup(T)
    narrow_read(T, W)
    for n in range(3, 8): emit_tile(T, W, n, 8, n*SLOT)
    if FF: T.append("buffer_load_dword v243, off, s[4:7], 0 sc1"); W.issue('vm', 'TAG')
    later = std_later(12)
    T += phase(W, 0, 'X', later).linearize()
    T.append("s_barrier")
    exchange(T, W, ACC[0], 'X')
    T += phase(W, 1, 'X', later).linearize()
    T.append("s_nop 15")
    wf_store(T, ACC[1], 1, 's35')
    finish(T, "K1_W1")

    W = Waiter(); T = []
    if not FUSED: T += cap(lambda e: srd(e, 20, 's54', 's55', FL_OFF, 8192))
    if not FUSED:
        T.append("v_lshlrev_b32 v232, 5, v0")
        for k in range(4): T.append(f"v_mov_b32 v{236+k}, 0")
        T.append("buffer_store_dwordx4 v[236:239], v232, s[20:23], 0 offen sc1")
        T.append("buffer_store_dwordx4 v[236:239], v232, s[20:23], 0 offen offset:16 sc1")
        W.issue('vm', 'Z0'); W.issue('vm', 'Z1')
    dma_voff(T, False)
    T.append("s_sub_u32 s35, s2, 254"); T.append("s_lshl_b32 s35, s35, 1")
    T += cap(lambda e: (srd(e, 16, 's52', 's53', 0, 262144), srd(e, 8, 's50', 's51', 0, 131072),
                        srd(e, 24, 's54', 's55', WF_OFF, 262144)))
    narrow(T, W, 131072, 's35')
    for n in range(3): emit_tile(T, W, n, 8, n*SLOT)
    ka_setup(T)
    narrow_read(T, W)
    for n in range(3, 8): emit_tile(T, W, n, 8, n*SLOT)
    if FF: T.append("buffer_load_dword v243, off, s[4:7], 0 sc1"); W.issue('vm', 'TAG')
    T.append("s_barrier")
    T.append("s_add_u32 s56, s35, 1")
    narrow(T, W, 131072, 's56')
    later = std_later(8)
    T += phase(W, 0, 'X', later).linearize()
    T.append("s_nop 15")
    wf_store(T, ACC[0], 2, 's35')
    for i in range(8): W.issue('vm', ('WS', i))
    narrow_read(T, W)
    T += phase(W, 1, 'X', later).linearize()
    T.append("s_nop 15")
    wf_store(T, ACC[1], 2, 's56')
    finish(T, "K1_W2")

    e("K1_FIN:")
    if FUSED:
        if o['stamp']:
            e("s_waitcnt vmcnt(0)"); e("s_memtime s[64:65]"); e("s_memrealtime s[66:67]"); e("s_waitcnt lgkmcnt(0)")
            e("s_cmp_eq_u32 s28, 0"); e("s_cbranch_scc0 K1_NOST")
            e("s_add_u32 s68, s54, 0x8100000"); e("s_addc_u32 s69, s55, 0"); e("s_mov_b32 s70, 0x100000"); e("s_mov_b32 s71, 0x20000")
            for k, r in enumerate([60, 64, 62, 66]): e(f"v_mov_b32 v{232+k}, s{r}")
            e("s_lshl_b32 s33, s2, 4"); e("v_mov_b32 v236, s33")
            e("buffer_store_dwordx4 v[232:235], v236, s[68:71], 0 offen")
            for k in range(8): e(f"v_mov_b32 v{244+k}, s{72+2*k}")
            e("s_lshl_b32 s33, s2, 5"); e("s_add_u32 s33, s33, 0x10000"); e("v_mov_b32 v236, s33")
            e("buffer_store_dwordx4 v[244:247], v236, s[68:71], 0 offen")
            e("buffer_store_dwordx4 v[248:251], v236, s[68:71], 0 offen offset:16")
            e("K1_NOST:")
        if FF:
            e("s_lshl_b32 s33, s2, 7")
            fa, fb_ = (FLU, FLQ) if o.get('ugfirst', True) else (FLQ, FLU)
            e(f"s_add_u32 s67, s33, {fa}")
            e(f"s_add_u32 s56, s33, {fb_ - 125*128}"); e("s_cmp_ge_u32 s2, 125"); e("s_cselect_b32 s67, s56, s67")
            e(f"s_add_u32 s56, s33, {FLW - 250*128}"); e("s_cmp_ge_u32 s2, 250"); e("s_cselect_b32 s67, s56, s67")
            for k in range(4): e(f"s_mov_b32 s{92+k}, s{4+k}")
            for x in ["s_mov_b32 s4, s54", "s_mov_b32 s5, s55", "s_mov_b32 s32, s48", "s_mov_b32 s33, s49", "s_mov_b32 s40, s100", "s_mov_b32 s41, s101", "s_mov_b32 s48, s28", "s_mov_b32 s101, 0"]: e(x)
            return L, [], []
        e("K1_TAGP:")
        e("buffer_load_dword v232, off, s[4:7], 0 sc1")
        e("s_waitcnt vmcnt(0) lgkmcnt(0)")
        e("v_readfirstlane_b32 s3, v232")
        e("s_nop 3")
        e("s_cmp_lg_u32 s3, 0"); e("s_cbranch_scc1 K1_TAGD"); e("s_sleep 1")
        e("s_add_u32 s101, s101, 1"); e("s_cmp_lt_u32 s101, 0x400000"); e("s_cbranch_scc1 K1_TAGP")
        e("K1_TAGD:")
        e("s_barrier")
        e("s_cmp_eq_u32 s28, 0"); e("s_cbranch_scc0 K1_NOFL")
        e("s_lshl_b32 s33, s2, 7")
        fa, fb_ = (FLU, FLQ) if o.get('ugfirst', True) else (FLQ, FLU)
        if CT:
            e(f"s_add_u32 s34, s33, {FLU}")
        else:
            e(f"s_add_u32 s34, s33, {fa}")
            e(f"s_add_u32 s56, s33, {fb_ - 125*128}"); e("s_cmp_ge_u32 s2, 125"); e("s_cselect_b32 s34, s56, s34")
        e(f"s_add_u32 s56, s33, {FLW - 250*128}"); e("s_cmp_ge_u32 s2, 250"); e("s_cselect_b32 s34, s56, s34")
        srd(e, 8, 's54', 's55', FL_OFF, FL_SIZE)
        e("v_mov_b32 v232, s3")
        e("v_cmp_eq_u32 vcc, 0, v240"); e("s_and_saveexec_b64 s[56:57], vcc")
        e("buffer_store_dword v232, off, s[8:11], s34 sc1")
        if CT:
            e(f"s_add_u32 s34, s33, {FLQ}"); e("s_cmp_lt_u32 s2, 250"); e("s_cbranch_scc0 K1_NOFL2")
            e("buffer_store_dword v232, off, s[8:11], s34 sc1")
            e("K1_NOFL2:")
        e("s_mov_b64 exec, s[56:57]")
        e("K1_NOFL:")
        e("s_mov_b32 s48, s28")
        return L, [], []
    if o['stamp']:
        e("s_waitcnt vmcnt(0)")
        e("s_memtime s[64:65]"); e("s_memrealtime s[66:67]")
        e("s_waitcnt lgkmcnt(0)")
        e("s_cmp_eq_u32 s28, 0"); e("s_cbranch_scc0 K1_END")
        e("s_add_u32 s68, s54, 0x8100000"); e("s_addc_u32 s69, s55, 0"); e("s_mov_b32 s70, 0x100000"); e("s_mov_b32 s71, 0x20000")
        for k, r in enumerate([60, 64, 62, 66]): e(f"v_mov_b32 v{232+k}, s{r}")
        e("s_lshl_b32 s33, s2, 4"); e("v_mov_b32 v236, s33")
        e("buffer_store_dwordx4 v[232:235], v236, s[68:71], 0 offen")
        for k in range(8): e(f"v_mov_b32 v{244+k}, s{72+2*k}")
        e("s_lshl_b32 s33, s2, 5"); e("s_add_u32 s33, s33, 0x10000"); e("v_mov_b32 v236, s33")
        e("buffer_store_dwordx4 v[244:247], v236, s[68:71], 0 offen")
        e("buffer_store_dwordx4 v[248:251], v236, s[68:71], 0 offen offset:16")
    e("K1_END:")
    e("s_endpgm")
    return L, kernel_desc(name, 288, 256), []
```

```python
from gen_common import *
import hazard, struct
SLOT = 16384
M16 = "v_mfma_f32_16x16x32_bf16"
fb = lambda x: hex(struct.unpack('<I', struct.pack('<f', x))[0])
EXT = 131072
MX = EXT
OWN = EXT + 4096
OWNML = EXT + 20480
ACT = 0

def gen_k2f(opt=None):
    o = dict(DF=3, stamp=False, bslot=8, dma0=10, dmastep=4, e0=37, e1=93, estep=4, cvtd=1, addd=1, fused=True)
    if opt: o.update(opt)
    name = 'attn_kernel'
    L = []; e = L.append
    O = 0; S = 128; P = [160, 176]; NEGM = 192; RING = 208; KA = 232; VA = 236; DV = 244; LS = 248; MREF = 252
    aQ = 0; aO = 128
    def Oreg(dt, qt): return vr(O + (dt*2+qt)*4, 4) if qt < 2 else ar(aO + (dt*2+qt-2)*4, 4)
    def Sreg(kt, qt): return S + (kt*4+qt)*4
    FUSED = o.get('fusedk')
    CS = ' sc1' if (FUSED and o.get('csc1', True)) else ''
    if not FUSED:
        L += kernel_header(name)
        e("s_cmp_ge_u32 s2, 256")
        e("s_cbranch_scc1 K2_END")
    FF = FUSED and o.get('fastfin')
    if not FF:
        e("s_load_dwordx2 s[4:5], s[0:1], 88")
        e("s_load_dwordx2 s[6:7], s[0:1], 80")
        e("s_load_dwordx2 s[36:37], s[0:1], 0")
        e("s_load_dwordx2 s[32:33], s[0:1], 48")
        e("s_load_dwordx2 s[40:41], s[0:1], 72")
    if o['stamp']:
        e("s_memtime s[72:73]"); e("s_memrealtime s[74:75]")
    T = []; t = T.append
    if FUSED:
        t("v_mbcnt_lo_u32_b32 v131, -1, 0"); t("v_mbcnt_hi_u32_b32 v131, -1, v131")
    else:
        t("v_lshrrev_b32 v130, 6, v0")
        t("v_and_b32 v131, 63, v0")
        t("v_readfirstlane_b32 s48, v130")
    t("s_and_b32 s60, s2, 7")
    t("s_lshr_b32 s61, s2, 3")
    t("s_lshr_b32 s51, s60, 2")
    t("s_and_b32 s53, s61, 3")
    t("s_lshr_b32 s61, s61, 2")
    t("s_and_b32 s52, s60, 3")
    t("s_lshl_b32 s52, s52, 3")
    t("s_add_u32 s52, s52, s61")
    t("s_and_b32 s49, s48, 1")
    t("s_lshr_b32 s50, s48, 1")
    t("s_lshl_b32 s54, s53, 5")
    t("s_lshl_b32 s60, s50, 4")
    t("s_add_u32 s54, s54, s60")
    t("s_max_u32 s60, s53, 1")
    t("s_sub_u32 s60, s60, 1")
    t("s_sub_u32 s54, s54, s60")
    t("s_min_u32 s60, s53, 1")
    t("s_and_b32 s60, s60, s50")
    t("s_sub_u32 s55, 16, s60")
    t("s_lshl_b32 s55, s55, 14")
    t("s_cmp_eq_u32 s60, 1")
    t("s_cselect_b32 s59, 3, 0xffff")
    t("s_lshl_b32 s54, s54, 14")
    t("s_mul_i32 s60, s51, 2048000")
    t("s_add_u32 s54, s54, s60")
    def dv_setup(t):
        t("v_and_b32 v132, 15, v131")
        t("v_lshrrev_b32 v133, 4, v131")
        t("v_lshrrev_b32 v134, 5, v131")
        t("v_and_b32 v135, 31, v131")
        t("s_lshl_b32 s60, s49, 13")
        for k in range(4):
            t(f"v_add_u32 v136, {2*k}, v134")
            t("v_lshlrev_b32 v136, 1, v136")
            t("v_xor_b32 v136, v135, v136")
            t("v_lshlrev_b32 v136, 4, v136")
            t("v_lshl_add_u32 v136, v134, 9, v136")
            t(f"v_add_u32 v{DV+k}, s60, v136")
    dv_setup(t)
    t("s_waitcnt lgkmcnt(0)")
    def S_(fn):
        buf = []; fn(buf.append); T.extend(buf)
    S_(lambda e: srd(e, 8, 's4', 's5', 's54', 's55'))
    S_(lambda e: srd(e, 12, 's4', 's5', QF_OFF, 500*8192))
    t("s_getreg_b32 s63, hwreg(HW_REG_XCC_ID, 0, 3)")
    t("s_or_b32 s63, s63, 8")
    S_(lambda e: srd(e, 44, 's4', 's5', FL_OFF, FL_SIZE if FUSED else 8192))
    t("s_lshl_b32 s65, s51, 5"); t("s_add_u32 s65, s65, s52")
    xcc0 = len(T)
    t("s_cmp_eq_u32 s48, 0"); t("s_cbranch_scc0 K2_NOXCC")
    t("s_lshl_b32 s60, s65, 7"); t("s_lshl_b32 s61, s53, 2"); t("s_add_u32 s60, s60, s61")
    if FUSED:
        t("s_add_u32 s60, s60, 16"); t("s_xor_b32 s61, s63, s3"); t("v_mov_b32 v137, s61")
    else:
        t("v_mov_b32 v137, s63")
    t("v_cmp_eq_u32 vcc, 0, v131"); t("s_and_saveexec_b64 s[70:71], vcc")
    t("buffer_store_dword v137, off, s[44:47], s60 sc1")
    t("s_mov_b64 exec, s[70:71]")
    t("K2_NOXCC:")
    xcc_blk = T[xcc0:]
    if FUSED: del T[xcc0:]
    t("s_lshl_b32 s56, s50, 16"); t("s_lshl_b32 s60, s49, 13"); t("s_add_u32 s56, s56, s60")
    t("s_mov_b32 s57, 0"); t("s_mov_b32 s54, 0")
    def cap_(fn):
        buf = []; fn(buf.append); return buf
    def dma_lines(slot):
        r = []
        for k in range(8):
            if k % 4 == 0:
                r.append((f"s_add_u32 m0, s56, {slot*SLOT + (k//4)*4096:#x}", False))
                if k: r.append(("s_add_u32 s57, s57, 4096", False))
                else: r.append(("s_nop 0", False))
            r.append((f"buffer_load_dwordx4 v{DV+k%4}, s[8:11], s57 offen offset:{(k%4)*1024}{CS} lds", True))
        r.append((f"s_add_u32 s57, s57, {SLOT-4096}", False))
        return r
    pre_dma = len(T)
    for txt, _ in dma_lines(0): t(txt)
    QST = [49152, 114688, 131072, 147456]
    def q_dma(t):
        t("v_lshlrev_b32 v137, 4, v131")
        t("s_mul_i32 s60, s51, 250"); t("s_lshl_b32 s61, s52, 3"); t("s_add_u32 s60, s60, s61")
        t("s_lshl_b32 s61, s48, 1"); t("s_add_u32 s60, s60, s61"); t("s_lshl_b32 s60, s60, 13")
        t("s_lshl_b32 s61, s48, 14"); t("s_add_u32 s61, s61, 98304"); t("s_cmp_eq_u32 s48, 0"); t("s_cselect_b32 s61, 49152, s61")
        for g in range(4):
            t(f"s_add_u32 m0, s61, {g*4096}")
            if g: t("s_add_u32 s60, s60, 4096")
            else: t("s_nop 0")
            for k in range(4):
                t(f"buffer_load_dwordx4 v137, s[12:15], s60 offen offset:{k*1024}{CS} lds")
    def q_read(t):
        t("v_lshlrev_b32 v137, 4, v131")
        for qt in range(4):
            t(f"s_lshl_b32 s60, s50, 1"); t(f"s_add_u32 s60, s60, {qt}"); t("s_and_b32 s60, s60, 3")
            t("s_lshl_b32 s61, s49, 2"); t("s_add_u32 s60, s60, s61")
            t("s_lshr_b32 s61, s60, 1"); t("s_lshl_b32 s62, s61, 14"); t("s_add_u32 s62, s62, 98304")
            t("s_cmp_eq_u32 s61, 0"); t("s_cselect_b32 s62, 49152, s62")
            t("s_and_b32 s60, s60, 1"); t("s_lshl_b32 s60, s60, 13"); t("s_add_u32 s62, s62, s60")
            t(f"v_add_u32 v{140+qt}, s62, v137")
    def q_read2(t):
        for j in range(8):
            for qt in range(4):
                t(f"ds_read_b128 {ar(aQ+(qt*8+j)*4,4)}, v{140+qt} offset:{j*1024}")
    q_dma(t)
    for n in (1, 2):
        for txt, _ in dma_lines(n): t(txt)
    def kava_setup(t):
        t("v_and_b32 v136, 7, v132"); t("v_lshlrev_b32 v136, 1, v136")
        t("v_lshlrev_b32 v138, 9, v132")
        t("s_lshl_b32 s60, s50, 16"); t("v_add_u32 v138, s60, v138")
        for jj in range(4):
            t(f"v_add_u32 v139, {4*jj}, v133")
            t("v_xor_b32 v139, v139, v136")
            t(f"v_lshl_add_u32 v{KA+jj}, v139, 4, v138")
        t("v_lshrrev_b32 v136, 2, v132")
        t("v_lshl_add_u32 v136, v133, 2, v136")
        t("v_lshlrev_b32 v138, 9, v136")
        t("v_add_u32 v138, s60, v138")
        t("v_and_b32 v139, 1, v132"); t("v_lshl_add_u32 v138, v139, 3, v138")
        t("v_and_b32 v136, 7, v136"); t("v_lshlrev_b32 v136, 1, v136")
        t("v_bfe_u32 v139, v132, 1, 1")
        for dd in range(8):
            t(f"v_add_u32 v140, {2*dd}, v139")
            t("v_xor_b32 v140, v140, v136")
            t(f"v_lshl_add_u32 v{VA+dd}, v140, 4, v138")
    t("@KAVA")
    kava_setup(t)
    for r in range(128): t(f"v_mov_b32 v{O+r}, 0")
    for r in range(128): t(f"v_accvgpr_write_b32 a{aO+r}, 0")
    for k in range(4): t(f"v_mov_b32 v{LS+k}, 0")
    if o.get('pkadd'):
        for k in range(8): t(f"v_mov_b32 v{224+k}, 0")
    t("s_mov_b32 s58, 0")
    q_read(t)
    if FUSED:
        i_kava = T.index("@KAVA")
        loads = T[pre_dma:i_kava]
        rest = T[i_kava+1:]
        T[:] = T[:pre_dma]
        if o.get('ct'):
            t("s_lshl_b32 s60, s53, 5"); t("s_max_u32 s61, s53, 1"); t("s_sub_u32 s61, s61, 1"); t("s_sub_u32 s60, s60, s61")
            t("s_lshl_b32 s62, s52, 2"); t("s_sub_u32 s62, s62, 32")
            t("v_add_u32 v150, s60, v131"); t("v_add_u32 v151, s62, v131")
            t("v_cmp_gt_u32 vcc, 32, v131"); t("s_nop 1"); t("v_cndmask_b32 v150, v151, v150, vcc")
            t("s_lshl_b32 s62, s52, 2"); t("v_mov_b32 v151, s62")
            t("v_cmp_gt_u32 vcc, 36, v131"); t("s_nop 1"); t("v_cndmask_b32 v150, v151, v150, vcc")
            t("v_min_u32 v150, 124, v150")
            t("s_mul_i32 s61, s51, 125"); t("v_add_u32 v150, s61, v150")
        else:
            t("s_lshl_b32 s60, s53, 5"); t("s_max_u32 s61, s53, 1"); t("s_sub_u32 s61, s61, 1"); t("s_sub_u32 s60, s60, s61")
            t("s_lshl_b32 s60, s60, 5"); t("s_mul_i32 s61, s51, 4000"); t("s_add_u32 s60, s60, s61"); t("s_lshr_b32 s60, s60, 6")
            t("s_lshl_b32 s62, s52, 7"); t("s_add_u32 s62, s62, s61"); t("s_lshr_b32 s62, s62, 6")
            t("v_add_u32 v150, s60, v131")
            t("v_add_u32 v151, s62, v131"); t("v_subrev_u32 v151, 18, v151")
            t("v_cmp_gt_u32 vcc, 18, v131"); t("s_nop 1"); t("v_cndmask_b32 v150, v151, v150, vcc")
            t("v_mov_b32 v151, s62")
            t("v_cmp_gt_u32 vcc, 21, v131"); t("s_nop 1"); t("v_cndmask_b32 v150, v151, v150, vcc")
            t("v_min_u32 v150, 124, v150")
        t("v_lshlrev_b32 v150, 7, v150"); t(f"v_add_u32 v150, {FLQ}, v150")
        XAF = FF and o.get('xaflag', True) and not o.get('ct')
        if XAF:
            t("v_add_u32 v152, 4, v150"); t("v_cmp_gt_u32 vcc, 18, v131"); t("s_nop 1"); t("v_cndmask_b32 v150, v150, v152, vcc")
        if o.get('wfpf', False):
            t("v_subrev_u32 v151, 40, v131"); t("v_lshlrev_b32 v152, 7, v151"); t(f"v_add_u32 v152, {FLW}, v152")
            t("v_cmp_gt_u32 vcc, 6, v151"); t("s_nop 1"); t("v_cndmask_b32 v150, v150, v152, vcc")
        if FF:
            t("buffer_load_dword v151, v150, s[44:47], 0 offen sc1")
            t("s_waitcnt vmcnt(0) lgkmcnt(0)")
            t("v_readfirstlane_b32 s3, v243")
            t("s_nop 3")
            t("s_cmp_lg_u32 s3, 0"); t("s_cbranch_scc1 K1_TAGD")
            t("K1_TAGP:")
            t("buffer_load_dword v243, off, s[92:95], 0 sc1"); t("s_waitcnt vmcnt(0)")
            t("v_readfirstlane_b32 s3, v243"); t("s_nop 3")
            t("s_cmp_lg_u32 s3, 0"); t("s_cbranch_scc1 K1_TAGD"); t("s_sleep 1")
            t("s_add_u32 s101, s101, 1"); t("s_cmp_lt_u32 s101, 0x400000"); t("s_cbranch_scc1 K1_TAGP")
            t("K1_TAGD:")
            t("s_barrier")
            t("s_cmp_eq_u32 s48, 0"); t("s_cbranch_scc0 K1_NOFL")
            t("v_mov_b32 v152, s3"); t("v_mov_b32 v153, s3")
            t("v_cmp_eq_u32 vcc, 0, v131"); t("s_and_saveexec_b64 s[70:71], vcc")
            t("buffer_store_dwordx2 v[152:153], off, s[44:47], s67 sc1")
            t("s_mov_b64 exec, s[70:71]")
            t("K1_NOFL:")
            t("v_cmp_ne_u32 vcc, s3, v151"); t("s_nop 1"); t("s_cmp_eq_u64 vcc, 0"); t("s_cbranch_scc1 K2_QD")
        if XAF:
            t("s_mov_b32 s66, 0")
            t("K2_QA:")
            t("s_and_b32 s60, vcc_lo, 0x3ffff"); t("s_cmp_eq_u32 s60, 0"); t("s_cbranch_scc1 K2_QAD")
            t(f"s_sleep {o.get('qsleep', 1)}")
            t("buffer_load_dword v151, v150, s[44:47], 0 offen sc1"); t("s_waitcnt vmcnt(0)")
            t("v_cmp_ne_u32 vcc, s3, v151"); t("s_nop 1")
            t("s_add_u32 s101, s101, 1"); t("s_cmp_lt_u32 s101, 0x400000"); t("s_cbranch_scc1 K2_QA")
            t("K2_QAD:")
            for n in range(3):
                for txt, _ in dma_lines(n): t(txt)
            t("K2_QP:")
            t("buffer_load_dword v151, v150, s[44:47], 0 offen sc1")
            t("s_waitcnt vmcnt(0)")
            t("v_cmp_ne_u32 vcc, s3, v151")
            t("s_nop 1")
            t("s_cmp_eq_u64 vcc, 0"); t("s_cbranch_scc1 K2_QB"); t(f"s_sleep {o.get('qsleep', 1)}")
            t("s_add_u32 s101, s101, 1"); t("s_cmp_lt_u32 s101, 0x400000"); t("s_cbranch_scc1 K2_QP")
            t("K2_QB:")
            q_dma(t)
            t("s_branch K2_QE")
            t("K2_QD:")
            t("s_mov_b32 s66, 1")
            T.extend(loads)
            t("K2_QE:")
        else:
            t("K2_QP:")
            t("buffer_load_dword v151, v150, s[44:47], 0 offen sc1")
            t("s_waitcnt vmcnt(0)")
            t("v_cmp_ne_u32 vcc, s3, v151")
            t("s_nop 1")
            t("s_cmp_eq_u64 vcc, 0"); t("s_cbranch_scc1 K2_QD"); t("s_sleep 1")
            t("s_add_u32 s101, s101, 1"); t("s_cmp_lt_u32 s101, 0x400000"); t("s_cbranch_scc1 K2_QP")
            t("K2_QD:")
            T.extend(loads)
        if o.get('wfpf', False):
            T.extend(cap_(lambda e: srd(e, 16, 's4', 's5', WF_OFF, 262144)))
            t("s_lshr_b32 s60, s2, 3"); t("s_lshl_b32 s60, s60, 13"); t("s_lshl_b32 s61, s48, 11"); t("s_add_u32 s60, s60, s61")
            t("v_lshlrev_b32 v150, 4, v131")
            t("buffer_load_dwordx4 v[224:227], v150, s[16:19], s60 offen sc1")
            t("buffer_load_dwordx4 v[228:231], v150, s[16:19], s60 offen offset:1024 sc1")
        T.extend(xcc_blk)
        T.extend(rest)
    else:
        T.remove("@KAVA")
    if FUSED and FF and o.get('xaflag', True) and not o.get('ct'):
        t("s_cmp_eq_u32 s66, 1"); t("s_cbranch_scc1 K2_W16"); t("s_waitcnt vmcnt(0)"); t("K2_W16:")
    t("s_waitcnt vmcnt(18)" if (FUSED and o.get('wfpf', False)) else "s_waitcnt vmcnt(16)")
    t("s_barrier")
    if o['stamp']: t("s_memtime s[76:77]"); t("s_memrealtime s[78:79]"); t("s_waitcnt lgkmcnt(0)")
    q_read2(t)
    L += hazard.autofix(T)
    DF = o['DF']
    ev = []; seq = [0]
    def add(tm, kind, prio=5, **kw):
        seq[0] += 1; ev.append((tm, prio, seq[0], kind, kw))
    def TT(i, n): return 128*i + n
    NT = 16
    for n in range(NT):
        slot = n % 4
        for kt in range(2):
            for j in range(8):
                f = 8*kt + j
                tm = TT(n-1, 4*f); tr = tm - 4*DF
                ring = RING + 4*(f % 4)
                off = slot*SLOT + kt*8192 + (j >> 2)*256
                add(tr, 'lds', prio=2, text=f"ds_read_b128 {vr(ring,4)}, v{KA+(j&3)} offset:{off}", tag=('K', n, f))
                if n < NT:
                    for qt in range(4):
                        acc = vr(Sreg(kt, qt), 4)
                        c = acc if j else ('0' if n == 0 else vr(NEGM+4*qt, 4))
                        add(tm+qt, 'mfma', prio=0, text=f"{M16} {acc}, {vr(ring,4)}, {ar(aQ+(qt*8+j)*4,4)}, {c}",
                            need=([('K', n, f)] if qt == 0 else []) + ([('Q', qt, j)] if n == 0 else []))
    for n in range(NT):
        slot = n % 4
        for dt in range(16):
            f = 16 + dt
            tm = TT(n, 4*f); tr = tm - 4*DF
            ring = RING + 4*(f % 4)
            for u in range(2):
                off = slot*SLOT + u*8192 + (dt >> 3)*256
                add(tr, 'lds', prio=2, text=f"ds_read_b64_tr_b16 {vr(ring+2*u,2)}, v{VA+(dt&7)} offset:{off}", tag=('V', n, dt, u))
            for qt in range(4):
                add(tm+qt, 'mfma', prio=0, text=f"{M16} {Oreg(dt,qt)}, {vr(ring,4)}, {vr(P[n%2]+4*qt,4)}, {Oreg(dt,qt)}",
                    need=[('V', n, dt, 0), ('V', n, dt, 1)] if qt == 0 else [])
        for kt in range(2):
            for el in range(16 if o.get('valu', True) else 0):
                qt, r = el >> 2, el & 3
                te = TT(n-1, (o['e0'] if kt == 0 else o['e1']) + o['estep']*el)
                reg = Sreg(kt, qt) + r
                add(te, 'valu', prio=3, text=f"v_exp_f32 v{reg}, v{reg}")
                if not o.get('pkadd'):
                    add(te+o['addd'], 'valu', prio=3, text=f"v_add_f32 v{LS+qt}, v{LS+qt}, v{reg}")
                elif r % 2 == 1:
                    add(te+o['addd'], 'valu', prio=3, text=f"v_pk_add_f32 v[{224+2*qt}:{225+2*qt}], v[{224+2*qt}:{225+2*qt}], v[{reg-1}:{reg}]")
                if r % 2 == 1:
                    add(te+o['cvtd'], 'valu', prio=4, text=f"v_cvt_pk_bf16_f32 v{P[n%2]+4*qt+2*kt+r//2}, v{reg-1}, v{reg}")
    for i in range(-1, NT-2):
        add(TT(i, o['bslot']), 'bar', prio=6, it=i)
        if i >= 0 and i + 3 < NT and o.get('dma', True):
            k = 0
            for txt, vm in dma_lines((i+3) % 4):
                tm = TT(i, o['dma0'] + o['dmastep']*k)
                if vm:
                    add(tm, 'dma', prio=7, text=txt, tile=i+3); k += 1
                else:
                    add(tm if k < 8 else TT(i, o['dma0'] + o['dmastep']*7), 'salu', prio=6 if k < 8 else 8, text=txt)
    tail_ev = []
    ev.sort(key=lambda x: (x[0], x[1], x[2]))
    W = Waiter()
    for n in (1, 2):
        for k in range(8): W.issue('vm', ('T', n))
    if FUSED and o.get('wfpf', False):
        W.issue('vm', 'PF0'); W.issue('vm', 'PF1')
    for j in range(8):
        for qt in range(4): W.issue('lgkm', ('Q', qt, j))
    its = {}
    for x in ev:
        tm, _, _, kind, kw = x
        it = max(tm // 128, -1)
        out = its.setdefault(it, [])
        if kind == 'mfma':
            n = W.need('lgkm', kw['need'])
            if n is not None: out.append(f"s_waitcnt lgkmcnt({n})")
            out.append(kw['text'])
            if tm == TT(-1, 63):
                out.append("@FIXUP")
        elif kind == 'lds':
            out.append(kw['text']); W.issue('lgkm', kw['tag'])
        elif kind == 'bar':
            n = W.need('vm', [('T', kw['it']+2)])
            if n is not None: out.append(f"s_waitcnt vmcnt({n})")
            if o.get('barrier', True) or kw['it'] < 0: out.append("s_barrier")
        elif kind == 'dma':
            out.append(kw['text']); W.issue('vm', ('T', kw['tile']))
        else:
            out.append(kw['text'])
    for i in range(8, 13):
        assert its[i] == its[i-4], (i, [(a, b) for a, b in zip(its[i], its[i-4]) if a != b][:5])
    pro = its[-1]
    fi = pro.index("@FIXUP")
    if not o.get('valu', True):
        its[15] = its[15] + ["v_add_f32 v248, v248, v248"]
    pre_valu = [x for x in pro[:fi] if x.startswith('v_exp') or x.startswith('v_add_f32') or x.startswith('v_cvt') or x.startswith('v_pk_add')]
    pro_a = [x for x in pro[:fi] if x not in pre_valu]
    fix = []
    fx = fix.append
    fx("s_nop 7")
    for qt in range(4):
        a, b = Sreg(0, qt), Sreg(1, qt)
        fx(f"v_max3_f32 v{NEGM+qt}, v{a}, v{a+1}, v{a+2}")
        fx(f"v_max3_f32 v{NEGM+qt}, v{NEGM+qt}, v{a+3}, v{b}")
        fx(f"v_max3_f32 v{NEGM+qt}, v{NEGM+qt}, v{b+1}, v{b+2}")
        fx(f"v_max_f32 v{NEGM+qt}, v{NEGM+qt}, v{b+3}")
    for sw in ("v_permlane16_swap_b32", "v_permlane32_swap_b32"):
        for qt in range(4): fx(f"v_mov_b32 v{NEGM+4+qt}, v{NEGM+qt}")
        fx("s_nop 1")
        for qt in range(4): fx(f"{sw} v{NEGM+qt}, v{NEGM+4+qt}")
        fx("s_nop 1")
        for qt in range(4): fx(f"v_max_f32 v{NEGM+qt}, v{NEGM+qt}, v{NEGM+4+qt}")
    fx("v_mbcnt_lo_u32_b32 v254, -1, 0"); fx("v_mbcnt_hi_u32_b32 v254, -1, v254")
    fx("v_lshlrev_b32 v254, 4, v254")
    fx(f"s_lshl_b32 s60, s48, 10"); fx(f"s_add_u32 s60, s60, {MX}")
    fx("v_add_u32 v255, s60, v254")
    fx(f"ds_write_b128 v255, {vr(NEGM,4)}")
    fx("s_xor_b32 s60, s60, 2048")
    fx("v_add_u32 v255, s60, v254")
    fx("s_waitcnt lgkmcnt(0)")
    fx("s_barrier")
    fx(f"ds_read_b128 {vr(NEGM+4,4)}, v255")
    fx("s_waitcnt lgkmcnt(0)")
    for qt in range(4): fx(f"v_max_f32 v{NEGM+8+qt}, v{NEGM+qt}, v{NEGM+4+((qt+2)&3)}")
    fx(f"v_mov_b32 v{MREF}, v{NEGM+8}"); fx(f"v_mov_b32 v{MREF+1}, v{NEGM+9}")
    for kt in range(2):
        for qt in range(4):
            for r in range(4): fx(f"v_sub_f32 v{Sreg(kt,qt)+r}, v{Sreg(kt,qt)+r}, v{NEGM+8+qt}")
    for qt in range(4): fx(f"v_mov_b32 v{254}, v{NEGM+8+qt}") if False else None
    for qt in (3, 1, 0):
        for r in range(4): fx(f"v_sub_f32 v{NEGM+4*qt+r}, 0, v{NEGM+8+qt}") if qt != 2 else None
    fx(f"v_sub_f32 v254, 0, v{NEGM+10}")
    for r in range(4): fx(f"v_mov_b32 v{NEGM+8+r}, v254")
    L += hazard.autofix(pro_a + fix + pre_valu + pro[fi+1:])
    if o['stamp']:
        e("s_memtime s[24:25]")
    e("K2_LOOP:")
    body = {u: its[4+u] for u in range(4)}
    L += body[0]
    e("s_cmp_eq_u32 s58, 3")
    e("s_cbranch_scc1 K2_EPI")
    L += body[1]; L += body[2]; L += body[3]
    e("s_add_u32 s58, s58, 1")
    e("s_branch K2_LOOP")
    e("K2_EPI:")
    if o['stamp']:
        e("s_memtime s[26:27]"); e("s_waitcnt lgkmcnt(0)"); e("s_sub_u32 s101, s26, s24"); e("s_sub_u32 s100, s24, s76")
    if FUSED:
        TA, TB, TC = (248, 249, 250) if o.get('pkadd') else (224, 225, 226)
        pre13 = []
        p = pre13.append
        p("s_lshl_b32 s60, s52, 7"); p("s_lshl_b32 s61, s53, 5"); p("s_add_u32 s60, s60, s61"); p("s_min_u32 s60, s60, 3968")
        p("s_mul_i32 s61, s51, 4000"); p("s_add_u32 s60, s60, s61")
        sh = 5 if o.get('ct') else 6
        if o.get('ct'):
            p("s_lshr_b32 s62, s60, 5")
        p("s_max_u32 s61, s60, 2"); p("s_sub_u32 s61, s61, 2"); p(f"s_lshr_b32 s61, s61, {sh}")
        p("s_add_u32 s60, s60, 33"); p("s_min_u32 s60, s60, 7999"); p(f"s_lshr_b32 s60, s60, {sh}")
        p(f"v_mbcnt_lo_u32_b32 v{TA}, -1, 0"); p(f"v_mbcnt_hi_u32_b32 v{TA}, -1, v{TA}")
        p(f"v_min_u32 v{TB}, 7, v{TA}"); p(f"v_lshlrev_b32 v{TB}, 7, v{TB}"); p(f"v_add_u32 v{TB}, {FLW - 256}, v{TB}")
        p("s_lshl_b32 s61, s61, 7"); p(f"s_add_u32 s61, s61, {FLU}"); p(f"v_mov_b32 v{TC}, s61")
        p(f"v_cmp_eq_u32 vcc, 0, v{TA}"); p("s_nop 1"); p(f"v_cndmask_b32 v{TB}, v{TB}, v{TC}, vcc")
        p("s_lshl_b32 s60, s60, 7"); p(f"s_add_u32 s60, s60, {FLU}"); p(f"v_mov_b32 v{TC}, s60")
        p(f"v_cmp_eq_u32 vcc, 1, v{TA}"); p("s_nop 1"); p(f"v_cndmask_b32 v{TB}, v{TB}, v{TC}, vcc")
        if o.get('ct'):
            p("s_lshl_b32 s62, s62, 7"); p(f"s_add_u32 s62, s62, {FLU}"); p(f"v_mov_b32 v{TC}, s62")
            p(f"v_cmp_eq_u32 vcc, 8, v{TA}"); p("s_nop 1"); p(f"v_cndmask_b32 v{TB}, v{TB}, v{TC}, vcc")
        p(f"buffer_load_dword v{TC}, v{TB}, s[44:47], 0 offen sc1")
        L += hazard.autofix(pre13)
        i13 = list(its[13])
        bi = i13.index("s_barrier")
        assert i13[bi-1] == "s_waitcnt vmcnt(0)", i13[bi-3:bi+1]
        i13[bi-1] = "s_waitcnt vmcnt(1)"
        chk = ["s_waitcnt vmcnt(0)", "K2_TP:", f"v_cmp_ne_u32 vcc, s3, v{TC}", "s_nop 1", "s_cmp_eq_u64 vcc, 0", "s_cbranch_scc1 K2_TD", "s_sleep 1",
               f"buffer_load_dword v{TC}, v{TB}, s[44:47], 0 offen sc1", "s_waitcnt vmcnt(0)", "s_add_u32 s101, s101, 1", "s_cmp_lt_u32 s101, 0x400000", "s_cbranch_scc1 K2_TP", "K2_TD:"]
        L += i13 + chk
    else:
        L += its[13]
    e("s_cmp_eq_u32 s59, 3")
    e("s_cbranch_scc0 K2_NOMASK")
    for r in range(16): e(f"v_mov_b32 v{NEGM+r}, 0xf149f2ca")
    e("s_nop 1")
    e("K2_NOMASK:")
    import gen_tail
    tail, resume = gen_tail.gen_tail(o, its[14], its[15], W)
    L += tail
    e("s_branch K2_END")
    T = []; t = T.append
    M_, MN, AL = NEGM, NEGM + 4, NEGM + 8
    t("K2_SLOW:")
    t("s_mov_b32 s54, 1")
    t("s_waitcnt vmcnt(0) lgkmcnt(0)")
    t("s_barrier")
    t("v_mbcnt_lo_u32_b32 v131, -1, 0"); t("v_mbcnt_hi_u32_b32 v131, -1, v131")
    dv_setup(t)
    S_2 = lambda fn: (lambda b: (fn(b.append), T.extend(b)))([])
    S_2(lambda e: srd(e, 12, 's4', 's5', QF_OFF, 500*8192))
    q_dma(t)
    kava_setup(t)
    for r in range(128): t(f"v_mov_b32 v{O+r}, 0")
    for r in range(128): t(f"v_accvgpr_write_b32 a{aO+r}, 0")
    for k in range(4): t(f"v_mov_b32 v{LS+k}, 0"); t(f"v_mov_b32 v{M_+k}, 0xf149f2ca")
    t("s_lshl_b32 s56, s50, 16"); t("s_lshl_b32 s60, s49, 13"); t("s_add_u32 s56, s56, s60")
    t("s_mov_b32 s57, 0"); t("s_mov_b32 s58, 0")
    t("s_waitcnt vmcnt(0)")
    t("s_barrier")
    q_read(t); q_read2(t)
    t("s_waitcnt lgkmcnt(0)")
    t("K2_SL_LOOP:")
    t("s_barrier")
    for txt, _ in dma_lines(0): t(txt)
    t("s_waitcnt vmcnt(0)")
    t("s_barrier")
    t("s_lshl_b32 s60, s58, 14"); t("s_cmp_lt_u32 s60, s55")
    t("s_cbranch_scc0 K2_SL_NEXT")
    for kt in range(2):
        for j in range(8):
            t(f"ds_read_b128 {vr(RING,4)}, v{KA+(j&3)} offset:{kt*8192 + (j>>2)*256}")
            t("s_waitcnt lgkmcnt(0)")
            for qt in range(4):
                acc = vr(Sreg(kt, qt), 4)
                t(f"{M16} {acc}, {vr(RING,4)}, {ar(aQ+(qt*8+j)*4,4)}, {acc if j else '0'}")
            t("s_nop 3")
    t("s_nop 7")
    for qt in range(4):
        a, b = Sreg(0, qt), Sreg(1, qt)
        t(f"v_max3_f32 v{MN+qt}, v{a}, v{a+1}, v{a+2}")
        t(f"v_max3_f32 v{MN+qt}, v{MN+qt}, v{a+3}, v{b}")
        t(f"v_max3_f32 v{MN+qt}, v{MN+qt}, v{b+1}, v{b+2}")
        t(f"v_max3_f32 v{MN+qt}, v{MN+qt}, v{b+3}, v{M_+qt}")
    for sw in ("v_permlane16_swap_b32", "v_permlane32_swap_b32"):
        for qt in range(4): t(f"v_mov_b32 v{AL+qt}, v{MN+qt}")
        t("s_nop 1")
        for qt in range(4): t(f"{sw} v{MN+qt}, v{AL+qt}")
        t("s_nop 1")
        for qt in range(4): t(f"v_max_f32 v{MN+qt}, v{MN+qt}, v{AL+qt}")
    for qt in range(4):
        t(f"v_sub_f32 v{AL+qt}, v{M_+qt}, v{MN+qt}"); t(f"v_exp_f32 v{AL+qt}, v{AL+qt}"); t(f"v_mov_b32 v{M_+qt}, v{MN+qt}")
    t("s_nop 0")
    for qt in range(4):
        t(f"v_mul_f32 v{LS+qt}, v{LS+qt}, v{AL+qt}")
        for kt in range(2):
            for r in range(4):
                reg = Sreg(kt, qt) + r
                t(f"v_sub_f32 v{reg}, v{reg}, v{M_+qt}"); t(f"v_exp_f32 v{reg}, v{reg}"); t("s_nop 0")
                t(f"v_add_f32 v{LS+qt}, v{LS+qt}, v{reg}")
            for h2 in range(2):
                t(f"v_cvt_pk_bf16_f32 v{P[0]+4*qt+2*kt+h2}, v{Sreg(kt,qt)+2*h2}, v{Sreg(kt,qt)+2*h2+1}")
    def rescale():
        for dt in range(16):
            for qt in range(2):
                for r in range(4): t(f"v_mul_f32 v{O+(dt*2+qt)*4+r}, v{O+(dt*2+qt)*4+r}, v{AL+qt}")
                for r in range(4):
                    a = aO + (dt*2+qt)*4 + r
                    t(f"v_accvgpr_read_b32 v{NEGM+12+r}, a{a}")
                for r in range(4): t(f"v_mul_f32 v{NEGM+12+r}, v{NEGM+12+r}, v{AL+2+qt}")
                for r in range(4):
                    a = aO + (dt*2+qt)*4 + r
                    t(f"v_accvgpr_write_b32 a{a}, v{NEGM+12+r}")
    rescale()
    t("s_nop 1")
    for dt in range(16):
        for u in range(2):
            t(f"ds_read_b64_tr_b16 {vr(RING+2*u,2)}, v{VA+(dt&7)} offset:{u*8192 + (dt>>3)*256}")
        t("s_waitcnt lgkmcnt(0)")
        for qt in range(4):
            t(f"{M16} {Oreg(dt,qt)}, {vr(RING,4)}, {vr(P[0]+4*qt,4)}, {Oreg(dt,qt)}")
        t("s_nop 3")
    t("s_nop 7")
    t("K2_SL_NEXT:")
    t("s_add_u32 s58, s58, 1"); t("s_cmp_lt_u32 s58, 16"); t("s_cbranch_scc1 K2_SL_LOOP")
    t("s_barrier")
    t("v_mbcnt_lo_u32_b32 v254, -1, 0"); t("v_mbcnt_hi_u32_b32 v254, -1, v254"); t("v_lshlrev_b32 v254, 4, v254")
    t(f"s_lshl_b32 s60, s48, 10"); t(f"s_add_u32 s60, s60, {MX}"); t("v_add_u32 v255, s60, v254")
    t(f"ds_write_b128 v255, {vr(M_,4)}")
    t("s_xor_b32 s60, s60, 2048"); t("v_add_u32 v255, s60, v254")
    t("s_waitcnt lgkmcnt(0)"); t("s_barrier")
    t(f"ds_read_b128 {vr(MN,4)}, v255"); t("s_waitcnt lgkmcnt(0)")
    for qt in range(4): t(f"v_max_f32 v{RING+qt}, v{M_+qt}, v{MN+((qt+2)&3)}")
    for qt in range(4):
        t(f"v_sub_f32 v{AL+qt}, v{M_+qt}, v{RING+qt}"); t(f"v_exp_f32 v{AL+qt}, v{AL+qt}")
    t("s_nop 0")
    for qt in range(4): t(f"v_mul_f32 v{LS+qt}, v{LS+qt}, v{AL+qt}")
    t(f"v_mov_b32 v{MREF}, v{RING}"); t(f"v_mov_b32 v{MREF+1}, v{RING+1}")
    rescale()
    t("s_barrier")
    L += hazard.autofix(T + resume)
    e("K2_END:")
    e("s_endpgm")
    i0 = L.index("K2_LOOP:"); i1 = L.index("K2_EPI:")
    lin = L[i0-60:i1] + L[i0:i1] + L[i1:i1+700]
    errs = hazard.check(lin, 'k2f')
    return L, ([] if FUSED else kernel_desc(name, 512, 256)), errs
```

```python
from gen_common import *
import hazard, struct
SLOT = 16384
M16 = "v_mfma_f32_16x16x32_bf16"
fb = lambda x: hex(struct.unpack('<I', struct.pack('<f', x))[0])
EXT = 131072
MX = EXT
OWN = EXT + 4096
OWNML = EXT + 20480
ACT = 0

def gen_k2f(opt=None):
    o = dict(DF=3, stamp=False, bslot=8, dma0=10, dmastep=4, e0=37, e1=93, estep=4, cvtd=1, addd=1, fused=True)
    if opt: o.update(opt)
    name = 'attn_kernel'
    L = []; e = L.append
    O = 0; S = 128; P = [160, 176]; NEGM = 192; RING = 208; KA = 232; VA = 236; DV = 244; LS = 248; MREF = 252
    aQ = 0; aO = 128
    def Oreg(dt, qt): return vr(O + (dt*2+qt)*4, 4) if qt < 2 else ar(aO + (dt*2+qt-2)*4, 4)
    def Sreg(kt, qt): return S + (kt*4+qt)*4
    FUSED = o.get('fusedk')
    CS = ' sc1' if (FUSED and o.get('csc1', True)) else ''
    if not FUSED:
        L += kernel_header(name)
        e("s_cmp_ge_u32 s2, 256")
        e("s_cbranch_scc1 K2_END")
    FF = FUSED and o.get('fastfin')
    if not FF:
        e("s_load_dwordx2 s[4:5], s[0:1], 88")
        e("s_load_dwordx2 s[6:7], s[0:1], 80")
        e("s_load_dwordx2 s[36:37], s[0:1], 0")
        e("s_load_dwordx2 s[32:33], s[0:1], 48")
        e("s_load_dwordx2 s[40:41], s[0:1], 72")
    if o['stamp']:
        e("s_memtime s[72:73]"); e("s_memrealtime s[74:75]")
    T = []; t = T.append
    if FUSED:
        t("v_mbcnt_lo_u32_b32 v131, -1, 0"); t("v_mbcnt_hi_u32_b32 v131, -1, v131")
    else:
        t("v_lshrrev_b32 v130, 6, v0")
        t("v_and_b32 v131, 63, v0")
        t("v_readfirstlane_b32 s48, v130")
    t("s_and_b32 s60, s2, 7")
    t("s_lshr_b32 s61, s2, 3")
    t("s_lshr_b32 s51, s60, 2")
    t("s_and_b32 s53, s61, 3")
    t("s_lshr_b32 s61, s61, 2")
    t("s_and_b32 s52, s60, 3")
    t("s_lshl_b32 s52, s52, 3")
    t("s_add_u32 s52, s52, s61")
    t("s_and_b32 s49, s48, 1")
    t("s_lshr_b32 s50, s48, 1")
    t("s_lshl_b32 s54, s53, 5")
    t("s_lshl_b32 s60, s50, 4")
    t("s_add_u32 s54, s54, s60")
    t("s_max_u32 s60, s53, 1")
    t("s_sub_u32 s60, s60, 1")
    t("s_sub_u32 s54, s54, s60")
    t("s_min_u32 s60, s53, 1")
    t("s_and_b32 s60, s60, s50")
    t("s_sub_u32 s55, 16, s60")
    t("s_lshl_b32 s55, s55, 14")
    t("s_cmp_eq_u32 s60, 1")
    t("s_cselect_b32 s59, 3, 0xffff")
    t("s_lshl_b32 s54, s54, 14")
    t("s_mul_i32 s60, s51, 2048000")
    t("s_add_u32 s54, s54, s60")
    def dv_setup(t):
        t("v_and_b32 v132, 15, v131")
        t("v_lshrrev_b32 v133, 4, v131")
        t("v_lshrrev_b32 v134, 5, v131")
        t("v_and_b32 v135, 31, v131")
        t("s_lshl_b32 s60, s49, 13")
        for k in range(4):
            t(f"v_add_u32 v136, {2*k}, v134")
            t("v_lshlrev_b32 v136, 1, v136")
            t("v_xor_b32 v136, v135, v136")
            t("v_lshlrev_b32 v136, 4, v136")
            t("v_lshl_add_u32 v136, v134, 9, v136")
            t(f"v_add_u32 v{DV+k}, s60, v136")
    dv_setup(t)
    t("s_waitcnt lgkmcnt(0)")
    def S_(fn):
        buf = []; fn(buf.append); T.extend(buf)
    S_(lambda e: srd(e, 8, 's4', 's5', 's54', 's55'))
    S_(lambda e: srd(e, 12, 's4', 's5', QF_OFF, 500*8192))
    t("s_getreg_b32 s63, hwreg(HW_REG_XCC_ID, 0, 3)")
    t("s_or_b32 s63, s63, 8")
    S_(lambda e: srd(e, 44, 's4', 's5', FL_OFF, FL_SIZE if FUSED else 8192))
    t("s_lshl_b32 s65, s51, 5"); t("s_add_u32 s65, s65, s52")
    xcc0 = len(T)
    t("s_cmp_eq_u32 s48, 0"); t("s_cbranch_scc0 K2_NOXCC")
    t("s_lshl_b32 s60, s65, 7"); t("s_lshl_b32 s61, s53, 2"); t("s_add_u32 s60, s60, s61")
    if FUSED:
        t("s_add_u32 s60, s60, 16"); t("s_xor_b32 s61, s63, s3"); t("v_mov_b32 v137, s61")
    else:
        t("v_mov_b32 v137, s63")
    t("v_cmp_eq_u32 vcc, 0, v131"); t("s_and_saveexec_b64 s[70:71], vcc")
    t("buffer_store_dword v137, off, s[44:47], s60 sc1")
    t("s_mov_b64 exec, s[70:71]")
    t("K2_NOXCC:")
    xcc_blk = T[xcc0:]
    if FUSED: del T[xcc0:]
    t("s_lshl_b32 s56, s50, 16"); t("s_lshl_b32 s60, s49, 13"); t("s_add_u32 s56, s56, s60")
    t("s_mov_b32 s57, 0"); t("s_mov_b32 s54, 0")
    def cap_(fn):
        buf = []; fn(buf.append); return buf
    def dma_lines(slot):
        r = []
        for k in range(8):
            if k % 4 == 0:
                r.append((f"s_add_u32 m0, s56, {slot*SLOT + (k//4)*4096:#x}", False))
                if k: r.append(("s_add_u32 s57, s57, 4096", False))
                else: r.append(("s_nop 0", False))
            r.append((f"buffer_load_dwordx4 v{DV+k%4}, s[8:11], s57 offen offset:{(k%4)*1024}{CS} lds", True))
        r.append((f"s_add_u32 s57, s57, {SLOT-4096}", False))
        return r
    pre_dma = len(T)
    for txt, _ in dma_lines(0): t(txt)
    QST = [49152, 114688, 131072, 147456]
    def q_dma(t):
        t("v_lshlrev_b32 v137, 4, v131")
        t("s_mul_i32 s60, s51, 250"); t("s_lshl_b32 s61, s52, 3"); t("s_add_u32 s60, s60, s61")
        t("s_lshl_b32 s61, s48, 1"); t("s_add_u32 s60, s60, s61"); t("s_lshl_b32 s60, s60, 13")
        t("s_lshl_b32 s61, s48, 14"); t("s_add_u32 s61, s61, 98304"); t("s_cmp_eq_u32 s48, 0"); t("s_cselect_b32 s61, 49152, s61")
        for g in range(4):
            t(f"s_add_u32 m0, s61, {g*4096}")
            if g: t("s_add_u32 s60, s60, 4096")
            else: t("s_nop 0")
            for k in range(4):
                t(f"buffer_load_dwordx4 v137, s[12:15], s60 offen offset:{k*1024}{CS} lds")
    def q_read(t):
        t("v_lshlrev_b32 v137, 4, v131")
        for qt in range(4):
            t(f"s_lshl_b32 s60, s50, 1"); t(f"s_add_u32 s60, s60, {qt}"); t("s_and_b32 s60, s60, 3")
            t("s_lshl_b32 s61, s49, 2"); t("s_add_u32 s60, s60, s61")
            t("s_lshr_b32 s61, s60, 1"); t("s_lshl_b32 s62, s61, 14"); t("s_add_u32 s62, s62, 98304")
            t("s_cmp_eq_u32 s61, 0"); t("s_cselect_b32 s62, 49152, s62")
            t("s_and_b32 s60, s60, 1"); t("s_lshl_b32 s60, s60, 13"); t("s_add_u32 s62, s62, s60")
            t(f"v_add_u32 v{140+qt}, s62, v137")
    def q_read2(t):
        for j in range(8):
            for qt in range(4):
                t(f"ds_read_b128 {ar(aQ+(qt*8+j)*4,4)}, v{140+qt} offset:{j*1024}")
    q_dma(t)
    for n in (1, 2):
        for txt, _ in dma_lines(n): t(txt)
    def kava_setup(t):
        t("v_and_b32 v136, 7, v132"); t("v_lshlrev_b32 v136, 1, v136")
        t("v_lshlrev_b32 v138, 9, v132")
        t("s_lshl_b32 s60, s50, 16"); t("v_add_u32 v138, s60, v138")
        for jj in range(4):
            t(f"v_add_u32 v139, {4*jj}, v133")
            t("v_xor_b32 v139, v139, v136")
            t(f"v_lshl_add_u32 v{KA+jj}, v139, 4, v138")
        t("v_lshrrev_b32 v136, 2, v132")
        t("v_lshl_add_u32 v136, v133, 2, v136")
        t("v_lshlrev_b32 v138, 9, v136")
        t("v_add_u32 v138, s60, v138")
        t("v_and_b32 v139, 1, v132"); t("v_lshl_add_u32 v138, v139, 3, v138")
        t("v_and_b32 v136, 7, v136"); t("v_lshlrev_b32 v136, 1, v136")
        t("v_bfe_u32 v139, v132, 1, 1")
        for dd in range(8):
            t(f"v_add_u32 v140, {2*dd}, v139")
            t("v_xor_b32 v140, v140, v136")
            t(f"v_lshl_add_u32 v{VA+dd}, v140, 4, v138")
    t("@KAVA")
    kava_setup(t)
    for r in range(128): t(f"v_mov_b32 v{O+r}, 0")
    for r in range(128): t(f"v_accvgpr_write_b32 a{aO+r}, 0")
    for k in range(4): t(f"v_mov_b32 v{LS+k}, 0")
    if o.get('pkadd'):
        for k in range(8): t(f"v_mov_b32 v{224+k}, 0")
    t("s_mov_b32 s58, 0")
    q_read(t)
    if FUSED:
        i_kava = T.index("@KAVA")
        loads = T[pre_dma:i_kava]
        rest = T[i_kava+1:]
        T[:] = T[:pre_dma]
        if o.get('ct'):
            t("s_lshl_b32 s60, s53, 5"); t("s_max_u32 s61, s53, 1"); t("s_sub_u32 s61, s61, 1"); t("s_sub_u32 s60, s60, s61")
            t("s_lshl_b32 s62, s52, 2"); t("s_sub_u32 s62, s62, 32")
            t("v_add_u32 v150, s60, v131"); t("v_add_u32 v151, s62, v131")
            t("v_cmp_gt_u32 vcc, 32, v131"); t("s_nop 1"); t("v_cndmask_b32 v150, v151, v150, vcc")
            t("s_lshl_b32 s62, s52, 2"); t("v_mov_b32 v151, s62")
            t("v_cmp_gt_u32 vcc, 36, v131"); t("s_nop 1"); t("v_cndmask_b32 v150, v151, v150, vcc")
            t("v_min_u32 v150, 124, v150")
            t("s_mul_i32 s61, s51, 125"); t("v_add_u32 v150, s61, v150")
        else:
            t("s_lshl_b32 s60, s53, 5"); t("s_max_u32 s61, s53, 1"); t("s_sub_u32 s61, s61, 1"); t("s_sub_u32 s60, s60, s61")
            t("s_lshl_b32 s60, s60, 5"); t("s_mul_i32 s61, s51, 4000"); t("s_add_u32 s60, s60, s61"); t("s_lshr_b32 s60, s60, 6")
            t("s_lshl_b32 s62, s52, 7"); t("s_add_u32 s62, s62, s61"); t("s_lshr_b32 s62, s62, 6")
            t("v_add_u32 v150, s60, v131")
            t("v_add_u32 v151, s62, v131"); t("v_subrev_u32 v151, 18, v151")
            t("v_cmp_gt_u32 vcc, 18, v131"); t("s_nop 1"); t("v_cndmask_b32 v150, v151, v150, vcc")
            t("v_mov_b32 v151, s62")
            t("v_cmp_gt_u32 vcc, 21, v131"); t("s_nop 1"); t("v_cndmask_b32 v150, v151, v150, vcc")
            t("v_min_u32 v150, 124, v150")
        t("v_lshlrev_b32 v150, 7, v150"); t(f"v_add_u32 v150, {FLQ}, v150")
        XAF = FF and o.get('xaflag', True) and not o.get('ct')
        if XAF:
            t("v_add_u32 v152, 4, v150"); t("v_cmp_gt_u32 vcc, 18, v131"); t("s_nop 1"); t("v_cndmask_b32 v150, v150, v152, vcc")
        if o.get('wfpf', False):
            t("v_subrev_u32 v151, 40, v131"); t("v_lshlrev_b32 v152, 7, v151"); t(f"v_add_u32 v152, {FLW}, v152")
            t("v_cmp_gt_u32 vcc, 6, v151"); t("s_nop 1"); t("v_cndmask_b32 v150, v150, v152, vcc")
        if FF:
            t("buffer_load_dword v151, v150, s[44:47], 0 offen sc1")
            t("s_waitcnt vmcnt(0) lgkmcnt(0)")
            t("v_readfirstlane_b32 s3, v243")
            t("s_nop 3")
            t("s_cmp_lg_u32 s3, 0"); t("s_cbranch_scc1 K1_TAGD")
            t("K1_TAGP:")
            t("buffer_load_dword v243, off, s[92:95], 0 sc1"); t("s_waitcnt vmcnt(0)")
            t("v_readfirstlane_b32 s3, v243"); t("s_nop 3")
            t("s_cmp_lg_u32 s3, 0"); t("s_cbranch_scc1 K1_TAGD"); t("s_sleep 1")
            t("s_add_u32 s101, s101, 1"); t("s_cmp_lt_u32 s101, 0x400000"); t("s_cbranch_scc1 K1_TAGP")
            t("K1_TAGD:")
            t("s_barrier")
            t("s_cmp_eq_u32 s48, 0"); t("s_cbranch_scc0 K1_NOFL")
            t("v_mov_b32 v152, s3"); t("v_mov_b32 v153, s3")
            t("v_cmp_eq_u32 vcc, 0, v131"); t("s_and_saveexec_b64 s[70:71], vcc")
            t("buffer_store_dwordx2 v[152:153], off, s[44:47], s67 sc1")
            t("s_mov_b64 exec, s[70:71]")
            t("K1_NOFL:")
            t("v_cmp_ne_u32 vcc, s3, v151"); t("s_nop 1"); t("s_cmp_eq_u64 vcc, 0"); t("s_cbranch_scc1 K2_QD")
        if XAF:
            t("s_mov_b32 s66, 0")
            t("K2_QA:")
            t("s_and_b32 s60, vcc_lo, 0x3ffff"); t("s_cmp_eq_u32 s60, 0"); t("s_cbranch_scc1 K2_QAD")
            t(f"s_sleep {o.get('qsleep', 1)}")
            t("buffer_load_dword v151, v150, s[44:47], 0 offen sc1"); t("s_waitcnt vmcnt(0)")
            t("v_cmp_ne_u32 vcc, s3, v151"); t("s_nop 1")
            t("s_add_u32 s101, s101, 1"); t("s_cmp_lt_u32 s101, 0x400000"); t("s_cbranch_scc1 K2_QA")
            t("K2_QAD:")
            for n in range(3):
                for txt, _ in dma_lines(n): t(txt)
            t("K2_QP:")
            t("buffer_load_dword v151, v150, s[44:47], 0 offen sc1")
            t("s_waitcnt vmcnt(0)")
            t("v_cmp_ne_u32 vcc, s3, v151")
            t("s_nop 1")
            t("s_cmp_eq_u64 vcc, 0"); t("s_cbranch_scc1 K2_QB"); t(f"s_sleep {o.get('qsleep', 1)}")
            t("s_add_u32 s101, s101, 1"); t("s_cmp_lt_u32 s101, 0x400000"); t("s_cbranch_scc1 K2_QP")
            t("K2_QB:")
            q_dma(t)
            t("s_branch K2_QE")
            t("K2_QD:")
            t("s_mov_b32 s66, 1")
            T.extend(loads)
            t("K2_QE:")
        else:
            t("K2_QP:")
            t("buffer_load_dword v151, v150, s[44:47], 0 offen sc1")
            t("s_waitcnt vmcnt(0)")
            t("v_cmp_ne_u32 vcc, s3, v151")
            t("s_nop 1")
            t("s_cmp_eq_u64 vcc, 0"); t("s_cbranch_scc1 K2_QD"); t("s_sleep 1")
            t("s_add_u32 s101, s101, 1"); t("s_cmp_lt_u32 s101, 0x400000"); t("s_cbranch_scc1 K2_QP")
            t("K2_QD:")
            T.extend(loads)
        if o.get('wfpf', False):
            T.extend(cap_(lambda e: srd(e, 16, 's4', 's5', WF_OFF, 262144)))
            t("s_lshr_b32 s60, s2, 3"); t("s_lshl_b32 s60, s60, 13"); t("s_lshl_b32 s61, s48, 11"); t("s_add_u32 s60, s60, s61")
            t("v_lshlrev_b32 v150, 4, v131")
            t("buffer_load_dwordx4 v[224:227], v150, s[16:19], s60 offen sc1")
            t("buffer_load_dwordx4 v[228:231], v150, s[16:19], s60 offen offset:1024 sc1")
        T.extend(xcc_blk)
        T.extend(rest)
    else:
        T.remove("@KAVA")
    if FUSED and FF and o.get('xaflag', True) and not o.get('ct'):
        t("s_cmp_eq_u32 s66, 1"); t("s_cbranch_scc1 K2_W16"); t("s_waitcnt vmcnt(0)"); t("K2_W16:")
    t("s_waitcnt vmcnt(18)" if (FUSED and o.get('wfpf', False)) else "s_waitcnt vmcnt(16)")
    t("s_barrier")
    if o['stamp']: t("s_memtime s[76:77]"); t("s_memrealtime s[78:79]"); t("s_waitcnt lgkmcnt(0)")
    q_read2(t)
    L += hazard.autofix(T)
    DF = o['DF']
    ev = []; seq = [0]
    def add(tm, kind, prio=5, **kw):
        seq[0] += 1; ev.append((tm, prio, seq[0], kind, kw))
    def TT(i, n): return 128*i + n
    NT = 16
    for n in range(NT):
        slot = n % 4
        for kt in range(2):
            for j in range(8):
                f = 8*kt + j
                tm = TT(n-1, 4*f); tr = tm - 4*DF
                ring = RING + 4*(f % 4)
                off = slot*SLOT + kt*8192 + (j >> 2)*256
                add(tr, 'lds', prio=2, text=f"ds_read_b128 {vr(ring,4)}, v{KA+(j&3)} offset:{off}", tag=('K', n, f))
                if n < NT:
                    for qt in range(4):
                        acc = vr(Sreg(kt, qt), 4)
                        c = acc if j else ('0' if n == 0 else vr(NEGM+4*qt, 4))
                        add(tm+qt, 'mfma', prio=0, text=f"{M16} {acc}, {vr(ring,4)}, {ar(aQ+(qt*8+j)*4,4)}, {c}",
                            need=([('K', n, f)] if qt == 0 else []) + ([('Q', qt, j)] if n == 0 else []))
    for n in range(NT):
        slot = n % 4
        for dt in range(16):
            f = 16 + dt
            tm = TT(n, 4*f); tr = tm - 4*DF
            ring = RING + 4*(f % 4)
            for u in range(2):
                off = slot*SLOT + u*8192 + (dt >> 3)*256
                add(tr, 'lds', prio=2, text=f"ds_read_b64_tr_b16 {vr(ring+2*u,2)}, v{VA+(dt&7)} offset:{off}", tag=('V', n, dt, u))
            for qt in range(4):
                add(tm+qt, 'mfma', prio=0, text=f"{M16} {Oreg(dt,qt)}, {vr(ring,4)}, {vr(P[n%2]+4*qt,4)}, {Oreg(dt,qt)}",
                    need=[('V', n, dt, 0), ('V', n, dt, 1)] if qt == 0 else [])
        for kt in range(2):
            for el in range(16 if o.get('valu', True) else 0):
                qt, r = el >> 2, el & 3
                te = TT(n-1, (o['e0'] if kt == 0 else o['e1']) + o['estep']*el)
                reg = Sreg(kt, qt) + r
                add(te, 'valu', prio=3, text=f"v_exp_f32 v{reg}, v{reg}")
                if not o.get('pkadd'):
                    add(te+o['addd'], 'valu', prio=3, text=f"v_add_f32 v{LS+qt}, v{LS+qt}, v{reg}")
                elif r % 2 == 1:
                    add(te+o['addd'], 'valu', prio=3, text=f"v_pk_add_f32 v[{224+2*qt}:{225+2*qt}], v[{224+2*qt}:{225+2*qt}], v[{reg-1}:{reg}]")
                if r % 2 == 1:
                    add(te+o['cvtd'], 'valu', prio=4, text=f"v_cvt_pk_bf16_f32 v{P[n%2]+4*qt+2*kt+r//2}, v{reg-1}, v{reg}")
    for i in range(-1, NT-2):
        add(TT(i, o['bslot']), 'bar', prio=6, it=i)
        if i >= 0 and i + 3 < NT and o.get('dma', True):
            k = 0
            for txt, vm in dma_lines((i+3) % 4):
                tm = TT(i, o['dma0'] + o['dmastep']*k)
                if vm:
                    add(tm, 'dma', prio=7, text=txt, tile=i+3); k += 1
                else:
                    add(tm if k < 8 else TT(i, o['dma0'] + o['dmastep']*7), 'salu', prio=6 if k < 8 else 8, text=txt)
    tail_ev = []
    ev.sort(key=lambda x: (x[0], x[1], x[2]))
    W = Waiter()
    for n in (1, 2):
        for k in range(8): W.issue('vm', ('T', n))
    if FUSED and o.get('wfpf', False):
        W.issue('vm', 'PF0'); W.issue('vm', 'PF1')
    for j in range(8):
        for qt in range(4): W.issue('lgkm', ('Q', qt, j))
    its = {}
    for x in ev:
        tm, _, _, kind, kw = x
        it = max(tm // 128, -1)
        out = its.setdefault(it, [])
        if kind == 'mfma':
            n = W.need('lgkm', kw['need'])
            if n is not None: out.append(f"s_waitcnt lgkmcnt({n})")
            out.append(kw['text'])
            if tm == TT(-1, 63):
                out.append("@FIXUP")
        elif kind == 'lds':
            out.append(kw['text']); W.issue('lgkm', kw['tag'])
        elif kind == 'bar':
            n = W.need('vm', [('T', kw['it']+2)])
            if n is not None: out.append(f"s_waitcnt vmcnt({n})")
            if o.get('barrier', True) or kw['it'] < 0: out.append("s_barrier")
        elif kind == 'dma':
            out.append(kw['text']); W.issue('vm', ('T', kw['tile']))
        else:
            out.append(kw['text'])
    for i in range(8, 13):
        assert its[i] == its[i-4], (i, [(a, b) for a, b in zip(its[i], its[i-4]) if a != b][:5])
    pro = its[-1]
    fi = pro.index("@FIXUP")
    if not o.get('valu', True):
        its[15] = its[15] + ["v_add_f32 v248, v248, v248"]
    pre_valu = [x for x in pro[:fi] if x.startswith('v_exp') or x.startswith('v_add_f32') or x.startswith('v_cvt') or x.startswith('v_pk_add')]
    pro_a = [x for x in pro[:fi] if x not in pre_valu]
    fix = []
    fx = fix.append
    fx("s_nop 7")
    for qt in range(4):
        a, b = Sreg(0, qt), Sreg(1, qt)
        fx(f"v_max3_f32 v{NEGM+qt}, v{a}, v{a+1}, v{a+2}")
        fx(f"v_max3_f32 v{NEGM+qt}, v{NEGM+qt}, v{a+3}, v{b}")
        fx(f"v_max3_f32 v{NEGM+qt}, v{NEGM+qt}, v{b+1}, v{b+2}")
        fx(f"v_max_f32 v{NEGM+qt}, v{NEGM+qt}, v{b+3}")
    for sw in ("v_permlane16_swap_b32", "v_permlane32_swap_b32"):
        for qt in range(4): fx(f"v_mov_b32 v{NEGM+4+qt}, v{NEGM+qt}")
        fx("s_nop 1")
        for qt in range(4): fx(f"{sw} v{NEGM+qt}, v{NEGM+4+qt}")
        fx("s_nop 1")
        for qt in range(4): fx(f"v_max_f32 v{NEGM+qt}, v{NEGM+qt}, v{NEGM+4+qt}")
    fx("v_mbcnt_lo_u32_b32 v254, -1, 0"); fx("v_mbcnt_hi_u32_b32 v254, -1, v254")
    fx("v_lshlrev_b32 v254, 4, v254")
    fx(f"s_lshl_b32 s60, s48, 10"); fx(f"s_add_u32 s60, s60, {MX}")
    fx("v_add_u32 v255, s60, v254")
    fx(f"ds_write_b128 v255, {vr(NEGM,4)}")
    fx("s_xor_b32 s60, s60, 2048")
    fx("v_add_u32 v255, s60, v254")
    fx("s_waitcnt lgkmcnt(0)")
    fx("s_barrier")
    fx(f"ds_read_b128 {vr(NEGM+4,4)}, v255")
    fx("s_waitcnt lgkmcnt(0)")
    for qt in range(4): fx(f"v_max_f32 v{NEGM+8+qt}, v{NEGM+qt}, v{NEGM+4+((qt+2)&3)}")
    fx(f"v_mov_b32 v{MREF}, v{NEGM+8}"); fx(f"v_mov_b32 v{MREF+1}, v{NEGM+9}")
    for kt in range(2):
        for qt in range(4):
            for r in range(4): fx(f"v_sub_f32 v{Sreg(kt,qt)+r}, v{Sreg(kt,qt)+r}, v{NEGM+8+qt}")
    for qt in range(4): fx(f"v_mov_b32 v{254}, v{NEGM+8+qt}") if False else None
    for qt in (3, 1, 0):
        for r in range(4): fx(f"v_sub_f32 v{NEGM+4*qt+r}, 0, v{NEGM+8+qt}") if qt != 2 else None
    fx(f"v_sub_f32 v254, 0, v{NEGM+10}")
    for r in range(4): fx(f"v_mov_b32 v{NEGM+8+r}, v254")
    L += hazard.autofix(pro_a + fix + pre_valu + pro[fi+1:])
    if o['stamp']:
        e("s_memtime s[24:25]")
    e("K2_LOOP:")
    body = {u: its[4+u] for u in range(4)}
    L += body[0]
    e("s_cmp_eq_u32 s58, 3")
    e("s_cbranch_scc1 K2_EPI")
    L += body[1]; L += body[2]; L += body[3]
    e("s_add_u32 s58, s58, 1")
    e("s_branch K2_LOOP")
    e("K2_EPI:")
    if o['stamp']:
        e("s_memtime s[26:27]"); e("s_waitcnt lgkmcnt(0)"); e("s_sub_u32 s101, s26, s24"); e("s_sub_u32 s100, s24, s76")
    if FUSED:
        TA, TB, TC = (248, 249, 250) if o.get('pkadd') else (224, 225, 226)
        pre13 = []
        p = pre13.append
        p("s_lshl_b32 s60, s52, 7"); p("s_lshl_b32 s61, s53, 5"); p("s_add_u32 s60, s60, s61"); p("s_min_u32 s60, s60, 3968")
        p("s_mul_i32 s61, s51, 4000"); p("s_add_u32 s60, s60, s61")
        sh = 5 if o.get('ct') else 6
        if o.get('ct'):
            p("s_lshr_b32 s62, s60, 5")
        p("s_max_u32 s61, s60, 2"); p("s_sub_u32 s61, s61, 2"); p(f"s_lshr_b32 s61, s61, {sh}")
        p("s_add_u32 s60, s60, 33"); p("s_min_u32 s60, s60, 7999"); p(f"s_lshr_b32 s60, s60, {sh}")
        p(f"v_mbcnt_lo_u32_b32 v{TA}, -1, 0"); p(f"v_mbcnt_hi_u32_b32 v{TA}, -1, v{TA}")
        p(f"v_min_u32 v{TB}, 7, v{TA}"); p(f"v_lshlrev_b32 v{TB}, 7, v{TB}"); p(f"v_add_u32 v{TB}, {FLW - 256}, v{TB}")
        p("s_lshl_b32 s61, s61, 7"); p(f"s_add_u32 s61, s61, {FLU}"); p(f"v_mov_b32 v{TC}, s61")
        p(f"v_cmp_eq_u32 vcc, 0, v{TA}"); p("s_nop 1"); p(f"v_cndmask_b32 v{TB}, v{TB}, v{TC}, vcc")
        p("s_lshl_b32 s60, s60, 7"); p(f"s_add_u32 s60, s60, {FLU}"); p(f"v_mov_b32 v{TC}, s60")
        p(f"v_cmp_eq_u32 vcc, 1, v{TA}"); p("s_nop 1"); p(f"v_cndmask_b32 v{TB}, v{TB}, v{TC}, vcc")
        if o.get('ct'):
            p("s_lshl_b32 s62, s62, 7"); p(f"s_add_u32 s62, s62, {FLU}"); p(f"v_mov_b32 v{TC}, s62")
            p(f"v_cmp_eq_u32 vcc, 8, v{TA}"); p("s_nop 1"); p(f"v_cndmask_b32 v{TB}, v{TB}, v{TC}, vcc")
        p(f"buffer_load_dword v{TC}, v{TB}, s[44:47], 0 offen sc1")
        IP2 = o.get('ipf2', False) and not o.get('pkadd')
        if IP2:
            p("s_getpc_b64 s[60:61]")
            p("K2_PCREF:")
            p("s_add_u32 s60, s60, K2_NOMASK-K2_PCREF"); p("s_addc_u32 s61, s61, 0")
            p("s_lshr_b32 s62, s2, 3"); p("s_lshl_b32 s62, s62, 2"); p("s_add_u32 s62, s62, s48"); p(f"s_min_u32 s62, s62, {o.get('ipf2n', 15)}"); p("s_lshl_b32 s62, s62, 10")
            p(f"v_lshlrev_b32 v227, 4, v{TA}"); p("v_add_u32 v227, s62, v227")
            p("global_load_dwordx4 v[228:231], v227, s[60:61]")
        L += hazard.autofix(pre13)
        i13 = list(its[13])
        bi = i13.index("s_barrier")
        assert i13[bi-1] == "s_waitcnt vmcnt(0)", i13[bi-3:bi+1]
        i13[bi-1] = "s_waitcnt vmcnt(2)" if IP2 else "s_waitcnt vmcnt(1)"
        chk = ["s_waitcnt vmcnt(0)", "K2_TP:", f"v_cmp_ne_u32 vcc, s3, v{TC}", "s_nop 1", "s_cmp_eq_u64 vcc, 0", "s_cbranch_scc1 K2_TD", "s_sleep 1",
               f"buffer_load_dword v{TC}, v{TB}, s[44:47], 0 offen sc1", "s_waitcnt vmcnt(0)", "s_add_u32 s101, s101, 1", "s_cmp_lt_u32 s101, 0x400000", "s_cbranch_scc1 K2_TP", "K2_TD:"]
        L += i13 + chk
    else:
        L += its[13]
    e("s_cmp_eq_u32 s59, 3")
    e("s_cbranch_scc0 K2_NOMASK")
    for r in range(16): e(f"v_mov_b32 v{NEGM+r}, 0xf149f2ca")
    e("s_nop 1")
    e("K2_NOMASK:")
    import gen_tail
    tail, resume = gen_tail.gen_tail(o, its[14], its[15], W)
    L += tail
    e("s_branch K2_END")
    T = []; t = T.append
    M_, MN, AL = NEGM, NEGM + 4, NEGM + 8
    t("K2_SLOW:")
    t("s_mov_b32 s54, 1")
    t("s_waitcnt vmcnt(0) lgkmcnt(0)")
    t("s_barrier")
    t("v_mbcnt_lo_u32_b32 v131, -1, 0"); t("v_mbcnt_hi_u32_b32 v131, -1, v131")
    dv_setup(t)
    S_2 = lambda fn: (lambda b: (fn(b.append), T.extend(b)))([])
    S_2(lambda e: srd(e, 12, 's4', 's5', QF_OFF, 500*8192))
    q_dma(t)
    kava_setup(t)
    for r in range(128): t(f"v_mov_b32 v{O+r}, 0")
    for r in range(128): t(f"v_accvgpr_write_b32 a{aO+r}, 0")
    for k in range(4): t(f"v_mov_b32 v{LS+k}, 0"); t(f"v_mov_b32 v{M_+k}, 0xf149f2ca")
    t("s_lshl_b32 s56, s50, 16"); t("s_lshl_b32 s60, s49, 13"); t("s_add_u32 s56, s56, s60")
    t("s_mov_b32 s57, 0"); t("s_mov_b32 s58, 0")
    t("s_waitcnt vmcnt(0)")
    t("s_barrier")
    q_read(t); q_read2(t)
    t("s_waitcnt lgkmcnt(0)")
    t("K2_SL_LOOP:")
    t("s_barrier")
    for txt, _ in dma_lines(0): t(txt)
    t("s_waitcnt vmcnt(0)")
    t("s_barrier")
    t("s_lshl_b32 s60, s58, 14"); t("s_cmp_lt_u32 s60, s55")
    t("s_cbranch_scc0 K2_SL_NEXT")
    for kt in range(2):
        for j in range(8):
            t(f"ds_read_b128 {vr(RING,4)}, v{KA+(j&3)} offset:{kt*8192 + (j>>2)*256}")
            t("s_waitcnt lgkmcnt(0)")
            for qt in range(4):
                acc = vr(Sreg(kt, qt), 4)
                t(f"{M16} {acc}, {vr(RING,4)}, {ar(aQ+(qt*8+j)*4,4)}, {acc if j else '0'}")
            t("s_nop 3")
    t("s_nop 7")
    for qt in range(4):
        a, b = Sreg(0, qt), Sreg(1, qt)
        t(f"v_max3_f32 v{MN+qt}, v{a}, v{a+1}, v{a+2}")
        t(f"v_max3_f32 v{MN+qt}, v{MN+qt}, v{a+3}, v{b}")
        t(f"v_max3_f32 v{MN+qt}, v{MN+qt}, v{b+1}, v{b+2}")
        t(f"v_max3_f32 v{MN+qt}, v{MN+qt}, v{b+3}, v{M_+qt}")
    for sw in ("v_permlane16_swap_b32", "v_permlane32_swap_b32"):
        for qt in range(4): t(f"v_mov_b32 v{AL+qt}, v{MN+qt}")
        t("s_nop 1")
        for qt in range(4): t(f"{sw} v{MN+qt}, v{AL+qt}")
        t("s_nop 1")
        for qt in range(4): t(f"v_max_f32 v{MN+qt}, v{MN+qt}, v{AL+qt}")
    for qt in range(4):
        t(f"v_sub_f32 v{AL+qt}, v{M_+qt}, v{MN+qt}"); t(f"v_exp_f32 v{AL+qt}, v{AL+qt}"); t(f"v_mov_b32 v{M_+qt}, v{MN+qt}")
    t("s_nop 0")
    for qt in range(4):
        t(f"v_mul_f32 v{LS+qt}, v{LS+qt}, v{AL+qt}")
        for kt in range(2):
            for r in range(4):
                reg = Sreg(kt, qt) + r
                t(f"v_sub_f32 v{reg}, v{reg}, v{M_+qt}"); t(f"v_exp_f32 v{reg}, v{reg}"); t("s_nop 0")
                t(f"v_add_f32 v{LS+qt}, v{LS+qt}, v{reg}")
            for h2 in range(2):
                t(f"v_cvt_pk_bf16_f32 v{P[0]+4*qt+2*kt+h2}, v{Sreg(kt,qt)+2*h2}, v{Sreg(kt,qt)+2*h2+1}")
    def rescale():
        for dt in range(16):
            for qt in range(2):
                for r in range(4): t(f"v_mul_f32 v{O+(dt*2+qt)*4+r}, v{O+(dt*2+qt)*4+r}, v{AL+qt}")
                for r in range(4):
                    a = aO + (dt*2+qt)*4 + r
                    t(f"v_accvgpr_read_b32 v{NEGM+12+r}, a{a}")
                for r in range(4): t(f"v_mul_f32 v{NEGM+12+r}, v{NEGM+12+r}, v{AL+2+qt}")
                for r in range(4):
                    a = aO + (dt*2+qt)*4 + r
                    t(f"v_accvgpr_write_b32 a{a}, v{NEGM+12+r}")
    rescale()
    t("s_nop 1")
    for dt in range(16):
        for u in range(2):
            t(f"ds_read_b64_tr_b16 {vr(RING+2*u,2)}, v{VA+(dt&7)} offset:{u*8192 + (dt>>3)*256}")
        t("s_waitcnt lgkmcnt(0)")
        for qt in range(4):
            t(f"{M16} {Oreg(dt,qt)}, {vr(RING,4)}, {vr(P[0]+4*qt,4)}, {Oreg(dt,qt)}")
        t("s_nop 3")
    t("s_nop 7")
    t("K2_SL_NEXT:")
    t("s_add_u32 s58, s58, 1"); t("s_cmp_lt_u32 s58, 16"); t("s_cbranch_scc1 K2_SL_LOOP")
    t("s_barrier")
    t("v_mbcnt_lo_u32_b32 v254, -1, 0"); t("v_mbcnt_hi_u32_b32 v254, -1, v254"); t("v_lshlrev_b32 v254, 4, v254")
    t(f"s_lshl_b32 s60, s48, 10"); t(f"s_add_u32 s60, s60, {MX}"); t("v_add_u32 v255, s60, v254")
    t(f"ds_write_b128 v255, {vr(M_,4)}")
    t("s_xor_b32 s60, s60, 2048"); t("v_add_u32 v255, s60, v254")
    t("s_waitcnt lgkmcnt(0)"); t("s_barrier")
    t(f"ds_read_b128 {vr(MN,4)}, v255"); t("s_waitcnt lgkmcnt(0)")
    for qt in range(4): t(f"v_max_f32 v{RING+qt}, v{M_+qt}, v{MN+((qt+2)&3)}")
    for qt in range(4):
        t(f"v_sub_f32 v{AL+qt}, v{M_+qt}, v{RING+qt}"); t(f"v_exp_f32 v{AL+qt}, v{AL+qt}")
    t("s_nop 0")
    for qt in range(4): t(f"v_mul_f32 v{LS+qt}, v{LS+qt}, v{AL+qt}")
    t(f"v_mov_b32 v{MREF}, v{RING}"); t(f"v_mov_b32 v{MREF+1}, v{RING+1}")
    rescale()
    t("s_barrier")
    L += hazard.autofix(T + resume)
    e("K2_END:")
    e("s_endpgm")
    i0 = L.index("K2_LOOP:"); i1 = L.index("K2_EPI:")
    lin = L[i0-60:i1] + L[i0:i1] + L[i1:i1+700]
    errs = hazard.check(lin, 'k2f')
    return L, ([] if FUSED else kernel_desc(name, 512, 256)), errs
```

```python
from gen_common import *
from tl import TL
import hazard, struct
SLOT = 16384
EX = 131072
fb = lambda x: hex(struct.unpack('<I', struct.pack('<f', x))[0])

def gen_k1(opt=None):
    o = dict(D=6, stamp=False, st='', npre=2, nln=4)
    if opt: o.update(opt)
    D = o['D']; ST = (' ' + o['st']) if o['st'] else ''
    FUSED = o.get('fused')
    name = FUSED if FUSED else 'prep_kernel'
    L = []; e = L.append
    B = 0; ACC = [64, 128]; KA = 192; KA2 = 200; VN = 208; VN2 = 216; DV = 224; DS = 228; XB = 200
    aR = 0; R = 8
    def stamp(T, k):
        if o['stamp']: T.append(f"s_memrealtime s[{72+2*k}:{73+2*k}]")
    L += kernel_header(name)
    e("s_cmp_ge_u32 s2, 256")
    e("s_cbranch_scc1 K2_END" if FUSED else "s_cbranch_scc1 K1_END")
    e("s_load_dwordx16 s[36:51], s[0:1], 0")
    e("s_load_dwordx2 s[52:53], s[0:1], 64")
    e("s_load_dwordx2 s[54:55], s[0:1], 88")
    FF = FUSED and o.get('fastfin', True) and not o.get('ct')
    if FUSED: e("s_load_dwordx2 s[58:59], s[0:1], 80")
    if FF: e("s_load_dwordx2 s[100:101], s[0:1], 72")
    if FUSED and not FF: e("s_mov_b32 s101, 0")
    if o['stamp']:
        e("s_memtime s[60:61]"); e("s_memrealtime s[62:63]")
    e("v_lshrrev_b32 v232, 6, v0")
    e("v_and_b32 v240, 63, v0")
    e("v_lshrrev_b32 v241, 5, v240")
    e("v_and_b32 v242, 31, v240")
    e("v_readfirstlane_b32 s28, v232")
    e("s_and_b32 s29, s28, 1")
    e("s_lshr_b32 s30, s28, 1")
    e("s_lshl_b32 s31, s28, 12")
    CT = o.get('ct')
    if CT: e("s_mov_b32 s35, s2")
    else: e("s_sub_u32 s35, s2, 125"); e("s_cmp_lt_u32 s2, 125"); e("s_cselect_b32 s35, s2, s35")
    e("s_lshl_b32 s33, s28, 1")
    for k in range(4):
        e(f"v_add_u32 v234, {2*k}, v241"); e("v_and_b32 v234, 3, v234"); e("v_lshlrev_b32 v234, 2, v234")
        e(f"s_add_u32 s34, s33, {k>>1}"); e("s_and_b32 s34, s34, 3")
        e("v_or_b32 v234, s34, v234"); e("v_xor_b32 v234, v242, v234"); e("v_lshlrev_b32 v234, 4, v234")
        e("v_lshl_add_u32 v234, v241, 9, v234")
        e(f"v_add_u32 v{DS+k}, s31, v234")
    e("s_waitcnt lgkmcnt(0)")
    if FUSED:
        e("s_mov_b32 s4, s58"); e("s_mov_b32 s5, s59"); e("s_mov_b32 s6, 256"); e("s_mov_b32 s7, 0x20000")
        e("s_or_b32 s33, s2, s28"); e("s_cmp_eq_u32 s33, 0"); e("s_cbranch_scc0 K1_NOTAG")
        e("s_memrealtime s[56:57]"); e("s_waitcnt lgkmcnt(0)"); e("s_or_b32 s56, s56, 1")
        e("v_mov_b32 v234, s56")
        e("buffer_store_dword v234, off, s[4:7], 0 sc1")
        e("K1_NOTAG:")
    e("s_cmp_lt_u32 s2, 250"); e("s_cbranch_scc0 K1_NOX")
    srd(e, 16, 's36', 's37', 0, 8000*512)
    e("s_lshl_b32 s32, s35, 14" if CT else "s_lshl_b32 s32, s35, 15")
    for half in range(1 if CT else 2):
        e(f"s_add_u32 m0, s31, {EX + half*SLOT:#x}")
        if half: e("s_add_u32 s32, s32, 16384")
        else: e("s_nop 0")
        for k in range(4):
            e(f"buffer_load_dwordx4 v{DS+k}, s[16:19], s32 offen offset:{k*1024} lds")
    if FUSED and o.get('ipf', True):
        e("s_getpc_b64 s[56:57]")
        e("K1_PCREF:")
        e(f"s_add_u32 s56, s56, {o.get('ipfbase', 'K1_NOX')}-K1_PCREF"); e("s_addc_u32 s57, s57, 0")
        e("s_lshr_b32 s33, s2, 3"); e("s_lshl_b32 s33, s33, 2"); e("s_add_u32 s33, s33, s28"); e("s_lshl_b32 s33, s33, 10")
        e(f"s_cmp_lt_u32 s33, {o.get('ipfbytes', 61440)}"); e("s_cbranch_scc0 K1_NOIPF")
        e("v_lshlrev_b32 v232, 4, v240"); e("v_add_u32 v232, s33, v232")
        e("global_load_dwordx4 v[252:255], v232, s[56:57]")
        e("K1_NOIPF:")
    if o.get('wpf', False):
        e("s_lshr_b32 s33, s2, 3"); e("s_lshl_b32 s33, s33, 2"); e("s_add_u32 s33, s33, s28")
        e("v_lshlrev_b32 v232, 4, v240")
        e("s_mov_b32 s8, s40"); e("s_mov_b32 s9, s41"); e("s_mov_b32 s10, 131072"); e("s_mov_b32 s11, 0x20000")
        e("s_lshl_b32 s34, s33, 10")
        e("buffer_load_dwordx4 v[100:103], v232, s[8:11], s34 offen")
        if o.get('wpf') != 'k':
            e("s_mov_b32 s8, s46"); e("s_mov_b32 s9, s47"); e("s_mov_b32 s10, 262144")
            e("s_lshl_b32 s34, s33, 11")
            e("buffer_load_dwordx4 v[104:107], v232, s[8:11], s34 offen")
            e("buffer_load_dwordx4 v[108:111], v232, s[8:11], s34 offen offset:1024")
    if FUSED and o.get('tlb', False):
        e("s_load_dwordx2 s[56:57], s[0:1], 72"); e("s_waitcnt lgkmcnt(0)")
        e("s_cmp_eq_u32 s28, 1"); e("s_cbranch_scc0 K1_NOTLB")
        srd(e, 8, 's54', 's55', OP_OFF, 64*16*16384)
        e("v_lshlrev_b32 v232, 21, v240")
        e("buffer_load_dword v112, v232, s[8:11], 0 offen")
        e("s_mov_b32 s8, s56"); e("s_mov_b32 s9, s57"); e("s_mov_b32 s10, 4096000")
        e("buffer_load_dword v113, v232, s[8:11], 0 offen")
        e("K1_NOTLB:")
    if o.get('pf', True):
        e("s_and_b32 s33, s2, 7"); e("s_cmp_lt_u32 s33, 2"); e("s_cbranch_scc1 K1_NOPF")
        e("s_lshr_b32 s34, s2, 3")
        e("s_cmp_ge_u32 s33, 6"); e("s_cbranch_scc1 K1_PF2")
        e("s_cmp_lt_u32 s34, 16"); e("s_cselect_b32 s8, s44, s42"); e("s_cselect_b32 s9, s45, s43")
        e("s_and_b32 s34, s34, 15"); e("s_lshl_b32 s34, s34, 13")
        e("s_branch K1_PF3")
        e("K1_PF2:")
        e("s_add_u32 s56, s52, 131072"); e("s_addc_u32 s57, s53, 0")
        e("s_cmp_lt_u32 s34, 16"); e("s_cselect_b32 s8, s50, s56"); e("s_cselect_b32 s9, s51, s57")
        e("s_and_b32 s34, s34, 15"); e("s_lshl_b32 s34, s34, 13")
        e("K1_PF3:")
        e("s_mov_b32 s10, 131072"); e("s_mov_b32 s11, 0x20000")
        e("v_lshlrev_b32 v232, 4, v240"); e("s_lshl_b32 s33, s28, 11"); e("s_add_u32 s34, s34, s33")
        e("buffer_load_dwordx4 v[244:247], v232, s[8:11], s34 offen")
        e("buffer_load_dwordx4 v[248:251], v232, s[8:11], s34 offen offset:1024")
        e("K1_NOPF:")
    e("K1_NOX:")
    first, second = ("K1_UG", "K1_Q") if o.get('ugfirst', True) else ("K1_Q", "K1_UG")
    if CT:
        e("s_cmp_lt_u32 s2, 250"); e("s_cbranch_scc1 K1_CT")
    else:
        e("s_cmp_lt_u32 s2, 125"); e(f"s_cbranch_scc1 {first}")
        e("s_cmp_lt_u32 s2, 250"); e(f"s_cbranch_scc1 {second}")
    e("s_cmp_lt_u32 s2, 254"); e("s_cbranch_scc1 K1_W1")
    e("s_branch K1_W2")

    def k_addr(T, dst, dst2, base_lines):
        t = T.append
        t("v_and_b32 v234, 3, v242"); t("v_lshlrev_b32 v234, 2, v234"); t("v_bfe_u32 v235, v242, 2, 2")
        t("v_or_b32 v234, v234, v235"); t("v_lshlrev_b32 v236, 9, v242")
        for x in base_lines: t(x)
        t("v_add_u32 v236, s33, v236")
        for jj in range(8):
            t(f"v_add_u32 v235, {2*jj}, v241"); t("v_xor_b32 v235, v235, v234")
            t(f"v_lshl_add_u32 v{dst+jj}, v235, 4, v236")
            if dst2 is not None: t(f"v_add_u32 v{dst2+jj}, 0x10000, v{dst+jj}")
    def ka_setup(T): k_addr(T, KA, KA2, ["s_lshl_b32 s33, s30, 14"])
    def xb_setup(T): k_addr(T, XB, None, ["s_lshl_b32 s33, s29, 14", f"s_add_u32 s33, s33, {EX}", "s_lshl_b32 s34, s30, 8", "s_add_u32 s33, s33, s34"])
    def vn_setup(T):
        t = T.append
        t("v_bfe_u32 v234, v240, 4, 1"); t("v_bfe_u32 v235, v240, 2, 2"); t("v_bfe_u32 v236, v240, 1, 1")
        t("v_lshl_add_u32 v236, v234, 1, v236"); t("v_and_b32 v237, 1, v240"); t("v_lshlrev_b32 v237, 3, v237")
        t("v_lshl_add_u32 v238, v241, 3, v235"); t("v_lshl_add_u32 v237, v238, 9, v237")
        t("s_lshl_b32 s33, s30, 8"); t("v_add_u32 v237, s33, v237")
        for a in range(4):
            for u in range(2):
                t(f"v_lshl_add_u32 v238, v241, 1, {u}"); t("v_lshl_or_b32 v238, v235, 2, v238")
                t(f"v_add_u32 v239, {4*a}, v236"); t("v_xor_b32 v238, v238, v239")
                t(f"v_lshl_add_u32 v{VN+a*2+u}, v238, 4, v237")
                if u: t(f"v_add_u32 v{VN+a*2+u}, {4*512}, v{VN+a*2+u}")
                t(f"v_add_u32 v{VN2+a*2+u}, 0x10000, v{VN+a*2+u}")
    def dma_voff(T, stride1024):
        t = T.append
        if not stride1024:
            for k in range(4): t(f"v_mov_b32 v{DV+k}, v{DS+k}")
            return
        t("s_lshl_b32 s33, s28, 1")
        for k in range(4):
            t(f"v_add_u32 v234, {2*k}, v241"); t("v_and_b32 v234, 3, v234"); t("v_lshlrev_b32 v234, 2, v234")
            t(f"s_add_u32 s34, s33, {k>>1}"); t("s_and_b32 s34, s34, 3")
            t("v_or_b32 v234, s34, v234"); t("v_xor_b32 v234, v242, v234"); t("v_lshlrev_b32 v234, 4, v234")
            t("v_lshl_add_u32 v234, v241, 10, v234"); t("s_lshl_b32 s34, s28, 13"); t(f"s_add_u32 s34, s34, {k*1024}")
            t(f"v_add_u32 v{DV+k}, s34, v234")
    def tile_dma(n, srdn, soff):
        if o.get('nodma'): return []
        r = [(f"s_add_u32 m0, s31, {(n%8)*SLOT:#x}", False), (f"s_mov_b32 s32, {soff:#x}", False)]
        for k in range(4):
            r.append((f"buffer_load_dwordx4 v{DV+k}, s[{srdn}:{srdn+3}], s32 offen offset:{k*1024} lds", True))
        return r
    def emit_tile(out, W, n, srdn, soff):
        for txt, vm in tile_dma(n, srdn, soff):
            out.append(txt)
            if vm: W.issue('vm', ('T', n))
    def out_rows(T, W, srdn, tag, OB):
        t = T.append
        t("v_lshlrev_b32 v232, 4, v240"); t(f"s_add_u32 s33, s31, {EX}"); t("v_add_u32 v232, s33, v232")
        for half in range(2):
            for k in range(4):
                t(f"ds_read_b128 {vr(OB+(half*4+k)*4,4)}, v232 offset:{half*SLOT + k*1024}")
        t("s_lshl_b32 s32, s35, 15")
        for half in range(2):
            if half: t("s_add_u32 s32, s32, 16384")
            for k in range(4):
                t(f"s_waitcnt lgkmcnt({7 - (half*4+k)})")
                t(f"buffer_store_dwordx4 {vr(OB+(half*4+k)*4,4)}, v{DS+k}, s[{srdn}:{srdn+3}], s32 offen offset:{k*1024}{ST}")
                W.issue('vm', (tag, half, k))
        W.drain('lgkm')
    def ln(out, W, tiles):
        nw = W.need('vm', [('X', 7)])
        out.append(f"s_waitcnt vmcnt({nw})")
        out.append("s_barrier")
        stamp(out, 0)
        for s in range(8):
            out.append(f"ds_read_b128 {vr(64+4*s,4)}, v{XB+s}")
        body = []; b = body.append
        b("s_mov_b32 s34, 0x3f803f80")
        for k in range(4): b(f"v_mov_b32 v{232+k}, 0")
        for r in range(32):
            if r % 4 == 0: b(f"s_waitcnt lgkmcnt({7 - r//4})")
            b(f"v_dot2_f32_bf16 v{232+(r&1)}, v{64+r}, s34, v{232+(r&1)}")
            b(f"v_dot2_f32_bf16 v{234+(r&1)}, v{64+r}, v{64+r}, v{234+(r&1)}")
        b("s_nop 2")
        b("v_add_f32 v232, v232, v233"); b("v_add_f32 v234, v234, v235")
        b("v_mov_b32 v233, v232"); b("v_mov_b32 v235, v234"); b("s_nop 1")
        b("v_permlane32_swap_b32 v232, v233"); b("v_permlane32_swap_b32 v234, v235"); b("s_nop 1")
        b("v_add_f32 v232, v232, v233"); b("v_add_f32 v233, v234, v235")
        b(f"ds_write_b64 v{XB}, v[232:233]")
        b(f"v_xor_b32 v238, 256, v{XB}")
        b("s_waitcnt lgkmcnt(0)")
        b("s_barrier")
        b("ds_read_b64 v[234:235], v238")
        b("s_waitcnt lgkmcnt(0)")
        b("v_add_f32 v232, v232, v234"); b("v_add_f32 v234, v233, v235")
        b("v_mul_f32 v232, 0x3b800000, v232"); b("v_mul_f32 v234, 0x3b800000, v234")
        b("v_fma_f32 v234, -v232, v232, v234"); b("v_max_f32 v234, 0, v234"); b("v_add_f32 v234, 0x3727c5ac, v234")
        b("v_rsq_f32 v234, v234"); b("s_nop 0")
        b("v_mul_f32 v236, v232, v234"); b("v_sub_f32 v236, 0, v236")
        b("s_barrier")
        for r in range(32):
            t = 244 + 2*(r % 4)
            b(f"v_lshlrev_b32 v{t}, 16, v{64+r}")
            b(f"v_and_b32 v{t+1}, 0xffff0000, v{64+r}")
            b(f"v_pk_fma_f32 v[{t}:{t+1}], v[{t}:{t+1}], v[234:235], v[236:237] op_sel_hi:[1,0,0]")
            b(f"v_cvt_pk_bf16_f32 v{64+r}, v{t}, v{t+1}")
            if r % 4 == 3: b(f"ds_write_b128 v{XB+r//4}, {vr(64+r-3,4)}")
        b("s_waitcnt lgkmcnt(0)")
        b("s_barrier")
        b("s_lshl_b32 s33, s30, 8")
        for jj in range(8): b(f"v_subrev_u32 v{244+jj}, s33, v{XB+jj}")
        for s in range(16):
            b(f"ds_read_b128 {vr(B+4*s,4)}, v{244+(s&7)} offset:{(s>>3)*256}")
        flat = []
        for (n, sn, so) in tiles:
            tl_ = [(txt, vm, n) for txt, vm in tile_dma(n, sn, so)]
            flat.append(tl_[:3])
            for x in tl_[3:]: flat.append([x])
        gap = max(1, len(body) // (len(flat) + 1)) if flat else 1
        fi = 0
        for i, ins in enumerate(body):
            out.append(ins)
            if fi < len(flat) and i % gap == gap - 1:
                for txt, vm, n in flat[fi]:
                    out.append(txt)
                    if vm: W.issue('vm', ('T', n))
                fi += 1
        while fi < len(flat):
            for txt, vm, n in flat[fi]:
                out.append(txt)
                if vm: W.issue('vm', ('T', n))
            fi += 1
        out.append("s_waitcnt lgkmcnt(0)")
        W.drain('lgkm')
    def phase(W, p, kind, later, fill=None, f0=3):
        tl = TL(W)
        acc = ACC[p]
        cnt = [0]
        for a in range(4):
            sig = 4*p + a
            tb = 16*a - D - 1
            tl.add(tb, 'bar', needvm=[('T', 2*sig), ('T', 2*sig+1)], prio=1)
            k = 0
            for (n, sn, so) in later.get(sig, []):
                for txt, vm in tile_dma(n, sn, so):
                    sp = o.get('dsp', 2)
                    if vm:
                        tl.add(tb + 1 + sp*k, 'vm', txt, tag=('T', n), prio=7); k += 1
                    else:
                        tl.add(tb + 1 + sp*k, 'txt', txt, prio=6)
            for m in range(16):
                tm = 16*a + m
                ri = cnt[0] % R; cnt[0] += 1
                ring = aR + 4*ri
                if kind == 'X':
                    j = m; slot = 2*a
                    base = (KA if slot < 4 else KA2) + (j & 7)
                    off = (slot % 4)*SLOT + (j >> 3)*256
                    tag = (p, a, m)
                    tl.add(tm - D, 'lds', f"ds_read_b128 {ar(ring,4)}, v{base} offset:{off}", tag=tag, prio=2)
                    c = vr(acc+16*a,16) if j else '0'
                    tl.add(tm, 'mfma', f"v_mfma_f32_32x32x16_bf16 {vr(acc+16*a,16)}, {ar(ring,4)}, {vr(B+4*j,4)}, {c}", need=[tag], prio=0)
                else:
                    tt, s, aa = m >> 3, (m >> 2) & 1, m & 3
                    tau = 2*a + tt; slot = tau
                    tags = []
                    for u in range(2):
                        base = (VN if slot < 4 else VN2) + aa*2 + u
                        off = (slot % 4)*SLOT + 16*s*512
                        tag = (p, a, m, u); tags.append(tag)
                        tl.add(tm - D, 'lds', f"ds_read_b64_tr_b16 {ar(ring+2*u,2)}, v{base} offset:{off}", tag=tag, prio=2)
                    c = vr(acc+16*aa,16) if (tau or s) else '0'
                    tl.add(tm, 'mfma', f"v_mfma_f32_32x32x16_bf16 {vr(acc+16*aa,16)}, {ar(ring,4)}, {vr(B+4*(2*tau+s),4)}, {c}", need=tags, prio=0)
        if fill:
            n = len(fill)
            for i, ins in enumerate(fill):
                tl.add(f0 + (i*(64-f0))/n, 'txt', ins, prio=4)
        return tl
    def pack_swap(out, src, dst, swap=True, scale=None):
        if scale:
            for k in range(8):
                out.append(f"v_pk_mul_f32 v[{src+2*k}:{src+2*k+1}], v[{src+2*k}:{src+2*k+1}], {scale} op_sel_hi:[1,0]")
        for k in range(8):
            out.append(f"v_cvt_pk_bf16_f32 v{dst+k}, v{src+2*k}, v{src+2*k+1}")
        if swap:
            out.append("s_nop 1")
            for b in (0, 4):
                out.append(f"v_permlane32_swap_b32 v{dst+b}, v{dst+b+2}")
                out.append(f"v_permlane32_swap_b32 v{dst+b+1}, v{dst+b+3}")
    def exchange(out, W, acc, kind, xaflag=False):
        out.append("s_nop 15")
        out.append("v_lshlrev_b32 v232, 4, v240")
        out.append(f"s_lshl_b32 s33, s29, 14"); out.append(f"s_add_u32 s33, s33, {EX}")
        out.append("v_add_u32 v233, s33, v232")
        out.append(f"s_lshl_b32 s34, s30, {13 if kind=='Y' else 11}")
        out.append("v_add_u32 v232, s34, v233")
        for a in range(4):
            d = 244 if a % 2 == 0 else 0
            pack_swap(out, acc+16*a, d)
            for s in range(2):
                f = (2*a + s) if kind == 'Y' else (4*a + s)
                out.append(f"ds_write_b128 v232, {vr(d+4*s,4)} offset:{f*1024}")
        if xaflag:
            n = W.need('vm', [x for x in W.q['vm'] if isinstance(x, tuple) and x[0] == 'XS'] + ['TAG'])
            if n is not None: out.append(f"s_waitcnt vmcnt({n})")
        out.append("s_waitcnt lgkmcnt(0)")
        out.append("s_barrier")
        if xaflag:
            out.append("v_readfirstlane_b32 s3, v243"); out.append("s_or_b32 s33, s28, 0");
            out.append("s_cmp_eq_u32 s28, 0"); out.append("s_cbranch_scc0 K1_Q_NOXF")
            out.append("s_cmp_lg_u32 s3, 0"); out.append("s_cbranch_scc0 K1_Q_NOXF")
            out += cap(lambda e: srd(e, 16, 's54', 's55', FL_OFF, FL_SIZE))
            out.append("s_lshl_b32 s33, s35, 7"); out.append(f"s_add_u32 s33, s33, {FLQ + 4}")
            out.append("v_mov_b32 v238, s3"); out.append("v_cmp_eq_u32 vcc, 0, v240"); out.append("s_and_saveexec_b64 s[56:57], vcc")
            out.append("buffer_store_dword v238, off, s[16:19], s33 sc1")
            out.append("s_mov_b64 exec, s[56:57]")
            out.append("K1_Q_NOXF:")
        for f in range(16):
            out.append(f"ds_read_b128 {vr(B+4*f,4)}, v233 offset:{f*1024}")
        out.append("s_waitcnt lgkmcnt(0)")
        W.drain('lgkm')
    def narrow(out, W, rowbase_bytes, slice_sreg):
        for x in ["v_lshrrev_b32 v232, 3, v240", "v_lshlrev_b32 v232, 9, v232", "v_and_b32 v233, 7, v240",
                  "v_lshl_add_u32 v232, v233, 4, v232", f"s_lshl_b32 s33, {slice_sreg}, 7", "s_lshl_b32 s34, s28, 15",
                  "s_add_u32 s33, s33, s34", f"s_add_u32 s33, s33, {rowbase_bytes}", "v_add_u32 v232, s33, v232",
                  "s_lshl_b32 s34, s28, 13", f"s_add_u32 s34, s34, {EX}"]: out.append(x)
        for i in range(8):
            out.append(f"s_add_u32 m0, s34, {i*1024}")
            out.append(f"s_mov_b32 s32, {i*4096}")
            out.append(f"buffer_load_dwordx4 v232, s[16:19], s32 offen lds")
            W.issue('vm', ('N', i))
    def narrow_read(out, W):
        n = W.need('vm', [('N', 7)])
        out.append(f"s_waitcnt vmcnt({n})")
        out.append("s_barrier")
        for x in ["v_bfe_u32 v232, v240, 2, 2", "v_lshl_add_u32 v232, v241, 3, v232", "v_lshlrev_b32 v232, 7, v232",
                  "v_bfe_u32 v233, v240, 4, 1", "v_lshl_add_u32 v232, v233, 5, v232", "v_and_b32 v233, 3, v240",
                  "v_lshl_add_u32 v232, v233, 3, v232", "s_lshl_b32 s33, s29, 6", f"s_add_u32 s33, s33, {EX}",
                  "v_add_u32 v232, s33, v232"]: out.append(x)
        for s in range(16):
            for u in range(2):
                out.append(f"ds_read_b64_tr_b16 {vr(B+4*s+2*u,2)}, v232 offset:{s*2048+u*512}")
            if s % 4 == 3: out.append("s_waitcnt lgkmcnt(0)")
        W.drain('lgkm')
    def finish(task_lines, label):
        if CT and label in ("K1_Q", "K1_UG"): return
        fixed = hazard.autofix(task_lines)
        e(f"{label}:")
        L.extend(fixed)
        e("s_branch K1_FIN")
    def cap(fn):
        buf = []; fn(buf.append); return buf
    std_later = lambda sn: {2: [(8, sn, 0), (9, sn, SLOT)], 3: [(10, sn, 2*SLOT), (11, sn, 3*SLOT)], 4: [(12, sn, 4*SLOT), (13, sn, 5*SLOT)], 5: [(14, sn, 6*SLOT), (15, sn, 7*SLOT)]}
    npre = o['npre']


    if CT:
        EXB = EX + 16384
        Bq = 64
        ACCQ, ACCK, ACCG, ACCU = 64, 96, 128, 160
        VN4 = 208; VN42 = 212; XO = 216; XB8 = 244
        W = Waiter(); T = []; t = T.append
        for s_ in range(4): W.issue('vm', ('X', s_))
        dma_voff(T, True)
        T += cap(lambda e: (srd(e, 8, 's38', 's39', 0, 131072), srd(e, 12, 's40', 's41', 0, 131072), srd(e, 20, 's46', 's47', 0, 262144),
                            srd(e, 24, 's54', 's55', QF_OFF, 500*8192)))
        def tinfo(n):
            if n < 8: return (8, n*SLOT, DS)
            if n < 16: return (12, (n-8)*SLOT, DS)
            if n < 24: return (20, (n-16)*32768 + 512, DV)
            return (20, (n-24)*32768, DV)
        def tdma(n):
            sn, so, dv = tinfo(n)
            r = [(f"s_add_u32 m0, s31, {(n%8)*SLOT:#x}", False), (f"s_mov_b32 s32, {so:#x}", False)]
            for k in range(4): r.append((f"buffer_load_dwordx4 v{dv+k}, s[{sn}:{sn+3}], s32 offen offset:{k*1024} lds", True))
            return r
        def temit(n):
            for txt, vm in tdma(n):
                t(txt)
                if vm: W.issue('vm', ('T', n))
        temit(0); temit(1)
        t("v_and_b32 v234, 3, v242"); t("v_lshlrev_b32 v234, 2, v234"); t("v_bfe_u32 v235, v242, 2, 2"); t("v_or_b32 v234, v234, v235")
        t("v_lshlrev_b32 v236, 9, v242"); t(f"v_add_u32 v237, {EX}, v236")
        t("s_lshl_b32 s33, s30, 8"); t("v_add_u32 v238, s33, v237")
        t("s_lshl_b32 s33, s29, 3")
        for i in range(4):
            t(f"s_add_u32 s34, s33, {2*i}"); t("v_add_u32 v235, s34, v241"); t("v_xor_b32 v235, v235, v234"); t(f"v_lshl_add_u32 v{XO+i}, v235, 4, v238")
        t("s_lshl_b32 s33, s28, 14"); t("v_add_u32 v238, s33, v236")
        for jj in range(8):
            t(f"v_add_u32 v235, {2*jj}, v241"); t("v_xor_b32 v235, v235, v234")
            t(f"v_lshl_add_u32 v{KA+jj}, v235, 4, v238"); t(f"v_add_u32 v{KA2+jj}, 0x10000, v{KA+jj}")
        t("v_bfe_u32 v234, v240, 4, 1"); t("v_bfe_u32 v235, v240, 2, 2"); t("v_bfe_u32 v236, v240, 1, 1")
        t("v_lshl_add_u32 v236, v234, 1, v236"); t("v_and_b32 v237, 1, v240"); t("v_lshlrev_b32 v237, 3, v237")
        t("v_lshl_add_u32 v238, v241, 3, v235"); t("v_lshl_add_u32 v237, v238, 9, v237")
        t("s_lshl_b32 s33, s30, 8"); t("v_add_u32 v237, s33, v237")
        t("s_lshl_b32 s33, s29, 3")
        for aa in range(2):
            for u in range(2):
                t(f"v_lshl_add_u32 v238, v241, 1, {u}"); t("v_lshl_or_b32 v238, v235, 2, v238")
                t(f"s_add_u32 s34, s33, {4*aa}"); t("v_add_u32 v239, s34, v236"); t("v_xor_b32 v238, v238, v239")
                t(f"v_lshl_add_u32 v{VN4+aa*2+u}, v238, 4, v237")
                if u: t(f"v_add_u32 v{VN4+aa*2+u}, {4*512}, v{VN4+aa*2+u}")
                t(f"v_add_u32 v{VN42+aa*2+u}, 0x10000, v{VN4+aa*2+u}")
        nw = W.need('vm', [('X', 3)]); t(f"s_waitcnt vmcnt({nw})"); t("s_barrier")
        stamp(T, 0)
        for i in range(4): t(f"ds_read_b128 {vr(64+4*i,4)}, v{XO+i}")
        T += cap(lambda e: srd(e, 16, 's54', 's55', XA_OFF, 8000*512))
        body = []; b = body.append
        b("s_mov_b32 s34, 0x3f803f80")
        for k in range(4): b(f"v_mov_b32 v{232+k}, 0")
        for r in range(16):
            if r % 4 == 0: b(f"s_waitcnt lgkmcnt({3 - r//4})")
            b(f"v_dot2_f32_bf16 v{232+(r&1)}, v{64+r}, s34, v{232+(r&1)}")
            b(f"v_dot2_f32_bf16 v{234+(r&1)}, v{64+r}, v{64+r}, v{234+(r&1)}")
        b("s_nop 2")
        b("v_add_f32 v232, v232, v233"); b("v_add_f32 v234, v234, v235")
        b("v_mov_b32 v233, v232"); b("v_mov_b32 v235, v234"); b("s_nop 1")
        b("v_permlane32_swap_b32 v232, v233"); b("v_permlane32_swap_b32 v234, v235"); b("s_nop 1")
        b("v_add_f32 v232, v232, v233"); b("v_add_f32 v233, v234, v235")
        b("v_lshlrev_b32 v238, 3, v242"); b(f"v_add_u32 v238, {EXB}, v238")
        b("s_lshl_b32 s33, s28, 8"); b("v_add_u32 v239, s33, v238")
        b("ds_write_b64 v239, v[232:233]")
        b("s_waitcnt lgkmcnt(0)"); b("s_barrier")
        for k in range(4): b(f"ds_read_b64 v[{80+2*k}:{81+2*k}], v238 offset:{256*k}")
        b("s_waitcnt lgkmcnt(0)")
        b("v_add_f32 v80, v80, v82"); b("v_add_f32 v81, v81, v83"); b("v_add_f32 v84, v84, v86"); b("v_add_f32 v85, v85, v87")
        b("v_add_f32 v232, v80, v84"); b("v_add_f32 v234, v81, v85")
        b("v_mul_f32 v232, 0x3b800000, v232"); b("v_mul_f32 v234, 0x3b800000, v234")
        b("v_fma_f32 v234, -v232, v232, v234"); b("v_max_f32 v234, 0, v234"); b("v_add_f32 v234, 0x3727c5ac, v234")
        b("v_rsq_f32 v234, v234"); b("s_nop 0")
        b("v_mul_f32 v236, v232, v234"); b("v_sub_f32 v236, 0, v236")
        for r in range(16):
            tt_ = 244 + 2*(r % 4)
            b(f"v_lshlrev_b32 v{tt_}, 16, v{64+r}"); b(f"v_and_b32 v{tt_+1}, 0xffff0000, v{64+r}")
            b(f"v_pk_fma_f32 v[{tt_}:{tt_+1}], v[{tt_}:{tt_+1}], v[234:235], v[236:237] op_sel_hi:[1,0,0]")
            b(f"v_cvt_pk_bf16_f32 v{64+r}, v{tt_}, v{tt_+1}")
            if r % 4 == 3: b(f"ds_write_b128 v{XO+r//4}, {vr(64+r-3,4)}")
        b("s_lshl_b32 s33, s28, 14"); b(f"s_sub_u32 s33, {EX}, s33")
        for jj in range(8): b(f"v_add_u32 v{XB8+jj}, s33, v{KA+jj}")
        b("s_waitcnt lgkmcnt(0)"); b("s_barrier")
        for s_ in range(16): b(f"ds_read_b128 {vr(B+4*s_,4)}, v{XB8+(s_&7)} offset:{(s_>>3)*256}")
        b("v_lshlrev_b32 v232, 4, v240"); b(f"s_add_u32 s33, s31, {EX}"); b("v_add_u32 v232, s33, v232")
        for k in range(4): b(f"ds_read_b128 {vr(96+4*k,4)}, v232 offset:{k*1024}")
        flat = []
        for n in range(2, 6):
            tl_ = [(txt, vm, n) for txt, vm in tdma(n)]
            flat.append(tl_[:3])
            for x in tl_[3:]: flat.append([x])
        gap = max(1, (len(body) - 24) // (len(flat) + 1)); fi = 0
        for i, ins in enumerate(body):
            t(ins)
            if fi < len(flat) and i % gap == gap - 1:
                for txt, vm, n in flat[fi]:
                    t(txt)
                    if vm: W.issue('vm', ('T', n))
                fi += 1
        while fi < len(flat):
            for txt, vm, n in flat[fi]:
                t(txt)
                if vm: W.issue('vm', ('T', n))
            fi += 1
        t("s_waitcnt lgkmcnt(0)")
        t("s_lshl_b32 s56, s35, 14")
        for k in range(4):
            t(f"buffer_store_dwordx4 {vr(96+4*k,4)}, v{DS+k}, s[16:19], s56 offen offset:{k*1024}{ST}"); W.issue('vm', ('XS', k))
        stamp(T, 1)
        def flag_store(off_lines, lbl):
            t("s_cmp_eq_u32 s28, 0"); t(f"s_cbranch_scc0 {lbl}")
            for x in off_lines: t(x)
            t("v_mov_b32 v232, s3"); t("v_cmp_eq_u32 vcc, 0, v240"); t("s_and_saveexec_b64 s[56:57], vcc")
            t("buffer_store_dword v232, off, s[8:11], s34 sc1")
            t("s_mov_b64 exec, s[56:57]")
            t(f"{lbl}:")
        fillers = {}
        def step(sig, extra_need=None, after_bar=None):
            p, a = sig >> 2, sig & 3
            need = [('T', 2*sig), ('T', 2*sig+1)] + (extra_need or [])
            nv = W.need('vm', need)
            if nv is not None: t(f"s_waitcnt vmcnt({nv})")
            t("s_barrier")
            if after_bar: after_bar()
            dm = []
            for n in (2*(sig+3), 2*(sig+3)+1):
                if n < 32: dm += [(txt, vm, n) for txt, vm in tdma(n)]
            fl = list(fillers.get(sig, []))
            def some(k_dma, k_fill):
                c = 0
                while dm and c < k_dma:
                    txt, vm, n = dm.pop(0); t(txt)
                    if vm: W.issue('vm', ('T', n)); c += 1
                for _ in range(k_fill):
                    if fl: t(fl.pop(0))
            nf = -(-len(fl) // 8) if fl else 0
            if p != 1:
                acc = {0: ACCQ, 2: ACCG, 3: ACCU}[p]
                idx = 0; seq = []
                for tt in range(2):
                    slot = (2*sig + tt) % 8
                    for s_ in range(2):
                        for aa in range(2):
                            for u in range(2):
                                base = (VN4 if slot < 4 else VN42) + aa*2 + u
                                t(f"ds_read_b64_tr_b16 {ar(4*idx+2*u,2)}, v{base} offset:{(slot%4)*SLOT + 16*s_*512}")
                            seq.append((idx, tt, s_, aa)); idx += 1
                for (idx, tt, s_, aa) in seq:
                    if idx % 2 == 0: t(f"s_waitcnt lgkmcnt({14 - 2*idx - 2 if idx < 6 else 0})")
                    tau = 2*a + tt
                    c = vr(acc+16*aa,16) if (tau or s_) else '0'
                    t(f"v_mfma_f32_32x32x16_bf16 {vr(acc+16*aa,16)}, {ar(4*idx,4)}, {vr(B+4*(2*tau+s_),4)}, {c}")
                    some(1, nf)
            else:
                lbl = f"K1_CT_X{a}"
                t(f"s_cmp_eq_u32 s30, {a & 1}"); t(f"s_cbranch_scc0 {lbl}")
                k = a >> 1; base = KA if k == 0 else KA2
                for half in range(2):
                    for j in range(8): t(f"ds_read_b128 {ar(4*j,4)}, v{base+j} offset:{half*256}")
                    for j in range(8):
                        if j % 2 == 0: t(f"s_waitcnt lgkmcnt({6 - j})")
                        jj = 8*half + j
                        c = vr(ACCK+16*k,16) if jj else '0'
                        t(f"v_mfma_f32_32x32x16_bf16 {vr(ACCK+16*k,16)}, {ar(4*j,4)}, {ar(Bq+4*jj,4)}, {c}")
                t(f"{lbl}:")
            some(100, 1000)
        for sig in range(4): step(sig)
        stamp(T, 2)
        t("s_nop 15")
        t("v_lshlrev_b32 v232, 4, v240"); t(f"v_add_u32 v233, {EXB}, v232"); t("s_lshl_b32 s34, s28, 12"); t("v_add_u32 v232, s34, v233")
        for aa in range(2):
            d = 244 if aa == 0 else 96
            pack_swap(T, ACCQ+16*aa, d)
            for s_ in range(2): t(f"ds_write_b128 v232, {vr(d+4*s_,4)} offset:{(2*aa+s_)*1024}")
        t("s_waitcnt lgkmcnt(0)"); t("s_barrier")
        for f in range(16): t(f"ds_read_b128 {ar(Bq+4*f,4)}, v233 offset:{f*1024}")
        t("s_waitcnt lgkmcnt(0)")
        t("buffer_load_dword v243, off, s[4:7], 0 sc1"); W.issue('vm', 'TAG')
        for sig in range(4, 8): step(sig)
        stamp(T, 3)
        qf = []
        qf.append("s_nop 7"); qf.append("v_mov_b32 v236, 0x3db8aa3b")
        qf += ["s_lshl_b32 s33, s35, 14", "s_lshl_b32 s34, s28, 10", "s_add_u32 s33, s33, s34",
               "v_lshrrev_b32 v252, 4, v242", "v_lshlrev_b32 v252, 13, v252", "v_and_b32 v253, 15, v242", "v_lshl_add_u32 v253, v241, 4, v253",
               "v_lshl_add_u32 v252, v253, 4, v252", "v_add_u32 v252, s33, v252"]
        qst = []
        for k in range(2):
            d = 244 if k == 0 else 64
            pack_swap(qf, ACCK+16*k, d, scale="v[236:237]")
            for s_ in range(2):
                qf.append(f"buffer_store_dwordx4 {vr(d+4*s_,4)}, v252, s[24:27], 0 offen offset:{k*4096 + s_*512 - (4096 if k else 0)}{ST}" if k == 0 else "@K1")
        out2 = []
        cnt = 0
        for x in qf:
            if x == "@K1":
                if cnt == 0: out2.append("v_add_u32 v253, 4096, v252")
                out2.append(f"buffer_store_dwordx4 {vr(64+4*cnt,4)}, v253, s[24:27], 0 offen offset:{cnt*512}{ST}"); cnt += 1
            else: out2.append(x)
        qf = out2
        for x in qf:
            t(x)
            if x.startswith('buffer_store'): W.issue('vm', ('QS', len(W.q['vm'])))
        W.issue('vm', 'QEND'); W.q['vm'].pop()
        qtags = [x for x in W.q['vm'] if isinstance(x, tuple) and x[0] in ('QS', 'XS')]
        step(8)
        step(9)
        def get_tag():
            t("K1_CT_TAGP:")
            t("buffer_load_dword v232, off, s[4:7], 0 sc1"); t("s_waitcnt vmcnt(0)")
            t("v_readfirstlane_b32 s3, v232"); t("s_nop 3"); t("s_cmp_lg_u32 s3, 0"); t("s_cbranch_scc1 K1_CT_TAGD"); t("s_sleep 1"); t("s_branch K1_CT_TAGP")
            t("K1_CT_TAGD:")
        def qflag():
            T.extend(cap(lambda e: srd(e, 8, 's54', 's55', FL_OFF, FL_SIZE)))
            flag_store([f"s_lshl_b32 s34, s35, 7", f"s_add_u32 s34, s34, {FLQ}"], "K1_CT_NOQF")
        step(10, extra_need=qtags + ['TAG'], after_bar=None)
        t("v_readfirstlane_b32 s3, v243")
        t("s_nop 3")
        pend_qflag = True
        t("s_cmp_eq_u32 s28, 0"); t("s_cbranch_scc0 K1_CT_NOQF2")
        t("s_cmp_lg_u32 s3, 0"); t("s_cbranch_scc0 K1_CT_NOQF2")
        T.extend(cap(lambda e: srd(e, 8, 's54', 's55', FL_OFF, FL_SIZE)))
        t(f"s_lshl_b32 s34, s35, 7"); t(f"s_add_u32 s34, s34, {FLQ}")
        t("v_mov_b32 v232, s3"); t("v_cmp_eq_u32 vcc, 0, v240"); t("s_and_saveexec_b64 s[56:57], vcc")
        t("buffer_store_dword v232, off, s[8:11], s34 sc1")
        t("s_mov_b64 exec, s[56:57]")
        t("K1_CT_NOQF2:")
        step(11)
        stamp(T, 4)
        k0 = -2.0*1.4426950408889634*0.7978845608028654
        t("s_nop 7")
        t(f"v_mov_b32 v232, {fb(k0)}"); t(f"v_mov_b32 v234, {fb(k0*0.044715)}"); t("v_mov_b32 v236, 1.0")
        for k in range(4): t(f"v_mov_b32 v{252+k}, 0")
        def gelu(r):
            tt_ = 244 + 2*((r//2) % 4)
            X = f"v[{r}:{r+1}]"; Tt = f"v[{tt_}:{tt_+1}]"
            return [f"v_pk_mul_f32 {Tt}, {X}, {X}", f"v_pk_fma_f32 {Tt}, {Tt}, v[234:235], v[232:233] op_sel_hi:[1,0,0]", f"v_pk_mul_f32 {Tt}, {Tt}, {X}",
                    f"v_exp_f32 v{tt_}, v{tt_}", f"v_exp_f32 v{tt_+1}, v{tt_+1}", f"v_pk_add_f32 {Tt}, {Tt}, v[236:237] op_sel_hi:[1,0]",
                    f"v_rcp_f32 v{tt_}, v{tt_}", f"v_rcp_f32 v{tt_+1}, v{tt_+1}", f"v_pk_mul_f32 {X}, {X}, {Tt}",
                    f"v_pk_add_f32 v[252:253], v[252:253], {X}", f"v_pk_fma_f32 v[254:255], {X}, {X}, v[254:255]"]
        for q in range(4):
            cols = [gelu(ACCG + 8*q + 2*k) for k in range(4)]
            fillers[12+q] = [cols[k][i] for i in range(11) for k in range(4)]
        for sig in range(12, 16): step(sig)
        stamp(T, 5)
        t("v_add_f32 v8, v252, v253"); t("v_add_f32 v10, v254, v255"); t("v_mov_b32 v9, v8"); t("v_mov_b32 v11, v10"); t("s_nop 1")
        t("v_permlane32_swap_b32 v8, v9"); t("v_permlane32_swap_b32 v10, v11"); t("s_nop 1")
        t("v_add_f32 v8, v8, v9"); t("v_add_f32 v9, v10, v11")
        t("v_lshlrev_b32 v12, 3, v242"); t("s_lshl_b32 s33, s28, 8"); t("v_add_u32 v13, s33, v12")
        t("s_barrier")
        t("ds_write_b64 v13, v[8:9]")
        for aa in range(2):
            d = 244 if aa == 0 else 16
            pack_swap(T, ACCU+16*aa, d)
            for s_ in range(2): t(f"ds_write_b128 v{XO+2*aa+s_}, {vr(d+4*s_,4)} offset:16384")
        t("s_waitcnt lgkmcnt(0)"); t("s_barrier")
        for k in range(4): t(f"ds_read_b64 v[{24+2*k}:{25+2*k}], v12 offset:{256*k}")
        t("v_lshlrev_b32 v232, 4, v240"); t(f"s_add_u32 s33, s31, {EX}"); t("v_add_u32 v232, s33, v232")
        for k in range(4): t(f"ds_read_b128 {vr(96+4*k,4)}, v232 offset:{16384 + k*1024}")
        T.extend(cap(lambda e: (srd(e, 12, 's54', 's55', U_OFF, 8000*512), srd(e, 20, 's54', 's55', G_OFF, 8000*512))))
        t("s_lshl_b32 s56, s35, 14")
        t("s_waitcnt lgkmcnt(4)")
        t("v_add_f32 v24, v24, v26"); t("v_add_f32 v25, v25, v27"); t("v_add_f32 v28, v28, v30"); t("v_add_f32 v29, v29, v31")
        t("v_add_f32 v8, v24, v28"); t("v_add_f32 v9, v25, v29")
        t("v_mul_f32 v8, 0x3b800000, v8"); t("v_mul_f32 v9, 0x3b800000, v9")
        t("v_fma_f32 v9, -v8, v8, v9"); t("v_max_f32 v9, 0, v9"); t("v_add_f32 v9, 0x3727c5ac, v9")
        t("v_rsq_f32 v10, v9"); t("s_nop 0"); t("v_mul_f32 v12, v8, v10"); t("v_sub_f32 v12, 0, v12")
        t("s_waitcnt lgkmcnt(0)")
        for k in range(4): t(f"buffer_store_dwordx4 {vr(96+4*k,4)}, v{DS+k}, s[12:15], s56 offen offset:{k*1024}{ST}")
        for aa in range(2):
            for k in range(8):
                r = ACCG + 16*aa + 2*k
                t(f"v_pk_fma_f32 v[{r}:{r+1}], v[{r}:{r+1}], v[10:11], v[12:13] op_sel_hi:[1,0,0]")
            d = 32 + 8*aa
            pack_swap(T, ACCG+16*aa, d)
            for s_ in range(2): t(f"ds_write_b128 v{XO+2*aa+s_}, {vr(d+4*s_,4)}")
        t("s_waitcnt lgkmcnt(0)"); t("s_barrier")
        for k in range(4): t(f"ds_read_b128 {vr(112+4*k,4)}, v232 offset:{k*1024}")
        for k in range(4):
            t(f"s_waitcnt lgkmcnt({3-k})")
            t(f"buffer_store_dwordx4 {vr(112+4*k,4)}, v{DS+k}, s[20:23], s56 offen offset:{k*1024}{ST}")
        stamp(T, 6)
        finish(T, "K1_CT")
    W = Waiter(); T = []
    for s in range(8): W.issue('vm', ('X', s))
    dma_voff(T, False)
    T += cap(lambda e: (srd(e, 8, 's38', 's39', 0, 131072), srd(e, 12, 's40', 's41', 0, 131072),
                        srd(e, 20, 's54', 's55', XA_OFF, 8000*512), srd(e, 24, 's54', 's55', QF_OFF, 500*8192)))
    emit = [(n, 8, n*SLOT) for n in range(8)]
    for (n, sn, so) in emit[:npre]: emit_tile(T, W, n, sn, so)
    xb_setup(T); vn_setup(T)
    ln(T, W, emit[npre:o['nln']])
    if FF: T.append("buffer_load_dword v243, off, s[4:7], 0 sc1"); W.issue('vm', 'TAG')
    stamp(T, 1)
    ka_setup(T)
    stamp(T, 2)
    T.append("v_lshlrev_b32 v232, 4, v240"); T.append(f"s_add_u32 s33, s31, {EX}"); T.append("v_add_u32 v232, s33, v232")
    for half in range(2):
        for k in range(4):
            T.append(f"ds_read_b128 {vr(ACC[1]+(half*4+k)*4,4)}, v232 offset:{half*SLOT + k*1024}")
    T.append("s_waitcnt lgkmcnt(0)")
    T.append("s_lshl_b32 s34, s35, 15"); T.append("s_add_u32 s56, s34, 16384")
    xfill = []
    for half in range(2):
        for k in range(4):
            xfill.append((f"buffer_store_dwordx4 {vr(ACC[1]+(half*4+k)*4,4)}, v{DS+k}, s[20:23], {'s56' if half else 's34'} offen offset:{k*1024}{ST}", ('XS', half, k)))
    later = std_later(12)
    rest = emit[o['nln']:]
    if rest:
        later[0] = rest[:2]; later[1] = rest[2:4]
        if later[1] == [] : del later[1]
    tl0 = phase(W, 0, 'Y', later)
    for i, (txt, tag) in enumerate(xfill): tl0.add(1 + 2*i, 'vm', txt, tag=tag, prio=7)
    T += tl0.linearize()
    stamp(T, 3)
    exchange(T, W, ACC[0], 'Y', xaflag=FF and o.get('xaflag', True))
    stamp(T, 4)
    T.append("v_mov_b32 v236, 0x3db8aa3b")
    T.append("s_lshl_b32 s33, s35, 2"); T.append("s_lshl_b32 s34, s29, 1"); T.append("s_add_u32 s33, s33, s34"); T.append("s_lshl_b32 s33, s33, 13")
    T.append("s_lshl_b32 s34, s30, 10"); T.append("s_add_u32 s33, s33, s34")
    T.append("v_lshrrev_b32 v232, 4, v242"); T.append("v_lshlrev_b32 v232, 13, v232")
    T.append("v_and_b32 v233, 15, v242"); T.append("v_lshl_add_u32 v233, v241, 4, v233")
    T.append("v_lshl_add_u32 v232, v233, 4, v232"); T.append("v_add_u32 v232, s33, v232")
    for a in range(1, 4): T.append(f"v_add_u32 v{232+a}, {a*2048}, v232")
    def qepi(a):
        ls = []
        d = ACC[0] + 8*a
        pack_swap(ls, ACC[1]+16*a, d, scale="v[236:237]")
        st = [f"buffer_store_dwordx4 {vr(d+4*s,4)}, v{232+a}, s[24:27], 0 offen offset:{s*512}{ST}" for s in range(2)]
        return ls, st
    tl1 = phase(W, 1, 'X', later)
    if o.get('qprog', True):
        for a in range(3):
            ls, st = qepi(a)
            t0 = 16*(a+1) + 4
            for i, ins in enumerate(ls): tl1.add(t0 + i*0.4, 'txt', ins, prio=4)
            for i, ins in enumerate(st): tl1.add(t0 + len(ls)*0.4 + 0.5 + i, 'vm', ins, tag=('QS', a, i), prio=7)
    T += tl1.linearize()
    stamp(T, 5)
    T.append("s_nop 15")
    for a in (range(3, 4) if o.get('qprog', True) else range(4)):
        ls, st = qepi(a)
        T += ls + st
    finish(T, "K1_Q")

    W = Waiter(); T = []
    for s in range(8): W.issue('vm', ('X', s))
    dma_voff(T, True)
    T += cap(lambda e: (srd(e, 8, 's46', 's47', 0, 262144),
                        srd(e, 20, 's54', 's55', U_OFF, 8000*512), srd(e, 24, 's54', 's55', G_OFF, 8000*512)))
    emit = [(n, 8, n*32768 + 512) for n in range(8)]
    for (n, sn, so) in emit[:npre]: emit_tile(T, W, n, sn, so)
    xb_setup(T); vn_setup(T)
    ln(T, W, emit[npre:o['nln']])
    if FF: T.append("buffer_load_dword v243, off, s[4:7], 0 sc1"); W.issue('vm', 'TAG')
    stamp(T, 2)
    gl = lambda n: (n, 8, (n-8)*32768)
    later = {2: [gl(8), gl(9)], 3: [gl(10), gl(11)], 4: [gl(12), gl(13)], 5: [gl(14), gl(15)]}
    rest = emit[o['nln']:]
    if rest:
        later[0] = rest[:2]; later[1] = rest[2:4]
    T += phase(W, 0, 'Y', later).linearize()
    stamp(T, 3)
    k0 = -2.0*1.4426950408889634*0.7978845608028654
    T.append(f"v_mov_b32 v232, {fb(k0)}"); T.append(f"v_mov_b32 v234, {fb(k0*0.044715)}"); T.append("v_mov_b32 v236, 1.0")
    for k in range(4): T.append(f"v_mov_b32 v{252+k}, 0")
    def gelu(r):
        t = 244 + 2*((r//2) % 4)
        X = f"v[{r}:{r+1}]"; Tt = f"v[{t}:{t+1}]"
        return [f"v_pk_mul_f32 {Tt}, {X}, {X}",
                f"v_pk_fma_f32 {Tt}, {Tt}, v[234:235], v[232:233] op_sel_hi:[1,0,0]",
                f"v_pk_mul_f32 {Tt}, {Tt}, {X}",
                f"v_exp_f32 v{t}, v{t}", f"v_exp_f32 v{t+1}, v{t+1}",
                f"v_pk_add_f32 {Tt}, {Tt}, v[236:237] op_sel_hi:[1,0]",
                f"v_rcp_f32 v{t}, v{t}", f"v_rcp_f32 v{t+1}, v{t+1}",
                f"v_pk_mul_f32 {X}, {X}, {Tt}",
                f"v_pk_add_f32 v[252:253], v[252:253], {X}",
                f"v_pk_fma_f32 v[254:255], {X}, {X}, v[254:255]"]
    fill = []
    g0 = ACC[0]
    for b in range(g0, g0+64, 8):
        cols = [gelu(b+2*k) for k in range(4)]
        for i in range(11):
            for k in range(4): fill.append(cols[k][i])
    T += phase(W, 1, 'Y', later, fill=fill, f0=4).linearize()
    stamp(T, 5)
    T.append("v_add_f32 v8, v252, v253"); T.append("v_add_f32 v10, v254, v255")
    T.append("v_mov_b32 v9, v8"); T.append("v_mov_b32 v11, v10"); T.append("s_nop 1")
    T.append("v_permlane32_swap_b32 v8, v9"); T.append("v_permlane32_swap_b32 v10, v11"); T.append("s_nop 1")
    T.append("v_add_f32 v8, v8, v9"); T.append("v_add_f32 v9, v10, v11")
    T.append("s_lshl_b32 s33, s29, 1"); T.append("s_add_u32 s33, s33, s30"); T.append("s_lshl_b32 s33, s33, 9"); T.append("s_add_u32 s33, s33, 32768")
    T.append("v_lshlrev_b32 v12, 3, v240"); T.append("v_add_u32 v13, s33, v12")
    T.append("s_xor_b32 s33, s33, 512"); T.append("v_add_u32 v14, s33, v12")
    T.append("ds_write_b64 v13, v[8:9]")
    for a in range(4):
        d = 244 if a % 2 == 0 else 16
        pack_swap(T, ACC[1]+16*a, d)
        for s in range(2):
            T.append(f"ds_write_b128 v{XB+2*a+s}, {vr(d+4*s,4)}")
    T.append("s_waitcnt lgkmcnt(0)"); T.append("s_barrier")
    T.append("ds_read_b64 v[10:11], v14")
    T.append("v_lshlrev_b32 v15, 4, v240"); T.append("v_add_u32 v15, s31, v15"); T.append(f"v_add_u32 v232, {EX}, v15")
    for half in range(2):
        for k in range(4):
            T.append(f"ds_read_b128 {vr(ACC[1]+(half*4+k)*4,4)}, v232 offset:{half*SLOT + k*1024}")
    for jj in range(8): T.append(f"v_subrev_u32 v{XB+jj}, {EX}, v{XB+jj}")
    T.append("s_waitcnt lgkmcnt(8)")
    T.append("v_add_f32 v8, v8, v10"); T.append("v_add_f32 v9, v9, v11")
    T.append("v_mul_f32 v8, 0x3b800000, v8"); T.append("v_mul_f32 v9, 0x3b800000, v9")
    T.append("v_fma_f32 v9, -v8, v8, v9"); T.append("v_max_f32 v9, 0, v9"); T.append("v_add_f32 v9, 0x3727c5ac, v9")
    T.append("v_rsq_f32 v10, v9"); T.append("s_nop 0")
    T.append("v_mul_f32 v12, v8, v10"); T.append("v_sub_f32 v12, 0, v12")
    T.append("s_lshl_b32 s32, s35, 15"); T.append("s_add_u32 s56, s32, 16384")
    T.append("s_waitcnt lgkmcnt(0)")
    ust = [f"buffer_store_dwordx4 {vr(ACC[1]+(half*4+k)*4,4)}, v{DS+k}, s[20:23], {'s56' if half else 's32'} offen offset:{k*1024}{ST}" for half in range(2) for k in range(4)]
    for a in range(4):
        for k in range(8):
            r = g0 + 16*a + 2*k
            T.append(f"v_pk_fma_f32 v[{r}:{r+1}], v[{r}:{r+1}], v[10:11], v[12:13] op_sel_hi:[1,0,0]")
        T.append(ust.pop(0))
        pack_swap(T, g0+16*a, 16+8*a)
        for s in range(2):
            T.append(f"ds_write_b128 v{XB+2*a+s}, {vr(16+8*a+4*s,4)}")
        T.append(ust.pop(0))
    stamp(T, 6)
    T.append("s_waitcnt lgkmcnt(0)"); T.append("s_barrier")
    for half in range(2):
        for k in range(4):
            T.append(f"ds_read_b128 {vr(ACC[0]+(half*4+k)*4,4)}, v15 offset:{half*SLOT + k*1024}")
    for half in range(2):
        for k in range(4):
            T.append(f"s_waitcnt lgkmcnt({7 - (half*4+k)})")
            T.append(f"buffer_store_dwordx4 {vr(ACC[0]+(half*4+k)*4,4)}, v{DS+k}, s[24:27], {'s56' if half else 's32'} offen offset:{k*1024}{ST}")
    stamp(T, 7)
    finish(T, "K1_UG")

    def wf_store(T, acc, which, slice_sreg):
        T.append(f"s_lshl_b32 s33, {slice_sreg}, 2"); T.append("s_lshl_b32 s34, s29, 1"); T.append("s_add_u32 s33, s33, s34"); T.append("s_lshl_b32 s33, s33, 14")
        T.append("s_lshl_b32 s34, s30, 10"); T.append("s_add_u32 s33, s33, s34")
        if which == 2: T.append("s_add_u32 s33, s33, 8192")
        T.append("v_lshrrev_b32 v232, 4, v242"); T.append("v_lshlrev_b32 v232, 14, v232")
        T.append("v_and_b32 v233, 15, v242"); T.append("v_lshl_add_u32 v233, v241, 4, v233")
        T.append("v_lshl_add_u32 v232, v233, 4, v232"); T.append("v_add_u32 v232, s33, v232")
        for a in range(4):
            d = 244; src = acc + 16*a
            if which == 1:
                for k, r in enumerate((0, 2, 8, 10, 4, 6, 12, 14)):
                    T.append(f"v_cvt_pk_bf16_f32 v{d+k}, v{src+r}, v{src+r+1}")
            else:
                pack_swap(T, src, d)
            T.append(f"s_mov_b32 s33, {a*2048}")
            for s in range(2):
                T.append(f"buffer_store_dwordx4 {vr(d+4*s,4)}, v232, s[24:27], s33 offen offset:{s*512}{ST}")
            T.append("s_nop 1")
    W = Waiter(); T = []
    dma_voff(T, False)
    T.append("s_sub_u32 s35, s2, 250")
    T += cap(lambda e: (srd(e, 16, 's52', 's53', 0, 262144), srd(e, 8, 's44', 's45', 0, 131072), srd(e, 12, 's42', 's43', 0, 131072),
                        srd(e, 24, 's54', 's55', WF_OFF, 262144)))
    narrow(T, W, 0, 's35')
    for n in range(3): emit_tile(T, W, n, 8, n*SLOT)
    ka_setup(T)
    narrow_read(T, W)
    for n in range(3, 8): emit_tile(T, W, n, 8, n*SLOT)
    if FF: T.append("buffer_load_dword v243, off, s[4:7], 0 sc1"); W.issue('vm', 'TAG')
    later = std_later(12)
    T += phase(W, 0, 'X', later).linearize()
    T.append("s_barrier")
    exchange(T, W, ACC[0], 'X')
    T += phase(W, 1, 'X', later).linearize()
    T.append("s_nop 15")
    wf_store(T, ACC[1], 1, 's35')
    finish(T, "K1_W1")

    W = Waiter(); T = []
    if not FUSED: T += cap(lambda e: srd(e, 20, 's54', 's55', FL_OFF, 8192))
    if not FUSED:
        T.append("v_lshlrev_b32 v232, 5, v0")
        for k in range(4): T.append(f"v_mov_b32 v{236+k}, 0")
        T.append("buffer_store_dwordx4 v[236:239], v232, s[20:23], 0 offen sc1")
        T.append("buffer_store_dwordx4 v[236:239], v232, s[20:23], 0 offen offset:16 sc1")
        W.issue('vm', 'Z0'); W.issue('vm', 'Z1')
    dma_voff(T, False)
    T.append("s_sub_u32 s35, s2, 254"); T.append("s_lshl_b32 s35, s35, 1")
    T += cap(lambda e: (srd(e, 16, 's52', 's53', 0, 262144), srd(e, 8, 's50', 's51', 0, 131072),
                        srd(e, 24, 's54', 's55', WF_OFF, 262144)))
    narrow(T, W, 131072, 's35')
    for n in range(3): emit_tile(T, W, n, 8, n*SLOT)
    ka_setup(T)
    narrow_read(T, W)
    for n in range(3, 8): emit_tile(T, W, n, 8, n*SLOT)
    if FF: T.append("buffer_load_dword v243, off, s[4:7], 0 sc1"); W.issue('vm', 'TAG')
    T.append("s_barrier")
    T.append("s_add_u32 s56, s35, 1")
    narrow(T, W, 131072, 's56')
    later = std_later(8)
    T += phase(W, 0, 'X', later).linearize()
    T.append("s_nop 15")
    wf_store(T, ACC[0], 2, 's35')
    for i in range(8): W.issue('vm', ('WS', i))
    narrow_read(T, W)
    T += phase(W, 1, 'X', later).linearize()
    T.append("s_nop 15")
    wf_store(T, ACC[1], 2, 's56')
    finish(T, "K1_W2")

    e("K1_FIN:")
    if FUSED:
        if o['stamp']:
            e("s_waitcnt vmcnt(0)"); e("s_memtime s[64:65]"); e("s_memrealtime s[66:67]"); e("s_waitcnt lgkmcnt(0)")
            e("s_cmp_eq_u32 s28, 0"); e("s_cbranch_scc0 K1_NOST")
            e("s_add_u32 s68, s54, 0x8100000"); e("s_addc_u32 s69, s55, 0"); e("s_mov_b32 s70, 0x100000"); e("s_mov_b32 s71, 0x20000")
            for k, r in enumerate([60, 64, 62, 66]): e(f"v_mov_b32 v{232+k}, s{r}")
            e("s_lshl_b32 s33, s2, 4"); e("v_mov_b32 v236, s33")
            e("buffer_store_dwordx4 v[232:235], v236, s[68:71], 0 offen")
            for k in range(8): e(f"v_mov_b32 v{244+k}, s{72+2*k}")
            e("s_lshl_b32 s33, s2, 5"); e("s_add_u32 s33, s33, 0x10000"); e("v_mov_b32 v236, s33")
            e("buffer_store_dwordx4 v[244:247], v236, s[68:71], 0 offen")
            e("buffer_store_dwordx4 v[248:251], v236, s[68:71], 0 offen offset:16")
            e("K1_NOST:")
        if FF:
            e("s_lshl_b32 s33, s2, 7")
            fa, fb_ = (FLU, FLQ) if o.get('ugfirst', True) else (FLQ, FLU)
            e(f"s_add_u32 s67, s33, {fa}")
            e(f"s_add_u32 s56, s33, {fb_ - 125*128}"); e("s_cmp_ge_u32 s2, 125"); e("s_cselect_b32 s67, s56, s67")
            e(f"s_add_u32 s56, s33, {FLW - 250*128}"); e("s_cmp_ge_u32 s2, 250"); e("s_cselect_b32 s67, s56, s67")
            for k in range(4): e(f"s_mov_b32 s{92+k}, s{4+k}")
            for x in ["s_mov_b32 s4, s54", "s_mov_b32 s5, s55", "s_mov_b32 s32, s48", "s_mov_b32 s33, s49", "s_mov_b32 s40, s100", "s_mov_b32 s41, s101", "s_mov_b32 s48, s28", "s_mov_b32 s101, 0"]: e(x)
            return L, [], []
        e("K1_TAGP:")
        e("buffer_load_dword v232, off, s[4:7], 0 sc1")
        e("s_waitcnt vmcnt(0) lgkmcnt(0)")
        e("v_readfirstlane_b32 s3, v232")
        e("s_nop 3")
        e("s_cmp_lg_u32 s3, 0"); e("s_cbranch_scc1 K1_TAGD"); e("s_sleep 1")
        e("s_add_u32 s101, s101, 1"); e("s_cmp_lt_u32 s101, 0x400000"); e("s_cbranch_scc1 K1_TAGP")
        e("K1_TAGD:")
        e("s_barrier")
        e("s_cmp_eq_u32 s28, 0"); e("s_cbranch_scc0 K1_NOFL")
        e("s_lshl_b32 s33, s2, 7")
        fa, fb_ = (FLU, FLQ) if o.get('ugfirst', True) else (FLQ, FLU)
        if CT:
            e(f"s_add_u32 s34, s33, {FLU}")
        else:
            e(f"s_add_u32 s34, s33, {fa}")
            e(f"s_add_u32 s56, s33, {fb_ - 125*128}"); e("s_cmp_ge_u32 s2, 125"); e("s_cselect_b32 s34, s56, s34")
        e(f"s_add_u32 s56, s33, {FLW - 250*128}"); e("s_cmp_ge_u32 s2, 250"); e("s_cselect_b32 s34, s56, s34")
        srd(e, 8, 's54', 's55', FL_OFF, FL_SIZE)
        e("v_mov_b32 v232, s3")
        e("v_cmp_eq_u32 vcc, 0, v240"); e("s_and_saveexec_b64 s[56:57], vcc")
        e("buffer_store_dword v232, off, s[8:11], s34 sc1")
        if CT:
            e(f"s_add_u32 s34, s33, {FLQ}"); e("s_cmp_lt_u32 s2, 250"); e("s_cbranch_scc0 K1_NOFL2")
            e("buffer_store_dword v232, off, s[8:11], s34 sc1")
            e("K1_NOFL2:")
        e("s_mov_b64 exec, s[56:57]")
        e("K1_NOFL:")
        e("s_mov_b32 s48, s28")
        return L, [], []
    if o['stamp']:
        e("s_waitcnt vmcnt(0)")
        e("s_memtime s[64:65]"); e("s_memrealtime s[66:67]")
        e("s_waitcnt lgkmcnt(0)")
        e("s_cmp_eq_u32 s28, 0"); e("s_cbranch_scc0 K1_END")
        e("s_add_u32 s68, s54, 0x8100000"); e("s_addc_u32 s69, s55, 0"); e("s_mov_b32 s70, 0x100000"); e("s_mov_b32 s71, 0x20000")
        for k, r in enumerate([60, 64, 62, 66]): e(f"v_mov_b32 v{232+k}, s{r}")
        e("s_lshl_b32 s33, s2, 4"); e("v_mov_b32 v236, s33")
        e("buffer_store_dwordx4 v[232:235], v236, s[68:71], 0 offen")
        for k in range(8): e(f"v_mov_b32 v{244+k}, s{72+2*k}")
        e("s_lshl_b32 s33, s2, 5"); e("s_add_u32 s33, s33, 0x10000"); e("v_mov_b32 v236, s33")
        e("buffer_store_dwordx4 v[244:247], v236, s[68:71], 0 offen")
        e("buffer_store_dwordx4 v[248:251], v236, s[68:71], 0 offen offset:16")
    e("K1_END:")
    e("s_endpgm")
    return L, kernel_desc(name, 288, 256), []
```

```python
from gen_common import *
from tl import TL
import hazard, struct
SLOT = 16384
EX = 131072
fb = lambda x: hex(struct.unpack('<I', struct.pack('<f', x))[0])

def gen_k1(opt=None):
    o = dict(D=6, stamp=False, st='', npre=2, nln=4)
    if opt: o.update(opt)
    D = o['D']; ST = (' ' + o['st']) if o['st'] else ''
    FUSED = o.get('fused')
    name = FUSED if FUSED else 'prep_kernel'
    L = []; e = L.append
    B = 0; ACC = [64, 128]; KA = 192; KA2 = 200; VN = 208; VN2 = 216; DV = 224; DS = 228; XB = 200
    aR = 0; R = 8
    def stamp(T, k):
        if o['stamp']: T.append(f"s_memrealtime s[{72+2*k}:{73+2*k}]")
    L += kernel_header(name)
    e("s_cmp_ge_u32 s2, 256")
    e("s_cbranch_scc1 K2_END" if FUSED else "s_cbranch_scc1 K1_END")
    e("s_load_dwordx16 s[36:51], s[0:1], 0")
    e("s_load_dwordx2 s[52:53], s[0:1], 64")
    e("s_load_dwordx2 s[54:55], s[0:1], 88")
    FF = FUSED and o.get('fastfin', True) and not o.get('ct')
    if FUSED: e("s_load_dwordx2 s[58:59], s[0:1], 80")
    if FF: e("s_load_dwordx2 s[100:101], s[0:1], 72")
    if FUSED and not FF: e("s_mov_b32 s101, 0")
    if o['stamp']:
        e("s_memtime s[60:61]"); e("s_memrealtime s[62:63]")
    e("v_lshrrev_b32 v232, 6, v0")
    e("v_and_b32 v240, 63, v0")
    e("v_lshrrev_b32 v241, 5, v240")
    e("v_and_b32 v242, 31, v240")
    e("v_readfirstlane_b32 s28, v232")
    e("s_and_b32 s29, s28, 1")
    e("s_lshr_b32 s30, s28, 1")
    e("s_lshl_b32 s31, s28, 12")
    CT = o.get('ct')
    if CT: e("s_mov_b32 s35, s2")
    else: e("s_sub_u32 s35, s2, 125"); e("s_cmp_lt_u32 s2, 125"); e("s_cselect_b32 s35, s2, s35")
    e("s_lshl_b32 s33, s28, 1")
    for k in range(4):
        e(f"v_add_u32 v234, {2*k}, v241"); e("v_and_b32 v234, 3, v234"); e("v_lshlrev_b32 v234, 2, v234")
        e(f"s_add_u32 s34, s33, {k>>1}"); e("s_and_b32 s34, s34, 3")
        e("v_or_b32 v234, s34, v234"); e("v_xor_b32 v234, v242, v234"); e("v_lshlrev_b32 v234, 4, v234")
        e("v_lshl_add_u32 v234, v241, 9, v234")
        e(f"v_add_u32 v{DS+k}, s31, v234")
    e("s_waitcnt lgkmcnt(0)")
    if FUSED:
        e("s_mov_b32 s4, s58"); e("s_mov_b32 s5, s59"); e("s_mov_b32 s6, 256"); e("s_mov_b32 s7, 0x20000")
        e("s_or_b32 s33, s2, s28"); e("s_cmp_eq_u32 s33, 0"); e("s_cbranch_scc0 K1_NOTAG")
        e("s_memrealtime s[56:57]"); e("s_waitcnt lgkmcnt(0)"); e("s_or_b32 s56, s56, 1")
        e("v_mov_b32 v234, s56")
        e("buffer_store_dword v234, off, s[4:7], 0 sc1")
        e("K1_NOTAG:")
    e("s_cmp_lt_u32 s2, 250"); e("s_cbranch_scc0 K1_NOX")
    srd(e, 16, 's36', 's37', 0, 8000*512)
    e("s_lshl_b32 s32, s35, 14" if CT else "s_lshl_b32 s32, s35, 15")
    for half in range(1 if CT else 2):
        e(f"s_add_u32 m0, s31, {EX + half*SLOT:#x}")
        if half: e("s_add_u32 s32, s32, 16384")
        else: e("s_nop 0")
        for k in range(4):
            e(f"buffer_load_dwordx4 v{DS+k}, s[16:19], s32 offen offset:{k*1024} lds")
    PU = FUSED and o.get('pfug', True) and o.get('ugfirst', True) and not CT
    if PU:
        e("s_cmp_lt_u32 s2, 128"); e("s_cbranch_scc0 K1_NOX")
        e("s_lshr_b32 s33, s2, 3"); e("s_lshl_b32 s33, s33, 2"); e("s_add_u32 s33, s33, s28")
        e("v_lshlrev_b32 v232, 4, v240")
        e("s_getpc_b64 s[56:57]")
        e("K1_PCREF:")
        e(f"s_add_u32 s56, s56, K1_NOX-K1_PCREF"); e("s_addc_u32 s57, s57, 0")
        e("s_lshl_b32 s34, s33, 10"); e("v_add_u32 v233, s34, v232")
        e(f"s_cmp_lt_u32 s34, {o.get('ipfbytes', 61440)}"); e("s_cbranch_scc0 K1_NOIPF")
        e("global_load_dwordx4 v[252:255], v233, s[56:57]")
        e("K1_NOIPF:")
        e("s_mov_b32 s8, s40"); e("s_mov_b32 s9, s41"); e("s_mov_b32 s10, 131072"); e("s_mov_b32 s11, 0x20000")
        e("s_lshl_b32 s34, s33, 11")
        e("buffer_load_dwordx4 v[100:103], v232, s[8:11], s34 offen")
        e("buffer_load_dwordx4 v[104:107], v232, s[8:11], s34 offen offset:1024")
        e("s_and_b32 s33, s2, 7"); e("s_cmp_lt_u32 s33, 2"); e("s_cbranch_scc1 K1_NOX")
        e("s_lshr_b32 s34, s2, 3")
        e("s_add_u32 s56, s52, 131072"); e("s_addc_u32 s57, s53, 0")
        e("s_cmp_ge_u32 s33, 6"); e("s_cselect_b32 s8, s50, s44"); e("s_cselect_b32 s9, s51, s45"); e("s_cselect_b32 s56, s56, s42"); e("s_cselect_b32 s57, s57, s43")
        e("s_cmp_lt_u32 s34, 8"); e("s_cselect_b32 s8, s8, s56"); e("s_cselect_b32 s9, s9, s57")
        e("s_and_b32 s34, s34, 7"); e("s_lshl_b32 s34, s34, 14"); e("s_lshl_b32 s33, s28, 12"); e("s_add_u32 s34, s34, s33")
        for k in range(4): e(f"buffer_load_dwordx4 v[{108+4*k}:{111+4*k}], v232, s[8:11], s34 offen offset:{k*1024}")
    else:
        if FUSED and o.get('ipf', True):
            e("s_getpc_b64 s[56:57]")
            e("K1_PCREF:")
            e(f"s_add_u32 s56, s56, {o.get('ipfbase', 'K1_NOX')}-K1_PCREF"); e("s_addc_u32 s57, s57, 0")
            e("s_lshr_b32 s33, s2, 3"); e("s_lshl_b32 s33, s33, 2"); e("s_add_u32 s33, s33, s28"); e("s_lshl_b32 s33, s33, 10")
            e(f"s_cmp_lt_u32 s33, {o.get('ipfbytes', 61440)}"); e("s_cbranch_scc0 K1_NOIPF")
            e("v_lshlrev_b32 v232, 4, v240"); e("v_add_u32 v232, s33, v232")
            e("global_load_dwordx4 v[252:255], v232, s[56:57]")
            e("K1_NOIPF:")
        if o.get('wpf', False):
            e("s_lshr_b32 s33, s2, 3"); e("s_lshl_b32 s33, s33, 2"); e("s_add_u32 s33, s33, s28")
            e("v_lshlrev_b32 v232, 4, v240")
            e("s_mov_b32 s8, s40"); e("s_mov_b32 s9, s41"); e("s_mov_b32 s10, 131072"); e("s_mov_b32 s11, 0x20000")
            e("s_lshl_b32 s34, s33, 10")
            e("buffer_load_dwordx4 v[100:103], v232, s[8:11], s34 offen")
            if o.get('wpf') != 'k':
                e("s_mov_b32 s8, s46"); e("s_mov_b32 s9, s47"); e("s_mov_b32 s10, 262144")
                e("s_lshl_b32 s34, s33, 11")
                e("buffer_load_dwordx4 v[104:107], v232, s[8:11], s34 offen")
                e("buffer_load_dwordx4 v[108:111], v232, s[8:11], s34 offen offset:1024")
        if FUSED and o.get('tlb', False):
            e("s_load_dwordx2 s[56:57], s[0:1], 72"); e("s_waitcnt lgkmcnt(0)")
            e("s_cmp_eq_u32 s28, 1"); e("s_cbranch_scc0 K1_NOTLB")
            srd(e, 8, 's54', 's55', OP_OFF, 64*16*16384)
            e("v_lshlrev_b32 v232, 21, v240")
            e("buffer_load_dword v112, v232, s[8:11], 0 offen")
            e("s_mov_b32 s8, s56"); e("s_mov_b32 s9, s57"); e("s_mov_b32 s10, 4096000")
            e("buffer_load_dword v113, v232, s[8:11], 0 offen")
            e("K1_NOTLB:")
        if o.get('pf', True):
            e("s_and_b32 s33, s2, 7"); e("s_cmp_lt_u32 s33, 2"); e("s_cbranch_scc1 K1_NOPF")
            e("s_lshr_b32 s34, s2, 3")
            e("s_cmp_ge_u32 s33, 6"); e("s_cbranch_scc1 K1_PF2")
            e("s_cmp_lt_u32 s34, 16"); e("s_cselect_b32 s8, s44, s42"); e("s_cselect_b32 s9, s45, s43")
            e("s_and_b32 s34, s34, 15"); e("s_lshl_b32 s34, s34, 13")
            e("s_branch K1_PF3")
            e("K1_PF2:")
            e("s_add_u32 s56, s52, 131072"); e("s_addc_u32 s57, s53, 0")
            e("s_cmp_lt_u32 s34, 16"); e("s_cselect_b32 s8, s50, s56"); e("s_cselect_b32 s9, s51, s57")
            e("s_and_b32 s34, s34, 15"); e("s_lshl_b32 s34, s34, 13")
            e("K1_PF3:")
            e("s_mov_b32 s10, 131072"); e("s_mov_b32 s11, 0x20000")
            e("v_lshlrev_b32 v232, 4, v240"); e("s_lshl_b32 s33, s28, 11"); e("s_add_u32 s34, s34, s33")
            e("buffer_load_dwordx4 v[244:247], v232, s[8:11], s34 offen")
            e("buffer_load_dwordx4 v[248:251], v232, s[8:11], s34 offen offset:1024")
            e("K1_NOPF:")
        pass
    e("K1_NOX:")
    first, second = ("K1_UG", "K1_Q") if o.get('ugfirst', True) else ("K1_Q", "K1_UG")
    if CT:
        e("s_cmp_lt_u32 s2, 250"); e("s_cbranch_scc1 K1_CT")
    else:
        e("s_cmp_lt_u32 s2, 125"); e(f"s_cbranch_scc1 {first}")
        e("s_cmp_lt_u32 s2, 250"); e(f"s_cbranch_scc1 {second}")
    e("s_cmp_lt_u32 s2, 254"); e("s_cbranch_scc1 K1_W1")
    e("s_branch K1_W2")

    def k_addr(T, dst, dst2, base_lines):
        t = T.append
        t("v_and_b32 v234, 3, v242"); t("v_lshlrev_b32 v234, 2, v234"); t("v_bfe_u32 v235, v242, 2, 2")
        t("v_or_b32 v234, v234, v235"); t("v_lshlrev_b32 v236, 9, v242")
        for x in base_lines: t(x)
        t("v_add_u32 v236, s33, v236")
        for jj in range(8):
            t(f"v_add_u32 v235, {2*jj}, v241"); t("v_xor_b32 v235, v235, v234")
            t(f"v_lshl_add_u32 v{dst+jj}, v235, 4, v236")
            if dst2 is not None: t(f"v_add_u32 v{dst2+jj}, 0x10000, v{dst+jj}")
    def ka_setup(T): k_addr(T, KA, KA2, ["s_lshl_b32 s33, s30, 14"])
    def xb_setup(T): k_addr(T, XB, None, ["s_lshl_b32 s33, s29, 14", f"s_add_u32 s33, s33, {EX}", "s_lshl_b32 s34, s30, 8", "s_add_u32 s33, s33, s34"])
    def vn_setup(T):
        t = T.append
        t("v_bfe_u32 v234, v240, 4, 1"); t("v_bfe_u32 v235, v240, 2, 2"); t("v_bfe_u32 v236, v240, 1, 1")
        t("v_lshl_add_u32 v236, v234, 1, v236"); t("v_and_b32 v237, 1, v240"); t("v_lshlrev_b32 v237, 3, v237")
        t("v_lshl_add_u32 v238, v241, 3, v235"); t("v_lshl_add_u32 v237, v238, 9, v237")
        t("s_lshl_b32 s33, s30, 8"); t("v_add_u32 v237, s33, v237")
        for a in range(4):
            for u in range(2):
                t(f"v_lshl_add_u32 v238, v241, 1, {u}"); t("v_lshl_or_b32 v238, v235, 2, v238")
                t(f"v_add_u32 v239, {4*a}, v236"); t("v_xor_b32 v238, v238, v239")
                t(f"v_lshl_add_u32 v{VN+a*2+u}, v238, 4, v237")
                if u: t(f"v_add_u32 v{VN+a*2+u}, {4*512}, v{VN+a*2+u}")
                t(f"v_add_u32 v{VN2+a*2+u}, 0x10000, v{VN+a*2+u}")
    def dma_voff(T, stride1024):
        t = T.append
        if not stride1024:
            for k in range(4): t(f"v_mov_b32 v{DV+k}, v{DS+k}")
            return
        t("s_lshl_b32 s33, s28, 1")
        for k in range(4):
            t(f"v_add_u32 v234, {2*k}, v241"); t("v_and_b32 v234, 3, v234"); t("v_lshlrev_b32 v234, 2, v234")
            t(f"s_add_u32 s34, s33, {k>>1}"); t("s_and_b32 s34, s34, 3")
            t("v_or_b32 v234, s34, v234"); t("v_xor_b32 v234, v242, v234"); t("v_lshlrev_b32 v234, 4, v234")
            t("v_lshl_add_u32 v234, v241, 10, v234"); t("s_lshl_b32 s34, s28, 13"); t(f"s_add_u32 s34, s34, {k*1024}")
            t(f"v_add_u32 v{DV+k}, s34, v234")
    def tile_dma(n, srdn, soff):
        if o.get('nodma'): return []
        r = [(f"s_add_u32 m0, s31, {(n%8)*SLOT:#x}", False), (f"s_mov_b32 s32, {soff:#x}", False)]
        for k in range(4):
            r.append((f"buffer_load_dwordx4 v{DV+k}, s[{srdn}:{srdn+3}], s32 offen offset:{k*1024} lds", True))
        return r
    def emit_tile(out, W, n, srdn, soff):
        for txt, vm in tile_dma(n, srdn, soff):
            out.append(txt)
            if vm: W.issue('vm', ('T', n))
    def out_rows(T, W, srdn, tag, OB):
        t = T.append
        t("v_lshlrev_b32 v232, 4, v240"); t(f"s_add_u32 s33, s31, {EX}"); t("v_add_u32 v232, s33, v232")
        for half in range(2):
            for k in range(4):
                t(f"ds_read_b128 {vr(OB+(half*4+k)*4,4)}, v232 offset:{half*SLOT + k*1024}")
        t("s_lshl_b32 s32, s35, 15")
        for half in range(2):
            if half: t("s_add_u32 s32, s32, 16384")
            for k in range(4):
                t(f"s_waitcnt lgkmcnt({7 - (half*4+k)})")
                t(f"buffer_store_dwordx4 {vr(OB+(half*4+k)*4,4)}, v{DS+k}, s[{srdn}:{srdn+3}], s32 offen offset:{k*1024}{ST}")
                W.issue('vm', (tag, half, k))
        W.drain('lgkm')
    def ln(out, W, tiles):
        nw = W.need('vm', [('X', 7)])
        out.append(f"s_waitcnt vmcnt({nw})")
        out.append("s_barrier")
        stamp(out, 0)
        for s in range(8):
            out.append(f"ds_read_b128 {vr(64+4*s,4)}, v{XB+s}")
        body = []; b = body.append
        b("s_mov_b32 s34, 0x3f803f80")
        for k in range(4): b(f"v_mov_b32 v{232+k}, 0")
        for r in range(32):
            if r % 4 == 0: b(f"s_waitcnt lgkmcnt({7 - r//4})")
            b(f"v_dot2_f32_bf16 v{232+(r&1)}, v{64+r}, s34, v{232+(r&1)}")
            b(f"v_dot2_f32_bf16 v{234+(r&1)}, v{64+r}, v{64+r}, v{234+(r&1)}")
        b("s_nop 2")
        b("v_add_f32 v232, v232, v233"); b("v_add_f32 v234, v234, v235")
        b("v_mov_b32 v233, v232"); b("v_mov_b32 v235, v234"); b("s_nop 1")
        b("v_permlane32_swap_b32 v232, v233"); b("v_permlane32_swap_b32 v234, v235"); b("s_nop 1")
        b("v_add_f32 v232, v232, v233"); b("v_add_f32 v233, v234, v235")
        b(f"ds_write_b64 v{XB}, v[232:233]")
        b(f"v_xor_b32 v238, 256, v{XB}")
        b("s_waitcnt lgkmcnt(0)")
        b("s_barrier")
        b("ds_read_b64 v[234:235], v238")
        b("s_waitcnt lgkmcnt(0)")
        b("v_add_f32 v232, v232, v234"); b("v_add_f32 v234, v233, v235")
        b("v_mul_f32 v232, 0x3b800000, v232"); b("v_mul_f32 v234, 0x3b800000, v234")
        b("v_fma_f32 v234, -v232, v232, v234"); b("v_max_f32 v234, 0, v234"); b("v_add_f32 v234, 0x3727c5ac, v234")
        b("v_rsq_f32 v234, v234"); b("s_nop 0")
        b("v_mul_f32 v236, v232, v234"); b("v_sub_f32 v236, 0, v236")
        b("s_barrier")
        for r in range(32):
            t = 244 + 2*(r % 4)
            b(f"v_lshlrev_b32 v{t}, 16, v{64+r}")
            b(f"v_and_b32 v{t+1}, 0xffff0000, v{64+r}")
            b(f"v_pk_fma_f32 v[{t}:{t+1}], v[{t}:{t+1}], v[234:235], v[236:237] op_sel_hi:[1,0,0]")
            b(f"v_cvt_pk_bf16_f32 v{64+r}, v{t}, v{t+1}")
            if r % 4 == 3: b(f"ds_write_b128 v{XB+r//4}, {vr(64+r-3,4)}")
        b("s_waitcnt lgkmcnt(0)")
        b("s_barrier")
        b("s_lshl_b32 s33, s30, 8")
        for jj in range(8): b(f"v_subrev_u32 v{244+jj}, s33, v{XB+jj}")
        for s in range(16):
            b(f"ds_read_b128 {vr(B+4*s,4)}, v{244+(s&7)} offset:{(s>>3)*256}")
        flat = []
        for (n, sn, so) in tiles:
            tl_ = [(txt, vm, n) for txt, vm in tile_dma(n, sn, so)]
            flat.append(tl_[:3])
            for x in tl_[3:]: flat.append([x])
        gap = max(1, len(body) // (len(flat) + 1)) if flat else 1
        fi = 0
        for i, ins in enumerate(body):
            out.append(ins)
            if fi < len(flat) and i % gap == gap - 1:
                for txt, vm, n in flat[fi]:
                    out.append(txt)
                    if vm: W.issue('vm', ('T', n))
                fi += 1
        while fi < len(flat):
            for txt, vm, n in flat[fi]:
                out.append(txt)
                if vm: W.issue('vm', ('T', n))
            fi += 1
        out.append("s_waitcnt lgkmcnt(0)")
        W.drain('lgkm')
    def phase(W, p, kind, later, fill=None, f0=3):
        tl = TL(W)
        acc = ACC[p]
        cnt = [0]
        for a in range(4):
            sig = 4*p + a
            tb = 16*a - D - 1
            tl.add(tb, 'bar', needvm=[('T', 2*sig), ('T', 2*sig+1)], prio=1)
            k = 0
            for (n, sn, so) in later.get(sig, []):
                for txt, vm in tile_dma(n, sn, so):
                    sp = o.get('dsp', 2)
                    if vm:
                        tl.add(tb + 1 + sp*k, 'vm', txt, tag=('T', n), prio=7); k += 1
                    else:
                        tl.add(tb + 1 + sp*k, 'txt', txt, prio=6)
            for m in range(16):
                tm = 16*a + m
                ri = cnt[0] % R; cnt[0] += 1
                ring = aR + 4*ri
                if kind == 'X':
                    j = m; slot = 2*a
                    base = (KA if slot < 4 else KA2) + (j & 7)
                    off = (slot % 4)*SLOT + (j >> 3)*256
                    tag = (p, a, m)
                    tl.add(tm - D, 'lds', f"ds_read_b128 {ar(ring,4)}, v{base} offset:{off}", tag=tag, prio=2)
                    c = vr(acc+16*a,16) if j else '0'
                    tl.add(tm, 'mfma', f"v_mfma_f32_32x32x16_bf16 {vr(acc+16*a,16)}, {ar(ring,4)}, {vr(B+4*j,4)}, {c}", need=[tag], prio=0)
                else:
                    tt, s, aa = m >> 3, (m >> 2) & 1, m & 3
                    tau = 2*a + tt; slot = tau
                    tags = []
                    for u in range(2):
                        base = (VN if slot < 4 else VN2) + aa*2 + u
                        off = (slot % 4)*SLOT + 16*s*512
                        tag = (p, a, m, u); tags.append(tag)
                        tl.add(tm - D, 'lds', f"ds_read_b64_tr_b16 {ar(ring+2*u,2)}, v{base} offset:{off}", tag=tag, prio=2)
                    c = vr(acc+16*aa,16) if (tau or s) else '0'
                    tl.add(tm, 'mfma', f"v_mfma_f32_32x32x16_bf16 {vr(acc+16*aa,16)}, {ar(ring,4)}, {vr(B+4*(2*tau+s),4)}, {c}", need=tags, prio=0)
        if fill:
            n = len(fill)
            for i, ins in enumerate(fill):
                tl.add(f0 + (i*(64-f0))/n, 'txt', ins, prio=4)
        return tl
    def pack_swap(out, src, dst, swap=True, scale=None):
        if scale:
            for k in range(8):
                out.append(f"v_pk_mul_f32 v[{src+2*k}:{src+2*k+1}], v[{src+2*k}:{src+2*k+1}], {scale} op_sel_hi:[1,0]")
        for k in range(8):
            out.append(f"v_cvt_pk_bf16_f32 v{dst+k}, v{src+2*k}, v{src+2*k+1}")
        if swap:
            out.append("s_nop 1")
            for b in (0, 4):
                out.append(f"v_permlane32_swap_b32 v{dst+b}, v{dst+b+2}")
                out.append(f"v_permlane32_swap_b32 v{dst+b+1}, v{dst+b+3}")
    def exchange(out, W, acc, kind, xaflag=False):
        out.append("s_nop 15")
        out.append("v_lshlrev_b32 v232, 4, v240")
        out.append(f"s_lshl_b32 s33, s29, 14"); out.append(f"s_add_u32 s33, s33, {EX}")
        out.append("v_add_u32 v233, s33, v232")
        out.append(f"s_lshl_b32 s34, s30, {13 if kind=='Y' else 11}")
        out.append("v_add_u32 v232, s34, v233")
        for a in range(4):
            d = 244 if a % 2 == 0 else 0
            pack_swap(out, acc+16*a, d)
            for s in range(2):
                f = (2*a + s) if kind == 'Y' else (4*a + s)
                out.append(f"ds_write_b128 v232, {vr(d+4*s,4)} offset:{f*1024}")
        if xaflag:
            n = W.need('vm', [x for x in W.q['vm'] if isinstance(x, tuple) and x[0] == 'XS'] + ['TAG'])
            if n is not None: out.append(f"s_waitcnt vmcnt({n})")
        out.append("s_waitcnt lgkmcnt(0)")
        out.append("s_barrier")
        if xaflag:
            out.append("v_readfirstlane_b32 s3, v243"); out.append("s_or_b32 s33, s28, 0");
            out.append("s_cmp_eq_u32 s28, 0"); out.append("s_cbranch_scc0 K1_Q_NOXF")
            out.append("s_cmp_lg_u32 s3, 0"); out.append("s_cbranch_scc0 K1_Q_NOXF")
            out += cap(lambda e: srd(e, 16, 's54', 's55', FL_OFF, FL_SIZE))
            out.append("s_lshl_b32 s33, s35, 7"); out.append(f"s_add_u32 s33, s33, {FLQ + 4}")
            out.append("v_mov_b32 v238, s3"); out.append("v_cmp_eq_u32 vcc, 0, v240"); out.append("s_and_saveexec_b64 s[56:57], vcc")
            out.append("buffer_store_dword v238, off, s[16:19], s33 sc1")
            out.append("s_mov_b64 exec, s[56:57]")
            out.append("K1_Q_NOXF:")
        for f in range(16):
            out.append(f"ds_read_b128 {vr(B+4*f,4)}, v233 offset:{f*1024}")
        out.append("s_waitcnt lgkmcnt(0)")
        W.drain('lgkm')
    def narrow(out, W, rowbase_bytes, slice_sreg):
        for x in ["v_lshrrev_b32 v232, 3, v240", "v_lshlrev_b32 v232, 9, v232", "v_and_b32 v233, 7, v240",
                  "v_lshl_add_u32 v232, v233, 4, v232", f"s_lshl_b32 s33, {slice_sreg}, 7", "s_lshl_b32 s34, s28, 15",
                  "s_add_u32 s33, s33, s34", f"s_add_u32 s33, s33, {rowbase_bytes}", "v_add_u32 v232, s33, v232",
                  "s_lshl_b32 s34, s28, 13", f"s_add_u32 s34, s34, {EX}"]: out.append(x)
        for i in range(8):
            out.append(f"s_add_u32 m0, s34, {i*1024}")
            out.append(f"s_mov_b32 s32, {i*4096}")
            out.append(f"buffer_load_dwordx4 v232, s[16:19], s32 offen lds")
            W.issue('vm', ('N', i))
    def narrow_read(out, W):
        n = W.need('vm', [('N', 7)])
        out.append(f"s_waitcnt vmcnt({n})")
        out.append("s_barrier")
        for x in ["v_bfe_u32 v232, v240, 2, 2", "v_lshl_add_u32 v232, v241, 3, v232", "v_lshlrev_b32 v232, 7, v232",
                  "v_bfe_u32 v233, v240, 4, 1", "v_lshl_add_u32 v232, v233, 5, v232", "v_and_b32 v233, 3, v240",
                  "v_lshl_add_u32 v232, v233, 3, v232", "s_lshl_b32 s33, s29, 6", f"s_add_u32 s33, s33, {EX}",
                  "v_add_u32 v232, s33, v232"]: out.append(x)
        for s in range(16):
            for u in range(2):
                out.append(f"ds_read_b64_tr_b16 {vr(B+4*s+2*u,2)}, v232 offset:{s*2048+u*512}")
            if s % 4 == 3: out.append("s_waitcnt lgkmcnt(0)")
        W.drain('lgkm')
    def finish(task_lines, label):
        if CT and label in ("K1_Q", "K1_UG"): return
        fixed = hazard.autofix(task_lines)
        e(f"{label}:")
        L.extend(fixed)
        e("s_branch K1_FIN")
    def cap(fn):
        buf = []; fn(buf.append); return buf
    std_later = lambda sn: {2: [(8, sn, 0), (9, sn, SLOT)], 3: [(10, sn, 2*SLOT), (11, sn, 3*SLOT)], 4: [(12, sn, 4*SLOT), (13, sn, 5*SLOT)], 5: [(14, sn, 6*SLOT), (15, sn, 7*SLOT)]}
    npre = o['npre']


    if CT:
        EXB = EX + 16384
        Bq = 64
        ACCQ, ACCK, ACCG, ACCU = 64, 96, 128, 160
        VN4 = 208; VN42 = 212; XO = 216; XB8 = 244
        W = Waiter(); T = []; t = T.append
        for s_ in range(4): W.issue('vm', ('X', s_))
        dma_voff(T, True)
        T += cap(lambda e: (srd(e, 8, 's38', 's39', 0, 131072), srd(e, 12, 's40', 's41', 0, 131072), srd(e, 20, 's46', 's47', 0, 262144),
                            srd(e, 24, 's54', 's55', QF_OFF, 500*8192)))
        def tinfo(n):
            if n < 8: return (8, n*SLOT, DS)
            if n < 16: return (12, (n-8)*SLOT, DS)
            if n < 24: return (20, (n-16)*32768 + 512, DV)
            return (20, (n-24)*32768, DV)
        def tdma(n):
            sn, so, dv = tinfo(n)
            r = [(f"s_add_u32 m0, s31, {(n%8)*SLOT:#x}", False), (f"s_mov_b32 s32, {so:#x}", False)]
            for k in range(4): r.append((f"buffer_load_dwordx4 v{dv+k}, s[{sn}:{sn+3}], s32 offen offset:{k*1024} lds", True))
            return r
        def temit(n):
            for txt, vm in tdma(n):
                t(txt)
                if vm: W.issue('vm', ('T', n))
        temit(0); temit(1)
        t("v_and_b32 v234, 3, v242"); t("v_lshlrev_b32 v234, 2, v234"); t("v_bfe_u32 v235, v242, 2, 2"); t("v_or_b32 v234, v234, v235")
        t("v_lshlrev_b32 v236, 9, v242"); t(f"v_add_u32 v237, {EX}, v236")
        t("s_lshl_b32 s33, s30, 8"); t("v_add_u32 v238, s33, v237")
        t("s_lshl_b32 s33, s29, 3")
        for i in range(4):
            t(f"s_add_u32 s34, s33, {2*i}"); t("v_add_u32 v235, s34, v241"); t("v_xor_b32 v235, v235, v234"); t(f"v_lshl_add_u32 v{XO+i}, v235, 4, v238")
        t("s_lshl_b32 s33, s28, 14"); t("v_add_u32 v238, s33, v236")
        for jj in range(8):
            t(f"v_add_u32 v235, {2*jj}, v241"); t("v_xor_b32 v235, v235, v234")
            t(f"v_lshl_add_u32 v{KA+jj}, v235, 4, v238"); t(f"v_add_u32 v{KA2+jj}, 0x10000, v{KA+jj}")
        t("v_bfe_u32 v234, v240, 4, 1"); t("v_bfe_u32 v235, v240, 2, 2"); t("v_bfe_u32 v236, v240, 1, 1")
        t("v_lshl_add_u32 v236, v234, 1, v236"); t("v_and_b32 v237, 1, v240"); t("v_lshlrev_b32 v237, 3, v237")
        t("v_lshl_add_u32 v238, v241, 3, v235"); t("v_lshl_add_u32 v237, v238, 9, v237")
        t("s_lshl_b32 s33, s30, 8"); t("v_add_u32 v237, s33, v237")
        t("s_lshl_b32 s33, s29, 3")
        for aa in range(2):
            for u in range(2):
                t(f"v_lshl_add_u32 v238, v241, 1, {u}"); t("v_lshl_or_b32 v238, v235, 2, v238")
                t(f"s_add_u32 s34, s33, {4*aa}"); t("v_add_u32 v239, s34, v236"); t("v_xor_b32 v238, v238, v239")
                t(f"v_lshl_add_u32 v{VN4+aa*2+u}, v238, 4, v237")
                if u: t(f"v_add_u32 v{VN4+aa*2+u}, {4*512}, v{VN4+aa*2+u}")
                t(f"v_add_u32 v{VN42+aa*2+u}, 0x10000, v{VN4+aa*2+u}")
        nw = W.need('vm', [('X', 3)]); t(f"s_waitcnt vmcnt({nw})"); t("s_barrier")
        stamp(T, 0)
        for i in range(4): t(f"ds_read_b128 {vr(64+4*i,4)}, v{XO+i}")
        T += cap(lambda e: srd(e, 16, 's54', 's55', XA_OFF, 8000*512))
        body = []; b = body.append
        b("s_mov_b32 s34, 0x3f803f80")
        for k in range(4): b(f"v_mov_b32 v{232+k}, 0")
        for r in range(16):
            if r % 4 == 0: b(f"s_waitcnt lgkmcnt({3 - r//4})")
            b(f"v_dot2_f32_bf16 v{232+(r&1)}, v{64+r}, s34, v{232+(r&1)}")
            b(f"v_dot2_f32_bf16 v{234+(r&1)}, v{64+r}, v{64+r}, v{234+(r&1)}")
        b("s_nop 2")
        b("v_add_f32 v232, v232, v233"); b("v_add_f32 v234, v234, v235")
        b("v_mov_b32 v233, v232"); b("v_mov_b32 v235, v234"); b("s_nop 1")
        b("v_permlane32_swap_b32 v232, v233"); b("v_permlane32_swap_b32 v234, v235"); b("s_nop 1")
        b("v_add_f32 v232, v232, v233"); b("v_add_f32 v233, v234, v235")
        b("v_lshlrev_b32 v238, 3, v242"); b(f"v_add_u32 v238, {EXB}, v238")
        b("s_lshl_b32 s33, s28, 8"); b("v_add_u32 v239, s33, v238")
        b("ds_write_b64 v239, v[232:233]")
        b("s_waitcnt lgkmcnt(0)"); b("s_barrier")
        for k in range(4): b(f"ds_read_b64 v[{80+2*k}:{81+2*k}], v238 offset:{256*k}")
        b("s_waitcnt lgkmcnt(0)")
        b("v_add_f32 v80, v80, v82"); b("v_add_f32 v81, v81, v83"); b("v_add_f32 v84, v84, v86"); b("v_add_f32 v85, v85, v87")
        b("v_add_f32 v232, v80, v84"); b("v_add_f32 v234, v81, v85")
        b("v_mul_f32 v232, 0x3b800000, v232"); b("v_mul_f32 v234, 0x3b800000, v234")
        b("v_fma_f32 v234, -v232, v232, v234"); b("v_max_f32 v234, 0, v234"); b("v_add_f32 v234, 0x3727c5ac, v234")
        b("v_rsq_f32 v234, v234"); b("s_nop 0")
        b("v_mul_f32 v236, v232, v234"); b("v_sub_f32 v236, 0, v236")
        for r in range(16):
            tt_ = 244 + 2*(r % 4)
            b(f"v_lshlrev_b32 v{tt_}, 16, v{64+r}"); b(f"v_and_b32 v{tt_+1}, 0xffff0000, v{64+r}")
            b(f"v_pk_fma_f32 v[{tt_}:{tt_+1}], v[{tt_}:{tt_+1}], v[234:235], v[236:237] op_sel_hi:[1,0,0]")
            b(f"v_cvt_pk_bf16_f32 v{64+r}, v{tt_}, v{tt_+1}")
            if r % 4 == 3: b(f"ds_write_b128 v{XO+r//4}, {vr(64+r-3,4)}")
        b("s_lshl_b32 s33, s28, 14"); b(f"s_sub_u32 s33, {EX}, s33")
        for jj in range(8): b(f"v_add_u32 v{XB8+jj}, s33, v{KA+jj}")
        b("s_waitcnt lgkmcnt(0)"); b("s_barrier")
        for s_ in range(16): b(f"ds_read_b128 {vr(B+4*s_,4)}, v{XB8+(s_&7)} offset:{(s_>>3)*256}")
        b("v_lshlrev_b32 v232, 4, v240"); b(f"s_add_u32 s33, s31, {EX}"); b("v_add_u32 v232, s33, v232")
        for k in range(4): b(f"ds_read_b128 {vr(96+4*k,4)}, v232 offset:{k*1024}")
        flat = []
        for n in range(2, 6):
            tl_ = [(txt, vm, n) for txt, vm in tdma(n)]
            flat.append(tl_[:3])
            for x in tl_[3:]: flat.append([x])
        gap = max(1, (len(body) - 24) // (len(flat) + 1)); fi = 0
        for i, ins in enumerate(body):
            t(ins)
            if fi < len(flat) and i % gap == gap - 1:
                for txt, vm, n in flat[fi]:
                    t(txt)
                    if vm: W.issue('vm', ('T', n))
                fi += 1
        while fi < len(flat):
            for txt, vm, n in flat[fi]:
                t(txt)
                if vm: W.issue('vm', ('T', n))
            fi += 1
        t("s_waitcnt lgkmcnt(0)")
        t("s_lshl_b32 s56, s35, 14")
        for k in range(4):
            t(f"buffer_store_dwordx4 {vr(96+4*k,4)}, v{DS+k}, s[16:19], s56 offen offset:{k*1024}{ST}"); W.issue('vm', ('XS', k))
        stamp(T, 1)
        def flag_store(off_lines, lbl):
            t("s_cmp_eq_u32 s28, 0"); t(f"s_cbranch_scc0 {lbl}")
            for x in off_lines: t(x)
            t("v_mov_b32 v232, s3"); t("v_cmp_eq_u32 vcc, 0, v240"); t("s_and_saveexec_b64 s[56:57], vcc")
            t("buffer_store_dword v232, off, s[8:11], s34 sc1")
            t("s_mov_b64 exec, s[56:57]")
            t(f"{lbl}:")
        fillers = {}
        def step(sig, extra_need=None, after_bar=None):
            p, a = sig >> 2, sig & 3
            need = [('T', 2*sig), ('T', 2*sig+1)] + (extra_need or [])
            nv = W.need('vm', need)
            if nv is not None: t(f"s_waitcnt vmcnt({nv})")
            t("s_barrier")
            if after_bar: after_bar()
            dm = []
            for n in (2*(sig+3), 2*(sig+3)+1):
                if n < 32: dm += [(txt, vm, n) for txt, vm in tdma(n)]
            fl = list(fillers.get(sig, []))
            def some(k_dma, k_fill):
                c = 0
                while dm and c < k_dma:
                    txt, vm, n = dm.pop(0); t(txt)
                    if vm: W.issue('vm', ('T', n)); c += 1
                for _ in range(k_fill):
                    if fl: t(fl.pop(0))
            nf = -(-len(fl) // 8) if fl else 0
            if p != 1:
                acc = {0: ACCQ, 2: ACCG, 3: ACCU}[p]
                idx = 0; seq = []
                for tt in range(2):
                    slot = (2*sig + tt) % 8
                    for s_ in range(2):
                        for aa in range(2):
                            for u in range(2):
                                base = (VN4 if slot < 4 else VN42) + aa*2 + u
                                t(f"ds_read_b64_tr_b16 {ar(4*idx+2*u,2)}, v{base} offset:{(slot%4)*SLOT + 16*s_*512}")
                            seq.append((idx, tt, s_, aa)); idx += 1
                for (idx, tt, s_, aa) in seq:
                    if idx % 2 == 0: t(f"s_waitcnt lgkmcnt({14 - 2*idx - 2 if idx < 6 else 0})")
                    tau = 2*a + tt
                    c = vr(acc+16*aa,16) if (tau or s_) else '0'
                    t(f"v_mfma_f32_32x32x16_bf16 {vr(acc+16*aa,16)}, {ar(4*idx,4)}, {vr(B+4*(2*tau+s_),4)}, {c}")
                    some(1, nf)
            else:
                lbl = f"K1_CT_X{a}"
                t(f"s_cmp_eq_u32 s30, {a & 1}"); t(f"s_cbranch_scc0 {lbl}")
                k = a >> 1; base = KA if k == 0 else KA2
                for half in range(2):
                    for j in range(8): t(f"ds_read_b128 {ar(4*j,4)}, v{base+j} offset:{half*256}")
                    for j in range(8):
                        if j % 2 == 0: t(f"s_waitcnt lgkmcnt({6 - j})")
                        jj = 8*half + j
                        c = vr(ACCK+16*k,16) if jj else '0'
                        t(f"v_mfma_f32_32x32x16_bf16 {vr(ACCK+16*k,16)}, {ar(4*j,4)}, {ar(Bq+4*jj,4)}, {c}")
                t(f"{lbl}:")
            some(100, 1000)
        for sig in range(4): step(sig)
        stamp(T, 2)
        t("s_nop 15")
        t("v_lshlrev_b32 v232, 4, v240"); t(f"v_add_u32 v233, {EXB}, v232"); t("s_lshl_b32 s34, s28, 12"); t("v_add_u32 v232, s34, v233")
        for aa in range(2):
            d = 244 if aa == 0 else 96
            pack_swap(T, ACCQ+16*aa, d)
            for s_ in range(2): t(f"ds_write_b128 v232, {vr(d+4*s_,4)} offset:{(2*aa+s_)*1024}")
        t("s_waitcnt lgkmcnt(0)"); t("s_barrier")
        for f in range(16): t(f"ds_read_b128 {ar(Bq+4*f,4)}, v233 offset:{f*1024}")
        t("s_waitcnt lgkmcnt(0)")
        t("buffer_load_dword v243, off, s[4:7], 0 sc1"); W.issue('vm', 'TAG')
        for sig in range(4, 8): step(sig)
        stamp(T, 3)
        qf = []
        qf.append("s_nop 7"); qf.append("v_mov_b32 v236, 0x3db8aa3b")
        qf += ["s_lshl_b32 s33, s35, 14", "s_lshl_b32 s34, s28, 10", "s_add_u32 s33, s33, s34",
               "v_lshrrev_b32 v252, 4, v242", "v_lshlrev_b32 v252, 13, v252", "v_and_b32 v253, 15, v242", "v_lshl_add_u32 v253, v241, 4, v253",
               "v_lshl_add_u32 v252, v253, 4, v252", "v_add_u32 v252, s33, v252"]
        qst = []
        for k in range(2):
            d = 244 if k == 0 else 64
            pack_swap(qf, ACCK+16*k, d, scale="v[236:237]")
            for s_ in range(2):
                qf.append(f"buffer_store_dwordx4 {vr(d+4*s_,4)}, v252, s[24:27], 0 offen offset:{k*4096 + s_*512 - (4096 if k else 0)}{ST}" if k == 0 else "@K1")
        out2 = []
        cnt = 0
        for x in qf:
            if x == "@K1":
                if cnt == 0: out2.append("v_add_u32 v253, 4096, v252")
                out2.append(f"buffer_store_dwordx4 {vr(64+4*cnt,4)}, v253, s[24:27], 0 offen offset:{cnt*512}{ST}"); cnt += 1
            else: out2.append(x)
        qf = out2
        for x in qf:
            t(x)
            if x.startswith('buffer_store'): W.issue('vm', ('QS', len(W.q['vm'])))
        W.issue('vm', 'QEND'); W.q['vm'].pop()
        qtags = [x for x in W.q['vm'] if isinstance(x, tuple) and x[0] in ('QS', 'XS')]
        step(8)
        step(9)
        def get_tag():
            t("K1_CT_TAGP:")
            t("buffer_load_dword v232, off, s[4:7], 0 sc1"); t("s_waitcnt vmcnt(0)")
            t("v_readfirstlane_b32 s3, v232"); t("s_nop 3"); t("s_cmp_lg_u32 s3, 0"); t("s_cbranch_scc1 K1_CT_TAGD"); t("s_sleep 1"); t("s_branch K1_CT_TAGP")
            t("K1_CT_TAGD:")
        def qflag():
            T.extend(cap(lambda e: srd(e, 8, 's54', 's55', FL_OFF, FL_SIZE)))
            flag_store([f"s_lshl_b32 s34, s35, 7", f"s_add_u32 s34, s34, {FLQ}"], "K1_CT_NOQF")
        step(10, extra_need=qtags + ['TAG'], after_bar=None)
        t("v_readfirstlane_b32 s3, v243")
        t("s_nop 3")
        pend_qflag = True
        t("s_cmp_eq_u32 s28, 0"); t("s_cbranch_scc0 K1_CT_NOQF2")
        t("s_cmp_lg_u32 s3, 0"); t("s_cbranch_scc0 K1_CT_NOQF2")
        T.extend(cap(lambda e: srd(e, 8, 's54', 's55', FL_OFF, FL_SIZE)))
        t(f"s_lshl_b32 s34, s35, 7"); t(f"s_add_u32 s34, s34, {FLQ}")
        t("v_mov_b32 v232, s3"); t("v_cmp_eq_u32 vcc, 0, v240"); t("s_and_saveexec_b64 s[56:57], vcc")
        t("buffer_store_dword v232, off, s[8:11], s34 sc1")
        t("s_mov_b64 exec, s[56:57]")
        t("K1_CT_NOQF2:")
        step(11)
        stamp(T, 4)
        k0 = -2.0*1.4426950408889634*0.7978845608028654
        t("s_nop 7")
        t(f"v_mov_b32 v232, {fb(k0)}"); t(f"v_mov_b32 v234, {fb(k0*0.044715)}"); t("v_mov_b32 v236, 1.0")
        for k in range(4): t(f"v_mov_b32 v{252+k}, 0")
        def gelu(r):
            tt_ = 244 + 2*((r//2) % 4)
            X = f"v[{r}:{r+1}]"; Tt = f"v[{tt_}:{tt_+1}]"
            return [f"v_pk_mul_f32 {Tt}, {X}, {X}", f"v_pk_fma_f32 {Tt}, {Tt}, v[234:235], v[232:233] op_sel_hi:[1,0,0]", f"v_pk_mul_f32 {Tt}, {Tt}, {X}",
                    f"v_exp_f32 v{tt_}, v{tt_}", f"v_exp_f32 v{tt_+1}, v{tt_+1}", f"v_pk_add_f32 {Tt}, {Tt}, v[236:237] op_sel_hi:[1,0]",
                    f"v_rcp_f32 v{tt_}, v{tt_}", f"v_rcp_f32 v{tt_+1}, v{tt_+1}", f"v_pk_mul_f32 {X}, {X}, {Tt}",
                    f"v_pk_add_f32 v[252:253], v[252:253], {X}", f"v_pk_fma_f32 v[254:255], {X}, {X}, v[254:255]"]
        for q in range(4):
            cols = [gelu(ACCG + 8*q + 2*k) for k in range(4)]
            fillers[12+q] = [cols[k][i] for i in range(11) for k in range(4)]
        for sig in range(12, 16): step(sig)
        stamp(T, 5)
        t("v_add_f32 v8, v252, v253"); t("v_add_f32 v10, v254, v255"); t("v_mov_b32 v9, v8"); t("v_mov_b32 v11, v10"); t("s_nop 1")
        t("v_permlane32_swap_b32 v8, v9"); t("v_permlane32_swap_b32 v10, v11"); t("s_nop 1")
        t("v_add_f32 v8, v8, v9"); t("v_add_f32 v9, v10, v11")
        t("v_lshlrev_b32 v12, 3, v242"); t("s_lshl_b32 s33, s28, 8"); t("v_add_u32 v13, s33, v12")
        t("s_barrier")
        t("ds_write_b64 v13, v[8:9]")
        for aa in range(2):
            d = 244 if aa == 0 else 16
            pack_swap(T, ACCU+16*aa, d)
            for s_ in range(2): t(f"ds_write_b128 v{XO+2*aa+s_}, {vr(d+4*s_,4)} offset:16384")
        t("s_waitcnt lgkmcnt(0)"); t("s_barrier")
        for k in range(4): t(f"ds_read_b64 v[{24+2*k}:{25+2*k}], v12 offset:{256*k}")
        t("v_lshlrev_b32 v232, 4, v240"); t(f"s_add_u32 s33, s31, {EX}"); t("v_add_u32 v232, s33, v232")
        for k in range(4): t(f"ds_read_b128 {vr(96+4*k,4)}, v232 offset:{16384 + k*1024}")
        T.extend(cap(lambda e: (srd(e, 12, 's54', 's55', U_OFF, 8000*512), srd(e, 20, 's54', 's55', G_OFF, 8000*512))))
        t("s_lshl_b32 s56, s35, 14")
        t("s_waitcnt lgkmcnt(4)")
        t("v_add_f32 v24, v24, v26"); t("v_add_f32 v25, v25, v27"); t("v_add_f32 v28, v28, v30"); t("v_add_f32 v29, v29, v31")
        t("v_add_f32 v8, v24, v28"); t("v_add_f32 v9, v25, v29")
        t("v_mul_f32 v8, 0x3b800000, v8"); t("v_mul_f32 v9, 0x3b800000, v9")
        t("v_fma_f32 v9, -v8, v8, v9"); t("v_max_f32 v9, 0, v9"); t("v_add_f32 v9, 0x3727c5ac, v9")
        t("v_rsq_f32 v10, v9"); t("s_nop 0"); t("v_mul_f32 v12, v8, v10"); t("v_sub_f32 v12, 0, v12")
        t("s_waitcnt lgkmcnt(0)")
        for k in range(4): t(f"buffer_store_dwordx4 {vr(96+4*k,4)}, v{DS+k}, s[12:15], s56 offen offset:{k*1024}{ST}")
        for aa in range(2):
            for k in range(8):
                r = ACCG + 16*aa + 2*k
                t(f"v_pk_fma_f32 v[{r}:{r+1}], v[{r}:{r+1}], v[10:11], v[12:13] op_sel_hi:[1,0,0]")
            d = 32 + 8*aa
            pack_swap(T, ACCG+16*aa, d)
            for s_ in range(2): t(f"ds_write_b128 v{XO+2*aa+s_}, {vr(d+4*s_,4)}")
        t("s_waitcnt lgkmcnt(0)"); t("s_barrier")
        for k in range(4): t(f"ds_read_b128 {vr(112+4*k,4)}, v232 offset:{k*1024}")
        for k in range(4):
            t(f"s_waitcnt lgkmcnt({3-k})")
            t(f"buffer_store_dwordx4 {vr(112+4*k,4)}, v{DS+k}, s[20:23], s56 offen offset:{k*1024}{ST}")
        stamp(T, 6)
        finish(T, "K1_CT")
    W = Waiter(); T = []
    for s in range(8): W.issue('vm', ('X', s))
    dma_voff(T, False)
    T += cap(lambda e: (srd(e, 8, 's38', 's39', 0, 131072), srd(e, 12, 's40', 's41', 0, 131072),
                        srd(e, 20, 's54', 's55', XA_OFF, 8000*512), srd(e, 24, 's54', 's55', QF_OFF, 500*8192)))
    emit = [(n, 8, n*SLOT) for n in range(8)]
    for (n, sn, so) in emit[:npre]: emit_tile(T, W, n, sn, so)
    xb_setup(T); vn_setup(T)
    ln(T, W, emit[npre:o['nln']])
    if FF: T.append("buffer_load_dword v243, off, s[4:7], 0 sc1"); W.issue('vm', 'TAG')
    stamp(T, 1)
    ka_setup(T)
    stamp(T, 2)
    T.append("v_lshlrev_b32 v232, 4, v240"); T.append(f"s_add_u32 s33, s31, {EX}"); T.append("v_add_u32 v232, s33, v232")
    for half in range(2):
        for k in range(4):
            T.append(f"ds_read_b128 {vr(ACC[1]+(half*4+k)*4,4)}, v232 offset:{half*SLOT + k*1024}")
    T.append("s_waitcnt lgkmcnt(0)")
    T.append("s_lshl_b32 s34, s35, 15"); T.append("s_add_u32 s56, s34, 16384")
    xfill = []
    for half in range(2):
        for k in range(4):
            xfill.append((f"buffer_store_dwordx4 {vr(ACC[1]+(half*4+k)*4,4)}, v{DS+k}, s[20:23], {'s56' if half else 's34'} offen offset:{k*1024}{ST}", ('XS', half, k)))
    later = std_later(12)
    rest = emit[o['nln']:]
    if rest:
        later[0] = rest[:2]; later[1] = rest[2:4]
        if later[1] == [] : del later[1]
    tl0 = phase(W, 0, 'Y', later)
    for i, (txt, tag) in enumerate(xfill): tl0.add(1 + 2*i, 'vm', txt, tag=tag, prio=7)
    T += tl0.linearize()
    stamp(T, 3)
    exchange(T, W, ACC[0], 'Y', xaflag=FF and o.get('xaflag', True))
    stamp(T, 4)
    T.append("v_mov_b32 v236, 0x3db8aa3b")
    T.append("s_lshl_b32 s33, s35, 2"); T.append("s_lshl_b32 s34, s29, 1"); T.append("s_add_u32 s33, s33, s34"); T.append("s_lshl_b32 s33, s33, 13")
    T.append("s_lshl_b32 s34, s30, 10"); T.append("s_add_u32 s33, s33, s34")
    T.append("v_lshrrev_b32 v232, 4, v242"); T.append("v_lshlrev_b32 v232, 13, v232")
    T.append("v_and_b32 v233, 15, v242"); T.append("v_lshl_add_u32 v233, v241, 4, v233")
    T.append("v_lshl_add_u32 v232, v233, 4, v232"); T.append("v_add_u32 v232, s33, v232")
    for a in range(1, 4): T.append(f"v_add_u32 v{232+a}, {a*2048}, v232")
    def qepi(a):
        ls = []
        d = ACC[0] + 8*a
        pack_swap(ls, ACC[1]+16*a, d, scale="v[236:237]")
        st = [f"buffer_store_dwordx4 {vr(d+4*s,4)}, v{232+a}, s[24:27], 0 offen offset:{s*512}{ST}" for s in range(2)]
        return ls, st
    tl1 = phase(W, 1, 'X', later)
    if o.get('qprog', True):
        for a in range(3):
            ls, st = qepi(a)
            t0 = 16*(a+1) + 4
            for i, ins in enumerate(ls): tl1.add(t0 + i*0.4, 'txt', ins, prio=4)
            for i, ins in enumerate(st): tl1.add(t0 + len(ls)*0.4 + 0.5 + i, 'vm', ins, tag=('QS', a, i), prio=7)
    T += tl1.linearize()
    stamp(T, 5)
    T.append("s_nop 15")
    for a in (range(3, 4) if o.get('qprog', True) else range(4)):
        ls, st = qepi(a)
        T += ls + st
    finish(T, "K1_Q")

    W = Waiter(); T = []
    for s in range(8): W.issue('vm', ('X', s))
    dma_voff(T, True)
    T += cap(lambda e: (srd(e, 8, 's46', 's47', 0, 262144),
                        srd(e, 20, 's54', 's55', U_OFF, 8000*512), srd(e, 24, 's54', 's55', G_OFF, 8000*512)))
    emit = [(n, 8, n*32768 + 512) for n in range(8)]
    for (n, sn, so) in emit[:npre]: emit_tile(T, W, n, sn, so)
    xb_setup(T); vn_setup(T)
    ln(T, W, emit[npre:o['nln']])
    if FF: T.append("buffer_load_dword v243, off, s[4:7], 0 sc1"); W.issue('vm', 'TAG')
    stamp(T, 2)
    gl = lambda n: (n, 8, (n-8)*32768)
    later = {2: [gl(8), gl(9)], 3: [gl(10), gl(11)], 4: [gl(12), gl(13)], 5: [gl(14), gl(15)]}
    rest = emit[o['nln']:]
    if rest:
        later[0] = rest[:2]; later[1] = rest[2:4]
    T += phase(W, 0, 'Y', later).linearize()
    stamp(T, 3)
    k0 = -2.0*1.4426950408889634*0.7978845608028654
    T.append(f"v_mov_b32 v232, {fb(k0)}"); T.append(f"v_mov_b32 v234, {fb(k0*0.044715)}"); T.append("v_mov_b32 v236, 1.0")
    for k in range(4): T.append(f"v_mov_b32 v{252+k}, 0")
    def gelu(r):
        t = 244 + 2*((r//2) % 4)
        X = f"v[{r}:{r+1}]"; Tt = f"v[{t}:{t+1}]"
        return [f"v_pk_mul_f32 {Tt}, {X}, {X}",
                f"v_pk_fma_f32 {Tt}, {Tt}, v[234:235], v[232:233] op_sel_hi:[1,0,0]",
                f"v_pk_mul_f32 {Tt}, {Tt}, {X}",
                f"v_exp_f32 v{t}, v{t}", f"v_exp_f32 v{t+1}, v{t+1}",
                f"v_pk_add_f32 {Tt}, {Tt}, v[236:237] op_sel_hi:[1,0]",
                f"v_rcp_f32 v{t}, v{t}", f"v_rcp_f32 v{t+1}, v{t+1}",
                f"v_pk_mul_f32 {X}, {X}, {Tt}",
                f"v_pk_add_f32 v[252:253], v[252:253], {X}",
                f"v_pk_fma_f32 v[254:255], {X}, {X}, v[254:255]"]
    fill = []
    g0 = ACC[0]
    for b in range(g0, g0+64, 8):
        cols = [gelu(b+2*k) for k in range(4)]
        for i in range(11):
            for k in range(4): fill.append(cols[k][i])
    T += phase(W, 1, 'Y', later, fill=fill, f0=4).linearize()
    stamp(T, 5)
    T.append("v_add_f32 v8, v252, v253"); T.append("v_add_f32 v10, v254, v255")
    T.append("v_mov_b32 v9, v8"); T.append("v_mov_b32 v11, v10"); T.append("s_nop 1")
    T.append("v_permlane32_swap_b32 v8, v9"); T.append("v_permlane32_swap_b32 v10, v11"); T.append("s_nop 1")
    T.append("v_add_f32 v8, v8, v9"); T.append("v_add_f32 v9, v10, v11")
    T.append("s_lshl_b32 s33, s29, 1"); T.append("s_add_u32 s33, s33, s30"); T.append("s_lshl_b32 s33, s33, 9"); T.append("s_add_u32 s33, s33, 32768")
    T.append("v_lshlrev_b32 v12, 3, v240"); T.append("v_add_u32 v13, s33, v12")
    T.append("s_xor_b32 s33, s33, 512"); T.append("v_add_u32 v14, s33, v12")
    T.append("ds_write_b64 v13, v[8:9]")
    for a in range(4):
        d = 244 if a % 2 == 0 else 16
        pack_swap(T, ACC[1]+16*a, d)
        for s in range(2):
            T.append(f"ds_write_b128 v{XB+2*a+s}, {vr(d+4*s,4)}")
    T.append("s_waitcnt lgkmcnt(0)"); T.append("s_barrier")
    T.append("ds_read_b64 v[10:11], v14")
    T.append("v_lshlrev_b32 v15, 4, v240"); T.append("v_add_u32 v15, s31, v15"); T.append(f"v_add_u32 v232, {EX}, v15")
    for half in range(2):
        for k in range(4):
            T.append(f"ds_read_b128 {vr(ACC[1]+(half*4+k)*4,4)}, v232 offset:{half*SLOT + k*1024}")
    for jj in range(8): T.append(f"v_subrev_u32 v{XB+jj}, {EX}, v{XB+jj}")
    T.append("s_waitcnt lgkmcnt(8)")
    T.append("v_add_f32 v8, v8, v10"); T.append("v_add_f32 v9, v9, v11")
    T.append("v_mul_f32 v8, 0x3b800000, v8"); T.append("v_mul_f32 v9, 0x3b800000, v9")
    T.append("v_fma_f32 v9, -v8, v8, v9"); T.append("v_max_f32 v9, 0, v9"); T.append("v_add_f32 v9, 0x3727c5ac, v9")
    T.append("v_rsq_f32 v10, v9"); T.append("s_nop 0")
    T.append("v_mul_f32 v12, v8, v10"); T.append("v_sub_f32 v12, 0, v12")
    T.append("s_lshl_b32 s32, s35, 15"); T.append("s_add_u32 s56, s32, 16384")
    T.append("s_waitcnt lgkmcnt(0)")
    ust = [f"buffer_store_dwordx4 {vr(ACC[1]+(half*4+k)*4,4)}, v{DS+k}, s[20:23], {'s56' if half else 's32'} offen offset:{k*1024}{ST}" for half in range(2) for k in range(4)]
    for a in range(4):
        for k in range(8):
            r = g0 + 16*a + 2*k
            T.append(f"v_pk_fma_f32 v[{r}:{r+1}], v[{r}:{r+1}], v[10:11], v[12:13] op_sel_hi:[1,0,0]")
        T.append(ust.pop(0))
        pack_swap(T, g0+16*a, 16+8*a)
        for s in range(2):
            T.append(f"ds_write_b128 v{XB+2*a+s}, {vr(16+8*a+4*s,4)}")
        T.append(ust.pop(0))
    stamp(T, 6)
    T.append("s_waitcnt lgkmcnt(0)"); T.append("s_barrier")
    for half in range(2):
        for k in range(4):
            T.append(f"ds_read_b128 {vr(ACC[0]+(half*4+k)*4,4)}, v15 offset:{half*SLOT + k*1024}")
    for half in range(2):
        for k in range(4):
            T.append(f"s_waitcnt lgkmcnt({7 - (half*4+k)})")
            T.append(f"buffer_store_dwordx4 {vr(ACC[0]+(half*4+k)*4,4)}, v{DS+k}, s[24:27], {'s56' if half else 's32'} offen offset:{k*1024}{ST}")
    stamp(T, 7)
    finish(T, "K1_UG")

    def wf_store(T, acc, which, slice_sreg):
        T.append(f"s_lshl_b32 s33, {slice_sreg}, 2"); T.append("s_lshl_b32 s34, s29, 1"); T.append("s_add_u32 s33, s33, s34"); T.append("s_lshl_b32 s33, s33, 14")
        T.append("s_lshl_b32 s34, s30, 10"); T.append("s_add_u32 s33, s33, s34")
        if which == 2: T.append("s_add_u32 s33, s33, 8192")
        T.append("v_lshrrev_b32 v232, 4, v242"); T.append("v_lshlrev_b32 v232, 14, v232")
        T.append("v_and_b32 v233, 15, v242"); T.append("v_lshl_add_u32 v233, v241, 4, v233")
        T.append("v_lshl_add_u32 v232, v233, 4, v232"); T.append("v_add_u32 v232, s33, v232")
        for a in range(4):
            d = 244; src = acc + 16*a
            if which == 1:
                for k, r in enumerate((0, 2, 8, 10, 4, 6, 12, 14)):
                    T.append(f"v_cvt_pk_bf16_f32 v{d+k}, v{src+r}, v{src+r+1}")
            else:
                pack_swap(T, src, d)
            T.append(f"s_mov_b32 s33, {a*2048}")
            for s in range(2):
                T.append(f"buffer_store_dwordx4 {vr(d+4*s,4)}, v232, s[24:27], s33 offen offset:{s*512}{ST}")
            T.append("s_nop 1")
    W = Waiter(); T = []
    dma_voff(T, False)
    T.append("s_sub_u32 s35, s2, 250")
    T += cap(lambda e: (srd(e, 16, 's52', 's53', 0, 262144), srd(e, 8, 's44', 's45', 0, 131072), srd(e, 12, 's42', 's43', 0, 131072),
                        srd(e, 24, 's54', 's55', WF_OFF, 262144)))
    narrow(T, W, 0, 's35')
    for n in range(3): emit_tile(T, W, n, 8, n*SLOT)
    ka_setup(T)
    narrow_read(T, W)
    for n in range(3, 8): emit_tile(T, W, n, 8, n*SLOT)
    if FF: T.append("buffer_load_dword v243, off, s[4:7], 0 sc1"); W.issue('vm', 'TAG')
    later = std_later(12)
    T += phase(W, 0, 'X', later).linearize()
    T.append("s_barrier")
    exchange(T, W, ACC[0], 'X')
    T += phase(W, 1, 'X', later).linearize()
    T.append("s_nop 15")
    wf_store(T, ACC[1], 1, 's35')
    finish(T, "K1_W1")

    W = Waiter(); T = []
    if not FUSED: T += cap(lambda e: srd(e, 20, 's54', 's55', FL_OFF, 8192))
    if not FUSED:
        T.append("v_lshlrev_b32 v232, 5, v0")
        for k in range(4): T.append(f"v_mov_b32 v{236+k}, 0")
        T.append("buffer_store_dwordx4 v[236:239], v232, s[20:23], 0 offen sc1")
        T.append("buffer_store_dwordx4 v[236:239], v232, s[20:23], 0 offen offset:16 sc1")
        W.issue('vm', 'Z0'); W.issue('vm', 'Z1')
    dma_voff(T, False)
    T.append("s_sub_u32 s35, s2, 254"); T.append("s_lshl_b32 s35, s35, 1")
    T += cap(lambda e: (srd(e, 16, 's52', 's53', 0, 262144), srd(e, 8, 's50', 's51', 0, 131072),
                        srd(e, 24, 's54', 's55', WF_OFF, 262144)))
    narrow(T, W, 131072, 's35')
    for n in range(3): emit_tile(T, W, n, 8, n*SLOT)
    ka_setup(T)
    narrow_read(T, W)
    for n in range(3, 8): emit_tile(T, W, n, 8, n*SLOT)
    if FF: T.append("buffer_load_dword v243, off, s[4:7], 0 sc1"); W.issue('vm', 'TAG')
    T.append("s_barrier")
    T.append("s_add_u32 s56, s35, 1")
    narrow(T, W, 131072, 's56')
    later = std_later(8)
    T += phase(W, 0, 'X', later).linearize()
    T.append("s_nop 15")
    wf_store(T, ACC[0], 2, 's35')
    for i in range(8): W.issue('vm', ('WS', i))
    narrow_read(T, W)
    T += phase(W, 1, 'X', later).linearize()
    T.append("s_nop 15")
    wf_store(T, ACC[1], 2, 's56')
    finish(T, "K1_W2")

    e("K1_FIN:")
    if FUSED:
        if o['stamp']:
            e("s_waitcnt vmcnt(0)"); e("s_memtime s[64:65]"); e("s_memrealtime s[66:67]"); e("s_waitcnt lgkmcnt(0)")
            e("s_cmp_eq_u32 s28, 0"); e("s_cbranch_scc0 K1_NOST")
            e("s_add_u32 s68, s54, 0x8100000"); e("s_addc_u32 s69, s55, 0"); e("s_mov_b32 s70, 0x100000"); e("s_mov_b32 s71, 0x20000")
            for k, r in enumerate([60, 64, 62, 66]): e(f"v_mov_b32 v{232+k}, s{r}")
            e("s_lshl_b32 s33, s2, 4"); e("v_mov_b32 v236, s33")
            e("buffer_store_dwordx4 v[232:235], v236, s[68:71], 0 offen")
            for k in range(8): e(f"v_mov_b32 v{244+k}, s{72+2*k}")
            e("s_lshl_b32 s33, s2, 5"); e("s_add_u32 s33, s33, 0x10000"); e("v_mov_b32 v236, s33")
            e("buffer_store_dwordx4 v[244:247], v236, s[68:71], 0 offen")
            e("buffer_store_dwordx4 v[248:251], v236, s[68:71], 0 offen offset:16")
            e("K1_NOST:")
        if FF:
            e("s_lshl_b32 s33, s2, 7")
            fa, fb_ = (FLU, FLQ) if o.get('ugfirst', True) else (FLQ, FLU)
            e(f"s_add_u32 s67, s33, {fa}")
            e(f"s_add_u32 s56, s33, {fb_ - 125*128}"); e("s_cmp_ge_u32 s2, 125"); e("s_cselect_b32 s67, s56, s67")
            e(f"s_add_u32 s56, s33, {FLW - 250*128}"); e("s_cmp_ge_u32 s2, 250"); e("s_cselect_b32 s67, s56, s67")
            for k in range(4): e(f"s_mov_b32 s{92+k}, s{4+k}")
            for x in ["s_mov_b32 s4, s54", "s_mov_b32 s5, s55", "s_mov_b32 s32, s48", "s_mov_b32 s33, s49", "s_mov_b32 s40, s100", "s_mov_b32 s41, s101", "s_mov_b32 s48, s28", "s_mov_b32 s101, 0"]: e(x)
            return L, [], []
        e("K1_TAGP:")
        e("buffer_load_dword v232, off, s[4:7], 0 sc1")
        e("s_waitcnt vmcnt(0) lgkmcnt(0)")
        e("v_readfirstlane_b32 s3, v232")
        e("s_nop 3")
        e("s_cmp_lg_u32 s3, 0"); e("s_cbranch_scc1 K1_TAGD"); e("s_sleep 1")
        e("s_add_u32 s101, s101, 1"); e("s_cmp_lt_u32 s101, 0x400000"); e("s_cbranch_scc1 K1_TAGP")
        e("K1_TAGD:")
        e("s_barrier")
        e("s_cmp_eq_u32 s28, 0"); e("s_cbranch_scc0 K1_NOFL")
        e("s_lshl_b32 s33, s2, 7")
        fa, fb_ = (FLU, FLQ) if o.get('ugfirst', True) else (FLQ, FLU)
        if CT:
            e(f"s_add_u32 s34, s33, {FLU}")
        else:
            e(f"s_add_u32 s34, s33, {fa}")
            e(f"s_add_u32 s56, s33, {fb_ - 125*128}"); e("s_cmp_ge_u32 s2, 125"); e("s_cselect_b32 s34, s56, s34")
        e(f"s_add_u32 s56, s33, {FLW - 250*128}"); e("s_cmp_ge_u32 s2, 250"); e("s_cselect_b32 s34, s56, s34")
        srd(e, 8, 's54', 's55', FL_OFF, FL_SIZE)
        e("v_mov_b32 v232, s3")
        e("v_cmp_eq_u32 vcc, 0, v240"); e("s_and_saveexec_b64 s[56:57], vcc")
        e("buffer_store_dword v232, off, s[8:11], s34 sc1")
        if CT:
            e(f"s_add_u32 s34, s33, {FLQ}"); e("s_cmp_lt_u32 s2, 250"); e("s_cbranch_scc0 K1_NOFL2")
            e("buffer_store_dword v232, off, s[8:11], s34 sc1")
            e("K1_NOFL2:")
        e("s_mov_b64 exec, s[56:57]")
        e("K1_NOFL:")
        e("s_mov_b32 s48, s28")
        return L, [], []
    if o['stamp']:
        e("s_waitcnt vmcnt(0)")
        e("s_memtime s[64:65]"); e("s_memrealtime s[66:67]")
        e("s_waitcnt lgkmcnt(0)")
        e("s_cmp_eq_u32 s28, 0"); e("s_cbranch_scc0 K1_END")
        e("s_add_u32 s68, s54, 0x8100000"); e("s_addc_u32 s69, s55, 0"); e("s_mov_b32 s70, 0x100000"); e("s_mov_b32 s71, 0x20000")
        for k, r in enumerate([60, 64, 62, 66]): e(f"v_mov_b32 v{232+k}, s{r}")
        e("s_lshl_b32 s33, s2, 4"); e("v_mov_b32 v236, s33")
        e("buffer_store_dwordx4 v[232:235], v236, s[68:71], 0 offen")
        for k in range(8): e(f"v_mov_b32 v{244+k}, s{72+2*k}")
        e("s_lshl_b32 s33, s2, 5"); e("s_add_u32 s33, s33, 0x10000"); e("v_mov_b32 v236, s33")
        e("buffer_store_dwordx4 v[244:247], v236, s[68:71], 0 offen")
        e("buffer_store_dwordx4 v[248:251], v236, s[68:71], 0 offen offset:16")
    e("K1_END:")
    e("s_endpgm")
    return L, kernel_desc(name, 288, 256), []
```

```python
from gen_common import *
from tl import TL
import hazard, struct
SLOT = 16384
EX = 131072
fb = lambda x: hex(struct.unpack('<I', struct.pack('<f', x))[0])

def gen_k1(opt=None):
    o = dict(D=6, stamp=False, st='', npre=2, nln=4)
    if opt: o.update(opt)
    D = o['D']; ST = (' ' + o['st']) if o['st'] else ''
    FUSED = o.get('fused')
    name = FUSED if FUSED else 'prep_kernel'
    L = []; e = L.append
    B = 0; ACC = [64, 128]; KA = 192; KA2 = 200; VN = 208; VN2 = 216; DV = 224; DS = 228; XB = 200
    aR = 0; R = 8
    def stamp(T, k):
        if o['stamp']: T.append(f"s_memrealtime s[{72+2*k}:{73+2*k}]")
    L += kernel_header(name)
    e("s_cmp_ge_u32 s2, 256")
    e("s_cbranch_scc1 K2_END" if FUSED else "s_cbranch_scc1 K1_END")
    e("s_load_dwordx16 s[36:51], s[0:1], 0")
    e("s_load_dwordx2 s[52:53], s[0:1], 64")
    e("s_load_dwordx2 s[54:55], s[0:1], 88")
    FF = FUSED and o.get('fastfin', True) and not o.get('ct')
    if FUSED: e("s_load_dwordx2 s[58:59], s[0:1], 80")
    if FF: e("s_load_dwordx2 s[100:101], s[0:1], 72")
    if FF: e("s_mov_b32 s98, 0")
    if FUSED and not FF: e("s_mov_b32 s101, 0")
    if o['stamp']:
        e("s_memtime s[60:61]"); e("s_memrealtime s[62:63]")
    e("v_lshrrev_b32 v232, 6, v0")
    e("v_and_b32 v240, 63, v0")
    e("v_lshrrev_b32 v241, 5, v240")
    e("v_and_b32 v242, 31, v240")
    e("v_readfirstlane_b32 s28, v232")
    e("s_and_b32 s29, s28, 1")
    e("s_lshr_b32 s30, s28, 1")
    e("s_lshl_b32 s31, s28, 12")
    CT = o.get('ct')
    if CT: e("s_mov_b32 s35, s2")
    else: e("s_sub_u32 s35, s2, 125"); e("s_cmp_lt_u32 s2, 125"); e("s_cselect_b32 s35, s2, s35")
    e("s_lshl_b32 s33, s28, 1")
    for k in range(4):
        e(f"v_add_u32 v234, {2*k}, v241"); e("v_and_b32 v234, 3, v234"); e("v_lshlrev_b32 v234, 2, v234")
        e(f"s_add_u32 s34, s33, {k>>1}"); e("s_and_b32 s34, s34, 3")
        e("v_or_b32 v234, s34, v234"); e("v_xor_b32 v234, v242, v234"); e("v_lshlrev_b32 v234, 4, v234")
        e("v_lshl_add_u32 v234, v241, 9, v234")
        e(f"v_add_u32 v{DS+k}, s31, v234")
    e("s_waitcnt lgkmcnt(0)")
    if FUSED:
        e("s_mov_b32 s4, s58"); e("s_mov_b32 s5, s59"); e("s_mov_b32 s6, 256"); e("s_mov_b32 s7, 0x20000")
        e("s_or_b32 s33, s2, s28"); e("s_cmp_eq_u32 s33, 0"); e("s_cbranch_scc0 K1_NOTAG")
        e("s_memrealtime s[56:57]"); e("s_waitcnt lgkmcnt(0)"); e("s_or_b32 s56, s56, 1")
        e("v_mov_b32 v234, s56")
        e("buffer_store_dword v234, off, s[4:7], 0 sc1")
        e("K1_NOTAG:")
    e("s_cmp_lt_u32 s2, 250"); e("s_cbranch_scc0 K1_NOX")
    srd(e, 16, 's36', 's37', 0, 8000*512)
    e("s_lshl_b32 s32, s35, 14" if CT else "s_lshl_b32 s32, s35, 15")
    for half in range(1 if CT else 2):
        e(f"s_add_u32 m0, s31, {EX + half*SLOT:#x}")
        if half: e("s_add_u32 s32, s32, 16384")
        else: e("s_nop 0")
        for k in range(4):
            e(f"buffer_load_dwordx4 v{DS+k}, s[16:19], s32 offen offset:{k*1024} lds")
    PU = FUSED and o.get('pfug', True) and o.get('ugfirst', True) and not CT
    if PU:
        e("s_cmp_lt_u32 s2, 128"); e("s_cbranch_scc0 K1_NOX")
        e("s_lshr_b32 s33, s2, 3"); e("s_lshl_b32 s33, s33, 2"); e("s_add_u32 s33, s33, s28")
        e("v_lshlrev_b32 v232, 4, v240")
        e("s_getpc_b64 s[56:57]")
        e("K1_PCREF:")
        e(f"s_add_u32 s56, s56, K1_NOX-K1_PCREF"); e("s_addc_u32 s57, s57, 0")
        e("s_lshl_b32 s34, s33, 10"); e("v_add_u32 v233, s34, v232")
        e(f"s_cmp_lt_u32 s34, {o.get('ipfbytes', 61440)}"); e("s_cbranch_scc0 K1_NOIPF")
        e("global_load_dwordx4 v[252:255], v233, s[56:57]")
        e("K1_NOIPF:")
        e("s_mov_b32 s8, s40"); e("s_mov_b32 s9, s41"); e("s_mov_b32 s10, 131072"); e("s_mov_b32 s11, 0x20000")
        e("s_lshl_b32 s34, s33, 11")
        e("buffer_load_dwordx4 v[100:103], v232, s[8:11], s34 offen")
        e("buffer_load_dwordx4 v[104:107], v232, s[8:11], s34 offen offset:1024")
        e("s_and_b32 s33, s2, 7"); e("s_cmp_lt_u32 s33, 2"); e("s_cbranch_scc1 K1_NOX")
        e("s_lshr_b32 s34, s2, 3")
        e("s_add_u32 s56, s52, 131072"); e("s_addc_u32 s57, s53, 0")
        e("s_cmp_ge_u32 s33, 6"); e("s_cselect_b32 s8, s50, s44"); e("s_cselect_b32 s9, s51, s45"); e("s_cselect_b32 s56, s56, s42"); e("s_cselect_b32 s57, s57, s43")
        e("s_cmp_lt_u32 s34, 8"); e("s_cselect_b32 s8, s8, s56"); e("s_cselect_b32 s9, s9, s57")
        e("s_and_b32 s34, s34, 7"); e("s_lshl_b32 s34, s34, 14"); e("s_lshl_b32 s33, s28, 12"); e("s_add_u32 s34, s34, s33")
        for k in range(4): e(f"buffer_load_dwordx4 v[{108+4*k}:{111+4*k}], v232, s[8:11], s34 offen offset:{k*1024}")
    else:
        if FUSED and o.get('ipf', True):
            e("s_getpc_b64 s[56:57]")
            e("K1_PCREF:")
            e(f"s_add_u32 s56, s56, {o.get('ipfbase', 'K1_NOX')}-K1_PCREF"); e("s_addc_u32 s57, s57, 0")
            e("s_lshr_b32 s33, s2, 3"); e("s_lshl_b32 s33, s33, 2"); e("s_add_u32 s33, s33, s28"); e("s_lshl_b32 s33, s33, 10")
            e(f"s_cmp_lt_u32 s33, {o.get('ipfbytes', 61440)}"); e("s_cbranch_scc0 K1_NOIPF")
            e("v_lshlrev_b32 v232, 4, v240"); e("v_add_u32 v232, s33, v232")
            e("global_load_dwordx4 v[252:255], v232, s[56:57]")
            e("K1_NOIPF:")
        if o.get('wpf', False):
            e("s_lshr_b32 s33, s2, 3"); e("s_lshl_b32 s33, s33, 2"); e("s_add_u32 s33, s33, s28")
            e("v_lshlrev_b32 v232, 4, v240")
            e("s_mov_b32 s8, s40"); e("s_mov_b32 s9, s41"); e("s_mov_b32 s10, 131072"); e("s_mov_b32 s11, 0x20000")
            e("s_lshl_b32 s34, s33, 10")
            e("buffer_load_dwordx4 v[100:103], v232, s[8:11], s34 offen")
            if o.get('wpf') != 'k':
                e("s_mov_b32 s8, s46"); e("s_mov_b32 s9, s47"); e("s_mov_b32 s10, 262144")
                e("s_lshl_b32 s34, s33, 11")
                e("buffer_load_dwordx4 v[104:107], v232, s[8:11], s34 offen")
                e("buffer_load_dwordx4 v[108:111], v232, s[8:11], s34 offen offset:1024")
        if FUSED and o.get('tlb', False):
            e("s_load_dwordx2 s[56:57], s[0:1], 72"); e("s_waitcnt lgkmcnt(0)")
            e("s_cmp_eq_u32 s28, 1"); e("s_cbranch_scc0 K1_NOTLB")
            srd(e, 8, 's54', 's55', OP_OFF, 64*16*16384)
            e("v_lshlrev_b32 v232, 21, v240")
            e("buffer_load_dword v112, v232, s[8:11], 0 offen")
            e("s_mov_b32 s8, s56"); e("s_mov_b32 s9, s57"); e("s_mov_b32 s10, 4096000")
            e("buffer_load_dword v113, v232, s[8:11], 0 offen")
            e("K1_NOTLB:")
        if o.get('pf', True):
            e("s_and_b32 s33, s2, 7"); e("s_cmp_lt_u32 s33, 2"); e("s_cbranch_scc1 K1_NOPF")
            e("s_lshr_b32 s34, s2, 3")
            e("s_cmp_ge_u32 s33, 6"); e("s_cbranch_scc1 K1_PF2")
            e("s_cmp_lt_u32 s34, 16"); e("s_cselect_b32 s8, s44, s42"); e("s_cselect_b32 s9, s45, s43")
            e("s_and_b32 s34, s34, 15"); e("s_lshl_b32 s34, s34, 13")
            e("s_branch K1_PF3")
            e("K1_PF2:")
            e("s_add_u32 s56, s52, 131072"); e("s_addc_u32 s57, s53, 0")
            e("s_cmp_lt_u32 s34, 16"); e("s_cselect_b32 s8, s50, s56"); e("s_cselect_b32 s9, s51, s57")
            e("s_and_b32 s34, s34, 15"); e("s_lshl_b32 s34, s34, 13")
            e("K1_PF3:")
            e("s_mov_b32 s10, 131072"); e("s_mov_b32 s11, 0x20000")
            e("v_lshlrev_b32 v232, 4, v240"); e("s_lshl_b32 s33, s28, 11"); e("s_add_u32 s34, s34, s33")
            e("buffer_load_dwordx4 v[244:247], v232, s[8:11], s34 offen")
            e("buffer_load_dwordx4 v[248:251], v232, s[8:11], s34 offen offset:1024")
            e("K1_NOPF:")
        pass
    e("K1_NOX:")
    first, second = ("K1_UG", "K1_Q") if o.get('ugfirst', True) else ("K1_Q", "K1_UG")
    if CT:
        e("s_cmp_lt_u32 s2, 250"); e("s_cbranch_scc1 K1_CT")
    else:
        e("s_cmp_lt_u32 s2, 125"); e(f"s_cbranch_scc1 {first}")
        e("s_cmp_lt_u32 s2, 250"); e(f"s_cbranch_scc1 {second}")
    e("s_cmp_lt_u32 s2, 254"); e("s_cbranch_scc1 K1_W1")
    e("s_branch K1_W2")

    def k_addr(T, dst, dst2, base_lines):
        t = T.append
        t("v_and_b32 v234, 3, v242"); t("v_lshlrev_b32 v234, 2, v234"); t("v_bfe_u32 v235, v242, 2, 2")
        t("v_or_b32 v234, v234, v235"); t("v_lshlrev_b32 v236, 9, v242")
        for x in base_lines: t(x)
        t("v_add_u32 v236, s33, v236")
        for jj in range(8):
            t(f"v_add_u32 v235, {2*jj}, v241"); t("v_xor_b32 v235, v235, v234")
            t(f"v_lshl_add_u32 v{dst+jj}, v235, 4, v236")
            if dst2 is not None: t(f"v_add_u32 v{dst2+jj}, 0x10000, v{dst+jj}")
    def ka_setup(T): k_addr(T, KA, KA2, ["s_lshl_b32 s33, s30, 14"])
    def xb_setup(T): k_addr(T, XB, None, ["s_lshl_b32 s33, s29, 14", f"s_add_u32 s33, s33, {EX}", "s_lshl_b32 s34, s30, 8", "s_add_u32 s33, s33, s34"])
    def vn_setup(T):
        t = T.append
        t("v_bfe_u32 v234, v240, 4, 1"); t("v_bfe_u32 v235, v240, 2, 2"); t("v_bfe_u32 v236, v240, 1, 1")
        t("v_lshl_add_u32 v236, v234, 1, v236"); t("v_and_b32 v237, 1, v240"); t("v_lshlrev_b32 v237, 3, v237")
        t("v_lshl_add_u32 v238, v241, 3, v235"); t("v_lshl_add_u32 v237, v238, 9, v237")
        t("s_lshl_b32 s33, s30, 8"); t("v_add_u32 v237, s33, v237")
        for a in range(4):
            for u in range(2):
                t(f"v_lshl_add_u32 v238, v241, 1, {u}"); t("v_lshl_or_b32 v238, v235, 2, v238")
                t(f"v_add_u32 v239, {4*a}, v236"); t("v_xor_b32 v238, v238, v239")
                t(f"v_lshl_add_u32 v{VN+a*2+u}, v238, 4, v237")
                if u: t(f"v_add_u32 v{VN+a*2+u}, {4*512}, v{VN+a*2+u}")
                t(f"v_add_u32 v{VN2+a*2+u}, 0x10000, v{VN+a*2+u}")
    def dma_voff(T, stride1024):
        t = T.append
        if not stride1024:
            for k in range(4): t(f"v_mov_b32 v{DV+k}, v{DS+k}")
            return
        t("s_lshl_b32 s33, s28, 1")
        for k in range(4):
            t(f"v_add_u32 v234, {2*k}, v241"); t("v_and_b32 v234, 3, v234"); t("v_lshlrev_b32 v234, 2, v234")
            t(f"s_add_u32 s34, s33, {k>>1}"); t("s_and_b32 s34, s34, 3")
            t("v_or_b32 v234, s34, v234"); t("v_xor_b32 v234, v242, v234"); t("v_lshlrev_b32 v234, 4, v234")
            t("v_lshl_add_u32 v234, v241, 10, v234"); t("s_lshl_b32 s34, s28, 13"); t(f"s_add_u32 s34, s34, {k*1024}")
            t(f"v_add_u32 v{DV+k}, s34, v234")
    def tile_dma(n, srdn, soff):
        if o.get('nodma'): return []
        r = [(f"s_add_u32 m0, s31, {(n%8)*SLOT:#x}", False), (f"s_mov_b32 s32, {soff:#x}", False)]
        for k in range(4):
            r.append((f"buffer_load_dwordx4 v{DV+k}, s[{srdn}:{srdn+3}], s32 offen offset:{k*1024} lds", True))
        return r
    def emit_tile(out, W, n, srdn, soff):
        for txt, vm in tile_dma(n, srdn, soff):
            out.append(txt)
            if vm: W.issue('vm', ('T', n))
    def out_rows(T, W, srdn, tag, OB):
        t = T.append
        t("v_lshlrev_b32 v232, 4, v240"); t(f"s_add_u32 s33, s31, {EX}"); t("v_add_u32 v232, s33, v232")
        for half in range(2):
            for k in range(4):
                t(f"ds_read_b128 {vr(OB+(half*4+k)*4,4)}, v232 offset:{half*SLOT + k*1024}")
        t("s_lshl_b32 s32, s35, 15")
        for half in range(2):
            if half: t("s_add_u32 s32, s32, 16384")
            for k in range(4):
                t(f"s_waitcnt lgkmcnt({7 - (half*4+k)})")
                t(f"buffer_store_dwordx4 {vr(OB+(half*4+k)*4,4)}, v{DS+k}, s[{srdn}:{srdn+3}], s32 offen offset:{k*1024}{ST}")
                W.issue('vm', (tag, half, k))
        W.drain('lgkm')
    def ln(out, W, tiles):
        nw = W.need('vm', [('X', 7)])
        out.append(f"s_waitcnt vmcnt({nw})")
        out.append("s_barrier")
        stamp(out, 0)
        for s in range(8):
            out.append(f"ds_read_b128 {vr(64+4*s,4)}, v{XB+s}")
        body = []; b = body.append
        b("s_mov_b32 s34, 0x3f803f80")
        for k in range(4): b(f"v_mov_b32 v{232+k}, 0")
        for r in range(32):
            if r % 4 == 0: b(f"s_waitcnt lgkmcnt({7 - r//4})")
            b(f"v_dot2_f32_bf16 v{232+(r&1)}, v{64+r}, s34, v{232+(r&1)}")
            b(f"v_dot2_f32_bf16 v{234+(r&1)}, v{64+r}, v{64+r}, v{234+(r&1)}")
        b("s_nop 2")
        b("v_add_f32 v232, v232, v233"); b("v_add_f32 v234, v234, v235")
        b("v_mov_b32 v233, v232"); b("v_mov_b32 v235, v234"); b("s_nop 1")
        b("v_permlane32_swap_b32 v232, v233"); b("v_permlane32_swap_b32 v234, v235"); b("s_nop 1")
        b("v_add_f32 v232, v232, v233"); b("v_add_f32 v233, v234, v235")
        b(f"ds_write_b64 v{XB}, v[232:233]")
        b(f"v_xor_b32 v238, 256, v{XB}")
        b("s_waitcnt lgkmcnt(0)")
        b("s_barrier")
        b("ds_read_b64 v[234:235], v238")
        b("s_waitcnt lgkmcnt(0)")
        b("v_add_f32 v232, v232, v234"); b("v_add_f32 v234, v233, v235")
        b("v_mul_f32 v232, 0x3b800000, v232"); b("v_mul_f32 v234, 0x3b800000, v234")
        b("v_fma_f32 v234, -v232, v232, v234"); b("v_max_f32 v234, 0, v234"); b("v_add_f32 v234, 0x3727c5ac, v234")
        b("v_rsq_f32 v234, v234"); b("s_nop 0")
        b("v_mul_f32 v236, v232, v234"); b("v_sub_f32 v236, 0, v236")
        b("s_barrier")
        for r in range(32):
            t = 244 + 2*(r % 4)
            b(f"v_lshlrev_b32 v{t}, 16, v{64+r}")
            b(f"v_and_b32 v{t+1}, 0xffff0000, v{64+r}")
            b(f"v_pk_fma_f32 v[{t}:{t+1}], v[{t}:{t+1}], v[234:235], v[236:237] op_sel_hi:[1,0,0]")
            b(f"v_cvt_pk_bf16_f32 v{64+r}, v{t}, v{t+1}")
            if r % 4 == 3: b(f"ds_write_b128 v{XB+r//4}, {vr(64+r-3,4)}")
        b("s_waitcnt lgkmcnt(0)")
        b("s_barrier")
        b("s_lshl_b32 s33, s30, 8")
        for jj in range(8): b(f"v_subrev_u32 v{244+jj}, s33, v{XB+jj}")
        for s in range(16):
            b(f"ds_read_b128 {vr(B+4*s,4)}, v{244+(s&7)} offset:{(s>>3)*256}")
        flat = []
        for (n, sn, so) in tiles:
            tl_ = [(txt, vm, n) for txt, vm in tile_dma(n, sn, so)]
            flat.append(tl_[:3])
            for x in tl_[3:]: flat.append([x])
        gap = max(1, len(body) // (len(flat) + 1)) if flat else 1
        fi = 0
        for i, ins in enumerate(body):
            out.append(ins)
            if fi < len(flat) and i % gap == gap - 1:
                for txt, vm, n in flat[fi]:
                    out.append(txt)
                    if vm: W.issue('vm', ('T', n))
                fi += 1
        while fi < len(flat):
            for txt, vm, n in flat[fi]:
                out.append(txt)
                if vm: W.issue('vm', ('T', n))
            fi += 1
        out.append("s_waitcnt lgkmcnt(0)")
        W.drain('lgkm')
    def phase(W, p, kind, later, fill=None, f0=3):
        tl = TL(W)
        acc = ACC[p]
        cnt = [0]
        for a in range(4):
            sig = 4*p + a
            tb = 16*a - D - 1
            tl.add(tb, 'bar', needvm=[('T', 2*sig), ('T', 2*sig+1)], prio=1)
            k = 0
            for (n, sn, so) in later.get(sig, []):
                for txt, vm in tile_dma(n, sn, so):
                    sp = o.get('dsp', 2)
                    if vm:
                        tl.add(tb + 1 + sp*k, 'vm', txt, tag=('T', n), prio=7); k += 1
                    else:
                        tl.add(tb + 1 + sp*k, 'txt', txt, prio=6)
            for m in range(16):
                tm = 16*a + m
                ri = cnt[0] % R; cnt[0] += 1
                ring = aR + 4*ri
                if kind == 'X':
                    j = m; slot = 2*a
                    base = (KA if slot < 4 else KA2) + (j & 7)
                    off = (slot % 4)*SLOT + (j >> 3)*256
                    tag = (p, a, m)
                    tl.add(tm - D, 'lds', f"ds_read_b128 {ar(ring,4)}, v{base} offset:{off}", tag=tag, prio=2)
                    c = vr(acc+16*a,16) if j else '0'
                    tl.add(tm, 'mfma', f"v_mfma_f32_32x32x16_bf16 {vr(acc+16*a,16)}, {ar(ring,4)}, {vr(B+4*j,4)}, {c}", need=[tag], prio=0)
                else:
                    tt, s, aa = m >> 3, (m >> 2) & 1, m & 3
                    tau = 2*a + tt; slot = tau
                    tags = []
                    for u in range(2):
                        base = (VN if slot < 4 else VN2) + aa*2 + u
                        off = (slot % 4)*SLOT + 16*s*512
                        tag = (p, a, m, u); tags.append(tag)
                        tl.add(tm - D, 'lds', f"ds_read_b64_tr_b16 {ar(ring+2*u,2)}, v{base} offset:{off}", tag=tag, prio=2)
                    c = vr(acc+16*aa,16) if (tau or s) else '0'
                    tl.add(tm, 'mfma', f"v_mfma_f32_32x32x16_bf16 {vr(acc+16*aa,16)}, {ar(ring,4)}, {vr(B+4*(2*tau+s),4)}, {c}", need=tags, prio=0)
        if fill:
            n = len(fill)
            for i, ins in enumerate(fill):
                tl.add(f0 + (i*(64-f0))/n, 'txt', ins, prio=4)
        return tl
    def pack_swap(out, src, dst, swap=True, scale=None):
        if scale:
            for k in range(8):
                out.append(f"v_pk_mul_f32 v[{src+2*k}:{src+2*k+1}], v[{src+2*k}:{src+2*k+1}], {scale} op_sel_hi:[1,0]")
        for k in range(8):
            out.append(f"v_cvt_pk_bf16_f32 v{dst+k}, v{src+2*k}, v{src+2*k+1}")
        if swap:
            out.append("s_nop 1")
            for b in (0, 4):
                out.append(f"v_permlane32_swap_b32 v{dst+b}, v{dst+b+2}")
                out.append(f"v_permlane32_swap_b32 v{dst+b+1}, v{dst+b+3}")
    def exchange(out, W, acc, kind, xaflag=False):
        out.append("s_nop 15")
        out.append("v_lshlrev_b32 v232, 4, v240")
        out.append(f"s_lshl_b32 s33, s29, 14"); out.append(f"s_add_u32 s33, s33, {EX}")
        out.append("v_add_u32 v233, s33, v232")
        out.append(f"s_lshl_b32 s34, s30, {13 if kind=='Y' else 11}")
        out.append("v_add_u32 v232, s34, v233")
        for a in range(4):
            d = 244 if a % 2 == 0 else 0
            pack_swap(out, acc+16*a, d)
            for s in range(2):
                f = (2*a + s) if kind == 'Y' else (4*a + s)
                out.append(f"ds_write_b128 v232, {vr(d+4*s,4)} offset:{f*1024}")
        if xaflag:
            n = W.need('vm', [x for x in W.q['vm'] if isinstance(x, tuple) and x[0] == 'XS'] + ['TAG'])
            if n is not None: out.append(f"s_waitcnt vmcnt({n})")
        out.append("s_waitcnt lgkmcnt(0)")
        out.append("s_barrier")
        if xaflag:
            out.append("v_readfirstlane_b32 s3, v243"); out.append("s_or_b32 s33, s28, 0");
            out.append("s_cmp_eq_u32 s28, 0"); out.append("s_cbranch_scc0 K1_Q_NOXF")
            out.append("s_cmp_lg_u32 s3, 0"); out.append("s_cbranch_scc0 K1_Q_NOXF")
            out += cap(lambda e: srd(e, 16, 's54', 's55', FL_OFF, FL_SIZE))
            out.append("s_lshl_b32 s33, s35, 7"); out.append(f"s_add_u32 s33, s33, {FLQ + 4}")
            out.append("v_mov_b32 v238, s3"); out.append("v_cmp_eq_u32 vcc, 0, v240"); out.append("s_and_saveexec_b64 s[56:57], vcc")
            out.append("buffer_store_dword v238, off, s[16:19], s33 sc1")
            out.append("s_mov_b64 exec, s[56:57]")
            out.append("K1_Q_NOXF:")
        for f in range(16):
            out.append(f"ds_read_b128 {vr(B+4*f,4)}, v233 offset:{f*1024}")
        out.append("s_waitcnt lgkmcnt(0)")
        W.drain('lgkm')
    def narrow(out, W, rowbase_bytes, slice_sreg):
        for x in ["v_lshrrev_b32 v232, 3, v240", "v_lshlrev_b32 v232, 9, v232", "v_and_b32 v233, 7, v240",
                  "v_lshl_add_u32 v232, v233, 4, v232", f"s_lshl_b32 s33, {slice_sreg}, 7", "s_lshl_b32 s34, s28, 15",
                  "s_add_u32 s33, s33, s34", f"s_add_u32 s33, s33, {rowbase_bytes}", "v_add_u32 v232, s33, v232",
                  "s_lshl_b32 s34, s28, 13", f"s_add_u32 s34, s34, {EX}"]: out.append(x)
        for i in range(8):
            out.append(f"s_add_u32 m0, s34, {i*1024}")
            out.append(f"s_mov_b32 s32, {i*4096}")
            out.append(f"buffer_load_dwordx4 v232, s[16:19], s32 offen lds")
            W.issue('vm', ('N', i))
    def narrow_read(out, W):
        n = W.need('vm', [('N', 7)])
        out.append(f"s_waitcnt vmcnt({n})")
        out.append("s_barrier")
        for x in ["v_bfe_u32 v232, v240, 2, 2", "v_lshl_add_u32 v232, v241, 3, v232", "v_lshlrev_b32 v232, 7, v232",
                  "v_bfe_u32 v233, v240, 4, 1", "v_lshl_add_u32 v232, v233, 5, v232", "v_and_b32 v233, 3, v240",
                  "v_lshl_add_u32 v232, v233, 3, v232", "s_lshl_b32 s33, s29, 6", f"s_add_u32 s33, s33, {EX}",
                  "v_add_u32 v232, s33, v232"]: out.append(x)
        for s in range(16):
            for u in range(2):
                out.append(f"ds_read_b64_tr_b16 {vr(B+4*s+2*u,2)}, v232 offset:{s*2048+u*512}")
            if s % 4 == 3: out.append("s_waitcnt lgkmcnt(0)")
        W.drain('lgkm')
    def finish(task_lines, label):
        if CT and label in ("K1_Q", "K1_UG"): return
        fixed = hazard.autofix(task_lines)
        e(f"{label}:")
        L.extend(fixed)
        e("s_branch K1_FIN")
    def cap(fn):
        buf = []; fn(buf.append); return buf
    std_later = lambda sn: {2: [(8, sn, 0), (9, sn, SLOT)], 3: [(10, sn, 2*SLOT), (11, sn, 3*SLOT)], 4: [(12, sn, 4*SLOT), (13, sn, 5*SLOT)], 5: [(14, sn, 6*SLOT), (15, sn, 7*SLOT)]}
    npre = o['npre']


    if CT:
        EXB = EX + 16384
        Bq = 64
        ACCQ, ACCK, ACCG, ACCU = 64, 96, 128, 160
        VN4 = 208; VN42 = 212; XO = 216; XB8 = 244
        W = Waiter(); T = []; t = T.append
        for s_ in range(4): W.issue('vm', ('X', s_))
        dma_voff(T, True)
        T += cap(lambda e: (srd(e, 8, 's38', 's39', 0, 131072), srd(e, 12, 's40', 's41', 0, 131072), srd(e, 20, 's46', 's47', 0, 262144),
                            srd(e, 24, 's54', 's55', QF_OFF, 500*8192)))
        def tinfo(n):
            if n < 8: return (8, n*SLOT, DS)
            if n < 16: return (12, (n-8)*SLOT, DS)
            if n < 24: return (20, (n-16)*32768 + 512, DV)
            return (20, (n-24)*32768, DV)
        def tdma(n):
            sn, so, dv = tinfo(n)
            r = [(f"s_add_u32 m0, s31, {(n%8)*SLOT:#x}", False), (f"s_mov_b32 s32, {so:#x}", False)]
            for k in range(4): r.append((f"buffer_load_dwordx4 v{dv+k}, s[{sn}:{sn+3}], s32 offen offset:{k*1024} lds", True))
            return r
        def temit(n):
            for txt, vm in tdma(n):
                t(txt)
                if vm: W.issue('vm', ('T', n))
        temit(0); temit(1)
        t("v_and_b32 v234, 3, v242"); t("v_lshlrev_b32 v234, 2, v234"); t("v_bfe_u32 v235, v242, 2, 2"); t("v_or_b32 v234, v234, v235")
        t("v_lshlrev_b32 v236, 9, v242"); t(f"v_add_u32 v237, {EX}, v236")
        t("s_lshl_b32 s33, s30, 8"); t("v_add_u32 v238, s33, v237")
        t("s_lshl_b32 s33, s29, 3")
        for i in range(4):
            t(f"s_add_u32 s34, s33, {2*i}"); t("v_add_u32 v235, s34, v241"); t("v_xor_b32 v235, v235, v234"); t(f"v_lshl_add_u32 v{XO+i}, v235, 4, v238")
        t("s_lshl_b32 s33, s28, 14"); t("v_add_u32 v238, s33, v236")
        for jj in range(8):
            t(f"v_add_u32 v235, {2*jj}, v241"); t("v_xor_b32 v235, v235, v234")
            t(f"v_lshl_add_u32 v{KA+jj}, v235, 4, v238"); t(f"v_add_u32 v{KA2+jj}, 0x10000, v{KA+jj}")
        t("v_bfe_u32 v234, v240, 4, 1"); t("v_bfe_u32 v235, v240, 2, 2"); t("v_bfe_u32 v236, v240, 1, 1")
        t("v_lshl_add_u32 v236, v234, 1, v236"); t("v_and_b32 v237, 1, v240"); t("v_lshlrev_b32 v237, 3, v237")
        t("v_lshl_add_u32 v238, v241, 3, v235"); t("v_lshl_add_u32 v237, v238, 9, v237")
        t("s_lshl_b32 s33, s30, 8"); t("v_add_u32 v237, s33, v237")
        t("s_lshl_b32 s33, s29, 3")
        for aa in range(2):
            for u in range(2):
                t(f"v_lshl_add_u32 v238, v241, 1, {u}"); t("v_lshl_or_b32 v238, v235, 2, v238")
                t(f"s_add_u32 s34, s33, {4*aa}"); t("v_add_u32 v239, s34, v236"); t("v_xor_b32 v238, v238, v239")
                t(f"v_lshl_add_u32 v{VN4+aa*2+u}, v238, 4, v237")
                if u: t(f"v_add_u32 v{VN4+aa*2+u}, {4*512}, v{VN4+aa*2+u}")
                t(f"v_add_u32 v{VN42+aa*2+u}, 0x10000, v{VN4+aa*2+u}")
        nw = W.need('vm', [('X', 3)]); t(f"s_waitcnt vmcnt({nw})"); t("s_barrier")
        stamp(T, 0)
        for i in range(4): t(f"ds_read_b128 {vr(64+4*i,4)}, v{XO+i}")
        T += cap(lambda e: srd(e, 16, 's54', 's55', XA_OFF, 8000*512))
        body = []; b = body.append
        b("s_mov_b32 s34, 0x3f803f80")
        for k in range(4): b(f"v_mov_b32 v{232+k}, 0")
        for r in range(16):
            if r % 4 == 0: b(f"s_waitcnt lgkmcnt({3 - r//4})")
            b(f"v_dot2_f32_bf16 v{232+(r&1)}, v{64+r}, s34, v{232+(r&1)}")
            b(f"v_dot2_f32_bf16 v{234+(r&1)}, v{64+r}, v{64+r}, v{234+(r&1)}")
        b("s_nop 2")
        b("v_add_f32 v232, v232, v233"); b("v_add_f32 v234, v234, v235")
        b("v_mov_b32 v233, v232"); b("v_mov_b32 v235, v234"); b("s_nop 1")
        b("v_permlane32_swap_b32 v232, v233"); b("v_permlane32_swap_b32 v234, v235"); b("s_nop 1")
        b("v_add_f32 v232, v232, v233"); b("v_add_f32 v233, v234, v235")
        b("v_lshlrev_b32 v238, 3, v242"); b(f"v_add_u32 v238, {EXB}, v238")
        b("s_lshl_b32 s33, s28, 8"); b("v_add_u32 v239, s33, v238")
        b("ds_write_b64 v239, v[232:233]")
        b("s_waitcnt lgkmcnt(0)"); b("s_barrier")
        for k in range(4): b(f"ds_read_b64 v[{80+2*k}:{81+2*k}], v238 offset:{256*k}")
        b("s_waitcnt lgkmcnt(0)")
        b("v_add_f32 v80, v80, v82"); b("v_add_f32 v81, v81, v83"); b("v_add_f32 v84, v84, v86"); b("v_add_f32 v85, v85, v87")
        b("v_add_f32 v232, v80, v84"); b("v_add_f32 v234, v81, v85")
        b("v_mul_f32 v232, 0x3b800000, v232"); b("v_mul_f32 v234, 0x3b800000, v234")
        b("v_fma_f32 v234, -v232, v232, v234"); b("v_max_f32 v234, 0, v234"); b("v_add_f32 v234, 0x3727c5ac, v234")
        b("v_rsq_f32 v234, v234"); b("s_nop 0")
        b("v_mul_f32 v236, v232, v234"); b("v_sub_f32 v236, 0, v236")
        for r in range(16):
            tt_ = 244 + 2*(r % 4)
            b(f"v_lshlrev_b32 v{tt_}, 16, v{64+r}"); b(f"v_and_b32 v{tt_+1}, 0xffff0000, v{64+r}")
            b(f"v_pk_fma_f32 v[{tt_}:{tt_+1}], v[{tt_}:{tt_+1}], v[234:235], v[236:237] op_sel_hi:[1,0,0]")
            b(f"v_cvt_pk_bf16_f32 v{64+r}, v{tt_}, v{tt_+1}")
            if r % 4 == 3: b(f"ds_write_b128 v{XO+r//4}, {vr(64+r-3,4)}")
        b("s_lshl_b32 s33, s28, 14"); b(f"s_sub_u32 s33, {EX}, s33")
        for jj in range(8): b(f"v_add_u32 v{XB8+jj}, s33, v{KA+jj}")
        b("s_waitcnt lgkmcnt(0)"); b("s_barrier")
        for s_ in range(16): b(f"ds_read_b128 {vr(B+4*s_,4)}, v{XB8+(s_&7)} offset:{(s_>>3)*256}")
        b("v_lshlrev_b32 v232, 4, v240"); b(f"s_add_u32 s33, s31, {EX}"); b("v_add_u32 v232, s33, v232")
        for k in range(4): b(f"ds_read_b128 {vr(96+4*k,4)}, v232 offset:{k*1024}")
        flat = []
        for n in range(2, 6):
            tl_ = [(txt, vm, n) for txt, vm in tdma(n)]
            flat.append(tl_[:3])
            for x in tl_[3:]: flat.append([x])
        gap = max(1, (len(body) - 24) // (len(flat) + 1)); fi = 0
        for i, ins in enumerate(body):
            t(ins)
            if fi < len(flat) and i % gap == gap - 1:
                for txt, vm, n in flat[fi]:
                    t(txt)
                    if vm: W.issue('vm', ('T', n))
                fi += 1
        while fi < len(flat):
            for txt, vm, n in flat[fi]:
                t(txt)
                if vm: W.issue('vm', ('T', n))
            fi += 1
        t("s_waitcnt lgkmcnt(0)")
        t("s_lshl_b32 s56, s35, 14")
        for k in range(4):
            t(f"buffer_store_dwordx4 {vr(96+4*k,4)}, v{DS+k}, s[16:19], s56 offen offset:{k*1024}{ST}"); W.issue('vm', ('XS', k))
        stamp(T, 1)
        def flag_store(off_lines, lbl):
            t("s_cmp_eq_u32 s28, 0"); t(f"s_cbranch_scc0 {lbl}")
            for x in off_lines: t(x)
            t("v_mov_b32 v232, s3"); t("v_cmp_eq_u32 vcc, 0, v240"); t("s_and_saveexec_b64 s[56:57], vcc")
            t("buffer_store_dword v232, off, s[8:11], s34 sc1")
            t("s_mov_b64 exec, s[56:57]")
            t(f"{lbl}:")
        fillers = {}
        def step(sig, extra_need=None, after_bar=None):
            p, a = sig >> 2, sig & 3
            need = [('T', 2*sig), ('T', 2*sig+1)] + (extra_need or [])
            nv = W.need('vm', need)
            if nv is not None: t(f"s_waitcnt vmcnt({nv})")
            t("s_barrier")
            if after_bar: after_bar()
            dm = []
            for n in (2*(sig+3), 2*(sig+3)+1):
                if n < 32: dm += [(txt, vm, n) for txt, vm in tdma(n)]
            fl = list(fillers.get(sig, []))
            def some(k_dma, k_fill):
                c = 0
                while dm and c < k_dma:
                    txt, vm, n = dm.pop(0); t(txt)
                    if vm: W.issue('vm', ('T', n)); c += 1
                for _ in range(k_fill):
                    if fl: t(fl.pop(0))
            nf = -(-len(fl) // 8) if fl else 0
            if p != 1:
                acc = {0: ACCQ, 2: ACCG, 3: ACCU}[p]
                idx = 0; seq = []
                for tt in range(2):
                    slot = (2*sig + tt) % 8
                    for s_ in range(2):
                        for aa in range(2):
                            for u in range(2):
                                base = (VN4 if slot < 4 else VN42) + aa*2 + u
                                t(f"ds_read_b64_tr_b16 {ar(4*idx+2*u,2)}, v{base} offset:{(slot%4)*SLOT + 16*s_*512}")
                            seq.append((idx, tt, s_, aa)); idx += 1
                for (idx, tt, s_, aa) in seq:
                    if idx % 2 == 0: t(f"s_waitcnt lgkmcnt({14 - 2*idx - 2 if idx < 6 else 0})")
                    tau = 2*a + tt
                    c = vr(acc+16*aa,16) if (tau or s_) else '0'
                    t(f"v_mfma_f32_32x32x16_bf16 {vr(acc+16*aa,16)}, {ar(4*idx,4)}, {vr(B+4*(2*tau+s_),4)}, {c}")
                    some(1, nf)
            else:
                lbl = f"K1_CT_X{a}"
                t(f"s_cmp_eq_u32 s30, {a & 1}"); t(f"s_cbranch_scc0 {lbl}")
                k = a >> 1; base = KA if k == 0 else KA2
                for half in range(2):
                    for j in range(8): t(f"ds_read_b128 {ar(4*j,4)}, v{base+j} offset:{half*256}")
                    for j in range(8):
                        if j % 2 == 0: t(f"s_waitcnt lgkmcnt({6 - j})")
                        jj = 8*half + j
                        c = vr(ACCK+16*k,16) if jj else '0'
                        t(f"v_mfma_f32_32x32x16_bf16 {vr(ACCK+16*k,16)}, {ar(4*j,4)}, {ar(Bq+4*jj,4)}, {c}")
                t(f"{lbl}:")
            some(100, 1000)
        for sig in range(4): step(sig)
        stamp(T, 2)
        t("s_nop 15")
        t("v_lshlrev_b32 v232, 4, v240"); t(f"v_add_u32 v233, {EXB}, v232"); t("s_lshl_b32 s34, s28, 12"); t("v_add_u32 v232, s34, v233")
        for aa in range(2):
            d = 244 if aa == 0 else 96
            pack_swap(T, ACCQ+16*aa, d)
            for s_ in range(2): t(f"ds_write_b128 v232, {vr(d+4*s_,4)} offset:{(2*aa+s_)*1024}")
        t("s_waitcnt lgkmcnt(0)"); t("s_barrier")
        for f in range(16): t(f"ds_read_b128 {ar(Bq+4*f,4)}, v233 offset:{f*1024}")
        t("s_waitcnt lgkmcnt(0)")
        t("buffer_load_dword v243, off, s[4:7], 0 sc1"); W.issue('vm', 'TAG')
        for sig in range(4, 8): step(sig)
        stamp(T, 3)
        qf = []
        qf.append("s_nop 7"); qf.append("v_mov_b32 v236, 0x3db8aa3b")
        qf += ["s_lshl_b32 s33, s35, 14", "s_lshl_b32 s34, s28, 10", "s_add_u32 s33, s33, s34",
               "v_lshrrev_b32 v252, 4, v242", "v_lshlrev_b32 v252, 13, v252", "v_and_b32 v253, 15, v242", "v_lshl_add_u32 v253, v241, 4, v253",
               "v_lshl_add_u32 v252, v253, 4, v252", "v_add_u32 v252, s33, v252"]
        qst = []
        for k in range(2):
            d = 244 if k == 0 else 64
            pack_swap(qf, ACCK+16*k, d, scale="v[236:237]")
            for s_ in range(2):
                qf.append(f"buffer_store_dwordx4 {vr(d+4*s_,4)}, v252, s[24:27], 0 offen offset:{k*4096 + s_*512 - (4096 if k else 0)}{ST}" if k == 0 else "@K1")
        out2 = []
        cnt = 0
        for x in qf:
            if x == "@K1":
                if cnt == 0: out2.append("v_add_u32 v253, 4096, v252")
                out2.append(f"buffer_store_dwordx4 {vr(64+4*cnt,4)}, v253, s[24:27], 0 offen offset:{cnt*512}{ST}"); cnt += 1
            else: out2.append(x)
        qf = out2
        for x in qf:
            t(x)
            if x.startswith('buffer_store'): W.issue('vm', ('QS', len(W.q['vm'])))
        W.issue('vm', 'QEND'); W.q['vm'].pop()
        qtags = [x for x in W.q['vm'] if isinstance(x, tuple) and x[0] in ('QS', 'XS')]
        step(8)
        step(9)
        def get_tag():
            t("K1_CT_TAGP:")
            t("buffer_load_dword v232, off, s[4:7], 0 sc1"); t("s_waitcnt vmcnt(0)")
            t("v_readfirstlane_b32 s3, v232"); t("s_nop 3"); t("s_cmp_lg_u32 s3, 0"); t("s_cbranch_scc1 K1_CT_TAGD"); t("s_sleep 1"); t("s_branch K1_CT_TAGP")
            t("K1_CT_TAGD:")
        def qflag():
            T.extend(cap(lambda e: srd(e, 8, 's54', 's55', FL_OFF, FL_SIZE)))
            flag_store([f"s_lshl_b32 s34, s35, 7", f"s_add_u32 s34, s34, {FLQ}"], "K1_CT_NOQF")
        step(10, extra_need=qtags + ['TAG'], after_bar=None)
        t("v_readfirstlane_b32 s3, v243")
        t("s_nop 3")
        pend_qflag = True
        t("s_cmp_eq_u32 s28, 0"); t("s_cbranch_scc0 K1_CT_NOQF2")
        t("s_cmp_lg_u32 s3, 0"); t("s_cbranch_scc0 K1_CT_NOQF2")
        T.extend(cap(lambda e: srd(e, 8, 's54', 's55', FL_OFF, FL_SIZE)))
        t(f"s_lshl_b32 s34, s35, 7"); t(f"s_add_u32 s34, s34, {FLQ}")
        t("v_mov_b32 v232, s3"); t("v_cmp_eq_u32 vcc, 0, v240"); t("s_and_saveexec_b64 s[56:57], vcc")
        t("buffer_store_dword v232, off, s[8:11], s34 sc1")
        t("s_mov_b64 exec, s[56:57]")
        t("K1_CT_NOQF2:")
        step(11)
        stamp(T, 4)
        k0 = -2.0*1.4426950408889634*0.7978845608028654
        t("s_nop 7")
        t(f"v_mov_b32 v232, {fb(k0)}"); t(f"v_mov_b32 v234, {fb(k0*0.044715)}"); t("v_mov_b32 v236, 1.0")
        for k in range(4): t(f"v_mov_b32 v{252+k}, 0")
        def gelu(r):
            tt_ = 244 + 2*((r//2) % 4)
            X = f"v[{r}:{r+1}]"; Tt = f"v[{tt_}:{tt_+1}]"
            return [f"v_pk_mul_f32 {Tt}, {X}, {X}", f"v_pk_fma_f32 {Tt}, {Tt}, v[234:235], v[232:233] op_sel_hi:[1,0,0]", f"v_pk_mul_f32 {Tt}, {Tt}, {X}",
                    f"v_exp_f32 v{tt_}, v{tt_}", f"v_exp_f32 v{tt_+1}, v{tt_+1}", f"v_pk_add_f32 {Tt}, {Tt}, v[236:237] op_sel_hi:[1,0]",
                    f"v_rcp_f32 v{tt_}, v{tt_}", f"v_rcp_f32 v{tt_+1}, v{tt_+1}", f"v_pk_mul_f32 {X}, {X}, {Tt}",
                    f"v_pk_add_f32 v[252:253], v[252:253], {X}", f"v_pk_fma_f32 v[254:255], {X}, {X}, v[254:255]"]
        for q in range(4):
            cols = [gelu(ACCG + 8*q + 2*k) for k in range(4)]
            fillers[12+q] = [cols[k][i] for i in range(11) for k in range(4)]
        for sig in range(12, 16): step(sig)
        stamp(T, 5)
        t("v_add_f32 v8, v252, v253"); t("v_add_f32 v10, v254, v255"); t("v_mov_b32 v9, v8"); t("v_mov_b32 v11, v10"); t("s_nop 1")
        t("v_permlane32_swap_b32 v8, v9"); t("v_permlane32_swap_b32 v10, v11"); t("s_nop 1")
        t("v_add_f32 v8, v8, v9"); t("v_add_f32 v9, v10, v11")
        t("v_lshlrev_b32 v12, 3, v242"); t("s_lshl_b32 s33, s28, 8"); t("v_add_u32 v13, s33, v12")
        t("s_barrier")
        t("ds_write_b64 v13, v[8:9]")
        for aa in range(2):
            d = 244 if aa == 0 else 16
            pack_swap(T, ACCU+16*aa, d)
            for s_ in range(2): t(f"ds_write_b128 v{XO+2*aa+s_}, {vr(d+4*s_,4)} offset:16384")
        t("s_waitcnt lgkmcnt(0)"); t("s_barrier")
        for k in range(4): t(f"ds_read_b64 v[{24+2*k}:{25+2*k}], v12 offset:{256*k}")
        t("v_lshlrev_b32 v232, 4, v240"); t(f"s_add_u32 s33, s31, {EX}"); t("v_add_u32 v232, s33, v232")
        for k in range(4): t(f"ds_read_b128 {vr(96+4*k,4)}, v232 offset:{16384 + k*1024}")
        T.extend(cap(lambda e: (srd(e, 12, 's54', 's55', U_OFF, 8000*512), srd(e, 20, 's54', 's55', G_OFF, 8000*512))))
        t("s_lshl_b32 s56, s35, 14")
        t("s_waitcnt lgkmcnt(4)")
        t("v_add_f32 v24, v24, v26"); t("v_add_f32 v25, v25, v27"); t("v_add_f32 v28, v28, v30"); t("v_add_f32 v29, v29, v31")
        t("v_add_f32 v8, v24, v28"); t("v_add_f32 v9, v25, v29")
        t("v_mul_f32 v8, 0x3b800000, v8"); t("v_mul_f32 v9, 0x3b800000, v9")
        t("v_fma_f32 v9, -v8, v8, v9"); t("v_max_f32 v9, 0, v9"); t("v_add_f32 v9, 0x3727c5ac, v9")
        t("v_rsq_f32 v10, v9"); t("s_nop 0"); t("v_mul_f32 v12, v8, v10"); t("v_sub_f32 v12, 0, v12")
        t("s_waitcnt lgkmcnt(0)")
        for k in range(4): t(f"buffer_store_dwordx4 {vr(96+4*k,4)}, v{DS+k}, s[12:15], s56 offen offset:{k*1024}{ST}")
        for aa in range(2):
            for k in range(8):
                r = ACCG + 16*aa + 2*k
                t(f"v_pk_fma_f32 v[{r}:{r+1}], v[{r}:{r+1}], v[10:11], v[12:13] op_sel_hi:[1,0,0]")
            d = 32 + 8*aa
            pack_swap(T, ACCG+16*aa, d)
            for s_ in range(2): t(f"ds_write_b128 v{XO+2*aa+s_}, {vr(d+4*s_,4)}")
        t("s_waitcnt lgkmcnt(0)"); t("s_barrier")
        for k in range(4): t(f"ds_read_b128 {vr(112+4*k,4)}, v232 offset:{k*1024}")
        for k in range(4):
            t(f"s_waitcnt lgkmcnt({3-k})")
            t(f"buffer_store_dwordx4 {vr(112+4*k,4)}, v{DS+k}, s[20:23], s56 offen offset:{k*1024}{ST}")
        stamp(T, 6)
        finish(T, "K1_CT")
    W = Waiter(); T = []
    for s in range(8): W.issue('vm', ('X', s))
    dma_voff(T, False)
    T += cap(lambda e: (srd(e, 8, 's38', 's39', 0, 131072), srd(e, 12, 's40', 's41', 0, 131072),
                        srd(e, 20, 's54', 's55', XA_OFF, 8000*512), srd(e, 24, 's54', 's55', QF_OFF, 500*8192)))
    emit = [(n, 8, n*SLOT) for n in range(8)]
    for (n, sn, so) in emit[:npre]: emit_tile(T, W, n, sn, so)
    xb_setup(T); vn_setup(T)
    ln(T, W, emit[npre:o['nln']])
    if FF: T.append("buffer_load_dword v243, off, s[4:7], 0 sc1"); W.issue('vm', 'TAG')
    stamp(T, 1)
    ka_setup(T)
    stamp(T, 2)
    T.append("v_lshlrev_b32 v232, 4, v240"); T.append(f"s_add_u32 s33, s31, {EX}"); T.append("v_add_u32 v232, s33, v232")
    for half in range(2):
        for k in range(4):
            T.append(f"ds_read_b128 {vr(ACC[1]+(half*4+k)*4,4)}, v232 offset:{half*SLOT + k*1024}")
    T.append("s_waitcnt lgkmcnt(0)")
    T.append("s_lshl_b32 s34, s35, 15"); T.append("s_add_u32 s56, s34, 16384")
    xfill = []
    for half in range(2):
        for k in range(4):
            xfill.append((f"buffer_store_dwordx4 {vr(ACC[1]+(half*4+k)*4,4)}, v{DS+k}, s[20:23], {'s56' if half else 's34'} offen offset:{k*1024}{ST}", ('XS', half, k)))
    later = std_later(12)
    rest = emit[o['nln']:]
    if rest:
        later[0] = rest[:2]; later[1] = rest[2:4]
        if later[1] == [] : del later[1]
    tl0 = phase(W, 0, 'Y', later)
    for i, (txt, tag) in enumerate(xfill): tl0.add(1 + 2*i, 'vm', txt, tag=tag, prio=7)
    T += tl0.linearize()
    stamp(T, 3)
    exchange(T, W, ACC[0], 'Y', xaflag=FF and o.get('xaflag', True))
    stamp(T, 4)
    T.append("v_mov_b32 v236, 0x3db8aa3b")
    T.append("s_lshl_b32 s33, s35, 2"); T.append("s_lshl_b32 s34, s29, 1"); T.append("s_add_u32 s33, s33, s34"); T.append("s_lshl_b32 s33, s33, 13")
    T.append("s_lshl_b32 s34, s30, 10"); T.append("s_add_u32 s33, s33, s34")
    T.append("v_lshrrev_b32 v232, 4, v242"); T.append("v_lshlrev_b32 v232, 13, v232")
    T.append("v_and_b32 v233, 15, v242"); T.append("v_lshl_add_u32 v233, v241, 4, v233")
    T.append("v_lshl_add_u32 v232, v233, 4, v232"); T.append("v_add_u32 v232, s33, v232")
    for a in range(1, 4): T.append(f"v_add_u32 v{232+a}, {a*2048}, v232")
    def qepi(a):
        ls = []
        d = ACC[0] + 8*a
        pack_swap(ls, ACC[1]+16*a, d, scale="v[236:237]")
        st = [f"buffer_store_dwordx4 {vr(d+4*s,4)}, v{232+a}, s[24:27], 0 offen offset:{s*512}{ST}" for s in range(2)]
        return ls, st
    tl1 = phase(W, 1, 'X', later)
    if o.get('qprog', True):
        for a in range(3):
            ls, st = qepi(a)
            t0 = 16*(a+1) + 4
            for i, ins in enumerate(ls): tl1.add(t0 + i*0.4, 'txt', ins, prio=4)
            for i, ins in enumerate(st): tl1.add(t0 + len(ls)*0.4 + 0.5 + i, 'vm', ins, tag=('QS', a, i), prio=7)
    T += tl1.linearize()
    stamp(T, 5)
    T.append("s_nop 15")
    for a in (range(3, 4) if o.get('qprog', True) else range(4)):
        ls, st = qepi(a)
        T += ls + st
    finish(T, "K1_Q")

    W = Waiter(); T = []
    for s in range(8): W.issue('vm', ('X', s))
    dma_voff(T, True)
    T += cap(lambda e: (srd(e, 8, 's46', 's47', 0, 262144),
                        srd(e, 20, 's54', 's55', U_OFF, 8000*512), srd(e, 24, 's54', 's55', G_OFF, 8000*512)))
    emit = [(n, 8, n*32768 + 512) for n in range(8)]
    for (n, sn, so) in emit[:npre]: emit_tile(T, W, n, sn, so)
    xb_setup(T); vn_setup(T)
    ln(T, W, emit[npre:o['nln']])
    if FF: T.append("buffer_load_dword v243, off, s[4:7], 0 sc1"); W.issue('vm', 'TAG')
    stamp(T, 2)
    gl = lambda n: (n, 8, (n-8)*32768)
    later = {2: [gl(8), gl(9)], 3: [gl(10), gl(11)], 4: [gl(12), gl(13)], 5: [gl(14), gl(15)]}
    rest = emit[o['nln']:]
    if rest:
        later[0] = rest[:2]; later[1] = rest[2:4]
    T += phase(W, 0, 'Y', later).linearize()
    stamp(T, 3)
    k0 = -2.0*1.4426950408889634*0.7978845608028654
    T.append(f"v_mov_b32 v232, {fb(k0)}"); T.append(f"v_mov_b32 v234, {fb(k0*0.044715)}"); T.append("v_mov_b32 v236, 1.0")
    for k in range(4): T.append(f"v_mov_b32 v{252+k}, 0")
    def gelu(r):
        t = 244 + 2*((r//2) % 4)
        X = f"v[{r}:{r+1}]"; Tt = f"v[{t}:{t+1}]"
        return [f"v_pk_mul_f32 {Tt}, {X}, {X}",
                f"v_pk_fma_f32 {Tt}, {Tt}, v[234:235], v[232:233] op_sel_hi:[1,0,0]",
                f"v_pk_mul_f32 {Tt}, {Tt}, {X}",
                f"v_exp_f32 v{t}, v{t}", f"v_exp_f32 v{t+1}, v{t+1}",
                f"v_pk_add_f32 {Tt}, {Tt}, v[236:237] op_sel_hi:[1,0]",
                f"v_rcp_f32 v{t}, v{t}", f"v_rcp_f32 v{t+1}, v{t+1}",
                f"v_pk_mul_f32 {X}, {X}, {Tt}",
                f"v_pk_add_f32 v[252:253], v[252:253], {X}",
                f"v_pk_fma_f32 v[254:255], {X}, {X}, v[254:255]"]
    fill = []
    g0 = ACC[0]
    for b in range(g0, g0+64, 8):
        cols = [gelu(b+2*k) for k in range(4)]
        for i in range(11):
            for k in range(4): fill.append(cols[k][i])
    T += phase(W, 1, 'Y', later, fill=fill, f0=4).linearize()
    stamp(T, 5)
    T.append("v_add_f32 v8, v252, v253"); T.append("v_add_f32 v10, v254, v255")
    T.append("v_mov_b32 v9, v8"); T.append("v_mov_b32 v11, v10"); T.append("s_nop 1")
    T.append("v_permlane32_swap_b32 v8, v9"); T.append("v_permlane32_swap_b32 v10, v11"); T.append("s_nop 1")
    T.append("v_add_f32 v8, v8, v9"); T.append("v_add_f32 v9, v10, v11")
    T.append("s_lshl_b32 s33, s29, 1"); T.append("s_add_u32 s33, s33, s30"); T.append("s_lshl_b32 s33, s33, 9"); T.append("s_add_u32 s33, s33, 32768")
    T.append("v_lshlrev_b32 v12, 3, v240"); T.append("v_add_u32 v13, s33, v12")
    T.append("s_xor_b32 s33, s33, 512"); T.append("v_add_u32 v14, s33, v12")
    T.append("ds_write_b64 v13, v[8:9]")
    for a in range(4):
        d = 244 if a % 2 == 0 else 16
        pack_swap(T, ACC[1]+16*a, d)
        for s in range(2):
            T.append(f"ds_write_b128 v{XB+2*a+s}, {vr(d+4*s,4)}")
    T.append("s_waitcnt lgkmcnt(0)"); T.append("s_barrier")
    T.append("ds_read_b64 v[10:11], v14")
    T.append("v_lshlrev_b32 v15, 4, v240"); T.append("v_add_u32 v15, s31, v15"); T.append(f"v_add_u32 v232, {EX}, v15")
    for half in range(2):
        for k in range(4):
            T.append(f"ds_read_b128 {vr(ACC[1]+(half*4+k)*4,4)}, v232 offset:{half*SLOT + k*1024}")
    for jj in range(8): T.append(f"v_subrev_u32 v{XB+jj}, {EX}, v{XB+jj}")
    T.append("s_waitcnt lgkmcnt(8)")
    T.append("v_add_f32 v8, v8, v10"); T.append("v_add_f32 v9, v9, v11")
    T.append("v_mul_f32 v8, 0x3b800000, v8"); T.append("v_mul_f32 v9, 0x3b800000, v9")
    T.append("v_fma_f32 v9, -v8, v8, v9"); T.append("v_max_f32 v9, 0, v9"); T.append("v_add_f32 v9, 0x3727c5ac, v9")
    T.append("v_rsq_f32 v10, v9"); T.append("s_nop 0")
    T.append("v_mul_f32 v12, v8, v10"); T.append("v_sub_f32 v12, 0, v12")
    T.append("s_lshl_b32 s32, s35, 15"); T.append("s_add_u32 s56, s32, 16384")
    T.append("s_waitcnt lgkmcnt(0)")
    ust = [f"buffer_store_dwordx4 {vr(ACC[1]+(half*4+k)*4,4)}, v{DS+k}, s[20:23], {'s56' if half else 's32'} offen offset:{k*1024}{ST}" for half in range(2) for k in range(4)]
    for a in range(4):
        for k in range(8):
            r = g0 + 16*a + 2*k
            T.append(f"v_pk_fma_f32 v[{r}:{r+1}], v[{r}:{r+1}], v[10:11], v[12:13] op_sel_hi:[1,0,0]")
        T.append(ust.pop(0))
        pack_swap(T, g0+16*a, 16+8*a)
        for s in range(2):
            T.append(f"ds_write_b128 v{XB+2*a+s}, {vr(16+8*a+4*s,4)}")
        T.append(ust.pop(0))
    stamp(T, 6)
    T.append("s_waitcnt lgkmcnt(0)"); T.append("s_barrier")
    for half in range(2):
        for k in range(4):
            T.append(f"ds_read_b128 {vr(ACC[0]+(half*4+k)*4,4)}, v15 offset:{half*SLOT + k*1024}")
    DEF = FF and o.get('defer', True)
    if DEF:
        T.append("s_mov_b32 s68, s32"); T.append("s_mov_b32 s69, s56"); T.append("s_mov_b32 s98, 1")
    else:
        for half in range(2):
            for k in range(4):
                T.append(f"s_waitcnt lgkmcnt({7 - (half*4+k)})")
                T.append(f"buffer_store_dwordx4 {vr(ACC[0]+(half*4+k)*4,4)}, v{DS+k}, s[24:27], {'s56' if half else 's32'} offen offset:{k*1024}{ST}")
    stamp(T, 7)
    finish(T, "K1_UG")

    def wf_store(T, acc, which, slice_sreg):
        T.append(f"s_lshl_b32 s33, {slice_sreg}, 2"); T.append("s_lshl_b32 s34, s29, 1"); T.append("s_add_u32 s33, s33, s34"); T.append("s_lshl_b32 s33, s33, 14")
        T.append("s_lshl_b32 s34, s30, 10"); T.append("s_add_u32 s33, s33, s34")
        if which == 2: T.append("s_add_u32 s33, s33, 8192")
        T.append("v_lshrrev_b32 v232, 4, v242"); T.append("v_lshlrev_b32 v232, 14, v232")
        T.append("v_and_b32 v233, 15, v242"); T.append("v_lshl_add_u32 v233, v241, 4, v233")
        T.append("v_lshl_add_u32 v232, v233, 4, v232"); T.append("v_add_u32 v232, s33, v232")
        for a in range(4):
            d = 244; src = acc + 16*a
            if which == 1:
                for k, r in enumerate((0, 2, 8, 10, 4, 6, 12, 14)):
                    T.append(f"v_cvt_pk_bf16_f32 v{d+k}, v{src+r}, v{src+r+1}")
            else:
                pack_swap(T, src, d)
            T.append(f"s_mov_b32 s33, {a*2048}")
            for s in range(2):
                T.append(f"buffer_store_dwordx4 {vr(d+4*s,4)}, v232, s[24:27], s33 offen offset:{s*512}{ST}")
            T.append("s_nop 1")
    W = Waiter(); T = []
    dma_voff(T, False)
    T.append("s_sub_u32 s35, s2, 250")
    T += cap(lambda e: (srd(e, 16, 's52', 's53', 0, 262144), srd(e, 8, 's44', 's45', 0, 131072), srd(e, 12, 's42', 's43', 0, 131072),
                        srd(e, 24, 's54', 's55', WF_OFF, 262144)))
    narrow(T, W, 0, 's35')
    for n in range(3): emit_tile(T, W, n, 8, n*SLOT)
    ka_setup(T)
    narrow_read(T, W)
    for n in range(3, 8): emit_tile(T, W, n, 8, n*SLOT)
    if FF: T.append("buffer_load_dword v243, off, s[4:7], 0 sc1"); W.issue('vm', 'TAG')
    later = std_later(12)
    T += phase(W, 0, 'X', later).linearize()
    T.append("s_barrier")
    exchange(T, W, ACC[0], 'X')
    T += phase(W, 1, 'X', later).linearize()
    T.append("s_nop 15")
    wf_store(T, ACC[1], 1, 's35')
    finish(T, "K1_W1")

    W = Waiter(); T = []
    if not FUSED: T += cap(lambda e: srd(e, 20, 's54', 's55', FL_OFF, 8192))
    if not FUSED:
        T.append("v_lshlrev_b32 v232, 5, v0")
        for k in range(4): T.append(f"v_mov_b32 v{236+k}, 0")
        T.append("buffer_store_dwordx4 v[236:239], v232, s[20:23], 0 offen sc1")
        T.append("buffer_store_dwordx4 v[236:239], v232, s[20:23], 0 offen offset:16 sc1")
        W.issue('vm', 'Z0'); W.issue('vm', 'Z1')
    dma_voff(T, False)
    T.append("s_sub_u32 s35, s2, 254"); T.append("s_lshl_b32 s35, s35, 1")
    T += cap(lambda e: (srd(e, 16, 's52', 's53', 0, 262144), srd(e, 8, 's50', 's51', 0, 131072),
                        srd(e, 24, 's54', 's55', WF_OFF, 262144)))
    narrow(T, W, 131072, 's35')
    for n in range(3): emit_tile(T, W, n, 8, n*SLOT)
    ka_setup(T)
    narrow_read(T, W)
    for n in range(3, 8): emit_tile(T, W, n, 8, n*SLOT)
    if FF: T.append("buffer_load_dword v243, off, s[4:7], 0 sc1"); W.issue('vm', 'TAG')
    T.append("s_barrier")
    T.append("s_add_u32 s56, s35, 1")
    narrow(T, W, 131072, 's56')
    later = std_later(8)
    T += phase(W, 0, 'X', later).linearize()
    T.append("s_nop 15")
    wf_store(T, ACC[0], 2, 's35')
    for i in range(8): W.issue('vm', ('WS', i))
    narrow_read(T, W)
    T += phase(W, 1, 'X', later).linearize()
    T.append("s_nop 15")
    wf_store(T, ACC[1], 2, 's56')
    finish(T, "K1_W2")

    e("K1_FIN:")
    if FUSED:
        if o['stamp']:
            e("s_waitcnt vmcnt(0)"); e("s_memtime s[64:65]"); e("s_memrealtime s[66:67]"); e("s_waitcnt lgkmcnt(0)")
            e("s_cmp_eq_u32 s28, 0"); e("s_cbranch_scc0 K1_NOST")
            e("s_add_u32 s68, s54, 0x8100000"); e("s_addc_u32 s69, s55, 0"); e("s_mov_b32 s70, 0x100000"); e("s_mov_b32 s71, 0x20000")
            for k, r in enumerate([60, 64, 62, 66]): e(f"v_mov_b32 v{232+k}, s{r}")
            e("s_lshl_b32 s33, s2, 4"); e("v_mov_b32 v236, s33")
            e("buffer_store_dwordx4 v[232:235], v236, s[68:71], 0 offen")
            for k in range(8): e(f"v_mov_b32 v{244+k}, s{72+2*k}")
            e("s_lshl_b32 s33, s2, 5"); e("s_add_u32 s33, s33, 0x10000"); e("v_mov_b32 v236, s33")
            e("buffer_store_dwordx4 v[244:247], v236, s[68:71], 0 offen")
            e("buffer_store_dwordx4 v[248:251], v236, s[68:71], 0 offen offset:16")
            e("K1_NOST:")
        if FF:
            e("s_lshl_b32 s33, s2, 7")
            fa, fb_ = (FLU, FLQ) if o.get('ugfirst', True) else (FLQ, FLU)
            e(f"s_add_u32 s67, s33, {fa}")
            e(f"s_add_u32 s56, s33, {fb_ - 125*128}"); e("s_cmp_ge_u32 s2, 125"); e("s_cselect_b32 s67, s56, s67")
            e(f"s_add_u32 s56, s33, {FLW - 250*128}"); e("s_cmp_ge_u32 s2, 250"); e("s_cselect_b32 s67, s56, s67")
            for k in range(4): e(f"s_mov_b32 s{92+k}, s{4+k}")
            for x in ["s_mov_b32 s4, s54", "s_mov_b32 s5, s55", "s_mov_b32 s32, s48", "s_mov_b32 s33, s49", "s_mov_b32 s40, s100", "s_mov_b32 s41, s101", "s_mov_b32 s48, s28", "s_mov_b32 s101, 0"]: e(x)
            return L, [], []
        e("K1_TAGP:")
        e("buffer_load_dword v232, off, s[4:7], 0 sc1")
        e("s_waitcnt vmcnt(0) lgkmcnt(0)")
        e("v_readfirstlane_b32 s3, v232")
        e("s_nop 3")
        e("s_cmp_lg_u32 s3, 0"); e("s_cbranch_scc1 K1_TAGD"); e("s_sleep 1")
        e("s_add_u32 s101, s101, 1"); e("s_cmp_lt_u32 s101, 0x400000"); e("s_cbranch_scc1 K1_TAGP")
        e("K1_TAGD:")
        e("s_barrier")
        e("s_cmp_eq_u32 s28, 0"); e("s_cbranch_scc0 K1_NOFL")
        e("s_lshl_b32 s33, s2, 7")
        fa, fb_ = (FLU, FLQ) if o.get('ugfirst', True) else (FLQ, FLU)
        if CT:
            e(f"s_add_u32 s34, s33, {FLU}")
        else:
            e(f"s_add_u32 s34, s33, {fa}")
            e(f"s_add_u32 s56, s33, {fb_ - 125*128}"); e("s_cmp_ge_u32 s2, 125"); e("s_cselect_b32 s34, s56, s34")
        e(f"s_add_u32 s56, s33, {FLW - 250*128}"); e("s_cmp_ge_u32 s2, 250"); e("s_cselect_b32 s34, s56, s34")
        srd(e, 8, 's54', 's55', FL_OFF, FL_SIZE)
        e("v_mov_b32 v232, s3")
        e("v_cmp_eq_u32 vcc, 0, v240"); e("s_and_saveexec_b64 s[56:57], vcc")
        e("buffer_store_dword v232, off, s[8:11], s34 sc1")
        if CT:
            e(f"s_add_u32 s34, s33, {FLQ}"); e("s_cmp_lt_u32 s2, 250"); e("s_cbranch_scc0 K1_NOFL2")
            e("buffer_store_dword v232, off, s[8:11], s34 sc1")
            e("K1_NOFL2:")
        e("s_mov_b64 exec, s[56:57]")
        e("K1_NOFL:")
        e("s_mov_b32 s48, s28")
        return L, [], []
    if o['stamp']:
        e("s_waitcnt vmcnt(0)")
        e("s_memtime s[64:65]"); e("s_memrealtime s[66:67]")
        e("s_waitcnt lgkmcnt(0)")
        e("s_cmp_eq_u32 s28, 0"); e("s_cbranch_scc0 K1_END")
        e("s_add_u32 s68, s54, 0x8100000"); e("s_addc_u32 s69, s55, 0"); e("s_mov_b32 s70, 0x100000"); e("s_mov_b32 s71, 0x20000")
        for k, r in enumerate([60, 64, 62, 66]): e(f"v_mov_b32 v{232+k}, s{r}")
        e("s_lshl_b32 s33, s2, 4"); e("v_mov_b32 v236, s33")
        e("buffer_store_dwordx4 v[232:235], v236, s[68:71], 0 offen")
        for k in range(8): e(f"v_mov_b32 v{244+k}, s{72+2*k}")
        e("s_lshl_b32 s33, s2, 5"); e("s_add_u32 s33, s33, 0x10000"); e("v_mov_b32 v236, s33")
        e("buffer_store_dwordx4 v[244:247], v236, s[68:71], 0 offen")
        e("buffer_store_dwordx4 v[248:251], v236, s[68:71], 0 offen offset:16")
    e("K1_END:")
    e("s_endpgm")
    return L, kernel_desc(name, 288, 256), []
```

```python
from gen_common import *
import hazard, struct
SLOT = 16384
M16 = "v_mfma_f32_16x16x32_bf16"
fb = lambda x: hex(struct.unpack('<I', struct.pack('<f', x))[0])
EXT = 131072
MX = EXT
OWN = EXT + 4096
OWNML = EXT + 20480
ACT = 0

def gen_k2f(opt=None):
    o = dict(DF=3, stamp=False, bslot=8, dma0=10, dmastep=4, e0=37, e1=93, estep=4, cvtd=1, addd=1, fused=True)
    if opt: o.update(opt)
    name = 'attn_kernel'
    L = []; e = L.append
    O = 0; S = 128; P = [160, 176]; NEGM = 192; RING = 208; KA = 232; VA = 236; DV = 244; LS = 248; MREF = 252
    aQ = 0; aO = 128
    def Oreg(dt, qt): return vr(O + (dt*2+qt)*4, 4) if qt < 2 else ar(aO + (dt*2+qt-2)*4, 4)
    def Sreg(kt, qt): return S + (kt*4+qt)*4
    FUSED = o.get('fusedk')
    CS = ' sc1' if (FUSED and o.get('csc1', True)) else ''
    if not FUSED:
        L += kernel_header(name)
        e("s_cmp_ge_u32 s2, 256")
        e("s_cbranch_scc1 K2_END")
    FF = FUSED and o.get('fastfin')
    if not FF:
        e("s_load_dwordx2 s[4:5], s[0:1], 88")
        e("s_load_dwordx2 s[6:7], s[0:1], 80")
        e("s_load_dwordx2 s[36:37], s[0:1], 0")
        e("s_load_dwordx2 s[32:33], s[0:1], 48")
        e("s_load_dwordx2 s[40:41], s[0:1], 72")
    if o['stamp']:
        e("s_memtime s[72:73]"); e("s_memrealtime s[74:75]")
    T = []; t = T.append
    if FUSED:
        t("v_mbcnt_lo_u32_b32 v131, -1, 0"); t("v_mbcnt_hi_u32_b32 v131, -1, v131")
    else:
        t("v_lshrrev_b32 v130, 6, v0")
        t("v_and_b32 v131, 63, v0")
        t("v_readfirstlane_b32 s48, v130")
    t("s_and_b32 s60, s2, 7")
    t("s_lshr_b32 s61, s2, 3")
    t("s_lshr_b32 s51, s60, 2")
    t("s_and_b32 s53, s61, 3")
    t("s_lshr_b32 s61, s61, 2")
    t("s_and_b32 s52, s60, 3")
    t("s_lshl_b32 s52, s52, 3")
    t("s_add_u32 s52, s52, s61")
    t("s_and_b32 s49, s48, 1")
    t("s_lshr_b32 s50, s48, 1")
    t("s_lshl_b32 s54, s53, 5")
    t("s_lshl_b32 s60, s50, 4")
    t("s_add_u32 s54, s54, s60")
    t("s_max_u32 s60, s53, 1")
    t("s_sub_u32 s60, s60, 1")
    t("s_sub_u32 s54, s54, s60")
    t("s_min_u32 s60, s53, 1")
    t("s_and_b32 s60, s60, s50")
    t("s_sub_u32 s55, 16, s60")
    t("s_lshl_b32 s55, s55, 14")
    t("s_cmp_eq_u32 s60, 1")
    t("s_cselect_b32 s59, 3, 0xffff")
    t("s_lshl_b32 s54, s54, 14")
    t("s_mul_i32 s60, s51, 2048000")
    t("s_add_u32 s54, s54, s60")
    def dv_setup(t):
        t("v_and_b32 v132, 15, v131")
        t("v_lshrrev_b32 v133, 4, v131")
        t("v_lshrrev_b32 v134, 5, v131")
        t("v_and_b32 v135, 31, v131")
        t("s_lshl_b32 s60, s49, 13")
        for k in range(4):
            t(f"v_add_u32 v136, {2*k}, v134")
            t("v_lshlrev_b32 v136, 1, v136")
            t("v_xor_b32 v136, v135, v136")
            t("v_lshlrev_b32 v136, 4, v136")
            t("v_lshl_add_u32 v136, v134, 9, v136")
            t(f"v_add_u32 v{DV+k}, s60, v136")
    dv_setup(t)
    t("s_waitcnt lgkmcnt(0)")
    def S_(fn):
        buf = []; fn(buf.append); T.extend(buf)
    S_(lambda e: srd(e, 8, 's4', 's5', 's54', 's55'))
    S_(lambda e: srd(e, 12, 's4', 's5', QF_OFF, 500*8192))
    t("s_getreg_b32 s63, hwreg(HW_REG_XCC_ID, 0, 3)")
    t("s_or_b32 s63, s63, 8")
    S_(lambda e: srd(e, 44, 's4', 's5', FL_OFF, FL_SIZE if FUSED else 8192))
    t("s_lshl_b32 s65, s51, 5"); t("s_add_u32 s65, s65, s52")
    xcc0 = len(T)
    t("s_cmp_eq_u32 s48, 0"); t("s_cbranch_scc0 K2_NOXCC")
    t("s_lshl_b32 s60, s65, 7"); t("s_lshl_b32 s61, s53, 2"); t("s_add_u32 s60, s60, s61")
    if FUSED:
        t("s_add_u32 s60, s60, 16"); t("s_xor_b32 s61, s63, s3"); t("v_mov_b32 v137, s61")
    else:
        t("v_mov_b32 v137, s63")
    t("v_cmp_eq_u32 vcc, 0, v131"); t("s_and_saveexec_b64 s[70:71], vcc")
    t("buffer_store_dword v137, off, s[44:47], s60 sc1")
    t("s_mov_b64 exec, s[70:71]")
    t("K2_NOXCC:")
    xcc_blk = T[xcc0:]
    if FUSED: del T[xcc0:]
    t("s_lshl_b32 s56, s50, 16"); t("s_lshl_b32 s60, s49, 13"); t("s_add_u32 s56, s56, s60")
    t("s_mov_b32 s57, 0"); t("s_mov_b32 s54, 0")
    def cap_(fn):
        buf = []; fn(buf.append); return buf
    def dma_lines(slot):
        r = []
        for k in range(8):
            if k % 4 == 0:
                r.append((f"s_add_u32 m0, s56, {slot*SLOT + (k//4)*4096:#x}", False))
                if k: r.append(("s_add_u32 s57, s57, 4096", False))
                else: r.append(("s_nop 0", False))
            r.append((f"buffer_load_dwordx4 v{DV+k%4}, s[8:11], s57 offen offset:{(k%4)*1024}{CS} lds", True))
        r.append((f"s_add_u32 s57, s57, {SLOT-4096}", False))
        return r
    pre_dma = len(T)
    for txt, _ in dma_lines(0): t(txt)
    QST = [49152, 114688, 131072, 147456]
    def q_dma(t):
        t("v_lshlrev_b32 v137, 4, v131")
        t("s_mul_i32 s60, s51, 250"); t("s_lshl_b32 s61, s52, 3"); t("s_add_u32 s60, s60, s61")
        t("s_lshl_b32 s61, s48, 1"); t("s_add_u32 s60, s60, s61"); t("s_lshl_b32 s60, s60, 13")
        t("s_lshl_b32 s61, s48, 14"); t("s_add_u32 s61, s61, 98304"); t("s_cmp_eq_u32 s48, 0"); t("s_cselect_b32 s61, 49152, s61")
        for g in range(4):
            t(f"s_add_u32 m0, s61, {g*4096}")
            if g: t("s_add_u32 s60, s60, 4096")
            else: t("s_nop 0")
            for k in range(4):
                t(f"buffer_load_dwordx4 v137, s[12:15], s60 offen offset:{k*1024}{CS} lds")
    def q_read(t):
        t("v_lshlrev_b32 v137, 4, v131")
        for qt in range(4):
            t(f"s_lshl_b32 s60, s50, 1"); t(f"s_add_u32 s60, s60, {qt}"); t("s_and_b32 s60, s60, 3")
            t("s_lshl_b32 s61, s49, 2"); t("s_add_u32 s60, s60, s61")
            t("s_lshr_b32 s61, s60, 1"); t("s_lshl_b32 s62, s61, 14"); t("s_add_u32 s62, s62, 98304")
            t("s_cmp_eq_u32 s61, 0"); t("s_cselect_b32 s62, 49152, s62")
            t("s_and_b32 s60, s60, 1"); t("s_lshl_b32 s60, s60, 13"); t("s_add_u32 s62, s62, s60")
            t(f"v_add_u32 v{140+qt}, s62, v137")
    def q_read2(t):
        for j in range(8):
            for qt in range(4):
                t(f"ds_read_b128 {ar(aQ+(qt*8+j)*4,4)}, v{140+qt} offset:{j*1024}")
    q_dma(t)
    for n in (1, 2):
        for txt, _ in dma_lines(n): t(txt)
    def kava_setup(t):
        t("v_and_b32 v136, 7, v132"); t("v_lshlrev_b32 v136, 1, v136")
        t("v_lshlrev_b32 v138, 9, v132")
        t("s_lshl_b32 s60, s50, 16"); t("v_add_u32 v138, s60, v138")
        for jj in range(4):
            t(f"v_add_u32 v139, {4*jj}, v133")
            t("v_xor_b32 v139, v139, v136")
            t(f"v_lshl_add_u32 v{KA+jj}, v139, 4, v138")
        t("v_lshrrev_b32 v136, 2, v132")
        t("v_lshl_add_u32 v136, v133, 2, v136")
        t("v_lshlrev_b32 v138, 9, v136")
        t("v_add_u32 v138, s60, v138")
        t("v_and_b32 v139, 1, v132"); t("v_lshl_add_u32 v138, v139, 3, v138")
        t("v_and_b32 v136, 7, v136"); t("v_lshlrev_b32 v136, 1, v136")
        t("v_bfe_u32 v139, v132, 1, 1")
        for dd in range(8):
            t(f"v_add_u32 v140, {2*dd}, v139")
            t("v_xor_b32 v140, v140, v136")
            t(f"v_lshl_add_u32 v{VA+dd}, v140, 4, v138")
    t("@KAVA")
    kava_setup(t)
    for r in range(128): t(f"v_mov_b32 v{O+r}, 0")
    for r in range(128): t(f"v_accvgpr_write_b32 a{aO+r}, 0")
    for k in range(4): t(f"v_mov_b32 v{LS+k}, 0")
    if o.get('pkadd'):
        for k in range(8): t(f"v_mov_b32 v{224+k}, 0")
    t("s_mov_b32 s58, 0")
    q_read(t)
    if FUSED:
        i_kava = T.index("@KAVA")
        loads = T[pre_dma:i_kava]
        rest = T[i_kava+1:]
        T[:] = T[:pre_dma]
        if o.get('ct'):
            t("s_lshl_b32 s60, s53, 5"); t("s_max_u32 s61, s53, 1"); t("s_sub_u32 s61, s61, 1"); t("s_sub_u32 s60, s60, s61")
            t("s_lshl_b32 s62, s52, 2"); t("s_sub_u32 s62, s62, 32")
            t("v_add_u32 v150, s60, v131"); t("v_add_u32 v151, s62, v131")
            t("v_cmp_gt_u32 vcc, 32, v131"); t("s_nop 1"); t("v_cndmask_b32 v150, v151, v150, vcc")
            t("s_lshl_b32 s62, s52, 2"); t("v_mov_b32 v151, s62")
            t("v_cmp_gt_u32 vcc, 36, v131"); t("s_nop 1"); t("v_cndmask_b32 v150, v151, v150, vcc")
            t("v_min_u32 v150, 124, v150")
            t("s_mul_i32 s61, s51, 125"); t("v_add_u32 v150, s61, v150")
        else:
            t("s_lshl_b32 s60, s53, 5"); t("s_max_u32 s61, s53, 1"); t("s_sub_u32 s61, s61, 1"); t("s_sub_u32 s60, s60, s61")
            t("s_lshl_b32 s60, s60, 5"); t("s_mul_i32 s61, s51, 4000"); t("s_add_u32 s60, s60, s61"); t("s_lshr_b32 s60, s60, 6")
            t("s_lshl_b32 s62, s52, 7"); t("s_add_u32 s62, s62, s61"); t("s_lshr_b32 s62, s62, 6")
            t("v_add_u32 v150, s60, v131")
            t("v_add_u32 v151, s62, v131"); t("v_subrev_u32 v151, 18, v151")
            t("v_cmp_gt_u32 vcc, 18, v131"); t("s_nop 1"); t("v_cndmask_b32 v150, v151, v150, vcc")
            t("v_mov_b32 v151, s62")
            t("v_cmp_gt_u32 vcc, 21, v131"); t("s_nop 1"); t("v_cndmask_b32 v150, v151, v150, vcc")
            t("v_min_u32 v150, 124, v150")
        t("v_lshlrev_b32 v150, 7, v150"); t(f"v_add_u32 v150, {FLQ}, v150")
        XAF = FF and o.get('xaflag', True) and not o.get('ct')
        if XAF:
            t("v_add_u32 v152, 4, v150"); t("v_cmp_gt_u32 vcc, 18, v131"); t("s_nop 1"); t("v_cndmask_b32 v150, v150, v152, vcc")
        if o.get('wfpf', False):
            t("v_subrev_u32 v151, 40, v131"); t("v_lshlrev_b32 v152, 7, v151"); t(f"v_add_u32 v152, {FLW}, v152")
            t("v_cmp_gt_u32 vcc, 6, v151"); t("s_nop 1"); t("v_cndmask_b32 v150, v150, v152, vcc")
        if FF:
            t("buffer_load_dword v151, v150, s[44:47], 0 offen sc1")
            DEF = o.get('defer', True)
            if DEF:
                t("s_cmp_eq_u32 s98, 1"); t("s_cbranch_scc0 K1_NODEF")
                t("s_waitcnt lgkmcnt(0)")
                for half in range(2):
                    for k in range(4):
                        t(f"buffer_store_dwordx4 v[{64+(half*4+k)*4}:{67+(half*4+k)*4}], v{228+k}, s[24:27], {'s69' if half else 's68'} offen offset:{k*1024} sc1")
                t("s_waitcnt vmcnt(8)")
                t("v_readfirstlane_b32 s3, v243"); t("s_nop 3")
                t("s_cmp_lg_u32 s3, 0"); t("s_cbranch_scc0 K1_TAGP")
                t("s_barrier")
                t("s_branch K1_NOFL")
                t("K1_NODEF:")
            t("s_waitcnt vmcnt(0) lgkmcnt(0)")
            t("v_readfirstlane_b32 s3, v243")
            t("s_nop 3")
            t("s_cmp_lg_u32 s3, 0"); t("s_cbranch_scc1 K1_TAGD")
            t("K1_TAGP:")
            t("buffer_load_dword v243, off, s[92:95], 0 sc1"); t("s_waitcnt vmcnt(0)")
            t("v_readfirstlane_b32 s3, v243"); t("s_nop 3")
            t("s_cmp_lg_u32 s3, 0"); t("s_cbranch_scc1 K1_TAGD"); t("s_sleep 1")
            t("s_add_u32 s101, s101, 1"); t("s_cmp_lt_u32 s101, 0x400000"); t("s_cbranch_scc1 K1_TAGP")
            t("K1_TAGD:")
            t("s_barrier")
            if o.get('defer', True): t("s_cmp_eq_u32 s98, 1"); t("s_cbranch_scc1 K1_NOFL")
            t("s_cmp_eq_u32 s48, 0"); t("s_cbranch_scc0 K1_NOFL")
            t("v_mov_b32 v152, s3"); t("v_mov_b32 v153, s3")
            t("v_cmp_eq_u32 vcc, 0, v131"); t("s_and_saveexec_b64 s[70:71], vcc")
            t("buffer_store_dwordx2 v[152:153], off, s[44:47], s67 sc1")
            t("s_mov_b64 exec, s[70:71]")
            t("K1_NOFL:")
            t("v_cmp_ne_u32 vcc, s3, v151"); t("s_nop 1"); t("s_cmp_eq_u64 vcc, 0"); t("s_cbranch_scc1 K2_QD")
        if XAF:
            t("s_mov_b32 s66, 0")
            t("K2_QA:")
            t("s_and_b32 s60, vcc_lo, 0x3ffff"); t("s_cmp_eq_u32 s60, 0"); t("s_cbranch_scc1 K2_QAD")
            t(f"s_sleep {o.get('qsleep', 1)}")
            t("buffer_load_dword v151, v150, s[44:47], 0 offen sc1"); t("s_waitcnt vmcnt(0)")
            t("v_cmp_ne_u32 vcc, s3, v151"); t("s_nop 1")
            t("s_add_u32 s101, s101, 1"); t("s_cmp_lt_u32 s101, 0x400000"); t("s_cbranch_scc1 K2_QA")
            t("K2_QAD:")
            for n in range(3):
                for txt, _ in dma_lines(n): t(txt)
            t("K2_QP:")
            t("buffer_load_dword v151, v150, s[44:47], 0 offen sc1")
            t("s_waitcnt vmcnt(0)")
            t("v_cmp_ne_u32 vcc, s3, v151")
            t("s_nop 1")
            t("s_cmp_eq_u64 vcc, 0"); t("s_cbranch_scc1 K2_QB"); t(f"s_sleep {o.get('qsleep', 1)}")
            t("s_add_u32 s101, s101, 1"); t("s_cmp_lt_u32 s101, 0x400000"); t("s_cbranch_scc1 K2_QP")
            t("K2_QB:")
            q_dma(t)
            t("s_branch K2_QE")
            t("K2_QD:")
            t("s_mov_b32 s66, 1")
            T.extend(loads)
            t("K2_QE:")
        else:
            t("K2_QP:")
            t("buffer_load_dword v151, v150, s[44:47], 0 offen sc1")
            t("s_waitcnt vmcnt(0)")
            t("v_cmp_ne_u32 vcc, s3, v151")
            t("s_nop 1")
            t("s_cmp_eq_u64 vcc, 0"); t("s_cbranch_scc1 K2_QD"); t("s_sleep 1")
            t("s_add_u32 s101, s101, 1"); t("s_cmp_lt_u32 s101, 0x400000"); t("s_cbranch_scc1 K2_QP")
            t("K2_QD:")
            T.extend(loads)
        if o.get('wfpf', False):
            T.extend(cap_(lambda e: srd(e, 16, 's4', 's5', WF_OFF, 262144)))
            t("s_lshr_b32 s60, s2, 3"); t("s_lshl_b32 s60, s60, 13"); t("s_lshl_b32 s61, s48, 11"); t("s_add_u32 s60, s60, s61")
            t("v_lshlrev_b32 v150, 4, v131")
            t("buffer_load_dwordx4 v[224:227], v150, s[16:19], s60 offen sc1")
            t("buffer_load_dwordx4 v[228:231], v150, s[16:19], s60 offen offset:1024 sc1")
        T.extend(xcc_blk)
        T.extend(rest)
    else:
        T.remove("@KAVA")
    if FUSED and FF and o.get('xaflag', True) and not o.get('ct'):
        t("s_cmp_eq_u32 s66, 1"); t("s_cbranch_scc1 K2_W16"); t("s_waitcnt vmcnt(0)"); t("K2_W16:")
    t("s_waitcnt vmcnt(18)" if (FUSED and o.get('wfpf', False)) else "s_waitcnt vmcnt(16)")
    t("s_barrier")
    if FUSED and FF and o.get('defer', True):
        t("s_cmp_eq_u32 s98, 1"); t("s_cbranch_scc0 K2_NODF"); t("s_cmp_eq_u32 s48, 0"); t("s_cbranch_scc0 K2_NODF")
        t("v_mov_b32 v152, s3"); t("v_mov_b32 v153, s3"); t("v_mbcnt_lo_u32_b32 v154, -1, 0"); t("v_mbcnt_hi_u32_b32 v154, -1, v154")
        t("v_cmp_eq_u32 vcc, 0, v154"); t("s_and_saveexec_b64 s[70:71], vcc")
        t("buffer_store_dwordx2 v[152:153], off, s[44:47], s67 sc1")
        t("s_mov_b64 exec, s[70:71]")
        t("K2_NODF:")
    if o['stamp']: t("s_memtime s[76:77]"); t("s_memrealtime s[78:79]"); t("s_waitcnt lgkmcnt(0)")
    q_read2(t)
    L += hazard.autofix(T)
    DF = o['DF']
    ev = []; seq = [0]
    def add(tm, kind, prio=5, **kw):
        seq[0] += 1; ev.append((tm, prio, seq[0], kind, kw))
    def TT(i, n): return 128*i + n
    NT = 16
    for n in range(NT):
        slot = n % 4
        for kt in range(2):
            for j in range(8):
                f = 8*kt + j
                tm = TT(n-1, 4*f); tr = tm - 4*DF
                ring = RING + 4*(f % 4)
                off = slot*SLOT + kt*8192 + (j >> 2)*256
                add(tr, 'lds', prio=2, text=f"ds_read_b128 {vr(ring,4)}, v{KA+(j&3)} offset:{off}", tag=('K', n, f))
                if n < NT:
                    for qt in range(4):
                        acc = vr(Sreg(kt, qt), 4)
                        c = acc if j else ('0' if n == 0 else vr(NEGM+4*qt, 4))
                        add(tm+qt, 'mfma', prio=0, text=f"{M16} {acc}, {vr(ring,4)}, {ar(aQ+(qt*8+j)*4,4)}, {c}",
                            need=([('K', n, f)] if qt == 0 else []) + ([('Q', qt, j)] if n == 0 else []))
    for n in range(NT):
        slot = n % 4
        for dt in range(16):
            f = 16 + dt
            tm = TT(n, 4*f); tr = tm - 4*DF
            ring = RING + 4*(f % 4)
            for u in range(2):
                off = slot*SLOT + u*8192 + (dt >> 3)*256
                add(tr, 'lds', prio=2, text=f"ds_read_b64_tr_b16 {vr(ring+2*u,2)}, v{VA+(dt&7)} offset:{off}", tag=('V', n, dt, u))
            for qt in range(4):
                add(tm+qt, 'mfma', prio=0, text=f"{M16} {Oreg(dt,qt)}, {vr(ring,4)}, {vr(P[n%2]+4*qt,4)}, {Oreg(dt,qt)}",
                    need=[('V', n, dt, 0), ('V', n, dt, 1)] if qt == 0 else [])
        for kt in range(2):
            for el in range(16 if o.get('valu', True) else 0):
                qt, r = el >> 2, el & 3
                te = TT(n-1, (o['e0'] if kt == 0 else o['e1']) + o['estep']*el)
                reg = Sreg(kt, qt) + r
                add(te, 'valu', prio=3, text=f"v_exp_f32 v{reg}, v{reg}")
                if not o.get('pkadd'):
                    add(te+o['addd'], 'valu', prio=3, text=f"v_add_f32 v{LS+qt}, v{LS+qt}, v{reg}")
                elif r % 2 == 1:
                    add(te+o['addd'], 'valu', prio=3, text=f"v_pk_add_f32 v[{224+2*qt}:{225+2*qt}], v[{224+2*qt}:{225+2*qt}], v[{reg-1}:{reg}]")
                if r % 2 == 1:
                    add(te+o['cvtd'], 'valu', prio=4, text=f"v_cvt_pk_bf16_f32 v{P[n%2]+4*qt+2*kt+r//2}, v{reg-1}, v{reg}")
    for i in range(-1, NT-2):
        add(TT(i, o['bslot']), 'bar', prio=6, it=i)
        if i >= 0 and i + 3 < NT and o.get('dma', True):
            k = 0
            for txt, vm in dma_lines((i+3) % 4):
                tm = TT(i, o['dma0'] + o['dmastep']*k)
                if vm:
                    add(tm, 'dma', prio=7, text=txt, tile=i+3); k += 1
                else:
                    add(tm if k < 8 else TT(i, o['dma0'] + o['dmastep']*7), 'salu', prio=6 if k < 8 else 8, text=txt)
    tail_ev = []
    ev.sort(key=lambda x: (x[0], x[1], x[2]))
    W = Waiter()
    for n in (1, 2):
        for k in range(8): W.issue('vm', ('T', n))
    if FUSED and o.get('wfpf', False):
        W.issue('vm', 'PF0'); W.issue('vm', 'PF1')
    for j in range(8):
        for qt in range(4): W.issue('lgkm', ('Q', qt, j))
    its = {}
    for x in ev:
        tm, _, _, kind, kw = x
        it = max(tm // 128, -1)
        out = its.setdefault(it, [])
        if kind == 'mfma':
            n = W.need('lgkm', kw['need'])
            if n is not None: out.append(f"s_waitcnt lgkmcnt({n})")
            out.append(kw['text'])
            if tm == TT(-1, 63):
                out.append("@FIXUP")
        elif kind == 'lds':
            out.append(kw['text']); W.issue('lgkm', kw['tag'])
        elif kind == 'bar':
            n = W.need('vm', [('T', kw['it']+2)])
            if n is not None: out.append(f"s_waitcnt vmcnt({n})")
            if o.get('barrier', True) or kw['it'] < 0: out.append("s_barrier")
        elif kind == 'dma':
            out.append(kw['text']); W.issue('vm', ('T', kw['tile']))
        else:
            out.append(kw['text'])
    for i in range(8, 13):
        assert its[i] == its[i-4], (i, [(a, b) for a, b in zip(its[i], its[i-4]) if a != b][:5])
    pro = its[-1]
    fi = pro.index("@FIXUP")
    if not o.get('valu', True):
        its[15] = its[15] + ["v_add_f32 v248, v248, v248"]
    pre_valu = [x for x in pro[:fi] if x.startswith('v_exp') or x.startswith('v_add_f32') or x.startswith('v_cvt') or x.startswith('v_pk_add')]
    pro_a = [x for x in pro[:fi] if x not in pre_valu]
    fix = []
    fx = fix.append
    fx("s_nop 7")
    for qt in range(4):
        a, b = Sreg(0, qt), Sreg(1, qt)
        fx(f"v_max3_f32 v{NEGM+qt}, v{a}, v{a+1}, v{a+2}")
        fx(f"v_max3_f32 v{NEGM+qt}, v{NEGM+qt}, v{a+3}, v{b}")
        fx(f"v_max3_f32 v{NEGM+qt}, v{NEGM+qt}, v{b+1}, v{b+2}")
        fx(f"v_max_f32 v{NEGM+qt}, v{NEGM+qt}, v{b+3}")
    for sw in ("v_permlane16_swap_b32", "v_permlane32_swap_b32"):
        for qt in range(4): fx(f"v_mov_b32 v{NEGM+4+qt}, v{NEGM+qt}")
        fx("s_nop 1")
        for qt in range(4): fx(f"{sw} v{NEGM+qt}, v{NEGM+4+qt}")
        fx("s_nop 1")
        for qt in range(4): fx(f"v_max_f32 v{NEGM+qt}, v{NEGM+qt}, v{NEGM+4+qt}")
    fx("v_mbcnt_lo_u32_b32 v254, -1, 0"); fx("v_mbcnt_hi_u32_b32 v254, -1, v254")
    fx("v_lshlrev_b32 v254, 4, v254")
    fx(f"s_lshl_b32 s60, s48, 10"); fx(f"s_add_u32 s60, s60, {MX}")
    fx("v_add_u32 v255, s60, v254")
    fx(f"ds_write_b128 v255, {vr(NEGM,4)}")
    fx("s_xor_b32 s60, s60, 2048")
    fx("v_add_u32 v255, s60, v254")
    fx("s_waitcnt lgkmcnt(0)")
    fx("s_barrier")
    fx(f"ds_read_b128 {vr(NEGM+4,4)}, v255")
    fx("s_waitcnt lgkmcnt(0)")
    for qt in range(4): fx(f"v_max_f32 v{NEGM+8+qt}, v{NEGM+qt}, v{NEGM+4+((qt+2)&3)}")
    fx(f"v_mov_b32 v{MREF}, v{NEGM+8}"); fx(f"v_mov_b32 v{MREF+1}, v{NEGM+9}")
    for kt in range(2):
        for qt in range(4):
            for r in range(4): fx(f"v_sub_f32 v{Sreg(kt,qt)+r}, v{Sreg(kt,qt)+r}, v{NEGM+8+qt}")
    for qt in range(4): fx(f"v_mov_b32 v{254}, v{NEGM+8+qt}") if False else None
    for qt in (3, 1, 0):
        for r in range(4): fx(f"v_sub_f32 v{NEGM+4*qt+r}, 0, v{NEGM+8+qt}") if qt != 2 else None
    fx(f"v_sub_f32 v254, 0, v{NEGM+10}")
    for r in range(4): fx(f"v_mov_b32 v{NEGM+8+r}, v254")
    L += hazard.autofix(pro_a + fix + pre_valu + pro[fi+1:])
    if o['stamp']:
        e("s_memtime s[24:25]")
    e("K2_LOOP:")
    body = {u: its[4+u] for u in range(4)}
    L += body[0]
    e("s_cmp_eq_u32 s58, 3")
    e("s_cbranch_scc1 K2_EPI")
    L += body[1]; L += body[2]; L += body[3]
    e("s_add_u32 s58, s58, 1")
    e("s_branch K2_LOOP")
    e("K2_EPI:")
    if o['stamp']:
        e("s_memtime s[26:27]"); e("s_waitcnt lgkmcnt(0)"); e("s_sub_u32 s101, s26, s24"); e("s_sub_u32 s100, s24, s76")
    if FUSED:
        TA, TB, TC = (248, 249, 250) if o.get('pkadd') else (224, 225, 226)
        pre13 = []
        p = pre13.append
        p("s_lshl_b32 s60, s52, 7"); p("s_lshl_b32 s61, s53, 5"); p("s_add_u32 s60, s60, s61"); p("s_min_u32 s60, s60, 3968")
        p("s_mul_i32 s61, s51, 4000"); p("s_add_u32 s60, s60, s61")
        sh = 5 if o.get('ct') else 6
        if o.get('ct'):
            p("s_lshr_b32 s62, s60, 5")
        p("s_max_u32 s61, s60, 2"); p("s_sub_u32 s61, s61, 2"); p(f"s_lshr_b32 s61, s61, {sh}")
        p("s_add_u32 s60, s60, 33"); p("s_min_u32 s60, s60, 7999"); p(f"s_lshr_b32 s60, s60, {sh}")
        p(f"v_mbcnt_lo_u32_b32 v{TA}, -1, 0"); p(f"v_mbcnt_hi_u32_b32 v{TA}, -1, v{TA}")
        p(f"v_min_u32 v{TB}, 7, v{TA}"); p(f"v_lshlrev_b32 v{TB}, 7, v{TB}"); p(f"v_add_u32 v{TB}, {FLW - 256}, v{TB}")
        p("s_lshl_b32 s61, s61, 7"); p(f"s_add_u32 s61, s61, {FLU}"); p(f"v_mov_b32 v{TC}, s61")
        p(f"v_cmp_eq_u32 vcc, 0, v{TA}"); p("s_nop 1"); p(f"v_cndmask_b32 v{TB}, v{TB}, v{TC}, vcc")
        p("s_lshl_b32 s60, s60, 7"); p(f"s_add_u32 s60, s60, {FLU}"); p(f"v_mov_b32 v{TC}, s60")
        p(f"v_cmp_eq_u32 vcc, 1, v{TA}"); p("s_nop 1"); p(f"v_cndmask_b32 v{TB}, v{TB}, v{TC}, vcc")
        if o.get('ct'):
            p("s_lshl_b32 s62, s62, 7"); p(f"s_add_u32 s62, s62, {FLU}"); p(f"v_mov_b32 v{TC}, s62")
            p(f"v_cmp_eq_u32 vcc, 8, v{TA}"); p("s_nop 1"); p(f"v_cndmask_b32 v{TB}, v{TB}, v{TC}, vcc")
        p(f"buffer_load_dword v{TC}, v{TB}, s[44:47], 0 offen sc1")
        IP2 = o.get('ipf2', False) and not o.get('pkadd')
        if IP2:
            p("s_getpc_b64 s[60:61]")
            p("K2_PCREF:")
            p("s_add_u32 s60, s60, K2_NOMASK-K2_PCREF"); p("s_addc_u32 s61, s61, 0")
            p("s_lshr_b32 s62, s2, 3"); p("s_lshl_b32 s62, s62, 2"); p("s_add_u32 s62, s62, s48"); p(f"s_min_u32 s62, s62, {o.get('ipf2n', 15)}"); p("s_lshl_b32 s62, s62, 10")
            p(f"v_lshlrev_b32 v227, 4, v{TA}"); p("v_add_u32 v227, s62, v227")
            p("global_load_dwordx4 v[228:231], v227, s[60:61]")
        L += hazard.autofix(pre13)
        i13 = list(its[13])
        bi = i13.index("s_barrier")
        assert i13[bi-1] == "s_waitcnt vmcnt(0)", i13[bi-3:bi+1]
        i13[bi-1] = "s_waitcnt vmcnt(2)" if IP2 else "s_waitcnt vmcnt(1)"
        chk = ["s_waitcnt vmcnt(0)", "K2_TP:", f"v_cmp_ne_u32 vcc, s3, v{TC}", "s_nop 1", "s_cmp_eq_u64 vcc, 0", "s_cbranch_scc1 K2_TD", "s_sleep 1",
               f"buffer_load_dword v{TC}, v{TB}, s[44:47], 0 offen sc1", "s_waitcnt vmcnt(0)", "s_add_u32 s101, s101, 1", "s_cmp_lt_u32 s101, 0x400000", "s_cbranch_scc1 K2_TP", "K2_TD:"]
        L += i13 + chk
    else:
        L += its[13]
    e("s_cmp_eq_u32 s59, 3")
    e("s_cbranch_scc0 K2_NOMASK")
    for r in range(16): e(f"v_mov_b32 v{NEGM+r}, 0xf149f2ca")
    e("s_nop 1")
    e("K2_NOMASK:")
    import gen_tail
    tail, resume = gen_tail.gen_tail(o, its[14], its[15], W)
    L += tail
    e("s_branch K2_END")
    T = []; t = T.append
    M_, MN, AL = NEGM, NEGM + 4, NEGM + 8
    t("K2_SLOW:")
    t("s_mov_b32 s54, 1")
    t("s_waitcnt vmcnt(0) lgkmcnt(0)")
    t("s_barrier")
    t("v_mbcnt_lo_u32_b32 v131, -1, 0"); t("v_mbcnt_hi_u32_b32 v131, -1, v131")
    dv_setup(t)
    S_2 = lambda fn: (lambda b: (fn(b.append), T.extend(b)))([])
    S_2(lambda e: srd(e, 12, 's4', 's5', QF_OFF, 500*8192))
    q_dma(t)
    kava_setup(t)
    for r in range(128): t(f"v_mov_b32 v{O+r}, 0")
    for r in range(128): t(f"v_accvgpr_write_b32 a{aO+r}, 0")
    for k in range(4): t(f"v_mov_b32 v{LS+k}, 0"); t(f"v_mov_b32 v{M_+k}, 0xf149f2ca")
    t("s_lshl_b32 s56, s50, 16"); t("s_lshl_b32 s60, s49, 13"); t("s_add_u32 s56, s56, s60")
    t("s_mov_b32 s57, 0"); t("s_mov_b32 s58, 0")
    t("s_waitcnt vmcnt(0)")
    t("s_barrier")
    q_read(t); q_read2(t)
    t("s_waitcnt lgkmcnt(0)")
    t("K2_SL_LOOP:")
    t("s_barrier")
    for txt, _ in dma_lines(0): t(txt)
    t("s_waitcnt vmcnt(0)")
    t("s_barrier")
    t("s_lshl_b32 s60, s58, 14"); t("s_cmp_lt_u32 s60, s55")
    t("s_cbranch_scc0 K2_SL_NEXT")
    for kt in range(2):
        for j in range(8):
            t(f"ds_read_b128 {vr(RING,4)}, v{KA+(j&3)} offset:{kt*8192 + (j>>2)*256}")
            t("s_waitcnt lgkmcnt(0)")
            for qt in range(4):
                acc = vr(Sreg(kt, qt), 4)
                t(f"{M16} {acc}, {vr(RING,4)}, {ar(aQ+(qt*8+j)*4,4)}, {acc if j else '0'}")
            t("s_nop 3")
    t("s_nop 7")
    for qt in range(4):
        a, b = Sreg(0, qt), Sreg(1, qt)
        t(f"v_max3_f32 v{MN+qt}, v{a}, v{a+1}, v{a+2}")
        t(f"v_max3_f32 v{MN+qt}, v{MN+qt}, v{a+3}, v{b}")
        t(f"v_max3_f32 v{MN+qt}, v{MN+qt}, v{b+1}, v{b+2}")
        t(f"v_max3_f32 v{MN+qt}, v{MN+qt}, v{b+3}, v{M_+qt}")
    for sw in ("v_permlane16_swap_b32", "v_permlane32_swap_b32"):
        for qt in range(4): t(f"v_mov_b32 v{AL+qt}, v{MN+qt}")
        t("s_nop 1")
        for qt in range(4): t(f"{sw} v{MN+qt}, v{AL+qt}")
        t("s_nop 1")
        for qt in range(4): t(f"v_max_f32 v{MN+qt}, v{MN+qt}, v{AL+qt}")
    for qt in range(4):
        t(f"v_sub_f32 v{AL+qt}, v{M_+qt}, v{MN+qt}"); t(f"v_exp_f32 v{AL+qt}, v{AL+qt}"); t(f"v_mov_b32 v{M_+qt}, v{MN+qt}")
    t("s_nop 0")
    for qt in range(4):
        t(f"v_mul_f32 v{LS+qt}, v{LS+qt}, v{AL+qt}")
        for kt in range(2):
            for r in range(4):
                reg = Sreg(kt, qt) + r
                t(f"v_sub_f32 v{reg}, v{reg}, v{M_+qt}"); t(f"v_exp_f32 v{reg}, v{reg}"); t("s_nop 0")
                t(f"v_add_f32 v{LS+qt}, v{LS+qt}, v{reg}")
            for h2 in range(2):
                t(f"v_cvt_pk_bf16_f32 v{P[0]+4*qt+2*kt+h2}, v{Sreg(kt,qt)+2*h2}, v{Sreg(kt,qt)+2*h2+1}")
    def rescale():
        for dt in range(16):
            for qt in range(2):
                for r in range(4): t(f"v_mul_f32 v{O+(dt*2+qt)*4+r}, v{O+(dt*2+qt)*4+r}, v{AL+qt}")
                for r in range(4):
                    a = aO + (dt*2+qt)*4 + r
                    t(f"v_accvgpr_read_b32 v{NEGM+12+r}, a{a}")
                for r in range(4): t(f"v_mul_f32 v{NEGM+12+r}, v{NEGM+12+r}, v{AL+2+qt}")
                for r in range(4):
                    a = aO + (dt*2+qt)*4 + r
                    t(f"v_accvgpr_write_b32 a{a}, v{NEGM+12+r}")
    rescale()
    t("s_nop 1")
    for dt in range(16):
        for u in range(2):
            t(f"ds_read_b64_tr_b16 {vr(RING+2*u,2)}, v{VA+(dt&7)} offset:{u*8192 + (dt>>3)*256}")
        t("s_waitcnt lgkmcnt(0)")
        for qt in range(4):
            t(f"{M16} {Oreg(dt,qt)}, {vr(RING,4)}, {vr(P[0]+4*qt,4)}, {Oreg(dt,qt)}")
        t("s_nop 3")
    t("s_nop 7")
    t("K2_SL_NEXT:")
    t("s_add_u32 s58, s58, 1"); t("s_cmp_lt_u32 s58, 16"); t("s_cbranch_scc1 K2_SL_LOOP")
    t("s_barrier")
    t("v_mbcnt_lo_u32_b32 v254, -1, 0"); t("v_mbcnt_hi_u32_b32 v254, -1, v254"); t("v_lshlrev_b32 v254, 4, v254")
    t(f"s_lshl_b32 s60, s48, 10"); t(f"s_add_u32 s60, s60, {MX}"); t("v_add_u32 v255, s60, v254")
    t(f"ds_write_b128 v255, {vr(M_,4)}")
    t("s_xor_b32 s60, s60, 2048"); t("v_add_u32 v255, s60, v254")
    t("s_waitcnt lgkmcnt(0)"); t("s_barrier")
    t(f"ds_read_b128 {vr(MN,4)}, v255"); t("s_waitcnt lgkmcnt(0)")
    for qt in range(4): t(f"v_max_f32 v{RING+qt}, v{M_+qt}, v{MN+((qt+2)&3)}")
    for qt in range(4):
        t(f"v_sub_f32 v{AL+qt}, v{M_+qt}, v{RING+qt}"); t(f"v_exp_f32 v{AL+qt}, v{AL+qt}")
    t("s_nop 0")
    for qt in range(4): t(f"v_mul_f32 v{LS+qt}, v{LS+qt}, v{AL+qt}")
    t(f"v_mov_b32 v{MREF}, v{RING}"); t(f"v_mov_b32 v{MREF+1}, v{RING+1}")
    rescale()
    t("s_barrier")
    L += hazard.autofix(T + resume)
    e("K2_END:")
    e("s_endpgm")
    i0 = L.index("K2_LOOP:"); i1 = L.index("K2_EPI:")
    lin = L[i0-60:i1] + L[i0:i1] + L[i1:i1+700]
    errs = hazard.check(lin, 'k2f')
    return L, ([] if FUSED else kernel_desc(name, 512, 256)), errs
```

```python
from gen_common import *
from tl import TL
import hazard, struct
SLOT = 16384
EX = 131072
fb = lambda x: hex(struct.unpack('<I', struct.pack('<f', x))[0])

def gen_k1(opt=None):
    o = dict(D=6, stamp=False, st='', npre=2, nln=4)
    if opt: o.update(opt)
    D = o['D']; ST = (' ' + o['st']) if o['st'] else ''
    FUSED = o.get('fused')
    name = FUSED if FUSED else 'prep_kernel'
    L = []; e = L.append
    B = 0; ACC = [64, 128]; KA = 192; KA2 = 200; VN = 208; VN2 = 216; DV = 224; DS = 228; XB = 200
    aR = 0; R = 8
    def stamp(T, k):
        if o['stamp']: T.append(f"s_memrealtime s[{72+2*k}:{73+2*k}]")
    L += kernel_header(name)
    e("s_cmp_ge_u32 s2, 256")
    e("s_cbranch_scc1 K2_END" if FUSED else "s_cbranch_scc1 K1_END")
    e("s_load_dwordx16 s[36:51], s[0:1], 0")
    e("s_load_dwordx2 s[52:53], s[0:1], 64")
    e("s_load_dwordx2 s[54:55], s[0:1], 88")
    FF = FUSED and o.get('fastfin', True) and not o.get('ct')
    if FUSED: e("s_load_dwordx2 s[58:59], s[0:1], 80")
    if FF: e("s_load_dwordx2 s[100:101], s[0:1], 72")
    if FF: e("s_mov_b32 s98, 0")
    if FUSED and not FF: e("s_mov_b32 s101, 0")
    if o['stamp']:
        e("s_memtime s[60:61]"); e("s_memrealtime s[62:63]")
    e("v_lshrrev_b32 v232, 6, v0")
    e("v_and_b32 v240, 63, v0")
    e("v_lshrrev_b32 v241, 5, v240")
    e("v_and_b32 v242, 31, v240")
    e("v_readfirstlane_b32 s28, v232")
    e("s_and_b32 s29, s28, 1")
    e("s_lshr_b32 s30, s28, 1")
    e("s_lshl_b32 s31, s28, 12")
    CT = o.get('ct')
    if CT: e("s_mov_b32 s35, s2")
    else: e("s_sub_u32 s35, s2, 125"); e("s_cmp_lt_u32 s2, 125"); e("s_cselect_b32 s35, s2, s35")
    e("s_lshl_b32 s33, s28, 1")
    for k in range(4):
        e(f"v_add_u32 v234, {2*k}, v241"); e("v_and_b32 v234, 3, v234"); e("v_lshlrev_b32 v234, 2, v234")
        e(f"s_add_u32 s34, s33, {k>>1}"); e("s_and_b32 s34, s34, 3")
        e("v_or_b32 v234, s34, v234"); e("v_xor_b32 v234, v242, v234"); e("v_lshlrev_b32 v234, 4, v234")
        e("v_lshl_add_u32 v234, v241, 9, v234")
        e(f"v_add_u32 v{DS+k}, s31, v234")
    e("s_waitcnt lgkmcnt(0)")
    if FUSED:
        e("s_mov_b32 s4, s58"); e("s_mov_b32 s5, s59"); e("s_mov_b32 s6, 256"); e("s_mov_b32 s7, 0x20000")
        e("s_or_b32 s33, s2, s28"); e("s_cmp_eq_u32 s33, 0"); e("s_cbranch_scc0 K1_NOTAG")
        e("s_memrealtime s[56:57]"); e("s_waitcnt lgkmcnt(0)"); e("s_or_b32 s56, s56, 1")
        e("v_mov_b32 v234, s56")
        e("buffer_store_dword v234, off, s[4:7], 0 sc1")
        e("K1_NOTAG:")
    e("s_cmp_lt_u32 s2, 250"); e("s_cbranch_scc0 K1_NOX")
    srd(e, 16, 's36', 's37', 0, 8000*512)
    e("s_lshl_b32 s32, s35, 14" if CT else "s_lshl_b32 s32, s35, 15")
    for half in range(1 if CT else 2):
        e(f"s_add_u32 m0, s31, {EX + half*SLOT:#x}")
        if half: e("s_add_u32 s32, s32, 16384")
        else: e("s_nop 0")
        for k in range(4):
            e(f"buffer_load_dwordx4 v{DS+k}, s[16:19], s32 offen offset:{k*1024} lds")
    PU = FUSED and o.get('pfug', True) and o.get('ugfirst', True) and not CT
    if PU:
        e("s_cmp_lt_u32 s2, 128"); e("s_cbranch_scc0 K1_NOX")
        e("s_lshr_b32 s33, s2, 3"); e("s_lshl_b32 s33, s33, 2"); e("s_add_u32 s33, s33, s28")
        e("v_lshlrev_b32 v232, 4, v240")
        e("s_getpc_b64 s[56:57]")
        e("K1_PCREF:")
        e(f"s_add_u32 s56, s56, K1_NOX-K1_PCREF"); e("s_addc_u32 s57, s57, 0")
        e("s_lshl_b32 s34, s33, 10"); e("v_add_u32 v233, s34, v232")
        e(f"s_cmp_lt_u32 s34, {o.get('ipfbytes', 61440)}"); e("s_cbranch_scc0 K1_NOIPF")
        e("global_load_dwordx4 v[252:255], v233, s[56:57]")
        e("K1_NOIPF:")
        e("s_mov_b32 s8, s40"); e("s_mov_b32 s9, s41"); e("s_mov_b32 s10, 131072"); e("s_mov_b32 s11, 0x20000")
        e("s_lshl_b32 s34, s33, 11")
        e("buffer_load_dwordx4 v[100:103], v232, s[8:11], s34 offen")
        e("buffer_load_dwordx4 v[104:107], v232, s[8:11], s34 offen offset:1024")
        e("s_and_b32 s33, s2, 7"); e("s_cmp_lt_u32 s33, 2"); e("s_cbranch_scc1 K1_NOX")
        e("s_lshr_b32 s34, s2, 3")
        e("s_add_u32 s56, s52, 131072"); e("s_addc_u32 s57, s53, 0")
        e("s_cmp_ge_u32 s33, 6"); e("s_cselect_b32 s8, s50, s44"); e("s_cselect_b32 s9, s51, s45"); e("s_cselect_b32 s56, s56, s42"); e("s_cselect_b32 s57, s57, s43")
        e("s_cmp_lt_u32 s34, 8"); e("s_cselect_b32 s8, s8, s56"); e("s_cselect_b32 s9, s9, s57")
        e("s_and_b32 s34, s34, 7"); e("s_lshl_b32 s34, s34, 14"); e("s_lshl_b32 s33, s28, 12"); e("s_add_u32 s34, s34, s33")
        for k in range(4): e(f"buffer_load_dwordx4 v[{108+4*k}:{111+4*k}], v232, s[8:11], s34 offen offset:{k*1024}")
    else:
        if FUSED and o.get('ipf', True):
            e("s_getpc_b64 s[56:57]")
            e("K1_PCREF:")
            e(f"s_add_u32 s56, s56, {o.get('ipfbase', 'K1_NOX')}-K1_PCREF"); e("s_addc_u32 s57, s57, 0")
            e("s_lshr_b32 s33, s2, 3"); e("s_lshl_b32 s33, s33, 2"); e("s_add_u32 s33, s33, s28"); e("s_lshl_b32 s33, s33, 10")
            e(f"s_cmp_lt_u32 s33, {o.get('ipfbytes', 61440)}"); e("s_cbranch_scc0 K1_NOIPF")
            e("v_lshlrev_b32 v232, 4, v240"); e("v_add_u32 v232, s33, v232")
            e("global_load_dwordx4 v[252:255], v232, s[56:57]")
            e("K1_NOIPF:")
        if o.get('wpf', False):
            e("s_lshr_b32 s33, s2, 3"); e("s_lshl_b32 s33, s33, 2"); e("s_add_u32 s33, s33, s28")
            e("v_lshlrev_b32 v232, 4, v240")
            e("s_mov_b32 s8, s40"); e("s_mov_b32 s9, s41"); e("s_mov_b32 s10, 131072"); e("s_mov_b32 s11, 0x20000")
            e("s_lshl_b32 s34, s33, 10")
            e("buffer_load_dwordx4 v[100:103], v232, s[8:11], s34 offen")
            if o.get('wpf') != 'k':
                e("s_mov_b32 s8, s46"); e("s_mov_b32 s9, s47"); e("s_mov_b32 s10, 262144")
                e("s_lshl_b32 s34, s33, 11")
                e("buffer_load_dwordx4 v[104:107], v232, s[8:11], s34 offen")
                e("buffer_load_dwordx4 v[108:111], v232, s[8:11], s34 offen offset:1024")
        if FUSED and o.get('tlb', False):
            e("s_load_dwordx2 s[56:57], s[0:1], 72"); e("s_waitcnt lgkmcnt(0)")
            e("s_cmp_eq_u32 s28, 1"); e("s_cbranch_scc0 K1_NOTLB")
            srd(e, 8, 's54', 's55', OP_OFF, 64*16*16384)
            e("v_lshlrev_b32 v232, 21, v240")
            e("buffer_load_dword v112, v232, s[8:11], 0 offen")
            e("s_mov_b32 s8, s56"); e("s_mov_b32 s9, s57"); e("s_mov_b32 s10, 4096000")
            e("buffer_load_dword v113, v232, s[8:11], 0 offen")
            e("K1_NOTLB:")
        if o.get('pf', True):
            e("s_and_b32 s33, s2, 7"); e("s_cmp_lt_u32 s33, 2"); e("s_cbranch_scc1 K1_NOPF")
            e("s_lshr_b32 s34, s2, 3")
            e("s_cmp_ge_u32 s33, 6"); e("s_cbranch_scc1 K1_PF2")
            e("s_cmp_lt_u32 s34, 16"); e("s_cselect_b32 s8, s44, s42"); e("s_cselect_b32 s9, s45, s43")
            e("s_and_b32 s34, s34, 15"); e("s_lshl_b32 s34, s34, 13")
            e("s_branch K1_PF3")
            e("K1_PF2:")
            e("s_add_u32 s56, s52, 131072"); e("s_addc_u32 s57, s53, 0")
            e("s_cmp_lt_u32 s34, 16"); e("s_cselect_b32 s8, s50, s56"); e("s_cselect_b32 s9, s51, s57")
            e("s_and_b32 s34, s34, 15"); e("s_lshl_b32 s34, s34, 13")
            e("K1_PF3:")
            e("s_mov_b32 s10, 131072"); e("s_mov_b32 s11, 0x20000")
            e("v_lshlrev_b32 v232, 4, v240"); e("s_lshl_b32 s33, s28, 11"); e("s_add_u32 s34, s34, s33")
            e("buffer_load_dwordx4 v[244:247], v232, s[8:11], s34 offen")
            e("buffer_load_dwordx4 v[248:251], v232, s[8:11], s34 offen offset:1024")
            e("K1_NOPF:")
        pass
    e("K1_NOX:")
    first, second = ("K1_UG", "K1_Q") if o.get('ugfirst', True) else ("K1_Q", "K1_UG")
    if CT:
        e("s_cmp_lt_u32 s2, 250"); e("s_cbranch_scc1 K1_CT")
    else:
        e("s_cmp_lt_u32 s2, 125"); e(f"s_cbranch_scc1 {first}")
        e("s_cmp_lt_u32 s2, 250"); e(f"s_cbranch_scc1 {second}")
    e("s_cmp_lt_u32 s2, 254"); e("s_cbranch_scc1 K1_W1")
    e("s_branch K1_W2")

    def k_addr(T, dst, dst2, base_lines):
        t = T.append
        t("v_and_b32 v234, 3, v242"); t("v_lshlrev_b32 v234, 2, v234"); t("v_bfe_u32 v235, v242, 2, 2")
        t("v_or_b32 v234, v234, v235"); t("v_lshlrev_b32 v236, 9, v242")
        for x in base_lines: t(x)
        t("v_add_u32 v236, s33, v236")
        for jj in range(8):
            t(f"v_add_u32 v235, {2*jj}, v241"); t("v_xor_b32 v235, v235, v234")
            t(f"v_lshl_add_u32 v{dst+jj}, v235, 4, v236")
            if dst2 is not None: t(f"v_add_u32 v{dst2+jj}, 0x10000, v{dst+jj}")
    def ka_setup(T): k_addr(T, KA, KA2, ["s_lshl_b32 s33, s30, 14"])
    def xb_setup(T): k_addr(T, XB, None, ["s_lshl_b32 s33, s29, 14", f"s_add_u32 s33, s33, {EX}", "s_lshl_b32 s34, s30, 8", "s_add_u32 s33, s33, s34"])
    def vn_setup(T):
        t = T.append
        t("v_bfe_u32 v234, v240, 4, 1"); t("v_bfe_u32 v235, v240, 2, 2"); t("v_bfe_u32 v236, v240, 1, 1")
        t("v_lshl_add_u32 v236, v234, 1, v236"); t("v_and_b32 v237, 1, v240"); t("v_lshlrev_b32 v237, 3, v237")
        t("v_lshl_add_u32 v238, v241, 3, v235"); t("v_lshl_add_u32 v237, v238, 9, v237")
        t("s_lshl_b32 s33, s30, 8"); t("v_add_u32 v237, s33, v237")
        for a in range(4):
            for u in range(2):
                t(f"v_lshl_add_u32 v238, v241, 1, {u}"); t("v_lshl_or_b32 v238, v235, 2, v238")
                t(f"v_add_u32 v239, {4*a}, v236"); t("v_xor_b32 v238, v238, v239")
                t(f"v_lshl_add_u32 v{VN+a*2+u}, v238, 4, v237")
                if u: t(f"v_add_u32 v{VN+a*2+u}, {4*512}, v{VN+a*2+u}")
                t(f"v_add_u32 v{VN2+a*2+u}, 0x10000, v{VN+a*2+u}")
    def dma_voff(T, stride1024):
        t = T.append
        if not stride1024:
            for k in range(4): t(f"v_mov_b32 v{DV+k}, v{DS+k}")
            return
        t("s_lshl_b32 s33, s28, 1")
        for k in range(4):
            t(f"v_add_u32 v234, {2*k}, v241"); t("v_and_b32 v234, 3, v234"); t("v_lshlrev_b32 v234, 2, v234")
            t(f"s_add_u32 s34, s33, {k>>1}"); t("s_and_b32 s34, s34, 3")
            t("v_or_b32 v234, s34, v234"); t("v_xor_b32 v234, v242, v234"); t("v_lshlrev_b32 v234, 4, v234")
            t("v_lshl_add_u32 v234, v241, 10, v234"); t("s_lshl_b32 s34, s28, 13"); t(f"s_add_u32 s34, s34, {k*1024}")
            t(f"v_add_u32 v{DV+k}, s34, v234")
    def tile_dma(n, srdn, soff):
        if o.get('nodma'): return []
        r = [(f"s_add_u32 m0, s31, {(n%8)*SLOT:#x}", False), (f"s_mov_b32 s32, {soff:#x}", False)]
        for k in range(4):
            r.append((f"buffer_load_dwordx4 v{DV+k}, s[{srdn}:{srdn+3}], s32 offen offset:{k*1024} lds", True))
        return r
    def emit_tile(out, W, n, srdn, soff):
        for txt, vm in tile_dma(n, srdn, soff):
            out.append(txt)
            if vm: W.issue('vm', ('T', n))
    def out_rows(T, W, srdn, tag, OB):
        t = T.append
        t("v_lshlrev_b32 v232, 4, v240"); t(f"s_add_u32 s33, s31, {EX}"); t("v_add_u32 v232, s33, v232")
        for half in range(2):
            for k in range(4):
                t(f"ds_read_b128 {vr(OB+(half*4+k)*4,4)}, v232 offset:{half*SLOT + k*1024}")
        t("s_lshl_b32 s32, s35, 15")
        for half in range(2):
            if half: t("s_add_u32 s32, s32, 16384")
            for k in range(4):
                t(f"s_waitcnt lgkmcnt({7 - (half*4+k)})")
                t(f"buffer_store_dwordx4 {vr(OB+(half*4+k)*4,4)}, v{DS+k}, s[{srdn}:{srdn+3}], s32 offen offset:{k*1024}{ST}")
                W.issue('vm', (tag, half, k))
        W.drain('lgkm')
    def ln(out, W, tiles):
        nw = W.need('vm', [('X', 7)])
        out.append(f"s_waitcnt vmcnt({nw})")
        out.append("s_barrier")
        stamp(out, 0)
        for s in range(8):
            out.append(f"ds_read_b128 {vr(64+4*s,4)}, v{XB+s}")
        body = []; b = body.append
        b("s_mov_b32 s34, 0x3f803f80")
        for k in range(4): b(f"v_mov_b32 v{232+k}, 0")
        for r in range(32):
            if r % 4 == 0: b(f"s_waitcnt lgkmcnt({7 - r//4})")
            b(f"v_dot2_f32_bf16 v{232+(r&1)}, v{64+r}, s34, v{232+(r&1)}")
            b(f"v_dot2_f32_bf16 v{234+(r&1)}, v{64+r}, v{64+r}, v{234+(r&1)}")
        b("s_nop 2")
        b("v_add_f32 v232, v232, v233"); b("v_add_f32 v234, v234, v235")
        b("v_mov_b32 v233, v232"); b("v_mov_b32 v235, v234"); b("s_nop 1")
        b("v_permlane32_swap_b32 v232, v233"); b("v_permlane32_swap_b32 v234, v235"); b("s_nop 1")
        b("v_add_f32 v232, v232, v233"); b("v_add_f32 v233, v234, v235")
        b(f"ds_write_b64 v{XB}, v[232:233]")
        b(f"v_xor_b32 v238, 256, v{XB}")
        b("s_waitcnt lgkmcnt(0)")
        b("s_barrier")
        b("ds_read_b64 v[234:235], v238")
        b("s_waitcnt lgkmcnt(0)")
        b("v_add_f32 v232, v232, v234"); b("v_add_f32 v234, v233, v235")
        b("v_mul_f32 v232, 0x3b800000, v232"); b("v_mul_f32 v234, 0x3b800000, v234")
        b("v_fma_f32 v234, -v232, v232, v234"); b("v_max_f32 v234, 0, v234"); b("v_add_f32 v234, 0x3727c5ac, v234")
        b("v_rsq_f32 v234, v234"); b("s_nop 0")
        b("v_mul_f32 v236, v232, v234"); b("v_sub_f32 v236, 0, v236")
        b("s_barrier")
        for r in range(32):
            t = 244 + 2*(r % 4)
            b(f"v_lshlrev_b32 v{t}, 16, v{64+r}")
            b(f"v_and_b32 v{t+1}, 0xffff0000, v{64+r}")
            b(f"v_pk_fma_f32 v[{t}:{t+1}], v[{t}:{t+1}], v[234:235], v[236:237] op_sel_hi:[1,0,0]")
            b(f"v_cvt_pk_bf16_f32 v{64+r}, v{t}, v{t+1}")
            if r % 4 == 3: b(f"ds_write_b128 v{XB+r//4}, {vr(64+r-3,4)}")
        b("s_waitcnt lgkmcnt(0)")
        b("s_barrier")
        b("s_lshl_b32 s33, s30, 8")
        for jj in range(8): b(f"v_subrev_u32 v{244+jj}, s33, v{XB+jj}")
        for s in range(16):
            b(f"ds_read_b128 {vr(B+4*s,4)}, v{244+(s&7)} offset:{(s>>3)*256}")
        flat = []
        for (n, sn, so) in tiles:
            tl_ = [(txt, vm, n) for txt, vm in tile_dma(n, sn, so)]
            flat.append(tl_[:3])
            for x in tl_[3:]: flat.append([x])
        gap = max(1, len(body) // (len(flat) + 1)) if flat else 1
        fi = 0
        for i, ins in enumerate(body):
            out.append(ins)
            if fi < len(flat) and i % gap == gap - 1:
                for txt, vm, n in flat[fi]:
                    out.append(txt)
                    if vm: W.issue('vm', ('T', n))
                fi += 1
        while fi < len(flat):
            for txt, vm, n in flat[fi]:
                out.append(txt)
                if vm: W.issue('vm', ('T', n))
            fi += 1
        out.append("s_waitcnt lgkmcnt(0)")
        W.drain('lgkm')
    def phase(W, p, kind, later, fill=None, f0=3):
        tl = TL(W)
        acc = ACC[p]
        cnt = [0]
        for a in range(4):
            sig = 4*p + a
            tb = 16*a - D - 1
            tl.add(tb, 'bar', needvm=[('T', 2*sig), ('T', 2*sig+1)], prio=1)
            k = 0
            for (n, sn, so) in later.get(sig, []):
                for txt, vm in tile_dma(n, sn, so):
                    sp = o.get('dsp', 2)
                    if vm:
                        tl.add(tb + 1 + sp*k, 'vm', txt, tag=('T', n), prio=7); k += 1
                    else:
                        tl.add(tb + 1 + sp*k, 'txt', txt, prio=6)
            for m in range(16):
                tm = 16*a + m
                ri = cnt[0] % R; cnt[0] += 1
                ring = aR + 4*ri
                if kind == 'X':
                    j = m; slot = 2*a
                    base = (KA if slot < 4 else KA2) + (j & 7)
                    off = (slot % 4)*SLOT + (j >> 3)*256
                    tag = (p, a, m)
                    tl.add(tm - D, 'lds', f"ds_read_b128 {ar(ring,4)}, v{base} offset:{off}", tag=tag, prio=2)
                    c = vr(acc+16*a,16) if j else '0'
                    tl.add(tm, 'mfma', f"v_mfma_f32_32x32x16_bf16 {vr(acc+16*a,16)}, {ar(ring,4)}, {vr(B+4*j,4)}, {c}", need=[tag], prio=0)
                else:
                    tt, s, aa = m >> 3, (m >> 2) & 1, m & 3
                    tau = 2*a + tt; slot = tau
                    tags = []
                    for u in range(2):
                        base = (VN if slot < 4 else VN2) + aa*2 + u
                        off = (slot % 4)*SLOT + 16*s*512
                        tag = (p, a, m, u); tags.append(tag)
                        tl.add(tm - D, 'lds', f"ds_read_b64_tr_b16 {ar(ring+2*u,2)}, v{base} offset:{off}", tag=tag, prio=2)
                    c = vr(acc+16*aa,16) if (tau or s) else '0'
                    tl.add(tm, 'mfma', f"v_mfma_f32_32x32x16_bf16 {vr(acc+16*aa,16)}, {ar(ring,4)}, {vr(B+4*(2*tau+s),4)}, {c}", need=tags, prio=0)
        if fill:
            n = len(fill)
            for i, ins in enumerate(fill):
                tl.add(f0 + (i*(64-f0))/n, 'txt', ins, prio=4)
        return tl
    def pack_swap(out, src, dst, swap=True, scale=None):
        if scale:
            for k in range(8):
                out.append(f"v_pk_mul_f32 v[{src+2*k}:{src+2*k+1}], v[{src+2*k}:{src+2*k+1}], {scale} op_sel_hi:[1,0]")
        for k in range(8):
            out.append(f"v_cvt_pk_bf16_f32 v{dst+k}, v{src+2*k}, v{src+2*k+1}")
        if swap:
            out.append("s_nop 1")
            for b in (0, 4):
                out.append(f"v_permlane32_swap_b32 v{dst+b}, v{dst+b+2}")
                out.append(f"v_permlane32_swap_b32 v{dst+b+1}, v{dst+b+3}")
    def exchange(out, W, acc, kind, xaflag=False):
        out.append("s_nop 15")
        out.append("v_lshlrev_b32 v232, 4, v240")
        out.append(f"s_lshl_b32 s33, s29, 14"); out.append(f"s_add_u32 s33, s33, {EX}")
        out.append("v_add_u32 v233, s33, v232")
        out.append(f"s_lshl_b32 s34, s30, {13 if kind=='Y' else 11}")
        out.append("v_add_u32 v232, s34, v233")
        for a in range(4):
            d = 244 if a % 2 == 0 else 0
            pack_swap(out, acc+16*a, d)
            for s in range(2):
                f = (2*a + s) if kind == 'Y' else (4*a + s)
                out.append(f"ds_write_b128 v232, {vr(d+4*s,4)} offset:{f*1024}")
        if xaflag:
            n = W.need('vm', [x for x in W.q['vm'] if isinstance(x, tuple) and x[0] == 'XS'] + ['TAG'])
            if n is not None: out.append(f"s_waitcnt vmcnt({n})")
        out.append("s_waitcnt lgkmcnt(0)")
        out.append("s_barrier")
        if xaflag:
            out.append("v_readfirstlane_b32 s3, v243"); out.append("s_or_b32 s33, s28, 0");
            out.append("s_cmp_eq_u32 s28, 0"); out.append("s_cbranch_scc0 K1_Q_NOXF")
            out.append("s_cmp_lg_u32 s3, 0"); out.append("s_cbranch_scc0 K1_Q_NOXF")
            out += cap(lambda e: srd(e, 16, 's54', 's55', FL_OFF, FL_SIZE))
            out.append("s_lshl_b32 s33, s35, 7"); out.append(f"s_add_u32 s33, s33, {FLQ + 4}")
            out.append("v_mov_b32 v238, s3"); out.append("v_cmp_eq_u32 vcc, 0, v240"); out.append("s_and_saveexec_b64 s[56:57], vcc")
            out.append("buffer_store_dword v238, off, s[16:19], s33 sc1")
            out.append("s_mov_b64 exec, s[56:57]")
            out.append("K1_Q_NOXF:")
        for f in range(16):
            out.append(f"ds_read_b128 {vr(B+4*f,4)}, v233 offset:{f*1024}")
        out.append("s_waitcnt lgkmcnt(0)")
        W.drain('lgkm')
    def narrow(out, W, rowbase_bytes, slice_sreg):
        for x in ["v_lshrrev_b32 v232, 3, v240", "v_lshlrev_b32 v232, 9, v232", "v_and_b32 v233, 7, v240",
                  "v_lshl_add_u32 v232, v233, 4, v232", f"s_lshl_b32 s33, {slice_sreg}, 7", "s_lshl_b32 s34, s28, 15",
                  "s_add_u32 s33, s33, s34", f"s_add_u32 s33, s33, {rowbase_bytes}", "v_add_u32 v232, s33, v232",
                  "s_lshl_b32 s34, s28, 13", f"s_add_u32 s34, s34, {EX}"]: out.append(x)
        for i in range(8):
            out.append(f"s_add_u32 m0, s34, {i*1024}")
            out.append(f"s_mov_b32 s32, {i*4096}")
            out.append(f"buffer_load_dwordx4 v232, s[16:19], s32 offen lds")
            W.issue('vm', ('N', i))
    def narrow_read(out, W):
        n = W.need('vm', [('N', 7)])
        out.append(f"s_waitcnt vmcnt({n})")
        out.append("s_barrier")
        for x in ["v_bfe_u32 v232, v240, 2, 2", "v_lshl_add_u32 v232, v241, 3, v232", "v_lshlrev_b32 v232, 7, v232",
                  "v_bfe_u32 v233, v240, 4, 1", "v_lshl_add_u32 v232, v233, 5, v232", "v_and_b32 v233, 3, v240",
                  "v_lshl_add_u32 v232, v233, 3, v232", "s_lshl_b32 s33, s29, 6", f"s_add_u32 s33, s33, {EX}",
                  "v_add_u32 v232, s33, v232"]: out.append(x)
        for s in range(16):
            for u in range(2):
                out.append(f"ds_read_b64_tr_b16 {vr(B+4*s+2*u,2)}, v232 offset:{s*2048+u*512}")
            if s % 4 == 3: out.append("s_waitcnt lgkmcnt(0)")
        W.drain('lgkm')
    def finish(task_lines, label):
        if CT and label in ("K1_Q", "K1_UG"): return
        fixed = hazard.autofix(task_lines)
        e(f"{label}:")
        L.extend(fixed)
        e("s_branch K1_FIN")
    def cap(fn):
        buf = []; fn(buf.append); return buf
    std_later = lambda sn: {2: [(8, sn, 0), (9, sn, SLOT)], 3: [(10, sn, 2*SLOT), (11, sn, 3*SLOT)], 4: [(12, sn, 4*SLOT), (13, sn, 5*SLOT)], 5: [(14, sn, 6*SLOT), (15, sn, 7*SLOT)]}
    npre = o['npre']
    def azero(T):
        if FF and o.get('lean', True):
            for r in range(128): T.append(f"v_accvgpr_write_b32 a{128+r}, 0")


    if CT:
        EXB = EX + 16384
        Bq = 64
        ACCQ, ACCK, ACCG, ACCU = 64, 96, 128, 160
        VN4 = 208; VN42 = 212; XO = 216; XB8 = 244
        W = Waiter(); T = []; t = T.append
        for s_ in range(4): W.issue('vm', ('X', s_))
        dma_voff(T, True)
        T += cap(lambda e: (srd(e, 8, 's38', 's39', 0, 131072), srd(e, 12, 's40', 's41', 0, 131072), srd(e, 20, 's46', 's47', 0, 262144),
                            srd(e, 24, 's54', 's55', QF_OFF, 500*8192)))
        def tinfo(n):
            if n < 8: return (8, n*SLOT, DS)
            if n < 16: return (12, (n-8)*SLOT, DS)
            if n < 24: return (20, (n-16)*32768 + 512, DV)
            return (20, (n-24)*32768, DV)
        def tdma(n):
            sn, so, dv = tinfo(n)
            r = [(f"s_add_u32 m0, s31, {(n%8)*SLOT:#x}", False), (f"s_mov_b32 s32, {so:#x}", False)]
            for k in range(4): r.append((f"buffer_load_dwordx4 v{dv+k}, s[{sn}:{sn+3}], s32 offen offset:{k*1024} lds", True))
            return r
        def temit(n):
            for txt, vm in tdma(n):
                t(txt)
                if vm: W.issue('vm', ('T', n))
        temit(0); temit(1)
        t("v_and_b32 v234, 3, v242"); t("v_lshlrev_b32 v234, 2, v234"); t("v_bfe_u32 v235, v242, 2, 2"); t("v_or_b32 v234, v234, v235")
        t("v_lshlrev_b32 v236, 9, v242"); t(f"v_add_u32 v237, {EX}, v236")
        t("s_lshl_b32 s33, s30, 8"); t("v_add_u32 v238, s33, v237")
        t("s_lshl_b32 s33, s29, 3")
        for i in range(4):
            t(f"s_add_u32 s34, s33, {2*i}"); t("v_add_u32 v235, s34, v241"); t("v_xor_b32 v235, v235, v234"); t(f"v_lshl_add_u32 v{XO+i}, v235, 4, v238")
        t("s_lshl_b32 s33, s28, 14"); t("v_add_u32 v238, s33, v236")
        for jj in range(8):
            t(f"v_add_u32 v235, {2*jj}, v241"); t("v_xor_b32 v235, v235, v234")
            t(f"v_lshl_add_u32 v{KA+jj}, v235, 4, v238"); t(f"v_add_u32 v{KA2+jj}, 0x10000, v{KA+jj}")
        t("v_bfe_u32 v234, v240, 4, 1"); t("v_bfe_u32 v235, v240, 2, 2"); t("v_bfe_u32 v236, v240, 1, 1")
        t("v_lshl_add_u32 v236, v234, 1, v236"); t("v_and_b32 v237, 1, v240"); t("v_lshlrev_b32 v237, 3, v237")
        t("v_lshl_add_u32 v238, v241, 3, v235"); t("v_lshl_add_u32 v237, v238, 9, v237")
        t("s_lshl_b32 s33, s30, 8"); t("v_add_u32 v237, s33, v237")
        t("s_lshl_b32 s33, s29, 3")
        for aa in range(2):
            for u in range(2):
                t(f"v_lshl_add_u32 v238, v241, 1, {u}"); t("v_lshl_or_b32 v238, v235, 2, v238")
                t(f"s_add_u32 s34, s33, {4*aa}"); t("v_add_u32 v239, s34, v236"); t("v_xor_b32 v238, v238, v239")
                t(f"v_lshl_add_u32 v{VN4+aa*2+u}, v238, 4, v237")
                if u: t(f"v_add_u32 v{VN4+aa*2+u}, {4*512}, v{VN4+aa*2+u}")
                t(f"v_add_u32 v{VN42+aa*2+u}, 0x10000, v{VN4+aa*2+u}")
        nw = W.need('vm', [('X', 3)]); t(f"s_waitcnt vmcnt({nw})"); t("s_barrier")
        stamp(T, 0)
        for i in range(4): t(f"ds_read_b128 {vr(64+4*i,4)}, v{XO+i}")
        T += cap(lambda e: srd(e, 16, 's54', 's55', XA_OFF, 8000*512))
        body = []; b = body.append
        b("s_mov_b32 s34, 0x3f803f80")
        for k in range(4): b(f"v_mov_b32 v{232+k}, 0")
        for r in range(16):
            if r % 4 == 0: b(f"s_waitcnt lgkmcnt({3 - r//4})")
            b(f"v_dot2_f32_bf16 v{232+(r&1)}, v{64+r}, s34, v{232+(r&1)}")
            b(f"v_dot2_f32_bf16 v{234+(r&1)}, v{64+r}, v{64+r}, v{234+(r&1)}")
        b("s_nop 2")
        b("v_add_f32 v232, v232, v233"); b("v_add_f32 v234, v234, v235")
        b("v_mov_b32 v233, v232"); b("v_mov_b32 v235, v234"); b("s_nop 1")
        b("v_permlane32_swap_b32 v232, v233"); b("v_permlane32_swap_b32 v234, v235"); b("s_nop 1")
        b("v_add_f32 v232, v232, v233"); b("v_add_f32 v233, v234, v235")
        b("v_lshlrev_b32 v238, 3, v242"); b(f"v_add_u32 v238, {EXB}, v238")
        b("s_lshl_b32 s33, s28, 8"); b("v_add_u32 v239, s33, v238")
        b("ds_write_b64 v239, v[232:233]")
        b("s_waitcnt lgkmcnt(0)"); b("s_barrier")
        for k in range(4): b(f"ds_read_b64 v[{80+2*k}:{81+2*k}], v238 offset:{256*k}")
        b("s_waitcnt lgkmcnt(0)")
        b("v_add_f32 v80, v80, v82"); b("v_add_f32 v81, v81, v83"); b("v_add_f32 v84, v84, v86"); b("v_add_f32 v85, v85, v87")
        b("v_add_f32 v232, v80, v84"); b("v_add_f32 v234, v81, v85")
        b("v_mul_f32 v232, 0x3b800000, v232"); b("v_mul_f32 v234, 0x3b800000, v234")
        b("v_fma_f32 v234, -v232, v232, v234"); b("v_max_f32 v234, 0, v234"); b("v_add_f32 v234, 0x3727c5ac, v234")
        b("v_rsq_f32 v234, v234"); b("s_nop 0")
        b("v_mul_f32 v236, v232, v234"); b("v_sub_f32 v236, 0, v236")
        for r in range(16):
            tt_ = 244 + 2*(r % 4)
            b(f"v_lshlrev_b32 v{tt_}, 16, v{64+r}"); b(f"v_and_b32 v{tt_+1}, 0xffff0000, v{64+r}")
            b(f"v_pk_fma_f32 v[{tt_}:{tt_+1}], v[{tt_}:{tt_+1}], v[234:235], v[236:237] op_sel_hi:[1,0,0]")
            b(f"v_cvt_pk_bf16_f32 v{64+r}, v{tt_}, v{tt_+1}")
            if r % 4 == 3: b(f"ds_write_b128 v{XO+r//4}, {vr(64+r-3,4)}")
        b("s_lshl_b32 s33, s28, 14"); b(f"s_sub_u32 s33, {EX}, s33")
        for jj in range(8): b(f"v_add_u32 v{XB8+jj}, s33, v{KA+jj}")
        b("s_waitcnt lgkmcnt(0)"); b("s_barrier")
        for s_ in range(16): b(f"ds_read_b128 {vr(B+4*s_,4)}, v{XB8+(s_&7)} offset:{(s_>>3)*256}")
        b("v_lshlrev_b32 v232, 4, v240"); b(f"s_add_u32 s33, s31, {EX}"); b("v_add_u32 v232, s33, v232")
        for k in range(4): b(f"ds_read_b128 {vr(96+4*k,4)}, v232 offset:{k*1024}")
        flat = []
        for n in range(2, 6):
            tl_ = [(txt, vm, n) for txt, vm in tdma(n)]
            flat.append(tl_[:3])
            for x in tl_[3:]: flat.append([x])
        gap = max(1, (len(body) - 24) // (len(flat) + 1)); fi = 0
        for i, ins in enumerate(body):
            t(ins)
            if fi < len(flat) and i % gap == gap - 1:
                for txt, vm, n in flat[fi]:
                    t(txt)
                    if vm: W.issue('vm', ('T', n))
                fi += 1
        while fi < len(flat):
            for txt, vm, n in flat[fi]:
                t(txt)
                if vm: W.issue('vm', ('T', n))
            fi += 1
        t("s_waitcnt lgkmcnt(0)")
        t("s_lshl_b32 s56, s35, 14")
        for k in range(4):
            t(f"buffer_store_dwordx4 {vr(96+4*k,4)}, v{DS+k}, s[16:19], s56 offen offset:{k*1024}{ST}"); W.issue('vm', ('XS', k))
        stamp(T, 1)
        def flag_store(off_lines, lbl):
            t("s_cmp_eq_u32 s28, 0"); t(f"s_cbranch_scc0 {lbl}")
            for x in off_lines: t(x)
            t("v_mov_b32 v232, s3"); t("v_cmp_eq_u32 vcc, 0, v240"); t("s_and_saveexec_b64 s[56:57], vcc")
            t("buffer_store_dword v232, off, s[8:11], s34 sc1")
            t("s_mov_b64 exec, s[56:57]")
            t(f"{lbl}:")
        fillers = {}
        def step(sig, extra_need=None, after_bar=None):
            p, a = sig >> 2, sig & 3
            need = [('T', 2*sig), ('T', 2*sig+1)] + (extra_need or [])
            nv = W.need('vm', need)
            if nv is not None: t(f"s_waitcnt vmcnt({nv})")
            t("s_barrier")
            if after_bar: after_bar()
            dm = []
            for n in (2*(sig+3), 2*(sig+3)+1):
                if n < 32: dm += [(txt, vm, n) for txt, vm in tdma(n)]
            fl = list(fillers.get(sig, []))
            def some(k_dma, k_fill):
                c = 0
                while dm and c < k_dma:
                    txt, vm, n = dm.pop(0); t(txt)
                    if vm: W.issue('vm', ('T', n)); c += 1
                for _ in range(k_fill):
                    if fl: t(fl.pop(0))
            nf = -(-len(fl) // 8) if fl else 0
            if p != 1:
                acc = {0: ACCQ, 2: ACCG, 3: ACCU}[p]
                idx = 0; seq = []
                for tt in range(2):
                    slot = (2*sig + tt) % 8
                    for s_ in range(2):
                        for aa in range(2):
                            for u in range(2):
                                base = (VN4 if slot < 4 else VN42) + aa*2 + u
                                t(f"ds_read_b64_tr_b16 {ar(4*idx+2*u,2)}, v{base} offset:{(slot%4)*SLOT + 16*s_*512}")
                            seq.append((idx, tt, s_, aa)); idx += 1
                for (idx, tt, s_, aa) in seq:
                    if idx % 2 == 0: t(f"s_waitcnt lgkmcnt({14 - 2*idx - 2 if idx < 6 else 0})")
                    tau = 2*a + tt
                    c = vr(acc+16*aa,16) if (tau or s_) else '0'
                    t(f"v_mfma_f32_32x32x16_bf16 {vr(acc+16*aa,16)}, {ar(4*idx,4)}, {vr(B+4*(2*tau+s_),4)}, {c}")
                    some(1, nf)
            else:
                lbl = f"K1_CT_X{a}"
                t(f"s_cmp_eq_u32 s30, {a & 1}"); t(f"s_cbranch_scc0 {lbl}")
                k = a >> 1; base = KA if k == 0 else KA2
                for half in range(2):
                    for j in range(8): t(f"ds_read_b128 {ar(4*j,4)}, v{base+j} offset:{half*256}")
                    for j in range(8):
                        if j % 2 == 0: t(f"s_waitcnt lgkmcnt({6 - j})")
                        jj = 8*half + j
                        c = vr(ACCK+16*k,16) if jj else '0'
                        t(f"v_mfma_f32_32x32x16_bf16 {vr(ACCK+16*k,16)}, {ar(4*j,4)}, {ar(Bq+4*jj,4)}, {c}")
                t(f"{lbl}:")
            some(100, 1000)
        for sig in range(4): step(sig)
        stamp(T, 2)
        t("s_nop 15")
        t("v_lshlrev_b32 v232, 4, v240"); t(f"v_add_u32 v233, {EXB}, v232"); t("s_lshl_b32 s34, s28, 12"); t("v_add_u32 v232, s34, v233")
        for aa in range(2):
            d = 244 if aa == 0 else 96
            pack_swap(T, ACCQ+16*aa, d)
            for s_ in range(2): t(f"ds_write_b128 v232, {vr(d+4*s_,4)} offset:{(2*aa+s_)*1024}")
        t("s_waitcnt lgkmcnt(0)"); t("s_barrier")
        for f in range(16): t(f"ds_read_b128 {ar(Bq+4*f,4)}, v233 offset:{f*1024}")
        t("s_waitcnt lgkmcnt(0)")
        t("buffer_load_dword v243, off, s[4:7], 0 sc1"); W.issue('vm', 'TAG')
        for sig in range(4, 8): step(sig)
        stamp(T, 3)
        qf = []
        qf.append("s_nop 7"); qf.append("v_mov_b32 v236, 0x3db8aa3b")
        qf += ["s_lshl_b32 s33, s35, 14", "s_lshl_b32 s34, s28, 10", "s_add_u32 s33, s33, s34",
               "v_lshrrev_b32 v252, 4, v242", "v_lshlrev_b32 v252, 13, v252", "v_and_b32 v253, 15, v242", "v_lshl_add_u32 v253, v241, 4, v253",
               "v_lshl_add_u32 v252, v253, 4, v252", "v_add_u32 v252, s33, v252"]
        qst = []
        for k in range(2):
            d = 244 if k == 0 else 64
            pack_swap(qf, ACCK+16*k, d, scale="v[236:237]")
            for s_ in range(2):
                qf.append(f"buffer_store_dwordx4 {vr(d+4*s_,4)}, v252, s[24:27], 0 offen offset:{k*4096 + s_*512 - (4096 if k else 0)}{ST}" if k == 0 else "@K1")
        out2 = []
        cnt = 0
        for x in qf:
            if x == "@K1":
                if cnt == 0: out2.append("v_add_u32 v253, 4096, v252")
                out2.append(f"buffer_store_dwordx4 {vr(64+4*cnt,4)}, v253, s[24:27], 0 offen offset:{cnt*512}{ST}"); cnt += 1
            else: out2.append(x)
        qf = out2
        for x in qf:
            t(x)
            if x.startswith('buffer_store'): W.issue('vm', ('QS', len(W.q['vm'])))
        W.issue('vm', 'QEND'); W.q['vm'].pop()
        qtags = [x for x in W.q['vm'] if isinstance(x, tuple) and x[0] in ('QS', 'XS')]
        step(8)
        step(9)
        def get_tag():
            t("K1_CT_TAGP:")
            t("buffer_load_dword v232, off, s[4:7], 0 sc1"); t("s_waitcnt vmcnt(0)")
            t("v_readfirstlane_b32 s3, v232"); t("s_nop 3"); t("s_cmp_lg_u32 s3, 0"); t("s_cbranch_scc1 K1_CT_TAGD"); t("s_sleep 1"); t("s_branch K1_CT_TAGP")
            t("K1_CT_TAGD:")
        def qflag():
            T.extend(cap(lambda e: srd(e, 8, 's54', 's55', FL_OFF, FL_SIZE)))
            flag_store([f"s_lshl_b32 s34, s35, 7", f"s_add_u32 s34, s34, {FLQ}"], "K1_CT_NOQF")
        step(10, extra_need=qtags + ['TAG'], after_bar=None)
        t("v_readfirstlane_b32 s3, v243")
        t("s_nop 3")
        pend_qflag = True
        t("s_cmp_eq_u32 s28, 0"); t("s_cbranch_scc0 K1_CT_NOQF2")
        t("s_cmp_lg_u32 s3, 0"); t("s_cbranch_scc0 K1_CT_NOQF2")
        T.extend(cap(lambda e: srd(e, 8, 's54', 's55', FL_OFF, FL_SIZE)))
        t(f"s_lshl_b32 s34, s35, 7"); t(f"s_add_u32 s34, s34, {FLQ}")
        t("v_mov_b32 v232, s3"); t("v_cmp_eq_u32 vcc, 0, v240"); t("s_and_saveexec_b64 s[56:57], vcc")
        t("buffer_store_dword v232, off, s[8:11], s34 sc1")
        t("s_mov_b64 exec, s[56:57]")
        t("K1_CT_NOQF2:")
        step(11)
        stamp(T, 4)
        k0 = -2.0*1.4426950408889634*0.7978845608028654
        t("s_nop 7")
        t(f"v_mov_b32 v232, {fb(k0)}"); t(f"v_mov_b32 v234, {fb(k0*0.044715)}"); t("v_mov_b32 v236, 1.0")
        for k in range(4): t(f"v_mov_b32 v{252+k}, 0")
        def gelu(r):
            tt_ = 244 + 2*((r//2) % 4)
            X = f"v[{r}:{r+1}]"; Tt = f"v[{tt_}:{tt_+1}]"
            return [f"v_pk_mul_f32 {Tt}, {X}, {X}", f"v_pk_fma_f32 {Tt}, {Tt}, v[234:235], v[232:233] op_sel_hi:[1,0,0]", f"v_pk_mul_f32 {Tt}, {Tt}, {X}",
                    f"v_exp_f32 v{tt_}, v{tt_}", f"v_exp_f32 v{tt_+1}, v{tt_+1}", f"v_pk_add_f32 {Tt}, {Tt}, v[236:237] op_sel_hi:[1,0]",
                    f"v_rcp_f32 v{tt_}, v{tt_}", f"v_rcp_f32 v{tt_+1}, v{tt_+1}", f"v_pk_mul_f32 {X}, {X}, {Tt}",
                    f"v_pk_add_f32 v[252:253], v[252:253], {X}", f"v_pk_fma_f32 v[254:255], {X}, {X}, v[254:255]"]
        for q in range(4):
            cols = [gelu(ACCG + 8*q + 2*k) for k in range(4)]
            fillers[12+q] = [cols[k][i] for i in range(11) for k in range(4)]
        for sig in range(12, 16): step(sig)
        stamp(T, 5)
        t("v_add_f32 v8, v252, v253"); t("v_add_f32 v10, v254, v255"); t("v_mov_b32 v9, v8"); t("v_mov_b32 v11, v10"); t("s_nop 1")
        t("v_permlane32_swap_b32 v8, v9"); t("v_permlane32_swap_b32 v10, v11"); t("s_nop 1")
        t("v_add_f32 v8, v8, v9"); t("v_add_f32 v9, v10, v11")
        t("v_lshlrev_b32 v12, 3, v242"); t("s_lshl_b32 s33, s28, 8"); t("v_add_u32 v13, s33, v12")
        t("s_barrier")
        t("ds_write_b64 v13, v[8:9]")
        for aa in range(2):
            d = 244 if aa == 0 else 16
            pack_swap(T, ACCU+16*aa, d)
            for s_ in range(2): t(f"ds_write_b128 v{XO+2*aa+s_}, {vr(d+4*s_,4)} offset:16384")
        t("s_waitcnt lgkmcnt(0)"); t("s_barrier")
        for k in range(4): t(f"ds_read_b64 v[{24+2*k}:{25+2*k}], v12 offset:{256*k}")
        t("v_lshlrev_b32 v232, 4, v240"); t(f"s_add_u32 s33, s31, {EX}"); t("v_add_u32 v232, s33, v232")
        for k in range(4): t(f"ds_read_b128 {vr(96+4*k,4)}, v232 offset:{16384 + k*1024}")
        T.extend(cap(lambda e: (srd(e, 12, 's54', 's55', U_OFF, 8000*512), srd(e, 20, 's54', 's55', G_OFF, 8000*512))))
        t("s_lshl_b32 s56, s35, 14")
        t("s_waitcnt lgkmcnt(4)")
        t("v_add_f32 v24, v24, v26"); t("v_add_f32 v25, v25, v27"); t("v_add_f32 v28, v28, v30"); t("v_add_f32 v29, v29, v31")
        t("v_add_f32 v8, v24, v28"); t("v_add_f32 v9, v25, v29")
        t("v_mul_f32 v8, 0x3b800000, v8"); t("v_mul_f32 v9, 0x3b800000, v9")
        t("v_fma_f32 v9, -v8, v8, v9"); t("v_max_f32 v9, 0, v9"); t("v_add_f32 v9, 0x3727c5ac, v9")
        t("v_rsq_f32 v10, v9"); t("s_nop 0"); t("v_mul_f32 v12, v8, v10"); t("v_sub_f32 v12, 0, v12")
        t("s_waitcnt lgkmcnt(0)")
        for k in range(4): t(f"buffer_store_dwordx4 {vr(96+4*k,4)}, v{DS+k}, s[12:15], s56 offen offset:{k*1024}{ST}")
        for aa in range(2):
            for k in range(8):
                r = ACCG + 16*aa + 2*k
                t(f"v_pk_fma_f32 v[{r}:{r+1}], v[{r}:{r+1}], v[10:11], v[12:13] op_sel_hi:[1,0,0]")
            d = 32 + 8*aa
            pack_swap(T, ACCG+16*aa, d)
            for s_ in range(2): t(f"ds_write_b128 v{XO+2*aa+s_}, {vr(d+4*s_,4)}")
        t("s_waitcnt lgkmcnt(0)"); t("s_barrier")
        for k in range(4): t(f"ds_read_b128 {vr(112+4*k,4)}, v232 offset:{k*1024}")
        for k in range(4):
            t(f"s_waitcnt lgkmcnt({3-k})")
            t(f"buffer_store_dwordx4 {vr(112+4*k,4)}, v{DS+k}, s[20:23], s56 offen offset:{k*1024}{ST}")
        stamp(T, 6)
        finish(T, "K1_CT")
    W = Waiter(); T = []
    for s in range(8): W.issue('vm', ('X', s))
    dma_voff(T, False)
    T += cap(lambda e: (srd(e, 8, 's38', 's39', 0, 131072), srd(e, 12, 's40', 's41', 0, 131072),
                        srd(e, 20, 's54', 's55', XA_OFF, 8000*512), srd(e, 24, 's54', 's55', QF_OFF, 500*8192)))
    emit = [(n, 8, n*SLOT) for n in range(8)]
    for (n, sn, so) in emit[:npre]: emit_tile(T, W, n, sn, so)
    xb_setup(T); vn_setup(T)
    azero(T)
    ln(T, W, emit[npre:o['nln']])
    if FF: T.append("buffer_load_dword v243, off, s[4:7], 0 sc1"); W.issue('vm', 'TAG')
    stamp(T, 1)
    ka_setup(T)
    stamp(T, 2)
    T.append("v_lshlrev_b32 v232, 4, v240"); T.append(f"s_add_u32 s33, s31, {EX}"); T.append("v_add_u32 v232, s33, v232")
    for half in range(2):
        for k in range(4):
            T.append(f"ds_read_b128 {vr(ACC[1]+(half*4+k)*4,4)}, v232 offset:{half*SLOT + k*1024}")
    T.append("s_waitcnt lgkmcnt(0)")
    T.append("s_lshl_b32 s34, s35, 15"); T.append("s_add_u32 s56, s34, 16384")
    xfill = []
    for half in range(2):
        for k in range(4):
            xfill.append((f"buffer_store_dwordx4 {vr(ACC[1]+(half*4+k)*4,4)}, v{DS+k}, s[20:23], {'s56' if half else 's34'} offen offset:{k*1024}{ST}", ('XS', half, k)))
    later = std_later(12)
    rest = emit[o['nln']:]
    if rest:
        later[0] = rest[:2]; later[1] = rest[2:4]
        if later[1] == [] : del later[1]
    tl0 = phase(W, 0, 'Y', later)
    for i, (txt, tag) in enumerate(xfill): tl0.add(1 + 2*i, 'vm', txt, tag=tag, prio=7)
    T += tl0.linearize()
    stamp(T, 3)
    exchange(T, W, ACC[0], 'Y', xaflag=FF and o.get('xaflag', True))
    stamp(T, 4)
    T.append("v_mov_b32 v236, 0x3db8aa3b")
    T.append("s_lshl_b32 s33, s35, 2"); T.append("s_lshl_b32 s34, s29, 1"); T.append("s_add_u32 s33, s33, s34"); T.append("s_lshl_b32 s33, s33, 13")
    T.append("s_lshl_b32 s34, s30, 10"); T.append("s_add_u32 s33, s33, s34")
    T.append("v_lshrrev_b32 v232, 4, v242"); T.append("v_lshlrev_b32 v232, 13, v232")
    T.append("v_and_b32 v233, 15, v242"); T.append("v_lshl_add_u32 v233, v241, 4, v233")
    T.append("v_lshl_add_u32 v232, v233, 4, v232"); T.append("v_add_u32 v232, s33, v232")
    for a in range(1, 4): T.append(f"v_add_u32 v{232+a}, {a*2048}, v232")
    def qepi(a):
        ls = []
        d = ACC[0] + 8*a
        pack_swap(ls, ACC[1]+16*a, d, scale="v[236:237]")
        st = [f"buffer_store_dwordx4 {vr(d+4*s,4)}, v{232+a}, s[24:27], 0 offen offset:{s*512}{ST}" for s in range(2)]
        return ls, st
    tl1 = phase(W, 1, 'X', later)
    if o.get('qprog', True):
        for a in range(3):
            ls, st = qepi(a)
            t0 = 16*(a+1) + 4
            for i, ins in enumerate(ls): tl1.add(t0 + i*0.4, 'txt', ins, prio=4)
            for i, ins in enumerate(st): tl1.add(t0 + len(ls)*0.4 + 0.5 + i, 'vm', ins, tag=('QS', a, i), prio=7)
    T += tl1.linearize()
    stamp(T, 5)
    T.append("s_nop 15")
    for a in (range(3, 4) if o.get('qprog', True) else range(4)):
        ls, st = qepi(a)
        T += ls + st
    finish(T, "K1_Q")

    W = Waiter(); T = []
    for s in range(8): W.issue('vm', ('X', s))
    dma_voff(T, True)
    T += cap(lambda e: (srd(e, 8, 's46', 's47', 0, 262144),
                        srd(e, 20, 's54', 's55', U_OFF, 8000*512), srd(e, 24, 's54', 's55', G_OFF, 8000*512)))
    emit = [(n, 8, n*32768 + 512) for n in range(8)]
    for (n, sn, so) in emit[:npre]: emit_tile(T, W, n, sn, so)
    xb_setup(T); vn_setup(T)
    azero(T)
    ln(T, W, emit[npre:o['nln']])
    if FF: T.append("buffer_load_dword v243, off, s[4:7], 0 sc1"); W.issue('vm', 'TAG')
    stamp(T, 2)
    gl = lambda n: (n, 8, (n-8)*32768)
    later = {2: [gl(8), gl(9)], 3: [gl(10), gl(11)], 4: [gl(12), gl(13)], 5: [gl(14), gl(15)]}
    rest = emit[o['nln']:]
    if rest:
        later[0] = rest[:2]; later[1] = rest[2:4]
    T += phase(W, 0, 'Y', later).linearize()
    stamp(T, 3)
    k0 = -2.0*1.4426950408889634*0.7978845608028654
    T.append(f"v_mov_b32 v232, {fb(k0)}"); T.append(f"v_mov_b32 v234, {fb(k0*0.044715)}"); T.append("v_mov_b32 v236, 1.0")
    for k in range(4): T.append(f"v_mov_b32 v{252+k}, 0")
    def gelu(r):
        t = 244 + 2*((r//2) % 4)
        X = f"v[{r}:{r+1}]"; Tt = f"v[{t}:{t+1}]"
        return [f"v_pk_mul_f32 {Tt}, {X}, {X}",
                f"v_pk_fma_f32 {Tt}, {Tt}, v[234:235], v[232:233] op_sel_hi:[1,0,0]",
                f"v_pk_mul_f32 {Tt}, {Tt}, {X}",
                f"v_exp_f32 v{t}, v{t}", f"v_exp_f32 v{t+1}, v{t+1}",
                f"v_pk_add_f32 {Tt}, {Tt}, v[236:237] op_sel_hi:[1,0]",
                f"v_rcp_f32 v{t}, v{t}", f"v_rcp_f32 v{t+1}, v{t+1}",
                f"v_pk_mul_f32 {X}, {X}, {Tt}",
                f"v_pk_add_f32 v[252:253], v[252:253], {X}",
                f"v_pk_fma_f32 v[254:255], {X}, {X}, v[254:255]"]
    fill = []
    g0 = ACC[0]
    for b in range(g0, g0+64, 8):
        cols = [gelu(b+2*k) for k in range(4)]
        for i in range(11):
            for k in range(4): fill.append(cols[k][i])
    T += phase(W, 1, 'Y', later, fill=fill, f0=4).linearize()
    stamp(T, 5)
    T.append("v_add_f32 v8, v252, v253"); T.append("v_add_f32 v10, v254, v255")
    T.append("v_mov_b32 v9, v8"); T.append("v_mov_b32 v11, v10"); T.append("s_nop 1")
    T.append("v_permlane32_swap_b32 v8, v9"); T.append("v_permlane32_swap_b32 v10, v11"); T.append("s_nop 1")
    T.append("v_add_f32 v8, v8, v9"); T.append("v_add_f32 v9, v10, v11")
    T.append("s_lshl_b32 s33, s29, 1"); T.append("s_add_u32 s33, s33, s30"); T.append("s_lshl_b32 s33, s33, 9"); T.append("s_add_u32 s33, s33, 32768")
    T.append("v_lshlrev_b32 v12, 3, v240"); T.append("v_add_u32 v13, s33, v12")
    T.append("s_xor_b32 s33, s33, 512"); T.append("v_add_u32 v14, s33, v12")
    T.append("ds_write_b64 v13, v[8:9]")
    for a in range(4):
        d = 244 if a % 2 == 0 else 16
        pack_swap(T, ACC[1]+16*a, d)
        for s in range(2):
            T.append(f"ds_write_b128 v{XB+2*a+s}, {vr(d+4*s,4)}")
    T.append("s_waitcnt lgkmcnt(0)"); T.append("s_barrier")
    T.append("ds_read_b64 v[10:11], v14")
    T.append("v_lshlrev_b32 v15, 4, v240"); T.append("v_add_u32 v15, s31, v15"); T.append(f"v_add_u32 v232, {EX}, v15")
    for half in range(2):
        for k in range(4):
            T.append(f"ds_read_b128 {vr(ACC[1]+(half*4+k)*4,4)}, v232 offset:{half*SLOT + k*1024}")
    for jj in range(8): T.append(f"v_subrev_u32 v{XB+jj}, {EX}, v{XB+jj}")
    T.append("s_waitcnt lgkmcnt(8)")
    T.append("v_add_f32 v8, v8, v10"); T.append("v_add_f32 v9, v9, v11")
    T.append("v_mul_f32 v8, 0x3b800000, v8"); T.append("v_mul_f32 v9, 0x3b800000, v9")
    T.append("v_fma_f32 v9, -v8, v8, v9"); T.append("v_max_f32 v9, 0, v9"); T.append("v_add_f32 v9, 0x3727c5ac, v9")
    T.append("v_rsq_f32 v10, v9"); T.append("s_nop 0")
    T.append("v_mul_f32 v12, v8, v10"); T.append("v_sub_f32 v12, 0, v12")
    T.append("s_lshl_b32 s32, s35, 15"); T.append("s_add_u32 s56, s32, 16384")
    T.append("s_waitcnt lgkmcnt(0)")
    ust = [f"buffer_store_dwordx4 {vr(ACC[1]+(half*4+k)*4,4)}, v{DS+k}, s[20:23], {'s56' if half else 's32'} offen offset:{k*1024}{ST}" for half in range(2) for k in range(4)]
    for a in range(4):
        for k in range(8):
            r = g0 + 16*a + 2*k
            T.append(f"v_pk_fma_f32 v[{r}:{r+1}], v[{r}:{r+1}], v[10:11], v[12:13] op_sel_hi:[1,0,0]")
        T.append(ust.pop(0))
        pack_swap(T, g0+16*a, 16+8*a)
        for s in range(2):
            T.append(f"ds_write_b128 v{XB+2*a+s}, {vr(16+8*a+4*s,4)}")
        T.append(ust.pop(0))
    stamp(T, 6)
    T.append("s_waitcnt lgkmcnt(0)"); T.append("s_barrier")
    for half in range(2):
        for k in range(4):
            T.append(f"ds_read_b128 {vr(ACC[0]+(half*4+k)*4,4)}, v15 offset:{half*SLOT + k*1024}")
    DEF = FF and o.get('defer', True)
    if DEF:
        T.append("s_mov_b32 s88, s32"); T.append("s_mov_b32 s89, s56"); T.append("s_mov_b32 s98, 1")
    else:
        for half in range(2):
            for k in range(4):
                T.append(f"s_waitcnt lgkmcnt({7 - (half*4+k)})")
                T.append(f"buffer_store_dwordx4 {vr(ACC[0]+(half*4+k)*4,4)}, v{DS+k}, s[24:27], {'s56' if half else 's32'} offen offset:{k*1024}{ST}")
    stamp(T, 7)
    finish(T, "K1_UG")

    def wf_store(T, acc, which, slice_sreg):
        T.append(f"s_lshl_b32 s33, {slice_sreg}, 2"); T.append("s_lshl_b32 s34, s29, 1"); T.append("s_add_u32 s33, s33, s34"); T.append("s_lshl_b32 s33, s33, 14")
        T.append("s_lshl_b32 s34, s30, 10"); T.append("s_add_u32 s33, s33, s34")
        if which == 2: T.append("s_add_u32 s33, s33, 8192")
        T.append("v_lshrrev_b32 v232, 4, v242"); T.append("v_lshlrev_b32 v232, 14, v232")
        T.append("v_and_b32 v233, 15, v242"); T.append("v_lshl_add_u32 v233, v241, 4, v233")
        T.append("v_lshl_add_u32 v232, v233, 4, v232"); T.append("v_add_u32 v232, s33, v232")
        for a in range(4):
            d = 244; src = acc + 16*a
            if which == 1:
                for k, r in enumerate((0, 2, 8, 10, 4, 6, 12, 14)):
                    T.append(f"v_cvt_pk_bf16_f32 v{d+k}, v{src+r}, v{src+r+1}")
            else:
                pack_swap(T, src, d)
            T.append(f"s_mov_b32 s33, {a*2048}")
            for s in range(2):
                T.append(f"buffer_store_dwordx4 {vr(d+4*s,4)}, v232, s[24:27], s33 offen offset:{s*512}{ST}")
            T.append("s_nop 1")
    W = Waiter(); T = []
    dma_voff(T, False)
    T.append("s_sub_u32 s35, s2, 250")
    T += cap(lambda e: (srd(e, 16, 's52', 's53', 0, 262144), srd(e, 8, 's44', 's45', 0, 131072), srd(e, 12, 's42', 's43', 0, 131072),
                        srd(e, 24, 's54', 's55', WF_OFF, 262144)))
    narrow(T, W, 0, 's35')
    for n in range(3): emit_tile(T, W, n, 8, n*SLOT)
    ka_setup(T)
    azero(T)
    narrow_read(T, W)
    for n in range(3, 8): emit_tile(T, W, n, 8, n*SLOT)
    if FF: T.append("buffer_load_dword v243, off, s[4:7], 0 sc1"); W.issue('vm', 'TAG')
    later = std_later(12)
    T += phase(W, 0, 'X', later).linearize()
    T.append("s_barrier")
    exchange(T, W, ACC[0], 'X')
    T += phase(W, 1, 'X', later).linearize()
    T.append("s_nop 15")
    wf_store(T, ACC[1], 1, 's35')
    finish(T, "K1_W1")

    W = Waiter(); T = []
    if not FUSED: T += cap(lambda e: srd(e, 20, 's54', 's55', FL_OFF, 8192))
    if not FUSED:
        T.append("v_lshlrev_b32 v232, 5, v0")
        for k in range(4): T.append(f"v_mov_b32 v{236+k}, 0")
        T.append("buffer_store_dwordx4 v[236:239], v232, s[20:23], 0 offen sc1")
        T.append("buffer_store_dwordx4 v[236:239], v232, s[20:23], 0 offen offset:16 sc1")
        W.issue('vm', 'Z0'); W.issue('vm', 'Z1')
    dma_voff(T, False)
    T.append("s_sub_u32 s35, s2, 254"); T.append("s_lshl_b32 s35, s35, 1")
    T += cap(lambda e: (srd(e, 16, 's52', 's53', 0, 262144), srd(e, 8, 's50', 's51', 0, 131072),
                        srd(e, 24, 's54', 's55', WF_OFF, 262144)))
    narrow(T, W, 131072, 's35')
    for n in range(3): emit_tile(T, W, n, 8, n*SLOT)
    ka_setup(T)
    azero(T)
    narrow_read(T, W)
    for n in range(3, 8): emit_tile(T, W, n, 8, n*SLOT)
    if FF: T.append("buffer_load_dword v243, off, s[4:7], 0 sc1"); W.issue('vm', 'TAG')
    T.append("s_barrier")
    T.append("s_add_u32 s56, s35, 1")
    narrow(T, W, 131072, 's56')
    later = std_later(8)
    T += phase(W, 0, 'X', later).linearize()
    T.append("s_nop 15")
    wf_store(T, ACC[0], 2, 's35')
    for i in range(8): W.issue('vm', ('WS', i))
    narrow_read(T, W)
    T += phase(W, 1, 'X', later).linearize()
    T.append("s_nop 15")
    wf_store(T, ACC[1], 2, 's56')
    finish(T, "K1_W2")

    e("K1_FIN:")
    if FUSED:
        if o['stamp']:
            e("s_memtime s[64:65]"); e("s_memrealtime s[66:67]"); e("s_waitcnt lgkmcnt(0)")
            e("s_cmp_eq_u32 s28, 0"); e("s_cbranch_scc0 K1_NOST")
            e("s_add_u32 s68, s54, 0x8100000"); e("s_addc_u32 s69, s55, 0"); e("s_mov_b32 s70, 0x100000"); e("s_mov_b32 s71, 0x20000")
            for k, r in enumerate([60, 64, 62, 66]): e(f"v_mov_b32 v{232+k}, s{r}")
            e("s_lshl_b32 s33, s2, 4"); e("v_mov_b32 v236, s33")
            e("buffer_store_dwordx4 v[232:235], v236, s[68:71], 0 offen")
            for k in range(8): e(f"v_mov_b32 v{244+k}, s{72+2*k}")
            e("s_lshl_b32 s33, s2, 5"); e("s_add_u32 s33, s33, 0x10000"); e("v_mov_b32 v236, s33")
            e("buffer_store_dwordx4 v[244:247], v236, s[68:71], 0 offen")
            e("buffer_store_dwordx4 v[248:251], v236, s[68:71], 0 offen offset:16")
            e("K1_NOST:")
        if FF:
            e("s_lshl_b32 s33, s2, 7")
            fa, fb_ = (FLU, FLQ) if o.get('ugfirst', True) else (FLQ, FLU)
            e(f"s_add_u32 s67, s33, {fa}")
            e(f"s_add_u32 s56, s33, {fb_ - 125*128}"); e("s_cmp_ge_u32 s2, 125"); e("s_cselect_b32 s67, s56, s67")
            e(f"s_add_u32 s56, s33, {FLW - 250*128}"); e("s_cmp_ge_u32 s2, 250"); e("s_cselect_b32 s67, s56, s67")
            for k in range(4): e(f"s_mov_b32 s{92+k}, s{4+k}")
            for x in ["s_mov_b32 s4, s54", "s_mov_b32 s5, s55", "s_mov_b32 s32, s48", "s_mov_b32 s33, s49", "s_mov_b32 s40, s100", "s_mov_b32 s41, s101", "s_mov_b32 s48, s28", "s_mov_b32 s101, 0"]: e(x)
            return L, [], []
        e("K1_TAGP:")
        e("buffer_load_dword v232, off, s[4:7], 0 sc1")
        e("s_waitcnt vmcnt(0) lgkmcnt(0)")
        e("v_readfirstlane_b32 s3, v232")
        e("s_nop 3")
        e("s_cmp_lg_u32 s3, 0"); e("s_cbranch_scc1 K1_TAGD"); e("s_sleep 1")
        e("s_add_u32 s101, s101, 1"); e("s_cmp_lt_u32 s101, 0x400000"); e("s_cbranch_scc1 K1_TAGP")
        e("K1_TAGD:")
        e("s_barrier")
        e("s_cmp_eq_u32 s28, 0"); e("s_cbranch_scc0 K1_NOFL")
        e("s_lshl_b32 s33, s2, 7")
        fa, fb_ = (FLU, FLQ) if o.get('ugfirst', True) else (FLQ, FLU)
        if CT:
            e(f"s_add_u32 s34, s33, {FLU}")
        else:
            e(f"s_add_u32 s34, s33, {fa}")
            e(f"s_add_u32 s56, s33, {fb_ - 125*128}"); e("s_cmp_ge_u32 s2, 125"); e("s_cselect_b32 s34, s56, s34")
        e(f"s_add_u32 s56, s33, {FLW - 250*128}"); e("s_cmp_ge_u32 s2, 250"); e("s_cselect_b32 s34, s56, s34")
        srd(e, 8, 's54', 's55', FL_OFF, FL_SIZE)
        e("v_mov_b32 v232, s3")
        e("v_cmp_eq_u32 vcc, 0, v240"); e("s_and_saveexec_b64 s[56:57], vcc")
        e("buffer_store_dword v232, off, s[8:11], s34 sc1")
        if CT:
            e(f"s_add_u32 s34, s33, {FLQ}"); e("s_cmp_lt_u32 s2, 250"); e("s_cbranch_scc0 K1_NOFL2")
            e("buffer_store_dword v232, off, s[8:11], s34 sc1")
            e("K1_NOFL2:")
        e("s_mov_b64 exec, s[56:57]")
        e("K1_NOFL:")
        e("s_mov_b32 s48, s28")
        return L, [], []
    if o['stamp']:
        e("s_waitcnt vmcnt(0)")
        e("s_memtime s[64:65]"); e("s_memrealtime s[66:67]")
        e("s_waitcnt lgkmcnt(0)")
        e("s_cmp_eq_u32 s28, 0"); e("s_cbranch_scc0 K1_END")
        e("s_add_u32 s68, s54, 0x8100000"); e("s_addc_u32 s69, s55, 0"); e("s_mov_b32 s70, 0x100000"); e("s_mov_b32 s71, 0x20000")
        for k, r in enumerate([60, 64, 62, 66]): e(f"v_mov_b32 v{232+k}, s{r}")
        e("s_lshl_b32 s33, s2, 4"); e("v_mov_b32 v236, s33")
        e("buffer_store_dwordx4 v[232:235], v236, s[68:71], 0 offen")
        for k in range(8): e(f"v_mov_b32 v{244+k}, s{72+2*k}")
        e("s_lshl_b32 s33, s2, 5"); e("s_add_u32 s33, s33, 0x10000"); e("v_mov_b32 v236, s33")
        e("buffer_store_dwordx4 v[244:247], v236, s[68:71], 0 offen")
        e("buffer_store_dwordx4 v[248:251], v236, s[68:71], 0 offen offset:16")
    e("K1_END:")
    e("s_endpgm")
    return L, kernel_desc(name, 288, 256), []
```

```python
from gen_common import *
import hazard, struct
SLOT = 16384
M16 = "v_mfma_f32_16x16x32_bf16"
fb = lambda x: hex(struct.unpack('<I', struct.pack('<f', x))[0])
EXT = 131072
MX = EXT
OWN = EXT + 4096
OWNML = EXT + 20480
ACT = 0

def gen_k2f(opt=None):
    o = dict(DF=3, stamp=False, bslot=8, dma0=10, dmastep=4, e0=37, e1=93, estep=4, cvtd=1, addd=1, fused=True)
    if opt: o.update(opt)
    name = 'attn_kernel'
    L = []; e = L.append
    O = 0; S = 128; P = [160, 176]; NEGM = 192; RING = 208; KA = 232; VA = 236; DV = 244; LS = 248; MREF = 252
    aQ = 0; aO = 128
    def Oreg(dt, qt): return vr(O + (dt*2+qt)*4, 4) if qt < 2 else ar(aO + (dt*2+qt-2)*4, 4)
    def Sreg(kt, qt): return S + (kt*4+qt)*4
    FUSED = o.get('fusedk')
    CS = ' sc1' if (FUSED and o.get('csc1', True)) else ''
    if not FUSED:
        L += kernel_header(name)
        e("s_cmp_ge_u32 s2, 256")
        e("s_cbranch_scc1 K2_END")
    FF = FUSED and o.get('fastfin')
    LEAN = FF and o.get('lean', True)
    if not FF:
        e("s_load_dwordx2 s[4:5], s[0:1], 88")
        e("s_load_dwordx2 s[6:7], s[0:1], 80")
        e("s_load_dwordx2 s[36:37], s[0:1], 0")
        e("s_load_dwordx2 s[32:33], s[0:1], 48")
        e("s_load_dwordx2 s[40:41], s[0:1], 72")
    if o['stamp']:
        e("s_memtime s[72:73]"); e("s_memrealtime s[74:75]")
    T = []; t = T.append
    if FUSED:
        t("v_mbcnt_lo_u32_b32 v131, -1, 0"); t("v_mbcnt_hi_u32_b32 v131, -1, v131")
    else:
        t("v_lshrrev_b32 v130, 6, v0")
        t("v_and_b32 v131, 63, v0")
        t("v_readfirstlane_b32 s48, v130")
    t("s_and_b32 s60, s2, 7")
    t("s_lshr_b32 s61, s2, 3")
    t("s_lshr_b32 s51, s60, 2")
    t("s_and_b32 s53, s61, 3")
    t("s_lshr_b32 s61, s61, 2")
    t("s_and_b32 s52, s60, 3")
    t("s_lshl_b32 s52, s52, 3")
    t("s_add_u32 s52, s52, s61")
    t("s_and_b32 s49, s48, 1")
    t("s_lshr_b32 s50, s48, 1")
    t("s_lshl_b32 s54, s53, 5")
    t("s_lshl_b32 s60, s50, 4")
    t("s_add_u32 s54, s54, s60")
    t("s_max_u32 s60, s53, 1")
    t("s_sub_u32 s60, s60, 1")
    t("s_sub_u32 s54, s54, s60")
    t("s_min_u32 s60, s53, 1")
    t("s_and_b32 s60, s60, s50")
    t("s_sub_u32 s55, 16, s60")
    t("s_lshl_b32 s55, s55, 14")
    t("s_cmp_eq_u32 s60, 1")
    t("s_cselect_b32 s59, 3, 0xffff")
    t("s_lshl_b32 s54, s54, 14")
    t("s_mul_i32 s60, s51, 2048000")
    t("s_add_u32 s54, s54, s60")
    def dv_setup(t):
        t("v_and_b32 v132, 15, v131")
        t("v_lshrrev_b32 v133, 4, v131")
        t("v_lshrrev_b32 v134, 5, v131")
        t("v_and_b32 v135, 31, v131")
        t("s_lshl_b32 s60, s49, 13")
        for k in range(4):
            t(f"v_add_u32 v136, {2*k}, v134")
            t("v_lshlrev_b32 v136, 1, v136")
            t("v_xor_b32 v136, v135, v136")
            t("v_lshlrev_b32 v136, 4, v136")
            t("v_lshl_add_u32 v136, v134, 9, v136")
            t(f"v_add_u32 v{DV+k}, s60, v136")
    dv_setup(t)
    t("s_waitcnt lgkmcnt(0)")
    def S_(fn):
        buf = []; fn(buf.append); T.extend(buf)
    S_(lambda e: srd(e, 8, 's4', 's5', 's54', 's55'))
    S_(lambda e: srd(e, 12, 's4', 's5', QF_OFF, 500*8192))
    t("s_getreg_b32 s63, hwreg(HW_REG_XCC_ID, 0, 3)")
    t("s_or_b32 s63, s63, 8")
    S_(lambda e: srd(e, 44, 's4', 's5', FL_OFF, FL_SIZE if FUSED else 8192))
    t("s_lshl_b32 s65, s51, 5"); t("s_add_u32 s65, s65, s52")
    xcc0 = len(T)
    t("s_cmp_eq_u32 s48, 0"); t("s_cbranch_scc0 K2_NOXCC")
    t("s_lshl_b32 s60, s65, 7"); t("s_lshl_b32 s61, s53, 2"); t("s_add_u32 s60, s60, s61")
    if FUSED:
        t("s_add_u32 s60, s60, 16"); t("s_xor_b32 s61, s63, s3"); t("v_mov_b32 v137, s61")
    else:
        t("v_mov_b32 v137, s63")
    t("v_cmp_eq_u32 vcc, 0, v131"); t("s_and_saveexec_b64 s[70:71], vcc")
    t("buffer_store_dword v137, off, s[44:47], s60 sc1")
    t("s_mov_b64 exec, s[70:71]")
    t("K2_NOXCC:")
    xcc_blk = T[xcc0:]
    if FUSED: del T[xcc0:]
    t("s_lshl_b32 s56, s50, 16"); t("s_lshl_b32 s60, s49, 13"); t("s_add_u32 s56, s56, s60")
    t("s_mov_b32 s57, 0"); t("s_mov_b32 s54, 0")
    def cap_(fn):
        buf = []; fn(buf.append); return buf
    def dma_lines(slot):
        r = []
        for k in range(8):
            if k % 4 == 0:
                r.append((f"s_add_u32 m0, s56, {slot*SLOT + (k//4)*4096:#x}", False))
                if k: r.append(("s_add_u32 s57, s57, 4096", False))
                else: r.append(("s_nop 0", False))
            r.append((f"buffer_load_dwordx4 v{DV+k%4}, s[8:11], s57 offen offset:{(k%4)*1024}{CS} lds", True))
        r.append((f"s_add_u32 s57, s57, {SLOT-4096}", False))
        return r
    pre_dma = len(T)
    for txt, _ in dma_lines(0): t(txt)
    QST = [49152, 114688, 131072, 147456]
    def q_dma(t):
        t("v_lshlrev_b32 v137, 4, v131")
        t("s_mul_i32 s60, s51, 250"); t("s_lshl_b32 s61, s52, 3"); t("s_add_u32 s60, s60, s61")
        t("s_lshl_b32 s61, s48, 1"); t("s_add_u32 s60, s60, s61"); t("s_lshl_b32 s60, s60, 13")
        t("s_lshl_b32 s61, s48, 14"); t("s_add_u32 s61, s61, 98304"); t("s_cmp_eq_u32 s48, 0"); t("s_cselect_b32 s61, 49152, s61")
        for g in range(4):
            t(f"s_add_u32 m0, s61, {g*4096}")
            if g: t("s_add_u32 s60, s60, 4096")
            else: t("s_nop 0")
            for k in range(4):
                t(f"buffer_load_dwordx4 v137, s[12:15], s60 offen offset:{k*1024}{CS} lds")
    def q_read(t):
        t("v_lshlrev_b32 v137, 4, v131")
        for qt in range(4):
            t(f"s_lshl_b32 s60, s50, 1"); t(f"s_add_u32 s60, s60, {qt}"); t("s_and_b32 s60, s60, 3")
            t("s_lshl_b32 s61, s49, 2"); t("s_add_u32 s60, s60, s61")
            t("s_lshr_b32 s61, s60, 1"); t("s_lshl_b32 s62, s61, 14"); t("s_add_u32 s62, s62, 98304")
            t("s_cmp_eq_u32 s61, 0"); t("s_cselect_b32 s62, 49152, s62")
            t("s_and_b32 s60, s60, 1"); t("s_lshl_b32 s60, s60, 13"); t("s_add_u32 s62, s62, s60")
            t(f"v_add_u32 v{140+qt}, s62, v137")
    def q_read2(t):
        for j in range(8):
            for qt in range(4):
                t(f"ds_read_b128 {ar(aQ+(qt*8+j)*4,4)}, v{140+qt} offset:{j*1024}")
    q_dma(t)
    for n in (() if LEAN else (1, 2)):
        for txt, _ in dma_lines(n): t(txt)
    def kava_setup(t):
        t("v_and_b32 v136, 7, v132"); t("v_lshlrev_b32 v136, 1, v136")
        t("v_lshlrev_b32 v138, 9, v132")
        t("s_lshl_b32 s60, s50, 16"); t("v_add_u32 v138, s60, v138")
        for jj in range(4):
            t(f"v_add_u32 v139, {4*jj}, v133")
            t("v_xor_b32 v139, v139, v136")
            t(f"v_lshl_add_u32 v{KA+jj}, v139, 4, v138")
        t("v_lshrrev_b32 v136, 2, v132")
        t("v_lshl_add_u32 v136, v133, 2, v136")
        t("v_lshlrev_b32 v138, 9, v136")
        t("v_add_u32 v138, s60, v138")
        t("v_and_b32 v139, 1, v132"); t("v_lshl_add_u32 v138, v139, 3, v138")
        t("v_and_b32 v136, 7, v136"); t("v_lshlrev_b32 v136, 1, v136")
        t("v_bfe_u32 v139, v132, 1, 1")
        for dd in range(8):
            t(f"v_add_u32 v140, {2*dd}, v139")
            t("v_xor_b32 v140, v140, v136")
            t(f"v_lshl_add_u32 v{VA+dd}, v140, 4, v138")
    t("@KAVA")
    kava_setup(t)
    if not LEAN:
        for r in range(128): t(f"v_mov_b32 v{O+r}, 0")
        for r in range(128): t(f"v_accvgpr_write_b32 a{aO+r}, 0")
    for k in range(4): t(f"v_mov_b32 v{LS+k}, 0")
    if o.get('pkadd'):
        for k in range(8): t(f"v_mov_b32 v{224+k}, 0")
    t("s_mov_b32 s58, 0")
    q_read(t)
    if FUSED:
        i_kava = T.index("@KAVA")
        loads = T[pre_dma:i_kava]
        rest = T[i_kava+1:]
        T[:] = T[:pre_dma]
        if o.get('ct'):
            t("s_lshl_b32 s60, s53, 5"); t("s_max_u32 s61, s53, 1"); t("s_sub_u32 s61, s61, 1"); t("s_sub_u32 s60, s60, s61")
            t("s_lshl_b32 s62, s52, 2"); t("s_sub_u32 s62, s62, 32")
            t("v_add_u32 v150, s60, v131"); t("v_add_u32 v151, s62, v131")
            t("v_cmp_gt_u32 vcc, 32, v131"); t("s_nop 1"); t("v_cndmask_b32 v150, v151, v150, vcc")
            t("s_lshl_b32 s62, s52, 2"); t("v_mov_b32 v151, s62")
            t("v_cmp_gt_u32 vcc, 36, v131"); t("s_nop 1"); t("v_cndmask_b32 v150, v151, v150, vcc")
            t("v_min_u32 v150, 124, v150")
            t("s_mul_i32 s61, s51, 125"); t("v_add_u32 v150, s61, v150")
        else:
            t("s_lshl_b32 s60, s53, 5"); t("s_max_u32 s61, s53, 1"); t("s_sub_u32 s61, s61, 1"); t("s_sub_u32 s60, s60, s61")
            t("s_lshl_b32 s60, s60, 5"); t("s_mul_i32 s61, s51, 4000"); t("s_add_u32 s60, s60, s61"); t("s_lshr_b32 s60, s60, 6")
            t("s_lshl_b32 s62, s52, 7"); t("s_add_u32 s62, s62, s61"); t("s_lshr_b32 s62, s62, 6")
            t("v_add_u32 v150, s60, v131")
            t("v_add_u32 v151, s62, v131"); t("v_subrev_u32 v151, 18, v151")
            t("v_cmp_gt_u32 vcc, 18, v131"); t("s_nop 1"); t("v_cndmask_b32 v150, v151, v150, vcc")
            t("v_mov_b32 v151, s62")
            t("v_cmp_gt_u32 vcc, 21, v131"); t("s_nop 1"); t("v_cndmask_b32 v150, v151, v150, vcc")
            t("v_min_u32 v150, 124, v150")
        t("v_lshlrev_b32 v150, 7, v150"); t(f"v_add_u32 v150, {FLQ}, v150")
        XAF = FF and o.get('xaflag', True) and not o.get('ct')
        if XAF:
            t("v_add_u32 v152, 4, v150"); t("v_cmp_gt_u32 vcc, 18, v131"); t("s_nop 1"); t("v_cndmask_b32 v150, v150, v152, vcc")
        if o.get('wfpf', False):
            t("v_subrev_u32 v151, 40, v131"); t("v_lshlrev_b32 v152, 7, v151"); t(f"v_add_u32 v152, {FLW}, v152")
            t("v_cmp_gt_u32 vcc, 6, v151"); t("s_nop 1"); t("v_cndmask_b32 v150, v150, v152, vcc")
        if FF:
            t("buffer_load_dword v151, v150, s[44:47], 0 offen sc1")
            DEF = o.get('defer', True)
            if DEF:
                t("s_cmp_eq_u32 s98, 1"); t("s_cbranch_scc0 K1_NODEF")
                t("s_waitcnt lgkmcnt(0)")
                for half in range(2):
                    for k in range(4):
                        t(f"buffer_store_dwordx4 v[{64+(half*4+k)*4}:{67+(half*4+k)*4}], v{228+k}, s[24:27], {'s89' if half else 's88'} offen offset:{k*1024} sc1")
                t("s_waitcnt vmcnt(8)")
                t("v_readfirstlane_b32 s3, v243"); t("s_nop 3")
                t("s_cmp_lg_u32 s3, 0"); t("s_cbranch_scc0 K1_TAGP")
                t("s_barrier")
                t("s_branch K1_NOFL")
                t("K1_NODEF:")
            t("s_waitcnt vmcnt(0) lgkmcnt(0)")
            t("v_readfirstlane_b32 s3, v243")
            t("s_nop 3")
            t("s_cmp_lg_u32 s3, 0"); t("s_cbranch_scc1 K1_TAGD")
            t("K1_TAGP:")
            t("buffer_load_dword v243, off, s[92:95], 0 sc1"); t("s_waitcnt vmcnt(0)")
            t("v_readfirstlane_b32 s3, v243"); t("s_nop 3")
            t("s_cmp_lg_u32 s3, 0"); t("s_cbranch_scc1 K1_TAGD"); t("s_sleep 1")
            t("s_add_u32 s101, s101, 1"); t("s_cmp_lt_u32 s101, 0x400000"); t("s_cbranch_scc1 K1_TAGP")
            t("K1_TAGD:")
            t("s_barrier")
            if o.get('defer', True): t("s_cmp_eq_u32 s98, 1"); t("s_cbranch_scc1 K1_NOFL")
            t("s_cmp_eq_u32 s48, 0"); t("s_cbranch_scc0 K1_NOFL")
            t("v_mov_b32 v152, s3"); t("v_mov_b32 v153, s3")
            t("v_cmp_eq_u32 vcc, 0, v131"); t("s_and_saveexec_b64 s[70:71], vcc")
            t("buffer_store_dwordx2 v[152:153], off, s[44:47], s67 sc1")
            t("s_mov_b64 exec, s[70:71]")
            t("K1_NOFL:")
            t("v_cmp_ne_u32 vcc, s3, v151"); t("s_nop 1"); t("s_cmp_eq_u64 vcc, 0"); t("s_cbranch_scc1 K2_QD")
        if XAF:
            t("s_mov_b32 s66, 0")
            t("K2_QA:")
            t("s_and_b32 s60, vcc_lo, 0x3ffff"); t("s_cmp_eq_u32 s60, 0"); t("s_cbranch_scc1 K2_QAD")
            t(f"s_sleep {o.get('qsleep', 1)}")
            t("buffer_load_dword v151, v150, s[44:47], 0 offen sc1"); t("s_waitcnt vmcnt(0)")
            t("v_cmp_ne_u32 vcc, s3, v151"); t("s_nop 1")
            t("s_add_u32 s101, s101, 1"); t("s_cmp_lt_u32 s101, 0x400000"); t("s_cbranch_scc1 K2_QA")
            t("K2_QAD:")
            for n in range(1 if LEAN else 3):
                for txt, _ in dma_lines(n): t(txt)
            t("K2_QP:")
            t("buffer_load_dword v151, v150, s[44:47], 0 offen sc1")
            t("s_waitcnt vmcnt(0)")
            t("v_cmp_ne_u32 vcc, s3, v151")
            t("s_nop 1")
            t("s_cmp_eq_u64 vcc, 0"); t("s_cbranch_scc1 K2_QB"); t(f"s_sleep {o.get('qsleep', 1)}")
            t("s_add_u32 s101, s101, 1"); t("s_cmp_lt_u32 s101, 0x400000"); t("s_cbranch_scc1 K2_QP")
            t("K2_QB:")
            q_dma(t)
            t("s_branch K2_QE")
            t("K2_QD:")
            t("s_mov_b32 s66, 1")
            T.extend(loads)
            t("K2_QE:")
        else:
            t("K2_QP:")
            t("buffer_load_dword v151, v150, s[44:47], 0 offen sc1")
            t("s_waitcnt vmcnt(0)")
            t("v_cmp_ne_u32 vcc, s3, v151")
            t("s_nop 1")
            t("s_cmp_eq_u64 vcc, 0"); t("s_cbranch_scc1 K2_QD"); t("s_sleep 1")
            t("s_add_u32 s101, s101, 1"); t("s_cmp_lt_u32 s101, 0x400000"); t("s_cbranch_scc1 K2_QP")
            t("K2_QD:")
            T.extend(loads)
        if o.get('wfpf', False):
            T.extend(cap_(lambda e: srd(e, 16, 's4', 's5', WF_OFF, 262144)))
            t("s_lshr_b32 s60, s2, 3"); t("s_lshl_b32 s60, s60, 13"); t("s_lshl_b32 s61, s48, 11"); t("s_add_u32 s60, s60, s61")
            t("v_lshlrev_b32 v150, 4, v131")
            t("buffer_load_dwordx4 v[224:227], v150, s[16:19], s60 offen sc1")
            t("buffer_load_dwordx4 v[228:231], v150, s[16:19], s60 offen offset:1024 sc1")
        if not LEAN: T.extend(xcc_blk)
        T.extend(rest)
    else:
        T.remove("@KAVA")
    if LEAN:
        t("s_waitcnt vmcnt(0)")
        t("s_barrier")
        T.extend(xcc_blk)
    else:
        if FUSED and FF and o.get('xaflag', True) and not o.get('ct'):
            t("s_cmp_eq_u32 s66, 1"); t("s_cbranch_scc1 K2_W16"); t("s_waitcnt vmcnt(0)"); t("K2_W16:")
        t("s_waitcnt vmcnt(18)" if (FUSED and o.get('wfpf', False)) else "s_waitcnt vmcnt(16)")
        t("s_barrier")
    if FUSED and FF and o.get('defer', True):
        t("s_cmp_eq_u32 s98, 1"); t("s_cbranch_scc0 K2_NODF"); t("s_cmp_eq_u32 s48, 0"); t("s_cbranch_scc0 K2_NODF")
        t("v_mov_b32 v152, s3"); t("v_mov_b32 v153, s3"); t("v_mbcnt_lo_u32_b32 v154, -1, 0"); t("v_mbcnt_hi_u32_b32 v154, -1, v154")
        t("v_cmp_eq_u32 vcc, 0, v154"); t("s_and_saveexec_b64 s[70:71], vcc")
        t("buffer_store_dwordx2 v[152:153], off, s[44:47], s67 sc1")
        t("s_mov_b64 exec, s[70:71]")
        t("K2_NODF:")
    if o['stamp']: t("s_memtime s[76:77]"); t("s_memrealtime s[78:79]"); t("s_waitcnt lgkmcnt(0)")
    q_read2(t)
    L += hazard.autofix(T)
    DF = o['DF']
    ev = []; seq = [0]
    def add(tm, kind, prio=5, **kw):
        seq[0] += 1; ev.append((tm, prio, seq[0], kind, kw))
    def TT(i, n): return 128*i + n
    NT = 16
    for n in range(NT):
        slot = n % 4
        for kt in range(2):
            for j in range(8):
                f = 8*kt + j
                tm = TT(n-1, 4*f); tr = tm - 4*DF
                ring = RING + 4*(f % 4)
                off = slot*SLOT + kt*8192 + (j >> 2)*256
                add(tr, 'lds', prio=2, text=f"ds_read_b128 {vr(ring,4)}, v{KA+(j&3)} offset:{off}", tag=('K', n, f))
                if n < NT:
                    for qt in range(4):
                        acc = vr(Sreg(kt, qt), 4)
                        c = acc if j else ('0' if n == 0 else vr(NEGM+4*qt, 4))
                        add(tm+qt, 'mfma', prio=0, text=f"{M16} {acc}, {vr(ring,4)}, {ar(aQ+(qt*8+j)*4,4)}, {c}",
                            need=([('K', n, f)] if qt == 0 else []) + ([('Q', qt, j)] if n == 0 else []))
    for n in range(NT):
        slot = n % 4
        for dt in range(16):
            f = 16 + dt
            tm = TT(n, 4*f); tr = tm - 4*DF
            ring = RING + 4*(f % 4)
            for u in range(2):
                off = slot*SLOT + u*8192 + (dt >> 3)*256
                add(tr, 'lds', prio=2, text=f"ds_read_b64_tr_b16 {vr(ring+2*u,2)}, v{VA+(dt&7)} offset:{off}", tag=('V', n, dt, u))
            for qt in range(4):
                add(tm+qt, 'mfma', prio=0, text=f"{M16} {Oreg(dt,qt)}, {vr(ring,4)}, {vr(P[n%2]+4*qt,4)}, {Oreg(dt,qt)}",
                    need=[('V', n, dt, 0), ('V', n, dt, 1)] if qt == 0 else [])
        for kt in range(2):
            for el in range(16 if o.get('valu', True) else 0):
                qt, r = el >> 2, el & 3
                te = TT(n-1, (o['e0'] if kt == 0 else o['e1']) + o['estep']*el)
                reg = Sreg(kt, qt) + r
                add(te, 'valu', prio=3, text=f"v_exp_f32 v{reg}, v{reg}")
                if not o.get('pkadd'):
                    add(te+o['addd'], 'valu', prio=3, text=f"v_add_f32 v{LS+qt}, v{LS+qt}, v{reg}")
                elif r % 2 == 1:
                    add(te+o['addd'], 'valu', prio=3, text=f"v_pk_add_f32 v[{224+2*qt}:{225+2*qt}], v[{224+2*qt}:{225+2*qt}], v[{reg-1}:{reg}]")
                if r % 2 == 1:
                    add(te+o['cvtd'], 'valu', prio=4, text=f"v_cvt_pk_bf16_f32 v{P[n%2]+4*qt+2*kt+r//2}, v{reg-1}, v{reg}")
    if LEAN:
        k = 0
        for n in (1, 2):
            lines = dma_lines(n)
            for idx, (txt, vm) in enumerate(lines):
                if vm:
                    add(TT(-1, 1 + 4*k), 'dma', prio=7, text=txt, tile=n); k += 1
                elif idx == len(lines) - 1:
                    add(TT(-1, 1 + 4*(k-1)), 'salu', prio=8, text=txt)
                else:
                    add(TT(-1, 1 + 4*k), 'salu', prio=6, text=txt)
        for r in range(128): add(TT(-1, r // 2), 'valu', prio=4, text=f"v_mov_b32 v{O+r}, 0")
    for i in range(-1, NT-2):
        add(TT(i, 100 if (LEAN and i == -1) else o['bslot']), 'bar', prio=6, it=i)
        if i >= 0 and i + 3 < NT and o.get('dma', True):
            k = 0
            for txt, vm in dma_lines((i+3) % 4):
                tm = TT(i, o['dma0'] + o['dmastep']*k)
                if vm:
                    add(tm, 'dma', prio=7, text=txt, tile=i+3); k += 1
                else:
                    add(tm if k < 8 else TT(i, o['dma0'] + o['dmastep']*7), 'salu', prio=6 if k < 8 else 8, text=txt)
    tail_ev = []
    ev.sort(key=lambda x: (x[0], x[1], x[2]))
    W = Waiter()
    for n in (() if LEAN else (1, 2)):
        for k in range(8): W.issue('vm', ('T', n))
    if FUSED and o.get('wfpf', False):
        W.issue('vm', 'PF0'); W.issue('vm', 'PF1')
    for j in range(8):
        for qt in range(4): W.issue('lgkm', ('Q', qt, j))
    its = {}
    for x in ev:
        tm, _, _, kind, kw = x
        it = max(tm // 128, -1)
        out = its.setdefault(it, [])
        if kind == 'mfma':
            n = W.need('lgkm', kw['need'])
            if n is not None: out.append(f"s_waitcnt lgkmcnt({n})")
            out.append(kw['text'])
            if tm == TT(-1, 63):
                out.append("@FIXUP")
        elif kind == 'lds':
            out.append(kw['text']); W.issue('lgkm', kw['tag'])
        elif kind == 'bar':
            n = W.need('vm', [('T', kw['it']+2)])
            if n is not None: out.append(f"s_waitcnt vmcnt({n})")
            if o.get('barrier', True) or kw['it'] < 0: out.append("s_barrier")
        elif kind == 'dma':
            out.append(kw['text']); W.issue('vm', ('T', kw['tile']))
        else:
            out.append(kw['text'])
    for i in range(8, 13):
        assert its[i] == its[i-4], (i, [(a, b) for a, b in zip(its[i], its[i-4]) if a != b][:5])
    pro = its[-1]
    fi = pro.index("@FIXUP")
    if not o.get('valu', True):
        its[15] = its[15] + ["v_add_f32 v248, v248, v248"]
    pre_valu = [x for x in pro[:fi] if x.startswith('v_exp') or x.startswith('v_add_f32') or x.startswith('v_cvt') or x.startswith('v_pk_add')]
    pro_a = [x for x in pro[:fi] if x not in pre_valu]
    fix = []
    fx = fix.append
    fx("s_nop 7")
    for qt in range(4):
        a, b = Sreg(0, qt), Sreg(1, qt)
        fx(f"v_max3_f32 v{NEGM+qt}, v{a}, v{a+1}, v{a+2}")
        fx(f"v_max3_f32 v{NEGM+qt}, v{NEGM+qt}, v{a+3}, v{b}")
        fx(f"v_max3_f32 v{NEGM+qt}, v{NEGM+qt}, v{b+1}, v{b+2}")
        fx(f"v_max_f32 v{NEGM+qt}, v{NEGM+qt}, v{b+3}")
    for sw in ("v_permlane16_swap_b32", "v_permlane32_swap_b32"):
        for qt in range(4): fx(f"v_mov_b32 v{NEGM+4+qt}, v{NEGM+qt}")
        fx("s_nop 1")
        for qt in range(4): fx(f"{sw} v{NEGM+qt}, v{NEGM+4+qt}")
        fx("s_nop 1")
        for qt in range(4): fx(f"v_max_f32 v{NEGM+qt}, v{NEGM+qt}, v{NEGM+4+qt}")
    fx("v_mbcnt_lo_u32_b32 v254, -1, 0"); fx("v_mbcnt_hi_u32_b32 v254, -1, v254")
    fx("v_lshlrev_b32 v254, 4, v254")
    fx(f"s_lshl_b32 s60, s48, 10"); fx(f"s_add_u32 s60, s60, {MX}")
    fx("v_add_u32 v255, s60, v254")
    fx(f"ds_write_b128 v255, {vr(NEGM,4)}")
    fx("s_xor_b32 s60, s60, 2048")
    fx("v_add_u32 v255, s60, v254")
    fx("s_waitcnt lgkmcnt(0)")
    fx("s_barrier")
    fx(f"ds_read_b128 {vr(NEGM+4,4)}, v255")
    fx("s_waitcnt lgkmcnt(0)")
    for qt in range(4): fx(f"v_max_f32 v{NEGM+8+qt}, v{NEGM+qt}, v{NEGM+4+((qt+2)&3)}")
    fx(f"v_mov_b32 v{MREF}, v{NEGM+8}"); fx(f"v_mov_b32 v{MREF+1}, v{NEGM+9}")
    for kt in range(2):
        for qt in range(4):
            for r in range(4): fx(f"v_sub_f32 v{Sreg(kt,qt)+r}, v{Sreg(kt,qt)+r}, v{NEGM+8+qt}")
    for qt in range(4): fx(f"v_mov_b32 v{254}, v{NEGM+8+qt}") if False else None
    for qt in (3, 1, 0):
        for r in range(4): fx(f"v_sub_f32 v{NEGM+4*qt+r}, 0, v{NEGM+8+qt}") if qt != 2 else None
    fx(f"v_sub_f32 v254, 0, v{NEGM+10}")
    for r in range(4): fx(f"v_mov_b32 v{NEGM+8+r}, v254")
    L += hazard.autofix(pro_a + fix + pre_valu + pro[fi+1:])
    if o['stamp']:
        e("s_memtime s[24:25]")
    e("K2_LOOP:")
    body = {u: its[4+u] for u in range(4)}
    L += body[0]
    e("s_cmp_eq_u32 s58, 3")
    e("s_cbranch_scc1 K2_EPI")
    L += body[1]; L += body[2]; L += body[3]
    e("s_add_u32 s58, s58, 1")
    e("s_branch K2_LOOP")
    e("K2_EPI:")
    if o['stamp']:
        e("s_memtime s[26:27]"); e("s_waitcnt lgkmcnt(0)"); e("s_sub_u32 s101, s26, s24"); e("s_sub_u32 s100, s24, s76")
    if FUSED:
        TA, TB, TC = (248, 249, 250) if o.get('pkadd') else (224, 225, 226)
        pre13 = []
        p = pre13.append
        p("s_lshl_b32 s60, s52, 7"); p("s_lshl_b32 s61, s53, 5"); p("s_add_u32 s60, s60, s61"); p("s_min_u32 s60, s60, 3968")
        p("s_mul_i32 s61, s51, 4000"); p("s_add_u32 s60, s60, s61")
        sh = 5 if o.get('ct') else 6
        if o.get('ct'):
            p("s_lshr_b32 s62, s60, 5")
        p("s_max_u32 s61, s60, 2"); p("s_sub_u32 s61, s61, 2"); p(f"s_lshr_b32 s61, s61, {sh}")
        p("s_add_u32 s60, s60, 33"); p("s_min_u32 s60, s60, 7999"); p(f"s_lshr_b32 s60, s60, {sh}")
        p(f"v_mbcnt_lo_u32_b32 v{TA}, -1, 0"); p(f"v_mbcnt_hi_u32_b32 v{TA}, -1, v{TA}")
        p(f"v_min_u32 v{TB}, 7, v{TA}"); p(f"v_lshlrev_b32 v{TB}, 7, v{TB}"); p(f"v_add_u32 v{TB}, {FLW - 256}, v{TB}")
        p("s_lshl_b32 s61, s61, 7"); p(f"s_add_u32 s61, s61, {FLU}"); p(f"v_mov_b32 v{TC}, s61")
        p(f"v_cmp_eq_u32 vcc, 0, v{TA}"); p("s_nop 1"); p(f"v_cndmask_b32 v{TB}, v{TB}, v{TC}, vcc")
        p("s_lshl_b32 s60, s60, 7"); p(f"s_add_u32 s60, s60, {FLU}"); p(f"v_mov_b32 v{TC}, s60")
        p(f"v_cmp_eq_u32 vcc, 1, v{TA}"); p("s_nop 1"); p(f"v_cndmask_b32 v{TB}, v{TB}, v{TC}, vcc")
        if o.get('ct'):
            p("s_lshl_b32 s62, s62, 7"); p(f"s_add_u32 s62, s62, {FLU}"); p(f"v_mov_b32 v{TC}, s62")
            p(f"v_cmp_eq_u32 vcc, 8, v{TA}"); p("s_nop 1"); p(f"v_cndmask_b32 v{TB}, v{TB}, v{TC}, vcc")
        p(f"buffer_load_dword v{TC}, v{TB}, s[44:47], 0 offen sc1")
        IP2 = o.get('ipf2', False) and not o.get('pkadd')
        if IP2:
            p("s_getpc_b64 s[60:61]")
            p("K2_PCREF:")
            p("s_add_u32 s60, s60, K2_NOMASK-K2_PCREF"); p("s_addc_u32 s61, s61, 0")
            p("s_lshr_b32 s62, s2, 3"); p("s_lshl_b32 s62, s62, 2"); p("s_add_u32 s62, s62, s48"); p(f"s_min_u32 s62, s62, {o.get('ipf2n', 15)}"); p("s_lshl_b32 s62, s62, 10")
            p(f"v_lshlrev_b32 v227, 4, v{TA}"); p("v_add_u32 v227, s62, v227")
            p("global_load_dwordx4 v[228:231], v227, s[60:61]")
        L += hazard.autofix(pre13)
        i13 = list(its[13])
        bi = i13.index("s_barrier")
        assert i13[bi-1] == "s_waitcnt vmcnt(0)", i13[bi-3:bi+1]
        i13[bi-1] = "s_waitcnt vmcnt(2)" if IP2 else "s_waitcnt vmcnt(1)"
        chk = ["s_waitcnt vmcnt(0)", "K2_TP:", f"v_cmp_ne_u32 vcc, s3, v{TC}", "s_nop 1", "s_cmp_eq_u64 vcc, 0", "s_cbranch_scc1 K2_TD", "s_sleep 1",
               f"buffer_load_dword v{TC}, v{TB}, s[44:47], 0 offen sc1", "s_waitcnt vmcnt(0)", "s_add_u32 s101, s101, 1", "s_cmp_lt_u32 s101, 0x400000", "s_cbranch_scc1 K2_TP", "K2_TD:"]
        L += i13 + chk
    else:
        L += its[13]
    e("s_cmp_eq_u32 s59, 3")
    e("s_cbranch_scc0 K2_NOMASK")
    for r in range(16): e(f"v_mov_b32 v{NEGM+r}, 0xf149f2ca")
    e("s_nop 1")
    e("K2_NOMASK:")
    import gen_tail
    tail, resume = gen_tail.gen_tail(o, its[14], its[15], W)
    L += tail
    e("s_branch K2_END")
    T = []; t = T.append
    M_, MN, AL = NEGM, NEGM + 4, NEGM + 8
    t("K2_SLOW:")
    t("s_mov_b32 s54, 1")
    t("s_waitcnt vmcnt(0) lgkmcnt(0)")
    t("s_barrier")
    t("v_mbcnt_lo_u32_b32 v131, -1, 0"); t("v_mbcnt_hi_u32_b32 v131, -1, v131")
    dv_setup(t)
    S_2 = lambda fn: (lambda b: (fn(b.append), T.extend(b)))([])
    S_2(lambda e: srd(e, 12, 's4', 's5', QF_OFF, 500*8192))
    q_dma(t)
    kava_setup(t)
    for r in range(128): t(f"v_mov_b32 v{O+r}, 0")
    for r in range(128): t(f"v_accvgpr_write_b32 a{aO+r}, 0")
    for k in range(4): t(f"v_mov_b32 v{LS+k}, 0"); t(f"v_mov_b32 v{M_+k}, 0xf149f2ca")
    t("s_lshl_b32 s56, s50, 16"); t("s_lshl_b32 s60, s49, 13"); t("s_add_u32 s56, s56, s60")
    t("s_mov_b32 s57, 0"); t("s_mov_b32 s58, 0")
    t("s_waitcnt vmcnt(0)")
    t("s_barrier")
    q_read(t); q_read2(t)
    t("s_waitcnt lgkmcnt(0)")
    t("K2_SL_LOOP:")
    t("s_barrier")
    for txt, _ in dma_lines(0): t(txt)
    t("s_waitcnt vmcnt(0)")
    t("s_barrier")
    t("s_lshl_b32 s60, s58, 14"); t("s_cmp_lt_u32 s60, s55")
    t("s_cbranch_scc0 K2_SL_NEXT")
    for kt in range(2):
        for j in range(8):
            t(f"ds_read_b128 {vr(RING,4)}, v{KA+(j&3)} offset:{kt*8192 + (j>>2)*256}")
            t("s_waitcnt lgkmcnt(0)")
            for qt in range(4):
                acc = vr(Sreg(kt, qt), 4)
                t(f"{M16} {acc}, {vr(RING,4)}, {ar(aQ+(qt*8+j)*4,4)}, {acc if j else '0'}")
            t("s_nop 3")
    t("s_nop 7")
    for qt in range(4):
        a, b = Sreg(0, qt), Sreg(1, qt)
        t(f"v_max3_f32 v{MN+qt}, v{a}, v{a+1}, v{a+2}")
        t(f"v_max3_f32 v{MN+qt}, v{MN+qt}, v{a+3}, v{b}")
        t(f"v_max3_f32 v{MN+qt}, v{MN+qt}, v{b+1}, v{b+2}")
        t(f"v_max3_f32 v{MN+qt}, v{MN+qt}, v{b+3}, v{M_+qt}")
    for sw in ("v_permlane16_swap_b32", "v_permlane32_swap_b32"):
        for qt in range(4): t(f"v_mov_b32 v{AL+qt}, v{MN+qt}")
        t("s_nop 1")
        for qt in range(4): t(f"{sw} v{MN+qt}, v{AL+qt}")
        t("s_nop 1")
        for qt in range(4): t(f"v_max_f32 v{MN+qt}, v{MN+qt}, v{AL+qt}")
    for qt in range(4):
        t(f"v_sub_f32 v{AL+qt}, v{M_+qt}, v{MN+qt}"); t(f"v_exp_f32 v{AL+qt}, v{AL+qt}"); t(f"v_mov_b32 v{M_+qt}, v{MN+qt}")
    t("s_nop 0")
    for qt in range(4):
        t(f"v_mul_f32 v{LS+qt}, v{LS+qt}, v{AL+qt}")
        for kt in range(2):
            for r in range(4):
                reg = Sreg(kt, qt) + r
                t(f"v_sub_f32 v{reg}, v{reg}, v{M_+qt}"); t(f"v_exp_f32 v{reg}, v{reg}"); t("s_nop 0")
                t(f"v_add_f32 v{LS+qt}, v{LS+qt}, v{reg}")
            for h2 in range(2):
                t(f"v_cvt_pk_bf16_f32 v{P[0]+4*qt+2*kt+h2}, v{Sreg(kt,qt)+2*h2}, v{Sreg(kt,qt)+2*h2+1}")
    def rescale():
        for dt in range(16):
            for qt in range(2):
                for r in range(4): t(f"v_mul_f32 v{O+(dt*2+qt)*4+r}, v{O+(dt*2+qt)*4+r}, v{AL+qt}")
                for r in range(4):
                    a = aO + (dt*2+qt)*4 + r
                    t(f"v_accvgpr_read_b32 v{NEGM+12+r}, a{a}")
                for r in range(4): t(f"v_mul_f32 v{NEGM+12+r}, v{NEGM+12+r}, v{AL+2+qt}")
                for r in range(4):
                    a = aO + (dt*2+qt)*4 + r
                    t(f"v_accvgpr_write_b32 a{a}, v{NEGM+12+r}")
    rescale()
    t("s_nop 1")
    for dt in range(16):
        for u in range(2):
            t(f"ds_read_b64_tr_b16 {vr(RING+2*u,2)}, v{VA+(dt&7)} offset:{u*8192 + (dt>>3)*256}")
        t("s_waitcnt lgkmcnt(0)")
        for qt in range(4):
            t(f"{M16} {Oreg(dt,qt)}, {vr(RING,4)}, {vr(P[0]+4*qt,4)}, {Oreg(dt,qt)}")
        t("s_nop 3")
    t("s_nop 7")
    t("K2_SL_NEXT:")
    t("s_add_u32 s58, s58, 1"); t("s_cmp_lt_u32 s58, 16"); t("s_cbranch_scc1 K2_SL_LOOP")
    t("s_barrier")
    t("v_mbcnt_lo_u32_b32 v254, -1, 0"); t("v_mbcnt_hi_u32_b32 v254, -1, v254"); t("v_lshlrev_b32 v254, 4, v254")
    t(f"s_lshl_b32 s60, s48, 10"); t(f"s_add_u32 s60, s60, {MX}"); t("v_add_u32 v255, s60, v254")
    t(f"ds_write_b128 v255, {vr(M_,4)}")
    t("s_xor_b32 s60, s60, 2048"); t("v_add_u32 v255, s60, v254")
    t("s_waitcnt lgkmcnt(0)"); t("s_barrier")
    t(f"ds_read_b128 {vr(MN,4)}, v255"); t("s_waitcnt lgkmcnt(0)")
    for qt in range(4): t(f"v_max_f32 v{RING+qt}, v{M_+qt}, v{MN+((qt+2)&3)}")
    for qt in range(4):
        t(f"v_sub_f32 v{AL+qt}, v{M_+qt}, v{RING+qt}"); t(f"v_exp_f32 v{AL+qt}, v{AL+qt}")
    t("s_nop 0")
    for qt in range(4): t(f"v_mul_f32 v{LS+qt}, v{LS+qt}, v{AL+qt}")
    t(f"v_mov_b32 v{MREF}, v{RING}"); t(f"v_mov_b32 v{MREF+1}, v{RING+1}")
    rescale()
    t("s_barrier")
    L += hazard.autofix(T + resume)
    e("K2_END:")
    e("s_endpgm")
    i0 = L.index("K2_LOOP:"); i1 = L.index("K2_EPI:")
    lin = L[i0-60:i1] + L[i0:i1] + L[i1:i1+700]
    errs = hazard.check(lin, 'k2f')
    return L, ([] if FUSED else kernel_desc(name, 512, 256)), errs
```

```python
from gen_common import *
import hazard, struct
SLOT = 16384
M16 = "v_mfma_f32_16x16x32_bf16"
fb = lambda x: hex(struct.unpack('<I', struct.pack('<f', x))[0])
EXT = 131072
MX = EXT
OWN = EXT + 4096
OWNML = EXT + 20480
ACT = 0

def gen_k2f(opt=None):
    o = dict(DF=3, stamp=False, bslot=8, dma0=10, dmastep=4, e0=37, e1=93, estep=4, cvtd=1, addd=1, fused=True)
    if opt: o.update(opt)
    name = 'attn_kernel'
    L = []; e = L.append
    O = 0; S = 128; P = [160, 176]; NEGM = 192; RING = 208; KA = 232; VA = 236; DV = 244; LS = 248; MREF = 252
    aQ = 0; aO = 128
    def Oreg(dt, qt): return vr(O + (dt*2+qt)*4, 4) if qt < 2 else ar(aO + (dt*2+qt-2)*4, 4)
    def Sreg(kt, qt): return S + (kt*4+qt)*4
    FUSED = o.get('fusedk')
    CS = ' sc1' if (FUSED and o.get('csc1', True)) else ''
    if not FUSED:
        L += kernel_header(name)
        e("s_cmp_ge_u32 s2, 256")
        e("s_cbranch_scc1 K2_END")
    FF = FUSED and o.get('fastfin')
    LEAN = FF and o.get('lean', True)
    if not FF:
        e("s_load_dwordx2 s[4:5], s[0:1], 88")
        e("s_load_dwordx2 s[6:7], s[0:1], 80")
        e("s_load_dwordx2 s[36:37], s[0:1], 0")
        e("s_load_dwordx2 s[32:33], s[0:1], 48")
        e("s_load_dwordx2 s[40:41], s[0:1], 72")
    if o['stamp']:
        e("s_memtime s[72:73]"); e("s_memrealtime s[74:75]")
    T = []; t = T.append
    if FUSED:
        t("v_mbcnt_lo_u32_b32 v131, -1, 0"); t("v_mbcnt_hi_u32_b32 v131, -1, v131")
    else:
        t("v_lshrrev_b32 v130, 6, v0")
        t("v_and_b32 v131, 63, v0")
        t("v_readfirstlane_b32 s48, v130")
    t("s_and_b32 s60, s2, 7")
    t("s_lshr_b32 s61, s2, 3")
    t("s_lshr_b32 s51, s60, 2")
    t("s_and_b32 s53, s61, 3")
    t("s_lshr_b32 s61, s61, 2")
    t("s_and_b32 s52, s60, 3")
    t("s_lshl_b32 s52, s52, 3")
    t("s_add_u32 s52, s52, s61")
    t("s_and_b32 s49, s48, 1")
    t("s_lshr_b32 s50, s48, 1")
    t("s_lshl_b32 s54, s53, 5")
    t("s_lshl_b32 s60, s50, 4")
    t("s_add_u32 s54, s54, s60")
    t("s_max_u32 s60, s53, 1")
    t("s_sub_u32 s60, s60, 1")
    t("s_sub_u32 s54, s54, s60")
    t("s_min_u32 s60, s53, 1")
    t("s_and_b32 s60, s60, s50")
    t("s_sub_u32 s55, 16, s60")
    t("s_lshl_b32 s55, s55, 14")
    t("s_cmp_eq_u32 s60, 1")
    t("s_cselect_b32 s59, 3, 0xffff")
    t("s_lshl_b32 s54, s54, 14")
    t("s_mul_i32 s60, s51, 2048000")
    t("s_add_u32 s54, s54, s60")
    def dv_setup(t):
        t("v_and_b32 v132, 15, v131")
        t("v_lshrrev_b32 v133, 4, v131")
        t("v_lshrrev_b32 v134, 5, v131")
        t("v_and_b32 v135, 31, v131")
        t("s_lshl_b32 s60, s49, 13")
        for k in range(4):
            t(f"v_add_u32 v136, {2*k}, v134")
            t("v_lshlrev_b32 v136, 1, v136")
            t("v_xor_b32 v136, v135, v136")
            t("v_lshlrev_b32 v136, 4, v136")
            t("v_lshl_add_u32 v136, v134, 9, v136")
            t(f"v_add_u32 v{DV+k}, s60, v136")
    dv_setup(t)
    t("s_waitcnt lgkmcnt(0)")
    def S_(fn):
        buf = []; fn(buf.append); T.extend(buf)
    S_(lambda e: srd(e, 8, 's4', 's5', 's54', 's55'))
    S_(lambda e: srd(e, 12, 's4', 's5', QF_OFF, 500*8192))
    t("s_getreg_b32 s63, hwreg(HW_REG_XCC_ID, 0, 3)")
    t("s_or_b32 s63, s63, 8")
    S_(lambda e: srd(e, 44, 's4', 's5', FL_OFF, FL_SIZE if FUSED else 8192))
    t("s_lshl_b32 s65, s51, 5"); t("s_add_u32 s65, s65, s52")
    xcc0 = len(T)
    t("s_cmp_eq_u32 s48, 0"); t("s_cbranch_scc0 K2_NOXCC")
    t("s_lshl_b32 s60, s65, 7"); t("s_lshl_b32 s61, s53, 2"); t("s_add_u32 s60, s60, s61")
    if FUSED:
        t("s_add_u32 s60, s60, 16"); t("s_xor_b32 s61, s63, s3"); t("v_mov_b32 v137, s61")
    else:
        t("v_mov_b32 v137, s63")
    t("v_cmp_eq_u32 vcc, 0, v131"); t("s_and_saveexec_b64 s[70:71], vcc")
    t("buffer_store_dword v137, off, s[44:47], s60 sc1")
    t("s_mov_b64 exec, s[70:71]")
    t("K2_NOXCC:")
    xcc_blk = T[xcc0:]
    if FUSED: del T[xcc0:]
    t("s_lshl_b32 s56, s50, 16"); t("s_lshl_b32 s60, s49, 13"); t("s_add_u32 s56, s56, s60")
    t("s_mov_b32 s57, 0"); t("s_mov_b32 s54, 0")
    def cap_(fn):
        buf = []; fn(buf.append); return buf
    def dma_lines(slot):
        r = []
        for k in range(8):
            if k % 4 == 0:
                r.append((f"s_add_u32 m0, s56, {slot*SLOT + (k//4)*4096:#x}", False))
                if k: r.append(("s_add_u32 s57, s57, 4096", False))
                else: r.append(("s_nop 0", False))
            r.append((f"buffer_load_dwordx4 v{DV+k%4}, s[8:11], s57 offen offset:{(k%4)*1024}{CS} lds", True))
        r.append((f"s_add_u32 s57, s57, {SLOT-4096}", False))
        return r
    pre_dma = len(T)
    for txt, _ in dma_lines(0): t(txt)
    QST = [49152, 114688, 131072, 147456]
    def q_dma(t):
        t("v_lshlrev_b32 v137, 4, v131")
        t("s_mul_i32 s60, s51, 250"); t("s_lshl_b32 s61, s52, 3"); t("s_add_u32 s60, s60, s61")
        t("s_lshl_b32 s61, s48, 1"); t("s_add_u32 s60, s60, s61"); t("s_lshl_b32 s60, s60, 13")
        t("s_lshl_b32 s61, s48, 14"); t("s_add_u32 s61, s61, 98304"); t("s_cmp_eq_u32 s48, 0"); t("s_cselect_b32 s61, 49152, s61")
        for g in range(4):
            t(f"s_add_u32 m0, s61, {g*4096}")
            if g: t("s_add_u32 s60, s60, 4096")
            else: t("s_nop 0")
            for k in range(4):
                t(f"buffer_load_dwordx4 v137, s[12:15], s60 offen offset:{k*1024}{CS} lds")
    def q_read(t):
        t("v_lshlrev_b32 v137, 4, v131")
        for qt in range(4):
            t(f"s_lshl_b32 s60, s50, 1"); t(f"s_add_u32 s60, s60, {qt}"); t("s_and_b32 s60, s60, 3")
            t("s_lshl_b32 s61, s49, 2"); t("s_add_u32 s60, s60, s61")
            t("s_lshr_b32 s61, s60, 1"); t("s_lshl_b32 s62, s61, 14"); t("s_add_u32 s62, s62, 98304")
            t("s_cmp_eq_u32 s61, 0"); t("s_cselect_b32 s62, 49152, s62")
            t("s_and_b32 s60, s60, 1"); t("s_lshl_b32 s60, s60, 13"); t("s_add_u32 s62, s62, s60")
            t(f"v_add_u32 v{140+qt}, s62, v137")
    def q_read2(t):
        for j in range(8):
            for qt in range(4):
                t(f"ds_read_b128 {ar(aQ+(qt*8+j)*4,4)}, v{140+qt} offset:{j*1024}")
    q_dma(t)
    for n in (() if LEAN else (1, 2)):
        for txt, _ in dma_lines(n): t(txt)
    def kava_setup(t):
        t("v_and_b32 v136, 7, v132"); t("v_lshlrev_b32 v136, 1, v136")
        t("v_lshlrev_b32 v138, 9, v132")
        t("s_lshl_b32 s60, s50, 16"); t("v_add_u32 v138, s60, v138")
        for jj in range(4):
            t(f"v_add_u32 v139, {4*jj}, v133")
            t("v_xor_b32 v139, v139, v136")
            t(f"v_lshl_add_u32 v{KA+jj}, v139, 4, v138")
        t("v_lshrrev_b32 v136, 2, v132")
        t("v_lshl_add_u32 v136, v133, 2, v136")
        t("v_lshlrev_b32 v138, 9, v136")
        t("v_add_u32 v138, s60, v138")
        t("v_and_b32 v139, 1, v132"); t("v_lshl_add_u32 v138, v139, 3, v138")
        t("v_and_b32 v136, 7, v136"); t("v_lshlrev_b32 v136, 1, v136")
        t("v_bfe_u32 v139, v132, 1, 1")
        for dd in range(8):
            t(f"v_add_u32 v140, {2*dd}, v139")
            t("v_xor_b32 v140, v140, v136")
            t(f"v_lshl_add_u32 v{VA+dd}, v140, 4, v138")
    t("@KAVA")
    kava_setup(t)
    if not LEAN:
        for r in range(128): t(f"v_mov_b32 v{O+r}, 0")
        for r in range(128): t(f"v_accvgpr_write_b32 a{aO+r}, 0")
    for k in range(4): t(f"v_mov_b32 v{LS+k}, 0")
    if o.get('pkadd'):
        for k in range(8): t(f"v_mov_b32 v{224+k}, 0")
    t("s_mov_b32 s58, 0")
    q_read(t)
    if FUSED:
        i_kava = T.index("@KAVA")
        loads = T[pre_dma:i_kava]
        rest = T[i_kava+1:]
        T[:] = T[:pre_dma]
        if o.get('ct'):
            t("s_lshl_b32 s60, s53, 5"); t("s_max_u32 s61, s53, 1"); t("s_sub_u32 s61, s61, 1"); t("s_sub_u32 s60, s60, s61")
            t("s_lshl_b32 s62, s52, 2"); t("s_sub_u32 s62, s62, 32")
            t("v_add_u32 v150, s60, v131"); t("v_add_u32 v151, s62, v131")
            t("v_cmp_gt_u32 vcc, 32, v131"); t("s_nop 1"); t("v_cndmask_b32 v150, v151, v150, vcc")
            t("s_lshl_b32 s62, s52, 2"); t("v_mov_b32 v151, s62")
            t("v_cmp_gt_u32 vcc, 36, v131"); t("s_nop 1"); t("v_cndmask_b32 v150, v151, v150, vcc")
            t("v_min_u32 v150, 124, v150")
            t("s_mul_i32 s61, s51, 125"); t("v_add_u32 v150, s61, v150")
        else:
            t("s_lshl_b32 s60, s53, 5"); t("s_max_u32 s61, s53, 1"); t("s_sub_u32 s61, s61, 1"); t("s_sub_u32 s60, s60, s61")
            t("s_lshl_b32 s60, s60, 5"); t("s_mul_i32 s61, s51, 4000"); t("s_add_u32 s60, s60, s61"); t("s_lshr_b32 s60, s60, 6")
            t("s_lshl_b32 s62, s52, 7"); t("s_add_u32 s62, s62, s61"); t("s_lshr_b32 s62, s62, 6")
            t("v_add_u32 v150, s60, v131")
            t("v_add_u32 v151, s62, v131"); t("v_subrev_u32 v151, 18, v151")
            t("v_cmp_gt_u32 vcc, 18, v131"); t("s_nop 1"); t("v_cndmask_b32 v150, v151, v150, vcc")
            t("v_mov_b32 v151, s62")
            t("v_cmp_gt_u32 vcc, 21, v131"); t("s_nop 1"); t("v_cndmask_b32 v150, v151, v150, vcc")
            t("v_min_u32 v150, 124, v150")
        t("v_lshlrev_b32 v150, 7, v150"); t(f"v_add_u32 v150, {FLQ}, v150")
        XAF = FF and o.get('xaflag', True) and not o.get('ct')
        if XAF:
            t("v_add_u32 v152, 4, v150"); t("v_cmp_gt_u32 vcc, 18, v131"); t("s_nop 1"); t("v_cndmask_b32 v150, v150, v152, vcc")
        if o.get('wfpf', False):
            t("v_subrev_u32 v151, 40, v131"); t("v_lshlrev_b32 v152, 7, v151"); t(f"v_add_u32 v152, {FLW}, v152")
            t("v_cmp_gt_u32 vcc, 6, v151"); t("s_nop 1"); t("v_cndmask_b32 v150, v150, v152, vcc")
        if FF:
            EARLY = LEAN and o.get('early', False)
            if EARLY: t("v_readfirstlane_b32 s3, v243")
            t("buffer_load_dword v151, v150, s[44:47], 0 offen sc1")
            DEF = o.get('defer', True)
            if DEF:
                t("s_cmp_eq_u32 s98, 1"); t("s_cbranch_scc0 K1_NODEF")
                t("s_waitcnt lgkmcnt(0)")
                for half in range(2):
                    for k in range(4):
                        t(f"buffer_store_dwordx4 v[{64+(half*4+k)*4}:{67+(half*4+k)*4}], v{228+k}, s[24:27], {'s89' if half else 's88'} offen offset:{k*1024} sc1")
                if EARLY:
                    t("K1_NODEF:")
                    T.extend(rest); rest = []
                    t("s_cmp_eq_u32 s98, 1"); t("s_cbranch_scc0 K1_NODEF2")
                t("s_waitcnt vmcnt(8)")
                if not EARLY: t("v_readfirstlane_b32 s3, v243"); t("s_nop 3")
                t("s_cmp_lg_u32 s3, 0"); t("s_cbranch_scc0 K1_TAGP")
                t("s_barrier")
                t("s_branch K1_NOFL")
                t("K1_NODEF2:" if EARLY else "K1_NODEF:")
            t("s_waitcnt vmcnt(0) lgkmcnt(0)")
            if not EARLY: t("v_readfirstlane_b32 s3, v243"); t("s_nop 3")
            t("s_cmp_lg_u32 s3, 0"); t("s_cbranch_scc1 K1_TAGD")
            t("K1_TAGP:")
            t("buffer_load_dword v154, off, s[92:95], 0 sc1"); t("s_waitcnt vmcnt(0)")
            t("v_readfirstlane_b32 s3, v154"); t("s_nop 3")
            t("s_cmp_lg_u32 s3, 0"); t("s_cbranch_scc1 K1_TAGD"); t("s_sleep 1")
            t("s_add_u32 s101, s101, 1"); t("s_cmp_lt_u32 s101, 0x400000"); t("s_cbranch_scc1 K1_TAGP")
            t("K1_TAGD:")
            t("s_barrier")
            if o.get('defer', True): t("s_cmp_eq_u32 s98, 1"); t("s_cbranch_scc1 K1_NOFL")
            t("s_cmp_eq_u32 s48, 0"); t("s_cbranch_scc0 K1_NOFL")
            t("v_mov_b32 v152, s3"); t("v_mov_b32 v153, s3")
            t("v_cmp_eq_u32 vcc, 0, v131"); t("s_and_saveexec_b64 s[70:71], vcc")
            t("buffer_store_dwordx2 v[152:153], off, s[44:47], s67 sc1")
            t("s_mov_b64 exec, s[70:71]")
            t("K1_NOFL:")
            t("v_cmp_ne_u32 vcc, s3, v151"); t("s_nop 1"); t("s_cmp_eq_u64 vcc, 0"); t("s_cbranch_scc1 K2_QD")
        if XAF:
            t("s_mov_b32 s66, 0")
            t("K2_QA:")
            t("s_and_b32 s60, vcc_lo, 0x3ffff"); t("s_cmp_eq_u32 s60, 0"); t("s_cbranch_scc1 K2_QAD")
            t(f"s_sleep {o.get('qsleep', 1)}")
            t("buffer_load_dword v151, v150, s[44:47], 0 offen sc1"); t("s_waitcnt vmcnt(0)")
            t("v_cmp_ne_u32 vcc, s3, v151"); t("s_nop 1")
            t("s_add_u32 s101, s101, 1"); t("s_cmp_lt_u32 s101, 0x400000"); t("s_cbranch_scc1 K2_QA")
            t("K2_QAD:")
            for n in range(1 if LEAN else 3):
                for txt, _ in dma_lines(n): t(txt)
            t("K2_QP:")
            t("buffer_load_dword v151, v150, s[44:47], 0 offen sc1")
            t("s_waitcnt vmcnt(0)")
            t("v_cmp_ne_u32 vcc, s3, v151")
            t("s_nop 1")
            t("s_cmp_eq_u64 vcc, 0"); t("s_cbranch_scc1 K2_QB"); t(f"s_sleep {o.get('qsleep', 1)}")
            t("s_add_u32 s101, s101, 1"); t("s_cmp_lt_u32 s101, 0x400000"); t("s_cbranch_scc1 K2_QP")
            t("K2_QB:")
            q_dma(t)
            t("s_branch K2_QE")
            t("K2_QD:")
            t("s_mov_b32 s66, 1")
            T.extend(loads)
            t("K2_QE:")
        else:
            t("K2_QP:")
            t("buffer_load_dword v151, v150, s[44:47], 0 offen sc1")
            t("s_waitcnt vmcnt(0)")
            t("v_cmp_ne_u32 vcc, s3, v151")
            t("s_nop 1")
            t("s_cmp_eq_u64 vcc, 0"); t("s_cbranch_scc1 K2_QD"); t("s_sleep 1")
            t("s_add_u32 s101, s101, 1"); t("s_cmp_lt_u32 s101, 0x400000"); t("s_cbranch_scc1 K2_QP")
            t("K2_QD:")
            T.extend(loads)
        if o.get('wfpf', False):
            T.extend(cap_(lambda e: srd(e, 16, 's4', 's5', WF_OFF, 262144)))
            t("s_lshr_b32 s60, s2, 3"); t("s_lshl_b32 s60, s60, 13"); t("s_lshl_b32 s61, s48, 11"); t("s_add_u32 s60, s60, s61")
            t("v_lshlrev_b32 v150, 4, v131")
            t("buffer_load_dwordx4 v[224:227], v150, s[16:19], s60 offen sc1")
            t("buffer_load_dwordx4 v[228:231], v150, s[16:19], s60 offen offset:1024 sc1")
        if not LEAN: T.extend(xcc_blk)
        T.extend(rest)
    else:
        T.remove("@KAVA")
    if LEAN:
        t("s_waitcnt vmcnt(0)")
        t("s_barrier")
        T.extend(xcc_blk)
    else:
        if FUSED and FF and o.get('xaflag', True) and not o.get('ct'):
            t("s_cmp_eq_u32 s66, 1"); t("s_cbranch_scc1 K2_W16"); t("s_waitcnt vmcnt(0)"); t("K2_W16:")
        t("s_waitcnt vmcnt(18)" if (FUSED and o.get('wfpf', False)) else "s_waitcnt vmcnt(16)")
        t("s_barrier")
    if FUSED and FF and o.get('defer', True):
        t("s_cmp_eq_u32 s98, 1"); t("s_cbranch_scc0 K2_NODF"); t("s_cmp_eq_u32 s48, 0"); t("s_cbranch_scc0 K2_NODF")
        t("v_mov_b32 v152, s3"); t("v_mov_b32 v153, s3"); t("v_mbcnt_lo_u32_b32 v154, -1, 0"); t("v_mbcnt_hi_u32_b32 v154, -1, v154")
        t("v_cmp_eq_u32 vcc, 0, v154"); t("s_and_saveexec_b64 s[70:71], vcc")
        t("buffer_store_dwordx2 v[152:153], off, s[44:47], s67 sc1")
        t("s_mov_b64 exec, s[70:71]")
        t("K2_NODF:")
    if o['stamp']: t("s_memtime s[76:77]"); t("s_memrealtime s[78:79]"); t("s_waitcnt lgkmcnt(0)")
    q_read2(t)
    L += hazard.autofix(T)
    DF = o['DF']
    ev = []; seq = [0]
    def add(tm, kind, prio=5, **kw):
        seq[0] += 1; ev.append((tm, prio, seq[0], kind, kw))
    def TT(i, n): return 128*i + n
    NT = 16
    for n in range(NT):
        slot = n % 4
        for kt in range(2):
            for j in range(8):
                f = 8*kt + j
                tm = TT(n-1, 4*f); tr = tm - 4*DF
                ring = RING + 4*(f % 4)
                off = slot*SLOT + kt*8192 + (j >> 2)*256
                add(tr, 'lds', prio=2, text=f"ds_read_b128 {vr(ring,4)}, v{KA+(j&3)} offset:{off}", tag=('K', n, f))
                if n < NT:
                    for qt in range(4):
                        acc = vr(Sreg(kt, qt), 4)
                        c = acc if j else ('0' if n == 0 else vr(NEGM+4*qt, 4))
                        add(tm+qt, 'mfma', prio=0, text=f"{M16} {acc}, {vr(ring,4)}, {ar(aQ+(qt*8+j)*4,4)}, {c}",
                            need=([('K', n, f)] if qt == 0 else []) + ([('Q', qt, j)] if n == 0 else []))
    for n in range(NT):
        slot = n % 4
        for dt in range(16):
            f = 16 + dt
            tm = TT(n, 4*f); tr = tm - 4*DF
            ring = RING + 4*(f % 4)
            for u in range(2):
                off = slot*SLOT + u*8192 + (dt >> 3)*256
                add(tr, 'lds', prio=2, text=f"ds_read_b64_tr_b16 {vr(ring+2*u,2)}, v{VA+(dt&7)} offset:{off}", tag=('V', n, dt, u))
            for qt in range(4):
                add(tm+qt, 'mfma', prio=0, text=f"{M16} {Oreg(dt,qt)}, {vr(ring,4)}, {vr(P[n%2]+4*qt,4)}, {Oreg(dt,qt)}",
                    need=[('V', n, dt, 0), ('V', n, dt, 1)] if qt == 0 else [])
        for kt in range(2):
            for el in range(16 if o.get('valu', True) else 0):
                qt, r = el >> 2, el & 3
                te = TT(n-1, (o['e0'] if kt == 0 else o['e1']) + o['estep']*el)
                reg = Sreg(kt, qt) + r
                add(te, 'valu', prio=3, text=f"v_exp_f32 v{reg}, v{reg}")
                if not o.get('pkadd'):
                    add(te+o['addd'], 'valu', prio=3, text=f"v_add_f32 v{LS+qt}, v{LS+qt}, v{reg}")
                elif r % 2 == 1:
                    add(te+o['addd'], 'valu', prio=3, text=f"v_pk_add_f32 v[{224+2*qt}:{225+2*qt}], v[{224+2*qt}:{225+2*qt}], v[{reg-1}:{reg}]")
                if r % 2 == 1:
                    add(te+o['cvtd'], 'valu', prio=4, text=f"v_cvt_pk_bf16_f32 v{P[n%2]+4*qt+2*kt+r//2}, v{reg-1}, v{reg}")
    if LEAN:
        k = 0
        for n in (1, 2):
            lines = dma_lines(n)
            for idx, (txt, vm) in enumerate(lines):
                if vm:
                    add(TT(-1, 1 + 4*k), 'dma', prio=7, text=txt, tile=n); k += 1
                elif idx == len(lines) - 1:
                    add(TT(-1, 1 + 4*(k-1)), 'salu', prio=8, text=txt)
                else:
                    add(TT(-1, 1 + 4*k), 'salu', prio=6, text=txt)
        for r in range(128): add(TT(-1, r // 2), 'valu', prio=4, text=f"v_mov_b32 v{O+r}, 0")
    for i in range(-1, NT-2):
        add(TT(i, 100 if (LEAN and i == -1) else o['bslot']), 'bar', prio=6, it=i)
        if i >= 0 and i + 3 < NT and o.get('dma', True):
            k = 0
            for txt, vm in dma_lines((i+3) % 4):
                tm = TT(i, o['dma0'] + o['dmastep']*k)
                if vm:
                    add(tm, 'dma', prio=7, text=txt, tile=i+3); k += 1
                else:
                    add(tm if k < 8 else TT(i, o['dma0'] + o['dmastep']*7), 'salu', prio=6 if k < 8 else 8, text=txt)
    tail_ev = []
    ev.sort(key=lambda x: (x[0], x[1], x[2]))
    W = Waiter()
    for n in (() if LEAN else (1, 2)):
        for k in range(8): W.issue('vm', ('T', n))
    if FUSED and o.get('wfpf', False):
        W.issue('vm', 'PF0'); W.issue('vm', 'PF1')
    for j in range(8):
        for qt in range(4): W.issue('lgkm', ('Q', qt, j))
    its = {}
    for x in ev:
        tm, _, _, kind, kw = x
        it = max(tm // 128, -1)
        out = its.setdefault(it, [])
        if kind == 'mfma':
            n = W.need('lgkm', kw['need'])
            if n is not None: out.append(f"s_waitcnt lgkmcnt({n})")
            out.append(kw['text'])
            if tm == TT(-1, 63):
                out.append("@FIXUP")
        elif kind == 'lds':
            out.append(kw['text']); W.issue('lgkm', kw['tag'])
        elif kind == 'bar':
            n = W.need('vm', [('T', kw['it']+2)])
            if n is not None: out.append(f"s_waitcnt vmcnt({n})")
            if o.get('barrier', True) or kw['it'] < 0: out.append("s_barrier")
        elif kind == 'dma':
            out.append(kw['text']); W.issue('vm', ('T', kw['tile']))
        else:
            out.append(kw['text'])
    for i in range(8, 13):
        assert its[i] == its[i-4], (i, [(a, b) for a, b in zip(its[i], its[i-4]) if a != b][:5])
    pro = its[-1]
    fi = pro.index("@FIXUP")
    if not o.get('valu', True):
        its[15] = its[15] + ["v_add_f32 v248, v248, v248"]
    pre_valu = [x for x in pro[:fi] if x.startswith('v_exp') or x.startswith('v_add_f32') or x.startswith('v_cvt') or x.startswith('v_pk_add')]
    pro_a = [x for x in pro[:fi] if x not in pre_valu]
    fix = []
    fx = fix.append
    fx("s_nop 7")
    for qt in range(4):
        a, b = Sreg(0, qt), Sreg(1, qt)
        fx(f"v_max3_f32 v{NEGM+qt}, v{a}, v{a+1}, v{a+2}")
        fx(f"v_max3_f32 v{NEGM+qt}, v{NEGM+qt}, v{a+3}, v{b}")
        fx(f"v_max3_f32 v{NEGM+qt}, v{NEGM+qt}, v{b+1}, v{b+2}")
        fx(f"v_max_f32 v{NEGM+qt}, v{NEGM+qt}, v{b+3}")
    for sw in ("v_permlane16_swap_b32", "v_permlane32_swap_b32"):
        for qt in range(4): fx(f"v_mov_b32 v{NEGM+4+qt}, v{NEGM+qt}")
        fx("s_nop 1")
        for qt in range(4): fx(f"{sw} v{NEGM+qt}, v{NEGM+4+qt}")
        fx("s_nop 1")
        for qt in range(4): fx(f"v_max_f32 v{NEGM+qt}, v{NEGM+qt}, v{NEGM+4+qt}")
    fx("v_mbcnt_lo_u32_b32 v254, -1, 0"); fx("v_mbcnt_hi_u32_b32 v254, -1, v254")
    fx("v_lshlrev_b32 v254, 4, v254")
    fx(f"s_lshl_b32 s60, s48, 10"); fx(f"s_add_u32 s60, s60, {MX}")
    fx("v_add_u32 v255, s60, v254")
    fx(f"ds_write_b128 v255, {vr(NEGM,4)}")
    fx("s_xor_b32 s60, s60, 2048")
    fx("v_add_u32 v255, s60, v254")
    fx("s_waitcnt lgkmcnt(0)")
    fx("s_barrier")
    fx(f"ds_read_b128 {vr(NEGM+4,4)}, v255")
    fx("s_waitcnt lgkmcnt(0)")
    for qt in range(4): fx(f"v_max_f32 v{NEGM+8+qt}, v{NEGM+qt}, v{NEGM+4+((qt+2)&3)}")
    fx(f"v_mov_b32 v{MREF}, v{NEGM+8}"); fx(f"v_mov_b32 v{MREF+1}, v{NEGM+9}")
    for kt in range(2):
        for qt in range(4):
            for r in range(4): fx(f"v_sub_f32 v{Sreg(kt,qt)+r}, v{Sreg(kt,qt)+r}, v{NEGM+8+qt}")
    for qt in range(4): fx(f"v_mov_b32 v{254}, v{NEGM+8+qt}") if False else None
    for qt in (3, 1, 0):
        for r in range(4): fx(f"v_sub_f32 v{NEGM+4*qt+r}, 0, v{NEGM+8+qt}") if qt != 2 else None
    fx(f"v_sub_f32 v254, 0, v{NEGM+10}")
    for r in range(4): fx(f"v_mov_b32 v{NEGM+8+r}, v254")
    L += hazard.autofix(pro_a + fix + pre_valu + pro[fi+1:])
    if o['stamp']:
        e("s_memtime s[24:25]")
    e("K2_LOOP:")
    body = {u: its[4+u] for u in range(4)}
    L += body[0]
    e("s_cmp_eq_u32 s58, 3")
    e("s_cbranch_scc1 K2_EPI")
    L += body[1]; L += body[2]; L += body[3]
    e("s_add_u32 s58, s58, 1")
    e("s_branch K2_LOOP")
    e("K2_EPI:")
    if o['stamp']:
        e("s_memtime s[26:27]"); e("s_waitcnt lgkmcnt(0)"); e("s_sub_u32 s101, s26, s24"); e("s_sub_u32 s100, s24, s76")
    if FUSED:
        TA, TB, TC = (248, 249, 250) if o.get('pkadd') else (224, 225, 226)
        pre13 = []
        p = pre13.append
        p("s_lshl_b32 s60, s52, 7"); p("s_lshl_b32 s61, s53, 5"); p("s_add_u32 s60, s60, s61"); p("s_min_u32 s60, s60, 3968")
        p("s_mul_i32 s61, s51, 4000"); p("s_add_u32 s60, s60, s61")
        sh = 5 if o.get('ct') else 6
        if o.get('ct'):
            p("s_lshr_b32 s62, s60, 5")
        p("s_max_u32 s61, s60, 2"); p("s_sub_u32 s61, s61, 2"); p(f"s_lshr_b32 s61, s61, {sh}")
        p("s_add_u32 s60, s60, 33"); p("s_min_u32 s60, s60, 7999"); p(f"s_lshr_b32 s60, s60, {sh}")
        p(f"v_mbcnt_lo_u32_b32 v{TA}, -1, 0"); p(f"v_mbcnt_hi_u32_b32 v{TA}, -1, v{TA}")
        p(f"v_min_u32 v{TB}, 7, v{TA}"); p(f"v_lshlrev_b32 v{TB}, 7, v{TB}"); p(f"v_add_u32 v{TB}, {FLW - 256}, v{TB}")
        p("s_lshl_b32 s61, s61, 7"); p(f"s_add_u32 s61, s61, {FLU}"); p(f"v_mov_b32 v{TC}, s61")
        p(f"v_cmp_eq_u32 vcc, 0, v{TA}"); p("s_nop 1"); p(f"v_cndmask_b32 v{TB}, v{TB}, v{TC}, vcc")
        p("s_lshl_b32 s60, s60, 7"); p(f"s_add_u32 s60, s60, {FLU}"); p(f"v_mov_b32 v{TC}, s60")
        p(f"v_cmp_eq_u32 vcc, 1, v{TA}"); p("s_nop 1"); p(f"v_cndmask_b32 v{TB}, v{TB}, v{TC}, vcc")
        if o.get('ct'):
            p("s_lshl_b32 s62, s62, 7"); p(f"s_add_u32 s62, s62, {FLU}"); p(f"v_mov_b32 v{TC}, s62")
            p(f"v_cmp_eq_u32 vcc, 8, v{TA}"); p("s_nop 1"); p(f"v_cndmask_b32 v{TB}, v{TB}, v{TC}, vcc")
        p(f"buffer_load_dword v{TC}, v{TB}, s[44:47], 0 offen sc1")
        IP2 = o.get('ipf2', False) and not o.get('pkadd')
        if IP2:
            p("s_getpc_b64 s[60:61]")
            p("K2_PCREF:")
            p("s_add_u32 s60, s60, K2_NOMASK-K2_PCREF"); p("s_addc_u32 s61, s61, 0")
            p("s_lshr_b32 s62, s2, 3"); p("s_lshl_b32 s62, s62, 2"); p("s_add_u32 s62, s62, s48"); p(f"s_min_u32 s62, s62, {o.get('ipf2n', 15)}"); p("s_lshl_b32 s62, s62, 10")
            p(f"v_lshlrev_b32 v227, 4, v{TA}"); p("v_add_u32 v227, s62, v227")
            p("global_load_dwordx4 v[228:231], v227, s[60:61]")
        L += hazard.autofix(pre13)
        i13 = list(its[13])
        bi = i13.index("s_barrier")
        assert i13[bi-1] == "s_waitcnt vmcnt(0)", i13[bi-3:bi+1]
        i13[bi-1] = "s_waitcnt vmcnt(2)" if IP2 else "s_waitcnt vmcnt(1)"
        chk = ["s_waitcnt vmcnt(0)", "K2_TP:", f"v_cmp_ne_u32 vcc, s3, v{TC}", "s_nop 1", "s_cmp_eq_u64 vcc, 0", "s_cbranch_scc1 K2_TD", "s_sleep 1",
               f"buffer_load_dword v{TC}, v{TB}, s[44:47], 0 offen sc1", "s_waitcnt vmcnt(0)", "s_add_u32 s101, s101, 1", "s_cmp_lt_u32 s101, 0x400000", "s_cbranch_scc1 K2_TP", "K2_TD:"]
        L += i13 + chk
    else:
        L += its[13]
    e("s_cmp_eq_u32 s59, 3")
    e("s_cbranch_scc0 K2_NOMASK")
    for r in range(16): e(f"v_mov_b32 v{NEGM+r}, 0xf149f2ca")
    e("s_nop 1")
    e("K2_NOMASK:")
    import gen_tail
    tail, resume = gen_tail.gen_tail(o, its[14], its[15], W)
    L += tail
    e("s_branch K2_END")
    T = []; t = T.append
    M_, MN, AL = NEGM, NEGM + 4, NEGM + 8
    t("K2_SLOW:")
    t("s_mov_b32 s54, 1")
    t("s_waitcnt vmcnt(0) lgkmcnt(0)")
    t("s_barrier")
    t("v_mbcnt_lo_u32_b32 v131, -1, 0"); t("v_mbcnt_hi_u32_b32 v131, -1, v131")
    dv_setup(t)
    S_2 = lambda fn: (lambda b: (fn(b.append), T.extend(b)))([])
    S_2(lambda e: srd(e, 12, 's4', 's5', QF_OFF, 500*8192))
    q_dma(t)
    kava_setup(t)
    for r in range(128): t(f"v_mov_b32 v{O+r}, 0")
    for r in range(128): t(f"v_accvgpr_write_b32 a{aO+r}, 0")
    for k in range(4): t(f"v_mov_b32 v{LS+k}, 0"); t(f"v_mov_b32 v{M_+k}, 0xf149f2ca")
    t("s_lshl_b32 s56, s50, 16"); t("s_lshl_b32 s60, s49, 13"); t("s_add_u32 s56, s56, s60")
    t("s_mov_b32 s57, 0"); t("s_mov_b32 s58, 0")
    t("s_waitcnt vmcnt(0)")
    t("s_barrier")
    q_read(t); q_read2(t)
    t("s_waitcnt lgkmcnt(0)")
    t("K2_SL_LOOP:")
    t("s_barrier")
    for txt, _ in dma_lines(0): t(txt)
    t("s_waitcnt vmcnt(0)")
    t("s_barrier")
    t("s_lshl_b32 s60, s58, 14"); t("s_cmp_lt_u32 s60, s55")
    t("s_cbranch_scc0 K2_SL_NEXT")
    for kt in range(2):
        for j in range(8):
            t(f"ds_read_b128 {vr(RING,4)}, v{KA+(j&3)} offset:{kt*8192 + (j>>2)*256}")
            t("s_waitcnt lgkmcnt(0)")
            for qt in range(4):
                acc = vr(Sreg(kt, qt), 4)
                t(f"{M16} {acc}, {vr(RING,4)}, {ar(aQ+(qt*8+j)*4,4)}, {acc if j else '0'}")
            t("s_nop 3")
    t("s_nop 7")
    for qt in range(4):
        a, b = Sreg(0, qt), Sreg(1, qt)
        t(f"v_max3_f32 v{MN+qt}, v{a}, v{a+1}, v{a+2}")
        t(f"v_max3_f32 v{MN+qt}, v{MN+qt}, v{a+3}, v{b}")
        t(f"v_max3_f32 v{MN+qt}, v{MN+qt}, v{b+1}, v{b+2}")
        t(f"v_max3_f32 v{MN+qt}, v{MN+qt}, v{b+3}, v{M_+qt}")
    for sw in ("v_permlane16_swap_b32", "v_permlane32_swap_b32"):
        for qt in range(4): t(f"v_mov_b32 v{AL+qt}, v{MN+qt}")
        t("s_nop 1")
        for qt in range(4): t(f"{sw} v{MN+qt}, v{AL+qt}")
        t("s_nop 1")
        for qt in range(4): t(f"v_max_f32 v{MN+qt}, v{MN+qt}, v{AL+qt}")
    for qt in range(4):
        t(f"v_sub_f32 v{AL+qt}, v{M_+qt}, v{MN+qt}"); t(f"v_exp_f32 v{AL+qt}, v{AL+qt}"); t(f"v_mov_b32 v{M_+qt}, v{MN+qt}")
    t("s_nop 0")
    for qt in range(4):
        t(f"v_mul_f32 v{LS+qt}, v{LS+qt}, v{AL+qt}")
        for kt in range(2):
            for r in range(4):
                reg = Sreg(kt, qt) + r
                t(f"v_sub_f32 v{reg}, v{reg}, v{M_+qt}"); t(f"v_exp_f32 v{reg}, v{reg}"); t("s_nop 0")
                t(f"v_add_f32 v{LS+qt}, v{LS+qt}, v{reg}")
            for h2 in range(2):
                t(f"v_cvt_pk_bf16_f32 v{P[0]+4*qt+2*kt+h2}, v{Sreg(kt,qt)+2*h2}, v{Sreg(kt,qt)+2*h2+1}")
    def rescale():
        for dt in range(16):
            for qt in range(2):
                for r in range(4): t(f"v_mul_f32 v{O+(dt*2+qt)*4+r}, v{O+(dt*2+qt)*4+r}, v{AL+qt}")
                for r in range(4):
                    a = aO + (dt*2+qt)*4 + r
                    t(f"v_accvgpr_read_b32 v{NEGM+12+r}, a{a}")
                for r in range(4): t(f"v_mul_f32 v{NEGM+12+r}, v{NEGM+12+r}, v{AL+2+qt}")
                for r in range(4):
                    a = aO + (dt*2+qt)*4 + r
                    t(f"v_accvgpr_write_b32 a{a}, v{NEGM+12+r}")
    rescale()
    t("s_nop 1")
    for dt in range(16):
        for u in range(2):
            t(f"ds_read_b64_tr_b16 {vr(RING+2*u,2)}, v{VA+(dt&7)} offset:{u*8192 + (dt>>3)*256}")
        t("s_waitcnt lgkmcnt(0)")
        for qt in range(4):
            t(f"{M16} {Oreg(dt,qt)}, {vr(RING,4)}, {vr(P[0]+4*qt,4)}, {Oreg(dt,qt)}")
        t("s_nop 3")
    t("s_nop 7")
    t("K2_SL_NEXT:")
    t("s_add_u32 s58, s58, 1"); t("s_cmp_lt_u32 s58, 16"); t("s_cbranch_scc1 K2_SL_LOOP")
    t("s_barrier")
    t("v_mbcnt_lo_u32_b32 v254, -1, 0"); t("v_mbcnt_hi_u32_b32 v254, -1, v254"); t("v_lshlrev_b32 v254, 4, v254")
    t(f"s_lshl_b32 s60, s48, 10"); t(f"s_add_u32 s60, s60, {MX}"); t("v_add_u32 v255, s60, v254")
    t(f"ds_write_b128 v255, {vr(M_,4)}")
    t("s_xor_b32 s60, s60, 2048"); t("v_add_u32 v255, s60, v254")
    t("s_waitcnt lgkmcnt(0)"); t("s_barrier")
    t(f"ds_read_b128 {vr(MN,4)}, v255"); t("s_waitcnt lgkmcnt(0)")
    for qt in range(4): t(f"v_max_f32 v{RING+qt}, v{M_+qt}, v{MN+((qt+2)&3)}")
    for qt in range(4):
        t(f"v_sub_f32 v{AL+qt}, v{M_+qt}, v{RING+qt}"); t(f"v_exp_f32 v{AL+qt}, v{AL+qt}")
    t("s_nop 0")
    for qt in range(4): t(f"v_mul_f32 v{LS+qt}, v{LS+qt}, v{AL+qt}")
    t(f"v_mov_b32 v{MREF}, v{RING}"); t(f"v_mov_b32 v{MREF+1}, v{RING+1}")
    rescale()
    t("s_barrier")
    L += hazard.autofix(T + resume)
    e("K2_END:")
    e("s_endpgm")
    i0 = L.index("K2_LOOP:"); i1 = L.index("K2_EPI:")
    lin = L[i0-60:i1] + L[i0:i1] + L[i1:i1+700]
    errs = hazard.check(lin, 'k2f')
    return L, ([] if FUSED else kernel_desc(name, 512, 256)), errs
```

```python
from gen_common import *
from tl import TL
import hazard, struct
SLOT = 16384
EX = 131072
fb = lambda x: hex(struct.unpack('<I', struct.pack('<f', x))[0])

def gen_k1(opt=None):
    o = dict(D=6, stamp=False, st='', npre=2, nln=4)
    if opt: o.update(opt)
    D = o['D']; ST = (' ' + o['st']) if o['st'] else ''
    FUSED = o.get('fused')
    name = FUSED if FUSED else 'prep_kernel'
    L = []; e = L.append
    B = 0; ACC = [64, 128]; KA = 192; KA2 = 200; VN = 208; VN2 = 216; DV = 224; DS = 228; XB = 200
    aR = 0; R = 8
    def stamp(T, k):
        if o['stamp']: T.append(f"s_memrealtime s[{72+2*k}:{73+2*k}]")
    L += kernel_header(name)
    e("s_cmp_ge_u32 s2, 256")
    e("s_cbranch_scc1 K2_END" if FUSED else "s_cbranch_scc1 K1_END")
    e("s_load_dwordx16 s[36:51], s[0:1], 0")
    e("s_load_dwordx2 s[52:53], s[0:1], 64")
    e("s_load_dwordx2 s[54:55], s[0:1], 88")
    FF = FUSED and o.get('fastfin', True) and not o.get('ct')
    if FUSED: e("s_load_dwordx2 s[58:59], s[0:1], 80")
    if FF: e("s_load_dwordx2 s[100:101], s[0:1], 72")
    if FF: e("s_mov_b32 s98, 0")
    if FUSED and not FF: e("s_mov_b32 s101, 0")
    if o['stamp']:
        e("s_memtime s[60:61]"); e("s_memrealtime s[62:63]")
    e("v_lshrrev_b32 v232, 6, v0")
    e("v_and_b32 v240, 63, v0")
    e("v_lshrrev_b32 v241, 5, v240")
    e("v_and_b32 v242, 31, v240")
    e("v_readfirstlane_b32 s28, v232")
    e("s_and_b32 s29, s28, 1")
    e("s_lshr_b32 s30, s28, 1")
    e("s_lshl_b32 s31, s28, 12")
    CT = o.get('ct')
    if CT: e("s_mov_b32 s35, s2")
    else: e("s_sub_u32 s35, s2, 125"); e("s_cmp_lt_u32 s2, 125"); e("s_cselect_b32 s35, s2, s35")
    e("s_lshl_b32 s33, s28, 1")
    for k in range(4):
        e(f"v_add_u32 v234, {2*k}, v241"); e("v_and_b32 v234, 3, v234"); e("v_lshlrev_b32 v234, 2, v234")
        e(f"s_add_u32 s34, s33, {k>>1}"); e("s_and_b32 s34, s34, 3")
        e("v_or_b32 v234, s34, v234"); e("v_xor_b32 v234, v242, v234"); e("v_lshlrev_b32 v234, 4, v234")
        e("v_lshl_add_u32 v234, v241, 9, v234")
        e(f"v_add_u32 v{DS+k}, s31, v234")
    e("s_waitcnt lgkmcnt(0)")
    if FUSED:
        e("s_mov_b32 s4, s58"); e("s_mov_b32 s5, s59"); e("s_mov_b32 s6, 256"); e("s_mov_b32 s7, 0x20000")
        e("s_or_b32 s33, s2, s28"); e("s_cmp_eq_u32 s33, 0"); e("s_cbranch_scc0 K1_NOTAG")
        e("s_memrealtime s[56:57]"); e("s_waitcnt lgkmcnt(0)"); e("s_or_b32 s56, s56, 1")
        e("v_mov_b32 v234, s56")
        e("buffer_store_dword v234, off, s[4:7], 0 sc1")
        e("K1_NOTAG:")
    e("s_cmp_lt_u32 s2, 250"); e("s_cbranch_scc0 K1_NOX")
    srd(e, 16, 's36', 's37', 0, 8000*512)
    e("s_lshl_b32 s32, s35, 14" if CT else "s_lshl_b32 s32, s35, 15")
    for half in range(1 if CT else 2):
        e(f"s_add_u32 m0, s31, {EX + half*SLOT:#x}")
        if half: e("s_add_u32 s32, s32, 16384")
        else: e("s_nop 0")
        for k in range(4):
            e(f"buffer_load_dwordx4 v{DS+k}, s[16:19], s32 offen offset:{k*1024} lds")
    PU = FUSED and o.get('pfug', True) and o.get('ugfirst', True) and not CT
    if PU:
        e("s_cmp_lt_u32 s2, 128"); e("s_cbranch_scc0 K1_NOX")
        e("s_lshr_b32 s33, s2, 3"); e("s_lshl_b32 s33, s33, 2"); e("s_add_u32 s33, s33, s28")
        e("v_lshlrev_b32 v232, 4, v240")
        e("s_getpc_b64 s[56:57]")
        e("K1_PCREF:")
        e(f"s_add_u32 s56, s56, K1_NOX-K1_PCREF"); e("s_addc_u32 s57, s57, 0")
        e("s_lshl_b32 s34, s33, 10"); e("v_add_u32 v233, s34, v232")
        e(f"s_cmp_lt_u32 s34, {o.get('ipfbytes', 61440)}"); e("s_cbranch_scc0 K1_NOIPF")
        e("global_load_dwordx4 v[252:255], v233, s[56:57]")
        e("K1_NOIPF:")
        e("s_mov_b32 s8, s40"); e("s_mov_b32 s9, s41"); e("s_mov_b32 s10, 131072"); e("s_mov_b32 s11, 0x20000")
        e("s_lshl_b32 s34, s33, 11")
        e("buffer_load_dwordx4 v[100:103], v232, s[8:11], s34 offen")
        e("buffer_load_dwordx4 v[104:107], v232, s[8:11], s34 offen offset:1024")
        e("s_and_b32 s33, s2, 7"); e("s_cmp_lt_u32 s33, 2"); e("s_cbranch_scc1 K1_NOX")
        e("s_lshr_b32 s34, s2, 3")
        e("s_add_u32 s56, s52, 131072"); e("s_addc_u32 s57, s53, 0")
        e("s_cmp_ge_u32 s33, 6"); e("s_cselect_b32 s8, s50, s44"); e("s_cselect_b32 s9, s51, s45"); e("s_cselect_b32 s56, s56, s42"); e("s_cselect_b32 s57, s57, s43")
        e("s_cmp_lt_u32 s34, 8"); e("s_cselect_b32 s8, s8, s56"); e("s_cselect_b32 s9, s9, s57")
        e("s_and_b32 s34, s34, 7"); e("s_lshl_b32 s34, s34, 14"); e("s_lshl_b32 s33, s28, 12"); e("s_add_u32 s34, s34, s33")
        for k in range(4): e(f"buffer_load_dwordx4 v[{108+4*k}:{111+4*k}], v232, s[8:11], s34 offen offset:{k*1024}")
    else:
        if FUSED and o.get('ipf', True):
            e("s_getpc_b64 s[56:57]")
            e("K1_PCREF:")
            e(f"s_add_u32 s56, s56, {o.get('ipfbase', 'K1_NOX')}-K1_PCREF"); e("s_addc_u32 s57, s57, 0")
            e("s_lshr_b32 s33, s2, 3"); e("s_lshl_b32 s33, s33, 2"); e("s_add_u32 s33, s33, s28"); e("s_lshl_b32 s33, s33, 10")
            e(f"s_cmp_lt_u32 s33, {o.get('ipfbytes', 61440)}"); e("s_cbranch_scc0 K1_NOIPF")
            e("v_lshlrev_b32 v232, 4, v240"); e("v_add_u32 v232, s33, v232")
            e("global_load_dwordx4 v[252:255], v232, s[56:57]")
            e("K1_NOIPF:")
        if o.get('wpf', False):
            e("s_lshr_b32 s33, s2, 3"); e("s_lshl_b32 s33, s33, 2"); e("s_add_u32 s33, s33, s28")
            e("v_lshlrev_b32 v232, 4, v240")
            e("s_mov_b32 s8, s40"); e("s_mov_b32 s9, s41"); e("s_mov_b32 s10, 131072"); e("s_mov_b32 s11, 0x20000")
            e("s_lshl_b32 s34, s33, 10")
            e("buffer_load_dwordx4 v[100:103], v232, s[8:11], s34 offen")
            if o.get('wpf') != 'k':
                e("s_mov_b32 s8, s46"); e("s_mov_b32 s9, s47"); e("s_mov_b32 s10, 262144")
                e("s_lshl_b32 s34, s33, 11")
                e("buffer_load_dwordx4 v[104:107], v232, s[8:11], s34 offen")
                e("buffer_load_dwordx4 v[108:111], v232, s[8:11], s34 offen offset:1024")
        if FUSED and o.get('tlb', False):
            e("s_load_dwordx2 s[56:57], s[0:1], 72"); e("s_waitcnt lgkmcnt(0)")
            e("s_cmp_eq_u32 s28, 1"); e("s_cbranch_scc0 K1_NOTLB")
            srd(e, 8, 's54', 's55', OP_OFF, 64*16*16384)
            e("v_lshlrev_b32 v232, 21, v240")
            e("buffer_load_dword v112, v232, s[8:11], 0 offen")
            e("s_mov_b32 s8, s56"); e("s_mov_b32 s9, s57"); e("s_mov_b32 s10, 4096000")
            e("buffer_load_dword v113, v232, s[8:11], 0 offen")
            e("K1_NOTLB:")
        if o.get('pf', True):
            e("s_and_b32 s33, s2, 7"); e("s_cmp_lt_u32 s33, 2"); e("s_cbranch_scc1 K1_NOPF")
            e("s_lshr_b32 s34, s2, 3")
            e("s_cmp_ge_u32 s33, 6"); e("s_cbranch_scc1 K1_PF2")
            e("s_cmp_lt_u32 s34, 16"); e("s_cselect_b32 s8, s44, s42"); e("s_cselect_b32 s9, s45, s43")
            e("s_and_b32 s34, s34, 15"); e("s_lshl_b32 s34, s34, 13")
            e("s_branch K1_PF3")
            e("K1_PF2:")
            e("s_add_u32 s56, s52, 131072"); e("s_addc_u32 s57, s53, 0")
            e("s_cmp_lt_u32 s34, 16"); e("s_cselect_b32 s8, s50, s56"); e("s_cselect_b32 s9, s51, s57")
            e("s_and_b32 s34, s34, 15"); e("s_lshl_b32 s34, s34, 13")
            e("K1_PF3:")
            e("s_mov_b32 s10, 131072"); e("s_mov_b32 s11, 0x20000")
            e("v_lshlrev_b32 v232, 4, v240"); e("s_lshl_b32 s33, s28, 11"); e("s_add_u32 s34, s34, s33")
            e("buffer_load_dwordx4 v[244:247], v232, s[8:11], s34 offen")
            e("buffer_load_dwordx4 v[248:251], v232, s[8:11], s34 offen offset:1024")
            e("K1_NOPF:")
        pass
    e("K1_NOX:")
    first, second = ("K1_UG", "K1_Q") if o.get('ugfirst', True) else ("K1_Q", "K1_UG")
    if CT:
        e("s_cmp_lt_u32 s2, 250"); e("s_cbranch_scc1 K1_CT")
    else:
        e("s_cmp_lt_u32 s2, 125"); e(f"s_cbranch_scc1 {first}")
        e("s_cmp_lt_u32 s2, 250"); e(f"s_cbranch_scc1 {second}")
    e("s_cmp_lt_u32 s2, 254"); e("s_cbranch_scc1 K1_W1")
    e("s_branch K1_W2")

    def k_addr(T, dst, dst2, base_lines):
        t = T.append
        t("v_and_b32 v234, 3, v242"); t("v_lshlrev_b32 v234, 2, v234"); t("v_bfe_u32 v235, v242, 2, 2")
        t("v_or_b32 v234, v234, v235"); t("v_lshlrev_b32 v236, 9, v242")
        for x in base_lines: t(x)
        t("v_add_u32 v236, s33, v236")
        for jj in range(8):
            t(f"v_add_u32 v235, {2*jj}, v241"); t("v_xor_b32 v235, v235, v234")
            t(f"v_lshl_add_u32 v{dst+jj}, v235, 4, v236")
            if dst2 is not None: t(f"v_add_u32 v{dst2+jj}, 0x10000, v{dst+jj}")
    def ka_setup(T): k_addr(T, KA, KA2, ["s_lshl_b32 s33, s30, 14"])
    def xb_setup(T): k_addr(T, XB, None, ["s_lshl_b32 s33, s29, 14", f"s_add_u32 s33, s33, {EX}", "s_lshl_b32 s34, s30, 8", "s_add_u32 s33, s33, s34"])
    def vn_setup(T):
        t = T.append
        t("v_bfe_u32 v234, v240, 4, 1"); t("v_bfe_u32 v235, v240, 2, 2"); t("v_bfe_u32 v236, v240, 1, 1")
        t("v_lshl_add_u32 v236, v234, 1, v236"); t("v_and_b32 v237, 1, v240"); t("v_lshlrev_b32 v237, 3, v237")
        t("v_lshl_add_u32 v238, v241, 3, v235"); t("v_lshl_add_u32 v237, v238, 9, v237")
        t("s_lshl_b32 s33, s30, 8"); t("v_add_u32 v237, s33, v237")
        for a in range(4):
            for u in range(2):
                t(f"v_lshl_add_u32 v238, v241, 1, {u}"); t("v_lshl_or_b32 v238, v235, 2, v238")
                t(f"v_add_u32 v239, {4*a}, v236"); t("v_xor_b32 v238, v238, v239")
                t(f"v_lshl_add_u32 v{VN+a*2+u}, v238, 4, v237")
                if u: t(f"v_add_u32 v{VN+a*2+u}, {4*512}, v{VN+a*2+u}")
                t(f"v_add_u32 v{VN2+a*2+u}, 0x10000, v{VN+a*2+u}")
    def dma_voff(T, stride1024):
        t = T.append
        if not stride1024:
            for k in range(4): t(f"v_mov_b32 v{DV+k}, v{DS+k}")
            return
        t("s_lshl_b32 s33, s28, 1")
        for k in range(4):
            t(f"v_add_u32 v234, {2*k}, v241"); t("v_and_b32 v234, 3, v234"); t("v_lshlrev_b32 v234, 2, v234")
            t(f"s_add_u32 s34, s33, {k>>1}"); t("s_and_b32 s34, s34, 3")
            t("v_or_b32 v234, s34, v234"); t("v_xor_b32 v234, v242, v234"); t("v_lshlrev_b32 v234, 4, v234")
            t("v_lshl_add_u32 v234, v241, 10, v234"); t("s_lshl_b32 s34, s28, 13"); t(f"s_add_u32 s34, s34, {k*1024}")
            t(f"v_add_u32 v{DV+k}, s34, v234")
    def tile_dma(n, srdn, soff):
        if o.get('nodma'): return []
        r = [(f"s_add_u32 m0, s31, {(n%8)*SLOT:#x}", False), (f"s_mov_b32 s32, {soff:#x}", False)]
        for k in range(4):
            r.append((f"buffer_load_dwordx4 v{DV+k}, s[{srdn}:{srdn+3}], s32 offen offset:{k*1024} lds", True))
        return r
    def emit_tile(out, W, n, srdn, soff):
        for txt, vm in tile_dma(n, srdn, soff):
            out.append(txt)
            if vm: W.issue('vm', ('T', n))
    def out_rows(T, W, srdn, tag, OB):
        t = T.append
        t("v_lshlrev_b32 v232, 4, v240"); t(f"s_add_u32 s33, s31, {EX}"); t("v_add_u32 v232, s33, v232")
        for half in range(2):
            for k in range(4):
                t(f"ds_read_b128 {vr(OB+(half*4+k)*4,4)}, v232 offset:{half*SLOT + k*1024}")
        t("s_lshl_b32 s32, s35, 15")
        for half in range(2):
            if half: t("s_add_u32 s32, s32, 16384")
            for k in range(4):
                t(f"s_waitcnt lgkmcnt({7 - (half*4+k)})")
                t(f"buffer_store_dwordx4 {vr(OB+(half*4+k)*4,4)}, v{DS+k}, s[{srdn}:{srdn+3}], s32 offen offset:{k*1024}{ST}")
                W.issue('vm', (tag, half, k))
        W.drain('lgkm')
    def ln(out, W, tiles):
        nw = W.need('vm', [('X', 7)])
        out.append(f"s_waitcnt vmcnt({nw})")
        out.append("s_barrier")
        stamp(out, 0)
        for s in range(8):
            out.append(f"ds_read_b128 {vr(64+4*s,4)}, v{XB+s}")
        body = []; b = body.append
        b("s_mov_b32 s34, 0x3f803f80")
        for k in range(4): b(f"v_mov_b32 v{232+k}, 0")
        for r in range(32):
            if r % 4 == 0: b(f"s_waitcnt lgkmcnt({7 - r//4})")
            b(f"v_dot2_f32_bf16 v{232+(r&1)}, v{64+r}, s34, v{232+(r&1)}")
            b(f"v_dot2_f32_bf16 v{234+(r&1)}, v{64+r}, v{64+r}, v{234+(r&1)}")
        b("s_nop 2")
        b("v_add_f32 v232, v232, v233"); b("v_add_f32 v234, v234, v235")
        b("v_mov_b32 v233, v232"); b("v_mov_b32 v235, v234"); b("s_nop 1")
        b("v_permlane32_swap_b32 v232, v233"); b("v_permlane32_swap_b32 v234, v235"); b("s_nop 1")
        b("v_add_f32 v232, v232, v233"); b("v_add_f32 v233, v234, v235")
        b(f"ds_write_b64 v{XB}, v[232:233]")
        b(f"v_xor_b32 v238, 256, v{XB}")
        b("s_waitcnt lgkmcnt(0)")
        b("s_barrier")
        b("ds_read_b64 v[234:235], v238")
        b("s_waitcnt lgkmcnt(0)")
        b("v_add_f32 v232, v232, v234"); b("v_add_f32 v234, v233, v235")
        b("v_mul_f32 v232, 0x3b800000, v232"); b("v_mul_f32 v234, 0x3b800000, v234")
        b("v_fma_f32 v234, -v232, v232, v234"); b("v_max_f32 v234, 0, v234"); b("v_add_f32 v234, 0x3727c5ac, v234")
        b("v_rsq_f32 v234, v234"); b("s_nop 0")
        b("v_mul_f32 v236, v232, v234"); b("v_sub_f32 v236, 0, v236")
        b("s_barrier")
        for r in range(32):
            t = 244 + 2*(r % 4)
            b(f"v_lshlrev_b32 v{t}, 16, v{64+r}")
            b(f"v_and_b32 v{t+1}, 0xffff0000, v{64+r}")
            b(f"v_pk_fma_f32 v[{t}:{t+1}], v[{t}:{t+1}], v[234:235], v[236:237] op_sel_hi:[1,0,0]")
            b(f"v_cvt_pk_bf16_f32 v{64+r}, v{t}, v{t+1}")
            if r % 4 == 3: b(f"ds_write_b128 v{XB+r//4}, {vr(64+r-3,4)}")
        b("s_waitcnt lgkmcnt(0)")
        b("s_barrier")
        b("s_lshl_b32 s33, s30, 8")
        for jj in range(8): b(f"v_subrev_u32 v{244+jj}, s33, v{XB+jj}")
        for s in range(16):
            b(f"ds_read_b128 {vr(B+4*s,4)}, v{244+(s&7)} offset:{(s>>3)*256}")
        flat = []
        for (n, sn, so) in tiles:
            tl_ = [(txt, vm, n) for txt, vm in tile_dma(n, sn, so)]
            flat.append(tl_[:3])
            for x in tl_[3:]: flat.append([x])
        gap = max(1, len(body) // (len(flat) + 1)) if flat else 1
        fi = 0
        for i, ins in enumerate(body):
            out.append(ins)
            if fi < len(flat) and i % gap == gap - 1:
                for txt, vm, n in flat[fi]:
                    out.append(txt)
                    if vm: W.issue('vm', ('T', n))
                fi += 1
        while fi < len(flat):
            for txt, vm, n in flat[fi]:
                out.append(txt)
                if vm: W.issue('vm', ('T', n))
            fi += 1
        out.append("s_waitcnt lgkmcnt(0)")
        W.drain('lgkm')
    def phase(W, p, kind, later, fill=None, f0=3):
        tl = TL(W)
        acc = ACC[p]
        cnt = [0]
        for a in range(4):
            sig = 4*p + a
            tb = 16*a - D - 1
            tl.add(tb, 'bar', needvm=[('T', 2*sig), ('T', 2*sig+1)], prio=1)
            k = 0
            for (n, sn, so) in later.get(sig, []):
                for txt, vm in tile_dma(n, sn, so):
                    sp = o.get('dsp', 2)
                    if vm:
                        tl.add(tb + 1 + sp*k, 'vm', txt, tag=('T', n), prio=7); k += 1
                    else:
                        tl.add(tb + 1 + sp*k, 'txt', txt, prio=6)
            for m in range(16):
                tm = 16*a + m
                ri = cnt[0] % R; cnt[0] += 1
                ring = aR + 4*ri
                if kind == 'X':
                    j = m; slot = 2*a
                    base = (KA if slot < 4 else KA2) + (j & 7)
                    off = (slot % 4)*SLOT + (j >> 3)*256
                    tag = (p, a, m)
                    tl.add(tm - D, 'lds', f"ds_read_b128 {ar(ring,4)}, v{base} offset:{off}", tag=tag, prio=2)
                    c = vr(acc+16*a,16) if j else '0'
                    tl.add(tm, 'mfma', f"v_mfma_f32_32x32x16_bf16 {vr(acc+16*a,16)}, {ar(ring,4)}, {vr(B+4*j,4)}, {c}", need=[tag], prio=0)
                else:
                    tt, s, aa = m >> 3, (m >> 2) & 1, m & 3
                    tau = 2*a + tt; slot = tau
                    tags = []
                    for u in range(2):
                        base = (VN if slot < 4 else VN2) + aa*2 + u
                        off = (slot % 4)*SLOT + 16*s*512
                        tag = (p, a, m, u); tags.append(tag)
                        tl.add(tm - D, 'lds', f"ds_read_b64_tr_b16 {ar(ring+2*u,2)}, v{base} offset:{off}", tag=tag, prio=2)
                    c = vr(acc+16*aa,16) if (tau or s) else '0'
                    tl.add(tm, 'mfma', f"v_mfma_f32_32x32x16_bf16 {vr(acc+16*aa,16)}, {ar(ring,4)}, {vr(B+4*(2*tau+s),4)}, {c}", need=tags, prio=0)
        if fill:
            n = len(fill)
            for i, ins in enumerate(fill):
                tl.add(f0 + (i*(64-f0))/n, 'txt', ins, prio=4)
        return tl
    def pack_swap(out, src, dst, swap=True, scale=None):
        if scale:
            for k in range(8):
                out.append(f"v_pk_mul_f32 v[{src+2*k}:{src+2*k+1}], v[{src+2*k}:{src+2*k+1}], {scale} op_sel_hi:[1,0]")
        for k in range(8):
            out.append(f"v_cvt_pk_bf16_f32 v{dst+k}, v{src+2*k}, v{src+2*k+1}")
        if swap:
            out.append("s_nop 1")
            for b in (0, 4):
                out.append(f"v_permlane32_swap_b32 v{dst+b}, v{dst+b+2}")
                out.append(f"v_permlane32_swap_b32 v{dst+b+1}, v{dst+b+3}")
    def exchange(out, W, acc, kind, xaflag=False):
        out.append("s_nop 15")
        out.append("v_lshlrev_b32 v232, 4, v240")
        out.append(f"s_lshl_b32 s33, s29, 14"); out.append(f"s_add_u32 s33, s33, {EX}")
        out.append("v_add_u32 v233, s33, v232")
        out.append(f"s_lshl_b32 s34, s30, {13 if kind=='Y' else 11}")
        out.append("v_add_u32 v232, s34, v233")
        for a in range(4):
            d = 244 if a % 2 == 0 else 0
            pack_swap(out, acc+16*a, d)
            for s in range(2):
                f = (2*a + s) if kind == 'Y' else (4*a + s)
                out.append(f"ds_write_b128 v232, {vr(d+4*s,4)} offset:{f*1024}")
        if xaflag:
            n = W.need('vm', [x for x in W.q['vm'] if isinstance(x, tuple) and x[0] == 'XS'] + ['TAG'])
            if n is not None: out.append(f"s_waitcnt vmcnt({n})")
        out.append("s_waitcnt lgkmcnt(0)")
        out.append("s_barrier")
        if xaflag:
            out.append("v_readfirstlane_b32 s3, v243"); out.append("s_or_b32 s33, s28, 0");
            out.append("s_cmp_eq_u32 s28, 0"); out.append("s_cbranch_scc0 K1_Q_NOXF")
            out.append("s_cmp_lg_u32 s3, 0"); out.append("s_cbranch_scc0 K1_Q_NOXF")
            out += cap(lambda e: srd(e, 16, 's54', 's55', FL_OFF, FL_SIZE))
            out.append("s_lshl_b32 s33, s35, 7"); out.append(f"s_add_u32 s33, s33, {FLQ + 4}")
            out.append("v_mov_b32 v238, s3"); out.append("v_cmp_eq_u32 vcc, 0, v240"); out.append("s_and_saveexec_b64 s[56:57], vcc")
            out.append("buffer_store_dword v238, off, s[16:19], s33 sc1")
            out.append("s_mov_b64 exec, s[56:57]")
            out.append("K1_Q_NOXF:")
        for f in range(16):
            out.append(f"ds_read_b128 {vr(B+4*f,4)}, v233 offset:{f*1024}")
        out.append("s_waitcnt lgkmcnt(0)")
        W.drain('lgkm')
    def narrow(out, W, rowbase_bytes, slice_sreg):
        for x in ["v_lshrrev_b32 v232, 3, v240", "v_lshlrev_b32 v232, 9, v232", "v_and_b32 v233, 7, v240",
                  "v_lshl_add_u32 v232, v233, 4, v232", f"s_lshl_b32 s33, {slice_sreg}, 7", "s_lshl_b32 s34, s28, 15",
                  "s_add_u32 s33, s33, s34", f"s_add_u32 s33, s33, {rowbase_bytes}", "v_add_u32 v232, s33, v232",
                  "s_lshl_b32 s34, s28, 13", f"s_add_u32 s34, s34, {EX}"]: out.append(x)
        for i in range(8):
            out.append(f"s_add_u32 m0, s34, {i*1024}")
            out.append(f"s_mov_b32 s32, {i*4096}")
            out.append(f"buffer_load_dwordx4 v232, s[16:19], s32 offen lds")
            W.issue('vm', ('N', i))
    def narrow_read(out, W):
        n = W.need('vm', [('N', 7)])
        out.append(f"s_waitcnt vmcnt({n})")
        out.append("s_barrier")
        for x in ["v_bfe_u32 v232, v240, 2, 2", "v_lshl_add_u32 v232, v241, 3, v232", "v_lshlrev_b32 v232, 7, v232",
                  "v_bfe_u32 v233, v240, 4, 1", "v_lshl_add_u32 v232, v233, 5, v232", "v_and_b32 v233, 3, v240",
                  "v_lshl_add_u32 v232, v233, 3, v232", "s_lshl_b32 s33, s29, 6", f"s_add_u32 s33, s33, {EX}",
                  "v_add_u32 v232, s33, v232"]: out.append(x)
        for s in range(16):
            for u in range(2):
                out.append(f"ds_read_b64_tr_b16 {vr(B+4*s+2*u,2)}, v232 offset:{s*2048+u*512}")
            if s % 4 == 3: out.append("s_waitcnt lgkmcnt(0)")
        W.drain('lgkm')
    def finish(task_lines, label):
        if CT and label in ("K1_Q", "K1_UG"): return
        fixed = hazard.autofix(task_lines)
        e(f"{label}:")
        L.extend(fixed)
        e("s_branch K1_FIN")
    def cap(fn):
        buf = []; fn(buf.append); return buf
    std_later = lambda sn: {2: [(8, sn, 0), (9, sn, SLOT)], 3: [(10, sn, 2*SLOT), (11, sn, 3*SLOT)], 4: [(12, sn, 4*SLOT), (13, sn, 5*SLOT)], 5: [(14, sn, 6*SLOT), (15, sn, 7*SLOT)]}
    npre = o['npre']
    AZ = [f"v_accvgpr_write_b32 a{128+r}, 0" for r in range(128)] if (FF and o.get('lean', True)) else []
    def azero(T, force=False):
        if AZ and (force or not o.get('azph0')): T.extend(AZ)


    if CT:
        EXB = EX + 16384
        Bq = 64
        ACCQ, ACCK, ACCG, ACCU = 64, 96, 128, 160
        VN4 = 208; VN42 = 212; XO = 216; XB8 = 244
        W = Waiter(); T = []; t = T.append
        for s_ in range(4): W.issue('vm', ('X', s_))
        dma_voff(T, True)
        T += cap(lambda e: (srd(e, 8, 's38', 's39', 0, 131072), srd(e, 12, 's40', 's41', 0, 131072), srd(e, 20, 's46', 's47', 0, 262144),
                            srd(e, 24, 's54', 's55', QF_OFF, 500*8192)))
        def tinfo(n):
            if n < 8: return (8, n*SLOT, DS)
            if n < 16: return (12, (n-8)*SLOT, DS)
            if n < 24: return (20, (n-16)*32768 + 512, DV)
            return (20, (n-24)*32768, DV)
        def tdma(n):
            sn, so, dv = tinfo(n)
            r = [(f"s_add_u32 m0, s31, {(n%8)*SLOT:#x}", False), (f"s_mov_b32 s32, {so:#x}", False)]
            for k in range(4): r.append((f"buffer_load_dwordx4 v{dv+k}, s[{sn}:{sn+3}], s32 offen offset:{k*1024} lds", True))
            return r
        def temit(n):
            for txt, vm in tdma(n):
                t(txt)
                if vm: W.issue('vm', ('T', n))
        temit(0); temit(1)
        t("v_and_b32 v234, 3, v242"); t("v_lshlrev_b32 v234, 2, v234"); t("v_bfe_u32 v235, v242, 2, 2"); t("v_or_b32 v234, v234, v235")
        t("v_lshlrev_b32 v236, 9, v242"); t(f"v_add_u32 v237, {EX}, v236")
        t("s_lshl_b32 s33, s30, 8"); t("v_add_u32 v238, s33, v237")
        t("s_lshl_b32 s33, s29, 3")
        for i in range(4):
            t(f"s_add_u32 s34, s33, {2*i}"); t("v_add_u32 v235, s34, v241"); t("v_xor_b32 v235, v235, v234"); t(f"v_lshl_add_u32 v{XO+i}, v235, 4, v238")
        t("s_lshl_b32 s33, s28, 14"); t("v_add_u32 v238, s33, v236")
        for jj in range(8):
            t(f"v_add_u32 v235, {2*jj}, v241"); t("v_xor_b32 v235, v235, v234")
            t(f"v_lshl_add_u32 v{KA+jj}, v235, 4, v238"); t(f"v_add_u32 v{KA2+jj}, 0x10000, v{KA+jj}")
        t("v_bfe_u32 v234, v240, 4, 1"); t("v_bfe_u32 v235, v240, 2, 2"); t("v_bfe_u32 v236, v240, 1, 1")
        t("v_lshl_add_u32 v236, v234, 1, v236"); t("v_and_b32 v237, 1, v240"); t("v_lshlrev_b32 v237, 3, v237")
        t("v_lshl_add_u32 v238, v241, 3, v235"); t("v_lshl_add_u32 v237, v238, 9, v237")
        t("s_lshl_b32 s33, s30, 8"); t("v_add_u32 v237, s33, v237")
        t("s_lshl_b32 s33, s29, 3")
        for aa in range(2):
            for u in range(2):
                t(f"v_lshl_add_u32 v238, v241, 1, {u}"); t("v_lshl_or_b32 v238, v235, 2, v238")
                t(f"s_add_u32 s34, s33, {4*aa}"); t("v_add_u32 v239, s34, v236"); t("v_xor_b32 v238, v238, v239")
                t(f"v_lshl_add_u32 v{VN4+aa*2+u}, v238, 4, v237")
                if u: t(f"v_add_u32 v{VN4+aa*2+u}, {4*512}, v{VN4+aa*2+u}")
                t(f"v_add_u32 v{VN42+aa*2+u}, 0x10000, v{VN4+aa*2+u}")
        nw = W.need('vm', [('X', 3)]); t(f"s_waitcnt vmcnt({nw})"); t("s_barrier")
        stamp(T, 0)
        for i in range(4): t(f"ds_read_b128 {vr(64+4*i,4)}, v{XO+i}")
        T += cap(lambda e: srd(e, 16, 's54', 's55', XA_OFF, 8000*512))
        body = []; b = body.append
        b("s_mov_b32 s34, 0x3f803f80")
        for k in range(4): b(f"v_mov_b32 v{232+k}, 0")
        for r in range(16):
            if r % 4 == 0: b(f"s_waitcnt lgkmcnt({3 - r//4})")
            b(f"v_dot2_f32_bf16 v{232+(r&1)}, v{64+r}, s34, v{232+(r&1)}")
            b(f"v_dot2_f32_bf16 v{234+(r&1)}, v{64+r}, v{64+r}, v{234+(r&1)}")
        b("s_nop 2")
        b("v_add_f32 v232, v232, v233"); b("v_add_f32 v234, v234, v235")
        b("v_mov_b32 v233, v232"); b("v_mov_b32 v235, v234"); b("s_nop 1")
        b("v_permlane32_swap_b32 v232, v233"); b("v_permlane32_swap_b32 v234, v235"); b("s_nop 1")
        b("v_add_f32 v232, v232, v233"); b("v_add_f32 v233, v234, v235")
        b("v_lshlrev_b32 v238, 3, v242"); b(f"v_add_u32 v238, {EXB}, v238")
        b("s_lshl_b32 s33, s28, 8"); b("v_add_u32 v239, s33, v238")
        b("ds_write_b64 v239, v[232:233]")
        b("s_waitcnt lgkmcnt(0)"); b("s_barrier")
        for k in range(4): b(f"ds_read_b64 v[{80+2*k}:{81+2*k}], v238 offset:{256*k}")
        b("s_waitcnt lgkmcnt(0)")
        b("v_add_f32 v80, v80, v82"); b("v_add_f32 v81, v81, v83"); b("v_add_f32 v84, v84, v86"); b("v_add_f32 v85, v85, v87")
        b("v_add_f32 v232, v80, v84"); b("v_add_f32 v234, v81, v85")
        b("v_mul_f32 v232, 0x3b800000, v232"); b("v_mul_f32 v234, 0x3b800000, v234")
        b("v_fma_f32 v234, -v232, v232, v234"); b("v_max_f32 v234, 0, v234"); b("v_add_f32 v234, 0x3727c5ac, v234")
        b("v_rsq_f32 v234, v234"); b("s_nop 0")
        b("v_mul_f32 v236, v232, v234"); b("v_sub_f32 v236, 0, v236")
        for r in range(16):
            tt_ = 244 + 2*(r % 4)
            b(f"v_lshlrev_b32 v{tt_}, 16, v{64+r}"); b(f"v_and_b32 v{tt_+1}, 0xffff0000, v{64+r}")
            b(f"v_pk_fma_f32 v[{tt_}:{tt_+1}], v[{tt_}:{tt_+1}], v[234:235], v[236:237] op_sel_hi:[1,0,0]")
            b(f"v_cvt_pk_bf16_f32 v{64+r}, v{tt_}, v{tt_+1}")
            if r % 4 == 3: b(f"ds_write_b128 v{XO+r//4}, {vr(64+r-3,4)}")
        b("s_lshl_b32 s33, s28, 14"); b(f"s_sub_u32 s33, {EX}, s33")
        for jj in range(8): b(f"v_add_u32 v{XB8+jj}, s33, v{KA+jj}")
        b("s_waitcnt lgkmcnt(0)"); b("s_barrier")
        for s_ in range(16): b(f"ds_read_b128 {vr(B+4*s_,4)}, v{XB8+(s_&7)} offset:{(s_>>3)*256}")
        b("v_lshlrev_b32 v232, 4, v240"); b(f"s_add_u32 s33, s31, {EX}"); b("v_add_u32 v232, s33, v232")
        for k in range(4): b(f"ds_read_b128 {vr(96+4*k,4)}, v232 offset:{k*1024}")
        flat = []
        for n in range(2, 6):
            tl_ = [(txt, vm, n) for txt, vm in tdma(n)]
            flat.append(tl_[:3])
            for x in tl_[3:]: flat.append([x])
        gap = max(1, (len(body) - 24) // (len(flat) + 1)); fi = 0
        for i, ins in enumerate(body):
            t(ins)
            if fi < len(flat) and i % gap == gap - 1:
                for txt, vm, n in flat[fi]:
                    t(txt)
                    if vm: W.issue('vm', ('T', n))
                fi += 1
        while fi < len(flat):
            for txt, vm, n in flat[fi]:
                t(txt)
                if vm: W.issue('vm', ('T', n))
            fi += 1
        t("s_waitcnt lgkmcnt(0)")
        t("s_lshl_b32 s56, s35, 14")
        for k in range(4):
            t(f"buffer_store_dwordx4 {vr(96+4*k,4)}, v{DS+k}, s[16:19], s56 offen offset:{k*1024}{ST}"); W.issue('vm', ('XS', k))
        stamp(T, 1)
        def flag_store(off_lines, lbl):
            t("s_cmp_eq_u32 s28, 0"); t(f"s_cbranch_scc0 {lbl}")
            for x in off_lines: t(x)
            t("v_mov_b32 v232, s3"); t("v_cmp_eq_u32 vcc, 0, v240"); t("s_and_saveexec_b64 s[56:57], vcc")
            t("buffer_store_dword v232, off, s[8:11], s34 sc1")
            t("s_mov_b64 exec, s[56:57]")
            t(f"{lbl}:")
        fillers = {}
        def step(sig, extra_need=None, after_bar=None):
            p, a = sig >> 2, sig & 3
            need = [('T', 2*sig), ('T', 2*sig+1)] + (extra_need or [])
            nv = W.need('vm', need)
            if nv is not None: t(f"s_waitcnt vmcnt({nv})")
            t("s_barrier")
            if after_bar: after_bar()
            dm = []
            for n in (2*(sig+3), 2*(sig+3)+1):
                if n < 32: dm += [(txt, vm, n) for txt, vm in tdma(n)]
            fl = list(fillers.get(sig, []))
            def some(k_dma, k_fill):
                c = 0
                while dm and c < k_dma:
                    txt, vm, n = dm.pop(0); t(txt)
                    if vm: W.issue('vm', ('T', n)); c += 1
                for _ in range(k_fill):
                    if fl: t(fl.pop(0))
            nf = -(-len(fl) // 8) if fl else 0
            if p != 1:
                acc = {0: ACCQ, 2: ACCG, 3: ACCU}[p]
                idx = 0; seq = []
                for tt in range(2):
                    slot = (2*sig + tt) % 8
                    for s_ in range(2):
                        for aa in range(2):
                            for u in range(2):
                                base = (VN4 if slot < 4 else VN42) + aa*2 + u
                                t(f"ds_read_b64_tr_b16 {ar(4*idx+2*u,2)}, v{base} offset:{(slot%4)*SLOT + 16*s_*512}")
                            seq.append((idx, tt, s_, aa)); idx += 1
                for (idx, tt, s_, aa) in seq:
                    if idx % 2 == 0: t(f"s_waitcnt lgkmcnt({14 - 2*idx - 2 if idx < 6 else 0})")
                    tau = 2*a + tt
                    c = vr(acc+16*aa,16) if (tau or s_) else '0'
                    t(f"v_mfma_f32_32x32x16_bf16 {vr(acc+16*aa,16)}, {ar(4*idx,4)}, {vr(B+4*(2*tau+s_),4)}, {c}")
                    some(1, nf)
            else:
                lbl = f"K1_CT_X{a}"
                t(f"s_cmp_eq_u32 s30, {a & 1}"); t(f"s_cbranch_scc0 {lbl}")
                k = a >> 1; base = KA if k == 0 else KA2
                for half in range(2):
                    for j in range(8): t(f"ds_read_b128 {ar(4*j,4)}, v{base+j} offset:{half*256}")
                    for j in range(8):
                        if j % 2 == 0: t(f"s_waitcnt lgkmcnt({6 - j})")
                        jj = 8*half + j
                        c = vr(ACCK+16*k,16) if jj else '0'
                        t(f"v_mfma_f32_32x32x16_bf16 {vr(ACCK+16*k,16)}, {ar(4*j,4)}, {ar(Bq+4*jj,4)}, {c}")
                t(f"{lbl}:")
            some(100, 1000)
        for sig in range(4): step(sig)
        stamp(T, 2)
        t("s_nop 15")
        t("v_lshlrev_b32 v232, 4, v240"); t(f"v_add_u32 v233, {EXB}, v232"); t("s_lshl_b32 s34, s28, 12"); t("v_add_u32 v232, s34, v233")
        for aa in range(2):
            d = 244 if aa == 0 else 96
            pack_swap(T, ACCQ+16*aa, d)
            for s_ in range(2): t(f"ds_write_b128 v232, {vr(d+4*s_,4)} offset:{(2*aa+s_)*1024}")
        t("s_waitcnt lgkmcnt(0)"); t("s_barrier")
        for f in range(16): t(f"ds_read_b128 {ar(Bq+4*f,4)}, v233 offset:{f*1024}")
        t("s_waitcnt lgkmcnt(0)")
        t("buffer_load_dword v243, off, s[4:7], 0 sc1"); W.issue('vm', 'TAG')
        for sig in range(4, 8): step(sig)
        stamp(T, 3)
        qf = []
        qf.append("s_nop 7"); qf.append("v_mov_b32 v236, 0x3db8aa3b")
        qf += ["s_lshl_b32 s33, s35, 14", "s_lshl_b32 s34, s28, 10", "s_add_u32 s33, s33, s34",
               "v_lshrrev_b32 v252, 4, v242", "v_lshlrev_b32 v252, 13, v252", "v_and_b32 v253, 15, v242", "v_lshl_add_u32 v253, v241, 4, v253",
               "v_lshl_add_u32 v252, v253, 4, v252", "v_add_u32 v252, s33, v252"]
        qst = []
        for k in range(2):
            d = 244 if k == 0 else 64
            pack_swap(qf, ACCK+16*k, d, scale="v[236:237]")
            for s_ in range(2):
                qf.append(f"buffer_store_dwordx4 {vr(d+4*s_,4)}, v252, s[24:27], 0 offen offset:{k*4096 + s_*512 - (4096 if k else 0)}{ST}" if k == 0 else "@K1")
        out2 = []
        cnt = 0
        for x in qf:
            if x == "@K1":
                if cnt == 0: out2.append("v_add_u32 v253, 4096, v252")
                out2.append(f"buffer_store_dwordx4 {vr(64+4*cnt,4)}, v253, s[24:27], 0 offen offset:{cnt*512}{ST}"); cnt += 1
            else: out2.append(x)
        qf = out2
        for x in qf:
            t(x)
            if x.startswith('buffer_store'): W.issue('vm', ('QS', len(W.q['vm'])))
        W.issue('vm', 'QEND'); W.q['vm'].pop()
        qtags = [x for x in W.q['vm'] if isinstance(x, tuple) and x[0] in ('QS', 'XS')]
        step(8)
        step(9)
        def get_tag():
            t("K1_CT_TAGP:")
            t("buffer_load_dword v232, off, s[4:7], 0 sc1"); t("s_waitcnt vmcnt(0)")
            t("v_readfirstlane_b32 s3, v232"); t("s_nop 3"); t("s_cmp_lg_u32 s3, 0"); t("s_cbranch_scc1 K1_CT_TAGD"); t("s_sleep 1"); t("s_branch K1_CT_TAGP")
            t("K1_CT_TAGD:")
        def qflag():
            T.extend(cap(lambda e: srd(e, 8, 's54', 's55', FL_OFF, FL_SIZE)))
            flag_store([f"s_lshl_b32 s34, s35, 7", f"s_add_u32 s34, s34, {FLQ}"], "K1_CT_NOQF")
        step(10, extra_need=qtags + ['TAG'], after_bar=None)
        t("v_readfirstlane_b32 s3, v243")
        t("s_nop 3")
        pend_qflag = True
        t("s_cmp_eq_u32 s28, 0"); t("s_cbranch_scc0 K1_CT_NOQF2")
        t("s_cmp_lg_u32 s3, 0"); t("s_cbranch_scc0 K1_CT_NOQF2")
        T.extend(cap(lambda e: srd(e, 8, 's54', 's55', FL_OFF, FL_SIZE)))
        t(f"s_lshl_b32 s34, s35, 7"); t(f"s_add_u32 s34, s34, {FLQ}")
        t("v_mov_b32 v232, s3"); t("v_cmp_eq_u32 vcc, 0, v240"); t("s_and_saveexec_b64 s[56:57], vcc")
        t("buffer_store_dword v232, off, s[8:11], s34 sc1")
        t("s_mov_b64 exec, s[56:57]")
        t("K1_CT_NOQF2:")
        step(11)
        stamp(T, 4)
        k0 = -2.0*1.4426950408889634*0.7978845608028654
        t("s_nop 7")
        t(f"v_mov_b32 v232, {fb(k0)}"); t(f"v_mov_b32 v234, {fb(k0*0.044715)}"); t("v_mov_b32 v236, 1.0")
        for k in range(4): t(f"v_mov_b32 v{252+k}, 0")
        def gelu(r):
            tt_ = 244 + 2*((r//2) % 4)
            X = f"v[{r}:{r+1}]"; Tt = f"v[{tt_}:{tt_+1}]"
            return [f"v_pk_mul_f32 {Tt}, {X}, {X}", f"v_pk_fma_f32 {Tt}, {Tt}, v[234:235], v[232:233] op_sel_hi:[1,0,0]", f"v_pk_mul_f32 {Tt}, {Tt}, {X}",
                    f"v_exp_f32 v{tt_}, v{tt_}", f"v_exp_f32 v{tt_+1}, v{tt_+1}", f"v_pk_add_f32 {Tt}, {Tt}, v[236:237] op_sel_hi:[1,0]",
                    f"v_rcp_f32 v{tt_}, v{tt_}", f"v_rcp_f32 v{tt_+1}, v{tt_+1}", f"v_pk_mul_f32 {X}, {X}, {Tt}",
                    f"v_pk_add_f32 v[252:253], v[252:253], {X}", f"v_pk_fma_f32 v[254:255], {X}, {X}, v[254:255]"]
        for q in range(4):
            cols = [gelu(ACCG + 8*q + 2*k) for k in range(4)]
            fillers[12+q] = [cols[k][i] for i in range(11) for k in range(4)]
        for sig in range(12, 16): step(sig)
        stamp(T, 5)
        t("v_add_f32 v8, v252, v253"); t("v_add_f32 v10, v254, v255"); t("v_mov_b32 v9, v8"); t("v_mov_b32 v11, v10"); t("s_nop 1")
        t("v_permlane32_swap_b32 v8, v9"); t("v_permlane32_swap_b32 v10, v11"); t("s_nop 1")
        t("v_add_f32 v8, v8, v9"); t("v_add_f32 v9, v10, v11")
        t("v_lshlrev_b32 v12, 3, v242"); t("s_lshl_b32 s33, s28, 8"); t("v_add_u32 v13, s33, v12")
        t("s_barrier")
        t("ds_write_b64 v13, v[8:9]")
        for aa in range(2):
            d = 244 if aa == 0 else 16
            pack_swap(T, ACCU+16*aa, d)
            for s_ in range(2): t(f"ds_write_b128 v{XO+2*aa+s_}, {vr(d+4*s_,4)} offset:16384")
        t("s_waitcnt lgkmcnt(0)"); t("s_barrier")
        for k in range(4): t(f"ds_read_b64 v[{24+2*k}:{25+2*k}], v12 offset:{256*k}")
        t("v_lshlrev_b32 v232, 4, v240"); t(f"s_add_u32 s33, s31, {EX}"); t("v_add_u32 v232, s33, v232")
        for k in range(4): t(f"ds_read_b128 {vr(96+4*k,4)}, v232 offset:{16384 + k*1024}")
        T.extend(cap(lambda e: (srd(e, 12, 's54', 's55', U_OFF, 8000*512), srd(e, 20, 's54', 's55', G_OFF, 8000*512))))
        t("s_lshl_b32 s56, s35, 14")
        t("s_waitcnt lgkmcnt(4)")
        t("v_add_f32 v24, v24, v26"); t("v_add_f32 v25, v25, v27"); t("v_add_f32 v28, v28, v30"); t("v_add_f32 v29, v29, v31")
        t("v_add_f32 v8, v24, v28"); t("v_add_f32 v9, v25, v29")
        t("v_mul_f32 v8, 0x3b800000, v8"); t("v_mul_f32 v9, 0x3b800000, v9")
        t("v_fma_f32 v9, -v8, v8, v9"); t("v_max_f32 v9, 0, v9"); t("v_add_f32 v9, 0x3727c5ac, v9")
        t("v_rsq_f32 v10, v9"); t("s_nop 0"); t("v_mul_f32 v12, v8, v10"); t("v_sub_f32 v12, 0, v12")
        t("s_waitcnt lgkmcnt(0)")
        for k in range(4): t(f"buffer_store_dwordx4 {vr(96+4*k,4)}, v{DS+k}, s[12:15], s56 offen offset:{k*1024}{ST}")
        for aa in range(2):
            for k in range(8):
                r = ACCG + 16*aa + 2*k
                t(f"v_pk_fma_f32 v[{r}:{r+1}], v[{r}:{r+1}], v[10:11], v[12:13] op_sel_hi:[1,0,0]")
            d = 32 + 8*aa
            pack_swap(T, ACCG+16*aa, d)
            for s_ in range(2): t(f"ds_write_b128 v{XO+2*aa+s_}, {vr(d+4*s_,4)}")
        t("s_waitcnt lgkmcnt(0)"); t("s_barrier")
        for k in range(4): t(f"ds_read_b128 {vr(112+4*k,4)}, v232 offset:{k*1024}")
        for k in range(4):
            t(f"s_waitcnt lgkmcnt({3-k})")
            t(f"buffer_store_dwordx4 {vr(112+4*k,4)}, v{DS+k}, s[20:23], s56 offen offset:{k*1024}{ST}")
        stamp(T, 6)
        finish(T, "K1_CT")
    W = Waiter(); T = []
    for s in range(8): W.issue('vm', ('X', s))
    dma_voff(T, False)
    T += cap(lambda e: (srd(e, 8, 's38', 's39', 0, 131072), srd(e, 12, 's40', 's41', 0, 131072),
                        srd(e, 20, 's54', 's55', XA_OFF, 8000*512), srd(e, 24, 's54', 's55', QF_OFF, 500*8192)))
    emit = [(n, 8, n*SLOT) for n in range(8)]
    for (n, sn, so) in emit[:npre]: emit_tile(T, W, n, sn, so)
    xb_setup(T); vn_setup(T)
    azero(T)
    ln(T, W, emit[npre:o['nln']])
    if FF: T.append("buffer_load_dword v243, off, s[4:7], 0 sc1"); W.issue('vm', 'TAG')
    stamp(T, 1)
    ka_setup(T)
    stamp(T, 2)
    T.append("v_lshlrev_b32 v232, 4, v240"); T.append(f"s_add_u32 s33, s31, {EX}"); T.append("v_add_u32 v232, s33, v232")
    for half in range(2):
        for k in range(4):
            T.append(f"ds_read_b128 {vr(ACC[1]+(half*4+k)*4,4)}, v232 offset:{half*SLOT + k*1024}")
    T.append("s_waitcnt lgkmcnt(0)")
    T.append("s_lshl_b32 s34, s35, 15"); T.append("s_add_u32 s56, s34, 16384")
    xfill = []
    for half in range(2):
        for k in range(4):
            xfill.append((f"buffer_store_dwordx4 {vr(ACC[1]+(half*4+k)*4,4)}, v{DS+k}, s[20:23], {'s56' if half else 's34'} offen offset:{k*1024}{ST}", ('XS', half, k)))
    later = std_later(12)
    rest = emit[o['nln']:]
    if rest:
        later[0] = rest[:2]; later[1] = rest[2:4]
        if later[1] == [] : del later[1]
    tl0 = phase(W, 0, 'Y', later, fill=(AZ if o.get('azph0') else None), f0=2)
    for i, (txt, tag) in enumerate(xfill): tl0.add(1 + 2*i, 'vm', txt, tag=tag, prio=7)
    T += tl0.linearize()
    stamp(T, 3)
    exchange(T, W, ACC[0], 'Y', xaflag=FF and o.get('xaflag', True))
    stamp(T, 4)
    T.append("v_mov_b32 v236, 0x3db8aa3b")
    T.append("s_lshl_b32 s33, s35, 2"); T.append("s_lshl_b32 s34, s29, 1"); T.append("s_add_u32 s33, s33, s34"); T.append("s_lshl_b32 s33, s33, 13")
    T.append("s_lshl_b32 s34, s30, 10"); T.append("s_add_u32 s33, s33, s34")
    T.append("v_lshrrev_b32 v232, 4, v242"); T.append("v_lshlrev_b32 v232, 13, v232")
    T.append("v_and_b32 v233, 15, v242"); T.append("v_lshl_add_u32 v233, v241, 4, v233")
    T.append("v_lshl_add_u32 v232, v233, 4, v232"); T.append("v_add_u32 v232, s33, v232")
    for a in range(1, 4): T.append(f"v_add_u32 v{232+a}, {a*2048}, v232")
    def qepi(a):
        ls = []
        d = ACC[0] + 8*a
        pack_swap(ls, ACC[1]+16*a, d, scale="v[236:237]")
        st = [f"buffer_store_dwordx4 {vr(d+4*s,4)}, v{232+a}, s[24:27], 0 offen offset:{s*512}{ST}" for s in range(2)]
        return ls, st
    tl1 = phase(W, 1, 'X', later)
    if o.get('qprog', True):
        for a in range(3):
            ls, st = qepi(a)
            t0 = 16*(a+1) + 4
            for i, ins in enumerate(ls): tl1.add(t0 + i*0.4, 'txt', ins, prio=4)
            for i, ins in enumerate(st): tl1.add(t0 + len(ls)*0.4 + 0.5 + i, 'vm', ins, tag=('QS', a, i), prio=7)
    T += tl1.linearize()
    stamp(T, 5)
    T.append("s_nop 15")
    for a in (range(3, 4) if o.get('qprog', True) else range(4)):
        ls, st = qepi(a)
        T += ls + st
    finish(T, "K1_Q")

    W = Waiter(); T = []
    for s in range(8): W.issue('vm', ('X', s))
    dma_voff(T, True)
    T += cap(lambda e: (srd(e, 8, 's46', 's47', 0, 262144),
                        srd(e, 20, 's54', 's55', U_OFF, 8000*512), srd(e, 24, 's54', 's55', G_OFF, 8000*512)))
    emit = [(n, 8, n*32768 + 512) for n in range(8)]
    for (n, sn, so) in emit[:npre]: emit_tile(T, W, n, sn, so)
    xb_setup(T); vn_setup(T)
    azero(T)
    ln(T, W, emit[npre:o['nln']])
    if FF: T.append("buffer_load_dword v243, off, s[4:7], 0 sc1"); W.issue('vm', 'TAG')
    stamp(T, 2)
    gl = lambda n: (n, 8, (n-8)*32768)
    later = {2: [gl(8), gl(9)], 3: [gl(10), gl(11)], 4: [gl(12), gl(13)], 5: [gl(14), gl(15)]}
    rest = emit[o['nln']:]
    if rest:
        later[0] = rest[:2]; later[1] = rest[2:4]
    T += phase(W, 0, 'Y', later, fill=(AZ if o.get('azph0') else None), f0=2).linearize()
    stamp(T, 3)
    k0 = -2.0*1.4426950408889634*0.7978845608028654
    T.append(f"v_mov_b32 v232, {fb(k0)}"); T.append(f"v_mov_b32 v234, {fb(k0*0.044715)}"); T.append("v_mov_b32 v236, 1.0")
    for k in range(4): T.append(f"v_mov_b32 v{252+k}, 0")
    def gelu(r):
        t = 244 + 2*((r//2) % 4)
        X = f"v[{r}:{r+1}]"; Tt = f"v[{t}:{t+1}]"
        return [f"v_pk_mul_f32 {Tt}, {X}, {X}",
                f"v_pk_fma_f32 {Tt}, {Tt}, v[234:235], v[232:233] op_sel_hi:[1,0,0]",
                f"v_pk_mul_f32 {Tt}, {Tt}, {X}",
                f"v_exp_f32 v{t}, v{t}", f"v_exp_f32 v{t+1}, v{t+1}",
                f"v_pk_add_f32 {Tt}, {Tt}, v[236:237] op_sel_hi:[1,0]",
                f"v_rcp_f32 v{t}, v{t}", f"v_rcp_f32 v{t+1}, v{t+1}",
                f"v_pk_mul_f32 {X}, {X}, {Tt}",
                f"v_pk_add_f32 v[252:253], v[252:253], {X}",
                f"v_pk_fma_f32 v[254:255], {X}, {X}, v[254:255]"]
    fill = []
    g0 = ACC[0]
    for b in range(g0, g0+64, 8):
        cols = [gelu(b+2*k) for k in range(4)]
        for i in range(11):
            for k in range(4): fill.append(cols[k][i])
    T += phase(W, 1, 'Y', later, fill=fill, f0=4).linearize()
    stamp(T, 5)
    T.append("v_add_f32 v8, v252, v253"); T.append("v_add_f32 v10, v254, v255")
    T.append("v_mov_b32 v9, v8"); T.append("v_mov_b32 v11, v10"); T.append("s_nop 1")
    T.append("v_permlane32_swap_b32 v8, v9"); T.append("v_permlane32_swap_b32 v10, v11"); T.append("s_nop 1")
    T.append("v_add_f32 v8, v8, v9"); T.append("v_add_f32 v9, v10, v11")
    T.append("s_lshl_b32 s33, s29, 1"); T.append("s_add_u32 s33, s33, s30"); T.append("s_lshl_b32 s33, s33, 9"); T.append("s_add_u32 s33, s33, 32768")
    T.append("v_lshlrev_b32 v12, 3, v240"); T.append("v_add_u32 v13, s33, v12")
    T.append("s_xor_b32 s33, s33, 512"); T.append("v_add_u32 v14, s33, v12")
    T.append("ds_write_b64 v13, v[8:9]")
    for a in range(4):
        d = 244 if a % 2 == 0 else 16
        pack_swap(T, ACC[1]+16*a, d)
        for s in range(2):
            T.append(f"ds_write_b128 v{XB+2*a+s}, {vr(d+4*s,4)}")
    T.append("s_waitcnt lgkmcnt(0)"); T.append("s_barrier")
    T.append("ds_read_b64 v[10:11], v14")
    T.append("v_lshlrev_b32 v15, 4, v240"); T.append("v_add_u32 v15, s31, v15"); T.append(f"v_add_u32 v232, {EX}, v15")
    for half in range(2):
        for k in range(4):
            T.append(f"ds_read_b128 {vr(ACC[1]+(half*4+k)*4,4)}, v232 offset:{half*SLOT + k*1024}")
    for jj in range(8): T.append(f"v_subrev_u32 v{XB+jj}, {EX}, v{XB+jj}")
    T.append("s_waitcnt lgkmcnt(8)")
    T.append("v_add_f32 v8, v8, v10"); T.append("v_add_f32 v9, v9, v11")
    T.append("v_mul_f32 v8, 0x3b800000, v8"); T.append("v_mul_f32 v9, 0x3b800000, v9")
    T.append("v_fma_f32 v9, -v8, v8, v9"); T.append("v_max_f32 v9, 0, v9"); T.append("v_add_f32 v9, 0x3727c5ac, v9")
    T.append("v_rsq_f32 v10, v9"); T.append("s_nop 0")
    T.append("v_mul_f32 v12, v8, v10"); T.append("v_sub_f32 v12, 0, v12")
    T.append("s_lshl_b32 s32, s35, 15"); T.append("s_add_u32 s56, s32, 16384")
    T.append("s_waitcnt lgkmcnt(0)")
    ust = [f"buffer_store_dwordx4 {vr(ACC[1]+(half*4+k)*4,4)}, v{DS+k}, s[20:23], {'s56' if half else 's32'} offen offset:{k*1024}{ST}" for half in range(2) for k in range(4)]
    for a in range(4):
        for k in range(8):
            r = g0 + 16*a + 2*k
            T.append(f"v_pk_fma_f32 v[{r}:{r+1}], v[{r}:{r+1}], v[10:11], v[12:13] op_sel_hi:[1,0,0]")
        T.append(ust.pop(0))
        pack_swap(T, g0+16*a, 16+8*a)
        for s in range(2):
            T.append(f"ds_write_b128 v{XB+2*a+s}, {vr(16+8*a+4*s,4)}")
        T.append(ust.pop(0))
    stamp(T, 6)
    T.append("s_waitcnt lgkmcnt(0)"); T.append("s_barrier")
    for half in range(2):
        for k in range(4):
            T.append(f"ds_read_b128 {vr(ACC[0]+(half*4+k)*4,4)}, v15 offset:{half*SLOT + k*1024}")
    DEF = FF and o.get('defer', True)
    if DEF:
        T.append("s_mov_b32 s88, s32"); T.append("s_mov_b32 s89, s56"); T.append("s_mov_b32 s98, 1")
    else:
        for half in range(2):
            for k in range(4):
                T.append(f"s_waitcnt lgkmcnt({7 - (half*4+k)})")
                T.append(f"buffer_store_dwordx4 {vr(ACC[0]+(half*4+k)*4,4)}, v{DS+k}, s[24:27], {'s56' if half else 's32'} offen offset:{k*1024}{ST}")
    stamp(T, 7)
    finish(T, "K1_UG")

    def wf_store(T, acc, which, slice_sreg):
        T.append(f"s_lshl_b32 s33, {slice_sreg}, 2"); T.append("s_lshl_b32 s34, s29, 1"); T.append("s_add_u32 s33, s33, s34"); T.append("s_lshl_b32 s33, s33, 14")
        T.append("s_lshl_b32 s34, s30, 10"); T.append("s_add_u32 s33, s33, s34")
        if which == 2: T.append("s_add_u32 s33, s33, 8192")
        T.append("v_lshrrev_b32 v232, 4, v242"); T.append("v_lshlrev_b32 v232, 14, v232")
        T.append("v_and_b32 v233, 15, v242"); T.append("v_lshl_add_u32 v233, v241, 4, v233")
        T.append("v_lshl_add_u32 v232, v233, 4, v232"); T.append("v_add_u32 v232, s33, v232")
        for a in range(4):
            d = 244; src = acc + 16*a
            if which == 1:
                for k, r in enumerate((0, 2, 8, 10, 4, 6, 12, 14)):
                    T.append(f"v_cvt_pk_bf16_f32 v{d+k}, v{src+r}, v{src+r+1}")
            else:
                pack_swap(T, src, d)
            T.append(f"s_mov_b32 s33, {a*2048}")
            for s in range(2):
                T.append(f"buffer_store_dwordx4 {vr(d+4*s,4)}, v232, s[24:27], s33 offen offset:{s*512}{ST}")
            T.append("s_nop 1")
    W = Waiter(); T = []
    dma_voff(T, False)
    T.append("s_sub_u32 s35, s2, 250")
    T += cap(lambda e: (srd(e, 16, 's52', 's53', 0, 262144), srd(e, 8, 's44', 's45', 0, 131072), srd(e, 12, 's42', 's43', 0, 131072),
                        srd(e, 24, 's54', 's55', WF_OFF, 262144)))
    narrow(T, W, 0, 's35')
    for n in range(3): emit_tile(T, W, n, 8, n*SLOT)
    ka_setup(T)
    azero(T, True)
    narrow_read(T, W)
    for n in range(3, 8): emit_tile(T, W, n, 8, n*SLOT)
    if FF: T.append("buffer_load_dword v243, off, s[4:7], 0 sc1"); W.issue('vm', 'TAG')
    later = std_later(12)
    T += phase(W, 0, 'X', later).linearize()
    T.append("s_barrier")
    exchange(T, W, ACC[0], 'X')
    T += phase(W, 1, 'X', later).linearize()
    T.append("s_nop 15")
    wf_store(T, ACC[1], 1, 's35')
    finish(T, "K1_W1")

    W = Waiter(); T = []
    if not FUSED: T += cap(lambda e: srd(e, 20, 's54', 's55', FL_OFF, 8192))
    if not FUSED:
        T.append("v_lshlrev_b32 v232, 5, v0")
        for k in range(4): T.append(f"v_mov_b32 v{236+k}, 0")
        T.append("buffer_store_dwordx4 v[236:239], v232, s[20:23], 0 offen sc1")
        T.append("buffer_store_dwordx4 v[236:239], v232, s[20:23], 0 offen offset:16 sc1")
        W.issue('vm', 'Z0'); W.issue('vm', 'Z1')
    dma_voff(T, False)
    T.append("s_sub_u32 s35, s2, 254"); T.append("s_lshl_b32 s35, s35, 1")
    T += cap(lambda e: (srd(e, 16, 's52', 's53', 0, 262144), srd(e, 8, 's50', 's51', 0, 131072),
                        srd(e, 24, 's54', 's55', WF_OFF, 262144)))
    narrow(T, W, 131072, 's35')
    for n in range(3): emit_tile(T, W, n, 8, n*SLOT)
    ka_setup(T)
    azero(T, True)
    narrow_read(T, W)
    for n in range(3, 8): emit_tile(T, W, n, 8, n*SLOT)
    if FF: T.append("buffer_load_dword v243, off, s[4:7], 0 sc1"); W.issue('vm', 'TAG')
    T.append("s_barrier")
    T.append("s_add_u32 s56, s35, 1")
    narrow(T, W, 131072, 's56')
    later = std_later(8)
    T += phase(W, 0, 'X', later).linearize()
    T.append("s_nop 15")
    wf_store(T, ACC[0], 2, 's35')
    for i in range(8): W.issue('vm', ('WS', i))
    narrow_read(T, W)
    T += phase(W, 1, 'X', later).linearize()
    T.append("s_nop 15")
    wf_store(T, ACC[1], 2, 's56')
    finish(T, "K1_W2")

    e("K1_FIN:")
    if FUSED:
        if o['stamp']:
            e("s_memtime s[64:65]"); e("s_memrealtime s[66:67]"); e("s_waitcnt lgkmcnt(0)")
            e("s_cmp_eq_u32 s28, 0"); e("s_cbranch_scc0 K1_NOST")
            e("s_add_u32 s68, s54, 0x8100000"); e("s_addc_u32 s69, s55, 0"); e("s_mov_b32 s70, 0x100000"); e("s_mov_b32 s71, 0x20000")
            for k, r in enumerate([60, 64, 62, 66]): e(f"v_mov_b32 v{232+k}, s{r}")
            e("s_lshl_b32 s33, s2, 4"); e("v_mov_b32 v236, s33")
            e("buffer_store_dwordx4 v[232:235], v236, s[68:71], 0 offen")
            for k in range(8): e(f"v_mov_b32 v{244+k}, s{72+2*k}")
            e("s_lshl_b32 s33, s2, 5"); e("s_add_u32 s33, s33, 0x10000"); e("v_mov_b32 v236, s33")
            e("buffer_store_dwordx4 v[244:247], v236, s[68:71], 0 offen")
            e("buffer_store_dwordx4 v[248:251], v236, s[68:71], 0 offen offset:16")
            e("K1_NOST:")
        if FF:
            e("s_lshl_b32 s33, s2, 7")
            fa, fb_ = (FLU, FLQ) if o.get('ugfirst', True) else (FLQ, FLU)
            e(f"s_add_u32 s67, s33, {fa}")
            e(f"s_add_u32 s56, s33, {fb_ - 125*128}"); e("s_cmp_ge_u32 s2, 125"); e("s_cselect_b32 s67, s56, s67")
            e(f"s_add_u32 s56, s33, {FLW - 250*128}"); e("s_cmp_ge_u32 s2, 250"); e("s_cselect_b32 s67, s56, s67")
            for k in range(4): e(f"s_mov_b32 s{92+k}, s{4+k}")
            for x in ["s_mov_b32 s4, s54", "s_mov_b32 s5, s55", "s_mov_b32 s32, s48", "s_mov_b32 s33, s49", "s_mov_b32 s40, s100", "s_mov_b32 s41, s101", "s_mov_b32 s48, s28", "s_mov_b32 s101, 0"]: e(x)
            return L, [], []
        e("K1_TAGP:")
        e("buffer_load_dword v232, off, s[4:7], 0 sc1")
        e("s_waitcnt vmcnt(0) lgkmcnt(0)")
        e("v_readfirstlane_b32 s3, v232")
        e("s_nop 3")
        e("s_cmp_lg_u32 s3, 0"); e("s_cbranch_scc1 K1_TAGD"); e("s_sleep 1")
        e("s_add_u32 s101, s101, 1"); e("s_cmp_lt_u32 s101, 0x400000"); e("s_cbranch_scc1 K1_TAGP")
        e("K1_TAGD:")
        e("s_barrier")
        e("s_cmp_eq_u32 s28, 0"); e("s_cbranch_scc0 K1_NOFL")
        e("s_lshl_b32 s33, s2, 7")
        fa, fb_ = (FLU, FLQ) if o.get('ugfirst', True) else (FLQ, FLU)
        if CT:
            e(f"s_add_u32 s34, s33, {FLU}")
        else:
            e(f"s_add_u32 s34, s33, {fa}")
            e(f"s_add_u32 s56, s33, {fb_ - 125*128}"); e("s_cmp_ge_u32 s2, 125"); e("s_cselect_b32 s34, s56, s34")
        e(f"s_add_u32 s56, s33, {FLW - 250*128}"); e("s_cmp_ge_u32 s2, 250"); e("s_cselect_b32 s34, s56, s34")
        srd(e, 8, 's54', 's55', FL_OFF, FL_SIZE)
        e("v_mov_b32 v232, s3")
        e("v_cmp_eq_u32 vcc, 0, v240"); e("s_and_saveexec_b64 s[56:57], vcc")
        e("buffer_store_dword v232, off, s[8:11], s34 sc1")
        if CT:
            e(f"s_add_u32 s34, s33, {FLQ}"); e("s_cmp_lt_u32 s2, 250"); e("s_cbranch_scc0 K1_NOFL2")
            e("buffer_store_dword v232, off, s[8:11], s34 sc1")
            e("K1_NOFL2:")
        e("s_mov_b64 exec, s[56:57]")
        e("K1_NOFL:")
        e("s_mov_b32 s48, s28")
        return L, [], []
    if o['stamp']:
        e("s_waitcnt vmcnt(0)")
        e("s_memtime s[64:65]"); e("s_memrealtime s[66:67]")
        e("s_waitcnt lgkmcnt(0)")
        e("s_cmp_eq_u32 s28, 0"); e("s_cbranch_scc0 K1_END")
        e("s_add_u32 s68, s54, 0x8100000"); e("s_addc_u32 s69, s55, 0"); e("s_mov_b32 s70, 0x100000"); e("s_mov_b32 s71, 0x20000")
        for k, r in enumerate([60, 64, 62, 66]): e(f"v_mov_b32 v{232+k}, s{r}")
        e("s_lshl_b32 s33, s2, 4"); e("v_mov_b32 v236, s33")
        e("buffer_store_dwordx4 v[232:235], v236, s[68:71], 0 offen")
        for k in range(8): e(f"v_mov_b32 v{244+k}, s{72+2*k}")
        e("s_lshl_b32 s33, s2, 5"); e("s_add_u32 s33, s33, 0x10000"); e("v_mov_b32 v236, s33")
        e("buffer_store_dwordx4 v[244:247], v236, s[68:71], 0 offen")
        e("buffer_store_dwordx4 v[248:251], v236, s[68:71], 0 offen offset:16")
    e("K1_END:")
    e("s_endpgm")
    return L, kernel_desc(name, 288, 256), []
```

```python
from gen_common import *
from tl import TL
import hazard, struct
SLOT = 16384
EX = 131072
fb = lambda x: hex(struct.unpack('<I', struct.pack('<f', x))[0])

def gen_k1(opt=None):
    o = dict(D=6, stamp=False, st='', npre=2, nln=4)
    if opt: o.update(opt)
    D = o['D']; ST = (' ' + o['st']) if o['st'] else ''
    FUSED = o.get('fused')
    name = FUSED if FUSED else 'prep_kernel'
    L = []; e = L.append
    B = 0; ACC = [64, 128]; KA = 192; KA2 = 200; VN = 208; VN2 = 216; DV = 224; DS = 228; XB = 200
    aR = 0; R = 8
    def stamp(T, k):
        if o['stamp']: T.append(f"s_memrealtime s[{72+2*k}:{73+2*k}]")
    L += kernel_header(name)
    e("s_cmp_ge_u32 s2, 256")
    e("s_cbranch_scc1 K2_END" if FUSED else "s_cbranch_scc1 K1_END")
    e("s_load_dwordx16 s[36:51], s[0:1], 0")
    e("s_load_dwordx2 s[52:53], s[0:1], 64")
    e("s_load_dwordx2 s[54:55], s[0:1], 88")
    FF = FUSED and o.get('fastfin', True) and not o.get('ct')
    if FUSED: e("s_load_dwordx2 s[58:59], s[0:1], 80")
    if FF: e("s_load_dwordx2 s[100:101], s[0:1], 72")
    if FF: e("s_mov_b32 s98, 0")
    if FUSED and not FF: e("s_mov_b32 s101, 0")
    if o['stamp']:
        e("s_memtime s[60:61]"); e("s_memrealtime s[62:63]")
    e("v_lshrrev_b32 v232, 6, v0")
    e("v_and_b32 v240, 63, v0")
    e("v_lshrrev_b32 v241, 5, v240")
    e("v_and_b32 v242, 31, v240")
    e("v_readfirstlane_b32 s28, v232")
    e("s_and_b32 s29, s28, 1")
    e("s_lshr_b32 s30, s28, 1")
    e("s_lshl_b32 s31, s28, 12")
    CT = o.get('ct')
    if CT: e("s_mov_b32 s35, s2")
    else: e("s_sub_u32 s35, s2, 125"); e("s_cmp_lt_u32 s2, 125"); e("s_cselect_b32 s35, s2, s35")
    e("s_lshl_b32 s33, s28, 1")
    for k in range(4):
        e(f"v_add_u32 v234, {2*k}, v241"); e("v_and_b32 v234, 3, v234"); e("v_lshlrev_b32 v234, 2, v234")
        e(f"s_add_u32 s34, s33, {k>>1}"); e("s_and_b32 s34, s34, 3")
        e("v_or_b32 v234, s34, v234"); e("v_xor_b32 v234, v242, v234"); e("v_lshlrev_b32 v234, 4, v234")
        e("v_lshl_add_u32 v234, v241, 9, v234")
        e(f"v_add_u32 v{DS+k}, s31, v234")
    e("s_waitcnt lgkmcnt(0)")
    if FUSED:
        e("s_mov_b32 s4, s58"); e("s_mov_b32 s5, s59"); e("s_mov_b32 s6, 256"); e("s_mov_b32 s7, 0x20000")
        e("s_or_b32 s33, s2, s28"); e("s_cmp_eq_u32 s33, 0"); e("s_cbranch_scc0 K1_NOTAG")
        e("s_memrealtime s[56:57]"); e("s_waitcnt lgkmcnt(0)"); e("s_or_b32 s56, s56, 1")
        e("v_mov_b32 v234, s56")
        e("buffer_store_dword v234, off, s[4:7], 0 sc1")
        e("K1_NOTAG:")
    e("s_cmp_lt_u32 s2, 250"); e("s_cbranch_scc0 K1_NOX")
    srd(e, 16, 's36', 's37', 0, 8000*512)
    e("s_lshl_b32 s32, s35, 14" if CT else "s_lshl_b32 s32, s35, 15")
    for half in range(1 if CT else 2):
        e(f"s_add_u32 m0, s31, {EX + half*SLOT:#x}")
        if half: e("s_add_u32 s32, s32, 16384")
        else: e("s_nop 0")
        for k in range(4):
            e(f"buffer_load_dwordx4 v{DS+k}, s[16:19], s32 offen offset:{k*1024} lds")
    PU = FUSED and o.get('pfug', True) and o.get('ugfirst', True) and not CT
    if PU:
        e("s_cmp_lt_u32 s2, 128"); e("s_cbranch_scc0 K1_NOX")
        e("s_lshr_b32 s33, s2, 3"); e("s_lshl_b32 s33, s33, 2"); e("s_add_u32 s33, s33, s28")
        e("v_lshlrev_b32 v232, 4, v240")
        e("s_getpc_b64 s[56:57]")
        e("K1_PCREF:")
        e(f"s_add_u32 s56, s56, K1_NOX-K1_PCREF"); e("s_addc_u32 s57, s57, 0")
        e("s_lshl_b32 s34, s33, 10"); e("v_add_u32 v233, s34, v232")
        e(f"s_cmp_lt_u32 s34, {o.get('ipfbytes', 61440)}"); e("s_cbranch_scc0 K1_NOIPF")
        e("global_load_dwordx4 v[252:255], v233, s[56:57]")
        e("K1_NOIPF:")
        e("s_mov_b32 s8, s40"); e("s_mov_b32 s9, s41"); e("s_mov_b32 s10, 131072"); e("s_mov_b32 s11, 0x20000")
        e("s_lshl_b32 s34, s33, 11")
        e("buffer_load_dwordx4 v[100:103], v232, s[8:11], s34 offen")
        e("buffer_load_dwordx4 v[104:107], v232, s[8:11], s34 offen offset:1024")
        if o.get('uppf', True):
            e("s_mov_b32 s8, s46"); e("s_mov_b32 s9, s47"); e("s_mov_b32 s10, 262144")
            e("v_lshl_add_u32 v233, v241, 10, 0"); e("v_lshl_add_u32 v233, v242, 4, v233")
            e(f"s_lshl_b32 s34, s33, 12"); e(f"s_add_u32 s34, s34, {512 if o.get('ufirst', False) else 0}")
            e("buffer_load_dwordx4 v[88:91], v233, s[8:11], s34 offen")
            e("buffer_load_dwordx4 v[92:95], v233, s[8:11], s34 offen offset:2048")
            e("s_mov_b32 s10, 131072")
        e("s_and_b32 s33, s2, 7"); e("s_cmp_lt_u32 s33, 2"); e("s_cbranch_scc1 K1_NOX")
        e("s_lshr_b32 s34, s2, 3")
        e("s_add_u32 s56, s52, 131072"); e("s_addc_u32 s57, s53, 0")
        e("s_cmp_ge_u32 s33, 6"); e("s_cselect_b32 s8, s50, s44"); e("s_cselect_b32 s9, s51, s45"); e("s_cselect_b32 s56, s56, s42"); e("s_cselect_b32 s57, s57, s43")
        e("s_cmp_lt_u32 s34, 8"); e("s_cselect_b32 s8, s8, s56"); e("s_cselect_b32 s9, s9, s57")
        e("s_and_b32 s34, s34, 7"); e("s_lshl_b32 s34, s34, 14"); e("s_lshl_b32 s33, s28, 12"); e("s_add_u32 s34, s34, s33")
        for k in range(4): e(f"buffer_load_dwordx4 v[{108+4*k}:{111+4*k}], v232, s[8:11], s34 offen offset:{k*1024}")
    else:
        if FUSED and o.get('ipf', True):
            e("s_getpc_b64 s[56:57]")
            e("K1_PCREF:")
            e(f"s_add_u32 s56, s56, {o.get('ipfbase', 'K1_NOX')}-K1_PCREF"); e("s_addc_u32 s57, s57, 0")
            e("s_lshr_b32 s33, s2, 3"); e("s_lshl_b32 s33, s33, 2"); e("s_add_u32 s33, s33, s28"); e("s_lshl_b32 s33, s33, 10")
            e(f"s_cmp_lt_u32 s33, {o.get('ipfbytes', 61440)}"); e("s_cbranch_scc0 K1_NOIPF")
            e("v_lshlrev_b32 v232, 4, v240"); e("v_add_u32 v232, s33, v232")
            e("global_load_dwordx4 v[252:255], v232, s[56:57]")
            e("K1_NOIPF:")
        if o.get('wpf', False):
            e("s_lshr_b32 s33, s2, 3"); e("s_lshl_b32 s33, s33, 2"); e("s_add_u32 s33, s33, s28")
            e("v_lshlrev_b32 v232, 4, v240")
            e("s_mov_b32 s8, s40"); e("s_mov_b32 s9, s41"); e("s_mov_b32 s10, 131072"); e("s_mov_b32 s11, 0x20000")
            e("s_lshl_b32 s34, s33, 10")
            e("buffer_load_dwordx4 v[100:103], v232, s[8:11], s34 offen")
            if o.get('wpf') != 'k':
                e("s_mov_b32 s8, s46"); e("s_mov_b32 s9, s47"); e("s_mov_b32 s10, 262144")
                e("s_lshl_b32 s34, s33, 11")
                e("buffer_load_dwordx4 v[104:107], v232, s[8:11], s34 offen")
                e("buffer_load_dwordx4 v[108:111], v232, s[8:11], s34 offen offset:1024")
        if FUSED and o.get('tlb', False):
            e("s_load_dwordx2 s[56:57], s[0:1], 72"); e("s_waitcnt lgkmcnt(0)")
            e("s_cmp_eq_u32 s28, 1"); e("s_cbranch_scc0 K1_NOTLB")
            srd(e, 8, 's54', 's55', OP_OFF, 64*16*16384)
            e("v_lshlrev_b32 v232, 21, v240")
            e("buffer_load_dword v112, v232, s[8:11], 0 offen")
            e("s_mov_b32 s8, s56"); e("s_mov_b32 s9, s57"); e("s_mov_b32 s10, 4096000")
            e("buffer_load_dword v113, v232, s[8:11], 0 offen")
            e("K1_NOTLB:")
        if o.get('pf', True):
            e("s_and_b32 s33, s2, 7"); e("s_cmp_lt_u32 s33, 2"); e("s_cbranch_scc1 K1_NOPF")
            e("s_lshr_b32 s34, s2, 3")
            e("s_cmp_ge_u32 s33, 6"); e("s_cbranch_scc1 K1_PF2")
            e("s_cmp_lt_u32 s34, 16"); e("s_cselect_b32 s8, s44, s42"); e("s_cselect_b32 s9, s45, s43")
            e("s_and_b32 s34, s34, 15"); e("s_lshl_b32 s34, s34, 13")
            e("s_branch K1_PF3")
            e("K1_PF2:")
            e("s_add_u32 s56, s52, 131072"); e("s_addc_u32 s57, s53, 0")
            e("s_cmp_lt_u32 s34, 16"); e("s_cselect_b32 s8, s50, s56"); e("s_cselect_b32 s9, s51, s57")
            e("s_and_b32 s34, s34, 15"); e("s_lshl_b32 s34, s34, 13")
            e("K1_PF3:")
            e("s_mov_b32 s10, 131072"); e("s_mov_b32 s11, 0x20000")
            e("v_lshlrev_b32 v232, 4, v240"); e("s_lshl_b32 s33, s28, 11"); e("s_add_u32 s34, s34, s33")
            e("buffer_load_dwordx4 v[244:247], v232, s[8:11], s34 offen")
            e("buffer_load_dwordx4 v[248:251], v232, s[8:11], s34 offen offset:1024")
            e("K1_NOPF:")
        pass
    e("K1_NOX:")
    first, second = ("K1_UG", "K1_Q") if o.get('ugfirst', True) else ("K1_Q", "K1_UG")
    if CT:
        e("s_cmp_lt_u32 s2, 250"); e("s_cbranch_scc1 K1_CT")
    else:
        e("s_cmp_lt_u32 s2, 125"); e(f"s_cbranch_scc1 {first}")
        e("s_cmp_lt_u32 s2, 250"); e(f"s_cbranch_scc1 {second}")
    e("s_cmp_lt_u32 s2, 254"); e("s_cbranch_scc1 K1_W1")
    e("s_branch K1_W2")

    def k_addr(T, dst, dst2, base_lines):
        t = T.append
        t("v_and_b32 v234, 3, v242"); t("v_lshlrev_b32 v234, 2, v234"); t("v_bfe_u32 v235, v242, 2, 2")
        t("v_or_b32 v234, v234, v235"); t("v_lshlrev_b32 v236, 9, v242")
        for x in base_lines: t(x)
        t("v_add_u32 v236, s33, v236")
        for jj in range(8):
            t(f"v_add_u32 v235, {2*jj}, v241"); t("v_xor_b32 v235, v235, v234")
            t(f"v_lshl_add_u32 v{dst+jj}, v235, 4, v236")
            if dst2 is not None: t(f"v_add_u32 v{dst2+jj}, 0x10000, v{dst+jj}")
    def ka_setup(T): k_addr(T, KA, KA2, ["s_lshl_b32 s33, s30, 14"])
    def xb_setup(T): k_addr(T, XB, None, ["s_lshl_b32 s33, s29, 14", f"s_add_u32 s33, s33, {EX}", "s_lshl_b32 s34, s30, 8", "s_add_u32 s33, s33, s34"])
    def vn_setup(T):
        t = T.append
        t("v_bfe_u32 v234, v240, 4, 1"); t("v_bfe_u32 v235, v240, 2, 2"); t("v_bfe_u32 v236, v240, 1, 1")
        t("v_lshl_add_u32 v236, v234, 1, v236"); t("v_and_b32 v237, 1, v240"); t("v_lshlrev_b32 v237, 3, v237")
        t("v_lshl_add_u32 v238, v241, 3, v235"); t("v_lshl_add_u32 v237, v238, 9, v237")
        t("s_lshl_b32 s33, s30, 8"); t("v_add_u32 v237, s33, v237")
        for a in range(4):
            for u in range(2):
                t(f"v_lshl_add_u32 v238, v241, 1, {u}"); t("v_lshl_or_b32 v238, v235, 2, v238")
                t(f"v_add_u32 v239, {4*a}, v236"); t("v_xor_b32 v238, v238, v239")
                t(f"v_lshl_add_u32 v{VN+a*2+u}, v238, 4, v237")
                if u: t(f"v_add_u32 v{VN+a*2+u}, {4*512}, v{VN+a*2+u}")
                t(f"v_add_u32 v{VN2+a*2+u}, 0x10000, v{VN+a*2+u}")
    def dma_voff(T, stride1024):
        t = T.append
        if not stride1024:
            for k in range(4): t(f"v_mov_b32 v{DV+k}, v{DS+k}")
            return
        t("s_lshl_b32 s33, s28, 1")
        for k in range(4):
            t(f"v_add_u32 v234, {2*k}, v241"); t("v_and_b32 v234, 3, v234"); t("v_lshlrev_b32 v234, 2, v234")
            t(f"s_add_u32 s34, s33, {k>>1}"); t("s_and_b32 s34, s34, 3")
            t("v_or_b32 v234, s34, v234"); t("v_xor_b32 v234, v242, v234"); t("v_lshlrev_b32 v234, 4, v234")
            t("v_lshl_add_u32 v234, v241, 10, v234"); t("s_lshl_b32 s34, s28, 13"); t(f"s_add_u32 s34, s34, {k*1024}")
            t(f"v_add_u32 v{DV+k}, s34, v234")
    def tile_dma(n, srdn, soff):
        if o.get('nodma'): return []
        r = [(f"s_add_u32 m0, s31, {(n%8)*SLOT:#x}", False), (f"s_mov_b32 s32, {soff:#x}", False)]
        for k in range(4):
            r.append((f"buffer_load_dwordx4 v{DV+k}, s[{srdn}:{srdn+3}], s32 offen offset:{k*1024} lds", True))
        return r
    def emit_tile(out, W, n, srdn, soff):
        for txt, vm in tile_dma(n, srdn, soff):
            out.append(txt)
            if vm: W.issue('vm', ('T', n))
    def out_rows(T, W, srdn, tag, OB):
        t = T.append
        t("v_lshlrev_b32 v232, 4, v240"); t(f"s_add_u32 s33, s31, {EX}"); t("v_add_u32 v232, s33, v232")
        for half in range(2):
            for k in range(4):
                t(f"ds_read_b128 {vr(OB+(half*4+k)*4,4)}, v232 offset:{half*SLOT + k*1024}")
        t("s_lshl_b32 s32, s35, 15")
        for half in range(2):
            if half: t("s_add_u32 s32, s32, 16384")
            for k in range(4):
                t(f"s_waitcnt lgkmcnt({7 - (half*4+k)})")
                t(f"buffer_store_dwordx4 {vr(OB+(half*4+k)*4,4)}, v{DS+k}, s[{srdn}:{srdn+3}], s32 offen offset:{k*1024}{ST}")
                W.issue('vm', (tag, half, k))
        W.drain('lgkm')
    def ln(out, W, tiles):
        nw = W.need('vm', [('X', 7)])
        out.append(f"s_waitcnt vmcnt({nw})")
        out.append("s_barrier")
        stamp(out, 0)
        for s in range(8):
            out.append(f"ds_read_b128 {vr(64+4*s,4)}, v{XB+s}")
        body = []; b = body.append
        b("s_mov_b32 s34, 0x3f803f80")
        for k in range(4): b(f"v_mov_b32 v{232+k}, 0")
        for r in range(32):
            if r % 4 == 0: b(f"s_waitcnt lgkmcnt({7 - r//4})")
            b(f"v_dot2_f32_bf16 v{232+(r&1)}, v{64+r}, s34, v{232+(r&1)}")
            b(f"v_dot2_f32_bf16 v{234+(r&1)}, v{64+r}, v{64+r}, v{234+(r&1)}")
        b("s_nop 2")
        b("v_add_f32 v232, v232, v233"); b("v_add_f32 v234, v234, v235")
        b("v_mov_b32 v233, v232"); b("v_mov_b32 v235, v234"); b("s_nop 1")
        b("v_permlane32_swap_b32 v232, v233"); b("v_permlane32_swap_b32 v234, v235"); b("s_nop 1")
        b("v_add_f32 v232, v232, v233"); b("v_add_f32 v233, v234, v235")
        b(f"ds_write_b64 v{XB}, v[232:233]")
        b(f"v_xor_b32 v238, 256, v{XB}")
        b("s_waitcnt lgkmcnt(0)")
        b("s_barrier")
        b("ds_read_b64 v[234:235], v238")
        b("s_waitcnt lgkmcnt(0)")
        b("v_add_f32 v232, v232, v234"); b("v_add_f32 v234, v233, v235")
        b("v_mul_f32 v232, 0x3b800000, v232"); b("v_mul_f32 v234, 0x3b800000, v234")
        b("v_fma_f32 v234, -v232, v232, v234"); b("v_max_f32 v234, 0, v234"); b("v_add_f32 v234, 0x3727c5ac, v234")
        b("v_rsq_f32 v234, v234"); b("s_nop 0")
        b("v_mul_f32 v236, v232, v234"); b("v_sub_f32 v236, 0, v236")
        b("s_barrier")
        for r in range(32):
            t = 244 + 2*(r % 4)
            b(f"v_lshlrev_b32 v{t}, 16, v{64+r}")
            b(f"v_and_b32 v{t+1}, 0xffff0000, v{64+r}")
            b(f"v_pk_fma_f32 v[{t}:{t+1}], v[{t}:{t+1}], v[234:235], v[236:237] op_sel_hi:[1,0,0]")
            b(f"v_cvt_pk_bf16_f32 v{64+r}, v{t}, v{t+1}")
            if r % 4 == 3: b(f"ds_write_b128 v{XB+r//4}, {vr(64+r-3,4)}")
        b("s_waitcnt lgkmcnt(0)")
        b("s_barrier")
        b("s_lshl_b32 s33, s30, 8")
        for jj in range(8): b(f"v_subrev_u32 v{244+jj}, s33, v{XB+jj}")
        for s in range(16):
            b(f"ds_read_b128 {vr(B+4*s,4)}, v{244+(s&7)} offset:{(s>>3)*256}")
        flat = []
        for (n, sn, so) in tiles:
            tl_ = [(txt, vm, n) for txt, vm in tile_dma(n, sn, so)]
            flat.append(tl_[:3])
            for x in tl_[3:]: flat.append([x])
        gap = max(1, len(body) // (len(flat) + 1)) if flat else 1
        fi = 0
        for i, ins in enumerate(body):
            out.append(ins)
            if fi < len(flat) and i % gap == gap - 1:
                for txt, vm, n in flat[fi]:
                    out.append(txt)
                    if vm: W.issue('vm', ('T', n))
                fi += 1
        while fi < len(flat):
            for txt, vm, n in flat[fi]:
                out.append(txt)
                if vm: W.issue('vm', ('T', n))
            fi += 1
        out.append("s_waitcnt lgkmcnt(0)")
        W.drain('lgkm')
    def phase(W, p, kind, later, fill=None, f0=3, bar_lgkm=None):
        tl = TL(W)
        acc = ACC[p]
        cnt = [0]
        for a in range(4):
            sig = 4*p + a
            tb = 16*a - D - 1
            tl.add(tb, 'bar', needvm=[('T', 2*sig), ('T', 2*sig+1)], needlgkm=(bar_lgkm or {}).get(sig, []), prio=1)
            k = 0
            for (n, sn, so) in later.get(sig, []):
                for txt, vm in tile_dma(n, sn, so):
                    sp = o.get('dsp', 2)
                    if vm:
                        tl.add(tb + 1 + sp*k, 'vm', txt, tag=('T', n), prio=7); k += 1
                    else:
                        tl.add(tb + 1 + sp*k, 'txt', txt, prio=6)
            for m in range(16):
                tm = 16*a + m
                ri = cnt[0] % R; cnt[0] += 1
                ring = aR + 4*ri
                if kind == 'X':
                    j = m; slot = 2*a
                    base = (KA if slot < 4 else KA2) + (j & 7)
                    off = (slot % 4)*SLOT + (j >> 3)*256
                    tag = (p, a, m)
                    tl.add(tm - D, 'lds', f"ds_read_b128 {ar(ring,4)}, v{base} offset:{off}", tag=tag, prio=2)
                    c = vr(acc+16*a,16) if j else '0'
                    tl.add(tm, 'mfma', f"v_mfma_f32_32x32x16_bf16 {vr(acc+16*a,16)}, {ar(ring,4)}, {vr(B+4*j,4)}, {c}", need=[tag], prio=0)
                else:
                    tt, s, aa = m >> 3, (m >> 2) & 1, m & 3
                    tau = 2*a + tt; slot = tau
                    tags = []
                    for u in range(2):
                        base = (VN if slot < 4 else VN2) + aa*2 + u
                        off = (slot % 4)*SLOT + 16*s*512
                        tag = (p, a, m, u); tags.append(tag)
                        tl.add(tm - D, 'lds', f"ds_read_b64_tr_b16 {ar(ring+2*u,2)}, v{base} offset:{off}", tag=tag, prio=2)
                    c = vr(acc+16*aa,16) if (tau or s) else '0'
                    tl.add(tm, 'mfma', f"v_mfma_f32_32x32x16_bf16 {vr(acc+16*aa,16)}, {ar(ring,4)}, {vr(B+4*(2*tau+s),4)}, {c}", need=tags, prio=0)
        if fill:
            n = len(fill)
            for i, ins in enumerate(fill):
                tl.add(f0 + (i*(64-f0))/n, 'txt', ins, prio=4)
        return tl
    def pack_swap(out, src, dst, swap=True, scale=None):
        if scale:
            for k in range(8):
                out.append(f"v_pk_mul_f32 v[{src+2*k}:{src+2*k+1}], v[{src+2*k}:{src+2*k+1}], {scale} op_sel_hi:[1,0]")
        for k in range(8):
            out.append(f"v_cvt_pk_bf16_f32 v{dst+k}, v{src+2*k}, v{src+2*k+1}")
        if swap:
            out.append("s_nop 1")
            for b in (0, 4):
                out.append(f"v_permlane32_swap_b32 v{dst+b}, v{dst+b+2}")
                out.append(f"v_permlane32_swap_b32 v{dst+b+1}, v{dst+b+3}")
    def exchange(out, W, acc, kind, xaflag=False):
        out.append("s_nop 15")
        out.append("v_lshlrev_b32 v232, 4, v240")
        out.append(f"s_lshl_b32 s33, s29, 14"); out.append(f"s_add_u32 s33, s33, {EX}")
        out.append("v_add_u32 v233, s33, v232")
        out.append(f"s_lshl_b32 s34, s30, {13 if kind=='Y' else 11}")
        out.append("v_add_u32 v232, s34, v233")
        for a in range(4):
            d = 244 if a % 2 == 0 else 0
            pack_swap(out, acc+16*a, d)
            for s in range(2):
                f = (2*a + s) if kind == 'Y' else (4*a + s)
                out.append(f"ds_write_b128 v232, {vr(d+4*s,4)} offset:{f*1024}")
        if xaflag:
            n = W.need('vm', [x for x in W.q['vm'] if isinstance(x, tuple) and x[0] == 'XS'] + ['TAG'])
            if n is not None: out.append(f"s_waitcnt vmcnt({n})")
        out.append("s_waitcnt lgkmcnt(0)")
        out.append("s_barrier")
        if xaflag:
            out.append("v_readfirstlane_b32 s3, v243"); out.append("s_or_b32 s33, s28, 0");
            out.append("s_cmp_eq_u32 s28, 0"); out.append("s_cbranch_scc0 K1_Q_NOXF")
            out.append("s_cmp_lg_u32 s3, 0"); out.append("s_cbranch_scc0 K1_Q_NOXF")
            out += cap(lambda e: srd(e, 16, 's54', 's55', FL_OFF, FL_SIZE))
            out.append("s_lshl_b32 s33, s35, 7"); out.append(f"s_add_u32 s33, s33, {FLQ + 4}")
            out.append("v_mov_b32 v238, s3"); out.append("v_cmp_eq_u32 vcc, 0, v240"); out.append("s_and_saveexec_b64 s[56:57], vcc")
            out.append("buffer_store_dword v238, off, s[16:19], s33 sc1")
            out.append("s_mov_b64 exec, s[56:57]")
            out.append("K1_Q_NOXF:")
        for f in range(16):
            out.append(f"ds_read_b128 {vr(B+4*f,4)}, v233 offset:{f*1024}")
        out.append("s_waitcnt lgkmcnt(0)")
        W.drain('lgkm')
    def narrow(out, W, rowbase_bytes, slice_sreg):
        for x in ["v_lshrrev_b32 v232, 3, v240", "v_lshlrev_b32 v232, 9, v232", "v_and_b32 v233, 7, v240",
                  "v_lshl_add_u32 v232, v233, 4, v232", f"s_lshl_b32 s33, {slice_sreg}, 7", "s_lshl_b32 s34, s28, 15",
                  "s_add_u32 s33, s33, s34", f"s_add_u32 s33, s33, {rowbase_bytes}", "v_add_u32 v232, s33, v232",
                  "s_lshl_b32 s34, s28, 13", f"s_add_u32 s34, s34, {EX}"]: out.append(x)
        for i in range(8):
            out.append(f"s_add_u32 m0, s34, {i*1024}")
            out.append(f"s_mov_b32 s32, {i*4096}")
            out.append(f"buffer_load_dwordx4 v232, s[16:19], s32 offen lds")
            W.issue('vm', ('N', i))
    def narrow_read(out, W):
        n = W.need('vm', [('N', 7)])
        out.append(f"s_waitcnt vmcnt({n})")
        out.append("s_barrier")
        for x in ["v_bfe_u32 v232, v240, 2, 2", "v_lshl_add_u32 v232, v241, 3, v232", "v_lshlrev_b32 v232, 7, v232",
                  "v_bfe_u32 v233, v240, 4, 1", "v_lshl_add_u32 v232, v233, 5, v232", "v_and_b32 v233, 3, v240",
                  "v_lshl_add_u32 v232, v233, 3, v232", "s_lshl_b32 s33, s29, 6", f"s_add_u32 s33, s33, {EX}",
                  "v_add_u32 v232, s33, v232"]: out.append(x)
        for s in range(16):
            for u in range(2):
                out.append(f"ds_read_b64_tr_b16 {vr(B+4*s+2*u,2)}, v232 offset:{s*2048+u*512}")
            if s % 4 == 3: out.append("s_waitcnt lgkmcnt(0)")
        W.drain('lgkm')
    def finish(task_lines, label):
        if CT and label in ("K1_Q", "K1_UG"): return
        fixed = hazard.autofix(task_lines)
        e(f"{label}:")
        L.extend(fixed)
        e("s_branch K1_FIN")
    def cap(fn):
        buf = []; fn(buf.append); return buf
    std_later = lambda sn: {2: [(8, sn, 0), (9, sn, SLOT)], 3: [(10, sn, 2*SLOT), (11, sn, 3*SLOT)], 4: [(12, sn, 4*SLOT), (13, sn, 5*SLOT)], 5: [(14, sn, 6*SLOT), (15, sn, 7*SLOT)]}
    npre = o['npre']
    AZ = [f"v_accvgpr_write_b32 a{128+r}, 0" for r in range(128)] if (FF and o.get('lean', True)) else []
    def azero(T, force=False):
        if AZ and (force or not o.get('azph0')): T.extend(AZ)


    if CT:
        EXB = EX + 16384
        Bq = 64
        ACCQ, ACCK, ACCG, ACCU = 64, 96, 128, 160
        VN4 = 208; VN42 = 212; XO = 216; XB8 = 244
        W = Waiter(); T = []; t = T.append
        for s_ in range(4): W.issue('vm', ('X', s_))
        dma_voff(T, True)
        T += cap(lambda e: (srd(e, 8, 's38', 's39', 0, 131072), srd(e, 12, 's40', 's41', 0, 131072), srd(e, 20, 's46', 's47', 0, 262144),
                            srd(e, 24, 's54', 's55', QF_OFF, 500*8192)))
        def tinfo(n):
            if n < 8: return (8, n*SLOT, DS)
            if n < 16: return (12, (n-8)*SLOT, DS)
            if n < 24: return (20, (n-16)*32768 + 512, DV)
            return (20, (n-24)*32768, DV)
        def tdma(n):
            sn, so, dv = tinfo(n)
            r = [(f"s_add_u32 m0, s31, {(n%8)*SLOT:#x}", False), (f"s_mov_b32 s32, {so:#x}", False)]
            for k in range(4): r.append((f"buffer_load_dwordx4 v{dv+k}, s[{sn}:{sn+3}], s32 offen offset:{k*1024} lds", True))
            return r
        def temit(n):
            for txt, vm in tdma(n):
                t(txt)
                if vm: W.issue('vm', ('T', n))
        temit(0); temit(1)
        t("v_and_b32 v234, 3, v242"); t("v_lshlrev_b32 v234, 2, v234"); t("v_bfe_u32 v235, v242, 2, 2"); t("v_or_b32 v234, v234, v235")
        t("v_lshlrev_b32 v236, 9, v242"); t(f"v_add_u32 v237, {EX}, v236")
        t("s_lshl_b32 s33, s30, 8"); t("v_add_u32 v238, s33, v237")
        t("s_lshl_b32 s33, s29, 3")
        for i in range(4):
            t(f"s_add_u32 s34, s33, {2*i}"); t("v_add_u32 v235, s34, v241"); t("v_xor_b32 v235, v235, v234"); t(f"v_lshl_add_u32 v{XO+i}, v235, 4, v238")
        t("s_lshl_b32 s33, s28, 14"); t("v_add_u32 v238, s33, v236")
        for jj in range(8):
            t(f"v_add_u32 v235, {2*jj}, v241"); t("v_xor_b32 v235, v235, v234")
            t(f"v_lshl_add_u32 v{KA+jj}, v235, 4, v238"); t(f"v_add_u32 v{KA2+jj}, 0x10000, v{KA+jj}")
        t("v_bfe_u32 v234, v240, 4, 1"); t("v_bfe_u32 v235, v240, 2, 2"); t("v_bfe_u32 v236, v240, 1, 1")
        t("v_lshl_add_u32 v236, v234, 1, v236"); t("v_and_b32 v237, 1, v240"); t("v_lshlrev_b32 v237, 3, v237")
        t("v_lshl_add_u32 v238, v241, 3, v235"); t("v_lshl_add_u32 v237, v238, 9, v237")
        t("s_lshl_b32 s33, s30, 8"); t("v_add_u32 v237, s33, v237")
        t("s_lshl_b32 s33, s29, 3")
        for aa in range(2):
            for u in range(2):
                t(f"v_lshl_add_u32 v238, v241, 1, {u}"); t("v_lshl_or_b32 v238, v235, 2, v238")
                t(f"s_add_u32 s34, s33, {4*aa}"); t("v_add_u32 v239, s34, v236"); t("v_xor_b32 v238, v238, v239")
                t(f"v_lshl_add_u32 v{VN4+aa*2+u}, v238, 4, v237")
                if u: t(f"v_add_u32 v{VN4+aa*2+u}, {4*512}, v{VN4+aa*2+u}")
                t(f"v_add_u32 v{VN42+aa*2+u}, 0x10000, v{VN4+aa*2+u}")
        nw = W.need('vm', [('X', 3)]); t(f"s_waitcnt vmcnt({nw})"); t("s_barrier")
        stamp(T, 0)
        for i in range(4): t(f"ds_read_b128 {vr(64+4*i,4)}, v{XO+i}")
        T += cap(lambda e: srd(e, 16, 's54', 's55', XA_OFF, 8000*512))
        body = []; b = body.append
        b("s_mov_b32 s34, 0x3f803f80")
        for k in range(4): b(f"v_mov_b32 v{232+k}, 0")
        for r in range(16):
            if r % 4 == 0: b(f"s_waitcnt lgkmcnt({3 - r//4})")
            b(f"v_dot2_f32_bf16 v{232+(r&1)}, v{64+r}, s34, v{232+(r&1)}")
            b(f"v_dot2_f32_bf16 v{234+(r&1)}, v{64+r}, v{64+r}, v{234+(r&1)}")
        b("s_nop 2")
        b("v_add_f32 v232, v232, v233"); b("v_add_f32 v234, v234, v235")
        b("v_mov_b32 v233, v232"); b("v_mov_b32 v235, v234"); b("s_nop 1")
        b("v_permlane32_swap_b32 v232, v233"); b("v_permlane32_swap_b32 v234, v235"); b("s_nop 1")
        b("v_add_f32 v232, v232, v233"); b("v_add_f32 v233, v234, v235")
        b("v_lshlrev_b32 v238, 3, v242"); b(f"v_add_u32 v238, {EXB}, v238")
        b("s_lshl_b32 s33, s28, 8"); b("v_add_u32 v239, s33, v238")
        b("ds_write_b64 v239, v[232:233]")
        b("s_waitcnt lgkmcnt(0)"); b("s_barrier")
        for k in range(4): b(f"ds_read_b64 v[{80+2*k}:{81+2*k}], v238 offset:{256*k}")
        b("s_waitcnt lgkmcnt(0)")
        b("v_add_f32 v80, v80, v82"); b("v_add_f32 v81, v81, v83"); b("v_add_f32 v84, v84, v86"); b("v_add_f32 v85, v85, v87")
        b("v_add_f32 v232, v80, v84"); b("v_add_f32 v234, v81, v85")
        b("v_mul_f32 v232, 0x3b800000, v232"); b("v_mul_f32 v234, 0x3b800000, v234")
        b("v_fma_f32 v234, -v232, v232, v234"); b("v_max_f32 v234, 0, v234"); b("v_add_f32 v234, 0x3727c5ac, v234")
        b("v_rsq_f32 v234, v234"); b("s_nop 0")
        b("v_mul_f32 v236, v232, v234"); b("v_sub_f32 v236, 0, v236")
        for r in range(16):
            tt_ = 244 + 2*(r % 4)
            b(f"v_lshlrev_b32 v{tt_}, 16, v{64+r}"); b(f"v_and_b32 v{tt_+1}, 0xffff0000, v{64+r}")
            b(f"v_pk_fma_f32 v[{tt_}:{tt_+1}], v[{tt_}:{tt_+1}], v[234:235], v[236:237] op_sel_hi:[1,0,0]")
            b(f"v_cvt_pk_bf16_f32 v{64+r}, v{tt_}, v{tt_+1}")
            if r % 4 == 3: b(f"ds_write_b128 v{XO+r//4}, {vr(64+r-3,4)}")
        b("s_lshl_b32 s33, s28, 14"); b(f"s_sub_u32 s33, {EX}, s33")
        for jj in range(8): b(f"v_add_u32 v{XB8+jj}, s33, v{KA+jj}")
        b("s_waitcnt lgkmcnt(0)"); b("s_barrier")
        for s_ in range(16): b(f"ds_read_b128 {vr(B+4*s_,4)}, v{XB8+(s_&7)} offset:{(s_>>3)*256}")
        b("v_lshlrev_b32 v232, 4, v240"); b(f"s_add_u32 s33, s31, {EX}"); b("v_add_u32 v232, s33, v232")
        for k in range(4): b(f"ds_read_b128 {vr(96+4*k,4)}, v232 offset:{k*1024}")
        flat = []
        for n in range(2, 6):
            tl_ = [(txt, vm, n) for txt, vm in tdma(n)]
            flat.append(tl_[:3])
            for x in tl_[3:]: flat.append([x])
        gap = max(1, (len(body) - 24) // (len(flat) + 1)); fi = 0
        for i, ins in enumerate(body):
            t(ins)
            if fi < len(flat) and i % gap == gap - 1:
                for txt, vm, n in flat[fi]:
                    t(txt)
                    if vm: W.issue('vm', ('T', n))
                fi += 1
        while fi < len(flat):
            for txt, vm, n in flat[fi]:
                t(txt)
                if vm: W.issue('vm', ('T', n))
            fi += 1
        t("s_waitcnt lgkmcnt(0)")
        t("s_lshl_b32 s56, s35, 14")
        for k in range(4):
            t(f"buffer_store_dwordx4 {vr(96+4*k,4)}, v{DS+k}, s[16:19], s56 offen offset:{k*1024}{ST}"); W.issue('vm', ('XS', k))
        stamp(T, 1)
        def flag_store(off_lines, lbl):
            t("s_cmp_eq_u32 s28, 0"); t(f"s_cbranch_scc0 {lbl}")
            for x in off_lines: t(x)
            t("v_mov_b32 v232, s3"); t("v_cmp_eq_u32 vcc, 0, v240"); t("s_and_saveexec_b64 s[56:57], vcc")
            t("buffer_store_dword v232, off, s[8:11], s34 sc1")
            t("s_mov_b64 exec, s[56:57]")
            t(f"{lbl}:")
        fillers = {}
        def step(sig, extra_need=None, after_bar=None):
            p, a = sig >> 2, sig & 3
            need = [('T', 2*sig), ('T', 2*sig+1)] + (extra_need or [])
            nv = W.need('vm', need)
            if nv is not None: t(f"s_waitcnt vmcnt({nv})")
            t("s_barrier")
            if after_bar: after_bar()
            dm = []
            for n in (2*(sig+3), 2*(sig+3)+1):
                if n < 32: dm += [(txt, vm, n) for txt, vm in tdma(n)]
            fl = list(fillers.get(sig, []))
            def some(k_dma, k_fill):
                c = 0
                while dm and c < k_dma:
                    txt, vm, n = dm.pop(0); t(txt)
                    if vm: W.issue('vm', ('T', n)); c += 1
                for _ in range(k_fill):
                    if fl: t(fl.pop(0))
            nf = -(-len(fl) // 8) if fl else 0
            if p != 1:
                acc = {0: ACCQ, 2: ACCG, 3: ACCU}[p]
                idx = 0; seq = []
                for tt in range(2):
                    slot = (2*sig + tt) % 8
                    for s_ in range(2):
                        for aa in range(2):
                            for u in range(2):
                                base = (VN4 if slot < 4 else VN42) + aa*2 + u
                                t(f"ds_read_b64_tr_b16 {ar(4*idx+2*u,2)}, v{base} offset:{(slot%4)*SLOT + 16*s_*512}")
                            seq.append((idx, tt, s_, aa)); idx += 1
                for (idx, tt, s_, aa) in seq:
                    if idx % 2 == 0: t(f"s_waitcnt lgkmcnt({14 - 2*idx - 2 if idx < 6 else 0})")
                    tau = 2*a + tt
                    c = vr(acc+16*aa,16) if (tau or s_) else '0'
                    t(f"v_mfma_f32_32x32x16_bf16 {vr(acc+16*aa,16)}, {ar(4*idx,4)}, {vr(B+4*(2*tau+s_),4)}, {c}")
                    some(1, nf)
            else:
                lbl = f"K1_CT_X{a}"
                t(f"s_cmp_eq_u32 s30, {a & 1}"); t(f"s_cbranch_scc0 {lbl}")
                k = a >> 1; base = KA if k == 0 else KA2
                for half in range(2):
                    for j in range(8): t(f"ds_read_b128 {ar(4*j,4)}, v{base+j} offset:{half*256}")
                    for j in range(8):
                        if j % 2 == 0: t(f"s_waitcnt lgkmcnt({6 - j})")
                        jj = 8*half + j
                        c = vr(ACCK+16*k,16) if jj else '0'
                        t(f"v_mfma_f32_32x32x16_bf16 {vr(ACCK+16*k,16)}, {ar(4*j,4)}, {ar(Bq+4*jj,4)}, {c}")
                t(f"{lbl}:")
            some(100, 1000)
        for sig in range(4): step(sig)
        stamp(T, 2)
        t("s_nop 15")
        t("v_lshlrev_b32 v232, 4, v240"); t(f"v_add_u32 v233, {EXB}, v232"); t("s_lshl_b32 s34, s28, 12"); t("v_add_u32 v232, s34, v233")
        for aa in range(2):
            d = 244 if aa == 0 else 96
            pack_swap(T, ACCQ+16*aa, d)
            for s_ in range(2): t(f"ds_write_b128 v232, {vr(d+4*s_,4)} offset:{(2*aa+s_)*1024}")
        t("s_waitcnt lgkmcnt(0)"); t("s_barrier")
        for f in range(16): t(f"ds_read_b128 {ar(Bq+4*f,4)}, v233 offset:{f*1024}")
        t("s_waitcnt lgkmcnt(0)")
        t("buffer_load_dword v243, off, s[4:7], 0 sc1"); W.issue('vm', 'TAG')
        for sig in range(4, 8): step(sig)
        stamp(T, 3)
        qf = []
        qf.append("s_nop 7"); qf.append("v_mov_b32 v236, 0x3db8aa3b")
        qf += ["s_lshl_b32 s33, s35, 14", "s_lshl_b32 s34, s28, 10", "s_add_u32 s33, s33, s34",
               "v_lshrrev_b32 v252, 4, v242", "v_lshlrev_b32 v252, 13, v252", "v_and_b32 v253, 15, v242", "v_lshl_add_u32 v253, v241, 4, v253",
               "v_lshl_add_u32 v252, v253, 4, v252", "v_add_u32 v252, s33, v252"]
        qst = []
        for k in range(2):
            d = 244 if k == 0 else 64
            pack_swap(qf, ACCK+16*k, d, scale="v[236:237]")
            for s_ in range(2):
                qf.append(f"buffer_store_dwordx4 {vr(d+4*s_,4)}, v252, s[24:27], 0 offen offset:{k*4096 + s_*512 - (4096 if k else 0)}{ST}" if k == 0 else "@K1")
        out2 = []
        cnt = 0
        for x in qf:
            if x == "@K1":
                if cnt == 0: out2.append("v_add_u32 v253, 4096, v252")
                out2.append(f"buffer_store_dwordx4 {vr(64+4*cnt,4)}, v253, s[24:27], 0 offen offset:{cnt*512}{ST}"); cnt += 1
            else: out2.append(x)
        qf = out2
        for x in qf:
            t(x)
            if x.startswith('buffer_store'): W.issue('vm', ('QS', len(W.q['vm'])))
        W.issue('vm', 'QEND'); W.q['vm'].pop()
        qtags = [x for x in W.q['vm'] if isinstance(x, tuple) and x[0] in ('QS', 'XS')]
        step(8)
        step(9)
        def get_tag():
            t("K1_CT_TAGP:")
            t("buffer_load_dword v232, off, s[4:7], 0 sc1"); t("s_waitcnt vmcnt(0)")
            t("v_readfirstlane_b32 s3, v232"); t("s_nop 3"); t("s_cmp_lg_u32 s3, 0"); t("s_cbranch_scc1 K1_CT_TAGD"); t("s_sleep 1"); t("s_branch K1_CT_TAGP")
            t("K1_CT_TAGD:")
        def qflag():
            T.extend(cap(lambda e: srd(e, 8, 's54', 's55', FL_OFF, FL_SIZE)))
            flag_store([f"s_lshl_b32 s34, s35, 7", f"s_add_u32 s34, s34, {FLQ}"], "K1_CT_NOQF")
        step(10, extra_need=qtags + ['TAG'], after_bar=None)
        t("v_readfirstlane_b32 s3, v243")
        t("s_nop 3")
        pend_qflag = True
        t("s_cmp_eq_u32 s28, 0"); t("s_cbranch_scc0 K1_CT_NOQF2")
        t("s_cmp_lg_u32 s3, 0"); t("s_cbranch_scc0 K1_CT_NOQF2")
        T.extend(cap(lambda e: srd(e, 8, 's54', 's55', FL_OFF, FL_SIZE)))
        t(f"s_lshl_b32 s34, s35, 7"); t(f"s_add_u32 s34, s34, {FLQ}")
        t("v_mov_b32 v232, s3"); t("v_cmp_eq_u32 vcc, 0, v240"); t("s_and_saveexec_b64 s[56:57], vcc")
        t("buffer_store_dword v232, off, s[8:11], s34 sc1")
        t("s_mov_b64 exec, s[56:57]")
        t("K1_CT_NOQF2:")
        step(11)
        stamp(T, 4)
        k0 = -2.0*1.4426950408889634*0.7978845608028654
        t("s_nop 7")
        t(f"v_mov_b32 v232, {fb(k0)}"); t(f"v_mov_b32 v234, {fb(k0*0.044715)}"); t("v_mov_b32 v236, 1.0")
        for k in range(4): t(f"v_mov_b32 v{252+k}, 0")
        def gelu(r):
            tt_ = 244 + 2*((r//2) % 4)
            X = f"v[{r}:{r+1}]"; Tt = f"v[{tt_}:{tt_+1}]"
            return [f"v_pk_mul_f32 {Tt}, {X}, {X}", f"v_pk_fma_f32 {Tt}, {Tt}, v[234:235], v[232:233] op_sel_hi:[1,0,0]", f"v_pk_mul_f32 {Tt}, {Tt}, {X}",
                    f"v_exp_f32 v{tt_}, v{tt_}", f"v_exp_f32 v{tt_+1}, v{tt_+1}", f"v_pk_add_f32 {Tt}, {Tt}, v[236:237] op_sel_hi:[1,0]",
                    f"v_rcp_f32 v{tt_}, v{tt_}", f"v_rcp_f32 v{tt_+1}, v{tt_+1}", f"v_pk_mul_f32 {X}, {X}, {Tt}",
                    f"v_pk_add_f32 v[252:253], v[252:253], {X}", f"v_pk_fma_f32 v[254:255], {X}, {X}, v[254:255]"]
        for q in range(4):
            cols = [gelu(ACCG + 8*q + 2*k) for k in range(4)]
            fillers[12+q] = [cols[k][i] for i in range(11) for k in range(4)]
        for sig in range(12, 16): step(sig)
        stamp(T, 5)
        t("v_add_f32 v8, v252, v253"); t("v_add_f32 v10, v254, v255"); t("v_mov_b32 v9, v8"); t("v_mov_b32 v11, v10"); t("s_nop 1")
        t("v_permlane32_swap_b32 v8, v9"); t("v_permlane32_swap_b32 v10, v11"); t("s_nop 1")
        t("v_add_f32 v8, v8, v9"); t("v_add_f32 v9, v10, v11")
        t("v_lshlrev_b32 v12, 3, v242"); t("s_lshl_b32 s33, s28, 8"); t("v_add_u32 v13, s33, v12")
        t("s_barrier")
        t("ds_write_b64 v13, v[8:9]")
        for aa in range(2):
            d = 244 if aa == 0 else 16
            pack_swap(T, ACCU+16*aa, d)
            for s_ in range(2): t(f"ds_write_b128 v{XO+2*aa+s_}, {vr(d+4*s_,4)} offset:16384")
        t("s_waitcnt lgkmcnt(0)"); t("s_barrier")
        for k in range(4): t(f"ds_read_b64 v[{24+2*k}:{25+2*k}], v12 offset:{256*k}")
        t("v_lshlrev_b32 v232, 4, v240"); t(f"s_add_u32 s33, s31, {EX}"); t("v_add_u32 v232, s33, v232")
        for k in range(4): t(f"ds_read_b128 {vr(96+4*k,4)}, v232 offset:{16384 + k*1024}")
        T.extend(cap(lambda e: (srd(e, 12, 's54', 's55', U_OFF, 8000*512), srd(e, 20, 's54', 's55', G_OFF, 8000*512))))
        t("s_lshl_b32 s56, s35, 14")
        t("s_waitcnt lgkmcnt(4)")
        t("v_add_f32 v24, v24, v26"); t("v_add_f32 v25, v25, v27"); t("v_add_f32 v28, v28, v30"); t("v_add_f32 v29, v29, v31")
        t("v_add_f32 v8, v24, v28"); t("v_add_f32 v9, v25, v29")
        t("v_mul_f32 v8, 0x3b800000, v8"); t("v_mul_f32 v9, 0x3b800000, v9")
        t("v_fma_f32 v9, -v8, v8, v9"); t("v_max_f32 v9, 0, v9"); t("v_add_f32 v9, 0x3727c5ac, v9")
        t("v_rsq_f32 v10, v9"); t("s_nop 0"); t("v_mul_f32 v12, v8, v10"); t("v_sub_f32 v12, 0, v12")
        t("s_waitcnt lgkmcnt(0)")
        for k in range(4): t(f"buffer_store_dwordx4 {vr(96+4*k,4)}, v{DS+k}, s[12:15], s56 offen offset:{k*1024}{ST}")
        for aa in range(2):
            for k in range(8):
                r = ACCG + 16*aa + 2*k
                t(f"v_pk_fma_f32 v[{r}:{r+1}], v[{r}:{r+1}], v[10:11], v[12:13] op_sel_hi:[1,0,0]")
            d = 32 + 8*aa
            pack_swap(T, ACCG+16*aa, d)
            for s_ in range(2): t(f"ds_write_b128 v{XO+2*aa+s_}, {vr(d+4*s_,4)}")
        t("s_waitcnt lgkmcnt(0)"); t("s_barrier")
        for k in range(4): t(f"ds_read_b128 {vr(112+4*k,4)}, v232 offset:{k*1024}")
        for k in range(4):
            t(f"s_waitcnt lgkmcnt({3-k})")
            t(f"buffer_store_dwordx4 {vr(112+4*k,4)}, v{DS+k}, s[20:23], s56 offen offset:{k*1024}{ST}")
        stamp(T, 6)
        finish(T, "K1_CT")
    W = Waiter(); T = []
    for s in range(8): W.issue('vm', ('X', s))
    dma_voff(T, False)
    T += cap(lambda e: (srd(e, 8, 's38', 's39', 0, 131072), srd(e, 12, 's40', 's41', 0, 131072),
                        srd(e, 20, 's54', 's55', XA_OFF, 8000*512), srd(e, 24, 's54', 's55', QF_OFF, 500*8192)))
    emit = [(n, 8, n*SLOT) for n in range(8)]
    for (n, sn, so) in emit[:npre]: emit_tile(T, W, n, sn, so)
    xb_setup(T); vn_setup(T)
    azero(T)
    ln(T, W, emit[npre:o['nln']])
    if FF: T.append("buffer_load_dword v243, off, s[4:7], 0 sc1"); W.issue('vm', 'TAG')
    stamp(T, 1)
    ka_setup(T)
    stamp(T, 2)
    T.append("v_lshlrev_b32 v232, 4, v240"); T.append(f"s_add_u32 s33, s31, {EX}"); T.append("v_add_u32 v232, s33, v232")
    for half in range(2):
        for k in range(4):
            T.append(f"ds_read_b128 {vr(ACC[1]+(half*4+k)*4,4)}, v232 offset:{half*SLOT + k*1024}")
    T.append("s_waitcnt lgkmcnt(0)")
    T.append("s_lshl_b32 s34, s35, 15"); T.append("s_add_u32 s56, s34, 16384")
    xfill = []
    for half in range(2):
        for k in range(4):
            xfill.append((f"buffer_store_dwordx4 {vr(ACC[1]+(half*4+k)*4,4)}, v{DS+k}, s[20:23], {'s56' if half else 's34'} offen offset:{k*1024}{ST}", ('XS', half, k)))
    later = std_later(12)
    rest = emit[o['nln']:]
    if rest:
        later[0] = rest[:2]; later[1] = rest[2:4]
        if later[1] == [] : del later[1]
    tl0 = phase(W, 0, 'Y', later, fill=(AZ if o.get('azph0') else None), f0=2)
    for i, (txt, tag) in enumerate(xfill): tl0.add(1 + 2*i, 'vm', txt, tag=tag, prio=7)
    T += tl0.linearize()
    stamp(T, 3)
    exchange(T, W, ACC[0], 'Y', xaflag=FF and o.get('xaflag', True))
    stamp(T, 4)
    T.append("v_mov_b32 v236, 0x3db8aa3b")
    T.append("s_lshl_b32 s33, s35, 2"); T.append("s_lshl_b32 s34, s29, 1"); T.append("s_add_u32 s33, s33, s34"); T.append("s_lshl_b32 s33, s33, 13")
    T.append("s_lshl_b32 s34, s30, 10"); T.append("s_add_u32 s33, s33, s34")
    T.append("v_lshrrev_b32 v232, 4, v242"); T.append("v_lshlrev_b32 v232, 13, v232")
    T.append("v_and_b32 v233, 15, v242"); T.append("v_lshl_add_u32 v233, v241, 4, v233")
    T.append("v_lshl_add_u32 v232, v233, 4, v232"); T.append("v_add_u32 v232, s33, v232")
    for a in range(1, 4): T.append(f"v_add_u32 v{232+a}, {a*2048}, v232")
    def qepi(a):
        ls = []
        d = ACC[0] + 8*a
        pack_swap(ls, ACC[1]+16*a, d, scale="v[236:237]")
        st = [f"buffer_store_dwordx4 {vr(d+4*s,4)}, v{232+a}, s[24:27], 0 offen offset:{s*512}{ST}" for s in range(2)]
        return ls, st
    tl1 = phase(W, 1, 'X', later)
    if o.get('qprog', True):
        for a in range(3):
            ls, st = qepi(a)
            t0 = 16*(a+1) + 4
            for i, ins in enumerate(ls): tl1.add(t0 + i*0.4, 'txt', ins, prio=4)
            for i, ins in enumerate(st): tl1.add(t0 + len(ls)*0.4 + 0.5 + i, 'vm', ins, tag=('QS', a, i), prio=7)
    T += tl1.linearize()
    stamp(T, 5)
    T.append("s_nop 15")
    for a in (range(3, 4) if o.get('qprog', True) else range(4)):
        ls, st = qepi(a)
        T += ls + st
    finish(T, "K1_Q")

    if o.get('ufirst', False):
        W = Waiter(); T = []
        for s in range(8): W.issue('vm', ('X', s))
        dma_voff(T, True)
        T += cap(lambda e: (srd(e, 8, 's46', 's47', 0, 262144),
                            srd(e, 20, 's54', 's55', U_OFF, 8000*512), srd(e, 24, 's54', 's55', G_OFF, 8000*512)))
        emit = [(n, 8, n*32768) for n in range(8)]
        for (n, sn, so) in emit[:npre]: emit_tile(T, W, n, sn, so)
        xb_setup(T); vn_setup(T)
        azero(T)
        ln(T, W, emit[npre:o['nln']])
        if FF: T.append("buffer_load_dword v243, off, s[4:7], 0 sc1"); W.issue('vm', 'TAG')
        stamp(T, 2)
        gl = lambda n: (n, 8, (n-8)*32768 + 512)
        later = {2: [gl(8), gl(9)], 3: [gl(10), gl(11)], 4: [gl(12), gl(13)], 5: [gl(14), gl(15)]}
        rest = emit[o['nln']:]
        if rest:
            later[0] = rest[:2]; later[1] = rest[2:4]
        T += phase(W, 0, 'Y', later, fill=(AZ if o.get('azph0') else None), f0=2).linearize()
        stamp(T, 3)
        T.append("v_lshlrev_b32 v232, 4, v240"); T.append(f"s_add_u32 s33, s31, {EX}"); T.append("v_add_u32 v232, s33, v232")
        T.append("s_lshl_b32 s56, s35, 15"); T.append("s_add_u32 s57, s56, 16384")
        uw = [('UW', a, s) for a in range(4) for s in range(2)]
        tl1 = phase(W, 1, 'Y', later, bar_lgkm={6: uw})
        for a in range(4):
            ls = []
            pack_swap(ls, ACC[0]+16*a, ACC[0]+16*a)
            t0 = 3 + 5*a
            for i, ins in enumerate(ls): tl1.add(t0 + i*0.3, 'txt', ins, prio=4)
            for s in range(2):
                tl1.add(t0 + 4.5 + 0.2*s, 'lds', f"ds_write_b128 v{XB+2*a+s}, {vr(ACC[0]+16*a+4*s,4)}", tag=('UW', a, s), prio=4)
        for r in range(8):
            reg = ACC[0] + 16*(r >> 1) + 8 + 4*(r & 1)
            half, k = r >> 2, r & 3
            tl1.add(27 + r*0.5, 'lds', f"ds_read_b128 {vr(reg,4)}, v232 offset:{half*SLOT + k*1024}", tag=('UR', r), prio=3)
            tl1.add(36 + 3*r, 'vm', f"buffer_store_dwordx4 {vr(reg,4)}, v{DS+k}, s[20:23], {'s57' if half else 's56'} offen offset:{k*1024}{ST}", tag=('US', r), need=[('UR', r)], prio=7)
        T += tl1.linearize()
        stamp(T, 5)
        T.append("s_nop 15")
        k0 = -2.0*1.4426950408889634*0.7978845608028654
        T.append(f"v_mov_b32 v232, {fb(k0)}"); T.append(f"v_mov_b32 v234, {fb(k0*0.044715)}"); T.append("v_mov_b32 v236, 1.0")
        for k in range(4): T.append(f"v_mov_b32 v{252+k}, 0")
        def gelu(r):
            t = 244 + 2*((r//2) % 4)
            X = f"v[{r}:{r+1}]"; Tt = f"v[{t}:{t+1}]"
            return [f"v_pk_mul_f32 {Tt}, {X}, {X}",
                    f"v_pk_fma_f32 {Tt}, {Tt}, v[234:235], v[232:233] op_sel_hi:[1,0,0]",
                    f"v_pk_mul_f32 {Tt}, {Tt}, {X}",
                    f"v_exp_f32 v{t}, v{t}", f"v_exp_f32 v{t+1}, v{t+1}",
                    f"v_pk_add_f32 {Tt}, {Tt}, v[236:237] op_sel_hi:[1,0]",
                    f"v_rcp_f32 v{t}, v{t}", f"v_rcp_f32 v{t+1}, v{t+1}",
                    f"v_pk_mul_f32 {X}, {X}, {Tt}",
                    f"v_pk_add_f32 v[252:253], v[252:253], {X}",
                    f"v_pk_fma_f32 v[254:255], {X}, {X}, v[254:255]"]
        g0 = ACC[1]
        for b in range(g0, g0+64, 8):
            cols = [gelu(b+2*k) for k in range(4)]
            for i in range(11):
                for k in range(4): T.append(cols[k][i])
        stamp(T, 6)
        T.append("v_add_f32 v8, v252, v253"); T.append("v_add_f32 v10, v254, v255")
        T.append("v_mov_b32 v9, v8"); T.append("v_mov_b32 v11, v10"); T.append("s_nop 1")
        T.append("v_permlane32_swap_b32 v8, v9"); T.append("v_permlane32_swap_b32 v10, v11"); T.append("s_nop 1")
        T.append("v_add_f32 v8, v8, v9"); T.append("v_add_f32 v9, v10, v11")
        T.append("s_lshl_b32 s33, s29, 1"); T.append("s_add_u32 s33, s33, s30"); T.append("s_lshl_b32 s33, s33, 9"); T.append("s_add_u32 s33, s33, 32768")
        T.append("v_lshlrev_b32 v12, 3, v240"); T.append("v_add_u32 v13, s33, v12")
        T.append("s_xor_b32 s33, s33, 512"); T.append("v_add_u32 v14, s33, v12")
        T.append("ds_write_b64 v13, v[8:9]")
        for jj in range(8): T.append(f"v_subrev_u32 v{XB+jj}, {EX}, v{XB+jj}")
        T.append("v_lshlrev_b32 v15, 4, v240"); T.append("v_add_u32 v15, s31, v15")
        T.append("s_waitcnt lgkmcnt(0)"); T.append("s_barrier")
        T.append("ds_read_b64 v[10:11], v14"); T.append("s_waitcnt lgkmcnt(0)")
        T.append("v_add_f32 v8, v8, v10"); T.append("v_add_f32 v9, v9, v11")
        T.append("v_mul_f32 v8, 0x3b800000, v8"); T.append("v_mul_f32 v9, 0x3b800000, v9")
        T.append("v_fma_f32 v9, -v8, v8, v9"); T.append("v_max_f32 v9, 0, v9"); T.append("v_add_f32 v9, 0x3727c5ac, v9")
        T.append("v_rsq_f32 v10, v9"); T.append("s_nop 0")
        T.append("v_mul_f32 v12, v8, v10"); T.append("v_sub_f32 v12, 0, v12")
        for a in range(4):
            for k in range(8):
                r = g0 + 16*a + 2*k
                T.append(f"v_pk_fma_f32 v[{r}:{r+1}], v[{r}:{r+1}], v[10:11], v[12:13] op_sel_hi:[1,0,0]")
            pack_swap(T, g0+16*a, 16+8*a)
            for s in range(2):
                T.append(f"ds_write_b128 v{XB+2*a+s}, {vr(16+8*a+4*s,4)}")
        T.append("s_waitcnt lgkmcnt(0)"); T.append("s_barrier")
        for half in range(2):
            for k in range(4):
                T.append(f"ds_read_b128 {vr(ACC[0]+(half*4+k)*4,4)}, v15 offset:{half*SLOT + k*1024}")
        DEF = FF and o.get('defer', True)
        if DEF:
            T.append("s_mov_b32 s88, s56"); T.append("s_mov_b32 s89, s57"); T.append("s_mov_b32 s98, 1")
        else:
            for half in range(2):
                for k in range(4):
                    T.append(f"s_waitcnt lgkmcnt({7 - (half*4+k)})")
                    T.append(f"buffer_store_dwordx4 {vr(ACC[0]+(half*4+k)*4,4)}, v{DS+k}, s[24:27], {'s57' if half else 's56'} offen offset:{k*1024}{ST}")
        stamp(T, 7)
    else:
        W = Waiter(); T = []
        for s in range(8): W.issue('vm', ('X', s))
        dma_voff(T, True)
        T += cap(lambda e: (srd(e, 8, 's46', 's47', 0, 262144),
                            srd(e, 20, 's54', 's55', U_OFF, 8000*512), srd(e, 24, 's54', 's55', G_OFF, 8000*512)))
        emit = [(n, 8, n*32768 + 512) for n in range(8)]
        for (n, sn, so) in emit[:npre]: emit_tile(T, W, n, sn, so)
        xb_setup(T); vn_setup(T)
        azero(T)
        ln(T, W, emit[npre:o['nln']])
        if FF: T.append("buffer_load_dword v243, off, s[4:7], 0 sc1"); W.issue('vm', 'TAG')
        stamp(T, 2)
        gl = lambda n: (n, 8, (n-8)*32768)
        later = {2: [gl(8), gl(9)], 3: [gl(10), gl(11)], 4: [gl(12), gl(13)], 5: [gl(14), gl(15)]}
        rest = emit[o['nln']:]
        if rest:
            later[0] = rest[:2]; later[1] = rest[2:4]
        T += phase(W, 0, 'Y', later, fill=(AZ if o.get('azph0') else None), f0=2).linearize()
        stamp(T, 3)
        k0 = -2.0*1.4426950408889634*0.7978845608028654
        T.append(f"v_mov_b32 v232, {fb(k0)}"); T.append(f"v_mov_b32 v234, {fb(k0*0.044715)}"); T.append("v_mov_b32 v236, 1.0")
        for k in range(4): T.append(f"v_mov_b32 v{252+k}, 0")
        def gelu(r):
            t = 244 + 2*((r//2) % 4)
            X = f"v[{r}:{r+1}]"; Tt = f"v[{t}:{t+1}]"
            return [f"v_pk_mul_f32 {Tt}, {X}, {X}",
                    f"v_pk_fma_f32 {Tt}, {Tt}, v[234:235], v[232:233] op_sel_hi:[1,0,0]",
                    f"v_pk_mul_f32 {Tt}, {Tt}, {X}",
                    f"v_exp_f32 v{t}, v{t}", f"v_exp_f32 v{t+1}, v{t+1}",
                    f"v_pk_add_f32 {Tt}, {Tt}, v[236:237] op_sel_hi:[1,0]",
                    f"v_rcp_f32 v{t}, v{t}", f"v_rcp_f32 v{t+1}, v{t+1}",
                    f"v_pk_mul_f32 {X}, {X}, {Tt}",
                    f"v_pk_add_f32 v[252:253], v[252:253], {X}",
                    f"v_pk_fma_f32 v[254:255], {X}, {X}, v[254:255]"]
        fill = []
        g0 = ACC[0]
        for b in range(g0, g0+64, 8):
            cols = [gelu(b+2*k) for k in range(4)]
            for i in range(11):
                for k in range(4): fill.append(cols[k][i])
        T += phase(W, 1, 'Y', later, fill=fill, f0=4).linearize()
        stamp(T, 5)
        T.append("v_add_f32 v8, v252, v253"); T.append("v_add_f32 v10, v254, v255")
        T.append("v_mov_b32 v9, v8"); T.append("v_mov_b32 v11, v10"); T.append("s_nop 1")
        T.append("v_permlane32_swap_b32 v8, v9"); T.append("v_permlane32_swap_b32 v10, v11"); T.append("s_nop 1")
        T.append("v_add_f32 v8, v8, v9"); T.append("v_add_f32 v9, v10, v11")
        T.append("s_lshl_b32 s33, s29, 1"); T.append("s_add_u32 s33, s33, s30"); T.append("s_lshl_b32 s33, s33, 9"); T.append("s_add_u32 s33, s33, 32768")
        T.append("v_lshlrev_b32 v12, 3, v240"); T.append("v_add_u32 v13, s33, v12")
        T.append("s_xor_b32 s33, s33, 512"); T.append("v_add_u32 v14, s33, v12")
        T.append("ds_write_b64 v13, v[8:9]")
        for a in range(4):
            d = 244 if a % 2 == 0 else 16
            pack_swap(T, ACC[1]+16*a, d)
            for s in range(2):
                T.append(f"ds_write_b128 v{XB+2*a+s}, {vr(d+4*s,4)}")
        T.append("s_waitcnt lgkmcnt(0)"); T.append("s_barrier")
        T.append("ds_read_b64 v[10:11], v14")
        T.append("v_lshlrev_b32 v15, 4, v240"); T.append("v_add_u32 v15, s31, v15"); T.append(f"v_add_u32 v232, {EX}, v15")
        for half in range(2):
            for k in range(4):
                T.append(f"ds_read_b128 {vr(ACC[1]+(half*4+k)*4,4)}, v232 offset:{half*SLOT + k*1024}")
        for jj in range(8): T.append(f"v_subrev_u32 v{XB+jj}, {EX}, v{XB+jj}")
        T.append("s_waitcnt lgkmcnt(8)")
        T.append("v_add_f32 v8, v8, v10"); T.append("v_add_f32 v9, v9, v11")
        T.append("v_mul_f32 v8, 0x3b800000, v8"); T.append("v_mul_f32 v9, 0x3b800000, v9")
        T.append("v_fma_f32 v9, -v8, v8, v9"); T.append("v_max_f32 v9, 0, v9"); T.append("v_add_f32 v9, 0x3727c5ac, v9")
        T.append("v_rsq_f32 v10, v9"); T.append("s_nop 0")
        T.append("v_mul_f32 v12, v8, v10"); T.append("v_sub_f32 v12, 0, v12")
        T.append("s_lshl_b32 s32, s35, 15"); T.append("s_add_u32 s56, s32, 16384")
        T.append("s_waitcnt lgkmcnt(0)")
        ust = [f"buffer_store_dwordx4 {vr(ACC[1]+(half*4+k)*4,4)}, v{DS+k}, s[20:23], {'s56' if half else 's32'} offen offset:{k*1024}{ST}" for half in range(2) for k in range(4)]
        for a in range(4):
            for k in range(8):
                r = g0 + 16*a + 2*k
                T.append(f"v_pk_fma_f32 v[{r}:{r+1}], v[{r}:{r+1}], v[10:11], v[12:13] op_sel_hi:[1,0,0]")
            T.append(ust.pop(0))
            pack_swap(T, g0+16*a, 16+8*a)
            for s in range(2):
                T.append(f"ds_write_b128 v{XB+2*a+s}, {vr(16+8*a+4*s,4)}")
            T.append(ust.pop(0))
        stamp(T, 6)
        T.append("s_waitcnt lgkmcnt(0)"); T.append("s_barrier")
        for half in range(2):
            for k in range(4):
                T.append(f"ds_read_b128 {vr(ACC[0]+(half*4+k)*4,4)}, v15 offset:{half*SLOT + k*1024}")
        DEF = FF and o.get('defer', True)
        if DEF:
            T.append("s_mov_b32 s88, s32"); T.append("s_mov_b32 s89, s56"); T.append("s_mov_b32 s98, 1")
        else:
            for half in range(2):
                for k in range(4):
                    T.append(f"s_waitcnt lgkmcnt({7 - (half*4+k)})")
                    T.append(f"buffer_store_dwordx4 {vr(ACC[0]+(half*4+k)*4,4)}, v{DS+k}, s[24:27], {'s56' if half else 's32'} offen offset:{k*1024}{ST}")
        stamp(T, 7)
    finish(T, "K1_UG")

    def wf_store(T, acc, which, slice_sreg):
        T.append(f"s_lshl_b32 s33, {slice_sreg}, 2"); T.append("s_lshl_b32 s34, s29, 1"); T.append("s_add_u32 s33, s33, s34"); T.append("s_lshl_b32 s33, s33, 14")
        T.append("s_lshl_b32 s34, s30, 10"); T.append("s_add_u32 s33, s33, s34")
        if which == 2: T.append("s_add_u32 s33, s33, 8192")
        T.append("v_lshrrev_b32 v232, 4, v242"); T.append("v_lshlrev_b32 v232, 14, v232")
        T.append("v_and_b32 v233, 15, v242"); T.append("v_lshl_add_u32 v233, v241, 4, v233")
        T.append("v_lshl_add_u32 v232, v233, 4, v232"); T.append("v_add_u32 v232, s33, v232")
        for a in range(4):
            d = 244; src = acc + 16*a
            if which == 1:
                for k, r in enumerate((0, 2, 8, 10, 4, 6, 12, 14)):
                    T.append(f"v_cvt_pk_bf16_f32 v{d+k}, v{src+r}, v{src+r+1}")
            else:
                pack_swap(T, src, d)
            T.append(f"s_mov_b32 s33, {a*2048}")
            for s in range(2):
                T.append(f"buffer_store_dwordx4 {vr(d+4*s,4)}, v232, s[24:27], s33 offen offset:{s*512}{ST}")
            T.append("s_nop 1")
    W = Waiter(); T = []
    dma_voff(T, False)
    T.append("s_sub_u32 s35, s2, 250")
    T += cap(lambda e: (srd(e, 16, 's52', 's53', 0, 262144), srd(e, 8, 's44', 's45', 0, 131072), srd(e, 12, 's42', 's43', 0, 131072),
                        srd(e, 24, 's54', 's55', WF_OFF, 262144)))
    narrow(T, W, 0, 's35')
    for n in range(3): emit_tile(T, W, n, 8, n*SLOT)
    ka_setup(T)
    azero(T, True)
    narrow_read(T, W)
    for n in range(3, 8): emit_tile(T, W, n, 8, n*SLOT)
    if FF: T.append("buffer_load_dword v243, off, s[4:7], 0 sc1"); W.issue('vm', 'TAG')
    later = std_later(12)
    T += phase(W, 0, 'X', later).linearize()
    T.append("s_barrier")
    exchange(T, W, ACC[0], 'X')
    T += phase(W, 1, 'X', later).linearize()
    T.append("s_nop 15")
    wf_store(T, ACC[1], 1, 's35')
    finish(T, "K1_W1")

    W = Waiter(); T = []
    if not FUSED: T += cap(lambda e: srd(e, 20, 's54', 's55', FL_OFF, 8192))
    if not FUSED:
        T.append("v_lshlrev_b32 v232, 5, v0")
        for k in range(4): T.append(f"v_mov_b32 v{236+k}, 0")
        T.append("buffer_store_dwordx4 v[236:239], v232, s[20:23], 0 offen sc1")
        T.append("buffer_store_dwordx4 v[236:239], v232, s[20:23], 0 offen offset:16 sc1")
        W.issue('vm', 'Z0'); W.issue('vm', 'Z1')
    dma_voff(T, False)
    T.append("s_sub_u32 s35, s2, 254"); T.append("s_lshl_b32 s35, s35, 1")
    T += cap(lambda e: (srd(e, 16, 's52', 's53', 0, 262144), srd(e, 8, 's50', 's51', 0, 131072),
                        srd(e, 24, 's54', 's55', WF_OFF, 262144)))
    narrow(T, W, 131072, 's35')
    for n in range(3): emit_tile(T, W, n, 8, n*SLOT)
    ka_setup(T)
    azero(T, True)
    narrow_read(T, W)
    for n in range(3, 8): emit_tile(T, W, n, 8, n*SLOT)
    if FF: T.append("buffer_load_dword v243, off, s[4:7], 0 sc1"); W.issue('vm', 'TAG')
    T.append("s_barrier")
    T.append("s_add_u32 s56, s35, 1")
    narrow(T, W, 131072, 's56')
    later = std_later(8)
    T += phase(W, 0, 'X', later).linearize()
    T.append("s_nop 15")
    wf_store(T, ACC[0], 2, 's35')
    for i in range(8): W.issue('vm', ('WS', i))
    narrow_read(T, W)
    T += phase(W, 1, 'X', later).linearize()
    T.append("s_nop 15")
    wf_store(T, ACC[1], 2, 's56')
    finish(T, "K1_W2")

    e("K1_FIN:")
    if FUSED:
        if o['stamp']:
            e("s_memtime s[64:65]"); e("s_memrealtime s[66:67]"); e("s_waitcnt lgkmcnt(0)")
            e("s_cmp_eq_u32 s28, 0"); e("s_cbranch_scc0 K1_NOST")
            e("s_add_u32 s68, s54, 0x8100000"); e("s_addc_u32 s69, s55, 0"); e("s_mov_b32 s70, 0x100000"); e("s_mov_b32 s71, 0x20000")
            for k, r in enumerate([60, 64, 62, 66]): e(f"v_mov_b32 v{232+k}, s{r}")
            e("s_lshl_b32 s33, s2, 4"); e("v_mov_b32 v236, s33")
            e("buffer_store_dwordx4 v[232:235], v236, s[68:71], 0 offen")
            for k in range(8): e(f"v_mov_b32 v{244+k}, s{72+2*k}")
            e("s_lshl_b32 s33, s2, 5"); e("s_add_u32 s33, s33, 0x10000"); e("v_mov_b32 v236, s33")
            e("buffer_store_dwordx4 v[244:247], v236, s[68:71], 0 offen")
            e("buffer_store_dwordx4 v[248:251], v236, s[68:71], 0 offen offset:16")
            e("K1_NOST:")
        if FF:
            e("s_lshl_b32 s33, s2, 7")
            fa, fb_ = (FLU, FLQ) if o.get('ugfirst', True) else (FLQ, FLU)
            e(f"s_add_u32 s67, s33, {fa}")
            e(f"s_add_u32 s56, s33, {fb_ - 125*128}"); e("s_cmp_ge_u32 s2, 125"); e("s_cselect_b32 s67, s56, s67")
            e(f"s_add_u32 s56, s33, {FLW - 250*128}"); e("s_cmp_ge_u32 s2, 250"); e("s_cselect_b32 s67, s56, s67")
            for k in range(4): e(f"s_mov_b32 s{92+k}, s{4+k}")
            for x in ["s_mov_b32 s4, s54", "s_mov_b32 s5, s55", "s_mov_b32 s32, s48", "s_mov_b32 s33, s49", "s_mov_b32 s40, s100", "s_mov_b32 s41, s101", "s_mov_b32 s48, s28", "s_mov_b32 s101, 0"]: e(x)
            return L, [], []
        e("K1_TAGP:")
        e("buffer_load_dword v232, off, s[4:7], 0 sc1")
        e("s_waitcnt vmcnt(0) lgkmcnt(0)")
        e("v_readfirstlane_b32 s3, v232")
        e("s_nop 3")
        e("s_cmp_lg_u32 s3, 0"); e("s_cbranch_scc1 K1_TAGD"); e("s_sleep 1")
        e("s_add_u32 s101, s101, 1"); e("s_cmp_lt_u32 s101, 0x400000"); e("s_cbranch_scc1 K1_TAGP")
        e("K1_TAGD:")
        e("s_barrier")
        e("s_cmp_eq_u32 s28, 0"); e("s_cbranch_scc0 K1_NOFL")
        e("s_lshl_b32 s33, s2, 7")
        fa, fb_ = (FLU, FLQ) if o.get('ugfirst', True) else (FLQ, FLU)
        if CT:
            e(f"s_add_u32 s34, s33, {FLU}")
        else:
            e(f"s_add_u32 s34, s33, {fa}")
            e(f"s_add_u32 s56, s33, {fb_ - 125*128}"); e("s_cmp_ge_u32 s2, 125"); e("s_cselect_b32 s34, s56, s34")
        e(f"s_add_u32 s56, s33, {FLW - 250*128}"); e("s_cmp_ge_u32 s2, 250"); e("s_cselect_b32 s34, s56, s34")
        srd(e, 8, 's54', 's55', FL_OFF, FL_SIZE)
        e("v_mov_b32 v232, s3")
        e("v_cmp_eq_u32 vcc, 0, v240"); e("s_and_saveexec_b64 s[56:57], vcc")
        e("buffer_store_dword v232, off, s[8:11], s34 sc1")
        if CT:
            e(f"s_add_u32 s34, s33, {FLQ}"); e("s_cmp_lt_u32 s2, 250"); e("s_cbranch_scc0 K1_NOFL2")
            e("buffer_store_dword v232, off, s[8:11], s34 sc1")
            e("K1_NOFL2:")
        e("s_mov_b64 exec, s[56:57]")
        e("K1_NOFL:")
        e("s_mov_b32 s48, s28")
        return L, [], []
    if o['stamp']:
        e("s_waitcnt vmcnt(0)")
        e("s_memtime s[64:65]"); e("s_memrealtime s[66:67]")
        e("s_waitcnt lgkmcnt(0)")
        e("s_cmp_eq_u32 s28, 0"); e("s_cbranch_scc0 K1_END")
        e("s_add_u32 s68, s54, 0x8100000"); e("s_addc_u32 s69, s55, 0"); e("s_mov_b32 s70, 0x100000"); e("s_mov_b32 s71, 0x20000")
        for k, r in enumerate([60, 64, 62, 66]): e(f"v_mov_b32 v{232+k}, s{r}")
        e("s_lshl_b32 s33, s2, 4"); e("v_mov_b32 v236, s33")
        e("buffer_store_dwordx4 v[232:235], v236, s[68:71], 0 offen")
        for k in range(8): e(f"v_mov_b32 v{244+k}, s{72+2*k}")
        e("s_lshl_b32 s33, s2, 5"); e("s_add_u32 s33, s33, 0x10000"); e("v_mov_b32 v236, s33")
        e("buffer_store_dwordx4 v[244:247], v236, s[68:71], 0 offen")
        e("buffer_store_dwordx4 v[248:251], v236, s[68:71], 0 offen offset:16")
    e("K1_END:")
    e("s_endpgm")
    return L, kernel_desc(name, 288, 256), []
```

```python
from gen_common import *
from tl import TL
import hazard, struct
SLOT = 16384
EX = 131072
fb = lambda x: hex(struct.unpack('<I', struct.pack('<f', x))[0])

def gen_k1(opt=None):
    o = dict(D=6, stamp=False, st='', npre=2, nln=4)
    if opt: o.update(opt)
    D = o['D']; ST = (' ' + o['st']) if o['st'] else ''
    FUSED = o.get('fused')
    name = FUSED if FUSED else 'prep_kernel'
    L = []; e = L.append
    B = 0; ACC = [64, 128]; KA = 192; KA2 = 200; VN = 208; VN2 = 216; DV = 224; DS = 228; XB = 200
    aR = 0; R = 8
    def stamp(T, k):
        if o['stamp']: T.append(f"s_memrealtime s[{72+2*k}:{73+2*k}]")
    L += kernel_header(name)
    e("s_cmp_ge_u32 s2, 256")
    e("s_cbranch_scc1 K2_END" if FUSED else "s_cbranch_scc1 K1_END")
    e("s_load_dwordx16 s[36:51], s[0:1], 0")
    e("s_load_dwordx2 s[52:53], s[0:1], 64")
    e("s_load_dwordx2 s[54:55], s[0:1], 88")
    FF = FUSED and o.get('fastfin', True) and not o.get('ct')
    if FUSED: e("s_load_dwordx2 s[58:59], s[0:1], 80")
    if FF: e("s_load_dwordx2 s[100:101], s[0:1], 72")
    if FF: e("s_mov_b32 s98, 0")
    if FUSED and not FF: e("s_mov_b32 s101, 0")
    if o['stamp']:
        e("s_memtime s[60:61]"); e("s_memrealtime s[62:63]")
    e("v_lshrrev_b32 v232, 6, v0")
    e("v_and_b32 v240, 63, v0")
    e("v_lshrrev_b32 v241, 5, v240")
    e("v_and_b32 v242, 31, v240")
    e("v_readfirstlane_b32 s28, v232")
    e("s_and_b32 s29, s28, 1")
    e("s_lshr_b32 s30, s28, 1")
    e("s_lshl_b32 s31, s28, 12")
    CT = o.get('ct')
    if CT: e("s_mov_b32 s35, s2")
    else: e("s_sub_u32 s35, s2, 125"); e("s_cmp_lt_u32 s2, 125"); e("s_cselect_b32 s35, s2, s35")
    e("s_lshl_b32 s33, s28, 1")
    for k in range(4):
        e(f"v_add_u32 v234, {2*k}, v241"); e("v_and_b32 v234, 3, v234"); e("v_lshlrev_b32 v234, 2, v234")
        e(f"s_add_u32 s34, s33, {k>>1}"); e("s_and_b32 s34, s34, 3")
        e("v_or_b32 v234, s34, v234"); e("v_xor_b32 v234, v242, v234"); e("v_lshlrev_b32 v234, 4, v234")
        e("v_lshl_add_u32 v234, v241, 9, v234")
        e(f"v_add_u32 v{DS+k}, s31, v234")
    e("s_waitcnt lgkmcnt(0)")
    if FUSED:
        e("s_mov_b32 s4, s58"); e("s_mov_b32 s5, s59"); e("s_mov_b32 s6, 256"); e("s_mov_b32 s7, 0x20000")
        e("s_or_b32 s33, s2, s28"); e("s_cmp_eq_u32 s33, 0"); e("s_cbranch_scc0 K1_NOTAG")
        e("s_memrealtime s[56:57]"); e("s_waitcnt lgkmcnt(0)"); e("s_or_b32 s56, s56, 1")
        e("v_mov_b32 v234, s56")
        e("buffer_store_dword v234, off, s[4:7], 0 sc1")
        e("K1_NOTAG:")
    e("s_cmp_lt_u32 s2, 250"); e("s_cbranch_scc0 K1_NOX")
    srd(e, 16, 's36', 's37', 0, 8000*512)
    e("s_lshl_b32 s32, s35, 14" if CT else "s_lshl_b32 s32, s35, 15")
    for half in range(1 if CT else 2):
        e(f"s_add_u32 m0, s31, {EX + half*SLOT:#x}")
        if half: e("s_add_u32 s32, s32, 16384")
        else: e("s_nop 0")
        for k in range(4):
            e(f"buffer_load_dwordx4 v{DS+k}, s[16:19], s32 offen offset:{k*1024} lds")
    PU = FUSED and o.get('pfug', True) and o.get('ugfirst', True) and not CT
    PT = PU and o.get('pftask', True)
    if PT:
        pass
    elif PU:
        e("s_cmp_lt_u32 s2, 128"); e("s_cbranch_scc0 K1_NOX")
        e("s_lshr_b32 s33, s2, 3"); e("s_lshl_b32 s33, s33, 2"); e("s_add_u32 s33, s33, s28")
        e("v_lshlrev_b32 v232, 4, v240")
        e("s_getpc_b64 s[56:57]")
        e("K1_PCREF:")
        e(f"s_add_u32 s56, s56, K1_NOX-K1_PCREF"); e("s_addc_u32 s57, s57, 0")
        e("s_lshl_b32 s34, s33, 10"); e("v_add_u32 v233, s34, v232")
        e(f"s_cmp_lt_u32 s34, {o.get('ipfbytes', 61440)}"); e("s_cbranch_scc0 K1_NOIPF")
        e("global_load_dwordx4 v[252:255], v233, s[56:57]")
        e("K1_NOIPF:")
        e("s_mov_b32 s8, s40"); e("s_mov_b32 s9, s41"); e("s_mov_b32 s10, 131072"); e("s_mov_b32 s11, 0x20000")
        e("s_lshl_b32 s34, s33, 11")
        e("buffer_load_dwordx4 v[100:103], v232, s[8:11], s34 offen")
        e("buffer_load_dwordx4 v[104:107], v232, s[8:11], s34 offen offset:1024")
        if o.get('uppf', True):
            e("s_mov_b32 s8, s46"); e("s_mov_b32 s9, s47"); e("s_mov_b32 s10, 262144")
            e("v_lshl_add_u32 v233, v241, 10, 0"); e("v_lshl_add_u32 v233, v242, 4, v233")
            e(f"s_lshl_b32 s34, s33, 12"); e(f"s_add_u32 s34, s34, {512 if o.get('ufirst', False) else 0}")
            e("buffer_load_dwordx4 v[88:91], v233, s[8:11], s34 offen")
            e("buffer_load_dwordx4 v[92:95], v233, s[8:11], s34 offen offset:2048")
            e("s_mov_b32 s10, 131072")
        e("s_and_b32 s33, s2, 7"); e("s_cmp_lt_u32 s33, 2"); e("s_cbranch_scc1 K1_NOX")
        e("s_lshr_b32 s34, s2, 3")
        e("s_add_u32 s56, s52, 131072"); e("s_addc_u32 s57, s53, 0")
        e("s_cmp_ge_u32 s33, 6"); e("s_cselect_b32 s8, s50, s44"); e("s_cselect_b32 s9, s51, s45"); e("s_cselect_b32 s56, s56, s42"); e("s_cselect_b32 s57, s57, s43")
        e("s_cmp_lt_u32 s34, 8"); e("s_cselect_b32 s8, s8, s56"); e("s_cselect_b32 s9, s9, s57")
        e("s_and_b32 s34, s34, 7"); e("s_lshl_b32 s34, s34, 14"); e("s_lshl_b32 s33, s28, 12"); e("s_add_u32 s34, s34, s33")
        for k in range(4): e(f"buffer_load_dwordx4 v[{108+4*k}:{111+4*k}], v232, s[8:11], s34 offen offset:{k*1024}")
    else:
        if FUSED and o.get('ipf', True):
            e("s_getpc_b64 s[56:57]")
            e("K1_PCREF:")
            e(f"s_add_u32 s56, s56, {o.get('ipfbase', 'K1_NOX')}-K1_PCREF"); e("s_addc_u32 s57, s57, 0")
            e("s_lshr_b32 s33, s2, 3"); e("s_lshl_b32 s33, s33, 2"); e("s_add_u32 s33, s33, s28"); e("s_lshl_b32 s33, s33, 10")
            e(f"s_cmp_lt_u32 s33, {o.get('ipfbytes', 61440)}"); e("s_cbranch_scc0 K1_NOIPF")
            e("v_lshlrev_b32 v232, 4, v240"); e("v_add_u32 v232, s33, v232")
            e("global_load_dwordx4 v[252:255], v232, s[56:57]")
            e("K1_NOIPF:")
        if o.get('wpf', False):
            e("s_lshr_b32 s33, s2, 3"); e("s_lshl_b32 s33, s33, 2"); e("s_add_u32 s33, s33, s28")
            e("v_lshlrev_b32 v232, 4, v240")
            e("s_mov_b32 s8, s40"); e("s_mov_b32 s9, s41"); e("s_mov_b32 s10, 131072"); e("s_mov_b32 s11, 0x20000")
            e("s_lshl_b32 s34, s33, 10")
            e("buffer_load_dwordx4 v[100:103], v232, s[8:11], s34 offen")
            if o.get('wpf') != 'k':
                e("s_mov_b32 s8, s46"); e("s_mov_b32 s9, s47"); e("s_mov_b32 s10, 262144")
                e("s_lshl_b32 s34, s33, 11")
                e("buffer_load_dwordx4 v[104:107], v232, s[8:11], s34 offen")
                e("buffer_load_dwordx4 v[108:111], v232, s[8:11], s34 offen offset:1024")
        if FUSED and o.get('tlb', False):
            e("s_load_dwordx2 s[56:57], s[0:1], 72"); e("s_waitcnt lgkmcnt(0)")
            e("s_cmp_eq_u32 s28, 1"); e("s_cbranch_scc0 K1_NOTLB")
            srd(e, 8, 's54', 's55', OP_OFF, 64*16*16384)
            e("v_lshlrev_b32 v232, 21, v240")
            e("buffer_load_dword v112, v232, s[8:11], 0 offen")
            e("s_mov_b32 s8, s56"); e("s_mov_b32 s9, s57"); e("s_mov_b32 s10, 4096000")
            e("buffer_load_dword v113, v232, s[8:11], 0 offen")
            e("K1_NOTLB:")
        if o.get('pf', True):
            e("s_and_b32 s33, s2, 7"); e("s_cmp_lt_u32 s33, 2"); e("s_cbranch_scc1 K1_NOPF")
            e("s_lshr_b32 s34, s2, 3")
            e("s_cmp_ge_u32 s33, 6"); e("s_cbranch_scc1 K1_PF2")
            e("s_cmp_lt_u32 s34, 16"); e("s_cselect_b32 s8, s44, s42"); e("s_cselect_b32 s9, s45, s43")
            e("s_and_b32 s34, s34, 15"); e("s_lshl_b32 s34, s34, 13")
            e("s_branch K1_PF3")
            e("K1_PF2:")
            e("s_add_u32 s56, s52, 131072"); e("s_addc_u32 s57, s53, 0")
            e("s_cmp_lt_u32 s34, 16"); e("s_cselect_b32 s8, s50, s56"); e("s_cselect_b32 s9, s51, s57")
            e("s_and_b32 s34, s34, 15"); e("s_lshl_b32 s34, s34, 13")
            e("K1_PF3:")
            e("s_mov_b32 s10, 131072"); e("s_mov_b32 s11, 0x20000")
            e("v_lshlrev_b32 v232, 4, v240"); e("s_lshl_b32 s33, s28, 11"); e("s_add_u32 s34, s34, s33")
            e("buffer_load_dwordx4 v[244:247], v232, s[8:11], s34 offen")
            e("buffer_load_dwordx4 v[248:251], v232, s[8:11], s34 offen offset:1024")
            e("K1_NOPF:")
        pass
    e("K1_NOX:")
    first, second = ("K1_UG", "K1_Q") if o.get('ugfirst', True) else ("K1_Q", "K1_UG")
    if CT:
        e("s_cmp_lt_u32 s2, 250"); e("s_cbranch_scc1 K1_CT")
    else:
        e("s_cmp_lt_u32 s2, 125"); e(f"s_cbranch_scc1 {first}")
        e("s_cmp_lt_u32 s2, 250"); e(f"s_cbranch_scc1 {second}")
    e("s_cmp_lt_u32 s2, 254"); e("s_cbranch_scc1 K1_W1")
    e("s_branch K1_W2")

    def k_addr(T, dst, dst2, base_lines):
        t = T.append
        t("v_and_b32 v234, 3, v242"); t("v_lshlrev_b32 v234, 2, v234"); t("v_bfe_u32 v235, v242, 2, 2")
        t("v_or_b32 v234, v234, v235"); t("v_lshlrev_b32 v236, 9, v242")
        for x in base_lines: t(x)
        t("v_add_u32 v236, s33, v236")
        for jj in range(8):
            t(f"v_add_u32 v235, {2*jj}, v241"); t("v_xor_b32 v235, v235, v234")
            t(f"v_lshl_add_u32 v{dst+jj}, v235, 4, v236")
            if dst2 is not None: t(f"v_add_u32 v{dst2+jj}, 0x10000, v{dst+jj}")
    def ka_setup(T): k_addr(T, KA, KA2, ["s_lshl_b32 s33, s30, 14"])
    def xb_setup(T): k_addr(T, XB, None, ["s_lshl_b32 s33, s29, 14", f"s_add_u32 s33, s33, {EX}", "s_lshl_b32 s34, s30, 8", "s_add_u32 s33, s33, s34"])
    def vn_setup(T):
        t = T.append
        t("v_bfe_u32 v234, v240, 4, 1"); t("v_bfe_u32 v235, v240, 2, 2"); t("v_bfe_u32 v236, v240, 1, 1")
        t("v_lshl_add_u32 v236, v234, 1, v236"); t("v_and_b32 v237, 1, v240"); t("v_lshlrev_b32 v237, 3, v237")
        t("v_lshl_add_u32 v238, v241, 3, v235"); t("v_lshl_add_u32 v237, v238, 9, v237")
        t("s_lshl_b32 s33, s30, 8"); t("v_add_u32 v237, s33, v237")
        for a in range(4):
            for u in range(2):
                t(f"v_lshl_add_u32 v238, v241, 1, {u}"); t("v_lshl_or_b32 v238, v235, 2, v238")
                t(f"v_add_u32 v239, {4*a}, v236"); t("v_xor_b32 v238, v238, v239")
                t(f"v_lshl_add_u32 v{VN+a*2+u}, v238, 4, v237")
                if u: t(f"v_add_u32 v{VN+a*2+u}, {4*512}, v{VN+a*2+u}")
                t(f"v_add_u32 v{VN2+a*2+u}, 0x10000, v{VN+a*2+u}")
    def dma_voff(T, stride1024):
        t = T.append
        if not stride1024:
            for k in range(4): t(f"v_mov_b32 v{DV+k}, v{DS+k}")
            return
        t("s_lshl_b32 s33, s28, 1")
        for k in range(4):
            t(f"v_add_u32 v234, {2*k}, v241"); t("v_and_b32 v234, 3, v234"); t("v_lshlrev_b32 v234, 2, v234")
            t(f"s_add_u32 s34, s33, {k>>1}"); t("s_and_b32 s34, s34, 3")
            t("v_or_b32 v234, s34, v234"); t("v_xor_b32 v234, v242, v234"); t("v_lshlrev_b32 v234, 4, v234")
            t("v_lshl_add_u32 v234, v241, 10, v234"); t("s_lshl_b32 s34, s28, 13"); t(f"s_add_u32 s34, s34, {k*1024}")
            t(f"v_add_u32 v{DV+k}, s34, v234")
    def tile_dma(n, srdn, soff):
        if o.get('nodma'): return []
        r = [(f"s_add_u32 m0, s31, {(n%8)*SLOT:#x}", False), (f"s_mov_b32 s32, {soff:#x}", False)]
        for k in range(4):
            r.append((f"buffer_load_dwordx4 v{DV+k}, s[{srdn}:{srdn+3}], s32 offen offset:{k*1024} lds", True))
        return r
    def emit_tile(out, W, n, srdn, soff):
        for txt, vm in tile_dma(n, srdn, soff):
            out.append(txt)
            if vm: W.issue('vm', ('T', n))
    def out_rows(T, W, srdn, tag, OB):
        t = T.append
        t("v_lshlrev_b32 v232, 4, v240"); t(f"s_add_u32 s33, s31, {EX}"); t("v_add_u32 v232, s33, v232")
        for half in range(2):
            for k in range(4):
                t(f"ds_read_b128 {vr(OB+(half*4+k)*4,4)}, v232 offset:{half*SLOT + k*1024}")
        t("s_lshl_b32 s32, s35, 15")
        for half in range(2):
            if half: t("s_add_u32 s32, s32, 16384")
            for k in range(4):
                t(f"s_waitcnt lgkmcnt({7 - (half*4+k)})")
                t(f"buffer_store_dwordx4 {vr(OB+(half*4+k)*4,4)}, v{DS+k}, s[{srdn}:{srdn+3}], s32 offen offset:{k*1024}{ST}")
                W.issue('vm', (tag, half, k))
        W.drain('lgkm')
    def ln(out, W, tiles):
        nw = W.need('vm', [('X', 7)])
        out.append(f"s_waitcnt vmcnt({nw})")
        out.append("s_barrier")
        stamp(out, 0)
        for s in range(8):
            out.append(f"ds_read_b128 {vr(64+4*s,4)}, v{XB+s}")
        body = []; b = body.append
        b("s_mov_b32 s34, 0x3f803f80")
        for k in range(4): b(f"v_mov_b32 v{232+k}, 0")
        for r in range(32):
            if r % 4 == 0: b(f"s_waitcnt lgkmcnt({7 - r//4})")
            b(f"v_dot2_f32_bf16 v{232+(r&1)}, v{64+r}, s34, v{232+(r&1)}")
            b(f"v_dot2_f32_bf16 v{234+(r&1)}, v{64+r}, v{64+r}, v{234+(r&1)}")
        b("s_nop 2")
        b("v_add_f32 v232, v232, v233"); b("v_add_f32 v234, v234, v235")
        b("v_mov_b32 v233, v232"); b("v_mov_b32 v235, v234"); b("s_nop 1")
        b("v_permlane32_swap_b32 v232, v233"); b("v_permlane32_swap_b32 v234, v235"); b("s_nop 1")
        b("v_add_f32 v232, v232, v233"); b("v_add_f32 v233, v234, v235")
        b(f"ds_write_b64 v{XB}, v[232:233]")
        b(f"v_xor_b32 v238, 256, v{XB}")
        b("s_waitcnt lgkmcnt(0)")
        b("s_barrier")
        b("ds_read_b64 v[234:235], v238")
        b("s_waitcnt lgkmcnt(0)")
        b("v_add_f32 v232, v232, v234"); b("v_add_f32 v234, v233, v235")
        b("v_mul_f32 v232, 0x3b800000, v232"); b("v_mul_f32 v234, 0x3b800000, v234")
        b("v_fma_f32 v234, -v232, v232, v234"); b("v_max_f32 v234, 0, v234"); b("v_add_f32 v234, 0x3727c5ac, v234")
        b("v_rsq_f32 v234, v234"); b("s_nop 0")
        b("v_mul_f32 v236, v232, v234"); b("v_sub_f32 v236, 0, v236")
        b("s_barrier")
        for r in range(32):
            t = 244 + 2*(r % 4)
            b(f"v_lshlrev_b32 v{t}, 16, v{64+r}")
            b(f"v_and_b32 v{t+1}, 0xffff0000, v{64+r}")
            b(f"v_pk_fma_f32 v[{t}:{t+1}], v[{t}:{t+1}], v[234:235], v[236:237] op_sel_hi:[1,0,0]")
            b(f"v_cvt_pk_bf16_f32 v{64+r}, v{t}, v{t+1}")
            if r % 4 == 3: b(f"ds_write_b128 v{XB+r//4}, {vr(64+r-3,4)}")
        b("s_waitcnt lgkmcnt(0)")
        b("s_barrier")
        b("s_lshl_b32 s33, s30, 8")
        for jj in range(8): b(f"v_subrev_u32 v{244+jj}, s33, v{XB+jj}")
        for s in range(16):
            b(f"ds_read_b128 {vr(B+4*s,4)}, v{244+(s&7)} offset:{(s>>3)*256}")
        flat = []
        for (n, sn, so) in tiles:
            tl_ = [(txt, vm, n) for txt, vm in tile_dma(n, sn, so)]
            flat.append(tl_[:3])
            for x in tl_[3:]: flat.append([x])
        gap = max(1, len(body) // (len(flat) + 1)) if flat else 1
        fi = 0
        for i, ins in enumerate(body):
            out.append(ins)
            if fi < len(flat) and i % gap == gap - 1:
                for txt, vm, n in flat[fi]:
                    out.append(txt)
                    if vm: W.issue('vm', ('T', n))
                fi += 1
        while fi < len(flat):
            for txt, vm, n in flat[fi]:
                out.append(txt)
                if vm: W.issue('vm', ('T', n))
            fi += 1
        out.append("s_waitcnt lgkmcnt(0)")
        W.drain('lgkm')
    def phase(W, p, kind, later, fill=None, f0=3, bar_lgkm=None):
        tl = TL(W)
        acc = ACC[p]
        cnt = [0]
        for a in range(4):
            sig = 4*p + a
            tb = 16*a - D - 1
            tl.add(tb, 'bar', needvm=[('T', 2*sig), ('T', 2*sig+1)], needlgkm=(bar_lgkm or {}).get(sig, []), prio=1)
            k = 0
            for (n, sn, so) in later.get(sig, []):
                for txt, vm in tile_dma(n, sn, so):
                    sp = o.get('dsp', 2)
                    if vm:
                        tl.add(tb + 1 + sp*k, 'vm', txt, tag=('T', n), prio=7); k += 1
                    else:
                        tl.add(tb + 1 + sp*k, 'txt', txt, prio=6)
            for m in range(16):
                tm = 16*a + m
                ri = cnt[0] % R; cnt[0] += 1
                ring = aR + 4*ri
                if kind == 'X':
                    j = m; slot = 2*a
                    base = (KA if slot < 4 else KA2) + (j & 7)
                    off = (slot % 4)*SLOT + (j >> 3)*256
                    tag = (p, a, m)
                    tl.add(tm - D, 'lds', f"ds_read_b128 {ar(ring,4)}, v{base} offset:{off}", tag=tag, prio=2)
                    c = vr(acc+16*a,16) if j else '0'
                    tl.add(tm, 'mfma', f"v_mfma_f32_32x32x16_bf16 {vr(acc+16*a,16)}, {ar(ring,4)}, {vr(B+4*j,4)}, {c}", need=[tag], prio=0)
                else:
                    tt, s, aa = m >> 3, (m >> 2) & 1, m & 3
                    tau = 2*a + tt; slot = tau
                    tags = []
                    for u in range(2):
                        base = (VN if slot < 4 else VN2) + aa*2 + u
                        off = (slot % 4)*SLOT + 16*s*512
                        tag = (p, a, m, u); tags.append(tag)
                        tl.add(tm - D, 'lds', f"ds_read_b64_tr_b16 {ar(ring+2*u,2)}, v{base} offset:{off}", tag=tag, prio=2)
                    c = vr(acc+16*aa,16) if (tau or s) else '0'
                    tl.add(tm, 'mfma', f"v_mfma_f32_32x32x16_bf16 {vr(acc+16*aa,16)}, {ar(ring,4)}, {vr(B+4*(2*tau+s),4)}, {c}", need=tags, prio=0)
        if fill:
            n = len(fill)
            for i, ins in enumerate(fill):
                tl.add(f0 + (i*(64-f0))/n, 'txt', ins, prio=4)
        return tl
    def pack_swap(out, src, dst, swap=True, scale=None):
        if scale:
            for k in range(8):
                out.append(f"v_pk_mul_f32 v[{src+2*k}:{src+2*k+1}], v[{src+2*k}:{src+2*k+1}], {scale} op_sel_hi:[1,0]")
        for k in range(8):
            out.append(f"v_cvt_pk_bf16_f32 v{dst+k}, v{src+2*k}, v{src+2*k+1}")
        if swap:
            out.append("s_nop 1")
            for b in (0, 4):
                out.append(f"v_permlane32_swap_b32 v{dst+b}, v{dst+b+2}")
                out.append(f"v_permlane32_swap_b32 v{dst+b+1}, v{dst+b+3}")
    def exchange(out, W, acc, kind, xaflag=False):
        out.append("s_nop 15")
        out.append("v_lshlrev_b32 v232, 4, v240")
        out.append(f"s_lshl_b32 s33, s29, 14"); out.append(f"s_add_u32 s33, s33, {EX}")
        out.append("v_add_u32 v233, s33, v232")
        out.append(f"s_lshl_b32 s34, s30, {13 if kind=='Y' else 11}")
        out.append("v_add_u32 v232, s34, v233")
        for a in range(4):
            d = 244 if a % 2 == 0 else 0
            pack_swap(out, acc+16*a, d)
            for s in range(2):
                f = (2*a + s) if kind == 'Y' else (4*a + s)
                out.append(f"ds_write_b128 v232, {vr(d+4*s,4)} offset:{f*1024}")
        if xaflag:
            n = W.need('vm', [x for x in W.q['vm'] if isinstance(x, tuple) and x[0] == 'XS'] + ['TAG'])
            if n is not None: out.append(f"s_waitcnt vmcnt({n})")
        out.append("s_waitcnt lgkmcnt(0)")
        out.append("s_barrier")
        if xaflag:
            out.append("v_readfirstlane_b32 s3, v243"); out.append("s_or_b32 s33, s28, 0");
            out.append("s_cmp_eq_u32 s28, 0"); out.append("s_cbranch_scc0 K1_Q_NOXF")
            out.append("s_cmp_lg_u32 s3, 0"); out.append("s_cbranch_scc0 K1_Q_NOXF")
            out += cap(lambda e: srd(e, 16, 's54', 's55', FL_OFF, FL_SIZE))
            out.append("s_lshl_b32 s33, s35, 7"); out.append(f"s_add_u32 s33, s33, {FLQ + 4}")
            out.append("v_mov_b32 v238, s3"); out.append("v_cmp_eq_u32 vcc, 0, v240"); out.append("s_and_saveexec_b64 s[56:57], vcc")
            out.append("buffer_store_dword v238, off, s[16:19], s33 sc1")
            out.append("s_mov_b64 exec, s[56:57]")
            out.append("K1_Q_NOXF:")
        for f in range(16):
            out.append(f"ds_read_b128 {vr(B+4*f,4)}, v233 offset:{f*1024}")
        out.append("s_waitcnt lgkmcnt(0)")
        W.drain('lgkm')
    def narrow(out, W, rowbase_bytes, slice_sreg):
        for x in ["v_lshrrev_b32 v232, 3, v240", "v_lshlrev_b32 v232, 9, v232", "v_and_b32 v233, 7, v240",
                  "v_lshl_add_u32 v232, v233, 4, v232", f"s_lshl_b32 s33, {slice_sreg}, 7", "s_lshl_b32 s34, s28, 15",
                  "s_add_u32 s33, s33, s34", f"s_add_u32 s33, s33, {rowbase_bytes}", "v_add_u32 v232, s33, v232",
                  "s_lshl_b32 s34, s28, 13", f"s_add_u32 s34, s34, {EX}"]: out.append(x)
        for i in range(8):
            out.append(f"s_add_u32 m0, s34, {i*1024}")
            out.append(f"s_mov_b32 s32, {i*4096}")
            out.append(f"buffer_load_dwordx4 v232, s[16:19], s32 offen lds")
            W.issue('vm', ('N', i))
    def narrow_read(out, W):
        n = W.need('vm', [('N', 7)])
        out.append(f"s_waitcnt vmcnt({n})")
        out.append("s_barrier")
        for x in ["v_bfe_u32 v232, v240, 2, 2", "v_lshl_add_u32 v232, v241, 3, v232", "v_lshlrev_b32 v232, 7, v232",
                  "v_bfe_u32 v233, v240, 4, 1", "v_lshl_add_u32 v232, v233, 5, v232", "v_and_b32 v233, 3, v240",
                  "v_lshl_add_u32 v232, v233, 3, v232", "s_lshl_b32 s33, s29, 6", f"s_add_u32 s33, s33, {EX}",
                  "v_add_u32 v232, s33, v232"]: out.append(x)
        for s in range(16):
            for u in range(2):
                out.append(f"ds_read_b64_tr_b16 {vr(B+4*s+2*u,2)}, v232 offset:{s*2048+u*512}")
            if s % 4 == 3: out.append("s_waitcnt lgkmcnt(0)")
        W.drain('lgkm')
    def finish(task_lines, label):
        if CT and label in ("K1_Q", "K1_UG"): return
        fixed = hazard.autofix(task_lines)
        e(f"{label}:")
        L.extend(fixed)
        e("s_branch K1_FIN")
    def cap(fn):
        buf = []; fn(buf.append); return buf
    std_later = lambda sn: {2: [(8, sn, 0), (9, sn, SLOT)], 3: [(10, sn, 2*SLOT), (11, sn, 3*SLOT)], 4: [(12, sn, 4*SLOT), (13, sn, 5*SLOT)], 5: [(14, sn, 6*SLOT), (15, sn, 7*SLOT)]}
    npre = o['npre']
    AZ = [f"v_accvgpr_write_b32 a{128+r}, 0" for r in range(128)] if (FF and o.get('lean', True)) else []
    def prefetch_block(T, W):
        t = T.append
        t("s_lshr_b32 s33, s2, 3"); t("s_lshl_b32 s33, s33, 2"); t("s_add_u32 s33, s33, s28")
        t("v_lshlrev_b32 v232, 4, v240")
        t("s_getpc_b64 s[56:57]")
        t("K1_PCREF:")
        t("s_add_u32 s56, s56, K1_NOX-K1_PCREF"); t("s_addc_u32 s57, s57, 0")
        t(f"s_min_u32 s34, s33, {o.get('ipfbytes', 61440)//1024 - 1}"); t("s_lshl_b32 s34, s34, 10"); t("v_add_u32 v233, s34, v232")
        t("global_load_dwordx4 v[112:115], v233, s[56:57]"); W.issue('vm', ('PF', 0))
        t("s_mov_b32 s12, s40"); t("s_mov_b32 s13, s41"); t("s_mov_b32 s14, 131072"); t("s_mov_b32 s15, 0x20000")
        t("s_lshl_b32 s34, s33, 11")
        t("buffer_load_dwordx4 v[116:119], v232, s[12:15], s34 offen"); W.issue('vm', ('PF', 1))
        t("buffer_load_dwordx4 v[120:123], v232, s[12:15], s34 offen offset:1024"); W.issue('vm', ('PF', 2))
        t("v_lshl_add_u32 v233, v241, 10, 0"); t("v_lshl_add_u32 v233, v242, 4, v233")
        t(f"s_lshl_b32 s34, s33, 12"); t(f"s_add_u32 s34, s34, {512 if o.get('ufirst', False) else 0}")
        t("buffer_load_dwordx4 v[124:127], v233, s[8:11], s34 offen"); W.issue('vm', ('PF', 3))
        t("buffer_load_dwordx4 v[128:131], v233, s[8:11], s34 offen offset:2048"); W.issue('vm', ('PF', 4))
        t("s_and_b32 s33, s2, 7"); t("s_lshr_b32 s34, s2, 3")
        t("s_add_u32 s56, s52, 131072"); t("s_addc_u32 s57, s53, 0")
        t("s_cmp_ge_u32 s33, 6"); t("s_cselect_b32 s12, s50, s44"); t("s_cselect_b32 s13, s51, s45"); t("s_cselect_b32 s56, s56, s42"); t("s_cselect_b32 s57, s57, s43")
        t("s_cmp_lt_u32 s34, 8"); t("s_cselect_b32 s12, s12, s56"); t("s_cselect_b32 s13, s13, s57")
        t("s_and_b32 s34, s34, 7"); t("s_lshl_b32 s34, s34, 14"); t("s_lshl_b32 s33, s28, 12"); t("s_add_u32 s34, s34, s33")
        for k in range(4):
            t(f"buffer_load_dwordx4 v[{132+4*k}:{135+4*k}], v232, s[12:15], s34 offen offset:{k*1024}"); W.issue('vm', ('PF', 5+k))
    def azero(T, force=False):
        if AZ and (force or not o.get('azph0')): T.extend(AZ)


    if CT:
        EXB = EX + 16384
        Bq = 64
        ACCQ, ACCK, ACCG, ACCU = 64, 96, 128, 160
        VN4 = 208; VN42 = 212; XO = 216; XB8 = 244
        W = Waiter(); T = []; t = T.append
        for s_ in range(4): W.issue('vm', ('X', s_))
        dma_voff(T, True)
        T += cap(lambda e: (srd(e, 8, 's38', 's39', 0, 131072), srd(e, 12, 's40', 's41', 0, 131072), srd(e, 20, 's46', 's47', 0, 262144),
                            srd(e, 24, 's54', 's55', QF_OFF, 500*8192)))
        def tinfo(n):
            if n < 8: return (8, n*SLOT, DS)
            if n < 16: return (12, (n-8)*SLOT, DS)
            if n < 24: return (20, (n-16)*32768 + 512, DV)
            return (20, (n-24)*32768, DV)
        def tdma(n):
            sn, so, dv = tinfo(n)
            r = [(f"s_add_u32 m0, s31, {(n%8)*SLOT:#x}", False), (f"s_mov_b32 s32, {so:#x}", False)]
            for k in range(4): r.append((f"buffer_load_dwordx4 v{dv+k}, s[{sn}:{sn+3}], s32 offen offset:{k*1024} lds", True))
            return r
        def temit(n):
            for txt, vm in tdma(n):
                t(txt)
                if vm: W.issue('vm', ('T', n))
        temit(0); temit(1)
        t("v_and_b32 v234, 3, v242"); t("v_lshlrev_b32 v234, 2, v234"); t("v_bfe_u32 v235, v242, 2, 2"); t("v_or_b32 v234, v234, v235")
        t("v_lshlrev_b32 v236, 9, v242"); t(f"v_add_u32 v237, {EX}, v236")
        t("s_lshl_b32 s33, s30, 8"); t("v_add_u32 v238, s33, v237")
        t("s_lshl_b32 s33, s29, 3")
        for i in range(4):
            t(f"s_add_u32 s34, s33, {2*i}"); t("v_add_u32 v235, s34, v241"); t("v_xor_b32 v235, v235, v234"); t(f"v_lshl_add_u32 v{XO+i}, v235, 4, v238")
        t("s_lshl_b32 s33, s28, 14"); t("v_add_u32 v238, s33, v236")
        for jj in range(8):
            t(f"v_add_u32 v235, {2*jj}, v241"); t("v_xor_b32 v235, v235, v234")
            t(f"v_lshl_add_u32 v{KA+jj}, v235, 4, v238"); t(f"v_add_u32 v{KA2+jj}, 0x10000, v{KA+jj}")
        t("v_bfe_u32 v234, v240, 4, 1"); t("v_bfe_u32 v235, v240, 2, 2"); t("v_bfe_u32 v236, v240, 1, 1")
        t("v_lshl_add_u32 v236, v234, 1, v236"); t("v_and_b32 v237, 1, v240"); t("v_lshlrev_b32 v237, 3, v237")
        t("v_lshl_add_u32 v238, v241, 3, v235"); t("v_lshl_add_u32 v237, v238, 9, v237")
        t("s_lshl_b32 s33, s30, 8"); t("v_add_u32 v237, s33, v237")
        t("s_lshl_b32 s33, s29, 3")
        for aa in range(2):
            for u in range(2):
                t(f"v_lshl_add_u32 v238, v241, 1, {u}"); t("v_lshl_or_b32 v238, v235, 2, v238")
                t(f"s_add_u32 s34, s33, {4*aa}"); t("v_add_u32 v239, s34, v236"); t("v_xor_b32 v238, v238, v239")
                t(f"v_lshl_add_u32 v{VN4+aa*2+u}, v238, 4, v237")
                if u: t(f"v_add_u32 v{VN4+aa*2+u}, {4*512}, v{VN4+aa*2+u}")
                t(f"v_add_u32 v{VN42+aa*2+u}, 0x10000, v{VN4+aa*2+u}")
        nw = W.need('vm', [('X', 3)]); t(f"s_waitcnt vmcnt({nw})"); t("s_barrier")
        stamp(T, 0)
        for i in range(4): t(f"ds_read_b128 {vr(64+4*i,4)}, v{XO+i}")
        T += cap(lambda e: srd(e, 16, 's54', 's55', XA_OFF, 8000*512))
        body = []; b = body.append
        b("s_mov_b32 s34, 0x3f803f80")
        for k in range(4): b(f"v_mov_b32 v{232+k}, 0")
        for r in range(16):
            if r % 4 == 0: b(f"s_waitcnt lgkmcnt({3 - r//4})")
            b(f"v_dot2_f32_bf16 v{232+(r&1)}, v{64+r}, s34, v{232+(r&1)}")
            b(f"v_dot2_f32_bf16 v{234+(r&1)}, v{64+r}, v{64+r}, v{234+(r&1)}")
        b("s_nop 2")
        b("v_add_f32 v232, v232, v233"); b("v_add_f32 v234, v234, v235")
        b("v_mov_b32 v233, v232"); b("v_mov_b32 v235, v234"); b("s_nop 1")
        b("v_permlane32_swap_b32 v232, v233"); b("v_permlane32_swap_b32 v234, v235"); b("s_nop 1")
        b("v_add_f32 v232, v232, v233"); b("v_add_f32 v233, v234, v235")
        b("v_lshlrev_b32 v238, 3, v242"); b(f"v_add_u32 v238, {EXB}, v238")
        b("s_lshl_b32 s33, s28, 8"); b("v_add_u32 v239, s33, v238")
        b("ds_write_b64 v239, v[232:233]")
        b("s_waitcnt lgkmcnt(0)"); b("s_barrier")
        for k in range(4): b(f"ds_read_b64 v[{80+2*k}:{81+2*k}], v238 offset:{256*k}")
        b("s_waitcnt lgkmcnt(0)")
        b("v_add_f32 v80, v80, v82"); b("v_add_f32 v81, v81, v83"); b("v_add_f32 v84, v84, v86"); b("v_add_f32 v85, v85, v87")
        b("v_add_f32 v232, v80, v84"); b("v_add_f32 v234, v81, v85")
        b("v_mul_f32 v232, 0x3b800000, v232"); b("v_mul_f32 v234, 0x3b800000, v234")
        b("v_fma_f32 v234, -v232, v232, v234"); b("v_max_f32 v234, 0, v234"); b("v_add_f32 v234, 0x3727c5ac, v234")
        b("v_rsq_f32 v234, v234"); b("s_nop 0")
        b("v_mul_f32 v236, v232, v234"); b("v_sub_f32 v236, 0, v236")
        for r in range(16):
            tt_ = 244 + 2*(r % 4)
            b(f"v_lshlrev_b32 v{tt_}, 16, v{64+r}"); b(f"v_and_b32 v{tt_+1}, 0xffff0000, v{64+r}")
            b(f"v_pk_fma_f32 v[{tt_}:{tt_+1}], v[{tt_}:{tt_+1}], v[234:235], v[236:237] op_sel_hi:[1,0,0]")
            b(f"v_cvt_pk_bf16_f32 v{64+r}, v{tt_}, v{tt_+1}")
            if r % 4 == 3: b(f"ds_write_b128 v{XO+r//4}, {vr(64+r-3,4)}")
        b("s_lshl_b32 s33, s28, 14"); b(f"s_sub_u32 s33, {EX}, s33")
        for jj in range(8): b(f"v_add_u32 v{XB8+jj}, s33, v{KA+jj}")
        b("s_waitcnt lgkmcnt(0)"); b("s_barrier")
        for s_ in range(16): b(f"ds_read_b128 {vr(B+4*s_,4)}, v{XB8+(s_&7)} offset:{(s_>>3)*256}")
        b("v_lshlrev_b32 v232, 4, v240"); b(f"s_add_u32 s33, s31, {EX}"); b("v_add_u32 v232, s33, v232")
        for k in range(4): b(f"ds_read_b128 {vr(96+4*k,4)}, v232 offset:{k*1024}")
        flat = []
        for n in range(2, 6):
            tl_ = [(txt, vm, n) for txt, vm in tdma(n)]
            flat.append(tl_[:3])
            for x in tl_[3:]: flat.append([x])
        gap = max(1, (len(body) - 24) // (len(flat) + 1)); fi = 0
        for i, ins in enumerate(body):
            t(ins)
            if fi < len(flat) and i % gap == gap - 1:
                for txt, vm, n in flat[fi]:
                    t(txt)
                    if vm: W.issue('vm', ('T', n))
                fi += 1
        while fi < len(flat):
            for txt, vm, n in flat[fi]:
                t(txt)
                if vm: W.issue('vm', ('T', n))
            fi += 1
        t("s_waitcnt lgkmcnt(0)")
        t("s_lshl_b32 s56, s35, 14")
        for k in range(4):
            t(f"buffer_store_dwordx4 {vr(96+4*k,4)}, v{DS+k}, s[16:19], s56 offen offset:{k*1024}{ST}"); W.issue('vm', ('XS', k))
        stamp(T, 1)
        def flag_store(off_lines, lbl):
            t("s_cmp_eq_u32 s28, 0"); t(f"s_cbranch_scc0 {lbl}")
            for x in off_lines: t(x)
            t("v_mov_b32 v232, s3"); t("v_cmp_eq_u32 vcc, 0, v240"); t("s_and_saveexec_b64 s[56:57], vcc")
            t("buffer_store_dword v232, off, s[8:11], s34 sc1")
            t("s_mov_b64 exec, s[56:57]")
            t(f"{lbl}:")
        fillers = {}
        def step(sig, extra_need=None, after_bar=None):
            p, a = sig >> 2, sig & 3
            need = [('T', 2*sig), ('T', 2*sig+1)] + (extra_need or [])
            nv = W.need('vm', need)
            if nv is not None: t(f"s_waitcnt vmcnt({nv})")
            t("s_barrier")
            if after_bar: after_bar()
            dm = []
            for n in (2*(sig+3), 2*(sig+3)+1):
                if n < 32: dm += [(txt, vm, n) for txt, vm in tdma(n)]
            fl = list(fillers.get(sig, []))
            def some(k_dma, k_fill):
                c = 0
                while dm and c < k_dma:
                    txt, vm, n = dm.pop(0); t(txt)
                    if vm: W.issue('vm', ('T', n)); c += 1
                for _ in range(k_fill):
                    if fl: t(fl.pop(0))
            nf = -(-len(fl) // 8) if fl else 0
            if p != 1:
                acc = {0: ACCQ, 2: ACCG, 3: ACCU}[p]
                idx = 0; seq = []
                for tt in range(2):
                    slot = (2*sig + tt) % 8
                    for s_ in range(2):
                        for aa in range(2):
                            for u in range(2):
                                base = (VN4 if slot < 4 else VN42) + aa*2 + u
                                t(f"ds_read_b64_tr_b16 {ar(4*idx+2*u,2)}, v{base} offset:{(slot%4)*SLOT + 16*s_*512}")
                            seq.append((idx, tt, s_, aa)); idx += 1
                for (idx, tt, s_, aa) in seq:
                    if idx % 2 == 0: t(f"s_waitcnt lgkmcnt({14 - 2*idx - 2 if idx < 6 else 0})")
                    tau = 2*a + tt
                    c = vr(acc+16*aa,16) if (tau or s_) else '0'
                    t(f"v_mfma_f32_32x32x16_bf16 {vr(acc+16*aa,16)}, {ar(4*idx,4)}, {vr(B+4*(2*tau+s_),4)}, {c}")
                    some(1, nf)
            else:
                lbl = f"K1_CT_X{a}"
                t(f"s_cmp_eq_u32 s30, {a & 1}"); t(f"s_cbranch_scc0 {lbl}")
                k = a >> 1; base = KA if k == 0 else KA2
                for half in range(2):
                    for j in range(8): t(f"ds_read_b128 {ar(4*j,4)}, v{base+j} offset:{half*256}")
                    for j in range(8):
                        if j % 2 == 0: t(f"s_waitcnt lgkmcnt({6 - j})")
                        jj = 8*half + j
                        c = vr(ACCK+16*k,16) if jj else '0'
                        t(f"v_mfma_f32_32x32x16_bf16 {vr(ACCK+16*k,16)}, {ar(4*j,4)}, {ar(Bq+4*jj,4)}, {c}")
                t(f"{lbl}:")
            some(100, 1000)
        for sig in range(4): step(sig)
        stamp(T, 2)
        t("s_nop 15")
        t("v_lshlrev_b32 v232, 4, v240"); t(f"v_add_u32 v233, {EXB}, v232"); t("s_lshl_b32 s34, s28, 12"); t("v_add_u32 v232, s34, v233")
        for aa in range(2):
            d = 244 if aa == 0 else 96
            pack_swap(T, ACCQ+16*aa, d)
            for s_ in range(2): t(f"ds_write_b128 v232, {vr(d+4*s_,4)} offset:{(2*aa+s_)*1024}")
        t("s_waitcnt lgkmcnt(0)"); t("s_barrier")
        for f in range(16): t(f"ds_read_b128 {ar(Bq+4*f,4)}, v233 offset:{f*1024}")
        t("s_waitcnt lgkmcnt(0)")
        t("buffer_load_dword v243, off, s[4:7], 0 sc1"); W.issue('vm', 'TAG')
        for sig in range(4, 8): step(sig)
        stamp(T, 3)
        qf = []
        qf.append("s_nop 7"); qf.append("v_mov_b32 v236, 0x3db8aa3b")
        qf += ["s_lshl_b32 s33, s35, 14", "s_lshl_b32 s34, s28, 10", "s_add_u32 s33, s33, s34",
               "v_lshrrev_b32 v252, 4, v242", "v_lshlrev_b32 v252, 13, v252", "v_and_b32 v253, 15, v242", "v_lshl_add_u32 v253, v241, 4, v253",
               "v_lshl_add_u32 v252, v253, 4, v252", "v_add_u32 v252, s33, v252"]
        qst = []
        for k in range(2):
            d = 244 if k == 0 else 64
            pack_swap(qf, ACCK+16*k, d, scale="v[236:237]")
            for s_ in range(2):
                qf.append(f"buffer_store_dwordx4 {vr(d+4*s_,4)}, v252, s[24:27], 0 offen offset:{k*4096 + s_*512 - (4096 if k else 0)}{ST}" if k == 0 else "@K1")
        out2 = []
        cnt = 0
        for x in qf:
            if x == "@K1":
                if cnt == 0: out2.append("v_add_u32 v253, 4096, v252")
                out2.append(f"buffer_store_dwordx4 {vr(64+4*cnt,4)}, v253, s[24:27], 0 offen offset:{cnt*512}{ST}"); cnt += 1
            else: out2.append(x)
        qf = out2
        for x in qf:
            t(x)
            if x.startswith('buffer_store'): W.issue('vm', ('QS', len(W.q['vm'])))
        W.issue('vm', 'QEND'); W.q['vm'].pop()
        qtags = [x for x in W.q['vm'] if isinstance(x, tuple) and x[0] in ('QS', 'XS')]
        step(8)
        step(9)
        def get_tag():
            t("K1_CT_TAGP:")
            t("buffer_load_dword v232, off, s[4:7], 0 sc1"); t("s_waitcnt vmcnt(0)")
            t("v_readfirstlane_b32 s3, v232"); t("s_nop 3"); t("s_cmp_lg_u32 s3, 0"); t("s_cbranch_scc1 K1_CT_TAGD"); t("s_sleep 1"); t("s_branch K1_CT_TAGP")
            t("K1_CT_TAGD:")
        def qflag():
            T.extend(cap(lambda e: srd(e, 8, 's54', 's55', FL_OFF, FL_SIZE)))
            flag_store([f"s_lshl_b32 s34, s35, 7", f"s_add_u32 s34, s34, {FLQ}"], "K1_CT_NOQF")
        step(10, extra_need=qtags + ['TAG'], after_bar=None)
        t("v_readfirstlane_b32 s3, v243")
        t("s_nop 3")
        pend_qflag = True
        t("s_cmp_eq_u32 s28, 0"); t("s_cbranch_scc0 K1_CT_NOQF2")
        t("s_cmp_lg_u32 s3, 0"); t("s_cbranch_scc0 K1_CT_NOQF2")
        T.extend(cap(lambda e: srd(e, 8, 's54', 's55', FL_OFF, FL_SIZE)))
        t(f"s_lshl_b32 s34, s35, 7"); t(f"s_add_u32 s34, s34, {FLQ}")
        t("v_mov_b32 v232, s3"); t("v_cmp_eq_u32 vcc, 0, v240"); t("s_and_saveexec_b64 s[56:57], vcc")
        t("buffer_store_dword v232, off, s[8:11], s34 sc1")
        t("s_mov_b64 exec, s[56:57]")
        t("K1_CT_NOQF2:")
        step(11)
        stamp(T, 4)
        k0 = -2.0*1.4426950408889634*0.7978845608028654
        t("s_nop 7")
        t(f"v_mov_b32 v232, {fb(k0)}"); t(f"v_mov_b32 v234, {fb(k0*0.044715)}"); t("v_mov_b32 v236, 1.0")
        for k in range(4): t(f"v_mov_b32 v{252+k}, 0")
        def gelu(r):
            tt_ = 244 + 2*((r//2) % 4)
            X = f"v[{r}:{r+1}]"; Tt = f"v[{tt_}:{tt_+1}]"
            return [f"v_pk_mul_f32 {Tt}, {X}, {X}", f"v_pk_fma_f32 {Tt}, {Tt}, v[234:235], v[232:233] op_sel_hi:[1,0,0]", f"v_pk_mul_f32 {Tt}, {Tt}, {X}",
                    f"v_exp_f32 v{tt_}, v{tt_}", f"v_exp_f32 v{tt_+1}, v{tt_+1}", f"v_pk_add_f32 {Tt}, {Tt}, v[236:237] op_sel_hi:[1,0]",
                    f"v_rcp_f32 v{tt_}, v{tt_}", f"v_rcp_f32 v{tt_+1}, v{tt_+1}", f"v_pk_mul_f32 {X}, {X}, {Tt}",
                    f"v_pk_add_f32 v[252:253], v[252:253], {X}", f"v_pk_fma_f32 v[254:255], {X}, {X}, v[254:255]"]
        for q in range(4):
            cols = [gelu(ACCG + 8*q + 2*k) for k in range(4)]
            fillers[12+q] = [cols[k][i] for i in range(11) for k in range(4)]
        for sig in range(12, 16): step(sig)
        stamp(T, 5)
        t("v_add_f32 v8, v252, v253"); t("v_add_f32 v10, v254, v255"); t("v_mov_b32 v9, v8"); t("v_mov_b32 v11, v10"); t("s_nop 1")
        t("v_permlane32_swap_b32 v8, v9"); t("v_permlane32_swap_b32 v10, v11"); t("s_nop 1")
        t("v_add_f32 v8, v8, v9"); t("v_add_f32 v9, v10, v11")
        t("v_lshlrev_b32 v12, 3, v242"); t("s_lshl_b32 s33, s28, 8"); t("v_add_u32 v13, s33, v12")
        t("s_barrier")
        t("ds_write_b64 v13, v[8:9]")
        for aa in range(2):
            d = 244 if aa == 0 else 16
            pack_swap(T, ACCU+16*aa, d)
            for s_ in range(2): t(f"ds_write_b128 v{XO+2*aa+s_}, {vr(d+4*s_,4)} offset:16384")
        t("s_waitcnt lgkmcnt(0)"); t("s_barrier")
        for k in range(4): t(f"ds_read_b64 v[{24+2*k}:{25+2*k}], v12 offset:{256*k}")
        t("v_lshlrev_b32 v232, 4, v240"); t(f"s_add_u32 s33, s31, {EX}"); t("v_add_u32 v232, s33, v232")
        for k in range(4): t(f"ds_read_b128 {vr(96+4*k,4)}, v232 offset:{16384 + k*1024}")
        T.extend(cap(lambda e: (srd(e, 12, 's54', 's55', U_OFF, 8000*512), srd(e, 20, 's54', 's55', G_OFF, 8000*512))))
        t("s_lshl_b32 s56, s35, 14")
        t("s_waitcnt lgkmcnt(4)")
        t("v_add_f32 v24, v24, v26"); t("v_add_f32 v25, v25, v27"); t("v_add_f32 v28, v28, v30"); t("v_add_f32 v29, v29, v31")
        t("v_add_f32 v8, v24, v28"); t("v_add_f32 v9, v25, v29")
        t("v_mul_f32 v8, 0x3b800000, v8"); t("v_mul_f32 v9, 0x3b800000, v9")
        t("v_fma_f32 v9, -v8, v8, v9"); t("v_max_f32 v9, 0, v9"); t("v_add_f32 v9, 0x3727c5ac, v9")
        t("v_rsq_f32 v10, v9"); t("s_nop 0"); t("v_mul_f32 v12, v8, v10"); t("v_sub_f32 v12, 0, v12")
        t("s_waitcnt lgkmcnt(0)")
        for k in range(4): t(f"buffer_store_dwordx4 {vr(96+4*k,4)}, v{DS+k}, s[12:15], s56 offen offset:{k*1024}{ST}")
        for aa in range(2):
            for k in range(8):
                r = ACCG + 16*aa + 2*k
                t(f"v_pk_fma_f32 v[{r}:{r+1}], v[{r}:{r+1}], v[10:11], v[12:13] op_sel_hi:[1,0,0]")
            d = 32 + 8*aa
            pack_swap(T, ACCG+16*aa, d)
            for s_ in range(2): t(f"ds_write_b128 v{XO+2*aa+s_}, {vr(d+4*s_,4)}")
        t("s_waitcnt lgkmcnt(0)"); t("s_barrier")
        for k in range(4): t(f"ds_read_b128 {vr(112+4*k,4)}, v232 offset:{k*1024}")
        for k in range(4):
            t(f"s_waitcnt lgkmcnt({3-k})")
            t(f"buffer_store_dwordx4 {vr(112+4*k,4)}, v{DS+k}, s[20:23], s56 offen offset:{k*1024}{ST}")
        stamp(T, 6)
        finish(T, "K1_CT")
    W = Waiter(); T = []
    for s in range(8): W.issue('vm', ('X', s))
    dma_voff(T, False)
    T += cap(lambda e: (srd(e, 8, 's38', 's39', 0, 131072), srd(e, 12, 's40', 's41', 0, 131072),
                        srd(e, 20, 's54', 's55', XA_OFF, 8000*512), srd(e, 24, 's54', 's55', QF_OFF, 500*8192)))
    emit = [(n, 8, n*SLOT) for n in range(8)]
    for (n, sn, so) in emit[:npre]: emit_tile(T, W, n, sn, so)
    xb_setup(T); vn_setup(T)
    azero(T)
    ln(T, W, emit[npre:o['nln']])
    if FF: T.append("buffer_load_dword v243, off, s[4:7], 0 sc1"); W.issue('vm', 'TAG')
    stamp(T, 1)
    ka_setup(T)
    stamp(T, 2)
    T.append("v_lshlrev_b32 v232, 4, v240"); T.append(f"s_add_u32 s33, s31, {EX}"); T.append("v_add_u32 v232, s33, v232")
    for half in range(2):
        for k in range(4):
            T.append(f"ds_read_b128 {vr(ACC[1]+(half*4+k)*4,4)}, v232 offset:{half*SLOT + k*1024}")
    T.append("s_waitcnt lgkmcnt(0)")
    T.append("s_lshl_b32 s34, s35, 15"); T.append("s_add_u32 s56, s34, 16384")
    xfill = []
    for half in range(2):
        for k in range(4):
            xfill.append((f"buffer_store_dwordx4 {vr(ACC[1]+(half*4+k)*4,4)}, v{DS+k}, s[20:23], {'s56' if half else 's34'} offen offset:{k*1024}{ST}", ('XS', half, k)))
    later = std_later(12)
    rest = emit[o['nln']:]
    if rest:
        later[0] = rest[:2]; later[1] = rest[2:4]
        if later[1] == [] : del later[1]
    tl0 = phase(W, 0, 'Y', later, fill=(AZ if o.get('azph0') else None), f0=2)
    for i, (txt, tag) in enumerate(xfill): tl0.add(1 + 2*i, 'vm', txt, tag=tag, prio=7)
    T += tl0.linearize()
    stamp(T, 3)
    exchange(T, W, ACC[0], 'Y', xaflag=FF and o.get('xaflag', True))
    stamp(T, 4)
    T.append("v_mov_b32 v236, 0x3db8aa3b")
    T.append("s_lshl_b32 s33, s35, 2"); T.append("s_lshl_b32 s34, s29, 1"); T.append("s_add_u32 s33, s33, s34"); T.append("s_lshl_b32 s33, s33, 13")
    T.append("s_lshl_b32 s34, s30, 10"); T.append("s_add_u32 s33, s33, s34")
    T.append("v_lshrrev_b32 v232, 4, v242"); T.append("v_lshlrev_b32 v232, 13, v232")
    T.append("v_and_b32 v233, 15, v242"); T.append("v_lshl_add_u32 v233, v241, 4, v233")
    T.append("v_lshl_add_u32 v232, v233, 4, v232"); T.append("v_add_u32 v232, s33, v232")
    for a in range(1, 4): T.append(f"v_add_u32 v{232+a}, {a*2048}, v232")
    def qepi(a):
        ls = []
        d = ACC[0] + 8*a
        pack_swap(ls, ACC[1]+16*a, d, scale="v[236:237]")
        st = [f"buffer_store_dwordx4 {vr(d+4*s,4)}, v{232+a}, s[24:27], 0 offen offset:{s*512}{ST}" for s in range(2)]
        return ls, st
    tl1 = phase(W, 1, 'X', later)
    if o.get('qprog', True):
        for a in range(3):
            ls, st = qepi(a)
            t0 = 16*(a+1) + 4
            for i, ins in enumerate(ls): tl1.add(t0 + i*0.4, 'txt', ins, prio=4)
            for i, ins in enumerate(st): tl1.add(t0 + len(ls)*0.4 + 0.5 + i, 'vm', ins, tag=('QS', a, i), prio=7)
    T += tl1.linearize()
    stamp(T, 5)
    T.append("s_nop 15")
    for a in (range(3, 4) if o.get('qprog', True) else range(4)):
        ls, st = qepi(a)
        T += ls + st
    finish(T, "K1_Q")

    if o.get('ufirst', False):
        W = Waiter(); T = []
        for s in range(8): W.issue('vm', ('X', s))
        dma_voff(T, True)
        T += cap(lambda e: (srd(e, 8, 's46', 's47', 0, 262144),
                            srd(e, 20, 's54', 's55', U_OFF, 8000*512), srd(e, 24, 's54', 's55', G_OFF, 8000*512)))
        emit = [(n, 8, n*32768) for n in range(8)]
        for (n, sn, so) in emit[:npre]: emit_tile(T, W, n, sn, so)
        if PT: prefetch_block(T, W)
        xb_setup(T); vn_setup(T)
        azero(T)
        ln(T, W, emit[npre:o['nln']])
        if FF: T.append("buffer_load_dword v243, off, s[4:7], 0 sc1"); W.issue('vm', 'TAG')
        stamp(T, 2)
        gl = lambda n: (n, 8, (n-8)*32768 + 512)
        later = {2: [gl(8), gl(9)], 3: [gl(10), gl(11)], 4: [gl(12), gl(13)], 5: [gl(14), gl(15)]}
        rest = emit[o['nln']:]
        if rest:
            later[0] = rest[:2]; later[1] = rest[2:4]
        T += phase(W, 0, 'Y', later, fill=(AZ if o.get('azph0') else None), f0=2).linearize()
        stamp(T, 3)
        T.append("v_lshlrev_b32 v232, 4, v240"); T.append(f"s_add_u32 s33, s31, {EX}"); T.append("v_add_u32 v232, s33, v232")
        T.append("s_lshl_b32 s56, s35, 15"); T.append("s_add_u32 s57, s56, 16384")
        uw = [('UW', a, s) for a in range(4) for s in range(2)]
        tl1 = phase(W, 1, 'Y', later, bar_lgkm={6: uw})
        for a in range(4):
            ls = []
            pack_swap(ls, ACC[0]+16*a, ACC[0]+16*a)
            t0 = 3 + 5*a
            for i, ins in enumerate(ls): tl1.add(t0 + i*0.3, 'txt', ins, prio=4)
            for s in range(2):
                tl1.add(t0 + 4.5 + 0.2*s, 'lds', f"ds_write_b128 v{XB+2*a+s}, {vr(ACC[0]+16*a+4*s,4)}", tag=('UW', a, s), prio=4)
        for r in range(8):
            reg = ACC[0] + 16*(r >> 1) + 8 + 4*(r & 1)
            half, k = r >> 2, r & 3
            tl1.add(27 + r*0.5, 'lds', f"ds_read_b128 {vr(reg,4)}, v232 offset:{half*SLOT + k*1024}", tag=('UR', r), prio=3)
            tl1.add(36 + 3*r, 'vm', f"buffer_store_dwordx4 {vr(reg,4)}, v{DS+k}, s[20:23], {'s57' if half else 's56'} offen offset:{k*1024}{ST}", tag=('US', r), need=[('UR', r)], prio=7)
        T += tl1.linearize()
        stamp(T, 5)
        T.append("s_nop 15")
        k0 = -2.0*1.4426950408889634*0.7978845608028654
        T.append(f"v_mov_b32 v232, {fb(k0)}"); T.append(f"v_mov_b32 v234, {fb(k0*0.044715)}"); T.append("v_mov_b32 v236, 1.0")
        for k in range(4): T.append(f"v_mov_b32 v{252+k}, 0")
        def gelu(r):
            t = 244 + 2*((r//2) % 4)
            X = f"v[{r}:{r+1}]"; Tt = f"v[{t}:{t+1}]"
            return [f"v_pk_mul_f32 {Tt}, {X}, {X}",
                    f"v_pk_fma_f32 {Tt}, {Tt}, v[234:235], v[232:233] op_sel_hi:[1,0,0]",
                    f"v_pk_mul_f32 {Tt}, {Tt}, {X}",
                    f"v_exp_f32 v{t}, v{t}", f"v_exp_f32 v{t+1}, v{t+1}",
                    f"v_pk_add_f32 {Tt}, {Tt}, v[236:237] op_sel_hi:[1,0]",
                    f"v_rcp_f32 v{t}, v{t}", f"v_rcp_f32 v{t+1}, v{t+1}",
                    f"v_pk_mul_f32 {X}, {X}, {Tt}",
                    f"v_pk_add_f32 v[252:253], v[252:253], {X}",
                    f"v_pk_fma_f32 v[254:255], {X}, {X}, v[254:255]"]
        g0 = ACC[1]
        for b in range(g0, g0+64, 8):
            cols = [gelu(b+2*k) for k in range(4)]
            for i in range(11):
                for k in range(4): T.append(cols[k][i])
        stamp(T, 6)
        T.append("v_add_f32 v8, v252, v253"); T.append("v_add_f32 v10, v254, v255")
        T.append("v_mov_b32 v9, v8"); T.append("v_mov_b32 v11, v10"); T.append("s_nop 1")
        T.append("v_permlane32_swap_b32 v8, v9"); T.append("v_permlane32_swap_b32 v10, v11"); T.append("s_nop 1")
        T.append("v_add_f32 v8, v8, v9"); T.append("v_add_f32 v9, v10, v11")
        T.append("s_lshl_b32 s33, s29, 1"); T.append("s_add_u32 s33, s33, s30"); T.append("s_lshl_b32 s33, s33, 9"); T.append("s_add_u32 s33, s33, 32768")
        T.append("v_lshlrev_b32 v12, 3, v240"); T.append("v_add_u32 v13, s33, v12")
        T.append("s_xor_b32 s33, s33, 512"); T.append("v_add_u32 v14, s33, v12")
        T.append("ds_write_b64 v13, v[8:9]")
        for jj in range(8): T.append(f"v_subrev_u32 v{XB+jj}, {EX}, v{XB+jj}")
        T.append("v_lshlrev_b32 v15, 4, v240"); T.append("v_add_u32 v15, s31, v15")
        T.append("s_waitcnt lgkmcnt(0)"); T.append("s_barrier")
        T.append("ds_read_b64 v[10:11], v14"); T.append("s_waitcnt lgkmcnt(0)")
        T.append("v_add_f32 v8, v8, v10"); T.append("v_add_f32 v9, v9, v11")
        T.append("v_mul_f32 v8, 0x3b800000, v8"); T.append("v_mul_f32 v9, 0x3b800000, v9")
        T.append("v_fma_f32 v9, -v8, v8, v9"); T.append("v_max_f32 v9, 0, v9"); T.append("v_add_f32 v9, 0x3727c5ac, v9")
        T.append("v_rsq_f32 v10, v9"); T.append("s_nop 0")
        T.append("v_mul_f32 v12, v8, v10"); T.append("v_sub_f32 v12, 0, v12")
        for a in range(4):
            for k in range(8):
                r = g0 + 16*a + 2*k
                T.append(f"v_pk_fma_f32 v[{r}:{r+1}], v[{r}:{r+1}], v[10:11], v[12:13] op_sel_hi:[1,0,0]")
            pack_swap(T, g0+16*a, 16+8*a)
            for s in range(2):
                T.append(f"ds_write_b128 v{XB+2*a+s}, {vr(16+8*a+4*s,4)}")
        T.append("s_waitcnt lgkmcnt(0)"); T.append("s_barrier")
        for half in range(2):
            for k in range(4):
                T.append(f"ds_read_b128 {vr(ACC[0]+(half*4+k)*4,4)}, v15 offset:{half*SLOT + k*1024}")
        DEF = FF and o.get('defer', True)
        if DEF:
            T.append("s_mov_b32 s88, s56"); T.append("s_mov_b32 s89, s57"); T.append("s_mov_b32 s98, 1")
        else:
            for half in range(2):
                for k in range(4):
                    T.append(f"s_waitcnt lgkmcnt({7 - (half*4+k)})")
                    T.append(f"buffer_store_dwordx4 {vr(ACC[0]+(half*4+k)*4,4)}, v{DS+k}, s[24:27], {'s57' if half else 's56'} offen offset:{k*1024}{ST}")
        stamp(T, 7)
    else:
        W = Waiter(); T = []
        for s in range(8): W.issue('vm', ('X', s))
        dma_voff(T, True)
        T += cap(lambda e: (srd(e, 8, 's46', 's47', 0, 262144),
                            srd(e, 20, 's54', 's55', U_OFF, 8000*512), srd(e, 24, 's54', 's55', G_OFF, 8000*512)))
        emit = [(n, 8, n*32768 + 512) for n in range(8)]
        for (n, sn, so) in emit[:npre]: emit_tile(T, W, n, sn, so)
        if PT: prefetch_block(T, W)
        xb_setup(T); vn_setup(T)
        azero(T)
        ln(T, W, emit[npre:o['nln']])
        if FF: T.append("buffer_load_dword v243, off, s[4:7], 0 sc1"); W.issue('vm', 'TAG')
        stamp(T, 2)
        gl = lambda n: (n, 8, (n-8)*32768)
        later = {2: [gl(8), gl(9)], 3: [gl(10), gl(11)], 4: [gl(12), gl(13)], 5: [gl(14), gl(15)]}
        rest = emit[o['nln']:]
        if rest:
            later[0] = rest[:2]; later[1] = rest[2:4]
        T += phase(W, 0, 'Y', later, fill=(AZ if o.get('azph0') else None), f0=2).linearize()
        stamp(T, 3)
        k0 = -2.0*1.4426950408889634*0.7978845608028654
        T.append(f"v_mov_b32 v232, {fb(k0)}"); T.append(f"v_mov_b32 v234, {fb(k0*0.044715)}"); T.append("v_mov_b32 v236, 1.0")
        for k in range(4): T.append(f"v_mov_b32 v{252+k}, 0")
        def gelu(r):
            t = 244 + 2*((r//2) % 4)
            X = f"v[{r}:{r+1}]"; Tt = f"v[{t}:{t+1}]"
            return [f"v_pk_mul_f32 {Tt}, {X}, {X}",
                    f"v_pk_fma_f32 {Tt}, {Tt}, v[234:235], v[232:233] op_sel_hi:[1,0,0]",
                    f"v_pk_mul_f32 {Tt}, {Tt}, {X}",
                    f"v_exp_f32 v{t}, v{t}", f"v_exp_f32 v{t+1}, v{t+1}",
                    f"v_pk_add_f32 {Tt}, {Tt}, v[236:237] op_sel_hi:[1,0]",
                    f"v_rcp_f32 v{t}, v{t}", f"v_rcp_f32 v{t+1}, v{t+1}",
                    f"v_pk_mul_f32 {X}, {X}, {Tt}",
                    f"v_pk_add_f32 v[252:253], v[252:253], {X}",
                    f"v_pk_fma_f32 v[254:255], {X}, {X}, v[254:255]"]
        fill = []
        g0 = ACC[0]
        for b in range(g0, g0+64, 8):
            cols = [gelu(b+2*k) for k in range(4)]
            for i in range(11):
                for k in range(4): fill.append(cols[k][i])
        T += phase(W, 1, 'Y', later, fill=fill, f0=4).linearize()
        stamp(T, 5)
        T.append("v_add_f32 v8, v252, v253"); T.append("v_add_f32 v10, v254, v255")
        T.append("v_mov_b32 v9, v8"); T.append("v_mov_b32 v11, v10"); T.append("s_nop 1")
        T.append("v_permlane32_swap_b32 v8, v9"); T.append("v_permlane32_swap_b32 v10, v11"); T.append("s_nop 1")
        T.append("v_add_f32 v8, v8, v9"); T.append("v_add_f32 v9, v10, v11")
        T.append("s_lshl_b32 s33, s29, 1"); T.append("s_add_u32 s33, s33, s30"); T.append("s_lshl_b32 s33, s33, 9"); T.append("s_add_u32 s33, s33, 32768")
        T.append("v_lshlrev_b32 v12, 3, v240"); T.append("v_add_u32 v13, s33, v12")
        T.append("s_xor_b32 s33, s33, 512"); T.append("v_add_u32 v14, s33, v12")
        T.append("ds_write_b64 v13, v[8:9]")
        for a in range(4):
            d = 244 if a % 2 == 0 else 16
            pack_swap(T, ACC[1]+16*a, d)
            for s in range(2):
                T.append(f"ds_write_b128 v{XB+2*a+s}, {vr(d+4*s,4)}")
        T.append("s_waitcnt lgkmcnt(0)"); T.append("s_barrier")
        T.append("ds_read_b64 v[10:11], v14")
        T.append("v_lshlrev_b32 v15, 4, v240"); T.append("v_add_u32 v15, s31, v15"); T.append(f"v_add_u32 v232, {EX}, v15")
        for half in range(2):
            for k in range(4):
                T.append(f"ds_read_b128 {vr(ACC[1]+(half*4+k)*4,4)}, v232 offset:{half*SLOT + k*1024}")
        for jj in range(8): T.append(f"v_subrev_u32 v{XB+jj}, {EX}, v{XB+jj}")
        T.append("s_waitcnt lgkmcnt(8)")
        T.append("v_add_f32 v8, v8, v10"); T.append("v_add_f32 v9, v9, v11")
        T.append("v_mul_f32 v8, 0x3b800000, v8"); T.append("v_mul_f32 v9, 0x3b800000, v9")
        T.append("v_fma_f32 v9, -v8, v8, v9"); T.append("v_max_f32 v9, 0, v9"); T.append("v_add_f32 v9, 0x3727c5ac, v9")
        T.append("v_rsq_f32 v10, v9"); T.append("s_nop 0")
        T.append("v_mul_f32 v12, v8, v10"); T.append("v_sub_f32 v12, 0, v12")
        T.append("s_lshl_b32 s32, s35, 15"); T.append("s_add_u32 s56, s32, 16384")
        T.append("s_waitcnt lgkmcnt(0)")
        ust = [f"buffer_store_dwordx4 {vr(ACC[1]+(half*4+k)*4,4)}, v{DS+k}, s[20:23], {'s56' if half else 's32'} offen offset:{k*1024}{ST}" for half in range(2) for k in range(4)]
        for a in range(4):
            for k in range(8):
                r = g0 + 16*a + 2*k
                T.append(f"v_pk_fma_f32 v[{r}:{r+1}], v[{r}:{r+1}], v[10:11], v[12:13] op_sel_hi:[1,0,0]")
            T.append(ust.pop(0))
            pack_swap(T, g0+16*a, 16+8*a)
            for s in range(2):
                T.append(f"ds_write_b128 v{XB+2*a+s}, {vr(16+8*a+4*s,4)}")
            T.append(ust.pop(0))
        stamp(T, 6)
        T.append("s_waitcnt lgkmcnt(0)"); T.append("s_barrier")
        for half in range(2):
            for k in range(4):
                T.append(f"ds_read_b128 {vr(ACC[0]+(half*4+k)*4,4)}, v15 offset:{half*SLOT + k*1024}")
        DEF = FF and o.get('defer', True)
        if DEF:
            T.append("s_mov_b32 s88, s32"); T.append("s_mov_b32 s89, s56"); T.append("s_mov_b32 s98, 1")
        else:
            for half in range(2):
                for k in range(4):
                    T.append(f"s_waitcnt lgkmcnt({7 - (half*4+k)})")
                    T.append(f"buffer_store_dwordx4 {vr(ACC[0]+(half*4+k)*4,4)}, v{DS+k}, s[24:27], {'s56' if half else 's32'} offen offset:{k*1024}{ST}")
        stamp(T, 7)
    finish(T, "K1_UG")

    def wf_store(T, acc, which, slice_sreg):
        T.append(f"s_lshl_b32 s33, {slice_sreg}, 2"); T.append("s_lshl_b32 s34, s29, 1"); T.append("s_add_u32 s33, s33, s34"); T.append("s_lshl_b32 s33, s33, 14")
        T.append("s_lshl_b32 s34, s30, 10"); T.append("s_add_u32 s33, s33, s34")
        if which == 2: T.append("s_add_u32 s33, s33, 8192")
        T.append("v_lshrrev_b32 v232, 4, v242"); T.append("v_lshlrev_b32 v232, 14, v232")
        T.append("v_and_b32 v233, 15, v242"); T.append("v_lshl_add_u32 v233, v241, 4, v233")
        T.append("v_lshl_add_u32 v232, v233, 4, v232"); T.append("v_add_u32 v232, s33, v232")
        for a in range(4):
            d = 244; src = acc + 16*a
            if which == 1:
                for k, r in enumerate((0, 2, 8, 10, 4, 6, 12, 14)):
                    T.append(f"v_cvt_pk_bf16_f32 v{d+k}, v{src+r}, v{src+r+1}")
            else:
                pack_swap(T, src, d)
            T.append(f"s_mov_b32 s33, {a*2048}")
            for s in range(2):
                T.append(f"buffer_store_dwordx4 {vr(d+4*s,4)}, v232, s[24:27], s33 offen offset:{s*512}{ST}")
            T.append("s_nop 1")
    W = Waiter(); T = []
    dma_voff(T, False)
    T.append("s_sub_u32 s35, s2, 250")
    T += cap(lambda e: (srd(e, 16, 's52', 's53', 0, 262144), srd(e, 8, 's44', 's45', 0, 131072), srd(e, 12, 's42', 's43', 0, 131072),
                        srd(e, 24, 's54', 's55', WF_OFF, 262144)))
    narrow(T, W, 0, 's35')
    for n in range(3): emit_tile(T, W, n, 8, n*SLOT)
    ka_setup(T)
    azero(T, True)
    narrow_read(T, W)
    for n in range(3, 8): emit_tile(T, W, n, 8, n*SLOT)
    if FF: T.append("buffer_load_dword v243, off, s[4:7], 0 sc1"); W.issue('vm', 'TAG')
    later = std_later(12)
    T += phase(W, 0, 'X', later).linearize()
    T.append("s_barrier")
    exchange(T, W, ACC[0], 'X')
    T += phase(W, 1, 'X', later).linearize()
    T.append("s_nop 15")
    wf_store(T, ACC[1], 1, 's35')
    finish(T, "K1_W1")

    W = Waiter(); T = []
    if not FUSED: T += cap(lambda e: srd(e, 20, 's54', 's55', FL_OFF, 8192))
    if not FUSED:
        T.append("v_lshlrev_b32 v232, 5, v0")
        for k in range(4): T.append(f"v_mov_b32 v{236+k}, 0")
        T.append("buffer_store_dwordx4 v[236:239], v232, s[20:23], 0 offen sc1")
        T.append("buffer_store_dwordx4 v[236:239], v232, s[20:23], 0 offen offset:16 sc1")
        W.issue('vm', 'Z0'); W.issue('vm', 'Z1')
    dma_voff(T, False)
    T.append("s_sub_u32 s35, s2, 254"); T.append("s_lshl_b32 s35, s35, 1")
    T += cap(lambda e: (srd(e, 16, 's52', 's53', 0, 262144), srd(e, 8, 's50', 's51', 0, 131072),
                        srd(e, 24, 's54', 's55', WF_OFF, 262144)))
    narrow(T, W, 131072, 's35')
    for n in range(3): emit_tile(T, W, n, 8, n*SLOT)
    ka_setup(T)
    azero(T, True)
    narrow_read(T, W)
    for n in range(3, 8): emit_tile(T, W, n, 8, n*SLOT)
    if FF: T.append("buffer_load_dword v243, off, s[4:7], 0 sc1"); W.issue('vm', 'TAG')
    T.append("s_barrier")
    T.append("s_add_u32 s56, s35, 1")
    narrow(T, W, 131072, 's56')
    later = std_later(8)
    T += phase(W, 0, 'X', later).linearize()
    T.append("s_nop 15")
    wf_store(T, ACC[0], 2, 's35')
    for i in range(8): W.issue('vm', ('WS', i))
    narrow_read(T, W)
    T += phase(W, 1, 'X', later).linearize()
    T.append("s_nop 15")
    wf_store(T, ACC[1], 2, 's56')
    finish(T, "K1_W2")

    e("K1_FIN:")
    if FUSED:
        if o['stamp']:
            e("s_memtime s[64:65]"); e("s_memrealtime s[66:67]"); e("s_waitcnt lgkmcnt(0)")
            e("s_cmp_eq_u32 s28, 0"); e("s_cbranch_scc0 K1_NOST")
            e("s_add_u32 s68, s54, 0x8100000"); e("s_addc_u32 s69, s55, 0"); e("s_mov_b32 s70, 0x100000"); e("s_mov_b32 s71, 0x20000")
            for k, r in enumerate([60, 64, 62, 66]): e(f"v_mov_b32 v{232+k}, s{r}")
            e("s_lshl_b32 s33, s2, 4"); e("v_mov_b32 v236, s33")
            e("buffer_store_dwordx4 v[232:235], v236, s[68:71], 0 offen")
            for k in range(8): e(f"v_mov_b32 v{244+k}, s{72+2*k}")
            e("s_lshl_b32 s33, s2, 5"); e("s_add_u32 s33, s33, 0x10000"); e("v_mov_b32 v236, s33")
            e("buffer_store_dwordx4 v[244:247], v236, s[68:71], 0 offen")
            e("buffer_store_dwordx4 v[248:251], v236, s[68:71], 0 offen offset:16")
            e("K1_NOST:")
        if FF:
            e("s_lshl_b32 s33, s2, 7")
            fa, fb_ = (FLU, FLQ) if o.get('ugfirst', True) else (FLQ, FLU)
            e(f"s_add_u32 s67, s33, {fa}")
            e(f"s_add_u32 s56, s33, {fb_ - 125*128}"); e("s_cmp_ge_u32 s2, 125"); e("s_cselect_b32 s67, s56, s67")
            e(f"s_add_u32 s56, s33, {FLW - 250*128}"); e("s_cmp_ge_u32 s2, 250"); e("s_cselect_b32 s67, s56, s67")
            for k in range(4): e(f"s_mov_b32 s{92+k}, s{4+k}")
            for x in ["s_mov_b32 s4, s54", "s_mov_b32 s5, s55", "s_mov_b32 s32, s48", "s_mov_b32 s33, s49", "s_mov_b32 s40, s100", "s_mov_b32 s41, s101", "s_mov_b32 s48, s28", "s_mov_b32 s101, 0"]: e(x)
            return L, [], []
        e("K1_TAGP:")
        e("buffer_load_dword v232, off, s[4:7], 0 sc1")
        e("s_waitcnt vmcnt(0) lgkmcnt(0)")
        e("v_readfirstlane_b32 s3, v232")
        e("s_nop 3")
        e("s_cmp_lg_u32 s3, 0"); e("s_cbranch_scc1 K1_TAGD"); e("s_sleep 1")
        e("s_add_u32 s101, s101, 1"); e("s_cmp_lt_u32 s101, 0x400000"); e("s_cbranch_scc1 K1_TAGP")
        e("K1_TAGD:")
        e("s_barrier")
        e("s_cmp_eq_u32 s28, 0"); e("s_cbranch_scc0 K1_NOFL")
        e("s_lshl_b32 s33, s2, 7")
        fa, fb_ = (FLU, FLQ) if o.get('ugfirst', True) else (FLQ, FLU)
        if CT:
            e(f"s_add_u32 s34, s33, {FLU}")
        else:
            e(f"s_add_u32 s34, s33, {fa}")
            e(f"s_add_u32 s56, s33, {fb_ - 125*128}"); e("s_cmp_ge_u32 s2, 125"); e("s_cselect_b32 s34, s56, s34")
        e(f"s_add_u32 s56, s33, {FLW - 250*128}"); e("s_cmp_ge_u32 s2, 250"); e("s_cselect_b32 s34, s56, s34")
        srd(e, 8, 's54', 's55', FL_OFF, FL_SIZE)
        e("v_mov_b32 v232, s3")
        e("v_cmp_eq_u32 vcc, 0, v240"); e("s_and_saveexec_b64 s[56:57], vcc")
        e("buffer_store_dword v232, off, s[8:11], s34 sc1")
        if CT:
            e(f"s_add_u32 s34, s33, {FLQ}"); e("s_cmp_lt_u32 s2, 250"); e("s_cbranch_scc0 K1_NOFL2")
            e("buffer_store_dword v232, off, s[8:11], s34 sc1")
            e("K1_NOFL2:")
        e("s_mov_b64 exec, s[56:57]")
        e("K1_NOFL:")
        e("s_mov_b32 s48, s28")
        return L, [], []
    if o['stamp']:
        e("s_waitcnt vmcnt(0)")
        e("s_memtime s[64:65]"); e("s_memrealtime s[66:67]")
        e("s_waitcnt lgkmcnt(0)")
        e("s_cmp_eq_u32 s28, 0"); e("s_cbranch_scc0 K1_END")
        e("s_add_u32 s68, s54, 0x8100000"); e("s_addc_u32 s69, s55, 0"); e("s_mov_b32 s70, 0x100000"); e("s_mov_b32 s71, 0x20000")
        for k, r in enumerate([60, 64, 62, 66]): e(f"v_mov_b32 v{232+k}, s{r}")
        e("s_lshl_b32 s33, s2, 4"); e("v_mov_b32 v236, s33")
        e("buffer_store_dwordx4 v[232:235], v236, s[68:71], 0 offen")
        for k in range(8): e(f"v_mov_b32 v{244+k}, s{72+2*k}")
        e("s_lshl_b32 s33, s2, 5"); e("s_add_u32 s33, s33, 0x10000"); e("v_mov_b32 v236, s33")
        e("buffer_store_dwordx4 v[244:247], v236, s[68:71], 0 offen")
        e("buffer_store_dwordx4 v[248:251], v236, s[68:71], 0 offen offset:16")
    e("K1_END:")
    e("s_endpgm")
    return L, kernel_desc(name, 288, 256), []
```

```python
from gen_common import *
from tl import TL
import hazard, struct
SLOT = 16384
EX = 131072
fb = lambda x: hex(struct.unpack('<I', struct.pack('<f', x))[0])

def gen_k1(opt=None):
    o = dict(D=6, stamp=False, st='', npre=2, nln=4)
    if opt: o.update(opt)
    D = o['D']; ST = (' ' + o['st']) if o['st'] else ''
    FUSED = o.get('fused')
    name = FUSED if FUSED else 'prep_kernel'
    L = []; e = L.append
    B = 0; ACC = [64, 128]; KA = 192; KA2 = 200; VN = 208; VN2 = 216; DV = 224; DS = 228; XB = 200
    aR = 0; R = 8
    def stamp(T, k):
        if o['stamp']: T.append(f"s_memrealtime s[{72+2*k}:{73+2*k}]")
    L += kernel_header(name)
    e("s_cmp_ge_u32 s2, 256")
    e("s_cbranch_scc1 K2_END" if FUSED else "s_cbranch_scc1 K1_END")
    e("s_load_dwordx16 s[36:51], s[0:1], 0")
    e("s_load_dwordx2 s[52:53], s[0:1], 64")
    e("s_load_dwordx2 s[54:55], s[0:1], 88")
    FF = FUSED and o.get('fastfin', True) and not o.get('ct')
    if FUSED: e("s_load_dwordx2 s[58:59], s[0:1], 80")
    if FF: e("s_load_dwordx2 s[100:101], s[0:1], 72")
    if FF: e("s_mov_b32 s98, 0")
    if FUSED and not FF: e("s_mov_b32 s101, 0")
    if o['stamp']:
        e("s_memtime s[60:61]"); e("s_memrealtime s[62:63]")
    e("v_lshrrev_b32 v232, 6, v0")
    e("v_and_b32 v240, 63, v0")
    e("v_lshrrev_b32 v241, 5, v240")
    e("v_and_b32 v242, 31, v240")
    e("v_readfirstlane_b32 s28, v232")
    e("s_and_b32 s29, s28, 1")
    e("s_lshr_b32 s30, s28, 1")
    e("s_lshl_b32 s31, s28, 12")
    CT = o.get('ct')
    if CT: e("s_mov_b32 s35, s2")
    else: e("s_sub_u32 s35, s2, 125"); e("s_cmp_lt_u32 s2, 125"); e("s_cselect_b32 s35, s2, s35")
    e("s_lshl_b32 s33, s28, 1")
    for k in range(4):
        e(f"v_add_u32 v234, {2*k}, v241"); e("v_and_b32 v234, 3, v234"); e("v_lshlrev_b32 v234, 2, v234")
        e(f"s_add_u32 s34, s33, {k>>1}"); e("s_and_b32 s34, s34, 3")
        e("v_or_b32 v234, s34, v234"); e("v_xor_b32 v234, v242, v234"); e("v_lshlrev_b32 v234, 4, v234")
        e("v_lshl_add_u32 v234, v241, 9, v234")
        e(f"v_add_u32 v{DS+k}, s31, v234")
    e("s_waitcnt lgkmcnt(0)")
    if FUSED:
        e("s_mov_b32 s4, s58"); e("s_mov_b32 s5, s59"); e("s_mov_b32 s6, 256"); e("s_mov_b32 s7, 0x20000")
        e("s_or_b32 s33, s2, s28"); e("s_cmp_eq_u32 s33, 0"); e("s_cbranch_scc0 K1_NOTAG")
        e("s_memrealtime s[56:57]"); e("s_waitcnt lgkmcnt(0)"); e("s_or_b32 s56, s56, 1")
        e("v_mov_b32 v234, s56")
        e("buffer_store_dword v234, off, s[4:7], 0 sc1")
        e("K1_NOTAG:")
    e("s_cmp_lt_u32 s2, 250"); e("s_cbranch_scc0 K1_NOX")
    srd(e, 16, 's36', 's37', 0, 8000*512)
    e("s_lshl_b32 s32, s35, 14" if CT else "s_lshl_b32 s32, s35, 15")
    for half in range(1 if CT else 2):
        e(f"s_add_u32 m0, s31, {EX + half*SLOT:#x}")
        if half: e("s_add_u32 s32, s32, 16384")
        else: e("s_nop 0")
        for k in range(4):
            e(f"buffer_load_dwordx4 v{DS+k}, s[16:19], s32 offen offset:{k*1024} lds")
    PU = FUSED and o.get('pfug', True) and o.get('ugfirst', True) and not CT
    PT = PU and o.get('pftask', False)
    if PT:
        pass
    elif PU:
        e("s_cmp_lt_u32 s2, 128"); e("s_cbranch_scc0 K1_NOX")
        e("s_lshr_b32 s33, s2, 3"); e("s_lshl_b32 s33, s33, 2"); e("s_add_u32 s33, s33, s28")
        e("v_lshlrev_b32 v232, 4, v240")
        e("s_getpc_b64 s[56:57]")
        e("K1_PCREF:")
        e(f"s_add_u32 s56, s56, K1_NOX-K1_PCREF"); e("s_addc_u32 s57, s57, 0")
        e("s_lshl_b32 s34, s33, 10"); e("v_add_u32 v233, s34, v232")
        e(f"s_cmp_lt_u32 s34, {o.get('ipfbytes', 61440)}"); e("s_cbranch_scc0 K1_NOIPF")
        e("global_load_dwordx4 v[252:255], v233, s[56:57]")
        e("K1_NOIPF:")
        e("s_mov_b32 s8, s40"); e("s_mov_b32 s9, s41"); e("s_mov_b32 s10, 131072"); e("s_mov_b32 s11, 0x20000")
        e("s_lshl_b32 s34, s33, 11")
        e("buffer_load_dwordx4 v[100:103], v232, s[8:11], s34 offen")
        e("buffer_load_dwordx4 v[104:107], v232, s[8:11], s34 offen offset:1024")
        if o.get('uppf', True):
            e("s_mov_b32 s8, s46"); e("s_mov_b32 s9, s47"); e("s_mov_b32 s10, 262144")
            e("v_lshl_add_u32 v233, v241, 10, 0"); e("v_lshl_add_u32 v233, v242, 4, v233")
            e(f"s_lshl_b32 s34, s33, 12"); e(f"s_add_u32 s34, s34, {512 if o.get('ufirst', False) else 0}")
            e("buffer_load_dwordx4 v[88:91], v233, s[8:11], s34 offen")
            e("buffer_load_dwordx4 v[92:95], v233, s[8:11], s34 offen offset:2048")
            e("s_mov_b32 s10, 131072")
        e("s_and_b32 s33, s2, 7"); e("s_cmp_lt_u32 s33, 2"); e("s_cbranch_scc1 K1_NOX")
        e("s_lshr_b32 s34, s2, 3")
        e("s_add_u32 s56, s52, 131072"); e("s_addc_u32 s57, s53, 0")
        e("s_cmp_ge_u32 s33, 6"); e("s_cselect_b32 s8, s50, s44"); e("s_cselect_b32 s9, s51, s45"); e("s_cselect_b32 s56, s56, s42"); e("s_cselect_b32 s57, s57, s43")
        e("s_cmp_lt_u32 s34, 8"); e("s_cselect_b32 s8, s8, s56"); e("s_cselect_b32 s9, s9, s57")
        e("s_and_b32 s34, s34, 7"); e("s_lshl_b32 s34, s34, 14"); e("s_lshl_b32 s33, s28, 12"); e("s_add_u32 s34, s34, s33")
        for k in range(4): e(f"buffer_load_dwordx4 v[{108+4*k}:{111+4*k}], v232, s[8:11], s34 offen offset:{k*1024}")
    else:
        if FUSED and o.get('ipf', True):
            e("s_getpc_b64 s[56:57]")
            e("K1_PCREF:")
            e(f"s_add_u32 s56, s56, {o.get('ipfbase', 'K1_NOX')}-K1_PCREF"); e("s_addc_u32 s57, s57, 0")
            e("s_lshr_b32 s33, s2, 3"); e("s_lshl_b32 s33, s33, 2"); e("s_add_u32 s33, s33, s28"); e("s_lshl_b32 s33, s33, 10")
            e(f"s_cmp_lt_u32 s33, {o.get('ipfbytes', 61440)}"); e("s_cbranch_scc0 K1_NOIPF")
            e("v_lshlrev_b32 v232, 4, v240"); e("v_add_u32 v232, s33, v232")
            e("global_load_dwordx4 v[252:255], v232, s[56:57]")
            e("K1_NOIPF:")
        if o.get('wpf', False):
            e("s_lshr_b32 s33, s2, 3"); e("s_lshl_b32 s33, s33, 2"); e("s_add_u32 s33, s33, s28")
            e("v_lshlrev_b32 v232, 4, v240")
            e("s_mov_b32 s8, s40"); e("s_mov_b32 s9, s41"); e("s_mov_b32 s10, 131072"); e("s_mov_b32 s11, 0x20000")
            e("s_lshl_b32 s34, s33, 10")
            e("buffer_load_dwordx4 v[100:103], v232, s[8:11], s34 offen")
            if o.get('wpf') != 'k':
                e("s_mov_b32 s8, s46"); e("s_mov_b32 s9, s47"); e("s_mov_b32 s10, 262144")
                e("s_lshl_b32 s34, s33, 11")
                e("buffer_load_dwordx4 v[104:107], v232, s[8:11], s34 offen")
                e("buffer_load_dwordx4 v[108:111], v232, s[8:11], s34 offen offset:1024")
        if FUSED and o.get('tlb', False):
            e("s_load_dwordx2 s[56:57], s[0:1], 72"); e("s_waitcnt lgkmcnt(0)")
            e("s_cmp_eq_u32 s28, 1"); e("s_cbranch_scc0 K1_NOTLB")
            srd(e, 8, 's54', 's55', OP_OFF, 64*16*16384)
            e("v_lshlrev_b32 v232, 21, v240")
            e("buffer_load_dword v112, v232, s[8:11], 0 offen")
            e("s_mov_b32 s8, s56"); e("s_mov_b32 s9, s57"); e("s_mov_b32 s10, 4096000")
            e("buffer_load_dword v113, v232, s[8:11], 0 offen")
            e("K1_NOTLB:")
        if o.get('pf', True):
            e("s_and_b32 s33, s2, 7"); e("s_cmp_lt_u32 s33, 2"); e("s_cbranch_scc1 K1_NOPF")
            e("s_lshr_b32 s34, s2, 3")
            e("s_cmp_ge_u32 s33, 6"); e("s_cbranch_scc1 K1_PF2")
            e("s_cmp_lt_u32 s34, 16"); e("s_cselect_b32 s8, s44, s42"); e("s_cselect_b32 s9, s45, s43")
            e("s_and_b32 s34, s34, 15"); e("s_lshl_b32 s34, s34, 13")
            e("s_branch K1_PF3")
            e("K1_PF2:")
            e("s_add_u32 s56, s52, 131072"); e("s_addc_u32 s57, s53, 0")
            e("s_cmp_lt_u32 s34, 16"); e("s_cselect_b32 s8, s50, s56"); e("s_cselect_b32 s9, s51, s57")
            e("s_and_b32 s34, s34, 15"); e("s_lshl_b32 s34, s34, 13")
            e("K1_PF3:")
            e("s_mov_b32 s10, 131072"); e("s_mov_b32 s11, 0x20000")
            e("v_lshlrev_b32 v232, 4, v240"); e("s_lshl_b32 s33, s28, 11"); e("s_add_u32 s34, s34, s33")
            e("buffer_load_dwordx4 v[244:247], v232, s[8:11], s34 offen")
            e("buffer_load_dwordx4 v[248:251], v232, s[8:11], s34 offen offset:1024")
            e("K1_NOPF:")
        pass
    e("K1_NOX:")
    first, second = ("K1_UG", "K1_Q") if o.get('ugfirst', True) else ("K1_Q", "K1_UG")
    if CT:
        e("s_cmp_lt_u32 s2, 250"); e("s_cbranch_scc1 K1_CT")
    else:
        e("s_cmp_lt_u32 s2, 125"); e(f"s_cbranch_scc1 {first}")
        e("s_cmp_lt_u32 s2, 250"); e(f"s_cbranch_scc1 {second}")
    e("s_cmp_lt_u32 s2, 254"); e("s_cbranch_scc1 K1_W1")
    e("s_branch K1_W2")

    def k_addr(T, dst, dst2, base_lines):
        t = T.append
        t("v_and_b32 v234, 3, v242"); t("v_lshlrev_b32 v234, 2, v234"); t("v_bfe_u32 v235, v242, 2, 2")
        t("v_or_b32 v234, v234, v235"); t("v_lshlrev_b32 v236, 9, v242")
        for x in base_lines: t(x)
        t("v_add_u32 v236, s33, v236")
        for jj in range(8):
            t(f"v_add_u32 v235, {2*jj}, v241"); t("v_xor_b32 v235, v235, v234")
            t(f"v_lshl_add_u32 v{dst+jj}, v235, 4, v236")
            if dst2 is not None: t(f"v_add_u32 v{dst2+jj}, 0x10000, v{dst+jj}")
    def ka_setup(T): k_addr(T, KA, KA2, ["s_lshl_b32 s33, s30, 14"])
    def xb_setup(T): k_addr(T, XB, None, ["s_lshl_b32 s33, s29, 14", f"s_add_u32 s33, s33, {EX}", "s_lshl_b32 s34, s30, 8", "s_add_u32 s33, s33, s34"])
    def vn_setup(T):
        t = T.append
        t("v_bfe_u32 v234, v240, 4, 1"); t("v_bfe_u32 v235, v240, 2, 2"); t("v_bfe_u32 v236, v240, 1, 1")
        t("v_lshl_add_u32 v236, v234, 1, v236"); t("v_and_b32 v237, 1, v240"); t("v_lshlrev_b32 v237, 3, v237")
        t("v_lshl_add_u32 v238, v241, 3, v235"); t("v_lshl_add_u32 v237, v238, 9, v237")
        t("s_lshl_b32 s33, s30, 8"); t("v_add_u32 v237, s33, v237")
        for a in range(4):
            for u in range(2):
                t(f"v_lshl_add_u32 v238, v241, 1, {u}"); t("v_lshl_or_b32 v238, v235, 2, v238")
                t(f"v_add_u32 v239, {4*a}, v236"); t("v_xor_b32 v238, v238, v239")
                t(f"v_lshl_add_u32 v{VN+a*2+u}, v238, 4, v237")
                if u: t(f"v_add_u32 v{VN+a*2+u}, {4*512}, v{VN+a*2+u}")
                t(f"v_add_u32 v{VN2+a*2+u}, 0x10000, v{VN+a*2+u}")
    def dma_voff(T, stride1024):
        t = T.append
        if not stride1024:
            for k in range(4): t(f"v_mov_b32 v{DV+k}, v{DS+k}")
            return
        t("s_lshl_b32 s33, s28, 1")
        for k in range(4):
            t(f"v_add_u32 v234, {2*k}, v241"); t("v_and_b32 v234, 3, v234"); t("v_lshlrev_b32 v234, 2, v234")
            t(f"s_add_u32 s34, s33, {k>>1}"); t("s_and_b32 s34, s34, 3")
            t("v_or_b32 v234, s34, v234"); t("v_xor_b32 v234, v242, v234"); t("v_lshlrev_b32 v234, 4, v234")
            t("v_lshl_add_u32 v234, v241, 10, v234"); t("s_lshl_b32 s34, s28, 13"); t(f"s_add_u32 s34, s34, {k*1024}")
            t(f"v_add_u32 v{DV+k}, s34, v234")
    def tile_dma(n, srdn, soff):
        if o.get('nodma'): return []
        r = [(f"s_add_u32 m0, s31, {(n%8)*SLOT:#x}", False), (f"s_mov_b32 s32, {soff:#x}", False)]
        for k in range(4):
            r.append((f"buffer_load_dwordx4 v{DV+k}, s[{srdn}:{srdn+3}], s32 offen offset:{k*1024} lds", True))
        return r
    def emit_tile(out, W, n, srdn, soff):
        for txt, vm in tile_dma(n, srdn, soff):
            out.append(txt)
            if vm: W.issue('vm', ('T', n))
    def out_rows(T, W, srdn, tag, OB):
        t = T.append
        t("v_lshlrev_b32 v232, 4, v240"); t(f"s_add_u32 s33, s31, {EX}"); t("v_add_u32 v232, s33, v232")
        for half in range(2):
            for k in range(4):
                t(f"ds_read_b128 {vr(OB+(half*4+k)*4,4)}, v232 offset:{half*SLOT + k*1024}")
        t("s_lshl_b32 s32, s35, 15")
        for half in range(2):
            if half: t("s_add_u32 s32, s32, 16384")
            for k in range(4):
                t(f"s_waitcnt lgkmcnt({7 - (half*4+k)})")
                t(f"buffer_store_dwordx4 {vr(OB+(half*4+k)*4,4)}, v{DS+k}, s[{srdn}:{srdn+3}], s32 offen offset:{k*1024}{ST}")
                W.issue('vm', (tag, half, k))
        W.drain('lgkm')
    def ln(out, W, tiles):
        nw = W.need('vm', [('X', 7)])
        out.append(f"s_waitcnt vmcnt({nw})")
        out.append("s_barrier")
        stamp(out, 0)
        for s in range(8):
            out.append(f"ds_read_b128 {vr(64+4*s,4)}, v{XB+s}")
        body = []; b = body.append
        b("s_mov_b32 s34, 0x3f803f80")
        for k in range(4): b(f"v_mov_b32 v{232+k}, 0")
        for r in range(32):
            if r % 4 == 0: b(f"s_waitcnt lgkmcnt({7 - r//4})")
            b(f"v_dot2_f32_bf16 v{232+(r&1)}, v{64+r}, s34, v{232+(r&1)}")
            b(f"v_dot2_f32_bf16 v{234+(r&1)}, v{64+r}, v{64+r}, v{234+(r&1)}")
        b("s_nop 2")
        b("v_add_f32 v232, v232, v233"); b("v_add_f32 v234, v234, v235")
        b("v_mov_b32 v233, v232"); b("v_mov_b32 v235, v234"); b("s_nop 1")
        b("v_permlane32_swap_b32 v232, v233"); b("v_permlane32_swap_b32 v234, v235"); b("s_nop 1")
        b("v_add_f32 v232, v232, v233"); b("v_add_f32 v233, v234, v235")
        b(f"ds_write_b64 v{XB}, v[232:233]")
        b(f"v_xor_b32 v238, 256, v{XB}")
        b("s_waitcnt lgkmcnt(0)")
        b("s_barrier")
        b("ds_read_b64 v[234:235], v238")
        b("s_waitcnt lgkmcnt(0)")
        b("v_add_f32 v232, v232, v234"); b("v_add_f32 v234, v233, v235")
        b("v_mul_f32 v232, 0x3b800000, v232"); b("v_mul_f32 v234, 0x3b800000, v234")
        b("v_fma_f32 v234, -v232, v232, v234"); b("v_max_f32 v234, 0, v234"); b("v_add_f32 v234, 0x3727c5ac, v234")
        b("v_rsq_f32 v234, v234"); b("s_nop 0")
        b("v_mul_f32 v236, v232, v234"); b("v_sub_f32 v236, 0, v236")
        b("s_barrier")
        for r in range(32):
            t = 244 + 2*(r % 4)
            b(f"v_lshlrev_b32 v{t}, 16, v{64+r}")
            b(f"v_and_b32 v{t+1}, 0xffff0000, v{64+r}")
            b(f"v_pk_fma_f32 v[{t}:{t+1}], v[{t}:{t+1}], v[234:235], v[236:237] op_sel_hi:[1,0,0]")
            b(f"v_cvt_pk_bf16_f32 v{64+r}, v{t}, v{t+1}")
            if r % 4 == 3: b(f"ds_write_b128 v{XB+r//4}, {vr(64+r-3,4)}")
        b("s_waitcnt lgkmcnt(0)")
        b("s_barrier")
        b("s_lshl_b32 s33, s30, 8")
        for jj in range(8): b(f"v_subrev_u32 v{244+jj}, s33, v{XB+jj}")
        for s in range(16):
            b(f"ds_read_b128 {vr(B+4*s,4)}, v{244+(s&7)} offset:{(s>>3)*256}")
        flat = []
        for (n, sn, so) in tiles:
            tl_ = [(txt, vm, n) for txt, vm in tile_dma(n, sn, so)]
            flat.append(tl_[:3])
            for x in tl_[3:]: flat.append([x])
        gap = max(1, len(body) // (len(flat) + 1)) if flat else 1
        fi = 0
        for i, ins in enumerate(body):
            out.append(ins)
            if fi < len(flat) and i % gap == gap - 1:
                for txt, vm, n in flat[fi]:
                    out.append(txt)
                    if vm: W.issue('vm', ('T', n))
                fi += 1
        while fi < len(flat):
            for txt, vm, n in flat[fi]:
                out.append(txt)
                if vm: W.issue('vm', ('T', n))
            fi += 1
        out.append("s_waitcnt lgkmcnt(0)")
        W.drain('lgkm')
    def phase(W, p, kind, later, fill=None, f0=3, bar_lgkm=None):
        tl = TL(W)
        acc = ACC[p]
        cnt = [0]
        for a in range(4):
            sig = 4*p + a
            tb = 16*a - D - 1
            tl.add(tb, 'bar', needvm=[('T', 2*sig), ('T', 2*sig+1)], needlgkm=(bar_lgkm or {}).get(sig, []), prio=1)
            k = 0
            for (n, sn, so) in later.get(sig, []):
                for txt, vm in tile_dma(n, sn, so):
                    sp = o.get('dsp', 2)
                    if vm:
                        tl.add(tb + 1 + sp*k, 'vm', txt, tag=('T', n), prio=7); k += 1
                    else:
                        tl.add(tb + 1 + sp*k, 'txt', txt, prio=6)
            for m in range(16):
                tm = 16*a + m
                ri = cnt[0] % R; cnt[0] += 1
                ring = aR + 4*ri
                if kind == 'X':
                    j = m; slot = 2*a
                    base = (KA if slot < 4 else KA2) + (j & 7)
                    off = (slot % 4)*SLOT + (j >> 3)*256
                    tag = (p, a, m)
                    tl.add(tm - D, 'lds', f"ds_read_b128 {ar(ring,4)}, v{base} offset:{off}", tag=tag, prio=2)
                    c = vr(acc+16*a,16) if j else '0'
                    tl.add(tm, 'mfma', f"v_mfma_f32_32x32x16_bf16 {vr(acc+16*a,16)}, {ar(ring,4)}, {vr(B+4*j,4)}, {c}", need=[tag], prio=0)
                else:
                    tt, s, aa = m >> 3, (m >> 2) & 1, m & 3
                    tau = 2*a + tt; slot = tau
                    tags = []
                    for u in range(2):
                        base = (VN if slot < 4 else VN2) + aa*2 + u
                        off = (slot % 4)*SLOT + 16*s*512
                        tag = (p, a, m, u); tags.append(tag)
                        tl.add(tm - D, 'lds', f"ds_read_b64_tr_b16 {ar(ring+2*u,2)}, v{base} offset:{off}", tag=tag, prio=2)
                    c = vr(acc+16*aa,16) if (tau or s) else '0'
                    tl.add(tm, 'mfma', f"v_mfma_f32_32x32x16_bf16 {vr(acc+16*aa,16)}, {ar(ring,4)}, {vr(B+4*(2*tau+s),4)}, {c}", need=tags, prio=0)
        if fill:
            n = len(fill)
            for i, ins in enumerate(fill):
                tl.add(f0 + (i*(64-f0))/n, 'txt', ins, prio=4)
        return tl
    def pack_swap(out, src, dst, swap=True, scale=None):
        if scale and o.get('unpk', True):
            for k in range(16): out.append(f"v_mul_f32 v{src+k}, v{src+k}, v236")
        elif scale:
            for k in range(8):
                out.append(f"v_pk_mul_f32 v[{src+2*k}:{src+2*k+1}], v[{src+2*k}:{src+2*k+1}], {scale} op_sel_hi:[1,0]")
        for k in range(8):
            out.append(f"v_cvt_pk_bf16_f32 v{dst+k}, v{src+2*k}, v{src+2*k+1}")
        if swap:
            out.append("s_nop 1")
            for b in (0, 4):
                out.append(f"v_permlane32_swap_b32 v{dst+b}, v{dst+b+2}")
                out.append(f"v_permlane32_swap_b32 v{dst+b+1}, v{dst+b+3}")
    def exchange(out, W, acc, kind, xaflag=False):
        out.append("s_nop 15")
        out.append("v_lshlrev_b32 v232, 4, v240")
        out.append(f"s_lshl_b32 s33, s29, 14"); out.append(f"s_add_u32 s33, s33, {EX}")
        out.append("v_add_u32 v233, s33, v232")
        out.append(f"s_lshl_b32 s34, s30, {13 if kind=='Y' else 11}")
        out.append("v_add_u32 v232, s34, v233")
        for a in range(4):
            d = 244 if a % 2 == 0 else 0
            pack_swap(out, acc+16*a, d)
            for s in range(2):
                f = (2*a + s) if kind == 'Y' else (4*a + s)
                out.append(f"ds_write_b128 v232, {vr(d+4*s,4)} offset:{f*1024}")
        if xaflag:
            n = W.need('vm', [x for x in W.q['vm'] if isinstance(x, tuple) and x[0] == 'XS'] + ['TAG'])
            if n is not None: out.append(f"s_waitcnt vmcnt({n})")
        out.append("s_waitcnt lgkmcnt(0)")
        out.append("s_barrier")
        if xaflag:
            out.append("v_readfirstlane_b32 s3, v243"); out.append("s_or_b32 s33, s28, 0");
            out.append("s_cmp_eq_u32 s28, 0"); out.append("s_cbranch_scc0 K1_Q_NOXF")
            out.append("s_cmp_lg_u32 s3, 0"); out.append("s_cbranch_scc0 K1_Q_NOXF")
            out += cap(lambda e: srd(e, 16, 's54', 's55', FL_OFF, FL_SIZE))
            out.append("s_lshl_b32 s33, s35, 7"); out.append(f"s_add_u32 s33, s33, {FLQ + 4}")
            out.append("v_mov_b32 v238, s3"); out.append("v_cmp_eq_u32 vcc, 0, v240"); out.append("s_and_saveexec_b64 s[56:57], vcc")
            out.append("buffer_store_dword v238, off, s[16:19], s33 sc1")
            out.append("s_mov_b64 exec, s[56:57]")
            out.append("K1_Q_NOXF:")
        for f in range(16):
            out.append(f"ds_read_b128 {vr(B+4*f,4)}, v233 offset:{f*1024}")
        out.append("s_waitcnt lgkmcnt(0)")
        W.drain('lgkm')
    def narrow(out, W, rowbase_bytes, slice_sreg):
        for x in ["v_lshrrev_b32 v232, 3, v240", "v_lshlrev_b32 v232, 9, v232", "v_and_b32 v233, 7, v240",
                  "v_lshl_add_u32 v232, v233, 4, v232", f"s_lshl_b32 s33, {slice_sreg}, 7", "s_lshl_b32 s34, s28, 15",
                  "s_add_u32 s33, s33, s34", f"s_add_u32 s33, s33, {rowbase_bytes}", "v_add_u32 v232, s33, v232",
                  "s_lshl_b32 s34, s28, 13", f"s_add_u32 s34, s34, {EX}"]: out.append(x)
        for i in range(8):
            out.append(f"s_add_u32 m0, s34, {i*1024}")
            out.append(f"s_mov_b32 s32, {i*4096}")
            out.append(f"buffer_load_dwordx4 v232, s[16:19], s32 offen lds")
            W.issue('vm', ('N', i))
    def narrow_read(out, W):
        n = W.need('vm', [('N', 7)])
        out.append(f"s_waitcnt vmcnt({n})")
        out.append("s_barrier")
        for x in ["v_bfe_u32 v232, v240, 2, 2", "v_lshl_add_u32 v232, v241, 3, v232", "v_lshlrev_b32 v232, 7, v232",
                  "v_bfe_u32 v233, v240, 4, 1", "v_lshl_add_u32 v232, v233, 5, v232", "v_and_b32 v233, 3, v240",
                  "v_lshl_add_u32 v232, v233, 3, v232", "s_lshl_b32 s33, s29, 6", f"s_add_u32 s33, s33, {EX}",
                  "v_add_u32 v232, s33, v232"]: out.append(x)
        for s in range(16):
            for u in range(2):
                out.append(f"ds_read_b64_tr_b16 {vr(B+4*s+2*u,2)}, v232 offset:{s*2048+u*512}")
            if s % 4 == 3: out.append("s_waitcnt lgkmcnt(0)")
        W.drain('lgkm')
    def finish(task_lines, label):
        if CT and label in ("K1_Q", "K1_UG"): return
        fixed = hazard.autofix(task_lines)
        e(f"{label}:")
        L.extend(fixed)
        e("s_branch K1_FIN")
    def cap(fn):
        buf = []; fn(buf.append); return buf
    std_later = lambda sn: {2: [(8, sn, 0), (9, sn, SLOT)], 3: [(10, sn, 2*SLOT), (11, sn, 3*SLOT)], 4: [(12, sn, 4*SLOT), (13, sn, 5*SLOT)], 5: [(14, sn, 6*SLOT), (15, sn, 7*SLOT)]}
    npre = o['npre']
    AZ = [f"v_accvgpr_write_b32 a{128+r}, 0" for r in range(128)] if (FF and o.get('lean', True)) else []
    def prefetch_block(T, W):
        t = T.append
        t("s_lshr_b32 s33, s2, 3"); t("s_lshl_b32 s33, s33, 2"); t("s_add_u32 s33, s33, s28")
        t("v_lshlrev_b32 v232, 4, v240")
        t("s_getpc_b64 s[56:57]")
        t("K1_PCREF:")
        t("s_sub_u32 s56, s56, K1_PCREF-K1_NOX"); t("s_subb_u32 s57, s57, 0")
        t(f"s_min_u32 s34, s33, {o.get('ipfbytes', 61440)//1024 - 1}"); t("s_lshl_b32 s34, s34, 10"); t("v_add_u32 v233, s34, v232")
        t("global_load_dwordx4 v[148:151], v233, s[56:57]"); W.issue('vm', ('PF', 0))
        t("s_mov_b32 s12, s40"); t("s_mov_b32 s13, s41"); t("s_mov_b32 s14, 131072"); t("s_mov_b32 s15, 0x20000")
        t("s_lshl_b32 s34, s33, 11")
        t("buffer_load_dwordx4 v[152:155], v232, s[12:15], s34 offen"); W.issue('vm', ('PF', 1))
        t("buffer_load_dwordx4 v[156:159], v232, s[12:15], s34 offen offset:1024"); W.issue('vm', ('PF', 2))
        t("v_lshl_add_u32 v233, v241, 10, 0"); t("v_lshl_add_u32 v233, v242, 4, v233")
        t(f"s_lshl_b32 s34, s33, 12"); t(f"s_add_u32 s34, s34, {512 if o.get('ufirst', False) else 0}")
        t("buffer_load_dwordx4 v[160:163], v233, s[8:11], s34 offen"); W.issue('vm', ('PF', 3))
        t("buffer_load_dwordx4 v[164:167], v233, s[8:11], s34 offen offset:2048"); W.issue('vm', ('PF', 4))
        t("s_and_b32 s33, s2, 7"); t("s_lshr_b32 s34, s2, 3")
        t("s_add_u32 s56, s52, 131072"); t("s_addc_u32 s57, s53, 0")
        t("s_cmp_ge_u32 s33, 6"); t("s_cselect_b32 s12, s50, s44"); t("s_cselect_b32 s13, s51, s45"); t("s_cselect_b32 s56, s56, s42"); t("s_cselect_b32 s57, s57, s43")
        t("s_cmp_lt_u32 s34, 8"); t("s_cselect_b32 s12, s12, s56"); t("s_cselect_b32 s13, s13, s57")
        t("s_and_b32 s34, s34, 7"); t("s_lshl_b32 s34, s34, 14"); t("s_lshl_b32 s33, s28, 12"); t("s_add_u32 s34, s34, s33")
        for k in range(4):
            t(f"buffer_load_dwordx4 v[{132+4*k}:{135+4*k}], v232, s[12:15], s34 offen offset:{k*1024}"); W.issue('vm', ('PF', 5+k))
    def azero(T, force=False):
        if AZ and (force or not o.get('azph0')): T.extend(AZ)


    if CT:
        EXB = EX + 16384
        Bq = 64
        ACCQ, ACCK, ACCG, ACCU = 64, 96, 128, 160
        VN4 = 208; VN42 = 212; XO = 216; XB8 = 244
        W = Waiter(); T = []; t = T.append
        for s_ in range(4): W.issue('vm', ('X', s_))
        dma_voff(T, True)
        T += cap(lambda e: (srd(e, 8, 's38', 's39', 0, 131072), srd(e, 12, 's40', 's41', 0, 131072), srd(e, 20, 's46', 's47', 0, 262144),
                            srd(e, 24, 's54', 's55', QF_OFF, 500*8192)))
        def tinfo(n):
            if n < 8: return (8, n*SLOT, DS)
            if n < 16: return (12, (n-8)*SLOT, DS)
            if n < 24: return (20, (n-16)*32768 + 512, DV)
            return (20, (n-24)*32768, DV)
        def tdma(n):
            sn, so, dv = tinfo(n)
            r = [(f"s_add_u32 m0, s31, {(n%8)*SLOT:#x}", False), (f"s_mov_b32 s32, {so:#x}", False)]
            for k in range(4): r.append((f"buffer_load_dwordx4 v{dv+k}, s[{sn}:{sn+3}], s32 offen offset:{k*1024} lds", True))
            return r
        def temit(n):
            for txt, vm in tdma(n):
                t(txt)
                if vm: W.issue('vm', ('T', n))
        temit(0); temit(1)
        t("v_and_b32 v234, 3, v242"); t("v_lshlrev_b32 v234, 2, v234"); t("v_bfe_u32 v235, v242, 2, 2"); t("v_or_b32 v234, v234, v235")
        t("v_lshlrev_b32 v236, 9, v242"); t(f"v_add_u32 v237, {EX}, v236")
        t("s_lshl_b32 s33, s30, 8"); t("v_add_u32 v238, s33, v237")
        t("s_lshl_b32 s33, s29, 3")
        for i in range(4):
            t(f"s_add_u32 s34, s33, {2*i}"); t("v_add_u32 v235, s34, v241"); t("v_xor_b32 v235, v235, v234"); t(f"v_lshl_add_u32 v{XO+i}, v235, 4, v238")
        t("s_lshl_b32 s33, s28, 14"); t("v_add_u32 v238, s33, v236")
        for jj in range(8):
            t(f"v_add_u32 v235, {2*jj}, v241"); t("v_xor_b32 v235, v235, v234")
            t(f"v_lshl_add_u32 v{KA+jj}, v235, 4, v238"); t(f"v_add_u32 v{KA2+jj}, 0x10000, v{KA+jj}")
        t("v_bfe_u32 v234, v240, 4, 1"); t("v_bfe_u32 v235, v240, 2, 2"); t("v_bfe_u32 v236, v240, 1, 1")
        t("v_lshl_add_u32 v236, v234, 1, v236"); t("v_and_b32 v237, 1, v240"); t("v_lshlrev_b32 v237, 3, v237")
        t("v_lshl_add_u32 v238, v241, 3, v235"); t("v_lshl_add_u32 v237, v238, 9, v237")
        t("s_lshl_b32 s33, s30, 8"); t("v_add_u32 v237, s33, v237")
        t("s_lshl_b32 s33, s29, 3")
        for aa in range(2):
            for u in range(2):
                t(f"v_lshl_add_u32 v238, v241, 1, {u}"); t("v_lshl_or_b32 v238, v235, 2, v238")
                t(f"s_add_u32 s34, s33, {4*aa}"); t("v_add_u32 v239, s34, v236"); t("v_xor_b32 v238, v238, v239")
                t(f"v_lshl_add_u32 v{VN4+aa*2+u}, v238, 4, v237")
                if u: t(f"v_add_u32 v{VN4+aa*2+u}, {4*512}, v{VN4+aa*2+u}")
                t(f"v_add_u32 v{VN42+aa*2+u}, 0x10000, v{VN4+aa*2+u}")
        nw = W.need('vm', [('X', 3)]); t(f"s_waitcnt vmcnt({nw})"); t("s_barrier")
        stamp(T, 0)
        for i in range(4): t(f"ds_read_b128 {vr(64+4*i,4)}, v{XO+i}")
        T += cap(lambda e: srd(e, 16, 's54', 's55', XA_OFF, 8000*512))
        body = []; b = body.append
        b("s_mov_b32 s34, 0x3f803f80")
        for k in range(4): b(f"v_mov_b32 v{232+k}, 0")
        for r in range(16):
            if r % 4 == 0: b(f"s_waitcnt lgkmcnt({3 - r//4})")
            b(f"v_dot2_f32_bf16 v{232+(r&1)}, v{64+r}, s34, v{232+(r&1)}")
            b(f"v_dot2_f32_bf16 v{234+(r&1)}, v{64+r}, v{64+r}, v{234+(r&1)}")
        b("s_nop 2")
        b("v_add_f32 v232, v232, v233"); b("v_add_f32 v234, v234, v235")
        b("v_mov_b32 v233, v232"); b("v_mov_b32 v235, v234"); b("s_nop 1")
        b("v_permlane32_swap_b32 v232, v233"); b("v_permlane32_swap_b32 v234, v235"); b("s_nop 1")
        b("v_add_f32 v232, v232, v233"); b("v_add_f32 v233, v234, v235")
        b("v_lshlrev_b32 v238, 3, v242"); b(f"v_add_u32 v238, {EXB}, v238")
        b("s_lshl_b32 s33, s28, 8"); b("v_add_u32 v239, s33, v238")
        b("ds_write_b64 v239, v[232:233]")
        b("s_waitcnt lgkmcnt(0)"); b("s_barrier")
        for k in range(4): b(f"ds_read_b64 v[{80+2*k}:{81+2*k}], v238 offset:{256*k}")
        b("s_waitcnt lgkmcnt(0)")
        b("v_add_f32 v80, v80, v82"); b("v_add_f32 v81, v81, v83"); b("v_add_f32 v84, v84, v86"); b("v_add_f32 v85, v85, v87")
        b("v_add_f32 v232, v80, v84"); b("v_add_f32 v234, v81, v85")
        b("v_mul_f32 v232, 0x3b800000, v232"); b("v_mul_f32 v234, 0x3b800000, v234")
        b("v_fma_f32 v234, -v232, v232, v234"); b("v_max_f32 v234, 0, v234"); b("v_add_f32 v234, 0x3727c5ac, v234")
        b("v_rsq_f32 v234, v234"); b("s_nop 0")
        b("v_mul_f32 v236, v232, v234"); b("v_sub_f32 v236, 0, v236")
        for r in range(16):
            tt_ = 244 + 2*(r % 4)
            b(f"v_lshlrev_b32 v{tt_}, 16, v{64+r}"); b(f"v_and_b32 v{tt_+1}, 0xffff0000, v{64+r}")
            b(f"v_pk_fma_f32 v[{tt_}:{tt_+1}], v[{tt_}:{tt_+1}], v[234:235], v[236:237] op_sel_hi:[1,0,0]")
            b(f"v_cvt_pk_bf16_f32 v{64+r}, v{tt_}, v{tt_+1}")
            if r % 4 == 3: b(f"ds_write_b128 v{XO+r//4}, {vr(64+r-3,4)}")
        b("s_lshl_b32 s33, s28, 14"); b(f"s_sub_u32 s33, {EX}, s33")
        for jj in range(8): b(f"v_add_u32 v{XB8+jj}, s33, v{KA+jj}")
        b("s_waitcnt lgkmcnt(0)"); b("s_barrier")
        for s_ in range(16): b(f"ds_read_b128 {vr(B+4*s_,4)}, v{XB8+(s_&7)} offset:{(s_>>3)*256}")
        b("v_lshlrev_b32 v232, 4, v240"); b(f"s_add_u32 s33, s31, {EX}"); b("v_add_u32 v232, s33, v232")
        for k in range(4): b(f"ds_read_b128 {vr(96+4*k,4)}, v232 offset:{k*1024}")
        flat = []
        for n in range(2, 6):
            tl_ = [(txt, vm, n) for txt, vm in tdma(n)]
            flat.append(tl_[:3])
            for x in tl_[3:]: flat.append([x])
        gap = max(1, (len(body) - 24) // (len(flat) + 1)); fi = 0
        for i, ins in enumerate(body):
            t(ins)
            if fi < len(flat) and i % gap == gap - 1:
                for txt, vm, n in flat[fi]:
                    t(txt)
                    if vm: W.issue('vm', ('T', n))
                fi += 1
        while fi < len(flat):
            for txt, vm, n in flat[fi]:
                t(txt)
                if vm: W.issue('vm', ('T', n))
            fi += 1
        t("s_waitcnt lgkmcnt(0)")
        t("s_lshl_b32 s56, s35, 14")
        for k in range(4):
            t(f"buffer_store_dwordx4 {vr(96+4*k,4)}, v{DS+k}, s[16:19], s56 offen offset:{k*1024}{ST}"); W.issue('vm', ('XS', k))
        stamp(T, 1)
        def flag_store(off_lines, lbl):
            t("s_cmp_eq_u32 s28, 0"); t(f"s_cbranch_scc0 {lbl}")
            for x in off_lines: t(x)
            t("v_mov_b32 v232, s3"); t("v_cmp_eq_u32 vcc, 0, v240"); t("s_and_saveexec_b64 s[56:57], vcc")
            t("buffer_store_dword v232, off, s[8:11], s34 sc1")
            t("s_mov_b64 exec, s[56:57]")
            t(f"{lbl}:")
        fillers = {}
        def step(sig, extra_need=None, after_bar=None):
            p, a = sig >> 2, sig & 3
            need = [('T', 2*sig), ('T', 2*sig+1)] + (extra_need or [])
            nv = W.need('vm', need)
            if nv is not None: t(f"s_waitcnt vmcnt({nv})")
            t("s_barrier")
            if after_bar: after_bar()
            dm = []
            for n in (2*(sig+3), 2*(sig+3)+1):
                if n < 32: dm += [(txt, vm, n) for txt, vm in tdma(n)]
            fl = list(fillers.get(sig, []))
            def some(k_dma, k_fill):
                c = 0
                while dm and c < k_dma:
                    txt, vm, n = dm.pop(0); t(txt)
                    if vm: W.issue('vm', ('T', n)); c += 1
                for _ in range(k_fill):
                    if fl: t(fl.pop(0))
            nf = -(-len(fl) // 8) if fl else 0
            if p != 1:
                acc = {0: ACCQ, 2: ACCG, 3: ACCU}[p]
                idx = 0; seq = []
                for tt in range(2):
                    slot = (2*sig + tt) % 8
                    for s_ in range(2):
                        for aa in range(2):
                            for u in range(2):
                                base = (VN4 if slot < 4 else VN42) + aa*2 + u
                                t(f"ds_read_b64_tr_b16 {ar(4*idx+2*u,2)}, v{base} offset:{(slot%4)*SLOT + 16*s_*512}")
                            seq.append((idx, tt, s_, aa)); idx += 1
                for (idx, tt, s_, aa) in seq:
                    if idx % 2 == 0: t(f"s_waitcnt lgkmcnt({14 - 2*idx - 2 if idx < 6 else 0})")
                    tau = 2*a + tt
                    c = vr(acc+16*aa,16) if (tau or s_) else '0'
                    t(f"v_mfma_f32_32x32x16_bf16 {vr(acc+16*aa,16)}, {ar(4*idx,4)}, {vr(B+4*(2*tau+s_),4)}, {c}")
                    some(1, nf)
            else:
                lbl = f"K1_CT_X{a}"
                t(f"s_cmp_eq_u32 s30, {a & 1}"); t(f"s_cbranch_scc0 {lbl}")
                k = a >> 1; base = KA if k == 0 else KA2
                for half in range(2):
                    for j in range(8): t(f"ds_read_b128 {ar(4*j,4)}, v{base+j} offset:{half*256}")
                    for j in range(8):
                        if j % 2 == 0: t(f"s_waitcnt lgkmcnt({6 - j})")
                        jj = 8*half + j
                        c = vr(ACCK+16*k,16) if jj else '0'
                        t(f"v_mfma_f32_32x32x16_bf16 {vr(ACCK+16*k,16)}, {ar(4*j,4)}, {ar(Bq+4*jj,4)}, {c}")
                t(f"{lbl}:")
            some(100, 1000)
        for sig in range(4): step(sig)
        stamp(T, 2)
        t("s_nop 15")
        t("v_lshlrev_b32 v232, 4, v240"); t(f"v_add_u32 v233, {EXB}, v232"); t("s_lshl_b32 s34, s28, 12"); t("v_add_u32 v232, s34, v233")
        for aa in range(2):
            d = 244 if aa == 0 else 96
            pack_swap(T, ACCQ+16*aa, d)
            for s_ in range(2): t(f"ds_write_b128 v232, {vr(d+4*s_,4)} offset:{(2*aa+s_)*1024}")
        t("s_waitcnt lgkmcnt(0)"); t("s_barrier")
        for f in range(16): t(f"ds_read_b128 {ar(Bq+4*f,4)}, v233 offset:{f*1024}")
        t("s_waitcnt lgkmcnt(0)")
        t("buffer_load_dword v243, off, s[4:7], 0 sc1"); W.issue('vm', 'TAG')
        for sig in range(4, 8): step(sig)
        stamp(T, 3)
        qf = []
        qf.append("s_nop 7"); qf.append("v_mov_b32 v236, 0x3db8aa3b")
        qf += ["s_lshl_b32 s33, s35, 14", "s_lshl_b32 s34, s28, 10", "s_add_u32 s33, s33, s34",
               "v_lshrrev_b32 v252, 4, v242", "v_lshlrev_b32 v252, 13, v252", "v_and_b32 v253, 15, v242", "v_lshl_add_u32 v253, v241, 4, v253",
               "v_lshl_add_u32 v252, v253, 4, v252", "v_add_u32 v252, s33, v252"]
        qst = []
        for k in range(2):
            d = 244 if k == 0 else 64
            pack_swap(qf, ACCK+16*k, d, scale="v[236:237]")
            for s_ in range(2):
                qf.append(f"buffer_store_dwordx4 {vr(d+4*s_,4)}, v252, s[24:27], 0 offen offset:{k*4096 + s_*512 - (4096 if k else 0)}{ST}" if k == 0 else "@K1")
        out2 = []
        cnt = 0
        for x in qf:
            if x == "@K1":
                if cnt == 0: out2.append("v_add_u32 v253, 4096, v252")
                out2.append(f"buffer_store_dwordx4 {vr(64+4*cnt,4)}, v253, s[24:27], 0 offen offset:{cnt*512}{ST}"); cnt += 1
            else: out2.append(x)
        qf = out2
        for x in qf:
            t(x)
            if x.startswith('buffer_store'): W.issue('vm', ('QS', len(W.q['vm'])))
        W.issue('vm', 'QEND'); W.q['vm'].pop()
        qtags = [x for x in W.q['vm'] if isinstance(x, tuple) and x[0] in ('QS', 'XS')]
        step(8)
        step(9)
        def get_tag():
            t("K1_CT_TAGP:")
            t("buffer_load_dword v232, off, s[4:7], 0 sc1"); t("s_waitcnt vmcnt(0)")
            t("v_readfirstlane_b32 s3, v232"); t("s_nop 3"); t("s_cmp_lg_u32 s3, 0"); t("s_cbranch_scc1 K1_CT_TAGD"); t("s_sleep 1"); t("s_branch K1_CT_TAGP")
            t("K1_CT_TAGD:")
        def qflag():
            T.extend(cap(lambda e: srd(e, 8, 's54', 's55', FL_OFF, FL_SIZE)))
            flag_store([f"s_lshl_b32 s34, s35, 7", f"s_add_u32 s34, s34, {FLQ}"], "K1_CT_NOQF")
        step(10, extra_need=qtags + ['TAG'], after_bar=None)
        t("v_readfirstlane_b32 s3, v243")
        t("s_nop 3")
        pend_qflag = True
        t("s_cmp_eq_u32 s28, 0"); t("s_cbranch_scc0 K1_CT_NOQF2")
        t("s_cmp_lg_u32 s3, 0"); t("s_cbranch_scc0 K1_CT_NOQF2")
        T.extend(cap(lambda e: srd(e, 8, 's54', 's55', FL_OFF, FL_SIZE)))
        t(f"s_lshl_b32 s34, s35, 7"); t(f"s_add_u32 s34, s34, {FLQ}")
        t("v_mov_b32 v232, s3"); t("v_cmp_eq_u32 vcc, 0, v240"); t("s_and_saveexec_b64 s[56:57], vcc")
        t("buffer_store_dword v232, off, s[8:11], s34 sc1")
        t("s_mov_b64 exec, s[56:57]")
        t("K1_CT_NOQF2:")
        step(11)
        stamp(T, 4)
        k0 = -2.0*1.4426950408889634*0.7978845608028654
        t("s_nop 7")
        t(f"v_mov_b32 v232, {fb(k0)}"); t(f"v_mov_b32 v234, {fb(k0*0.044715)}"); t("v_mov_b32 v236, 1.0")
        for k in range(4): t(f"v_mov_b32 v{252+k}, 0")
        def gelu(r):
            tt_ = 244 + 2*((r//2) % 4)
            X = f"v[{r}:{r+1}]"; Tt = f"v[{tt_}:{tt_+1}]"
            return [f"v_pk_mul_f32 {Tt}, {X}, {X}", f"v_pk_fma_f32 {Tt}, {Tt}, v[234:235], v[232:233] op_sel_hi:[1,0,0]", f"v_pk_mul_f32 {Tt}, {Tt}, {X}",
                    f"v_exp_f32 v{tt_}, v{tt_}", f"v_exp_f32 v{tt_+1}, v{tt_+1}", f"v_pk_add_f32 {Tt}, {Tt}, v[236:237] op_sel_hi:[1,0]",
                    f"v_rcp_f32 v{tt_}, v{tt_}", f"v_rcp_f32 v{tt_+1}, v{tt_+1}", f"v_pk_mul_f32 {X}, {X}, {Tt}",
                    f"v_pk_add_f32 v[252:253], v[252:253], {X}", f"v_pk_fma_f32 v[254:255], {X}, {X}, v[254:255]"]
        for q in range(4):
            cols = [gelu(ACCG + 8*q + 2*k) for k in range(4)]
            fillers[12+q] = [cols[k][i] for i in range(11) for k in range(4)]
        for sig in range(12, 16): step(sig)
        stamp(T, 5)
        t("v_add_f32 v8, v252, v253"); t("v_add_f32 v10, v254, v255"); t("v_mov_b32 v9, v8"); t("v_mov_b32 v11, v10"); t("s_nop 1")
        t("v_permlane32_swap_b32 v8, v9"); t("v_permlane32_swap_b32 v10, v11"); t("s_nop 1")
        t("v_add_f32 v8, v8, v9"); t("v_add_f32 v9, v10, v11")
        t("v_lshlrev_b32 v12, 3, v242"); t("s_lshl_b32 s33, s28, 8"); t("v_add_u32 v13, s33, v12")
        t("s_barrier")
        t("ds_write_b64 v13, v[8:9]")
        for aa in range(2):
            d = 244 if aa == 0 else 16
            pack_swap(T, ACCU+16*aa, d)
            for s_ in range(2): t(f"ds_write_b128 v{XO+2*aa+s_}, {vr(d+4*s_,4)} offset:16384")
        t("s_waitcnt lgkmcnt(0)"); t("s_barrier")
        for k in range(4): t(f"ds_read_b64 v[{24+2*k}:{25+2*k}], v12 offset:{256*k}")
        t("v_lshlrev_b32 v232, 4, v240"); t(f"s_add_u32 s33, s31, {EX}"); t("v_add_u32 v232, s33, v232")
        for k in range(4): t(f"ds_read_b128 {vr(96+4*k,4)}, v232 offset:{16384 + k*1024}")
        T.extend(cap(lambda e: (srd(e, 12, 's54', 's55', U_OFF, 8000*512), srd(e, 20, 's54', 's55', G_OFF, 8000*512))))
        t("s_lshl_b32 s56, s35, 14")
        t("s_waitcnt lgkmcnt(4)")
        t("v_add_f32 v24, v24, v26"); t("v_add_f32 v25, v25, v27"); t("v_add_f32 v28, v28, v30"); t("v_add_f32 v29, v29, v31")
        t("v_add_f32 v8, v24, v28"); t("v_add_f32 v9, v25, v29")
        t("v_mul_f32 v8, 0x3b800000, v8"); t("v_mul_f32 v9, 0x3b800000, v9")
        t("v_fma_f32 v9, -v8, v8, v9"); t("v_max_f32 v9, 0, v9"); t("v_add_f32 v9, 0x3727c5ac, v9")
        t("v_rsq_f32 v10, v9"); t("s_nop 0"); t("v_mul_f32 v12, v8, v10"); t("v_sub_f32 v12, 0, v12")
        t("s_waitcnt lgkmcnt(0)")
        for k in range(4): t(f"buffer_store_dwordx4 {vr(96+4*k,4)}, v{DS+k}, s[12:15], s56 offen offset:{k*1024}{ST}")
        for aa in range(2):
            for k in range(8):
                r = ACCG + 16*aa + 2*k
                t(f"v_pk_fma_f32 v[{r}:{r+1}], v[{r}:{r+1}], v[10:11], v[12:13] op_sel_hi:[1,0,0]")
            d = 32 + 8*aa
            pack_swap(T, ACCG+16*aa, d)
            for s_ in range(2): t(f"ds_write_b128 v{XO+2*aa+s_}, {vr(d+4*s_,4)}")
        t("s_waitcnt lgkmcnt(0)"); t("s_barrier")
        for k in range(4): t(f"ds_read_b128 {vr(112+4*k,4)}, v232 offset:{k*1024}")
        for k in range(4):
            t(f"s_waitcnt lgkmcnt({3-k})")
            t(f"buffer_store_dwordx4 {vr(112+4*k,4)}, v{DS+k}, s[20:23], s56 offen offset:{k*1024}{ST}")
        stamp(T, 6)
        finish(T, "K1_CT")
    W = Waiter(); T = []
    for s in range(8): W.issue('vm', ('X', s))
    dma_voff(T, False)
    T += cap(lambda e: (srd(e, 8, 's38', 's39', 0, 131072), srd(e, 12, 's40', 's41', 0, 131072),
                        srd(e, 20, 's54', 's55', XA_OFF, 8000*512), srd(e, 24, 's54', 's55', QF_OFF, 500*8192)))
    emit = [(n, 8, n*SLOT) for n in range(8)]
    for (n, sn, so) in emit[:npre]: emit_tile(T, W, n, sn, so)
    xb_setup(T); vn_setup(T)
    azero(T)
    ln(T, W, emit[npre:o['nln']])
    if FF: T.append("buffer_load_dword v243, off, s[4:7], 0 sc1"); W.issue('vm', 'TAG')
    stamp(T, 1)
    ka_setup(T)
    stamp(T, 2)
    T.append("v_lshlrev_b32 v232, 4, v240"); T.append(f"s_add_u32 s33, s31, {EX}"); T.append("v_add_u32 v232, s33, v232")
    for half in range(2):
        for k in range(4):
            T.append(f"ds_read_b128 {vr(ACC[1]+(half*4+k)*4,4)}, v232 offset:{half*SLOT + k*1024}")
    T.append("s_waitcnt lgkmcnt(0)")
    T.append("s_lshl_b32 s34, s35, 15"); T.append("s_add_u32 s56, s34, 16384")
    xfill = []
    for half in range(2):
        for k in range(4):
            xfill.append((f"buffer_store_dwordx4 {vr(ACC[1]+(half*4+k)*4,4)}, v{DS+k}, s[20:23], {'s56' if half else 's34'} offen offset:{k*1024}{ST}", ('XS', half, k)))
    later = std_later(12)
    rest = emit[o['nln']:]
    if rest:
        later[0] = rest[:2]; later[1] = rest[2:4]
        if later[1] == [] : del later[1]
    tl0 = phase(W, 0, 'Y', later, fill=(AZ if o.get('azph0') else None), f0=2)
    for i, (txt, tag) in enumerate(xfill): tl0.add(1 + 2*i, 'vm', txt, tag=tag, prio=7)
    T += tl0.linearize()
    stamp(T, 3)
    exchange(T, W, ACC[0], 'Y', xaflag=FF and o.get('xaflag', True))
    stamp(T, 4)
    T.append("v_mov_b32 v236, 0x3db8aa3b")
    T.append("s_lshl_b32 s33, s35, 2"); T.append("s_lshl_b32 s34, s29, 1"); T.append("s_add_u32 s33, s33, s34"); T.append("s_lshl_b32 s33, s33, 13")
    T.append("s_lshl_b32 s34, s30, 10"); T.append("s_add_u32 s33, s33, s34")
    T.append("v_lshrrev_b32 v232, 4, v242"); T.append("v_lshlrev_b32 v232, 13, v232")
    T.append("v_and_b32 v233, 15, v242"); T.append("v_lshl_add_u32 v233, v241, 4, v233")
    T.append("v_lshl_add_u32 v232, v233, 4, v232"); T.append("v_add_u32 v232, s33, v232")
    for a in range(1, 4): T.append(f"v_add_u32 v{232+a}, {a*2048}, v232")
    def qepi(a):
        ls = []
        d = ACC[0] + 8*a
        pack_swap(ls, ACC[1]+16*a, d, scale="v[236:237]")
        st = [f"buffer_store_dwordx4 {vr(d+4*s,4)}, v{232+a}, s[24:27], 0 offen offset:{s*512}{ST}" for s in range(2)]
        return ls, st
    tl1 = phase(W, 1, 'X', later)
    if o.get('qprog', True):
        for a in range(3):
            ls, st = qepi(a)
            t0 = 16*(a+1) + 4
            for i, ins in enumerate(ls): tl1.add(t0 + i*0.4, 'txt', ins, prio=4)
            for i, ins in enumerate(st): tl1.add(t0 + len(ls)*0.4 + 0.5 + i, 'vm', ins, tag=('QS', a, i), prio=7)
    T += tl1.linearize()
    stamp(T, 5)
    T.append("s_nop 15")
    for a in (range(3, 4) if o.get('qprog', True) else range(4)):
        ls, st = qepi(a)
        T += ls + st
    finish(T, "K1_Q")

    if o.get('ufirst', False):
        W = Waiter(); T = []
        for s in range(8): W.issue('vm', ('X', s))
        dma_voff(T, True)
        T += cap(lambda e: (srd(e, 8, 's46', 's47', 0, 262144),
                            srd(e, 20, 's54', 's55', U_OFF, 8000*512), srd(e, 24, 's54', 's55', G_OFF, 8000*512)))
        emit = [(n, 8, n*32768) for n in range(8)]
        for (n, sn, so) in emit[:npre]: emit_tile(T, W, n, sn, so)
        if PT: prefetch_block(T, W)
        xb_setup(T); vn_setup(T)
        azero(T)
        ln(T, W, emit[npre:o['nln']])
        if FF: T.append("buffer_load_dword v243, off, s[4:7], 0 sc1"); W.issue('vm', 'TAG')
        stamp(T, 2)
        gl = lambda n: (n, 8, (n-8)*32768 + 512)
        later = {2: [gl(8), gl(9)], 3: [gl(10), gl(11)], 4: [gl(12), gl(13)], 5: [gl(14), gl(15)]}
        rest = emit[o['nln']:]
        if rest:
            later[0] = rest[:2]; later[1] = rest[2:4]
        T += phase(W, 0, 'Y', later, fill=(AZ if o.get('azph0') else None), f0=2).linearize()
        stamp(T, 3)
        T.append("v_lshlrev_b32 v232, 4, v240"); T.append(f"s_add_u32 s33, s31, {EX}"); T.append("v_add_u32 v232, s33, v232")
        T.append("s_lshl_b32 s56, s35, 15"); T.append("s_add_u32 s57, s56, 16384")
        uw = [('UW', a, s) for a in range(4) for s in range(2)]
        tl1 = phase(W, 1, 'Y', later, bar_lgkm={6: uw})
        for a in range(4):
            ls = []
            pack_swap(ls, ACC[0]+16*a, ACC[0]+16*a)
            t0 = 3 + 5*a
            for i, ins in enumerate(ls): tl1.add(t0 + i*0.3, 'txt', ins, prio=4)
            for s in range(2):
                tl1.add(t0 + 4.5 + 0.2*s, 'lds', f"ds_write_b128 v{XB+2*a+s}, {vr(ACC[0]+16*a+4*s,4)}", tag=('UW', a, s), prio=4)
        for r in range(8):
            reg = ACC[0] + 16*(r >> 1) + 8 + 4*(r & 1)
            half, k = r >> 2, r & 3
            tl1.add(27 + r*0.5, 'lds', f"ds_read_b128 {vr(reg,4)}, v232 offset:{half*SLOT + k*1024}", tag=('UR', r), prio=3)
            tl1.add(36 + 3*r, 'vm', f"buffer_store_dwordx4 {vr(reg,4)}, v{DS+k}, s[20:23], {'s57' if half else 's56'} offen offset:{k*1024}{ST}", tag=('US', r), need=[('UR', r)], prio=7)
        T += tl1.linearize()
        stamp(T, 5)
        T.append("s_nop 15")
        k0 = -2.0*1.4426950408889634*0.7978845608028654
        T.append(f"v_mov_b32 v232, {fb(k0)}"); T.append(f"v_mov_b32 v234, {fb(k0*0.044715)}"); T.append("v_mov_b32 v236, 1.0")
        for k in range(4): T.append(f"v_mov_b32 v{252+k}, 0")
        def gelu(r):
            t = 244 + 2*((r//2) % 4)
            X = f"v[{r}:{r+1}]"; Tt = f"v[{t}:{t+1}]"
            return [f"v_pk_mul_f32 {Tt}, {X}, {X}",
                    f"v_pk_fma_f32 {Tt}, {Tt}, v[234:235], v[232:233] op_sel_hi:[1,0,0]",
                    f"v_pk_mul_f32 {Tt}, {Tt}, {X}",
                    f"v_exp_f32 v{t}, v{t}", f"v_exp_f32 v{t+1}, v{t+1}",
                    f"v_pk_add_f32 {Tt}, {Tt}, v[236:237] op_sel_hi:[1,0]",
                    f"v_rcp_f32 v{t}, v{t}", f"v_rcp_f32 v{t+1}, v{t+1}",
                    f"v_pk_mul_f32 {X}, {X}, {Tt}",
                    f"v_pk_add_f32 v[252:253], v[252:253], {X}",
                    f"v_pk_fma_f32 v[254:255], {X}, {X}, v[254:255]"]
        g0 = ACC[1]
        for b in range(g0, g0+64, 8):
            cols = [gelu(b+2*k) for k in range(4)]
            for i in range(11):
                for k in range(4): T.append(cols[k][i])
        stamp(T, 6)
        T.append("v_add_f32 v8, v252, v253"); T.append("v_add_f32 v10, v254, v255")
        T.append("v_mov_b32 v9, v8"); T.append("v_mov_b32 v11, v10"); T.append("s_nop 1")
        T.append("v_permlane32_swap_b32 v8, v9"); T.append("v_permlane32_swap_b32 v10, v11"); T.append("s_nop 1")
        T.append("v_add_f32 v8, v8, v9"); T.append("v_add_f32 v9, v10, v11")
        T.append("s_lshl_b32 s33, s29, 1"); T.append("s_add_u32 s33, s33, s30"); T.append("s_lshl_b32 s33, s33, 9"); T.append("s_add_u32 s33, s33, 32768")
        T.append("v_lshlrev_b32 v12, 3, v240"); T.append("v_add_u32 v13, s33, v12")
        T.append("s_xor_b32 s33, s33, 512"); T.append("v_add_u32 v14, s33, v12")
        T.append("ds_write_b64 v13, v[8:9]")
        for jj in range(8): T.append(f"v_subrev_u32 v{XB+jj}, {EX}, v{XB+jj}")
        T.append("v_lshlrev_b32 v15, 4, v240"); T.append("v_add_u32 v15, s31, v15")
        T.append("s_waitcnt lgkmcnt(0)"); T.append("s_barrier")
        T.append("ds_read_b64 v[10:11], v14"); T.append("s_waitcnt lgkmcnt(0)")
        T.append("v_add_f32 v8, v8, v10"); T.append("v_add_f32 v9, v9, v11")
        T.append("v_mul_f32 v8, 0x3b800000, v8"); T.append("v_mul_f32 v9, 0x3b800000, v9")
        T.append("v_fma_f32 v9, -v8, v8, v9"); T.append("v_max_f32 v9, 0, v9"); T.append("v_add_f32 v9, 0x3727c5ac, v9")
        T.append("v_rsq_f32 v10, v9"); T.append("s_nop 0")
        T.append("v_mul_f32 v12, v8, v10"); T.append("v_sub_f32 v12, 0, v12")
        for a in range(4):
            for k in range(8):
                r = g0 + 16*a + 2*k
                T.append(f"v_pk_fma_f32 v[{r}:{r+1}], v[{r}:{r+1}], v[10:11], v[12:13] op_sel_hi:[1,0,0]")
            pack_swap(T, g0+16*a, 16+8*a)
            for s in range(2):
                T.append(f"ds_write_b128 v{XB+2*a+s}, {vr(16+8*a+4*s,4)}")
        T.append("s_waitcnt lgkmcnt(0)"); T.append("s_barrier")
        for half in range(2):
            for k in range(4):
                T.append(f"ds_read_b128 {vr(ACC[0]+(half*4+k)*4,4)}, v15 offset:{half*SLOT + k*1024}")
        DEF = FF and o.get('defer', True)
        if DEF:
            T.append("s_mov_b32 s88, s56"); T.append("s_mov_b32 s89, s57"); T.append("s_mov_b32 s98, 1")
        else:
            for half in range(2):
                for k in range(4):
                    T.append(f"s_waitcnt lgkmcnt({7 - (half*4+k)})")
                    T.append(f"buffer_store_dwordx4 {vr(ACC[0]+(half*4+k)*4,4)}, v{DS+k}, s[24:27], {'s57' if half else 's56'} offen offset:{k*1024}{ST}")
        stamp(T, 7)
    else:
        W = Waiter(); T = []
        for s in range(8): W.issue('vm', ('X', s))
        dma_voff(T, True)
        T += cap(lambda e: (srd(e, 8, 's46', 's47', 0, 262144),
                            srd(e, 20, 's54', 's55', U_OFF, 8000*512), srd(e, 24, 's54', 's55', G_OFF, 8000*512)))
        emit = [(n, 8, n*32768 + 512) for n in range(8)]
        for (n, sn, so) in emit[:npre]: emit_tile(T, W, n, sn, so)
        if PT: prefetch_block(T, W)
        xb_setup(T); vn_setup(T)
        azero(T)
        ln(T, W, emit[npre:o['nln']])
        if FF: T.append("buffer_load_dword v243, off, s[4:7], 0 sc1"); W.issue('vm', 'TAG')
        stamp(T, 2)
        gl = lambda n: (n, 8, (n-8)*32768)
        later = {2: [gl(8), gl(9)], 3: [gl(10), gl(11)], 4: [gl(12), gl(13)], 5: [gl(14), gl(15)]}
        rest = emit[o['nln']:]
        if rest:
            later[0] = rest[:2]; later[1] = rest[2:4]
        T += phase(W, 0, 'Y', later, fill=(AZ if o.get('azph0') else None), f0=2).linearize()
        stamp(T, 3)
        k0 = -2.0*1.4426950408889634*0.7978845608028654
        T.append(f"v_mov_b32 v232, {fb(k0)}"); T.append(f"v_mov_b32 v234, {fb(k0*0.044715)}"); T.append("v_mov_b32 v236, 1.0")
        for k in range(4): T.append(f"v_mov_b32 v{252+k}, 0")
        def gelu(r):
            t = 244 + 2*((r//2) % 4)
            X = f"v[{r}:{r+1}]"; Tt = f"v[{t}:{t+1}]"
            if o.get('unpk', True):
                return [f"v_mul_f32 v{t}, v{r}, v{r}", f"v_mul_f32 v{t+1}, v{r+1}, v{r+1}",
                        f"v_fma_f32 v{t}, v{t}, v234, v232", f"v_fma_f32 v{t+1}, v{t+1}, v234, v232",
                        f"v_mul_f32 v{t}, v{t}, v{r}", f"v_mul_f32 v{t+1}, v{t+1}, v{r+1}",
                        f"v_exp_f32 v{t}, v{t}", f"v_exp_f32 v{t+1}, v{t+1}",
                        f"v_add_f32 v{t}, 1.0, v{t}", f"v_add_f32 v{t+1}, 1.0, v{t+1}",
                        f"v_rcp_f32 v{t}, v{t}", f"v_rcp_f32 v{t+1}, v{t+1}",
                        f"v_mul_f32 v{r}, v{r}, v{t}", f"v_mul_f32 v{r+1}, v{r+1}, v{t+1}",
                        f"v_add_f32 v252, v252, v{r}", f"v_add_f32 v253, v253, v{r+1}",
                        f"v_fmac_f32 v254, v{r}, v{r}", f"v_fmac_f32 v255, v{r+1}, v{r+1}"]
            return [f"v_pk_mul_f32 {Tt}, {X}, {X}",
                    f"v_pk_fma_f32 {Tt}, {Tt}, v[234:235], v[232:233] op_sel_hi:[1,0,0]",
                    f"v_pk_mul_f32 {Tt}, {Tt}, {X}",
                    f"v_exp_f32 v{t}, v{t}", f"v_exp_f32 v{t+1}, v{t+1}",
                    f"v_pk_add_f32 {Tt}, {Tt}, v[236:237] op_sel_hi:[1,0]",
                    f"v_rcp_f32 v{t}, v{t}", f"v_rcp_f32 v{t+1}, v{t+1}",
                    f"v_pk_mul_f32 {X}, {X}, {Tt}",
                    f"v_pk_add_f32 v[252:253], v[252:253], {X}",
                    f"v_pk_fma_f32 v[254:255], {X}, {X}, v[254:255]"]
        fill = []
        g0 = ACC[0]
        for b in range(g0, g0+64, 8):
            cols = [gelu(b+2*k) for k in range(4)]
            for i in range(len(cols[0])):
                for k in range(4): fill.append(cols[k][i])
        T += phase(W, 1, 'Y', later, fill=fill, f0=4).linearize()
        stamp(T, 5)
        T.append("v_add_f32 v8, v252, v253"); T.append("v_add_f32 v10, v254, v255")
        T.append("v_mov_b32 v9, v8"); T.append("v_mov_b32 v11, v10"); T.append("s_nop 1")
        T.append("v_permlane32_swap_b32 v8, v9"); T.append("v_permlane32_swap_b32 v10, v11"); T.append("s_nop 1")
        T.append("v_add_f32 v8, v8, v9"); T.append("v_add_f32 v9, v10, v11")
        T.append("s_lshl_b32 s33, s29, 1"); T.append("s_add_u32 s33, s33, s30"); T.append("s_lshl_b32 s33, s33, 9"); T.append("s_add_u32 s33, s33, 32768")
        T.append("v_lshlrev_b32 v12, 3, v240"); T.append("v_add_u32 v13, s33, v12")
        T.append("s_xor_b32 s33, s33, 512"); T.append("v_add_u32 v14, s33, v12")
        T.append("ds_write_b64 v13, v[8:9]")
        for a in range(4):
            d = 244 if a % 2 == 0 else 16
            pack_swap(T, ACC[1]+16*a, d)
            for s in range(2):
                T.append(f"ds_write_b128 v{XB+2*a+s}, {vr(d+4*s,4)}")
        T.append("s_waitcnt lgkmcnt(0)"); T.append("s_barrier")
        T.append("ds_read_b64 v[10:11], v14")
        T.append("v_lshlrev_b32 v15, 4, v240"); T.append("v_add_u32 v15, s31, v15"); T.append(f"v_add_u32 v232, {EX}, v15")
        for half in range(2):
            for k in range(4):
                T.append(f"ds_read_b128 {vr(ACC[1]+(half*4+k)*4,4)}, v232 offset:{half*SLOT + k*1024}")
        for jj in range(8): T.append(f"v_subrev_u32 v{XB+jj}, {EX}, v{XB+jj}")
        T.append("s_waitcnt lgkmcnt(8)")
        T.append("v_add_f32 v8, v8, v10"); T.append("v_add_f32 v9, v9, v11")
        T.append("v_mul_f32 v8, 0x3b800000, v8"); T.append("v_mul_f32 v9, 0x3b800000, v9")
        T.append("v_fma_f32 v9, -v8, v8, v9"); T.append("v_max_f32 v9, 0, v9"); T.append("v_add_f32 v9, 0x3727c5ac, v9")
        T.append("v_rsq_f32 v10, v9"); T.append("s_nop 0")
        T.append("v_mul_f32 v12, v8, v10"); T.append("v_sub_f32 v12, 0, v12")
        T.append("s_lshl_b32 s32, s35, 15"); T.append("s_add_u32 s56, s32, 16384")
        T.append("s_waitcnt lgkmcnt(0)")
        ust = [f"buffer_store_dwordx4 {vr(ACC[1]+(half*4+k)*4,4)}, v{DS+k}, s[20:23], {'s56' if half else 's32'} offen offset:{k*1024}{ST}" for half in range(2) for k in range(4)]
        for a in range(4):
            for k in range(8):
                r = g0 + 16*a + 2*k
                T.append(f"v_pk_fma_f32 v[{r}:{r+1}], v[{r}:{r+1}], v[10:11], v[12:13] op_sel_hi:[1,0,0]")
            T.append(ust.pop(0))
            pack_swap(T, g0+16*a, 16+8*a)
            for s in range(2):
                T.append(f"ds_write_b128 v{XB+2*a+s}, {vr(16+8*a+4*s,4)}")
            T.append(ust.pop(0))
        stamp(T, 6)
        T.append("s_waitcnt lgkmcnt(0)"); T.append("s_barrier")
        for half in range(2):
            for k in range(4):
                T.append(f"ds_read_b128 {vr(ACC[0]+(half*4+k)*4,4)}, v15 offset:{half*SLOT + k*1024}")
        DEF = FF and o.get('defer', True)
        if DEF:
            T.append("s_mov_b32 s88, s32"); T.append("s_mov_b32 s89, s56"); T.append("s_mov_b32 s98, 1")
        else:
            for half in range(2):
                for k in range(4):
                    T.append(f"s_waitcnt lgkmcnt({7 - (half*4+k)})")
                    T.append(f"buffer_store_dwordx4 {vr(ACC[0]+(half*4+k)*4,4)}, v{DS+k}, s[24:27], {'s56' if half else 's32'} offen offset:{k*1024}{ST}")
        stamp(T, 7)
    finish(T, "K1_UG")

    def wf_store(T, acc, which, slice_sreg):
        T.append(f"s_lshl_b32 s33, {slice_sreg}, 2"); T.append("s_lshl_b32 s34, s29, 1"); T.append("s_add_u32 s33, s33, s34"); T.append("s_lshl_b32 s33, s33, 14")
        T.append("s_lshl_b32 s34, s30, 10"); T.append("s_add_u32 s33, s33, s34")
        if which == 2: T.append("s_add_u32 s33, s33, 8192")
        T.append("v_lshrrev_b32 v232, 4, v242"); T.append("v_lshlrev_b32 v232, 14, v232")
        T.append("v_and_b32 v233, 15, v242"); T.append("v_lshl_add_u32 v233, v241, 4, v233")
        T.append("v_lshl_add_u32 v232, v233, 4, v232"); T.append("v_add_u32 v232, s33, v232")
        for a in range(4):
            d = 244; src = acc + 16*a
            if which == 1:
                for k, r in enumerate((0, 2, 8, 10, 4, 6, 12, 14)):
                    T.append(f"v_cvt_pk_bf16_f32 v{d+k}, v{src+r}, v{src+r+1}")
            else:
                pack_swap(T, src, d)
            T.append(f"s_mov_b32 s33, {a*2048}")
            for s in range(2):
                T.append(f"buffer_store_dwordx4 {vr(d+4*s,4)}, v232, s[24:27], s33 offen offset:{s*512}{ST}")
            T.append("s_nop 1")
    W = Waiter(); T = []
    dma_voff(T, False)
    T.append("s_sub_u32 s35, s2, 250")
    T += cap(lambda e: (srd(e, 16, 's52', 's53', 0, 262144), srd(e, 8, 's44', 's45', 0, 131072), srd(e, 12, 's42', 's43', 0, 131072),
                        srd(e, 24, 's54', 's55', WF_OFF, 262144)))
    narrow(T, W, 0, 's35')
    for n in range(3): emit_tile(T, W, n, 8, n*SLOT)
    ka_setup(T)
    azero(T, True)
    narrow_read(T, W)
    for n in range(3, 8): emit_tile(T, W, n, 8, n*SLOT)
    if FF: T.append("buffer_load_dword v243, off, s[4:7], 0 sc1"); W.issue('vm', 'TAG')
    later = std_later(12)
    T += phase(W, 0, 'X', later).linearize()
    T.append("s_barrier")
    exchange(T, W, ACC[0], 'X')
    T += phase(W, 1, 'X', later).linearize()
    T.append("s_nop 15")
    wf_store(T, ACC[1], 1, 's35')
    finish(T, "K1_W1")

    W = Waiter(); T = []
    if not FUSED: T += cap(lambda e: srd(e, 20, 's54', 's55', FL_OFF, 8192))
    if not FUSED:
        T.append("v_lshlrev_b32 v232, 5, v0")
        for k in range(4): T.append(f"v_mov_b32 v{236+k}, 0")
        T.append("buffer_store_dwordx4 v[236:239], v232, s[20:23], 0 offen sc1")
        T.append("buffer_store_dwordx4 v[236:239], v232, s[20:23], 0 offen offset:16 sc1")
        W.issue('vm', 'Z0'); W.issue('vm', 'Z1')
    dma_voff(T, False)
    T.append("s_sub_u32 s35, s2, 254"); T.append("s_lshl_b32 s35, s35, 1")
    T += cap(lambda e: (srd(e, 16, 's52', 's53', 0, 262144), srd(e, 8, 's50', 's51', 0, 131072),
                        srd(e, 24, 's54', 's55', WF_OFF, 262144)))
    narrow(T, W, 131072, 's35')
    for n in range(3): emit_tile(T, W, n, 8, n*SLOT)
    ka_setup(T)
    azero(T, True)
    narrow_read(T, W)
    for n in range(3, 8): emit_tile(T, W, n, 8, n*SLOT)
    if FF: T.append("buffer_load_dword v243, off, s[4:7], 0 sc1"); W.issue('vm', 'TAG')
    T.append("s_barrier")
    T.append("s_add_u32 s56, s35, 1")
    narrow(T, W, 131072, 's56')
    later = std_later(8)
    T += phase(W, 0, 'X', later).linearize()
    T.append("s_nop 15")
    wf_store(T, ACC[0], 2, 's35')
    for i in range(8): W.issue('vm', ('WS', i))
    narrow_read(T, W)
    T += phase(W, 1, 'X', later).linearize()
    T.append("s_nop 15")
    wf_store(T, ACC[1], 2, 's56')
    finish(T, "K1_W2")

    e("K1_FIN:")
    if FUSED:
        if o['stamp']:
            e("s_memtime s[64:65]"); e("s_memrealtime s[66:67]"); e("s_waitcnt lgkmcnt(0)")
            e("s_cmp_eq_u32 s28, 0"); e("s_cbranch_scc0 K1_NOST")
            e("s_add_u32 s68, s54, 0x8100000"); e("s_addc_u32 s69, s55, 0"); e("s_mov_b32 s70, 0x100000"); e("s_mov_b32 s71, 0x20000")
            for k, r in enumerate([60, 64, 62, 66]): e(f"v_mov_b32 v{232+k}, s{r}")
            e("s_lshl_b32 s33, s2, 4"); e("v_mov_b32 v236, s33")
            e("buffer_store_dwordx4 v[232:235], v236, s[68:71], 0 offen")
            for k in range(8): e(f"v_mov_b32 v{244+k}, s{72+2*k}")
            e("s_lshl_b32 s33, s2, 5"); e("s_add_u32 s33, s33, 0x10000"); e("v_mov_b32 v236, s33")
            e("buffer_store_dwordx4 v[244:247], v236, s[68:71], 0 offen")
            e("buffer_store_dwordx4 v[248:251], v236, s[68:71], 0 offen offset:16")
            e("K1_NOST:")
        if FF:
            e("s_lshl_b32 s33, s2, 7")
            fa, fb_ = (FLU, FLQ) if o.get('ugfirst', True) else (FLQ, FLU)
            e(f"s_add_u32 s67, s33, {fa}")
            e(f"s_add_u32 s56, s33, {fb_ - 125*128}"); e("s_cmp_ge_u32 s2, 125"); e("s_cselect_b32 s67, s56, s67")
            e(f"s_add_u32 s56, s33, {FLW - 250*128}"); e("s_cmp_ge_u32 s2, 250"); e("s_cselect_b32 s67, s56, s67")
            for k in range(4): e(f"s_mov_b32 s{92+k}, s{4+k}")
            for x in ["s_mov_b32 s4, s54", "s_mov_b32 s5, s55", "s_mov_b32 s32, s48", "s_mov_b32 s33, s49", "s_mov_b32 s40, s100", "s_mov_b32 s41, s101", "s_mov_b32 s48, s28", "s_mov_b32 s101, 0"]: e(x)
            return L, [], []
        e("K1_TAGP:")
        e("buffer_load_dword v232, off, s[4:7], 0 sc1")
        e("s_waitcnt vmcnt(0) lgkmcnt(0)")
        e("v_readfirstlane_b32 s3, v232")
        e("s_nop 3")
        e("s_cmp_lg_u32 s3, 0"); e("s_cbranch_scc1 K1_TAGD"); e("s_sleep 1")
        e("s_add_u32 s101, s101, 1"); e("s_cmp_lt_u32 s101, 0x400000"); e("s_cbranch_scc1 K1_TAGP")
        e("K1_TAGD:")
        e("s_barrier")
        e("s_cmp_eq_u32 s28, 0"); e("s_cbranch_scc0 K1_NOFL")
        e("s_lshl_b32 s33, s2, 7")
        fa, fb_ = (FLU, FLQ) if o.get('ugfirst', True) else (FLQ, FLU)
        if CT:
            e(f"s_add_u32 s34, s33, {FLU}")
        else:
            e(f"s_add_u32 s34, s33, {fa}")
            e(f"s_add_u32 s56, s33, {fb_ - 125*128}"); e("s_cmp_ge_u32 s2, 125"); e("s_cselect_b32 s34, s56, s34")
        e(f"s_add_u32 s56, s33, {FLW - 250*128}"); e("s_cmp_ge_u32 s2, 250"); e("s_cselect_b32 s34, s56, s34")
        srd(e, 8, 's54', 's55', FL_OFF, FL_SIZE)
        e("v_mov_b32 v232, s3")
        e("v_cmp_eq_u32 vcc, 0, v240"); e("s_and_saveexec_b64 s[56:57], vcc")
        e("buffer_store_dword v232, off, s[8:11], s34 sc1")
        if CT:
            e(f"s_add_u32 s34, s33, {FLQ}"); e("s_cmp_lt_u32 s2, 250"); e("s_cbranch_scc0 K1_NOFL2")
            e("buffer_store_dword v232, off, s[8:11], s34 sc1")
            e("K1_NOFL2:")
        e("s_mov_b64 exec, s[56:57]")
        e("K1_NOFL:")
        e("s_mov_b32 s48, s28")
        return L, [], []
    if o['stamp']:
        e("s_waitcnt vmcnt(0)")
        e("s_memtime s[64:65]"); e("s_memrealtime s[66:67]")
        e("s_waitcnt lgkmcnt(0)")
        e("s_cmp_eq_u32 s28, 0"); e("s_cbranch_scc0 K1_END")
        e("s_add_u32 s68, s54, 0x8100000"); e("s_addc_u32 s69, s55, 0"); e("s_mov_b32 s70, 0x100000"); e("s_mov_b32 s71, 0x20000")
        for k, r in enumerate([60, 64, 62, 66]): e(f"v_mov_b32 v{232+k}, s{r}")
        e("s_lshl_b32 s33, s2, 4"); e("v_mov_b32 v236, s33")
        e("buffer_store_dwordx4 v[232:235], v236, s[68:71], 0 offen")
        for k in range(8): e(f"v_mov_b32 v{244+k}, s{72+2*k}")
        e("s_lshl_b32 s33, s2, 5"); e("s_add_u32 s33, s33, 0x10000"); e("v_mov_b32 v236, s33")
        e("buffer_store_dwordx4 v[244:247], v236, s[68:71], 0 offen")
        e("buffer_store_dwordx4 v[248:251], v236, s[68:71], 0 offen offset:16")
    e("K1_END:")
    e("s_endpgm")
    return L, kernel_desc(name, 288, 256), []
```

```python
from gen_common import *
import hazard, struct
M16 = "v_mfma_f32_16x16x32_bf16"
fb = lambda x: hex(struct.unpack('<I', struct.pack('<f', x))[0])
OWN = 49152
MXE = 114688
OWNML = MXE + 4096
ACT = 0

def gen_tail(o, it14, it15, W):
    O = 0; S = 128; P = [160, 176]; NEGM = 192; RING = 208; KA = 232; VA = 236; DV = 244; LS = 248; MREF = 252
    aO = 128
    FUSED = o.get('fusedk')
    CS = ' sc1' if (FUSED and o.get('csc1', True)) else ''
    T = []; t = T.append
    def stamp(k):
        if o['stamp'] and not (o.get('st15') and k in (3, 4)): t(f"s_memrealtime s[{80+2*k}:{81+2*k}]")
    def S_(fn):
        buf = []; fn(buf.append); T.extend(buf)
    S_(lambda e: srd(e, 12, 's4', 's5', WF_OFF, 262144))
    t("s_mul_i32 s60, s51, 2048000")
    t(f"s_add_u32 s61, s60, {G_OFF:#x}"); S_(lambda e: srd(e, 24, 's4', 's5', 's61', 2048000))
    t(f"s_add_u32 s61, s60, {U_OFF:#x}"); S_(lambda e: srd(e, 28, 's4', 's5', 's61', 2048000))
    t("s_mov_b32 s34, 2560"); t("s_mov_b32 s35, 0x20000")
    t("s_mov_b32 s38, 4096000"); t("s_mov_b32 s39, 0x20000")
    t("s_mov_b32 s42, 4096000"); t("s_mov_b32 s43, 0x20000")
    S_(lambda e: srd(e, 16, 's4', 's5', OP_OFF, 64*16*16384))
    S_(lambda e: srd(e, 20, 's4', 's5', ML_OFF, 64*16*256))
    t("s_lshl_b32 s62, s52, 7"); t("s_lshl_b32 s60, s53, 5"); t("s_add_u32 s62, s62, s60")
    t("s_lshl_b32 s64, s49, 1"); t("s_add_u32 s64, s64, s50")
    t("v_mbcnt_lo_u32_b32 v254, -1, 0"); t("v_mbcnt_hi_u32_b32 v254, -1, v254")
    t("v_lshlrev_b32 v247, 4, v254")
    t("v_and_b32 v246, 31, v254"); t("v_lshlrev_b32 v246, 4, v246")
    t("v_lshrrev_b32 v255, 5, v254")
    t("s_lshl_b32 s60, s48, 1"); t("v_add_u32 v255, s60, v255")
    t("v_lshlrev_b32 v255, 2, v255"); t("v_add_u32 v255, s62, v255")
    t("v_lshl_add_u32 v244, v255, 9, v246")
    t("v_subrev_u32 v245, 1024, v244")
    t("s_lshl_b32 s60, s48, 15"); t("v_add_u32 v254, s60, v247")
    t("s_add_u32 s61, s60, 16384"); t("s_lshl_b32 s66, s50, 14"); t("s_add_u32 s66, s66, 131072")
    t("s_cmp_eq_u32 s49, 1"); t("s_cselect_b32 s61, s66, s61")
    t("v_add_u32 v255, s61, v247")
    t("K2_HEADEND_PLACEHOLDER") if False else None
    head = list(T); T.clear()
    DWR = [192, 196, 200, 204, 232]
    cl = []
    for i in range(8):
        if i < 2: cl.append((f"buffer_load_dwordx4 {vr(S+4*i,4)}, v245, s[24:27], 0 offen offset:{512*i}{CS}", ('G', i)))
        else: cl.append((f"buffer_load_dwordx4 {vr(S+4*i,4)}, v244, s[24:27], 0 offen offset:{512*(i-2)}{CS}", ('G', i)))
    for i in range(4): cl.append((f"buffer_load_dwordx4 {vr(P[0]+4*i,4)}, v244, s[28:31], 0 offen offset:{512*i}{CS}", ('U', i)))
    for i in range(5): cl.append((f"buffer_load_dwordx4 {vr(DWR[i],4)}, v246, s[32:35], 0 offen offset:{512*i}", ('DW', i)))
    def owr(idx):
        return f"ds_write_b128 v{254 if idx < 16 else 255}, {ar(aO+4*idx,4)} offset:{(idx%16)*1024}"
    w2 = []
    for m in range(8):
        for a in range(4):
            pre = []
            if m % 4 == 0:
                pre = [f"s_lshl_b32 s{66+a}, s48, 16", f"s_add_u32 s{66+a}, s{66+a}, {a*16384 + 8192 + (m>>2)*4096}"]
            w2.append((pre, f"buffer_load_dwordx4 {ar((a*8+m)*4,4)}, v247, s[12:15], s{66+a} offen offset:{(m&3)*1024}{CS}", ('W2', m, a)))
    resume = list(head) + sum([pre + [txt] for pre, txt, tag in w2], []) + [txt for txt, tag in cl]
    out = list(head)
    if o.get('st15'): out = ["s_memtime s[86:87]"] + out
    nm = 0
    step14 = o.get('w2s14', 4)
    dwl = [c for c in cl if c[1][0] == 'DW'] if o.get('dwearly', True) else []
    cl = [c for c in cl if c not in dwl]
    for x in it14:
        out.append(x)
        if x.startswith('v_mfma'):
            nm += 1
            if dwl and nm >= 50 and nm % 4 == 2:
                txt, tag = dwl.pop(0); out.append(txt); W.issue('vm', tag)
            elif nm > 66 and nm % step14 == 2 and w2:
                pre, txt, tag = w2.pop(0); out += pre; out.append(txt); W.issue('vm', tag)
    if o.get('st15'): out.append("s_memtime s[88:89]")
    lastS = max(i for i, x in enumerate(it15) if x.startswith('v_cvt_pk') or x.startswith('v_exp') or x.startswith('v_add_f32') or x.startswith('v_pk_add'))
    ci = 0; nm = 0; wr = 0
    bar_done = False
    for i, x in enumerate(it15):
        out.append(x)
        if not bar_done and i >= 6 and not x.startswith('v_mfma'):
            out.append("s_barrier"); bar_done = True
        if i <= lastS and i % o.get('w2s15', 4) == 1 and w2:
            pre, txt, tag = w2.pop(0); out += pre; out.append(txt); W.issue('vm', tag)
        if x.startswith('v_mfma'):
            nm += 1
            if i > lastS and nm % o.get('pvstep', 4) == 2 % o.get('pvstep', 4):
                if w2:
                    pre, txt, tag = w2.pop(0); out += pre; out.append(txt); W.issue('vm', tag)
                elif ci < len(cl):
                    txt, tag = cl[ci]; ci += 1
                    out.append(txt); W.issue('vm', tag)
            if nm % 2 == 0:
                dt_ok = (nm - 9) // 4
                if wr < 2*dt_ok and wr < 32 and dt_ok >= 1:
                    out.append(owr(wr)); wr += 1
    while w2:
        pre, txt, tag = w2.pop(0); out += pre; out.append(txt); W.issue('vm', tag)
    while ci < len(cl):
        txt, tag = cl[ci]; ci += 1; out.append(txt); W.issue('vm', tag)
    T.extend(out)
    if o['stamp']: t("s_memtime s[98:99]")
    stamp(0)
    lred = []
    for sw in ("v_permlane16_swap_b32", "v_permlane32_swap_b32"):
        for qt in range(4): lred.append(f"v_mov_b32 v{236+qt}, v{LS+qt}")
        lred.append("s_nop 1")
        for qt in range(4): lred.append(f"{sw} v{LS+qt}, v{236+qt}")
        lred.append("s_nop 1")
        for qt in range(4): lred.append(f"v_add_f32 v{LS+qt}, v{LS+qt}, v{236+qt}")
    if o.get('pkadd'):
        for qt in range(4): t(f"v_add_f32 v{LS+qt}, v{224+2*qt}, v{225+2*qt}")
    T.extend(lred)
    resume += lred + ["s_nop 7"] + [owr(i) for i in range(32)] + ["s_branch K2_POSTB"]
    t("s_nop 7")
    while wr < 32:
        t(owr(wr)); wr += 1
    t("K2_POSTB:")
    t("s_waitcnt lgkmcnt(0)")
    t("s_barrier")
    t("s_lshl_b32 s60, s65, 7"); t("s_lshl_b32 s61, s64, 2"); t("s_add_u32 s60, s60, s61")
    if FUSED: t("s_add_u32 s60, s60, 16")
    t("buffer_load_dword v241, off, s[44:47], s60 sc1"); W.issue('vm', 'WORD')
    w1 = []
    for m in range(8):
        for a in range(4):
            pre = []
            if m % 4 == 0:
                pre = [f"s_lshl_b32 s{66+a}, s48, 16", f"s_add_u32 s{66+a}, s{66+a}, {a*16384 + (m>>2)*4096}"]
            w1.append((pre, f"buffer_load_dwordx4 {ar(128+(a*8+m)*4,4)}, v247, s[12:15], s{66+a} offen offset:{(m&3)*1024}{CS}", ('W1', m, a)))
    def pload(n=1, lst=None):
        lst = pend if lst is None else lst
        for _ in range(n):
            if not lst: return
            pre, txt, tag = lst.pop(0)
            T.extend(pre); t(txt); W.issue('vm', tag)
    t("v_lshrrev_b32 v240, 1, v247")
    t("s_lshl_b32 s60, s48, 10"); t(f"s_add_u32 s60, s60, {MXE}"); t("v_add_u32 v240, s60, v240")
    t(f"ds_write_b64 v240, {vr(LS+2,2)}")
    t("v_max_f32 v238, v248, v249"); t("v_max3_f32 v238, v238, v250, v251")
    t("v_add_f32 v239, v248, v249"); t("v_add_f32 v239, v239, v250"); t("v_add_f32 v239, v239, v251")
    t("v_max_f32 v238, v238, v239")
    t("s_mov_b32 s57, 0x71800000")
    t("v_cmp_ngt_f32 vcc, s57, v239")
    t("s_nop 1")
    t("s_cmp_lg_u64 vcc, 0")
    t("s_cselect_b32 s57, 1, 0")
    t("v_mov_b32 v238, s57")
    t(f"s_lshl_b32 s57, s48, 2"); t(f"s_add_u32 s57, s57, {MXE + 8192}"); t("v_mov_b32 v239, s57")
    t("ds_write_b32 v239, v238")
    t("v_xor_b32 v254, 0x10000, v254")
    t("s_mov_b32 s57, 0x4000"); t("s_cmp_eq_u32 s49, 1"); t("s_cselect_b32 s60, s57, 0x10000")
    t("v_xor_b32 v255, s60, v255")
    bufs = [P[1], RING]
    def rd(b):
        for k in range(4):
            idx = 4*b + k
            t(f"ds_read_b128 {vr(bufs[b%2]+4*k,4)}, v{254 if idx < 16 else 255} offset:{(idx%16)*1024}")
    rd(0); rd(1)
    for b in range(8):
        t(f"s_waitcnt lgkmcnt({4 if b < 7 else 0})")
        for k in range(4):
            d = O + 4*(4*b+k); s = bufs[b%2] + 4*k
            t(f"v_pk_add_f32 v[{d}:{d+1}], v[{d}:{d+1}], v[{s}:{s+1}]")
            t(f"v_pk_add_f32 v[{d+2}:{d+3}], v[{d+2}:{d+3}], v[{s+2}:{s+3}]")
        if b + 2 < 8: rd(b+2)
        pload(o.get('w1x', 1), w1)
    t("s_barrier")
    t("v_xor_b32 v240, 0x800, v240")
    t(f"ds_read_b64 v[236:237], v240")
    t(f"v_mov_b32 v239, {MXE + 8192}")
    t("ds_read_b128 v[232:235], v239") if False else t("ds_read_b128 v[212:215], v239")
    stamp(1)
    for m in range(8):
        for tt in range(2):
            a = 16*m + 4*tt; b = a + 8
            t(f"v_cvt_pk_bf16_f32 v{a}, v{a}, v{a+1}")
            t(f"v_cvt_pk_bf16_f32 v{a+1}, v{a+2}, v{a+3}")
            t(f"v_cvt_pk_bf16_f32 v{a+2}, v{b}, v{b+1}")
            t(f"v_cvt_pk_bf16_f32 v{a+3}, v{b+2}, v{b+3}")
    t("v_mbcnt_lo_u32_b32 v208, -1, 0"); t("v_mbcnt_hi_u32_b32 v208, -1, v208")
    t("v_and_b32 v209, 15, v208")
    t("v_lshrrev_b32 v210, 4, v208")
    t("s_mul_i32 s60, s51, 4000"); t("s_add_u32 s60, s60, s62")
    t("v_add_u32 v211, s60, v209"); t("v_lshlrev_b32 v211, 9, v211")
    t("v_lshl_add_u32 v211, v210, 3, v211")
    t("s_lshl_b32 s60, s48, 7"); t("v_add_u32 v242, s60, v211")
    t("v_add_u32 v243, 8192, v242")
    n = W.need('vm', ['WORD'])
    t(f"s_waitcnt vmcnt({n}) lgkmcnt(0)")
    W.drain('lgkm')
    t("v_or_b32 v212, v212, v213"); t("v_or_b32 v214, v214, v215"); t("v_or_b32 v212, v212, v214")
    t("s_nop 0")
    t("v_readfirstlane_b32 s57, v212")
    t("s_nop 3")
    t("s_andn2_b32 s57, s57, s54")
    t("s_cmp_lg_u32 s57, 0")
    t("s_cbranch_scc1 K2_SLOW")
    t(f"v_add_f32 v{LS}, v{LS}, v236"); t(f"v_add_f32 v{LS+1}, v{LS+1}, v237")
    t("s_cmp_eq_u32 s64, s53")
    t("s_cbranch_scc0 K2_PUBG")
    t(f"v_add_u32 v254, {OWN}, v247")
    for m in range(8):
        for tt in range(2):
            t(f"ds_write_b128 v254, {vr(16*m+4*tt,4)} offset:{(m*2+tt)*1024}")
    t("v_lshlrev_b32 v255, 3, v209"); t(f"v_add_u32 v255, {OWNML}, v255")
    for tt in range(2):
        t(f"v_mov_b32 v{212+2*tt}, v{MREF+tt}"); t(f"v_mov_b32 v{213+2*tt}, v{LS+tt}")
        t(f"ds_write_b64 v255, v[{212+2*tt}:{213+2*tt}] offset:{128*tt}")
    t("s_branch K2_PUBD")
    t("K2_PUBG:")
    t("s_lshl_b32 s60, s52, 7"); t("s_lshl_b32 s61, s64, 5"); t("s_add_u32 s60, s60, s61")
    t("s_cmp_lt_u32 s60, 4000")
    t("s_cbranch_scc0 K2_PUBD")
    t("s_lshl_b32 s60, s65, 2"); t("s_add_u32 s60, s60, s64"); t("s_lshl_b32 s60, s60, 2"); t("s_add_u32 s60, s60, s53")
    t("s_lshl_b32 s61, s60, 14")
    t("v_lshlrev_b32 v255, 3, v209")
    for tt in range(2):
        t(f"v_mov_b32 v{212+2*tt}, v{MREF+tt}"); t(f"v_mov_b32 v{213+2*tt}, v{LS+tt}")
    t("v_readfirstlane_b32 s57, v241")
    t("s_nop 3"); t("s_xor_b32 s57, s57, s3" if FUSED else "s_and_b32 s57, s57, 15")
    t("s_cmp_eq_u32 s57, s63")
    t("s_cbranch_scc1 K2_PUBL" if o.get('l2pub', True) else "s_nop 0")
    for lbl, fl in (("", " sc1"), ("K2_PUBL", (" " + o['l2fl']) if o.get('l2fl') else "")):
        if lbl: t(f"{lbl}:")
        t("s_lshl_b32 s61, s60, 14")
        for m in range(8):
            for tt in range(2):
                f = m*2 + tt
                if f % 4 == 0 and f: t("s_add_u32 s61, s61, 4096")
                t(f"buffer_store_dwordx4 {vr(16*m+4*tt,4)}, v247, s[16:19], s61 offen offset:{(f%4)*1024}{fl}")
        t("s_lshl_b32 s61, s60, 8")
        t("v_cmp_gt_u32 vcc, 16, v208")
        t("s_and_saveexec_b64 s[70:71], vcc")
        for tt in range(2):
            t(f"buffer_store_dwordx2 v[{212+2*tt}:{213+2*tt}], v255, s[20:23], s61 offen offset:{128*tt}{fl}")
        t("s_mov_b64 exec, s[70:71]")
        if not lbl: t("s_branch K2_PUBD")
    t("K2_PUBD:")
    def atomic(lbl):
        t("s_cmp_eq_u32 s48, 0")
        t(f"s_cbranch_scc0 {lbl}")
        t("s_lshl_b32 s60, s65, 7"); t("s_lshl_b32 s61, s53, 2"); t("s_add_u32 s60, s60, s61")
        t("s_mov_b32 s61, s3" if FUSED else "s_or_b32 s61, s63, 0x80"); t("v_mov_b32 v215, s61")
        t("v_cmp_eq_u32 vcc, 0, v208")
        t("s_and_saveexec_b64 s[70:71], vcc")
        t("buffer_store_dword v215, off, s[44:47], s60 sc1")
        t("s_mov_b64 exec, s[70:71]")
        t(f"{lbl}:")
    t("s_cmp_lt_u32 s62, 4000")
    t("s_cbranch_scc1 K2_VALID")
    t("s_waitcnt vmcnt(0) lgkmcnt(0)")
    t("s_barrier")
    atomic("K2_NOATOM0")
    t("s_branch K2_FIN")
    t("K2_VALID:")
    stamp(2)
    pend = []
    for a in range(4):
        for tt in range(2):
            pend.append(([], f"buffer_load_dwordx2 {vr(176+(a*2+tt)*2,2)}, v{242+tt}, s[36:39], 0 offen offset:{32*a}", ('X', a, tt)))
    pend = w1 + pend
    w1 = []
    opp = [0]
    def cload():
        opp[0] += 1
        if opp[0] % o.get('convstep', 1) == 0: pload(1)
    W.issue('vm', 'PUB')
    DWF = 0; CV = 40; GT = 72; GR = S; UR = P[0]
    t("s_nop 1")
    for i in range(5):
        for k in range(4):
            t(f"v_lshlrev_b32 v{DWF+8*i+2*k}, 16, v{DWR[i]+k}")
            t(f"v_and_b32 v{DWF+8*i+2*k+1}, 0xffff0000, v{DWR[i]+k}")
        cload()
    def pubflag():
        n = W.need('vm', ['PUB'])
        t(f"s_waitcnt vmcnt({n}) lgkmcnt(0)")
        t("s_barrier")
        atomic("K2_NOATOM")
    for rho in range(8):
        if rho == o.get('pubat', 8): pubflag()
        g = GT + 8*(rho % 2)
        for k in range(4):
            t(f"v_lshlrev_b32 v{g+2*k}, 16, v{GR+4*rho+k}")
            t(f"v_and_b32 v{g+2*k+1}, 0xffff0000, v{GR+4*rho+k}")
        for i in range(4):
            tap = rho - i
            if 0 <= tap <= 4:
                for k in range(4):
                    d = f"v[{CV+8*i+2*k}:{CV+8*i+2*k+1}]"
                    a_ = f"v[{g+2*k}:{g+2*k+1}]"; b_ = f"v[{DWF+8*tap+2*k}:{DWF+8*tap+2*k+1}]"
                    if tap == 0: t(f"v_pk_mul_f32 {d}, {a_}, {b_}")
                    else: t(f"v_pk_fma_f32 {d}, {a_}, {b_}, {d}")
                cload()
    if o.get('pubat', 8) >= 8: pubflag()
    t("v_and_b32 v212, 31, v208")
    t("v_lshrrev_b32 v213, 2, v212")
    t("v_and_b32 v214, 3, v212")
    t("v_and_b32 v215, 1, v213"); t("v_lshl_or_b32 v215, v215, 2, v214")
    t("v_lshrrev_b32 v216, 5, v208"); t("s_lshl_b32 s60, s48, 1"); t("v_add_u32 v216, s60, v216")
    t("v_lshrrev_b32 v217, 2, v216")
    t("v_and_b32 v216, 3, v216"); t("v_lshlrev_b32 v216, 2, v216")
    t("v_lshl_add_u32 v216, v214, 4, v216")
    t("v_lshl_add_u32 v213, v213, 1, v217")
    t("v_lshlrev_b32 v213, 10, v213"); t(f"v_add_u32 v213, {ACT + 16*1024}, v213")
    k0 = -2.0*1.4426950408889634*0.7978845608028654
    t(f"v_mov_b32 v88, {fb(k0)}"); t(f"v_mov_b32 v90, {fb(k0*0.044715)}"); t("v_mov_b32 v92, 1.0")
    for i in range(4):
        g = GT + 8*(i % 2)
        for k in range(4):
            t(f"v_lshlrev_b32 v{g+2*k}, 16, v{UR+4*i+k}")
            t(f"v_and_b32 v{g+2*k+1}, 0xffff0000, v{UR+4*i+k}")
        tmp = [96+2*k for k in range(4)]
        X = lambda k: f"v[{g+2*k}:{g+2*k+1}]"; Tt = lambda k: f"v[{tmp[k]}:{tmp[k]+1}]"
        for k in range(4): t(f"v_pk_mul_f32 {Tt(k)}, {X(k)}, {X(k)}")
        for k in range(4): t(f"v_pk_fma_f32 {Tt(k)}, {Tt(k)}, v[90:91], v[88:89] op_sel_hi:[1,0,0]")
        cload()
        for k in range(4): t(f"v_pk_mul_f32 {Tt(k)}, {Tt(k)}, {X(k)}")
        for k in range(4): t(f"v_exp_f32 v{tmp[k]}, v{tmp[k]}"); t(f"v_exp_f32 v{tmp[k]+1}, v{tmp[k]+1}")
        cload()
        for k in range(4): t(f"v_pk_add_f32 {Tt(k)}, {Tt(k)}, v[92:93] op_sel_hi:[1,0]")
        for k in range(4): t(f"v_rcp_f32 v{tmp[k]}, v{tmp[k]}"); t(f"v_rcp_f32 v{tmp[k]+1}, v{tmp[k]+1}")
        cload()
        for k in range(4): t(f"v_pk_mul_f32 {X(k)}, {X(k)}, {Tt(k)}")
        for k in range(4):
            t(f"v_pk_mul_f32 v[{g+2*k}:{g+2*k+1}], v[{g+2*k}:{g+2*k+1}], v[{CV+8*i+2*k}:{CV+8*i+2*k+1}]")
        for k in range(4):
            t(f"v_cvt_pk_bf16_f32 v{GR+4*i+k}, v{g+2*k}, v{g+2*k+1}")
        t(f"v_add_u32 v218, {i}, v216")
        t("v_xor_b32 v218, v218, v215")
        t("v_lshl_add_u32 v218, v218, 4, v213")
        t(f"ds_write_b128 v218, {vr(GR+4*i,4)}")
        cload()
        if i == o.get('pollat', 1):
            t("s_lshl_b32 s57, s65, 7")
            t("buffer_load_dwordx4 v[232:235], off, s[44:47], s57 sc1"); W.issue('vm', 'POLL0')
    if o.get('convstep', 1) == 1: pload(100)
    t("v_lshlrev_b32 v212, 4, v210"); t("v_xor_b32 v212, v247, v212"); t("v_xor_b32 v213, 64, v212")
    t("s_waitcnt lgkmcnt(0)")
    t("s_barrier")
    stamp(3)
    ACC = 96
    RB = [216, 220, 224, 228]
    def gemm(part, lst=None):
        Wl = Waiter()
        evs = []
        for m in range(8):
            for tt in range(2):
                evs.append((8*(m-1) + 4*tt, 1, 'rd', m, tt))
            for a in range(4):
                for tt in range(2): evs.append((8*m + 2*a + tt, 0, 'mf', m, a, tt))
        evs.sort(key=lambda x: (x[0], x[1]))
        for x in evs:
            if x[2] == 'rd':
                m, tt = x[3], x[4]
                ring = RB[(m*2+tt) % 4]
                if part == 1: t(f"ds_read_b128 {vr(ring,4)}, v{212+(m&1)} offset:{ACT + ((8+m)*2+tt)*1024}")
                else: t(f"ds_read_b128 {vr(ring,4)}, v247 offset:{ACT + (m*2+tt)*1024}")
                Wl.issue('lgkm', (m, tt))
            else:
                m, a, tt = x[3], x[4], x[5]
                ring = RB[(m*2+tt) % 4]
                n = Wl.need('lgkm', [(m, tt)])
                nv = W.need('vm', [('W2' if part == 1 else 'W1', m, a)])
                if nv is not None and o.get('atomslack', True): pass
                ws_ = ([f"vmcnt({nv})"] if nv is not None else []) + ([f"lgkmcnt({n})"] if n is not None else [])
                if ws_: t("s_waitcnt " + ' '.join(ws_))
                acc = vr(ACC + (a*2+tt)*4, 4)
                c = '0' if (part == 1 and m == 0) else acc
                wreg = ar((a*8+m)*4, 4) if part == 1 else ar(128+(a*8+m)*4, 4)
                t(f"{M16} {acc}, {wreg}, {vr(ring,4)}, {c}")
                if lst is not None and tt == 1 and a % 2 == 1: pload(1, lst)
    n = W.need('vm', ['POLL0'])
    if n is not None: t(f"s_waitcnt vmcnt({n})")
    t("K2_POLL:")
    if FUSED:
        for k in range(4): t(f"v_xor_b32 v{232+k}, s3, v{232+k}")
        t("v_or_b32 v232, v232, v233"); t("v_or_b32 v234, v234, v235"); t("v_or_b32 v232, v232, v234")
        t("s_nop 0"); t("v_readfirstlane_b32 s61, v232"); t("s_nop 3"); t("s_cmp_eq_u32 s61, 0")
    else:
        t("v_and_b32 v232, v232, v233"); t("v_and_b32 v234, v234, v235"); t("v_and_b32 v232, v232, v234")
        t("s_nop 0"); t("v_readfirstlane_b32 s61, v232"); t("s_nop 3"); t("s_bitcmp1_b32 s61, 7")
    t("s_cbranch_scc1 K2_POLLD")
    t("s_sleep 1")
    t("buffer_load_dwordx4 v[232:235], off, s[44:47], s57 sc1")
    t("s_waitcnt vmcnt(0)")
    t("s_add_u32 s101, s101, 1"); t("s_cmp_lt_u32 s101, 0x400000"); t("s_cbranch_scc1 K2_POLL")
    t("K2_POLLD:")
    stamp(4)
    PR = 0; MLR = 64
    t("v_lshlrev_b32 v215, 3, v209")
    for k in range(1, 4):
        t(f"s_add_u32 s60, s53, {k}"); t("s_and_b32 s60, s60, 3")
        t("s_lshl_b32 s61, s65, 2"); t("s_add_u32 s61, s61, s53"); t("s_lshl_b32 s61, s61, 2"); t(f"s_add_u32 s{56+k}, s61, s60")
    pp = []
    for k in range(1, 4):
        for tt in range(2):
            pp.append(([f"s_lshl_b32 s60, s{56+k}, 8"], f"buffer_load_dwordx2 {vr(MLR+(k*2+tt)*2,2)}, v215, s[20:23], s60 offen offset:{128*tt} sc1", ('ML', k, tt)))
    for k in range(1, 4):
        for ff in range(4):
            pre = [f"s_lshl_b32 s61, s{56+k}, 14", "s_lshl_b32 s60, s48, 12", "s_add_u32 s61, s61, s60"] if ff == 0 else []
            pp.append((pre, f"buffer_load_dwordx4 {vr(PR+((k-1)*4+ff)*4,4)}, v247, s[16:19], s61 offen offset:{ff*1024} sc1", ('PP', k, ff)))
    pload(6, pp)
    pload(o.get('pp0', 2), pp)
    gemm(1, pp)
    pload(100, pp)
    stamp(5)
    t(f"v_add_u32 v216, {OWNML}, v215")
    for tt in range(2): t(f"ds_read_b64 {vr(MLR+tt*2,2)}, v216 offset:{128*tt}")
    t("s_lshl_b32 s60, s48, 12"); t(f"s_add_u32 s60, s60, {OWN}"); t("v_add_u32 v216, s60, v247")
    for ff in range(4): t(f"ds_read_b128 {vr(48+4*ff,4)}, v216 offset:{ff*1024}")
    n = W.need('vm', [('ML', 3, 1)])
    t(f"s_waitcnt vmcnt({n}) lgkmcnt(0)")
    CF = 80
    for tt in range(2):
        for k in range(4): t(f"v_log_f32 v{128+k}, v{MLR+(k*2+tt)*2+1}")
        t("s_nop 0")
        for k in range(4): t(f"v_add_f32 v{128+k}, v{128+k}, v{MLR+(k*2+tt)*2}")
        t("v_max_f32 v132, v128, v129"); t("v_max3_f32 v132, v132, v130, v131")
        for k in range(4): t(f"v_sub_f32 v{128+k}, v{128+k}, v132")
        for k in range(4): t(f"v_exp_f32 v{128+k}, v{128+k}")
        for k in range(4): t(f"v_sub_f32 v{CF+2*(k*2+tt)}, v{MLR+(k*2+tt)*2}, v132")
        t("v_add_f32 v128, v128, v129"); t("v_add_f32 v130, v130, v131")
        for k in range(4): t(f"v_exp_f32 v{CF+2*(k*2+tt)}, v{CF+2*(k*2+tt)}")
        t("v_add_f32 v128, v128, v130")
        t("v_rcp_f32 v128, v128")
        t("s_nop 0")
        for k in range(4): t(f"v_mul_f32 v{CF+2*(k*2+tt)}, v{CF+2*(k*2+tt)}, v128")
    MA = 128; GT2 = 160
    for k in range(4):
        for ff in range(4):
            tt = ff & 1
            src = 48 + 4*ff if k == 0 else PR + ((k-1)*4+ff)*4
            if k > 0:
                n = W.need('vm', [('PP', k, ff)])
                if n is not None: t(f"s_waitcnt vmcnt({n})")
            for q in range(4):
                g = GT2 + 2*((ff*4+q) % 8)
                t(f"v_lshlrev_b32 v{g}, 16, v{src+q}")
                t(f"v_and_b32 v{g+1}, 0xffff0000, v{src+q}")
                d = f"v[{MA+(ff*4+q)*2}:{MA+(ff*4+q)*2+1}]"
                c = f"v[{CF+2*(k*2+tt)}:{CF+2*(k*2+tt)+1}]"
                if k == 0: t(f"v_pk_mul_f32 {d}, v[{g}:{g+1}], {c} op_sel_hi:[1,0]")
                else: t(f"v_pk_fma_f32 {d}, v[{g}:{g+1}], {c}, {d} op_sel_hi:[1,0,1]")
            pload(1)
    pload(100)
    t("s_lshl_b32 s60, s48, 12"); t(f"s_add_u32 s60, s60, {ACT}"); t("v_add_u32 v216, s60, v247")
    for ff in range(4):
        for q in range(4): t(f"v_cvt_pk_bf16_f32 v{ff*4+q}, v{MA+(ff*4+q)*2}, v{MA+(ff*4+q)*2+1}")
        t(f"ds_write_b128 v216, {vr(ff*4,4)} offset:{ff*1024}")
    t("s_waitcnt lgkmcnt(0)")
    t("s_barrier")
    stamp(6)
    gemm(0)
    nv = W.need('vm', [('X', 3, 1)])
    if nv is not None: t(f"s_waitcnt vmcnt({nv})")
    t("s_nop 7")
    for a in range(4):
        for tt in range(2):
            acc = ACC + (a*2+tt)*4; xr = 176 + (a*2+tt)*2
            for q in range(2):
                g = 128 + 4*((a*2+tt) % 4) + 2*q
                t(f"v_lshlrev_b32 v{g}, 16, v{xr+q}"); t(f"v_and_b32 v{g+1}, 0xffff0000, v{xr+q}")
                t(f"v_pk_add_f32 v[{acc+2*q}:{acc+2*q+1}], v[{acc+2*q}:{acc+2*q+1}], v[{g}:{g+1}]")
            d = 2*(a*2+tt)
            t(f"v_cvt_pk_bf16_f32 v{d}, v{acc}, v{acc+1}"); t(f"v_cvt_pk_bf16_f32 v{d+1}, v{acc+2}, v{acc+3}")
            t(f"buffer_store_dwordx2 v[{d}:{d+1}], v{242+tt}, s[40:43], 0 offen offset:{32*a}{' '+o['ost'] if o.get('ost') else ''}")
    t("K2_FIN:")
    if o['stamp']:
        t("s_waitcnt vmcnt(0)")
        t("s_memtime s[94:95]"); t("s_memrealtime s[96:97]")
        t("s_waitcnt lgkmcnt(0)")
        t("s_cmp_eq_u32 s48, 0"); t("s_cbranch_scc0 K2_END")
        t("s_add_u32 s68, s4, 0x8000000"); t("s_addc_u32 s69, s5, 0"); t("s_mov_b32 s70, 0x100000"); t("s_mov_b32 s71, 0x20000")
        regs = [72, 76, 98, 94, 74, 78, 80, 96, 82, 84, 86, 88, 90, 92, 101, 100]
        for k, r in enumerate(regs): t(f"v_mov_b32 v{128+k}, s{r}")
        t("s_lshl_b32 s60, s2, 6"); t("v_mov_b32 v150, s60")
        for k in range(4): t(f"buffer_store_dwordx4 v[{128+4*k}:{131+4*k}], v150, s[68:71], 0 offen offset:{16*k}")
    return hazard.autofix(T), resume
```

```python
from gen_common import *
from tl import TL
import hazard, struct
SLOT = 16384
EX = 131072
fb = lambda x: hex(struct.unpack('<I', struct.pack('<f', x))[0])

def gen_k1(opt=None):
    o = dict(D=6, stamp=False, st='', npre=2, nln=4)
    if opt: o.update(opt)
    D = o['D']; ST = (' ' + o['st']) if o['st'] else ''
    FUSED = o.get('fused')
    name = FUSED if FUSED else 'prep_kernel'
    L = []; e = L.append
    B = 0; ACC = [64, 128]; KA = 192; KA2 = 200; VN = 208; VN2 = 216; DV = 224; DS = 228; XB = 200
    aR = 0; R = 8
    def stamp(T, k):
        if o['stamp']: T.append(f"s_memrealtime s[{72+2*k}:{73+2*k}]")
    L += kernel_header(name)
    e("s_cmp_ge_u32 s2, 256")
    e("s_cbranch_scc1 K2_END" if FUSED else "s_cbranch_scc1 K1_END")
    e("s_load_dwordx16 s[36:51], s[0:1], 0")
    e("s_load_dwordx2 s[52:53], s[0:1], 64")
    e("s_load_dwordx2 s[54:55], s[0:1], 88")
    FF = FUSED and o.get('fastfin', True) and not o.get('ct')
    if FUSED: e("s_load_dwordx2 s[58:59], s[0:1], 80")
    if FF: e("s_load_dwordx2 s[100:101], s[0:1], 72")
    if FF: e("s_mov_b32 s98, 0")
    if FUSED and not FF: e("s_mov_b32 s101, 0")
    if o['stamp']:
        e("s_memtime s[60:61]"); e("s_memrealtime s[62:63]")
    e("v_lshrrev_b32 v232, 6, v0")
    e("v_and_b32 v240, 63, v0")
    e("v_lshrrev_b32 v241, 5, v240")
    e("v_and_b32 v242, 31, v240")
    e("v_readfirstlane_b32 s28, v232")
    e("s_and_b32 s29, s28, 1")
    e("s_lshr_b32 s30, s28, 1")
    e("s_lshl_b32 s31, s28, 12")
    CT = o.get('ct')
    if CT: e("s_mov_b32 s35, s2")
    else: e("s_sub_u32 s35, s2, 125"); e("s_cmp_lt_u32 s2, 125"); e("s_cselect_b32 s35, s2, s35")
    e("s_lshl_b32 s33, s28, 1")
    for k in range(4):
        e(f"v_add_u32 v234, {2*k}, v241"); e("v_and_b32 v234, 3, v234"); e("v_lshlrev_b32 v234, 2, v234")
        e(f"s_add_u32 s34, s33, {k>>1}"); e("s_and_b32 s34, s34, 3")
        e("v_or_b32 v234, s34, v234"); e("v_xor_b32 v234, v242, v234"); e("v_lshlrev_b32 v234, 4, v234")
        e("v_lshl_add_u32 v234, v241, 9, v234")
        e(f"v_add_u32 v{DS+k}, s31, v234")
    e("s_waitcnt lgkmcnt(0)")
    if FUSED:
        e("s_mov_b32 s4, s58"); e("s_mov_b32 s5, s59"); e("s_mov_b32 s6, 256"); e("s_mov_b32 s7, 0x20000")
        e("s_or_b32 s33, s2, s28"); e("s_cmp_eq_u32 s33, 0"); e("s_cbranch_scc0 K1_NOTAG")
        e("s_memrealtime s[56:57]"); e("s_waitcnt lgkmcnt(0)"); e("s_or_b32 s56, s56, 1")
        e("v_mov_b32 v234, s56")
        e("buffer_store_dword v234, off, s[4:7], 0 sc1")
        e("K1_NOTAG:")
    e("s_cmp_lt_u32 s2, 250"); e("s_cbranch_scc0 K1_NOX")
    srd(e, 16, 's36', 's37', 0, 8000*512)
    e("s_lshl_b32 s32, s35, 14" if CT else "s_lshl_b32 s32, s35, 15")
    for half in range(1 if CT else 2):
        e(f"s_add_u32 m0, s31, {EX + half*SLOT:#x}")
        if half: e("s_add_u32 s32, s32, 16384")
        else: e("s_nop 0")
        for k in range(4):
            e(f"buffer_load_dwordx4 v{DS+k}, s[16:19], s32 offen offset:{k*1024} lds")
    PU = FUSED and o.get('pfug', True) and o.get('ugfirst', True) and not CT
    PT = PU and o.get('pftask', False)
    if PT:
        pass
    elif PU:
        SPL = o.get('pfsplit', False)
        e("v_lshlrev_b32 v232, 4, v240")
        e("s_cmp_lt_u32 s2, 128"); e("s_cbranch_scc0 K1_PFB" if SPL else "s_cbranch_scc0 K1_NOX")
        e("s_lshr_b32 s33, s2, 3"); e("s_lshl_b32 s33, s33, 2"); e("s_add_u32 s33, s33, s28")
        e("s_getpc_b64 s[56:57]")
        e("K1_PCREF:")
        e(f"s_add_u32 s56, s56, K1_NOX-K1_PCREF"); e("s_addc_u32 s57, s57, 0")
        e("s_lshl_b32 s34, s33, 10"); e("v_add_u32 v233, s34, v232")
        e(f"s_cmp_lt_u32 s34, {o.get('ipfbytes', 61440)}"); e("s_cbranch_scc0 K1_NOIPF")
        e("global_load_dwordx4 v[252:255], v233, s[56:57]")
        e("K1_NOIPF:")
        e("s_mov_b32 s8, s40"); e("s_mov_b32 s9, s41"); e("s_mov_b32 s10, 131072"); e("s_mov_b32 s11, 0x20000")
        e("s_lshl_b32 s34, s33, 11")
        e("buffer_load_dwordx4 v[100:103], v232, s[8:11], s34 offen")
        e("buffer_load_dwordx4 v[104:107], v232, s[8:11], s34 offen offset:1024")
        if o.get('uppf', True):
            e("s_mov_b32 s8, s46"); e("s_mov_b32 s9, s47"); e("s_mov_b32 s10, 262144")
            e("v_lshl_add_u32 v233, v241, 10, 0"); e("v_lshl_add_u32 v233, v242, 4, v233")
            e(f"s_lshl_b32 s34, s33, 12"); e(f"s_add_u32 s34, s34, {512 if o.get('ufirst', False) else 0}")
            e("buffer_load_dwordx4 v[88:91], v233, s[8:11], s34 offen")
            e("buffer_load_dwordx4 v[92:95], v233, s[8:11], s34 offen offset:2048")
            e("s_mov_b32 s10, 131072")
        if SPL:
            e("s_branch K1_NOX"); e("K1_PFB:"); e("s_mov_b32 s10, 131072"); e("s_mov_b32 s11, 0x20000")
        e("s_and_b32 s33, s2, 7"); e("s_cmp_lt_u32 s33, 2"); e("s_cbranch_scc1 K1_NOX")
        e("s_lshr_b32 s34, s2, 3")
        if SPL: e("s_and_b32 s34, s34, 15")
        e("s_add_u32 s56, s52, 131072"); e("s_addc_u32 s57, s53, 0")
        e("s_cmp_ge_u32 s33, 6"); e("s_cselect_b32 s8, s50, s44"); e("s_cselect_b32 s9, s51, s45"); e("s_cselect_b32 s56, s56, s42"); e("s_cselect_b32 s57, s57, s43")
        e("s_cmp_lt_u32 s34, 8"); e("s_cselect_b32 s8, s8, s56"); e("s_cselect_b32 s9, s9, s57")
        e("s_and_b32 s34, s34, 7"); e("s_lshl_b32 s34, s34, 14"); e("s_lshl_b32 s33, s28, 12"); e("s_add_u32 s34, s34, s33")
        for k in range(4): e(f"buffer_load_dwordx4 v[{108+4*k}:{111+4*k}], v232, s[8:11], s34 offen offset:{k*1024}")
    else:
        if FUSED and o.get('ipf', True):
            e("s_getpc_b64 s[56:57]")
            e("K1_PCREF:")
            e(f"s_add_u32 s56, s56, {o.get('ipfbase', 'K1_NOX')}-K1_PCREF"); e("s_addc_u32 s57, s57, 0")
            e("s_lshr_b32 s33, s2, 3"); e("s_lshl_b32 s33, s33, 2"); e("s_add_u32 s33, s33, s28"); e("s_lshl_b32 s33, s33, 10")
            e(f"s_cmp_lt_u32 s33, {o.get('ipfbytes', 61440)}"); e("s_cbranch_scc0 K1_NOIPF")
            e("v_lshlrev_b32 v232, 4, v240"); e("v_add_u32 v232, s33, v232")
            e("global_load_dwordx4 v[252:255], v232, s[56:57]")
            e("K1_NOIPF:")
        if o.get('wpf', False):
            e("s_lshr_b32 s33, s2, 3"); e("s_lshl_b32 s33, s33, 2"); e("s_add_u32 s33, s33, s28")
            e("v_lshlrev_b32 v232, 4, v240")
            e("s_mov_b32 s8, s40"); e("s_mov_b32 s9, s41"); e("s_mov_b32 s10, 131072"); e("s_mov_b32 s11, 0x20000")
            e("s_lshl_b32 s34, s33, 10")
            e("buffer_load_dwordx4 v[100:103], v232, s[8:11], s34 offen")
            if o.get('wpf') != 'k':
                e("s_mov_b32 s8, s46"); e("s_mov_b32 s9, s47"); e("s_mov_b32 s10, 262144")
                e("s_lshl_b32 s34, s33, 11")
                e("buffer_load_dwordx4 v[104:107], v232, s[8:11], s34 offen")
                e("buffer_load_dwordx4 v[108:111], v232, s[8:11], s34 offen offset:1024")
        if FUSED and o.get('tlb', False):
            e("s_load_dwordx2 s[56:57], s[0:1], 72"); e("s_waitcnt lgkmcnt(0)")
            e("s_cmp_eq_u32 s28, 1"); e("s_cbranch_scc0 K1_NOTLB")
            srd(e, 8, 's54', 's55', OP_OFF, 64*16*16384)
            e("v_lshlrev_b32 v232, 21, v240")
            e("buffer_load_dword v112, v232, s[8:11], 0 offen")
            e("s_mov_b32 s8, s56"); e("s_mov_b32 s9, s57"); e("s_mov_b32 s10, 4096000")
            e("buffer_load_dword v113, v232, s[8:11], 0 offen")
            e("K1_NOTLB:")
        if o.get('pf', True):
            e("s_and_b32 s33, s2, 7"); e("s_cmp_lt_u32 s33, 2"); e("s_cbranch_scc1 K1_NOPF")
            e("s_lshr_b32 s34, s2, 3")
            e("s_cmp_ge_u32 s33, 6"); e("s_cbranch_scc1 K1_PF2")
            e("s_cmp_lt_u32 s34, 16"); e("s_cselect_b32 s8, s44, s42"); e("s_cselect_b32 s9, s45, s43")
            e("s_and_b32 s34, s34, 15"); e("s_lshl_b32 s34, s34, 13")
            e("s_branch K1_PF3")
            e("K1_PF2:")
            e("s_add_u32 s56, s52, 131072"); e("s_addc_u32 s57, s53, 0")
            e("s_cmp_lt_u32 s34, 16"); e("s_cselect_b32 s8, s50, s56"); e("s_cselect_b32 s9, s51, s57")
            e("s_and_b32 s34, s34, 15"); e("s_lshl_b32 s34, s34, 13")
            e("K1_PF3:")
            e("s_mov_b32 s10, 131072"); e("s_mov_b32 s11, 0x20000")
            e("v_lshlrev_b32 v232, 4, v240"); e("s_lshl_b32 s33, s28, 11"); e("s_add_u32 s34, s34, s33")
            e("buffer_load_dwordx4 v[244:247], v232, s[8:11], s34 offen")
            e("buffer_load_dwordx4 v[248:251], v232, s[8:11], s34 offen offset:1024")
            e("K1_NOPF:")
        pass
    e("K1_NOX:")
    first, second = ("K1_UG", "K1_Q") if o.get('ugfirst', True) else ("K1_Q", "K1_UG")
    if CT:
        e("s_cmp_lt_u32 s2, 250"); e("s_cbranch_scc1 K1_CT")
    else:
        e("s_cmp_lt_u32 s2, 125"); e(f"s_cbranch_scc1 {first}")
        e("s_cmp_lt_u32 s2, 250"); e(f"s_cbranch_scc1 {second}")
    e("s_cmp_lt_u32 s2, 254"); e("s_cbranch_scc1 K1_W1")
    e("s_branch K1_W2")

    def k_addr(T, dst, dst2, base_lines):
        t = T.append
        t("v_and_b32 v234, 3, v242"); t("v_lshlrev_b32 v234, 2, v234"); t("v_bfe_u32 v235, v242, 2, 2")
        t("v_or_b32 v234, v234, v235"); t("v_lshlrev_b32 v236, 9, v242")
        for x in base_lines: t(x)
        t("v_add_u32 v236, s33, v236")
        for jj in range(8):
            t(f"v_add_u32 v235, {2*jj}, v241"); t("v_xor_b32 v235, v235, v234")
            t(f"v_lshl_add_u32 v{dst+jj}, v235, 4, v236")
            if dst2 is not None: t(f"v_add_u32 v{dst2+jj}, 0x10000, v{dst+jj}")
    def ka_setup(T): k_addr(T, KA, KA2, ["s_lshl_b32 s33, s30, 14"])
    def xb_setup(T): k_addr(T, XB, None, ["s_lshl_b32 s33, s29, 14", f"s_add_u32 s33, s33, {EX}", "s_lshl_b32 s34, s30, 8", "s_add_u32 s33, s33, s34"])
    def vn_setup(T):
        t = T.append
        t("v_bfe_u32 v234, v240, 4, 1"); t("v_bfe_u32 v235, v240, 2, 2"); t("v_bfe_u32 v236, v240, 1, 1")
        t("v_lshl_add_u32 v236, v234, 1, v236"); t("v_and_b32 v237, 1, v240"); t("v_lshlrev_b32 v237, 3, v237")
        t("v_lshl_add_u32 v238, v241, 3, v235"); t("v_lshl_add_u32 v237, v238, 9, v237")
        t("s_lshl_b32 s33, s30, 8"); t("v_add_u32 v237, s33, v237")
        for a in range(4):
            for u in range(2):
                t(f"v_lshl_add_u32 v238, v241, 1, {u}"); t("v_lshl_or_b32 v238, v235, 2, v238")
                t(f"v_add_u32 v239, {4*a}, v236"); t("v_xor_b32 v238, v238, v239")
                t(f"v_lshl_add_u32 v{VN+a*2+u}, v238, 4, v237")
                if u: t(f"v_add_u32 v{VN+a*2+u}, {4*512}, v{VN+a*2+u}")
                t(f"v_add_u32 v{VN2+a*2+u}, 0x10000, v{VN+a*2+u}")
    def dma_voff(T, stride1024):
        t = T.append
        if not stride1024:
            for k in range(4): t(f"v_mov_b32 v{DV+k}, v{DS+k}")
            return
        t("s_lshl_b32 s33, s28, 1")
        for k in range(4):
            t(f"v_add_u32 v234, {2*k}, v241"); t("v_and_b32 v234, 3, v234"); t("v_lshlrev_b32 v234, 2, v234")
            t(f"s_add_u32 s34, s33, {k>>1}"); t("s_and_b32 s34, s34, 3")
            t("v_or_b32 v234, s34, v234"); t("v_xor_b32 v234, v242, v234"); t("v_lshlrev_b32 v234, 4, v234")
            t("v_lshl_add_u32 v234, v241, 10, v234"); t("s_lshl_b32 s34, s28, 13"); t(f"s_add_u32 s34, s34, {k*1024}")
            t(f"v_add_u32 v{DV+k}, s34, v234")
    def tile_dma(n, srdn, soff):
        if o.get('nodma'): return []
        r = [(f"s_add_u32 m0, s31, {(n%8)*SLOT:#x}", False), (f"s_mov_b32 s32, {soff:#x}", False)]
        for k in range(4):
            r.append((f"buffer_load_dwordx4 v{DV+k}, s[{srdn}:{srdn+3}], s32 offen offset:{k*1024} lds", True))
        return r
    def emit_tile(out, W, n, srdn, soff):
        for txt, vm in tile_dma(n, srdn, soff):
            out.append(txt)
            if vm: W.issue('vm', ('T', n))
    def out_rows(T, W, srdn, tag, OB):
        t = T.append
        t("v_lshlrev_b32 v232, 4, v240"); t(f"s_add_u32 s33, s31, {EX}"); t("v_add_u32 v232, s33, v232")
        for half in range(2):
            for k in range(4):
                t(f"ds_read_b128 {vr(OB+(half*4+k)*4,4)}, v232 offset:{half*SLOT + k*1024}")
        t("s_lshl_b32 s32, s35, 15")
        for half in range(2):
            if half: t("s_add_u32 s32, s32, 16384")
            for k in range(4):
                t(f"s_waitcnt lgkmcnt({7 - (half*4+k)})")
                t(f"buffer_store_dwordx4 {vr(OB+(half*4+k)*4,4)}, v{DS+k}, s[{srdn}:{srdn+3}], s32 offen offset:{k*1024}{ST}")
                W.issue('vm', (tag, half, k))
        W.drain('lgkm')
    def ln(out, W, tiles):
        nw = W.need('vm', [('X', 7)])
        out.append(f"s_waitcnt vmcnt({nw})")
        out.append("s_barrier")
        stamp(out, 0)
        for s in range(8):
            out.append(f"ds_read_b128 {vr(64+4*s,4)}, v{XB+s}")
        body = []; b = body.append
        b("s_mov_b32 s34, 0x3f803f80")
        for k in range(4): b(f"v_mov_b32 v{232+k}, 0")
        for r in range(32):
            if r % 4 == 0: b(f"s_waitcnt lgkmcnt({7 - r//4})")
            b(f"v_dot2_f32_bf16 v{232+(r&1)}, v{64+r}, s34, v{232+(r&1)}")
            b(f"v_dot2_f32_bf16 v{234+(r&1)}, v{64+r}, v{64+r}, v{234+(r&1)}")
        b("s_nop 2")
        b("v_add_f32 v232, v232, v233"); b("v_add_f32 v234, v234, v235")
        b("v_mov_b32 v233, v232"); b("v_mov_b32 v235, v234"); b("s_nop 1")
        b("v_permlane32_swap_b32 v232, v233"); b("v_permlane32_swap_b32 v234, v235"); b("s_nop 1")
        b("v_add_f32 v232, v232, v233"); b("v_add_f32 v233, v234, v235")
        b(f"ds_write_b64 v{XB}, v[232:233]")
        b(f"v_xor_b32 v238, 256, v{XB}")
        b("s_waitcnt lgkmcnt(0)")
        b("s_barrier")
        b("ds_read_b64 v[234:235], v238")
        b("s_waitcnt lgkmcnt(0)")
        b("v_add_f32 v232, v232, v234"); b("v_add_f32 v234, v233, v235")
        b("v_mul_f32 v232, 0x3b800000, v232"); b("v_mul_f32 v234, 0x3b800000, v234")
        b("v_fma_f32 v234, -v232, v232, v234"); b("v_max_f32 v234, 0, v234"); b("v_add_f32 v234, 0x3727c5ac, v234")
        b("v_rsq_f32 v234, v234"); b("s_nop 0")
        b("v_mul_f32 v236, v232, v234"); b("v_sub_f32 v236, 0, v236")
        b("s_barrier")
        for r in range(32):
            t = 244 + 2*(r % 4)
            b(f"v_lshlrev_b32 v{t}, 16, v{64+r}")
            b(f"v_and_b32 v{t+1}, 0xffff0000, v{64+r}")
            b(f"v_pk_fma_f32 v[{t}:{t+1}], v[{t}:{t+1}], v[234:235], v[236:237] op_sel_hi:[1,0,0]")
            b(f"v_cvt_pk_bf16_f32 v{64+r}, v{t}, v{t+1}")
            if r % 4 == 3: b(f"ds_write_b128 v{XB+r//4}, {vr(64+r-3,4)}")
        b("s_waitcnt lgkmcnt(0)")
        b("s_barrier")
        b("s_lshl_b32 s33, s30, 8")
        for jj in range(8): b(f"v_subrev_u32 v{244+jj}, s33, v{XB+jj}")
        for s in range(16):
            b(f"ds_read_b128 {vr(B+4*s,4)}, v{244+(s&7)} offset:{(s>>3)*256}")
        flat = []
        for (n, sn, so) in tiles:
            tl_ = [(txt, vm, n) for txt, vm in tile_dma(n, sn, so)]
            flat.append(tl_[:3])
            for x in tl_[3:]: flat.append([x])
        gap = max(1, len(body) // (len(flat) + 1)) if flat else 1
        fi = 0
        for i, ins in enumerate(body):
            out.append(ins)
            if fi < len(flat) and i % gap == gap - 1:
                for txt, vm, n in flat[fi]:
                    out.append(txt)
                    if vm: W.issue('vm', ('T', n))
                fi += 1
        while fi < len(flat):
            for txt, vm, n in flat[fi]:
                out.append(txt)
                if vm: W.issue('vm', ('T', n))
            fi += 1
        out.append("s_waitcnt lgkmcnt(0)")
        W.drain('lgkm')
    def phase(W, p, kind, later, fill=None, f0=3, bar_lgkm=None):
        tl = TL(W)
        acc = ACC[p]
        cnt = [0]
        for a in range(4):
            sig = 4*p + a
            tb = 16*a - D - 1
            tl.add(tb, 'bar', needvm=[('T', 2*sig), ('T', 2*sig+1)], needlgkm=(bar_lgkm or {}).get(sig, []), prio=1)
            k = 0
            for (n, sn, so) in later.get(sig, []):
                for txt, vm in tile_dma(n, sn, so):
                    sp = o.get('dsp', 2)
                    if vm:
                        tl.add(tb + 1 + sp*k, 'vm', txt, tag=('T', n), prio=7); k += 1
                    else:
                        tl.add(tb + 1 + sp*k, 'txt', txt, prio=6)
            for m in range(16):
                tm = 16*a + m
                ri = cnt[0] % R; cnt[0] += 1
                ring = aR + 4*ri
                if kind == 'X':
                    j = m; slot = 2*a
                    base = (KA if slot < 4 else KA2) + (j & 7)
                    off = (slot % 4)*SLOT + (j >> 3)*256
                    tag = (p, a, m)
                    tl.add(tm - D, 'lds', f"ds_read_b128 {ar(ring,4)}, v{base} offset:{off}", tag=tag, prio=2)
                    c = vr(acc+16*a,16) if j else '0'
                    tl.add(tm, 'mfma', f"v_mfma_f32_32x32x16_bf16 {vr(acc+16*a,16)}, {ar(ring,4)}, {vr(B+4*j,4)}, {c}", need=[tag], prio=0)
                else:
                    tt, s, aa = m >> 3, (m >> 2) & 1, m & 3
                    tau = 2*a + tt; slot = tau
                    tags = []
                    for u in range(2):
                        base = (VN if slot < 4 else VN2) + aa*2 + u
                        off = (slot % 4)*SLOT + 16*s*512
                        tag = (p, a, m, u); tags.append(tag)
                        tl.add(tm - D, 'lds', f"ds_read_b64_tr_b16 {ar(ring+2*u,2)}, v{base} offset:{off}", tag=tag, prio=2)
                    c = vr(acc+16*aa,16) if (tau or s) else '0'
                    tl.add(tm, 'mfma', f"v_mfma_f32_32x32x16_bf16 {vr(acc+16*aa,16)}, {ar(ring,4)}, {vr(B+4*(2*tau+s),4)}, {c}", need=tags, prio=0)
        if fill:
            n = len(fill)
            for i, ins in enumerate(fill):
                tl.add(f0 + (i*(64-f0))/n, 'txt', ins, prio=4)
        return tl
    def pack_swap(out, src, dst, swap=True, scale=None):
        if scale and o.get('unpk', True):
            for k in range(16): out.append(f"v_mul_f32 v{src+k}, v{src+k}, v236")
        elif scale:
            for k in range(8):
                out.append(f"v_pk_mul_f32 v[{src+2*k}:{src+2*k+1}], v[{src+2*k}:{src+2*k+1}], {scale} op_sel_hi:[1,0]")
        for k in range(8):
            out.append(f"v_cvt_pk_bf16_f32 v{dst+k}, v{src+2*k}, v{src+2*k+1}")
        if swap:
            out.append("s_nop 1")
            for b in (0, 4):
                out.append(f"v_permlane32_swap_b32 v{dst+b}, v{dst+b+2}")
                out.append(f"v_permlane32_swap_b32 v{dst+b+1}, v{dst+b+3}")
    def exchange(out, W, acc, kind, xaflag=False):
        out.append("s_nop 15")
        out.append("v_lshlrev_b32 v232, 4, v240")
        out.append(f"s_lshl_b32 s33, s29, 14"); out.append(f"s_add_u32 s33, s33, {EX}")
        out.append("v_add_u32 v233, s33, v232")
        out.append(f"s_lshl_b32 s34, s30, {13 if kind=='Y' else 11}")
        out.append("v_add_u32 v232, s34, v233")
        for a in range(4):
            d = 244 if a % 2 == 0 else 0
            pack_swap(out, acc+16*a, d)
            for s in range(2):
                f = (2*a + s) if kind == 'Y' else (4*a + s)
                out.append(f"ds_write_b128 v232, {vr(d+4*s,4)} offset:{f*1024}")
        if xaflag:
            n = W.need('vm', [x for x in W.q['vm'] if isinstance(x, tuple) and x[0] == 'XS'] + ['TAG'])
            if n is not None: out.append(f"s_waitcnt vmcnt({n})")
        out.append("s_waitcnt lgkmcnt(0)")
        out.append("s_barrier")
        if xaflag:
            out.append("v_readfirstlane_b32 s3, v243"); out.append("s_or_b32 s33, s28, 0");
            out.append("s_cmp_eq_u32 s28, 0"); out.append("s_cbranch_scc0 K1_Q_NOXF")
            out.append("s_cmp_lg_u32 s3, 0"); out.append("s_cbranch_scc0 K1_Q_NOXF")
            out += cap(lambda e: srd(e, 16, 's54', 's55', FL_OFF, FL_SIZE))
            out.append("s_lshl_b32 s33, s35, 7"); out.append(f"s_add_u32 s33, s33, {FLQ + 4}")
            out.append("v_mov_b32 v238, s3"); out.append("v_cmp_eq_u32 vcc, 0, v240"); out.append("s_and_saveexec_b64 s[56:57], vcc")
            out.append("buffer_store_dword v238, off, s[16:19], s33 sc1")
            out.append("s_mov_b64 exec, s[56:57]")
            out.append("K1_Q_NOXF:")
        for f in range(16):
            out.append(f"ds_read_b128 {vr(B+4*f,4)}, v233 offset:{f*1024}")
        out.append("s_waitcnt lgkmcnt(0)")
        W.drain('lgkm')
    def narrow(out, W, rowbase_bytes, slice_sreg):
        for x in ["v_lshrrev_b32 v232, 3, v240", "v_lshlrev_b32 v232, 9, v232", "v_and_b32 v233, 7, v240",
                  "v_lshl_add_u32 v232, v233, 4, v232", f"s_lshl_b32 s33, {slice_sreg}, 7", "s_lshl_b32 s34, s28, 15",
                  "s_add_u32 s33, s33, s34", f"s_add_u32 s33, s33, {rowbase_bytes}", "v_add_u32 v232, s33, v232",
                  "s_lshl_b32 s34, s28, 13", f"s_add_u32 s34, s34, {EX}"]: out.append(x)
        for i in range(8):
            out.append(f"s_add_u32 m0, s34, {i*1024}")
            out.append(f"s_mov_b32 s32, {i*4096}")
            out.append(f"buffer_load_dwordx4 v232, s[16:19], s32 offen lds")
            W.issue('vm', ('N', i))
    def narrow_read(out, W):
        n = W.need('vm', [('N', 7)])
        out.append(f"s_waitcnt vmcnt({n})")
        out.append("s_barrier")
        for x in ["v_bfe_u32 v232, v240, 2, 2", "v_lshl_add_u32 v232, v241, 3, v232", "v_lshlrev_b32 v232, 7, v232",
                  "v_bfe_u32 v233, v240, 4, 1", "v_lshl_add_u32 v232, v233, 5, v232", "v_and_b32 v233, 3, v240",
                  "v_lshl_add_u32 v232, v233, 3, v232", "s_lshl_b32 s33, s29, 6", f"s_add_u32 s33, s33, {EX}",
                  "v_add_u32 v232, s33, v232"]: out.append(x)
        for s in range(16):
            for u in range(2):
                out.append(f"ds_read_b64_tr_b16 {vr(B+4*s+2*u,2)}, v232 offset:{s*2048+u*512}")
            if s % 4 == 3: out.append("s_waitcnt lgkmcnt(0)")
        W.drain('lgkm')
    def finish(task_lines, label):
        if CT and label in ("K1_Q", "K1_UG"): return
        fixed = hazard.autofix(task_lines)
        e(f"{label}:")
        L.extend(fixed)
        e("s_branch K1_FIN")
    def cap(fn):
        buf = []; fn(buf.append); return buf
    std_later = lambda sn: {2: [(8, sn, 0), (9, sn, SLOT)], 3: [(10, sn, 2*SLOT), (11, sn, 3*SLOT)], 4: [(12, sn, 4*SLOT), (13, sn, 5*SLOT)], 5: [(14, sn, 6*SLOT), (15, sn, 7*SLOT)]}
    npre = o['npre']
    AZ = [f"v_accvgpr_write_b32 a{128+r}, 0" for r in range(128)] if (FF and o.get('lean', True)) else []
    def prefetch_block(T, W):
        t = T.append
        t("s_lshr_b32 s33, s2, 3"); t("s_lshl_b32 s33, s33, 2"); t("s_add_u32 s33, s33, s28")
        t("v_lshlrev_b32 v232, 4, v240")
        t("s_getpc_b64 s[56:57]")
        t("K1_PCREF:")
        t("s_sub_u32 s56, s56, K1_PCREF-K1_NOX"); t("s_subb_u32 s57, s57, 0")
        t(f"s_min_u32 s34, s33, {o.get('ipfbytes', 61440)//1024 - 1}"); t("s_lshl_b32 s34, s34, 10"); t("v_add_u32 v233, s34, v232")
        t("global_load_dwordx4 v[148:151], v233, s[56:57]"); W.issue('vm', ('PF', 0))
        t("s_mov_b32 s12, s40"); t("s_mov_b32 s13, s41"); t("s_mov_b32 s14, 131072"); t("s_mov_b32 s15, 0x20000")
        t("s_lshl_b32 s34, s33, 11")
        t("buffer_load_dwordx4 v[152:155], v232, s[12:15], s34 offen"); W.issue('vm', ('PF', 1))
        t("buffer_load_dwordx4 v[156:159], v232, s[12:15], s34 offen offset:1024"); W.issue('vm', ('PF', 2))
        t("v_lshl_add_u32 v233, v241, 10, 0"); t("v_lshl_add_u32 v233, v242, 4, v233")
        t(f"s_lshl_b32 s34, s33, 12"); t(f"s_add_u32 s34, s34, {512 if o.get('ufirst', False) else 0}")
        t("buffer_load_dwordx4 v[160:163], v233, s[8:11], s34 offen"); W.issue('vm', ('PF', 3))
        t("buffer_load_dwordx4 v[164:167], v233, s[8:11], s34 offen offset:2048"); W.issue('vm', ('PF', 4))
        t("s_and_b32 s33, s2, 7"); t("s_lshr_b32 s34, s2, 3")
        t("s_add_u32 s56, s52, 131072"); t("s_addc_u32 s57, s53, 0")
        t("s_cmp_ge_u32 s33, 6"); t("s_cselect_b32 s12, s50, s44"); t("s_cselect_b32 s13, s51, s45"); t("s_cselect_b32 s56, s56, s42"); t("s_cselect_b32 s57, s57, s43")
        t("s_cmp_lt_u32 s34, 8"); t("s_cselect_b32 s12, s12, s56"); t("s_cselect_b32 s13, s13, s57")
        t("s_and_b32 s34, s34, 7"); t("s_lshl_b32 s34, s34, 14"); t("s_lshl_b32 s33, s28, 12"); t("s_add_u32 s34, s34, s33")
        for k in range(4):
            t(f"buffer_load_dwordx4 v[{132+4*k}:{135+4*k}], v232, s[12:15], s34 offen offset:{k*1024}"); W.issue('vm', ('PF', 5+k))
    def azero(T, force=False):
        if AZ and (force or not o.get('azph0')): T.extend(AZ)


    if CT:
        EXB = EX + 16384
        Bq = 64
        ACCQ, ACCK, ACCG, ACCU = 64, 96, 128, 160
        VN4 = 208; VN42 = 212; XO = 216; XB8 = 244
        W = Waiter(); T = []; t = T.append
        for s_ in range(4): W.issue('vm', ('X', s_))
        dma_voff(T, True)
        T += cap(lambda e: (srd(e, 8, 's38', 's39', 0, 131072), srd(e, 12, 's40', 's41', 0, 131072), srd(e, 20, 's46', 's47', 0, 262144),
                            srd(e, 24, 's54', 's55', QF_OFF, 500*8192)))
        def tinfo(n):
            if n < 8: return (8, n*SLOT, DS)
            if n < 16: return (12, (n-8)*SLOT, DS)
            if n < 24: return (20, (n-16)*32768 + 512, DV)
            return (20, (n-24)*32768, DV)
        def tdma(n):
            sn, so, dv = tinfo(n)
            r = [(f"s_add_u32 m0, s31, {(n%8)*SLOT:#x}", False), (f"s_mov_b32 s32, {so:#x}", False)]
            for k in range(4): r.append((f"buffer_load_dwordx4 v{dv+k}, s[{sn}:{sn+3}], s32 offen offset:{k*1024} lds", True))
            return r
        def temit(n):
            for txt, vm in tdma(n):
                t(txt)
                if vm: W.issue('vm', ('T', n))
        temit(0); temit(1)
        t("v_and_b32 v234, 3, v242"); t("v_lshlrev_b32 v234, 2, v234"); t("v_bfe_u32 v235, v242, 2, 2"); t("v_or_b32 v234, v234, v235")
        t("v_lshlrev_b32 v236, 9, v242"); t(f"v_add_u32 v237, {EX}, v236")
        t("s_lshl_b32 s33, s30, 8"); t("v_add_u32 v238, s33, v237")
        t("s_lshl_b32 s33, s29, 3")
        for i in range(4):
            t(f"s_add_u32 s34, s33, {2*i}"); t("v_add_u32 v235, s34, v241"); t("v_xor_b32 v235, v235, v234"); t(f"v_lshl_add_u32 v{XO+i}, v235, 4, v238")
        t("s_lshl_b32 s33, s28, 14"); t("v_add_u32 v238, s33, v236")
        for jj in range(8):
            t(f"v_add_u32 v235, {2*jj}, v241"); t("v_xor_b32 v235, v235, v234")
            t(f"v_lshl_add_u32 v{KA+jj}, v235, 4, v238"); t(f"v_add_u32 v{KA2+jj}, 0x10000, v{KA+jj}")
        t("v_bfe_u32 v234, v240, 4, 1"); t("v_bfe_u32 v235, v240, 2, 2"); t("v_bfe_u32 v236, v240, 1, 1")
        t("v_lshl_add_u32 v236, v234, 1, v236"); t("v_and_b32 v237, 1, v240"); t("v_lshlrev_b32 v237, 3, v237")
        t("v_lshl_add_u32 v238, v241, 3, v235"); t("v_lshl_add_u32 v237, v238, 9, v237")
        t("s_lshl_b32 s33, s30, 8"); t("v_add_u32 v237, s33, v237")
        t("s_lshl_b32 s33, s29, 3")
        for aa in range(2):
            for u in range(2):
                t(f"v_lshl_add_u32 v238, v241, 1, {u}"); t("v_lshl_or_b32 v238, v235, 2, v238")
                t(f"s_add_u32 s34, s33, {4*aa}"); t("v_add_u32 v239, s34, v236"); t("v_xor_b32 v238, v238, v239")
                t(f"v_lshl_add_u32 v{VN4+aa*2+u}, v238, 4, v237")
                if u: t(f"v_add_u32 v{VN4+aa*2+u}, {4*512}, v{VN4+aa*2+u}")
                t(f"v_add_u32 v{VN42+aa*2+u}, 0x10000, v{VN4+aa*2+u}")
        nw = W.need('vm', [('X', 3)]); t(f"s_waitcnt vmcnt({nw})"); t("s_barrier")
        stamp(T, 0)
        for i in range(4): t(f"ds_read_b128 {vr(64+4*i,4)}, v{XO+i}")
        T += cap(lambda e: srd(e, 16, 's54', 's55', XA_OFF, 8000*512))
        body = []; b = body.append
        b("s_mov_b32 s34, 0x3f803f80")
        for k in range(4): b(f"v_mov_b32 v{232+k}, 0")
        for r in range(16):
            if r % 4 == 0: b(f"s_waitcnt lgkmcnt({3 - r//4})")
            b(f"v_dot2_f32_bf16 v{232+(r&1)}, v{64+r}, s34, v{232+(r&1)}")
            b(f"v_dot2_f32_bf16 v{234+(r&1)}, v{64+r}, v{64+r}, v{234+(r&1)}")
        b("s_nop 2")
        b("v_add_f32 v232, v232, v233"); b("v_add_f32 v234, v234, v235")
        b("v_mov_b32 v233, v232"); b("v_mov_b32 v235, v234"); b("s_nop 1")
        b("v_permlane32_swap_b32 v232, v233"); b("v_permlane32_swap_b32 v234, v235"); b("s_nop 1")
        b("v_add_f32 v232, v232, v233"); b("v_add_f32 v233, v234, v235")
        b("v_lshlrev_b32 v238, 3, v242"); b(f"v_add_u32 v238, {EXB}, v238")
        b("s_lshl_b32 s33, s28, 8"); b("v_add_u32 v239, s33, v238")
        b("ds_write_b64 v239, v[232:233]")
        b("s_waitcnt lgkmcnt(0)"); b("s_barrier")
        for k in range(4): b(f"ds_read_b64 v[{80+2*k}:{81+2*k}], v238 offset:{256*k}")
        b("s_waitcnt lgkmcnt(0)")
        b("v_add_f32 v80, v80, v82"); b("v_add_f32 v81, v81, v83"); b("v_add_f32 v84, v84, v86"); b("v_add_f32 v85, v85, v87")
        b("v_add_f32 v232, v80, v84"); b("v_add_f32 v234, v81, v85")
        b("v_mul_f32 v232, 0x3b800000, v232"); b("v_mul_f32 v234, 0x3b800000, v234")
        b("v_fma_f32 v234, -v232, v232, v234"); b("v_max_f32 v234, 0, v234"); b("v_add_f32 v234, 0x3727c5ac, v234")
        b("v_rsq_f32 v234, v234"); b("s_nop 0")
        b("v_mul_f32 v236, v232, v234"); b("v_sub_f32 v236, 0, v236")
        for r in range(16):
            tt_ = 244 + 2*(r % 4)
            b(f"v_lshlrev_b32 v{tt_}, 16, v{64+r}"); b(f"v_and_b32 v{tt_+1}, 0xffff0000, v{64+r}")
            b(f"v_pk_fma_f32 v[{tt_}:{tt_+1}], v[{tt_}:{tt_+1}], v[234:235], v[236:237] op_sel_hi:[1,0,0]")
            b(f"v_cvt_pk_bf16_f32 v{64+r}, v{tt_}, v{tt_+1}")
            if r % 4 == 3: b(f"ds_write_b128 v{XO+r//4}, {vr(64+r-3,4)}")
        b("s_lshl_b32 s33, s28, 14"); b(f"s_sub_u32 s33, {EX}, s33")
        for jj in range(8): b(f"v_add_u32 v{XB8+jj}, s33, v{KA+jj}")
        b("s_waitcnt lgkmcnt(0)"); b("s_barrier")
        for s_ in range(16): b(f"ds_read_b128 {vr(B+4*s_,4)}, v{XB8+(s_&7)} offset:{(s_>>3)*256}")
        b("v_lshlrev_b32 v232, 4, v240"); b(f"s_add_u32 s33, s31, {EX}"); b("v_add_u32 v232, s33, v232")
        for k in range(4): b(f"ds_read_b128 {vr(96+4*k,4)}, v232 offset:{k*1024}")
        flat = []
        for n in range(2, 6):
            tl_ = [(txt, vm, n) for txt, vm in tdma(n)]
            flat.append(tl_[:3])
            for x in tl_[3:]: flat.append([x])
        gap = max(1, (len(body) - 24) // (len(flat) + 1)); fi = 0
        for i, ins in enumerate(body):
            t(ins)
            if fi < len(flat) and i % gap == gap - 1:
                for txt, vm, n in flat[fi]:
                    t(txt)
                    if vm: W.issue('vm', ('T', n))
                fi += 1
        while fi < len(flat):
            for txt, vm, n in flat[fi]:
                t(txt)
                if vm: W.issue('vm', ('T', n))
            fi += 1
        t("s_waitcnt lgkmcnt(0)")
        t("s_lshl_b32 s56, s35, 14")
        for k in range(4):
            t(f"buffer_store_dwordx4 {vr(96+4*k,4)}, v{DS+k}, s[16:19], s56 offen offset:{k*1024}{ST}"); W.issue('vm', ('XS', k))
        stamp(T, 1)
        def flag_store(off_lines, lbl):
            t("s_cmp_eq_u32 s28, 0"); t(f"s_cbranch_scc0 {lbl}")
            for x in off_lines: t(x)
            t("v_mov_b32 v232, s3"); t("v_cmp_eq_u32 vcc, 0, v240"); t("s_and_saveexec_b64 s[56:57], vcc")
            t("buffer_store_dword v232, off, s[8:11], s34 sc1")
            t("s_mov_b64 exec, s[56:57]")
            t(f"{lbl}:")
        fillers = {}
        def step(sig, extra_need=None, after_bar=None):
            p, a = sig >> 2, sig & 3
            need = [('T', 2*sig), ('T', 2*sig+1)] + (extra_need or [])
            nv = W.need('vm', need)
            if nv is not None: t(f"s_waitcnt vmcnt({nv})")
            t("s_barrier")
            if after_bar: after_bar()
            dm = []
            for n in (2*(sig+3), 2*(sig+3)+1):
                if n < 32: dm += [(txt, vm, n) for txt, vm in tdma(n)]
            fl = list(fillers.get(sig, []))
            def some(k_dma, k_fill):
                c = 0
                while dm and c < k_dma:
                    txt, vm, n = dm.pop(0); t(txt)
                    if vm: W.issue('vm', ('T', n)); c += 1
                for _ in range(k_fill):
                    if fl: t(fl.pop(0))
            nf = -(-len(fl) // 8) if fl else 0
            if p != 1:
                acc = {0: ACCQ, 2: ACCG, 3: ACCU}[p]
                idx = 0; seq = []
                for tt in range(2):
                    slot = (2*sig + tt) % 8
                    for s_ in range(2):
                        for aa in range(2):
                            for u in range(2):
                                base = (VN4 if slot < 4 else VN42) + aa*2 + u
                                t(f"ds_read_b64_tr_b16 {ar(4*idx+2*u,2)}, v{base} offset:{(slot%4)*SLOT + 16*s_*512}")
                            seq.append((idx, tt, s_, aa)); idx += 1
                for (idx, tt, s_, aa) in seq:
                    if idx % 2 == 0: t(f"s_waitcnt lgkmcnt({14 - 2*idx - 2 if idx < 6 else 0})")
                    tau = 2*a + tt
                    c = vr(acc+16*aa,16) if (tau or s_) else '0'
                    t(f"v_mfma_f32_32x32x16_bf16 {vr(acc+16*aa,16)}, {ar(4*idx,4)}, {vr(B+4*(2*tau+s_),4)}, {c}")
                    some(1, nf)
            else:
                lbl = f"K1_CT_X{a}"
                t(f"s_cmp_eq_u32 s30, {a & 1}"); t(f"s_cbranch_scc0 {lbl}")
                k = a >> 1; base = KA if k == 0 else KA2
                for half in range(2):
                    for j in range(8): t(f"ds_read_b128 {ar(4*j,4)}, v{base+j} offset:{half*256}")
                    for j in range(8):
                        if j % 2 == 0: t(f"s_waitcnt lgkmcnt({6 - j})")
                        jj = 8*half + j
                        c = vr(ACCK+16*k,16) if jj else '0'
                        t(f"v_mfma_f32_32x32x16_bf16 {vr(ACCK+16*k,16)}, {ar(4*j,4)}, {ar(Bq+4*jj,4)}, {c}")
                t(f"{lbl}:")
            some(100, 1000)
        for sig in range(4): step(sig)
        stamp(T, 2)
        t("s_nop 15")
        t("v_lshlrev_b32 v232, 4, v240"); t(f"v_add_u32 v233, {EXB}, v232"); t("s_lshl_b32 s34, s28, 12"); t("v_add_u32 v232, s34, v233")
        for aa in range(2):
            d = 244 if aa == 0 else 96
            pack_swap(T, ACCQ+16*aa, d)
            for s_ in range(2): t(f"ds_write_b128 v232, {vr(d+4*s_,4)} offset:{(2*aa+s_)*1024}")
        t("s_waitcnt lgkmcnt(0)"); t("s_barrier")
        for f in range(16): t(f"ds_read_b128 {ar(Bq+4*f,4)}, v233 offset:{f*1024}")
        t("s_waitcnt lgkmcnt(0)")
        t("buffer_load_dword v243, off, s[4:7], 0 sc1"); W.issue('vm', 'TAG')
        for sig in range(4, 8): step(sig)
        stamp(T, 3)
        qf = []
        qf.append("s_nop 7"); qf.append("v_mov_b32 v236, 0x3db8aa3b")
        qf += ["s_lshl_b32 s33, s35, 14", "s_lshl_b32 s34, s28, 10", "s_add_u32 s33, s33, s34",
               "v_lshrrev_b32 v252, 4, v242", "v_lshlrev_b32 v252, 13, v252", "v_and_b32 v253, 15, v242", "v_lshl_add_u32 v253, v241, 4, v253",
               "v_lshl_add_u32 v252, v253, 4, v252", "v_add_u32 v252, s33, v252"]
        qst = []
        for k in range(2):
            d = 244 if k == 0 else 64
            pack_swap(qf, ACCK+16*k, d, scale="v[236:237]")
            for s_ in range(2):
                qf.append(f"buffer_store_dwordx4 {vr(d+4*s_,4)}, v252, s[24:27], 0 offen offset:{k*4096 + s_*512 - (4096 if k else 0)}{ST}" if k == 0 else "@K1")
        out2 = []
        cnt = 0
        for x in qf:
            if x == "@K1":
                if cnt == 0: out2.append("v_add_u32 v253, 4096, v252")
                out2.append(f"buffer_store_dwordx4 {vr(64+4*cnt,4)}, v253, s[24:27], 0 offen offset:{cnt*512}{ST}"); cnt += 1
            else: out2.append(x)
        qf = out2
        for x in qf:
            t(x)
            if x.startswith('buffer_store'): W.issue('vm', ('QS', len(W.q['vm'])))
        W.issue('vm', 'QEND'); W.q['vm'].pop()
        qtags = [x for x in W.q['vm'] if isinstance(x, tuple) and x[0] in ('QS', 'XS')]
        step(8)
        step(9)
        def get_tag():
            t("K1_CT_TAGP:")
            t("buffer_load_dword v232, off, s[4:7], 0 sc1"); t("s_waitcnt vmcnt(0)")
            t("v_readfirstlane_b32 s3, v232"); t("s_nop 3"); t("s_cmp_lg_u32 s3, 0"); t("s_cbranch_scc1 K1_CT_TAGD"); t("s_sleep 1"); t("s_branch K1_CT_TAGP")
            t("K1_CT_TAGD:")
        def qflag():
            T.extend(cap(lambda e: srd(e, 8, 's54', 's55', FL_OFF, FL_SIZE)))
            flag_store([f"s_lshl_b32 s34, s35, 7", f"s_add_u32 s34, s34, {FLQ}"], "K1_CT_NOQF")
        step(10, extra_need=qtags + ['TAG'], after_bar=None)
        t("v_readfirstlane_b32 s3, v243")
        t("s_nop 3")
        pend_qflag = True
        t("s_cmp_eq_u32 s28, 0"); t("s_cbranch_scc0 K1_CT_NOQF2")
        t("s_cmp_lg_u32 s3, 0"); t("s_cbranch_scc0 K1_CT_NOQF2")
        T.extend(cap(lambda e: srd(e, 8, 's54', 's55', FL_OFF, FL_SIZE)))
        t(f"s_lshl_b32 s34, s35, 7"); t(f"s_add_u32 s34, s34, {FLQ}")
        t("v_mov_b32 v232, s3"); t("v_cmp_eq_u32 vcc, 0, v240"); t("s_and_saveexec_b64 s[56:57], vcc")
        t("buffer_store_dword v232, off, s[8:11], s34 sc1")
        t("s_mov_b64 exec, s[56:57]")
        t("K1_CT_NOQF2:")
        step(11)
        stamp(T, 4)
        k0 = -2.0*1.4426950408889634*0.7978845608028654
        t("s_nop 7")
        t(f"v_mov_b32 v232, {fb(k0)}"); t(f"v_mov_b32 v234, {fb(k0*0.044715)}"); t("v_mov_b32 v236, 1.0")
        for k in range(4): t(f"v_mov_b32 v{252+k}, 0")
        def gelu(r):
            tt_ = 244 + 2*((r//2) % 4)
            X = f"v[{r}:{r+1}]"; Tt = f"v[{tt_}:{tt_+1}]"
            return [f"v_pk_mul_f32 {Tt}, {X}, {X}", f"v_pk_fma_f32 {Tt}, {Tt}, v[234:235], v[232:233] op_sel_hi:[1,0,0]", f"v_pk_mul_f32 {Tt}, {Tt}, {X}",
                    f"v_exp_f32 v{tt_}, v{tt_}", f"v_exp_f32 v{tt_+1}, v{tt_+1}", f"v_pk_add_f32 {Tt}, {Tt}, v[236:237] op_sel_hi:[1,0]",
                    f"v_rcp_f32 v{tt_}, v{tt_}", f"v_rcp_f32 v{tt_+1}, v{tt_+1}", f"v_pk_mul_f32 {X}, {X}, {Tt}",
                    f"v_pk_add_f32 v[252:253], v[252:253], {X}", f"v_pk_fma_f32 v[254:255], {X}, {X}, v[254:255]"]
        for q in range(4):
            cols = [gelu(ACCG + 8*q + 2*k) for k in range(4)]
            fillers[12+q] = [cols[k][i] for i in range(11) for k in range(4)]
        for sig in range(12, 16): step(sig)
        stamp(T, 5)
        t("v_add_f32 v8, v252, v253"); t("v_add_f32 v10, v254, v255"); t("v_mov_b32 v9, v8"); t("v_mov_b32 v11, v10"); t("s_nop 1")
        t("v_permlane32_swap_b32 v8, v9"); t("v_permlane32_swap_b32 v10, v11"); t("s_nop 1")
        t("v_add_f32 v8, v8, v9"); t("v_add_f32 v9, v10, v11")
        t("v_lshlrev_b32 v12, 3, v242"); t("s_lshl_b32 s33, s28, 8"); t("v_add_u32 v13, s33, v12")
        t("s_barrier")
        t("ds_write_b64 v13, v[8:9]")
        for aa in range(2):
            d = 244 if aa == 0 else 16
            pack_swap(T, ACCU+16*aa, d)
            for s_ in range(2): t(f"ds_write_b128 v{XO+2*aa+s_}, {vr(d+4*s_,4)} offset:16384")
        t("s_waitcnt lgkmcnt(0)"); t("s_barrier")
        for k in range(4): t(f"ds_read_b64 v[{24+2*k}:{25+2*k}], v12 offset:{256*k}")
        t("v_lshlrev_b32 v232, 4, v240"); t(f"s_add_u32 s33, s31, {EX}"); t("v_add_u32 v232, s33, v232")
        for k in range(4): t(f"ds_read_b128 {vr(96+4*k,4)}, v232 offset:{16384 + k*1024}")
        T.extend(cap(lambda e: (srd(e, 12, 's54', 's55', U_OFF, 8000*512), srd(e, 20, 's54', 's55', G_OFF, 8000*512))))
        t("s_lshl_b32 s56, s35, 14")
        t("s_waitcnt lgkmcnt(4)")
        t("v_add_f32 v24, v24, v26"); t("v_add_f32 v25, v25, v27"); t("v_add_f32 v28, v28, v30"); t("v_add_f32 v29, v29, v31")
        t("v_add_f32 v8, v24, v28"); t("v_add_f32 v9, v25, v29")
        t("v_mul_f32 v8, 0x3b800000, v8"); t("v_mul_f32 v9, 0x3b800000, v9")
        t("v_fma_f32 v9, -v8, v8, v9"); t("v_max_f32 v9, 0, v9"); t("v_add_f32 v9, 0x3727c5ac, v9")
        t("v_rsq_f32 v10, v9"); t("s_nop 0"); t("v_mul_f32 v12, v8, v10"); t("v_sub_f32 v12, 0, v12")
        t("s_waitcnt lgkmcnt(0)")
        for k in range(4): t(f"buffer_store_dwordx4 {vr(96+4*k,4)}, v{DS+k}, s[12:15], s56 offen offset:{k*1024}{ST}")
        for aa in range(2):
            for k in range(8):
                r = ACCG + 16*aa + 2*k
                t(f"v_pk_fma_f32 v[{r}:{r+1}], v[{r}:{r+1}], v[10:11], v[12:13] op_sel_hi:[1,0,0]")
            d = 32 + 8*aa
            pack_swap(T, ACCG+16*aa, d)
            for s_ in range(2): t(f"ds_write_b128 v{XO+2*aa+s_}, {vr(d+4*s_,4)}")
        t("s_waitcnt lgkmcnt(0)"); t("s_barrier")
        for k in range(4): t(f"ds_read_b128 {vr(112+4*k,4)}, v232 offset:{k*1024}")
        for k in range(4):
            t(f"s_waitcnt lgkmcnt({3-k})")
            t(f"buffer_store_dwordx4 {vr(112+4*k,4)}, v{DS+k}, s[20:23], s56 offen offset:{k*1024}{ST}")
        stamp(T, 6)
        finish(T, "K1_CT")
    W = Waiter(); T = []
    for s in range(8): W.issue('vm', ('X', s))
    dma_voff(T, False)
    T += cap(lambda e: (srd(e, 8, 's38', 's39', 0, 131072), srd(e, 12, 's40', 's41', 0, 131072),
                        srd(e, 20, 's54', 's55', XA_OFF, 8000*512), srd(e, 24, 's54', 's55', QF_OFF, 500*8192)))
    emit = [(n, 8, n*SLOT) for n in range(8)]
    for (n, sn, so) in emit[:npre]: emit_tile(T, W, n, sn, so)
    xb_setup(T); vn_setup(T)
    azero(T)
    ln(T, W, emit[npre:o['nln']])
    if FF: T.append("buffer_load_dword v243, off, s[4:7], 0 sc1"); W.issue('vm', 'TAG')
    stamp(T, 1)
    ka_setup(T)
    stamp(T, 2)
    T.append("v_lshlrev_b32 v232, 4, v240"); T.append(f"s_add_u32 s33, s31, {EX}"); T.append("v_add_u32 v232, s33, v232")
    for half in range(2):
        for k in range(4):
            T.append(f"ds_read_b128 {vr(ACC[1]+(half*4+k)*4,4)}, v232 offset:{half*SLOT + k*1024}")
    T.append("s_waitcnt lgkmcnt(0)")
    T.append("s_lshl_b32 s34, s35, 15"); T.append("s_add_u32 s56, s34, 16384")
    xfill = []
    for half in range(2):
        for k in range(4):
            xfill.append((f"buffer_store_dwordx4 {vr(ACC[1]+(half*4+k)*4,4)}, v{DS+k}, s[20:23], {'s56' if half else 's34'} offen offset:{k*1024}{ST}", ('XS', half, k)))
    later = std_later(12)
    rest = emit[o['nln']:]
    if rest:
        later[0] = rest[:2]; later[1] = rest[2:4]
        if later[1] == [] : del later[1]
    tl0 = phase(W, 0, 'Y', later, fill=(AZ if o.get('azph0') else None), f0=2)
    for i, (txt, tag) in enumerate(xfill): tl0.add(1 + 2*i, 'vm', txt, tag=tag, prio=7)
    T += tl0.linearize()
    stamp(T, 3)
    exchange(T, W, ACC[0], 'Y', xaflag=FF and o.get('xaflag', True))
    stamp(T, 4)
    T.append("v_mov_b32 v236, 0x3db8aa3b")
    T.append("s_lshl_b32 s33, s35, 2"); T.append("s_lshl_b32 s34, s29, 1"); T.append("s_add_u32 s33, s33, s34"); T.append("s_lshl_b32 s33, s33, 13")
    T.append("s_lshl_b32 s34, s30, 10"); T.append("s_add_u32 s33, s33, s34")
    T.append("v_lshrrev_b32 v232, 4, v242"); T.append("v_lshlrev_b32 v232, 13, v232")
    T.append("v_and_b32 v233, 15, v242"); T.append("v_lshl_add_u32 v233, v241, 4, v233")
    T.append("v_lshl_add_u32 v232, v233, 4, v232"); T.append("v_add_u32 v232, s33, v232")
    for a in range(1, 4): T.append(f"v_add_u32 v{232+a}, {a*2048}, v232")
    def qepi(a):
        ls = []
        d = ACC[0] + 8*a
        pack_swap(ls, ACC[1]+16*a, d, scale="v[236:237]")
        st = [f"buffer_store_dwordx4 {vr(d+4*s,4)}, v{232+a}, s[24:27], 0 offen offset:{s*512}{ST}" for s in range(2)]
        return ls, st
    tl1 = phase(W, 1, 'X', later)
    if o.get('qprog', True):
        for a in range(3):
            ls, st = qepi(a)
            t0 = 16*(a+1) + 4
            for i, ins in enumerate(ls): tl1.add(t0 + i*0.4, 'txt', ins, prio=4)
            for i, ins in enumerate(st): tl1.add(t0 + len(ls)*0.4 + 0.5 + i, 'vm', ins, tag=('QS', a, i), prio=7)
    T += tl1.linearize()
    stamp(T, 5)
    T.append("s_nop 15")
    for a in (range(3, 4) if o.get('qprog', True) else range(4)):
        ls, st = qepi(a)
        T += ls + st
    finish(T, "K1_Q")

    if o.get('ufirst', False):
        W = Waiter(); T = []
        for s in range(8): W.issue('vm', ('X', s))
        dma_voff(T, True)
        T += cap(lambda e: (srd(e, 8, 's46', 's47', 0, 262144),
                            srd(e, 20, 's54', 's55', U_OFF, 8000*512), srd(e, 24, 's54', 's55', G_OFF, 8000*512)))
        emit = [(n, 8, n*32768) for n in range(8)]
        for (n, sn, so) in emit[:npre]: emit_tile(T, W, n, sn, so)
        if PT: prefetch_block(T, W)
        xb_setup(T); vn_setup(T)
        azero(T)
        ln(T, W, emit[npre:o['nln']])
        if FF: T.append("buffer_load_dword v243, off, s[4:7], 0 sc1"); W.issue('vm', 'TAG')
        stamp(T, 2)
        gl = lambda n: (n, 8, (n-8)*32768 + 512)
        later = {2: [gl(8), gl(9)], 3: [gl(10), gl(11)], 4: [gl(12), gl(13)], 5: [gl(14), gl(15)]}
        rest = emit[o['nln']:]
        if rest:
            later[0] = rest[:2]; later[1] = rest[2:4]
        T += phase(W, 0, 'Y', later, fill=(AZ if o.get('azph0') else None), f0=2).linearize()
        stamp(T, 3)
        T.append("v_lshlrev_b32 v232, 4, v240"); T.append(f"s_add_u32 s33, s31, {EX}"); T.append("v_add_u32 v232, s33, v232")
        T.append("s_lshl_b32 s56, s35, 15"); T.append("s_add_u32 s57, s56, 16384")
        uw = [('UW', a, s) for a in range(4) for s in range(2)]
        tl1 = phase(W, 1, 'Y', later, bar_lgkm={6: uw})
        for a in range(4):
            ls = []
            pack_swap(ls, ACC[0]+16*a, ACC[0]+16*a)
            t0 = 3 + 5*a
            for i, ins in enumerate(ls): tl1.add(t0 + i*0.3, 'txt', ins, prio=4)
            for s in range(2):
                tl1.add(t0 + 4.5 + 0.2*s, 'lds', f"ds_write_b128 v{XB+2*a+s}, {vr(ACC[0]+16*a+4*s,4)}", tag=('UW', a, s), prio=4)
        for r in range(8):
            reg = ACC[0] + 16*(r >> 1) + 8 + 4*(r & 1)
            half, k = r >> 2, r & 3
            tl1.add(27 + r*0.5, 'lds', f"ds_read_b128 {vr(reg,4)}, v232 offset:{half*SLOT + k*1024}", tag=('UR', r), prio=3)
            tl1.add(36 + 3*r, 'vm', f"buffer_store_dwordx4 {vr(reg,4)}, v{DS+k}, s[20:23], {'s57' if half else 's56'} offen offset:{k*1024}{ST}", tag=('US', r), need=[('UR', r)], prio=7)
        T += tl1.linearize()
        stamp(T, 5)
        T.append("s_nop 15")
        k0 = -2.0*1.4426950408889634*0.7978845608028654
        T.append(f"v_mov_b32 v232, {fb(k0)}"); T.append(f"v_mov_b32 v234, {fb(k0*0.044715)}"); T.append("v_mov_b32 v236, 1.0")
        for k in range(4): T.append(f"v_mov_b32 v{252+k}, 0")
        def gelu(r):
            t = 244 + 2*((r//2) % 4)
            X = f"v[{r}:{r+1}]"; Tt = f"v[{t}:{t+1}]"
            return [f"v_pk_mul_f32 {Tt}, {X}, {X}",
                    f"v_pk_fma_f32 {Tt}, {Tt}, v[234:235], v[232:233] op_sel_hi:[1,0,0]",
                    f"v_pk_mul_f32 {Tt}, {Tt}, {X}",
                    f"v_exp_f32 v{t}, v{t}", f"v_exp_f32 v{t+1}, v{t+1}",
                    f"v_pk_add_f32 {Tt}, {Tt}, v[236:237] op_sel_hi:[1,0]",
                    f"v_rcp_f32 v{t}, v{t}", f"v_rcp_f32 v{t+1}, v{t+1}",
                    f"v_pk_mul_f32 {X}, {X}, {Tt}",
                    f"v_pk_add_f32 v[252:253], v[252:253], {X}",
                    f"v_pk_fma_f32 v[254:255], {X}, {X}, v[254:255]"]
        g0 = ACC[1]
        for b in range(g0, g0+64, 8):
            cols = [gelu(b+2*k) for k in range(4)]
            for i in range(11):
                for k in range(4): T.append(cols[k][i])
        stamp(T, 6)
        T.append("v_add_f32 v8, v252, v253"); T.append("v_add_f32 v10, v254, v255")
        T.append("v_mov_b32 v9, v8"); T.append("v_mov_b32 v11, v10"); T.append("s_nop 1")
        T.append("v_permlane32_swap_b32 v8, v9"); T.append("v_permlane32_swap_b32 v10, v11"); T.append("s_nop 1")
        T.append("v_add_f32 v8, v8, v9"); T.append("v_add_f32 v9, v10, v11")
        T.append("s_lshl_b32 s33, s29, 1"); T.append("s_add_u32 s33, s33, s30"); T.append("s_lshl_b32 s33, s33, 9"); T.append("s_add_u32 s33, s33, 32768")
        T.append("v_lshlrev_b32 v12, 3, v240"); T.append("v_add_u32 v13, s33, v12")
        T.append("s_xor_b32 s33, s33, 512"); T.append("v_add_u32 v14, s33, v12")
        T.append("ds_write_b64 v13, v[8:9]")
        for jj in range(8): T.append(f"v_subrev_u32 v{XB+jj}, {EX}, v{XB+jj}")
        T.append("v_lshlrev_b32 v15, 4, v240"); T.append("v_add_u32 v15, s31, v15")
        T.append("s_waitcnt lgkmcnt(0)"); T.append("s_barrier")
        T.append("ds_read_b64 v[10:11], v14"); T.append("s_waitcnt lgkmcnt(0)")
        T.append("v_add_f32 v8, v8, v10"); T.append("v_add_f32 v9, v9, v11")
        T.append("v_mul_f32 v8, 0x3b800000, v8"); T.append("v_mul_f32 v9, 0x3b800000, v9")
        T.append("v_fma_f32 v9, -v8, v8, v9"); T.append("v_max_f32 v9, 0, v9"); T.append("v_add_f32 v9, 0x3727c5ac, v9")
        T.append("v_rsq_f32 v10, v9"); T.append("s_nop 0")
        T.append("v_mul_f32 v12, v8, v10"); T.append("v_sub_f32 v12, 0, v12")
        for a in range(4):
            for k in range(8):
                r = g0 + 16*a + 2*k
                T.append(f"v_pk_fma_f32 v[{r}:{r+1}], v[{r}:{r+1}], v[10:11], v[12:13] op_sel_hi:[1,0,0]")
            pack_swap(T, g0+16*a, 16+8*a)
            for s in range(2):
                T.append(f"ds_write_b128 v{XB+2*a+s}, {vr(16+8*a+4*s,4)}")
        T.append("s_waitcnt lgkmcnt(0)"); T.append("s_barrier")
        for half in range(2):
            for k in range(4):
                T.append(f"ds_read_b128 {vr(ACC[0]+(half*4+k)*4,4)}, v15 offset:{half*SLOT + k*1024}")
        DEF = FF and o.get('defer', True)
        if DEF:
            T.append("s_mov_b32 s88, s56"); T.append("s_mov_b32 s89, s57"); T.append("s_mov_b32 s98, 1")
        else:
            for half in range(2):
                for k in range(4):
                    T.append(f"s_waitcnt lgkmcnt({7 - (half*4+k)})")
                    T.append(f"buffer_store_dwordx4 {vr(ACC[0]+(half*4+k)*4,4)}, v{DS+k}, s[24:27], {'s57' if half else 's56'} offen offset:{k*1024}{ST}")
        stamp(T, 7)
    else:
        W = Waiter(); T = []
        for s in range(8): W.issue('vm', ('X', s))
        dma_voff(T, True)
        T += cap(lambda e: (srd(e, 8, 's46', 's47', 0, 262144),
                            srd(e, 20, 's54', 's55', U_OFF, 8000*512), srd(e, 24, 's54', 's55', G_OFF, 8000*512)))
        emit = [(n, 8, n*32768 + 512) for n in range(8)]
        for (n, sn, so) in emit[:npre]: emit_tile(T, W, n, sn, so)
        if PT: prefetch_block(T, W)
        xb_setup(T); vn_setup(T)
        azero(T)
        ln(T, W, emit[npre:o['nln']])
        if FF: T.append("buffer_load_dword v243, off, s[4:7], 0 sc1"); W.issue('vm', 'TAG')
        stamp(T, 2)
        gl = lambda n: (n, 8, (n-8)*32768)
        later = {2: [gl(8), gl(9)], 3: [gl(10), gl(11)], 4: [gl(12), gl(13)], 5: [gl(14), gl(15)]}
        rest = emit[o['nln']:]
        if rest:
            later[0] = rest[:2]; later[1] = rest[2:4]
        T += phase(W, 0, 'Y', later, fill=(AZ if o.get('azph0') else None), f0=2).linearize()
        stamp(T, 3)
        k0 = -2.0*1.4426950408889634*0.7978845608028654
        T.append(f"v_mov_b32 v232, {fb(k0)}"); T.append(f"v_mov_b32 v234, {fb(k0*0.044715)}"); T.append("v_mov_b32 v236, 1.0")
        for k in range(4): T.append(f"v_mov_b32 v{252+k}, 0")
        def gelu(r):
            t = 244 + 2*((r//2) % 4)
            X = f"v[{r}:{r+1}]"; Tt = f"v[{t}:{t+1}]"
            if o.get('unpk', True):
                return [f"v_mul_f32 v{t}, v{r}, v{r}", f"v_mul_f32 v{t+1}, v{r+1}, v{r+1}",
                        f"v_fma_f32 v{t}, v{t}, v234, v232", f"v_fma_f32 v{t+1}, v{t+1}, v234, v232",
                        f"v_mul_f32 v{t}, v{t}, v{r}", f"v_mul_f32 v{t+1}, v{t+1}, v{r+1}",
                        f"v_exp_f32 v{t}, v{t}", f"v_exp_f32 v{t+1}, v{t+1}",
                        f"v_add_f32 v{t}, 1.0, v{t}", f"v_add_f32 v{t+1}, 1.0, v{t+1}",
                        f"v_rcp_f32 v{t}, v{t}", f"v_rcp_f32 v{t+1}, v{t+1}",
                        f"v_mul_f32 v{r}, v{r}, v{t}", f"v_mul_f32 v{r+1}, v{r+1}, v{t+1}",
                        f"v_add_f32 v252, v252, v{r}", f"v_add_f32 v253, v253, v{r+1}",
                        f"v_fmac_f32 v254, v{r}, v{r}", f"v_fmac_f32 v255, v{r+1}, v{r+1}"]
            return [f"v_pk_mul_f32 {Tt}, {X}, {X}",
                    f"v_pk_fma_f32 {Tt}, {Tt}, v[234:235], v[232:233] op_sel_hi:[1,0,0]",
                    f"v_pk_mul_f32 {Tt}, {Tt}, {X}",
                    f"v_exp_f32 v{t}, v{t}", f"v_exp_f32 v{t+1}, v{t+1}",
                    f"v_pk_add_f32 {Tt}, {Tt}, v[236:237] op_sel_hi:[1,0]",
                    f"v_rcp_f32 v{t}, v{t}", f"v_rcp_f32 v{t+1}, v{t+1}",
                    f"v_pk_mul_f32 {X}, {X}, {Tt}",
                    f"v_pk_add_f32 v[252:253], v[252:253], {X}",
                    f"v_pk_fma_f32 v[254:255], {X}, {X}, v[254:255]"]
        fill = []
        g0 = ACC[0]
        for b in range(g0, g0+64, 8):
            cols = [gelu(b+2*k) for k in range(4)]
            for i in range(len(cols[0])):
                for k in range(4): fill.append(cols[k][i])
        T += phase(W, 1, 'Y', later, fill=fill, f0=4).linearize()
        stamp(T, 5)
        T.append("v_add_f32 v8, v252, v253"); T.append("v_add_f32 v10, v254, v255")
        T.append("v_mov_b32 v9, v8"); T.append("v_mov_b32 v11, v10"); T.append("s_nop 1")
        T.append("v_permlane32_swap_b32 v8, v9"); T.append("v_permlane32_swap_b32 v10, v11"); T.append("s_nop 1")
        T.append("v_add_f32 v8, v8, v9"); T.append("v_add_f32 v9, v10, v11")
        T.append("s_lshl_b32 s33, s29, 1"); T.append("s_add_u32 s33, s33, s30"); T.append("s_lshl_b32 s33, s33, 9"); T.append("s_add_u32 s33, s33, 32768")
        T.append("v_lshlrev_b32 v12, 3, v240"); T.append("v_add_u32 v13, s33, v12")
        T.append("s_xor_b32 s33, s33, 512"); T.append("v_add_u32 v14, s33, v12")
        T.append("ds_write_b64 v13, v[8:9]")
        for a in range(4):
            d = 244 if a % 2 == 0 else 16
            pack_swap(T, ACC[1]+16*a, d)
            for s in range(2):
                T.append(f"ds_write_b128 v{XB+2*a+s}, {vr(d+4*s,4)}")
        T.append("s_waitcnt lgkmcnt(0)"); T.append("s_barrier")
        T.append("ds_read_b64 v[10:11], v14")
        T.append("v_lshlrev_b32 v15, 4, v240"); T.append("v_add_u32 v15, s31, v15"); T.append(f"v_add_u32 v232, {EX}, v15")
        for half in range(2):
            for k in range(4):
                T.append(f"ds_read_b128 {vr(ACC[1]+(half*4+k)*4,4)}, v232 offset:{half*SLOT + k*1024}")
        for jj in range(8): T.append(f"v_subrev_u32 v{XB+jj}, {EX}, v{XB+jj}")
        T.append("s_waitcnt lgkmcnt(8)")
        T.append("v_add_f32 v8, v8, v10"); T.append("v_add_f32 v9, v9, v11")
        T.append("v_mul_f32 v8, 0x3b800000, v8"); T.append("v_mul_f32 v9, 0x3b800000, v9")
        T.append("v_fma_f32 v9, -v8, v8, v9"); T.append("v_max_f32 v9, 0, v9"); T.append("v_add_f32 v9, 0x3727c5ac, v9")
        T.append("v_rsq_f32 v10, v9"); T.append("s_nop 0")
        T.append("v_mul_f32 v12, v8, v10"); T.append("v_sub_f32 v12, 0, v12")
        T.append("s_lshl_b32 s32, s35, 15"); T.append("s_add_u32 s56, s32, 16384")
        T.append("s_waitcnt lgkmcnt(0)")
        ust = [f"buffer_store_dwordx4 {vr(ACC[1]+(half*4+k)*4,4)}, v{DS+k}, s[20:23], {'s56' if half else 's32'} offen offset:{k*1024}{ST}" for half in range(2) for k in range(4)]
        for a in range(4):
            for k in range(8):
                r = g0 + 16*a + 2*k
                T.append(f"v_pk_fma_f32 v[{r}:{r+1}], v[{r}:{r+1}], v[10:11], v[12:13] op_sel_hi:[1,0,0]")
            T.append(ust.pop(0))
            pack_swap(T, g0+16*a, 16+8*a)
            for s in range(2):
                T.append(f"ds_write_b128 v{XB+2*a+s}, {vr(16+8*a+4*s,4)}")
            T.append(ust.pop(0))
        stamp(T, 6)
        T.append("s_waitcnt lgkmcnt(0)"); T.append("s_barrier")
        for half in range(2):
            for k in range(4):
                T.append(f"ds_read_b128 {vr(ACC[0]+(half*4+k)*4,4)}, v15 offset:{half*SLOT + k*1024}")
        DEF = FF and o.get('defer', True)
        if DEF:
            T.append("s_mov_b32 s88, s32"); T.append("s_mov_b32 s89, s56"); T.append("s_mov_b32 s98, 1")
        else:
            for half in range(2):
                for k in range(4):
                    T.append(f"s_waitcnt lgkmcnt({7 - (half*4+k)})")
                    T.append(f"buffer_store_dwordx4 {vr(ACC[0]+(half*4+k)*4,4)}, v{DS+k}, s[24:27], {'s56' if half else 's32'} offen offset:{k*1024}{ST}")
        stamp(T, 7)
    finish(T, "K1_UG")

    def wf_store(T, acc, which, slice_sreg):
        T.append(f"s_lshl_b32 s33, {slice_sreg}, 2"); T.append("s_lshl_b32 s34, s29, 1"); T.append("s_add_u32 s33, s33, s34"); T.append("s_lshl_b32 s33, s33, 14")
        T.append("s_lshl_b32 s34, s30, 10"); T.append("s_add_u32 s33, s33, s34")
        if which == 2: T.append("s_add_u32 s33, s33, 8192")
        T.append("v_lshrrev_b32 v232, 4, v242"); T.append("v_lshlrev_b32 v232, 14, v232")
        T.append("v_and_b32 v233, 15, v242"); T.append("v_lshl_add_u32 v233, v241, 4, v233")
        T.append("v_lshl_add_u32 v232, v233, 4, v232"); T.append("v_add_u32 v232, s33, v232")
        for a in range(4):
            d = 244; src = acc + 16*a
            if which == 1:
                for k, r in enumerate((0, 2, 8, 10, 4, 6, 12, 14)):
                    T.append(f"v_cvt_pk_bf16_f32 v{d+k}, v{src+r}, v{src+r+1}")
            else:
                pack_swap(T, src, d)
            T.append(f"s_mov_b32 s33, {a*2048}")
            for s in range(2):
                T.append(f"buffer_store_dwordx4 {vr(d+4*s,4)}, v232, s[24:27], s33 offen offset:{s*512}{ST}")
            T.append("s_nop 1")
    W = Waiter(); T = []
    dma_voff(T, False)
    T.append("s_sub_u32 s35, s2, 250")
    T += cap(lambda e: (srd(e, 16, 's52', 's53', 0, 262144), srd(e, 8, 's44', 's45', 0, 131072), srd(e, 12, 's42', 's43', 0, 131072),
                        srd(e, 24, 's54', 's55', WF_OFF, 262144)))
    narrow(T, W, 0, 's35')
    for n in range(3): emit_tile(T, W, n, 8, n*SLOT)
    ka_setup(T)
    azero(T, True)
    narrow_read(T, W)
    for n in range(3, 8): emit_tile(T, W, n, 8, n*SLOT)
    if FF: T.append("buffer_load_dword v243, off, s[4:7], 0 sc1"); W.issue('vm', 'TAG')
    later = std_later(12)
    T += phase(W, 0, 'X', later).linearize()
    T.append("s_barrier")
    exchange(T, W, ACC[0], 'X')
    T += phase(W, 1, 'X', later).linearize()
    T.append("s_nop 15")
    wf_store(T, ACC[1], 1, 's35')
    finish(T, "K1_W1")

    W = Waiter(); T = []
    if not FUSED: T += cap(lambda e: srd(e, 20, 's54', 's55', FL_OFF, 8192))
    if not FUSED:
        T.append("v_lshlrev_b32 v232, 5, v0")
        for k in range(4): T.append(f"v_mov_b32 v{236+k}, 0")
        T.append("buffer_store_dwordx4 v[236:239], v232, s[20:23], 0 offen sc1")
        T.append("buffer_store_dwordx4 v[236:239], v232, s[20:23], 0 offen offset:16 sc1")
        W.issue('vm', 'Z0'); W.issue('vm', 'Z1')
    dma_voff(T, False)
    T.append("s_sub_u32 s35, s2, 254"); T.append("s_lshl_b32 s35, s35, 1")
    T += cap(lambda e: (srd(e, 16, 's52', 's53', 0, 262144), srd(e, 8, 's50', 's51', 0, 131072),
                        srd(e, 24, 's54', 's55', WF_OFF, 262144)))
    narrow(T, W, 131072, 's35')
    for n in range(3): emit_tile(T, W, n, 8, n*SLOT)
    ka_setup(T)
    azero(T, True)
    narrow_read(T, W)
    for n in range(3, 8): emit_tile(T, W, n, 8, n*SLOT)
    if FF: T.append("buffer_load_dword v243, off, s[4:7], 0 sc1"); W.issue('vm', 'TAG')
    T.append("s_barrier")
    T.append("s_add_u32 s56, s35, 1")
    narrow(T, W, 131072, 's56')
    later = std_later(8)
    T += phase(W, 0, 'X', later).linearize()
    T.append("s_nop 15")
    wf_store(T, ACC[0], 2, 's35')
    for i in range(8): W.issue('vm', ('WS', i))
    narrow_read(T, W)
    T += phase(W, 1, 'X', later).linearize()
    T.append("s_nop 15")
    wf_store(T, ACC[1], 2, 's56')
    finish(T, "K1_W2")

    e("K1_FIN:")
    if FUSED:
        if o['stamp']:
            e("s_memtime s[64:65]"); e("s_memrealtime s[66:67]"); e("s_waitcnt lgkmcnt(0)")
            e("s_cmp_eq_u32 s28, 0"); e("s_cbranch_scc0 K1_NOST")
            e("s_add_u32 s68, s54, 0x8100000"); e("s_addc_u32 s69, s55, 0"); e("s_mov_b32 s70, 0x100000"); e("s_mov_b32 s71, 0x20000")
            for k, r in enumerate([60, 64, 62, 66]): e(f"v_mov_b32 v{232+k}, s{r}")
            e("s_lshl_b32 s33, s2, 4"); e("v_mov_b32 v236, s33")
            e("buffer_store_dwordx4 v[232:235], v236, s[68:71], 0 offen")
            for k in range(8): e(f"v_mov_b32 v{244+k}, s{72+2*k}")
            e("s_lshl_b32 s33, s2, 5"); e("s_add_u32 s33, s33, 0x10000"); e("v_mov_b32 v236, s33")
            e("buffer_store_dwordx4 v[244:247], v236, s[68:71], 0 offen")
            e("buffer_store_dwordx4 v[248:251], v236, s[68:71], 0 offen offset:16")
            e("K1_NOST:")
        if FF:
            e("s_lshl_b32 s33, s2, 7")
            fa, fb_ = (FLU, FLQ) if o.get('ugfirst', True) else (FLQ, FLU)
            e(f"s_add_u32 s67, s33, {fa}")
            e(f"s_add_u32 s56, s33, {fb_ - 125*128}"); e("s_cmp_ge_u32 s2, 125"); e("s_cselect_b32 s67, s56, s67")
            e(f"s_add_u32 s56, s33, {FLW - 250*128}"); e("s_cmp_ge_u32 s2, 250"); e("s_cselect_b32 s67, s56, s67")
            for k in range(4): e(f"s_mov_b32 s{92+k}, s{4+k}")
            for x in ["s_mov_b32 s4, s54", "s_mov_b32 s5, s55", "s_mov_b32 s32, s48", "s_mov_b32 s33, s49", "s_mov_b32 s40, s100", "s_mov_b32 s41, s101", "s_mov_b32 s48, s28", "s_mov_b32 s101, 0"]: e(x)
            return L, [], []
        e("K1_TAGP:")
        e("buffer_load_dword v232, off, s[4:7], 0 sc1")
        e("s_waitcnt vmcnt(0) lgkmcnt(0)")
        e("v_readfirstlane_b32 s3, v232")
        e("s_nop 3")
        e("s_cmp_lg_u32 s3, 0"); e("s_cbranch_scc1 K1_TAGD"); e("s_sleep 1")
        e("s_add_u32 s101, s101, 1"); e("s_cmp_lt_u32 s101, 0x400000"); e("s_cbranch_scc1 K1_TAGP")
        e("K1_TAGD:")
        e("s_barrier")
        e("s_cmp_eq_u32 s28, 0"); e("s_cbranch_scc0 K1_NOFL")
        e("s_lshl_b32 s33, s2, 7")
        fa, fb_ = (FLU, FLQ) if o.get('ugfirst', True) else (FLQ, FLU)
        if CT:
            e(f"s_add_u32 s34, s33, {FLU}")
        else:
            e(f"s_add_u32 s34, s33, {fa}")
            e(f"s_add_u32 s56, s33, {fb_ - 125*128}"); e("s_cmp_ge_u32 s2, 125"); e("s_cselect_b32 s34, s56, s34")
        e(f"s_add_u32 s56, s33, {FLW - 250*128}"); e("s_cmp_ge_u32 s2, 250"); e("s_cselect_b32 s34, s56, s34")
        srd(e, 8, 's54', 's55', FL_OFF, FL_SIZE)
        e("v_mov_b32 v232, s3")
        e("v_cmp_eq_u32 vcc, 0, v240"); e("s_and_saveexec_b64 s[56:57], vcc")
        e("buffer_store_dword v232, off, s[8:11], s34 sc1")
        if CT:
            e(f"s_add_u32 s34, s33, {FLQ}"); e("s_cmp_lt_u32 s2, 250"); e("s_cbranch_scc0 K1_NOFL2")
            e("buffer_store_dword v232, off, s[8:11], s34 sc1")
            e("K1_NOFL2:")
        e("s_mov_b64 exec, s[56:57]")
        e("K1_NOFL:")
        e("s_mov_b32 s48, s28")
        return L, [], []
    if o['stamp']:
        e("s_waitcnt vmcnt(0)")
        e("s_memtime s[64:65]"); e("s_memrealtime s[66:67]")
        e("s_waitcnt lgkmcnt(0)")
        e("s_cmp_eq_u32 s28, 0"); e("s_cbranch_scc0 K1_END")
        e("s_add_u32 s68, s54, 0x8100000"); e("s_addc_u32 s69, s55, 0"); e("s_mov_b32 s70, 0x100000"); e("s_mov_b32 s71, 0x20000")
        for k, r in enumerate([60, 64, 62, 66]): e(f"v_mov_b32 v{232+k}, s{r}")
        e("s_lshl_b32 s33, s2, 4"); e("v_mov_b32 v236, s33")
        e("buffer_store_dwordx4 v[232:235], v236, s[68:71], 0 offen")
        for k in range(8): e(f"v_mov_b32 v{244+k}, s{72+2*k}")
        e("s_lshl_b32 s33, s2, 5"); e("s_add_u32 s33, s33, 0x10000"); e("v_mov_b32 v236, s33")
        e("buffer_store_dwordx4 v[244:247], v236, s[68:71], 0 offen")
        e("buffer_store_dwordx4 v[248:251], v236, s[68:71], 0 offen offset:16")
    e("K1_END:")
    e("s_endpgm")
    return L, kernel_desc(name, 288, 256), []
```

```python
from gen_common import *
from tl import TL
import hazard, struct
SLOT = 16384
EX = 131072
fb = lambda x: hex(struct.unpack('<I', struct.pack('<f', x))[0])

def gen_k1(opt=None):
    o = dict(D=6, stamp=False, st='', npre=2, nln=4)
    if opt: o.update(opt)
    D = o['D']; ST = (' ' + o['st']) if o['st'] else ''
    FUSED = o.get('fused')
    name = FUSED if FUSED else 'prep_kernel'
    L = []; e = L.append
    B = 0; ACC = [64, 128]; KA = 192; KA2 = 200; VN = 208; VN2 = 216; DV = 224; DS = 228; XB = 200
    aR = 0; R = 8
    def stamp(T, k):
        if o['stamp']: T.append(f"s_memrealtime s[{72+2*k}:{73+2*k}]")
    L += kernel_header(name)
    e("s_cmp_ge_u32 s2, 256")
    e("s_cbranch_scc1 K2_END" if FUSED else "s_cbranch_scc1 K1_END")
    e("s_load_dwordx16 s[36:51], s[0:1], 0")
    e("s_load_dwordx2 s[52:53], s[0:1], 64")
    e("s_load_dwordx2 s[54:55], s[0:1], 88")
    FF = FUSED and o.get('fastfin', True) and not o.get('ct')
    if FUSED: e("s_load_dwordx2 s[58:59], s[0:1], 80")
    if FF: e("s_load_dwordx2 s[100:101], s[0:1], 72")
    if FF: e("s_mov_b32 s98, 0")
    if FUSED and not FF: e("s_mov_b32 s101, 0")
    if o['stamp']:
        e("s_memtime s[60:61]"); e("s_memrealtime s[62:63]")
    e("v_lshrrev_b32 v232, 6, v0")
    e("v_and_b32 v240, 63, v0")
    e("v_lshrrev_b32 v241, 5, v240")
    e("v_and_b32 v242, 31, v240")
    e("v_readfirstlane_b32 s28, v232")
    e("s_and_b32 s29, s28, 1")
    e("s_lshr_b32 s30, s28, 1")
    e("s_lshl_b32 s31, s28, 12")
    CT = o.get('ct')
    if CT: e("s_mov_b32 s35, s2")
    else: e("s_sub_u32 s35, s2, 125"); e("s_cmp_lt_u32 s2, 125"); e("s_cselect_b32 s35, s2, s35")
    QL = FUSED and o.get('qloc', False) and o.get('ugfirst', True) and o.get('fastfin', True) and not CT
    if QL:
        e("s_cmp_ge_u32 s2, 125"); e("s_cbranch_scc0 K1_NOPERM"); e("s_cmp_lt_u32 s2, 250"); e("s_cbranch_scc0 K1_NOPERM")
        e("s_and_b32 s33, s2, 7")
        e("s_add_u32 s34, s33, 3"); e("s_and_b32 s34, s34, 7"); e("s_add_u32 s34, s34, 125")
        e("s_sub_u32 s34, s2, s34"); e("s_lshr_b32 s34, s34, 3")
        e("s_lshl_b32 s35, s33, 4"); e("s_add_u32 s35, s35, s34")
        e("s_cmp_ge_u32 s33, 4"); e("s_cselect_b32 s56, 1, 0"); e("s_sub_u32 s35, s35, s56")
        e("s_cmp_eq_u32 s35, 125"); e("s_cselect_b32 s35, 47, s35")
        e("s_cmp_eq_u32 s35, 126"); e("s_cselect_b32 s35, 78, s35")
        e("K1_NOPERM:")
    e("s_lshl_b32 s33, s28, 1")
    for k in range(4):
        e(f"v_add_u32 v234, {2*k}, v241"); e("v_and_b32 v234, 3, v234"); e("v_lshlrev_b32 v234, 2, v234")
        e(f"s_add_u32 s34, s33, {k>>1}"); e("s_and_b32 s34, s34, 3")
        e("v_or_b32 v234, s34, v234"); e("v_xor_b32 v234, v242, v234"); e("v_lshlrev_b32 v234, 4, v234")
        e("v_lshl_add_u32 v234, v241, 9, v234")
        e(f"v_add_u32 v{DS+k}, s31, v234")
    e("s_waitcnt lgkmcnt(0)")
    if FUSED:
        e("s_mov_b32 s4, s58"); e("s_mov_b32 s5, s59"); e("s_mov_b32 s6, 256"); e("s_mov_b32 s7, 0x20000")
        e("s_or_b32 s33, s2, s28"); e("s_cmp_eq_u32 s33, 0"); e("s_cbranch_scc0 K1_NOTAG")
        e("s_memrealtime s[56:57]"); e("s_waitcnt lgkmcnt(0)"); e("s_or_b32 s56, s56, 1")
        e("v_mov_b32 v234, s56")
        e("buffer_store_dword v234, off, s[4:7], 0 sc1")
        e("K1_NOTAG:")
    e("s_cmp_lt_u32 s2, 250"); e("s_cbranch_scc0 K1_NOX")
    srd(e, 16, 's36', 's37', 0, 8000*512)
    e("s_lshl_b32 s32, s35, 14" if CT else "s_lshl_b32 s32, s35, 15")
    for half in range(1 if CT else 2):
        e(f"s_add_u32 m0, s31, {EX + half*SLOT:#x}")
        if half: e("s_add_u32 s32, s32, 16384")
        else: e("s_nop 0")
        for k in range(4):
            e(f"buffer_load_dwordx4 v{DS+k}, s[16:19], s32 offen offset:{k*1024} lds")
    PU = FUSED and o.get('pfug', True) and o.get('ugfirst', True) and not CT
    PT = PU and o.get('pftask', False)
    if PT:
        pass
    elif PU:
        SPL = o.get('pfsplit', False)
        e("v_lshlrev_b32 v232, 4, v240")
        e("s_cmp_lt_u32 s2, 128"); e("s_cbranch_scc0 K1_PFB" if SPL else "s_cbranch_scc0 K1_NOX")
        e("s_lshr_b32 s33, s2, 3"); e("s_lshl_b32 s33, s33, 2"); e("s_add_u32 s33, s33, s28")
        e("s_getpc_b64 s[56:57]")
        e("K1_PCREF:")
        e(f"s_add_u32 s56, s56, K1_NOX-K1_PCREF"); e("s_addc_u32 s57, s57, 0")
        e("s_lshl_b32 s34, s33, 10"); e("v_add_u32 v233, s34, v232")
        e(f"s_cmp_lt_u32 s34, {o.get('ipfbytes', 61440)}"); e("s_cbranch_scc0 K1_NOIPF")
        e("global_load_dwordx4 v[252:255], v233, s[56:57]")
        e("K1_NOIPF:")
        e("s_mov_b32 s8, s40"); e("s_mov_b32 s9, s41"); e("s_mov_b32 s10, 131072"); e("s_mov_b32 s11, 0x20000")
        e("s_lshl_b32 s34, s33, 11")
        e("buffer_load_dwordx4 v[100:103], v232, s[8:11], s34 offen")
        e("buffer_load_dwordx4 v[104:107], v232, s[8:11], s34 offen offset:1024")
        if o.get('uppf', True):
            e("s_mov_b32 s8, s46"); e("s_mov_b32 s9, s47"); e("s_mov_b32 s10, 262144")
            e("v_lshl_add_u32 v233, v241, 10, 0"); e("v_lshl_add_u32 v233, v242, 4, v233")
            e(f"s_lshl_b32 s34, s33, 12"); e(f"s_add_u32 s34, s34, {512 if o.get('ufirst', False) else 0}")
            e("buffer_load_dwordx4 v[88:91], v233, s[8:11], s34 offen")
            e("buffer_load_dwordx4 v[92:95], v233, s[8:11], s34 offen offset:2048")
            e("s_mov_b32 s10, 131072")
        if SPL:
            e("s_branch K1_NOX"); e("K1_PFB:"); e("s_mov_b32 s10, 131072"); e("s_mov_b32 s11, 0x20000")
        e("s_and_b32 s33, s2, 7"); e("s_cmp_lt_u32 s33, 2"); e("s_cbranch_scc1 K1_NOX")
        e("s_lshr_b32 s34, s2, 3")
        if SPL: e("s_and_b32 s34, s34, 15")
        e("s_add_u32 s56, s52, 131072"); e("s_addc_u32 s57, s53, 0")
        e("s_cmp_ge_u32 s33, 6"); e("s_cselect_b32 s8, s50, s44"); e("s_cselect_b32 s9, s51, s45"); e("s_cselect_b32 s56, s56, s42"); e("s_cselect_b32 s57, s57, s43")
        e("s_cmp_lt_u32 s34, 8"); e("s_cselect_b32 s8, s8, s56"); e("s_cselect_b32 s9, s9, s57")
        e("s_and_b32 s34, s34, 7"); e("s_lshl_b32 s34, s34, 14"); e("s_lshl_b32 s33, s28, 12"); e("s_add_u32 s34, s34, s33")
        for k in range(4): e(f"buffer_load_dwordx4 v[{108+4*k}:{111+4*k}], v232, s[8:11], s34 offen offset:{k*1024}")
    else:
        if FUSED and o.get('ipf', True):
            e("s_getpc_b64 s[56:57]")
            e("K1_PCREF:")
            e(f"s_add_u32 s56, s56, {o.get('ipfbase', 'K1_NOX')}-K1_PCREF"); e("s_addc_u32 s57, s57, 0")
            e("s_lshr_b32 s33, s2, 3"); e("s_lshl_b32 s33, s33, 2"); e("s_add_u32 s33, s33, s28"); e("s_lshl_b32 s33, s33, 10")
            e(f"s_cmp_lt_u32 s33, {o.get('ipfbytes', 61440)}"); e("s_cbranch_scc0 K1_NOIPF")
            e("v_lshlrev_b32 v232, 4, v240"); e("v_add_u32 v232, s33, v232")
            e("global_load_dwordx4 v[252:255], v232, s[56:57]")
            e("K1_NOIPF:")
        if o.get('wpf', False):
            e("s_lshr_b32 s33, s2, 3"); e("s_lshl_b32 s33, s33, 2"); e("s_add_u32 s33, s33, s28")
            e("v_lshlrev_b32 v232, 4, v240")
            e("s_mov_b32 s8, s40"); e("s_mov_b32 s9, s41"); e("s_mov_b32 s10, 131072"); e("s_mov_b32 s11, 0x20000")
            e("s_lshl_b32 s34, s33, 10")
            e("buffer_load_dwordx4 v[100:103], v232, s[8:11], s34 offen")
            if o.get('wpf') != 'k':
                e("s_mov_b32 s8, s46"); e("s_mov_b32 s9, s47"); e("s_mov_b32 s10, 262144")
                e("s_lshl_b32 s34, s33, 11")
                e("buffer_load_dwordx4 v[104:107], v232, s[8:11], s34 offen")
                e("buffer_load_dwordx4 v[108:111], v232, s[8:11], s34 offen offset:1024")
        if FUSED and o.get('tlb', False):
            e("s_load_dwordx2 s[56:57], s[0:1], 72"); e("s_waitcnt lgkmcnt(0)")
            e("s_cmp_eq_u32 s28, 1"); e("s_cbranch_scc0 K1_NOTLB")
            srd(e, 8, 's54', 's55', OP_OFF, 64*16*16384)
            e("v_lshlrev_b32 v232, 21, v240")
            e("buffer_load_dword v112, v232, s[8:11], 0 offen")
            e("s_mov_b32 s8, s56"); e("s_mov_b32 s9, s57"); e("s_mov_b32 s10, 4096000")
            e("buffer_load_dword v113, v232, s[8:11], 0 offen")
            e("K1_NOTLB:")
        if o.get('pf', True):
            e("s_and_b32 s33, s2, 7"); e("s_cmp_lt_u32 s33, 2"); e("s_cbranch_scc1 K1_NOPF")
            e("s_lshr_b32 s34, s2, 3")
            e("s_cmp_ge_u32 s33, 6"); e("s_cbranch_scc1 K1_PF2")
            e("s_cmp_lt_u32 s34, 16"); e("s_cselect_b32 s8, s44, s42"); e("s_cselect_b32 s9, s45, s43")
            e("s_and_b32 s34, s34, 15"); e("s_lshl_b32 s34, s34, 13")
            e("s_branch K1_PF3")
            e("K1_PF2:")
            e("s_add_u32 s56, s52, 131072"); e("s_addc_u32 s57, s53, 0")
            e("s_cmp_lt_u32 s34, 16"); e("s_cselect_b32 s8, s50, s56"); e("s_cselect_b32 s9, s51, s57")
            e("s_and_b32 s34, s34, 15"); e("s_lshl_b32 s34, s34, 13")
            e("K1_PF3:")
            e("s_mov_b32 s10, 131072"); e("s_mov_b32 s11, 0x20000")
            e("v_lshlrev_b32 v232, 4, v240"); e("s_lshl_b32 s33, s28, 11"); e("s_add_u32 s34, s34, s33")
            e("buffer_load_dwordx4 v[244:247], v232, s[8:11], s34 offen")
            e("buffer_load_dwordx4 v[248:251], v232, s[8:11], s34 offen offset:1024")
            e("K1_NOPF:")
        pass
    e("K1_NOX:")
    first, second = ("K1_UG", "K1_Q") if o.get('ugfirst', True) else ("K1_Q", "K1_UG")
    if CT:
        e("s_cmp_lt_u32 s2, 250"); e("s_cbranch_scc1 K1_CT")
    else:
        e("s_cmp_lt_u32 s2, 125"); e(f"s_cbranch_scc1 {first}")
        e("s_cmp_lt_u32 s2, 250"); e(f"s_cbranch_scc1 {second}")
    e("s_cmp_lt_u32 s2, 254"); e("s_cbranch_scc1 K1_W1")
    e("s_branch K1_W2")

    def k_addr(T, dst, dst2, base_lines):
        t = T.append
        t("v_and_b32 v234, 3, v242"); t("v_lshlrev_b32 v234, 2, v234"); t("v_bfe_u32 v235, v242, 2, 2")
        t("v_or_b32 v234, v234, v235"); t("v_lshlrev_b32 v236, 9, v242")
        for x in base_lines: t(x)
        t("v_add_u32 v236, s33, v236")
        for jj in range(8):
            t(f"v_add_u32 v235, {2*jj}, v241"); t("v_xor_b32 v235, v235, v234")
            t(f"v_lshl_add_u32 v{dst+jj}, v235, 4, v236")
            if dst2 is not None: t(f"v_add_u32 v{dst2+jj}, 0x10000, v{dst+jj}")
    def ka_setup(T): k_addr(T, KA, KA2, ["s_lshl_b32 s33, s30, 14"])
    def xb_setup(T): k_addr(T, XB, None, ["s_lshl_b32 s33, s29, 14", f"s_add_u32 s33, s33, {EX}", "s_lshl_b32 s34, s30, 8", "s_add_u32 s33, s33, s34"])
    def vn_setup(T):
        t = T.append
        t("v_bfe_u32 v234, v240, 4, 1"); t("v_bfe_u32 v235, v240, 2, 2"); t("v_bfe_u32 v236, v240, 1, 1")
        t("v_lshl_add_u32 v236, v234, 1, v236"); t("v_and_b32 v237, 1, v240"); t("v_lshlrev_b32 v237, 3, v237")
        t("v_lshl_add_u32 v238, v241, 3, v235"); t("v_lshl_add_u32 v237, v238, 9, v237")
        t("s_lshl_b32 s33, s30, 8"); t("v_add_u32 v237, s33, v237")
        for a in range(4):
            for u in range(2):
                t(f"v_lshl_add_u32 v238, v241, 1, {u}"); t("v_lshl_or_b32 v238, v235, 2, v238")
                t(f"v_add_u32 v239, {4*a}, v236"); t("v_xor_b32 v238, v238, v239")
                t(f"v_lshl_add_u32 v{VN+a*2+u}, v238, 4, v237")
                if u: t(f"v_add_u32 v{VN+a*2+u}, {4*512}, v{VN+a*2+u}")
                t(f"v_add_u32 v{VN2+a*2+u}, 0x10000, v{VN+a*2+u}")
    def dma_voff(T, stride1024):
        t = T.append
        if not stride1024:
            for k in range(4): t(f"v_mov_b32 v{DV+k}, v{DS+k}")
            return
        t("s_lshl_b32 s33, s28, 1")
        for k in range(4):
            t(f"v_add_u32 v234, {2*k}, v241"); t("v_and_b32 v234, 3, v234"); t("v_lshlrev_b32 v234, 2, v234")
            t(f"s_add_u32 s34, s33, {k>>1}"); t("s_and_b32 s34, s34, 3")
            t("v_or_b32 v234, s34, v234"); t("v_xor_b32 v234, v242, v234"); t("v_lshlrev_b32 v234, 4, v234")
            t("v_lshl_add_u32 v234, v241, 10, v234"); t("s_lshl_b32 s34, s28, 13"); t(f"s_add_u32 s34, s34, {k*1024}")
            t(f"v_add_u32 v{DV+k}, s34, v234")
    def tile_dma(n, srdn, soff):
        if o.get('nodma'): return []
        r = [(f"s_add_u32 m0, s31, {(n%8)*SLOT:#x}", False), (f"s_mov_b32 s32, {soff:#x}", False)]
        for k in range(4):
            r.append((f"buffer_load_dwordx4 v{DV+k}, s[{srdn}:{srdn+3}], s32 offen offset:{k*1024} lds", True))
        return r
    def emit_tile(out, W, n, srdn, soff):
        for txt, vm in tile_dma(n, srdn, soff):
            out.append(txt)
            if vm: W.issue('vm', ('T', n))
    def out_rows(T, W, srdn, tag, OB):
        t = T.append
        t("v_lshlrev_b32 v232, 4, v240"); t(f"s_add_u32 s33, s31, {EX}"); t("v_add_u32 v232, s33, v232")
        for half in range(2):
            for k in range(4):
                t(f"ds_read_b128 {vr(OB+(half*4+k)*4,4)}, v232 offset:{half*SLOT + k*1024}")
        t("s_lshl_b32 s32, s35, 15")
        for half in range(2):
            if half: t("s_add_u32 s32, s32, 16384")
            for k in range(4):
                t(f"s_waitcnt lgkmcnt({7 - (half*4+k)})")
                t(f"buffer_store_dwordx4 {vr(OB+(half*4+k)*4,4)}, v{DS+k}, s[{srdn}:{srdn+3}], s32 offen offset:{k*1024}{ST}")
                W.issue('vm', (tag, half, k))
        W.drain('lgkm')
    def ln(out, W, tiles):
        nw = W.need('vm', [('X', 7)])
        out.append(f"s_waitcnt vmcnt({nw})")
        out.append("s_barrier")
        stamp(out, 0)
        if QL: out.append("buffer_load_dword v243, off, s[4:7], 0 sc1"); W.issue('vm', 'TAG')
        for s in range(8):
            out.append(f"ds_read_b128 {vr(64+4*s,4)}, v{XB+s}")
        body = []; b = body.append
        b("s_mov_b32 s34, 0x3f803f80")
        for k in range(4): b(f"v_mov_b32 v{232+k}, 0")
        for r in range(32):
            if r % 4 == 0: b(f"s_waitcnt lgkmcnt({7 - r//4})")
            b(f"v_dot2_f32_bf16 v{232+(r&1)}, v{64+r}, s34, v{232+(r&1)}")
            b(f"v_dot2_f32_bf16 v{234+(r&1)}, v{64+r}, v{64+r}, v{234+(r&1)}")
        b("s_nop 2")
        b("v_add_f32 v232, v232, v233"); b("v_add_f32 v234, v234, v235")
        b("v_mov_b32 v233, v232"); b("v_mov_b32 v235, v234"); b("s_nop 1")
        b("v_permlane32_swap_b32 v232, v233"); b("v_permlane32_swap_b32 v234, v235"); b("s_nop 1")
        b("v_add_f32 v232, v232, v233"); b("v_add_f32 v233, v234, v235")
        b(f"ds_write_b64 v{XB}, v[232:233]")
        b(f"v_xor_b32 v238, 256, v{XB}")
        b("s_waitcnt lgkmcnt(0)")
        b("s_barrier")
        b("ds_read_b64 v[234:235], v238")
        b("s_waitcnt lgkmcnt(0)")
        b("v_add_f32 v232, v232, v234"); b("v_add_f32 v234, v233, v235")
        b("v_mul_f32 v232, 0x3b800000, v232"); b("v_mul_f32 v234, 0x3b800000, v234")
        b("v_fma_f32 v234, -v232, v232, v234"); b("v_max_f32 v234, 0, v234"); b("v_add_f32 v234, 0x3727c5ac, v234")
        b("v_rsq_f32 v234, v234"); b("s_nop 0")
        b("v_mul_f32 v236, v232, v234"); b("v_sub_f32 v236, 0, v236")
        b("s_barrier")
        for r in range(32):
            t = 244 + 2*(r % 4)
            b(f"v_lshlrev_b32 v{t}, 16, v{64+r}")
            b(f"v_and_b32 v{t+1}, 0xffff0000, v{64+r}")
            b(f"v_pk_fma_f32 v[{t}:{t+1}], v[{t}:{t+1}], v[234:235], v[236:237] op_sel_hi:[1,0,0]")
            b(f"v_cvt_pk_bf16_f32 v{64+r}, v{t}, v{t+1}")
            if r % 4 == 3: b(f"ds_write_b128 v{XB+r//4}, {vr(64+r-3,4)}")
        b("s_waitcnt lgkmcnt(0)")
        b("s_barrier")
        b("s_lshl_b32 s33, s30, 8")
        for jj in range(8): b(f"v_subrev_u32 v{244+jj}, s33, v{XB+jj}")
        for s in range(16):
            b(f"ds_read_b128 {vr(B+4*s,4)}, v{244+(s&7)} offset:{(s>>3)*256}")
        flat = []
        for (n, sn, so) in tiles:
            tl_ = [(txt, vm, n) for txt, vm in tile_dma(n, sn, so)]
            flat.append(tl_[:3])
            for x in tl_[3:]: flat.append([x])
        gap = max(1, len(body) // (len(flat) + 1)) if flat else 1
        fi = 0
        for i, ins in enumerate(body):
            out.append(ins)
            if fi < len(flat) and i % gap == gap - 1:
                for txt, vm, n in flat[fi]:
                    out.append(txt)
                    if vm: W.issue('vm', ('T', n))
                fi += 1
        while fi < len(flat):
            for txt, vm, n in flat[fi]:
                out.append(txt)
                if vm: W.issue('vm', ('T', n))
            fi += 1
        out.append("s_waitcnt lgkmcnt(0)")
        W.drain('lgkm')
    def phase(W, p, kind, later, fill=None, f0=3, bar_lgkm=None):
        tl = TL(W)
        acc = ACC[p]
        cnt = [0]
        for a in range(4):
            sig = 4*p + a
            tb = 16*a - D - 1
            tl.add(tb, 'bar', needvm=[('T', 2*sig), ('T', 2*sig+1)], needlgkm=(bar_lgkm or {}).get(sig, []), prio=1)
            k = 0
            for (n, sn, so) in later.get(sig, []):
                for txt, vm in tile_dma(n, sn, so):
                    sp = o.get('dsp', 2)
                    if vm:
                        tl.add(tb + 1 + sp*k, 'vm', txt, tag=('T', n), prio=7); k += 1
                    else:
                        tl.add(tb + 1 + sp*k, 'txt', txt, prio=6)
            for m in range(16):
                tm = 16*a + m
                ri = cnt[0] % R; cnt[0] += 1
                ring = aR + 4*ri
                if kind == 'X':
                    j = m; slot = 2*a
                    base = (KA if slot < 4 else KA2) + (j & 7)
                    off = (slot % 4)*SLOT + (j >> 3)*256
                    tag = (p, a, m)
                    tl.add(tm - D, 'lds', f"ds_read_b128 {ar(ring,4)}, v{base} offset:{off}", tag=tag, prio=2)
                    c = vr(acc+16*a,16) if j else '0'
                    tl.add(tm, 'mfma', f"v_mfma_f32_32x32x16_bf16 {vr(acc+16*a,16)}, {ar(ring,4)}, {vr(B+4*j,4)}, {c}", need=[tag], prio=0)
                else:
                    tt, s, aa = m >> 3, (m >> 2) & 1, m & 3
                    tau = 2*a + tt; slot = tau
                    tags = []
                    for u in range(2):
                        base = (VN if slot < 4 else VN2) + aa*2 + u
                        off = (slot % 4)*SLOT + 16*s*512
                        tag = (p, a, m, u); tags.append(tag)
                        tl.add(tm - D, 'lds', f"ds_read_b64_tr_b16 {ar(ring+2*u,2)}, v{base} offset:{off}", tag=tag, prio=2)
                    c = vr(acc+16*aa,16) if (tau or s) else '0'
                    tl.add(tm, 'mfma', f"v_mfma_f32_32x32x16_bf16 {vr(acc+16*aa,16)}, {ar(ring,4)}, {vr(B+4*(2*tau+s),4)}, {c}", need=tags, prio=0)
        if fill:
            n = len(fill)
            for i, ins in enumerate(fill):
                tl.add(f0 + (i*(64-f0))/n, 'txt', ins, prio=4)
        return tl
    def pack_swap(out, src, dst, swap=True, scale=None):
        if scale and o.get('unpk', True):
            for k in range(16): out.append(f"v_mul_f32 v{src+k}, v{src+k}, v236")
        elif scale:
            for k in range(8):
                out.append(f"v_pk_mul_f32 v[{src+2*k}:{src+2*k+1}], v[{src+2*k}:{src+2*k+1}], {scale} op_sel_hi:[1,0]")
        for k in range(8):
            out.append(f"v_cvt_pk_bf16_f32 v{dst+k}, v{src+2*k}, v{src+2*k+1}")
        if swap:
            out.append("s_nop 1")
            for b in (0, 4):
                out.append(f"v_permlane32_swap_b32 v{dst+b}, v{dst+b+2}")
                out.append(f"v_permlane32_swap_b32 v{dst+b+1}, v{dst+b+3}")
    def exchange(out, W, acc, kind, xaflag=False):
        out.append("s_nop 15")
        out.append("v_lshlrev_b32 v232, 4, v240")
        out.append(f"s_lshl_b32 s33, s29, 14"); out.append(f"s_add_u32 s33, s33, {EX}")
        out.append("v_add_u32 v233, s33, v232")
        out.append(f"s_lshl_b32 s34, s30, {13 if kind=='Y' else 11}")
        out.append("v_add_u32 v232, s34, v233")
        for a in range(4):
            d = 244 if a % 2 == 0 else 0
            pack_swap(out, acc+16*a, d)
            for s in range(2):
                f = (2*a + s) if kind == 'Y' else (4*a + s)
                out.append(f"ds_write_b128 v232, {vr(d+4*s,4)} offset:{f*1024}")
        if xaflag:
            n = W.need('vm', [x for x in W.q['vm'] if isinstance(x, tuple) and x[0] == 'XS'] + ['TAG'])
            if n is not None: out.append(f"s_waitcnt vmcnt({n})")
        out.append("s_waitcnt lgkmcnt(0)")
        out.append("s_barrier")
        if xaflag:
            out.append("v_readfirstlane_b32 s3, v243"); out.append("s_or_b32 s33, s28, 0");
            out.append("s_cmp_eq_u32 s28, 0"); out.append("s_cbranch_scc0 K1_Q_NOXF")
            out.append("s_cmp_lg_u32 s3, 0"); out.append("s_cbranch_scc0 K1_Q_NOXF")
            out += cap(lambda e: srd(e, 16, 's54', 's55', FL_OFF, FL_SIZE))
            out.append("s_lshl_b32 s33, s35, 7"); out.append(f"s_add_u32 s33, s33, {FLQ + 4}")
            out.append("v_mov_b32 v238, s3"); out.append("v_cmp_eq_u32 vcc, 0, v240"); out.append("s_and_saveexec_b64 s[56:57], vcc")
            out.append("buffer_store_dword v238, off, s[16:19], s33 sc1")
            out.append("s_mov_b64 exec, s[56:57]")
            out.append("K1_Q_NOXF:")
        for f in range(16):
            out.append(f"ds_read_b128 {vr(B+4*f,4)}, v233 offset:{f*1024}")
        out.append("s_waitcnt lgkmcnt(0)")
        W.drain('lgkm')
    def narrow(out, W, rowbase_bytes, slice_sreg):
        for x in ["v_lshrrev_b32 v232, 3, v240", "v_lshlrev_b32 v232, 9, v232", "v_and_b32 v233, 7, v240",
                  "v_lshl_add_u32 v232, v233, 4, v232", f"s_lshl_b32 s33, {slice_sreg}, 7", "s_lshl_b32 s34, s28, 15",
                  "s_add_u32 s33, s33, s34", f"s_add_u32 s33, s33, {rowbase_bytes}", "v_add_u32 v232, s33, v232",
                  "s_lshl_b32 s34, s28, 13", f"s_add_u32 s34, s34, {EX}"]: out.append(x)
        for i in range(8):
            out.append(f"s_add_u32 m0, s34, {i*1024}")
            out.append(f"s_mov_b32 s32, {i*4096}")
            out.append(f"buffer_load_dwordx4 v232, s[16:19], s32 offen lds")
            W.issue('vm', ('N', i))
    def narrow_read(out, W):
        n = W.need('vm', [('N', 7)])
        out.append(f"s_waitcnt vmcnt({n})")
        out.append("s_barrier")
        for x in ["v_bfe_u32 v232, v240, 2, 2", "v_lshl_add_u32 v232, v241, 3, v232", "v_lshlrev_b32 v232, 7, v232",
                  "v_bfe_u32 v233, v240, 4, 1", "v_lshl_add_u32 v232, v233, 5, v232", "v_and_b32 v233, 3, v240",
                  "v_lshl_add_u32 v232, v233, 3, v232", "s_lshl_b32 s33, s29, 6", f"s_add_u32 s33, s33, {EX}",
                  "v_add_u32 v232, s33, v232"]: out.append(x)
        for s in range(16):
            for u in range(2):
                out.append(f"ds_read_b64_tr_b16 {vr(B+4*s+2*u,2)}, v232 offset:{s*2048+u*512}")
            if s % 4 == 3: out.append("s_waitcnt lgkmcnt(0)")
        W.drain('lgkm')
    def finish(task_lines, label):
        if CT and label in ("K1_Q", "K1_UG"): return
        fixed = hazard.autofix(task_lines)
        e(f"{label}:")
        L.extend(fixed)
        e("s_branch K1_FIN")
    def cap(fn):
        buf = []; fn(buf.append); return buf
    std_later = lambda sn: {2: [(8, sn, 0), (9, sn, SLOT)], 3: [(10, sn, 2*SLOT), (11, sn, 3*SLOT)], 4: [(12, sn, 4*SLOT), (13, sn, 5*SLOT)], 5: [(14, sn, 6*SLOT), (15, sn, 7*SLOT)]}
    npre = o['npre']
    AZ = [f"v_accvgpr_write_b32 a{128+r}, 0" for r in range(128)] if (FF and o.get('lean', True)) else []
    def prefetch_block(T, W):
        t = T.append
        t("s_lshr_b32 s33, s2, 3"); t("s_lshl_b32 s33, s33, 2"); t("s_add_u32 s33, s33, s28")
        t("v_lshlrev_b32 v232, 4, v240")
        t("s_getpc_b64 s[56:57]")
        t("K1_PCREF:")
        t("s_sub_u32 s56, s56, K1_PCREF-K1_NOX"); t("s_subb_u32 s57, s57, 0")
        t(f"s_min_u32 s34, s33, {o.get('ipfbytes', 61440)//1024 - 1}"); t("s_lshl_b32 s34, s34, 10"); t("v_add_u32 v233, s34, v232")
        t("global_load_dwordx4 v[148:151], v233, s[56:57]"); W.issue('vm', ('PF', 0))
        t("s_mov_b32 s12, s40"); t("s_mov_b32 s13, s41"); t("s_mov_b32 s14, 131072"); t("s_mov_b32 s15, 0x20000")
        t("s_lshl_b32 s34, s33, 11")
        t("buffer_load_dwordx4 v[152:155], v232, s[12:15], s34 offen"); W.issue('vm', ('PF', 1))
        t("buffer_load_dwordx4 v[156:159], v232, s[12:15], s34 offen offset:1024"); W.issue('vm', ('PF', 2))
        t("v_lshl_add_u32 v233, v241, 10, 0"); t("v_lshl_add_u32 v233, v242, 4, v233")
        t(f"s_lshl_b32 s34, s33, 12"); t(f"s_add_u32 s34, s34, {512 if o.get('ufirst', False) else 0}")
        t("buffer_load_dwordx4 v[160:163], v233, s[8:11], s34 offen"); W.issue('vm', ('PF', 3))
        t("buffer_load_dwordx4 v[164:167], v233, s[8:11], s34 offen offset:2048"); W.issue('vm', ('PF', 4))
        t("s_and_b32 s33, s2, 7"); t("s_lshr_b32 s34, s2, 3")
        t("s_add_u32 s56, s52, 131072"); t("s_addc_u32 s57, s53, 0")
        t("s_cmp_ge_u32 s33, 6"); t("s_cselect_b32 s12, s50, s44"); t("s_cselect_b32 s13, s51, s45"); t("s_cselect_b32 s56, s56, s42"); t("s_cselect_b32 s57, s57, s43")
        t("s_cmp_lt_u32 s34, 8"); t("s_cselect_b32 s12, s12, s56"); t("s_cselect_b32 s13, s13, s57")
        t("s_and_b32 s34, s34, 7"); t("s_lshl_b32 s34, s34, 14"); t("s_lshl_b32 s33, s28, 12"); t("s_add_u32 s34, s34, s33")
        for k in range(4):
            t(f"buffer_load_dwordx4 v[{132+4*k}:{135+4*k}], v232, s[12:15], s34 offen offset:{k*1024}"); W.issue('vm', ('PF', 5+k))
    def publish_id(T, W, q, lbl):
        if not QL: return
        t = T.append
        n = W.need('vm', ['TAG'])
        if n is not None: t(f"s_waitcnt vmcnt({n})")
        t("v_readfirstlane_b32 s3, v243"); t("s_getreg_b32 s99, hwreg(HW_REG_XCC_ID, 0, 3)"); t("s_or_b32 s99, s99, 8")
        t("s_cmp_eq_u32 s28, 0"); t(f"s_cbranch_scc0 {lbl}"); t("s_cmp_lg_u32 s3, 0"); t(f"s_cbranch_scc0 {lbl}")
        T.extend(cap(lambda e: srd(e, q, 's54', 's55', FL_OFF, FL_SIZE)))
        t("s_and_b32 s33, s2, 7"); t("s_lshl_b32 s33, s33, 3"); t("s_lshr_b32 s34, s2, 5"); t("s_add_u32 s33, s33, s34"); t("s_lshl_b32 s33, s33, 7")
        t("s_lshr_b32 s34, s2, 3"); t("s_and_b32 s34, s34, 3"); t("s_lshl_b32 s34, s34, 2"); t("s_add_u32 s33, s33, s34"); t("s_add_u32 s33, s33, 16")
        t("s_xor_b32 s34, s99, s3"); t("v_mov_b32 v238, s34")
        t("v_cmp_eq_u32 vcc, 0, v240"); t("s_and_saveexec_b64 s[90:91], vcc")
        t(f"buffer_store_dword v238, off, s[{q}:{q+3}], s33 sc1")
        t("s_mov_b64 exec, s[90:91]")
        t(f"{lbl}:")
    def azero(T, force=False):
        if AZ and (force or not o.get('azph0')): T.extend(AZ)


    if CT:
        EXB = EX + 16384
        Bq = 64
        ACCQ, ACCK, ACCG, ACCU = 64, 96, 128, 160
        VN4 = 208; VN42 = 212; XO = 216; XB8 = 244
        W = Waiter(); T = []; t = T.append
        for s_ in range(4): W.issue('vm', ('X', s_))
        dma_voff(T, True)
        T += cap(lambda e: (srd(e, 8, 's38', 's39', 0, 131072), srd(e, 12, 's40', 's41', 0, 131072), srd(e, 20, 's46', 's47', 0, 262144),
                            srd(e, 24, 's54', 's55', QF_OFF, 500*8192)))
        def tinfo(n):
            if n < 8: return (8, n*SLOT, DS)
            if n < 16: return (12, (n-8)*SLOT, DS)
            if n < 24: return (20, (n-16)*32768 + 512, DV)
            return (20, (n-24)*32768, DV)
        def tdma(n):
            sn, so, dv = tinfo(n)
            r = [(f"s_add_u32 m0, s31, {(n%8)*SLOT:#x}", False), (f"s_mov_b32 s32, {so:#x}", False)]
            for k in range(4): r.append((f"buffer_load_dwordx4 v{dv+k}, s[{sn}:{sn+3}], s32 offen offset:{k*1024} lds", True))
            return r
        def temit(n):
            for txt, vm in tdma(n):
                t(txt)
                if vm: W.issue('vm', ('T', n))
        temit(0); temit(1)
        t("v_and_b32 v234, 3, v242"); t("v_lshlrev_b32 v234, 2, v234"); t("v_bfe_u32 v235, v242, 2, 2"); t("v_or_b32 v234, v234, v235")
        t("v_lshlrev_b32 v236, 9, v242"); t(f"v_add_u32 v237, {EX}, v236")
        t("s_lshl_b32 s33, s30, 8"); t("v_add_u32 v238, s33, v237")
        t("s_lshl_b32 s33, s29, 3")
        for i in range(4):
            t(f"s_add_u32 s34, s33, {2*i}"); t("v_add_u32 v235, s34, v241"); t("v_xor_b32 v235, v235, v234"); t(f"v_lshl_add_u32 v{XO+i}, v235, 4, v238")
        t("s_lshl_b32 s33, s28, 14"); t("v_add_u32 v238, s33, v236")
        for jj in range(8):
            t(f"v_add_u32 v235, {2*jj}, v241"); t("v_xor_b32 v235, v235, v234")
            t(f"v_lshl_add_u32 v{KA+jj}, v235, 4, v238"); t(f"v_add_u32 v{KA2+jj}, 0x10000, v{KA+jj}")
        t("v_bfe_u32 v234, v240, 4, 1"); t("v_bfe_u32 v235, v240, 2, 2"); t("v_bfe_u32 v236, v240, 1, 1")
        t("v_lshl_add_u32 v236, v234, 1, v236"); t("v_and_b32 v237, 1, v240"); t("v_lshlrev_b32 v237, 3, v237")
        t("v_lshl_add_u32 v238, v241, 3, v235"); t("v_lshl_add_u32 v237, v238, 9, v237")
        t("s_lshl_b32 s33, s30, 8"); t("v_add_u32 v237, s33, v237")
        t("s_lshl_b32 s33, s29, 3")
        for aa in range(2):
            for u in range(2):
                t(f"v_lshl_add_u32 v238, v241, 1, {u}"); t("v_lshl_or_b32 v238, v235, 2, v238")
                t(f"s_add_u32 s34, s33, {4*aa}"); t("v_add_u32 v239, s34, v236"); t("v_xor_b32 v238, v238, v239")
                t(f"v_lshl_add_u32 v{VN4+aa*2+u}, v238, 4, v237")
                if u: t(f"v_add_u32 v{VN4+aa*2+u}, {4*512}, v{VN4+aa*2+u}")
                t(f"v_add_u32 v{VN42+aa*2+u}, 0x10000, v{VN4+aa*2+u}")
        nw = W.need('vm', [('X', 3)]); t(f"s_waitcnt vmcnt({nw})"); t("s_barrier")
        stamp(T, 0)
        for i in range(4): t(f"ds_read_b128 {vr(64+4*i,4)}, v{XO+i}")
        T += cap(lambda e: srd(e, 16, 's54', 's55', XA_OFF, 8000*512))
        body = []; b = body.append
        b("s_mov_b32 s34, 0x3f803f80")
        for k in range(4): b(f"v_mov_b32 v{232+k}, 0")
        for r in range(16):
            if r % 4 == 0: b(f"s_waitcnt lgkmcnt({3 - r//4})")
            b(f"v_dot2_f32_bf16 v{232+(r&1)}, v{64+r}, s34, v{232+(r&1)}")
            b(f"v_dot2_f32_bf16 v{234+(r&1)}, v{64+r}, v{64+r}, v{234+(r&1)}")
        b("s_nop 2")
        b("v_add_f32 v232, v232, v233"); b("v_add_f32 v234, v234, v235")
        b("v_mov_b32 v233, v232"); b("v_mov_b32 v235, v234"); b("s_nop 1")
        b("v_permlane32_swap_b32 v232, v233"); b("v_permlane32_swap_b32 v234, v235"); b("s_nop 1")
        b("v_add_f32 v232, v232, v233"); b("v_add_f32 v233, v234, v235")
        b("v_lshlrev_b32 v238, 3, v242"); b(f"v_add_u32 v238, {EXB}, v238")
        b("s_lshl_b32 s33, s28, 8"); b("v_add_u32 v239, s33, v238")
        b("ds_write_b64 v239, v[232:233]")
        b("s_waitcnt lgkmcnt(0)"); b("s_barrier")
        for k in range(4): b(f"ds_read_b64 v[{80+2*k}:{81+2*k}], v238 offset:{256*k}")
        b("s_waitcnt lgkmcnt(0)")
        b("v_add_f32 v80, v80, v82"); b("v_add_f32 v81, v81, v83"); b("v_add_f32 v84, v84, v86"); b("v_add_f32 v85, v85, v87")
        b("v_add_f32 v232, v80, v84"); b("v_add_f32 v234, v81, v85")
        b("v_mul_f32 v232, 0x3b800000, v232"); b("v_mul_f32 v234, 0x3b800000, v234")
        b("v_fma_f32 v234, -v232, v232, v234"); b("v_max_f32 v234, 0, v234"); b("v_add_f32 v234, 0x3727c5ac, v234")
        b("v_rsq_f32 v234, v234"); b("s_nop 0")
        b("v_mul_f32 v236, v232, v234"); b("v_sub_f32 v236, 0, v236")
        for r in range(16):
            tt_ = 244 + 2*(r % 4)
            b(f"v_lshlrev_b32 v{tt_}, 16, v{64+r}"); b(f"v_and_b32 v{tt_+1}, 0xffff0000, v{64+r}")
            b(f"v_pk_fma_f32 v[{tt_}:{tt_+1}], v[{tt_}:{tt_+1}], v[234:235], v[236:237] op_sel_hi:[1,0,0]")
            b(f"v_cvt_pk_bf16_f32 v{64+r}, v{tt_}, v{tt_+1}")
            if r % 4 == 3: b(f"ds_write_b128 v{XO+r//4}, {vr(64+r-3,4)}")
        b("s_lshl_b32 s33, s28, 14"); b(f"s_sub_u32 s33, {EX}, s33")
        for jj in range(8): b(f"v_add_u32 v{XB8+jj}, s33, v{KA+jj}")
        b("s_waitcnt lgkmcnt(0)"); b("s_barrier")
        for s_ in range(16): b(f"ds_read_b128 {vr(B+4*s_,4)}, v{XB8+(s_&7)} offset:{(s_>>3)*256}")
        b("v_lshlrev_b32 v232, 4, v240"); b(f"s_add_u32 s33, s31, {EX}"); b("v_add_u32 v232, s33, v232")
        for k in range(4): b(f"ds_read_b128 {vr(96+4*k,4)}, v232 offset:{k*1024}")
        flat = []
        for n in range(2, 6):
            tl_ = [(txt, vm, n) for txt, vm in tdma(n)]
            flat.append(tl_[:3])
            for x in tl_[3:]: flat.append([x])
        gap = max(1, (len(body) - 24) // (len(flat) + 1)); fi = 0
        for i, ins in enumerate(body):
            t(ins)
            if fi < len(flat) and i % gap == gap - 1:
                for txt, vm, n in flat[fi]:
                    t(txt)
                    if vm: W.issue('vm', ('T', n))
                fi += 1
        while fi < len(flat):
            for txt, vm, n in flat[fi]:
                t(txt)
                if vm: W.issue('vm', ('T', n))
            fi += 1
        t("s_waitcnt lgkmcnt(0)")
        t("s_lshl_b32 s56, s35, 14")
        for k in range(4):
            t(f"buffer_store_dwordx4 {vr(96+4*k,4)}, v{DS+k}, s[16:19], s56 offen offset:{k*1024}{ST}"); W.issue('vm', ('XS', k))
        stamp(T, 1)
        def flag_store(off_lines, lbl):
            t("s_cmp_eq_u32 s28, 0"); t(f"s_cbranch_scc0 {lbl}")
            for x in off_lines: t(x)
            t("v_mov_b32 v232, s3"); t("v_cmp_eq_u32 vcc, 0, v240"); t("s_and_saveexec_b64 s[56:57], vcc")
            t("buffer_store_dword v232, off, s[8:11], s34 sc1")
            t("s_mov_b64 exec, s[56:57]")
            t(f"{lbl}:")
        fillers = {}
        def step(sig, extra_need=None, after_bar=None):
            p, a = sig >> 2, sig & 3
            need = [('T', 2*sig), ('T', 2*sig+1)] + (extra_need or [])
            nv = W.need('vm', need)
            if nv is not None: t(f"s_waitcnt vmcnt({nv})")
            t("s_barrier")
            if after_bar: after_bar()
            dm = []
            for n in (2*(sig+3), 2*(sig+3)+1):
                if n < 32: dm += [(txt, vm, n) for txt, vm in tdma(n)]
            fl = list(fillers.get(sig, []))
            def some(k_dma, k_fill):
                c = 0
                while dm and c < k_dma:
                    txt, vm, n = dm.pop(0); t(txt)
                    if vm: W.issue('vm', ('T', n)); c += 1
                for _ in range(k_fill):
                    if fl: t(fl.pop(0))
            nf = -(-len(fl) // 8) if fl else 0
            if p != 1:
                acc = {0: ACCQ, 2: ACCG, 3: ACCU}[p]
                idx = 0; seq = []
                for tt in range(2):
                    slot = (2*sig + tt) % 8
                    for s_ in range(2):
                        for aa in range(2):
                            for u in range(2):
                                base = (VN4 if slot < 4 else VN42) + aa*2 + u
                                t(f"ds_read_b64_tr_b16 {ar(4*idx+2*u,2)}, v{base} offset:{(slot%4)*SLOT + 16*s_*512}")
                            seq.append((idx, tt, s_, aa)); idx += 1
                for (idx, tt, s_, aa) in seq:
                    if idx % 2 == 0: t(f"s_waitcnt lgkmcnt({14 - 2*idx - 2 if idx < 6 else 0})")
                    tau = 2*a + tt
                    c = vr(acc+16*aa,16) if (tau or s_) else '0'
                    t(f"v_mfma_f32_32x32x16_bf16 {vr(acc+16*aa,16)}, {ar(4*idx,4)}, {vr(B+4*(2*tau+s_),4)}, {c}")
                    some(1, nf)
            else:
                lbl = f"K1_CT_X{a}"
                t(f"s_cmp_eq_u32 s30, {a & 1}"); t(f"s_cbranch_scc0 {lbl}")
                k = a >> 1; base = KA if k == 0 else KA2
                for half in range(2):
                    for j in range(8): t(f"ds_read_b128 {ar(4*j,4)}, v{base+j} offset:{half*256}")
                    for j in range(8):
                        if j % 2 == 0: t(f"s_waitcnt lgkmcnt({6 - j})")
                        jj = 8*half + j
                        c = vr(ACCK+16*k,16) if jj else '0'
                        t(f"v_mfma_f32_32x32x16_bf16 {vr(ACCK+16*k,16)}, {ar(4*j,4)}, {ar(Bq+4*jj,4)}, {c}")
                t(f"{lbl}:")
            some(100, 1000)
        for sig in range(4): step(sig)
        stamp(T, 2)
        t("s_nop 15")
        t("v_lshlrev_b32 v232, 4, v240"); t(f"v_add_u32 v233, {EXB}, v232"); t("s_lshl_b32 s34, s28, 12"); t("v_add_u32 v232, s34, v233")
        for aa in range(2):
            d = 244 if aa == 0 else 96
            pack_swap(T, ACCQ+16*aa, d)
            for s_ in range(2): t(f"ds_write_b128 v232, {vr(d+4*s_,4)} offset:{(2*aa+s_)*1024}")
        t("s_waitcnt lgkmcnt(0)"); t("s_barrier")
        for f in range(16): t(f"ds_read_b128 {ar(Bq+4*f,4)}, v233 offset:{f*1024}")
        t("s_waitcnt lgkmcnt(0)")
        t("buffer_load_dword v243, off, s[4:7], 0 sc1"); W.issue('vm', 'TAG')
        for sig in range(4, 8): step(sig)
        stamp(T, 3)
        qf = []
        qf.append("s_nop 7"); qf.append("v_mov_b32 v236, 0x3db8aa3b")
        qf += ["s_lshl_b32 s33, s35, 14", "s_lshl_b32 s34, s28, 10", "s_add_u32 s33, s33, s34",
               "v_lshrrev_b32 v252, 4, v242", "v_lshlrev_b32 v252, 13, v252", "v_and_b32 v253, 15, v242", "v_lshl_add_u32 v253, v241, 4, v253",
               "v_lshl_add_u32 v252, v253, 4, v252", "v_add_u32 v252, s33, v252"]
        qst = []
        for k in range(2):
            d = 244 if k == 0 else 64
            pack_swap(qf, ACCK+16*k, d, scale="v[236:237]")
            for s_ in range(2):
                qf.append(f"buffer_store_dwordx4 {vr(d+4*s_,4)}, v252, s[24:27], 0 offen offset:{k*4096 + s_*512 - (4096 if k else 0)}{ST}" if k == 0 else "@K1")
        out2 = []
        cnt = 0
        for x in qf:
            if x == "@K1":
                if cnt == 0: out2.append("v_add_u32 v253, 4096, v252")
                out2.append(f"buffer_store_dwordx4 {vr(64+4*cnt,4)}, v253, s[24:27], 0 offen offset:{cnt*512}{ST}"); cnt += 1
            else: out2.append(x)
        qf = out2
        for x in qf:
            t(x)
            if x.startswith('buffer_store'): W.issue('vm', ('QS', len(W.q['vm'])))
        W.issue('vm', 'QEND'); W.q['vm'].pop()
        qtags = [x for x in W.q['vm'] if isinstance(x, tuple) and x[0] in ('QS', 'XS')]
        step(8)
        step(9)
        def get_tag():
            t("K1_CT_TAGP:")
            t("buffer_load_dword v232, off, s[4:7], 0 sc1"); t("s_waitcnt vmcnt(0)")
            t("v_readfirstlane_b32 s3, v232"); t("s_nop 3"); t("s_cmp_lg_u32 s3, 0"); t("s_cbranch_scc1 K1_CT_TAGD"); t("s_sleep 1"); t("s_branch K1_CT_TAGP")
            t("K1_CT_TAGD:")
        def qflag():
            T.extend(cap(lambda e: srd(e, 8, 's54', 's55', FL_OFF, FL_SIZE)))
            flag_store([f"s_lshl_b32 s34, s35, 7", f"s_add_u32 s34, s34, {FLQ}"], "K1_CT_NOQF")
        step(10, extra_need=qtags + ['TAG'], after_bar=None)
        t("v_readfirstlane_b32 s3, v243")
        t("s_nop 3")
        pend_qflag = True
        t("s_cmp_eq_u32 s28, 0"); t("s_cbranch_scc0 K1_CT_NOQF2")
        t("s_cmp_lg_u32 s3, 0"); t("s_cbranch_scc0 K1_CT_NOQF2")
        T.extend(cap(lambda e: srd(e, 8, 's54', 's55', FL_OFF, FL_SIZE)))
        t(f"s_lshl_b32 s34, s35, 7"); t(f"s_add_u32 s34, s34, {FLQ}")
        t("v_mov_b32 v232, s3"); t("v_cmp_eq_u32 vcc, 0, v240"); t("s_and_saveexec_b64 s[56:57], vcc")
        t("buffer_store_dword v232, off, s[8:11], s34 sc1")
        t("s_mov_b64 exec, s[56:57]")
        t("K1_CT_NOQF2:")
        step(11)
        stamp(T, 4)
        k0 = -2.0*1.4426950408889634*0.7978845608028654
        t("s_nop 7")
        t(f"v_mov_b32 v232, {fb(k0)}"); t(f"v_mov_b32 v234, {fb(k0*0.044715)}"); t("v_mov_b32 v236, 1.0")
        for k in range(4): t(f"v_mov_b32 v{252+k}, 0")
        def gelu(r):
            tt_ = 244 + 2*((r//2) % 4)
            X = f"v[{r}:{r+1}]"; Tt = f"v[{tt_}:{tt_+1}]"
            return [f"v_pk_mul_f32 {Tt}, {X}, {X}", f"v_pk_fma_f32 {Tt}, {Tt}, v[234:235], v[232:233] op_sel_hi:[1,0,0]", f"v_pk_mul_f32 {Tt}, {Tt}, {X}",
                    f"v_exp_f32 v{tt_}, v{tt_}", f"v_exp_f32 v{tt_+1}, v{tt_+1}", f"v_pk_add_f32 {Tt}, {Tt}, v[236:237] op_sel_hi:[1,0]",
                    f"v_rcp_f32 v{tt_}, v{tt_}", f"v_rcp_f32 v{tt_+1}, v{tt_+1}", f"v_pk_mul_f32 {X}, {X}, {Tt}",
                    f"v_pk_add_f32 v[252:253], v[252:253], {X}", f"v_pk_fma_f32 v[254:255], {X}, {X}, v[254:255]"]
        for q in range(4):
            cols = [gelu(ACCG + 8*q + 2*k) for k in range(4)]
            fillers[12+q] = [cols[k][i] for i in range(11) for k in range(4)]
        for sig in range(12, 16): step(sig)
        stamp(T, 5)
        t("v_add_f32 v8, v252, v253"); t("v_add_f32 v10, v254, v255"); t("v_mov_b32 v9, v8"); t("v_mov_b32 v11, v10"); t("s_nop 1")
        t("v_permlane32_swap_b32 v8, v9"); t("v_permlane32_swap_b32 v10, v11"); t("s_nop 1")
        t("v_add_f32 v8, v8, v9"); t("v_add_f32 v9, v10, v11")
        t("v_lshlrev_b32 v12, 3, v242"); t("s_lshl_b32 s33, s28, 8"); t("v_add_u32 v13, s33, v12")
        t("s_barrier")
        t("ds_write_b64 v13, v[8:9]")
        for aa in range(2):
            d = 244 if aa == 0 else 16
            pack_swap(T, ACCU+16*aa, d)
            for s_ in range(2): t(f"ds_write_b128 v{XO+2*aa+s_}, {vr(d+4*s_,4)} offset:16384")
        t("s_waitcnt lgkmcnt(0)"); t("s_barrier")
        for k in range(4): t(f"ds_read_b64 v[{24+2*k}:{25+2*k}], v12 offset:{256*k}")
        t("v_lshlrev_b32 v232, 4, v240"); t(f"s_add_u32 s33, s31, {EX}"); t("v_add_u32 v232, s33, v232")
        for k in range(4): t(f"ds_read_b128 {vr(96+4*k,4)}, v232 offset:{16384 + k*1024}")
        T.extend(cap(lambda e: (srd(e, 12, 's54', 's55', U_OFF, 8000*512), srd(e, 20, 's54', 's55', G_OFF, 8000*512))))
        t("s_lshl_b32 s56, s35, 14")
        t("s_waitcnt lgkmcnt(4)")
        t("v_add_f32 v24, v24, v26"); t("v_add_f32 v25, v25, v27"); t("v_add_f32 v28, v28, v30"); t("v_add_f32 v29, v29, v31")
        t("v_add_f32 v8, v24, v28"); t("v_add_f32 v9, v25, v29")
        t("v_mul_f32 v8, 0x3b800000, v8"); t("v_mul_f32 v9, 0x3b800000, v9")
        t("v_fma_f32 v9, -v8, v8, v9"); t("v_max_f32 v9, 0, v9"); t("v_add_f32 v9, 0x3727c5ac, v9")
        t("v_rsq_f32 v10, v9"); t("s_nop 0"); t("v_mul_f32 v12, v8, v10"); t("v_sub_f32 v12, 0, v12")
        t("s_waitcnt lgkmcnt(0)")
        for k in range(4): t(f"buffer_store_dwordx4 {vr(96+4*k,4)}, v{DS+k}, s[12:15], s56 offen offset:{k*1024}{ST}")
        for aa in range(2):
            for k in range(8):
                r = ACCG + 16*aa + 2*k
                t(f"v_pk_fma_f32 v[{r}:{r+1}], v[{r}:{r+1}], v[10:11], v[12:13] op_sel_hi:[1,0,0]")
            d = 32 + 8*aa
            pack_swap(T, ACCG+16*aa, d)
            for s_ in range(2): t(f"ds_write_b128 v{XO+2*aa+s_}, {vr(d+4*s_,4)}")
        t("s_waitcnt lgkmcnt(0)"); t("s_barrier")
        for k in range(4): t(f"ds_read_b128 {vr(112+4*k,4)}, v232 offset:{k*1024}")
        for k in range(4):
            t(f"s_waitcnt lgkmcnt({3-k})")
            t(f"buffer_store_dwordx4 {vr(112+4*k,4)}, v{DS+k}, s[20:23], s56 offen offset:{k*1024}{ST}")
        stamp(T, 6)
        finish(T, "K1_CT")
    W = Waiter(); T = []
    for s in range(8): W.issue('vm', ('X', s))
    dma_voff(T, False)
    T += cap(lambda e: (srd(e, 8, 's38', 's39', 0, 131072), srd(e, 12, 's40', 's41', 0, 131072),
                        srd(e, 20, 's54', 's55', XA_OFF, 8000*512), srd(e, 24, 's54', 's55', QF_OFF, 500*8192)))
    emit = [(n, 8, n*SLOT) for n in range(8)]
    for (n, sn, so) in emit[:npre]: emit_tile(T, W, n, sn, so)
    xb_setup(T); vn_setup(T)
    azero(T)
    ln(T, W, emit[npre:o['nln']])
    if FF and not QL: T.append("buffer_load_dword v243, off, s[4:7], 0 sc1"); W.issue('vm', 'TAG')
    publish_id(T, W, 16, "K1_Q_NOID")
    stamp(T, 1)
    ka_setup(T)
    stamp(T, 2)
    T.append("v_lshlrev_b32 v232, 4, v240"); T.append(f"s_add_u32 s33, s31, {EX}"); T.append("v_add_u32 v232, s33, v232")
    for half in range(2):
        for k in range(4):
            T.append(f"ds_read_b128 {vr(ACC[1]+(half*4+k)*4,4)}, v232 offset:{half*SLOT + k*1024}")
    T.append("s_waitcnt lgkmcnt(0)")
    T.append("s_lshl_b32 s34, s35, 15"); T.append("s_add_u32 s56, s34, 16384")
    xfill = []
    for half in range(2):
        for k in range(4):
            xfill.append((f"buffer_store_dwordx4 {vr(ACC[1]+(half*4+k)*4,4)}, v{DS+k}, s[20:23], {'s56' if half else 's34'} offen offset:{k*1024}{ST}", ('XS', half, k)))
    later = std_later(12)
    rest = emit[o['nln']:]
    if rest:
        later[0] = rest[:2]; later[1] = rest[2:4]
        if later[1] == [] : del later[1]
    tl0 = phase(W, 0, 'Y', later, fill=(AZ if o.get('azph0') else None), f0=2)
    for i, (txt, tag) in enumerate(xfill): tl0.add(1 + 2*i, 'vm', txt, tag=tag, prio=7)
    T += tl0.linearize()
    stamp(T, 3)
    exchange(T, W, ACC[0], 'Y', xaflag=FF and o.get('xaflag', True))
    stamp(T, 4)
    T.append("v_mov_b32 v236, 0x3db8aa3b")
    T.append("s_lshl_b32 s33, s35, 2"); T.append("s_lshl_b32 s34, s29, 1"); T.append("s_add_u32 s33, s33, s34"); T.append("s_lshl_b32 s33, s33, 13")
    T.append("s_lshl_b32 s34, s30, 10"); T.append("s_add_u32 s33, s33, s34")
    T.append("v_lshrrev_b32 v232, 4, v242"); T.append("v_lshlrev_b32 v232, 13, v232")
    T.append("v_and_b32 v233, 15, v242"); T.append("v_lshl_add_u32 v233, v241, 4, v233")
    T.append("v_lshl_add_u32 v232, v233, 4, v232"); T.append("v_add_u32 v232, s33, v232")
    for a in range(1, 4): T.append(f"v_add_u32 v{232+a}, {a*2048}, v232")
    if QL:
        T += cap(lambda e: srd(e, 16, 's54', 's55', FL_OFF, FL_SIZE))
        for k, add in enumerate((0, 63)):
            T.append(f"s_lshl_b32 s33, s35, 6"); T.append(f"s_add_u32 s33, s33, {add}")
            T.append("s_cmp_ge_u32 s33, 4000"); T.append("s_cselect_b32 s34, 4000, 0"); T.append("s_cselect_b32 s56, 32, 0")
            T.append("s_sub_u32 s33, s33, s34"); T.append("s_lshr_b32 s33, s33, 7"); T.append("s_add_u32 s33, s33, s56")
            T.append("s_lshl_b32 s33, s33, 7"); T.append("s_add_u32 s33, s33, 16")
            T.append(f"buffer_load_dwordx4 v[{96+4*k}:{99+4*k}], off, s[16:19], s33 sc1"); W.issue('vm', ('IDW', k))
    def qepi(a):
        ls = []
        d = ACC[0] + 8*a
        pack_swap(ls, ACC[1]+16*a, d, scale="v[236:237]")
        st = []
        for s in range(2):
            base = f"buffer_store_dwordx4 {vr(d+4*s,4)}, v{232+a}, s[24:27], 0 offen offset:{s*512}"
            if QL:
                st.append([f"s_cbranch_vccz K1_QS{a}{s}R", base, f"s_branch K1_QS{a}{s}E", f"K1_QS{a}{s}R:", base + ST, f"K1_QS{a}{s}E:"])
            else:
                st.append([base + ST])
        return ls, st
    tl1 = phase(W, 1, 'X', later)
    if QL:
        chk = []
        for r in range(8): chk.append(f"v_xor_b32 v{96+r}, s57, v{96+r}")
        chk += ["v_or_b32 v96, v96, v97", "v_or_b32 v98, v98, v99", "v_or_b32 v100, v100, v101", "v_or_b32 v102, v102, v103",
                "v_or_b32 v96, v96, v98", "v_or_b32 v100, v100, v102", "v_or_b32 v96, v96, v100", "s_nop 0",
                "v_readfirstlane_b32 s33, v96", "s_nop 3", "s_cmp_eq_u32 s3, 0", "s_cselect_b32 s33, 1, s33",
                "s_cmp_eq_u32 s33, 0", "s_cselect_b64 vcc, -1, 0"]
        T.append("s_xor_b32 s57, s99, s3")
        tl1.add(12, 'block', lines=chk, needvm=[('IDW', 0), ('IDW', 1)], prio=4)
    if o.get('qprog', True):
        for a in range(3):
            ls, st = qepi(a)
            t0 = 16*(a+1) + 4
            for i, ins in enumerate(ls): tl1.add(t0 + i*0.4, 'txt', ins, prio=4)
            for i, ins in enumerate(st): tl1.add(t0 + len(ls)*0.4 + 0.5 + i, 'vmblock', lines=ins, tag=('QS', a, i), prio=7)
    T += tl1.linearize()
    stamp(T, 5)
    T.append("s_nop 15")
    for a in (range(3, 4) if o.get('qprog', True) else range(4)):
        ls, st = qepi(a)
        T += ls + sum(st, [])
    finish(T, "K1_Q")

    if o.get('ufirst', False):
        W = Waiter(); T = []
        for s in range(8): W.issue('vm', ('X', s))
        dma_voff(T, True)
        T += cap(lambda e: (srd(e, 8, 's46', 's47', 0, 262144),
                            srd(e, 20, 's54', 's55', U_OFF, 8000*512), srd(e, 24, 's54', 's55', G_OFF, 8000*512)))
        emit = [(n, 8, n*32768) for n in range(8)]
        for (n, sn, so) in emit[:npre]: emit_tile(T, W, n, sn, so)
        if PT: prefetch_block(T, W)
        xb_setup(T); vn_setup(T)
        azero(T)
        ln(T, W, emit[npre:o['nln']])
        if FF and not QL: T.append("buffer_load_dword v243, off, s[4:7], 0 sc1"); W.issue('vm', 'TAG')
        publish_id(T, W, 16, "K1_UG_NOID")
        stamp(T, 2)
        gl = lambda n: (n, 8, (n-8)*32768 + 512)
        later = {2: [gl(8), gl(9)], 3: [gl(10), gl(11)], 4: [gl(12), gl(13)], 5: [gl(14), gl(15)]}
        rest = emit[o['nln']:]
        if rest:
            later[0] = rest[:2]; later[1] = rest[2:4]
        T += phase(W, 0, 'Y', later, fill=(AZ if o.get('azph0') else None), f0=2).linearize()
        stamp(T, 3)
        T.append("v_lshlrev_b32 v232, 4, v240"); T.append(f"s_add_u32 s33, s31, {EX}"); T.append("v_add_u32 v232, s33, v232")
        T.append("s_lshl_b32 s56, s35, 15"); T.append("s_add_u32 s57, s56, 16384")
        uw = [('UW', a, s) for a in range(4) for s in range(2)]
        tl1 = phase(W, 1, 'Y', later, bar_lgkm={6: uw})
        for a in range(4):
            ls = []
            pack_swap(ls, ACC[0]+16*a, ACC[0]+16*a)
            t0 = 3 + 5*a
            for i, ins in enumerate(ls): tl1.add(t0 + i*0.3, 'txt', ins, prio=4)
            for s in range(2):
                tl1.add(t0 + 4.5 + 0.2*s, 'lds', f"ds_write_b128 v{XB+2*a+s}, {vr(ACC[0]+16*a+4*s,4)}", tag=('UW', a, s), prio=4)
        for r in range(8):
            reg = ACC[0] + 16*(r >> 1) + 8 + 4*(r & 1)
            half, k = r >> 2, r & 3
            tl1.add(27 + r*0.5, 'lds', f"ds_read_b128 {vr(reg,4)}, v232 offset:{half*SLOT + k*1024}", tag=('UR', r), prio=3)
            tl1.add(36 + 3*r, 'vm', f"buffer_store_dwordx4 {vr(reg,4)}, v{DS+k}, s[20:23], {'s57' if half else 's56'} offen offset:{k*1024}{ST}", tag=('US', r), need=[('UR', r)], prio=7)
        T += tl1.linearize()
        stamp(T, 5)
        T.append("s_nop 15")
        k0 = -2.0*1.4426950408889634*0.7978845608028654
        T.append(f"v_mov_b32 v232, {fb(k0)}"); T.append(f"v_mov_b32 v234, {fb(k0*0.044715)}"); T.append("v_mov_b32 v236, 1.0")
        for k in range(4): T.append(f"v_mov_b32 v{252+k}, 0")
        def gelu(r):
            t = 244 + 2*((r//2) % 4)
            X = f"v[{r}:{r+1}]"; Tt = f"v[{t}:{t+1}]"
            return [f"v_pk_mul_f32 {Tt}, {X}, {X}",
                    f"v_pk_fma_f32 {Tt}, {Tt}, v[234:235], v[232:233] op_sel_hi:[1,0,0]",
                    f"v_pk_mul_f32 {Tt}, {Tt}, {X}",
                    f"v_exp_f32 v{t}, v{t}", f"v_exp_f32 v{t+1}, v{t+1}",
                    f"v_pk_add_f32 {Tt}, {Tt}, v[236:237] op_sel_hi:[1,0]",
                    f"v_rcp_f32 v{t}, v{t}", f"v_rcp_f32 v{t+1}, v{t+1}",
                    f"v_pk_mul_f32 {X}, {X}, {Tt}",
                    f"v_pk_add_f32 v[252:253], v[252:253], {X}",
                    f"v_pk_fma_f32 v[254:255], {X}, {X}, v[254:255]"]
        g0 = ACC[1]
        for b in range(g0, g0+64, 8):
            cols = [gelu(b+2*k) for k in range(4)]
            for i in range(11):
                for k in range(4): T.append(cols[k][i])
        stamp(T, 6)
        T.append("v_add_f32 v8, v252, v253"); T.append("v_add_f32 v10, v254, v255")
        T.append("v_mov_b32 v9, v8"); T.append("v_mov_b32 v11, v10"); T.append("s_nop 1")
        T.append("v_permlane32_swap_b32 v8, v9"); T.append("v_permlane32_swap_b32 v10, v11"); T.append("s_nop 1")
        T.append("v_add_f32 v8, v8, v9"); T.append("v_add_f32 v9, v10, v11")
        T.append("s_lshl_b32 s33, s29, 1"); T.append("s_add_u32 s33, s33, s30"); T.append("s_lshl_b32 s33, s33, 9"); T.append("s_add_u32 s33, s33, 32768")
        T.append("v_lshlrev_b32 v12, 3, v240"); T.append("v_add_u32 v13, s33, v12")
        T.append("s_xor_b32 s33, s33, 512"); T.append("v_add_u32 v14, s33, v12")
        T.append("ds_write_b64 v13, v[8:9]")
        for jj in range(8): T.append(f"v_subrev_u32 v{XB+jj}, {EX}, v{XB+jj}")
        T.append("v_lshlrev_b32 v15, 4, v240"); T.append("v_add_u32 v15, s31, v15")
        T.append("s_waitcnt lgkmcnt(0)"); T.append("s_barrier")
        T.append("ds_read_b64 v[10:11], v14"); T.append("s_waitcnt lgkmcnt(0)")
        T.append("v_add_f32 v8, v8, v10"); T.append("v_add_f32 v9, v9, v11")
        T.append("v_mul_f32 v8, 0x3b800000, v8"); T.append("v_mul_f32 v9, 0x3b800000, v9")
        T.append("v_fma_f32 v9, -v8, v8, v9"); T.append("v_max_f32 v9, 0, v9"); T.append("v_add_f32 v9, 0x3727c5ac, v9")
        T.append("v_rsq_f32 v10, v9"); T.append("s_nop 0")
        T.append("v_mul_f32 v12, v8, v10"); T.append("v_sub_f32 v12, 0, v12")
        for a in range(4):
            for k in range(8):
                r = g0 + 16*a + 2*k
                T.append(f"v_pk_fma_f32 v[{r}:{r+1}], v[{r}:{r+1}], v[10:11], v[12:13] op_sel_hi:[1,0,0]")
            pack_swap(T, g0+16*a, 16+8*a)
            for s in range(2):
                T.append(f"ds_write_b128 v{XB+2*a+s}, {vr(16+8*a+4*s,4)}")
        T.append("s_waitcnt lgkmcnt(0)"); T.append("s_barrier")
        for half in range(2):
            for k in range(4):
                T.append(f"ds_read_b128 {vr(ACC[0]+(half*4+k)*4,4)}, v15 offset:{half*SLOT + k*1024}")
        DEF = FF and o.get('defer', True)
        if DEF:
            T.append("s_mov_b32 s88, s56"); T.append("s_mov_b32 s89, s57"); T.append("s_mov_b32 s98, 1")
        else:
            for half in range(2):
                for k in range(4):
                    T.append(f"s_waitcnt lgkmcnt({7 - (half*4+k)})")
                    T.append(f"buffer_store_dwordx4 {vr(ACC[0]+(half*4+k)*4,4)}, v{DS+k}, s[24:27], {'s57' if half else 's56'} offen offset:{k*1024}{ST}")
        stamp(T, 7)
    else:
        W = Waiter(); T = []
        for s in range(8): W.issue('vm', ('X', s))
        dma_voff(T, True)
        T += cap(lambda e: (srd(e, 8, 's46', 's47', 0, 262144),
                            srd(e, 20, 's54', 's55', U_OFF, 8000*512), srd(e, 24, 's54', 's55', G_OFF, 8000*512)))
        emit = [(n, 8, n*32768 + 512) for n in range(8)]
        for (n, sn, so) in emit[:npre]: emit_tile(T, W, n, sn, so)
        if PT: prefetch_block(T, W)
        xb_setup(T); vn_setup(T)
        azero(T)
        ln(T, W, emit[npre:o['nln']])
        if FF and not QL: T.append("buffer_load_dword v243, off, s[4:7], 0 sc1"); W.issue('vm', 'TAG')
        publish_id(T, W, 16, "K1_UG_NOID")
        stamp(T, 2)
        gl = lambda n: (n, 8, (n-8)*32768)
        later = {2: [gl(8), gl(9)], 3: [gl(10), gl(11)], 4: [gl(12), gl(13)], 5: [gl(14), gl(15)]}
        rest = emit[o['nln']:]
        if rest:
            later[0] = rest[:2]; later[1] = rest[2:4]
        T += phase(W, 0, 'Y', later, fill=(AZ if o.get('azph0') else None), f0=2).linearize()
        stamp(T, 3)
        k0 = -2.0*1.4426950408889634*0.7978845608028654
        T.append(f"v_mov_b32 v232, {fb(k0)}"); T.append(f"v_mov_b32 v234, {fb(k0*0.044715)}"); T.append("v_mov_b32 v236, 1.0")
        for k in range(4): T.append(f"v_mov_b32 v{252+k}, 0")
        def gelu(r):
            t = 244 + 2*((r//2) % 4)
            X = f"v[{r}:{r+1}]"; Tt = f"v[{t}:{t+1}]"
            if o.get('unpk', True):
                return [f"v_mul_f32 v{t}, v{r}, v{r}", f"v_mul_f32 v{t+1}, v{r+1}, v{r+1}",
                        f"v_fma_f32 v{t}, v{t}, v234, v232", f"v_fma_f32 v{t+1}, v{t+1}, v234, v232",
                        f"v_mul_f32 v{t}, v{t}, v{r}", f"v_mul_f32 v{t+1}, v{t+1}, v{r+1}",
                        f"v_exp_f32 v{t}, v{t}", f"v_exp_f32 v{t+1}, v{t+1}",
                        f"v_add_f32 v{t}, 1.0, v{t}", f"v_add_f32 v{t+1}, 1.0, v{t+1}",
                        f"v_rcp_f32 v{t}, v{t}", f"v_rcp_f32 v{t+1}, v{t+1}",
                        f"v_mul_f32 v{r}, v{r}, v{t}", f"v_mul_f32 v{r+1}, v{r+1}, v{t+1}",
                        f"v_add_f32 v252, v252, v{r}", f"v_add_f32 v253, v253, v{r+1}",
                        f"v_fmac_f32 v254, v{r}, v{r}", f"v_fmac_f32 v255, v{r+1}, v{r+1}"]
            return [f"v_pk_mul_f32 {Tt}, {X}, {X}",
                    f"v_pk_fma_f32 {Tt}, {Tt}, v[234:235], v[232:233] op_sel_hi:[1,0,0]",
                    f"v_pk_mul_f32 {Tt}, {Tt}, {X}",
                    f"v_exp_f32 v{t}, v{t}", f"v_exp_f32 v{t+1}, v{t+1}",
                    f"v_pk_add_f32 {Tt}, {Tt}, v[236:237] op_sel_hi:[1,0]",
                    f"v_rcp_f32 v{t}, v{t}", f"v_rcp_f32 v{t+1}, v{t+1}",
                    f"v_pk_mul_f32 {X}, {X}, {Tt}",
                    f"v_pk_add_f32 v[252:253], v[252:253], {X}",
                    f"v_pk_fma_f32 v[254:255], {X}, {X}, v[254:255]"]
        fill = []
        g0 = ACC[0]
        for b in range(g0, g0+64, 8):
            cols = [gelu(b+2*k) for k in range(4)]
            for i in range(len(cols[0])):
                for k in range(4): fill.append(cols[k][i])
        T += phase(W, 1, 'Y', later, fill=fill, f0=4).linearize()
        stamp(T, 5)
        T.append("v_add_f32 v8, v252, v253"); T.append("v_add_f32 v10, v254, v255")
        T.append("v_mov_b32 v9, v8"); T.append("v_mov_b32 v11, v10"); T.append("s_nop 1")
        T.append("v_permlane32_swap_b32 v8, v9"); T.append("v_permlane32_swap_b32 v10, v11"); T.append("s_nop 1")
        T.append("v_add_f32 v8, v8, v9"); T.append("v_add_f32 v9, v10, v11")
        T.append("s_lshl_b32 s33, s29, 1"); T.append("s_add_u32 s33, s33, s30"); T.append("s_lshl_b32 s33, s33, 9"); T.append("s_add_u32 s33, s33, 32768")
        T.append("v_lshlrev_b32 v12, 3, v240"); T.append("v_add_u32 v13, s33, v12")
        T.append("s_xor_b32 s33, s33, 512"); T.append("v_add_u32 v14, s33, v12")
        T.append("ds_write_b64 v13, v[8:9]")
        for a in range(4):
            d = 244 if a % 2 == 0 else 16
            pack_swap(T, ACC[1]+16*a, d)
            for s in range(2):
                T.append(f"ds_write_b128 v{XB+2*a+s}, {vr(d+4*s,4)}")
        T.append("s_waitcnt lgkmcnt(0)"); T.append("s_barrier")
        T.append("ds_read_b64 v[10:11], v14")
        T.append("v_lshlrev_b32 v15, 4, v240"); T.append("v_add_u32 v15, s31, v15"); T.append(f"v_add_u32 v232, {EX}, v15")
        for half in range(2):
            for k in range(4):
                T.append(f"ds_read_b128 {vr(ACC[1]+(half*4+k)*4,4)}, v232 offset:{half*SLOT + k*1024}")
        for jj in range(8): T.append(f"v_subrev_u32 v{XB+jj}, {EX}, v{XB+jj}")
        T.append("s_waitcnt lgkmcnt(8)")
        T.append("v_add_f32 v8, v8, v10"); T.append("v_add_f32 v9, v9, v11")
        T.append("v_mul_f32 v8, 0x3b800000, v8"); T.append("v_mul_f32 v9, 0x3b800000, v9")
        T.append("v_fma_f32 v9, -v8, v8, v9"); T.append("v_max_f32 v9, 0, v9"); T.append("v_add_f32 v9, 0x3727c5ac, v9")
        T.append("v_rsq_f32 v10, v9"); T.append("s_nop 0")
        T.append("v_mul_f32 v12, v8, v10"); T.append("v_sub_f32 v12, 0, v12")
        T.append("s_lshl_b32 s32, s35, 15"); T.append("s_add_u32 s56, s32, 16384")
        T.append("s_waitcnt lgkmcnt(0)")
        ust = [f"buffer_store_dwordx4 {vr(ACC[1]+(half*4+k)*4,4)}, v{DS+k}, s[20:23], {'s56' if half else 's32'} offen offset:{k*1024}{ST}" for half in range(2) for k in range(4)]
        for a in range(4):
            for k in range(8):
                r = g0 + 16*a + 2*k
                T.append(f"v_pk_fma_f32 v[{r}:{r+1}], v[{r}:{r+1}], v[10:11], v[12:13] op_sel_hi:[1,0,0]")
            T.append(ust.pop(0))
            pack_swap(T, g0+16*a, 16+8*a)
            for s in range(2):
                T.append(f"ds_write_b128 v{XB+2*a+s}, {vr(16+8*a+4*s,4)}")
            T.append(ust.pop(0))
        stamp(T, 6)
        T.append("s_waitcnt lgkmcnt(0)"); T.append("s_barrier")
        for half in range(2):
            for k in range(4):
                T.append(f"ds_read_b128 {vr(ACC[0]+(half*4+k)*4,4)}, v15 offset:{half*SLOT + k*1024}")
        DEF = FF and o.get('defer', True)
        if DEF:
            T.append("s_mov_b32 s88, s32"); T.append("s_mov_b32 s89, s56"); T.append("s_mov_b32 s98, 1")
        else:
            for half in range(2):
                for k in range(4):
                    T.append(f"s_waitcnt lgkmcnt({7 - (half*4+k)})")
                    T.append(f"buffer_store_dwordx4 {vr(ACC[0]+(half*4+k)*4,4)}, v{DS+k}, s[24:27], {'s56' if half else 's32'} offen offset:{k*1024}{ST}")
        stamp(T, 7)
    finish(T, "K1_UG")

    def wf_store(T, acc, which, slice_sreg):
        T.append(f"s_lshl_b32 s33, {slice_sreg}, 2"); T.append("s_lshl_b32 s34, s29, 1"); T.append("s_add_u32 s33, s33, s34"); T.append("s_lshl_b32 s33, s33, 14")
        T.append("s_lshl_b32 s34, s30, 10"); T.append("s_add_u32 s33, s33, s34")
        if which == 2: T.append("s_add_u32 s33, s33, 8192")
        T.append("v_lshrrev_b32 v232, 4, v242"); T.append("v_lshlrev_b32 v232, 14, v232")
        T.append("v_and_b32 v233, 15, v242"); T.append("v_lshl_add_u32 v233, v241, 4, v233")
        T.append("v_lshl_add_u32 v232, v233, 4, v232"); T.append("v_add_u32 v232, s33, v232")
        for a in range(4):
            d = 244; src = acc + 16*a
            if which == 1:
                for k, r in enumerate((0, 2, 8, 10, 4, 6, 12, 14)):
                    T.append(f"v_cvt_pk_bf16_f32 v{d+k}, v{src+r}, v{src+r+1}")
            else:
                pack_swap(T, src, d)
            T.append(f"s_mov_b32 s33, {a*2048}")
            for s in range(2):
                T.append(f"buffer_store_dwordx4 {vr(d+4*s,4)}, v232, s[24:27], s33 offen offset:{s*512}{ST}")
            T.append("s_nop 1")
    W = Waiter(); T = []
    dma_voff(T, False)
    T.append("s_sub_u32 s35, s2, 250")
    T += cap(lambda e: (srd(e, 16, 's52', 's53', 0, 262144), srd(e, 8, 's44', 's45', 0, 131072), srd(e, 12, 's42', 's43', 0, 131072),
                        srd(e, 24, 's54', 's55', WF_OFF, 262144)))
    narrow(T, W, 0, 's35')
    for n in range(3): emit_tile(T, W, n, 8, n*SLOT)
    ka_setup(T)
    azero(T, True)
    narrow_read(T, W)
    for n in range(3, 8): emit_tile(T, W, n, 8, n*SLOT)
    if FF: T.append("buffer_load_dword v243, off, s[4:7], 0 sc1"); W.issue('vm', 'TAG')
    publish_id(T, W, 20, "K1_W1_NOID")
    later = std_later(12)
    T += phase(W, 0, 'X', later).linearize()
    T.append("s_barrier")
    exchange(T, W, ACC[0], 'X')
    T += phase(W, 1, 'X', later).linearize()
    T.append("s_nop 15")
    wf_store(T, ACC[1], 1, 's35')
    finish(T, "K1_W1")

    W = Waiter(); T = []
    if not FUSED: T += cap(lambda e: srd(e, 20, 's54', 's55', FL_OFF, 8192))
    if not FUSED:
        T.append("v_lshlrev_b32 v232, 5, v0")
        for k in range(4): T.append(f"v_mov_b32 v{236+k}, 0")
        T.append("buffer_store_dwordx4 v[236:239], v232, s[20:23], 0 offen sc1")
        T.append("buffer_store_dwordx4 v[236:239], v232, s[20:23], 0 offen offset:16 sc1")
        W.issue('vm', 'Z0'); W.issue('vm', 'Z1')
    dma_voff(T, False)
    T.append("s_sub_u32 s35, s2, 254"); T.append("s_lshl_b32 s35, s35, 1")
    T += cap(lambda e: (srd(e, 16, 's52', 's53', 0, 262144), srd(e, 8, 's50', 's51', 0, 131072),
                        srd(e, 24, 's54', 's55', WF_OFF, 262144)))
    narrow(T, W, 131072, 's35')
    for n in range(3): emit_tile(T, W, n, 8, n*SLOT)
    ka_setup(T)
    azero(T, True)
    narrow_read(T, W)
    for n in range(3, 8): emit_tile(T, W, n, 8, n*SLOT)
    if FF: T.append("buffer_load_dword v243, off, s[4:7], 0 sc1"); W.issue('vm', 'TAG')
    publish_id(T, W, 20, "K1_W2_NOID")
    T.append("s_barrier")
    T.append("s_add_u32 s56, s35, 1")
    narrow(T, W, 131072, 's56')
    later = std_later(8)
    T += phase(W, 0, 'X', later).linearize()
    T.append("s_nop 15")
    wf_store(T, ACC[0], 2, 's35')
    for i in range(8): W.issue('vm', ('WS', i))
    narrow_read(T, W)
    T += phase(W, 1, 'X', later).linearize()
    T.append("s_nop 15")
    wf_store(T, ACC[1], 2, 's56')
    finish(T, "K1_W2")

    e("K1_FIN:")
    if FUSED:
        if o['stamp']:
            e("s_memtime s[64:65]"); e("s_memrealtime s[66:67]"); e("s_waitcnt lgkmcnt(0)")
            e("s_cmp_eq_u32 s28, 0"); e("s_cbranch_scc0 K1_NOST")
            e("s_add_u32 s68, s54, 0x8100000"); e("s_addc_u32 s69, s55, 0"); e("s_mov_b32 s70, 0x100000"); e("s_mov_b32 s71, 0x20000")
            for k, r in enumerate([60, 64, 62, 66]): e(f"v_mov_b32 v{232+k}, s{r}")
            e("s_lshl_b32 s33, s2, 4"); e("v_mov_b32 v236, s33")
            e("buffer_store_dwordx4 v[232:235], v236, s[68:71], 0 offen")
            for k in range(8): e(f"v_mov_b32 v{244+k}, s{72+2*k}")
            e("s_lshl_b32 s33, s2, 5"); e("s_add_u32 s33, s33, 0x10000"); e("v_mov_b32 v236, s33")
            e("buffer_store_dwordx4 v[244:247], v236, s[68:71], 0 offen")
            e("buffer_store_dwordx4 v[248:251], v236, s[68:71], 0 offen offset:16")
            e("K1_NOST:")
        if FF:
            e("s_lshl_b32 s33, s2, 7")
            fa, fb_ = (FLU, FLQ) if o.get('ugfirst', True) else (FLQ, FLU)
            e(f"s_add_u32 s67, s33, {fa}")
            if QL:
                e("s_lshl_b32 s56, s35, 7"); e(f"s_add_u32 s56, s56, {FLQ}")
            else:
                e(f"s_add_u32 s56, s33, {fb_ - 125*128}")
            e("s_cmp_ge_u32 s2, 125"); e("s_cselect_b32 s67, s56, s67")
            e(f"s_add_u32 s56, s33, {FLW - 250*128}"); e("s_cmp_ge_u32 s2, 250"); e("s_cselect_b32 s67, s56, s67")
            for k in range(4): e(f"s_mov_b32 s{92+k}, s{4+k}")
            for x in ["s_mov_b32 s4, s54", "s_mov_b32 s5, s55", "s_mov_b32 s32, s48", "s_mov_b32 s33, s49", "s_mov_b32 s40, s100", "s_mov_b32 s41, s101", "s_mov_b32 s48, s28", "s_mov_b32 s101, 0"]: e(x)
            return L, [], []
        e("K1_TAGP:")
        e("buffer_load_dword v232, off, s[4:7], 0 sc1")
        e("s_waitcnt vmcnt(0) lgkmcnt(0)")
        e("v_readfirstlane_b32 s3, v232")
        e("s_nop 3")
        e("s_cmp_lg_u32 s3, 0"); e("s_cbranch_scc1 K1_TAGD"); e("s_sleep 1")
        e("s_add_u32 s101, s101, 1"); e("s_cmp_lt_u32 s101, 0x400000"); e("s_cbranch_scc1 K1_TAGP")
        e("K1_TAGD:")
        e("s_barrier")
        e("s_cmp_eq_u32 s28, 0"); e("s_cbranch_scc0 K1_NOFL")
        e("s_lshl_b32 s33, s2, 7")
        fa, fb_ = (FLU, FLQ) if o.get('ugfirst', True) else (FLQ, FLU)
        if CT:
            e(f"s_add_u32 s34, s33, {FLU}")
        else:
            e(f"s_add_u32 s34, s33, {fa}")
            e(f"s_add_u32 s56, s33, {fb_ - 125*128}"); e("s_cmp_ge_u32 s2, 125"); e("s_cselect_b32 s34, s56, s34")
        e(f"s_add_u32 s56, s33, {FLW - 250*128}"); e("s_cmp_ge_u32 s2, 250"); e("s_cselect_b32 s34, s56, s34")
        srd(e, 8, 's54', 's55', FL_OFF, FL_SIZE)
        e("v_mov_b32 v232, s3")
        e("v_cmp_eq_u32 vcc, 0, v240"); e("s_and_saveexec_b64 s[56:57], vcc")
        e("buffer_store_dword v232, off, s[8:11], s34 sc1")
        if CT:
            e(f"s_add_u32 s34, s33, {FLQ}"); e("s_cmp_lt_u32 s2, 250"); e("s_cbranch_scc0 K1_NOFL2")
            e("buffer_store_dword v232, off, s[8:11], s34 sc1")
            e("K1_NOFL2:")
        e("s_mov_b64 exec, s[56:57]")
        e("K1_NOFL:")
        e("s_mov_b32 s48, s28")
        return L, [], []
    if o['stamp']:
        e("s_waitcnt vmcnt(0)")
        e("s_memtime s[64:65]"); e("s_memrealtime s[66:67]")
        e("s_waitcnt lgkmcnt(0)")
        e("s_cmp_eq_u32 s28, 0"); e("s_cbranch_scc0 K1_END")
        e("s_add_u32 s68, s54, 0x8100000"); e("s_addc_u32 s69, s55, 0"); e("s_mov_b32 s70, 0x100000"); e("s_mov_b32 s71, 0x20000")
        for k, r in enumerate([60, 64, 62, 66]): e(f"v_mov_b32 v{232+k}, s{r}")
        e("s_lshl_b32 s33, s2, 4"); e("v_mov_b32 v236, s33")
        e("buffer_store_dwordx4 v[232:235], v236, s[68:71], 0 offen")
        for k in range(8): e(f"v_mov_b32 v{244+k}, s{72+2*k}")
        e("s_lshl_b32 s33, s2, 5"); e("s_add_u32 s33, s33, 0x10000"); e("v_mov_b32 v236, s33")
        e("buffer_store_dwordx4 v[244:247], v236, s[68:71], 0 offen")
        e("buffer_store_dwordx4 v[248:251], v236, s[68:71], 0 offen offset:16")
    e("K1_END:")
    e("s_endpgm")
    return L, kernel_desc(name, 288, 256), []
```

```python
from gen_common import *
import hazard, struct
SLOT = 16384
M16 = "v_mfma_f32_16x16x32_bf16"
fb = lambda x: hex(struct.unpack('<I', struct.pack('<f', x))[0])
EXT = 131072
MX = EXT
OWN = EXT + 4096
OWNML = EXT + 20480
ACT = 0

def gen_k2f(opt=None):
    o = dict(DF=3, stamp=False, bslot=8, dma0=10, dmastep=4, e0=37, e1=93, estep=4, cvtd=1, addd=1, fused=True)
    if opt: o.update(opt)
    name = 'attn_kernel'
    L = []; e = L.append
    O = 0; S = 128; P = [160, 176]; NEGM = 192; RING = 208; KA = 232; VA = 236; DV = 244; LS = 248; MREF = 252
    aQ = 0; aO = 128
    def Oreg(dt, qt): return vr(O + (dt*2+qt)*4, 4) if qt < 2 else ar(aO + (dt*2+qt-2)*4, 4)
    def Sreg(kt, qt): return S + (kt*4+qt)*4
    FUSED = o.get('fusedk')
    CS = ' sc1' if (FUSED and o.get('csc1', True)) else ''
    if not FUSED:
        L += kernel_header(name)
        e("s_cmp_ge_u32 s2, 256")
        e("s_cbranch_scc1 K2_END")
    FF = FUSED and o.get('fastfin')
    LEAN = FF and o.get('lean', True)
    if not FF:
        e("s_load_dwordx2 s[4:5], s[0:1], 88")
        e("s_load_dwordx2 s[6:7], s[0:1], 80")
        e("s_load_dwordx2 s[36:37], s[0:1], 0")
        e("s_load_dwordx2 s[32:33], s[0:1], 48")
        e("s_load_dwordx2 s[40:41], s[0:1], 72")
    if o['stamp']:
        e("s_memtime s[72:73]"); e("s_memrealtime s[74:75]")
    T = []; t = T.append
    if FUSED:
        t("v_mbcnt_lo_u32_b32 v131, -1, 0"); t("v_mbcnt_hi_u32_b32 v131, -1, v131")
    else:
        t("v_lshrrev_b32 v130, 6, v0")
        t("v_and_b32 v131, 63, v0")
        t("v_readfirstlane_b32 s48, v130")
    t("s_and_b32 s60, s2, 7")
    t("s_lshr_b32 s61, s2, 3")
    t("s_lshr_b32 s51, s60, 2")
    t("s_and_b32 s53, s61, 3")
    t("s_lshr_b32 s61, s61, 2")
    t("s_and_b32 s52, s60, 3")
    t("s_lshl_b32 s52, s52, 3")
    t("s_add_u32 s52, s52, s61")
    t("s_and_b32 s49, s48, 1")
    t("s_lshr_b32 s50, s48, 1")
    t("s_lshl_b32 s54, s53, 5")
    t("s_lshl_b32 s60, s50, 4")
    t("s_add_u32 s54, s54, s60")
    t("s_max_u32 s60, s53, 1")
    t("s_sub_u32 s60, s60, 1")
    t("s_sub_u32 s54, s54, s60")
    t("s_min_u32 s60, s53, 1")
    t("s_and_b32 s60, s60, s50")
    t("s_sub_u32 s55, 16, s60")
    t("s_lshl_b32 s55, s55, 14")
    t("s_cmp_eq_u32 s60, 1")
    t("s_cselect_b32 s59, 3, 0xffff")
    t("s_lshl_b32 s54, s54, 14")
    t("s_mul_i32 s60, s51, 2048000")
    t("s_add_u32 s54, s54, s60")
    def dv_setup(t):
        t("v_and_b32 v132, 15, v131")
        t("v_lshrrev_b32 v133, 4, v131")
        t("v_lshrrev_b32 v134, 5, v131")
        t("v_and_b32 v135, 31, v131")
        t("s_lshl_b32 s60, s49, 13")
        for k in range(4):
            t(f"v_add_u32 v136, {2*k}, v134")
            t("v_lshlrev_b32 v136, 1, v136")
            t("v_xor_b32 v136, v135, v136")
            t("v_lshlrev_b32 v136, 4, v136")
            t("v_lshl_add_u32 v136, v134, 9, v136")
            t(f"v_add_u32 v{DV+k}, s60, v136")
    dv_setup(t)
    t("s_waitcnt lgkmcnt(0)")
    def S_(fn):
        buf = []; fn(buf.append); T.extend(buf)
    S_(lambda e: srd(e, 8, 's4', 's5', 's54', 's55'))
    t("s_mul_i32 s60, s51, 2048000"); t(f"s_add_u32 s60, s60, {QF_OFF:#x}")
    S_(lambda e: srd(e, 12, 's4', 's5', 's60', 250*8192))
    t("s_getreg_b32 s63, hwreg(HW_REG_XCC_ID, 0, 3)")
    t("s_or_b32 s63, s63, 8")
    S_(lambda e: srd(e, 44, 's4', 's5', FL_OFF, FL_SIZE if FUSED else 8192))
    t("s_lshl_b32 s65, s51, 5"); t("s_add_u32 s65, s65, s52")
    xcc0 = len(T)
    t("s_cmp_eq_u32 s48, 0"); t("s_cbranch_scc0 K2_NOXCC")
    t("s_lshl_b32 s60, s65, 7"); t("s_lshl_b32 s61, s53, 2"); t("s_add_u32 s60, s60, s61")
    if FUSED:
        t("s_add_u32 s60, s60, 16"); t("s_xor_b32 s61, s63, s3"); t("v_mov_b32 v137, s61")
    else:
        t("v_mov_b32 v137, s63")
    t("v_cmp_eq_u32 vcc, 0, v131"); t("s_and_saveexec_b64 s[70:71], vcc")
    t("buffer_store_dword v137, off, s[44:47], s60 sc1")
    t("s_mov_b64 exec, s[70:71]")
    t("K2_NOXCC:")
    xcc_blk = T[xcc0:]
    if FUSED: del T[xcc0:]
    t("s_lshl_b32 s56, s50, 16"); t("s_lshl_b32 s60, s49, 13"); t("s_add_u32 s56, s56, s60")
    t("s_mov_b32 s57, 0"); t("s_mov_b32 s54, 0")
    def cap_(fn):
        buf = []; fn(buf.append); return buf
    def dma_lines(slot):
        r = []
        for k in range(8):
            if k % 4 == 0:
                r.append((f"s_add_u32 m0, s56, {slot*SLOT + (k//4)*4096:#x}", False))
                if k: r.append(("s_add_u32 s57, s57, 4096", False))
                else: r.append(("s_nop 0", False))
            r.append((f"buffer_load_dwordx4 v{DV+k%4}, s[8:11], s57 offen offset:{(k%4)*1024}{CS} lds", True))
        r.append((f"s_add_u32 s57, s57, {SLOT-4096}", False))
        return r
    pre_dma = len(T)
    for txt, _ in dma_lines(0): t(txt)
    QST = [49152, 114688, 131072, 147456]
    def q_dma(t):
        t("v_lshlrev_b32 v137, 4, v131")
        t("s_lshl_b32 s60, s52, 3")
        t("s_lshl_b32 s61, s48, 1"); t("s_add_u32 s60, s60, s61"); t("s_lshl_b32 s60, s60, 13")
        t("s_lshl_b32 s61, s48, 14"); t("s_add_u32 s61, s61, 98304"); t("s_cmp_eq_u32 s48, 0"); t("s_cselect_b32 s61, 49152, s61")
        for g in range(4):
            t(f"s_add_u32 m0, s61, {g*4096}")
            if g: t("s_add_u32 s60, s60, 4096")
            else: t("s_nop 0")
            for k in range(4):
                t(f"buffer_load_dwordx4 v137, s[12:15], s60 offen offset:{k*1024}{'' if o.get('qplain') else CS} lds")
    def q_read(t):
        t("v_lshlrev_b32 v137, 4, v131")
        for qt in range(4):
            t(f"s_lshl_b32 s60, s50, 1"); t(f"s_add_u32 s60, s60, {qt}"); t("s_and_b32 s60, s60, 3")
            t("s_lshl_b32 s61, s49, 2"); t("s_add_u32 s60, s60, s61")
            t("s_lshr_b32 s61, s60, 1"); t("s_lshl_b32 s62, s61, 14"); t("s_add_u32 s62, s62, 98304")
            t("s_cmp_eq_u32 s61, 0"); t("s_cselect_b32 s62, 49152, s62")
            t("s_and_b32 s60, s60, 1"); t("s_lshl_b32 s60, s60, 13"); t("s_add_u32 s62, s62, s60")
            t(f"v_add_u32 v{140+qt}, s62, v137")
    def q_read2(t):
        for j in range(8):
            for qt in range(4):
                t(f"ds_read_b128 {ar(aQ+(qt*8+j)*4,4)}, v{140+qt} offset:{j*1024}")
    q_dma(t)
    for n in (() if LEAN else (1, 2)):
        for txt, _ in dma_lines(n): t(txt)
    def kava_setup(t):
        t("v_and_b32 v136, 7, v132"); t("v_lshlrev_b32 v136, 1, v136")
        t("v_lshlrev_b32 v138, 9, v132")
        t("s_lshl_b32 s60, s50, 16"); t("v_add_u32 v138, s60, v138")
        for jj in range(4):
            t(f"v_add_u32 v139, {4*jj}, v133")
            t("v_xor_b32 v139, v139, v136")
            t(f"v_lshl_add_u32 v{KA+jj}, v139, 4, v138")
        t("v_lshrrev_b32 v136, 2, v132")
        t("v_lshl_add_u32 v136, v133, 2, v136")
        t("v_lshlrev_b32 v138, 9, v136")
        t("v_add_u32 v138, s60, v138")
        t("v_and_b32 v139, 1, v132"); t("v_lshl_add_u32 v138, v139, 3, v138")
        t("v_and_b32 v136, 7, v136"); t("v_lshlrev_b32 v136, 1, v136")
        t("v_bfe_u32 v139, v132, 1, 1")
        for dd in range(8):
            t(f"v_add_u32 v140, {2*dd}, v139")
            t("v_xor_b32 v140, v140, v136")
            t(f"v_lshl_add_u32 v{VA+dd}, v140, 4, v138")
    t("@KAVA")
    kava_setup(t)
    if not LEAN:
        for r in range(128): t(f"v_mov_b32 v{O+r}, 0")
        for r in range(128): t(f"v_accvgpr_write_b32 a{aO+r}, 0")
    for k in range(4): t(f"v_mov_b32 v{LS+k}, 0")
    if o.get('pkadd'):
        for k in range(8): t(f"v_mov_b32 v{224+k}, 0")
    t("s_mov_b32 s58, 0")
    q_read(t)
    if FUSED:
        i_kava = T.index("@KAVA")
        loads = T[pre_dma:i_kava]
        rest = T[i_kava+1:]
        T[:] = T[:pre_dma]
        if o.get('ct'):
            t("s_lshl_b32 s60, s53, 5"); t("s_max_u32 s61, s53, 1"); t("s_sub_u32 s61, s61, 1"); t("s_sub_u32 s60, s60, s61")
            t("s_lshl_b32 s62, s52, 2"); t("s_sub_u32 s62, s62, 32")
            t("v_add_u32 v150, s60, v131"); t("v_add_u32 v151, s62, v131")
            t("v_cmp_gt_u32 vcc, 32, v131"); t("s_nop 1"); t("v_cndmask_b32 v150, v151, v150, vcc")
            t("s_lshl_b32 s62, s52, 2"); t("v_mov_b32 v151, s62")
            t("v_cmp_gt_u32 vcc, 36, v131"); t("s_nop 1"); t("v_cndmask_b32 v150, v151, v150, vcc")
            t("v_min_u32 v150, 124, v150")
            t("s_mul_i32 s61, s51, 125"); t("v_add_u32 v150, s61, v150")
        else:
            t("s_lshl_b32 s60, s53, 5"); t("s_max_u32 s61, s53, 1"); t("s_sub_u32 s61, s61, 1"); t("s_sub_u32 s60, s60, s61")
            t("s_lshl_b32 s60, s60, 5"); t("s_mul_i32 s61, s51, 4000"); t("s_add_u32 s60, s60, s61"); t("s_lshr_b32 s60, s60, 6")
            t("s_lshl_b32 s62, s52, 7"); t("s_add_u32 s62, s62, s61"); t("s_lshr_b32 s62, s62, 6")
            t("v_add_u32 v150, s60, v131")
            t("v_add_u32 v151, s62, v131"); t("v_subrev_u32 v151, 18, v151")
            t("v_cmp_gt_u32 vcc, 18, v131"); t("s_nop 1"); t("v_cndmask_b32 v150, v151, v150, vcc")
            t("v_mov_b32 v151, s62")
            t("v_cmp_gt_u32 vcc, 21, v131"); t("s_nop 1"); t("v_cndmask_b32 v150, v151, v150, vcc")
            t("v_min_u32 v150, 124, v150")
        t("v_lshlrev_b32 v150, 7, v150"); t(f"v_add_u32 v150, {FLQ}, v150")
        XAF = FF and o.get('xaflag', True) and not o.get('ct')
        if XAF:
            t("v_add_u32 v152, 4, v150"); t("v_cmp_gt_u32 vcc, 18, v131"); t("s_nop 1"); t("v_cndmask_b32 v150, v150, v152, vcc")
        if o.get('wfpf', False):
            t("v_subrev_u32 v151, 40, v131"); t("v_lshlrev_b32 v152, 7, v151"); t(f"v_add_u32 v152, {FLW}, v152")
            t("v_cmp_gt_u32 vcc, 6, v151"); t("s_nop 1"); t("v_cndmask_b32 v150, v150, v152, vcc")
        if FF:
            EARLY = LEAN and o.get('early', False)
            if EARLY: t("v_readfirstlane_b32 s3, v243")
            t("buffer_load_dword v151, v150, s[44:47], 0 offen sc1")
            DEF = o.get('defer', True)
            if DEF:
                t("s_cmp_eq_u32 s98, 1"); t("s_cbranch_scc0 K1_NODEF")
                t("s_waitcnt lgkmcnt(0)")
                for half in range(2):
                    for k in range(4):
                        t(f"buffer_store_dwordx4 v[{64+(half*4+k)*4}:{67+(half*4+k)*4}], v{228+k}, s[24:27], {'s89' if half else 's88'} offen offset:{k*1024} sc1")
                if EARLY:
                    t("K1_NODEF:")
                    T.extend(rest); rest = []
                    t("s_cmp_eq_u32 s98, 1"); t("s_cbranch_scc0 K1_NODEF2")
                t("s_waitcnt vmcnt(8)")
                if not EARLY: t("v_readfirstlane_b32 s3, v243"); t("s_nop 3")
                t("s_cmp_lg_u32 s3, 0"); t("s_cbranch_scc0 K1_TAGP")
                t("s_barrier")
                t("s_branch K1_NOFL")
                t("K1_NODEF2:" if EARLY else "K1_NODEF:")
            t("s_waitcnt vmcnt(0) lgkmcnt(0)")
            if not EARLY: t("v_readfirstlane_b32 s3, v243"); t("s_nop 3")
            t("s_cmp_lg_u32 s3, 0"); t("s_cbranch_scc1 K1_TAGD")
            t("K1_TAGP:")
            t("buffer_load_dword v154, off, s[92:95], 0 sc1"); t("s_waitcnt vmcnt(0)")
            t("v_readfirstlane_b32 s3, v154"); t("s_nop 3")
            t("s_cmp_lg_u32 s3, 0"); t("s_cbranch_scc1 K1_TAGD"); t("s_sleep 1")
            t("s_add_u32 s101, s101, 1"); t("s_cmp_lt_u32 s101, 0x400000"); t("s_cbranch_scc1 K1_TAGP")
            t("K1_TAGD:")
            t("s_barrier")
            if o.get('defer', True): t("s_cmp_eq_u32 s98, 1"); t("s_cbranch_scc1 K1_NOFL")
            t("s_cmp_eq_u32 s48, 0"); t("s_cbranch_scc0 K1_NOFL")
            t("v_mov_b32 v152, s3"); t("v_mov_b32 v153, s3")
            t("v_cmp_eq_u32 vcc, 0, v131"); t("s_and_saveexec_b64 s[70:71], vcc")
            t("buffer_store_dwordx2 v[152:153], off, s[44:47], s67 sc1")
            t("s_mov_b64 exec, s[70:71]")
            t("K1_NOFL:")
            t("v_cmp_ne_u32 vcc, s3, v151"); t("s_nop 1"); t("s_cmp_eq_u64 vcc, 0"); t("s_cbranch_scc1 K2_QD")
        if XAF:
            t("s_mov_b32 s66, 0")
            t("K2_QA:")
            t("s_and_b32 s60, vcc_lo, 0x3ffff"); t("s_cmp_eq_u32 s60, 0"); t("s_cbranch_scc1 K2_QAD")
            t(f"s_sleep {o.get('qsleep', 1)}")
            t("buffer_load_dword v151, v150, s[44:47], 0 offen sc1"); t("s_waitcnt vmcnt(0)")
            t("v_cmp_ne_u32 vcc, s3, v151"); t("s_nop 1")
            t("s_add_u32 s101, s101, 1"); t("s_cmp_lt_u32 s101, 0x400000"); t("s_cbranch_scc1 K2_QA")
            t("K2_QAD:")
            for n in range(1 if LEAN else 3):
                for txt, _ in dma_lines(n): t(txt)
            t("K2_QP:")
            t("buffer_load_dword v151, v150, s[44:47], 0 offen sc1")
            t("s_waitcnt vmcnt(0)")
            t("v_cmp_ne_u32 vcc, s3, v151")
            t("s_nop 1")
            t("s_cmp_eq_u64 vcc, 0"); t("s_cbranch_scc1 K2_QB"); t(f"s_sleep {o.get('qsleep', 1)}")
            t("s_add_u32 s101, s101, 1"); t("s_cmp_lt_u32 s101, 0x400000"); t("s_cbranch_scc1 K2_QP")
            t("K2_QB:")
            q_dma(t)
            t("s_branch K2_QE")
            t("K2_QD:")
            t("s_mov_b32 s66, 1")
            T.extend(loads)
            t("K2_QE:")
        else:
            t("K2_QP:")
            t("buffer_load_dword v151, v150, s[44:47], 0 offen sc1")
            t("s_waitcnt vmcnt(0)")
            t("v_cmp_ne_u32 vcc, s3, v151")
            t("s_nop 1")
            t("s_cmp_eq_u64 vcc, 0"); t("s_cbranch_scc1 K2_QD"); t("s_sleep 1")
            t("s_add_u32 s101, s101, 1"); t("s_cmp_lt_u32 s101, 0x400000"); t("s_cbranch_scc1 K2_QP")
            t("K2_QD:")
            T.extend(loads)
        if o.get('wfpf', False):
            T.extend(cap_(lambda e: srd(e, 16, 's4', 's5', WF_OFF, 262144)))
            t("s_lshr_b32 s60, s2, 3"); t("s_lshl_b32 s60, s60, 13"); t("s_lshl_b32 s61, s48, 11"); t("s_add_u32 s60, s60, s61")
            t("v_lshlrev_b32 v150, 4, v131")
            t("buffer_load_dwordx4 v[224:227], v150, s[16:19], s60 offen sc1")
            t("buffer_load_dwordx4 v[228:231], v150, s[16:19], s60 offen offset:1024 sc1")
        if not LEAN: T.extend(xcc_blk)
        T.extend(rest)
    else:
        T.remove("@KAVA")
    if LEAN:
        t("s_waitcnt vmcnt(0)")
        t("s_barrier")
        T.extend(xcc_blk)
    else:
        if FUSED and FF and o.get('xaflag', True) and not o.get('ct'):
            t("s_cmp_eq_u32 s66, 1"); t("s_cbranch_scc1 K2_W16"); t("s_waitcnt vmcnt(0)"); t("K2_W16:")
        t("s_waitcnt vmcnt(18)" if (FUSED and o.get('wfpf', False)) else "s_waitcnt vmcnt(16)")
        t("s_barrier")
    if FUSED and FF and o.get('defer', True):
        t("s_cmp_eq_u32 s98, 1"); t("s_cbranch_scc0 K2_NODF"); t("s_cmp_eq_u32 s48, 0"); t("s_cbranch_scc0 K2_NODF")
        t("v_mov_b32 v152, s3"); t("v_mov_b32 v153, s3"); t("v_mbcnt_lo_u32_b32 v154, -1, 0"); t("v_mbcnt_hi_u32_b32 v154, -1, v154")
        t("v_cmp_eq_u32 vcc, 0, v154"); t("s_and_saveexec_b64 s[70:71], vcc")
        t("buffer_store_dwordx2 v[152:153], off, s[44:47], s67 sc1")
        t("s_mov_b64 exec, s[70:71]")
        t("K2_NODF:")
    if o['stamp']: t("s_memtime s[76:77]"); t("s_memrealtime s[78:79]"); t("s_waitcnt lgkmcnt(0)")
    q_read2(t)
    L += hazard.autofix(T)
    DF = o['DF']
    ev = []; seq = [0]
    def add(tm, kind, prio=5, **kw):
        seq[0] += 1; ev.append((tm, prio, seq[0], kind, kw))
    def TT(i, n): return 128*i + n
    NT = 16
    for n in range(NT):
        slot = n % 4
        for kt in range(2):
            for j in range(8):
                f = 8*kt + j
                tm = TT(n-1, 4*f); tr = tm - 4*DF
                ring = RING + 4*(f % 4)
                off = slot*SLOT + kt*8192 + (j >> 2)*256
                add(tr, 'lds', prio=2, text=f"ds_read_b128 {vr(ring,4)}, v{KA+(j&3)} offset:{off}", tag=('K', n, f))
                if n < NT:
                    for qt in range(4):
                        acc = vr(Sreg(kt, qt), 4)
                        c = acc if j else ('0' if n == 0 else vr(NEGM+4*qt, 4))
                        add(tm+qt, 'mfma', prio=0, text=f"{M16} {acc}, {vr(ring,4)}, {ar(aQ+(qt*8+j)*4,4)}, {c}",
                            need=([('K', n, f)] if qt == 0 else []) + ([('Q', qt, j)] if n == 0 else []))
    for n in range(NT):
        slot = n % 4
        for dt in range(16):
            f = 16 + dt
            tm = TT(n, 4*f); tr = tm - 4*DF
            ring = RING + 4*(f % 4)
            for u in range(2):
                off = slot*SLOT + u*8192 + (dt >> 3)*256
                add(tr, 'lds', prio=2, text=f"ds_read_b64_tr_b16 {vr(ring+2*u,2)}, v{VA+(dt&7)} offset:{off}", tag=('V', n, dt, u))
            for qt in range(4):
                add(tm+qt, 'mfma', prio=0, text=f"{M16} {Oreg(dt,qt)}, {vr(ring,4)}, {vr(P[n%2]+4*qt,4)}, {Oreg(dt,qt)}",
                    need=[('V', n, dt, 0), ('V', n, dt, 1)] if qt == 0 else [])
        for kt in range(2):
            for el in range(16 if o.get('valu', True) else 0):
                qt, r = el >> 2, el & 3
                te = TT(n-1, (o['e0'] if kt == 0 else o['e1']) + o['estep']*el)
                reg = Sreg(kt, qt) + r
                add(te, 'valu', prio=3, text=f"v_exp_f32 v{reg}, v{reg}")
                if not o.get('pkadd'):
                    add(te+o['addd'], 'valu', prio=3, text=f"v_add_f32 v{LS+qt}, v{LS+qt}, v{reg}")
                elif r % 2 == 1:
                    add(te+o['addd'], 'valu', prio=3, text=f"v_pk_add_f32 v[{224+2*qt}:{225+2*qt}], v[{224+2*qt}:{225+2*qt}], v[{reg-1}:{reg}]")
                if r % 2 == 1:
                    add(te+o['cvtd'], 'valu', prio=4, text=f"v_cvt_pk_bf16_f32 v{P[n%2]+4*qt+2*kt+r//2}, v{reg-1}, v{reg}")
    if LEAN:
        k = 0
        for n in (1, 2):
            lines = dma_lines(n)
            for idx, (txt, vm) in enumerate(lines):
                if vm:
                    add(TT(-1, 1 + 4*k), 'dma', prio=7, text=txt, tile=n); k += 1
                elif idx == len(lines) - 1:
                    add(TT(-1, 1 + 4*(k-1)), 'salu', prio=8, text=txt)
                else:
                    add(TT(-1, 1 + 4*k), 'salu', prio=6, text=txt)
        for r in range(128): add(TT(-1, r // 2), 'valu', prio=4, text=f"v_mov_b32 v{O+r}, 0")
    for i in range(-1, NT-2):
        add(TT(i, 100 if (LEAN and i == -1) else o['bslot']), 'bar', prio=6, it=i)
        if i >= 0 and i + 3 < NT and o.get('dma', True):
            k = 0
            for txt, vm in dma_lines((i+3) % 4):
                tm = TT(i, o['dma0'] + o['dmastep']*k)
                if vm:
                    add(tm, 'dma', prio=7, text=txt, tile=i+3); k += 1
                else:
                    add(tm if k < 8 else TT(i, o['dma0'] + o['dmastep']*7), 'salu', prio=6 if k < 8 else 8, text=txt)
    tail_ev = []
    ev.sort(key=lambda x: (x[0], x[1], x[2]))
    W = Waiter()
    for n in (() if LEAN else (1, 2)):
        for k in range(8): W.issue('vm', ('T', n))
    if FUSED and o.get('wfpf', False):
        W.issue('vm', 'PF0'); W.issue('vm', 'PF1')
    for j in range(8):
        for qt in range(4): W.issue('lgkm', ('Q', qt, j))
    its = {}
    for x in ev:
        tm, _, _, kind, kw = x
        it = max(tm // 128, -1)
        out = its.setdefault(it, [])
        if kind == 'mfma':
            n = W.need('lgkm', kw['need'])
            if n is not None: out.append(f"s_waitcnt lgkmcnt({n})")
            out.append(kw['text'])
            if tm == TT(-1, 63):
                out.append("@FIXUP")
        elif kind == 'lds':
            out.append(kw['text']); W.issue('lgkm', kw['tag'])
        elif kind == 'bar':
            n = W.need('vm', [('T', kw['it']+2)])
            if n is not None: out.append(f"s_waitcnt vmcnt({n})")
            if o.get('barrier', True) or kw['it'] < 0: out.append("s_barrier")
        elif kind == 'dma':
            out.append(kw['text']); W.issue('vm', ('T', kw['tile']))
        else:
            out.append(kw['text'])
    for i in range(8, 13):
        assert its[i] == its[i-4], (i, [(a, b) for a, b in zip(its[i], its[i-4]) if a != b][:5])
    pro = its[-1]
    fi = pro.index("@FIXUP")
    if not o.get('valu', True):
        its[15] = its[15] + ["v_add_f32 v248, v248, v248"]
    pre_valu = [x for x in pro[:fi] if x.startswith('v_exp') or x.startswith('v_add_f32') or x.startswith('v_cvt') or x.startswith('v_pk_add')]
    pro_a = [x for x in pro[:fi] if x not in pre_valu]
    fix = []
    fx = fix.append
    fx("s_nop 7")
    for qt in range(4):
        a, b = Sreg(0, qt), Sreg(1, qt)
        fx(f"v_max3_f32 v{NEGM+qt}, v{a}, v{a+1}, v{a+2}")
        fx(f"v_max3_f32 v{NEGM+qt}, v{NEGM+qt}, v{a+3}, v{b}")
        fx(f"v_max3_f32 v{NEGM+qt}, v{NEGM+qt}, v{b+1}, v{b+2}")
        fx(f"v_max_f32 v{NEGM+qt}, v{NEGM+qt}, v{b+3}")
    for sw in ("v_permlane16_swap_b32", "v_permlane32_swap_b32"):
        for qt in range(4): fx(f"v_mov_b32 v{NEGM+4+qt}, v{NEGM+qt}")
        fx("s_nop 1")
        for qt in range(4): fx(f"{sw} v{NEGM+qt}, v{NEGM+4+qt}")
        fx("s_nop 1")
        for qt in range(4): fx(f"v_max_f32 v{NEGM+qt}, v{NEGM+qt}, v{NEGM+4+qt}")
    fx("v_mbcnt_lo_u32_b32 v254, -1, 0"); fx("v_mbcnt_hi_u32_b32 v254, -1, v254")
    fx("v_lshlrev_b32 v254, 4, v254")
    fx(f"s_lshl_b32 s60, s48, 10"); fx(f"s_add_u32 s60, s60, {MX}")
    fx("v_add_u32 v255, s60, v254")
    fx(f"ds_write_b128 v255, {vr(NEGM,4)}")
    fx("s_xor_b32 s60, s60, 2048")
    fx("v_add_u32 v255, s60, v254")
    fx("s_waitcnt lgkmcnt(0)")
    fx("s_barrier")
    fx(f"ds_read_b128 {vr(NEGM+4,4)}, v255")
    fx("s_waitcnt lgkmcnt(0)")
    for qt in range(4): fx(f"v_max_f32 v{NEGM+8+qt}, v{NEGM+qt}, v{NEGM+4+((qt+2)&3)}")
    fx(f"v_mov_b32 v{MREF}, v{NEGM+8}"); fx(f"v_mov_b32 v{MREF+1}, v{NEGM+9}")
    for kt in range(2):
        for qt in range(4):
            for r in range(4): fx(f"v_sub_f32 v{Sreg(kt,qt)+r}, v{Sreg(kt,qt)+r}, v{NEGM+8+qt}")
    for qt in range(4): fx(f"v_mov_b32 v{254}, v{NEGM+8+qt}") if False else None
    for qt in (3, 1, 0):
        for r in range(4): fx(f"v_sub_f32 v{NEGM+4*qt+r}, 0, v{NEGM+8+qt}") if qt != 2 else None
    fx(f"v_sub_f32 v254, 0, v{NEGM+10}")
    for r in range(4): fx(f"v_mov_b32 v{NEGM+8+r}, v254")
    L += hazard.autofix(pro_a + fix + pre_valu + pro[fi+1:])
    if o['stamp']:
        e("s_memtime s[24:25]")
    e("K2_LOOP:")
    body = {u: its[4+u] for u in range(4)}
    L += body[0]
    e("s_cmp_eq_u32 s58, 3")
    e("s_cbranch_scc1 K2_EPI")
    L += body[1]; L += body[2]; L += body[3]
    e("s_add_u32 s58, s58, 1")
    e("s_branch K2_LOOP")
    e("K2_EPI:")
    if o['stamp']:
        e("s_memtime s[26:27]"); e("s_waitcnt lgkmcnt(0)"); e("s_sub_u32 s101, s26, s24"); e("s_sub_u32 s100, s24, s76")
    if FUSED:
        TA, TB, TC = (248, 249, 250) if o.get('pkadd') else (224, 225, 226)
        pre13 = []
        p = pre13.append
        p("s_lshl_b32 s60, s52, 7"); p("s_lshl_b32 s61, s53, 5"); p("s_add_u32 s60, s60, s61"); p("s_min_u32 s60, s60, 3968")
        p("s_mul_i32 s61, s51, 4000"); p("s_add_u32 s60, s60, s61")
        sh = 5 if o.get('ct') else 6
        if o.get('ct'):
            p("s_lshr_b32 s62, s60, 5")
        p("s_max_u32 s61, s60, 2"); p("s_sub_u32 s61, s61, 2"); p(f"s_lshr_b32 s61, s61, {sh}")
        p("s_add_u32 s60, s60, 33"); p("s_min_u32 s60, s60, 7999"); p(f"s_lshr_b32 s60, s60, {sh}")
        p(f"v_mbcnt_lo_u32_b32 v{TA}, -1, 0"); p(f"v_mbcnt_hi_u32_b32 v{TA}, -1, v{TA}")
        p(f"v_min_u32 v{TB}, 7, v{TA}"); p(f"v_lshlrev_b32 v{TB}, 7, v{TB}"); p(f"v_add_u32 v{TB}, {FLW - 256}, v{TB}")
        p("s_lshl_b32 s61, s61, 7"); p(f"s_add_u32 s61, s61, {FLU}"); p(f"v_mov_b32 v{TC}, s61")
        p(f"v_cmp_eq_u32 vcc, 0, v{TA}"); p("s_nop 1"); p(f"v_cndmask_b32 v{TB}, v{TB}, v{TC}, vcc")
        p("s_lshl_b32 s60, s60, 7"); p(f"s_add_u32 s60, s60, {FLU}"); p(f"v_mov_b32 v{TC}, s60")
        p(f"v_cmp_eq_u32 vcc, 1, v{TA}"); p("s_nop 1"); p(f"v_cndmask_b32 v{TB}, v{TB}, v{TC}, vcc")
        if o.get('ct'):
            p("s_lshl_b32 s62, s62, 7"); p(f"s_add_u32 s62, s62, {FLU}"); p(f"v_mov_b32 v{TC}, s62")
            p(f"v_cmp_eq_u32 vcc, 8, v{TA}"); p("s_nop 1"); p(f"v_cndmask_b32 v{TB}, v{TB}, v{TC}, vcc")
        p(f"buffer_load_dword v{TC}, v{TB}, s[44:47], 0 offen sc1")
        IP2 = o.get('ipf2', False) and not o.get('pkadd')
        if IP2:
            p("s_getpc_b64 s[60:61]")
            p("K2_PCREF:")
            p("s_add_u32 s60, s60, K2_NOMASK-K2_PCREF"); p("s_addc_u32 s61, s61, 0")
            p("s_lshr_b32 s62, s2, 3"); p("s_lshl_b32 s62, s62, 2"); p("s_add_u32 s62, s62, s48"); p(f"s_min_u32 s62, s62, {o.get('ipf2n', 15)}"); p("s_lshl_b32 s62, s62, 10")
            p(f"v_lshlrev_b32 v227, 4, v{TA}"); p("v_add_u32 v227, s62, v227")
            p("global_load_dwordx4 v[228:231], v227, s[60:61]")
        L += hazard.autofix(pre13)
        i13 = list(its[13])
        bi = i13.index("s_barrier")
        assert i13[bi-1] == "s_waitcnt vmcnt(0)", i13[bi-3:bi+1]
        i13[bi-1] = "s_waitcnt vmcnt(2)" if IP2 else "s_waitcnt vmcnt(1)"
        chk = ["s_waitcnt vmcnt(0)", "K2_TP:", f"v_cmp_ne_u32 vcc, s3, v{TC}", "s_nop 1", "s_cmp_eq_u64 vcc, 0", "s_cbranch_scc1 K2_TD", "s_sleep 1",
               f"buffer_load_dword v{TC}, v{TB}, s[44:47], 0 offen sc1", "s_waitcnt vmcnt(0)", "s_add_u32 s101, s101, 1", "s_cmp_lt_u32 s101, 0x400000", "s_cbranch_scc1 K2_TP", "K2_TD:"]
        L += i13 + chk
    else:
        L += its[13]
    e("s_cmp_eq_u32 s59, 3")
    e("s_cbranch_scc0 K2_NOMASK")
    for r in range(16): e(f"v_mov_b32 v{NEGM+r}, 0xf149f2ca")
    e("s_nop 1")
    e("K2_NOMASK:")
    import gen_tail
    tail, resume = gen_tail.gen_tail(o, its[14], its[15], W)
    L += tail
    e("s_branch K2_END")
    T = []; t = T.append
    M_, MN, AL = NEGM, NEGM + 4, NEGM + 8
    t("K2_SLOW:")
    t("s_mov_b32 s54, 1")
    t("s_waitcnt vmcnt(0) lgkmcnt(0)")
    t("s_barrier")
    t("v_mbcnt_lo_u32_b32 v131, -1, 0"); t("v_mbcnt_hi_u32_b32 v131, -1, v131")
    dv_setup(t)
    S_2 = lambda fn: (lambda b: (fn(b.append), T.extend(b)))([])
    t("s_mul_i32 s60, s51, 2048000"); t(f"s_add_u32 s60, s60, {QF_OFF:#x}")
    S_2(lambda e: srd(e, 12, 's4', 's5', 's60', 250*8192))
    q_dma(t)
    kava_setup(t)
    for r in range(128): t(f"v_mov_b32 v{O+r}, 0")
    for r in range(128): t(f"v_accvgpr_write_b32 a{aO+r}, 0")
    for k in range(4): t(f"v_mov_b32 v{LS+k}, 0"); t(f"v_mov_b32 v{M_+k}, 0xf149f2ca")
    t("s_lshl_b32 s56, s50, 16"); t("s_lshl_b32 s60, s49, 13"); t("s_add_u32 s56, s56, s60")
    t("s_mov_b32 s57, 0"); t("s_mov_b32 s58, 0")
    t("s_waitcnt vmcnt(0)")
    t("s_barrier")
    q_read(t); q_read2(t)
    t("s_waitcnt lgkmcnt(0)")
    t("K2_SL_LOOP:")
    t("s_barrier")
    for txt, _ in dma_lines(0): t(txt)
    t("s_waitcnt vmcnt(0)")
    t("s_barrier")
    t("s_lshl_b32 s60, s58, 14"); t("s_cmp_lt_u32 s60, s55")
    t("s_cbranch_scc0 K2_SL_NEXT")
    for kt in range(2):
        for j in range(8):
            t(f"ds_read_b128 {vr(RING,4)}, v{KA+(j&3)} offset:{kt*8192 + (j>>2)*256}")
            t("s_waitcnt lgkmcnt(0)")
            for qt in range(4):
                acc = vr(Sreg(kt, qt), 4)
                t(f"{M16} {acc}, {vr(RING,4)}, {ar(aQ+(qt*8+j)*4,4)}, {acc if j else '0'}")
            t("s_nop 3")
    t("s_nop 7")
    for qt in range(4):
        a, b = Sreg(0, qt), Sreg(1, qt)
        t(f"v_max3_f32 v{MN+qt}, v{a}, v{a+1}, v{a+2}")
        t(f"v_max3_f32 v{MN+qt}, v{MN+qt}, v{a+3}, v{b}")
        t(f"v_max3_f32 v{MN+qt}, v{MN+qt}, v{b+1}, v{b+2}")
        t(f"v_max3_f32 v{MN+qt}, v{MN+qt}, v{b+3}, v{M_+qt}")
    for sw in ("v_permlane16_swap_b32", "v_permlane32_swap_b32"):
        for qt in range(4): t(f"v_mov_b32 v{AL+qt}, v{MN+qt}")
        t("s_nop 1")
        for qt in range(4): t(f"{sw} v{MN+qt}, v{AL+qt}")
        t("s_nop 1")
        for qt in range(4): t(f"v_max_f32 v{MN+qt}, v{MN+qt}, v{AL+qt}")
    for qt in range(4):
        t(f"v_sub_f32 v{AL+qt}, v{M_+qt}, v{MN+qt}"); t(f"v_exp_f32 v{AL+qt}, v{AL+qt}"); t(f"v_mov_b32 v{M_+qt}, v{MN+qt}")
    t("s_nop 0")
    for qt in range(4):
        t(f"v_mul_f32 v{LS+qt}, v{LS+qt}, v{AL+qt}")
        for kt in range(2):
            for r in range(4):
                reg = Sreg(kt, qt) + r
                t(f"v_sub_f32 v{reg}, v{reg}, v{M_+qt}"); t(f"v_exp_f32 v{reg}, v{reg}"); t("s_nop 0")
                t(f"v_add_f32 v{LS+qt}, v{LS+qt}, v{reg}")
            for h2 in range(2):
                t(f"v_cvt_pk_bf16_f32 v{P[0]+4*qt+2*kt+h2}, v{Sreg(kt,qt)+2*h2}, v{Sreg(kt,qt)+2*h2+1}")
    def rescale():
        for dt in range(16):
            for qt in range(2):
                for r in range(4): t(f"v_mul_f32 v{O+(dt*2+qt)*4+r}, v{O+(dt*2+qt)*4+r}, v{AL+qt}")
                for r in range(4):
                    a = aO + (dt*2+qt)*4 + r
                    t(f"v_accvgpr_read_b32 v{NEGM+12+r}, a{a}")
                for r in range(4): t(f"v_mul_f32 v{NEGM+12+r}, v{NEGM+12+r}, v{AL+2+qt}")
                for r in range(4):
                    a = aO + (dt*2+qt)*4 + r
                    t(f"v_accvgpr_write_b32 a{a}, v{NEGM+12+r}")
    rescale()
    t("s_nop 1")
    for dt in range(16):
        for u in range(2):
            t(f"ds_read_b64_tr_b16 {vr(RING+2*u,2)}, v{VA+(dt&7)} offset:{u*8192 + (dt>>3)*256}")
        t("s_waitcnt lgkmcnt(0)")
        for qt in range(4):
            t(f"{M16} {Oreg(dt,qt)}, {vr(RING,4)}, {vr(P[0]+4*qt,4)}, {Oreg(dt,qt)}")
        t("s_nop 3")
    t("s_nop 7")
    t("K2_SL_NEXT:")
    t("s_add_u32 s58, s58, 1"); t("s_cmp_lt_u32 s58, 16"); t("s_cbranch_scc1 K2_SL_LOOP")
    t("s_barrier")
    t("v_mbcnt_lo_u32_b32 v254, -1, 0"); t("v_mbcnt_hi_u32_b32 v254, -1, v254"); t("v_lshlrev_b32 v254, 4, v254")
    t(f"s_lshl_b32 s60, s48, 10"); t(f"s_add_u32 s60, s60, {MX}"); t("v_add_u32 v255, s60, v254")
    t(f"ds_write_b128 v255, {vr(M_,4)}")
    t("s_xor_b32 s60, s60, 2048"); t("v_add_u32 v255, s60, v254")
    t("s_waitcnt lgkmcnt(0)"); t("s_barrier")
    t(f"ds_read_b128 {vr(MN,4)}, v255"); t("s_waitcnt lgkmcnt(0)")
    for qt in range(4): t(f"v_max_f32 v{RING+qt}, v{M_+qt}, v{MN+((qt+2)&3)}")
    for qt in range(4):
        t(f"v_sub_f32 v{AL+qt}, v{M_+qt}, v{RING+qt}"); t(f"v_exp_f32 v{AL+qt}, v{AL+qt}")
    t("s_nop 0")
    for qt in range(4): t(f"v_mul_f32 v{LS+qt}, v{LS+qt}, v{AL+qt}")
    t(f"v_mov_b32 v{MREF}, v{RING}"); t(f"v_mov_b32 v{MREF+1}, v{RING+1}")
    rescale()
    t("s_barrier")
    L += hazard.autofix(T + resume)
    e("K2_END:")
    e("s_endpgm")
    i0 = L.index("K2_LOOP:"); i1 = L.index("K2_EPI:")
    lin = L[i0-60:i1] + L[i0:i1] + L[i1:i1+700]
    errs = hazard.check(lin, 'k2f')
    return L, ([] if FUSED else kernel_desc(name, 512, 256)), errs
```
